```python
import torch

def _softmax(x, axis=-1):
    return torch.softmax(x, dim=axis)
def _gelu(x):
    return torch.nn.functional.gelu(x, approximate="tanh")
def _silu(x):
    return torch.nn.functional.silu(x)
def _sigmoid(x):
    return torch.sigmoid(x)
def _layernorm(x, axis=-1, eps=1e-5):
    m = x.mean(dim=axis, keepdim=True)
    v = x.var(dim=axis, keepdim=True, unbiased=False)
    return (x - m) / torch.sqrt(v + eps)
def _scatter_add(tgt, idx, src, axis=0):
    return tgt.clone().index_add_(axis, idx, src)
def _segment_sum(src, seg, n):
    out = torch.zeros((n,) + src.shape[1:], dtype=src.dtype)
    return out.index_add_(0, seg, src)
def _pad(x, pw):
    flat = tuple(v for pair in reversed(pw) for v in pair)
    return torch.nn.functional.pad(x, flat)

kernel_name = 'standalone__kv_cache_quant_int4_int2_kv_with_per_channel_or_per_token_scales__decode'

def setup_inputs():

    _w = (lambda a: (lambda t: t.to(torch.bfloat16) if t.is_floating_point() else t)(torch.as_tensor(a)))
    B = 1
    Sq = 1
    Skv = 32768
    Hq = 32
    Hkv = 32
    Dh = 192
    bits = 4
    G = 64
    if G <= 0 or G >= Skv:
        G = max(1, Skv // 2)
    Skv = (Skv // G) * G
    ngk = Skv // G
    qmax = (1 << bits) - 1
    return {
        "q": _w((lambda *s: torch.randn(*s, dtype=torch.bfloat16) * 1.6)(B, Hq, Sq, Dh)),
        "qk": _w(torch.randint(0, qmax + 1, (B, Hkv, Skv, Dh)).to(torch.int32)),
        "qv": _w(torch.randint(0, qmax + 1, (B, Hkv, Skv, Dh)).to(torch.int32)),
        "k_scales": _w(torch.abs((lambda *s: torch.randn(*s, dtype=torch.bfloat16) * 1.6)(B, Hkv, ngk, Dh)) * 0.05 + 0.02),
        "k_zeros": _w((lambda *s: torch.randn(*s, dtype=torch.bfloat16) * 1.6)(B, Hkv, ngk, Dh) + float(qmax) / 2.0),
        "v_scales": _w(torch.abs((lambda *s: torch.randn(*s, dtype=torch.bfloat16) * 0.05)(B, Hkv, Skv, 1)) * 0.05 + 0.02),
        "v_zeros": _w((lambda *s: torch.randn(*s, dtype=torch.bfloat16) * 0.05)(B, Hkv, Skv, 1) + float(qmax) / 2.0),
    }

def reference(q, qk, qv, k_scales, k_zeros, v_scales, v_zeros):
    B, Hq, Sq, Dh = q.shape
    Hkv, Skv = qk.shape[1], qk.shape[2]
    ngk = k_scales.shape[2]
    G = Skv // ngk
    ks = (lambda x, n, axis: torch.repeat_interleave(x, n, dim=axis))(k_scales, G, axis=2)
    kz = (lambda x, n, axis: torch.repeat_interleave(x, n, dim=axis))(k_zeros, G, axis=2)
    k = ((lambda x, dt: x.to(dt))(qk, q.dtype) - kz) * ks
    v = ((lambda x, dt: x.to(dt))(qv, q.dtype) - v_zeros) * v_scales
    rep = Hq // Hkv
    if rep > 1:
        k = (lambda x, n, axis: torch.repeat_interleave(x, n, dim=axis))(k, rep, axis=1)
        v = (lambda x, n, axis: torch.repeat_interleave(x, n, dim=axis))(v, rep, axis=1)
    scale = float(Dh) ** -0.5
    logits = torch.einsum("bhqd,bhkd->bhqk", q, k) * scale
    p = _softmax(logits, axis=-1)
    o = torch.einsum("bhqk,bhkd->bhqd", p, v)
    return o
```

```python
import re
import sys
import math
import struct

NAME = "standalone__kv_cache_quant_int4_int2_kv_with_per_channel_or_per_token_scales__decode"

H = 32
SKV = 32768
DH = 192
G = 64
NGRP = SKV // G
ROWB = DH * 4
HEADB = SKV * ROWB
GRPB = G * ROWB
QUADB = 4 * ROWB
PART_STRIDE = 1024

HEADER = """; Kernarg layout for this problem (80 bytes, ptrs only, base s[0:1]):
;   offset  40: d_in[5] v_scales  shape=(1, 32, 32768, 1) dtype=bfloat16 strides=(2097152, 65536, 2, 2) contiguous=True
;   offset  48: d_in[6] v_zeros  shape=(1, 32, 32768, 1) dtype=bfloat16 strides=(2097152, 65536, 2, 2) contiguous=True
; Generated by gen.py (hand-written generator).  Params: {params}
"""


def f32hex(x):
    return "0x%08x" % struct.unpack("<I", struct.pack("<f", x))[0]


_VREG = re.compile(r"\bv(\d+)\b")
_VRANGE = re.compile(r"\bv\[(\d+):(\d+)\]")
_TRANS = ("v_exp_f32", "v_rcp_f32", "v_log_f32", "v_rsq_f32", "v_sqrt_f32")


def vregs(text):
    out = [int(x) for x in _VREG.findall(text)]
    for a, b in _VRANGE.findall(text):
        out += list(range(int(a), int(b) + 1))
    return out


class Emit:
    def __init__(self):
        self.lines = []
        self.vm = []
        self.n = 0
        self.wr = {}
        self.tr = {}
        self.pend = []

    def _raw(self, s):
        self.lines.append("    " + s)
        m = re.match(r"s_nop (\d+)", s)
        self.n += (int(m.group(1)) + 1) if m else 1

    def need(self, s):
        op = s.split()[0]
        if not op.startswith("v_"):
            return 0
        ops = s[len(op):]
        regs = vregs(ops)
        need = 0
        first = ops.split(",")[0]
        srcs = vregs(ops[len(first):])
        if "_dpp" in op:
            for r in regs:
                if r in self.wr:
                    need = max(need, 2 - (self.n - self.wr[r] - 1))
        if op.startswith(("v_readfirstlane", "v_readlane")):
            for r in srcs:
                if r in self.wr:
                    need = max(need, 1 - (self.n - self.wr[r] - 1))
        if op not in _TRANS:
            rr = regs if op.startswith("v_fmac") else srcs
            for r in rr:
                if r in self.tr:
                    need = max(need, 1 - (self.n - self.tr[r] - 1))
        return max(need, 0)

    def _emit(self, s):
        k = self.need(s)
        if k > 0:
            self._raw("s_nop %d" % (k - 1))
        op = s.split()[0]
        if op.startswith("v_") and not op.startswith(("v_cmp", "v_readfirstlane", "v_readlane")):
            first = s[len(op):].split(",")[0]
            for r in vregs(first):
                self.wr[r] = self.n
                if op in _TRANS:
                    self.tr[r] = self.n
                else:
                    self.tr.pop(r, None)
        self._raw(s)

    def __call__(self, s):
        self._emit(s)
        if self.pend and self.need(self.pend[0]) == 0:
            self._emit(self.pend.pop(0))

    def defer(self, ops):
        self.pend += ops

    def flush(self):
        while self.pend:
            self._emit(self.pend.pop(0))

    def label(self, s):
        assert not self.pend
        self.lines.append(s + ":")
        self._raw("s_nop 1")

    def comment(self, s):
        self.lines.append("    ; " + s)

    def vmem(self, s, tag):
        self(s)
        self.vm.append(tag)

    def wait_tag(self, tag):
        idx = [i for i, t in enumerate(self.vm) if t == tag]
        if not idx:
            return
        last = idx[-1]
        n = len(self.vm) - 1 - last
        assert n <= 63, n
        self("s_waitcnt vmcnt(%d)" % n)
        self.vm = self.vm[last + 1:]

    def text(self):
        return "\n".join(self.lines) + "\n"


def gen(P):
    NW = P["nw"]
    NWG = P["nwg"]
    HC = P["hc"]
    TT = P["tt"]
    GS = P["gs"]
    DG = P["dg"]
    NT = P["nt"]
    NQ = TT // 4
    NL = NQ * 3
    assert NL % GS == 0
    NGS = 2 * NL // GS
    assert DG <= NGS // 2
    RS = min(d for d in range(1, 2 * NL + 1) if (2 * NL) % d == 0 and d >= (DG + 1) * GS)
    NPH = H // HC
    WPH = NWG // HC
    TSTEP = WPH * NW * TT
    assert TSTEP % G == 0 and SKV % TSTEP == 0 and G % TT == 0
    SPP = SKV // TSTEP
    NROWS = NW * 4
    PHB = NROWS * ROWB + NROWS * 8
    LDS_CNT = 0
    LDS_R0 = 128
    assert NPH * 4 <= LDS_R0
    LDS1 = max(LDS_R0 + NPH * PHB, P["ldspad"])
    assert LDS1 <= 160 * 1024
    pol = (" " + NT) if NT else ""
    C = (DH ** -0.5) * math.log2(math.e)

    e = Emit()
    V_KP = 2; V_VP = 3
    V_M = 4; V_L = 5; V_ZB = 6; V_PB = 7; V_VS = 8; V_VZ = 9; V_T0 = 10; V_T1 = 11
    V_ACC = 12; V_W = 24; V_RAW = 36
    V_S = 54
    V_KV = V_S + NQ
    NKV = (TT + 7) // 8
    V_RING = (V_KV + NKV + 3) // 4 * 4
    V_MG = V_RING + 4 * RS
    NVGPR = V_MG + 5 * NROWS
    assert NVGPR <= 256, NVGPR
    S_K = 8; S_V = 12; S_KS = 16; S_KZ = 20; S_VS = 24; S_VZ = 28; S_Q = 32; S_WS = 36
    S_HS = 40; S_R = 41; S_WAVE = 42; S_KOFF = 43; S_VOFF = 44; S_POFF = 45; S_VPOFF = 46; S_QOFF = 47
    S_C = 48; S_NC = 49; S_T = 50
    S_WG = 54; S_TOK = 55; S_I = 56; S_LAST = 57; S_PH = 58; S_LDSB = 59; S_REC = 60
    S_ST = 84

    k1 = "part_kernel"
    e.lines.append(".globl %s" % k1)
    e.lines.append(".p2align 8")
    e.lines.append(".type %s,@function" % k1)
    e.lines.append(k1 + ":")
    e("s_cmp_ge_u32 s2, %d" % NWG)
    e("s_cbranch_scc1 L_exit1")
    e("s_mov_b32 s%d, s2" % S_WG)
    if P["stamp"]:
        e("s_memrealtime s[%d:%d]" % (S_ST, S_ST + 1))
    e("s_load_dwordx16 s[64:79], s[0:1], 0")
    e("s_load_dwordx4 s[80:83], s[0:1], 64")
    e("v_lshrrev_b32 v%d, 6, v0" % V_T0)
    e("v_and_b32 v%d, 63, v0" % V_T1)
    e("v_readfirstlane_b32 s%d, v%d" % (S_WAVE, V_T0))
    e("v_lshrrev_b32 v%d, 4, v%d" % (V_T0, V_T1))
    e("v_and_b32 v%d, 15, v%d" % (V_T1, V_T1))
    e("v_mul_u32_u24 v%d, %d, v%d" % (V_KV, ROWB, V_T0))
    e("v_lshl_add_u32 v%d, v%d, 4, v%d" % (V_KV, V_T1, V_KV))
    for k in range(1, NKV):
        e("v_add_u32 v%d, %d, v%d" % (V_KV + k, k * 2 * QUADB, V_KV))
    e("v_lshlrev_b32 v%d, 3, v%d" % (V_KP, V_T1))
    e("v_and_b32 v%d, %d, v%d" % (V_T1, NQ - 1, V_T1))
    e("v_lshl_add_u32 v%d, v%d, 2, v%d" % (V_VP, V_T1, V_T0))
    e("v_lshlrev_b32 v%d, 1, v%d" % (V_VP, V_VP))
    e("s_lshr_b32 s%d, s2, 3" % S_HS)
    e("s_and_b32 s%d, s%d, %d" % (S_HS, S_HS, HC - 1))
    e("s_lshr_b32 s%d, s2, %d" % (S_R, 3 + int(math.log2(HC))))
    e("s_lshl_b32 s%d, s%d, 3" % (S_R, S_R))
    e("s_and_b32 s%d, s2, 7" % S_T)
    e("s_or_b32 s%d, s%d, s%d" % (S_R, S_R, S_T))
    e("s_mov_b32 s%d, %s" % (S_C, f32hex(C)))
    e("s_mov_b32 s%d, %s" % (S_NC, f32hex(-C)))
    e("s_mul_i32 s%d, s%d, %d" % (S_TOK, S_R, NW))
    e("s_add_u32 s%d, s%d, s%d" % (S_TOK, S_TOK, S_WAVE))
    e("s_mul_i32 s%d, s%d, %d" % (S_TOK, S_TOK, TT))
    e("s_lshl_b32 s%d, s%d, 15" % (S_T, S_HS))
    e("s_add_u32 s%d, s%d, s%d" % (S_TOK, S_TOK, S_T))
    e("s_mov_b32 s%d, 0" % S_I)
    e("s_mov_b32 s%d, 0" % S_PH)
    e("s_mul_i32 s%d, s%d, %d" % (S_LDSB, S_WAVE, 4 * ROWB))
    e("s_add_u32 s%d, s%d, %d" % (S_LDSB, S_LDSB, LDS_R0))
    e("s_mul_i32 s%d, s%d, %d" % (S_REC, S_HS, WPH))
    e("s_add_u32 s%d, s%d, s%d" % (S_REC, S_REC, S_R))
    e("s_mul_i32 s%d, s%d, %d" % (S_REC, S_REC, PART_STRIDE))

    def offsets_from_tok():
        e("s_mul_i32 s%d, s%d, %d" % (S_KOFF, S_TOK, ROWB))
        e("s_lshr_b32 s%d, s%d, 6" % (S_POFF, S_TOK))
        e("s_mul_i32 s%d, s%d, %d" % (S_POFF, S_POFF, DH * 2))
        e("s_lshl_b32 s%d, s%d, 1" % (S_VPOFF, S_TOK))
        e("s_lshr_b32 s%d, s%d, 15" % (S_QOFF, S_TOK))
        e("s_mul_i32 s%d, s%d, %d" % (S_QOFF, S_QOFF, DH * 2))

    offsets_from_tok()
    e("s_waitcnt lgkmcnt(0)")

    def srd(dst, ptr, nbytes):
        e("s_mov_b32 s%d, s%d" % (dst, ptr))
        e("s_and_b32 s%d, s%d, 0xffff" % (dst + 1, ptr + 1))
        e("s_mov_b32 s%d, %d" % (dst + 2, nbytes))
        e("s_mov_b32 s%d, 0x00020000" % (dst + 3))

    srd(S_K, 66, H * HEADB)
    srd(S_Q, 64, H * DH * 2)
    srd(S_KS, 70, H * NGRP * DH * 2)
    srd(S_KZ, 72, H * NGRP * DH * 2)
    srd(S_VS, 74, H * SKV * 2)
    srd(S_VZ, 76, H * SKV * 2)
    srd(S_V, 68, H * HEADB)
    srd(S_WS, 82, H * WPH * PART_STRIDE)

    def issue_params():
        for k, (sr, so) in enumerate(((S_Q, S_QOFF), (S_KS, S_POFF), (S_KZ, S_POFF))):
            for c in range(3):
                r = V_RAW + 6 * k + 2 * c
                e.vmem("buffer_load_dwordx2 v[%d:%d], v%d, s[%d:%d], s%d offen offset:%d" %
                       (r, r + 1, V_KP, sr, sr + 3, so, c * 128), "kp")
        e.vmem("buffer_load_ushort v%d, v%d, s[%d:%d], s%d offen" % (V_VS, V_VP, S_VS, S_VS + 3, S_VPOFF), "vp")
        e.vmem("buffer_load_ushort v%d, v%d, s[%d:%d], s%d offen" % (V_VZ, V_VP, S_VZ, S_VZ + 3, S_VPOFF), "vp")

    def issue_group(k):
        k = k % NGS
        for l in range(k * GS, (k + 1) * GS):
            isk = l < NL
            ll = l % NL
            q, c = ll // 3, ll % 3
            r = V_RING + (l % RS) * 4
            srdb = S_K if isk else S_V
            soff = S_KOFF if isk else S_VOFF
            e.vmem("buffer_load_dwordx4 v[%d:%d], v%d, s[%d:%d], s%d offen offset:%d%s" %
                   (r, r + 3, V_KV + q // 2, srdb, srdb + 3, soff, (q & 1) * QUADB + c * 256, pol), "g%d" % k)

    def compute_w():
        e.wait_tag("kp")
        for p in range(6):
            rq = V_RAW + p; rs = V_RAW + 6 + p
            i0 = 2 * p
            e("v_lshlrev_b32 v%d, 16, v%d" % (V_T0, rq))
            e("v_lshlrev_b32 v%d, 16, v%d" % (V_W + i0, rs))
            e("v_and_b32 v%d, 0xffff0000, v%d" % (V_T1, rq))
            e("v_and_b32 v%d, 0xffff0000, v%d" % (V_W + i0 + 1, rs))
            e("v_mul_f32 v%d, v%d, v%d" % (V_W + i0, V_W + i0, V_T0))
            e("v_mul_f32 v%d, v%d, v%d" % (V_W + i0 + 1, V_W + i0 + 1, V_T1))
        for p in range(6):
            rz = V_RAW + 12 + p
            i0 = 2 * p
            e("v_lshlrev_b32 v%d, 16, v%d" % (V_T0, rz))
            e("v_and_b32 v%d, 0xffff0000, v%d" % (V_T1, rz))
            if p == 0:
                e("v_mul_f32 v%d, v%d, v%d" % (V_PB, V_T0, V_W + i0))
            else:
                e("v_fmac_f32 v%d, v%d, v%d" % (V_PB, V_T0, V_W + i0))
            e("v_fmac_f32 v%d, v%d, v%d" % (V_PB, V_T1, V_W + i0 + 1))
        e("v_sub_f32 v%d, 0, v%d" % (V_PB, V_PB))

    def reset_state():
        e("v_mov_b32 v%d, 0xff7fffff" % V_M)
        e("v_mov_b32 v%d, 0" % V_L)
        e("v_mov_b32 v%d, 0" % V_ZB)
        for i in range(12):
            e("v_mov_b32 v%d, 0" % (V_ACC + i))

    issue_params()
    for k in range(DG):
        issue_group(k)
    e("v_and_b32 v%d, 63, v0" % V_T0)
    e("v_lshlrev_b32 v%d, 2, v%d" % (V_T0, V_T0))
    e("v_mov_b32 v%d, 0" % V_T1)
    e("v_cmp_gt_u32 vcc, %d, v0" % NPH)
    e("s_and_saveexec_b64 s[%d:%d], vcc" % (S_T + 2, S_T + 3))
    e("ds_write_b32 v%d, v%d offset:%d" % (V_T0, V_T1, LDS_CNT))
    e("s_mov_b64 exec, s[%d:%d]" % (S_T + 2, S_T + 3))
    e("s_waitcnt lgkmcnt(0)")
    e("s_barrier")
    reset_state()
    compute_w()

    entry_state = list(e.vm)
    e.lines.append(".p2align 6")
    e.label("L_loop")
    e("s_mov_b32 s%d, s%d" % (S_VOFF, S_KOFF))

    def advance():
        e("s_cmp_eq_u32 s%d, %d" % (S_I, SPP - 1))
        e("s_cselect_b32 s%d, 1, 0" % S_LAST)
        e("s_cselect_b32 s%d, %d, 0" % (S_T, (HC - 1) * SKV))
        e("s_add_u32 s%d, s%d, s%d" % (S_TOK, S_TOK, S_T))
        e("s_add_u32 s%d, s%d, %d" % (S_TOK, S_TOK, TSTEP))
        e("s_add_u32 s%d, s%d, 1" % (S_I, S_I))
        e("s_and_b32 s%d, s%d, %d" % (S_I, S_I, SPP - 1))
        offsets_from_tok()

    def softmax():
        e.flush()
        e.wait_tag("vp")
        e("v_lshlrev_b32 v%d, 16, v%d" % (V_VS, V_VS))
        e("v_lshlrev_b32 v%d, 16, v%d" % (V_VZ, V_VZ))
        ss = [V_S + q for q in range(NQ)]
        e("v_max3_f32 v%d, v%d, v%d, v%d" % (V_T0, V_M, ss[0], ss[1]))
        for q in range(2, NQ, 2):
            e("v_max3_f32 v%d, v%d, v%d, v%d" % (V_T0, V_T0, ss[q], ss[q + 1]))
        e("v_mul_f32 v%d, s%d, v%d" % (V_T1, S_NC, V_T0))
        e("v_fma_f32 v%d, v%d, s%d, v%d" % (V_M, V_M, S_C, V_T1))
        for q in range(NQ):
            e("v_fma_f32 v%d, v%d, s%d, v%d" % (ss[q], ss[q], S_C, V_T1))
        e("v_exp_f32 v%d, v%d" % (V_T1, V_M))
        for q in range(NQ):
            e("v_exp_f32 v%d, v%d" % (ss[q], ss[q]))
        e("v_mov_b32 v%d, v%d" % (V_M, V_T0))
        e("v_mul_f32 v%d, v%d, v%d" % (V_L, V_L, V_T1))
        e("v_mul_f32 v%d, v%d, v%d" % (V_ZB, V_ZB, V_T1))
        for q in range(NQ):
            e("v_add_f32 v%d, v%d, v%d" % (V_L, V_L, ss[q]))
        for q in range(NQ):
            e("v_mul_f32_dpp v%d, v%d, v%d row_newbcast:%d row_mask:0xf bank_mask:0xf" % (ss[q], V_VS, ss[q], q))
        zb = ["v_fmac_f32_dpp v%d, v%d, v%d row_newbcast:%d row_mask:0xf bank_mask:0xf" % (V_ZB, V_VZ, ss[q], q)
              for q in range(NQ)]
        e.defer(zb)
        for i in range(12):
            e("v_mul_f32 v%d, v%d, v%d" % (V_ACC + i, V_ACC + i, V_T1))
        e.flush()

    for k in range(NGS):
        e.wait_tag("g%d" % k)
        if k + DG == NGS:
            advance()
            issue_params()
        issue_group(k + DG)
        for l in range(k * GS, (k + 1) * GS):
            isk = l < NL
            ll = l % NL
            q, c = ll // 3, ll % 3
            base = V_RING + (l % RS) * 4
            for i in range(4):
                e("v_cvt_f32_i32 v%d, v%d" % (base + i, base + i))
            if isk:
                s = V_S + q
                for i in range(4):
                    if c == 0 and i == 0:
                        e("v_fma_f32 v%d, v%d, v%d, v%d" % (s, base, V_W, V_PB))
                    else:
                        e("v_fmac_f32 v%d, v%d, v%d" % (s, base + i, V_W + 4 * c + i))
                if c == 2:
                    e.defer(["v_add_f32_dpp v%d, v%d, v%d row_ror:%d row_mask:0xf bank_mask:0xf" % (s, s, s, kk)
                             for kk in (8, 4, 2, 1)])
            else:
                for i in range(4):
                    e("v_fmac_f32 v%d, v%d, v%d" % (V_ACC + 4 * c + i, base + i, V_S + q))
        if k == NGS // 2 - 1:
            softmax()
    e.flush()
    e("s_cmp_lg_u32 s%d, 0" % S_LAST)
    e("s_cbranch_scc1 L_dump")
    e.label("L_cont")
    compute_w()
    assert entry_state[len(entry_state) - len(e.vm):] == e.vm, (e.vm, entry_state)
    e("s_branch L_loop")

    e.label("L_dump")
    for i in range(12):
        e("v_sub_f32 v%d, v%d, v%d" % (V_ACC + i, V_ACC + i, V_ZB))
    e("v_mul_f32 v%d, s%d, v%d" % (V_M, S_C, V_M))
    e("v_add_u32 v%d, s%d, v%d" % (V_T0, S_LDSB, V_KV))
    for c in range(3):
        e("ds_write_b128 v%d, v[%d:%d] offset:%d" % (V_T0, V_ACC + 4 * c, V_ACC + 4 * c + 3, c * 256))
    e("s_mul_i32 s%d, s%d, %d" % (S_T, S_PH, PHB))
    e("s_add_u32 s%d, s%d, %d" % (S_T, S_T, LDS_R0))
    e("v_lshrrev_b32 v%d, 4, v0" % V_T1)
    e("v_lshlrev_b32 v%d, 3, v%d" % (V_T1, V_T1))
    e("v_add_u32 v%d, s%d, v%d" % (V_T1, S_T, V_T1))
    e("ds_write_b64 v%d, v[%d:%d] offset:%d" % (V_T1, V_M, V_L, NROWS * ROWB))
    e("s_lshl_b32 s%d, s%d, 2" % (S_T + 1, S_PH))
    e("v_mov_b32 v%d, s%d" % (V_T0, S_T + 1))
    e("v_mov_b32 v%d, 1" % V_T1)
    e("s_waitcnt lgkmcnt(0)")
    e("s_mov_b64 exec, 1")
    e("ds_add_rtn_u32 v%d, v%d, v%d offset:%d" % (V_T1, V_T0, V_T1, LDS_CNT))
    e("s_mov_b64 exec, -1")
    e("s_waitcnt lgkmcnt(0)")
    e("v_readfirstlane_b32 s%d, v%d" % (S_T + 1, V_T1))
    e("s_nop 3")
    e("s_cmp_lg_u32 s%d, %d" % (S_T + 1, NW - 1))
    e("s_cbranch_scc1 L_nomerge")
    MLB = V_MG
    OB = V_MG + 2 * NROWS
    e("v_mov_b32 v%d, s%d" % (V_T0, S_T))
    for r in range(0, NROWS, 2):
        e("ds_read_b128 v[%d:%d], v%d offset:%d" % (MLB + 2 * r, MLB + 2 * r + 3, V_T0, NROWS * ROWB + r * 8))
    e("v_and_b32 v%d, 63, v0" % V_T1)
    e("v_lshlrev_b32 v%d, 2, v%d" % (V_T1, V_T1))
    e("v_add_u32 v%d, s%d, v%d" % (V_T0, S_T, V_T1))
    e("s_waitcnt lgkmcnt(0)")
    for kk in range(3):
        for r in range(NROWS):
            e("ds_read_b32 v%d, v%d offset:%d" % (OB + kk * NROWS + r, V_T0, r * ROWB + kk * 256))
            if (kk * NROWS + r) % 12 == 11:
                e("s_waitcnt lgkmcnt(4)")
    e("v_mov_b32 v%d, v%d" % (V_M, MLB))
    for r in range(1, NROWS):
        e("v_max_f32 v%d, v%d, v%d" % (V_M, V_M, MLB + 2 * r))
    for r in range(NROWS):
        e("v_sub_f32 v%d, v%d, v%d" % (MLB + 2 * r, MLB + 2 * r, V_M))
    for r in range(NROWS):
        e("v_exp_f32 v%d, v%d" % (MLB + 2 * r, MLB + 2 * r))
    e("v_mul_f32 v%d, v%d, v%d" % (V_L, MLB, MLB + 1))
    for r in range(1, NROWS):
        e("v_fmac_f32 v%d, v%d, v%d" % (V_L, MLB + 2 * r, MLB + 2 * r + 1))
    e("s_waitcnt lgkmcnt(0)")
    for kk in range(3):
        e("v_mul_f32 v%d, v%d, v%d" % (V_ACC + kk, MLB, OB + kk * NROWS))
        for r in range(1, NROWS):
            e("v_fmac_f32 v%d, v%d, v%d" % (V_ACC + kk, MLB + 2 * r, OB + kk * NROWS + r))
        e("buffer_store_dword v%d, v%d, s[%d:%d], s%d offen offset:%d" % (V_ACC + kk, V_T1, S_WS, S_WS + 3, S_REC, kk * 256))
    e("s_mov_b64 exec, 1")
    e("buffer_store_dwordx2 v[%d:%d], v%d, s[%d:%d], s%d offen offset:%d" % (V_M, V_L, V_T1, S_WS, S_WS + 3, S_REC, DH * 4))
    e("s_mov_b64 exec, -1")
    e("s_nop 1")
    e.label("L_nomerge")
    e("s_add_u32 s%d, s%d, 1" % (S_PH, S_PH))
    e("s_add_u32 s%d, s%d, %d" % (S_LDSB, S_LDSB, PHB))
    e("s_add_u32 s%d, s%d, %d" % (S_REC, S_REC, HC * WPH * PART_STRIDE))
    reset_state()
    e("s_cmp_lt_u32 s%d, %d" % (S_PH, NPH))
    e("s_cbranch_scc1 L_cont")

    if P["stamp"]:
        e("s_memrealtime s[%d:%d]" % (S_ST + 2, S_ST + 3))
        e("s_getreg_b32 s%d, hwreg(HW_REG_XCC_ID)" % (S_ST + 4))
        e("s_getreg_b32 s%d, hwreg(HW_REG_HW_ID)" % (S_ST + 5))
        e("s_waitcnt lgkmcnt(0)")
        e("v_mov_b32 v%d, s%d" % (V_MG + 0, S_ST))
        e("v_mov_b32 v%d, s%d" % (V_MG + 1, S_ST + 2))
        e("v_mov_b32 v%d, s%d" % (V_MG + 2, S_ST + 4))
        e("v_mov_b32 v%d, s%d" % (V_MG + 3, S_ST + 5))
        e("s_mul_i32 s%d, s%d, %d" % (S_T, S_WG, NW))
        e("s_add_u32 s%d, s%d, s%d" % (S_T, S_T, S_WAVE))
        e("s_lshl_b32 s%d, s%d, 4" % (S_T, S_T))
        e("s_add_u32 s%d, s%d, 0x4000000" % (S_T, S_T))
        e("s_mov_b32 s%d, 0x8000000" % (S_WS + 2))
        e("v_mov_b32 v%d, 0" % V_T0)
        e("buffer_store_dwordx4 v[%d:%d], v%d, s[%d:%d], s%d offen" % (V_MG, V_MG + 3, V_T0, S_WS, S_WS + 3, S_T))
    e.lines.append("L_exit1:")
    e("s_endpgm")

    SPLITS = WPH
    k2 = NAME + "_kernel"
    e.lines.append(".globl %s" % k2)
    e.lines.append(".p2align 8")
    e.lines.append(".type %s,@function" % k2)
    e.lines.append(k2 + ":")
    e("s_cmp_ge_u32 s2, %d" % H)
    e("s_cbranch_scc1 L_exit2")
    e("s_load_dwordx2 s[4:5], s[0:1], 56")
    e("s_load_dwordx2 s[6:7], s[0:1], 72")
    e("s_waitcnt lgkmcnt(0)")
    e("s_mov_b32 s8, s6")
    e("s_and_b32 s9, s7, 0xffff")
    e("s_mov_b32 s10, %d" % (H * SPLITS * PART_STRIDE))
    e("s_mov_b32 s11, 0x00020000")
    e("s_mov_b32 s12, s4")
    e("s_and_b32 s13, s5, 0xffff")
    e("s_mov_b32 s14, %d" % (H * DH * 2))
    e("s_mov_b32 s15, 0x00020000")
    e("s_mul_i32 s16, s2, %d" % (SPLITS * PART_STRIDE))
    e("v_lshlrev_b32 v1, 2, v0")
    e("v_mov_b32 v2, 0")
    BATCH = min(SPLITS, 64)
    MLB = 8
    OB = MLB + 2 * BATCH
    e("v_mov_b32 v4, 0xff7fffff")
    e("v_mov_b32 v5, 0")
    e("v_mov_b32 v6, 0")
    for b0 in range(0, SPLITS, BATCH):
        for s in range(BATCH):
            if s % 4 == 0:
                e("s_add_u32 s17, s16, %d" % ((b0 + s) * PART_STRIDE))
            e("buffer_load_dwordx2 v[%d:%d], v2, s[8:11], s17 offen offset:%d" %
              (MLB + 2 * s, MLB + 2 * s + 1, (s % 4) * PART_STRIDE + DH * 4))
            e("buffer_load_dword v%d, v1, s[8:11], s17 offen offset:%d" % (OB + s, (s % 4) * PART_STRIDE))
        e("s_waitcnt vmcnt(0)")
        e("v_mov_b32 v3, v4")
        for s in range(BATCH):
            e("v_max_f32 v3, v3, v%d" % (MLB + 2 * s))
        e("v_sub_f32 v7, v4, v3")
        e("v_exp_f32 v7, v7")
        e("v_mov_b32 v4, v3")
        for s in range(BATCH):
            e("v_sub_f32 v%d, v%d, v3" % (MLB + 2 * s, MLB + 2 * s))
        for s in range(BATCH):
            e("v_exp_f32 v%d, v%d" % (MLB + 2 * s, MLB + 2 * s))
        e("v_mul_f32 v5, v5, v7")
        e("v_mul_f32 v6, v6, v7")
        for s in range(BATCH):
            e("v_fmac_f32 v5, v%d, v%d" % (MLB + 2 * s, MLB + 2 * s + 1))
            e("v_fmac_f32 v6, v%d, v%d" % (MLB + 2 * s, OB + s))
    e("v_rcp_f32 v5, v5")
    e("v_mul_f32 v6, v6, v5")
    e("v_cvt_pk_bf16_f32 v6, v6, v6")
    e("s_mul_i32 s16, s2, %d" % (DH * 2))
    e("v_lshlrev_b32 v1, 1, v0")
    e("buffer_store_short v6, v1, s[12:15], s16 offen")
    e.lines.append("L_exit2:")
    e("s_endpgm")
    NV2 = OB + BATCH

    def kd(name, nv, ns):
        acc = (nv + 3) // 4 * 4
        return """.amdhsa_kernel %s
  .amdhsa_next_free_vgpr %d
  .amdhsa_next_free_sgpr %d
  .amdhsa_accum_offset %d
  .amdhsa_group_segment_fixed_size 0
  .amdhsa_kernarg_size 80
  .amdhsa_user_sgpr_count 2
  .amdhsa_user_sgpr_kernarg_segment_ptr 1
  .amdhsa_system_sgpr_workgroup_id_x 1
.end_amdhsa_kernel
""" % (name, nv, ns, acc)

    out = HEADER.format(params=" ".join("%s=%s" % kv for kv in sorted(P.items())))
    out += "; @launch kernel=%s grid=(%d,1,1) block=(%d,1,1) lds=%d\n" % (k1, NWG, NW * 64, LDS1)
    out += "; @launch kernel=%s grid=(%d,1,1) block=(%d,1,1) lds=0\n" % (k2, H, DH)
    out += '.amdgcn_target "amdgcn-amd-amdhsa--gfx950"\n.text\n'
    out += e.text()
    out += '.section .rodata,"a"\n.p2align 6\n'
    out += kd(k1, NVGPR, 90)
    out += ".p2align 6\n"
    out += kd(k2, NV2, 24)
    return out


DEFAULTS = dict(nw=4, nwg=256, hc=4, tt=16, gs=6, dg=1, nt="nt", ldspad=0, stamp=0)


def main():
    P = dict(DEFAULTS)
    outp = None
    args = sys.argv[1:]
    i = 0
    while i < len(args):
        a = args[i]
        if a == "-o":
            outp = args[i + 1]; i += 2; continue
        k, v = a.split("=", 1)
        assert k in P, k
        P[k] = type(P[k])(v.replace("+", " ")) if isinstance(P[k], str) else int(v)
        i += 1
    s = gen(P)
    if outp:
        open(outp, "w").write(s)
    else:
        sys.stdout.write(s)


if __name__ == "__main__":
    main()
```

```python
import re
import sys
import math
import struct

NAME = "standalone__kv_cache_quant_int4_int2_kv_with_per_channel_or_per_token_scales__decode"

H = 32
SKV = 32768
DH = 192
G = 64
NGRP = SKV // G
ROWB = DH * 4
HEADB = SKV * ROWB
GRPB = G * ROWB
QUADB = 4 * ROWB
PART_STRIDE = 1024

HEADER = """; Kernarg layout for this problem (80 bytes, ptrs only, base s[0:1]):
;   offset  40: d_in[5] v_scales  shape=(1, 32, 32768, 1) dtype=bfloat16 strides=(2097152, 65536, 2, 2) contiguous=True
;   offset  48: d_in[6] v_zeros  shape=(1, 32, 32768, 1) dtype=bfloat16 strides=(2097152, 65536, 2, 2) contiguous=True
; Generated by gen.py (hand-written generator).  Params: {params}
"""


def f32hex(x):
    return "0x%08x" % struct.unpack("<I", struct.pack("<f", x))[0]


_VREG = re.compile(r"\bv(\d+)\b")
_VRANGE = re.compile(r"\bv\[(\d+):(\d+)\]")
_TRANS = ("v_exp_f32", "v_rcp_f32", "v_log_f32", "v_rsq_f32", "v_sqrt_f32")


def vregs(text):
    out = [int(x) for x in _VREG.findall(text)]
    for a, b in _VRANGE.findall(text):
        out += list(range(int(a), int(b) + 1))
    return out


class Emit:
    def __init__(self):
        self.lines = []
        self.vm = []
        self.n = 0
        self.wr = {}
        self.tr = {}
        self.pend = []

    def _raw(self, s):
        self.lines.append("    " + s)
        m = re.match(r"s_nop (\d+)", s)
        self.n += (int(m.group(1)) + 1) if m else 1

    def need(self, s):
        op = s.split()[0]
        if not op.startswith("v_"):
            return 0
        ops = s[len(op):]
        regs = vregs(ops)
        need = 0
        first = ops.split(",")[0]
        srcs = vregs(ops[len(first):])
        if "_dpp" in op or op.startswith("v_permlane"):
            for r in regs:
                if r in self.wr:
                    need = max(need, 2 - (self.n - self.wr[r] - 1))
        if op.startswith(("v_readfirstlane", "v_readlane")):
            for r in srcs:
                if r in self.wr:
                    need = max(need, 1 - (self.n - self.wr[r] - 1))
        if op not in _TRANS:
            rr = regs if op.startswith("v_fmac") else srcs
            for r in rr:
                if r in self.tr:
                    need = max(need, 1 - (self.n - self.tr[r] - 1))
        return max(need, 0)

    def _emit(self, s):
        k = self.need(s)
        if k > 0:
            self._raw("s_nop %d" % (k - 1))
        op = s.split()[0]
        if op.startswith("v_") and not op.startswith(("v_cmp", "v_readfirstlane", "v_readlane")):
            first = s[len(op):].split(",")[0]
            if op.startswith("v_permlane"):
                first = s[len(op):]
            for r in vregs(first):
                self.wr[r] = self.n
                if op in _TRANS:
                    self.tr[r] = self.n
                else:
                    self.tr.pop(r, None)
        self._raw(s)

    def __call__(self, s):
        self._emit(s)
        if self.pend and self.need(self.pend[0]) == 0:
            self._emit(self.pend.pop(0))

    def defer(self, ops):
        self.pend += ops

    def flush(self):
        while self.pend:
            self._emit(self.pend.pop(0))

    def label(self, s):
        assert not self.pend
        self.lines.append(s + ":")
        self._raw("s_nop 1")

    def comment(self, s):
        self.lines.append("    ; " + s)

    def vmem(self, s, tag):
        self(s)
        self.vm.append(tag)

    def wait_tag(self, tag):
        idx = [i for i, t in enumerate(self.vm) if t == tag]
        if not idx:
            return
        last = idx[-1]
        n = len(self.vm) - 1 - last
        assert n <= 63, n
        self("s_waitcnt vmcnt(%d)" % n)
        self.vm = self.vm[last + 1:]

    def text(self):
        return "\n".join(self.lines) + "\n"


def gen(P):
    NW = P["nw"]
    NWG = P["nwg"]
    HC = P["hc"]
    TT = P["tt"]
    GS = P["gs"]
    DG = P["dg"]
    NT_ = P["nt"]
    NQ = TT // 4
    NL = NQ * 3
    assert NL % GS == 0
    NG = NL // GS
    assert 1 <= DG <= NG
    UT = 1 if (DG + 1) * GS <= NL else 2
    RS = min(d for d in range(1, UT * NL + 1) if (UT * NL) % d == 0 and d >= (DG + 1) * GS)
    NPH = H // HC
    WPH = NWG // HC
    TSTEP = WPH * NW * TT
    assert SKV % TSTEP == 0 and G % TT == 0
    SPP = SKV // TSTEP
    assert SPP % UT == 0 and SPP & (SPP - 1) == 0
    NTILE = NPH * SPP
    assert NTILE // UT >= 2
    NROWS = NW * 4
    LDS_CNT = 0
    LDS_MAX = 128
    assert NPH * 4 <= LDS_MAX
    LDS_S = LDS_MAX + NPH * NROWS * 4
    SWB = NTILE * TT * 4
    LDS_R0 = LDS_S + NW * SWB
    PHB = NW * ROWB + NROWS * 8
    LDS1 = max(LDS_R0 + NPH * PHB, P["ldspad"])
    assert LDS1 <= 160 * 1024, LDS1
    pol = (" " + NT_) if NT_ else ""
    spol = (" " + P["sp"]) if P["sp"] else ""
    C = (DH ** -0.5) * math.log2(math.e)

    e = Emit()
    V_KP = 1; V_VP = 2; V_SA = 3
    V_M = 4; V_L = 5; V_ZB = 6; V_PB = 7; V_VS = 8; V_VZ = 9; V_T0 = 10; V_T1 = 11
    V_ACC = 12; V_W = 24; V_RAW = 36
    V_SB = 54; V_MA = 55; V_SR = 56; V_PV = 57; V_DO = 58
    V_S = 60
    V_KV = V_S + NQ
    NKV = (TT + 7) // 8
    V_RING = (V_KV + NKV + 3) // 4 * 4
    V_MG = V_RING + 4 * RS
    NVGPR = V_MG + 2 * NROWS + 3 * NW + 5
    assert NVGPR <= 256, NVGPR
    S_K = 8; S_V = 12; S_KS = 16; S_KZ = 20; S_VS = 24; S_VZ = 28; S_Q = 32; S_WS = 36
    S_HS = 40; S_R = 41; S_WAVE = 42; S_KOFF = 43; S_TOK0 = 44; S_POFF = 45; S_VPOFF = 46; S_QOFF = 47
    S_C = 48; S_NC = 49; S_T = 50
    S_WG = 54; S_TOK = 55; S_I = 56; S_LAST = 57; S_PH = 58; S_LDSB = 59; S_REC = 60; S_N = 61; S_MXA = 62
    S_MB = 4; S_MREC = 5; S_MC = 6; S_RET = 7
    S_ST = 84

    k1 = "part_kernel"
    e.lines.append(".globl %s" % k1)
    e.lines.append(".p2align 8")
    e.lines.append(".type %s,@function" % k1)
    e.lines.append(k1 + ":")
    e("s_cmp_ge_u32 s2, %d" % NWG)
    e("s_cbranch_scc1 L_exit1")
    e("s_load_dwordx16 s[64:79], s[0:1], 0")
    e("s_load_dwordx4 s[80:83], s[0:1], 64")
    e("s_mov_b32 s%d, s2" % S_WG)
    if P["stamp"]:
        e("s_memrealtime s[%d:%d]" % (S_ST, S_ST + 1))
    e("v_lshrrev_b32 v%d, 6, v0" % V_T0)
    e("v_and_b32 v%d, 63, v0" % V_T1)
    e("v_readfirstlane_b32 s%d, v%d" % (S_WAVE, V_T0))
    e("v_lshrrev_b32 v%d, 4, v%d" % (V_T0, V_T1))
    e("v_and_b32 v%d, 15, v%d" % (V_T1, V_T1))
    e("v_mul_u32_u24 v%d, %d, v%d" % (V_KV, ROWB, V_T0))
    e("v_lshl_add_u32 v%d, v%d, 4, v%d" % (V_KV, V_T1, V_KV))
    for k in range(1, NKV):
        e("v_add_u32 v%d, %d, v%d" % (V_KV + k, k * 2 * QUADB, V_KV))
    e("v_lshlrev_b32 v%d, 3, v%d" % (V_KP, V_T1))
    e("v_lshlrev_b32 v%d, 2, v%d" % (V_DO, V_T0))
    e("v_lshl_add_u32 v%d, v%d, 4, v%d" % (V_DO, V_T1, V_DO))
    e("v_and_b32 v%d, %d, v%d" % (V_T1, NQ - 1, V_T1))
    e("v_lshl_add_u32 v%d, v%d, 2, v%d" % (V_VP, V_T1, V_T0))
    e("v_lshlrev_b32 v%d, 1, v%d" % (V_VP, V_VP))
    e("s_lshr_b32 s%d, s2, 3" % S_HS)
    e("s_and_b32 s%d, s%d, %d" % (S_HS, S_HS, HC - 1))
    e("s_lshr_b32 s%d, s2, %d" % (S_R, 3 + int(math.log2(HC))))
    e("s_lshl_b32 s%d, s%d, 3" % (S_R, S_R))
    e("s_and_b32 s%d, s2, 7" % S_T)
    e("s_or_b32 s%d, s%d, s%d" % (S_R, S_R, S_T))
    e("s_mul_i32 s%d, s%d, %d" % (S_TOK, S_R, NW))
    e("s_add_u32 s%d, s%d, s%d" % (S_TOK, S_TOK, S_WAVE))
    e("s_mul_i32 s%d, s%d, %d" % (S_TOK, S_TOK, TT))
    e("s_lshl_b32 s%d, s%d, 15" % (S_T, S_HS))
    e("s_add_u32 s%d, s%d, s%d" % (S_TOK, S_TOK, S_T))

    def offsets_from_tok(kind):
        e("s_mul_i32 s%d, s%d, %d" % (S_KOFF, S_TOK, ROWB))
        if kind == "K":
            e("s_lshr_b32 s%d, s%d, 6" % (S_POFF, S_TOK))
            e("s_mul_i32 s%d, s%d, %d" % (S_POFF, S_POFF, DH * 2))
            e("s_lshr_b32 s%d, s%d, 15" % (S_QOFF, S_TOK))
            e("s_mul_i32 s%d, s%d, %d" % (S_QOFF, S_QOFF, DH * 2))
        else:
            e("s_lshl_b32 s%d, s%d, 1" % (S_VPOFF, S_TOK))

    offsets_from_tok("K")

    def srd(dst, ptr, nbytes):
        e("s_mov_b32 s%d, s%d" % (dst, ptr))
        e("s_and_b32 s%d, s%d, 0xffff" % (dst + 1, ptr + 1))
        e("s_mov_b32 s%d, %d" % (dst + 2, nbytes))
        e("s_mov_b32 s%d, 0x00020000" % (dst + 3))

    def issue_kparams():
        for k, (sr, so) in enumerate(((S_Q, S_QOFF), (S_KS, S_POFF), (S_KZ, S_POFF))):
            for c in range(3):
                r = V_RAW + 6 * k + 2 * c
                e.vmem("buffer_load_dwordx2 v[%d:%d], v%d, s[%d:%d], s%d offen offset:%d" %
                       (r, r + 1, V_KP, sr, sr + 3, so, c * 128), "kp")

    def issue_vparams():
        e.vmem("buffer_load_ushort v%d, v%d, s[%d:%d], s%d offen" % (V_VS, V_VP, S_VS, S_VS + 3, S_VPOFF), "vp")
        e.vmem("buffer_load_ushort v%d, v%d, s[%d:%d], s%d offen" % (V_VZ, V_VP, S_VZ, S_VZ + 3, S_VPOFF), "vp")

    def read_logits():
        e("ds_read_b32 v%d, v%d" % (V_SR, V_SB))
        e("v_add_u32 v%d, %d, v%d" % (V_SB, TT * 4, V_SB))

    def issue_group(gidx, kind):
        gidx = gidx % (UT * NG)
        for i in range(GS):
            l = gidx * GS + i
            ll = l % NL
            q, c = ll // 3, ll % 3
            r = V_RING + (l % RS) * 4
            srdb = S_K if kind == "K" else S_V
            e.vmem("buffer_load_dwordx4 v[%d:%d], v%d, s[%d:%d], s%d offen offset:%d%s" %
                   (r, r + 3, V_KV + q // 2, srdb, srdb + 3, S_KOFF, (q & 1) * QUADB + c * 256, pol), "g%d" % gidx)

    def compute_w():
        e.wait_tag("kp")
        for p in range(6):
            rq = V_RAW + p; rs = V_RAW + 6 + p
            i0 = 2 * p
            e("v_lshlrev_b32 v%d, 16, v%d" % (V_T0, rq))
            e("v_lshlrev_b32 v%d, 16, v%d" % (V_W + i0, rs))
            e("v_and_b32 v%d, 0xffff0000, v%d" % (V_T1, rq))
            e("v_and_b32 v%d, 0xffff0000, v%d" % (V_W + i0 + 1, rs))
            e("v_mul_f32 v%d, v%d, v%d" % (V_W + i0, V_W + i0, V_T0))
            e("v_mul_f32 v%d, v%d, v%d" % (V_W + i0 + 1, V_W + i0 + 1, V_T1))
        for p in range(6):
            rz = V_RAW + 12 + p
            i0 = 2 * p
            e("v_lshlrev_b32 v%d, 16, v%d" % (V_T0, rz))
            e("v_and_b32 v%d, 0xffff0000, v%d" % (V_T1, rz))
            if p == 0:
                e("v_mul_f32 v%d, v%d, v%d" % (V_PB, V_T0, V_W + i0))
            else:
                e("v_fmac_f32 v%d, v%d, v%d" % (V_PB, V_T0, V_W + i0))
            e("v_fmac_f32 v%d, v%d, v%d" % (V_PB, V_T1, V_W + i0 + 1))
        e("v_sub_f32 v%d, 0, v%d" % (V_PB, V_PB))

    def prep_v():
        e.wait_tag("vp")
        e("s_waitcnt lgkmcnt(0)")
        e("v_fma_f32 v%d, v%d, s%d, v%d" % (V_T0, V_SR, S_C, V_M))
        e("v_lshlrev_b32 v%d, 16, v%d" % (V_VS, V_VS))
        e("v_exp_f32 v%d, v%d" % (V_T0, V_T0))
        e("v_lshlrev_b32 v%d, 16, v%d" % (V_VZ, V_VZ))
        e("v_mul_f32 v%d, v%d, v%d" % (V_PV, V_T0, V_VS))
        e("v_add_f32 v%d, v%d, v%d" % (V_L, V_L, V_T0))
        e("v_fmac_f32 v%d, v%d, v%d" % (V_ZB, V_PV, V_VZ))

    def start_phase_v():
        e("v_mov_b32 v%d, s%d" % (V_T0, S_MXA))
        e("ds_read_b128 v[%d:%d], v%d" % (V_MG, V_MG + 3, V_T0))
        e("s_add_u32 s%d, s%d, %d" % (S_MXA, S_MXA, NROWS * 4))
        e("v_mov_b32 v%d, 0" % V_L)
        e("v_mov_b32 v%d, 0" % V_ZB)
        for i in range(12):
            e("v_mov_b32 v%d, 0" % (V_ACC + i))
        e("s_waitcnt lgkmcnt(0)")
        e("v_max3_f32 v%d, v%d, v%d, v%d" % (V_T0, V_MG, V_MG + 1, V_MG + 2))
        e("v_max_f32 v%d, v%d, v%d" % (V_T0, V_T0, V_MG + 3))
        e("v_mul_f32 v%d, s%d, v%d" % (V_M, S_NC, V_T0))

    def advance(kind):
        e("s_cmp_eq_u32 s%d, %d" % (S_I, SPP - 1))
        e("s_cselect_b32 s%d, 1, 0" % S_LAST)
        if HC > 1:
            e("s_cselect_b32 s%d, %d, 0" % (S_T, (HC - 1) * SKV))
            e("s_add_u32 s%d, s%d, s%d" % (S_TOK, S_TOK, S_T))
        e("s_add_u32 s%d, s%d, %d" % (S_TOK, S_TOK, TSTEP))
        e("s_add_u32 s%d, s%d, 1" % (S_I, S_I))
        e("s_and_b32 s%d, s%d, %d" % (S_I, S_I, SPP - 1))
        offsets_from_tok(kind)

    def write_max():
        e("ds_write_b32 v%d, v%d" % (V_MA, V_M))
        e("v_add_u32 v%d, %d, v%d" % (V_MA, NROWS * 4, V_MA))
        e("v_mov_b32 v%d, 0xff7fffff" % V_M)

    uid = [0]

    def body(kind, last):
        for u in range(UT):
            to_v = kind == "K" and last and u == UT - 1
            nkind = "V" if to_v else kind
            for k in range(NG):
                gidx = u * NG + k
                e.wait_tag("g%d" % gidx)
                if k + DG == NG:
                    if to_v:
                        e("s_mov_b32 s%d, s%d" % (S_TOK, S_TOK0))
                        e("s_mov_b32 s%d, 0" % S_I)
                        offsets_from_tok("V")
                    else:
                        advance(kind)
                    if P["pfirst"]:
                        issue_kparams() if nkind == "K" else issue_vparams()
                issue_group(gidx + DG, nkind if k + DG >= NG else kind)
                if k + DG == NG:
                    if not P["pfirst"]:
                        issue_kparams() if nkind == "K" else issue_vparams()
                    if kind == "V":
                        read_logits()
                for i in range(GS):
                    l = gidx * GS + i
                    ll = l % NL
                    q, c = ll // 3, ll % 3
                    base = V_RING + (l % RS) * 4
                    for r in range(4):
                        e("v_cvt_f32_i32 v%d, v%d" % (base + r, base + r))
                    if kind == "K":
                        s = V_S + q
                        for r in range(4):
                            if c == 0 and r == 0:
                                e("v_fma_f32 v%d, v%d, v%d, v%d" % (s, base, V_W, V_PB))
                            else:
                                e("v_fmac_f32 v%d, v%d, v%d" % (s, base + r, V_W + 4 * c + r))
                        if c == 2:
                            e.defer(["v_add_f32_dpp v%d, v%d, v%d row_ror:%d row_mask:0xf bank_mask:0xf" % (s, s, s, kk)
                                     for kk in (8, 4, 2, 1)])
                    else:
                        for r in range(4):
                            e("v_fmac_f32_dpp v%d, v%d, v%d row_newbcast:%d row_mask:0xf bank_mask:0xf" %
                              (V_ACC + 4 * c + r, V_PV, base + r, q))
            e.flush()
            if kind == "K":
                for q in range(0, NQ, 2):
                    e("v_max3_f32 v%d, v%d, v%d, v%d" % (V_M, V_M, V_S + q, V_S + q + 1))
                if NQ == 2:
                    e("ds_write_b64 v%d, v[%d:%d]" % (V_SA, V_S, V_S + 1))
                else:
                    for q in range(0, NQ, 4):
                        e("ds_write_b128 v%d, v[%d:%d] offset:%d" % (V_SA, V_S + q, V_S + q + 3, q * 4))
                e("v_add_u32 v%d, %d, v%d" % (V_SA, TT * 4, V_SA))
                if to_v:
                    write_max()
                elif u == UT - 1:
                    uid[0] += 1
                    lab = "L_nomax%d" % uid[0]
                    e("s_cmp_lg_u32 s%d, 0" % S_LAST)
                    e("s_cbranch_scc0 %s" % lab)
                    write_max()
                    e.label(lab)
                if not to_v:
                    compute_w()
            else:
                if u == UT - 1:
                    e("s_cmp_lg_u32 s%d, 0" % S_LAST)
                    e("s_cbranch_scc1 L_dump")
                    e.label("L_cont")
                prep_v()

    e("s_waitcnt lgkmcnt(0)")
    srd(S_K, 66, H * HEADB)
    for k in range(DG):
        issue_group(k, "K")
    srd(S_Q, 64, H * DH * 2)
    srd(S_KS, 70, H * NGRP * DH * 2)
    srd(S_KZ, 72, H * NGRP * DH * 2)
    issue_kparams()
    if P["pfirst"]:
        pass
    srd(S_VS, 74, H * SKV * 2)
    srd(S_VZ, 76, H * SKV * 2)
    srd(S_V, 68, H * HEADB)
    srd(S_WS, 82, H * WPH * PART_STRIDE)
    e("s_mov_b32 s%d, %s" % (S_C, f32hex(C)))
    e("s_mov_b32 s%d, %s" % (S_NC, f32hex(-C)))
    e("s_mov_b32 s%d, s%d" % (S_TOK0, S_TOK))
    e("s_mov_b32 s%d, 0" % S_I)
    e("s_mov_b32 s%d, 0" % S_PH)
    e("s_mov_b32 s%d, %d" % (S_N, NTILE // UT - 1))
    e("s_mul_i32 s%d, s%d, %d" % (S_LDSB, S_WAVE, ROWB))
    e("s_add_u32 s%d, s%d, %d" % (S_LDSB, S_LDSB, LDS_R0))
    e("s_lshl_b32 s%d, s%d, 4" % (S_MXA, S_WAVE))
    e("s_add_u32 s%d, s%d, %d" % (S_MXA, S_MXA, LDS_MAX))
    e("s_mul_i32 s%d, s%d, %d" % (S_REC, S_HS, WPH))
    e("s_add_u32 s%d, s%d, s%d" % (S_REC, S_REC, S_R))
    e("s_mul_i32 s%d, s%d, %d" % (S_REC, S_REC, PART_STRIDE))
    e("s_mul_i32 s%d, s%d, %d" % (S_T, S_WAVE, SWB))
    e("s_add_u32 s%d, s%d, %d" % (S_T, S_T, LDS_S))
    e("v_mul_u32_u24 v%d, %d, v%d" % (V_SA, NQ * 4, V_T0))
    e("v_add_u32 v%d, s%d, v%d" % (V_SA, S_T, V_SA))
    e("v_lshl_add_u32 v%d, v%d, 2, v%d" % (V_SB, V_T1, V_SA))
    e("v_lshlrev_b32 v%d, 2, v%d" % (V_MA, V_T0))
    e("v_add_u32 v%d, s%d, v%d" % (V_MA, S_MXA, V_MA))
    e("v_lshlrev_b32 v%d, 2, v0" % V_T0)
    e("v_mov_b32 v%d, 0" % V_T1)
    e("v_cmp_gt_u32 vcc, %d, v0" % NPH)
    e("s_and_saveexec_b64 s[%d:%d], vcc" % (S_T + 2, S_T + 3))
    e("ds_write_b32 v%d, v%d offset:%d" % (V_T0, V_T1, LDS_CNT))
    e("s_mov_b64 exec, s[%d:%d]" % (S_T + 2, S_T + 3))
    e("v_mov_b32 v%d, 0xff7fffff" % V_M)
    e("s_waitcnt lgkmcnt(0)")
    e("s_barrier")
    compute_w()
    steady = ["g%d" % k for k in range(DG) for _ in range(GS)]
    if not P["pfirst"]:
        steady = steady[GS:]
    e.vm = list(steady)

    e.lines.append(".p2align 6")
    e.label("L_kloop")
    body("K", False)
    assert e.vm == steady, (e.vm, steady)
    e("s_sub_u32 s%d, s%d, 1" % (S_N, S_N))
    e("s_cmp_lg_u32 s%d, 0" % S_N)
    e("s_cbranch_scc1 L_kloop")
    body("K", True)
    if P["stamp"]:
        e("s_memrealtime s[%d:%d]" % (S_ST + 6, S_ST + 7))
    e("s_waitcnt lgkmcnt(0)")
    read_logits()
    start_phase_v()
    prep_v()
    assert e.vm == steady, (e.vm, steady)
    e.lines.append(".p2align 6")
    e.label("L_vloop")
    body("V", False)
    assert e.vm == steady, (e.vm, steady)
    e("s_branch L_vloop")

    MLB = V_MG
    OB = V_MG + 2 * NROWS
    V_MX = OB + 3 * NW
    V_CN = V_MX + 4
    e.label("L_dump")
    e("v_mov_b32 v%d, s%d" % (V_T0, S_MXA))
    e("ds_read_b128 v[%d:%d], v%d" % (V_MX, V_MX + 3, V_T0))
    e("s_add_u32 s%d, s%d, %d" % (S_MXA, S_MXA, NROWS * 4))
    for kk in (8, 4, 2, 1):
        e("v_add_f32_dpp v%d, v%d, v%d row_ror:%d row_mask:0xf bank_mask:0xf" % (V_L, V_L, V_L, kk))
        e("v_add_f32_dpp v%d, v%d, v%d row_ror:%d row_mask:0xf bank_mask:0xf" % (V_ZB, V_ZB, V_ZB, kk))
    if NQ < 16:
        e("v_mul_f32 v%d, %s, v%d" % (V_L, f32hex(NQ / 16.0), V_L))
        e("v_mul_f32 v%d, %s, v%d" % (V_ZB, f32hex(NQ / 16.0), V_ZB))
    e("v_sub_f32 v%d, 0, v%d" % (V_M, V_M))
    for i in range(12):
        e("v_sub_f32 v%d, v%d, v%d" % (V_ACC + i, V_ACC + i, V_ZB))
    e("s_mul_i32 s%d, s%d, %d" % (S_T, S_PH, PHB))
    e("s_add_u32 s%d, s%d, %d" % (S_T, S_T, LDS_R0))
    for c in range(3):
        a = V_ACC + 4 * c
        e("v_permlane32_swap_b32 v%d, v%d" % (a, a + 2))
        e("v_permlane32_swap_b32 v%d, v%d" % (a + 1, a + 3))
    e("v_lshrrev_b32 v%d, 4, v0" % V_T1)
    e("v_lshlrev_b32 v%d, 3, v%d" % (V_T1, V_T1))
    for c in range(3):
        a = V_ACC + 4 * c
        e("v_add_f32 v%d, v%d, v%d" % (a, a, a + 2))
        e("v_add_f32 v%d, v%d, v%d" % (a + 1, a + 1, a + 3))
    e("v_add_u32 v%d, s%d, v%d" % (V_T1, S_T, V_T1))
    e("ds_write_b64 v%d, v[%d:%d] offset:%d" % (V_T1, V_M, V_L, NW * ROWB))
    for c in range(3):
        a = V_ACC + 4 * c
        e("v_permlane16_swap_b32 v%d, v%d" % (a, a + 1))
    e("v_add_u32 v%d, s%d, v%d" % (V_T0, S_LDSB, V_DO))
    e("s_lshl_b32 s%d, s%d, 2" % (S_T + 1, S_PH))
    for c in range(3):
        a = V_ACC + 4 * c
        e("v_add_f32 v%d, v%d, v%d" % (a, a, a + 1))
        e("ds_write_b32 v%d, v%d offset:%d" % (V_T0, a, c * 256))
    e("v_mov_b32 v%d, s%d" % (V_T0, S_T + 1))
    e("v_mov_b32 v%d, 1" % V_T1)
    e("s_mov_b64 exec, 1")
    e("ds_add_rtn_u32 v%d, v%d, v%d offset:%d" % (V_CN, V_T0, V_T1, LDS_CNT))
    e("s_mov_b64 exec, -1")
    e("s_sub_u32 s%d, s%d, 1" % (S_T + 1, S_PH))
    e("s_cbranch_scc1 L_noduty")
    e("s_and_b32 s%d, s%d, %d" % (S_T + 2, S_T + 1, NW - 1))
    e("s_cmp_lg_u32 s%d, s%d" % (S_T + 2, S_WAVE))
    e("s_cbranch_scc1 L_noduty")
    e("s_sub_u32 s%d, s%d, %d" % (S_MB, S_T, PHB))
    e("s_sub_u32 s%d, s%d, %d" % (S_MREC, S_REC, HC * WPH * PART_STRIDE))
    e("s_lshl_b32 s%d, s%d, 2" % (S_MC, S_T + 1))
    e("s_mov_b32 s%d, 0" % S_RET)
    e.label("L_merge")
    e("v_mov_b32 v%d, s%d" % (V_T0, S_MC))
    e("ds_read_b32 v%d, v%d offset:%d" % (V_PB, V_T0, LDS_CNT))
    e("v_mov_b32 v%d, s%d" % (V_T0, S_MB))
    for r in range(0, NROWS, 2):
        e("ds_read_b128 v[%d:%d], v%d offset:%d" % (MLB + 2 * r, MLB + 2 * r + 3, V_T0, NW * ROWB + r * 8))
    e("v_and_b32 v%d, 63, v0" % V_T1)
    e("v_lshlrev_b32 v%d, 2, v%d" % (V_T1, V_T1))
    e("v_add_u32 v%d, s%d, v%d" % (V_T0, S_MB, V_T1))
    e("s_waitcnt lgkmcnt(4)")
    for kk in range(3):
        for w in range(NW):
            e("ds_read_b32 v%d, v%d offset:%d" % (OB + kk * NW + w, V_T0, w * ROWB + kk * 256))
            if (kk * NW + w) % 8 == 7:
                e("s_waitcnt lgkmcnt(4)")
    e("v_readfirstlane_b32 s%d, v%d" % (S_T + 2, V_PB))
    e("s_nop 3")
    e("s_cmp_lg_u32 s%d, %d" % (S_T + 2, NW))
    e("s_waitcnt lgkmcnt(0)")
    e("s_cbranch_scc1 L_merge")
    for w in range(NW):
        b = MLB + 8 * w
        e("v_add_f32 v%d, v%d, v%d" % (b + 1, b + 1, b + 3))
        e("v_add_f32 v%d, v%d, v%d" % (b + 5, b + 5, b + 7))
        e("v_add_f32 v%d, v%d, v%d" % (b + 1, b + 1, b + 5))
    e("v_mov_b32 v%d, v%d" % (V_M, MLB))
    for w in range(1, NW):
        e("v_max_f32 v%d, v%d, v%d" % (V_M, V_M, MLB + 8 * w))
    for w in range(NW):
        e("v_sub_f32 v%d, v%d, v%d" % (MLB + 8 * w, MLB + 8 * w, V_M))
    for w in range(NW):
        e("v_exp_f32 v%d, v%d" % (MLB + 8 * w, MLB + 8 * w))
    e("v_mul_f32 v%d, v%d, v%d" % (V_L, MLB, MLB + 1))
    for w in range(1, NW):
        e("v_fmac_f32 v%d, v%d, v%d" % (V_L, MLB + 8 * w, MLB + 8 * w + 1))
    for kk in range(3):
        e("v_mul_f32 v%d, v%d, v%d" % (V_ACC + kk, MLB, OB + kk * NW))
        for w in range(1, NW):
            e("v_fmac_f32 v%d, v%d, v%d" % (V_ACC + kk, MLB + 8 * w, OB + kk * NW + w))
        e("buffer_store_dword v%d, v%d, s[%d:%d], s%d offen offset:%d%s" % (V_ACC + kk, V_T1, S_WS, S_WS + 3, S_MREC, kk * 256, spol))
    e("s_mov_b64 exec, 1")
    e("buffer_store_dwordx2 v[%d:%d], v%d, s[%d:%d], s%d offen offset:%d%s" % (V_M, V_L, V_T1, S_WS, S_WS + 3, S_MREC, DH * 4, spol))
    e("s_mov_b64 exec, -1")
    e("s_cmp_lg_u32 s%d, 0" % S_RET)
    e("s_cbranch_scc1 L_done")
    e.label("L_noduty")
    e("s_waitcnt lgkmcnt(0)")
    e("s_add_u32 s%d, s%d, 1" % (S_PH, S_PH))
    e("s_cmp_ge_u32 s%d, %d" % (S_PH, NPH))
    e("s_cbranch_scc1 L_final")
    e("s_add_u32 s%d, s%d, %d" % (S_LDSB, S_LDSB, PHB))
    e("s_add_u32 s%d, s%d, %d" % (S_REC, S_REC, HC * WPH * PART_STRIDE))
    e("v_max3_f32 v%d, v%d, v%d, v%d" % (V_T0, V_MX, V_MX + 1, V_MX + 2))
    e("v_mov_b32 v%d, 0" % V_L)
    e("v_mov_b32 v%d, 0" % V_ZB)
    e("v_max_f32 v%d, v%d, v%d" % (V_T0, V_T0, V_MX + 3))
    for i in range(12):
        e("v_mov_b32 v%d, 0" % (V_ACC + i))
    e("v_mul_f32 v%d, s%d, v%d" % (V_M, S_NC, V_T0))
    e("s_branch L_cont")
    e.label("L_final")
    e("v_readfirstlane_b32 s%d, v%d" % (S_T + 2, V_CN))
    e("s_mov_b32 s%d, %d" % (S_MB, LDS_R0 + (NPH - 1) * PHB))
    e("s_mov_b32 s%d, s%d" % (S_MREC, S_REC))
    e("s_mov_b32 s%d, %d" % (S_MC, (NPH - 1) * 4))
    e("s_mov_b32 s%d, 1" % S_RET)
    e("s_cmp_eq_u32 s%d, %d" % (S_T + 2, NW - 1))
    e("s_cbranch_scc1 L_merge")
    e.label("L_done")

    if P["stamp"]:
        e("s_memrealtime s[%d:%d]" % (S_ST + 2, S_ST + 3))
        e("s_getreg_b32 s%d, hwreg(HW_REG_XCC_ID)" % (S_ST + 4))
        e("s_waitcnt lgkmcnt(0)")
        e("v_mov_b32 v%d, s%d" % (V_MG + 0, S_ST))
        e("v_mov_b32 v%d, s%d" % (V_MG + 1, S_ST + 2))
        e("v_mov_b32 v%d, s%d" % (V_MG + 2, S_ST + 4))
        e("v_mov_b32 v%d, s%d" % (V_MG + 3, S_ST + 6))
        e("s_mul_i32 s%d, s%d, %d" % (S_T, S_WG, NW))
        e("s_add_u32 s%d, s%d, s%d" % (S_T, S_T, S_WAVE))
        e("s_lshl_b32 s%d, s%d, 4" % (S_T, S_T))
        e("s_add_u32 s%d, s%d, 0x4000000" % (S_T, S_T))
        e("s_mov_b32 s%d, 0x8000000" % (S_WS + 2))
        e("v_mov_b32 v%d, 0" % V_T0)
        e("buffer_store_dwordx4 v[%d:%d], v%d, s[%d:%d], s%d offen" % (V_MG, V_MG + 3, V_T0, S_WS, S_WS + 3, S_T))
    e.lines.append("L_exit1:")
    e("s_endpgm")

    RPW = min(P["rpw"], WPH)
    NW2 = WPH // RPW
    assert NW2 <= 16
    k2 = NAME + "_kernel"
    e.lines.append(".globl %s" % k2)
    e.lines.append(".p2align 8")
    e.lines.append(".type %s,@function" % k2)
    e.lines.append(k2 + ":")
    e.wr = {}; e.tr = {}
    e("s_cmp_ge_u32 s2, %d" % (3 * H))
    e("s_cbranch_scc1 L_exit2")
    e("s_load_dwordx2 s[4:5], s[0:1], 56")
    e("s_load_dwordx2 s[6:7], s[0:1], 72")
    e("v_lshrrev_b32 v3, 6, v0")
    e("v_and_b32 v1, 63, v0")
    e("v_readfirstlane_b32 s18, v3")
    e("v_lshlrev_b32 v1, 2, v1")
    e("v_mov_b32 v2, 0")
    e("s_and_b32 s19, s2, %d" % (H - 1))
    e("s_lshr_b32 s20, s2, 5")
    e("s_mul_i32 s16, s19, %d" % WPH)
    e("s_mul_i32 s17, s18, %d" % RPW)
    e("s_add_u32 s16, s16, s17")
    e("s_mul_i32 s16, s16, %d" % PART_STRIDE)
    e("s_lshl_b32 s21, s20, 8")
    e("v_add_u32 v4, s21, v1")
    e("s_mov_b32 s10, %d" % (H * WPH * PART_STRIDE))
    e("s_mov_b32 s11, 0x00020000")
    e("s_mov_b32 s14, %d" % (H * DH * 2))
    e("s_mov_b32 s15, 0x00020000")
    e("s_waitcnt lgkmcnt(0)")
    e("s_mov_b32 s8, s6")
    e("s_and_b32 s9, s7, 0xffff")
    e("s_mov_b32 s12, s4")
    e("s_and_b32 s13, s5, 0xffff")
    MLB = 8
    OB = MLB + 2 * RPW
    for s in range(RPW):
        if s % 4 == 0:
            e("s_add_u32 s17, s16, %d" % (s * PART_STRIDE))
        e("buffer_load_dwordx2 v[%d:%d], v2, s[8:11], s17 offen offset:%d" %
          (MLB + 2 * s, MLB + 2 * s + 1, (s % 4) * PART_STRIDE + DH * 4))
        e("buffer_load_dword v%d, v4, s[8:11], s17 offen offset:%d" % (OB + s, (s % 4) * PART_STRIDE))
    e("s_waitcnt vmcnt(0)")

    def combine(n):
        e("v_mov_b32 v4, v%d" % MLB)
        for s in range(1, n):
            e("v_max_f32 v4, v4, v%d" % (MLB + 2 * s))
        for s in range(n):
            e("v_sub_f32 v%d, v%d, v4" % (MLB + 2 * s, MLB + 2 * s))
        for s in range(n):
            e("v_exp_f32 v%d, v%d" % (MLB + 2 * s, MLB + 2 * s))
        e("v_mul_f32 v5, v%d, v%d" % (MLB, MLB + 1))
        e("v_mul_f32 v6, v%d, v%d" % (MLB, OB))
        for s in range(1, n):
            e("v_fmac_f32 v5, v%d, v%d" % (MLB + 2 * s, MLB + 2 * s + 1))
            e("v_fmac_f32 v6, v%d, v%d" % (MLB + 2 * s, OB + s))

    combine(RPW)
    LDS2 = 0
    if NW2 > 1:
        assert NW2 <= RPW
        LDS2 = NW2 * 256 + NW2 * 8
        e("v_lshlrev_b32 v7, 2, v0")
        e("ds_write_b32 v7, v6")
        e("v_lshlrev_b32 v7, 3, v3")
        e("ds_write_b64 v7, v[4:5] offset:%d" % (NW2 * 256))
        e("s_waitcnt lgkmcnt(0)")
        e("s_barrier")
        e("s_cmp_lg_u32 s18, 0")
        e("s_cbranch_scc1 L_exit2")
        for w in range(NW2):
            e("ds_read_b64 v[%d:%d], v2 offset:%d" % (MLB + 2 * w, MLB + 2 * w + 1, NW2 * 256 + w * 8))
            e("ds_read_b32 v%d, v1 offset:%d" % (OB + w, w * 256))
            if w % 4 == 3:
                e("s_waitcnt lgkmcnt(4)")
        e("s_waitcnt lgkmcnt(0)")
        combine(NW2)
    e("v_rcp_f32 v5, v5")
    e("v_mul_f32 v6, v6, v5")
    e("v_cvt_pk_bf16_f32 v6, v6, v6")
    e("s_mul_i32 s16, s19, %d" % (DH * 2))
    e("s_lshl_b32 s21, s20, 7")
    e("s_add_u32 s16, s16, s21")
    e("v_lshrrev_b32 v1, 1, v1")
    e("buffer_store_short v6, v1, s[12:15], s16 offen")
    e.lines.append("L_exit2:")
    e("s_endpgm")
    NV2 = OB + RPW

    def kd(name, nv, ns):
        acc = (nv + 3) // 4 * 4
        return """.amdhsa_kernel %s
  .amdhsa_next_free_vgpr %d
  .amdhsa_next_free_sgpr %d
  .amdhsa_accum_offset %d
  .amdhsa_group_segment_fixed_size 0
  .amdhsa_kernarg_size 80
  .amdhsa_user_sgpr_count 2
  .amdhsa_user_sgpr_kernarg_segment_ptr 1
  .amdhsa_system_sgpr_workgroup_id_x 1
.end_amdhsa_kernel
""" % (name, nv, ns, acc)

    out = HEADER.format(params=" ".join("%s=%s" % kv for kv in sorted(P.items())))
    out += "; @launch kernel=%s grid=(%d,1,1) block=(%d,1,1) lds=%d\n" % (k1, NWG, NW * 64, LDS1)
    out += "; @launch kernel=%s grid=(%d,1,1) block=(%d,1,1) lds=%d\n" % (k2, 3 * H, NW2 * 64, LDS2)
    out += '.amdgcn_target "amdgcn-amd-amdhsa--gfx950"\n.text\n'
    out += e.text()
    out += '.section .rodata,"a"\n.p2align 6\n'
    out += kd(k1, NVGPR, 92)
    out += ".p2align 6\n"
    out += kd(k2, NV2, 24)
    return out


DEFAULTS = dict(nw=4, nwg=256, hc=4, tt=16, gs=6, dg=1, nt="nt", ldspad=0, stamp=0, rpw=16, pfirst=1, sp="")


def main():
    P = dict(DEFAULTS)
    outp = None
    args = sys.argv[1:]
    i = 0
    while i < len(args):
        a = args[i]
        if a == "-o":
            outp = args[i + 1]; i += 2; continue
        k, v = a.split("=", 1)
        assert k in P, k
        P[k] = type(P[k])(v.replace("+", " ")) if isinstance(P[k], str) else int(v)
        i += 1
    s = gen(P)
    if outp:
        open(outp, "w").write(s)
    else:
        sys.stdout.write(s)


if __name__ == "__main__":
    main()
```

```python
import re
import sys
import math
import struct

NAME = "standalone__kv_cache_quant_int4_int2_kv_with_per_channel_or_per_token_scales__decode"

H = 32
SKV = 32768
DH = 192
G = 64
NGRP = SKV // G
ROWB = DH * 4
HEADB = SKV * ROWB
GRPB = G * ROWB
QUADB = 4 * ROWB
PART_STRIDE = 1024

HEADER = """; Kernarg layout for this problem (80 bytes, ptrs only, base s[0:1]):
;   offset  40: d_in[5] v_scales  shape=(1, 32, 32768, 1) dtype=bfloat16 strides=(2097152, 65536, 2, 2) contiguous=True
;   offset  48: d_in[6] v_zeros  shape=(1, 32, 32768, 1) dtype=bfloat16 strides=(2097152, 65536, 2, 2) contiguous=True
; Generated by gen.py (hand-written generator).  Params: {params}
"""


def f32hex(x):
    return "0x%08x" % struct.unpack("<I", struct.pack("<f", x))[0]


_VREG = re.compile(r"\bv(\d+)\b")
_VRANGE = re.compile(r"\bv\[(\d+):(\d+)\]")
_TRANS = ("v_exp_f32", "v_rcp_f32", "v_log_f32", "v_rsq_f32", "v_sqrt_f32")


def vregs(text):
    out = [int(x) for x in _VREG.findall(text)]
    for a, b in _VRANGE.findall(text):
        out += list(range(int(a), int(b) + 1))
    return out


class Emit:
    def __init__(self):
        self.lines = []
        self.vm = []
        self.n = 0
        self.wr = {}
        self.tr = {}
        self.pend = []

    def _raw(self, s):
        self.lines.append("    " + s)
        m = re.match(r"s_nop (\d+)", s)
        self.n += (int(m.group(1)) + 1) if m else 1

    def need(self, s):
        op = s.split()[0]
        if not op.startswith("v_"):
            return 0
        ops = s[len(op):]
        regs = vregs(ops)
        need = 0
        first = ops.split(",")[0]
        srcs = vregs(ops[len(first):])
        if "_dpp" in op or op.startswith("v_permlane"):
            for r in regs:
                if r in self.wr:
                    need = max(need, 2 - (self.n - self.wr[r] - 1))
        if op.startswith(("v_readfirstlane", "v_readlane")):
            for r in srcs:
                if r in self.wr:
                    need = max(need, 1 - (self.n - self.wr[r] - 1))
        if op not in _TRANS:
            rr = regs if op.startswith("v_fmac") else srcs
            for r in rr:
                if r in self.tr:
                    need = max(need, 1 - (self.n - self.tr[r] - 1))
        return max(need, 0)

    def _emit(self, s):
        k = self.need(s)
        if k > 0:
            self._raw("s_nop %d" % (k - 1))
        op = s.split()[0]
        if op.startswith("v_") and not op.startswith(("v_cmp", "v_readfirstlane", "v_readlane")):
            first = s[len(op):].split(",")[0]
            if op.startswith("v_permlane"):
                first = s[len(op):]
            for r in vregs(first):
                self.wr[r] = self.n
                if op in _TRANS:
                    self.tr[r] = self.n
                else:
                    self.tr.pop(r, None)
        self._raw(s)

    def __call__(self, s):
        self._emit(s)
        if self.pend and self.need(self.pend[0]) == 0:
            self._emit(self.pend.pop(0))

    def defer(self, ops):
        self.pend += ops

    def flush(self):
        while self.pend:
            self._emit(self.pend.pop(0))

    def label(self, s):
        assert not self.pend
        self.lines.append(s + ":")
        self._raw("s_nop 1")

    def comment(self, s):
        self.lines.append("    ; " + s)

    def vmem(self, s, tag):
        self(s)
        self.vm.append(tag)

    def wait_tag(self, tag):
        idx = [i for i, t in enumerate(self.vm) if t == tag]
        if not idx:
            return
        last = idx[-1]
        n = len(self.vm) - 1 - last
        assert n <= 63, n
        self("s_waitcnt vmcnt(%d)" % n)
        self.vm = self.vm[last + 1:]

    def text(self):
        return "\n".join(self.lines) + "\n"


def gen(P):
    NW = P["nw"]
    NWG = P["nwg"]
    HC = P["hc"]
    TT = P["tt"]
    GS = P["gs"]
    DG = P["dg"]
    NT_ = P["nt"]
    NQ = TT // 4
    NL = NQ * 3
    assert NL % GS == 0
    NG = NL // GS
    assert 1 <= DG <= NG
    UT = 1 if (DG + 1) * GS <= NL else 2
    RS = min(d for d in range(1, UT * NL + 1) if (UT * NL) % d == 0 and d >= (DG + 1) * GS)
    NPH = H // HC
    WPH = NWG // HC
    TSTEP = WPH * NW * TT
    assert SKV % TSTEP == 0 and G % TT == 0
    SPP = SKV // TSTEP
    assert SPP % UT == 0 and SPP & (SPP - 1) == 0
    NTILE = NPH * SPP
    assert NTILE // UT >= 2
    NROWS = NW * 4
    LDS_CNT = 0
    LDS_MAX = 128
    assert NPH * 4 <= LDS_MAX
    LDS_S = LDS_MAX + NPH * NROWS * 4
    SWB = NTILE * TT * 4
    LDS_R0 = LDS_S + NW * SWB
    PHB = NW * ROWB + NROWS * 8
    LDS1 = max(LDS_R0 + NPH * PHB, P["ldspad"])
    assert LDS1 <= 160 * 1024, LDS1
    DYN = P["dyn"]
    SLOTS = 8 * NW
    NTS = SLOTS * SPP
    WS_X = 16 << 20
    WS_C = 24 << 20
    WS_SIZE = 32 << 20
    if DYN:
        assert NPH >= 6 and WPH % 8 == 0 and SPP * TT * 4 <= 512 and SPP * TT % 64 == 0 and UT == 1
        assert SLOTS <= 64 and (NWG // 8) * 4 <= 256
    pol = (" " + NT_) if NT_ else ""
    spol = (" " + P["sp"]) if P["sp"] else ""
    C = (DH ** -0.5) * math.log2(math.e)

    e = Emit()
    V_KP = 1; V_VP = 2; V_SA = 3
    V_M = 4; V_L = 5; V_ZB = 6; V_PB = 7; V_VS = 8; V_VZ = 9; V_T0 = 10; V_T1 = 11
    V_ACC = 12; V_W = 24; V_RAW = 36
    V_SB = 54; V_MA = 55; V_SR = 56; V_PV = 57; V_DO = 58
    V_S = 60
    V_KV = V_S + NQ
    NKV = (TT + 7) // 8
    V_RING = (V_KV + NKV + 3) // 4 * 4
    V_MG = V_RING + 4 * RS
    V_X = V_MG + 2 * NROWS + 3 * NW + 5
    V_POLL = V_X; V_GM = V_X + 1; V_CL = V_X + 2; V_LO = V_X + 3; V_SIG = V_X + 4
    NVGPR = V_X + 5
    assert NVGPR <= 256, NVGPR
    S_K = 8; S_V = 12; S_KS = 16; S_KZ = 20; S_VS = 24; S_VZ = 28; S_Q = 32; S_WS = 36
    S_HS = 40; S_R = 41; S_WAVE = 42; S_KOFF = 43; S_TOK0 = 44; S_POFF = 45; S_VPOFF = 46; S_QOFF = 47
    S_C = 48; S_NC = 49; S_T = 50
    S_WG = 54; S_TOK = 55; S_I = 56; S_LAST = 57; S_PH = 58; S_LDSB = 59; S_REC = 60; S_N = 61; S_MXA = 62
    S_MB = 4; S_MREC = 5; S_MC = 6; S_RET = 7
    S_ST = 84
    S_DBG = 92; S_SP4 = 96; S_XB = 97; S_TB = 98; S_CO = 99; S_LOFF = 63; S_SPIN = 3; S_OWN = 100

    k1 = "part_kernel"
    e.lines.append(".globl %s" % k1)
    e.lines.append(".p2align 8")
    e.lines.append(".type %s,@function" % k1)
    e.lines.append(k1 + ":")
    e("s_cmp_ge_u32 s2, %d" % NWG)
    e("s_cbranch_scc1 L_exit1")
    e("s_load_dwordx16 s[64:79], s[0:1], 0")
    e("s_load_dwordx4 s[80:83], s[0:1], 64")
    e("s_mov_b32 s%d, s2" % S_WG)
    if P["stamp"] or P["dbgt"]:
        e("s_memrealtime s[%d:%d]" % (S_ST, S_ST + 1))
    e("v_lshrrev_b32 v%d, 6, v0" % V_T0)
    e("v_and_b32 v%d, 63, v0" % V_T1)
    e("v_readfirstlane_b32 s%d, v%d" % (S_WAVE, V_T0))
    e("v_lshrrev_b32 v%d, 4, v%d" % (V_T0, V_T1))
    e("v_and_b32 v%d, 15, v%d" % (V_T1, V_T1))
    e("v_mul_u32_u24 v%d, %d, v%d" % (V_KV, ROWB, V_T0))
    e("v_lshl_add_u32 v%d, v%d, 4, v%d" % (V_KV, V_T1, V_KV))
    for k in range(1, NKV):
        e("v_add_u32 v%d, %d, v%d" % (V_KV + k, k * 2 * QUADB, V_KV))
    e("v_lshlrev_b32 v%d, 3, v%d" % (V_KP, V_T1))
    e("v_lshlrev_b32 v%d, 2, v%d" % (V_DO, V_T0))
    e("v_lshl_add_u32 v%d, v%d, 4, v%d" % (V_DO, V_T1, V_DO))
    e("v_and_b32 v%d, %d, v%d" % (V_T1, NQ - 1, V_T1))
    e("v_lshl_add_u32 v%d, v%d, 2, v%d" % (V_VP, V_T1, V_T0))
    e("v_lshlrev_b32 v%d, 1, v%d" % (V_VP, V_VP))
    e("s_lshr_b32 s%d, s2, 3" % S_HS)
    e("s_and_b32 s%d, s%d, %d" % (S_HS, S_HS, HC - 1))
    e("s_lshr_b32 s%d, s2, %d" % (S_R, 3 + int(math.log2(HC))))
    e("s_lshl_b32 s%d, s%d, 3" % (S_R, S_R))
    e("s_and_b32 s%d, s2, 7" % S_T)
    e("s_or_b32 s%d, s%d, s%d" % (S_R, S_R, S_T))
    e("s_mul_i32 s%d, s%d, %d" % (S_TOK, S_R, NW))
    e("s_add_u32 s%d, s%d, s%d" % (S_TOK, S_TOK, S_WAVE))
    e("s_mul_i32 s%d, s%d, %d" % (S_TOK, S_TOK, TT))
    e("s_lshl_b32 s%d, s%d, 15" % (S_T, S_HS))
    e("s_add_u32 s%d, s%d, s%d" % (S_TOK, S_TOK, S_T))

    def offsets_from_tok(kind):
        e("s_mul_i32 s%d, s%d, %d" % (S_KOFF, S_TOK, ROWB))
        if kind == "K":
            e("s_lshr_b32 s%d, s%d, 6" % (S_POFF, S_TOK))
            e("s_mul_i32 s%d, s%d, %d" % (S_POFF, S_POFF, DH * 2))
            e("s_lshr_b32 s%d, s%d, 15" % (S_QOFF, S_TOK))
            e("s_mul_i32 s%d, s%d, %d" % (S_QOFF, S_QOFF, DH * 2))
        else:
            e("s_lshl_b32 s%d, s%d, 1" % (S_VPOFF, S_TOK))

    offsets_from_tok("K")

    def srd(dst, ptr, nbytes):
        e("s_mov_b32 s%d, s%d" % (dst, ptr))
        e("s_and_b32 s%d, s%d, 0xffff" % (dst + 1, ptr + 1))
        e("s_mov_b32 s%d, %d" % (dst + 2, nbytes))
        e("s_mov_b32 s%d, 0x00020000" % (dst + 3))

    def issue_kparams():
        for k, (sr, so) in enumerate(((S_Q, S_QOFF), (S_KS, S_POFF), (S_KZ, S_POFF))):
            if P["xkp"] & (1 << k):
                continue
            for c in range(3):
                r = V_RAW + 6 * k + 2 * c
                e.vmem("buffer_load_dwordx2 v[%d:%d], v%d, s[%d:%d], s%d offen offset:%d" %
                       (r, r + 1, V_KP, sr, sr + 3, so, c * 128), "kp")

    def issue_vparams(dyn=False):
        if dyn:
            e.vmem("buffer_load_dword v%d, v%d, s[%d:%d], s%d offen sc1" % (V_SR, V_LO, S_WS, S_WS + 3, S_LOFF), "vp")
        e.vmem("buffer_load_ushort v%d, v%d, s[%d:%d], s%d offen" % (V_VS, V_VP, S_VS, S_VS + 3, S_VPOFF), "vp")
        e.vmem("buffer_load_ushort v%d, v%d, s[%d:%d], s%d offen" % (V_VZ, V_VP, S_VZ, S_VZ + 3, S_VPOFF), "vp")

    def read_logits():
        e("ds_read_b32 v%d, v%d" % (V_SR, V_SB))
        e("v_add_u32 v%d, %d, v%d" % (V_SB, TT * 4, V_SB))

    def issue_group(gidx, kind):
        gidx = gidx % (UT * NG)
        for i in range(GS):
            l = gidx * GS + i
            ll = l % NL
            q, c = ll // 3, ll % 3
            r = V_RING + (l % RS) * 4
            srdb = S_K if kind == "K" else S_V
            e.vmem("buffer_load_dwordx4 v[%d:%d], v%d, s[%d:%d], s%d offen offset:%d%s" %
                   (r, r + 3, V_KV + q // 2, srdb, srdb + 3, S_KOFF, (q & 1) * QUADB + c * 256, pol), "g%d" % gidx)

    def compute_w():
        e.wait_tag("kp")
        for p in range(6):
            rq = V_RAW + p; rs = V_RAW + 6 + p
            i0 = 2 * p
            e("v_lshlrev_b32 v%d, 16, v%d" % (V_T0, rq))
            e("v_lshlrev_b32 v%d, 16, v%d" % (V_W + i0, rs))
            e("v_and_b32 v%d, 0xffff0000, v%d" % (V_T1, rq))
            e("v_and_b32 v%d, 0xffff0000, v%d" % (V_W + i0 + 1, rs))
            e("v_mul_f32 v%d, v%d, v%d" % (V_W + i0, V_W + i0, V_T0))
            e("v_mul_f32 v%d, v%d, v%d" % (V_W + i0 + 1, V_W + i0 + 1, V_T1))
        for p in range(6):
            rz = V_RAW + 12 + p
            i0 = 2 * p
            e("v_lshlrev_b32 v%d, 16, v%d" % (V_T0, rz))
            e("v_and_b32 v%d, 0xffff0000, v%d" % (V_T1, rz))
            if p == 0:
                e("v_mul_f32 v%d, v%d, v%d" % (V_PB, V_T0, V_W + i0))
            else:
                e("v_fmac_f32 v%d, v%d, v%d" % (V_PB, V_T0, V_W + i0))
            e("v_fmac_f32 v%d, v%d, v%d" % (V_PB, V_T1, V_W + i0 + 1))
        e("v_sub_f32 v%d, 0, v%d" % (V_PB, V_PB))

    def prep_v():
        e.wait_tag("vp")
        e("s_waitcnt lgkmcnt(0)")
        e("v_fma_f32 v%d, v%d, s%d, v%d" % (V_T0, V_SR, S_C, V_M))
        e("v_lshlrev_b32 v%d, 16, v%d" % (V_VS, V_VS))
        e("v_exp_f32 v%d, v%d" % (V_T0, V_T0))
        e("v_lshlrev_b32 v%d, 16, v%d" % (V_VZ, V_VZ))
        e("v_mul_f32 v%d, v%d, v%d" % (V_PV, V_T0, V_VS))
        e("v_add_f32 v%d, v%d, v%d" % (V_L, V_L, V_T0))
        e("v_fmac_f32 v%d, v%d, v%d" % (V_ZB, V_PV, V_VZ))

    def start_phase_v():
        e("v_mov_b32 v%d, s%d" % (V_T0, S_MXA))
        e("ds_read_b128 v[%d:%d], v%d" % (V_MG, V_MG + 3, V_T0))
        e("s_add_u32 s%d, s%d, %d" % (S_MXA, S_MXA, NROWS * 4))
        e("v_mov_b32 v%d, 0" % V_L)
        e("v_mov_b32 v%d, 0" % V_ZB)
        for i in range(12):
            e("v_mov_b32 v%d, 0" % (V_ACC + i))
        e("s_waitcnt lgkmcnt(0)")
        e("v_max3_f32 v%d, v%d, v%d, v%d" % (V_T0, V_MG, V_MG + 1, V_MG + 2))
        e("v_max_f32 v%d, v%d, v%d" % (V_T0, V_T0, V_MG + 3))
        e("v_mul_f32 v%d, s%d, v%d" % (V_M, S_NC, V_T0))

    def advance(kind):
        e("s_cmp_eq_u32 s%d, %d" % (S_I, SPP - 1))
        e("s_cselect_b32 s%d, 1, 0" % S_LAST)
        if HC > 1:
            e("s_cselect_b32 s%d, %d, 0" % (S_T, (HC - 1) * SKV))
            e("s_add_u32 s%d, s%d, s%d" % (S_TOK, S_TOK, S_T))
        e("s_add_u32 s%d, s%d, %d" % (S_TOK, S_TOK, TSTEP))
        e("s_add_u32 s%d, s%d, 1" % (S_I, S_I))
        e("s_and_b32 s%d, s%d, %d" % (S_I, S_I, SPP - 1))
        offsets_from_tok(kind)

    def write_max():
        e("ds_write_b32 v%d, v%d" % (V_MA, V_M))
        e("v_add_u32 v%d, %d, v%d" % (V_MA, NROWS * 4, V_MA))
        e("v_mov_b32 v%d, 0xff7fffff" % V_M)

    uid = [0]

    def issue_claim():
        e("v_mov_b32 v%d, 1" % V_CL)
        e("s_mov_b64 exec, 1")
        e.vmem("buffer_atomic_add v%d, off, s[%d:%d], s%d sc0" % (V_CL, S_WS, S_WS + 3, S_CO), "cl")
        e("s_mov_b64 exec, -1")

    def advance_dyn():
        e.wait_tag("cl")
        e("v_readfirstlane_b32 s%d, v%d" % (S_T, V_CL))
        e("s_nop 3")
        e("s_cmp_ge_u32 s%d, %d" % (S_T, NTS))
        e("s_cselect_b32 s%d, 1, 0" % S_LAST)
        e("s_lshr_b32 s%d, s%d, %d" % (S_T + 1, S_T, int(math.log2(SLOTS))))
        e("s_and_b32 s%d, s%d, %d" % (S_T, S_T, SLOTS - 1))
        e("s_mul_i32 s%d, s%d, %d" % (S_TOK, S_T + 1, TSTEP))
        e("s_mul_i32 s%d, s%d, %d" % (S_T + 2, S_T, TT))
        e("s_add_u32 s%d, s%d, s%d" % (S_TOK, S_TOK, S_T + 2))
        e("s_add_u32 s%d, s%d, s%d" % (S_TOK, S_TOK, S_TB))
        e("s_lshl_b32 s%d, s%d, 10" % (S_LOFF, S_T))
        e("s_mul_i32 s%d, s%d, %d" % (S_T + 2, S_T + 1, TT * 4))
        e("s_add_u32 s%d, s%d, s%d" % (S_LOFF, S_LOFF, S_T + 2))
        e("s_add_u32 s%d, s%d, s%d" % (S_LOFF, S_LOFF, S_XB))
        e("s_cmp_lg_u32 s%d, 0" % S_LAST)
        e("s_cselect_b32 s%d, %d, s%d" % (S_TOK, H * SKV, S_TOK))
        e("s_cselect_b32 s%d, %d, s%d" % (S_LOFF, WS_SIZE, S_LOFF))
        offsets_from_tok("V")

    def body(kind, last, dyn=False):
        for u in range(UT):
            to_v = kind == "K" and last and u == UT - 1
            nkind = "V" if to_v else kind
            for k in range(NG):
                gidx = u * NG + k
                e.wait_tag("g%d" % gidx)
                if k + DG == NG:
                    if to_v:
                        e("s_mov_b32 s%d, s%d" % (S_TOK, S_TOK0))
                        e("s_mov_b32 s%d, 0" % S_I)
                        offsets_from_tok("V")
                    elif dyn:
                        advance_dyn()
                    else:
                        advance(kind)
                    if P["pfirst"]:
                        issue_kparams() if nkind == "K" else issue_vparams(dyn)
                issue_group(gidx + DG, nkind if k + DG >= NG else kind)
                if k + DG == NG:
                    if not P["pfirst"]:
                        issue_kparams() if nkind == "K" else issue_vparams(dyn)
                    if kind == "V" and not dyn:
                        read_logits()
                if dyn and k == NG - 1:
                    issue_claim()
                for i in range(GS):
                    l = gidx * GS + i
                    ll = l % NL
                    q, c = ll // 3, ll % 3
                    base = V_RING + (l % RS) * 4
                    for r in range(4):
                        e("v_cvt_f32_i32 v%d, v%d" % (base + r, base + r))
                    if kind == "K":
                        s = V_S + q
                        for r in range(4):
                            if c == 0 and r == 0:
                                e("v_fma_f32 v%d, v%d, v%d, v%d" % (s, base, V_W, V_PB))
                            else:
                                e("v_fmac_f32 v%d, v%d, v%d" % (s, base + r, V_W + 4 * c + r))
                        if c == 2:
                            e.defer(["v_add_f32_dpp v%d, v%d, v%d row_ror:%d row_mask:0xf bank_mask:0xf" % (s, s, s, kk)
                                     for kk in (8, 4, 2, 1)])
                    else:
                        for r in range(4):
                            e("v_fmac_f32_dpp v%d, v%d, v%d row_newbcast:%d row_mask:0xf bank_mask:0xf" %
                              (V_ACC + 4 * c + r, V_PV, base + r, q))
            e.flush()
            if kind == "K":
                for q in range(0, NQ, 2):
                    e("v_max3_f32 v%d, v%d, v%d, v%d" % (V_M, V_M, V_S + q, V_S + q + 1))
                if NQ == 2:
                    e("ds_write_b64 v%d, v[%d:%d]" % (V_SA, V_S, V_S + 1))
                else:
                    for q in range(0, NQ, 4):
                        e("ds_write_b128 v%d, v[%d:%d] offset:%d" % (V_SA, V_S + q, V_S + q + 3, q * 4))
                e("v_add_u32 v%d, %d, v%d" % (V_SA, TT * 4, V_SA))
                if to_v:
                    write_max()
                elif u == UT - 1:
                    uid[0] += 1
                    lab = "L_nomax%d" % uid[0]
                    e("s_cmp_lg_u32 s%d, 0" % S_LAST)
                    e("s_cbranch_scc0 %s" % lab)
                    write_max()
                    e.label(lab)
                if not to_v:
                    compute_w()
            else:
                if u == UT - 1:
                    e("s_cmp_lg_u32 s%d, 0" % S_LAST)
                    e("s_cbranch_scc1 L_dump")
                    e.label("L_dcont" if dyn else "L_cont")
                prep_v()

    e("s_waitcnt lgkmcnt(0)")
    srd(S_K, 66, H * HEADB)
    for k in range(DG):
        issue_group(k, "K")
    srd(S_Q, 64, H * DH * 2)
    srd(S_KS, 70, H * NGRP * DH * 2)
    srd(S_KZ, 72, H * NGRP * DH * 2)
    issue_kparams()
    if P["pfirst"]:
        pass
    srd(S_VS, 74, H * SKV * 2)
    srd(S_VZ, 76, H * SKV * 2)
    srd(S_V, 68, H * HEADB)
    srd(S_WS, 82, WS_SIZE)
    e("s_mov_b32 s%d, %s" % (S_C, f32hex(C)))
    e("s_mov_b32 s%d, %s" % (S_NC, f32hex(-C)))
    e("s_mov_b32 s%d, s%d" % (S_TOK0, S_TOK))
    e("s_mov_b32 s%d, 0" % S_I)
    e("s_mov_b32 s%d, 0" % S_PH)
    e("s_mov_b32 s%d, %d" % (S_N, NTILE // UT - 1))
    e("s_mul_i32 s%d, s%d, %d" % (S_LDSB, S_WAVE, ROWB))
    e("s_add_u32 s%d, s%d, %d" % (S_LDSB, S_LDSB, LDS_R0))
    e("s_lshl_b32 s%d, s%d, 4" % (S_MXA, S_WAVE))
    e("s_add_u32 s%d, s%d, %d" % (S_MXA, S_MXA, LDS_MAX))
    e("s_mul_i32 s%d, s%d, %d" % (S_REC, S_HS, WPH))
    e("s_add_u32 s%d, s%d, s%d" % (S_REC, S_REC, S_R))
    e("s_mul_i32 s%d, s%d, %d" % (S_REC, S_REC, PART_STRIDE))
    e("s_mul_i32 s%d, s%d, %d" % (S_T, S_WAVE, SWB))
    e("s_add_u32 s%d, s%d, %d" % (S_T, S_T, LDS_S))
    e("v_mul_u32_u24 v%d, %d, v%d" % (V_SA, NQ * 4, V_T0))
    e("v_add_u32 v%d, s%d, v%d" % (V_SA, S_T, V_SA))
    e("v_lshl_add_u32 v%d, v%d, 2, v%d" % (V_SB, V_T1, V_SA))
    e("v_lshlrev_b32 v%d, 2, v%d" % (V_MA, V_T0))
    e("v_add_u32 v%d, s%d, v%d" % (V_MA, S_MXA, V_MA))
    if DYN:
        srd(S_DBG, 80, 256)
        e("v_mul_u32_u24 v%d, %d, v%d" % (V_LO, NQ * 4, V_T0))
        e("v_lshl_add_u32 v%d, v%d, 2, v%d" % (V_LO, V_T1, V_LO))
        e("v_mov_b32 v%d, 0" % V_SIG)
        e("s_lshr_b32 s%d, s%d, 3" % (S_T, S_R))
        e("s_mul_i32 s%d, s%d, %d" % (S_SP4, S_HS, WPH // 8))
        e("s_add_u32 s%d, s%d, s%d" % (S_SP4, S_SP4, S_T))
        e("s_mul_i32 s%d, s%d, %d" % (S_XB, S_SP4, SLOTS * 1024))
        e("s_add_u32 s%d, s%d, %d" % (S_XB, S_XB, WS_X))
        e("s_lshl_b32 s%d, s%d, 8" % (S_CO, S_SP4))
        e("s_add_u32 s%d, s%d, %d" % (S_CO, S_CO, WS_C))
        e("s_lshl_b32 s%d, s%d, 2" % (S_SP4, S_SP4))
        e("s_mul_i32 s%d, s%d, %d" % (S_TB, S_T, SLOTS * TT))
        e("s_add_u32 s%d, s%d, %d" % (S_T, S_HS, (NPH - 1) * HC))
        e("s_lshl_b32 s%d, s%d, 15" % (S_T, S_T))
        e("s_add_u32 s%d, s%d, s%d" % (S_TB, S_TB, S_T))
    e("v_lshlrev_b32 v%d, 2, v0" % V_T0)
    e("v_mov_b32 v%d, 0" % V_T1)
    e("v_cmp_gt_u32 vcc, %d, v0" % NPH)
    e("s_and_saveexec_b64 s[%d:%d], vcc" % (S_T + 2, S_T + 3))
    e("ds_write_b32 v%d, v%d offset:%d" % (V_T0, V_T1, LDS_CNT))
    e("s_mov_b64 exec, s[%d:%d]" % (S_T + 2, S_T + 3))
    e("v_mov_b32 v%d, 0xff7fffff" % V_M)
    e("s_waitcnt lgkmcnt(0)")
    e("s_barrier")
    compute_w()
    steady = ["g%d" % k for k in range(DG) for _ in range(GS)]
    if not P["pfirst"]:
        steady = steady[GS:]
    e.vm = list(steady)

    e.lines.append(".p2align 6")
    e.label("L_kloop")
    body("K", False)
    assert e.vm == steady, (e.vm, steady)
    e("s_sub_u32 s%d, s%d, 1" % (S_N, S_N))
    e("s_cmp_lg_u32 s%d, 0" % S_N)
    e("s_cbranch_scc1 L_kloop")
    body("K", True)
    if P["stamp"] == 1:
        e("s_memrealtime s[%d:%d]" % (S_ST + 6, S_ST + 7))
    e("s_waitcnt lgkmcnt(0)")
    if DYN:
        NPB = SPP * TT // 64
        assert NPB in (1, 2)
        e("v_and_b32 v%d, 63, v0" % V_T1)
        e("s_mul_i32 s%d, s%d, %d" % (S_T, S_WAVE, SWB))
        e("s_add_u32 s%d, s%d, %d" % (S_T, S_T, LDS_S + (NTILE - SPP) * TT * 4))
        e("v_lshlrev_b32 v%d, %d, v%d" % (V_T0, 1 + NPB, V_T1))
        e("v_add_u32 v%d, s%d, v%d" % (V_PB, S_T, V_T0))
        if NPB == 2:
            e("ds_read_b64 v[%d:%d], v%d" % (V_MG + 4, V_MG + 5, V_PB))
        else:
            e("ds_read_b32 v%d, v%d" % (V_MG + 4, V_PB))
        e("s_add_u32 s%d, s%d, %d" % (S_T, S_MXA, (NPH - 1) * NROWS * 4))
        e("v_mov_b32 v%d, s%d" % (V_PB, S_T))
        e("ds_read_b128 v[%d:%d], v%d" % (V_MG, V_MG + 3, V_PB))
        e("s_and_b32 s%d, s%d, 7" % (S_T, S_R))
        e("s_mul_i32 s%d, s%d, %d" % (S_T, S_T, NW))
        e("s_add_u32 s%d, s%d, s%d" % (S_T, S_T, S_WAVE))
        e("s_lshl_b32 s%d, s%d, 10" % (S_OWN, S_T))
        e("s_add_u32 s%d, s%d, s%d" % (S_OWN, S_OWN, S_XB))
        e("v_mov_b32 v%d, 0" % V_POLL)
        e("v_lshlrev_b32 v%d, 2, v%d" % (V_T1, V_T1))
        e("s_waitcnt lgkmcnt(0)")
        e("v_max3_f32 v%d, v%d, v%d, v%d" % (V_MG, V_MG, V_MG + 1, V_MG + 2))
        e("v_max_f32 v%d, v%d, v%d" % (V_MG, V_MG, V_MG + 3))
        if NPB == 2:
            e("buffer_store_dwordx2 v[%d:%d], v%d, s[%d:%d], s%d offen sc1" % (V_MG + 4, V_MG + 5, V_T0, S_WS, S_WS + 3, S_OWN))
        else:
            e("buffer_store_dword v%d, v%d, s[%d:%d], s%d offen sc1" % (V_MG + 4, V_T0, S_WS, S_WS + 3, S_OWN))
        e("buffer_store_dword v%d, v%d, s[%d:%d], s%d offen offset:512 sc1" % (V_MG, V_T1, S_WS, S_WS + 3, S_OWN))
        e("buffer_store_dword v%d, v%d, s[%d:%d], s%d offen offset:768 sc1" % (V_POLL, V_T1, S_WS, S_WS + 3, S_OWN))
        e("s_cmp_lg_u32 s%d, 0" % S_T)
        e("s_cbranch_scc1 L_noinit")
        e("v_mov_b32 v%d, %d" % (V_MG + 6, SLOTS))
        e("buffer_store_dword v%d, v%d, s[%d:%d], s%d offen sc1" % (V_MG + 6, V_T1, S_WS, S_WS + 3, S_CO))
        e.label("L_noinit")
    read_logits()
    start_phase_v()
    prep_v()
    assert e.vm == steady, (e.vm, steady)
    e.lines.append(".p2align 6")
    e.label("L_vloop")
    body("V", False)
    assert e.vm == steady, (e.vm, steady)
    e("s_branch L_vloop")
    if DYN:
        e.vm = steady + ["cl"]
        e.lines.append(".p2align 6")
        e.label("L_dloop")
        body("V", False, True)
        assert e.vm == steady + ["cl"], (e.vm, steady)
        e("s_branch L_dloop")

    MLB = V_MG
    OB = V_MG + 2 * NROWS
    V_MX = OB + 3 * NW
    V_CN = V_MX + 4
    e.label("L_dump")
    if DYN:
        e("s_waitcnt vmcnt(%d)" % (DG * GS + 2))
    e("v_mov_b32 v%d, s%d" % (V_T0, S_MXA))
    e("ds_read_b128 v[%d:%d], v%d" % (V_MX, V_MX + 3, V_T0))
    e("s_add_u32 s%d, s%d, %d" % (S_MXA, S_MXA, NROWS * 4))
    for kk in (8, 4, 2, 1):
        e("v_add_f32_dpp v%d, v%d, v%d row_ror:%d row_mask:0xf bank_mask:0xf" % (V_L, V_L, V_L, kk))
        e("v_add_f32_dpp v%d, v%d, v%d row_ror:%d row_mask:0xf bank_mask:0xf" % (V_ZB, V_ZB, V_ZB, kk))
    if NQ < 16:
        e("v_mul_f32 v%d, %s, v%d" % (V_L, f32hex(NQ / 16.0), V_L))
        e("v_mul_f32 v%d, %s, v%d" % (V_ZB, f32hex(NQ / 16.0), V_ZB))
    e("v_sub_f32 v%d, 0, v%d" % (V_M, V_M))
    for i in range(12):
        e("v_sub_f32 v%d, v%d, v%d" % (V_ACC + i, V_ACC + i, V_ZB))
    e("s_mul_i32 s%d, s%d, %d" % (S_T, S_PH, PHB))
    e("s_add_u32 s%d, s%d, %d" % (S_T, S_T, LDS_R0))
    for c in range(3):
        a = V_ACC + 4 * c
        e("v_permlane32_swap_b32 v%d, v%d" % (a, a + 2))
        e("v_permlane32_swap_b32 v%d, v%d" % (a + 1, a + 3))
    e("v_lshrrev_b32 v%d, 4, v0" % V_T1)
    e("v_lshlrev_b32 v%d, 3, v%d" % (V_T1, V_T1))
    for c in range(3):
        a = V_ACC + 4 * c
        e("v_add_f32 v%d, v%d, v%d" % (a, a, a + 2))
        e("v_add_f32 v%d, v%d, v%d" % (a + 1, a + 1, a + 3))
    e("v_add_u32 v%d, s%d, v%d" % (V_T1, S_T, V_T1))
    e("ds_write_b64 v%d, v[%d:%d] offset:%d" % (V_T1, V_M, V_L, NW * ROWB))
    for c in range(3):
        a = V_ACC + 4 * c
        e("v_permlane16_swap_b32 v%d, v%d" % (a, a + 1))
    e("v_add_u32 v%d, s%d, v%d" % (V_T0, S_LDSB, V_DO))
    e("s_lshl_b32 s%d, s%d, 2" % (S_T + 1, S_PH))
    for c in range(3):
        a = V_ACC + 4 * c
        e("v_add_f32 v%d, v%d, v%d" % (a, a, a + 1))
        e("ds_write_b32 v%d, v%d offset:%d" % (V_T0, a, c * 256))
    e("v_mov_b32 v%d, s%d" % (V_T0, S_T + 1))
    e("v_mov_b32 v%d, 1" % V_T1)
    e("s_mov_b64 exec, 1")
    e("ds_add_rtn_u32 v%d, v%d, v%d offset:%d" % (V_CN, V_T0, V_T1, LDS_CNT))
    e("s_mov_b64 exec, -1")
    e("s_sub_u32 s%d, s%d, 1" % (S_T + 1, S_PH))
    e("s_cbranch_scc1 L_noduty")
    e("s_and_b32 s%d, s%d, %d" % (S_T + 2, S_T + 1, NW - 1))
    e("s_cmp_lg_u32 s%d, s%d" % (S_T + 2, S_WAVE))
    e("s_cbranch_scc1 L_noduty")
    e("s_sub_u32 s%d, s%d, %d" % (S_MB, S_T, PHB))
    e("s_sub_u32 s%d, s%d, %d" % (S_MREC, S_REC, HC * WPH * PART_STRIDE))
    e("s_lshl_b32 s%d, s%d, 2" % (S_MC, S_T + 1))
    e("s_mov_b32 s%d, 0" % S_RET)
    e.label("L_merge")
    e("v_mov_b32 v%d, s%d" % (V_T0, S_MC))
    e("ds_read_b32 v%d, v%d offset:%d" % (V_PB, V_T0, LDS_CNT))
    e("v_mov_b32 v%d, s%d" % (V_T0, S_MB))
    for r in range(0, NROWS, 2):
        e("ds_read_b128 v[%d:%d], v%d offset:%d" % (MLB + 2 * r, MLB + 2 * r + 3, V_T0, NW * ROWB + r * 8))
    e("v_and_b32 v%d, 63, v0" % V_T1)
    e("v_lshlrev_b32 v%d, 2, v%d" % (V_T1, V_T1))
    e("v_add_u32 v%d, s%d, v%d" % (V_T0, S_MB, V_T1))
    e("s_waitcnt lgkmcnt(4)")
    for kk in range(3):
        for w in range(NW):
            e("ds_read_b32 v%d, v%d offset:%d" % (OB + kk * NW + w, V_T0, w * ROWB + kk * 256))
            if (kk * NW + w) % 8 == 7:
                e("s_waitcnt lgkmcnt(4)")
    e("v_readfirstlane_b32 s%d, v%d" % (S_T + 2, V_PB))
    e("s_nop 3")
    e("s_cmp_lg_u32 s%d, %d" % (S_T + 2, NW))
    e("s_waitcnt lgkmcnt(0)")
    e("s_cbranch_scc1 L_merge")
    for w in range(NW):
        b = MLB + 8 * w
        e("v_add_f32 v%d, v%d, v%d" % (b + 1, b + 1, b + 3))
        e("v_add_f32 v%d, v%d, v%d" % (b + 5, b + 5, b + 7))
        e("v_add_f32 v%d, v%d, v%d" % (b + 1, b + 1, b + 5))
    e("v_mov_b32 v%d, v%d" % (V_M, MLB))
    for w in range(1, NW):
        e("v_max_f32 v%d, v%d, v%d" % (V_M, V_M, MLB + 8 * w))
    for w in range(NW):
        e("v_sub_f32 v%d, v%d, v%d" % (MLB + 8 * w, MLB + 8 * w, V_M))
    for w in range(NW):
        e("v_exp_f32 v%d, v%d" % (MLB + 8 * w, MLB + 8 * w))
    e("v_mul_f32 v%d, v%d, v%d" % (V_L, MLB, MLB + 1))
    for w in range(1, NW):
        e("v_fmac_f32 v%d, v%d, v%d" % (V_L, MLB + 8 * w, MLB + 8 * w + 1))
    for kk in range(3):
        e("v_mul_f32 v%d, v%d, v%d" % (V_ACC + kk, MLB, OB + kk * NW))
        for w in range(1, NW):
            e("v_fmac_f32 v%d, v%d, v%d" % (V_ACC + kk, MLB + 8 * w, OB + kk * NW + w))
        e("buffer_store_dword v%d, v%d, s[%d:%d], s%d offen offset:%d%s" % (V_ACC + kk, V_T1, S_WS, S_WS + 3, S_MREC, kk * 256, spol))
    e("s_mov_b64 exec, 1")
    e("buffer_store_dwordx2 v[%d:%d], v%d, s[%d:%d], s%d offen offset:%d%s" % (V_M, V_L, V_T1, S_WS, S_WS + 3, S_MREC, DH * 4, spol))
    e("s_mov_b64 exec, -1")
    e("s_cmp_lg_u32 s%d, 0" % S_RET)
    e("s_cbranch_scc1 L_done")
    if DYN:
        e("s_cmp_lg_u32 s%d, 1" % S_PH)
        e("s_cbranch_scc1 L_noduty")
        e("v_mov_b32 v%d, 1" % V_SIG)
        e("s_mov_b64 exec, 1")
        e("buffer_atomic_add v%d, off, s[%d:%d], s%d sc0" % (V_SIG, S_DBG, S_DBG + 3, S_SP4))
        e("s_mov_b64 exec, -1")
    e.label("L_noduty")
    if DYN:
        e("s_cmp_lg_u32 s%d, 2" % S_PH)
        e("s_cbranch_scc1 L_nogo")
        e("v_readfirstlane_b32 s%d, v%d" % (S_T, V_SIG))
        e("v_and_b32 v%d, %d, v0" % (V_T1, SLOTS - 1))
        e("v_lshlrev_b32 v%d, 10, v%d" % (V_T1, V_T1))
        e("v_mov_b32 v%d, 1" % V_T0)
        e("s_cmp_lg_u32 s%d, 7" % S_T)
        e("s_cbranch_scc1 L_nogo")
        e("buffer_store_dword v%d, v%d, s[%d:%d], s%d offen offset:768 sc1" % (V_T0, V_T1, S_WS, S_WS + 3, S_XB))
        e.label("L_nogo")
    e("s_waitcnt lgkmcnt(0)")
    e("s_add_u32 s%d, s%d, 1" % (S_PH, S_PH))
    e("s_cmp_ge_u32 s%d, %d" % (S_PH, NPH))
    e("s_cbranch_scc1 L_final")
    e("s_add_u32 s%d, s%d, %d" % (S_LDSB, S_LDSB, PHB))
    e("s_add_u32 s%d, s%d, %d" % (S_REC, S_REC, HC * WPH * PART_STRIDE))
    e("v_max3_f32 v%d, v%d, v%d, v%d" % (V_T0, V_MX, V_MX + 1, V_MX + 2))
    e("v_mov_b32 v%d, 0" % V_L)
    e("v_mov_b32 v%d, 0" % V_ZB)
    e("v_max_f32 v%d, v%d, v%d" % (V_T0, V_T0, V_MX + 3))
    for i in range(12):
        e("v_mov_b32 v%d, 0" % (V_ACC + i))
    e("v_mul_f32 v%d, s%d, v%d" % (V_M, S_NC, V_T0))
    if DYN:
        e("s_cmp_eq_u32 s%d, %d" % (S_PH, NPH - 1))
        e("s_cbranch_scc1 L_dentry")
        e("s_cmp_eq_u32 s%d, %d" % (S_PH, NPH - 2))
        e("s_cbranch_scc1 L_check")
        if P["poll1"]:
            e("s_cmp_lg_u32 s%d, %d" % (S_PH, NPH - 3))
            e("s_cbranch_scc1 L_cont")
        e("buffer_load_dword v%d, off, s[%d:%d], s%d offset:768 sc1" % (V_POLL, S_WS, S_WS + 3, S_OWN))
        e("s_branch L_cont")
        e.label("L_check")
        e("s_mov_b32 s%d, 0x100000" % S_SPIN)
        e.label("L_spin")
        e("v_readfirstlane_b32 s%d, v%d" % (S_T, V_POLL))
        e("s_nop 3")
        e("s_cmp_eq_u32 s%d, 1" % S_T)
        e("s_cbranch_scc1 L_ready")
        e("buffer_load_dword v%d, off, s[%d:%d], s%d offset:768 sc1" % (V_POLL, S_WS, S_WS + 3, S_OWN))
        e("s_waitcnt vmcnt(0)")
        e("s_sub_u32 s%d, s%d, 1" % (S_SPIN, S_SPIN))
        e("s_cmp_lg_u32 s%d, 0" % S_SPIN)
        e("s_cbranch_scc1 L_spin")
        e.label("L_ready")
        e("v_and_b32 v%d, %d, v0" % (V_T1, SLOTS - 1))
        e("v_lshlrev_b32 v%d, 10, v%d" % (V_T1, V_T1))
        e("buffer_load_dword v%d, v%d, s[%d:%d], s%d offen offset:512 sc1" % (V_GM, V_T1, S_WS, S_WS + 3, S_XB))
        e("s_branch L_cont")
        e.label("L_dentry")
        if P["stamp"] == 2:
            e("s_memrealtime s[%d:%d]" % (S_ST + 6, S_ST + 7))
            e("s_waitcnt lgkmcnt(0)")
        issue_claim()
        for kk in (8, 4, 2, 1):
            e("v_max_f32_dpp v%d, v%d, v%d row_ror:%d row_mask:0xf bank_mask:0xf" % (V_GM, V_GM, V_GM, kk))
        e("v_mov_b32 v%d, v%d" % (V_T0, V_GM))
        e("v_permlane32_swap_b32 v%d, v%d" % (V_T0, V_GM))
        e("v_max_f32 v%d, v%d, v%d" % (V_GM, V_GM, V_T0))
        e("v_mov_b32 v%d, v%d" % (V_T0, V_GM))
        e("v_permlane16_swap_b32 v%d, v%d" % (V_T0, V_GM))
        e("v_max_f32 v%d, v%d, v%d" % (V_GM, V_GM, V_T0))
        e("v_mul_f32 v%d, s%d, v%d" % (V_M, S_NC, V_GM))
        e("s_branch L_dcont")
    else:
        e("s_branch L_cont")
    e.label("L_final")
    e("v_readfirstlane_b32 s%d, v%d" % (S_T + 2, V_CN))
    e("s_mov_b32 s%d, %d" % (S_MB, LDS_R0 + (NPH - 1) * PHB))
    e("s_mov_b32 s%d, s%d" % (S_MREC, S_REC))
    e("s_mov_b32 s%d, %d" % (S_MC, (NPH - 1) * 4))
    e("s_mov_b32 s%d, 1" % S_RET)
    e("s_cmp_eq_u32 s%d, %d" % (S_T + 2, NW - 1))
    e("s_cbranch_scc1 L_merge")
    e.label("L_done")

    if P["stamp"]:
        e("s_memrealtime s[%d:%d]" % (S_ST + 2, S_ST + 3))
        e("s_getreg_b32 s%d, hwreg(HW_REG_XCC_ID)" % (S_ST + 4))
        e("s_waitcnt lgkmcnt(0)")
        e("v_mov_b32 v%d, s%d" % (V_MG + 0, S_ST))
        e("v_mov_b32 v%d, s%d" % (V_MG + 1, S_ST + 2))
        e("v_mov_b32 v%d, s%d" % (V_MG + 2, S_ST + 4))
        e("v_mov_b32 v%d, s%d" % (V_MG + 3, S_ST + 6))
        e("s_mul_i32 s%d, s%d, %d" % (S_T, S_WG, NW))
        e("s_add_u32 s%d, s%d, s%d" % (S_T, S_T, S_WAVE))
        e("s_lshl_b32 s%d, s%d, 4" % (S_T, S_T))
        e("s_add_u32 s%d, s%d, 0x4000000" % (S_T, S_T))
        e("s_mov_b32 s%d, 0x8000000" % (S_WS + 2))
        e("v_mov_b32 v%d, 0" % V_T0)
        e("buffer_store_dwordx4 v[%d:%d], v%d, s[%d:%d], s%d offen" % (V_MG, V_MG + 3, V_T0, S_WS, S_WS + 3, S_T))
    if P["dbgt"]:
        e("s_memrealtime s[%d:%d]" % (S_ST + 2, S_ST + 3))
        e("s_and_b32 s%d, s%d, 0xf8" % (S_T, S_WG))
        e("s_or_b32 s%d, s%d, s%d" % (S_T, S_T, S_WAVE))
        e("s_cmp_lg_u32 s%d, 0" % S_T)
        e("s_cbranch_scc1 L_exit1")
        srd(S_DBG, 80, 256)
        e("s_waitcnt lgkmcnt(0)")
        e("s_sub_u32 s%d, s%d, s%d" % (S_T, S_ST + 2, S_ST))
        e("v_mov_b32 v%d, s%d" % (V_MG + 0, S_T))
        e("v_mov_b32 v%d, s%d" % (V_MG + 1, S_ST + 2))
        e("s_lshl_b32 s%d, s%d, 3" % (S_T, S_WG))
        e("s_mov_b64 exec, 1")
        e("buffer_store_dwordx2 v[%d:%d], off, s[%d:%d], s%d" % (V_MG, V_MG + 1, S_DBG, S_DBG + 3, S_T))
    e.lines.append("L_exit1:")
    e("s_endpgm")

    RPW = min(P["rpw"], WPH)
    NW2 = WPH // RPW
    assert NW2 <= 16
    k2 = NAME + "_kernel"
    e.lines.append(".globl %s" % k2)
    e.lines.append(".p2align 8")
    e.lines.append(".type %s,@function" % k2)
    e.lines.append(k2 + ":")
    e.wr = {}; e.tr = {}
    e("s_cmp_ge_u32 s2, %d" % (3 * H))
    e("s_cbranch_scc1 L_exit2")
    e("s_load_dwordx2 s[4:5], s[0:1], 56")
    e("s_load_dwordx2 s[6:7], s[0:1], 72")
    e("v_lshrrev_b32 v3, 6, v0")
    e("v_and_b32 v1, 63, v0")
    e("v_readfirstlane_b32 s18, v3")
    e("v_lshlrev_b32 v1, 2, v1")
    e("v_mov_b32 v2, 0")
    e("s_and_b32 s19, s2, %d" % (H - 1))
    e("s_lshr_b32 s20, s2, 5")
    e("s_mul_i32 s16, s19, %d" % WPH)
    e("s_mul_i32 s17, s18, %d" % RPW)
    e("s_add_u32 s16, s16, s17")
    e("s_mul_i32 s16, s16, %d" % PART_STRIDE)
    e("s_lshl_b32 s21, s20, 8")
    e("v_add_u32 v4, s21, v1")
    e("s_mov_b32 s10, %d" % (H * WPH * PART_STRIDE))
    e("s_mov_b32 s11, 0x00020000")
    e("s_mov_b32 s14, %d" % (H * DH * 2))
    e("s_mov_b32 s15, 0x00020000")
    e("s_waitcnt lgkmcnt(0)")
    e("s_mov_b32 s8, s6")
    e("s_and_b32 s9, s7, 0xffff")
    e("s_mov_b32 s12, s4")
    e("s_and_b32 s13, s5, 0xffff")
    MLB = 8
    OB = MLB + 2 * RPW
    for s in range(RPW):
        if s % 4 == 0:
            e("s_add_u32 s17, s16, %d" % (s * PART_STRIDE))
        e("buffer_load_dwordx2 v[%d:%d], v2, s[8:11], s17 offen offset:%d" %
          (MLB + 2 * s, MLB + 2 * s + 1, (s % 4) * PART_STRIDE + DH * 4))
        e("buffer_load_dword v%d, v4, s[8:11], s17 offen offset:%d" % (OB + s, (s % 4) * PART_STRIDE))
    e("s_waitcnt vmcnt(0)")

    def combine(n):
        e("v_mov_b32 v4, v%d" % MLB)
        for s in range(1, n):
            e("v_max_f32 v4, v4, v%d" % (MLB + 2 * s))
        for s in range(n):
            e("v_sub_f32 v%d, v%d, v4" % (MLB + 2 * s, MLB + 2 * s))
        for s in range(n):
            e("v_exp_f32 v%d, v%d" % (MLB + 2 * s, MLB + 2 * s))
        e("v_mul_f32 v5, v%d, v%d" % (MLB, MLB + 1))
        e("v_mul_f32 v6, v%d, v%d" % (MLB, OB))
        for s in range(1, n):
            e("v_fmac_f32 v5, v%d, v%d" % (MLB + 2 * s, MLB + 2 * s + 1))
            e("v_fmac_f32 v6, v%d, v%d" % (MLB + 2 * s, OB + s))

    combine(RPW)
    LDS2 = 0
    if NW2 > 1:
        assert NW2 <= RPW
        LDS2 = NW2 * 256 + NW2 * 8
        e("v_lshlrev_b32 v7, 2, v0")
        e("ds_write_b32 v7, v6")
        e("v_lshlrev_b32 v7, 3, v3")
        e("ds_write_b64 v7, v[4:5] offset:%d" % (NW2 * 256))
        e("s_waitcnt lgkmcnt(0)")
        e("s_barrier")
        e("s_cmp_lg_u32 s18, 0")
        e("s_cbranch_scc1 L_exit2")
        for w in range(NW2):
            e("ds_read_b64 v[%d:%d], v2 offset:%d" % (MLB + 2 * w, MLB + 2 * w + 1, NW2 * 256 + w * 8))
            e("ds_read_b32 v%d, v1 offset:%d" % (OB + w, w * 256))
            if w % 4 == 3:
                e("s_waitcnt lgkmcnt(4)")
        e("s_waitcnt lgkmcnt(0)")
        combine(NW2)
    e("v_rcp_f32 v5, v5")
    e("v_mul_f32 v6, v6, v5")
    e("v_cvt_pk_bf16_f32 v6, v6, v6")
    e("s_mul_i32 s16, s19, %d" % (DH * 2))
    e("s_lshl_b32 s21, s20, 7")
    e("s_add_u32 s16, s16, s21")
    e("v_lshrrev_b32 v1, 1, v1")
    e("buffer_store_short v6, v1, s[12:15], s16 offen")
    e.lines.append("L_exit2:")
    e("s_endpgm")
    NV2 = OB + RPW

    def kd(name, nv, ns):
        acc = (nv + 3) // 4 * 4
        return """.amdhsa_kernel %s
  .amdhsa_next_free_vgpr %d
  .amdhsa_next_free_sgpr %d
  .amdhsa_accum_offset %d
  .amdhsa_group_segment_fixed_size 0
  .amdhsa_kernarg_size 80
  .amdhsa_user_sgpr_count 2
  .amdhsa_user_sgpr_kernarg_segment_ptr 1
  .amdhsa_system_sgpr_workgroup_id_x 1
.end_amdhsa_kernel
""" % (name, nv, ns, acc)

    out = HEADER.format(params=" ".join("%s=%s" % kv for kv in sorted(P.items())))
    out += "; @launch kernel=%s grid=(%d,1,1) block=(%d,1,1) lds=%d\n" % (k1, NWG, NW * 64, LDS1)
    out += "; @launch kernel=%s grid=(%d,1,1) block=(%d,1,1) lds=%d\n" % (k2, 3 * H, NW2 * 64, LDS2)
    out += '.amdgcn_target "amdgcn-amd-amdhsa--gfx950"\n.text\n'
    out += e.text()
    out += '.section .rodata,"a"\n.p2align 6\n'
    out += kd(k1, NVGPR, 101)
    out += ".p2align 6\n"
    out += kd(k2, NV2, 24)
    return out


DEFAULTS = dict(nw=4, nwg=256, hc=4, tt=16, gs=6, dg=1, nt="nt", ldspad=0, stamp=0, rpw=16, pfirst=1, sp="", dyn=1, poll1=1, xkp=0, dbgt=0)


def main():
    P = dict(DEFAULTS)
    outp = None
    args = sys.argv[1:]
    i = 0
    while i < len(args):
        a = args[i]
        if a == "-o":
            outp = args[i + 1]; i += 2; continue
        k, v = a.split("=", 1)
        assert k in P, k
        P[k] = type(P[k])(v.replace("+", " ")) if isinstance(P[k], str) else int(v)
        i += 1
    s = gen(P)
    if outp:
        open(outp, "w").write(s)
    else:
        sys.stdout.write(s)


if __name__ == "__main__":
    main()
```

```python
import re
import sys
import math
import struct

NAME = "standalone__kv_cache_quant_int4_int2_kv_with_per_channel_or_per_token_scales__decode"

H = 32
SKV = 32768
DH = 192
G = 64
NGRP = SKV // G
ROWB = DH * 4
HEADB = SKV * ROWB
GRPB = G * ROWB
QUADB = 4 * ROWB
PART_STRIDE = 1024

HEADER = """; Kernarg layout for this problem (80 bytes, ptrs only, base s[0:1]):
;   offset  40: d_in[5] v_scales  shape=(1, 32, 32768, 1) dtype=bfloat16 strides=(2097152, 65536, 2, 2) contiguous=True
;   offset  48: d_in[6] v_zeros  shape=(1, 32, 32768, 1) dtype=bfloat16 strides=(2097152, 65536, 2, 2) contiguous=True
; Generated by gen.py (hand-written generator).  Params: {params}
"""


def f32hex(x):
    return "0x%08x" % struct.unpack("<I", struct.pack("<f", x))[0]


_VREG = re.compile(r"\bv(\d+)\b")
_VRANGE = re.compile(r"\bv\[(\d+):(\d+)\]")
_TRANS = ("v_exp_f32", "v_rcp_f32", "v_log_f32", "v_rsq_f32", "v_sqrt_f32")


def vregs(text):
    out = [int(x) for x in _VREG.findall(text)]
    for a, b in _VRANGE.findall(text):
        out += list(range(int(a), int(b) + 1))
    return out


class Emit:
    def __init__(self):
        self.lines = []
        self.vm = []
        self.n = 0
        self.wr = {}
        self.tr = {}
        self.pend = []

    def _raw(self, s):
        self.lines.append("    " + s)
        m = re.match(r"s_nop (\d+)", s)
        self.n += (int(m.group(1)) + 1) if m else 1

    def need(self, s):
        op = s.split()[0]
        if not op.startswith("v_"):
            return 0
        ops = s[len(op):]
        regs = vregs(ops)
        need = 0
        first = ops.split(",")[0]
        srcs = vregs(ops[len(first):])
        if "_dpp" in op or op.startswith("v_permlane"):
            for r in regs:
                if r in self.wr:
                    need = max(need, 2 - (self.n - self.wr[r] - 1))
        if op.startswith(("v_readfirstlane", "v_readlane")):
            for r in srcs:
                if r in self.wr:
                    need = max(need, 1 - (self.n - self.wr[r] - 1))
        if op not in _TRANS:
            rr = regs if op.startswith("v_fmac") else srcs
            for r in rr:
                if r in self.tr:
                    need = max(need, 1 - (self.n - self.tr[r] - 1))
        return max(need, 0)

    def _emit(self, s):
        k = self.need(s)
        if k > 0:
            self._raw("s_nop %d" % (k - 1))
        op = s.split()[0]
        if op.startswith("v_") and not op.startswith(("v_cmp", "v_readfirstlane", "v_readlane")):
            first = s[len(op):].split(",")[0]
            if op.startswith("v_permlane"):
                first = s[len(op):]
            for r in vregs(first):
                self.wr[r] = self.n
                if op in _TRANS:
                    self.tr[r] = self.n
                else:
                    self.tr.pop(r, None)
        self._raw(s)

    def __call__(self, s):
        self._emit(s)
        if self.pend and self.need(self.pend[0]) == 0:
            self._emit(self.pend.pop(0))

    def defer(self, ops):
        self.pend += ops

    def flush(self):
        while self.pend:
            self._emit(self.pend.pop(0))

    def label(self, s):
        assert not self.pend
        self.lines.append(s + ":")
        self._raw("s_nop 1")

    def comment(self, s):
        self.lines.append("    ; " + s)

    def vmem(self, s, tag):
        self(s)
        self.vm.append(tag)

    def wait_tag(self, tag):
        idx = [i for i, t in enumerate(self.vm) if t == tag]
        if not idx:
            return
        last = idx[-1]
        n = len(self.vm) - 1 - last
        assert n <= 63, n
        self("s_waitcnt vmcnt(%d)" % n)
        self.vm = self.vm[last + 1:]

    def text(self):
        return "\n".join(self.lines) + "\n"


def gen(P):
    NW = P["nw"]
    NWG = P["nwg"]
    HC = P["hc"]
    TT = P["tt"]
    GS = P["gs"]
    DG = P["dg"]
    NT_ = P["nt"]
    NQ = TT // 4
    NL = NQ * 3
    assert NL % GS == 0
    NG = NL // GS
    assert 1 <= DG <= NG
    UT = 1 if (DG + 1) * GS <= NL else 2
    RS = min(d for d in range(1, UT * NL + 1) if (UT * NL) % d == 0 and d >= (DG + 1) * GS)
    NPH = H // HC
    WPH = NWG // HC
    TSTEP = WPH * NW * TT
    assert SKV % TSTEP == 0 and G % TT == 0
    SPP = SKV // TSTEP
    assert SPP % UT == 0 and SPP & (SPP - 1) == 0
    NTILE = NPH * SPP
    assert NTILE // UT >= 2
    NROWS = NW * 4
    LDS_CNT = 0
    LDS_MAX = 128
    assert NPH * 4 <= LDS_MAX
    LDS_S = LDS_MAX + NPH * NROWS * 4
    SWB = NTILE * TT * 4
    LDS_R0 = LDS_S + NW * SWB
    PHB = NW * ROWB + NROWS * 8
    LDS1 = max(LDS_R0 + NPH * PHB, P["ldspad"])
    assert LDS1 <= 160 * 1024, LDS1
    DYN = P["dyn"]
    SLOTS = 8 * NW
    NTS = SLOTS * SPP
    WS_X = 16 << 20
    WS_C = 24 << 20
    WS_SIZE = 32 << 20
    if DYN:
        assert NPH >= 6 and WPH % 8 == 0 and SPP * TT * 4 <= 512 and SPP * TT % 64 == 0 and UT == 1
        assert SLOTS <= 64 and (NWG // 8) * 4 <= 256
    pol = (" " + NT_) if NT_ else ""
    spol = (" " + P["sp"]) if P["sp"] else ""
    C = (DH ** -0.5) * math.log2(math.e)

    e = Emit()
    V_KP = 1; V_VP = 2; V_SA = 3
    V_M = 4; V_L = 5; V_ZB = 6; V_PB = 7; V_VS = 8; V_VZ = 9; V_T0 = 10; V_T1 = 11
    V_ACC = 12; V_W = 24; V_RAW = 36
    V_SB = 54; V_MA = 55; V_SR = 56; V_PV = 57; V_DO = 58
    V_S = 60
    V_KV = V_S + NQ
    NKV = (TT + 7) // 8
    V_RING = (V_KV + NKV + 3) // 4 * 4
    V_MG = V_RING + 4 * RS
    V_X = V_MG + 2 * NROWS + 3 * NW + 5
    V_POLL = V_X; V_GM = V_X + 1; V_CL = V_X + 2; V_LO = V_X + 3; V_SIG = V_X + 4
    NVGPR = V_X + 5
    assert NVGPR <= 256, NVGPR
    S_K = 8; S_V = 12; S_KS = 16; S_KZ = 20; S_VS = 24; S_VZ = 28; S_Q = 32; S_WS = 36
    S_HS = 40; S_R = 41; S_WAVE = 42; S_KOFF = 43; S_TOK0 = 44; S_POFF = 45; S_VPOFF = 46; S_QOFF = 47
    S_C = 48; S_NC = 49; S_T = 50
    S_WG = 54; S_TOK = 55; S_I = 56; S_LAST = 57; S_PH = 58; S_LDSB = 59; S_REC = 60; S_N = 61; S_MXA = 62
    S_MB = 4; S_MREC = 5; S_MC = 6; S_RET = 7
    S_ST = 84
    S_DBG = 92; S_SP4 = 96; S_XB = 97; S_TB = 98; S_CO = 99; S_LOFF = 63; S_SPIN = 3; S_OWN = 100

    k1 = "part_kernel"
    e.lines.append(".globl %s" % k1)
    e.lines.append(".p2align 8")
    e.lines.append(".type %s,@function" % k1)
    e.lines.append(k1 + ":")
    e("s_cmp_ge_u32 s2, %d" % NWG)
    e("s_cbranch_scc1 L_exit1")
    e("s_load_dwordx16 s[64:79], s[0:1], 0")
    e("s_load_dwordx4 s[80:83], s[0:1], 64")
    e("s_mov_b32 s%d, s2" % S_WG)
    if P["stamp"] or P["dbgt"]:
        e("s_memrealtime s[%d:%d]" % (S_ST, S_ST + 1))
    e("v_lshrrev_b32 v%d, 6, v0" % V_T0)
    e("v_and_b32 v%d, 63, v0" % V_T1)
    e("v_readfirstlane_b32 s%d, v%d" % (S_WAVE, V_T0))
    e("v_lshrrev_b32 v%d, 4, v%d" % (V_T0, V_T1))
    e("v_and_b32 v%d, 15, v%d" % (V_T1, V_T1))
    e("v_mul_u32_u24 v%d, %d, v%d" % (V_KV, ROWB, V_T0))
    e("v_lshl_add_u32 v%d, v%d, 4, v%d" % (V_KV, V_T1, V_KV))
    for k in range(1, NKV):
        e("v_add_u32 v%d, %d, v%d" % (V_KV + k, k * 2 * QUADB, V_KV))
    e("v_lshlrev_b32 v%d, 3, v%d" % (V_KP, V_T1))
    e("v_lshlrev_b32 v%d, 2, v%d" % (V_DO, V_T0))
    e("v_lshl_add_u32 v%d, v%d, 4, v%d" % (V_DO, V_T1, V_DO))
    e("v_and_b32 v%d, %d, v%d" % (V_T1, NQ - 1, V_T1))
    e("v_lshl_add_u32 v%d, v%d, 2, v%d" % (V_VP, V_T1, V_T0))
    e("v_lshlrev_b32 v%d, 1, v%d" % (V_VP, V_VP))
    e("s_lshr_b32 s%d, s2, 3" % S_HS)
    e("s_and_b32 s%d, s%d, %d" % (S_HS, S_HS, HC - 1))
    e("s_lshr_b32 s%d, s2, %d" % (S_R, 3 + int(math.log2(HC))))
    e("s_lshl_b32 s%d, s%d, 3" % (S_R, S_R))
    e("s_and_b32 s%d, s2, 7" % S_T)
    e("s_or_b32 s%d, s%d, s%d" % (S_R, S_R, S_T))
    e("s_mul_i32 s%d, s%d, %d" % (S_TOK, S_R, NW))
    e("s_add_u32 s%d, s%d, s%d" % (S_TOK, S_TOK, S_WAVE))
    e("s_mul_i32 s%d, s%d, %d" % (S_TOK, S_TOK, TT))
    e("s_lshl_b32 s%d, s%d, 15" % (S_T, S_HS))
    e("s_add_u32 s%d, s%d, s%d" % (S_TOK, S_TOK, S_T))

    def offsets_from_tok(kind):
        e("s_mul_i32 s%d, s%d, %d" % (S_KOFF, S_TOK, ROWB))
        if kind == "K":
            e("s_lshr_b32 s%d, s%d, 6" % (S_POFF, S_TOK))
            e("s_mul_i32 s%d, s%d, %d" % (S_POFF, S_POFF, DH * 2))
            e("s_lshr_b32 s%d, s%d, 15" % (S_QOFF, S_TOK))
            e("s_mul_i32 s%d, s%d, %d" % (S_QOFF, S_QOFF, DH * 2))
        else:
            e("s_lshl_b32 s%d, s%d, 1" % (S_VPOFF, S_TOK))

    offsets_from_tok("K")

    def srd(dst, ptr, nbytes):
        e("s_mov_b32 s%d, s%d" % (dst, ptr))
        e("s_and_b32 s%d, s%d, 0xffff" % (dst + 1, ptr + 1))
        e("s_mov_b32 s%d, %d" % (dst + 2, nbytes))
        e("s_mov_b32 s%d, 0x00020000" % (dst + 3))

    def issue_kparams():
        for k, (sr, so) in enumerate(((S_Q, S_QOFF), (S_KS, S_POFF), (S_KZ, S_POFF))):
            if P["xkp"] & (1 << k):
                continue
            for c in range(3):
                r = V_RAW + 6 * k + 2 * c
                e.vmem("buffer_load_dwordx2 v[%d:%d], v%d, s[%d:%d], s%d offen offset:%d" %
                       (r, r + 1, V_KP, sr, sr + 3, so, c * 128), "kp")

    def issue_vparams(dyn=False):
        if dyn:
            e.vmem("buffer_load_dword v%d, v%d, s[%d:%d], s%d offen sc1" % (V_SR, V_LO, S_WS, S_WS + 3, S_LOFF), "vp")
        e.vmem("buffer_load_ushort v%d, v%d, s[%d:%d], s%d offen" % (V_VS, V_VP, S_VS, S_VS + 3, S_VPOFF), "vp")
        e.vmem("buffer_load_ushort v%d, v%d, s[%d:%d], s%d offen" % (V_VZ, V_VP, S_VZ, S_VZ + 3, S_VPOFF), "vp")

    def read_logits():
        e("ds_read_b32 v%d, v%d" % (V_SR, V_SB))
        e("v_add_u32 v%d, %d, v%d" % (V_SB, TT * 4, V_SB))

    def issue_group(gidx, kind):
        gidx = gidx % (UT * NG)
        for i in range(GS):
            l = gidx * GS + i
            ll = l % NL
            q, c = ll // 3, ll % 3
            r = V_RING + (l % RS) * 4
            srdb = S_K if kind == "K" else S_V
            e.vmem("buffer_load_dwordx4 v[%d:%d], v%d, s[%d:%d], s%d offen offset:%d%s" %
                   (r, r + 3, V_KV + q // 2, srdb, srdb + 3, S_KOFF, (q & 1) * QUADB + c * 256, pol), "g%d" % gidx)

    def compute_w():
        e.wait_tag("kp")
        for p in range(6):
            rq = V_RAW + p; rs = V_RAW + 6 + p
            i0 = 2 * p
            e("v_lshlrev_b32 v%d, 16, v%d" % (V_T0, rq))
            e("v_lshlrev_b32 v%d, 16, v%d" % (V_W + i0, rs))
            e("v_and_b32 v%d, 0xffff0000, v%d" % (V_T1, rq))
            e("v_and_b32 v%d, 0xffff0000, v%d" % (V_W + i0 + 1, rs))
            e("v_mul_f32 v%d, v%d, v%d" % (V_W + i0, V_W + i0, V_T0))
            e("v_mul_f32 v%d, v%d, v%d" % (V_W + i0 + 1, V_W + i0 + 1, V_T1))
        for p in range(6):
            rz = V_RAW + 12 + p
            i0 = 2 * p
            e("v_lshlrev_b32 v%d, 16, v%d" % (V_T0, rz))
            e("v_and_b32 v%d, 0xffff0000, v%d" % (V_T1, rz))
            if p == 0:
                e("v_mul_f32 v%d, v%d, v%d" % (V_PB, V_T0, V_W + i0))
            else:
                e("v_fmac_f32 v%d, v%d, v%d" % (V_PB, V_T0, V_W + i0))
            e("v_fmac_f32 v%d, v%d, v%d" % (V_PB, V_T1, V_W + i0 + 1))
        e("v_sub_f32 v%d, 0, v%d" % (V_PB, V_PB))

    def prep_v():
        e.wait_tag("vp")
        e("s_waitcnt lgkmcnt(0)")
        e("v_fma_f32 v%d, v%d, s%d, v%d" % (V_T0, V_SR, S_C, V_M))
        e("v_lshlrev_b32 v%d, 16, v%d" % (V_VS, V_VS))
        e("v_exp_f32 v%d, v%d" % (V_T0, V_T0))
        e("v_lshlrev_b32 v%d, 16, v%d" % (V_VZ, V_VZ))
        e("v_mul_f32 v%d, v%d, v%d" % (V_PV, V_T0, V_VS))
        e("v_add_f32 v%d, v%d, v%d" % (V_L, V_L, V_T0))
        e("v_fmac_f32 v%d, v%d, v%d" % (V_ZB, V_PV, V_VZ))

    def start_phase_v():
        e("v_mov_b32 v%d, s%d" % (V_T0, S_MXA))
        e("ds_read_b128 v[%d:%d], v%d" % (V_MG, V_MG + 3, V_T0))
        e("s_add_u32 s%d, s%d, %d" % (S_MXA, S_MXA, NROWS * 4))
        e("v_mov_b32 v%d, 0" % V_L)
        e("v_mov_b32 v%d, 0" % V_ZB)
        for i in range(12):
            e("v_mov_b32 v%d, 0" % (V_ACC + i))
        e("s_waitcnt lgkmcnt(0)")
        e("v_max3_f32 v%d, v%d, v%d, v%d" % (V_T0, V_MG, V_MG + 1, V_MG + 2))
        e("v_max_f32 v%d, v%d, v%d" % (V_T0, V_T0, V_MG + 3))
        e("v_mul_f32 v%d, s%d, v%d" % (V_M, S_NC, V_T0))

    def advance(kind):
        e("s_cmp_eq_u32 s%d, %d" % (S_I, SPP - 1))
        e("s_cselect_b32 s%d, 1, 0" % S_LAST)
        if HC > 1:
            e("s_cselect_b32 s%d, %d, 0" % (S_T, (HC - 1) * SKV))
            e("s_add_u32 s%d, s%d, s%d" % (S_TOK, S_TOK, S_T))
        e("s_add_u32 s%d, s%d, %d" % (S_TOK, S_TOK, TSTEP))
        e("s_add_u32 s%d, s%d, 1" % (S_I, S_I))
        e("s_and_b32 s%d, s%d, %d" % (S_I, S_I, SPP - 1))
        offsets_from_tok(kind)

    def write_max():
        e("ds_write_b32 v%d, v%d" % (V_MA, V_M))
        e("v_add_u32 v%d, %d, v%d" % (V_MA, NROWS * 4, V_MA))
        e("v_mov_b32 v%d, 0xff7fffff" % V_M)

    uid = [0]

    def issue_claim():
        e("v_mov_b32 v%d, 1" % V_CL)
        e("s_mov_b64 exec, 1")
        e.vmem("buffer_atomic_add v%d, off, s[%d:%d], s%d sc0" % (V_CL, S_WS, S_WS + 3, S_CO), "cl")
        e("s_mov_b64 exec, -1")

    def advance_dyn():
        e.wait_tag("cl")
        e("v_readfirstlane_b32 s%d, v%d" % (S_T, V_CL))
        e("s_nop 3")
        e("s_cmp_ge_u32 s%d, %d" % (S_T, NTS))
        e("s_cselect_b32 s%d, 1, 0" % S_LAST)
        e("s_lshr_b32 s%d, s%d, %d" % (S_T + 1, S_T, int(math.log2(SLOTS))))
        e("s_and_b32 s%d, s%d, %d" % (S_T, S_T, SLOTS - 1))
        e("s_mul_i32 s%d, s%d, %d" % (S_TOK, S_T + 1, TSTEP))
        e("s_mul_i32 s%d, s%d, %d" % (S_T + 2, S_T, TT))
        e("s_add_u32 s%d, s%d, s%d" % (S_TOK, S_TOK, S_T + 2))
        e("s_add_u32 s%d, s%d, s%d" % (S_TOK, S_TOK, S_TB))
        e("s_lshl_b32 s%d, s%d, 10" % (S_LOFF, S_T))
        e("s_mul_i32 s%d, s%d, %d" % (S_T + 2, S_T + 1, TT * 4))
        e("s_add_u32 s%d, s%d, s%d" % (S_LOFF, S_LOFF, S_T + 2))
        e("s_add_u32 s%d, s%d, s%d" % (S_LOFF, S_LOFF, S_XB))
        e("s_cmp_lg_u32 s%d, 0" % S_LAST)
        e("s_cselect_b32 s%d, %d, s%d" % (S_TOK, H * SKV, S_TOK))
        e("s_cselect_b32 s%d, %d, s%d" % (S_LOFF, WS_SIZE, S_LOFF))
        offsets_from_tok("V")

    def body(kind, last, dyn=False):
        for u in range(UT):
            to_v = kind == "K" and last and u == UT - 1
            nkind = "V" if to_v else kind
            for k in range(NG):
                gidx = u * NG + k
                e.wait_tag("g%d" % gidx)
                if k + DG == NG:
                    if to_v:
                        e("s_mov_b32 s%d, s%d" % (S_TOK, S_TOK0))
                        e("s_mov_b32 s%d, 0" % S_I)
                        offsets_from_tok("V")
                    elif dyn:
                        advance_dyn()
                    else:
                        advance(kind)
                    if P["pfirst"]:
                        issue_kparams() if nkind == "K" else issue_vparams(dyn)
                issue_group(gidx + DG, nkind if k + DG >= NG else kind)
                if k + DG == NG:
                    if not P["pfirst"]:
                        issue_kparams() if nkind == "K" else issue_vparams(dyn)
                    if kind == "V" and not dyn:
                        read_logits()
                if dyn and k == NG - 1:
                    issue_claim()
                for i in range(GS):
                    l = gidx * GS + i
                    ll = l % NL
                    q, c = ll // 3, ll % 3
                    base = V_RING + (l % RS) * 4
                    for r in range(4):
                        e("v_cvt_f32_i32 v%d, v%d" % (base + r, base + r))
                    if kind == "K":
                        s = V_S + q
                        for r in range(4):
                            if c == 0 and r == 0:
                                e("v_fma_f32 v%d, v%d, v%d, v%d" % (s, base, V_W, V_PB))
                            else:
                                e("v_fmac_f32 v%d, v%d, v%d" % (s, base + r, V_W + 4 * c + r))
                        if c == 2:
                            e.defer(["v_add_f32_dpp v%d, v%d, v%d row_ror:%d row_mask:0xf bank_mask:0xf" % (s, s, s, kk)
                                     for kk in (8, 4, 2, 1)])
                    else:
                        for r in range(4):
                            e("v_fmac_f32_dpp v%d, v%d, v%d row_newbcast:%d row_mask:0xf bank_mask:0xf" %
                              (V_ACC + 4 * c + r, V_PV, base + r, q))
            e.flush()
            if kind == "K":
                for q in range(0, NQ, 2):
                    e("v_max3_f32 v%d, v%d, v%d, v%d" % (V_M, V_M, V_S + q, V_S + q + 1))
                if NQ == 2:
                    e("ds_write_b64 v%d, v[%d:%d]" % (V_SA, V_S, V_S + 1))
                else:
                    for q in range(0, NQ, 4):
                        e("ds_write_b128 v%d, v[%d:%d] offset:%d" % (V_SA, V_S + q, V_S + q + 3, q * 4))
                e("v_add_u32 v%d, %d, v%d" % (V_SA, TT * 4, V_SA))
                if to_v:
                    write_max()
                elif u == UT - 1:
                    uid[0] += 1
                    lab = "L_nomax%d" % uid[0]
                    e("s_cmp_lg_u32 s%d, 0" % S_LAST)
                    e("s_cbranch_scc0 %s" % lab)
                    write_max()
                    e.label(lab)
                if not to_v:
                    compute_w()
            else:
                if u == UT - 1:
                    e("s_cmp_lg_u32 s%d, 0" % S_LAST)
                    e("s_cbranch_scc1 L_dump")
                    e.label("L_dcont" if dyn else "L_cont")
                prep_v()

    e("s_waitcnt lgkmcnt(0)")
    srd(S_K, 66, H * HEADB)
    for k in range(DG):
        issue_group(k, "K")
    srd(S_Q, 64, H * DH * 2)
    srd(S_KS, 70, H * NGRP * DH * 2)
    srd(S_KZ, 72, H * NGRP * DH * 2)
    issue_kparams()
    if P["pfirst"]:
        pass
    srd(S_VS, 74, H * SKV * 2)
    srd(S_VZ, 76, H * SKV * 2)
    srd(S_V, 68, H * HEADB)
    srd(S_WS, 82, WS_SIZE)
    e("s_mov_b32 s%d, %s" % (S_C, f32hex(C)))
    e("s_mov_b32 s%d, %s" % (S_NC, f32hex(-C)))
    e("s_mov_b32 s%d, s%d" % (S_TOK0, S_TOK))
    e("s_mov_b32 s%d, 0" % S_I)
    e("s_mov_b32 s%d, 0" % S_PH)
    e("s_mov_b32 s%d, %d" % (S_N, NTILE // UT - 1))
    e("s_mul_i32 s%d, s%d, %d" % (S_LDSB, S_WAVE, ROWB))
    e("s_add_u32 s%d, s%d, %d" % (S_LDSB, S_LDSB, LDS_R0))
    e("s_lshl_b32 s%d, s%d, 4" % (S_MXA, S_WAVE))
    e("s_add_u32 s%d, s%d, %d" % (S_MXA, S_MXA, LDS_MAX))
    e("s_mul_i32 s%d, s%d, %d" % (S_REC, S_HS, WPH))
    e("s_add_u32 s%d, s%d, s%d" % (S_REC, S_REC, S_R))
    e("s_mul_i32 s%d, s%d, %d" % (S_REC, S_REC, PART_STRIDE))
    e("s_mul_i32 s%d, s%d, %d" % (S_T, S_WAVE, SWB))
    e("s_add_u32 s%d, s%d, %d" % (S_T, S_T, LDS_S))
    e("v_mul_u32_u24 v%d, %d, v%d" % (V_SA, NQ * 4, V_T0))
    e("v_add_u32 v%d, s%d, v%d" % (V_SA, S_T, V_SA))
    e("v_lshl_add_u32 v%d, v%d, 2, v%d" % (V_SB, V_T1, V_SA))
    e("v_lshlrev_b32 v%d, 2, v%d" % (V_MA, V_T0))
    e("v_add_u32 v%d, s%d, v%d" % (V_MA, S_MXA, V_MA))
    if DYN:
        srd(S_DBG, 80, 256)
        e("v_mul_u32_u24 v%d, %d, v%d" % (V_LO, NQ * 4, V_T0))
        e("v_lshl_add_u32 v%d, v%d, 2, v%d" % (V_LO, V_T1, V_LO))
        e("v_mov_b32 v%d, 0" % V_SIG)
        e("s_lshr_b32 s%d, s%d, 3" % (S_T, S_R))
        e("s_mul_i32 s%d, s%d, %d" % (S_SP4, S_HS, WPH // 8))
        e("s_add_u32 s%d, s%d, s%d" % (S_SP4, S_SP4, S_T))
        e("s_mul_i32 s%d, s%d, %d" % (S_XB, S_SP4, SLOTS * 1024))
        e("s_add_u32 s%d, s%d, %d" % (S_XB, S_XB, WS_X))
        e("s_lshl_b32 s%d, s%d, 8" % (S_CO, S_SP4))
        e("s_add_u32 s%d, s%d, %d" % (S_CO, S_CO, WS_C))
        e("s_lshl_b32 s%d, s%d, 2" % (S_SP4, S_SP4))
        e("s_mul_i32 s%d, s%d, %d" % (S_TB, S_T, SLOTS * TT))
        e("s_add_u32 s%d, s%d, %d" % (S_T, S_HS, (NPH - 1) * HC))
        e("s_lshl_b32 s%d, s%d, 15" % (S_T, S_T))
        e("s_add_u32 s%d, s%d, s%d" % (S_TB, S_TB, S_T))
    e("v_lshlrev_b32 v%d, 2, v0" % V_T0)
    e("v_mov_b32 v%d, 0" % V_T1)
    e("v_cmp_gt_u32 vcc, %d, v0" % NPH)
    e("s_and_saveexec_b64 s[%d:%d], vcc" % (S_T + 2, S_T + 3))
    e("ds_write_b32 v%d, v%d offset:%d" % (V_T0, V_T1, LDS_CNT))
    e("s_mov_b64 exec, s[%d:%d]" % (S_T + 2, S_T + 3))
    e("v_mov_b32 v%d, 0xff7fffff" % V_M)
    e("s_waitcnt lgkmcnt(0)")
    e("s_barrier")
    compute_w()
    steady = ["g%d" % k for k in range(DG) for _ in range(GS)]
    if not P["pfirst"]:
        steady = steady[GS:]
    e.vm = list(steady)

    e.lines.append(".p2align 6")
    e.label("L_kloop")
    body("K", False)
    assert e.vm == steady, (e.vm, steady)
    e("s_sub_u32 s%d, s%d, 1" % (S_N, S_N))
    e("s_cmp_lg_u32 s%d, 0" % S_N)
    e("s_cbranch_scc1 L_kloop")
    body("K", True)
    if P["stamp"] == 1:
        e("s_memrealtime s[%d:%d]" % (S_ST + 6, S_ST + 7))
    e("s_waitcnt lgkmcnt(0)")
    if DYN:
        NPB = SPP * TT // 64
        assert NPB in (1, 2)
        e("v_and_b32 v%d, 63, v0" % V_T1)
        e("s_mul_i32 s%d, s%d, %d" % (S_T, S_WAVE, SWB))
        e("s_add_u32 s%d, s%d, %d" % (S_T, S_T, LDS_S + (NTILE - SPP) * TT * 4))
        e("v_lshlrev_b32 v%d, %d, v%d" % (V_T0, 1 + NPB, V_T1))
        e("v_add_u32 v%d, s%d, v%d" % (V_PB, S_T, V_T0))
        if NPB == 2:
            e("ds_read_b64 v[%d:%d], v%d" % (V_MG + 4, V_MG + 5, V_PB))
        else:
            e("ds_read_b32 v%d, v%d" % (V_MG + 4, V_PB))
        e("s_add_u32 s%d, s%d, %d" % (S_T, S_MXA, (NPH - 1) * NROWS * 4))
        e("v_mov_b32 v%d, s%d" % (V_PB, S_T))
        e("ds_read_b128 v[%d:%d], v%d" % (V_MG, V_MG + 3, V_PB))
        e("s_and_b32 s%d, s%d, 7" % (S_T, S_R))
        e("s_mul_i32 s%d, s%d, %d" % (S_T, S_T, NW))
        e("s_add_u32 s%d, s%d, s%d" % (S_T, S_T, S_WAVE))
        e("s_lshl_b32 s%d, s%d, 10" % (S_OWN, S_T))
        e("s_add_u32 s%d, s%d, s%d" % (S_OWN, S_OWN, S_XB))
        e("v_mov_b32 v%d, 0" % V_POLL)
        e("v_lshlrev_b32 v%d, 2, v%d" % (V_T1, V_T1))
        e("s_waitcnt lgkmcnt(0)")
        e("v_max3_f32 v%d, v%d, v%d, v%d" % (V_MG, V_MG, V_MG + 1, V_MG + 2))
        e("v_max_f32 v%d, v%d, v%d" % (V_MG, V_MG, V_MG + 3))
        if NPB == 2:
            e("buffer_store_dwordx2 v[%d:%d], v%d, s[%d:%d], s%d offen sc1" % (V_MG + 4, V_MG + 5, V_T0, S_WS, S_WS + 3, S_OWN))
        else:
            e("buffer_store_dword v%d, v%d, s[%d:%d], s%d offen sc1" % (V_MG + 4, V_T0, S_WS, S_WS + 3, S_OWN))
        e("buffer_store_dword v%d, v%d, s[%d:%d], s%d offen offset:512 sc1" % (V_MG, V_T1, S_WS, S_WS + 3, S_OWN))
        e("buffer_store_dword v%d, v%d, s[%d:%d], s%d offen offset:768 sc1" % (V_POLL, V_T1, S_WS, S_WS + 3, S_OWN))
        e("s_cmp_lg_u32 s%d, 0" % S_T)
        e("s_cbranch_scc1 L_noinit")
        e("v_mov_b32 v%d, %d" % (V_MG + 6, SLOTS))
        e("buffer_store_dword v%d, v%d, s[%d:%d], s%d offen sc1" % (V_MG + 6, V_T1, S_WS, S_WS + 3, S_CO))
        e.label("L_noinit")
    read_logits()
    start_phase_v()
    prep_v()
    assert e.vm == steady, (e.vm, steady)
    e.lines.append(".p2align 6")
    e.label("L_vloop")
    body("V", False)
    assert e.vm == steady, (e.vm, steady)
    e("s_branch L_vloop")
    if DYN:
        e.vm = steady + ["cl"]
        e.lines.append(".p2align 6")
        e.label("L_dloop")
        body("V", False, True)
        assert e.vm == steady + ["cl"], (e.vm, steady)
        e("s_branch L_dloop")

    MLB = V_MG
    OB = V_MG + 2 * NROWS
    V_MX = OB + 3 * NW
    V_CN = V_MX + 4
    e.label("L_dump")
    if DYN:
        e("s_waitcnt vmcnt(%d)" % (DG * GS + 2))
    e("v_mov_b32 v%d, s%d" % (V_T0, S_MXA))
    e("ds_read_b128 v[%d:%d], v%d" % (V_MX, V_MX + 3, V_T0))
    e("s_add_u32 s%d, s%d, %d" % (S_MXA, S_MXA, NROWS * 4))
    for kk in (8, 4, 2, 1):
        e("v_add_f32_dpp v%d, v%d, v%d row_ror:%d row_mask:0xf bank_mask:0xf" % (V_L, V_L, V_L, kk))
        e("v_add_f32_dpp v%d, v%d, v%d row_ror:%d row_mask:0xf bank_mask:0xf" % (V_ZB, V_ZB, V_ZB, kk))
    if NQ < 16:
        e("v_mul_f32 v%d, %s, v%d" % (V_L, f32hex(NQ / 16.0), V_L))
        e("v_mul_f32 v%d, %s, v%d" % (V_ZB, f32hex(NQ / 16.0), V_ZB))
    e("v_sub_f32 v%d, 0, v%d" % (V_M, V_M))
    for i in range(12):
        e("v_sub_f32 v%d, v%d, v%d" % (V_ACC + i, V_ACC + i, V_ZB))
    e("s_mul_i32 s%d, s%d, %d" % (S_T, S_PH, PHB))
    e("s_add_u32 s%d, s%d, %d" % (S_T, S_T, LDS_R0))
    for c in range(3):
        a = V_ACC + 4 * c
        e("v_permlane32_swap_b32 v%d, v%d" % (a, a + 2))
        e("v_permlane32_swap_b32 v%d, v%d" % (a + 1, a + 3))
    e("v_lshrrev_b32 v%d, 4, v0" % V_T1)
    e("v_lshlrev_b32 v%d, 3, v%d" % (V_T1, V_T1))
    for c in range(3):
        a = V_ACC + 4 * c
        e("v_add_f32 v%d, v%d, v%d" % (a, a, a + 2))
        e("v_add_f32 v%d, v%d, v%d" % (a + 1, a + 1, a + 3))
    e("v_add_u32 v%d, s%d, v%d" % (V_T1, S_T, V_T1))
    e("ds_write_b64 v%d, v[%d:%d] offset:%d" % (V_T1, V_M, V_L, NW * ROWB))
    for c in range(3):
        a = V_ACC + 4 * c
        e("v_permlane16_swap_b32 v%d, v%d" % (a, a + 1))
    e("v_add_u32 v%d, s%d, v%d" % (V_T0, S_LDSB, V_DO))
    e("s_lshl_b32 s%d, s%d, 2" % (S_T + 1, S_PH))
    for c in range(3):
        a = V_ACC + 4 * c
        e("v_add_f32 v%d, v%d, v%d" % (a, a, a + 1))
        e("ds_write_b32 v%d, v%d offset:%d" % (V_T0, a, c * 256))
    e("v_mov_b32 v%d, s%d" % (V_T0, S_T + 1))
    e("v_mov_b32 v%d, 1" % V_T1)
    e("s_mov_b64 exec, 1")
    e("ds_add_rtn_u32 v%d, v%d, v%d offset:%d" % (V_CN, V_T0, V_T1, LDS_CNT))
    e("s_mov_b64 exec, -1")
    e("s_sub_u32 s%d, s%d, 1" % (S_T + 1, S_PH))
    e("s_cbranch_scc1 L_noduty")
    e("s_and_b32 s%d, s%d, %d" % (S_T + 2, S_T + 1, NW - 1))
    e("s_cmp_lg_u32 s%d, s%d" % (S_T + 2, S_WAVE))
    e("s_cbranch_scc1 L_noduty")
    e("s_sub_u32 s%d, s%d, %d" % (S_MB, S_T, PHB))
    e("s_sub_u32 s%d, s%d, %d" % (S_MREC, S_REC, HC * WPH * PART_STRIDE))
    e("s_lshl_b32 s%d, s%d, 2" % (S_MC, S_T + 1))
    e("s_mov_b32 s%d, 0" % S_RET)
    e.label("L_merge")
    e("v_mov_b32 v%d, s%d" % (V_T0, S_MC))
    e("ds_read_b32 v%d, v%d offset:%d" % (V_PB, V_T0, LDS_CNT))
    e("v_mov_b32 v%d, s%d" % (V_T0, S_MB))
    for r in range(0, NROWS, 2):
        e("ds_read_b128 v[%d:%d], v%d offset:%d" % (MLB + 2 * r, MLB + 2 * r + 3, V_T0, NW * ROWB + r * 8))
    e("v_and_b32 v%d, 63, v0" % V_T1)
    e("v_lshlrev_b32 v%d, 2, v%d" % (V_T1, V_T1))
    e("v_add_u32 v%d, s%d, v%d" % (V_T0, S_MB, V_T1))
    e("s_waitcnt lgkmcnt(4)")
    for kk in range(3):
        for w in range(NW):
            e("ds_read_b32 v%d, v%d offset:%d" % (OB + kk * NW + w, V_T0, w * ROWB + kk * 256))
            if (kk * NW + w) % 8 == 7:
                e("s_waitcnt lgkmcnt(4)")
    e("v_readfirstlane_b32 s%d, v%d" % (S_T + 2, V_PB))
    e("s_nop 3")
    e("s_cmp_lg_u32 s%d, %d" % (S_T + 2, NW))
    e("s_waitcnt lgkmcnt(0)")
    e("s_cbranch_scc1 L_merge")
    for w in range(NW):
        b = MLB + 8 * w
        e("v_add_f32 v%d, v%d, v%d" % (b + 1, b + 1, b + 3))
        e("v_add_f32 v%d, v%d, v%d" % (b + 5, b + 5, b + 7))
        e("v_add_f32 v%d, v%d, v%d" % (b + 1, b + 1, b + 5))
    e("v_mov_b32 v%d, v%d" % (V_M, MLB))
    for w in range(1, NW):
        e("v_max_f32 v%d, v%d, v%d" % (V_M, V_M, MLB + 8 * w))
    for w in range(NW):
        e("v_sub_f32 v%d, v%d, v%d" % (MLB + 8 * w, MLB + 8 * w, V_M))
    for w in range(NW):
        e("v_exp_f32 v%d, v%d" % (MLB + 8 * w, MLB + 8 * w))
    e("v_mul_f32 v%d, v%d, v%d" % (V_L, MLB, MLB + 1))
    for w in range(1, NW):
        e("v_fmac_f32 v%d, v%d, v%d" % (V_L, MLB + 8 * w, MLB + 8 * w + 1))
    for kk in range(3):
        e("v_mul_f32 v%d, v%d, v%d" % (V_ACC + kk, MLB, OB + kk * NW))
        for w in range(1, NW):
            e("v_fmac_f32 v%d, v%d, v%d" % (V_ACC + kk, MLB + 8 * w, OB + kk * NW + w))
        e("buffer_store_dword v%d, v%d, s[%d:%d], s%d offen offset:%d%s" % (V_ACC + kk, V_T1, S_WS, S_WS + 3, S_MREC, kk * 256, spol))
    e("s_mov_b64 exec, 1")
    e("buffer_store_dwordx2 v[%d:%d], v%d, s[%d:%d], s%d offen offset:%d%s" % (V_M, V_L, V_T1, S_WS, S_WS + 3, S_MREC, DH * 4, spol))
    e("s_mov_b64 exec, -1")
    e("s_cmp_lg_u32 s%d, 0" % S_RET)
    e("s_cbranch_scc1 L_done")
    if DYN:
        e("s_cmp_lg_u32 s%d, 1" % S_PH)
        e("s_cbranch_scc1 L_noduty")
        e("v_mov_b32 v%d, 1" % V_SIG)
        e("s_mov_b64 exec, 1")
        e("buffer_atomic_add v%d, off, s[%d:%d], s%d sc0" % (V_SIG, S_DBG, S_DBG + 3, S_SP4))
        e("s_mov_b64 exec, -1")
    e.label("L_noduty")
    if DYN:
        e("s_cmp_lg_u32 s%d, 2" % S_PH)
        e("s_cbranch_scc1 L_nogo")
        e("v_readfirstlane_b32 s%d, v%d" % (S_T, V_SIG))
        e("v_and_b32 v%d, %d, v0" % (V_T1, SLOTS - 1))
        e("v_lshlrev_b32 v%d, 10, v%d" % (V_T1, V_T1))
        e("v_mov_b32 v%d, 1" % V_T0)
        e("s_cmp_lg_u32 s%d, 7" % S_T)
        e("s_cbranch_scc1 L_nogo")
        e("buffer_store_dword v%d, v%d, s[%d:%d], s%d offen offset:768 sc1" % (V_T0, V_T1, S_WS, S_WS + 3, S_XB))
        e.label("L_nogo")
    e("s_waitcnt lgkmcnt(0)")
    e("s_add_u32 s%d, s%d, 1" % (S_PH, S_PH))
    e("s_cmp_ge_u32 s%d, %d" % (S_PH, NPH))
    e("s_cbranch_scc1 L_final")
    e("s_add_u32 s%d, s%d, %d" % (S_LDSB, S_LDSB, PHB))
    e("s_add_u32 s%d, s%d, %d" % (S_REC, S_REC, HC * WPH * PART_STRIDE))
    e("v_max3_f32 v%d, v%d, v%d, v%d" % (V_T0, V_MX, V_MX + 1, V_MX + 2))
    e("v_mov_b32 v%d, 0" % V_L)
    e("v_mov_b32 v%d, 0" % V_ZB)
    e("v_max_f32 v%d, v%d, v%d" % (V_T0, V_T0, V_MX + 3))
    for i in range(12):
        e("v_mov_b32 v%d, 0" % (V_ACC + i))
    e("v_mul_f32 v%d, s%d, v%d" % (V_M, S_NC, V_T0))
    if DYN:
        e("s_cmp_eq_u32 s%d, %d" % (S_PH, NPH - 1))
        e("s_cbranch_scc1 L_dentry")
        e("s_cmp_eq_u32 s%d, %d" % (S_PH, NPH - 2))
        e("s_cbranch_scc1 L_check")
        if P["poll1"]:
            e("s_cmp_lg_u32 s%d, %d" % (S_PH, NPH - 3))
            e("s_cbranch_scc1 L_cont")
        e("buffer_load_dword v%d, off, s[%d:%d], s%d offset:768 sc1" % (V_POLL, S_WS, S_WS + 3, S_OWN))
        e("s_branch L_cont")
        e.label("L_check")
        e("s_mov_b32 s%d, 0x100000" % S_SPIN)
        e.label("L_spin")
        e("v_readfirstlane_b32 s%d, v%d" % (S_T, V_POLL))
        e("s_nop 3")
        e("s_cmp_eq_u32 s%d, 1" % S_T)
        e("s_cbranch_scc1 L_ready")
        e("buffer_load_dword v%d, off, s[%d:%d], s%d offset:768 sc1" % (V_POLL, S_WS, S_WS + 3, S_OWN))
        e("s_waitcnt vmcnt(0)")
        e("s_sub_u32 s%d, s%d, 1" % (S_SPIN, S_SPIN))
        e("s_cmp_lg_u32 s%d, 0" % S_SPIN)
        e("s_cbranch_scc1 L_spin")
        e.label("L_ready")
        e("v_and_b32 v%d, %d, v0" % (V_T1, SLOTS - 1))
        e("v_lshlrev_b32 v%d, 10, v%d" % (V_T1, V_T1))
        e("buffer_load_dword v%d, v%d, s[%d:%d], s%d offen offset:512 sc1" % (V_GM, V_T1, S_WS, S_WS + 3, S_XB))
        e("s_branch L_cont")
        e.label("L_dentry")
        if P["stamp"] == 2:
            e("s_memrealtime s[%d:%d]" % (S_ST + 6, S_ST + 7))
            e("s_waitcnt lgkmcnt(0)")
        issue_claim()
        for kk in (8, 4, 2, 1):
            e("v_max_f32_dpp v%d, v%d, v%d row_ror:%d row_mask:0xf bank_mask:0xf" % (V_GM, V_GM, V_GM, kk))
        e("v_mov_b32 v%d, v%d" % (V_T0, V_GM))
        e("v_permlane32_swap_b32 v%d, v%d" % (V_T0, V_GM))
        e("v_max_f32 v%d, v%d, v%d" % (V_GM, V_GM, V_T0))
        e("v_mov_b32 v%d, v%d" % (V_T0, V_GM))
        e("v_permlane16_swap_b32 v%d, v%d" % (V_T0, V_GM))
        e("v_max_f32 v%d, v%d, v%d" % (V_GM, V_GM, V_T0))
        e("v_mul_f32 v%d, s%d, v%d" % (V_M, S_NC, V_GM))
        e("s_branch L_dcont")
    else:
        e("s_branch L_cont")
    e.label("L_final")
    e("v_readfirstlane_b32 s%d, v%d" % (S_T + 2, V_CN))
    e("s_mov_b32 s%d, %d" % (S_MB, LDS_R0 + (NPH - 1) * PHB))
    e("s_mov_b32 s%d, s%d" % (S_MREC, S_REC))
    e("s_mov_b32 s%d, %d" % (S_MC, (NPH - 1) * 4))
    e("s_mov_b32 s%d, 1" % S_RET)
    e("s_cmp_eq_u32 s%d, %d" % (S_T + 2, NW - 1))
    e("s_cbranch_scc1 L_merge")
    e.label("L_done")

    if P["stamp"]:
        e("s_memrealtime s[%d:%d]" % (S_ST + 2, S_ST + 3))
        e("s_getreg_b32 s%d, hwreg(HW_REG_XCC_ID)" % (S_ST + 4))
        e("s_waitcnt lgkmcnt(0)")
        e("v_mov_b32 v%d, s%d" % (V_MG + 0, S_ST))
        e("v_mov_b32 v%d, s%d" % (V_MG + 1, S_ST + 2))
        e("v_mov_b32 v%d, s%d" % (V_MG + 2, S_ST + 4))
        e("v_mov_b32 v%d, s%d" % (V_MG + 3, S_ST + 6))
        e("s_mul_i32 s%d, s%d, %d" % (S_T, S_WG, NW))
        e("s_add_u32 s%d, s%d, s%d" % (S_T, S_T, S_WAVE))
        e("s_lshl_b32 s%d, s%d, 4" % (S_T, S_T))
        e("s_add_u32 s%d, s%d, 0x4000000" % (S_T, S_T))
        e("s_mov_b32 s%d, 0x8000000" % (S_WS + 2))
        e("v_mov_b32 v%d, 0" % V_T0)
        e("buffer_store_dwordx4 v[%d:%d], v%d, s[%d:%d], s%d offen" % (V_MG, V_MG + 3, V_T0, S_WS, S_WS + 3, S_T))
    if P["dbgt"]:
        e("s_memrealtime s[%d:%d]" % (S_ST + 2, S_ST + 3))
        e("s_and_b32 s%d, s%d, 0xf8" % (S_T, S_WG))
        e("s_or_b32 s%d, s%d, s%d" % (S_T, S_T, S_WAVE))
        e("s_cmp_lg_u32 s%d, 0" % S_T)
        e("s_cbranch_scc1 L_exit1")
        srd(S_DBG, 80, 256)
        e("s_waitcnt lgkmcnt(0)")
        e("s_sub_u32 s%d, s%d, s%d" % (S_T, S_ST + 2, S_ST))
        e("v_mov_b32 v%d, s%d" % (V_MG + 0, S_T))
        e("v_mov_b32 v%d, s%d" % (V_MG + 1, S_ST + 2))
        e("s_lshl_b32 s%d, s%d, 3" % (S_T, S_WG))
        e("s_add_u32 s%d, s%d, %d" % (S_T, S_T, 28 << 20))
        e("s_mov_b64 exec, 1")
        e("buffer_store_dwordx2 v[%d:%d], off, s[%d:%d], s%d" % (V_MG, V_MG + 1, S_WS, S_WS + 3, S_T))
    e.lines.append("L_exit1:")
    e("s_endpgm")

    RPW = min(P["rpw"], WPH)
    NW2 = WPH // RPW
    assert NW2 <= 16
    k2 = NAME + "_kernel"
    e.lines.append(".globl %s" % k2)
    e.lines.append(".p2align 8")
    e.lines.append(".type %s,@function" % k2)
    e.lines.append(k2 + ":")
    e.wr = {}; e.tr = {}
    e("s_cmp_ge_u32 s2, %d" % (3 * H))
    e("s_cbranch_scc1 L_exit2")
    e("s_load_dwordx2 s[4:5], s[0:1], 56")
    e("s_load_dwordx2 s[6:7], s[0:1], 72")
    if P["dbgt"]:
        e("s_memrealtime s[24:25]")
        e("s_load_dwordx2 s[28:29], s[0:1], 64")
    e("v_lshrrev_b32 v3, 6, v0")
    e("v_and_b32 v1, 63, v0")
    e("v_readfirstlane_b32 s18, v3")
    e("v_lshlrev_b32 v1, 2, v1")
    e("v_mov_b32 v2, 0")
    e("s_and_b32 s19, s2, %d" % (H - 1))
    e("s_lshr_b32 s20, s2, 5")
    e("s_mul_i32 s16, s19, %d" % WPH)
    e("s_mul_i32 s17, s18, %d" % RPW)
    e("s_add_u32 s16, s16, s17")
    e("s_mul_i32 s16, s16, %d" % PART_STRIDE)
    e("s_lshl_b32 s21, s20, 8")
    e("v_add_u32 v4, s21, v1")
    e("s_mov_b32 s10, %d" % (H * WPH * PART_STRIDE))
    e("s_mov_b32 s11, 0x00020000")
    e("s_mov_b32 s14, %d" % (H * DH * 2))
    e("s_mov_b32 s15, 0x00020000")
    e("s_waitcnt lgkmcnt(0)")
    e("s_mov_b32 s8, s6")
    e("s_and_b32 s9, s7, 0xffff")
    e("s_mov_b32 s12, s4")
    e("s_and_b32 s13, s5, 0xffff")
    MLB = 8
    OB = MLB + 2 * RPW
    for s in range(RPW):
        if s % 4 == 0:
            e("s_add_u32 s17, s16, %d" % (s * PART_STRIDE))
        e("buffer_load_dwordx2 v[%d:%d], v2, s[8:11], s17 offen offset:%d" %
          (MLB + 2 * s, MLB + 2 * s + 1, (s % 4) * PART_STRIDE + DH * 4))
        e("buffer_load_dword v%d, v4, s[8:11], s17 offen offset:%d" % (OB + s, (s % 4) * PART_STRIDE))
    e("s_waitcnt vmcnt(0)")

    def combine(n):
        e("v_mov_b32 v4, v%d" % MLB)
        for s in range(1, n):
            e("v_max_f32 v4, v4, v%d" % (MLB + 2 * s))
        for s in range(n):
            e("v_sub_f32 v%d, v%d, v4" % (MLB + 2 * s, MLB + 2 * s))
        for s in range(n):
            e("v_exp_f32 v%d, v%d" % (MLB + 2 * s, MLB + 2 * s))
        e("v_mul_f32 v5, v%d, v%d" % (MLB, MLB + 1))
        e("v_mul_f32 v6, v%d, v%d" % (MLB, OB))
        for s in range(1, n):
            e("v_fmac_f32 v5, v%d, v%d" % (MLB + 2 * s, MLB + 2 * s + 1))
            e("v_fmac_f32 v6, v%d, v%d" % (MLB + 2 * s, OB + s))

    combine(RPW)
    LDS2 = 0
    if NW2 > 1:
        assert NW2 <= RPW
        LDS2 = NW2 * 256 + NW2 * 8
        e("v_lshlrev_b32 v7, 2, v0")
        e("ds_write_b32 v7, v6")
        e("v_lshlrev_b32 v7, 3, v3")
        e("ds_write_b64 v7, v[4:5] offset:%d" % (NW2 * 256))
        e("s_waitcnt lgkmcnt(0)")
        e("s_barrier")
        e("s_cmp_lg_u32 s18, 0")
        e("s_cbranch_scc1 L_exit2")
        for w in range(NW2):
            e("ds_read_b64 v[%d:%d], v2 offset:%d" % (MLB + 2 * w, MLB + 2 * w + 1, NW2 * 256 + w * 8))
            e("ds_read_b32 v%d, v1 offset:%d" % (OB + w, w * 256))
            if w % 4 == 3:
                e("s_waitcnt lgkmcnt(4)")
        e("s_waitcnt lgkmcnt(0)")
        combine(NW2)
    e("v_rcp_f32 v5, v5")
    e("v_mul_f32 v6, v6, v5")
    e("v_cvt_pk_bf16_f32 v6, v6, v6")
    e("s_mul_i32 s16, s19, %d" % (DH * 2))
    e("s_lshl_b32 s21, s20, 7")
    e("s_add_u32 s16, s16, s21")
    e("v_lshrrev_b32 v1, 1, v1")
    e("buffer_store_short v6, v1, s[12:15], s16 offen")
    if P["dbgt"]:
        e("s_cmp_lg_u32 s2, 0")
        e("s_cbranch_scc1 L_exit2")
        e("s_mov_b32 s10, %d" % WS_SIZE)
        e("s_mov_b32 s16, %d" % (28 << 20))
        e("v_lshlrev_b32 v1, 2, v0")
        e("buffer_load_dword v6, v1, s[8:11], s16 offen")
        e("s_and_b32 s29, s29, 0xffff")
        e("s_mov_b32 s30, 64")
        e("s_mov_b32 s31, 0x00020000")
        e("s_memrealtime s[26:27]")
        e("s_waitcnt vmcnt(0) lgkmcnt(0)")
        e("v_writelane_b32 v6, s24, 14")
        e("v_writelane_b32 v6, s26, 15")
        e("buffer_store_dword v6, v1, s[28:31], 0 offen")
    e.lines.append("L_exit2:")
    e("s_endpgm")
    NV2 = OB + RPW

    def kd(name, nv, ns):
        acc = (nv + 3) // 4 * 4
        return """.amdhsa_kernel %s
  .amdhsa_next_free_vgpr %d
  .amdhsa_next_free_sgpr %d
  .amdhsa_accum_offset %d
  .amdhsa_group_segment_fixed_size 0
  .amdhsa_kernarg_size 80
  .amdhsa_user_sgpr_count 2
  .amdhsa_user_sgpr_kernarg_segment_ptr 1
  .amdhsa_system_sgpr_workgroup_id_x 1
.end_amdhsa_kernel
""" % (name, nv, ns, acc)

    out = HEADER.format(params=" ".join("%s=%s" % kv for kv in sorted(P.items())))
    out += "; @launch kernel=%s grid=(%d,1,1) block=(%d,1,1) lds=%d\n" % (k1, NWG, NW * 64, LDS1)
    out += "; @launch kernel=%s grid=(%d,1,1) block=(%d,1,1) lds=%d\n" % (k2, 3 * H, NW2 * 64, LDS2)
    out += '.amdgcn_target "amdgcn-amd-amdhsa--gfx950"\n.text\n'
    out += e.text()
    out += '.section .rodata,"a"\n.p2align 6\n'
    out += kd(k1, NVGPR, 101)
    out += ".p2align 6\n"
    out += kd(k2, NV2, 32)
    return out


DEFAULTS = dict(nw=4, nwg=256, hc=4, tt=16, gs=6, dg=1, nt="nt", ldspad=0, stamp=0, rpw=16, pfirst=1, sp="", dyn=1, poll1=1, xkp=0, dbgt=0)


def main():
    P = dict(DEFAULTS)
    outp = None
    args = sys.argv[1:]
    i = 0
    while i < len(args):
        a = args[i]
        if a == "-o":
            outp = args[i + 1]; i += 2; continue
        k, v = a.split("=", 1)
        assert k in P, k
        P[k] = type(P[k])(v.replace("+", " ")) if isinstance(P[k], str) else int(v)
        i += 1
    s = gen(P)
    if outp:
        open(outp, "w").write(s)
    else:
        sys.stdout.write(s)


if __name__ == "__main__":
    main()
```

```python
import re
import sys
import math
from gen import Emit, f32hex, HEADER, NAME, H, SKV, DH, G, NGRP, ROWB, HEADB

PART_STRIDE = 1024
NW = 4
NWG = 256
CPH = 192
NT = CPH // NW
WS_F = 1 << 20
WS_L = 2 << 20
WS_SIZE = 8 << 20
DBG_RANK = 192
BIGNEG = 0xf149f2ca

_SREG = re.compile(r"\bs(\d+)\b")
_SRANGE = re.compile(r"\bs\[(\d+):(\d+)\]")


def sregs(text):
    out = [int(x) for x in _SREG.findall(text)]
    for a, b in _SRANGE.findall(text):
        out += list(range(int(a), int(b) + 1))
    if "vcc" in text:
        out.append(106)
    return out


class Emit4(Emit):
    def __init__(self):
        Emit.__init__(self)
        self.sw = {}

    def need(self, s):
        k = Emit.need(self, s)
        op = s.split()[0]
        ops = s[len(op):]
        w = 0
        if op.startswith(("v_writelane", "v_readlane")):
            w = 4
        elif op.startswith("v_"):
            w = 2
        elif op.startswith("buffer_"):
            w = 5
        if w:
            src = ops
            if op.startswith(("v_cmp", "v_readfirstlane", "v_readlane")):
                src = ops[len(ops.split(",")[0]):]
            for r in sregs(src):
                if r in self.sw:
                    k = max(k, w - (self.n - self.sw[r] - 1))
        return max(k, 0)

    def _emit(self, s):
        Emit._emit(self, s)
        op = s.split()[0]
        if op.startswith(("v_cmp", "v_readfirstlane", "v_readlane")):
            for r in sregs(s[len(op):].split(",")[0]):
                self.sw[r] = self.n - 1


def gen(P):
    NP = P["np"]
    GR = [int(x) for x in P["grp"].split("-")]
    assert sum(GR) == 18 and len(GR) >= 2
    NG = len(GR)
    GOFF = [sum(GR[:k]) for k in range(NG)]
    N0 = P["n0"]
    NR = P["nr"]
    assert 1 <= N0 < 22 and 1 <= NR <= 7 and NP in (3, 6)
    NPR = 32 * NP // 24 * 8
    pol = (" " + P["nt"]) if P["nt"] else ""
    C = (DH ** -0.5) * math.log2(math.e)
    HALF = NT // 2
    NROWS = NW * 4
    LDS_CNT = 0
    LDS_TAB = 16
    LDS_SLOT = 32
    LDS_R0 = 64
    LDS1 = max(LDS_R0 + NW * ROWB + NROWS * 8, P["ldspad"])

    e = Emit4()
    V_T = 1; V_J16 = 2; V_J8 = 3; V_M = 4; V_L = 5; V_ZB = 6; V_PB = 7; V_VS = 8; V_VZ = 9; V_T0 = 10; V_T1 = 11
    V_ACC = 12; V_W = 24; V_RAW = 36
    V_OFF = 54; V_OFF6 = 55; V_SR = 56; V_PV = 57; V_DO = 58; V_PO = 59
    V_S = 60
    V_D = 66
    V_LOC = 68; V_LON = 69; V_JM = 70; V_JS = 71; V_BIG = 72; V_FL = 73; V_FA = 74; V_T2 = 75
    V_RING = 76
    V_MG = V_RING
    NVGPR = V_RING + 72
    S_K = 8; S_V = 12; S_KS = 16; S_KZ = 20; S_VS = 24; S_VZ = 28; S_Q = 32; S_WS = 36; S_DBG = 40
    S_WAVE = 44; S_LAM = 45; S_HB = 46; S_CI = 47; S_I = 48; S_QOFF = 49
    S_T = 50
    S_TAB = 56
    S_TABV = 58
    S_EV = 60
    S_VM = 62
    S_J5 = 84; S_JE5 = 86; S_STM = 88
    S_C = 90; S_768 = 91; S_384 = 92; S_MAGIC = 93; S_FX = 94; S_FLO = 95; S_XB = 96; S_ST16 = 97; S_LS = 98; S_LB = 99
    S_FDYN = 4; S_FSTA = 5; S_FCHK = 6; S_SPIN = 7; S_REC = 3
    S_ST = 100

    k1 = "part_kernel"
    e.lines.append(".globl %s" % k1)
    e.lines.append(".p2align 8")
    e.lines.append(".type %s,@function" % k1)
    e.lines.append(k1 + ":")
    e("s_cmp_ge_u32 s2, %d" % NWG)
    e("s_cbranch_scc1 L_exit1")
    e("s_load_dwordx16 s[64:79], s[0:1], 0")
    e("s_load_dwordx4 s[80:83], s[0:1], 64")
    if P["stamp"]:
        e("s_memrealtime s[%d:%d]" % (S_ST, S_ST + 1))
    e("v_lshrrev_b32 v%d, 6, v0" % V_T0)
    e("v_and_b32 v%d, 63, v0" % V_T1)
    e("v_readfirstlane_b32 s%d, v%d" % (S_WAVE, V_T0))
    e("v_lshrrev_b32 v%d, 4, v%d" % (V_T, V_T1))
    e("v_and_b32 v%d, 15, v%d" % (V_T1, V_T1))
    e("v_lshlrev_b32 v%d, 4, v%d" % (V_J16, V_T1))
    e("v_lshlrev_b32 v%d, 3, v%d" % (V_J8, V_T1))
    e("s_cmp_ge_u32 s%d, %d" % (S_WAVE, NW))
    e("s_cbranch_scc1 L_prober")

    def srd(dst, ptr, nbytes):
        e("s_mov_b32 s%d, s%d" % (dst, ptr))
        e("s_and_b32 s%d, s%d, 0xffff" % (dst + 1, ptr + 1))
        e("s_mov_b32 s%d, %d" % (dst + 2, nbytes))
        e("s_mov_b32 s%d, 0x00020000" % (dst + 3))

    def set_slot(lam, rho):
        e("s_mul_i32 s%d, s%d, %d" % (S_HB, rho, 64 if P["seg"] else CPH))
        e("s_mul_i32 s%d, s%d, %d" % (S_QOFF, rho, DH * 2))
        e("s_lshl_b32 s%d, s%d, 6" % (S_FX, lam))
        e("s_add_u32 s%d, s%d, 1" % (S_FX, S_FX))
        e("s_and_b32 s%d, s%d, 1" % (S_FLO, lam))
        e("s_lshl_b32 s%d, s%d, 9" % (S_FLO, S_FLO))
        e("s_lshr_b32 s%d, s%d, 1" % (S_T + 5, lam))
        e("s_lshl_b32 s%d, s%d, 5" % (S_T + 5, S_T + 5))
        e("s_add_u32 s%d, s%d, s%d" % (S_FLO, S_FLO, S_T + 5))

    def flag_addr(dst, lam, rho, extra):
        e("s_lshl_b32 s%d, s%d, 2" % (dst, rho))
        e("s_add_u32 s%d, s%d, s%d" % (dst, dst, S_WAVE))
        e("s_lshl_b32 s%d, s%d, 6" % (dst, dst))
        e("s_lshl_b32 s%d, s%d, 2" % (S_T + 5, lam))
        e("s_add_u32 s%d, s%d, s%d" % (dst, dst, S_T + 5))
        e("s_add_u32 s%d, s%d, %d" % (dst, dst, WS_F + extra))

    def tile_addr(kind, endcheck=False):
        ch, a, b, n = S_T, S_T + 1, S_T + 4, S_T + 2
        if P["seg"]:
            e("s_lshr_b32 s%d, s%d, 6" % (a, S_CI))
            e("s_lshl_b32 s%d, s%d, 11" % (a, a))
            e("s_and_b32 s%d, s%d, 63" % (ch, S_CI))
            e("s_add_u32 s%d, s%d, s%d" % (ch, ch, a))
            e("s_add_u32 s%d, s%d, s%d" % (ch, ch, S_HB))
        else:
            e("s_add_u32 s%d, s%d, s%d" % (ch, S_HB, S_CI))
        e("s_lshr_b32 s%d, s%d, 9" % (a, ch))
        e("s_lshl_b32 s%d, s%d, 2" % (a, a))
        e("s_lshr_b64 s[%d:%d], s[%d:%d], s%d" % (n, n + 1, S_TAB, S_TAB + 1, a))
        e("s_bfe_u32 s%d, s%d, 0x20003" % (a, ch))
        e("s_and_b32 s%d, s%d, 4" % (b, ch))
        e("s_or_b32 s%d, s%d, s%d" % (a, a, b))
        e("s_xor_b32 s%d, s%d, s%d" % (a, a, n))
        e("s_and_b32 s%d, s%d, 7" % (a, a))
        e("s_lshl_b32 s%d, s%d, 7" % (b, a))
        e("s_lshl_b32 s%d, s%d, 4" % (a, a))
        e("s_add_u32 s%d, s%d, 1" % (a, a))
        e("s_bitcmp1_b32 s%d, 3" % n)
        e("s_cselect_b32 s%d, s%d, s%d" % (a, S_FX, a))
        e("s_cselect_b32 s%d, s%d, s%d" % (b, S_FLO, b))
        e("s_cselect_b32 s%d, 16, 128" % S_ST16)
        e("s_cselect_b32 s%d, 128, 32" % S_LS)
        e("s_lshl_b32 s%d, s%d, 9" % (S_XB, ch))
        e("s_add_u32 s%d, s%d, s%d" % (S_XB, S_XB, a))
        e("s_lshl_b32 s%d, s%d, 10" % (S_LB, ch))
        e("s_add_u32 s%d, s%d, s%d" % (S_LB, S_LB, b))
        e("s_add_u32 s%d, s%d, %d" % (S_LB, S_LB, WS_L))
        if endcheck:
            e("s_cmp_ge_u32 s%d, %d" % (S_CI, CPH))
            e("s_cselect_b32 s%d, 0x300000, s%d" % (S_XB, S_XB))
            e("s_cselect_b32 s%d, %d, s%d" % (S_LB, WS_SIZE, S_LB))
        e("v_mul_u32_u24 v%d, s%d, v%d" % (V_T0, S_ST16, V_T))
        e("v_add_u32 v%d, s%d, v%d" % (V_T0, S_XB, V_T0))
        e("v_mul_hi_u32 v%d, v%d, s%d" % (V_T0, V_T0, S_MAGIC))
        e("v_lshrrev_b32 v%d, 1, v%d" % (V_T0, V_T0))
        e("v_and_b32 v%d, 15, v%d" % (V_T1, V_T0))
        e("v_cmp_eq_u32 vcc, 5, v%d" % V_T1)
        e("v_mad_u32_u24 v%d, v%d, s%d, v%d" % (V_OFF, V_T0, S_768, V_J16))
        e("v_add_u32 v%d, %d, v%d" % (V_T1, 5 * ROWB, V_OFF))
        e("v_cndmask_b32 v%d, v%d, v%d, vcc" % (V_OFF6, V_BIG, V_T1))
        if kind == "K":
            e("v_lshrrev_b32 v%d, 6, v%d" % (V_T0, V_T0))
            e("v_mad_u32_u24 v%d, v%d, s%d, v%d" % (V_PO, V_T0, S_384, V_J8))
            e("v_mad_u32_u24 v%d, v%d, s%d, v%d" % (V_LON, V_T, S_LS, V_JS))
            e("v_add_u32 v%d, s%d, v%d" % (V_LON, S_LB, V_LON))
        else:
            e("v_add_lshl_u32 v%d, v%d, v%d, 1" % (V_PO, V_T0, V_JM))
            e("v_mul_u32_u24 v%d, s%d, v%d" % (V_LON, S_LS, V_T))
            e("v_lshl_add_u32 v%d, v%d, 2, v%d" % (V_LON, V_JM, V_LON))
            e("s_and_b64 s[%d:%d], vcc, s[%d:%d]" % (S_VM, S_VM + 1, S_JE5, S_JE5 + 1))
            e("s_or_b64 s[%d:%d], s[%d:%d], s[%d:%d]" % (S_VM, S_VM + 1, S_VM, S_VM + 1, S_J5, S_J5 + 1))

    def issue_params(kind):
        if kind == "K":
            for k, (sr, vo, so) in enumerate(((S_Q, V_J8, "s%d" % S_QOFF), (S_KS, V_PO, "0"), (S_KZ, V_PO, "0"))):
                if P["xkp"] & (1 << k):
                    continue
                for c in range(3):
                    r = V_RAW + 6 * k + 2 * c
                    e.vmem("buffer_load_dwordx2 v[%d:%d], v%d, s[%d:%d], %s offen offset:%d" %
                           (r, r + 1, vo, sr, sr + 3, so, c * 128), "p")
        else:
            if not P["xkp"] & 32:
                e.vmem("buffer_load_dword v%d, v%d, s[%d:%d], s%d offen%s" % (V_SR, V_LON, S_WS, S_WS + 3, S_LB, P["lpol"]), "p")
            if not P["xkp"] & 8:
                e.vmem("buffer_load_ushort v%d, v%d, s[%d:%d], 0 offen" % (V_VS, V_PO, S_VS, S_VS + 3), "p")
                e.vmem("buffer_load_ushort v%d, v%d, s[%d:%d], 0 offen" % (V_VZ, V_PO, S_VZ, S_VZ + 3), "p")

    def issue_group(k, kind):
        srdb = S_K if kind == "K" else S_V
        for l in range(GOFF[k], GOFF[k] + GR[k]):
            r = V_RING + l * 4
            if l < 15:
                vo, off = V_OFF, l * 256
            else:
                vo, off = V_OFF6, (l - 15) * 256
            e.vmem("buffer_load_dwordx4 v[%d:%d], v%d, s[%d:%d], 0 offen offset:%d%s" %
                   (r, r + 3, vo, srdb, srdb + 3, off, pol), "g%d" % k)

    def compute_w():
        e.wait_tag("p")
        for p in range(6):
            rq = V_RAW + p; rs = V_RAW + 6 + p
            i0 = 2 * p
            e("v_lshlrev_b32 v%d, 16, v%d" % (V_T0, rq))
            e("v_lshlrev_b32 v%d, 16, v%d" % (V_W + i0, rs))
            e("v_and_b32 v%d, 0xffff0000, v%d" % (V_T1, rq))
            e("v_and_b32 v%d, 0xffff0000, v%d" % (V_W + i0 + 1, rs))
            e("v_mul_f32 v%d, v%d, v%d" % (V_W + i0, V_W + i0, V_T0))
            e("v_mul_f32 v%d, v%d, v%d" % (V_W + i0 + 1, V_W + i0 + 1, V_T1))
        for p in range(6):
            rz = V_RAW + 12 + p
            i0 = 2 * p
            e("v_lshlrev_b32 v%d, 16, v%d" % (V_T0, rz))
            e("v_and_b32 v%d, 0xffff0000, v%d" % (V_T1, rz))
            if p == 0:
                e("v_mul_f32 v%d, v%d, v%d" % (V_PB, V_T0, V_W + i0))
            else:
                e("v_fmac_f32 v%d, v%d, v%d" % (V_PB, V_T0, V_W + i0))
            e("v_fmac_f32 v%d, v%d, v%d" % (V_PB, V_T1, V_W + i0 + 1))
        e("v_sub_f32 v%d, 0, v%d" % (V_PB, V_PB))

    def prep_v():
        e.wait_tag("p")
        e("v_mul_f32 v%d, s%d, v%d" % (V_SR, S_C, V_SR))
        e("v_mov_b32 v%d, 0x%08x" % (V_T1, BIGNEG))
        e("v_cndmask_b32 v%d, v%d, v%d, s[%d:%d]" % (V_SR, V_T1, V_SR, S_VM, S_VM + 1))
        e("v_max_f32 v%d, v%d, v%d" % (V_T0, V_SR, V_M))
        e("v_lshlrev_b32 v%d, 16, v%d" % (V_VS, V_VS))
        e("v_lshlrev_b32 v%d, 16, v%d" % (V_VZ, V_VZ))
        for kk in (8, 4, 2, 1):
            e("v_max_f32_dpp v%d, v%d, v%d row_ror:%d row_mask:0xf bank_mask:0xf" % (V_T0, V_T0, V_T0, kk))
        e("v_sub_f32 v%d, v%d, v%d" % (V_T1, V_M, V_T0))
        e("v_sub_f32 v%d, v%d, v%d" % (V_SR, V_SR, V_T0))
        e("v_exp_f32 v%d, v%d" % (V_T1, V_T1))
        e("v_exp_f32 v%d, v%d" % (V_SR, V_SR))
        e("v_mov_b32 v%d, v%d" % (V_M, V_T0))
        for i in range(12):
            e("v_mul_f32 v%d, v%d, v%d" % (V_ACC + i, V_ACC + i, V_T1))
        e("v_mul_f32 v%d, v%d, v%d" % (V_PV, V_SR, V_VS))
        e("v_fma_f32 v%d, v%d, v%d, v%d" % (V_L, V_L, V_T1, V_SR))
        e("v_mul_f32 v%d, v%d, v%d" % (V_ZB, V_ZB, V_T1))
        e("v_fmac_f32 v%d, v%d, v%d" % (V_ZB, V_PV, V_VZ))

    def check_flags(need, lanes_mask, tag):
        e("s_mov_b32 s%d, 0x40000" % S_SPIN)
        e.label("L_chk" + tag)
        e("v_cmp_gt_u32 vcc, %d, v%d" % (need, V_FL))
        e("s_and_b32 s%d, vcc_lo, 0x%x" % (S_T, lanes_mask))
        e("s_cbranch_scc0 L_ok" + tag)
        e("buffer_load_dword v%d, v%d, s[%d:%d], s%d offen sc1" % (V_FL, V_FA, S_WS, S_WS + 3, S_FCHK))
        e("s_sub_u32 s%d, s%d, 1" % (S_SPIN, S_SPIN))
        e("s_waitcnt vmcnt(0)")
        e("s_cmp_lg_u32 s%d, 0" % S_SPIN)
        e("s_cbranch_scc1 L_chk" + tag)
        e("s_endpgm")
        e.label("L_ok" + tag)

    def body(kind, to_v=False):
        nkind = "V" if to_v else kind
        for k in range(NG):
            e.wait_tag("g%d" % k)
            if k + 1 < NG:
                issue_group(k + 1, kind)
            else:
                issue_group(0, nkind)
            if k == NG - 2:
                if to_v:
                    save = list(e.vm)
                    check_flags(1, 0xffff, "a")
                    e.vm = save
                    e("s_mov_b32 s%d, s%d" % (S_CI, S_WAVE))
                    e("s_mov_b32 s%d, 0" % S_I)
                    e("s_mov_b64 s[%d:%d], s[%d:%d]" % (S_TAB, S_TAB + 1, S_TABV, S_TABV + 1))
                    ev = (1 << 1) | (1 << (HALF - 1)) | (1 << HALF)
                    e("s_mov_b32 s%d, 0x%x" % (S_EV, ev & 0xffffffff))
                    e("s_mov_b32 s%d, 0x%x" % (S_EV + 1, ev >> 32))
                else:
                    e("s_add_u32 s%d, s%d, %d" % (S_CI, S_CI, NW))
                    e("s_add_u32 s%d, s%d, 1" % (S_I, S_I))
                    e("s_bitcmp1_b64 s[%d:%d], s%d" % (S_EV, S_EV + 1, S_I))
                    e("s_cbranch_scc1 L_ev%s" % kind)
                    e.flush()
                    e.label("L_evret%s" % kind)
                if P["stamp"] == 4:
                    e("s_memrealtime s[%d:%d]" % (S_DBG, S_DBG + 1))
                    e("s_add_u32 s%d, s%d, 4" % (S_DBG + 2, S_DBG + 2))
                    e("s_waitcnt lgkmcnt(0)")
                    e("v_mov_b32 v%d, s%d" % (V_T2, S_DBG))
                    e("s_mov_b64 exec, 1")
                    e("buffer_store_dword v%d, off, s[%d:%d], s%d" % (V_T2, S_WS, S_WS + 3, S_DBG + 2))
                    e("s_mov_b64 exec, -1")
                tile_addr(nkind, endcheck=(kind == "V"))
                issue_params(nkind)
            for l in range(GOFF[k], GOFF[k] + GR[k]):
                q, c = l // 3, l % 3
                base = V_RING + l * 4
                for r in range(4):
                    e("v_cvt_f32_i32 v%d, v%d" % (base + r, base + r))
                if kind == "K":
                    s = V_S + q
                    for r in range(4):
                        if c == 0 and r == 0:
                            e("v_fma_f32 v%d, v%d, v%d, v%d" % (s, base, V_W, V_PB))
                        else:
                            e("v_fmac_f32 v%d, v%d, v%d" % (s, base + r, V_W + 4 * c + r))
                    if c == 2:
                        e.defer(["v_add_f32_dpp v%d, v%d, v%d row_ror:%d row_mask:0xf bank_mask:0xf" % (s, s, s, kk)
                                 for kk in (8, 4, 2)] +
                                ["v_add_f32_dpp v%d, v%d, v%d row_ror:1 row_mask:0xf bank_mask:0x%x" %
                                 (V_D + (q & 1), s, s, 1 << (q >> 1))])
                else:
                    for r in range(4):
                        e("v_fmac_f32_dpp v%d, v%d, v%d row_newbcast:%d row_mask:0xf bank_mask:0xf" %
                          (V_ACC + 4 * c + r, V_PV, base + r, q))
            e.flush()
        if kind == "K":
            if not P["xkp"] & 16:
                e("s_mov_b64 exec, s[%d:%d]" % (S_STM, S_STM + 1))
                e.vmem("buffer_store_dwordx2 v[%d:%d], v%d, s[%d:%d], 0 offen%s" % (V_D, V_D + 1, V_LOC, S_WS, S_WS + 3, P["spol"]), "st")
                e("s_mov_b64 exec, -1")
            if not to_v:
                e("v_mov_b32 v%d, v%d" % (V_LOC, V_LON))
                compute_w()

    e("s_mov_b32 s%d, %d" % (S_768, ROWB))
    e("s_mov_b32 s%d, %d" % (S_384, DH * 2))
    e("s_mov_b32 s%d, 0xaaaaaaab" % S_MAGIC)
    e("v_mov_b32 v%d, 0xc0000000" % V_BIG)
    e("v_lshrrev_b32 v%d, 2, v%d" % (V_JS, V_T1))
    e("v_lshlrev_b32 v%d, 3, v%d" % (V_JS, V_JS))
    e("v_min_u32 v%d, 5, v%d" % (V_JM, V_T1))
    e("v_lshlrev_b32 v%d, 2, v%d" % (V_FA, V_T1))
    e("v_lshlrev_b32 v%d, 2, v%d" % (V_DO, V_T))
    e("v_add_u32 v%d, v%d, v%d" % (V_DO, V_J16, V_DO))
    e("s_and_b32 s%d, s2, 7" % S_LAM)
    e("s_lshr_b32 s%d, s2, 3" % S_REC)
    set_slot(S_LAM, S_REC)
    e("s_mov_b32 s%d, 0x88888888" % S_TAB)
    e("s_mov_b32 s%d, 0x88888888" % (S_TAB + 1))
    e("s_mov_b32 s%d, s%d" % (S_CI, S_WAVE))
    tile_addr("K")
    e("s_waitcnt lgkmcnt(0)")
    srd(S_K, 66, H * HEADB)
    issue_group(0, "K")
    srd(S_Q, 64, H * DH * 2)
    srd(S_KS, 70, H * NGRP * DH * 2)
    srd(S_KZ, 72, H * NGRP * DH * 2)
    issue_params("K")
    srd(S_VS, 74, H * SKV * 2)
    srd(S_VZ, 76, H * SKV * 2)
    srd(S_V, 68, H * HEADB)
    srd(S_WS, 82, WS_SIZE)
    if P["stamp"] == 4:
        e("s_mov_b32 s%d, 0x8000000" % (S_WS + 2))
        e("s_mul_i32 s%d, s2, %d" % (S_DBG + 2, NW))
        e("s_add_u32 s%d, s%d, s%d" % (S_DBG + 2, S_DBG + 2, S_WAVE))
        e("s_lshl_b32 s%d, s%d, 9" % (S_DBG + 2, S_DBG + 2))
        e("s_add_u32 s%d, s%d, 0x4010000" % (S_DBG + 2, S_DBG + 2))
    e("s_mov_b32 s%d, %s" % (S_C, f32hex(C)))
    e("s_mov_b32 s%d, 0" % S_I)
    flag_addr(S_FSTA, S_LAM, S_REC, 32)
    e("s_mov_b32 s%d, s%d" % (S_FDYN, S_FSTA))
    e("s_mov_b32 s%d, s%d" % (S_FCHK, S_FSTA))
    e("s_mov_b64 s[%d:%d], s[%d:%d]" % (S_TABV, S_TABV + 1, S_TAB, S_TAB + 1))
    for d, v in ((S_J5, 0x001f001f), (S_JE5, 0x00200020), (S_STM, 0x11111111 if P["full"] else 0x01110111)):
        e("s_mov_b32 s%d, 0x%x" % (d, v))
        e("s_mov_b32 s%d, 0x%x" % (d + 1, v))
    ev = (1 << N0) | (1 << (HALF + 1)) | (1 << (NT - 1))
    e("s_mov_b32 s%d, 0x%x" % (S_EV, ev & 0xffffffff))
    e("s_mov_b32 s%d, 0x%x" % (S_EV + 1, ev >> 32))
    e("v_mov_b32 v%d, v%d" % (V_LOC, V_LON))
    e("s_barrier")
    compute_w()
    steadyK = ["g0"] * GR[0] + ([] if P["xkp"] & 16 else ["st"])
    if P["xkp"] & 7 == 7:
        e("s_waitcnt vmcnt(0)")
    e.vm = list(steadyK)
    e.lines.append(".p2align 6")
    e.label("L_kloop")
    body("K")
    assert e.vm == steadyK, (e.vm, steadyK)
    e("s_cmp_lg_u32 s%d, %d" % (S_I, NT - 1))
    e("s_cbranch_scc1 L_kloop")
    body("K", True)
    if P["stamp"] == 1:
        e("s_memrealtime s[%d:%d]" % (S_DBG, S_DBG + 1))
    e("v_mov_b32 v%d, 0x%08x" % (V_M, BIGNEG))
    e("v_mov_b32 v%d, 0" % V_L)
    e("v_mov_b32 v%d, 0" % V_ZB)
    for i in range(12):
        e("v_mov_b32 v%d, 0" % (V_ACC + i))
    prep_v()
    steadyV = ["g0"] * GR[0]
    e.vm = list(steadyV)
    e.lines.append(".p2align 6")
    e.label("L_vloop")
    body("V")
    e("s_cmp_eq_u32 s%d, %d" % (S_I, NT))
    e("s_cbranch_scc1 L_dump")
    prep_v()
    assert e.vm == steadyV, (e.vm, steadyV)
    e("s_branch L_vloop")

    e.label("L_evK")
    e("s_cmp_eq_u32 s%d, %d" % (S_I, N0))
    e("s_cbranch_scc1 L_switch")
    e("s_cmp_eq_u32 s%d, %d" % (S_I, NT - 1))
    e("s_cbranch_scc1 L_fpre")
    e("s_waitcnt vmcnt(0)")
    e("v_mov_b32 v%d, 1" % V_T1)
    e("s_mov_b64 exec, 1")
    e("buffer_store_dword v%d, off, s[%d:%d], s%d sc1" % (V_T1, S_WS, S_WS + 3, S_FDYN))
    e("buffer_store_dword v%d, off, s[%d:%d], s%d sc1" % (V_T1, S_WS, S_WS + 3, S_FSTA))
    e("s_mov_b64 exec, -1")
    e("s_branch L_evretK")
    e.label("L_fpre")
    e("buffer_load_dword v%d, v%d, s[%d:%d], s%d offen sc1" % (V_FL, V_FA, S_WS, S_WS + 3, S_FCHK))
    e("s_branch L_evretK")
    e.label("L_switch")
    if P["stamp"] == 2:
        e("s_memrealtime s[%d:%d]" % (S_DBG, S_DBG + 1))
    e("s_mov_b32 s%d, 0x400000" % S_SPIN)
    e("v_mov_b32 v%d, 0" % V_T2)
    e.label("L_swspin")
    e("ds_read_b64 v[%d:%d], v%d offset:%d" % (V_T0, V_T1, V_T2, LDS_SLOT))
    e("ds_read_b128 v[%d:%d], v%d offset:%d" % (V_RAW, V_RAW + 3, V_T2, LDS_TAB))
    e("s_waitcnt lgkmcnt(0)")
    e("v_readfirstlane_b32 s%d, v%d" % (S_T, V_T0))
    e("s_sub_u32 s%d, s%d, 1" % (S_SPIN, S_SPIN))
    e("s_cbranch_scc1 L_exit1")
    e("s_cmp_eq_u32 s%d, 0" % S_T)
    e("s_cbranch_scc1 L_swspin")
    if P["stamp"] == 3:
        e("s_memrealtime s[%d:%d]" % (S_DBG, S_DBG + 1))
    e("v_readfirstlane_b32 s%d, v%d" % (S_REC, V_T1))
    e("v_readfirstlane_b32 s%d, v%d" % (S_TAB, V_RAW))
    e("v_readfirstlane_b32 s%d, v%d" % (S_TAB + 1, V_RAW + 1))
    e("v_readfirstlane_b32 s%d, v%d" % (S_TABV, V_RAW + 2))
    e("v_readfirstlane_b32 s%d, v%d" % (S_TABV + 1, V_RAW + 3))
    e("s_and_b32 s%d, s%d, 7" % (S_LAM, S_REC))
    e("s_lshr_b32 s%d, s%d, 3" % (S_T, S_REC))
    set_slot(S_LAM, S_T)
    flag_addr(S_FDYN, S_LAM, S_T, 0)
    e("s_andn2_b32 s%d, s%d, 63" % (S_FCHK, S_FDYN))
    e("s_lshl_b32 s%d, s%d, 10" % (S_REC, S_REC))
    if P["force"] == 1:
        for r in (S_TAB, S_TAB + 1, S_TABV, S_TABV + 1):
            e("s_mov_b32 s%d, 0x88888888" % r)
    if P["force"] == 2:
        e("s_lshl_b32 s%d, s%d, 4" % (S_T, S_LAM))
        e("s_add_u32 s%d, s%d, 0x7000000" % (S_T, S_T))
        e("s_load_dwordx4 s[%d:%d], s[82:83], s%d" % (S_TAB, S_TAB + 3, S_T))
        e("s_waitcnt lgkmcnt(0)")
    e("s_branch L_evretK")

    e.label("L_evV")
    e("s_cmp_eq_u32 s%d, 1" % S_I)
    e("s_cbranch_scc0 L_ev2")
    e("s_waitcnt vmcnt(0)")
    e("v_mov_b32 v%d, 2" % V_T1)
    e("s_mov_b64 exec, 1")
    e("buffer_store_dword v%d, off, s[%d:%d], s%d sc1" % (V_T1, S_WS, S_WS + 3, S_FDYN))
    e("s_mov_b64 exec, -1")
    e("s_branch L_evretV")
    e.label("L_ev2")
    e("s_cmp_eq_u32 s%d, %d" % (S_I, HALF))
    e("s_cbranch_scc1 L_ev3")
    e("buffer_load_dword v%d, v%d, s[%d:%d], s%d offen sc1" % (V_FL, V_FA, S_WS, S_WS + 3, S_FCHK))
    e("s_branch L_evretV")
    e.label("L_ev3")
    check_flags(2, 0xff, "b")
    e("s_branch L_evretV")

    MLB = V_MG
    OB = V_MG + 2 * NROWS
    e.label("L_dump")
    e("s_waitcnt vmcnt(0)")
    for kk in (8, 4, 2, 1):
        e("v_add_f32_dpp v%d, v%d, v%d row_ror:%d row_mask:0xf bank_mask:0xf" % (V_L, V_L, V_L, kk))
        e("v_add_f32_dpp v%d, v%d, v%d row_ror:%d row_mask:0xf bank_mask:0xf" % (V_ZB, V_ZB, V_ZB, kk))
    e("v_mov_b32 v%d, v%d" % (V_T0, V_M))
    e("v_mov_b32 v%d, v%d" % (V_T1, V_M))
    e("v_permlane32_swap_b32 v%d, v%d" % (V_T0, V_T1))
    e("v_max_f32 v%d, v%d, v%d" % (V_T0, V_T0, V_T1))
    e("v_mov_b32 v%d, v%d" % (V_T1, V_T0))
    e("v_permlane16_swap_b32 v%d, v%d" % (V_T0, V_T1))
    e("v_max_f32 v%d, v%d, v%d" % (V_T0, V_T0, V_T1))
    e("v_sub_f32 v%d, v%d, v%d" % (V_T1, V_M, V_T0))
    e("v_exp_f32 v%d, v%d" % (V_T1, V_T1))
    e("v_mov_b32 v%d, v%d" % (V_M, V_T0))
    for i in range(12):
        e("v_sub_f32 v%d, v%d, v%d" % (V_ACC + i, V_ACC + i, V_ZB))
    e("v_mul_f32 v%d, v%d, v%d" % (V_L, V_L, V_T1))
    for i in range(12):
        e("v_mul_f32 v%d, v%d, v%d" % (V_ACC + i, V_ACC + i, V_T1))
    for c in range(3):
        a = V_ACC + 4 * c
        e("v_permlane32_swap_b32 v%d, v%d" % (a, a + 2))
        e("v_permlane32_swap_b32 v%d, v%d" % (a + 1, a + 3))
    e("v_lshrrev_b32 v%d, 4, v0" % V_T1)
    e("v_lshlrev_b32 v%d, 3, v%d" % (V_T1, V_T1))
    for c in range(3):
        a = V_ACC + 4 * c
        e("v_add_f32 v%d, v%d, v%d" % (a, a, a + 2))
        e("v_add_f32 v%d, v%d, v%d" % (a + 1, a + 1, a + 3))
    e("ds_write_b64 v%d, v[%d:%d] offset:%d" % (V_T1, V_M, V_L, LDS_R0 + NW * ROWB))
    for c in range(3):
        a = V_ACC + 4 * c
        e("v_permlane16_swap_b32 v%d, v%d" % (a, a + 1))
    e("s_mul_i32 s%d, s%d, %d" % (S_T, S_WAVE, ROWB))
    e("v_add_u32 v%d, s%d, v%d" % (V_T0, S_T, V_DO))
    for c in range(3):
        a = V_ACC + 4 * c
        e("v_add_f32 v%d, v%d, v%d" % (a, a, a + 1))
        e("ds_write_b32 v%d, v%d offset:%d" % (V_T0, a, LDS_R0 + c * 256))
    e("v_mov_b32 v%d, 0" % V_T0)
    e("v_mov_b32 v%d, 1" % V_T1)
    e("s_mov_b64 exec, 1")
    e("ds_add_rtn_u32 v%d, v%d, v%d offset:%d" % (V_PB, V_T0, V_T1, LDS_CNT))
    e("s_mov_b64 exec, -1")
    e("s_waitcnt lgkmcnt(0)")
    e("v_readfirstlane_b32 s%d, v%d" % (S_T, V_PB))
    e("s_nop 3")
    e("s_cmp_lg_u32 s%d, %d" % (S_T, NW - 1))
    e("s_cbranch_scc1 L_done")
    for r in range(0, NROWS, 2):
        e("ds_read_b128 v[%d:%d], v%d offset:%d" % (MLB + 2 * r, MLB + 2 * r + 3, V_T0, LDS_R0 + NW * ROWB + r * 8))
    e("v_and_b32 v%d, 63, v0" % V_T1)
    e("v_lshlrev_b32 v%d, 2, v%d" % (V_T1, V_T1))
    e("s_waitcnt lgkmcnt(4)")
    for kk in range(3):
        for w in range(NW):
            e("ds_read_b32 v%d, v%d offset:%d" % (OB + kk * NW + w, V_T1, LDS_R0 + w * ROWB + kk * 256))
            if (kk * NW + w) % 8 == 7:
                e("s_waitcnt lgkmcnt(4)")
    e("s_waitcnt lgkmcnt(0)")
    for w in range(NW):
        b = MLB + 8 * w
        e("v_add_f32 v%d, v%d, v%d" % (b + 1, b + 1, b + 3))
        e("v_add_f32 v%d, v%d, v%d" % (b + 5, b + 5, b + 7))
        e("v_add_f32 v%d, v%d, v%d" % (b + 1, b + 1, b + 5))
    e("v_mov_b32 v%d, v%d" % (V_M, MLB))
    for w in range(1, NW):
        e("v_max_f32 v%d, v%d, v%d" % (V_M, V_M, MLB + 8 * w))
    for w in range(NW):
        e("v_sub_f32 v%d, v%d, v%d" % (MLB + 8 * w, MLB + 8 * w, V_M))
    for w in range(NW):
        e("v_exp_f32 v%d, v%d" % (MLB + 8 * w, MLB + 8 * w))
    e("v_mul_f32 v%d, v%d, v%d" % (V_L, MLB, MLB + 1))
    for w in range(1, NW):
        e("v_fmac_f32 v%d, v%d, v%d" % (V_L, MLB + 8 * w, MLB + 8 * w + 1))
    for kk in range(3):
        e("v_mul_f32 v%d, v%d, v%d" % (V_ACC + kk, MLB, OB + kk * NW))
        for w in range(1, NW):
            e("v_fmac_f32 v%d, v%d, v%d" % (V_ACC + kk, MLB + 8 * w, OB + kk * NW + w))
        e("buffer_store_dword v%d, v%d, s[%d:%d], s%d offen offset:%d" % (V_ACC + kk, V_T1, S_WS, S_WS + 3, S_REC, kk * 256))
    e("s_mov_b64 exec, 1")
    e("buffer_store_dwordx2 v[%d:%d], v%d, s[%d:%d], s%d offen offset:%d" % (V_M, V_L, V_T1, S_WS, S_WS + 3, S_REC, DH * 4))
    e("s_mov_b64 exec, -1")
    e.label("L_done")
    if P["stamp"]:
        e("s_memrealtime s[%d:%d]" % (S_T + 2, S_T + 3))
        e("s_getreg_b32 s%d, hwreg(HW_REG_XCC_ID)" % (S_T + 4))
        e("s_waitcnt lgkmcnt(0)")
        e("v_mov_b32 v%d, s%d" % (V_MG + 0, S_ST))
        e("v_mov_b32 v%d, s%d" % (V_MG + 1, S_T + 2))
        e("v_mov_b32 v%d, s%d" % (V_MG + 2, S_T + 4))
        e("v_mov_b32 v%d, s%d" % (V_MG + 3, S_DBG))
        e("s_mul_i32 s%d, s2, %d" % (S_T, NW))
        e("s_add_u32 s%d, s%d, s%d" % (S_T, S_T, S_WAVE))
        e("s_lshl_b32 s%d, s%d, 4" % (S_T, S_T))
        e("s_add_u32 s%d, s%d, 0x4000000" % (S_T, S_T))
        e("s_mov_b32 s%d, 0x8000000" % (S_WS + 2))
        e("v_mov_b32 v%d, 0" % V_T0)
        e("buffer_store_dwordx4 v[%d:%d], v%d, s[%d:%d], s%d offen" % (V_MG, V_MG + 3, V_T0, S_WS, S_WS + 3, S_T))
    e.lines.append("L_exit1:")
    e("s_endpgm")

    PX = 4; PP = 5; PJM = 6; PR = 7; PB = 8
    PO = 12; PIN = 13; PBASE = 14
    PA = 16
    PD = 24
    POF = 44
    PT = 52
    PRB = 56
    PMN = 58; PRN = 59; PJ = 60; PLAM = 61; PRK = 62; PK = 63
    PE = 84
    e.wr = {}; e.tr = {}
    e.label("L_prober")
    e("s_sub_u32 s%d, s%d, %d" % (PP, S_WAVE, NW))
    e("s_getreg_b32 s%d, hwreg(HW_REG_XCC_ID)" % PX)
    e("s_and_b32 s%d, s%d, 7" % (PX, PX))
    e("s_and_b32 s%d, s2, 7" % PJM)
    e("s_lshr_b32 s%d, s2, 3" % PR)
    e("s_mul_i32 s%d, s%d, %d" % (PR, PR, NP))
    e("s_add_u32 s%d, s%d, s%d" % (PR, PR, PP))
    e("s_mul_i32 s%d, s%d, 2731" % (PIN, PR))
    e("s_lshr_b32 s%d, s%d, 16" % (PIN, PIN))
    e("s_mul_i32 s%d, s%d, 24" % (PE, PIN))
    e("s_sub_u32 s%d, s%d, s%d" % (PR, PR, PE))
    e("s_cmp_ge_u32 s%d, 12" % PR)
    e("s_cselect_b32 s%d, 12, 0" % PE)
    e("s_sub_u32 s%d, s%d, s%d" % (PO, PR, PE))
    e("s_lshl_b32 s%d, s%d, 5" % (PO, PO))
    e("s_lshl_b32 s%d, s%d, %d" % (PE, PIN, 3 if NP == 3 else 2))
    e("s_add_u32 s%d, s%d, s%d" % (PO, PO, PE))
    e("s_and_b32 s%d, s%d, 1" % (PIN, PIN))
    e("s_add_u32 s%d, s%d, s%d" % (PO, PO, PIN))
    e("s_add_u32 s%d, s%d, 2" % (PO, PO))
    e("s_lshl_b32 s%d, s%d, 21" % (PO, PO))
    e("s_add_u32 s%d, s%d, 0x10000" % (PO, PO))
    e("s_lshl_b32 s%d, s%d, 2" % (PE, PIN))
    e("s_xor_b32 s%d, s%d, s%d" % (PE, PE, PX))
    e("s_lshr_b32 s%d, s%d, 1" % (PE + 1, PE))
    e("s_lshl_b32 s%d, s%d, 12" % (PE + 1, PE + 1))
    e("s_and_b32 s%d, s%d, 1" % (PE, PE))
    e("s_lshl_b32 s%d, s%d, 14" % (PE, PE))
    e("s_or_b32 s%d, s%d, s%d" % (PE, PE, PE + 1))
    for u in range(8):
        e("s_xor_b32 s%d, s%d, 0x%x" % (POF + u, PE, ((u >> 1) << 12) | ((u & 1) << 14)))
        e("s_mov_b32 s%d, 0" % (PA + u))
    e("v_and_b32 v%d, 7, v0" % V_T0)
    e("v_lshlrev_b32 v%d, 12, v%d" % (V_T0, V_T0))
    e("s_lshl_b32 s%d, s%d, 8" % (PE, PJM))
    e("v_add_u32 v%d, s%d, v%d" % (V_T0, PE, V_T0))
    e("s_waitcnt lgkmcnt(0)")
    e("s_cmp_ge_u32 s%d, 12" % PR)
    e("s_cselect_b32 s%d, s68, s66" % PB)
    e("s_cselect_b32 s%d, s69, s67" % (PB + 1))
    e("s_add_u32 s%d, s%d, s%d" % (PBASE, PB, PO))
    e("s_addc_u32 s%d, s%d, 0" % (PBASE + 1, PB + 1))
    e("s_and_b32 s%d, s%d, 0xffff" % (PB + 1, PB + 1))
    e("s_mov_b32 s%d, %d" % (PB + 2, H * HEADB))
    e("s_mov_b32 s%d, 0x00020000" % (PB + 3))
    e("s_mov_b64 exec, 0xff")
    e("buffer_load_dword v%d, v%d, s[%d:%d], s%d offen" % (V_T1, V_T0, PB, PB + 3, PO))
    e("s_mov_b64 exec, -1")
    srd(S_DBG, 80, 256)
    srd(S_WS, 82, WS_SIZE)
    e("s_cmp_lg_u32 s%d, 0" % PP)
    e("s_cbranch_scc1 L_pbar")
    e("v_lshlrev_b32 v%d, 2, v0" % V_M)
    e("v_and_b32 v%d, 63, v%d" % (V_M, V_M))
    e("v_mov_b32 v%d, 0" % V_L)
    e("ds_write_b32 v%d, v%d" % (V_M, V_L))
    e("s_waitcnt lgkmcnt(0)")
    e("s_barrier")
    e("s_mov_b32 s%d, 0" % PK)
    if P["norank"]:
        e("s_mov_b32 s%d, s%d" % (PLAM, PX))
        e("s_lshr_b32 s%d, s2, 3" % PRK)
        e("s_branch L_ranked")
    e.label("L_rank")
    e("s_xor_b32 s%d, s%d, s%d" % (PLAM, PX, PK))
    e("s_lshl_b32 s%d, s%d, 2" % (PE, PLAM))
    e("v_mov_b32 v%d, 1" % V_ZB)
    e("s_mov_b64 exec, 1")
    e("buffer_atomic_add v%d, off, s[%d:%d], s%d offset:%d sc0" % (V_ZB, S_DBG, S_DBG + 3, PE, DBG_RANK))
    e("s_mov_b64 exec, -1")
    e("s_waitcnt vmcnt(0)")
    e("v_readfirstlane_b32 s%d, v%d" % (PRK, V_ZB))
    e("s_add_u32 s%d, s%d, 1" % (PK, PK))
    e("s_cmp_lt_u32 s%d, 32" % PRK)
    e("s_cbranch_scc1 L_ranked")
    e("s_cmp_lt_u32 s%d, 8" % PK)
    e("s_cbranch_scc1 L_rank")
    e("s_endpgm")
    e.label("L_ranked")
    e("s_lshl_b32 s%d, s%d, 8" % (PE, PRK))
    e("s_lshl_b32 s%d, s%d, 2" % (PE + 1, PLAM))
    e("s_add_u32 s%d, s%d, s%d" % (PE, PE, PE + 1))
    e("s_lshr_b32 s%d, s2, 3" % (PE + 1))
    e("s_lshl_b32 s%d, s%d, 8" % (PE + 1, PE + 1))
    e("s_lshl_b32 s%d, s%d, 2" % (PE + 2, PJM))
    e("s_add_u32 s%d, s%d, s%d" % (PE + 1, PE + 1, PE + 2))
    e("s_add_u32 s%d, s%d, 32" % (PE + 1, PE + 1))
    e("v_and_b32 v%d, 3, v0" % V_M)
    e("v_lshlrev_b32 v%d, 6, v%d" % (V_M, V_M))
    e("v_mov_b32 v%d, s%d" % (V_ZB, PE))
    e("v_mov_b32 v%d, s%d" % (V_PB, PE + 1))
    e("s_mov_b64 vcc, 0xf0")
    e("v_cndmask_b32 v%d, v%d, v%d, vcc" % (V_ZB, V_ZB, V_PB))
    e("v_add_u32 v%d, v%d, v%d" % (V_M, V_M, V_ZB))
    e("s_mov_b32 s%d, %d" % (PE, WS_F))
    e("s_mov_b64 exec, 0xff")
    e("buffer_store_dword v%d, v%d, s[%d:%d], s%d offen sc1" % (V_L, V_M, S_WS, S_WS + 3, PE))
    e("s_mov_b64 exec, -1")
    e("s_lshl_b32 s%d, s%d, 3" % (PRK, PRK))
    e("s_or_b32 s%d, s%d, s%d" % (PRK, PRK, PLAM))
    e("s_branch L_probe")
    e.label("L_pbar")
    e("s_barrier")
    e.label("L_probe")
    e("s_waitcnt vmcnt(0)")
    e("s_lshl_b32 s%d, s%d, 8" % (PE, PJM))
    e("s_load_dword s%d, s[%d:%d], s%d" % (PJ, PBASE, PBASE + 1, PE))
    e("s_mov_b32 s%d, 1" % PRN)
    e("s_waitcnt lgkmcnt(0)")
    e.label("L_round")
    e("s_add_u32 s%d, s%d, s%d" % (PE, PJM, PRN))
    e("s_and_b32 s%d, s%d, 7" % (PE, PE))
    e("s_lshl_b32 s%d, s%d, 8" % (PE, PE))
    e("s_add_u32 s%d, s%d, s%d" % (PRB, PBASE, PE))
    e("s_addc_u32 s%d, s%d, 0" % (PRB + 1, PBASE + 1))
    e("s_mov_b32 s%d, -1" % PMN)
    e("s_memtime s[%d:%d]" % (PT, PT + 1))
    e("s_waitcnt lgkmcnt(0)")
    for u in range(8):
        a = PT + 2 * (u & 1); b = PT + 2 * ((u + 1) & 1)
        e("s_load_dword s%d, s[%d:%d], s%d" % (PJ, PRB, PRB + 1, POF + u))
        e("s_waitcnt lgkmcnt(0)")
        e("s_memtime s[%d:%d]" % (b, b + 1))
        e("s_waitcnt lgkmcnt(0)")
        e("s_sub_u32 s%d, s%d, s%d" % (PD + u, b, a))
    for u in range(8):
        e("s_min_u32 s%d, s%d, %d" % (PD + u, PD + u, P["clip"]))
        e("s_min_u32 s%d, s%d, s%d" % (PMN, PMN, PD + u))
    e("s_cmp_lt_u32 s%d, %d" % (PMN, P["l2t"]))
    e("s_cbranch_scc1 L_skip")
    for u in range(8):
        e("s_add_u32 s%d, s%d, s%d" % (PA + u, PA + u, PD + u))
    e.label("L_skip")
    e("s_add_u32 s%d, s%d, 1" % (PRN, PRN))
    e("s_cmp_le_u32 s%d, %d" % (PRN, NR))
    e("s_cbranch_scc1 L_round")
    E0, E1, F0, F1, D2, TA, TB = PD, PD + 1, PD + 2, PD + 3, PD + 4, PD + 5, PD + 6
    for h, (E_, F_) in enumerate(((E0, F0), (E1, F1))):
        a = PA + 4 * h
        e("s_sub_u32 s%d, s%d, s%d" % (TA, a + 3, a))
        e("s_sub_u32 s%d, s%d, s%d" % (TB, a + 2, a + 1))
        e("s_add_u32 s%d, s%d, s%d" % (E_, TA, TB))
        e("s_sub_u32 s%d, s%d, s%d" % (F_, TA, TB))
    e("s_mov_b32 s%d, 0" % D2)
    for u in range(4):
        e("s_add_u32 s%d, s%d, s%d" % (D2, D2, PA + 4 + u))
        e("s_sub_u32 s%d, s%d, s%d" % (D2, D2, PA + u))
    e("s_sub_u32 s%d, s%d, s%d" % (E0, E0, E1))
    e("s_sub_u32 s%d, s%d, s%d" % (TA, F0, F1))
    e("s_add_u32 s%d, s%d, s%d" % (TB, F0, F1))
    e("s_bitcmp1_b32 s%d, 0" % PX)
    e("s_cselect_b32 s%d, 0, s%d" % (TA, TA))
    e("s_cselect_b32 s%d, s%d, 0" % (TB, TB))
    LIM = 65535 // NPR // 2
    SH = 2 if NPR <= 32 else 3
    for r in (E0, TA, TB):
        e("s_ashr_i32 s%d, s%d, %d" % (r, r, SH))
        e("s_min_i32 s%d, s%d, %d" % (r, r, LIM))
        e("s_max_i32 s%d, s%d, %d" % (r, r, -LIM))
        e("s_add_u32 s%d, s%d, %d" % (r, r, LIM))
    e("s_lshl_b32 s%d, s%d, 16" % (TA, TA))
    e("s_or_b32 s%d, s%d, s%d" % (E0, E0, TA))
    e("s_mov_b32 s%d, 0x01010000" % F0)
    e("s_cmp_gt_i32 s%d, %d" % (D2, P["th2"]))
    e("s_cselect_b32 s%d, 0x01000000, s%d" % (F0, F0))
    e("s_cmp_lt_i32 s%d, %d" % (D2, -P["th2"]))
    e("s_cselect_b32 s%d, 0x01020000, s%d" % (F0, F0))
    e("s_or_b32 s%d, s%d, s%d" % (TB, TB, F0))
    e("v_mov_b32 v%d, s%d" % (V_T0, E0))
    e("v_mov_b32 v%d, s%d" % (V_T1, TB))
    e("s_lshl_b32 s%d, s%d, 3" % (PE, PR))
    e("s_mov_b64 exec, 1")
    if P["cm"] == 0:
        e("buffer_atomic_add_x2 v[%d:%d], off, s[%d:%d], s%d" % (V_T0, V_T1, S_DBG, S_DBG + 3, PE))
    elif P["cm"] in (1, 2):
        e("s_and_b32 s%d, s2, 0xbf" % PE)
        if P["cm"] == 2:
            e("s_cmp_eq_u32 s%d, 0" % PP)
            e("s_cselect_b32 exec_lo, 1, 0")
        e("buffer_store_byte v%d, off, s[%d:%d], s%d sc1" % (V_T0, S_DBG, S_DBG + 3, PE))
    elif P["cm"] in (3, 5):
        e("s_lshr_b32 s%d, s2, 3" % PE)
        e("s_mul_i32 s%d, s%d, 3" % (PE, PE))
        e("s_add_u32 s%d, s%d, s%d" % (PE, PE, PP))
        if P["cm"] == 5:
            e("s_and_b32 s%d, s%d, 15" % (PE, PE))
        e("s_lshl_b32 s%d, s%d, 8" % (PE, PE))
        e("s_add_u32 s%d, s%d, 0x180000" % (PE, PE))
        e("buffer_atomic_add_x2 v[%d:%d], off, s[%d:%d], s%d" % (V_T0, V_T1, S_WS, S_WS + 3, PE))
    e("s_mov_b64 exec, -1")
    if P["dst"]:
        BT = P["dst"]
        e("s_cmp_lg_u32 s%d, 1" % PP)
        e("s_cbranch_scc1 L_nodst")
        e("s_lshr_b32 s%d, s2, 3" % PE)
        e("s_mul_i32 s%d, s%d, %d" % (PE, PE, 192 * 1024))
        e("s_lshl_b32 s%d, s%d, 7" % (PE + 1, PJM))
        e("s_add_u32 s%d, s%d, s%d" % (PE, PE, PE + 1))
        e("s_add_u32 s%d, s%d, %d" % (PE, PE, WS_L))
        e("v_and_b32 v%d, 63, v0" % V_M)
        e("v_lshrrev_b32 v%d, 3, v%d" % (V_L, V_M))
        e("v_lshlrev_b32 v%d, 10, v%d" % (V_L, V_L))
        e("v_and_b32 v%d, 7, v%d" % (V_M, V_M))
        e("v_lshl_add_u32 v%d, v%d, 4, v%d" % (V_M, V_M, V_L))
        e("s_memrealtime s[%d:%d]" % (PT, PT + 1))
        e("s_mov_b32 s%d, 0" % PK)
        if BT < 8:
            e("s_mov_b64 exec, 0x%x" % ((1 << (8 * BT)) - 1))
        e.label("L_dst")
        e("s_memrealtime s[%d:%d]" % (PT + 2, PT + 3))
        e("s_waitcnt lgkmcnt(0)")
        e("s_sub_u32 s%d, s%d, s%d" % (PE + 1, PT + 2, PT))
        e("s_cmp_lt_i32 s%d, 0" % (PE + 1))
        e("s_cbranch_scc1 L_dst")
        for k in range(max(BT // 8, 1)):
            e("buffer_store_dwordx4 v[%d:%d], v%d, s[%d:%d], s%d offen%s" % (V_RING, V_RING + 3, V_M, S_WS, S_WS + 3, PE, P["spol"]))
            e("s_add_u32 s%d, s%d, %d" % (PE, PE, 1024 * min(BT, 8)))
        e("s_add_u32 s%d, s%d, %d" % (PT, PT, 50 * BT))
        e("s_add_u32 s%d, s%d, %d" % (PK, PK, BT))
        e("s_cmp_lt_u32 s%d, 192" % PK)
        e("s_cbranch_scc1 L_dst")
        e("s_endpgm")
        e.label("L_nodst")
    e("s_cmp_lg_u32 s%d, 0" % PP)
    e("s_cbranch_scc1 L_exitp")
    e("v_and_b32 v%d, 63, v0" % V_M)
    e("v_lshrrev_b32 v%d, 4, v%d" % (V_L, V_M))
    e("v_lshlrev_b32 v%d, 2, v%d" % (V_L, V_L))
    e("v_sub_u32 v%d, v%d, v%d" % (V_L, V_M, V_L))
    e("v_lshlrev_b32 v%d, 3, v%d" % (V_L, V_L))
    e("s_mov_b32 exec_lo, 0x0fff0fff")
    e("s_mov_b32 exec_hi, 0")
    e("s_mov_b32 s%d, 0x40000" % PK)
    e.label("L_poll")
    e("buffer_load_dwordx2 v[%d:%d], v%d, s[%d:%d], 0 offen sc1" % (V_T0, V_T1, V_L, S_DBG, S_DBG + 3))
    e("s_sub_u32 s%d, s%d, 1" % (PK, PK))
    e("s_cbranch_scc1 L_exitp")
    e("s_waitcnt vmcnt(0)")
    e("v_lshrrev_b32 v%d, 24, v%d" % (V_ZB, V_T1))
    e("v_cmp_ne_u32 vcc, %d, v%d" % (NPR, V_ZB))
    if not P["nopoll"]:
        e("s_cbranch_vccnz L_poll")
    B0 = LIM * NPR
    e("v_and_b32 v%d, 0xffff, v%d" % (V_PB, V_T0))
    e("v_subrev_u32 v%d, %d, v%d" % (V_PB, B0, V_PB))
    e("v_lshrrev_b32 v%d, 16, v%d" % (V_VS, V_T0))
    e("v_subrev_u32 v%d, %d, v%d" % (V_VS, B0, V_VS))
    e("v_and_b32 v%d, 0xffff, v%d" % (V_VZ, V_T1))
    e("v_subrev_u32 v%d, %d, v%d" % (V_VZ, B0, V_VZ))
    e("v_bfe_u32 v%d, v%d, 16, 8" % (V_ZB, V_T1))
    e("v_subrev_u32 v%d, %d, v%d" % (V_ZB, NPR, V_ZB))
    e("v_cmp_lt_i32 vcc, 0, v%d" % V_ZB)
    e("v_sub_u32 v%d, 0, v%d" % (V_T0, V_VS))
    e("v_cndmask_b32 v%d, v%d, v%d, vcc" % (V_VS, V_VS, V_T0))
    e("v_add_u32 v%d, v%d, v%d" % (V_VS, V_VS, V_VZ))
    e("v_sub_u32 v%d, 0, v%d" % (V_T0, V_PB))
    e("v_cndmask_b32 v%d, v%d, v%d, vcc" % (V_PB, V_PB, V_T0))
    e("v_cndmask_b32 v%d, 0, 2, vcc" % V_T1)
    e("v_lshrrev_b32 v%d, 31, v%d" % (V_PB, V_PB))
    e("v_lshrrev_b32 v%d, 31, v%d" % (V_VS, V_VS))
    e("v_lshl_or_b32 v%d, v%d, 2, v%d" % (V_T1, V_VS, V_T1))
    e("v_or_b32 v%d, v%d, v%d" % (V_T1, V_T1, V_PB))
    e("v_add_u32 v%d, %d, v%d" % (V_ZB, NPR // 2 - 1, V_ZB))
    e("v_cmp_gt_u32 vcc, %d, v%d" % (NPR - 1, V_ZB))
    e("v_cndmask_b32 v%d, 0, 8, vcc" % V_T0)
    e("v_or_b32 v%d, v%d, v%d" % (V_T1, V_T1, V_T0))
    e("s_lshr_b32 s%d, s%d, 1" % (PE, PLAM))
    e("s_and_b32 s%d, s%d, 1" % (PE + 1, PLAM))
    e("s_lshl_b32 s%d, s%d, 2" % (PE + 1, PE + 1))
    e("s_or_b32 s%d, s%d, s%d" % (PE, PE, PE + 1))
    e("v_xor_b32 v%d, s%d, v%d" % (V_T1, PE, V_T1))
    e("v_and_b32 v%d, 7, v%d" % (V_T0, V_M))
    e("v_lshlrev_b32 v%d, 2, v%d" % (V_T0, V_T0))
    e("v_lshlrev_b32 v%d, v%d, v%d" % (V_T1, V_T0, V_T1))
    e("v_lshrrev_b32 v%d, 3, v%d" % (V_T0, V_M))
    e("v_lshlrev_b32 v%d, 2, v%d" % (V_T0, V_T0))
    e("ds_or_b32 v%d, v%d offset:%d" % (V_T0, V_T1, LDS_TAB))
    e("s_mov_b64 exec, 1")
    e("v_mov_b32 v%d, 1" % V_VS)
    e("v_mov_b32 v%d, s%d" % (V_VZ, PRK))
    e("ds_write_b64 v%d, v[%d:%d] offset:%d" % (V_T0, V_VS, V_VZ, LDS_SLOT))
    e("s_waitcnt lgkmcnt(0)")
    e.lines.append("L_exitp:")
    e("s_endpgm")

    RPW = 8
    k2 = NAME + "_kernel"
    e.lines.append(".globl %s" % k2)
    e.lines.append(".p2align 8")
    e.lines.append(".type %s,@function" % k2)
    e.lines.append(k2 + ":")
    e.wr = {}; e.tr = {}
    e("s_cmp_ge_u32 s2, %d" % H)
    e("s_cbranch_scc1 L_exit2")
    e("s_load_dwordx2 s[4:5], s[0:1], 56")
    e("s_load_dwordx2 s[6:7], s[0:1], 72")
    e("v_lshlrev_b32 v1, 2, v0")
    e("v_mov_b32 v2, 0")
    e("s_mul_i32 s16, s2, %d" % (RPW * PART_STRIDE))
    e("s_mov_b32 s10, %d" % (NWG * PART_STRIDE))
    e("s_mov_b32 s11, 0x00020000")
    e("s_mov_b32 s14, %d" % (H * DH * 2))
    e("s_mov_b32 s15, 0x00020000")
    e("s_add_u32 s17, s16, %d" % (4 * PART_STRIDE))
    e("s_waitcnt lgkmcnt(0)")
    e("s_mov_b32 s8, s6")
    e("s_and_b32 s9, s7, 0xffff")
    e("s_mov_b32 s12, s4")
    e("s_and_b32 s13, s5, 0xffff")
    MLB = 8
    OB = MLB + 2 * RPW
    for s in range(RPW):
        so = 16 + s // 4
        e("buffer_load_dwordx2 v[%d:%d], v2, s[8:11], s%d offen offset:%d" %
          (MLB + 2 * s, MLB + 2 * s + 1, so, (s % 4) * PART_STRIDE + DH * 4))
        e("buffer_load_dword v%d, v1, s[8:11], s%d offen offset:%d" % (OB + s, so, (s % 4) * PART_STRIDE))
    e("s_waitcnt vmcnt(0)")
    e("v_mov_b32 v4, v%d" % MLB)
    for s in range(1, RPW):
        e("v_max_f32 v4, v4, v%d" % (MLB + 2 * s))
    for s in range(RPW):
        e("v_sub_f32 v%d, v%d, v4" % (MLB + 2 * s, MLB + 2 * s))
    for s in range(RPW):
        e("v_exp_f32 v%d, v%d" % (MLB + 2 * s, MLB + 2 * s))
    e("v_mul_f32 v5, v%d, v%d" % (MLB, MLB + 1))
    e("v_mul_f32 v6, v%d, v%d" % (MLB, OB))
    for s in range(1, RPW):
        e("v_fmac_f32 v5, v%d, v%d" % (MLB + 2 * s, MLB + 2 * s + 1))
        e("v_fmac_f32 v6, v%d, v%d" % (MLB + 2 * s, OB + s))
    e("v_rcp_f32 v5, v5")
    e("v_mul_f32 v6, v6, v5")
    e("v_cvt_pk_bf16_f32 v6, v6, v6")
    e("s_mul_i32 s16, s2, %d" % (DH * 2))
    e("v_lshrrev_b32 v1, 1, v1")
    e("buffer_store_short v6, v1, s[12:15], s16 offen")
    e.lines.append("L_exit2:")
    e("s_endpgm")
    NV2 = OB + RPW

    def kd(name, nv, ns):
        acc = (nv + 3) // 4 * 4
        return """.amdhsa_kernel %s
  .amdhsa_next_free_vgpr %d
  .amdhsa_next_free_sgpr %d
  .amdhsa_accum_offset %d
  .amdhsa_group_segment_fixed_size 0
  .amdhsa_kernarg_size 80
  .amdhsa_user_sgpr_count 2
  .amdhsa_user_sgpr_kernarg_segment_ptr 1
  .amdhsa_system_sgpr_workgroup_id_x 1
.end_amdhsa_kernel
""" % (name, nv, ns, acc)

    out = HEADER.replace("gen.py", "gen4.py").format(params=" ".join("%s=%s" % kv for kv in sorted(P.items())))
    out += "; @launch kernel=%s grid=(%d,1,1) block=(%d,1,1) lds=%d\n" % (k1, NWG, (NW + NP) * 64, LDS1)
    out += "; @launch kernel=%s grid=(%d,1,1) block=(%d,1,1) lds=%d\n" % (k2, H, DH, 0)
    out += '.amdgcn_target "amdgcn-amd-amdhsa--gfx950"\n.text\n'
    out += e.text()
    out += '.section .rodata,"a"\n.p2align 6\n'
    out += kd(k1, NVGPR, 102)
    out += ".p2align 6\n"
    out += kd(k2, NV2, 24)
    return out


DEFAULTS = dict(np=3, grp="9-9", n0=6, nr=2, nt="nt", ldspad=0, stamp=0, xkp=0, force=0, clip=1400, l2t=290, th2=300, full=1, cm=0, norank=0, seg=0, dst=0, nopoll=0, lpol=" sc1", spol=" sc1")


def main():
    P = dict(DEFAULTS)
    outp = None
    args = sys.argv[1:]
    i = 0
    while i < len(args):
        a = args[i]
        if a == "-o":
            outp = args[i + 1]; i += 2; continue
        k, v = a.split("=", 1)
        assert k in P, k
        P[k] = type(P[k])(v.replace("+", " ")) if isinstance(P[k], str) else int(v)
        i += 1
    s = gen(P)
    if outp:
        open(outp, "w").write(s)
    else:
        sys.stdout.write(s)


if __name__ == "__main__":
    main()
```

```python
import re
import sys
import math
from gen import f32hex, HEADER, NAME, H, SKV, DH, G, NGRP, ROWB, HEADB
from gen4 import Emit4

PART_STRIDE = 1024
NW = 4
NH = 3
NWG = 256
NT = 48
WS_G = 0x100000
WS_MB = 0x110000
WS_B = 0x120000
WS_L = 2 << 20
WS_SIZE = 8 << 20
BIGNEG = 0xf149f2ca
NPR = 48


def gen(P):
    GR = [int(x) for x in P["grp"].split("-")]
    assert sum(GR) == 18 and len(GR) >= 2
    NG = len(GR)
    GOFF = [sum(GR[:k]) for k in range(NG)]
    N0 = P["n0"]
    NR = P["nr"]
    F1 = P["f1"]
    assert 1 <= N0 < 16 and 1 <= NR <= 7 and F1 in (16, 32) and F1 + 1 != N0
    pol = (" " + P["nt"]) if P["nt"] else ""
    C = (DH ** -0.5) * math.log2(math.e)
    L_TAB = 0
    L_TABP = 24
    L_CF = 40
    L_FD = 48
    L_CA = 52
    L_ML = 64
    L_LG = 256
    L_PV = L_LG + 192 * 128
    L_ACC = L_PV + 192 * 128
    LDS1 = max(L_ACC + 3 * NW * ROWB, P["ldspad"])

    e = Emit4()
    V_T = 1; V_J16 = 2; V_J8 = 3; V_LB0 = 4; V_PB0 = 5; V_PV = 6; V_PVN = 7; V_DO = 8; V_PO = 9; V_T0 = 10; V_T1 = 11
    V_ACC = 12; V_W = 24; V_RAW = 36
    V_OFF = 48; V_OFF6 = 49; V_LON = 50; V_BIG = 51; V_T2 = 52; V_Z = 53
    V_S = 54
    V_D = 60
    V_RING = 64
    NVGPR = V_RING + 72
    S_G = 3; S_M = 4; S_N = 5; S_SPIN = 6; S_LDC = 7
    S_K = 8; S_V = 12; S_KS = 16; S_Q = 20; S_WS = 24
    S_WAVE = 28; S_CI = 29; S_I = 30; S_QOFF = 31
    S_T = 32
    S_EV = 40; S_STM = 42; S_HB = 44; S_768 = 45; S_384 = 46; S_MAGIC = 47
    S_FX = 48; S_FLO = 49; S_XB = 50; S_ST16 = 51; S_LS = 52; S_LB = 53
    S_ST = 54; S_DBG = 56

    k1 = "part_kernel"
    e.lines.append(".globl %s" % k1)
    e.lines.append(".p2align 8")
    e.lines.append(".type %s,@function" % k1)
    e.lines.append(k1 + ":")
    e("s_cmp_ge_u32 s2, %d" % NWG)
    e("s_cbranch_scc1 L_exit1")
    e("s_load_dwordx16 s[64:79], s[0:1], 0")
    e("s_load_dwordx4 s[80:83], s[0:1], 64")
    if P["stamp"]:
        e("s_memrealtime s[%d:%d]" % (S_ST, S_ST + 1))
    e("v_lshrrev_b32 v%d, 6, v0" % V_T0)
    e("v_and_b32 v%d, 63, v0" % V_T1)
    e("v_readfirstlane_b32 s%d, v%d" % (S_WAVE, V_T0))
    e("s_lshr_b32 s%d, s2, 3" % S_G)
    e("s_and_b32 s%d, s2, 7" % S_M)
    e("s_cmp_ge_u32 s%d, %d" % (S_WAVE, NW))
    e("s_cbranch_scc1 L_helper")

    def srd(dst, ptr, nbytes):
        e("s_mov_b32 s%d, s%d" % (dst, ptr))
        e("s_and_b32 s%d, s%d, 0xffff" % (dst + 1, ptr + 1))
        e("s_mov_b32 s%d, %d" % (dst + 2, nbytes))
        e("s_mov_b32 s%d, 0x00020000" % (dst + 3))

    def set_lam(lam, kind):
        e("s_lshl_b32 s%d, s%d, 6" % (S_FX, lam))
        e("s_add_u32 s%d, s%d, 1" % (S_FX, S_FX))
        if kind == "K":
            e("s_and_b32 s%d, s%d, 1" % (S_FLO, lam))
            e("s_lshl_b32 s%d, s%d, 9" % (S_FLO, S_FLO))
            e("s_lshr_b32 s%d, s%d, 1" % (S_T + 5, lam))
            e("s_lshl_b32 s%d, s%d, 5" % (S_T + 5, S_T + 5))
            e("s_add_u32 s%d, s%d, s%d" % (S_FLO, S_FLO, S_T + 5))

    def lds_wait(tag, vz, vt, st, off, cond, spin, vaddr=None):
        e("s_mov_b32 s%d, 0x100000" % spin)
        e.label("L_w" + tag)
        e("ds_read_b32 v%d, v%d offset:%d" % (vt, vz if vaddr is None else vaddr, off))
        e("s_sub_u32 s%d, s%d, 1" % (spin, spin))
        e("s_cbranch_scc1 L_exit1")
        e("s_waitcnt lgkmcnt(0)")
        e("v_readfirstlane_b32 s%d, v%d" % (st, vt))
        if cond == "nz":
            e("s_cmp_eq_u32 s%d, 0" % st)
        else:
            e("s_cmp_lt_u32 s%d, %s" % (st, cond))
        e("s_cbranch_scc1 L_w" + tag)

    def get_table(kind, tag):
        e("s_lshr_b32 s%d, s%d, 4" % (S_T + 1, S_I))
        e("s_lshl_b32 s%d, s%d, 2" % (S_T + 2, S_T + 1))
        e("v_mov_b32 v%d, s%d" % (V_T1, S_T + 2))
        lds_wait(tag, V_Z, V_T0, S_T, L_TAB + (0 if kind == "K" else 12), "nz", S_SPIN, V_T1)
        e("s_and_b32 s%d, s%d, 15" % (S_N, S_T))
        e("s_bfe_u32 s%d, s%d, 0x30008" % (S_T, S_T))
        set_lam(S_T, kind)
        if kind == "K":
            set_q(S_T + 1)

    def set_q(ph):
        e("s_lshl_b32 s%d, s%d, 5" % (S_QOFF, ph))
        e("s_add_u32 s%d, s%d, s%d" % (S_QOFF, S_QOFF, S_G))
        e("s_mul_i32 s%d, s%d, 171" % (S_QOFF, S_QOFF))
        e("s_lshr_b32 s%d, s%d, 9" % (S_QOFF, S_QOFF))
        e("s_mul_i32 s%d, s%d, %d" % (S_QOFF, S_QOFF, DH * 2))

    def tile_addr(kind):
        ch, a, b = S_T, S_T + 1, S_T + 2
        e("s_lshr_b32 s%d, s%d, 6" % (a, S_CI))
        e("s_lshl_b32 s%d, s%d, 11" % (a, a))
        e("s_and_b32 s%d, s%d, 63" % (ch, S_CI))
        e("s_add_u32 s%d, s%d, s%d" % (ch, ch, a))
        e("s_add_u32 s%d, s%d, s%d" % (ch, ch, S_HB))
        e("s_bfe_u32 s%d, s%d, 0x20003" % (a, ch))
        e("s_and_b32 s%d, s%d, 4" % (b, ch))
        e("s_or_b32 s%d, s%d, s%d" % (a, a, b))
        e("s_xor_b32 s%d, s%d, s%d" % (a, a, S_N))
        e("s_and_b32 s%d, s%d, 7" % (a, a))
        if kind == "K":
            e("s_lshl_b32 s%d, s%d, 7" % (b, a))
        e("s_lshl_b32 s%d, s%d, 4" % (a, a))
        e("s_add_u32 s%d, s%d, 1" % (a, a))
        e("s_bitcmp1_b32 s%d, 3" % S_N)
        e("s_cselect_b32 s%d, s%d, s%d" % (a, S_FX, a))
        e("s_cselect_b32 s%d, 16, 128" % S_ST16)
        if kind == "K":
            e("s_cselect_b32 s%d, s%d, s%d" % (b, S_FLO, b))
            e("s_cselect_b32 s%d, 128, 32" % S_LS)
        e("s_lshl_b32 s%d, s%d, 9" % (S_XB, ch))
        e("s_add_u32 s%d, s%d, s%d" % (S_XB, S_XB, a))
        if kind == "K":
            e("s_lshl_b32 s%d, s%d, 10" % (S_LB, ch))
            e("s_add_u32 s%d, s%d, s%d" % (S_LB, S_LB, b))
            e("s_add_u32 s%d, s%d, %d" % (S_LB, S_LB, WS_L))
        else:
            e("s_lshl_b32 s%d, s%d, 7" % (S_LB, S_CI))
        e("v_mul_u32_u24 v%d, s%d, v%d" % (V_T0, S_ST16, V_T))
        e("v_add_u32 v%d, s%d, v%d" % (V_T0, S_XB, V_T0))
        e("v_mul_hi_u32 v%d, v%d, s%d" % (V_T0, V_T0, S_MAGIC))
        e("v_lshrrev_b32 v%d, 1, v%d" % (V_T0, V_T0))
        e("v_and_b32 v%d, 15, v%d" % (V_T1, V_T0))
        e("v_cmp_eq_u32 vcc, 5, v%d" % V_T1)
        e("v_mad_u32_u24 v%d, v%d, s%d, v%d" % (V_OFF, V_T0, S_768, V_J16))
        e("v_add_u32 v%d, %d, v%d" % (V_T1, 5 * ROWB, V_OFF))
        e("v_cndmask_b32 v%d, v%d, v%d, vcc" % (V_OFF6, V_BIG, V_T1))
        if kind == "K":
            e("v_lshrrev_b32 v%d, 6, v%d" % (V_T0, V_T0))
            e("v_mad_u32_u24 v%d, v%d, s%d, v%d" % (V_PO, V_T0, S_384, V_J8))
            e("v_mul_u32_u24 v%d, s%d, v%d" % (V_LON, S_LS, V_T))
            e("v_add_u32 v%d, s%d, v%d" % (V_LON, S_LB, V_LON))
        else:
            e("v_add_u32 v%d, s%d, v%d" % (V_T0, S_LB, V_PB0))

    def issue_params(kind):
        if kind == "K":
            for k, (sr, vo, so) in enumerate(((S_Q, V_J8, "s%d" % S_QOFF), (S_KS, V_PO, "0"))):
                if P["xkp"] & (1 << k):
                    continue
                for c in range(3):
                    r = V_RAW + 6 * k + 2 * c
                    e.vmem("buffer_load_dwordx2 v[%d:%d], v%d, s[%d:%d], %s offen offset:%d" %
                           (r, r + 1, vo, sr, sr + 3, so, c * 128), "p")
        else:
            e("ds_read_b32 v%d, v%d" % (V_PVN, V_T0))

    def issue_group(k, kind):
        srdb = S_K if kind == "K" else S_V
        for l in range(GOFF[k], GOFF[k] + GR[k]):
            r = V_RING + l * 4
            if l < 15:
                vo, off = V_OFF, l * 256
            else:
                vo, off = V_OFF6, (l - 15) * 256
            e.vmem("buffer_load_dwordx4 v[%d:%d], v%d, s[%d:%d], 0 offen offset:%d%s" %
                   (r, r + 3, vo, srdb, srdb + 3, off, pol), "g%d" % k)

    def compute_w():
        e.wait_tag("p")
        for p in range(6):
            rq = V_RAW + p; rs = V_RAW + 6 + p
            i0 = 2 * p
            e("v_lshlrev_b32 v%d, 16, v%d" % (V_T0, rq))
            e("v_lshlrev_b32 v%d, 16, v%d" % (V_W + i0, rs))
            e("v_and_b32 v%d, 0xffff0000, v%d" % (V_T1, rq))
            e("v_and_b32 v%d, 0xffff0000, v%d" % (V_W + i0 + 1, rs))
            e("v_mul_f32 v%d, v%d, v%d" % (V_W + i0, V_W + i0, V_T0))
            e("v_mul_f32 v%d, v%d, v%d" % (V_W + i0 + 1, V_W + i0 + 1, V_T1))

    def next_slot():
        e("v_mov_b32_dpp v%d, v%d quad_perm:[0,1,2,3] row_mask:0xf bank_mask:0x8" % (V_D, V_LON))
        e("s_lshl_b32 s%d, s%d, 7" % (S_LDC, S_CI))

    def body(kind, to_v=False):
        nkind = "V" if to_v else kind
        for k in range(NG):
            e.wait_tag("g%d" % k)
            if k + 1 < NG:
                issue_group(k + 1, kind)
            else:
                issue_group(0, nkind)
            if k == NG - 2:
                if to_v:
                    e("s_mov_b32 s%d, s%d" % (S_CI, S_WAVE))
                    e("s_mov_b32 s%d, 0" % S_I)
                    get_table("V", "tv")
                    ev = (1 << 16) | (1 << 32)
                    e("s_mov_b32 s%d, 0x%x" % (S_EV, ev & 0xffffffff))
                    e("s_mov_b32 s%d, 0x%x" % (S_EV + 1, ev >> 32))
                else:
                    e("s_add_u32 s%d, s%d, %d" % (S_CI, S_CI, NW))
                    e("s_add_u32 s%d, s%d, 1" % (S_I, S_I))
                    e("s_bitcmp1_b64 s[%d:%d], s%d" % (S_EV, S_EV + 1, S_I))
                    e("s_cbranch_scc1 L_ev%s" % kind)
                    e.flush()
                    e.label("L_evret%s" % kind)
                if P["stamp"] == 4:
                    e("s_memrealtime s[%d:%d]" % (S_DBG, S_DBG + 1))
                    e("s_add_u32 s%d, s%d, 4" % (S_DBG + 2, S_DBG + 2))
                    e("s_waitcnt lgkmcnt(0)")
                    e("v_mov_b32 v%d, s%d" % (V_T2, S_DBG))
                    e("s_mov_b64 exec, 1")
                    e("buffer_store_dword v%d, off, s[%d:%d], s%d" % (V_T2, S_WS, S_WS + 3, S_DBG + 2))
                    e("s_mov_b64 exec, -1")
                tile_addr(nkind)
                issue_params(nkind)
            for l in range(GOFF[k], GOFF[k] + GR[k]):
                q, c = l // 3, l % 3
                base = V_RING + l * 4
                for r in range(4):
                    e("v_cvt_f32_i32 v%d, v%d" % (base + r, base + r))
                if kind == "K":
                    s = V_S + q
                    for r in range(4):
                        if c == 0 and r == 0:
                            e("v_mul_f32 v%d, v%d, v%d" % (s, base, V_W))
                        else:
                            e("v_fmac_f32 v%d, v%d, v%d" % (s, base + r, V_W + 4 * c + r))
                    if c == 2:
                        e.defer(["v_add_f32_dpp v%d, v%d, v%d row_ror:%d row_mask:0xf bank_mask:0xf" % (s, s, s, kk)
                                 for kk in (8, 4, 2)] +
                                ["v_add_f32_dpp v%d, v%d, v%d row_ror:1 row_mask:0xf bank_mask:0x%x" %
                                 (V_D + (q & 1), s, s, 1 << (q >> 1))])
                else:
                    for r in range(4):
                        e("v_fmac_f32_dpp v%d, v%d, v%d row_newbcast:%d row_mask:0xf bank_mask:0xf" %
                          (V_ACC + 4 * c + r, V_PV, base + r, q))
            e.flush()
        if kind == "K":
            e("v_add_u32 v%d, s%d, v%d" % (V_T0, S_LDC, V_LB0))
            e("s_mov_b64 exec, s[%d:%d]" % (S_STM, S_STM + 1))
            e("ds_write_b64 v%d, v[%d:%d]" % (V_T0, V_D, V_D + 1))
            e("s_mov_b64 exec, -1")
            if not to_v:
                next_slot()
                compute_w()
        if nkind == "V":
            e("s_waitcnt lgkmcnt(0)")
            e("v_mov_b32 v%d, v%d" % (V_PV, V_PVN))

    def lds_inc(off, vz, vt):
        e("v_mov_b32 v%d, 1" % vt)
        e("s_mov_b64 exec, 1")
        e("ds_add_u32 v%d, v%d offset:%d" % (vz, vt, off))
        e("s_mov_b64 exec, -1")

    e("v_lshrrev_b32 v%d, 4, v%d" % (V_T, V_T1))
    e("v_and_b32 v%d, 15, v%d" % (V_T2, V_T1))
    e("v_lshlrev_b32 v%d, 4, v%d" % (V_J16, V_T2))
    e("v_lshlrev_b32 v%d, 3, v%d" % (V_J8, V_T2))
    e("s_mov_b32 s%d, %d" % (S_768, ROWB))
    e("s_mov_b32 s%d, %d" % (S_384, DH * 2))
    e("s_mov_b32 s%d, 0xaaaaaaab" % S_MAGIC)
    e("v_mov_b32 v%d, 0xc0000000" % V_BIG)
    e("s_lshl_b32 s%d, s%d, 6" % (S_HB, S_G))
    set_lam(S_M, "K")
    e("s_mov_b32 s%d, 8" % S_N)
    e("s_mov_b32 s%d, s%d" % (S_CI, S_WAVE))
    tile_addr("K")
    e("s_waitcnt lgkmcnt(0)")
    srd(S_K, 66, H * HEADB)
    issue_group(0, "K")
    e("s_mov_b32 s%d, 0" % S_I)
    set_q(S_I)
    srd(S_Q, 64, H * DH * 2)
    srd(S_KS, 70, H * NGRP * DH * 2)
    issue_params("K")
    srd(S_V, 68, H * HEADB)
    if P["stamp"]:
        srd(S_WS, 82, 0x8000000)
    if P["stamp"] == 4:
        e("s_mul_i32 s%d, s2, %d" % (S_DBG + 2, NW))
        e("s_add_u32 s%d, s%d, s%d" % (S_DBG + 2, S_DBG + 2, S_WAVE))
        e("s_lshl_b32 s%d, s%d, 9" % (S_DBG + 2, S_DBG + 2))
        e("s_add_u32 s%d, s%d, 0x4010000" % (S_DBG + 2, S_DBG + 2))
    e("v_lshlrev_b32 v%d, 5, v%d" % (V_T1, V_T))
    e("v_lshrrev_b32 v%d, 2, v%d" % (V_LB0, V_T2))
    e("v_lshl_add_u32 v%d, v%d, 3, v%d" % (V_LB0, V_LB0, V_T1))
    e("v_add_u32 v%d, %d, v%d" % (V_LB0, L_LG, V_LB0))
    e("v_and_b32 v%d, 7, v%d" % (V_PB0, V_T2))
    e("v_lshl_add_u32 v%d, v%d, 2, v%d" % (V_PB0, V_PB0, V_T1))
    e("v_add_u32 v%d, %d, v%d" % (V_PB0, L_PV, V_PB0))
    e("v_lshlrev_b32 v%d, 2, v%d" % (V_DO, V_T))
    e("v_add_u32 v%d, v%d, v%d" % (V_DO, V_J16, V_DO))
    e("s_mul_i32 s%d, s%d, %d" % (S_T, S_WAVE, ROWB))
    e("s_add_u32 s%d, s%d, %d" % (S_T, S_T, L_ACC))
    e("v_add_u32 v%d, s%d, v%d" % (V_DO, S_T, V_DO))
    e("v_mov_b32 v%d, 0" % V_Z)
    e("v_mov_b32 v%d, 0" % V_D)
    e("v_mov_b32 v%d, 0" % (V_D + 1))
    e("s_mov_b32 s%d, 0x11111111" % S_STM)
    e("s_mov_b32 s%d, 0x11111111" % (S_STM + 1))
    ev = (1 << N0) | (1 << 16) | (1 << 32) | (1 << (F1 + 1))
    e("s_mov_b32 s%d, 0x%x" % (S_EV, ev & 0xffffffff))
    e("s_mov_b32 s%d, 0x%x" % (S_EV + 1, ev >> 32))
    next_slot()
    for i in range(12):
        e("v_mov_b32 v%d, 0" % (V_ACC + i))
    e("s_barrier")
    compute_w()
    steady = ["g0"] * GR[0]
    e.vm = list(steady)
    e.lines.append(".p2align 6")
    e.label("L_kloop")
    body("K")
    assert e.vm == steady, (e.vm, steady)
    e("s_cmp_lg_u32 s%d, %d" % (S_I, NT - 1))
    e("s_cbranch_scc1 L_kloop")
    body("K", True)
    lds_inc(L_CF + 4, V_Z, V_T1)
    if P["stamp"] == 1:
        e("s_memrealtime s[%d:%d]" % (S_DBG, S_DBG + 1))
    e.lines.append(".p2align 6")
    e.label("L_vloop")
    body("V")
    assert e.vm == steady, (e.vm, steady)
    e("s_and_b32 s%d, s%d, 15" % (S_T, S_I))
    e("s_cbranch_scc1 L_vloop")
    for c in range(3):
        a = V_ACC + 4 * c
        e("v_permlane32_swap_b32 v%d, v%d" % (a, a + 2))
        e("v_permlane32_swap_b32 v%d, v%d" % (a + 1, a + 3))
    for c in range(3):
        a = V_ACC + 4 * c
        e("v_add_f32 v%d, v%d, v%d" % (a, a, a + 2))
        e("v_add_f32 v%d, v%d, v%d" % (a + 1, a + 1, a + 3))
    for c in range(3):
        a = V_ACC + 4 * c
        e("v_permlane16_swap_b32 v%d, v%d" % (a, a + 1))
    e("s_lshr_b32 s%d, s%d, 2" % (S_T, S_I))
    e("v_mov_b32 v%d, s%d" % (V_T0, S_T))
    for c in range(3):
        a = V_ACC + 4 * c
        e("v_add_f32 v%d, v%d, v%d" % (a, a, a + 1))
        e("ds_write_b32 v%d, v%d offset:%d" % (V_DO, a, c * 256))
    lds_inc(L_CA - 4, V_T0, V_T1)
    e("v_add_u32 v%d, %d, v%d" % (V_DO, NW * ROWB, V_DO))
    for i in range(12):
        e("v_mov_b32 v%d, 0" % (V_ACC + i))
    e("s_cmp_lg_u32 s%d, %d" % (S_I, NT))
    e("s_cbranch_scc1 L_vloop")
    if P["stamp"]:
        e("s_memrealtime s[%d:%d]" % (S_T + 2, S_T + 3))
        e("s_getreg_b32 s%d, hwreg(HW_REG_XCC_ID)" % (S_T + 4))
        e("s_waitcnt lgkmcnt(0)")
        e("v_mov_b32 v%d, s%d" % (V_ACC + 0, S_ST))
        e("v_mov_b32 v%d, s%d" % (V_ACC + 1, S_T + 2))
        e("v_mov_b32 v%d, s%d" % (V_ACC + 2, S_T + 4))
        e("v_mov_b32 v%d, s%d" % (V_ACC + 3, S_DBG))
        e("s_mul_i32 s%d, s2, %d" % (S_T, NW))
        e("s_add_u32 s%d, s%d, s%d" % (S_T, S_T, S_WAVE))
        e("s_lshl_b32 s%d, s%d, 4" % (S_T, S_T))
        e("s_add_u32 s%d, s%d, 0x4000000" % (S_T, S_T))
        e("buffer_store_dwordx4 v[%d:%d], v%d, s[%d:%d], s%d offen" % (V_ACC, V_ACC + 3, V_Z, S_WS, S_WS + 3, S_T))
    e.lines.append("L_exit1:")
    e("s_endpgm")

    e.label("L_evK")
    e("s_cmp_eq_u32 s%d, %d" % (S_I, F1 + 1))
    e("s_cbranch_scc0 L_evK2")
    lds_inc(L_CF, V_Z, V_T1)
    e("s_branch L_evretK")
    e.label("L_evK2")
    if P["stamp"] == 2:
        e("s_cmp_eq_u32 s%d, %d" % (S_I, N0))
        e("s_cbranch_scc0 L_ns2")
        e("s_memrealtime s[%d:%d]" % (S_DBG, S_DBG + 1))
        e.label("L_ns2")
    get_table("K", "tk")
    if P["stamp"] == 3:
        e("s_cmp_eq_u32 s%d, %d" % (S_I, N0))
        e("s_cbranch_scc0 L_evretK")
        e("s_memrealtime s[%d:%d]" % (S_DBG, S_DBG + 1))
    e("s_branch L_evretK")
    e.label("L_evV")
    get_table("V", "tv2")
    e("s_branch L_evretV")

    PG = S_G; PM = S_M
    PX = 5; PP = 6; PBK = 7
    PB = 8; PWS = 12; PDB = 16
    PO = 20; PLAM = 21; PBASE = 22
    PD = 24
    POF = 32
    PT = 40
    PMN = 44; PJ = 45; PRN = 46; PK = 47
    PE = 48
    PRB = 56; PMB = 58; PGL = 59; PSP = 60; PPH = 61; PSG = 62; PG0 = 63
    PA = 84
    PS2 = 92; PS3 = 96
    HL = 1; HZ = 2; HW = 3; HA = 4; HB_ = 5; HC = 6; HD = 7; HLO = 8; HHI = 9; HE = 10; HF = 11; HR = 12; HG = 13
    HX = 16
    e.wr = {}; e.tr = {}
    e.label("L_helper")
    e("s_sub_u32 s%d, s%d, %d" % (PP, S_WAVE, NW))
    e("s_getreg_b32 s%d, hwreg(HW_REG_XCC_ID)" % PX)
    e("s_and_b32 s%d, s%d, 7" % (PX, PX))
    e("v_mov_b32 v%d, v%d" % (HL, V_T1))
    e("v_mov_b32 v%d, 0" % HZ)
    e("s_lshr_b32 s%d, s%d, 2" % (PE, PG))
    e("s_mul_i32 s%d, s%d, 3" % (PE, PE))
    e("s_add_u32 s%d, s%d, s%d" % (PE, PE, PP))
    e("s_and_b32 s%d, s%d, 3" % (PO, PG))
    e("s_lshl_b32 s%d, s%d, 5" % (PO, PO))
    e("s_bfe_u32 s%d, s%d, 0x30001" % (PE + 1, PE))
    e("s_lshl_b32 s%d, s%d, 2" % (PE + 1, PE + 1))
    e("s_add_u32 s%d, s%d, s%d" % (PO, PO, PE + 1))
    e("s_and_b32 s%d, s%d, 1" % (PE + 2, PE))
    e("s_add_u32 s%d, s%d, s%d" % (PO, PO, PE + 2))
    e("s_add_u32 s%d, s%d, 2" % (PO, PO))
    e("s_lshl_b32 s%d, s%d, 21" % (PO, PO))
    e("s_lshr_b32 s%d, s%d, 4" % (PE + 1, PE))
    e("s_lshl_b32 s%d, s%d, 15" % (PE + 1, PE + 1))
    e("s_add_u32 s%d, s%d, s%d" % (PO, PO, PE + 1))
    e("s_lshl_b32 s%d, s%d, 2" % (PE, PE + 2))
    e("s_xor_b32 s%d, s%d, s%d" % (PE, PE, PX))
    e("s_lshr_b32 s%d, s%d, 1" % (PE + 1, PE))
    e("s_lshl_b32 s%d, s%d, 12" % (PE + 1, PE + 1))
    e("s_and_b32 s%d, s%d, 1" % (PE, PE))
    e("s_lshl_b32 s%d, s%d, 14" % (PE, PE))
    e("s_or_b32 s%d, s%d, s%d" % (PE, PE, PE + 1))
    for u in range(8):
        e("s_xor_b32 s%d, s%d, 0x%x" % (POF + u, PE, ((u >> 1) << 12) | ((u & 1) << 14)))
    e("v_and_b32 v%d, 7, v%d" % (HW, HL))
    e("v_lshlrev_b32 v%d, 12, v%d" % (HW, HW))
    e("s_lshl_b32 s%d, s%d, 8" % (PE, PM))
    e("v_add_u32 v%d, s%d, v%d" % (HW, PE, HW))
    e("s_and_b32 s%d, s%d, 3" % (PMB, PG))
    e("s_lshl_b32 s%d, s%d, 2" % (PMB, PMB))
    e("s_lshr_b32 s%d, s%d, 3" % (PE, PG))
    e("s_add_u32 s%d, s%d, s%d" % (PMB, PMB, PE))
    e("s_lshl_b32 s%d, s%d, 8" % (PMB, PMB))
    e("s_add_u32 s%d, s%d, %d" % (PMB, PMB, WS_MB))
    e("s_lshl_b32 s%d, s%d, 6" % (PGL, PG))
    e("s_add_u32 s%d, s%d, %d" % (PGL, PGL, WS_G))
    e("s_mov_b32 s%d, 0" % PBK)
    e("s_mov_b32 s%d, s%d" % (PLAM, PM))
    e("s_mov_b32 s%d, %d" % (PB + 2, H * HEADB))
    e("s_mov_b32 s%d, 0x00020000" % (PB + 3))
    e("s_waitcnt lgkmcnt(0)")

    def sel(blk, lo, hi, off):
        e("s_cmp_ge_u32 s%d, 3" % blk)
        e("s_cselect_b32 s%d, s68, s66" % lo)
        e("s_cselect_b32 s%d, s69, s67" % hi)
        e("s_cselect_b32 s%d, 3, 0" % off)
        e("s_sub_u32 s%d, s%d, s%d" % (off, blk, off))
        e("s_lshl_b32 s%d, s%d, 28" % (off, off))
        e("s_add_u32 s%d, s%d, s%d" % (off, off, PO))

    def warm(blk):
        sel(blk, PB, PB + 1, PE)
        e("s_and_b32 s%d, s%d, 0xffff" % (PB + 1, PB + 1))
        e("s_mov_b64 exec, 0xff")
        e("buffer_load_dword v%d, v%d, s[%d:%d], s%d offen" % (HA, HW, PB, PB + 3, PE))
        e("s_mov_b64 exec, -1")

    warm(PBK)
    srd(PWS, 82, WS_SIZE)
    srd(PDB, 80, 256)
    e("s_lshl_b32 s%d, s2, 2" % PK)
    e("s_add_u32 s%d, s%d, s%d" % (PK, PK, PP))
    e("s_cmp_lg_u32 s%d, 1" % PK)
    e("s_cbranch_scc1 L_nolead")
    for i in range(4):
        e("v_mov_b32 v%d, 0" % (HX + i))
    e("v_lshlrev_b32 v%d, 4, v%d" % (HB_, HL))
    e("v_lshlrev_b32 v%d, 8, v%d" % (HC, HL))
    e("s_mov_b32 s%d, %d" % (PE, WS_G))
    e("s_mov_b32 s%d, %d" % (PE + 1, WS_MB))
    e("s_mov_b32 s%d, %d" % (PE + 2, WS_MB + 64 * 256))
    e("buffer_store_dwordx2 v[%d:%d], v%d, s[%d:%d], s%d offen sc1" % (HX, HX + 1, HC, PWS, PWS + 3, PE + 1))
    e("buffer_store_dwordx4 v[%d:%d], v%d, s[%d:%d], s%d offen sc1" % (HX, HX + 3, HB_, PWS, PWS + 3, PE))
    e("buffer_store_dwordx4 v[%d:%d], v%d, s[%d:%d], s%d offen offset:1024 sc1" % (HX, HX + 3, HB_, PWS, PWS + 3, PE))
    e("s_mov_b32 exec_hi, 0")
    e("buffer_store_dwordx2 v[%d:%d], v%d, s[%d:%d], s%d offen sc1" % (HX, HX + 1, HC, PWS, PWS + 3, PE + 2))
    e("s_mov_b64 exec, -1")
    e.label("L_nolead")
    e("s_cmp_lg_u32 s%d, 0" % PP)
    e("s_cbranch_scc1 L_hbar")
    e("v_lshlrev_b32 v%d, 2, v%d" % (HB_, HL))
    e("ds_write_b32 v%d, v%d" % (HB_, HZ))
    e("s_waitcnt lgkmcnt(0)")
    e.label("L_hbar")
    e("s_barrier")
    e("s_waitcnt vmcnt(0)")
    e("s_cmp_lg_u32 s%d, 1" % PK)
    e("s_cbranch_scc1 L_blk")
    e("v_mov_b32 v%d, 1" % HB_)
    e("s_mov_b64 exec, 1")
    e("buffer_store_dword v%d, off, s[%d:%d], 0 sc1" % (HB_, PDB, PDB + 3))
    e("s_mov_b64 exec, -1")

    e.label("L_blk")
    e("s_add_u32 s%d, s%d, 1" % (PK, PBK))
    e("s_min_u32 s%d, s%d, 5" % (PK, PK))
    warm(PK)
    sel(PBK, PBASE, PBASE + 1, PE)
    e("s_add_u32 s%d, s%d, s%d" % (PBASE, PBASE, PE))
    e("s_addc_u32 s%d, s%d, 0" % (PBASE + 1, PBASE + 1))
    e("s_lshl_b32 s%d, s%d, 8" % (PE, PM))
    e("s_load_dword s%d, s[%d:%d], s%d" % (PJ, PBASE, PBASE + 1, PE))
    e("s_mov_b32 s%d, 1" % PRN)
    for u in range(8):
        e("s_mov_b32 s%d, 0" % (PA + u))
    e("s_waitcnt lgkmcnt(0)")
    e.label("L_round")
    e("s_add_u32 s%d, s%d, s%d" % (PE, PM, PRN))
    e("s_and_b32 s%d, s%d, 7" % (PE, PE))
    e("s_lshl_b32 s%d, s%d, 8" % (PE, PE))
    e("s_add_u32 s%d, s%d, s%d" % (PRB, PBASE, PE))
    e("s_addc_u32 s%d, s%d, 0" % (PRB + 1, PBASE + 1))
    e("s_mov_b32 s%d, -1" % PMN)
    e("s_cmp_eq_u32 s%d, 0" % PBK)
    e("s_cselect_b32 exec_lo, 1, 0")
    e("s_mov_b32 exec_hi, 0")
    e("s_memtime s[%d:%d]" % (PT, PT + 1))
    e("s_waitcnt lgkmcnt(0)")
    for u in range(8):
        a = PT + 2 * (u & 1); b = PT + 2 * ((u + 1) & 1)
        e("s_load_dword s%d, s[%d:%d], s%d" % (PJ, PRB, PRB + 1, POF + u))
        if u == P["rdy"]:
            e("buffer_load_dword v%d, off, s[%d:%d], 0 sc1" % (HR, PDB, PDB + 3))
        e("s_waitcnt lgkmcnt(0)")
        e("s_memtime s[%d:%d]" % (b, b + 1))
        e("s_waitcnt lgkmcnt(0)")
        e("s_sub_u32 s%d, s%d, s%d" % (PD + u, b, a))
    e("s_mov_b64 exec, -1")
    if P["diag"] == 2:
        for u in range(8):
            e("v_mov_b32 v%d, s%d" % (HX + u, PD + u))
        e("s_mul_i32 s%d, s2, 3" % PE)
        e("s_add_u32 s%d, s%d, s%d" % (PE, PE, PP))
        e("s_mul_i32 s%d, s%d, 6" % (PE, PE))
        e("s_add_u32 s%d, s%d, s%d" % (PE, PE, PBK))
        e("s_lshl_b32 s%d, s%d, 5" % (PE, PE))
        e("s_add_u32 s%d, s%d, 0x140000" % (PE, PE))
        e("s_mov_b64 exec, 1")
        e("buffer_store_dwordx4 v[%d:%d], off, s[%d:%d], s%d" % (HX, HX + 3, PWS, PWS + 3, PE))
        e("buffer_store_dwordx4 v[%d:%d], off, s[%d:%d], s%d offset:16" % (HX + 4, HX + 7, PWS, PWS + 3, PE))
        e("s_mov_b64 exec, -1")
    for u in range(8):
        e("s_min_u32 s%d, s%d, %d" % (PD + u, PD + u, P["clip"]))
        e("s_min_u32 s%d, s%d, s%d" % (PMN, PMN, PD + u))
    e("s_cmp_lt_u32 s%d, %d" % (PMN, P["l2t"]))
    e("s_cbranch_scc1 L_skip")
    for u in range(8):
        e("s_add_u32 s%d, s%d, s%d" % (PA + u, PA + u, PD + u))
    e.label("L_skip")
    if NR > 1:
        e("s_add_u32 s%d, s%d, 1" % (PRN, PRN))
        e("s_cmp_le_u32 s%d, %d" % (PRN, NR))
        e("s_cbranch_scc1 L_round")
    E0, E1, F0, F1_, D2, TA, TB = PD, PD + 1, PD + 2, PD + 3, PD + 4, PD + 5, PD + 6
    for h, (E_, F_) in enumerate(((E0, F0), (E1, F1_))):
        a = PA + 4 * h
        e("s_sub_u32 s%d, s%d, s%d" % (TA, a + 3, a))
        e("s_sub_u32 s%d, s%d, s%d" % (TB, a + 2, a + 1))
        e("s_add_u32 s%d, s%d, s%d" % (E_, TA, TB))
        e("s_sub_u32 s%d, s%d, s%d" % (F_, TA, TB))
    e("s_mov_b32 s%d, 0" % D2)
    for u in range(4):
        e("s_add_u32 s%d, s%d, s%d" % (D2, D2, PA + 4 + u))
        e("s_sub_u32 s%d, s%d, s%d" % (D2, D2, PA + u))
    e("s_sub_u32 s%d, s%d, s%d" % (E0, E0, E1))
    e("s_sub_u32 s%d, s%d, s%d" % (TA, F0, F1_))
    e("s_add_u32 s%d, s%d, s%d" % (TB, F0, F1_))
    e("s_bitcmp1_b32 s%d, 0" % PX)
    e("s_cselect_b32 s%d, 0, s%d" % (TA, TA))
    e("s_cselect_b32 s%d, s%d, 0" % (TB, TB))
    LIM = 65535 // NPR // 2
    for r in (E0, TA, TB):
        e("s_ashr_i32 s%d, s%d, %d" % (r, r, P["sh"]))
        e("s_min_i32 s%d, s%d, %d" % (r, r, LIM))
        e("s_max_i32 s%d, s%d, %d" % (r, r, -LIM))
        e("s_add_u32 s%d, s%d, %d" % (r, r, LIM))
    e("s_lshl_b32 s%d, s%d, 16" % (TA, TA))
    e("s_or_b32 s%d, s%d, s%d" % (E0, E0, TA))
    e("s_mov_b32 s%d, 0x01010000" % F0)
    e("s_cmp_gt_i32 s%d, %d" % (D2, P["th2"]))
    e("s_cselect_b32 s%d, 0x01000000, s%d" % (F0, F0))
    e("s_cmp_lt_i32 s%d, %d" % (D2, -P["th2"]))
    e("s_cselect_b32 s%d, 0x01020000, s%d" % (F0, F0))
    e("s_or_b32 s%d, s%d, s%d" % (TB, TB, F0))
    e("v_mov_b32 v%d, s%d" % (HLO, E0))
    e("v_mov_b32 v%d, s%d" % (HHI, TB))
    e("s_mov_b64 exec, 1")
    e("s_cmp_lg_u32 s%d, 0" % PBK)
    e("s_cbranch_scc1 L_post")
    e("s_mov_b32 s%d, 0x40000" % PSP)
    e.label("L_rdy")
    e("s_waitcnt vmcnt(0)")
    e("v_readfirstlane_b32 s%d, v%d" % (PE, HR))
    e("s_cmp_lg_u32 s%d, 0" % PE)
    e("s_cbranch_scc1 L_post")
    e("buffer_load_dword v%d, off, s[%d:%d], 0 sc1" % (HR, PDB, PDB + 3))
    e("s_sub_u32 s%d, s%d, 1" % (PSP, PSP))
    e("s_cbranch_scc0 L_rdy")
    e("s_endpgm")
    e.label("L_post")
    e("s_lshl_b32 s%d, s%d, 12" % (PE, PBK))
    e("s_add_u32 s%d, s%d, s%d" % (PE, PE, PMB))
    e("buffer_atomic_add_x2 v[%d:%d], off, s[%d:%d], s%d" % (HLO, HHI, PWS, PWS + 3, PE))
    e("s_mov_b64 exec, -1")
    e("s_or_b32 s%d, s%d, s%d" % (PE, PBK, PP))
    e("s_cbranch_scc1 L_next")

    def decode(b0, nb, dst, tag, with_group=False):
        e("v_lshlrev_b32 v%d, 8, v%d" % (HB_, HL))
        e("v_add_u32 v%d, %d, v%d" % (HB_, WS_MB + b0 * 4096, HB_))
        mask = (1 << (16 * nb)) - 1
        if with_group:
            e("s_add_u32 s%d, s%d, 32" % (PE, PGL))
            e("v_mov_b32 v%d, s%d" % (HC, PE))
            e("s_mov_b64 vcc, 0x10000")
            e("v_cndmask_b32 v%d, v%d, v%d, vcc" % (HB_, HB_, HC))
        m1 = mask | (0x10000 if with_group else 0)
        e("s_mov_b32 exec_lo, 0x%x" % (m1 & 0xffffffff))
        e("s_mov_b32 exec_hi, 0x%x" % (m1 >> 32))
        e("s_mov_b32 s%d, 0x40000" % PSP)
        e.label("L_poll" + tag)
        e("buffer_load_dwordx2 v[%d:%d], v%d, s[%d:%d], 0 offen sc1" % (HLO, HHI, HB_, PWS, PWS + 3))
        e("s_sub_u32 s%d, s%d, 1" % (PSP, PSP))
        e("s_cbranch_scc1 L_exit1")
        e("s_waitcnt vmcnt(0)")
        e("v_lshrrev_b32 v%d, 24, v%d" % (HC, HHI))
        e("v_cmp_ne_u32 vcc, %d, v%d" % (NPR, HC))
        e("s_cbranch_vccnz L_poll" + tag)
        if with_group:
            e("v_readlane_b32 s%d, v%d, 16" % (PE, HHI))
            e("s_and_b32 s%d, s%d, 0xffff" % (PE, PE))
            e("s_cmp_eq_u32 s%d, 0xff" % PE)
            e("s_cselect_b32 s%d, s%d, s%d" % (PLAM, PX, PM))
            e("s_cselect_b32 s%d, 0, 0x800" % PE)
            e("s_lshl_b32 s%d, s%d, 8" % (PLAM, PLAM))
            e("s_or_b32 s%d, s%d, s%d" % (PLAM, PLAM, PE))
            e("s_mov_b32 exec_lo, 0x%x" % (mask & 0xffffffff))
        B0 = LIM * NPR
        e("v_and_b32 v%d, 0xffff, v%d" % (HA, HLO))
        e("v_subrev_u32 v%d, %d, v%d" % (HA, B0, HA))
        e("v_lshrrev_b32 v%d, 16, v%d" % (HB_, HLO))
        e("v_subrev_u32 v%d, %d, v%d" % (HB_, B0, HB_))
        e("v_and_b32 v%d, 0xffff, v%d" % (HC, HHI))
        e("v_subrev_u32 v%d, %d, v%d" % (HC, B0, HC))
        e("v_bfe_u32 v%d, v%d, 16, 8" % (HD, HHI))
        e("v_subrev_u32 v%d, %d, v%d" % (HD, NPR, HD))
        for qp in ("[1,0,3,2]", "[2,3,0,1]"):
            for r in (HA, HB_, HC, HD):
                e("v_add_u32_dpp v%d, v%d, v%d quad_perm:%s row_mask:0xf bank_mask:0xf" % (r, r, r, qp))
        e("v_cmp_lt_i32 vcc, 0, v%d" % HD)
        e("v_sub_u32 v%d, 0, v%d" % (HE, HB_))
        e("v_sub_u32 v%d, 0, v%d" % (HF, HA))
        e("v_cndmask_b32 v%d, v%d, v%d, vcc" % (HB_, HB_, HE))
        e("v_add_u32 v%d, v%d, v%d" % (HB_, HB_, HC))
        e("v_cndmask_b32 v%d, v%d, v%d, vcc" % (HA, HA, HF))
        e("v_cndmask_b32 v%d, 0, 2, vcc" % HG)
        e("s_mov_b32 vcc_lo, 0xf0f0f0f0")
        e("s_mov_b32 vcc_hi, 0xf0f0f0f0")
        e("v_sub_u32 v%d, 0, v%d" % (HE, HB_))
        e("v_cndmask_b32 v%d, v%d, v%d, vcc" % (HB_, HB_, HE))
        e("s_mov_b32 vcc_lo, 0xff00ff00")
        e("s_mov_b32 vcc_hi, 0xff00ff00")
        e("v_sub_u32 v%d, 0, v%d" % (HF, HA))
        e("v_cndmask_b32 v%d, v%d, v%d, vcc" % (HA, HA, HF))
        for r, t in ((HA, HE), (HB_, HF)):
            e("v_add_u32_dpp v%d, v%d, v%d row_ror:4 row_mask:0xf bank_mask:0xf" % (t, r, r))
        for r, t in ((HA, HE), (HB_, HF)):
            e("v_add_u32_dpp v%d, v%d, v%d row_ror:8 row_mask:0xf bank_mask:0xf" % (t, t, t))
        for r, t in ((HA, HE), (HB_, HF)):
            e("v_lshl_add_u32 v%d, v%d, %d, v%d" % (r, r, P["ovr"], t))
            e("v_lshrrev_b32 v%d, 31, v%d" % (r, r))
        e("v_lshl_or_b32 v%d, v%d, 2, v%d" % (HG, HB_, HG))
        e("v_or_b32 v%d, v%d, v%d" % (HG, HG, HA))
        e("v_bfe_u32 v%d, v%d, 3, 1" % (HE, HL))
        e("v_and_b32 v%d, 4, v%d" % (HF, HL))
        e("v_xor_b32 v%d, v%d, v%d" % (HG, HG, HE))
        e("v_xor_b32 v%d, v%d, v%d" % (HG, HG, HF))
        e("v_add_u32 v%d, %d, v%d" % (HD, 2 * NPR - 1, HD))
        e("v_cmp_gt_u32 vcc, %d, v%d" % (4 * NPR - 1, HD))
        e("v_cndmask_b32 v%d, 0, 8, vcc" % HE)
        e("v_or_b32 v%d, v%d, v%d" % (HG, HG, HE))
        if P["diag"]:
            e("v_add_u32 v%d, %d, v%d" % (HE, WS_MB + 0x8000 + b0 * 16, HL))
            e("buffer_store_byte v%d, v%d, s[%d:%d], 0 offen" % (HG, HE, PWS, PWS + 3))
        if not with_group:
            e("s_mov_b64 exec, -1")
            lds_wait("lam" + tag, HZ, HE, PLAM, L_TAB, "nz", PSP)
            e("s_and_b32 s%d, s%d, 0xf00" % (PLAM, PLAM))
        e("s_bfe_u32 s%d, s%d, 0x20009" % (PE, PLAM))
        e("s_bfe_u32 s%d, s%d, 0x10008" % (PE + 1, PLAM))
        e("s_lshl_b32 s%d, s%d, 2" % (PE + 1, PE + 1))
        e("s_or_b32 s%d, s%d, s%d" % (PE, PE, PE + 1))
        e("s_lshr_b32 s%d, s%d, 8" % (PE + 1, PLAM))
        e("s_and_b32 s%d, s%d, 8" % (PE + 1, PE + 1))
        e("s_or_b32 s%d, s%d, s%d" % (PE + 1, PE + 1, PLAM))
        e("s_or_b32 s%d, s%d, 0x10" % (PE + 1, PE + 1))
        if P["force"] == 1:
            e("s_or_b32 s%d, s%d, 8" % (PE + 1, PE + 1))
        if P["force"] == 2:
            e("s_bfe_u32 s%d, s%d, 0x30008" % (PE + 4, PLAM))
            e("s_lshl_b32 s%d, s%d, 4" % (PE + 4, PE + 4))
            e("s_add_u32 s%d, s%d, 0x7000000" % (PE + 4, PE + 4))
            e("s_load_dwordx4 s[%d:%d], s[82:83], s%d" % (PS2, PS2 + 3, PE + 4))
            e("s_waitcnt lgkmcnt(0)")
        e("s_lshr_b32 s%d, s%d, 3" % (PE + 2, PG))
        e("s_lshl_b32 s%d, s%d, 2" % (PE + 2, PE + 2))
        e("s_mov_b64 exec, 1")
        for qq in range(nb):
            e("s_add_u32 s%d, s%d, %d" % (PE + 3, PE + 2, 16 * qq))
            e("v_readlane_b32 s%d, v%d, s%d" % (PE + 3, HG, PE + 3))
            e("s_xor_b32 s%d, s%d, s%d" % (PE + 3, PE + 3, PE))
            if P["force"] == 2:
                b = b0 + qq
                e("s_add_u32 s%d, s%d, %d" % (PE + 4, PE + 2, 16 * (b % 3)))
                e("s_lshr_b64 s[%d:%d], s[%d:%d], s%d" % (PE + 6, PE + 7, PS2 + 2 * (b // 3), PS2 + 2 * (b // 3) + 1, PE + 4))
                e("s_and_b32 s%d, s%d, 15" % (PE + 3, PE + 6))
            e("s_or_b32 s%d, s%d, s%d" % (PE + 3, PE + 3, PE + 1))
            e("v_mov_b32 v%d, s%d" % (HE, PE + 3))
            e("ds_write_b32 v%d, v%d offset:%d" % (HZ, HE, dst + 4 * qq))
        e("s_mov_b64 exec, -1")

    e("s_lshl_b32 s%d, 1, s%d" % (PE, PX))
    e("s_add_u32 s%d, s%d, 0x%x" % (PE, PE, (NPR // 8) << 24))
    e("v_mov_b32 v%d, s%d" % (HC, PE))
    e("s_mov_b64 exec, 1")
    e("buffer_atomic_add v%d, off, s[%d:%d], s%d offset:36" % (HC, PWS, PWS + 3, PGL))
    e("s_mov_b64 exec, -1")
    decode(0, 1, L_TAB, "a", True)
    e.label("L_next")
    e("s_add_u32 s%d, s%d, 1" % (PBK, PBK))
    e("s_cmp_lt_u32 s%d, 6" % PBK)
    e("s_cbranch_scc1 L_blk")
    e("s_cmp_eq_u32 s%d, 0" % PP)
    e("s_cbranch_scc1 L_h0")
    e("s_cmp_eq_u32 s%d, 2" % PP)
    e("s_cbranch_scc1 L_h2")
    decode(1, 2, L_TAB + 4, "b")
    e("s_endpgm")

    def seg_scalars():
        e("s_lshl_b32 s%d, s%d, 5" % (PSG, PPH))
        e("s_add_u32 s%d, s%d, s%d" % (PSG, PSG, PG))
        e("s_lshl_b32 s%d, s%d, 15" % (PG0, PSG))
        e("s_add_u32 s%d, s%d, 1" % (PG0, PG0))
        e("s_mul_hi_u32 s%d, s%d, 0xaaaaaaab" % (PG0, PG0))
        e("s_lshr_b32 s%d, s%d, 7" % (PG0, PG0))

    e.label("L_h0")
    srd(PB, 64, H * DH * 2)
    srd(PS2, 70, H * NGRP * DH * 2)
    srd(PS3, 72, H * NGRP * DH * 2)
    e("v_lshrrev_b32 v%d, 4, v%d" % (HA, HL))
    e("v_and_b32 v%d, 15, v%d" % (HB_, HL))
    e("v_lshlrev_b32 v%d, 3, v%d" % (HC, HB_))
    e("v_mul_u32_u24 v%d, %d, v%d" % (HD, DH * 2, HA))
    e("v_add_u32 v%d, v%d, v%d" % (HD, HD, HC))
    e("v_lshl_add_u32 v%d, v%d, 2, v%d" % (HG, HB_, HA))
    e("v_lshlrev_b32 v%d, 2, v%d" % (HG, HG))
    e("s_mov_b32 s%d, 0" % PPH)
    BQ = HX; BS = HX + 12; BZ = BS + 36; BR = BZ + 36
    e.label("L_bias")
    seg_scalars()
    e("s_mul_i32 s%d, s%d, 171" % (PE, PSG))
    e("s_lshr_b32 s%d, s%d, 9" % (PE, PE))
    e("s_mul_i32 s%d, s%d, %d" % (PE, PE, DH * 2))
    e("s_mul_i32 s%d, s%d, 24" % (PE + 1, PM))
    e("s_add_u32 s%d, s%d, s%d" % (PE + 2, PE + 1, PG0))
    e("s_mul_i32 s%d, s%d, %d" % (PE + 2, PE + 2, DH * 2))
    e("v_add_u32 v%d, s%d, v%d" % (HE, PE + 2, HD))
    e("v_add_u32 v%d, %d, v%d" % (HF, 8 * DH * 2, HE))
    e("v_add_u32 v%d, %d, v%d" % (HR, 16 * DH * 2, HE))
    for c in range(3):
        e("buffer_load_dwordx2 v[%d:%d], v%d, s[%d:%d], s%d offen offset:%d" % (BR + 2 * c, BR + 2 * c + 1, HC, PB, PB + 3, PE, c * 128))
    for st in range(6):
        va = (HE, HF, HR)[st // 2]
        for sr, bb in ((PS2, BS), (PS3, BZ)):
            for c in range(3):
                r = bb + st * 6 + 2 * c
                e("buffer_load_dwordx2 v[%d:%d], v%d, s[%d:%d], 0 offen offset:%d" %
                  (r, r + 1, va, sr, sr + 3, (st & 1) * 4 * DH * 2 + c * 128))
    e("s_waitcnt vmcnt(0)")
    for p in range(6):
        e("v_lshlrev_b32 v%d, 16, v%d" % (BQ + 2 * p, BR + p))
        e("v_and_b32 v%d, 0xffff0000, v%d" % (BQ + 2 * p + 1, BR + p))
    for st in range(6):
        acc = BR + st
        for p in range(6):
            rs = BS + st * 6 + p; rz = BZ + st * 6 + p
            e("v_lshlrev_b32 v%d, 16, v%d" % (HE, rs))
            e("v_lshlrev_b32 v%d, 16, v%d" % (HF, rz))
            e("v_and_b32 v%d, 0xffff0000, v%d" % (rs, rs))
            e("v_and_b32 v%d, 0xffff0000, v%d" % (rz, rz))
            e("v_mul_f32 v%d, v%d, v%d" % (HE, HE, BQ + 2 * p))
            e("v_mul_f32 v%d, v%d, v%d" % (rs, rs, BQ + 2 * p + 1))
            if p == 0:
                e("v_mul_f32 v%d, v%d, v%d" % (acc, HE, HF))
            else:
                e("v_fmac_f32 v%d, v%d, v%d" % (acc, HE, HF))
            e("v_fmac_f32 v%d, v%d, v%d" % (acc, rs, rz))
    for kk in (8, 4, 2, 1):
        for st in range(6):
            e("v_add_f32_dpp v%d, v%d, v%d row_ror:%d row_mask:0xf bank_mask:0xf" % (BR + st, BR + st, BR + st, kk))
    for st in range(1, 6):
        e("v_cmp_eq_u32 vcc, %d, v%d" % (st, HB_))
        e("v_cndmask_b32 v%d, v%d, v%d, vcc" % (BR, BR, BR + st))
    e("s_mul_i32 s%d, s%d, 768" % (PE, PSG))
    e("s_lshl_b32 s%d, s%d, 2" % (PE + 1, PE + 1))
    e("s_add_u32 s%d, s%d, s%d" % (PE, PE, PE + 1))
    e("s_add_u32 s%d, s%d, %d" % (PE, PE, WS_B))
    e("s_mov_b32 exec_lo, 0x003f003f")
    e("s_mov_b32 exec_hi, 0x003f003f")
    e("buffer_store_dword v%d, v%d, s[%d:%d], s%d offen sc1" % (BR, HG, PWS, PWS + 3, PE))
    e("s_mov_b64 exec, -1")
    e("s_add_u32 s%d, s%d, 1" % (PPH, PPH))
    e("s_cmp_lt_u32 s%d, 3" % PPH)
    e("s_cbranch_scc1 L_bias")
    e("v_lshlrev_b32 v%d, 4, v%d" % (HA, HL))
    e("v_and_b32 v%d, 1, v%d" % (HB_, HL))
    e("v_lshlrev_b32 v%d, 4, v%d" % (HB_, HB_))
    e("s_lshl_b32 s%d, s%d, 2" % (PE + 4, PM))
    e("s_add_u32 s%d, s%d, s%d" % (PE + 4, PE + 4, PGL))

    def flush(a, b, val):
        lds_wait("f%d" % val, HZ, HE, PE, L_CF + 4 * (val - 1), "4", PSP)
        n = (b - a) * NW // 8
        for k in range(n):
            e("ds_read_b128 v[%d:%d], v%d offset:%d" % (HX + 4 * k, HX + 4 * k + 3, HA, L_LG + a * NW * 128 + k * 1024))
            if k % 8 == 7:
                e("s_waitcnt lgkmcnt(0)")
        AD = HX + 4 * n
        for k in range(n):
            e("v_add_u32_dpp v%d, v%d, v%d quad_perm:[1,1,3,3] row_mask:0xf bank_mask:0xf" % (AD + k, HX + 4 * k + 2, HB_))
        if not P["xkp"] & 16:
            for k in range(n):
                e("buffer_store_dwordx4 v[%d:%d], v%d, s[%d:%d], 0 offen sc1" % (HX + 4 * k, HX + 4 * k + 3, AD + k, PWS, PWS + 3))
        e("v_mov_b32 v%d, %d" % (HE, val))
        e("s_waitcnt vmcnt(0)")
        e("s_mov_b64 exec, 1")
        e("buffer_store_dword v%d, off, s[%d:%d], s%d sc1" % (HE, PWS, PWS + 3, PE + 4))
        e("ds_write_b32 v%d, v%d offset:%d" % (HZ, HE, L_FD))
        e("s_mov_b64 exec, -1")

    flush(0, F1, 1)
    flush(F1, NT, 2)
    e("s_endpgm")

    e.label("L_h2")
    lds_wait("d", HZ, HE, PE, L_FD, "1", PSP)
    decode(3, 3, L_TABP, "c")
    srd(PS2, 74, H * SKV * 2)
    srd(PS3, 76, H * SKV * 2)
    PSIX = 24
    PN = 32; PNEED = 33; PST = 34; PFB = 35; PCH = 36; PCC = 37; PMG = 38; PWD = 39
    HT = HW
    e("v_and_b32 v%d, 3, v%d" % (HT, HL))
    e("v_lshrrev_b32 v%d, 2, v%d" % (HR, HL))
    e("s_mov_b32 s%d, %s" % (PCC, f32hex(C)))
    e("s_mov_b32 s%d, 0xaaaaaaab" % PMG)
    e("s_mov_b32 s%d, 0" % PPH)
    RS = 16
    e.label("L_prep")
    seg_scalars()
    e("s_lshl_b32 s%d, s%d, 2" % (PE, PPH))
    e("v_mov_b32 v%d, s%d" % (HA, PE))
    e("ds_read_b32 v%d, v%d offset:%d" % (HB_, HA, L_TABP))
    e("s_cmp_lt_u32 s%d, %d" % (PPH, F1 // 16))
    e("s_cselect_b32 s%d, 1, 2" % PNEED)
    e("s_waitcnt lgkmcnt(0)")
    e("v_readfirstlane_b32 s%d, v%d" % (PWD, HB_))
    lds_wait("fd", HZ, HE, PE, L_FD, "s%d" % PNEED, PSP)
    e("v_lshlrev_b32 v%d, 2, v%d" % (HA, HL))
    e("s_mov_b64 exec, 0xff")
    e("s_mov_b32 s%d, 0x40000" % PSP)
    e.label("L_flags")
    e("buffer_load_dword v%d, v%d, s[%d:%d], s%d offen sc1" % (HB_, HA, PWS, PWS + 3, PGL))
    e("s_sub_u32 s%d, s%d, 1" % (PSP, PSP))
    e("s_cbranch_scc1 L_exit1")
    e("s_waitcnt vmcnt(0)")
    e("v_cmp_gt_u32 vcc, s%d, v%d" % (PNEED, HB_))
    e("s_cbranch_vccnz L_flags")
    e("s_mov_b64 exec, -1")
    e("s_and_b32 s%d, s%d, 7" % (PN, PWD))
    e("s_bfe_u32 s%d, s%d, 0x30008" % (PFB, PWD))
    e("s_lshl_b32 s%d, s%d, 2" % (PFB, PFB))
    e("s_bitcmp1_b32 s%d, 3" % PWD)
    e("s_cselect_b32 s%d, 1, 8" % PST)
    e("s_cselect_b64 s[%d:%d], -1, 0" % (PT, PT + 1))
    e("s_lshl_b32 s%d, s%d, 6" % (PCH, PSG))
    e("s_mul_i32 s%d, s%d, 768" % (PE + 1, PSG))
    e("s_lshl_b32 s%d, s%d, 2" % (PE + 2, PG0))
    e("s_sub_u32 s%d, s%d, s%d" % (PE + 1, PE + 1, PE + 2))
    e("s_add_u32 s%d, s%d, %d" % (PE + 1, PE + 1, WS_B))
    e("v_mov_b32 v%d, s%d" % (HG, PFB))
    for st in range(4):
        R = HX + RS * st
        e("v_add_u32 v%d, %d, v%d" % (HA, 16 * st, HR))
        e("v_bfe_u32 v%d, v%d, 3, 2" % (HB_, HA))
        e("v_and_or_b32 v%d, v%d, 4, v%d" % (HB_, HA, HB_))
        e("v_xor_b32 v%d, s%d, v%d" % (HB_, PN, HB_))
        e("v_cndmask_b32 v%d, v%d, v%d, s[%d:%d]" % (HB_, HB_, HG, PT, PT + 1))
        e("v_mad_u32_u24 v%d, v%d, s%d, v%d" % (HB_, HT, PST, HB_))
        e("v_add_u32 v%d, s%d, v%d" % (HA, PCH, HA))
        e("v_lshl_add_u32 v%d, v%d, 5, v%d" % (HC, HA, HB_))
        e("v_lshl_add_u32 v%d, v%d, 4, 1" % (HC, HC))
        e("v_mul_hi_u32 v%d, v%d, s%d" % (HC, HC, PMG))
        e("v_lshrrev_b32 v%d, 1, v%d" % (HC, HC))
        e("v_and_b32 v%d, 7, v%d" % (HD, HB_))
        e("v_lshl_add_u32 v%d, v%d, 3, v%d" % (HA, HA, HD))
        e("v_lshrrev_b32 v%d, 3, v%d" % (HB_, HB_))
        e("v_lshl_add_u32 v%d, v%d, 2, v%d" % (HA, HA, HB_))
        e("v_lshlrev_b32 v%d, 5, v%d" % (HA, HA))
        e("v_add_u32 v%d, %d, v%d" % (HA, WS_L, HA))
        e("buffer_load_dwordx4 v[%d:%d], v%d, s[%d:%d], 0 offen sc1" % (R, R + 3, HA, PWS, PWS + 3))
        e("buffer_load_dwordx2 v[%d:%d], v%d, s[%d:%d], 0 offen offset:16 sc1" % (R + 4, R + 5, HA, PWS, PWS + 3))
        e("v_lshrrev_b32 v%d, 6, v%d" % (HE, HC))
        e("v_lshl_add_u32 v%d, v%d, 2, s%d" % (HE, HE, PE + 1))
        e("buffer_load_dword v%d, v%d, s[%d:%d], 0 offen sc1" % (R + 6, HE, PWS, PWS + 3))
        e("v_lshrrev_b32 v%d, 1, v%d" % (HF, HC))
        e("v_lshlrev_b32 v%d, 2, v%d" % (HF, HF))
        for b, sr in ((R + 8, PS2), (R + 12, PS3)):
            e("buffer_load_dwordx3 v[%d:%d], v%d, s[%d:%d], 0 offen" % (b, b + 2, HF, sr, sr + 3))
            e("buffer_load_dword v%d, v%d, s[%d:%d], 0 offen offset:12" % (b + 3, HF, sr, sr + 3))
        e("v_and_b32 v%d, 15, v%d" % (HD, HC))
        e("v_cmp_eq_u32 s[%d:%d], 5, v%d" % (PSIX + 2 * st, PSIX + 2 * st + 1, HD))
        e("v_and_b32 v%d, 1, v%d" % (R + 7, HC))
        e("v_lshlrev_b32 v%d, 4, v%d" % (R + 7, R + 7))
    e("v_mov_b32 v%d, 0x%08x" % (HB_, BIGNEG))
    e("v_mov_b32 v%d, 0x%08x" % (HA, BIGNEG))
    e("s_waitcnt vmcnt(0)")
    for st in range(4):
        R = HX + RS * st
        for k in range(6):
            e("v_sub_f32 v%d, v%d, v%d" % (R + k, R + k, R + 6))
        for k in range(6):
            e("v_mul_f32 v%d, s%d, v%d" % (R + k, PCC, R + k))
        e("v_cndmask_b32 v%d, v%d, v%d, s[%d:%d]" % (R + 5, HB_, R + 5, PSIX + 2 * st, PSIX + 2 * st + 1))
        for k in range(0, 6, 2):
            e("v_max3_f32 v%d, v%d, v%d, v%d" % (HA, HA, R + k, R + k + 1))
        for b in (R + 8, R + 12):
            for k in range(3):
                e("v_alignbit_b32 v%d, v%d, v%d, v%d" % (b + k, b + k + 1, b + k, R + 7))

    def wave_reduce(regs, op, tmp):
        for kk in (8, 4, 2, 1):
            for r in regs:
                e("%s_dpp v%d, v%d, v%d row_ror:%d row_mask:0xf bank_mask:0xf" % (op, r, r, r, kk))
        for sw in ("v_permlane32_swap_b32", "v_permlane16_swap_b32"):
            for r, t in zip(regs, tmp):
                e("v_mov_b32 v%d, v%d" % (t, r))
            for r, t in zip(regs, tmp):
                e("%s v%d, v%d" % (sw, r, t))
            for r, t in zip(regs, tmp):
                e("%s v%d, v%d, v%d" % (op, r, r, t))

    wave_reduce([HA], "v_max_f32", [HB_])
    e("v_mov_b32 v%d, 0" % HB_)
    e("v_mov_b32 v%d, 0" % HC)
    e("s_lshl_b32 s%d, s%d, 13" % (PE, PPH))
    e("v_lshlrev_b32 v%d, 5, v%d" % (HD, HL))
    e("v_add_u32 v%d, s%d, v%d" % (HD, PE, HD))
    for st in range(4):
        R = HX + RS * st
        for k in range(6):
            e("v_sub_f32 v%d, v%d, v%d" % (R + k, R + k, HA))
        for k in range(6):
            e("v_exp_f32 v%d, v%d" % (R + k, R + k))
        for k in range(6):
            e("v_add_f32 v%d, v%d, v%d" % (HB_, HB_, R + k))
            if k & 1:
                e("v_and_b32 v%d, 0xffff0000, v%d" % (HE, R + 8 + k // 2))
                e("v_and_b32 v%d, 0xffff0000, v%d" % (HF, R + 12 + k // 2))
            else:
                e("v_lshlrev_b32 v%d, 16, v%d" % (HE, R + 8 + k // 2))
                e("v_lshlrev_b32 v%d, 16, v%d" % (HF, R + 12 + k // 2))
            e("v_mul_f32 v%d, v%d, v%d" % (R + k, R + k, HE))
            e("v_fmac_f32 v%d, v%d, v%d" % (HC, R + k, HF))
        e("ds_write_b128 v%d, v[%d:%d] offset:%d" % (HD, R, R + 3, L_PV + st * 2048))
        e("ds_write_b64 v%d, v[%d:%d] offset:%d" % (HD, R + 4, R + 5, L_PV + st * 2048 + 16))
    wave_reduce([HB_, HC], "v_add_f32", [HE, HF])
    e("s_lshl_b32 s%d, s%d, 2" % (PE, PPH))
    e("v_mov_b32 v%d, s%d" % (HE, PE))
    e("v_lshlrev_b32 v%d, 2, v%d" % (HF, HE))
    e("v_mov_b32 v%d, s%d" % (HD, PWD))
    e("s_mov_b64 exec, 1")
    e("ds_write_b128 v%d, v[%d:%d] offset:%d" % (HF, HA, HD, L_ML))
    e("ds_write_b32 v%d, v%d offset:%d" % (HE, HD, L_TAB + 12))
    e("s_mov_b64 exec, -1")
    e("s_add_u32 s%d, s%d, 1" % (PPH, PPH))
    e("s_cmp_lt_u32 s%d, 3" % PPH)
    e("s_cbranch_scc1 L_prep")
    e("s_mov_b32 s%d, 0" % PPH)
    e("v_lshlrev_b32 v%d, 2, v%d" % (HR, HL))
    e("v_add_u32 v%d, %d, v%d" % (HG, L_ACC, HR))
    e.label("L_merge")
    e("s_lshl_b32 s%d, s%d, 2" % (PE, PPH))
    e("v_mov_b32 v%d, s%d" % (HW, PE))
    e("v_lshlrev_b32 v%d, 2, v%d" % (HF, HW))
    e("ds_read_b128 v[%d:%d], v%d offset:%d" % (HA, HD, HF, L_ML))
    e("s_lshl_b32 s%d, s%d, 8" % (PSG, PPH))
    e("s_add_u32 s%d, s%d, s2" % (PSG, PSG))
    e("s_lshl_b32 s%d, s%d, 10" % (PSG, PSG))
    lds_wait("m", HZ, HE, PE, L_CA, "4", PSP, HW)
    for kk in range(3):
        for w in range(NW):
            e("ds_read_b32 v%d, v%d offset:%d" % (HX + kk * NW + w, HG, w * ROWB + kk * 256))
    for kk in range(3):
        b = HX + kk * NW
        e("s_waitcnt lgkmcnt(%d)" % (8 - 4 * kk))
        e("v_add_f32 v%d, v%d, v%d" % (b, b, b + 1))
        e("v_add_f32 v%d, v%d, v%d" % (b + 2, b + 2, b + 3))
        e("v_sub_f32 v%d, v%d, v%d" % (b, b, HC))
        e("v_add_f32 v%d, v%d, v%d" % (b, b, b + 2))
        e("buffer_store_dword v%d, v%d, s[%d:%d], s%d offen offset:%d" % (b, HR, PWS, PWS + 3, PSG, kk * 256))
    e("s_mov_b64 exec, 1")
    e("buffer_store_dwordx2 v[%d:%d], off, s[%d:%d], s%d offset:%d" % (HA, HB_, PWS, PWS + 3, PSG, DH * 4))
    e("s_mov_b64 exec, -1")
    e("v_add_u32 v%d, %d, v%d" % (HG, NW * ROWB, HG))
    e("s_add_u32 s%d, s%d, 1" % (PPH, PPH))
    e("s_cmp_lt_u32 s%d, 3" % PPH)
    e("s_cbranch_scc1 L_merge")
    e("s_endpgm")

    RPW = 24
    k2 = NAME + "_kernel"
    e.lines.append(".globl %s" % k2)
    e.lines.append(".p2align 8")
    e.lines.append(".type %s,@function" % k2)
    e.lines.append(k2 + ":")
    e.wr = {}; e.tr = {}; e.sw = {}
    e("s_cmp_ge_u32 s2, %d" % H)
    e("s_cbranch_scc1 L_exit2")
    e("s_load_dwordx2 s[4:5], s[0:1], 56")
    e("s_load_dwordx2 s[6:7], s[0:1], 72")
    e("v_lshlrev_b32 v1, 2, v0")
    e("v_mov_b32 v2, 0")
    e("s_mul_i32 s16, s2, %d" % (RPW * PART_STRIDE))
    e("s_mov_b32 s10, %d" % (3 * NWG * PART_STRIDE))
    e("s_mov_b32 s11, 0x00020000")
    e("s_mov_b32 s14, %d" % (H * DH * 2))
    e("s_mov_b32 s15, 0x00020000")
    for k in range(1, RPW // 4):
        e("s_add_u32 s%d, s16, %d" % (16 + k, 4 * k * PART_STRIDE))
    e("s_waitcnt lgkmcnt(0)")
    e("s_mov_b32 s8, s6")
    e("s_and_b32 s9, s7, 0xffff")
    e("s_mov_b32 s12, s4")
    e("s_and_b32 s13, s5, 0xffff")
    MLB = 8
    OB = MLB + 2 * RPW
    for s in range(RPW):
        so = 16 + s // 4
        e("buffer_load_dwordx2 v[%d:%d], v2, s[8:11], s%d offen offset:%d" %
          (MLB + 2 * s, MLB + 2 * s + 1, so, (s % 4) * PART_STRIDE + DH * 4))
        e("buffer_load_dword v%d, v1, s[8:11], s%d offen offset:%d" % (OB + s, so, (s % 4) * PART_STRIDE))
    e("s_waitcnt vmcnt(0)")
    e("v_mov_b32 v4, v%d" % MLB)
    for s in range(1, RPW):
        e("v_max_f32 v4, v4, v%d" % (MLB + 2 * s))
    for s in range(RPW):
        e("v_sub_f32 v%d, v%d, v4" % (MLB + 2 * s, MLB + 2 * s))
    for s in range(RPW):
        e("v_exp_f32 v%d, v%d" % (MLB + 2 * s, MLB + 2 * s))
    e("v_mul_f32 v5, v%d, v%d" % (MLB, MLB + 1))
    e("v_mul_f32 v6, v%d, v%d" % (MLB, OB))
    for s in range(1, RPW):
        e("v_fmac_f32 v5, v%d, v%d" % (MLB + 2 * s, MLB + 2 * s + 1))
        e("v_fmac_f32 v6, v%d, v%d" % (MLB + 2 * s, OB + s))
    e("v_rcp_f32 v5, v5")
    e("v_mul_f32 v6, v6, v5")
    e("v_cvt_pk_bf16_f32 v6, v6, v6")
    e("s_mul_i32 s16, s2, %d" % (DH * 2))
    e("v_lshrrev_b32 v1, 1, v1")
    e("buffer_store_short v6, v1, s[12:15], s16 offen")
    e.lines.append("L_exit2:")
    e("s_endpgm")
    NV2 = OB + RPW

    def kd(name, nv, ns):
        acc = (nv + 3) // 4 * 4
        return """.amdhsa_kernel %s
  .amdhsa_next_free_vgpr %d
  .amdhsa_next_free_sgpr %d
  .amdhsa_accum_offset %d
  .amdhsa_group_segment_fixed_size 0
  .amdhsa_kernarg_size 80
  .amdhsa_user_sgpr_count 2
  .amdhsa_user_sgpr_kernarg_segment_ptr 1
  .amdhsa_system_sgpr_workgroup_id_x 1
.end_amdhsa_kernel
""" % (name, nv, ns, acc)

    out = HEADER.replace("gen.py", "gen5.py").format(params=" ".join("%s=%s" % kv for kv in sorted(P.items())))
    out += "; @launch kernel=%s grid=(%d,1,1) block=(%d,1,1) lds=%d\n" % (k1, NWG, (NW + NH) * 64, LDS1)
    out += "; @launch kernel=%s grid=(%d,1,1) block=(%d,1,1) lds=%d\n" % (k2, H, DH, 0)
    out += '.amdgcn_target "amdgcn-amd-amdhsa--gfx950"\n.text\n'
    out += e.text()
    out += '.section .rodata,"a"\n.p2align 6\n'
    out += kd(k1, NVGPR, 102)
    out += ".p2align 6\n"
    out += kd(k2, NV2, 24)
    return out


DEFAULTS = dict(grp="6-6-6", n0=5, nr=1, f1=32, nt="nt", ldspad=0, stamp=0, xkp=0, force=0, clip=1400, l2t=290,
                th2=200, sh=2, ovr=2, rdy=4, diag=0)


def main():
    P = dict(DEFAULTS)
    outp = None
    args = sys.argv[1:]
    i = 0
    while i < len(args):
        a = args[i]
        if a == "-o":
            outp = args[i + 1]; i += 2; continue
        k, v = a.split("=", 1)
        assert k in P, k
        P[k] = type(P[k])(v.replace("+", " ")) if isinstance(P[k], str) else int(v)
        i += 1
    s = gen(P)
    if outp:
        open(outp, "w").write(s)
    else:
        sys.stdout.write(s)


if __name__ == "__main__":
    main()
```

```python
import re
import sys
import math
from gen import f32hex, HEADER, NAME, H, SKV, DH, G, NGRP, ROWB, HEADB
from gen4 import Emit4

PART_STRIDE = 1024
NW = 4
NH = 3
NWG = 256
NT = 48
WS_G = 0x100000
WS_B = 0x120000
WS_L = 2 << 20
WS_SIZE = 8 << 20
BIGNEG = 0xf149f2ca


def gen(P):
    GR = [int(x) for x in P["grp"].split("-")]
    assert sum(GR) == 18 and len(GR) >= 2
    NG = len(GR)
    GOFF = [sum(GR[:k]) for k in range(NG)]
    N0 = P["n0"]
    NR = P["nr"]
    TRG1 = N0 - P["trg"]
    TRG2 = P["trg2"]
    assert 2 <= TRG1 < N0 < TRG2 < 16 and 1 <= NR <= 7 and N0 <= 8
    pol = (" " + P["nt"]) if P["nt"] else ""
    C = (DH ** -0.5) * math.log2(math.e)
    L_DEC = 0
    L_GO = 24
    L_PC = 36
    L_CF = 40
    L_FD = 52
    L_EV = 56
    L_CA = 64
    L_ML = 80
    L_LG = 256
    L_PV = L_LG + 192 * 128
    L_ACC = L_PV + 192 * 128
    LDS1 = max(L_ACC + 3 * NW * ROWB, P["ldspad"])
    IMG = 192 * 128

    e = Emit4()
    V_T = 1; V_J16 = 2; V_J8 = 3; V_LB0 = 4; V_PB0 = 5; V_PV = 6; V_PVN = 7; V_DO = 8; V_PO = 9; V_T0 = 10; V_T1 = 11
    V_ACC = 12; V_W = 24; V_RAW = 36
    V_OFF = 48; V_OFF6 = 49; V_TM = 50; V_BIG = 51; V_T2 = 52; V_Z = 53
    V_S = 54
    V_D = 60
    V_T128 = 62; V_TMX = 63
    V_RING = 64
    NVGPR = V_RING + 72
    S_G = 3; S_M = 4; S_N = 5; S_SPIN = 6; S_LDC = 7
    S_K = 8; S_V = 12; S_KS = 16; S_Q = 20; S_WS = 24
    S_WAVE = 28; S_CI = 29; S_I = 30; S_QOFF = 31
    S_T = 32
    S_EV = 40; S_STM = 42; S_HB = 44; S_768 = 45; S_384 = 46; S_MAGIC = 47
    S_NB = 48; S_XB = 50; S_LB = 53
    S_ST = 54; S_DBG = 56

    k1 = "part_kernel"
    e.lines.append(".globl %s" % k1)
    e.lines.append(".p2align 8")
    e.lines.append(".type %s,@function" % k1)
    e.lines.append(k1 + ":")
    e("s_cmp_ge_u32 s2, %d" % NWG)
    e("s_cbranch_scc1 L_exit1")
    e("s_load_dwordx16 s[64:79], s[0:1], 0")
    e("s_load_dwordx4 s[80:83], s[0:1], 64")
    if P["stamp"]:
        e("s_memrealtime s[%d:%d]" % (S_ST, S_ST + 1))
    e("v_lshrrev_b32 v%d, 6, v0" % V_T0)
    e("v_and_b32 v%d, 63, v0" % V_T1)
    e("v_readfirstlane_b32 s%d, v%d" % (S_WAVE, V_T0))
    e("s_lshr_b32 s%d, s2, 3" % S_G)
    e("s_and_b32 s%d, s2, 7" % S_M)
    e("s_lshr_b32 s%d, s2, 6" % S_T)
    e("s_xor_b32 s%d, s%d, s%d" % (S_T, S_T, S_M))
    e("s_lshr_b32 s%d, s%d, 1" % (S_NB, S_T))
    e("s_and_b32 s%d, s%d, 1" % (S_T, S_T))
    e("s_lshl_b32 s%d, s%d, 2" % (S_T, S_T))
    e("s_or_b32 s%d, s%d, s%d" % (S_NB, S_NB, S_T))
    e("s_cmp_ge_u32 s%d, %d" % (S_WAVE, NW))
    e("s_cbranch_scc1 L_helper")

    def srd(dst, ptr, nbytes):
        e("s_mov_b32 s%d, s%d" % (dst, ptr))
        e("s_and_b32 s%d, s%d, 0xffff" % (dst + 1, ptr + 1))
        e("s_mov_b32 s%d, %d" % (dst + 2, nbytes))
        e("s_mov_b32 s%d, 0x00020000" % (dst + 3))

    def lds_wait(tag, vz, vt, st, off, cond, spin, vaddr=None):
        e("s_mov_b32 s%d, 0x100000" % spin)
        e.label("L_w" + tag)
        e("ds_read_b32 v%d, v%d offset:%d" % (vt, vz if vaddr is None else vaddr, off))
        e("s_sub_u32 s%d, s%d, 1" % (spin, spin))
        e("s_cbranch_scc1 L_exit1")
        e("s_waitcnt lgkmcnt(0)")
        e("v_readfirstlane_b32 s%d, v%d" % (st, vt))
        if cond == "nz":
            e("s_cmp_eq_u32 s%d, 0" % st)
        else:
            e("s_cmp_lt_u32 s%d, %s" % (st, cond))
        e("s_cbranch_scc1 L_w" + tag)

    def get_table(kind, tag):
        e("s_lshr_b32 s%d, s%d, 4" % (S_T + 1, S_I))
        e("s_lshl_b32 s%d, s%d, 2" % (S_T + 2, S_T + 1))
        e("v_mov_b32 v%d, s%d" % (V_T1, S_T + 2))
        if kind == "K":
            load_q(S_T + 1, False)
        lds_wait(tag, V_Z, V_T0, S_T, L_DEC if kind == "K" else L_GO, "nz", S_SPIN, V_T1)
        e("s_and_b32 s%d, s%d, 7" % (S_N, S_T))
        e("s_xor_b32 s%d, s%d, s%d" % (S_N, S_N, S_NB))
        e("s_bitcmp1_b32 s%d, 3" % S_T)
        e("s_cselect_b64 vcc, -1, 0")
        e("v_cndmask_b32 v%d, v%d, v%d, vcc" % (V_TM, V_T128, V_TMX))

    def load_q(ph, track):
        e("s_lshl_b32 s%d, s%d, 5" % (S_QOFF, ph))
        e("s_add_u32 s%d, s%d, s%d" % (S_QOFF, S_QOFF, S_G))
        e("s_mul_i32 s%d, s%d, 171" % (S_QOFF, S_QOFF))
        e("s_lshr_b32 s%d, s%d, 9" % (S_QOFF, S_QOFF))
        e("s_mul_i32 s%d, s%d, %d" % (S_QOFF, S_QOFF, DH * 2))
        for c in range(3):
            r = V_RAW + 2 * c
            s = "buffer_load_dwordx2 v[%d:%d], v%d, s[%d:%d], s%d offen offset:%d" % (r, r + 1, V_J8, S_Q, S_Q + 3, S_QOFF, c * 128)
            if track:
                e.vmem(s, "p")
            else:
                e(s)

    def tile_addr(kind):
        ch, a, b = S_T, S_T + 1, S_T + 2
        e("s_lshr_b32 s%d, s%d, 6" % (a, S_CI))
        e("s_lshl_b32 s%d, s%d, 11" % (a, a))
        e("s_and_b32 s%d, s%d, 63" % (ch, S_CI))
        e("s_add_u32 s%d, s%d, s%d" % (ch, ch, a))
        e("s_add_u32 s%d, s%d, s%d" % (ch, ch, S_HB))
        e("s_bfe_u32 s%d, s%d, 0x20003" % (a, ch))
        e("s_and_b32 s%d, s%d, 4" % (b, ch))
        e("s_or_b32 s%d, s%d, s%d" % (a, a, b))
        e("s_xor_b32 s%d, s%d, s%d" % (a, a, S_N))
        e("s_lshl_b32 s%d, s%d, 5" % (S_XB, ch))
        e("s_or_b32 s%d, s%d, s%d" % (S_XB, S_XB, a))
        e("s_lshl_b32 s%d, s%d, 4" % (S_XB, S_XB))
        e("s_or_b32 s%d, s%d, 1" % (S_XB, S_XB))
        if kind == "V":
            e("s_lshl_b32 s%d, s%d, 7" % (S_LB, S_CI))
        e("v_xor_b32 v%d, s%d, v%d" % (V_T0, S_XB, V_TM))
        e("v_mul_hi_u32 v%d, v%d, s%d" % (V_T0, V_T0, S_MAGIC))
        e("v_lshrrev_b32 v%d, 1, v%d" % (V_T0, V_T0))
        e("v_and_b32 v%d, 15, v%d" % (V_T1, V_T0))
        e("v_cmp_eq_u32 vcc, 5, v%d" % V_T1)
        e("v_mad_u32_u24 v%d, v%d, s%d, v%d" % (V_OFF, V_T0, S_768, V_J16))
        e("v_add_u32 v%d, %d, v%d" % (V_T1, 5 * ROWB, V_OFF))
        e("v_cndmask_b32 v%d, v%d, v%d, vcc" % (V_OFF6, V_BIG, V_T1))
        if kind == "K":
            e("v_lshrrev_b32 v%d, 6, v%d" % (V_T0, V_T0))
            e("v_mad_u32_u24 v%d, v%d, s%d, v%d" % (V_PO, V_T0, S_384, V_J8))
        else:
            e("v_add_u32 v%d, s%d, v%d" % (V_T0, S_LB, V_PB0))

    def issue_params(kind):
        if kind == "K":
            if P["xkp"] & 2:
                return
            for c in range(3):
                r = V_RAW + 6 + 2 * c
                e.vmem("buffer_load_dwordx2 v[%d:%d], v%d, s[%d:%d], 0 offen offset:%d" %
                       (r, r + 1, V_PO, S_KS, S_KS + 3, c * 128), "p")
        else:
            e("ds_read_b32 v%d, v%d" % (V_PVN, V_T0))

    def issue_group(k, kind):
        srdb = S_K if kind == "K" else S_V
        for l in range(GOFF[k], GOFF[k] + GR[k]):
            r = V_RING + l * 4
            if l < 15:
                vo, off = V_OFF, l * 256
            else:
                vo, off = V_OFF6, (l - 15) * 256
            e.vmem("buffer_load_dwordx4 v[%d:%d], v%d, s[%d:%d], 0 offen offset:%d%s" %
                   (r, r + 3, vo, srdb, srdb + 3, off, pol), "g%d" % k)

    def compute_w():
        e.wait_tag("p")
        for p in range(6):
            rq = V_RAW + p; rs = V_RAW + 6 + p
            i0 = 2 * p
            e("v_lshlrev_b32 v%d, 16, v%d" % (V_T0, rq))
            e("v_lshlrev_b32 v%d, 16, v%d" % (V_W + i0, rs))
            e("v_and_b32 v%d, 0xffff0000, v%d" % (V_T1, rq))
            e("v_and_b32 v%d, 0xffff0000, v%d" % (V_W + i0 + 1, rs))
            e("v_mul_f32 v%d, v%d, v%d" % (V_W + i0, V_W + i0, V_T0))
            e("v_mul_f32 v%d, v%d, v%d" % (V_W + i0 + 1, V_W + i0 + 1, V_T1))

    def body(kind, to_v=False):
        nkind = "V" if to_v else kind
        for k in range(NG):
            e.wait_tag("g%d" % k)
            if k + 1 < NG:
                issue_group(k + 1, kind)
            else:
                issue_group(0, nkind)
            if k == NG - 2:
                if to_v:
                    e("s_mov_b32 s%d, s%d" % (S_CI, S_WAVE))
                    e("s_mov_b32 s%d, 0" % S_I)
                    get_table("V", "tv")
                    ev = (1 << 16) | (1 << 32)
                    e("s_mov_b32 s%d, 0x%x" % (S_EV, ev & 0xffffffff))
                    e("s_mov_b32 s%d, 0x%x" % (S_EV + 1, ev >> 32))
                else:
                    e("s_add_u32 s%d, s%d, %d" % (S_CI, S_CI, NW))
                    e("s_add_u32 s%d, s%d, 1" % (S_I, S_I))
                    e("s_bitcmp1_b64 s[%d:%d], s%d" % (S_EV, S_EV + 1, S_I))
                    e("s_cbranch_scc1 L_ev%s" % kind)
                    e.flush()
                    e.label("L_evret%s" % kind)
                if P["stamp"] == 4:
                    e("s_memrealtime s[%d:%d]" % (S_DBG, S_DBG + 1))
                    e("s_add_u32 s%d, s%d, 4" % (S_DBG + 2, S_DBG + 2))
                    e("s_waitcnt lgkmcnt(0)")
                    e("v_mov_b32 v%d, s%d" % (V_T2, S_DBG))
                    e("s_mov_b64 exec, 1")
                    e("buffer_store_dword v%d, off, s[%d:%d], s%d" % (V_T2, S_WS, S_WS + 3, S_DBG + 2))
                    e("s_mov_b64 exec, -1")
                tile_addr(nkind)
                issue_params(nkind)
            for l in range(GOFF[k], GOFF[k] + GR[k]):
                q, c = l // 3, l % 3
                base = V_RING + l * 4
                for r in range(4):
                    e("v_cvt_f32_i32 v%d, v%d" % (base + r, base + r))
                if kind == "K":
                    s = V_S + q
                    for r in range(4):
                        if c == 0 and r == 0:
                            e("v_mul_f32 v%d, v%d, v%d" % (s, base, V_W))
                        else:
                            e("v_fmac_f32 v%d, v%d, v%d" % (s, base + r, V_W + 4 * c + r))
                    if c == 2:
                        e.defer(["v_add_f32_dpp v%d, v%d, v%d row_ror:%d row_mask:0xf bank_mask:0xf" % (s, s, s, kk)
                                 for kk in (8, 4, 2)] +
                                ["v_add_f32_dpp v%d, v%d, v%d row_ror:1 row_mask:0xf bank_mask:0x%x" %
                                 (V_D + (q & 1), s, s, 1 << (q >> 1))])
                else:
                    for r in range(4):
                        e("v_fmac_f32_dpp v%d, v%d, v%d row_newbcast:%d row_mask:0xf bank_mask:0xf" %
                          (V_ACC + 4 * c + r, V_PV, base + r, q))
            e.flush()
        if kind == "K":
            e("s_mov_b64 exec, s[%d:%d]" % (S_STM, S_STM + 1))
            e("ds_write_b64 v%d, v[%d:%d]" % (V_LB0, V_D, V_D + 1))
            e("s_mov_b64 exec, -1")
            if not to_v:
                e("v_add_u32 v%d, %d, v%d" % (V_LB0, NW * 128, V_LB0))
                compute_w()
        if nkind == "V":
            e("s_waitcnt lgkmcnt(0)")
            e("v_mov_b32 v%d, v%d" % (V_PV, V_PVN))

    def lds_inc(off, vz, vt):
        e("v_mov_b32 v%d, 1" % vt)
        e("s_mov_b64 exec, 1")
        e("ds_add_u32 v%d, v%d offset:%d" % (vz, vt, off))
        e("s_mov_b64 exec, -1")

    e("v_lshrrev_b32 v%d, 4, v%d" % (V_T, V_T1))
    e("v_and_b32 v%d, 15, v%d" % (V_T2, V_T1))
    e("v_lshlrev_b32 v%d, 4, v%d" % (V_J16, V_T2))
    e("v_lshlrev_b32 v%d, 3, v%d" % (V_J8, V_T2))
    e("v_lshlrev_b32 v%d, 7, v%d" % (V_T128, V_T))
    e("v_and_b32 v%d, 0x70, v0" % V_TMX)
    e("v_or_b32 v%d, v%d, v%d" % (V_TMX, V_TMX, V_T128))
    e("v_mov_b32 v%d, v%d" % (V_TM, V_TMX))
    e("s_mov_b32 s%d, %d" % (S_768, ROWB))
    e("s_mov_b32 s%d, %d" % (S_384, DH * 2))
    e("s_mov_b32 s%d, 0xaaaaaaab" % S_MAGIC)
    e("v_mov_b32 v%d, 0xc0000000" % V_BIG)
    e("s_lshl_b32 s%d, s%d, 6" % (S_HB, S_G))
    e("s_mov_b32 s%d, s%d" % (S_N, S_NB))
    e("s_mov_b32 s%d, s%d" % (S_CI, S_WAVE))
    tile_addr("K")
    e("s_waitcnt lgkmcnt(0)")
    srd(S_K, 66, H * HEADB)
    issue_group(0, "K")
    e("s_mov_b32 s%d, 0" % S_I)
    srd(S_Q, 64, H * DH * 2)
    load_q(S_I, True)
    srd(S_KS, 70, H * NGRP * DH * 2)
    issue_params("K")
    srd(S_V, 68, H * HEADB)
    if P["stamp"]:
        srd(S_WS, 82, 0x8000000)
    if P["stamp"] == 4:
        e("s_mul_i32 s%d, s2, %d" % (S_DBG + 2, NW))
        e("s_add_u32 s%d, s%d, s%d" % (S_DBG + 2, S_DBG + 2, S_WAVE))
        e("s_lshl_b32 s%d, s%d, 9" % (S_DBG + 2, S_DBG + 2))
        e("s_add_u32 s%d, s%d, 0x4010000" % (S_DBG + 2, S_DBG + 2))
    e("v_lshlrev_b32 v%d, 5, v%d" % (V_T1, V_T))
    e("v_lshrrev_b32 v%d, 2, v%d" % (V_LB0, V_T2))
    e("v_lshl_add_u32 v%d, v%d, 3, v%d" % (V_LB0, V_LB0, V_T1))
    e("s_lshl_b32 s%d, s%d, 7" % (S_T, S_WAVE))
    e("s_add_u32 s%d, s%d, %d" % (S_T, S_T, L_LG))
    e("v_add_u32 v%d, s%d, v%d" % (V_LB0, S_T, V_LB0))
    e("v_and_b32 v%d, 7, v%d" % (V_PB0, V_T2))
    e("v_lshl_add_u32 v%d, v%d, 2, v%d" % (V_PB0, V_PB0, V_T1))
    e("v_add_u32 v%d, %d, v%d" % (V_PB0, L_PV, V_PB0))
    e("v_lshlrev_b32 v%d, 2, v%d" % (V_DO, V_T))
    e("v_add_u32 v%d, v%d, v%d" % (V_DO, V_J16, V_DO))
    e("s_mul_i32 s%d, s%d, %d" % (S_T, S_WAVE, ROWB))
    e("s_add_u32 s%d, s%d, %d" % (S_T, S_T, L_ACC))
    e("v_add_u32 v%d, s%d, v%d" % (V_DO, S_T, V_DO))
    e("v_mov_b32 v%d, 0" % V_Z)
    e("v_mov_b32 v%d, 0" % V_D)
    e("v_mov_b32 v%d, 0" % (V_D + 1))
    e("s_mov_b32 s%d, 0x11111111" % S_STM)
    e("s_mov_b32 s%d, 0x11111111" % (S_STM + 1))
    ev = (1 << TRG1) | (1 << N0) | (1 << TRG2) | (3 << 16) | (3 << 32)
    e("s_mov_b32 s%d, 0x%x" % (S_EV, ev & 0xffffffff))
    e("s_mov_b32 s%d, 0x%x" % (S_EV + 1, ev >> 32))
    for i in range(12):
        e("v_mov_b32 v%d, 0" % (V_ACC + i))
    e("s_barrier")
    compute_w()
    steady = ["g0"] * GR[0]
    e.vm = list(steady)
    e.lines.append(".p2align 6")
    e.label("L_kloop")
    body("K")
    assert e.vm == steady, (e.vm, steady)
    e("s_cmp_lg_u32 s%d, %d" % (S_I, NT - 1))
    e("s_cbranch_scc1 L_kloop")
    body("K", True)
    lds_inc(L_CF + 8, V_Z, V_T1)
    if P["stamp"] == 1:
        e("s_memrealtime s[%d:%d]" % (S_DBG, S_DBG + 1))
    e.lines.append(".p2align 6")
    e.label("L_vloop")
    body("V")
    assert e.vm == steady, (e.vm, steady)
    e("s_and_b32 s%d, s%d, 15" % (S_T, S_I))
    e("s_cbranch_scc1 L_vloop")
    for c in range(3):
        a = V_ACC + 4 * c
        e("v_permlane32_swap_b32 v%d, v%d" % (a, a + 2))
        e("v_permlane32_swap_b32 v%d, v%d" % (a + 1, a + 3))
    for c in range(3):
        a = V_ACC + 4 * c
        e("v_add_f32 v%d, v%d, v%d" % (a, a, a + 2))
        e("v_add_f32 v%d, v%d, v%d" % (a + 1, a + 1, a + 3))
    for c in range(3):
        a = V_ACC + 4 * c
        e("v_permlane16_swap_b32 v%d, v%d" % (a, a + 1))
    e("s_lshr_b32 s%d, s%d, 2" % (S_T, S_I))
    e("v_mov_b32 v%d, s%d" % (V_T0, S_T))
    for c in range(3):
        a = V_ACC + 4 * c
        e("v_add_f32 v%d, v%d, v%d" % (a, a, a + 1))
        e("ds_write_b32 v%d, v%d offset:%d" % (V_DO, a, c * 256))
    lds_inc(L_CA - 4, V_T0, V_T1)
    e("v_add_u32 v%d, %d, v%d" % (V_DO, NW * ROWB, V_DO))
    for i in range(12):
        e("v_mov_b32 v%d, 0" % (V_ACC + i))
    e("s_cmp_lg_u32 s%d, %d" % (S_I, NT))
    e("s_cbranch_scc1 L_vloop")
    if P["stamp"]:
        e("s_memrealtime s[%d:%d]" % (S_T + 2, S_T + 3))
        e("s_getreg_b32 s%d, hwreg(HW_REG_XCC_ID)" % (S_T + 4))
        e("s_waitcnt lgkmcnt(0)")
        e("v_mov_b32 v%d, s%d" % (V_ACC + 0, S_ST))
        e("v_mov_b32 v%d, s%d" % (V_ACC + 1, S_T + 2))
        e("v_mov_b32 v%d, s%d" % (V_ACC + 2, S_T + 4))
        e("v_mov_b32 v%d, s%d" % (V_ACC + 3, S_DBG))
        e("s_mul_i32 s%d, s2, %d" % (S_T, NW))
        e("s_add_u32 s%d, s%d, s%d" % (S_T, S_T, S_WAVE))
        e("s_lshl_b32 s%d, s%d, 4" % (S_T, S_T))
        e("s_add_u32 s%d, s%d, 0x4000000" % (S_T, S_T))
        e("buffer_store_dwordx4 v[%d:%d], v%d, s[%d:%d], s%d offen" % (V_ACC, V_ACC + 3, V_Z, S_WS, S_WS + 3, S_T))
    e.lines.append("L_exit1:")
    e("s_endpgm")

    e.label("L_evK")
    e("s_and_b32 s%d, s%d, 15" % (S_T, S_I))
    e("s_cbranch_scc0 L_evK2")
    e("s_cmp_eq_u32 s%d, %d" % (S_I, N0))
    e("s_cbranch_scc1 L_evK2")
    e("s_lshr_b32 s%d, s%d, 2" % (S_T, S_I))
    e("s_andn2_b32 s%d, s%d, 3" % (S_T, S_T))
    e("s_add_u32 s%d, s%d, %d" % (S_T, S_T, L_CF - 4))
    e("s_cmp_eq_u32 s%d, %d" % (S_I, TRG1))
    e("s_cselect_b32 s%d, %d, s%d" % (S_T, L_EV, S_T))
    e("s_cmp_eq_u32 s%d, %d" % (S_I, TRG2))
    e("s_cselect_b32 s%d, %d, s%d" % (S_T, L_EV + 4, S_T))
    e("v_mov_b32 v%d, s%d" % (V_T0, S_T))
    lds_inc(0, V_T0, V_T1)
    e("s_branch L_evretK")
    e.label("L_evK2")
    if P["stamp"] == 2:
        e("s_cmp_eq_u32 s%d, %d" % (S_I, N0))
        e("s_cbranch_scc0 L_ns2")
        e("s_memrealtime s[%d:%d]" % (S_DBG, S_DBG + 1))
        e.label("L_ns2")
    get_table("K", "tk")
    if P["stamp"] == 3:
        e("s_cmp_eq_u32 s%d, %d" % (S_I, N0))
        e("s_cbranch_scc0 L_evretK")
        e("s_memrealtime s[%d:%d]" % (S_DBG, S_DBG + 1))
    e("s_branch L_evretK")
    e.label("L_evV")
    get_table("V", "tv2")
    e("s_branch L_evretV")

    PG = S_G; PM = S_M
    PNB = 5; PP = 6; PBK = 7
    PB = 8; PWS = 12; PDB = 16
    PO = 20; PFL = 21; PBASE = 22
    PD = 24
    POF = 32
    PT = 40
    PMN = 44; PJ = 45; PRN = 46; PNR = 47
    PE = 48
    PRB = 56; PACC = 58; PGL = 59; PSP = 60; PPH = 61; PSG = 62; PG0 = 63
    PDC = 84
    PS2 = 92; PS3 = 96
    HL = 1; HZ = 2; HW = 3; HA = 4; HB_ = 5; HC = 6; HD = 7; HK = 8; HV = 9; HE = 10; HF = 11; HR = 12; HG = 13
    HN = 14; HT2 = 15
    HX = 16
    BIAS = 65536
    e.wr = {}; e.tr = {}
    e.label("L_helper")
    e("s_sub_u32 s%d, s%d, %d" % (PP, S_WAVE, NW))
    e("s_mov_b32 s%d, s%d" % (PNB, S_NB))
    e("v_mov_b32 v%d, v%d" % (HL, V_T1))
    e("v_mov_b32 v%d, 0" % HZ)
    e("s_lshl_b32 s%d, s%d, 6" % (PGL, PG))
    e("s_add_u32 s%d, s%d, %d" % (PGL, PGL, WS_G))
    e("s_cmp_lt_u32 s%d, 7" % PG)
    e("s_cbranch_scc0 L_noprobe1")
    e("s_max_u32 s%d, s%d, 1" % (PBK, PG))
    e("s_sub_u32 s%d, s%d, 1" % (PBK, PBK))
    e("s_and_b32 s%d, s%d, 1" % (PE, PG))
    e("s_mul_i32 s%d, s%d, 21" % (PO, PE))
    e("s_mul_i32 s%d, s%d, 40" % (PE + 1, PP))
    e("s_add_u32 s%d, s%d, s%d" % (PO, PO, PE + 1))
    e("s_add_u32 s%d, s%d, 2" % (PO, PO))
    e("s_lshl_b32 s%d, s%d, 21" % (PO, PO))
    e("s_xor_b32 s%d, s%d, s%d" % (PFL, PM, PP))
    e("s_and_b32 s%d, s%d, 1" % (PFL, PFL))
    e("s_lshr_b32 s%d, s%d, 2" % (PE + 1, PM))
    e("s_xor_b32 s%d, s%d, s%d" % (PE, PE, PE + 1))
    e("s_xor_b32 s%d, s%d, s%d" % (PE, PE, PFL))
    e("s_lshl_b32 s%d, s%d, 13" % (PE, PE))
    for u in range(8):
        e("s_xor_b32 s%d, s%d, 0x%x" % (POF + u, PE, ((u & 1) << 13) | (((u >> 1) & 1) << 12) | ((u >> 2) << 14)))
    e("v_and_b32 v%d, 7, v%d" % (HW, HL))
    e("v_lshlrev_b32 v%d, 12, v%d" % (HW, HW))
    e("s_lshl_b32 s%d, s%d, 8" % (PE, PM))
    e("v_add_u32 v%d, s%d, v%d" % (HW, PE, HW))
    e("s_mov_b32 s%d, %d" % (PB + 2, H * HEADB))
    e("s_mov_b32 s%d, 0x00020000" % (PB + 3))
    e("s_cmp_ge_u32 s%d, 3" % PBK)
    e("s_cselect_b32 s%d, 3, 0" % PE)
    e("s_sub_u32 s%d, s%d, s%d" % (PE, PBK, PE))
    e("s_lshl_b32 s%d, s%d, 28" % (PE, PE))
    e("s_add_u32 s%d, s%d, s%d" % (PO, PO, PE))
    e("s_cmp_ge_u32 s%d, 3" % PBK)
    e("s_waitcnt lgkmcnt(0)")
    e("s_cselect_b32 s%d, s68, s66" % PB)
    e("s_cselect_b32 s%d, s69, s67" % (PBASE + 1))
    e("s_and_b32 s%d, s%d, 0xffff" % (PB + 1, PBASE + 1))
    e("s_mov_b64 exec, 0xff")
    e("buffer_load_dword v%d, v%d, s[%d:%d], s%d offen" % (HA, HW, PB, PB + 3, PO))
    e("s_mov_b64 exec, -1")
    e("s_add_u32 s%d, s%d, s%d" % (PBASE, PB, PO))
    e("s_addc_u32 s%d, s%d, 0" % (PBASE + 1, PBASE + 1))
    e("s_lshl_b32 s%d, s%d, 8" % (PE, PM))
    e("s_add_u32 s%d, s%d, 128" % (PE, PE))
    e("s_load_dword s%d, s[%d:%d], s%d" % (PJ, PBASE, PBASE + 1, PE))
    e.label("L_noprobe1")
    e("s_waitcnt lgkmcnt(0)")
    srd(PWS, 82, WS_SIZE)
    srd(PDB, 80, 256)
    e("s_lshl_b32 s%d, s2, 2" % PE)
    e("s_add_u32 s%d, s%d, s%d" % (PE, PE, PP))
    e("s_cmp_lg_u32 s%d, 1" % PE)
    e("s_cbranch_scc1 L_nolead")
    for i in range(4):
        e("v_mov_b32 v%d, 0" % (HX + i))
    e("v_lshlrev_b32 v%d, 4, v%d" % (HB_, HL))
    e("s_mov_b32 s%d, %d" % (PE, WS_G))
    e("buffer_store_dwordx4 v[%d:%d], v%d, s[%d:%d], s%d offen sc1" % (HX, HX + 3, HB_, PWS, PWS + 3, PE))
    e("buffer_store_dwordx4 v[%d:%d], v%d, s[%d:%d], s%d offen offset:1024 sc1" % (HX, HX + 3, HB_, PWS, PWS + 3, PE))
    e.label("L_nolead")
    e("s_cmp_lg_u32 s%d, 0" % PP)
    e("s_cbranch_scc1 L_hbar")
    e("v_lshlrev_b32 v%d, 2, v%d" % (HB_, HL))
    e("ds_write_b32 v%d, v%d" % (HB_, HZ))
    e("s_waitcnt lgkmcnt(0)")
    e.label("L_hbar")
    e("s_barrier")
    e("s_cmp_lt_u32 s%d, 7" % PG)
    e("s_cbranch_scc0 L_role")
    e("s_mov_b32 s%d, 1" % PRN)
    e("s_mov_b32 s%d, 0" % PACC)
    e("s_cmp_lt_u32 s%d, 2" % PG)
    e("s_cselect_b32 s%d, %d, %d" % (PNR, P["nr0"], NR))
    e("s_waitcnt vmcnt(0)")
    e.label("L_round")
    e("s_add_u32 s%d, s%d, s%d" % (PE, PM, PRN))
    e("s_and_b32 s%d, s%d, 7" % (PE, PE))
    e("s_lshl_b32 s%d, s%d, 8" % (PE, PE))
    e("s_add_u32 s%d, s%d, s%d" % (PRB, PBASE, PE))
    e("s_addc_u32 s%d, s%d, 0" % (PRB + 1, PBASE + 1))
    e("s_mov_b32 s%d, -1" % PMN)
    e("s_memtime s[%d:%d]" % (PT, PT + 1))
    e("s_waitcnt lgkmcnt(0)")
    for u in range(8):
        a = PT + 2 * (u & 1); b = PT + 2 * ((u + 1) & 1)
        e("s_load_dword s%d, s[%d:%d], s%d" % (PJ, PRB, PRB + 1, POF + u))
        e("s_waitcnt lgkmcnt(0)")
        e("s_memtime s[%d:%d]" % (b, b + 1))
        e("s_waitcnt lgkmcnt(0)")
        e("s_sub_u32 s%d, s%d, s%d" % (PD + u, b, a))
    for u in range(8):
        e("s_min_u32 s%d, s%d, %d" % (PD + u, PD + u, P["clip"]))
        e("s_min_u32 s%d, s%d, s%d" % (PMN, PMN, PD + u))
    e("s_cmp_lt_u32 s%d, %d" % (PMN, P["l2t"]))
    e("s_cbranch_scc1 L_skip")
    for u in range(8):
        e("s_%s_u32 s%d, s%d, s%d" % ("add" if u & 1 else "sub", PACC, PACC, PD + u))
    e.label("L_skip")
    e("s_add_u32 s%d, s%d, 1" % (PRN, PRN))
    e("s_cmp_le_u32 s%d, s%d" % (PRN, PNR))
    e("s_cbranch_scc1 L_round")
    e("s_sub_u32 s%d, 0, s%d" % (PE, PACC))
    e("s_cmp_eq_u32 s%d, 0" % PFL)
    e("s_cselect_b32 s%d, s%d, s%d" % (PACC, PACC, PE))
    e("s_add_u32 s%d, s%d, 0x%x" % (PACC, PACC, BIAS + (1 << 24)))
    e("v_mov_b32 v%d, s%d" % (HA, PACC))
    e("s_mov_b64 exec, 1")
    e("ds_add_rtn_u32 v%d, v%d, v%d offset:%d" % (HB_, HZ, HA, L_PC))
    e("s_lshl_b32 s%d, s%d, 2" % (PE, PBK))
    e("s_add_u32 s%d, s%d, 124" % (PE, PE))
    e("s_cmp_eq_u32 s%d, 0" % PBK)
    e("s_cselect_b32 s%d, 0, s%d" % (PE, PE))
    e("s_waitcnt lgkmcnt(0)")
    e("v_add_u32 v%d, v%d, v%d" % (HA, HA, HB_))
    e("v_subrev_u32 v%d, 0x2000000, v%d" % (HA, HA))
    e("v_cmp_le_u32 vcc, 0x2000000, v%d" % HB_)
    e("s_and_b64 exec, exec, vcc")
    e("buffer_atomic_add v%d, off, s[%d:%d], s%d" % (HA, PDB, PDB + 3, PE))
    e("s_mov_b64 exec, -1")
    e.label("L_role")
    e("s_cmp_eq_u32 s%d, 0" % PP)
    e("s_cbranch_scc1 L_h0")
    e("s_cmp_eq_u32 s%d, 2" % PP)
    e("s_cbranch_scc1 L_h2")

    def decode(tag, nl, off, cnt, rounds, dst, b0):
        lds_wait("e" + tag, HZ, HE, PE, L_EV + (4 if b0 else 0), "nz", PSP)
        e("s_mov_b64 exec, 0x%x" % ((1 << nl) - 1))
        e("s_mov_b32 s%d, 0x40000" % PSP)
        if not P["xkp"] & 4:
            e.label("L_poll" + tag)
            e("buffer_load_dword v%d, v%d, s[%d:%d], 0 offen offset:%d sc1" % (HA, HB_, PDB, PDB + 3, off))
            e("s_sub_u32 s%d, s%d, 1" % (PSP, PSP))
            e("s_cbranch_scc1 L_exit1")
            e("s_waitcnt vmcnt(0)")
            e("v_lshrrev_b32 v%d, 24, v%d" % (HC, HA))
            e("v_cmp_ne_u32 vcc, %d, v%d" % (cnt, HC))
            e("s_cbranch_vccnz L_poll" + tag)
        th = P["th"] * 3 * cnt * rounds
        e("v_and_b32 v%d, 0xffffff, v%d" % (HA, HA))
        e("v_subrev_u32 v%d, %d, v%d" % (HA, 3 * cnt * BIAS, HA))
        e("v_lshrrev_b32 v%d, 30, v%d" % (HC, HA))
        e("v_and_b32 v%d, 2, v%d" % (HC, HC))
        e("v_add_u32 v%d, %d, v%d" % (HA, th, HA))
        e("v_cmp_gt_u32 vcc, %d, v%d" % (2 * th, HA))
        e("v_cndmask_b32 v%d, v%d, 8, vcc" % (HC, HC))
        if P["force"] == 1:
            e("v_mov_b32 v%d, 8" % HC)
        if P["force"] >= 2:
            e("s_mov_b32 s%d, 0x7000000" % PE)
            e("s_load_dwordx4 s[%d:%d], s[82:83], s%d" % (PS2, PS2 + 3, PE))
            e("s_waitcnt lgkmcnt(0)")
            for l in range(nl):
                b = b0 + l
                e("s_lshr_b64 s[%d:%d], s[%d:%d], %d" % (PE, PE + 1, PS2 + 2 * (b // 3), PS2 + 2 * (b // 3) + 1, 16 * (b % 3)))
                e("s_and_b32 s%d, s%d, %d" % (PE, PE, P["ob"]))
                e("s_xor_b32 s%d, s%d, %d" % (PE, PE, P["ox"]))
                e("v_writelane_b32 v%d, s%d, %d" % (HC, PE, l))
        e("v_or_b32 v%d, 16, v%d" % (HC, HC))
        e("ds_write_b32 v%d, v%d offset:%d" % (HB_, HC, dst))
        e("s_mov_b64 exec, -1")

    e("v_lshlrev_b32 v%d, 2, v%d" % (HB_, HL))
    decode("a", 1, 0, 16, P["nr0"], L_DEC, 0)
    decode("b", 5, 128, 8, NR, L_DEC + 4, 1)
    e("s_endpgm")

    def seg_scalars():
        e("s_lshl_b32 s%d, s%d, 5" % (PSG, PPH))
        e("s_add_u32 s%d, s%d, s%d" % (PSG, PSG, PG))
        e("s_lshl_b32 s%d, s%d, 15" % (PG0, PSG))
        e("s_add_u32 s%d, s%d, 1" % (PG0, PG0))
        e("s_mul_hi_u32 s%d, s%d, 0xaaaaaaab" % (PG0, PG0))
        e("s_lshr_b32 s%d, s%d, 7" % (PG0, PG0))

    def get_dec(tag):
        lds_wait(tag, HZ, HE, PE, L_DEC + 20, "nz", PSP)
        e("ds_read_b128 v[%d:%d], v%d offset:%d" % (HX, HX + 3, HZ, L_DEC))
        e("ds_read_b64 v[%d:%d], v%d offset:%d" % (HX + 4, HX + 5, HZ, L_DEC + 16))
        e("s_waitcnt lgkmcnt(0)")
        for i in range(6):
            e("v_readfirstlane_b32 s%d, v%d" % (PDC + i, HX + i))

    e.label("L_h0")
    srd(PB, 64, H * DH * 2)
    srd(PS2, 70, H * NGRP * DH * 2)
    srd(PS3, 72, H * NGRP * DH * 2)
    e("v_lshrrev_b32 v%d, 4, v%d" % (HA, HL))
    e("v_and_b32 v%d, 15, v%d" % (HB_, HL))
    e("v_lshlrev_b32 v%d, 3, v%d" % (HC, HB_))
    e("v_mul_u32_u24 v%d, %d, v%d" % (HD, DH * 2, HA))
    e("v_add_u32 v%d, v%d, v%d" % (HD, HD, HC))
    e("v_lshl_add_u32 v%d, v%d, 2, v%d" % (HG, HB_, HA))
    e("v_lshlrev_b32 v%d, 2, v%d" % (HG, HG))
    e("s_mov_b32 s%d, 0" % PPH)
    BQ = HX; BS = HX + 12; BZ = BS + 36; BR = BZ + 36
    e.label("L_bias")
    seg_scalars()
    e("s_mul_i32 s%d, s%d, 171" % (PE, PSG))
    e("s_lshr_b32 s%d, s%d, 9" % (PE, PE))
    e("s_mul_i32 s%d, s%d, %d" % (PE, PE, DH * 2))
    e("s_mul_i32 s%d, s%d, 24" % (PE + 1, PM))
    e("s_add_u32 s%d, s%d, s%d" % (PE + 2, PE + 1, PG0))
    e("s_mul_i32 s%d, s%d, %d" % (PE + 2, PE + 2, DH * 2))
    e("v_add_u32 v%d, s%d, v%d" % (HE, PE + 2, HD))
    e("v_add_u32 v%d, %d, v%d" % (HF, 8 * DH * 2, HE))
    e("v_add_u32 v%d, %d, v%d" % (HR, 16 * DH * 2, HE))
    for c in range(3):
        e("buffer_load_dwordx2 v[%d:%d], v%d, s[%d:%d], s%d offen offset:%d" % (BR + 2 * c, BR + 2 * c + 1, HC, PB, PB + 3, PE, c * 128))
    for st in range(6):
        va = (HE, HF, HR)[st // 2]
        for sr, bb in ((PS2, BS), (PS3, BZ)):
            for c in range(3):
                r = bb + st * 6 + 2 * c
                e("buffer_load_dwordx2 v[%d:%d], v%d, s[%d:%d], 0 offen offset:%d" %
                  (r, r + 1, va, sr, sr + 3, (st & 1) * 4 * DH * 2 + c * 128))
    e("s_waitcnt vmcnt(0)")
    for p in range(6):
        e("v_lshlrev_b32 v%d, 16, v%d" % (BQ + 2 * p, BR + p))
        e("v_and_b32 v%d, 0xffff0000, v%d" % (BQ + 2 * p + 1, BR + p))
    for st in range(6):
        acc = BR + st
        for p in range(6):
            rs = BS + st * 6 + p; rz = BZ + st * 6 + p
            e("v_lshlrev_b32 v%d, 16, v%d" % (HE, rs))
            e("v_lshlrev_b32 v%d, 16, v%d" % (HF, rz))
            e("v_and_b32 v%d, 0xffff0000, v%d" % (rs, rs))
            e("v_and_b32 v%d, 0xffff0000, v%d" % (rz, rz))
            e("v_mul_f32 v%d, v%d, v%d" % (HE, HE, BQ + 2 * p))
            e("v_mul_f32 v%d, v%d, v%d" % (rs, rs, BQ + 2 * p + 1))
            if p == 0:
                e("v_mul_f32 v%d, v%d, v%d" % (acc, HE, HF))
            else:
                e("v_fmac_f32 v%d, v%d, v%d" % (acc, HE, HF))
            e("v_fmac_f32 v%d, v%d, v%d" % (acc, rs, rz))
    for kk in (8, 4, 2, 1):
        for st in range(6):
            e("v_add_f32_dpp v%d, v%d, v%d row_ror:%d row_mask:0xf bank_mask:0xf" % (BR + st, BR + st, BR + st, kk))
    for st in range(1, 6):
        e("v_cmp_eq_u32 vcc, %d, v%d" % (st, HB_))
        e("v_cndmask_b32 v%d, v%d, v%d, vcc" % (BR, BR, BR + st))
    e("s_mul_i32 s%d, s%d, 768" % (PE, PSG))
    e("s_lshl_b32 s%d, s%d, 2" % (PE + 1, PE + 1))
    e("s_add_u32 s%d, s%d, s%d" % (PE, PE, PE + 1))
    e("s_add_u32 s%d, s%d, %d" % (PE, PE, WS_B))
    e("s_mov_b32 exec_lo, 0x003f003f")
    e("s_mov_b32 exec_hi, 0x003f003f")
    e("buffer_store_dword v%d, v%d, s[%d:%d], s%d offen sc1" % (BR, HG, PWS, PWS + 3, PE))
    e("s_mov_b64 exec, -1")
    e("s_add_u32 s%d, s%d, 1" % (PPH, PPH))
    e("s_cmp_lt_u32 s%d, 3" % PPH)
    e("s_cbranch_scc1 L_bias")
    e("v_lshlrev_b32 v%d, 4, v%d" % (HA, HL))
    e("s_lshl_b32 s%d, s%d, 2" % (PE + 4, PNB))
    e("s_add_u32 s%d, s%d, s%d" % (PE + 4, PE + 4, PGL))
    e("s_lshl_b32 s%d, s%d, 3" % (PE + 5, PG))
    e("s_add_u32 s%d, s%d, s%d" % (PE + 5, PE + 5, PNB))
    e("s_mul_i32 s%d, s%d, %d" % (PE + 5, PE + 5, IMG))
    e("s_add_u32 s%d, s%d, %d" % (PE + 5, PE + 5, WS_L))
    get_dec("d0")
    for p in range(3):
        lds_wait("f%d" % p, HZ, HE, PE, L_CF + 4 * p, "4", PSP)
        n1 = (N0 + 1) // 2 if p == 0 else 0
        e("s_cmp_eq_u32 s%d, s%d" % (PDC + p, PDC + 3 + p))
        if n1 == 0:
            e("s_cbranch_scc1 L_fl%d" % p)
        for k in range(8):
            e("ds_read_b128 v[%d:%d], v%d offset:%d" % (HX + 4 * k, HX + 4 * k + 3, HA, L_LG + p * 8192 + k * 1024))
        e("s_add_u32 s%d, s%d, %d" % (PE + 6, PE + 5, p * 8192))
        e("s_add_u32 s%d, s%d, %d" % (PE + 7, PE + 5, p * 8192 + 4096))
        e("s_cmp_eq_u32 s%d, s%d" % (PDC + p, PDC + 3 + p))
        e("s_waitcnt lgkmcnt(0)")
        for k in range(8):
            if n1 and k == n1:
                e("s_cbranch_scc1 L_fl%d" % p)
            e("buffer_store_dwordx4 v[%d:%d], v%d, s[%d:%d], s%d offen offset:%d sc1" %
              (HX + 4 * k, HX + 4 * k + 3, HA, PWS, PWS + 3, PE + 6 + k // 4, (k % 4) * 1024))
        e.label("L_fl%d" % p)
        e("v_mov_b32 v%d, %d" % (HE, p + 1))
        e("s_waitcnt vmcnt(0)")
        e("s_mov_b64 exec, 1")
        if p:
            e("s_cbranch_scc1 L_fn%d" % p)
        e("buffer_store_dword v%d, off, s[%d:%d], s%d sc1" % (HE, PWS, PWS + 3, PE + 4))
        if p:
            e.label("L_fn%d" % p)
        e("ds_write_b32 v%d, v%d offset:%d" % (HZ, HE, L_FD))
        e("s_mov_b64 exec, -1")
    e("s_endpgm")

    e.label("L_h2")
    srd(PS2, 74, H * SKV * 2)
    srd(PS3, 76, H * SKV * 2)
    if P["pf"]:
        if P["pf"] == 2:
            lds_wait("pf", HZ, HE, PE, L_EV + 4, "nz", PSP)
        e("v_lshlrev_b32 v%d, 4, v%d" % (HA, HL))
        e("s_mul_i32 s%d, s%d, 2736" % (PE + 1, PM))
        for p in range(3):
            e("s_add_u32 s%d, s%d, %d" % (PE, PG, 32 * p))
            e("s_lshl_b32 s%d, s%d, 16" % (PE, PE))
            e("s_mul_hi_u32 s%d, s%d, 0xaaaaaaab" % (PE, PE))
            e("s_lshr_b32 s%d, s%d, 5" % (PE, PE))
            e("s_lshl_b32 s%d, s%d, 4" % (PE, PE))
            e("s_add_u32 s%d, s%d, s%d" % (PE + 2 + p, PE, PE + 1))
            for a, sr in enumerate((PS2, PS3)):
                for k in range(3):
                    r = HX + 8 + 4 * (p * 6 + a * 3 + k)
                    e("buffer_load_dwordx4 v[%d:%d], v%d, s[%d:%d], s%d offen offset:%d" % (r, r + 3, HA, sr, sr + 3, PE + 2 + p, k * 1024))
    get_dec("d2")
    PSIX = 24
    PKW = 32; PNEED = 33; PN0 = 34; PIM = 35; PCH = 36; PCC = 37; PMG = 38; PWD = 39; PIS = 40
    HT = HW
    e("v_and_b32 v%d, 3, v%d" % (HT, HL))
    e("v_and_b32 v%d, 7, v%d" % (HT2, HL))
    e("v_lshrrev_b32 v%d, 2, v%d" % (HR, HL))
    e("s_mov_b32 s%d, %s" % (PCC, f32hex(C)))
    e("s_mov_b32 s%d, 0xaaaaaaab" % PMG)
    e("s_mov_b32 s%d, 0" % PPH)
    e("s_mul_i32 s%d, s%d, %d" % (PIM, PG, 8 * IMG))
    e("s_add_u32 s%d, s%d, %d" % (PIM, PIM, WS_L))
    e("s_mov_b32 s%d, %d" % (PIS, IMG))
    e("v_lshlrev_b32 v%d, 5, v%d" % (HN, HL))
    e("s_mov_b32 s%d, %d" % (PN0, N0))
    RS = 16
    e.label("L_prep")
    seg_scalars()
    e("s_mov_b32 s%d, s%d" % (PKW, PDC))
    e("s_mov_b32 s%d, s%d" % (PWD, PDC + 3))
    for i in (0, 1, 3, 4):
        e("s_mov_b32 s%d, s%d" % (PDC + i, PDC + i + 1))
    e("s_add_u32 s%d, s%d, 1" % (PNEED, PPH))
    lds_wait("fd", HZ, HE, PE, L_FD, "s%d" % PNEED, PSP)
    e("s_xor_b32 s%d, s%d, s%d" % (PE, PKW, PWD))
    e("s_or_b32 s%d, s%d, s%d" % (PE, PE, PN0))
    e("s_cbranch_scc0 L_noflags")
    e("v_lshlrev_b32 v%d, 2, v%d" % (HA, HL))
    e("s_xor_b32 s%d, s%d, s%d" % (PE, PKW, PWD))
    e("s_xor_b32 s%d, s%d, s%d" % (PE, PE, PNB))
    e("s_and_b32 s%d, s%d, 7" % (PE, PE))
    e("v_mov_b32 v%d, s%d" % (HC, PNEED))
    e("s_lshl_b64 vcc, 1, s%d" % PE)
    e("s_or_b32 s%d, s%d, s%d" % (PE, PKW, PWD))
    e("s_bitcmp1_b32 s%d, 3" % PE)
    e("s_cselect_b64 vcc, -1, vcc")
    e("v_cndmask_b32 v%d, 1, v%d, vcc" % (HC, HC))
    e("s_mov_b64 exec, 0xff")
    e("s_mov_b32 s%d, 0x40000" % PSP)
    e.label("L_flags")
    e("buffer_load_dword v%d, v%d, s[%d:%d], s%d offen sc1" % (HB_, HA, PWS, PWS + 3, PGL))
    e("s_sub_u32 s%d, s%d, 1" % (PSP, PSP))
    e("s_cbranch_scc1 L_exit1")
    e("s_waitcnt vmcnt(0)")
    e("v_cmp_gt_u32 vcc, v%d, v%d" % (HC, HB_))
    e("s_cbranch_vccnz L_flags")
    e("s_mov_b64 exec, -1")
    e.label("L_noflags")
    for w, hv in ((PKW, HK), (PWD, HV)):
        e("s_and_b32 s%d, s%d, 7" % (PE, w))
        e("v_mov_b32 v%d, s%d" % (hv, PE))
        e("s_bitcmp1_b32 s%d, 3" % w)
        e("s_cselect_b64 vcc, -1, 0")
        e("v_cndmask_b32 v%d, v%d, v%d, vcc" % (hv, hv, HT2))
    e("v_xor_b32 v%d, s%d, v%d" % (HG, PNB, HV))
    e("v_lshl_or_b32 v%d, v%d, 3, v%d" % (HG, HT, HG))
    e("s_lshl_b32 s%d, s%d, 6" % (PCH, PSG))
    e("s_mul_i32 s%d, s%d, 768" % (PE + 1, PSG))
    e("s_lshl_b32 s%d, s%d, 2" % (PE + 2, PG0))
    e("s_sub_u32 s%d, s%d, s%d" % (PE + 1, PE + 1, PE + 2))
    e("s_add_u32 s%d, s%d, %d" % (PE + 1, PE + 1, WS_B))
    e("s_waitcnt vmcnt(0)")
    for st in range(4):
        R = HX + RS * st
        e("v_add_u32 v%d, %d, v%d" % (HA, 16 * st, HR))
        if 4 * st < N0:
            e("v_lshrrev_b32 v%d, 2, v%d" % (HB_, HA))
            e("v_cmp_gt_u32 vcc, s%d, v%d" % (PN0, HB_))
            e("v_cndmask_b32 v%d, v%d, v%d, vcc" % (HD, HK, HT2))
            kx = HD
        else:
            kx = HK
        e("v_cmp_eq_u32 vcc, v%d, v%d" % (kx, HV))
        e("v_xor_b32 v%d, v%d, v%d" % (HD, kx, HG))
        e("v_and_b32 v%d, 7, v%d" % (HD, HD))
        e("v_mad_u32_u24 v%d, v%d, s%d, v%d" % (HD, HD, PIS, HN))
        e("v_bfe_u32 v%d, v%d, 3, 2" % (HB_, HA))
        e("v_and_or_b32 v%d, v%d, 4, v%d" % (HB_, HA, HB_))
        e("v_xor_b32 v%d, v%d, v%d" % (HB_, HG, HB_))
        e("v_add_u32 v%d, s%d, v%d" % (HA, PCH, HA))
        e("v_lshl_add_u32 v%d, v%d, 5, v%d" % (HC, HA, HB_))
        e("v_lshl_add_u32 v%d, v%d, 4, 1" % (HC, HC))
        e("v_mul_hi_u32 v%d, v%d, s%d" % (HC, HC, PMG))
        e("v_lshrrev_b32 v%d, 1, v%d" % (HC, HC))
        e("s_mov_b64 exec, vcc")
        e("ds_read_b128 v[%d:%d], v%d offset:%d" % (R, R + 3, HN, L_LG + st * 2048))
        e("ds_read_b64 v[%d:%d], v%d offset:%d" % (R + 4, R + 5, HN, L_LG + st * 2048 + 16))
        e("s_not_b64 exec, vcc")
        e("s_add_u32 s%d, s%d, %d" % (PE + 2, PIM, st * 2048))
        e("buffer_load_dwordx4 v[%d:%d], v%d, s[%d:%d], s%d offen sc1" % (R, R + 3, HD, PWS, PWS + 3, PE + 2))
        e("buffer_load_dwordx2 v[%d:%d], v%d, s[%d:%d], s%d offen offset:16 sc1" % (R + 4, R + 5, HD, PWS, PWS + 3, PE + 2))
        e("s_mov_b64 exec, -1")
        e("v_lshrrev_b32 v%d, 6, v%d" % (HE, HC))
        e("v_lshl_add_u32 v%d, v%d, 2, s%d" % (HE, HE, PE + 1))
        e("buffer_load_dword v%d, v%d, s[%d:%d], 0 offen sc1" % (R + 6, HE, PWS, PWS + 3))
        e("v_lshrrev_b32 v%d, 1, v%d" % (HF, HC))
        e("v_lshlrev_b32 v%d, 2, v%d" % (HF, HF))
        for b, sr in ((R + 8, PS2), (R + 12, PS3)):
            if P["xkp"] & 8:
                continue
            e("buffer_load_dwordx3 v[%d:%d], v%d, s[%d:%d], 0 offen" % (b, b + 2, HF, sr, sr + 3))
            e("buffer_load_dword v%d, v%d, s[%d:%d], 0 offen offset:12" % (b + 3, HF, sr, sr + 3))
        e("v_and_b32 v%d, 15, v%d" % (HD, HC))
        e("v_cmp_eq_u32 s[%d:%d], 5, v%d" % (PSIX + 2 * st, PSIX + 2 * st + 1, HD))
        e("v_and_b32 v%d, 1, v%d" % (R + 7, HC))
        e("v_lshlrev_b32 v%d, 4, v%d" % (R + 7, R + 7))
    e("s_mov_b32 s%d, 0" % PN0)
    e("v_mov_b32 v%d, 0x%08x" % (HB_, BIGNEG))
    e("v_mov_b32 v%d, 0x%08x" % (HA, BIGNEG))
    e("s_waitcnt vmcnt(0) lgkmcnt(0)")
    for st in range(4):
        R = HX + RS * st
        for k in range(6):
            e("v_sub_f32 v%d, v%d, v%d" % (R + k, R + k, R + 6))
        for k in range(6):
            e("v_mul_f32 v%d, s%d, v%d" % (R + k, PCC, R + k))
        e("v_cndmask_b32 v%d, v%d, v%d, s[%d:%d]" % (R + 5, HB_, R + 5, PSIX + 2 * st, PSIX + 2 * st + 1))
        for k in range(0, 6, 2):
            e("v_max3_f32 v%d, v%d, v%d, v%d" % (HA, HA, R + k, R + k + 1))
        for b in (R + 8, R + 12):
            for k in range(3):
                e("v_alignbit_b32 v%d, v%d, v%d, v%d" % (b + k, b + k + 1, b + k, R + 7))

    def wave_reduce(regs, op, tmp):
        for kk in (8, 4, 2, 1):
            for r in regs:
                e("%s_dpp v%d, v%d, v%d row_ror:%d row_mask:0xf bank_mask:0xf" % (op, r, r, r, kk))
        for sw in ("v_permlane32_swap_b32", "v_permlane16_swap_b32"):
            for r, t in zip(regs, tmp):
                e("v_mov_b32 v%d, v%d" % (t, r))
            for r, t in zip(regs, tmp):
                e("%s v%d, v%d" % (sw, r, t))
            for r, t in zip(regs, tmp):
                e("%s v%d, v%d, v%d" % (op, r, r, t))

    wave_reduce([HA], "v_max_f32", [HB_])
    e("v_mov_b32 v%d, 0" % HB_)
    e("v_mov_b32 v%d, 0" % HC)
    for st in range(4):
        R = HX + RS * st
        for k in range(6):
            e("v_sub_f32 v%d, v%d, v%d" % (R + k, R + k, HA))
        for k in range(6):
            e("v_exp_f32 v%d, v%d" % (R + k, R + k))
        for k in range(6):
            e("v_add_f32 v%d, v%d, v%d" % (HB_, HB_, R + k))
            if k & 1:
                e("v_and_b32 v%d, 0xffff0000, v%d" % (HE, R + 8 + k // 2))
                e("v_and_b32 v%d, 0xffff0000, v%d" % (HF, R + 12 + k // 2))
            else:
                e("v_lshlrev_b32 v%d, 16, v%d" % (HE, R + 8 + k // 2))
                e("v_lshlrev_b32 v%d, 16, v%d" % (HF, R + 12 + k // 2))
            e("v_mul_f32 v%d, v%d, v%d" % (R + k, R + k, HE))
            e("v_fmac_f32 v%d, v%d, v%d" % (HC, R + k, HF))
        e("ds_write_b128 v%d, v[%d:%d] offset:%d" % (HN, R, R + 3, L_PV + st * 2048))
        e("ds_write_b64 v%d, v[%d:%d] offset:%d" % (HN, R + 4, R + 5, L_PV + st * 2048 + 16))
    wave_reduce([HB_, HC], "v_add_f32", [HE, HF])
    e("s_lshl_b32 s%d, s%d, 2" % (PE, PPH))
    e("v_mov_b32 v%d, s%d" % (HE, PE))
    e("v_lshlrev_b32 v%d, 2, v%d" % (HF, HE))
    e("v_mov_b32 v%d, s%d" % (HD, PWD))
    e("s_mov_b64 exec, 1")
    e("ds_write_b128 v%d, v[%d:%d] offset:%d" % (HF, HA, HD, L_ML))
    e("ds_write_b32 v%d, v%d offset:%d" % (HE, HD, L_GO))
    e("s_mov_b64 exec, -1")
    e("v_add_u32 v%d, 8192, v%d" % (HN, HN))
    e("s_add_u32 s%d, s%d, 1" % (PPH, PPH))
    e("s_cmp_lt_u32 s%d, 3" % PPH)
    e("s_cbranch_scc1 L_prep")
    e("s_mov_b32 s%d, 0" % PPH)
    e("v_lshlrev_b32 v%d, 2, v%d" % (HR, HL))
    e("v_add_u32 v%d, %d, v%d" % (HG, L_ACC, HR))
    e.label("L_merge")
    e("s_lshl_b32 s%d, s%d, 2" % (PE, PPH))
    e("v_mov_b32 v%d, s%d" % (HW, PE))
    e("v_lshlrev_b32 v%d, 2, v%d" % (HF, HW))
    e("ds_read_b128 v[%d:%d], v%d offset:%d" % (HA, HD, HF, L_ML))
    e("s_lshl_b32 s%d, s%d, 8" % (PSG, PPH))
    e("s_add_u32 s%d, s%d, s2" % (PSG, PSG))
    e("s_lshl_b32 s%d, s%d, 10" % (PSG, PSG))
    lds_wait("m", HZ, HE, PE, L_CA, "4", PSP, HW)
    for kk in range(3):
        for w in range(NW):
            e("ds_read_b32 v%d, v%d offset:%d" % (HX + kk * NW + w, HG, w * ROWB + kk * 256))
    for kk in range(3):
        b = HX + kk * NW
        e("s_waitcnt lgkmcnt(%d)" % (8 - 4 * kk))
        e("v_add_f32 v%d, v%d, v%d" % (b, b, b + 1))
        e("v_add_f32 v%d, v%d, v%d" % (b + 2, b + 2, b + 3))
        e("v_sub_f32 v%d, v%d, v%d" % (b, b, HC))
        e("v_add_f32 v%d, v%d, v%d" % (b, b, b + 2))
        e("buffer_store_dword v%d, v%d, s[%d:%d], s%d offen offset:%d" % (b, HR, PWS, PWS + 3, PSG, kk * 256))
    e("s_mov_b64 exec, 1")
    e("buffer_store_dwordx2 v[%d:%d], off, s[%d:%d], s%d offset:%d" % (HA, HB_, PWS, PWS + 3, PSG, DH * 4))
    e("s_mov_b64 exec, -1")
    e("v_add_u32 v%d, %d, v%d" % (HG, NW * ROWB, HG))
    e("s_add_u32 s%d, s%d, 1" % (PPH, PPH))
    e("s_cmp_lt_u32 s%d, 3" % PPH)
    e("s_cbranch_scc1 L_merge")
    e("s_endpgm")

    RPW = 24
    k2 = NAME + "_kernel"
    e.lines.append(".globl %s" % k2)
    e.lines.append(".p2align 8")
    e.lines.append(".type %s,@function" % k2)
    e.lines.append(k2 + ":")
    e.wr = {}; e.tr = {}; e.sw = {}
    e("s_cmp_ge_u32 s2, %d" % H)
    e("s_cbranch_scc1 L_exit2")
    e("s_load_dwordx2 s[4:5], s[0:1], 56")
    e("s_load_dwordx2 s[6:7], s[0:1], 72")
    e("v_lshlrev_b32 v1, 2, v0")
    e("v_mov_b32 v2, 0")
    e("s_mul_i32 s16, s2, %d" % (RPW * PART_STRIDE))
    e("s_mov_b32 s10, %d" % (3 * NWG * PART_STRIDE))
    e("s_mov_b32 s11, 0x00020000")
    e("s_mov_b32 s14, %d" % (H * DH * 2))
    e("s_mov_b32 s15, 0x00020000")
    for k in range(1, RPW // 4):
        e("s_add_u32 s%d, s16, %d" % (16 + k, 4 * k * PART_STRIDE))
    e("s_waitcnt lgkmcnt(0)")
    e("s_mov_b32 s8, s6")
    e("s_and_b32 s9, s7, 0xffff")
    e("s_mov_b32 s12, s4")
    e("s_and_b32 s13, s5, 0xffff")
    MLB = 8
    OB = MLB + 2 * RPW
    for s in range(RPW):
        so = 16 + s // 4
        e("buffer_load_dwordx2 v[%d:%d], v2, s[8:11], s%d offen offset:%d" %
          (MLB + 2 * s, MLB + 2 * s + 1, so, (s % 4) * PART_STRIDE + DH * 4))
        e("buffer_load_dword v%d, v1, s[8:11], s%d offen offset:%d" % (OB + s, so, (s % 4) * PART_STRIDE))
    e("s_waitcnt vmcnt(0)")
    e("v_mov_b32 v4, v%d" % MLB)
    for s in range(1, RPW):
        e("v_max_f32 v4, v4, v%d" % (MLB + 2 * s))
    for s in range(RPW):
        e("v_sub_f32 v%d, v%d, v4" % (MLB + 2 * s, MLB + 2 * s))
    for s in range(RPW):
        e("v_exp_f32 v%d, v%d" % (MLB + 2 * s, MLB + 2 * s))
    e("v_mul_f32 v5, v%d, v%d" % (MLB, MLB + 1))
    e("v_mul_f32 v6, v%d, v%d" % (MLB, OB))
    for s in range(1, RPW):
        e("v_fmac_f32 v5, v%d, v%d" % (MLB + 2 * s, MLB + 2 * s + 1))
        e("v_fmac_f32 v6, v%d, v%d" % (MLB + 2 * s, OB + s))
    e("v_rcp_f32 v5, v5")
    e("v_mul_f32 v6, v6, v5")
    e("v_cvt_pk_bf16_f32 v6, v6, v6")
    e("s_mul_i32 s16, s2, %d" % (DH * 2))
    e("v_lshrrev_b32 v1, 1, v1")
    e("buffer_store_short v6, v1, s[12:15], s16 offen")
    e.lines.append("L_exit2:")
    e("s_endpgm")
    NV2 = OB + RPW

    def kd(name, nv, ns):
        acc = (nv + 3) // 4 * 4
        return """.amdhsa_kernel %s
  .amdhsa_next_free_vgpr %d
  .amdhsa_next_free_sgpr %d
  .amdhsa_accum_offset %d
  .amdhsa_group_segment_fixed_size 0
  .amdhsa_kernarg_size 80
  .amdhsa_user_sgpr_count 2
  .amdhsa_user_sgpr_kernarg_segment_ptr 1
  .amdhsa_system_sgpr_workgroup_id_x 1
.end_amdhsa_kernel
""" % (name, nv, ns, acc)

    out = HEADER.replace("gen.py", "gen6.py").format(params=" ".join("%s=%s" % kv for kv in sorted(P.items())))
    out += "; @launch kernel=%s grid=(%d,1,1) block=(%d,1,1) lds=%d\n" % (k1, NWG, (NW + NH) * 64, LDS1)
    out += "; @launch kernel=%s grid=(%d,1,1) block=(%d,1,1) lds=%d\n" % (k2, H, DH, 0)
    out += '.amdgcn_target "amdgcn-amd-amdhsa--gfx950"\n.text\n'
    out += e.text()
    out += '.section .rodata,"a"\n.p2align 6\n'
    out += kd(k1, NVGPR, 102)
    out += ".p2align 6\n"
    out += kd(k2, NV2, 24)
    return out


DEFAULTS = dict(grp="6-6-6", n0=4, trg=1, trg2=10, nr0=1, nr=3, nt="nt", ldspad=0, stamp=0, xkp=0, force=0, clip=1400,
                l2t=290, th=200, pf=1, ob=2, ox=0)


def main():
    P = dict(DEFAULTS)
    outp = None
    args = sys.argv[1:]
    i = 0
    while i < len(args):
        a = args[i]
        if a == "-o":
            outp = args[i + 1]; i += 2; continue
        k, v = a.split("=", 1)
        assert k in P, k
        P[k] = type(P[k])(v.replace("+", " ")) if isinstance(P[k], str) else int(v)
        i += 1
    s = gen(P)
    if outp:
        open(outp, "w").write(s)
    else:
        sys.stdout.write(s)


if __name__ == "__main__":
    main()
```

```python
import re
import sys
import math
from gen import f32hex, HEADER, NAME, H, SKV, DH, G, NGRP, ROWB, HEADB
from gen4 import Emit4

PART_STRIDE = 1024
NW = 4
NH = 3
NWG = 256
NT = 48
WS_G = 8 << 20
FSTR = 4096 + 256
WS_ML = 0xe0000
WS_B = 0x120000
WS_L = 2 << 20
WS_SIZE = 10 << 20
BIGNEG = 0xf149f2ca


def gen(P):
    GR = [int(x) for x in P["grp"].split("-")]
    assert sum(GR) == 18 and len(GR) >= 2
    NG = len(GR)
    GOFF = [sum(GR[:k]) for k in range(NG)]
    N0 = P["n0"]
    NR = P["nr"]
    TRG1 = N0 - P["trg"]
    TA = P["ta"]
    TB = P["tb"]
    assert 2 <= TRG1 < N0 < TA < TB < 16 and 1 <= NR <= 7 and N0 <= 8
    pol = (" " + P["nt"]) if P["nt"] else ""
    C = (DH ** -0.5) * math.log2(math.e)
    L_DEC = 0
    L_GO = 24
    L_PC = 36
    L_CF = 40
    L_FD = 52
    L_EV = 56
    L_CA = 64
    L_ML = 80
    L_TC = 128
    L_TD = 132
    L_LG = 256
    L_PV = L_LG + 192 * 128
    L_ACC = L_PV + 192 * 128
    LDS1 = max(L_ACC + 3 * NW * ROWB, P["ldspad"])
    IMG = 192 * 128

    e = Emit4()
    V_T = 1; V_J16 = 2; V_J8 = 3; V_LB0 = 4; V_PB0 = 5; V_PV = 6; V_PVN = 7; V_DO = 8; V_PO = 9; V_T0 = 10; V_T1 = 11
    V_ACC = 12; V_W = 24; V_RAW = 36
    V_OFF = 48; V_OFF6 = 49; V_TM = 50; V_BIG = 51; V_T2 = 52; V_Z = 53
    V_S = 54
    V_D = 60
    V_T128 = 62; V_TMX = 63
    V_RING = 64
    NVGPR = V_RING + 72
    S_G = 3; S_M = 4; S_N = 5; S_SPIN = 6; S_LDC = 7
    S_K = 8; S_V = 12; S_KS = 16; S_Q = 20; S_WS = 24
    S_WAVE = 28; S_CI = 29; S_I = 30; S_QOFF = 31
    S_T = 32
    S_EV = 40; S_STM = 42; S_HB = 44; S_768 = 45; S_384 = 46; S_MAGIC = 47
    S_NB = 48; S_TD = 49; S_XB = 50; S_LB = 53
    S_ST = 54; S_DBG = 56

    FU = P["fuse"]
    k1 = NAME + "_kernel" if FU else "part_kernel"
    e.lines.append(".globl %s" % k1)
    e.lines.append(".p2align 8")
    e.lines.append(".type %s,@function" % k1)
    e.lines.append(k1 + ":")
    e("s_cmp_ge_u32 s2, %d" % NWG)
    e("s_cbranch_scc1 L_exit1")
    e("s_load_dwordx16 s[64:79], s[0:1], 0")
    e("s_load_dwordx4 s[80:83], s[0:1], 64")
    if P["stamp"]:
        e("s_memrealtime s[%d:%d]" % (S_ST, S_ST + 1))
    e("v_lshrrev_b32 v%d, 6, v0" % V_T0)
    e("v_and_b32 v%d, 63, v0" % V_T1)
    e("v_readfirstlane_b32 s%d, v%d" % (S_WAVE, V_T0))
    e("s_lshr_b32 s%d, s2, 3" % S_G)
    e("s_and_b32 s%d, s2, 7" % S_M)
    e("s_lshr_b32 s%d, s2, 6" % S_T)
    e("s_xor_b32 s%d, s%d, s%d" % (S_T, S_T, S_M))
    e("s_lshr_b32 s%d, s%d, 1" % (S_NB, S_T))
    e("s_and_b32 s%d, s%d, 1" % (S_T, S_T))
    e("s_lshl_b32 s%d, s%d, 2" % (S_T, S_T))
    e("s_or_b32 s%d, s%d, s%d" % (S_NB, S_NB, S_T))
    e("s_cmp_ge_u32 s%d, %d" % (S_WAVE, NW))
    e("s_cbranch_scc1 L_helper")

    def srd(dst, ptr, nbytes):
        e("s_mov_b32 s%d, s%d" % (dst, ptr))
        e("s_and_b32 s%d, s%d, 0xffff" % (dst + 1, ptr + 1))
        e("s_mov_b32 s%d, %d" % (dst + 2, nbytes))
        e("s_mov_b32 s%d, 0x00020000" % (dst + 3))

    def lds_wait(tag, vz, vt, st, off, cond, spin, vaddr=None):
        e("s_mov_b32 s%d, 0x100000" % spin)
        e.label("L_w" + tag)
        e("ds_read_b32 v%d, v%d offset:%d" % (vt, vz if vaddr is None else vaddr, off))
        e("s_sub_u32 s%d, s%d, 1" % (spin, spin))
        e("s_cbranch_scc1 L_exit1")
        e("s_waitcnt lgkmcnt(0)")
        e("v_readfirstlane_b32 s%d, v%d" % (st, vt))
        if cond == "nz":
            e("s_cmp_eq_u32 s%d, 0" % st)
        else:
            e("s_cmp_lt_u32 s%d, %s" % (st, cond))
        e("s_cbranch_scc1 L_w" + tag)

    def get_table(kind, tag):
        e("s_lshr_b32 s%d, s%d, 4" % (S_T + 1, S_I))
        e("s_lshl_b32 s%d, s%d, 2" % (S_T + 2, S_T + 1))
        e("v_mov_b32 v%d, s%d" % (V_T1, S_T + 2))
        if kind == "K":
            load_q(S_T + 1, False)
        lds_wait(tag, V_Z, V_T0, S_T, L_DEC if kind == "K" else L_GO, "nz", S_SPIN, V_T1)
        e("s_and_b32 s%d, s%d, 7" % (S_N, S_T))
        e("s_xor_b32 s%d, s%d, s%d" % (S_N, S_N, S_NB))
        e("s_bitcmp1_b32 s%d, 3" % S_T)
        e("s_cselect_b64 vcc, -1, 0")
        e("v_cndmask_b32 v%d, v%d, v%d, vcc" % (V_TM, V_T128, V_TMX))

    def load_q(ph, track):
        e("s_lshl_b32 s%d, s%d, 5" % (S_QOFF, ph))
        e("s_add_u32 s%d, s%d, s%d" % (S_QOFF, S_QOFF, S_G))
        e("s_mul_i32 s%d, s%d, 171" % (S_QOFF, S_QOFF))
        e("s_lshr_b32 s%d, s%d, 9" % (S_QOFF, S_QOFF))
        e("s_mul_i32 s%d, s%d, %d" % (S_QOFF, S_QOFF, DH * 2))
        for c in range(3):
            r = V_RAW + 2 * c
            s = "buffer_load_dwordx2 v[%d:%d], v%d, s[%d:%d], s%d offen offset:%d" % (r, r + 1, V_J8, S_Q, S_Q + 3, S_QOFF, c * 128)
            if track:
                e.vmem(s, "p")
            else:
                e(s)

    def tile_addr(kind):
        ch, a, b = S_T, S_T + 1, S_T + 2
        e("s_lshr_b32 s%d, s%d, 6" % (a, S_CI))
        e("s_lshl_b32 s%d, s%d, 11" % (a, a))
        e("s_and_b32 s%d, s%d, 63" % (ch, S_CI))
        e("s_add_u32 s%d, s%d, s%d" % (ch, ch, a))
        e("s_add_u32 s%d, s%d, s%d" % (ch, ch, S_HB))
        e("s_bfe_u32 s%d, s%d, 0x20003" % (a, ch))
        e("s_and_b32 s%d, s%d, 4" % (b, ch))
        e("s_or_b32 s%d, s%d, s%d" % (a, a, b))
        e("s_xor_b32 s%d, s%d, s%d" % (a, a, S_N))
        e("s_lshl_b32 s%d, s%d, 5" % (S_XB, ch))
        e("s_or_b32 s%d, s%d, s%d" % (S_XB, S_XB, a))
        e("s_lshl_b32 s%d, s%d, 4" % (S_XB, S_XB))
        e("s_or_b32 s%d, s%d, 1" % (S_XB, S_XB))
        if kind == "V":
            e("s_lshl_b32 s%d, s%d, 7" % (S_LB, S_CI))
        e("v_xor_b32 v%d, s%d, v%d" % (V_T0, S_XB, V_TM))
        e("v_mul_hi_u32 v%d, v%d, s%d" % (V_T0, V_T0, S_MAGIC))
        e("v_lshrrev_b32 v%d, 1, v%d" % (V_T0, V_T0))
        e("v_and_b32 v%d, 15, v%d" % (V_T1, V_T0))
        e("v_cmp_eq_u32 vcc, 5, v%d" % V_T1)
        e("v_mad_u32_u24 v%d, v%d, s%d, v%d" % (V_OFF, V_T0, S_768, V_J16))
        e("v_add_u32 v%d, %d, v%d" % (V_T1, 5 * ROWB, V_OFF))
        e("v_cndmask_b32 v%d, v%d, v%d, vcc" % (V_OFF6, V_BIG, V_T1))
        if kind == "K":
            e("v_lshrrev_b32 v%d, 6, v%d" % (V_T0, V_T0))
            e("v_mad_u32_u24 v%d, v%d, s%d, v%d" % (V_PO, V_T0, S_384, V_J8))
        else:
            e("v_add_u32 v%d, s%d, v%d" % (V_T0, S_LB, V_PB0))

    def issue_params(kind):
        if kind == "K":
            if P["xkp"] & 2:
                return
            for c in range(3):
                r = V_RAW + 6 + 2 * c
                e.vmem("buffer_load_dwordx2 v[%d:%d], v%d, s[%d:%d], 0 offen offset:%d%s" %
                       (r, r + 1, V_PO, S_KS, S_KS + 3, c * 128, " nt" if P["bnt"] & 4 else ""), "p")
        else:
            e("ds_read_b32 v%d, v%d" % (V_PVN, V_T0))

    def issue_group(k, kind, pol=pol):
        srdb = S_K if kind == "K" else S_V
        for l in range(GOFF[k], GOFF[k] + GR[k]):
            r = V_RING + l * 4
            if l < 15:
                vo, off = V_OFF, l * 256
            else:
                vo, off = V_OFF6, (l - 15) * 256
            e.vmem("buffer_load_dwordx4 v[%d:%d], v%d, s[%d:%d], 0 offen offset:%d%s" %
                   (r, r + 3, vo, srdb, srdb + 3, off, pol), "g%d" % k)

    def compute_w():
        e.wait_tag("p")
        for p in range(6):
            rq = V_RAW + p; rs = V_RAW + 6 + p
            i0 = 2 * p
            e("v_lshlrev_b32 v%d, 16, v%d" % (V_T0, rq))
            e("v_lshlrev_b32 v%d, 16, v%d" % (V_W + i0, rs))
            e("v_and_b32 v%d, 0xffff0000, v%d" % (V_T1, rq))
            e("v_and_b32 v%d, 0xffff0000, v%d" % (V_W + i0 + 1, rs))
            e("v_mul_f32 v%d, v%d, v%d" % (V_W + i0, V_W + i0, V_T0))
            e("v_mul_f32 v%d, v%d, v%d" % (V_W + i0 + 1, V_W + i0 + 1, V_T1))

    def advance(kind, to_v, tag):
        nkind = "V" if to_v else kind
        if to_v:
            e("s_mov_b32 s%d, s%d" % (S_CI, S_WAVE))
            e("s_mov_b32 s%d, 0" % S_I)
            get_table("V", "tv")
            ev = (1 << 16) | (1 << 32)
            if P["at"]:
                ev |= (1 << P["tc"]) | (1 << (P["tc"] + P["tg"])) | (1 << P["te"])
            e("s_mov_b32 s%d, %d" % (S_TD, NT - P["td"] if P["td"] else 255))
            e("s_mov_b32 s%d, 0x%x" % (S_EV, ev & 0xffffffff))
            e("s_mov_b32 s%d, 0x%x" % (S_EV + 1, ev >> 32))
        else:
            e("s_add_u32 s%d, s%d, %d" % (S_CI, S_CI, NW))
            e("s_add_u32 s%d, s%d, 1" % (S_I, S_I))
            if tag:
                e("s_bitcmp1_b64 s[%d:%d], s%d" % (S_EV, S_EV + 1, S_I))
                e("s_cbranch_scc1 L_ev%s" % kind)
                e.flush()
                e.label("L_evret%s" % kind)
        if P["stamp"] == 4:
            e("s_memrealtime s[%d:%d]" % (S_DBG, S_DBG + 1))
            e("s_add_u32 s%d, s%d, 4" % (S_DBG + 2, S_DBG + 2))
            e("s_waitcnt lgkmcnt(0)")
            e("v_mov_b32 v%d, s%d" % (V_T2, S_DBG))
            e("s_mov_b64 exec, 1")
            e("buffer_store_dword v%d, off, s[%d:%d], s%d" % (V_T2, S_WS, S_WS + 3, S_DBG + 2))
            e("s_mov_b64 exec, -1")
        if P["stamp"] == 5:
            e("s_memrealtime s[%d:%d]" % (S_DBG, S_DBG + 1))
            e("s_add_u32 m0, m0, 1")
            e("s_waitcnt lgkmcnt(0)")
            e("v_writelane_b32 v%d, s%d, m0" % (NVGPR + (1 if kind == "V" else 0), S_DBG))
            if to_v:
                e("s_mov_b32 m0, -1")
        tile_addr(nkind)
        issue_params(nkind)

    def compute(k, kind):
        for l in range(GOFF[k], GOFF[k] + GR[k]):
            q, c = l // 3, l % 3
            base = V_RING + l * 4
            for r in range(4):
                e("v_cvt_f32_i32 v%d, v%d" % (base + r, base + r))
            if kind == "K":
                s = V_S + q
                for r in range(4):
                    if c == 0 and r == 0:
                        e("v_mul_f32 v%d, v%d, v%d" % (s, base, V_W))
                    else:
                        e("v_fmac_f32 v%d, v%d, v%d" % (s, base + r, V_W + 4 * c + r))
                if c == 2:
                    e.defer(["v_add_f32_dpp v%d, v%d, v%d row_ror:%d row_mask:0xf bank_mask:0xf" % (s, s, s, kk)
                             for kk in (8, 4, 2)] +
                            ["v_add_f32_dpp v%d, v%d, v%d row_ror:1 row_mask:0xf bank_mask:0x%x" %
                             (V_D + (q & 1), s, s, 1 << (q >> 1))])
            else:
                for r in range(4):
                    e("v_fmac_f32_dpp v%d, v%d, v%d row_newbcast:%d row_mask:0xf bank_mask:0xf" %
                      (V_ACC + 4 * c + r, V_PV, base + r, q))
        e.flush()

    def finish(kind, to_v):
        if kind == "K":
            e("s_mov_b64 exec, s[%d:%d]" % (S_STM, S_STM + 1))
            e("ds_write_b64 v%d, v[%d:%d]" % (V_LB0, V_D, V_D + 1))
            e("s_mov_b64 exec, -1")
            if not to_v:
                e("v_add_u32 v%d, %d, v%d" % (V_LB0, NW * 128, V_LB0))
                compute_w()
        if kind == "V" or to_v:
            e("s_waitcnt lgkmcnt(0)")
            e("v_mov_b32 v%d, v%d" % (V_PV, V_PVN))

    def body(kind, to_v=False, first=False):
        nkind = "V" if to_v else kind
        for k in range(NG):
            e.wait_tag("g%d" % k)
            if k + 1 < NG:
                if not first:
                    issue_group(k + 1, kind)
            else:
                issue_group(0, nkind)
            if k == NG - 2:
                advance(kind, to_v, not first)
            compute(k, kind)
        finish(kind, to_v)

    def body_deep(mode):
        if mode == 3:
            advance("V", False, False)
        for k in range(NG):
            i = e.vm.index("g%d" % k) + GR[k]
            e("s_waitcnt vmcnt(%d)" % (len(e.vm) - i))
            e.vm = e.vm[i:]
            if mode == 2:
                issue_group((k + 2) % NG, "V")
                if k == NG - 3:
                    advance("V", False, False)
            compute(k, "V")
            if mode == 3:
                issue_group(k, "V", "" if P["xkp"] & 256 else pol)
        finish("V", False)

    def lds_inc(off, vz, vt):
        e("v_mov_b32 v%d, 1" % vt)
        e("s_mov_b64 exec, 1")
        e("ds_add_u32 v%d, v%d offset:%d" % (vz, vt, off))
        e("s_mov_b64 exec, -1")

    e("v_lshrrev_b32 v%d, 4, v%d" % (V_T, V_T1))
    e("v_and_b32 v%d, 15, v%d" % (V_T2, V_T1))
    e("v_lshlrev_b32 v%d, 4, v%d" % (V_J16, V_T2))
    e("v_lshlrev_b32 v%d, 3, v%d" % (V_J8, V_T2))
    e("v_lshlrev_b32 v%d, 7, v%d" % (V_T128, V_T))
    e("v_and_b32 v%d, 0x70, v0" % V_TMX)
    e("v_or_b32 v%d, v%d, v%d" % (V_TMX, V_TMX, V_T128))
    e("v_mov_b32 v%d, v%d" % (V_TM, V_TMX))
    if P["h4"]:
        e("v_and_b32 v%d, 0x%x, v%d" % (V_T128, 0xffffff8f | (P["h4"] << 4), V_TMX))
    e("s_mov_b32 s%d, %d" % (S_768, ROWB))
    e("s_mov_b32 s%d, %d" % (S_384, DH * 2))
    e("s_mov_b32 s%d, 0xaaaaaaab" % S_MAGIC)
    e("v_mov_b32 v%d, 0xc0000000" % V_BIG)
    e("s_lshl_b32 s%d, s%d, 6" % (S_HB, S_G))
    e("s_mov_b32 s%d, s%d" % (S_N, S_NB))
    e("s_mov_b32 s%d, s%d" % (S_CI, S_WAVE))
    tile_addr("K")
    e("s_waitcnt lgkmcnt(0)")
    srd(S_K, 66, H * HEADB)
    issue_group(0, "K")
    e("s_mov_b32 s%d, 0" % S_I)
    srd(S_Q, 64, H * DH * 2)
    load_q(S_I, True)
    srd(S_KS, 70, H * NGRP * DH * 2)
    issue_params("K")
    if P["ds"]:
        for k in range(1, NG):
            issue_group(k, "K")
    srd(S_V, 68, H * HEADB)
    if P["stamp"]:
        srd(S_WS, 82, 0x8000000)
    if P["stamp"] == 5:
        e("s_mov_b32 m0, -1")
    if P["stamp"] >= 4:
        e("s_mul_i32 s%d, s2, %d" % (S_DBG + 2, NW))
        e("s_add_u32 s%d, s%d, s%d" % (S_DBG + 2, S_DBG + 2, S_WAVE))
        e("s_lshl_b32 s%d, s%d, 9" % (S_DBG + 2, S_DBG + 2))
        e("s_add_u32 s%d, s%d, 0x4010000" % (S_DBG + 2, S_DBG + 2))
    e("v_lshlrev_b32 v%d, 5, v%d" % (V_T1, V_T))
    e("v_lshrrev_b32 v%d, 2, v%d" % (V_LB0, V_T2))
    e("v_lshl_add_u32 v%d, v%d, 3, v%d" % (V_LB0, V_LB0, V_T1))
    e("s_lshl_b32 s%d, s%d, 7" % (S_T, S_WAVE))
    e("s_add_u32 s%d, s%d, %d" % (S_T, S_T, L_LG))
    e("v_add_u32 v%d, s%d, v%d" % (V_LB0, S_T, V_LB0))
    e("v_and_b32 v%d, 7, v%d" % (V_PB0, V_T2))
    e("v_lshl_add_u32 v%d, v%d, 2, v%d" % (V_PB0, V_PB0, V_T1))
    e("v_add_u32 v%d, %d, v%d" % (V_PB0, L_PV, V_PB0))
    e("v_lshlrev_b32 v%d, 2, v%d" % (V_DO, V_T))
    e("v_add_u32 v%d, v%d, v%d" % (V_DO, V_J16, V_DO))
    e("s_mul_i32 s%d, s%d, %d" % (S_T, S_WAVE, ROWB))
    e("s_add_u32 s%d, s%d, %d" % (S_T, S_T, L_ACC))
    e("v_add_u32 v%d, s%d, v%d" % (V_DO, S_T, V_DO))
    e("v_mov_b32 v%d, 0" % V_Z)
    e("v_mov_b32 v%d, 0" % V_D)
    e("v_mov_b32 v%d, 0" % (V_D + 1))
    e("s_mov_b32 s%d, 0x11111111" % S_STM)
    e("s_mov_b32 s%d, 0x11111111" % (S_STM + 1))
    ev = (1 << TRG1) | (1 << N0) | (3 << 16) | (3 << 32) | (((1 << TA) | (1 << TB)) * 0x100010001)
    e("s_mov_b32 s%d, 0x%x" % (S_EV, ev & 0xffffffff))
    e("s_mov_b32 s%d, 0x%x" % (S_EV + 1, ev >> 32))
    for i in range(12):
        e("v_mov_b32 v%d, 0" % (V_ACC + i))
    e("s_barrier")
    compute_w()
    steady = ["g0"] * GR[0]
    if P["ds"]:
        body("K", first=True)
    e.vm = list(steady)
    e.lines.append(".p2align 6")
    e.label("L_kloop")
    body("K")
    assert e.vm == steady, (e.vm, steady)
    e("s_cmp_lg_u32 s%d, %d" % (S_I, NT - 1))
    e("s_cbranch_scc1 L_kloop")
    body("K", True)
    lds_inc(L_CF + 8, V_Z, V_T1)
    if P["stamp"] == 1:
        e("s_memrealtime s[%d:%d]" % (S_DBG, S_DBG + 1))
    e.lines.append(".p2align 6")
    e.label("L_vloop")
    body("V")
    assert e.vm == steady, (e.vm, steady)
    if P["td"] or P["at"]:
        e("s_cmp_eq_u32 s%d, s%d" % (S_I, S_TD))
        e("s_cbranch_scc1 L_deep")
    e("s_and_b32 s%d, s%d, 15" % (S_T, S_I))
    e("s_cbranch_scc1 L_vloop")
    e.label("L_vend")
    for c in range(3):
        a = V_ACC + 4 * c
        e("v_permlane32_swap_b32 v%d, v%d" % (a, a + 2))
        e("v_permlane32_swap_b32 v%d, v%d" % (a + 1, a + 3))
    for c in range(3):
        a = V_ACC + 4 * c
        e("v_add_f32 v%d, v%d, v%d" % (a, a, a + 2))
        e("v_add_f32 v%d, v%d, v%d" % (a + 1, a + 1, a + 3))
    for c in range(3):
        a = V_ACC + 4 * c
        e("v_permlane16_swap_b32 v%d, v%d" % (a, a + 1))
    e("s_lshr_b32 s%d, s%d, 2" % (S_T, S_I))
    e("v_mov_b32 v%d, s%d" % (V_T0, S_T))
    for c in range(3):
        a = V_ACC + 4 * c
        e("v_add_f32 v%d, v%d, v%d" % (a, a, a + 1))
        e("ds_write_b32 v%d, v%d offset:%d" % (V_DO, a, c * 256))
    lds_inc(L_CA - 4, V_T0, V_T1)
    e("v_add_u32 v%d, %d, v%d" % (V_DO, NW * ROWB, V_DO))
    for i in range(12):
        e("v_mov_b32 v%d, 0" % (V_ACC + i))
    e("s_cmp_lg_u32 s%d, %d" % (S_I, NT))
    e("s_cbranch_scc1 L_vloop")
    if P["stamp"]:
        e("s_memrealtime s[%d:%d]" % (S_T + 2, S_T + 3))
        e("s_getreg_b32 s%d, hwreg(HW_REG_XCC_ID)" % (S_T + 4))
        e("s_waitcnt lgkmcnt(0)")
        e("v_mov_b32 v%d, s%d" % (V_ACC + 0, S_ST))
        e("v_mov_b32 v%d, s%d" % (V_ACC + 1, S_T + 2))
        e("v_mov_b32 v%d, s%d" % (V_ACC + 2, S_T + 4))
        e("v_mov_b32 v%d, s%d" % (V_ACC + 3, S_LDC if P["stamp"] == 5 else S_DBG))
        e("s_mul_i32 s%d, s2, %d" % (S_T, NW))
        e("s_add_u32 s%d, s%d, s%d" % (S_T, S_T, S_WAVE))
        e("s_lshl_b32 s%d, s%d, 4" % (S_T, S_T))
        e("s_add_u32 s%d, s%d, 0x4000000" % (S_T, S_T))
        e("buffer_store_dwordx4 v[%d:%d], v%d, s[%d:%d], s%d offen" % (V_ACC, V_ACC + 3, V_Z, S_WS, S_WS + 3, S_T))
        if P["stamp"] == 5:
            e("v_and_b32 v%d, 63, v0" % V_T0)
            e("v_lshlrev_b32 v%d, 2, v%d" % (V_T0, V_T0))
            e("s_mov_b32 exec_hi, 0xffff")
            e("buffer_store_dword v%d, v%d, s[%d:%d], s%d offen offset:4" % (NVGPR, V_T0, S_WS, S_WS + 3, S_DBG + 2))
            e("buffer_store_dword v%d, v%d, s[%d:%d], s%d offen offset:196" % (NVGPR + 1, V_T0, S_WS, S_WS + 3, S_DBG + 2))
    e.lines.append("L_exit1:")
    e("s_endpgm")

    if P["td"] or P["at"]:
        e.label("L_deep")
        e.vm = list(steady)
        for k in range(1, P["tdm"] if NG == 3 else NG):
            issue_group(k, "V")
        deep = list(e.vm)
        e.lines.append(".p2align 6")
        e.label("L_dloop")
        body_deep(P["tdm"])
        assert e.vm == deep, (e.vm, deep)
        e("s_cmp_lg_u32 s%d, %d" % (S_I, NT))
        e("s_cbranch_scc1 L_dloop")
        e("s_branch L_vend")

    e.label("L_evK")
    e("s_and_b32 s%d, s%d, 15" % (S_T, S_I))
    e("s_cbranch_scc0 L_evK2")
    e("s_cmp_eq_u32 s%d, %d" % (S_I, N0))
    e("s_cbranch_scc1 L_evK2")
    e("s_lshr_b32 s%d, s%d, 2" % (S_T + 1, S_I))
    e("s_andn2_b32 s%d, s%d, 3" % (S_T + 1, S_T + 1))
    e("s_add_u32 s%d, s%d, %d" % (S_T + 1, S_T + 1, L_CF - 4))
    e("s_cmp_eq_u32 s%d, 1" % S_T)
    e("s_cselect_b32 s%d, s%d, %d" % (S_T, S_T + 1, L_EV + 4))
    e("s_cmp_eq_u32 s%d, %d" % (S_I, TRG1))
    e("s_cselect_b32 s%d, %d, s%d" % (S_T, L_EV, S_T))
    e("v_mov_b32 v%d, s%d" % (V_T0, S_T))
    lds_inc(0, V_T0, V_T1)
    e("s_branch L_evretK")
    e.label("L_evK2")
    if P["stamp"] == 2:
        e("s_cmp_eq_u32 s%d, %d" % (S_I, N0))
        e("s_cbranch_scc0 L_ns2")
        e("s_memrealtime s[%d:%d]" % (S_DBG, S_DBG + 1))
        e.label("L_ns2")
    get_table("K", "tk")
    if P["stamp"] == 3:
        e("s_cmp_eq_u32 s%d, %d" % (S_I, N0))
        e("s_cbranch_scc0 L_evretK")
        e("s_memrealtime s[%d:%d]" % (S_DBG, S_DBG + 1))
    e("s_branch L_evretK")
    e.label("L_evV")
    if P["at"]:
        e("s_and_b32 s%d, s%d, 15" % (S_T, S_I))
        e("s_cbranch_scc0 L_evV2")
        e("s_cmp_eq_u32 s%d, %d" % (S_I, P["te"]))
        e("s_cbranch_scc1 L_evV3")
        lds_inc(L_TC, V_Z, V_T1)
        e("s_branch L_evretV")
        e.label("L_evV3")
        e("ds_read_b32 v%d, v%d offset:%d" % (V_T0, V_Z, L_TD))
        e("s_waitcnt lgkmcnt(0)")
        e("v_readfirstlane_b32 s%d, v%d" % (S_T, V_T0))
        e("s_cmp_eq_u32 s%d, 0" % S_T)
        e("s_cselect_b32 s%d, s%d, s%d" % (S_TD, S_TD, S_T))
        if P["stamp"] == 5:
            e("s_mov_b32 s%d, s%d" % (S_LDC, S_T))
        e("s_branch L_evretV")
        e.label("L_evV2")
    get_table("V", "tv2")
    e("s_branch L_evretV")

    PG = S_G; PM = S_M
    PNB = 5; PP = 6; PBK = 7
    PB = 8; PWS = 12; PDB = 16
    PO = 20; PFL = 21; PBASE = 22; PPR = 90
    PD = 24
    POF = 32
    PT = 40
    PMN = 44; PJ = 45; PRN = 46; PNR = 47
    PE = 48
    PRB = 56; PACC = 58; PGL = 59; PSP = 60; PPH = 61; PSG = 62; PG0 = 63
    PDC = 84
    PS2 = 92; PS3 = 96
    HL = 1; HZ = 2; HW = 3; HA = 4; HB_ = 5; HC = 6; HD = 7; HK = 8; HV = 9; HE = 10; HF = 11; HR = 12; HG = 13
    HN = 14; HT2 = 15
    HX = 16
    BIAS = 65536
    e.wr = {}; e.tr = {}
    e.label("L_helper")
    e("s_sub_u32 s%d, s%d, %d" % (PP, S_WAVE, NW))
    e("s_mov_b32 s%d, s%d" % (PNB, S_NB))
    e("v_mov_b32 v%d, v%d" % (HL, V_T1))
    e("v_mov_b32 v%d, 0" % HZ)
    e("s_mul_i32 s%d, s%d, %d" % (PGL, PG, 8 * FSTR))
    e("s_add_u32 s%d, s%d, %d" % (PGL, PGL, WS_G))
    e("s_mul_i32 s%d, s%d, 10" % (PE, PP))
    e("s_sub_u32 s%d, s%d, 7" % (PE, PE))
    e("s_cmp_lt_i32 s%d, s%d" % (PG, PE))
    e("s_cselect_b32 s%d, 1, 0" % PPR)
    e("s_cbranch_scc0 L_noprobe1")
    e("s_max_u32 s%d, s%d, 1" % (PBK, PG))
    e("s_sub_u32 s%d, s%d, 1" % (PBK, PBK))
    e("s_lshr_b32 s%d, s%d, 1" % (PBK, PBK))
    e("s_lshl_b32 s%d, s%d, 1" % (PE + 1, PG))
    e("s_add_u32 s%d, s%d, s%d" % (PE + 1, PE + 1, PP))
    e("s_sub_u32 s%d, s%d, 1" % (PE + 1, PE + 1))
    e("s_bitcmp1_b32 s%d, 0" % PG)
    e("s_cselect_b32 s%d, 1, 4" % PE)
    e("s_cmp_eq_u32 s%d, 0" % PBK)
    e("s_cselect_b32 s%d, s%d, s%d" % (PE + 1, PE + 1, PE))
    e("s_and_b32 s%d, s%d, 1" % (PE, PE + 1))
    e("s_mul_i32 s%d, s%d, 20" % (PO, PE + 1))
    e("s_add_u32 s%d, s%d, s%d" % (PO, PO, PE))
    e("s_add_u32 s%d, s%d, 2" % (PO, PO))
    e("s_lshl_b32 s%d, s%d, 21" % (PO, PO))
    e("s_xor_b32 s%d, s%d, s%d" % (PFL, PM, PP))
    e("s_and_b32 s%d, s%d, 1" % (PFL, PFL))
    e("s_lshr_b32 s%d, s%d, 2" % (PE + 1, PM))
    e("s_xor_b32 s%d, s%d, s%d" % (PE, PE, PE + 1))
    e("s_xor_b32 s%d, s%d, s%d" % (PE, PE, PFL))
    e("s_lshl_b32 s%d, s%d, 13" % (PE, PE))
    for u in range(8):
        e("s_xor_b32 s%d, s%d, 0x%x" % (POF + u, PE, ((u & 1) << 13) | (((u >> 1) & 1) << 12) | ((u >> 2) << 14)))
    e("v_and_b32 v%d, 7, v%d" % (HW, HL))
    e("v_lshlrev_b32 v%d, 12, v%d" % (HW, HW))
    e("s_lshl_b32 s%d, s%d, 8" % (PE, PM))
    e("v_add_u32 v%d, s%d, v%d" % (HW, PE, HW))
    e("s_mov_b32 s%d, %d" % (PB + 2, H * HEADB))
    e("s_mov_b32 s%d, 0x00020000" % (PB + 3))
    e("s_cmp_ge_u32 s%d, 3" % PBK)
    e("s_cselect_b32 s%d, 3, 0" % PE)
    e("s_sub_u32 s%d, s%d, s%d" % (PE, PBK, PE))
    e("s_lshl_b32 s%d, s%d, 28" % (PE, PE))
    e("s_add_u32 s%d, s%d, s%d" % (PO, PO, PE))
    e("s_cmp_ge_u32 s%d, 3" % PBK)
    e("s_waitcnt lgkmcnt(0)")
    e("s_cselect_b32 s%d, s68, s66" % PB)
    e("s_cselect_b32 s%d, s69, s67" % (PBASE + 1))
    e("s_and_b32 s%d, s%d, 0xffff" % (PB + 1, PBASE + 1))
    e("s_mov_b64 exec, 0xff")
    e("buffer_load_dword v%d, v%d, s[%d:%d], s%d offen" % (HA, HW, PB, PB + 3, PO))
    e("s_mov_b64 exec, -1")
    e("s_add_u32 s%d, s%d, s%d" % (PBASE, PB, PO))
    e("s_addc_u32 s%d, s%d, 0" % (PBASE + 1, PBASE + 1))
    e("s_lshl_b32 s%d, s%d, 8" % (PE, PM))
    e("s_add_u32 s%d, s%d, 128" % (PE, PE))
    e("s_load_dword s%d, s[%d:%d], s%d" % (PJ, PBASE, PBASE + 1, PE))
    e.label("L_noprobe1")
    e("s_waitcnt lgkmcnt(0)")
    srd(PWS, 82, WS_SIZE)
    srd(PDB, 80, 256)
    e("s_cmp_lg_u32 s%d, 0" % PP)
    e("s_cbranch_scc1 L_hbar")
    e("v_lshlrev_b32 v%d, 2, v%d" % (HB_, HL))
    e("ds_write_b32 v%d, v%d" % (HB_, HZ))
    e("s_waitcnt lgkmcnt(0)")
    e.label("L_hbar")
    e("s_barrier")
    e("s_cmp_eq_u32 s%d, 0" % PPR)
    e("s_cbranch_scc1 L_role")
    e("s_mov_b32 s%d, 1" % PRN)
    e("s_mov_b32 s%d, 0" % PACC)
    e("s_cmp_eq_u32 s%d, 0" % PBK)
    e("s_cselect_b32 s%d, %d, %d" % (PNR, P["nr0"], NR))
    e("s_waitcnt vmcnt(0)")
    e.label("L_round")
    e("s_add_u32 s%d, s%d, s%d" % (PE, PM, PRN))
    e("s_and_b32 s%d, s%d, 7" % (PE, PE))
    e("s_lshl_b32 s%d, s%d, 8" % (PE, PE))
    e("s_add_u32 s%d, s%d, s%d" % (PRB, PBASE, PE))
    e("s_addc_u32 s%d, s%d, 0" % (PRB + 1, PBASE + 1))
    e("s_mov_b32 s%d, -1" % PMN)
    e("s_memtime s[%d:%d]" % (PT, PT + 1))
    e("s_waitcnt lgkmcnt(0)")
    for u in range(8):
        a = PT + 2 * (u & 1); b = PT + 2 * ((u + 1) & 1)
        e("s_load_dword s%d, s[%d:%d], s%d" % (PJ, PRB, PRB + 1, POF + u))
        e("s_waitcnt lgkmcnt(0)")
        e("s_memtime s[%d:%d]" % (b, b + 1))
        e("s_waitcnt lgkmcnt(0)")
        e("s_sub_u32 s%d, s%d, s%d" % (PD + u, b, a))
    for u in range(8):
        e("s_min_u32 s%d, s%d, %d" % (PD + u, PD + u, P["clip"]))
        e("s_min_u32 s%d, s%d, s%d" % (PMN, PMN, PD + u))
    e("s_cmp_lt_u32 s%d, %d" % (PMN, P["l2t"]))
    e("s_cbranch_scc1 L_skip")
    for u in range(8):
        e("s_%s_u32 s%d, s%d, s%d" % ("add" if u & 1 else "sub", PACC, PACC, PD + u))
    e.label("L_skip")
    e("s_add_u32 s%d, s%d, 1" % (PRN, PRN))
    e("s_cmp_le_u32 s%d, s%d" % (PRN, PNR))
    e("s_cbranch_scc1 L_round")
    e("s_sub_u32 s%d, 0, s%d" % (PE, PACC))
    e("s_cmp_eq_u32 s%d, 0" % PFL)
    e("s_cselect_b32 s%d, s%d, s%d" % (PACC, PACC, PE))
    e("s_add_u32 s%d, s%d, 0x%x" % (PACC, PACC, BIAS + (1 << 24)))
    e("v_mov_b32 v%d, s%d" % (HA, PACC))
    e("s_mov_b64 exec, 1")
    e("s_lshl_b32 s%d, s%d, 2" % (PE, PBK))
    e("s_add_u32 s%d, s%d, 124" % (PE, PE))
    e("s_cmp_eq_u32 s%d, 0" % PBK)
    e("s_cbranch_scc0 L_post")
    e("ds_add_rtn_u32 v%d, v%d, v%d offset:%d" % (HB_, HZ, HA, L_PC))
    e("s_mov_b32 s%d, 0" % PE)
    e("s_waitcnt lgkmcnt(0)")
    e("v_add_u32 v%d, v%d, v%d" % (HA, HA, HB_))
    e("v_cmp_ne_u32 vcc, 0, v%d" % HB_)
    e("s_and_b64 exec, exec, vcc")
    if P["vw"]:
        e("buffer_atomic_add v%d, off, s[%d:%d], s%d" % (HA, PDB, PDB + 3, PE))
        e("s_branch L_posted")
        e.label("L_post")
        lds_wait("vw", HZ, HE, PE, L_DEC, "nz", PSP)
        e("s_mul_i32 s%d, s%d, %d" % (PE, PG, FSTR))
        e("s_add_u32 s%d, s%d, %d" % (PE, PE, WS_G + 253 * FSTR))
        e("buffer_atomic_add v%d, off, s[%d:%d], s%d" % (HA, PWS, PWS + 3, PE))
        e.label("L_posted")
    else:
        e.label("L_post")
        e("buffer_atomic_add v%d, off, s[%d:%d], s%d" % (HA, PDB, PDB + 3, PE))
    e("s_mov_b64 exec, -1")
    e.label("L_role")
    e("s_cmp_eq_u32 s%d, 0" % PP)
    e("s_cbranch_scc1 L_h0")
    e("s_cmp_eq_u32 s%d, 2" % PP)
    e("s_cbranch_scc1 L_h2")

    def wave_reduce(regs, op, tmp):
        for kk in (8, 4, 2, 1):
            for r in regs:
                e("%s_dpp v%d, v%d, v%d row_ror:%d row_mask:0xf bank_mask:0xf" % (op, r, r, r, kk))
        for sw in ("v_permlane32_swap_b32", "v_permlane16_swap_b32"):
            for r, t in zip(regs, tmp):
                e("v_mov_b32 v%d, v%d" % (t, r))
            for r, t in zip(regs, tmp):
                e("%s v%d, v%d" % (sw, r, t))
            for r, t in zip(regs, tmp):
                e("%s v%d, v%d, v%d" % (op, r, r, t))

    def decode(tag, nl, off, cnt, rounds, dst, b0):
        vw = b0 and P["vw"]
        lds_wait("e" + tag, HZ, HE, PE, L_EV + (4 if b0 else 0), "nz", PSP)
        if vw:
            e("v_mul_u32_u24 v%d, %d, v%d" % (HD, FSTR, HL))
            e("s_mov_b32 s%d, %d" % (PE, WS_G + 256 * FSTR))
            e("v_lshrrev_b32 v%d, 1, v%d" % (HB_, HB_))
        e("s_mov_b64 exec, 0x%x" % ((1 << (2 * nl if vw else nl)) - 1))
        e("s_mov_b32 s%d, 0x40000" % PSP)
        if not P["xkp"] & 4:
            e.label("L_poll" + tag)
            if vw:
                e("buffer_load_dword v%d, v%d, s[%d:%d], s%d offen sc1" % (HA, HD, PWS, PWS + 3, PE))
            else:
                e("buffer_load_dword v%d, v%d, s[%d:%d], 0 offen offset:%d sc1" % (HA, HB_, PDB, PDB + 3, off))
            e("s_sub_u32 s%d, s%d, 1" % (PSP, PSP))
            e("s_cbranch_scc1 L_exit1")
            e("s_waitcnt vmcnt(0)")
            e("v_lshrrev_b32 v%d, 24, v%d" % (HC, HA))
            e("v_cmp_ne_u32 vcc, %d, v%d" % (cnt // 2 if vw else cnt, HC))
            e("s_cbranch_vccnz L_poll" + tag)
        if vw:
            e("v_add_u32_dpp v%d, v%d, v%d quad_perm:[1,0,3,2] row_mask:0xf bank_mask:0xf" % (HA, HA, HA))
            e("s_mov_b64 exec, 0x%x" % (0x5555 & ((1 << (2 * nl)) - 1)))
        th = P["th"] * cnt * rounds
        e("v_and_b32 v%d, 0xffffff, v%d" % (HA, HA))
        e("v_subrev_u32 v%d, %d, v%d" % (HA, cnt * BIAS, HA))
        e("v_lshrrev_b32 v%d, 30, v%d" % (HC, HA))
        e("v_and_b32 v%d, 2, v%d" % (HC, HC))
        e("v_add_u32 v%d, %d, v%d" % (HA, th, HA))
        e("v_cmp_gt_u32 vcc, %d, v%d" % (2 * th, HA))
        e("v_cndmask_b32 v%d, v%d, 8, vcc" % (HC, HC))
        if P["force"] == 1:
            e("v_mov_b32 v%d, 8" % HC)
        if P["force"] >= 2:
            e("s_mov_b32 s%d, 0x7000000" % PE)
            e("s_load_dwordx4 s[%d:%d], s[82:83], s%d" % (PS2, PS2 + 3, PE))
            e("s_waitcnt lgkmcnt(0)")
            for l in range(nl):
                b = b0 + l
                e("s_lshr_b64 s[%d:%d], s[%d:%d], %d" % (PE, PE + 1, PS2 + 2 * (b // 3), PS2 + 2 * (b // 3) + 1, 16 * (b % 3)))
                e("s_and_b32 s%d, s%d, %d" % (PE, PE, P["ob"]))
                e("s_xor_b32 s%d, s%d, %d" % (PE, PE, P["ox"]))
                e("v_writelane_b32 v%d, s%d, %d" % (HC, PE, 2 * l if vw else l))
        e("v_or_b32 v%d, 16, v%d" % (HC, HC))
        e("ds_write_b32 v%d, v%d offset:%d" % (HB_, HC, dst))
        e("s_mov_b64 exec, -1")

    e("s_cmp_lg_u32 s2, %d" % (NWG - 1))
    e("s_cbranch_scc1 L_nolead")
    e("v_mul_u32_u24 v%d, %d, v%d" % (HB_, FSTR, HL))
    e("v_mov_b32 v%d, 0" % (HZ + 1))
    for k in range(5 if P["vw"] else 4):
        e("s_mov_b32 s%d, %d" % (PE + k, WS_G + k * 64 * FSTR))
        if k == 4:
            e("s_mov_b64 exec, 0x3ff")
        e("buffer_store_dwordx2 v[%d:%d], v%d, s[%d:%d], s%d offen sc1" % (HZ, HZ + 1, HB_, PWS, PWS + 3, PE + k))
    e("v_mov_b32 v%d, 0x%x" % (HA, BIAS + (1 << 24)))
    e("s_mov_b64 exec, 1")
    e("s_waitcnt vmcnt(0)")
    e("buffer_atomic_add v%d, off, s[%d:%d], 0" % (HA, PDB, PDB + 3))
    e("s_mov_b64 exec, -1")
    e.label("L_nolead")
    e("v_lshlrev_b32 v%d, 2, v%d" % (HB_, HL))
    decode("a", 1, 0, 49, P["nr0"], L_DEC, 0)
    decode("b", 5, 128, 16, NR, L_DEC + 4, 1)
    if FU:
        CSC = 24; CMK = 56; CRB = 57; CO = 92
        e("s_and_b32 s%d, s%d, 7" % (PE, PG))
        e("s_cmp_lg_u32 s%d, s%d" % (PE, PM))
        e("s_cbranch_scc1 L_exit1")
        e("s_mul_i32 s%d, s%d, 3" % (PE, PG))
        e("s_add_u32 s%d, s%d, 2" % (PE, PE))
        e("s_lshr_b32 s%d, s%d, 5" % (PE, PE))
        e("s_lshl_b32 s%d, s%d, 2" % (PE, PE))
        e("v_mov_b32 v%d, s%d" % (HW, PE))
        e("s_mul_i32 s%d, s%d, 24" % (CRB, PG))
        e("v_add_u32 v%d, s%d, v%d" % (HG, CRB, HL))
        e("v_and_b32 v%d, 255, v%d" % (HR, HG))
        e("v_mul_u32_u24 v%d, %d, v%d" % (HR, FSTR, HR))
        e("v_lshlrev_b32 v%d, 6, v%d" % (HG, HG))
        e("s_mov_b32 s%d, %d" % (PE + 1, WS_G))
        e("s_mov_b32 s%d, %d" % (PE + 2, WS_ML))
        e("v_mov_b32 v%d, 0x%08x" % (HA, BIGNEG))
        e("v_mov_b32 v%d, 0" % HB_)
        lds_wait("cg", HZ, HE, PE, L_GO, "nz", PSP, HW)
        for tag, ld, chk in (("f", "buffer_load_dword v%d, v%d, s[%d:%d], s%d offen sc1" % (HD, HR, PWS, PWS + 3, PE + 1), HD),
                             ("m", "buffer_load_dwordx4 v[%d:%d], v%d, s[%d:%d], s%d offen sc1" % (HA, HD, HG, PWS, PWS + 3, PE + 2), HD)):
            e("s_mov_b64 exec, 0xffffff")
            e("s_mov_b32 s%d, 0x40000" % PSP)
            e.label("L_cp" + tag)
            e(ld)
            e("s_sub_u32 s%d, s%d, 1" % (PSP, PSP))
            e("s_cbranch_scc1 L_exit1")
            e("s_waitcnt vmcnt(0)")
            e("v_cmpx_eq_u32 vcc, 0, v%d" % chk)
            e("s_cbranch_execnz L_cp" + tag)
        e("s_mov_b64 exec, -1")
        e("v_mov_b32 v%d, v%d" % (HC, HA))
        wave_reduce([HC], "v_max_f32", [HD])
        e("v_sub_f32 v%d, v%d, v%d" % (HA, HA, HC))
        e("v_exp_f32 v%d, v%d" % (HA, HA))
        e("v_mul_f32 v%d, v%d, v%d" % (HB_, HB_, HA))
        wave_reduce([HB_], "v_add_f32", [HD])
        e("v_rcp_f32 v%d, v%d" % (HB_, HB_))
        e("v_mul_f32 v%d, v%d, v%d" % (HA, HA, HB_))
        for r in range(24):
            e("v_readlane_b32 s%d, v%d, %d" % (CSC + r, HA, r))
        srd(CO, 78, H * DH * 2)
        e("s_lshl_b32 s%d, s%d, 10" % (CRB, CRB))
        e("v_lshlrev_b32 v%d, 4, v%d" % (HG, HL))
        e("v_add_u32 v%d, s%d, v%d" % (HG, CRB, HG))
        for k in range(1, 6):
            e("s_mov_b32 s%d, %d" % (PE + k, 4096 * k))
        for r in (HA, HB_, HC):
            e("v_mov_b32 v%d, 0" % r)
        e("s_mov_b32 s%d, 0xffffff" % CMK)
        e("v_lshlrev_b32 v%d, 1, v%d" % (HR, HL))
        e("s_mul_i32 s%d, s%d, %d" % (CRB, PG, DH * 2))
        lds_wait("cc", HZ, HE, PE, L_CA, "%d" % P["cw"], PSP, HW)
        e("s_mov_b32 s%d, 0x40000" % PSP)
        e.label("L_cr")
        for r in range(24):
            e("s_bitcmp0_b32 s%d, %d" % (CMK, r))
            e("s_cbranch_scc1 L_cl%d" % r)
            e("buffer_load_dwordx4 v[%d:%d], v%d, s[%d:%d], %s offen offset:%d sc1" %
              (HX + 4 * r, HX + 4 * r + 3, HG, PWS, PWS + 3, "s%d" % (PE + r // 4) if r >= 4 else "0", (r % 4) * 1024))
            e.lines.append("L_cl%d:" % r)
        e("s_sub_u32 s%d, s%d, 1" % (PSP, PSP))
        e("s_cbranch_scc1 L_exit1")
        e("s_waitcnt vmcnt(0)")
        for r in range(24):
            e("s_bitcmp0_b32 s%d, %d" % (CMK, r))
            e("s_cbranch_scc1 L_cv%d" % r)
            e("v_cmp_eq_u32 vcc, 0, v%d" % (HX + 4 * r + 3))
            e("s_cbranch_vccnz L_cv%d" % r)
            for k, a_ in enumerate((HA, HB_, HC)):
                e("v_fmac_f32 v%d, s%d, v%d" % (a_, CSC + r, HX + 4 * r + k))
            e("s_bitset0_b32 s%d, %d" % (CMK, r))
            e.lines.append("L_cv%d:" % r)
        e("s_cmp_lg_u32 s%d, 0" % CMK)
        e("s_cbranch_scc1 L_cr")
        for k, a_ in enumerate((HA, HB_, HC)):
            e("v_cvt_pk_bf16_f32 v%d, v%d, v%d" % (a_, a_, a_))
            e("buffer_store_short v%d, v%d, s[%d:%d], s%d offen offset:%d" % (a_, HR, CO, CO + 3, CRB, k * 128))
    e("s_endpgm")

    def seg_scalars():
        e("s_lshl_b32 s%d, s%d, 5" % (PSG, PPH))
        e("s_add_u32 s%d, s%d, s%d" % (PSG, PSG, PG))
        e("s_lshl_b32 s%d, s%d, 15" % (PG0, PSG))
        e("s_add_u32 s%d, s%d, 1" % (PG0, PG0))
        e("s_mul_hi_u32 s%d, s%d, 0xaaaaaaab" % (PG0, PG0))
        e("s_lshr_b32 s%d, s%d, 7" % (PG0, PG0))

    def get_dec(tag):
        lds_wait(tag, HZ, HE, PE, L_DEC + 20, "nz", PSP)
        e("ds_read_b128 v[%d:%d], v%d offset:%d" % (HX, HX + 3, HZ, L_DEC))
        e("ds_read_b64 v[%d:%d], v%d offset:%d" % (HX + 4, HX + 5, HZ, L_DEC + 16))
        e("s_waitcnt lgkmcnt(0)")
        for i in range(6):
            e("v_readfirstlane_b32 s%d, v%d" % (PDC + i, HX + i))

    e.label("L_h0")
    srd(PB, 64, H * DH * 2)
    srd(PS2, 70, H * NGRP * DH * 2)
    srd(PS3, 72, H * NGRP * DH * 2)
    e("v_lshrrev_b32 v%d, 4, v%d" % (HA, HL))
    e("v_and_b32 v%d, 15, v%d" % (HB_, HL))
    e("v_lshlrev_b32 v%d, 3, v%d" % (HC, HB_))
    e("v_mul_u32_u24 v%d, %d, v%d" % (HD, DH * 2, HA))
    e("v_add_u32 v%d, v%d, v%d" % (HD, HD, HC))
    e("v_lshl_add_u32 v%d, v%d, 2, v%d" % (HG, HB_, HA))
    e("v_lshlrev_b32 v%d, 2, v%d" % (HG, HG))
    BQ = HX; BS = HX + 12; BZ = BS + 36; BR = BZ + 36
    PFA = 32; PIA = 33
    e("v_lshlrev_b32 v%d, 4, v%d" % (HA, HL))
    e("s_mul_i32 s%d, s%d, %d" % (PFA, PNB, FSTR))
    e("s_add_u32 s%d, s%d, s%d" % (PFA, PFA, PGL))
    e("s_lshl_b32 s%d, s%d, 3" % (PIA, PG))
    e("s_add_u32 s%d, s%d, s%d" % (PIA, PIA, PNB))
    e("s_mul_i32 s%d, s%d, %d" % (PIA, PIA, IMG))
    e("s_add_u32 s%d, s%d, %d" % (PIA, PIA, WS_L))

    def bias(ph):
        e("s_mov_b32 s%d, %d" % (PPH, ph))
        seg_scalars()
        e("s_mul_i32 s%d, s%d, 171" % (PE, PSG))
        e("s_lshr_b32 s%d, s%d, 9" % (PE, PE))
        e("s_mul_i32 s%d, s%d, %d" % (PE, PE, DH * 2))
        e("s_mul_i32 s%d, s%d, 24" % (PE + 1, PM))
        e("s_add_u32 s%d, s%d, s%d" % (PE + 2, PE + 1, PG0))
        e("s_mul_i32 s%d, s%d, %d" % (PE + 2, PE + 2, DH * 2))
        e("v_add_u32 v%d, s%d, v%d" % (HE, PE + 2, HD))
        e("v_add_u32 v%d, %d, v%d" % (HF, 8 * DH * 2, HE))
        e("v_add_u32 v%d, %d, v%d" % (HR, 16 * DH * 2, HE))
        for c in range(3):
            e("buffer_load_dwordx2 v[%d:%d], v%d, s[%d:%d], s%d offen offset:%d" % (BR + 2 * c, BR + 2 * c + 1, HC, PB, PB + 3, PE, c * 128))
        for st in range(6):
            va = (HE, HF, HR)[st // 2]
            for sr, bb in ((PS2, BS), (PS3, BZ)):
                for c in range(3):
                    r = bb + st * 6 + 2 * c
                    e("buffer_load_dwordx2 v[%d:%d], v%d, s[%d:%d], 0 offen offset:%d%s" %
                      (r, r + 1, va, sr, sr + 3, (st & 1) * 4 * DH * 2 + c * 128,
                       " nt" if P["bnt"] & (1 if bb == BZ else 2) else ""))
        e("s_waitcnt vmcnt(0)")
        for p in range(6):
            e("v_lshlrev_b32 v%d, 16, v%d" % (BQ + 2 * p, BR + p))
            e("v_and_b32 v%d, 0xffff0000, v%d" % (BQ + 2 * p + 1, BR + p))
        for st in range(6):
            acc = BR + st
            for p in range(6):
                rs = BS + st * 6 + p; rz = BZ + st * 6 + p
                e("v_lshlrev_b32 v%d, 16, v%d" % (HE, rs))
                e("v_lshlrev_b32 v%d, 16, v%d" % (HF, rz))
                e("v_and_b32 v%d, 0xffff0000, v%d" % (rs, rs))
                e("v_and_b32 v%d, 0xffff0000, v%d" % (rz, rz))
                e("v_mul_f32 v%d, v%d, v%d" % (HE, HE, BQ + 2 * p))
                e("v_mul_f32 v%d, v%d, v%d" % (rs, rs, BQ + 2 * p + 1))
                if p == 0:
                    e("v_mul_f32 v%d, v%d, v%d" % (acc, HE, HF))
                else:
                    e("v_fmac_f32 v%d, v%d, v%d" % (acc, HE, HF))
                e("v_fmac_f32 v%d, v%d, v%d" % (acc, rs, rz))
        for kk in (8, 4, 2, 1):
            for st in range(6):
                e("v_add_f32_dpp v%d, v%d, v%d row_ror:%d row_mask:0xf bank_mask:0xf" % (BR + st, BR + st, BR + st, kk))
        for st in range(1, 6):
            e("v_cmp_eq_u32 vcc, %d, v%d" % (st, HB_))
            e("v_cndmask_b32 v%d, v%d, v%d, vcc" % (BR, BR, BR + st))
        e("s_mul_i32 s%d, s%d, 768" % (PE, PSG))
        e("s_lshl_b32 s%d, s%d, 2" % (PE + 1, PE + 1))
        e("s_add_u32 s%d, s%d, s%d" % (PE, PE, PE + 1))
        e("s_add_u32 s%d, s%d, %d" % (PE, PE, WS_B))
        e("s_mov_b32 exec_lo, 0x003f003f")
        e("s_mov_b32 exec_hi, 0x003f003f")
        e("buffer_store_dword v%d, v%d, s[%d:%d], s%d offen sc1" % (BR, HG, PWS, PWS + 3, PE))
        e("s_mov_b64 exec, -1")

    def flush(p):
        lds_wait("f%d" % p, HZ, HE, PE, L_CF + 4 * p, "4", PSP)
        n1 = (N0 + 1) // 2 if p == 0 else 0
        e("s_cmp_eq_u32 s%d, s%d" % (PDC + p, PDC + 3 + p))
        if n1 == 0:
            e("s_cbranch_scc1 L_fl%d" % p)
        for k in range(8):
            e("ds_read_b128 v[%d:%d], v%d offset:%d" % (HX + 4 * k, HX + 4 * k + 3, HA, L_LG + p * 8192 + k * 1024))
        e("s_add_u32 s%d, s%d, %d" % (PE + 6, PIA, p * 8192))
        e("s_add_u32 s%d, s%d, %d" % (PE + 7, PIA, p * 8192 + 4096))
        e("s_cmp_eq_u32 s%d, s%d" % (PDC + p, PDC + 3 + p))
        e("s_waitcnt lgkmcnt(0)")
        for k in range(8):
            if n1 and k == n1:
                e("s_cbranch_scc1 L_fl%d" % p)
            if not P["xkp"] & 16:
                e("buffer_store_dwordx4 v[%d:%d], v%d, s[%d:%d], s%d offen offset:%d sc1" %
                  (HX + 4 * k, HX + 4 * k + 3, HA, PWS, PWS + 3, PE + 6 + k // 4, (k % 4) * 1024))
        e.label("L_fl%d" % p)
        e("v_mov_b32 v%d, %d" % (HE, p + 1))
        e("s_waitcnt vmcnt(0)")
        e("s_mov_b64 exec, 1")
        opt = p == 2 or (p == 1 and not P["jit"])
        if opt:
            e("s_cbranch_scc1 L_fn%d" % p)
        e("buffer_store_dword v%d, off, s[%d:%d], s%d sc1" % (HE, PWS, PWS + 3, PFA))
        if opt:
            e.label("L_fn%d" % p)
        e("ds_write_b32 v%d, v%d offset:%d" % (HZ, HE, L_FD))
        e("s_mov_b64 exec, -1")

    if FU:
        for i in range(4):
            e("v_mov_b32 v%d, 0" % (HX + i))
        for p in range(3):
            e("s_add_u32 s%d, s2, %d" % (PE, 256 * p))
            e("s_lshl_b32 s%d, s%d, 10" % (PE + 1, PE))
            e("s_lshl_b32 s%d, s%d, 6" % (PE, PE))
            e("s_add_u32 s%d, s%d, %d" % (PE, PE, WS_ML))
            e("buffer_store_dwordx4 v[%d:%d], v%d, s[%d:%d], s%d offen sc1" % (HX, HX + 3, HA, PWS, PWS + 3, PE + 1))
            e("s_mov_b64 exec, 15")
            e("buffer_store_dwordx4 v[%d:%d], v%d, s[%d:%d], s%d offen sc1" % (HX, HX + 3, HA, PWS, PWS + 3, PE))
            e("s_mov_b64 exec, -1")
    bias(0)
    if P["jit"]:
        lds_wait("b1", HZ, HE, PE, L_EV + 4, "1", PSP)
    bias(1)
    if not P["jit"]:
        bias(2)
    get_dec("d0")
    flush(0)
    if P["jit"]:
        lds_wait("b2", HZ, HE, PE, L_EV + 4, "9", PSP)
        bias(2)
    flush(1)
    flush(2)
    if P["at"]:
        e("v_lshrrev_b32 v%d, 3, v%d" % (HC, HL))
        e("v_xor_b32 v%d, s%d, v%d" % (HC, PM, HC))
        e("v_lshrrev_b32 v%d, 1, v%d" % (HD, HC))
        e("v_and_b32 v%d, 1, v%d" % (HC, HC))
        e("v_lshl_or_b32 v%d, v%d, 2, v%d" % (HD, HC, HD))
        e("v_lshl_or_b32 v%d, v%d, 3, v%d" % (HD, HL, HD))
        e("v_mul_u32_u24 v%d, %d, v%d" % (HD, FSTR, HD))
        lds_wait("t1", HZ, HE, PE, L_TC, "4", PSP)
        e("s_memrealtime s[%d:%d]" % (PT, PT + 1))
        e("s_mov_b64 exec, 1")
        e("s_waitcnt lgkmcnt(0)")
        e("s_or_b32 s%d, s%d, 1" % (PT, PT))
        e("v_mov_b32 v%d, s%d" % (HB_, PT))
        e("buffer_store_dword v%d, off, s[%d:%d], s%d offset:4 sc1" % (HB_, PWS, PWS + 3, PFA))
        e("s_mov_b32 exec_lo, -1")
        e("s_mov_b32 s%d, %d" % (PE + 1, WS_G))
        lds_wait("t2", HZ, HE, PE, L_TC, "5", PSP)
        e("buffer_load_dword v%d, v%d, s[%d:%d], s%d offen offset:4 sc1" % (HB_, HD, PWS, PWS + 3, PE + 1))
        e("v_bfrev_b32 v%d, -2" % HC)
        e("s_mov_b32 s%d, -2048" % PE)
        e("s_waitcnt vmcnt(0)")
        e("v_cmp_eq_u32 vcc, 0, v%d" % HB_)
        e("v_subrev_u32 v%d, s%d, v%d" % (HB_, PT, HB_))
        e("v_cndmask_b32 v%d, v%d, v%d, vcc" % (HB_, HB_, HC))
        for st in (2048, 1024, 512, 256, 128, 64, 32, 16):
            e("s_add_u32 s%d, s%d, %d" % (PE + 1, PE, st))
            e("v_cmp_gt_i32 vcc, s%d, v%d" % (PE + 1, HB_))
            e("s_bcnt1_i32_b64 s%d, vcc" % (PE + 2))
            e("s_cmp_lt_u32 s%d, %d" % (PE + 2, P["aq"]))
            e("s_cselect_b32 s%d, s%d, s%d" % (PE, PE + 1, PE))
        e("s_mul_i32 s%d, s%d, %d" % (PE, PE, -P["ka"]))
        e("s_add_u32 s%d, s%d, %d" % (PE, PE, P["kb"]))
        e("s_ashr_i32 s%d, s%d, 10" % (PE, PE))
        e("s_max_i32 s%d, s%d, %d" % (PE, PE, P["dmin"]))
        e("s_min_i32 s%d, s%d, %d" % (PE, PE, min(P["dmax"], NT - P["te"])))
        e("s_sub_u32 s%d, %d, s%d" % (PE, NT, PE))
        e("s_cmp_eq_u32 s%d, %d" % (PE, NT))
        e("s_cselect_b32 s%d, 255, s%d" % (PE, PE))
        e("v_mov_b32 v%d, s%d" % (HB_, PE))
        e("ds_write_b32 v%d, v%d offset:%d" % (HZ, HB_, L_TD))
    e("s_endpgm")

    e.label("L_h2")
    srd(PS2, 74, H * SKV * 2)
    srd(PS3, 76, H * SKV * 2)
    get_dec("d2")
    PSIX = 24
    PKW = 32; PNEED = 33; PN0 = 34; PIM = 35; PCH = 36; PCC = 37; PMG = 38; PWD = 39; PIS = 40
    HT = HW
    e("v_and_b32 v%d, 3, v%d" % (HT, HL))
    e("v_and_b32 v%d, 7, v%d" % (HT2, HL))
    e("v_lshrrev_b32 v%d, 2, v%d" % (HR, HL))
    e("s_mov_b32 s%d, %s" % (PCC, f32hex(C)))
    e("s_mov_b32 s%d, 0xaaaaaaab" % PMG)
    e("s_mov_b32 s%d, 0" % PPH)
    e("s_mul_i32 s%d, s%d, %d" % (PIM, PG, 8 * IMG))
    e("s_add_u32 s%d, s%d, %d" % (PIM, PIM, WS_L))
    e("s_mov_b32 s%d, %d" % (PIS, IMG))
    e("v_lshlrev_b32 v%d, 5, v%d" % (HN, HL))
    e("s_mov_b32 s%d, %d" % (PN0, N0))
    RS = 16
    e.label("L_prep")
    seg_scalars()
    e("s_mov_b32 s%d, s%d" % (PKW, PDC))
    e("s_mov_b32 s%d, s%d" % (PWD, PDC + 3))
    for i in (0, 1, 3, 4):
        e("s_mov_b32 s%d, s%d" % (PDC + i, PDC + i + 1))
    e("s_lshl_b32 s%d, s%d, 3" % (PNEED, PPH))
    e("s_add_u32 s%d, s%d, 1" % (PNEED, PNEED))
    if P["pf"]:
        lds_wait("pf", HZ, HE, PE, L_EV + 4, "s%d" % PNEED, PSP)
        e("v_lshlrev_b32 v%d, 4, v%d" % (HA, HL))
        e("s_mul_i32 s%d, s%d, 2736" % (PE + 1, PM))
        e("s_lshl_b32 s%d, s%d, 16" % (PE, PSG))
        e("s_mul_hi_u32 s%d, s%d, 0xaaaaaaab" % (PE, PE))
        e("s_lshr_b32 s%d, s%d, 5" % (PE, PE))
        e("s_lshl_b32 s%d, s%d, 4" % (PE, PE))
        e("s_add_u32 s%d, s%d, s%d" % (PE, PE, PE + 1))
        for a, sr in enumerate((PS2, PS3)):
            for k in range(3):
                r = HX + 4 * RS + 4 * (a * 3 + k)
                e("buffer_load_dwordx4 v[%d:%d], v%d, s[%d:%d], s%d offen offset:%d%s" % (r, r + 3, HA, sr, sr + 3, PE, k * 1024, " nt" if P["bnt"] & 8 else ""))
    for w, hv in ((PKW, HK), (PWD, HV)):
        e("s_and_b32 s%d, s%d, 7" % (PE, w))
        e("v_mov_b32 v%d, s%d" % (hv, PE))
        e("s_bitcmp1_b32 s%d, 3" % w)
        e("s_cselect_b64 vcc, -1, 0")
        e("v_cndmask_b32 v%d, v%d, v%d, vcc" % (hv, hv, HT2))
    e("v_xor_b32 v%d, s%d, v%d" % (HG, PNB, HV))
    e("v_lshl_or_b32 v%d, v%d, 3, v%d" % (HG, HT, HG))
    e("s_lshl_b32 s%d, s%d, 6" % (PCH, PSG))
    e("s_mul_i32 s%d, s%d, 768" % (PE + 1, PSG))
    e("s_lshl_b32 s%d, s%d, 2" % (PE + 2, PG0))
    e("s_sub_u32 s%d, s%d, s%d" % (PE + 1, PE + 1, PE + 2))
    e("s_add_u32 s%d, s%d, %d" % (PE + 1, PE + 1, WS_B))
    if P["pace"]:
        e("s_add_u32 s%d, s%d, 4" % (PNEED, PNEED))
        lds_wait("ga", HZ, HE, PE, L_EV + 4, "s%d" % PNEED, PSP)
    else:
        e("s_add_u32 s%d, s%d, 1" % (PNEED, PPH))
        lds_wait("ga", HZ, HE, PE, L_FD, "s%d" % PNEED, PSP)
    for st in range(4):
        R = HX + RS * st
        e("v_add_u32 v%d, %d, v%d" % (HA, 16 * st, HR))
        e("v_bfe_u32 v%d, v%d, 3, 2" % (HB_, HA))
        e("v_and_or_b32 v%d, v%d, 4, v%d" % (HB_, HA, HB_))
        e("v_xor_b32 v%d, v%d, v%d" % (HB_, HG, HB_))
        e("v_add_u32 v%d, s%d, v%d" % (HA, PCH, HA))
        e("v_lshl_add_u32 v%d, v%d, 5, v%d" % (HC, HA, HB_))
        e("v_lshl_add_u32 v%d, v%d, 4, 1" % (HC, HC))
        e("v_mul_hi_u32 v%d, v%d, s%d" % (HC, HC, PMG))
        e("v_lshrrev_b32 v%d, 1, v%d" % (HC, HC))
        e("v_lshrrev_b32 v%d, 1, v%d" % (HF, HC))
        e("v_lshlrev_b32 v%d, 2, v%d" % (HF, HF))
        for b, sr in ((R + 8, PS2), (R + 12, PS3)):
            if P["xkp"] & 8:
                continue
            gnt = " nt" if P["bnt"] & 16 else ""
            e("buffer_load_dwordx3 v[%d:%d], v%d, s[%d:%d], 0 offen%s" % (b, b + 2, HF, sr, sr + 3, gnt))
            if P["pace"] == 2:
                e("s_waitcnt vmcnt(0)")
            e("buffer_load_dword v%d, v%d, s[%d:%d], 0 offen offset:12%s" % (b + 3, HF, sr, sr + 3, gnt))
        e("v_lshrrev_b32 v%d, 6, v%d" % (R + 6, HC))
        e("v_lshl_add_u32 v%d, v%d, 2, s%d" % (R + 6, R + 6, PE + 1))
        e("v_and_b32 v%d, 15, v%d" % (HD, HC))
        e("v_cmp_eq_u32 s[%d:%d], 5, v%d" % (PSIX + 2 * st, PSIX + 2 * st + 1, HD))
        e("v_and_b32 v%d, 1, v%d" % (R + 7, HC))
        e("v_lshlrev_b32 v%d, 4, v%d" % (R + 7, R + 7))
        if P["pace"] == 1:
            e("s_waitcnt vmcnt(0)")
    e("s_add_u32 s%d, s%d, 1" % (PNEED, PPH))
    lds_wait("fd", HZ, HE, PE, L_FD, "s%d" % PNEED, PSP)
    e("v_mul_u32_u24 v%d, %d, v%d" % (HA, FSTR, HL))
    e("s_xor_b32 s%d, s%d, s%d" % (PE, PKW, PWD))
    e("s_xor_b32 s%d, s%d, s%d" % (PE, PE, PNB))
    e("s_and_b32 s%d, s%d, 7" % (PE, PE))
    e("v_mov_b32 v%d, s%d" % (HC, PNEED))
    e("s_lshl_b64 vcc, 1, s%d" % PE)
    e("s_or_b32 s%d, s%d, s%d" % (PE, PKW, PWD))
    e("s_bitcmp1_b32 s%d, 3" % PE)
    e("s_cselect_b64 vcc, 0xff, vcc")
    e("s_cmp_eq_u32 s%d, s%d" % (PKW, PWD))
    e("s_cselect_b64 vcc, 0, vcc")
    e("s_max_u32 s%d, s%d, 1" % (PE, PPH))
    e("v_mov_b32 v%d, s%d" % (HD, PE))
    e("v_cndmask_b32 v%d, v%d, v%d, vcc" % (HC, HD, HC))
    e("s_cmp_%s_u32 s%d, 1" % ("eq" if P["jit"] else "ge", PPH))
    e("s_cselect_b64 exec, vcc, 0xff")
    e("s_mov_b32 s%d, 0x40000" % PSP)
    if not P["xkp"] & 64:
        e("s_cbranch_execz L_noflags")
        e.label("L_flags")
        e("buffer_load_dword v%d, v%d, s[%d:%d], s%d offen sc1" % (HB_, HA, PWS, PWS + 3, PGL))
        e("s_sub_u32 s%d, s%d, 1" % (PSP, PSP))
        e("s_cbranch_scc1 L_exit1")
        e("s_waitcnt vmcnt(0)")
        e("v_cmpx_gt_u32 vcc, v%d, v%d" % (HC, HB_))
        e("s_cbranch_execnz L_flags")
        e.label("L_noflags")
    e("s_mov_b64 exec, -1")
    for st in range(4):
        R = HX + RS * st
        if 4 * st < N0:
            e("v_lshrrev_b32 v%d, 2, v%d" % (HB_, HR))
            e("v_add_u32 v%d, %d, v%d" % (HB_, 4 * st, HB_))
            e("v_cmp_gt_u32 vcc, s%d, v%d" % (PN0, HB_))
            e("v_cndmask_b32 v%d, v%d, v%d, vcc" % (HD, HK, HT2))
            kx = HD
        else:
            kx = HK
        e("v_cmp_eq_u32 vcc, v%d, v%d" % (kx, HV))
        e("v_xor_b32 v%d, v%d, v%d" % (HD, kx, HG))
        e("v_and_b32 v%d, 7, v%d" % (HD, HD))
        e("v_mad_u32_u24 v%d, v%d, s%d, v%d" % (HD, HD, PIS, HN))
        if not P["xkp"] & 32:
            e("buffer_load_dword v%d, v%d, s[%d:%d], 0 offen sc1" % (R + 6, R + 6, PWS, PWS + 3))
        e("s_mov_b64 exec, vcc")
        e("ds_read_b128 v[%d:%d], v%d offset:%d" % (R, R + 3, HN, L_LG + st * 2048))
        e("ds_read_b64 v[%d:%d], v%d offset:%d" % (R + 4, R + 5, HN, L_LG + st * 2048 + 16))
        e("s_not_b64 exec, vcc")
        e("s_add_u32 s%d, s%d, %d" % (PE + 2, PIM, st * 2048))
        if not P["xkp"] & 128:
            e("buffer_load_dwordx4 v[%d:%d], v%d, s[%d:%d], s%d offen sc1" % (R, R + 3, HD, PWS, PWS + 3, PE + 2))
            e("buffer_load_dwordx2 v[%d:%d], v%d, s[%d:%d], s%d offen offset:16 sc1" % (R + 4, R + 5, HD, PWS, PWS + 3, PE + 2))
        e("s_mov_b64 exec, -1")
    e("s_mov_b32 s%d, 0" % PN0)
    e("v_mov_b32 v%d, 0x%08x" % (HB_, BIGNEG))
    e("v_mov_b32 v%d, 0x%08x" % (HA, BIGNEG))
    e("s_waitcnt vmcnt(0) lgkmcnt(0)")
    for st in range(4):
        R = HX + RS * st
        for k in range(6):
            e("v_sub_f32 v%d, v%d, v%d" % (R + k, R + k, R + 6))
        for k in range(6):
            e("v_mul_f32 v%d, s%d, v%d" % (R + k, PCC, R + k))
        e("v_cndmask_b32 v%d, v%d, v%d, s[%d:%d]" % (R + 5, HB_, R + 5, PSIX + 2 * st, PSIX + 2 * st + 1))
        for k in range(0, 6, 2):
            e("v_max3_f32 v%d, v%d, v%d, v%d" % (HA, HA, R + k, R + k + 1))
        for b in (R + 8, R + 12):
            for k in range(3):
                e("v_alignbit_b32 v%d, v%d, v%d, v%d" % (b + k, b + k + 1, b + k, R + 7))

    wave_reduce([HA], "v_max_f32", [HB_])
    e("v_mov_b32 v%d, 0" % HB_)
    e("v_mov_b32 v%d, 0" % HC)
    for st in range(4):
        R = HX + RS * st
        for k in range(6):
            e("v_sub_f32 v%d, v%d, v%d" % (R + k, R + k, HA))
        for k in range(6):
            e("v_exp_f32 v%d, v%d" % (R + k, R + k))
        for k in range(6):
            e("v_add_f32 v%d, v%d, v%d" % (HB_, HB_, R + k))
            if k & 1:
                e("v_and_b32 v%d, 0xffff0000, v%d" % (HE, R + 8 + k // 2))
                e("v_and_b32 v%d, 0xffff0000, v%d" % (HF, R + 12 + k // 2))
            else:
                e("v_lshlrev_b32 v%d, 16, v%d" % (HE, R + 8 + k // 2))
                e("v_lshlrev_b32 v%d, 16, v%d" % (HF, R + 12 + k // 2))
            e("v_mul_f32 v%d, v%d, v%d" % (R + k, R + k, HE))
            e("v_fmac_f32 v%d, v%d, v%d" % (HC, R + k, HF))
        e("ds_write_b128 v%d, v[%d:%d] offset:%d" % (HN, R, R + 3, L_PV + st * 2048))
        e("ds_write_b64 v%d, v[%d:%d] offset:%d" % (HN, R + 4, R + 5, L_PV + st * 2048 + 16))
    wave_reduce([HB_, HC], "v_add_f32", [HE, HF])
    e("s_lshl_b32 s%d, s%d, 2" % (PE, PPH))
    e("v_mov_b32 v%d, s%d" % (HE, PE))
    e("v_lshlrev_b32 v%d, 2, v%d" % (HF, HE))
    e("v_mov_b32 v%d, s%d" % (HD, PWD))
    e("s_mov_b64 exec, 1")
    e("ds_write_b128 v%d, v[%d:%d] offset:%d" % (HF, HA, HD, L_ML))
    e("ds_write_b32 v%d, v%d offset:%d" % (HE, HD, L_GO))
    if FU:
        e("s_lshl_b32 s%d, s%d, 8" % (PE, PPH))
        e("s_add_u32 s%d, s%d, s2" % (PE, PE))
        e("s_lshl_b32 s%d, s%d, 6" % (PE, PE))
        e("s_add_u32 s%d, s%d, %d" % (PE, PE, WS_ML))
        e("buffer_store_dwordx4 v[%d:%d], off, s[%d:%d], s%d sc1" % (HA, HD, PWS, PWS + 3, PE))
    e("s_mov_b64 exec, -1")
    e("v_add_u32 v%d, 8192, v%d" % (HN, HN))
    e("s_add_u32 s%d, s%d, 1" % (PPH, PPH))
    e("s_cmp_lt_u32 s%d, 3" % PPH)
    e("s_cbranch_scc1 L_prep")
    e("s_mov_b32 s%d, 0" % PPH)
    e("v_lshlrev_b32 v%d, 2, v%d" % (HR, HL))
    e("v_add_u32 v%d, %d, v%d" % (HG, L_ACC, HR))
    e("v_lshlrev_b32 v%d, 4, v%d" % (HK, HL))
    e("v_mov_b32 v%d, 1" % (HX + 15))
    e.label("L_merge")
    e("s_lshl_b32 s%d, s%d, 2" % (PE, PPH))
    e("v_mov_b32 v%d, s%d" % (HW, PE))
    e("v_lshlrev_b32 v%d, 2, v%d" % (HF, HW))
    e("ds_read_b128 v[%d:%d], v%d offset:%d" % (HA, HD, HF, L_ML))
    e("s_lshl_b32 s%d, s%d, 8" % (PSG, PPH))
    e("s_add_u32 s%d, s%d, s2" % (PSG, PSG))
    e("s_lshl_b32 s%d, s%d, 10" % (PSG, PSG))
    lds_wait("m", HZ, HE, PE, L_CA, "4", PSP, HW)
    for kk in range(3):
        for w in range(NW):
            e("ds_read_b32 v%d, v%d offset:%d" % (HX + kk * NW + w, HG, w * ROWB + kk * 256))
    for kk in range(3):
        b = HX + kk * NW
        e("s_waitcnt lgkmcnt(%d)" % (8 - 4 * kk))
        e("v_add_f32 v%d, v%d, v%d" % (b, b, b + 1))
        e("v_add_f32 v%d, v%d, v%d" % (b + 2, b + 2, b + 3))
        e("v_sub_f32 v%d, v%d, v%d" % (b, b, HC))
        if FU:
            e("v_add_f32 v%d, v%d, v%d" % (HX + 12 + kk, b, b + 2))
            continue
        e("v_add_f32 v%d, v%d, v%d" % (b, b, b + 2))
        e("buffer_store_dword v%d, v%d, s[%d:%d], s%d offen offset:%d" % (b, HR, PWS, PWS + 3, PSG, kk * 256))
    if FU:
        e("buffer_store_dwordx4 v[%d:%d], v%d, s[%d:%d], s%d offen sc1" % (HX + 12, HX + 15, HK, PWS, PWS + 3, PSG))
    else:
        e("s_mov_b64 exec, 1")
        e("buffer_store_dwordx2 v[%d:%d], off, s[%d:%d], s%d offset:%d" % (HA, HB_, PWS, PWS + 3, PSG, DH * 4))
        e("s_mov_b64 exec, -1")
    e("v_add_u32 v%d, %d, v%d" % (HG, NW * ROWB, HG))
    e("s_add_u32 s%d, s%d, 1" % (PPH, PPH))
    e("s_cmp_lt_u32 s%d, 3" % PPH)
    e("s_cbranch_scc1 L_merge")
    e("s_endpgm")

    main_text = e.text()
    RPW = 24
    k2 = NAME + "_kernel"
    e.lines.append(".globl %s" % k2)
    e.lines.append(".p2align 8")
    e.lines.append(".type %s,@function" % k2)
    e.lines.append(k2 + ":")
    e.wr = {}; e.tr = {}; e.sw = {}
    e("s_cmp_ge_u32 s2, %d" % H)
    e("s_cbranch_scc1 L_exit2")
    e("s_load_dwordx2 s[4:5], s[0:1], 56")
    e("s_load_dwordx2 s[6:7], s[0:1], 72")
    e("v_lshlrev_b32 v1, 2, v0")
    e("v_mov_b32 v2, 0")
    e("s_mul_i32 s16, s2, %d" % (RPW * PART_STRIDE))
    e("s_mov_b32 s10, %d" % (3 * NWG * PART_STRIDE))
    e("s_mov_b32 s11, 0x00020000")
    e("s_mov_b32 s14, %d" % (H * DH * 2))
    e("s_mov_b32 s15, 0x00020000")
    for k in range(1, RPW // 4):
        e("s_add_u32 s%d, s16, %d" % (16 + k, 4 * k * PART_STRIDE))
    e("s_waitcnt lgkmcnt(0)")
    e("s_mov_b32 s8, s6")
    e("s_and_b32 s9, s7, 0xffff")
    e("s_mov_b32 s12, s4")
    e("s_and_b32 s13, s5, 0xffff")
    MLB = 8
    OB = MLB + 2 * RPW
    for s in range(RPW):
        so = 16 + s // 4
        e("buffer_load_dwordx2 v[%d:%d], v2, s[8:11], s%d offen offset:%d" %
          (MLB + 2 * s, MLB + 2 * s + 1, so, (s % 4) * PART_STRIDE + DH * 4))
        e("buffer_load_dword v%d, v1, s[8:11], s%d offen offset:%d" % (OB + s, so, (s % 4) * PART_STRIDE))
    e("s_waitcnt vmcnt(0)")
    e("v_mov_b32 v4, v%d" % MLB)
    for s in range(1, RPW):
        e("v_max_f32 v4, v4, v%d" % (MLB + 2 * s))
    for s in range(RPW):
        e("v_sub_f32 v%d, v%d, v4" % (MLB + 2 * s, MLB + 2 * s))
    for s in range(RPW):
        e("v_exp_f32 v%d, v%d" % (MLB + 2 * s, MLB + 2 * s))
    e("v_mul_f32 v5, v%d, v%d" % (MLB, MLB + 1))
    e("v_mul_f32 v6, v%d, v%d" % (MLB, OB))
    for s in range(1, RPW):
        e("v_fmac_f32 v5, v%d, v%d" % (MLB + 2 * s, MLB + 2 * s + 1))
        e("v_fmac_f32 v6, v%d, v%d" % (MLB + 2 * s, OB + s))
    e("v_rcp_f32 v5, v5")
    e("v_mul_f32 v6, v6, v5")
    e("v_cvt_pk_bf16_f32 v6, v6, v6")
    e("s_mul_i32 s16, s2, %d" % (DH * 2))
    e("v_lshrrev_b32 v1, 1, v1")
    e("buffer_store_short v6, v1, s[12:15], s16 offen")
    e.lines.append("L_exit2:")
    e("s_endpgm")
    NV2 = OB + RPW

    def kd(name, nv, ns):
        acc = (nv + 3) // 4 * 4
        return """.amdhsa_kernel %s
  .amdhsa_next_free_vgpr %d
  .amdhsa_next_free_sgpr %d
  .amdhsa_accum_offset %d
  .amdhsa_group_segment_fixed_size 0
  .amdhsa_kernarg_size 80
  .amdhsa_user_sgpr_count 2
  .amdhsa_user_sgpr_kernarg_segment_ptr 1
  .amdhsa_system_sgpr_workgroup_id_x 1
.end_amdhsa_kernel
""" % (name, nv, ns, acc)

    out = HEADER.replace("gen.py", "gen6.py").format(params=" ".join("%s=%s" % kv for kv in sorted(P.items())))
    if FU:
        out += "; @launch kernel=%s grid=(%d,1,1) block=(%d,1,1) lds=%d\n" % (k1, NWG, (NW + NH) * 64, LDS1)
    else:
        out += "; @launch kernel=%s grid=(%d,1,1) block=(%d,1,1) lds=%d\n" % (k1, NWG, (NW + NH) * 64, LDS1)
        out += "; @launch kernel=%s grid=(%d,1,1) block=(%d,1,1) lds=%d\n" % (k2, H, DH, 0)
    out += '.amdgcn_target "amdgcn-amd-amdhsa--gfx950"\n.text\n'
    out += main_text if FU else e.text()
    out += '.section .rodata,"a"\n.p2align 6\n'
    out += kd(k1, NVGPR + (2 if P["stamp"] == 5 else 0), 102)
    if not FU:
        out += ".p2align 6\n"
        out += kd(k2, NV2, 24)
    return out


DEFAULTS = dict(grp="6-6-6", n0=4, trg=1, ta=8, tb=12, jit=1, pace=1, nr0=1, nr=3, nt="nt", ldspad=0, stamp=0, xkp=0, force=0, clip=1400,
                l2t=290, th=200, pf=1, ob=2, ox=0, ds=1, td=3, tdm=3, fuse=1, cw=1,
                h4=0, bnt=0, vw=1, at=1, tc=33, tg=2, te=37, aq=16, ka=7, kb=3584, dmin=0, dmax=11)


def main():
    P = dict(DEFAULTS)
    outp = None
    args = sys.argv[1:]
    i = 0
    while i < len(args):
        a = args[i]
        if a == "-o":
            outp = args[i + 1]; i += 2; continue
        k, v = a.split("=", 1)
        assert k in P, k
        P[k] = type(P[k])(v.replace("+", " ")) if isinstance(P[k], str) else int(v)
        i += 1
    s = gen(P)
    if outp:
        open(outp, "w").write(s)
    else:
        sys.stdout.write(s)


if __name__ == "__main__":
    main()
```

```python
import re
import sys
import math
from gen import f32hex, HEADER, NAME, H, SKV, DH, G, NGRP, ROWB, HEADB
from gen4 import Emit4

PART_STRIDE = 1024
NW = 4
NH = 3
NWG = 256
NT = 48
WS_G = 8 << 20
FSTR = 4096 + 256
WS_ML = 0xe0000
WS_B = 0x120000
WS_L = 2 << 20
WS_SIZE = 10 << 20
BIGNEG = 0xf149f2ca


def gen(P):
    GR = [int(x) for x in P["grp"].split("-")]
    assert sum(GR) == 18 and len(GR) >= 2
    NG = len(GR)
    GOFF = [sum(GR[:k]) for k in range(NG)]
    OV = [int(x) for x in P["ov"]]
    N0 = P["n0"]
    NR = P["nr"]
    TRG1 = N0 - P["trg"]
    TA = P["ta"]
    TB = P["tb"]
    assert 2 <= TRG1 < N0 < TA < TB < 16 and 1 <= NR <= 7 and N0 <= 8
    pol = (" " + P["nt"]) if P["nt"] else ""
    C = (DH ** -0.5) * math.log2(math.e)
    L_DEC = 0
    L_GO = 24
    L_PC = 36
    L_CF = 40
    L_FD = 52
    L_EV = 56
    L_CA = 64
    L_ML = 80
    L_TC = 128
    L_TD = 132
    L_LG = 256
    PHI = 6144
    IMG = 3 * PHI
    L_PV = L_LG + IMG
    L_ACC = L_PV + 192 * 128
    LDS1 = max(L_ACC + 3 * NW * ROWB, P["ldspad"])

    e = Emit4()
    V_T = 1; V_J16 = 2; V_J8 = 3; V_LB0 = 4; V_PB0 = 5; V_PV = 6; V_PVN = 7; V_DO = 8; V_PO = 9; V_T0 = 10; V_T1 = 11
    V_ACC = 12; V_W = 24; V_RAW = 36
    V_OFF = 48; V_OFF6 = 49; V_TM = 50; V_BIG = 51; V_T2 = 52; V_Z = 53
    V_S = 54
    V_D = 60
    V_T128 = 62; V_TMX = 63
    V_RING = 64
    NVGPR = V_RING + 72
    S_G = 3; S_M = 4; S_N = 5; S_SPIN = 6; S_LDC = 7
    S_K = 8; S_V = 12; S_KS = 16; S_Q = 20; S_WS = 24
    S_WAVE = 28; S_CI = 29; S_I = 30; S_QOFF = 31
    S_T = 32
    S_EV = 40; S_STM = 42; S_HB = 44; S_768 = 45; S_384 = 46; S_MAGIC = 47
    S_NB = 48; S_TD = 49; S_XB = 50; S_LB = 53
    S_ST = 54; S_DBG = 56

    FU = P["fuse"]
    k1 = NAME + "_kernel" if FU else "part_kernel"
    e.lines.append(".globl %s" % k1)
    e.lines.append(".p2align 8")
    e.lines.append(".type %s,@function" % k1)
    e.lines.append(k1 + ":")
    e("s_cmp_ge_u32 s2, %d" % NWG)
    e("s_cbranch_scc1 L_exit1")
    e("s_load_dwordx16 s[64:79], s[0:1], 0")
    e("s_load_dwordx4 s[80:83], s[0:1], 64")
    if P["stamp"]:
        e("s_memrealtime s[%d:%d]" % (S_ST, S_ST + 1))
    e("v_lshrrev_b32 v%d, 6, v0" % V_T0)
    e("v_and_b32 v%d, 63, v0" % V_T1)
    e("v_readfirstlane_b32 s%d, v%d" % (S_WAVE, V_T0))
    e("s_lshr_b32 s%d, s2, 3" % S_G)
    e("s_and_b32 s%d, s2, 7" % S_M)
    e("s_lshr_b32 s%d, s2, 6" % S_T)
    e("s_xor_b32 s%d, s%d, s%d" % (S_T, S_T, S_M))
    e("s_lshr_b32 s%d, s%d, 1" % (S_NB, S_T))
    e("s_and_b32 s%d, s%d, 1" % (S_T, S_T))
    e("s_lshl_b32 s%d, s%d, 2" % (S_T, S_T))
    e("s_or_b32 s%d, s%d, s%d" % (S_NB, S_NB, S_T))
    e("s_cmp_ge_u32 s%d, %d" % (S_WAVE, NW))
    e("s_cbranch_scc1 L_helper")

    def srd(dst, ptr, nbytes):
        e("s_mov_b32 s%d, s%d" % (dst, ptr))
        e("s_and_b32 s%d, s%d, 0xffff" % (dst + 1, ptr + 1))
        e("s_mov_b32 s%d, %d" % (dst + 2, nbytes))
        e("s_mov_b32 s%d, 0x00020000" % (dst + 3))

    def lds_wait(tag, vz, vt, st, off, cond, spin, vaddr=None):
        e("s_mov_b32 s%d, 0x100000" % spin)
        e.label("L_w" + tag)
        e("ds_read_b32 v%d, v%d offset:%d" % (vt, vz if vaddr is None else vaddr, off))
        e("s_sub_u32 s%d, s%d, 1" % (spin, spin))
        e("s_cbranch_scc1 L_exit1")
        e("s_waitcnt lgkmcnt(0)")
        e("v_readfirstlane_b32 s%d, v%d" % (st, vt))
        if cond == "nz":
            e("s_cmp_eq_u32 s%d, 0" % st)
        else:
            e("s_cmp_lt_u32 s%d, %s" % (st, cond))
        e("s_cbranch_scc1 L_w" + tag)

    def get_table(kind, tag):
        e("s_lshr_b32 s%d, s%d, 4" % (S_T + 1, S_I))
        e("s_lshl_b32 s%d, s%d, 2" % (S_T + 2, S_T + 1))
        e("v_mov_b32 v%d, s%d" % (V_T1, S_T + 2))
        if kind == "K":
            load_q(S_T + 1, False)
        lds_wait(tag, V_Z, V_T0, S_T, L_DEC if kind == "K" else L_GO, "nz", S_SPIN, V_T1)
        e("s_and_b32 s%d, s%d, 7" % (S_N, S_T))
        e("s_xor_b32 s%d, s%d, s%d" % (S_N, S_N, S_NB))
        e("s_bitcmp1_b32 s%d, 3" % S_T)
        e("s_cselect_b64 vcc, -1, 0")
        e("v_cndmask_b32 v%d, v%d, v%d, vcc" % (V_TM, V_T128, V_TMX))

    def load_q(ph, track):
        e("s_lshl_b32 s%d, s%d, 5" % (S_QOFF, ph))
        e("s_add_u32 s%d, s%d, s%d" % (S_QOFF, S_QOFF, S_G))
        e("s_mul_i32 s%d, s%d, 171" % (S_QOFF, S_QOFF))
        e("s_lshr_b32 s%d, s%d, 9" % (S_QOFF, S_QOFF))
        e("s_mul_i32 s%d, s%d, %d" % (S_QOFF, S_QOFF, DH * 2))
        for c in range(3):
            r = V_RAW + 2 * c
            s = "buffer_load_dwordx2 v[%d:%d], v%d, s[%d:%d], s%d offen offset:%d" % (r, r + 1, V_J8, S_Q, S_Q + 3, S_QOFF, c * 128)
            if track:
                e.vmem(s, "p")
            else:
                e(s)

    def tile_addr(kind):
        ch, a, b = S_T, S_T + 1, S_T + 2
        e("s_lshr_b32 s%d, s%d, 6" % (a, S_CI))
        e("s_lshl_b32 s%d, s%d, 11" % (a, a))
        e("s_and_b32 s%d, s%d, 63" % (ch, S_CI))
        e("s_add_u32 s%d, s%d, s%d" % (ch, ch, a))
        e("s_add_u32 s%d, s%d, s%d" % (ch, ch, S_HB))
        e("s_bfe_u32 s%d, s%d, 0x20003" % (a, ch))
        e("s_and_b32 s%d, s%d, 4" % (b, ch))
        e("s_or_b32 s%d, s%d, s%d" % (a, a, b))
        e("s_xor_b32 s%d, s%d, s%d" % (a, a, S_N))
        e("s_lshl_b32 s%d, s%d, 5" % (S_XB, ch))
        e("s_or_b32 s%d, s%d, s%d" % (S_XB, S_XB, a))
        e("s_lshl_b32 s%d, s%d, 4" % (S_XB, S_XB))
        e("s_or_b32 s%d, s%d, 1" % (S_XB, S_XB))
        if kind == "V":
            e("s_lshl_b32 s%d, s%d, 7" % (S_LB, S_CI))
        e("v_xor_b32 v%d, s%d, v%d" % (V_T0, S_XB, V_TM))
        e("v_mul_hi_u32 v%d, v%d, s%d" % (V_T0, V_T0, S_MAGIC))
        e("v_lshrrev_b32 v%d, 1, v%d" % (V_T0, V_T0))
        e("v_and_b32 v%d, 15, v%d" % (V_T1, V_T0))
        e("v_cmp_eq_u32 vcc, 5, v%d" % V_T1)
        e("v_mad_u32_u24 v%d, v%d, s%d, v%d" % (V_OFF, V_T0, S_768, V_J16))
        e("v_add_u32 v%d, %d, v%d" % (V_T1, 5 * ROWB, V_OFF))
        e("v_cndmask_b32 v%d, v%d, v%d, vcc" % (V_OFF6, V_BIG, V_T1))
        if kind == "K":
            e("v_lshrrev_b32 v%d, 6, v%d" % (V_T0, V_T0))
            e("v_mad_u32_u24 v%d, v%d, s%d, v%d" % (V_PO, V_T0, S_384, V_J8))
        else:
            e("v_add_u32 v%d, s%d, v%d" % (V_T0, S_LB, V_PB0))

    def issue_params(kind):
        if kind == "K":
            if P["xkp"] & 2:
                return
            for c in range(3):
                r = V_RAW + 6 + 2 * c
                e.vmem("buffer_load_dwordx2 v[%d:%d], v%d, s[%d:%d], 0 offen offset:%d%s" %
                       (r, r + 1, V_PO, S_KS, S_KS + 3, c * 128, " nt" if P["bnt"] & 4 else ""), "p")
        else:
            e("ds_read_b32 v%d, v%d" % (V_PVN, V_T0))

    def issue_group(k, kind, pol=pol):
        srdb = S_K if kind == "K" else S_V
        for l in range(GOFF[k], GOFF[k] + GR[k]):
            r = V_RING + l * 4
            if l < 15:
                vo, off = V_OFF, l * 256
            else:
                vo, off = V_OFF6, (l - 15) * 256
            e.vmem("buffer_load_dwordx4 v[%d:%d], v%d, s[%d:%d], 0 offen offset:%d%s" %
                   (r, r + 3, vo, srdb, srdb + 3, off, pol), "g%d" % k)

    def compute_w():
        e.wait_tag("p")
        for p in range(6):
            rq = V_RAW + p; rs = V_RAW + 6 + p
            i0 = 2 * p
            e("v_lshlrev_b32 v%d, 16, v%d" % (V_T0, rq))
            e("v_lshlrev_b32 v%d, 16, v%d" % (V_W + i0, rs))
            e("v_and_b32 v%d, 0xffff0000, v%d" % (V_T1, rq))
            e("v_and_b32 v%d, 0xffff0000, v%d" % (V_W + i0 + 1, rs))
            e("v_mul_f32 v%d, v%d, v%d" % (V_W + i0, V_W + i0, V_T0))
            e("v_mul_f32 v%d, v%d, v%d" % (V_W + i0 + 1, V_W + i0 + 1, V_T1))

    def advance(kind, to_v, tag):
        nkind = "V" if to_v else kind
        if to_v:
            e("s_mov_b32 s%d, s%d" % (S_CI, S_WAVE))
            e("s_mov_b32 s%d, 0" % S_I)
            get_table("V", "tv")
            ev = (1 << 16) | (1 << 32)
            if P["at"]:
                ev |= (1 << P["tc"]) | (1 << (P["tc"] + P["tg"])) | (1 << P["te"])
            e("s_mov_b32 s%d, %d" % (S_TD, NT - P["td"] if P["td"] else 255))
            e("s_mov_b32 s%d, 0x%x" % (S_EV, ev & 0xffffffff))
            e("s_mov_b32 s%d, 0x%x" % (S_EV + 1, ev >> 32))
        else:
            e("s_add_u32 s%d, s%d, %d" % (S_CI, S_CI, NW))
            e("s_add_u32 s%d, s%d, 1" % (S_I, S_I))
            if tag:
                e("s_bitcmp1_b64 s[%d:%d], s%d" % (S_EV, S_EV + 1, S_I))
                e("s_cbranch_scc1 L_ev%s" % kind)
                e.flush()
                e.label("L_evret%s" % kind)
        if P["stamp"] == 4:
            e("s_memrealtime s[%d:%d]" % (S_DBG, S_DBG + 1))
            e("s_add_u32 s%d, s%d, 4" % (S_DBG + 2, S_DBG + 2))
            e("s_waitcnt lgkmcnt(0)")
            e("v_mov_b32 v%d, s%d" % (V_T2, S_DBG))
            e("s_mov_b64 exec, 1")
            e("buffer_store_dword v%d, off, s[%d:%d], s%d" % (V_T2, S_WS, S_WS + 3, S_DBG + 2))
            e("s_mov_b64 exec, -1")
        if P["stamp"] == 5:
            e("s_memrealtime s[%d:%d]" % (S_DBG, S_DBG + 1))
            e("s_add_u32 m0, m0, 1")
            e("s_waitcnt lgkmcnt(0)")
            e("v_writelane_b32 v%d, s%d, m0" % (NVGPR + (1 if kind == "V" else 0), S_DBG))
            if to_v:
                e("s_mov_b32 m0, -1")
        tile_addr(nkind)
        issue_params(nkind)

    def compute(k, kind):
        for l in range(GOFF[k], GOFF[k] + GR[k]):
            q, c = l // 3, l % 3
            base = V_RING + l * 4
            for r in range(4):
                e("v_cvt_f32_i32 v%d, v%d" % (base + r, base + r))
            if kind == "K":
                s = V_S + q
                for r in range(4):
                    if c == 0 and r == 0:
                        e("v_mul_f32 v%d, v%d, v%d" % (s, base, V_W))
                    else:
                        e("v_fmac_f32 v%d, v%d, v%d" % (s, base + r, V_W + 4 * c + r))
                if c == 2:
                    e.defer(["v_add_f32_dpp v%d, v%d, v%d row_ror:%d row_mask:0xf bank_mask:0xf" % (s, s, s, kk)
                             for kk in (8, 4, 2)] +
                            ["v_add_f32_dpp v%d, v%d, v%d row_ror:1 row_mask:0xf bank_mask:0x%x" %
                             (V_D + (q & 1), s, s, 1 << (q >> 1))])
            else:
                for r in range(4):
                    e("v_fmac_f32_dpp v%d, v%d, v%d row_newbcast:%d row_mask:0xf bank_mask:0xf" %
                      (V_ACC + 4 * c + r, V_PV, base + r, q))
        e.flush()

    def finish(kind, to_v):
        if kind == "K":
            e("s_mov_b64 exec, s[%d:%d]" % (S_STM, S_STM + 1))
            e("ds_write_b64 v%d, v[%d:%d]" % (V_LB0, V_D, V_D + 1))
            e("s_mov_b64 exec, -1")
            if not to_v:
                e("v_add_u32 v%d, 48, v%d" % (V_LB0, V_LB0))
                compute_w()
        if kind == "V" or to_v:
            e("s_waitcnt lgkmcnt(0)")
            e("v_mov_b32 v%d, v%d" % (V_PV, V_PVN))

    def body(kind, to_v=False, first=False):
        nkind = "V" if to_v else kind
        for k in range(NG):
            ov = OV[k] if not first else 0
            if ov:
                i = e.vm.index("g%d" % k) + GR[k] - ov
                e("s_waitcnt vmcnt(%d)" % (len(e.vm) - i))
                e.vm = e.vm[i:]
            else:
                e.wait_tag("g%d" % k)
            if k + 1 < NG:
                if not first:
                    issue_group(k + 1, kind)
            else:
                issue_group(0, nkind)
            if ov:
                e("s_waitcnt vmcnt(%d)" % (len(e.vm) - ov))
                e.vm = e.vm[ov:]
            if k == NG - 2:
                advance(kind, to_v, not first)
            compute(k, kind)
        finish(kind, to_v)

    def body_deep(mode):
        if mode == 3:
            advance("V", False, False)
        for k in range(NG):
            i = e.vm.index("g%d" % k) + GR[k]
            e("s_waitcnt vmcnt(%d)" % (len(e.vm) - i))
            e.vm = e.vm[i:]
            if mode == 2:
                issue_group((k + 2) % NG, "V")
                if k == NG - 3:
                    advance("V", False, False)
            compute(k, "V")
            if mode == 3:
                issue_group(k, "V", "" if P["xkp"] & 256 else pol)
        finish("V", False)

    def lds_inc(off, vz, vt):
        e("v_mov_b32 v%d, 1" % vt)
        e("s_mov_b64 exec, 1")
        e("ds_add_u32 v%d, v%d offset:%d" % (vz, vt, off))
        e("s_mov_b64 exec, -1")

    e("v_lshrrev_b32 v%d, 4, v%d" % (V_T, V_T1))
    e("v_and_b32 v%d, 15, v%d" % (V_T2, V_T1))
    e("v_lshlrev_b32 v%d, 4, v%d" % (V_J16, V_T2))
    e("v_lshlrev_b32 v%d, 3, v%d" % (V_J8, V_T2))
    e("v_lshlrev_b32 v%d, 7, v%d" % (V_T128, V_T))
    e("v_and_b32 v%d, 0x70, v0" % V_TMX)
    e("v_or_b32 v%d, v%d, v%d" % (V_TMX, V_TMX, V_T128))
    e("v_mov_b32 v%d, v%d" % (V_TM, V_TMX))
    if P["h4"]:
        e("v_and_b32 v%d, 0x%x, v%d" % (V_T128, 0xffffff8f | (P["h4"] << 4), V_TMX))
    e("s_mov_b32 s%d, %d" % (S_768, ROWB))
    e("s_mov_b32 s%d, %d" % (S_384, DH * 2))
    e("s_mov_b32 s%d, 0xaaaaaaab" % S_MAGIC)
    e("v_mov_b32 v%d, 0xc0000000" % V_BIG)
    e("s_lshl_b32 s%d, s%d, 6" % (S_HB, S_G))
    e("s_mov_b32 s%d, s%d" % (S_N, S_NB))
    e("s_mov_b32 s%d, s%d" % (S_CI, S_WAVE))
    tile_addr("K")
    e("s_waitcnt lgkmcnt(0)")
    srd(S_K, 66, H * HEADB)
    issue_group(0, "K")
    e("s_mov_b32 s%d, 0" % S_I)
    srd(S_Q, 64, H * DH * 2)
    load_q(S_I, True)
    srd(S_KS, 70, H * NGRP * DH * 2)
    issue_params("K")
    if P["ds"]:
        for k in range(1, NG):
            issue_group(k, "K")
    srd(S_V, 68, H * HEADB)
    if P["stamp"]:
        srd(S_WS, 82, 0x8000000)
    if P["stamp"] == 5:
        e("s_mov_b32 m0, -1")
    if P["stamp"] in (4, 5):
        e("s_mul_i32 s%d, s2, %d" % (S_DBG + 2, NW))
        e("s_add_u32 s%d, s%d, s%d" % (S_DBG + 2, S_DBG + 2, S_WAVE))
        e("s_lshl_b32 s%d, s%d, 9" % (S_DBG + 2, S_DBG + 2))
        e("s_add_u32 s%d, s%d, 0x4010000" % (S_DBG + 2, S_DBG + 2))
    e("v_lshlrev_b32 v%d, 5, v%d" % (V_T1, V_T))
    e("v_bfe_u32 v%d, v0, 4, 3" % V_LB0)
    e("v_mul_u32_u24 v%d, s%d, v%d" % (V_LB0, S_768, V_LB0))
    e("v_lshl_add_u32 v%d, v%d, 1, v%d" % (V_LB0, V_T2, V_LB0))
    e("s_lshr_b32 s%d, s%d, 1" % (S_T, S_WAVE))
    e("s_mul_i32 s%d, s%d, 24" % (S_T, S_T))
    e("s_add_u32 s%d, s%d, %d" % (S_T, S_T, L_LG))
    e("v_add_u32 v%d, s%d, v%d" % (V_LB0, S_T, V_LB0))
    e("v_and_b32 v%d, 7, v%d" % (V_PB0, V_T2))
    e("v_lshl_add_u32 v%d, v%d, 2, v%d" % (V_PB0, V_PB0, V_T1))
    e("v_add_u32 v%d, %d, v%d" % (V_PB0, L_PV, V_PB0))
    e("v_lshlrev_b32 v%d, 2, v%d" % (V_DO, V_T))
    e("v_add_u32 v%d, v%d, v%d" % (V_DO, V_J16, V_DO))
    e("s_mul_i32 s%d, s%d, %d" % (S_T, S_WAVE, ROWB))
    e("s_add_u32 s%d, s%d, %d" % (S_T, S_T, L_ACC))
    e("v_add_u32 v%d, s%d, v%d" % (V_DO, S_T, V_DO))
    e("v_mov_b32 v%d, 0" % V_Z)
    e("v_mov_b32 v%d, 0" % V_D)
    e("v_mov_b32 v%d, 0" % (V_D + 1))
    e("s_mov_b32 s%d, 0x01110111" % S_STM)
    e("s_mov_b32 s%d, 0x01110111" % (S_STM + 1))
    ev = (1 << TRG1) | (1 << N0) | (3 << 16) | (3 << 32) | (((1 << TA) | (1 << TB)) * 0x100010001)
    e("s_mov_b32 s%d, 0x%x" % (S_EV, ev & 0xffffffff))
    e("s_mov_b32 s%d, 0x%x" % (S_EV + 1, ev >> 32))
    for i in range(12):
        e("v_mov_b32 v%d, 0" % (V_ACC + i))
    e("s_barrier")
    compute_w()
    steady = ["g0"] * GR[0]
    if P["ds"]:
        body("K", first=True)
    e.vm = list(steady)
    e.lines.append(".p2align 6")
    e.label("L_kloop")
    body("K")
    assert e.vm == steady, (e.vm, steady)
    e("s_cmp_lg_u32 s%d, %d" % (S_I, NT - 1))
    e("s_cbranch_scc1 L_kloop")
    body("K", True)
    lds_inc(L_CF + 8, V_Z, V_T1)
    if P["stamp"] == 1:
        e("s_memrealtime s[%d:%d]" % (S_DBG, S_DBG + 1))
    e.lines.append(".p2align 6")
    e.label("L_vloop")
    body("V")
    assert e.vm == steady, (e.vm, steady)
    if P["td"] or P["at"]:
        e("s_cmp_eq_u32 s%d, s%d" % (S_I, S_TD))
        e("s_cbranch_scc1 L_deep")
    e("s_and_b32 s%d, s%d, 15" % (S_T, S_I))
    e("s_cbranch_scc1 L_vloop")
    e.label("L_vend")
    for c in range(3):
        a = V_ACC + 4 * c
        e("v_permlane32_swap_b32 v%d, v%d" % (a, a + 2))
        e("v_permlane32_swap_b32 v%d, v%d" % (a + 1, a + 3))
    for c in range(3):
        a = V_ACC + 4 * c
        e("v_add_f32 v%d, v%d, v%d" % (a, a, a + 2))
        e("v_add_f32 v%d, v%d, v%d" % (a + 1, a + 1, a + 3))
    for c in range(3):
        a = V_ACC + 4 * c
        e("v_permlane16_swap_b32 v%d, v%d" % (a, a + 1))
    e("s_lshr_b32 s%d, s%d, 2" % (S_T, S_I))
    e("v_mov_b32 v%d, s%d" % (V_T0, S_T))
    for c in range(3):
        a = V_ACC + 4 * c
        e("v_add_f32 v%d, v%d, v%d" % (a, a, a + 1))
        e("ds_write_b32 v%d, v%d offset:%d" % (V_DO, a, c * 256))
    lds_inc(L_CA - 4, V_T0, V_T1)
    e("v_add_u32 v%d, %d, v%d" % (V_DO, NW * ROWB, V_DO))
    for i in range(12):
        e("v_mov_b32 v%d, 0" % (V_ACC + i))
    e("s_cmp_lg_u32 s%d, %d" % (S_I, NT))
    e("s_cbranch_scc1 L_vloop")
    if P["stamp"] == 6:
        e("s_memrealtime s[%d:%d]" % (S_T + 2, S_T + 3))
        srd(S_WS, 80, 256)
        e("s_not_b32 s%d, s%d" % (S_T, S_ST))
        e("v_mov_b32 v%d, s%d" % (V_ACC, S_T))
        e("s_waitcnt lgkmcnt(0)")
        e("v_mov_b32 v%d, s%d" % (V_ACC + 1, S_T + 2))
        e("s_mov_b64 exec, 1")
        e("s_cmp_lg_u32 s%d, 0" % S_WAVE)
        e("s_cbranch_scc1 L_exit1")
        e("buffer_atomic_umax v%d, off, s[%d:%d], 0 offset:32" % (V_ACC, S_WS, S_WS + 3))
        e("buffer_atomic_umax v%d, off, s[%d:%d], 0 offset:36" % (V_ACC + 1, S_WS, S_WS + 3))
    elif P["stamp"]:
        e("s_memrealtime s[%d:%d]" % (S_T + 2, S_T + 3))
        e("s_getreg_b32 s%d, hwreg(HW_REG_XCC_ID)" % (S_T + 4))
        e("s_waitcnt lgkmcnt(0)")
        e("v_mov_b32 v%d, s%d" % (V_ACC + 0, S_ST))
        e("v_mov_b32 v%d, s%d" % (V_ACC + 1, S_T + 2))
        e("v_mov_b32 v%d, s%d" % (V_ACC + 2, S_T + 4))
        e("v_mov_b32 v%d, s%d" % (V_ACC + 3, S_LDC if P["stamp"] == 5 else S_DBG))
        e("s_mul_i32 s%d, s2, %d" % (S_T, NW))
        e("s_add_u32 s%d, s%d, s%d" % (S_T, S_T, S_WAVE))
        e("s_lshl_b32 s%d, s%d, 4" % (S_T, S_T))
        e("s_add_u32 s%d, s%d, 0x4000000" % (S_T, S_T))
        e("buffer_store_dwordx4 v[%d:%d], v%d, s[%d:%d], s%d offen" % (V_ACC, V_ACC + 3, V_Z, S_WS, S_WS + 3, S_T))
        if P["stamp"] == 5:
            e("v_and_b32 v%d, 63, v0" % V_T0)
            e("v_lshlrev_b32 v%d, 2, v%d" % (V_T0, V_T0))
            e("s_mov_b32 exec_hi, 0xffff")
            e("buffer_store_dword v%d, v%d, s[%d:%d], s%d offen offset:4" % (NVGPR, V_T0, S_WS, S_WS + 3, S_DBG + 2))
            e("buffer_store_dword v%d, v%d, s[%d:%d], s%d offen offset:196" % (NVGPR + 1, V_T0, S_WS, S_WS + 3, S_DBG + 2))
    e.lines.append("L_exit1:")
    e("s_endpgm")

    if P["td"] or P["at"]:
        e.label("L_deep")
        e.vm = list(steady)
        for k in range(1, P["tdm"] if NG == 3 else NG):
            issue_group(k, "V")
        deep = list(e.vm)
        e.lines.append(".p2align 6")
        e.label("L_dloop")
        body_deep(P["tdm"])
        assert e.vm == deep, (e.vm, deep)
        e("s_cmp_lg_u32 s%d, %d" % (S_I, NT))
        e("s_cbranch_scc1 L_dloop")
        e("s_branch L_vend")

    e.label("L_evK")
    e("s_and_b32 s%d, s%d, 15" % (S_T, S_I))
    e("s_cbranch_scc0 L_evK2")
    e("s_cmp_eq_u32 s%d, %d" % (S_I, N0))
    e("s_cbranch_scc1 L_evK2")
    e("s_lshr_b32 s%d, s%d, 2" % (S_T + 1, S_I))
    e("s_andn2_b32 s%d, s%d, 3" % (S_T + 1, S_T + 1))
    e("s_add_u32 s%d, s%d, %d" % (S_T + 1, S_T + 1, L_CF - 4))
    e("s_cmp_eq_u32 s%d, 1" % S_T)
    e("s_cselect_b32 s%d, s%d, %d" % (S_T, S_T + 1, L_EV + 4))
    e("s_cselect_b32 s%d, %d, 0" % (S_T + 1, PHI - 768))
    e("v_add_u32 v%d, s%d, v%d" % (V_LB0, S_T + 1, V_LB0))
    e("s_cmp_eq_u32 s%d, %d" % (S_I, TRG1))
    e("s_cselect_b32 s%d, %d, s%d" % (S_T, L_EV, S_T))
    e("v_mov_b32 v%d, s%d" % (V_T0, S_T))
    lds_inc(0, V_T0, V_T1)
    e("s_branch L_evretK")
    e.label("L_evK2")
    if P["stamp"] == 2:
        e("s_cmp_eq_u32 s%d, %d" % (S_I, N0))
        e("s_cbranch_scc0 L_ns2")
        e("s_memrealtime s[%d:%d]" % (S_DBG, S_DBG + 1))
        e.label("L_ns2")
    get_table("K", "tk")
    if P["stamp"] == 3:
        e("s_cmp_eq_u32 s%d, %d" % (S_I, N0))
        e("s_cbranch_scc0 L_evretK")
        e("s_memrealtime s[%d:%d]" % (S_DBG, S_DBG + 1))
    e("s_branch L_evretK")
    e.label("L_evV")
    if P["at"]:
        e("s_and_b32 s%d, s%d, 15" % (S_T, S_I))
        e("s_cbranch_scc0 L_evV2")
        e("s_cmp_eq_u32 s%d, %d" % (S_I, P["te"]))
        e("s_cbranch_scc1 L_evV3")
        lds_inc(L_TC, V_Z, V_T1)
        e("s_branch L_evretV")
        e.label("L_evV3")
        e("ds_read_b32 v%d, v%d offset:%d" % (V_T0, V_Z, L_TD))
        e("s_waitcnt lgkmcnt(0)")
        e("v_readfirstlane_b32 s%d, v%d" % (S_T, V_T0))
        e("s_cmp_eq_u32 s%d, 0" % S_T)
        e("s_cselect_b32 s%d, s%d, s%d" % (S_TD, S_TD, S_T))
        if P["stamp"] == 5:
            e("s_mov_b32 s%d, s%d" % (S_LDC, S_T))
        e("s_branch L_evretV")
        e.label("L_evV2")
    get_table("V", "tv2")
    e("s_branch L_evretV")

    PG = S_G; PM = S_M
    PNB = 5; PP = 6; PBK = 7
    PB = 8; PWS = 12; PDB = 16
    PO = 20; PFL = 21; PBASE = 22; PPR = 90
    PD = 24
    POF = 32
    PT = 40
    PMN = 44; PJ = 45; PRN = 46; PNR = 47
    PE = 48
    PRB = 56; PACC = 58; PGL = 59; PSP = 60; PPH = 61; PSG = 62; PG0 = 63
    PDC = 84
    PS2 = 92; PS3 = 96
    HL = 1; HZ = 2; HW = 3; HA = 4; HB_ = 5; HC = 6; HD = 7; HK = 8; HV = 9; HE = 10; HF = 11; HR = 12; HG = 13
    HN = 14; HT2 = 15
    HX = 16
    BIAS = 65536
    e.wr = {}; e.tr = {}
    e.label("L_helper")
    e("s_sub_u32 s%d, s%d, %d" % (PP, S_WAVE, NW))
    e("s_mov_b32 s%d, s%d" % (PNB, S_NB))
    e("v_mov_b32 v%d, v%d" % (HL, V_T1))
    e("v_mov_b32 v%d, 0" % HZ)
    e("s_mul_i32 s%d, s%d, %d" % (PGL, PG, 8 * FSTR))
    e("s_add_u32 s%d, s%d, %d" % (PGL, PGL, WS_G))
    e("s_mul_i32 s%d, s%d, 10" % (PE, PP))
    e("s_sub_u32 s%d, s%d, 7" % (PE, PE))
    e("s_cmp_lt_i32 s%d, s%d" % (PG, PE))
    e("s_cselect_b32 s%d, 1, 0" % PPR)
    e("s_cbranch_scc0 L_noprobe1")
    e("s_max_u32 s%d, s%d, 1" % (PBK, PG))
    e("s_sub_u32 s%d, s%d, 1" % (PBK, PBK))
    e("s_lshr_b32 s%d, s%d, 1" % (PBK, PBK))
    e("s_lshl_b32 s%d, s%d, 1" % (PE + 1, PG))
    e("s_add_u32 s%d, s%d, s%d" % (PE + 1, PE + 1, PP))
    e("s_sub_u32 s%d, s%d, 1" % (PE + 1, PE + 1))
    e("s_bitcmp1_b32 s%d, 0" % PG)
    e("s_cselect_b32 s%d, 1, 4" % PE)
    e("s_cmp_eq_u32 s%d, 0" % PBK)
    e("s_cselect_b32 s%d, s%d, s%d" % (PE + 1, PE + 1, PE))
    e("s_and_b32 s%d, s%d, 1" % (PE, PE + 1))
    e("s_mul_i32 s%d, s%d, 20" % (PO, PE + 1))
    e("s_add_u32 s%d, s%d, s%d" % (PO, PO, PE))
    e("s_add_u32 s%d, s%d, 2" % (PO, PO))
    e("s_lshl_b32 s%d, s%d, 21" % (PO, PO))
    e("s_xor_b32 s%d, s%d, s%d" % (PFL, PM, PP))
    e("s_and_b32 s%d, s%d, 1" % (PFL, PFL))
    e("s_lshr_b32 s%d, s%d, 2" % (PE + 1, PM))
    e("s_xor_b32 s%d, s%d, s%d" % (PE, PE, PE + 1))
    e("s_xor_b32 s%d, s%d, s%d" % (PE, PE, PFL))
    e("s_lshl_b32 s%d, s%d, 13" % (PE, PE))
    e("s_lshl_b32 s%d, s%d, 14" % (PE + 1, PP))
    e("s_and_b32 s%d, s%d, 0x4000" % (PE + 1, PE + 1))
    e("s_or_b32 s%d, s%d, s%d" % (PE, PE, PE + 1))
    for u in range(8):
        e("s_xor_b32 s%d, s%d, 0x%x" % (POF + u, PE, ((u & 1) << 13) | (((u >> 1) & 1) << 12) | ((u >> 2) << 14)))
    e("v_and_b32 v%d, 7, v%d" % (HW, HL))
    e("v_lshlrev_b32 v%d, 12, v%d" % (HW, HW))
    e("s_lshl_b32 s%d, s%d, 8" % (PE, PM))
    e("v_add_u32 v%d, s%d, v%d" % (HW, PE, HW))
    e("s_mov_b32 s%d, %d" % (PB + 2, H * HEADB))
    e("s_mov_b32 s%d, 0x00020000" % (PB + 3))
    e("s_cmp_ge_u32 s%d, 3" % PBK)
    e("s_cselect_b32 s%d, 3, 0" % PE)
    e("s_sub_u32 s%d, s%d, s%d" % (PE, PBK, PE))
    e("s_lshl_b32 s%d, s%d, 28" % (PE, PE))
    e("s_add_u32 s%d, s%d, s%d" % (PO, PO, PE))
    e("s_cmp_ge_u32 s%d, 3" % PBK)
    e("s_waitcnt lgkmcnt(0)")
    e("s_cselect_b32 s%d, s68, s66" % PB)
    e("s_cselect_b32 s%d, s69, s67" % (PBASE + 1))
    e("s_and_b32 s%d, s%d, 0xffff" % (PB + 1, PBASE + 1))
    e("s_mov_b64 exec, 0xff")
    e("buffer_load_dword v%d, v%d, s[%d:%d], s%d offen" % (HA, HW, PB, PB + 3, PO))
    e("s_mov_b64 exec, -1")
    e("s_add_u32 s%d, s%d, s%d" % (PBASE, PB, PO))
    e("s_addc_u32 s%d, s%d, 0" % (PBASE + 1, PBASE + 1))
    e("s_lshl_b32 s%d, s%d, 8" % (PE, PM))
    e("s_add_u32 s%d, s%d, 128" % (PE, PE))
    e("s_load_dword s%d, s[%d:%d], s%d" % (PJ, PBASE, PBASE + 1, PE))
    e.label("L_noprobe1")
    e("s_waitcnt lgkmcnt(0)")
    srd(PWS, 82, WS_SIZE)
    if P["wo"]:
        e("s_add_u32 s%d, s%d, %d" % (PWS, PWS, P["wo"] << 20))
        e("s_addc_u32 s%d, s%d, 0" % (PWS + 1, PWS + 1))
    srd(PDB, 80, 256)
    e("s_cmp_lg_u32 s%d, 0" % PP)
    e("s_cbranch_scc1 L_hbar")
    e("v_lshlrev_b32 v%d, 2, v%d" % (HB_, HL))
    e("ds_write_b32 v%d, v%d" % (HB_, HZ))
    e("s_waitcnt lgkmcnt(0)")
    e.label("L_hbar")
    e("s_barrier")
    e("s_cmp_eq_u32 s%d, 0" % PPR)
    e("s_cbranch_scc1 L_role")
    e("s_mov_b32 s%d, 1" % PRN)
    e("s_mov_b32 s%d, 0" % PACC)
    e("s_cmp_eq_u32 s%d, 0" % PBK)
    e("s_cselect_b32 s%d, %d, %d" % (PNR, P["nr0"], NR))
    e("s_waitcnt vmcnt(0)")
    e.label("L_round")
    e("s_add_u32 s%d, s%d, s%d" % (PE, PM, PRN))
    e("s_and_b32 s%d, s%d, 7" % (PE, PE))
    e("s_lshl_b32 s%d, s%d, 8" % (PE, PE))
    e("s_add_u32 s%d, s%d, s%d" % (PRB, PBASE, PE))
    e("s_addc_u32 s%d, s%d, 0" % (PRB + 1, PBASE + 1))
    e("s_mov_b32 s%d, -1" % PMN)
    e("s_memtime s[%d:%d]" % (PT, PT + 1))
    e("s_waitcnt lgkmcnt(0)")
    for u in range(8):
        a = PT + 2 * (u & 1); b = PT + 2 * ((u + 1) & 1)
        e("s_load_dword s%d, s[%d:%d], s%d" % (PJ, PRB, PRB + 1, POF + u))
        e("s_waitcnt lgkmcnt(0)")
        e("s_memtime s[%d:%d]" % (b, b + 1))
        e("s_waitcnt lgkmcnt(0)")
        e("s_sub_u32 s%d, s%d, s%d" % (PD + u, b, a))
        if u + 1 == P["ns0"] and u < 7:
            for k in range(u + 1, 8):
                e("s_mov_b32 s%d, -1" % (PD + k))
            e("s_cmp_eq_u32 s%d, 0" % PBK)
            e("s_cbranch_scc1 L_few")
    e.label("L_few")
    for u in range(8):
        e("s_min_u32 s%d, s%d, %d" % (PD + u, PD + u, P["clip"]))
        e("s_min_u32 s%d, s%d, s%d" % (PMN, PMN, PD + u))
    e("s_cmp_lt_u32 s%d, %d" % (PMN, P["l2t"]))
    e("s_cbranch_scc1 L_skip")
    for u in range(8):
        e("s_%s_u32 s%d, s%d, s%d" % ("add" if u & 1 else "sub", PACC, PACC, PD + u))
    e.label("L_skip")
    e("s_add_u32 s%d, s%d, 1" % (PRN, PRN))
    e("s_cmp_le_u32 s%d, s%d" % (PRN, PNR))
    e("s_cbranch_scc1 L_round")
    e("s_sub_u32 s%d, 0, s%d" % (PE, PACC))
    e("s_cmp_eq_u32 s%d, 0" % PFL)
    e("s_cselect_b32 s%d, s%d, s%d" % (PACC, PACC, PE))
    e("s_add_u32 s%d, s%d, 0x%x" % (PACC, PACC, BIAS + (1 << 24)))
    e("v_mov_b32 v%d, s%d" % (HA, PACC))
    e("s_mov_b64 exec, 1")
    e("s_lshl_b32 s%d, s%d, 2" % (PE, PBK))
    e("s_add_u32 s%d, s%d, 124" % (PE, PE))
    e("s_cmp_eq_u32 s%d, 0" % PBK)
    e("s_cbranch_scc0 L_post")
    e("ds_add_rtn_u32 v%d, v%d, v%d offset:%d" % (HB_, HZ, HA, L_PC))
    e("s_mov_b32 s%d, 0" % PE)
    e("s_waitcnt lgkmcnt(0)")
    e("v_add_u32 v%d, v%d, v%d" % (HA, HA, HB_))
    e("v_cmp_ne_u32 vcc, 0, v%d" % HB_)
    e("s_and_b64 exec, exec, vcc")
    if P["vw"]:
        e("buffer_atomic_add v%d, off, s[%d:%d], s%d" % (HA, PDB, PDB + 3, PE))
        e("s_branch L_posted")
        e.label("L_post")
        lds_wait("vw", HZ, HE, PE, L_DEC, "nz", PSP)
        e("s_mul_i32 s%d, s%d, %d" % (PE, PG, FSTR))
        e("s_add_u32 s%d, s%d, %d" % (PE, PE, WS_G + 253 * FSTR))
        e("buffer_atomic_add v%d, off, s[%d:%d], s%d" % (HA, PWS, PWS + 3, PE))
        e.label("L_posted")
    else:
        e.label("L_post")
        e("buffer_atomic_add v%d, off, s[%d:%d], s%d" % (HA, PDB, PDB + 3, PE))
    e("s_mov_b64 exec, -1")
    e.label("L_role")
    e("s_cmp_eq_u32 s%d, 0" % PP)
    e("s_cbranch_scc1 L_h0")
    e("s_cmp_eq_u32 s%d, 2" % PP)
    e("s_cbranch_scc1 L_h2")

    def wave_reduce(regs, op, tmp):
        for kk in (8, 4, 2, 1):
            for r in regs:
                e("%s_dpp v%d, v%d, v%d row_ror:%d row_mask:0xf bank_mask:0xf" % (op, r, r, r, kk))
        for sw in ("v_permlane32_swap_b32", "v_permlane16_swap_b32"):
            for r, t in zip(regs, tmp):
                e("v_mov_b32 v%d, v%d" % (t, r))
            for r, t in zip(regs, tmp):
                e("%s v%d, v%d" % (sw, r, t))
            for r, t in zip(regs, tmp):
                e("%s v%d, v%d, v%d" % (op, r, r, t))

    def decode(tag, nl, off, cnt, rounds, dst, b0):
        vw = b0 and P["vw"]
        lds_wait("e" + tag, HZ, HE, PE, L_EV + (4 if b0 else 0), "nz" if b0 else str(P["tw"]), PSP)
        if vw:
            e("v_mul_u32_u24 v%d, %d, v%d" % (HD, FSTR, HL))
            e("s_mov_b32 s%d, %d" % (PE, WS_G + 256 * FSTR))
            e("v_lshrrev_b32 v%d, 1, v%d" % (HB_, HB_))
        e("s_mov_b64 exec, 0x%x" % ((1 << (2 * nl if vw else nl)) - 1))
        e("s_mov_b32 s%d, 0x40000" % PSP)
        if not P["xkp"] & 4:
            e.label("L_poll" + tag)
            if vw:
                e("buffer_load_dword v%d, v%d, s[%d:%d], s%d offen sc1" % (HA, HD, PWS, PWS + 3, PE))
            else:
                e("buffer_load_dword v%d, v%d, s[%d:%d], 0 offen offset:%d sc1" % (HA, HB_, PDB, PDB + 3, off))
            e("s_sub_u32 s%d, s%d, 1" % (PSP, PSP))
            e("s_cbranch_scc1 L_exit1")
            e("s_waitcnt vmcnt(0)")
            e("v_lshrrev_b32 v%d, 24, v%d" % (HC, HA))
            e("v_cmp_ne_u32 vcc, %d, v%d" % (cnt // 2 if vw else cnt, HC))
            e("s_cbranch_vccnz L_poll" + tag)
        if vw:
            e("v_add_u32_dpp v%d, v%d, v%d quad_perm:[1,0,3,2] row_mask:0xf bank_mask:0xf" % (HA, HA, HA))
            e("s_mov_b64 exec, 0x%x" % (0x5555 & ((1 << (2 * nl)) - 1)))
        th = P["th"] * cnt * rounds * (8 if b0 else P["ns0"]) // 8
        e("v_and_b32 v%d, 0xffffff, v%d" % (HA, HA))
        e("v_subrev_u32 v%d, %d, v%d" % (HA, cnt * BIAS, HA))
        e("v_lshrrev_b32 v%d, 30, v%d" % (HC, HA))
        e("v_and_b32 v%d, 2, v%d" % (HC, HC))
        e("v_add_u32 v%d, %d, v%d" % (HA, th, HA))
        e("v_cmp_gt_u32 vcc, %d, v%d" % (2 * th, HA))
        e("v_cndmask_b32 v%d, v%d, 8, vcc" % (HC, HC))
        if P["force"] == 1:
            e("v_mov_b32 v%d, 8" % HC)
        if P["force"] >= 2:
            e("s_mov_b32 s%d, 0x7000000" % PE)
            e("s_load_dwordx4 s[%d:%d], s[82:83], s%d" % (PS2, PS2 + 3, PE))
            e("s_waitcnt lgkmcnt(0)")
            for l in range(nl):
                b = b0 + l
                e("s_lshr_b64 s[%d:%d], s[%d:%d], %d" % (PE, PE + 1, PS2 + 2 * (b // 3), PS2 + 2 * (b // 3) + 1, 16 * (b % 3)))
                e("s_and_b32 s%d, s%d, %d" % (PE, PE, P["ob"]))
                e("s_xor_b32 s%d, s%d, %d" % (PE, PE, P["ox"]))
                e("v_writelane_b32 v%d, s%d, %d" % (HC, PE, 2 * l if vw else l))
        e("v_or_b32 v%d, 16, v%d" % (HC, HC))
        if P["xv"] and vw:
            e("v_lshlrev_b32 v%d, 1, v%d" % (HA, HL))
            e("v_lshrrev_b32 v%d, v%d, %d" % (HA, HA, 0) if False else "v_mov_b32 v%d, 0x%x" % (HD, int(str(P["xv"])[::-1], 16)))
            e("v_lshrrev_b32 v%d, v%d, v%d" % (HA, HA, HD))
            e("v_and_b32 v%d, 7, v%d" % (HA, HA))
            e("v_xor_b32 v%d, v%d, v%d" % (HC, HC, HA))
        e("ds_write_b32 v%d, v%d offset:%d" % (HB_, HC, dst))
        e("s_mov_b64 exec, -1")

    e("s_cmp_lg_u32 s2, %d" % (NWG - 1))
    e("s_cbranch_scc1 L_nolead")
    e("v_mul_u32_u24 v%d, %d, v%d" % (HB_, FSTR, HL))
    e("v_mov_b32 v%d, 0" % (HZ + 1))
    for k in range(5 if P["vw"] else 4):
        e("s_mov_b32 s%d, %d" % (PE + k, WS_G + k * 64 * FSTR))
        if k == 4:
            e("s_mov_b64 exec, 0x3ff")
        e("buffer_store_dwordx2 v[%d:%d], v%d, s[%d:%d], s%d offen sc1" % (HZ, HZ + 1, HB_, PWS, PWS + 3, PE + k))
    e("v_mov_b32 v%d, 0x%x" % (HA, BIAS + (1 << 24)))
    e("s_mov_b64 exec, 1")
    e("s_waitcnt vmcnt(0)")
    e("buffer_atomic_add v%d, off, s[%d:%d], 0" % (HA, PDB, PDB + 3))
    e("s_mov_b64 exec, -1")
    e.label("L_nolead")
    e("v_lshlrev_b32 v%d, 2, v%d" % (HB_, HL))
    decode("a", 1, 0, 49, P["nr0"], L_DEC, 0)
    decode("b", 5, 128, 16, NR, L_DEC + 4, 1)
    if P["lx"]:
        e("s_mul_i32 s%d, s%d, 43" % (PE, PG))
        e("s_lshr_b32 s%d, s%d, 8" % (PE, PE))
        e("s_mul_i32 s%d, s%d, 6" % (PE + 1, PE))
        e("s_sub_u32 s%d, s%d, s%d" % (PBK, PG, PE + 1))
        e("s_cmp_ge_u32 s%d, 3" % PBK)
        e("s_cselect_b32 s%d, s68, s66" % PB)
        e("s_cselect_b32 s%d, s69, s67" % (PBASE + 1))
        e("s_cselect_b32 s%d, 3, 0" % (PE + 1))
        e("s_sub_u32 s%d, s%d, s%d" % (PE + 1, PBK, PE + 1))
        e("s_lshl_b32 s%d, s%d, 28" % (PO, PE + 1))
        e("s_mul_i32 s%d, s%d, %d" % (PE, PE, 21 << 21))
        e("s_add_u32 s%d, s%d, s%d" % (PO, PO, PE))
        e("s_add_u32 s%d, s%d, %d" % (PO, PO, (7 << 21) + (1 << 20)))
        e("s_and_b32 s%d, s%d, 0xffff" % (PB + 1, PBASE + 1))
        e("s_mov_b32 s%d, %d" % (PB + 2, H * HEADB))
        e("s_mov_b32 s%d, 0x00020000" % (PB + 3))
        e("s_add_u32 s%d, s%d, %d" % (PE, PM, P["lx"]))
        e("s_and_b32 s%d, s%d, 7" % (PE, PE))
        e("s_lshl_b32 s%d, s%d, 9" % (PE, PE))
        e("v_lshlrev_b32 v%d, 12, v%d" % (HW, HL))
        e("v_add_u32 v%d, s%d, v%d" % (HW, PE, HW))
        for j in range(3):
            e("buffer_load_dword v%d, v%d, s[%d:%d], s%d offen offset:%d" % (HX + j, HW, PB, PB + 3, PO, j * 128))
        e("s_add_u32 s%d, s%d, s%d" % (PBASE, PB, PO))
        e("s_addc_u32 s%d, s%d, 0" % (PBASE + 1, PBASE + 1))
        e("s_lshl_b32 s%d, s%d, 9" % (PE, PM))
        e("s_add_u32 s%d, s%d, s%d" % (PBASE, PBASE, PE))
        e("s_addc_u32 s%d, s%d, 0" % (PBASE + 1, PBASE + 1))
        e("s_load_dword s%d, s[%d:%d], 384" % (PJ, PBASE, PBASE + 1))
        e("s_load_dword s%d, s[%d:%d], 0x20180" % (PJ, PBASE, PBASE + 1))
        e("s_waitcnt vmcnt(0) lgkmcnt(0)")
        lds_wait("lx", HZ, HE, PE, L_EV + 4, "8", PSP)
        for j in range(3):
            e("s_mov_b32 m0, 0")
            e("s_mov_b32 s%d, %d" % (PE, j * 128))
            e.label("L_lx%d" % j)
            e("s_memtime s[%d:%d]" % (PT, PT + 1))
            e("s_waitcnt lgkmcnt(0)")
            e("s_load_dword s%d, s[%d:%d], s%d" % (PJ, PBASE, PBASE + 1, PE))
            e("s_waitcnt lgkmcnt(0)")
            e("s_memtime s[%d:%d]" % (PT + 2, PT + 3))
            e("s_waitcnt lgkmcnt(0)")
            e("s_sub_u32 s%d, s%d, s%d" % (PT, PT + 2, PT))
            e("v_writelane_b32 v%d, s%d, m0" % (HX + j, PT))
            e("s_add_u32 s%d, s%d, 4096" % (PE, PE))
            e("s_add_u32 m0, m0, 1")
            e("s_cmp_lt_u32 m0, 64")
            e("s_cbranch_scc1 L_lx%d" % j)
        e("s_memrealtime s[%d:%d]" % (PT, PT + 1))
        e("s_waitcnt lgkmcnt(0)")
        e("v_mov_b32 v%d, s%d" % (HX + 3, PT))
        srd(PB, 82, 0x8000000)
        e("s_lshl_b32 s%d, s2, 10" % PE)
        e("s_add_u32 s%d, s%d, 0x4090000" % (PE, PE))
        e("v_lshlrev_b32 v%d, 4, v%d" % (HW, HL))
        e("buffer_store_dwordx4 v[%d:%d], v%d, s[%d:%d], s%d offen" % (HX, HX + 3, HW, PB, PB + 3, PE))
    if FU:
        CSC = 24; CMK = 56; CRB = 57; CO = 92
        e("s_and_b32 s%d, s%d, 7" % (PE, PG))
        e("s_cmp_lg_u32 s%d, s%d" % (PE, PM))
        e("s_cbranch_scc1 L_exit1")
        e("s_mul_i32 s%d, s%d, 3" % (PE, PG))
        e("s_add_u32 s%d, s%d, 2" % (PE, PE))
        e("s_lshr_b32 s%d, s%d, 5" % (PE, PE))
        e("s_lshl_b32 s%d, s%d, 2" % (PE, PE))
        e("v_mov_b32 v%d, s%d" % (HW, PE))
        e("s_mul_i32 s%d, s%d, 24" % (CRB, PG))
        e("v_add_u32 v%d, s%d, v%d" % (HG, CRB, HL))
        e("v_and_b32 v%d, 255, v%d" % (HR, HG))
        e("v_mul_u32_u24 v%d, %d, v%d" % (HR, FSTR, HR))
        e("v_lshlrev_b32 v%d, 6, v%d" % (HG, HG))
        e("s_mov_b32 s%d, %d" % (PE + 1, WS_G))
        e("s_mov_b32 s%d, %d" % (PE + 2, WS_ML))
        e("v_mov_b32 v%d, 0x%08x" % (HA, BIGNEG))
        e("v_mov_b32 v%d, 0" % HB_)
        lds_wait("cg", HZ, HE, PE, L_GO, "nz", PSP, HW)
        for tag, ld, chk in (("f", "buffer_load_dword v%d, v%d, s[%d:%d], s%d offen sc1" % (HD, HR, PWS, PWS + 3, PE + 1), HD),
                             ("m", "buffer_load_dwordx4 v[%d:%d], v%d, s[%d:%d], s%d offen sc1" % (HA, HD, HG, PWS, PWS + 3, PE + 2), HD)):
            e("s_mov_b64 exec, 0xffffff")
            e("s_mov_b32 s%d, 0x40000" % PSP)
            e.label("L_cp" + tag)
            e(ld)
            e("s_sub_u32 s%d, s%d, 1" % (PSP, PSP))
            e("s_cbranch_scc1 L_exit1")
            e("s_waitcnt vmcnt(0)")
            e("v_cmpx_eq_u32 vcc, 0, v%d" % chk)
            e("s_cbranch_execnz L_cp" + tag)
        e("s_mov_b64 exec, -1")
        e("v_mov_b32 v%d, v%d" % (HC, HA))
        wave_reduce([HC], "v_max_f32", [HD])
        e("v_sub_f32 v%d, v%d, v%d" % (HA, HA, HC))
        e("v_exp_f32 v%d, v%d" % (HA, HA))
        e("v_mul_f32 v%d, v%d, v%d" % (HB_, HB_, HA))
        wave_reduce([HB_], "v_add_f32", [HD])
        e("v_rcp_f32 v%d, v%d" % (HB_, HB_))
        e("v_mul_f32 v%d, v%d, v%d" % (HA, HA, HB_))
        for r in range(24):
            e("v_readlane_b32 s%d, v%d, %d" % (CSC + r, HA, r))
        srd(CO, 78, H * DH * 2)
        e("s_lshl_b32 s%d, s%d, 10" % (CRB, CRB))
        e("v_lshlrev_b32 v%d, 4, v%d" % (HG, HL))
        e("v_add_u32 v%d, s%d, v%d" % (HG, CRB, HG))
        for k in range(1, 6):
            e("s_mov_b32 s%d, %d" % (PE + k, 4096 * k))
        for r in (HA, HB_, HC):
            e("v_mov_b32 v%d, 0" % r)
        e("s_mov_b32 s%d, 0xffffff" % CMK)
        e("v_lshlrev_b32 v%d, 1, v%d" % (HR, HL))
        e("s_mul_i32 s%d, s%d, %d" % (CRB, PG, DH * 2))
        lds_wait("cc", HZ, HE, PE, L_CA, "%d" % P["cw"], PSP, HW)
        e("s_mov_b32 s%d, 0x40000" % PSP)
        e.label("L_cr")
        for r in range(24):
            e("s_bitcmp0_b32 s%d, %d" % (CMK, r))
            e("s_cbranch_scc1 L_cl%d" % r)
            e("buffer_load_dwordx4 v[%d:%d], v%d, s[%d:%d], %s offen offset:%d sc1" %
              (HX + 4 * r, HX + 4 * r + 3, HG, PWS, PWS + 3, "s%d" % (PE + r // 4) if r >= 4 else "0", (r % 4) * 1024))
            e.lines.append("L_cl%d:" % r)
        e("s_sub_u32 s%d, s%d, 1" % (PSP, PSP))
        e("s_cbranch_scc1 L_exit1")
        e("s_waitcnt vmcnt(0)")
        for r in range(24):
            e("s_bitcmp0_b32 s%d, %d" % (CMK, r))
            e("s_cbranch_scc1 L_cv%d" % r)
            e("v_cmp_eq_u32 vcc, 0, v%d" % (HX + 4 * r + 3))
            e("s_cbranch_vccnz L_cv%d" % r)
            for k, a_ in enumerate((HA, HB_, HC)):
                e("v_fmac_f32 v%d, s%d, v%d" % (a_, CSC + r, HX + 4 * r + k))
            e("s_bitset0_b32 s%d, %d" % (CMK, r))
            e.lines.append("L_cv%d:" % r)
        e("s_cmp_lg_u32 s%d, 0" % CMK)
        e("s_cbranch_scc1 L_cr")
        for k, a_ in enumerate((HA, HB_, HC)):
            e("v_cvt_pk_bf16_f32 v%d, v%d, v%d" % (a_, a_, a_))
            e("buffer_store_short v%d, v%d, s[%d:%d], s%d offen offset:%d" % (a_, HR, CO, CO + 3, CRB, k * 128))
    e("s_endpgm")

    def seg_scalars():
        e("s_lshl_b32 s%d, s%d, 5" % (PSG, PPH))
        e("s_add_u32 s%d, s%d, s%d" % (PSG, PSG, PG))
        e("s_lshl_b32 s%d, s%d, 15" % (PG0, PSG))
        e("s_add_u32 s%d, s%d, 1" % (PG0, PG0))
        e("s_mul_hi_u32 s%d, s%d, 0xaaaaaaab" % (PG0, PG0))
        e("s_lshr_b32 s%d, s%d, 7" % (PG0, PG0))

    def get_dec(tag):
        lds_wait(tag, HZ, HE, PE, L_DEC + 20, "nz", PSP)
        e("ds_read_b128 v[%d:%d], v%d offset:%d" % (HX, HX + 3, HZ, L_DEC))
        e("ds_read_b64 v[%d:%d], v%d offset:%d" % (HX + 4, HX + 5, HZ, L_DEC + 16))
        e("s_waitcnt lgkmcnt(0)")
        for i in range(6):
            e("v_readfirstlane_b32 s%d, v%d" % (PDC + i, HX + i))

    e.label("L_h0")
    srd(PB, 64, H * DH * 2)
    srd(PS2, 70, H * NGRP * DH * 2)
    srd(PS3, 72, H * NGRP * DH * 2)
    e("v_lshrrev_b32 v%d, 4, v%d" % (HA, HL))
    e("v_and_b32 v%d, 15, v%d" % (HB_, HL))
    e("v_lshlrev_b32 v%d, 3, v%d" % (HC, HB_))
    e("v_mul_u32_u24 v%d, %d, v%d" % (HD, DH * 2, HA))
    e("v_add_u32 v%d, v%d, v%d" % (HD, HD, HC))
    e("v_lshl_add_u32 v%d, v%d, 2, v%d" % (HG, HB_, HA))
    e("v_lshlrev_b32 v%d, 2, v%d" % (HG, HG))
    BQ = HX; BS = HX + 12; BZ = BS + 36; BR = BZ + 36
    PFA = 32; PIA = 33
    e("v_lshlrev_b32 v%d, 4, v%d" % (HA, HL))
    e("s_mul_i32 s%d, s%d, %d" % (PFA, PNB, FSTR))
    e("s_add_u32 s%d, s%d, s%d" % (PFA, PFA, PGL))
    e("s_lshl_b32 s%d, s%d, 3" % (PIA, PG))
    e("s_add_u32 s%d, s%d, s%d" % (PIA, PIA, PNB))
    e("s_mul_i32 s%d, s%d, %d" % (PIA, PIA, IMG))
    e("s_add_u32 s%d, s%d, %d" % (PIA, PIA, WS_L))

    def bias(ph):
        e("s_mov_b32 s%d, %d" % (PPH, ph))
        seg_scalars()
        e("s_mul_i32 s%d, s%d, 171" % (PE, PSG))
        e("s_lshr_b32 s%d, s%d, 9" % (PE, PE))
        e("s_mul_i32 s%d, s%d, %d" % (PE, PE, DH * 2))
        e("s_mul_i32 s%d, s%d, 24" % (PE + 1, PM))
        e("s_add_u32 s%d, s%d, s%d" % (PE + 2, PE + 1, PG0))
        e("s_mul_i32 s%d, s%d, %d" % (PE + 2, PE + 2, DH * 2))
        e("v_add_u32 v%d, s%d, v%d" % (HE, PE + 2, HD))
        e("v_add_u32 v%d, %d, v%d" % (HF, 8 * DH * 2, HE))
        e("v_add_u32 v%d, %d, v%d" % (HR, 16 * DH * 2, HE))
        for c in range(3):
            e("buffer_load_dwordx2 v[%d:%d], v%d, s[%d:%d], s%d offen offset:%d" % (BR + 2 * c, BR + 2 * c + 1, HC, PB, PB + 3, PE, c * 128))
        for st in range(6):
            va = (HE, HF, HR)[st // 2]
            for sr, bb in ((PS2, BS), (PS3, BZ)):
                for c in range(3):
                    r = bb + st * 6 + 2 * c
                    e("buffer_load_dwordx2 v[%d:%d], v%d, s[%d:%d], 0 offen offset:%d%s" %
                      (r, r + 1, va, sr, sr + 3, (st & 1) * 4 * DH * 2 + c * 128,
                       " nt" if P["bnt"] & (1 if bb == BZ else 2) else ""))
        e("s_waitcnt vmcnt(0)")
        for p in range(6):
            e("v_lshlrev_b32 v%d, 16, v%d" % (BQ + 2 * p, BR + p))
            e("v_and_b32 v%d, 0xffff0000, v%d" % (BQ + 2 * p + 1, BR + p))
        for st in range(6):
            acc = BR + st
            for p in range(6):
                rs = BS + st * 6 + p; rz = BZ + st * 6 + p
                e("v_lshlrev_b32 v%d, 16, v%d" % (HE, rs))
                e("v_lshlrev_b32 v%d, 16, v%d" % (HF, rz))
                e("v_and_b32 v%d, 0xffff0000, v%d" % (rs, rs))
                e("v_and_b32 v%d, 0xffff0000, v%d" % (rz, rz))
                e("v_mul_f32 v%d, v%d, v%d" % (HE, HE, BQ + 2 * p))
                e("v_mul_f32 v%d, v%d, v%d" % (rs, rs, BQ + 2 * p + 1))
                if p == 0:
                    e("v_mul_f32 v%d, v%d, v%d" % (acc, HE, HF))
                else:
                    e("v_fmac_f32 v%d, v%d, v%d" % (acc, HE, HF))
                e("v_fmac_f32 v%d, v%d, v%d" % (acc, rs, rz))
        for kk in (8, 4, 2, 1):
            for st in range(6):
                e("v_add_f32_dpp v%d, v%d, v%d row_ror:%d row_mask:0xf bank_mask:0xf" % (BR + st, BR + st, BR + st, kk))
        for st in range(1, 6):
            e("v_cmp_eq_u32 vcc, %d, v%d" % (st, HB_))
            e("v_cndmask_b32 v%d, v%d, v%d, vcc" % (BR, BR, BR + st))
        e("s_mul_i32 s%d, s%d, 768" % (PE, PSG))
        e("s_lshl_b32 s%d, s%d, 2" % (PE + 1, PE + 1))
        e("s_add_u32 s%d, s%d, s%d" % (PE, PE, PE + 1))
        e("s_add_u32 s%d, s%d, %d" % (PE, PE, WS_B))
        e("s_mov_b32 exec_lo, 0x003f003f")
        e("s_mov_b32 exec_hi, 0x003f003f")
        e("buffer_store_dword v%d, v%d, s[%d:%d], s%d offen sc1" % (BR, HG, PWS, PWS + 3, PE))
        e("s_mov_b64 exec, -1")

    def flush(p):
        lds_wait("f%d" % p, HZ, HE, PE, L_CF + 4 * p, "4", PSP)
        e("s_cmp_eq_u32 s%d, s%d" % (PDC + p, PDC + 3 + p))
        if p:
            e("s_cbranch_scc1 L_fl%d" % p)
        for k in range(6):
            e("ds_read_b128 v[%d:%d], v%d offset:%d" % (HX + 4 * k, HX + 4 * k + 3, HA, L_LG + p * PHI + k * 1024))
        e("s_add_u32 s%d, s%d, %d" % (PE + 6, PIA, p * PHI))
        e("s_add_u32 s%d, s%d, %d" % (PE + 7, PIA, p * PHI + 4096))
        e("s_cmp_eq_u32 s%d, s%d" % (PDC + p, PDC + 3 + p))
        e("s_waitcnt lgkmcnt(0)")
        for k in range(6):
            if p == 0:
                mk = sum(1 << l for l in range(64) if (64 * k + l) % 48 < (3 * N0 + 7) // 8 * 8)
                e("s_cselect_b32 exec_lo, 0x%x, -1" % (mk & 0xffffffff))
                e("s_cselect_b32 exec_hi, 0x%x, -1" % (mk >> 32))
            if not P["xkp"] & 16:
                e("buffer_store_dwordx4 v[%d:%d], v%d, s[%d:%d], s%d offen offset:%d %s" %
                  (HX + 4 * k, HX + 4 * k + 3, HA, PWS, PWS + 3, PE + 6 + k // 4, (k % 4) * 1024, P["st"]))
        if p == 0:
            e("s_mov_b64 exec, -1")
        e.label("L_fl%d" % p)
        e("v_mov_b32 v%d, %d" % (HE, p + 1))
        e("s_waitcnt vmcnt(0)")
        e("s_mov_b64 exec, 1")
        opt = p == 2 or (p == 1 and not P["jit"])
        if opt:
            e("s_cbranch_scc1 L_fn%d" % p)
        e("buffer_store_dword v%d, off, s[%d:%d], s%d sc1" % (HE, PWS, PWS + 3, PFA))
        if opt:
            e.label("L_fn%d" % p)
        e("ds_write_b32 v%d, v%d offset:%d" % (HZ, HE, L_FD))
        e("s_mov_b64 exec, -1")

    if FU:
        for i in range(4):
            e("v_mov_b32 v%d, 0" % (HX + i))
        for p in range(3):
            e("s_add_u32 s%d, s2, %d" % (PE, 256 * p))
            e("s_lshl_b32 s%d, s%d, 10" % (PE + 1, PE))
            e("s_lshl_b32 s%d, s%d, 6" % (PE, PE))
            e("s_add_u32 s%d, s%d, %d" % (PE, PE, WS_ML))
            e("buffer_store_dwordx4 v[%d:%d], v%d, s[%d:%d], s%d offen sc1" % (HX, HX + 3, HA, PWS, PWS + 3, PE + 1))
            e("s_mov_b64 exec, 15")
            e("buffer_store_dwordx4 v[%d:%d], v%d, s[%d:%d], s%d offen sc1" % (HX, HX + 3, HA, PWS, PWS + 3, PE))
            e("s_mov_b64 exec, -1")
    bias(0)
    if P["jit"]:
        lds_wait("b1", HZ, HE, PE, L_EV + 4, "1", PSP)
    bias(1)
    if not P["jit"]:
        bias(2)
    get_dec("d0")
    flush(0)
    if P["jit"]:
        lds_wait("b2", HZ, HE, PE, L_EV + 4, "9", PSP)
        bias(2)
    flush(1)
    flush(2)
    if P["at"]:
        e("v_lshrrev_b32 v%d, 3, v%d" % (HC, HL))
        e("v_xor_b32 v%d, s%d, v%d" % (HC, PM, HC))
        e("v_lshrrev_b32 v%d, 1, v%d" % (HD, HC))
        e("v_and_b32 v%d, 1, v%d" % (HC, HC))
        e("v_lshl_or_b32 v%d, v%d, 2, v%d" % (HD, HC, HD))
        e("v_lshl_or_b32 v%d, v%d, 3, v%d" % (HD, HL, HD))
        e("v_mul_u32_u24 v%d, %d, v%d" % (HD, FSTR, HD))
        lds_wait("t1", HZ, HE, PE, L_TC, "4", PSP)
        e("s_memrealtime s[%d:%d]" % (PT, PT + 1))
        e("s_mov_b64 exec, 1")
        e("s_waitcnt lgkmcnt(0)")
        e("s_or_b32 s%d, s%d, 1" % (PT, PT))
        e("v_mov_b32 v%d, s%d" % (HB_, PT))
        e("buffer_store_dword v%d, off, s[%d:%d], s%d offset:4 sc1" % (HB_, PWS, PWS + 3, PFA))
        e("s_mov_b32 exec_lo, -1")
        e("s_mov_b32 s%d, %d" % (PE + 1, WS_G))
        lds_wait("t2", HZ, HE, PE, L_TC, "5", PSP)
        e("buffer_load_dword v%d, v%d, s[%d:%d], s%d offen offset:4 sc1" % (HB_, HD, PWS, PWS + 3, PE + 1))
        e("v_bfrev_b32 v%d, -2" % HC)
        e("s_mov_b32 s%d, -2048" % PE)
        e("s_waitcnt vmcnt(0)")
        e("v_cmp_eq_u32 vcc, 0, v%d" % HB_)
        e("v_subrev_u32 v%d, s%d, v%d" % (HB_, PT, HB_))
        e("v_cndmask_b32 v%d, v%d, v%d, vcc" % (HB_, HB_, HC))
        for st in (2048, 1024, 512, 256, 128, 64, 32, 16):
            e("s_add_u32 s%d, s%d, %d" % (PE + 1, PE, st))
            e("v_cmp_gt_i32 vcc, s%d, v%d" % (PE + 1, HB_))
            e("s_bcnt1_i32_b64 s%d, vcc" % (PE + 2))
            e("s_cmp_lt_u32 s%d, %d" % (PE + 2, P["aq"]))
            e("s_cselect_b32 s%d, s%d, s%d" % (PE, PE + 1, PE))
        e("s_mul_i32 s%d, s%d, %d" % (PE, PE, -P["ka"]))
        e("s_add_u32 s%d, s%d, %d" % (PE, PE, P["kb"]))
        e("s_ashr_i32 s%d, s%d, 10" % (PE, PE))
        e("s_max_i32 s%d, s%d, %d" % (PE, PE, P["dmin"]))
        e("s_min_i32 s%d, s%d, %d" % (PE, PE, min(P["dmax"], NT - P["te"])))
        e("s_sub_u32 s%d, %d, s%d" % (PE, NT, PE))
        e("s_cmp_eq_u32 s%d, %d" % (PE, NT))
        e("s_cselect_b32 s%d, 255, s%d" % (PE, PE))
        e("v_mov_b32 v%d, s%d" % (HB_, PE))
        e("ds_write_b32 v%d, v%d offset:%d" % (HZ, HB_, L_TD))
    e("s_endpgm")

    e.label("L_h2")
    srd(PS2, 74, H * SKV * 2)
    srd(PS3, 76, H * SKV * 2)
    get_dec("d2")
    PSIX = 24
    PKW = 32; PNEED = 33; PN0 = 34; PIM = 35; PCH = 36; PCC = 37; PMG = 38; PWD = 39; PIS = 40
    HT = HW
    HP = HX + 88; PXM = 64
    e("v_and_b32 v%d, 3, v%d" % (HT, HL))
    e("v_and_b32 v%d, 7, v%d" % (HT2, HL))
    e("v_lshrrev_b32 v%d, 2, v%d" % (HR, HL))
    e("s_mov_b32 s%d, %s" % (PCC, f32hex(C)))
    e("s_mov_b32 s%d, 0xaaaaaaab" % PMG)
    e("s_mov_b32 s%d, 0" % PPH)
    e("s_mul_i32 s%d, s%d, %d" % (PIM, PG, 8 * IMG))
    e("s_add_u32 s%d, s%d, %d" % (PIM, PIM, WS_L))
    e("s_mov_b32 s%d, %d" % (PIS, IMG))
    e("v_lshlrev_b32 v%d, 5, v%d" % (HN, HL))
    e("v_lshrrev_b32 v%d, 3, v%d" % (HK, HL))
    e("v_mul_u32_u24 v%d, 24, v%d" % (HK, HK))
    e("v_mov_b32 v%d, 768" % HA)
    e("v_mad_u32_u24 v%d, v%d, v%d, v%d" % (HK, HT2, HA, HK))
    e("v_lshlrev_b32 v%d, 4, v%d" % (HP, HL))
    e("s_mov_b32 s%d, %d" % (PN0, 3 * N0))
    RS = 16
    e.label("L_prep")
    seg_scalars()
    e("s_mov_b32 s%d, s%d" % (PKW, PDC))
    e("s_mov_b32 s%d, s%d" % (PWD, PDC + 3))
    for i in (0, 1, 3, 4):
        e("s_mov_b32 s%d, s%d" % (PDC + i, PDC + i + 1))
    e("s_lshl_b32 s%d, s%d, 3" % (PNEED, PPH))
    e("s_add_u32 s%d, s%d, 1" % (PNEED, PNEED))
    if P["pf"]:
        lds_wait("pf", HZ, HE, PE, L_EV + 4, "s%d" % PNEED, PSP)
        e("v_lshlrev_b32 v%d, 4, v%d" % (HA, HL))
        e("s_mul_i32 s%d, s%d, 2736" % (PE + 1, PM))
        e("s_lshl_b32 s%d, s%d, 16" % (PE, PSG))
        e("s_mul_hi_u32 s%d, s%d, 0xaaaaaaab" % (PE, PE))
        e("s_lshr_b32 s%d, s%d, 5" % (PE, PE))
        e("s_lshl_b32 s%d, s%d, 4" % (PE, PE))
        e("s_add_u32 s%d, s%d, s%d" % (PE, PE, PE + 1))
        for a, sr in enumerate((PS2, PS3)):
            for k in range(3):
                r = HX + 4 * RS + 4 * (a * 3 + k)
                e("buffer_load_dwordx4 v[%d:%d], v%d, s[%d:%d], s%d offen offset:%d%s" % (r, r + 3, HA, sr, sr + 3, PE, k * 1024, " nt" if P["bnt"] & 8 else ""))
    for w, hv in ((PWD, HV),):
        e("s_and_b32 s%d, s%d, 7" % (PE, w))
        e("v_mov_b32 v%d, s%d" % (hv, PE))
        e("s_bitcmp1_b32 s%d, 3" % w)
        e("s_cselect_b64 vcc, -1, 0")
        e("v_cndmask_b32 v%d, v%d, v%d, vcc" % (hv, hv, HT2))
    e("v_xor_b32 v%d, s%d, v%d" % (HG, PNB, HV))
    e("v_lshl_or_b32 v%d, v%d, 3, v%d" % (HG, HT, HG))
    e("s_lshl_b32 s%d, s%d, 6" % (PCH, PSG))
    e("s_mul_i32 s%d, s%d, 768" % (PE + 1, PSG))
    e("s_lshl_b32 s%d, s%d, 2" % (PE + 2, PG0))
    e("s_sub_u32 s%d, s%d, s%d" % (PE + 1, PE + 1, PE + 2))
    e("s_add_u32 s%d, s%d, %d" % (PE + 1, PE + 1, WS_B))
    if P["pace"]:
        e("s_add_u32 s%d, s%d, 4" % (PNEED, PNEED))
        lds_wait("ga", HZ, HE, PE, L_EV + 4, "s%d" % PNEED, PSP)
    else:
        e("s_add_u32 s%d, s%d, 1" % (PNEED, PPH))
        lds_wait("ga", HZ, HE, PE, L_FD, "s%d" % PNEED, PSP)
    for st in range(4):
        R = HX + RS * st
        e("v_add_u32 v%d, %d, v%d" % (HA, 16 * st, HR))
        e("v_bfe_u32 v%d, v%d, 3, 2" % (HB_, HA))
        e("v_and_or_b32 v%d, v%d, 4, v%d" % (HB_, HA, HB_))
        e("v_xor_b32 v%d, v%d, v%d" % (HB_, HG, HB_))
        e("v_add_u32 v%d, s%d, v%d" % (HA, PCH, HA))
        e("v_lshl_add_u32 v%d, v%d, 5, v%d" % (HC, HA, HB_))
        e("v_lshl_add_u32 v%d, v%d, 4, 1" % (HC, HC))
        e("v_mul_hi_u32 v%d, v%d, s%d" % (HC, HC, PMG))
        e("v_lshrrev_b32 v%d, 1, v%d" % (HC, HC))
        e("v_lshrrev_b32 v%d, 1, v%d" % (HF, HC))
        e("v_lshlrev_b32 v%d, 2, v%d" % (HF, HF))
        for b, sr in ((R + 8, PS2), (R + 12, PS3)):
            if P["xkp"] & 8:
                continue
            gnt = " nt" if P["bnt"] & 16 else ""
            e("buffer_load_dwordx3 v[%d:%d], v%d, s[%d:%d], 0 offen%s" % (b, b + 2, HF, sr, sr + 3, gnt))
            if P["pace"] == 2:
                e("s_waitcnt vmcnt(0)")
            e("buffer_load_dword v%d, v%d, s[%d:%d], 0 offen offset:12%s" % (b + 3, HF, sr, sr + 3, gnt))
        e("v_lshrrev_b32 v%d, 6, v%d" % (R + 6, HC))
        e("v_lshl_add_u32 v%d, v%d, 2, s%d" % (R + 6, R + 6, PE + 1))
        e("v_and_b32 v%d, 15, v%d" % (HD, HC))
        e("v_cmp_eq_u32 s[%d:%d], 5, v%d" % (PSIX + 2 * st, PSIX + 2 * st + 1, HD))
        e("v_and_b32 v%d, 1, v%d" % (R + 7, HC))
        e("v_lshlrev_b32 v%d, 4, v%d" % (R + 7, R + 7))
        if P["pace"] == 1:
            e("s_waitcnt vmcnt(0)")
    e("s_add_u32 s%d, s%d, 1" % (PNEED, PPH))
    lds_wait("fd", HZ, HE, PE, L_FD, "s%d" % PNEED, PSP)
    e("v_mul_u32_u24 v%d, %d, v%d" % (HA, FSTR, HL))
    e("s_xor_b32 s%d, s%d, s%d" % (PE, PKW, PWD))
    e("s_xor_b32 s%d, s%d, s%d" % (PE, PE, PNB))
    e("s_and_b32 s%d, s%d, 7" % (PE, PE))
    e("v_mov_b32 v%d, s%d" % (HC, PNEED))
    e("s_lshl_b64 vcc, 1, s%d" % PE)
    e("s_or_b32 s%d, s%d, s%d" % (PE, PKW, PWD))
    e("s_bitcmp1_b32 s%d, 3" % PE)
    e("s_cselect_b64 vcc, 0xff, vcc")
    e("s_cmp_eq_u32 s%d, s%d" % (PKW, PWD))
    e("s_cselect_b64 vcc, 0, vcc")
    e("s_max_u32 s%d, s%d, 1" % (PE, PPH))
    e("v_mov_b32 v%d, s%d" % (HD, PE))
    e("v_cndmask_b32 v%d, v%d, v%d, vcc" % (HC, HD, HC))
    e("s_cmp_%s_u32 s%d, 1" % ("eq" if P["jit"] else "ge", PPH))
    e("s_cselect_b64 exec, vcc, 0xff")
    e("s_mov_b32 s%d, 0x40000" % PSP)
    if not P["xkp"] & 64:
        e("s_cbranch_execz L_noflags")
        e.label("L_flags")
        e("buffer_load_dword v%d, v%d, s[%d:%d], s%d offen sc1" % (HB_, HA, PWS, PWS + 3, PGL))
        e("s_sub_u32 s%d, s%d, 1" % (PSP, PSP))
        e("s_cbranch_scc1 L_exit1")
        e("s_waitcnt vmcnt(0)")
        e("v_cmpx_gt_u32 vcc, v%d, v%d" % (HC, HB_))
        e("s_cbranch_execnz L_flags")
        e.label("L_noflags")
    e("s_mov_b64 exec, -1")
    for st in range(4):
        R = HX + RS * st
        if not P["xkp"] & 32:
            e("buffer_load_dword v%d, v%d, s[%d:%d], 0 offen sc1" % (R + 6, R + 6, PWS, PWS + 3))
    e("s_bitcmp1_b32 s%d, 3" % PWD)
    e("s_cselect_b32 s%d, 0, 7" % (PE + 1))
    e("s_xor_b32 s%d, s%d, s%d" % (PE + 2, PKW, PWD))
    e("s_bitcmp1_b32 s%d, 3" % (PE + 2))
    e("s_cselect_b32 s%d, 7, 0" % (PE + 3))
    e("s_and_b32 s%d, s%d, 7" % (PE + 2, PE + 2))
    e("s_and_b32 s%d, s%d, 7" % (PE + 4, PWD))
    e("s_add_u32 s%d, s%d, 4096" % (PE + 5, PIM))
    for k in range(6):
        R = HX + 4 * RS + 4 * k
        e("v_add_u32 v%d, %d, v%d" % (HA, 64 * k, HL))
        e("v_mul_u32_u24 v%d, 1366, v%d" % (HB_, HA))
        e("v_lshrrev_b32 v%d, 16, v%d" % (HB_, HB_))
        e("v_mul_u32_u24 v%d, 48, v%d" % (HC, HB_))
        e("v_sub_u32 v%d, v%d, v%d" % (HA, HA, HC))
        e("v_cmp_gt_u32 vcc, s%d, v%d" % (PN0, HA))
        e("v_and_b32 v%d, s%d, v%d" % (HC, PE + 3, HB_))
        e("v_xor_b32 v%d, s%d, v%d" % (HC, PE + 2, HC))
        e("v_and_b32 v%d, s%d, v%d" % (HB_, PE + 1, HB_))
        e("v_xor_b32 v%d, s%d, v%d" % (HB_, PE + 4, HB_))
        e("v_cndmask_b32 v%d, v%d, v%d, vcc" % (HC, HC, HB_))
        e("v_cmp_ne_u32 s[%d:%d], 0, v%d" % (PXM + 2 * k, PXM + 2 * k + 1, HC))
        e("v_xor_b32 v%d, s%d, v%d" % (HC, PNB, HC))
        e("v_mad_u32_u24 v%d, v%d, s%d, v%d" % (HC, HC, PIS, HP))
        e("s_mov_b64 exec, s[%d:%d]" % (PXM + 2 * k, PXM + 2 * k + 1))
        if not P["xkp"] & 128:
            e("buffer_load_dwordx4 v[%d:%d], v%d, s[%d:%d], s%d offen offset:%d sc1" %
              (R, R + 3, HC, PWS, PWS + 3, PE + 5 if k >= 4 else PIM, (k % 4) * 1024))
        e("s_mov_b64 exec, -1")
    e("s_waitcnt vmcnt(0)")
    for k in range(6):
        R = HX + 4 * RS + 4 * k
        e("s_mov_b64 exec, s[%d:%d]" % (PXM + 2 * k, PXM + 2 * k + 1))
        e("ds_write_b128 v%d, v[%d:%d] offset:%d" % (HP, R, R + 3, L_LG + k * 1024))
    e("s_mov_b64 exec, -1")
    for st in range(4):
        R = HX + RS * st
        for c in range(3):
            e("ds_read_b64 v[%d:%d], v%d offset:%d" % (R + 2 * c, R + 2 * c + 1, HK, L_LG + st * 192 + 8 * c))
    e("s_mov_b32 s%d, 0" % PN0)
    e("v_mov_b32 v%d, 0x%08x" % (HB_, BIGNEG))
    e("v_mov_b32 v%d, 0x%08x" % (HA, BIGNEG))
    e("s_waitcnt vmcnt(0) lgkmcnt(0)")
    for st in range(4):
        R = HX + RS * st
        for k in range(6):
            e("v_sub_f32 v%d, v%d, v%d" % (R + k, R + k, R + 6))
        for k in range(6):
            e("v_mul_f32 v%d, s%d, v%d" % (R + k, PCC, R + k))
        e("v_cndmask_b32 v%d, v%d, v%d, s[%d:%d]" % (R + 5, HB_, R + 5, PSIX + 2 * st, PSIX + 2 * st + 1))
        for k in range(0, 6, 2):
            e("v_max3_f32 v%d, v%d, v%d, v%d" % (HA, HA, R + k, R + k + 1))
        for b in (R + 8, R + 12):
            for k in range(3):
                e("v_alignbit_b32 v%d, v%d, v%d, v%d" % (b + k, b + k + 1, b + k, R + 7))

    wave_reduce([HA], "v_max_f32", [HB_])
    e("v_mov_b32 v%d, 0" % HB_)
    e("v_mov_b32 v%d, 0" % HC)
    for st in range(4):
        R = HX + RS * st
        for k in range(6):
            e("v_sub_f32 v%d, v%d, v%d" % (R + k, R + k, HA))
        for k in range(6):
            e("v_exp_f32 v%d, v%d" % (R + k, R + k))
        for k in range(6):
            e("v_add_f32 v%d, v%d, v%d" % (HB_, HB_, R + k))
            if k & 1:
                e("v_and_b32 v%d, 0xffff0000, v%d" % (HE, R + 8 + k // 2))
                e("v_and_b32 v%d, 0xffff0000, v%d" % (HF, R + 12 + k // 2))
            else:
                e("v_lshlrev_b32 v%d, 16, v%d" % (HE, R + 8 + k // 2))
                e("v_lshlrev_b32 v%d, 16, v%d" % (HF, R + 12 + k // 2))
            e("v_mul_f32 v%d, v%d, v%d" % (R + k, R + k, HE))
            e("v_fmac_f32 v%d, v%d, v%d" % (HC, R + k, HF))
        e("ds_write_b128 v%d, v[%d:%d] offset:%d" % (HN, R, R + 3, L_PV + st * 2048))
        e("ds_write_b64 v%d, v[%d:%d] offset:%d" % (HN, R + 4, R + 5, L_PV + st * 2048 + 16))
    wave_reduce([HB_, HC], "v_add_f32", [HE, HF])
    e("s_lshl_b32 s%d, s%d, 2" % (PE, PPH))
    e("v_mov_b32 v%d, s%d" % (HE, PE))
    e("v_lshlrev_b32 v%d, 2, v%d" % (HF, HE))
    e("v_mov_b32 v%d, s%d" % (HD, PWD))
    e("s_mov_b64 exec, 1")
    e("ds_write_b128 v%d, v[%d:%d] offset:%d" % (HF, HA, HD, L_ML))
    e("ds_write_b32 v%d, v%d offset:%d" % (HE, HD, L_GO))
    if FU:
        e("s_lshl_b32 s%d, s%d, 8" % (PE, PPH))
        e("s_add_u32 s%d, s%d, s2" % (PE, PE))
        e("s_lshl_b32 s%d, s%d, 6" % (PE, PE))
        e("s_add_u32 s%d, s%d, %d" % (PE, PE, WS_ML))
        e("buffer_store_dwordx4 v[%d:%d], off, s[%d:%d], s%d sc1" % (HA, HD, PWS, PWS + 3, PE))
    e("s_mov_b64 exec, -1")
    e("v_add_u32 v%d, 8192, v%d" % (HN, HN))
    e("v_add_u32 v%d, %d, v%d" % (HK, PHI, HK))
    e("v_add_u32 v%d, %d, v%d" % (HP, PHI, HP))
    e("s_add_u32 s%d, s%d, 1" % (PPH, PPH))
    e("s_cmp_lt_u32 s%d, 3" % PPH)
    e("s_cbranch_scc1 L_prep")
    e("s_mov_b32 s%d, 0" % PPH)
    e("v_lshlrev_b32 v%d, 2, v%d" % (HR, HL))
    e("v_add_u32 v%d, %d, v%d" % (HG, L_ACC, HR))
    e("v_lshlrev_b32 v%d, 4, v%d" % (HK, HL))
    e("v_mov_b32 v%d, 1" % (HX + 15))
    e.label("L_merge")
    e("s_lshl_b32 s%d, s%d, 2" % (PE, PPH))
    e("v_mov_b32 v%d, s%d" % (HW, PE))
    e("v_lshlrev_b32 v%d, 2, v%d" % (HF, HW))
    e("ds_read_b128 v[%d:%d], v%d offset:%d" % (HA, HD, HF, L_ML))
    e("s_lshl_b32 s%d, s%d, 8" % (PSG, PPH))
    e("s_add_u32 s%d, s%d, s2" % (PSG, PSG))
    e("s_lshl_b32 s%d, s%d, 10" % (PSG, PSG))
    lds_wait("m", HZ, HE, PE, L_CA, "4", PSP, HW)
    for kk in range(3):
        for w in range(NW):
            e("ds_read_b32 v%d, v%d offset:%d" % (HX + kk * NW + w, HG, w * ROWB + kk * 256))
    for kk in range(3):
        b = HX + kk * NW
        e("s_waitcnt lgkmcnt(%d)" % (8 - 4 * kk))
        e("v_add_f32 v%d, v%d, v%d" % (b, b, b + 1))
        e("v_add_f32 v%d, v%d, v%d" % (b + 2, b + 2, b + 3))
        e("v_sub_f32 v%d, v%d, v%d" % (b, b, HC))
        if FU:
            e("v_add_f32 v%d, v%d, v%d" % (HX + 12 + kk, b, b + 2))
            continue
        e("v_add_f32 v%d, v%d, v%d" % (b, b, b + 2))
        e("buffer_store_dword v%d, v%d, s[%d:%d], s%d offen offset:%d" % (b, HR, PWS, PWS + 3, PSG, kk * 256))
    if FU:
        e("buffer_store_dwordx4 v[%d:%d], v%d, s[%d:%d], s%d offen sc1" % (HX + 12, HX + 15, HK, PWS, PWS + 3, PSG))
    else:
        e("s_mov_b64 exec, 1")
        e("buffer_store_dwordx2 v[%d:%d], off, s[%d:%d], s%d offset:%d" % (HA, HB_, PWS, PWS + 3, PSG, DH * 4))
        e("s_mov_b64 exec, -1")
    e("v_add_u32 v%d, %d, v%d" % (HG, NW * ROWB, HG))
    e("s_add_u32 s%d, s%d, 1" % (PPH, PPH))
    e("s_cmp_lt_u32 s%d, 3" % PPH)
    e("s_cbranch_scc1 L_merge")
    e("s_endpgm")

    main_text = e.text()
    RPW = 24
    k2 = NAME + "_kernel"
    e.lines.append(".globl %s" % k2)
    e.lines.append(".p2align 8")
    e.lines.append(".type %s,@function" % k2)
    e.lines.append(k2 + ":")
    e.wr = {}; e.tr = {}; e.sw = {}
    e("s_cmp_ge_u32 s2, %d" % H)
    e("s_cbranch_scc1 L_exit2")
    e("s_load_dwordx2 s[4:5], s[0:1], 56")
    e("s_load_dwordx2 s[6:7], s[0:1], 72")
    e("v_lshlrev_b32 v1, 2, v0")
    e("v_mov_b32 v2, 0")
    e("s_mul_i32 s16, s2, %d" % (RPW * PART_STRIDE))
    e("s_mov_b32 s10, %d" % (3 * NWG * PART_STRIDE))
    e("s_mov_b32 s11, 0x00020000")
    e("s_mov_b32 s14, %d" % (H * DH * 2))
    e("s_mov_b32 s15, 0x00020000")
    for k in range(1, RPW // 4):
        e("s_add_u32 s%d, s16, %d" % (16 + k, 4 * k * PART_STRIDE))
    e("s_waitcnt lgkmcnt(0)")
    e("s_mov_b32 s8, s6")
    e("s_and_b32 s9, s7, 0xffff")
    e("s_mov_b32 s12, s4")
    e("s_and_b32 s13, s5, 0xffff")
    MLB = 8
    OB = MLB + 2 * RPW
    for s in range(RPW):
        so = 16 + s // 4
        e("buffer_load_dwordx2 v[%d:%d], v2, s[8:11], s%d offen offset:%d" %
          (MLB + 2 * s, MLB + 2 * s + 1, so, (s % 4) * PART_STRIDE + DH * 4))
        e("buffer_load_dword v%d, v1, s[8:11], s%d offen offset:%d" % (OB + s, so, (s % 4) * PART_STRIDE))
    e("s_waitcnt vmcnt(0)")
    e("v_mov_b32 v4, v%d" % MLB)
    for s in range(1, RPW):
        e("v_max_f32 v4, v4, v%d" % (MLB + 2 * s))
    for s in range(RPW):
        e("v_sub_f32 v%d, v%d, v4" % (MLB + 2 * s, MLB + 2 * s))
    for s in range(RPW):
        e("v_exp_f32 v%d, v%d" % (MLB + 2 * s, MLB + 2 * s))
    e("v_mul_f32 v5, v%d, v%d" % (MLB, MLB + 1))
    e("v_mul_f32 v6, v%d, v%d" % (MLB, OB))
    for s in range(1, RPW):
        e("v_fmac_f32 v5, v%d, v%d" % (MLB + 2 * s, MLB + 2 * s + 1))
        e("v_fmac_f32 v6, v%d, v%d" % (MLB + 2 * s, OB + s))
    e("v_rcp_f32 v5, v5")
    e("v_mul_f32 v6, v6, v5")
    e("v_cvt_pk_bf16_f32 v6, v6, v6")
    e("s_mul_i32 s16, s2, %d" % (DH * 2))
    e("v_lshrrev_b32 v1, 1, v1")
    e("buffer_store_short v6, v1, s[12:15], s16 offen")
    e.lines.append("L_exit2:")
    e("s_endpgm")
    NV2 = OB + RPW

    def kd(name, nv, ns):
        acc = (nv + 3) // 4 * 4
        return """.amdhsa_kernel %s
  .amdhsa_next_free_vgpr %d
  .amdhsa_next_free_sgpr %d
  .amdhsa_accum_offset %d
  .amdhsa_group_segment_fixed_size 0
  .amdhsa_kernarg_size 80
  .amdhsa_user_sgpr_count 2
  .amdhsa_user_sgpr_kernarg_segment_ptr 1
  .amdhsa_system_sgpr_workgroup_id_x 1
.end_amdhsa_kernel
""" % (name, nv, ns, acc)

    out = HEADER.replace("gen.py", "gen6.py").format(params=" ".join("%s=%s" % kv for kv in sorted(P.items())))
    if FU:
        out += "; @launch kernel=%s grid=(%d,1,1) block=(%d,1,1) lds=%d\n" % (k1, NWG, (NW + NH) * 64, LDS1)
    else:
        out += "; @launch kernel=%s grid=(%d,1,1) block=(%d,1,1) lds=%d\n" % (k1, NWG, (NW + NH) * 64, LDS1)
        out += "; @launch kernel=%s grid=(%d,1,1) block=(%d,1,1) lds=%d\n" % (k2, H, DH, 0)
    out += '.amdgcn_target "amdgcn-amd-amdhsa--gfx950"\n.text\n'
    out += main_text if FU else e.text()
    out += '.section .rodata,"a"\n.p2align 6\n'
    out += kd(k1, NVGPR + (2 if P["stamp"] == 5 else 0), 102)
    if not FU:
        out += ".p2align 6\n"
        out += kd(k2, NV2, 24)
    return out


DEFAULTS = dict(grp="6-6-6", n0=4, trg=1, ta=8, tb=12, jit=1, pace=1, nr0=1, nr=3, nt="nt", ldspad=0, stamp=0, xkp=0, force=0, clip=1400,
                l2t=290, th=200, pf=1, ob=2, ox=0, ds=1, td=3, tdm=3, fuse=1, cw=1,
                lx=0, wo=0, ns0=8, tw=1, ov="0000", st="sc1", xv="", h4=0, bnt=0, vw=1, at=1, tc=36, tg=2, te=40, aq=16, ka=12, kb=3584, dmin=0, dmax=11)


def main():
    P = dict(DEFAULTS)
    outp = None
    args = sys.argv[1:]
    i = 0
    while i < len(args):
        a = args[i]
        if a == "-o":
            outp = args[i + 1]; i += 2; continue
        k, v = a.split("=", 1)
        assert k in P, k
        P[k] = type(P[k])(v.replace("+", " ")) if isinstance(P[k], str) else int(v)
        i += 1
    s = gen(P)
    if outp:
        open(outp, "w").write(s)
    else:
        sys.stdout.write(s)


if __name__ == "__main__":
    main()
```

```python
import re
import sys
import math
from gen import f32hex, HEADER, NAME, H, SKV, DH, G, NGRP, ROWB, HEADB
from gen4 import Emit4

PART_STRIDE = 1024
NW = 4
NH = 3
NWG = 256
NT = 48
WS_G = 8 << 20
FSTR = 4096 + 256
WS_ML = 0xe0000
WS_B = 0x120000
WS_L = 2 << 20
WS_T = 0x9c0000
WS_SIZE = 10 << 20
BIGNEG = 0xf149f2ca


def gen(P):
    GR = [int(x) for x in P["grp"].split("-")]
    assert sum(GR) == 18 and len(GR) >= 2
    NG = len(GR)
    GOFF = [sum(GR[:k]) for k in range(NG)]
    OV = [int(x) for x in P["ov"]]
    N0 = P["n0"]
    NR = P["nr"]
    TRG1 = N0 - P["trg"]
    TA = P["ta"]
    TB = P["tb"]
    assert 2 <= TRG1 < N0 < TA < TB < 16 and 1 <= NR <= 7 and N0 <= 8
    pol = (" " + P["nt"]) if P["nt"] else ""
    C = (DH ** -0.5) * math.log2(math.e)
    L_DEC = 0
    L_GO = 24
    L_PC = 36
    L_CF = 40
    L_FD = 52
    L_EV = 56
    L_CA = 64
    L_ML = 80
    L_TC = 128
    L_TD = 132
    L_TM = 144
    L_GT = 208
    L_LG = 256
    PHI = 6144
    IMG = 3 * PHI
    L_PV = L_LG + IMG
    L_ACC = L_PV + 192 * 128
    LDS1 = max(L_ACC + 3 * NW * ROWB, P["ldspad"])

    e = Emit4()
    V_T = 1; V_J16 = 2; V_J8 = 3; V_LB0 = 4; V_PB0 = 5; V_PV = 6; V_PVN = 7; V_DO = 8; V_PO = 9; V_T0 = 10; V_T1 = 11
    V_ACC = 12; V_W = 24; V_RAW = 36
    V_OFF = 48; V_OFF6 = 49; V_TM = 50; V_BIG = 51; V_T2 = 52; V_Z = 53
    V_S = 54
    V_D = 60
    V_T128 = 62; V_TMX = 63
    V_RING = 64
    NVGPR = V_RING + 72
    S_G = 3; S_M = 4; S_N = 5; S_SPIN = 6; S_LDC = 7
    S_K = 8; S_V = 12; S_KS = 16; S_Q = 20; S_WS = 24
    S_WAVE = 28; S_CI = 29; S_I = 30; S_QOFF = 31
    S_T = 32
    S_EV = 40; S_STM = 42; S_HB = 44; S_768 = 45; S_384 = 46; S_MAGIC = 47
    S_NB = 48; S_TD = 49; S_XB = 50; S_LB = 53
    S_ST = 54; S_DBG = 56
    S_BO = 59; S_TW = 60; S_CPA = 62; S_NBO = 63; S_BP = 72
    S_MP = 64; S_MG = 66; S_MR = 68; S_MO = 70
    BC = P["bc"]
    NHX = NH + (1 if BC else 0)
    CPK = [int(x) for x in P["cpk"].split("-")] if BC and P["cpk"] else []
    CPV = [int(x) for x in P["cpv"].split("-")] if BC and P["cpv"] else []
    if BC:
        CPV.append(P["tc"])
        assert P["te"] == P["tc"] + P["tg"] + P["rd"] and len(CPK) + len(CPV) <= 16

    GTS = [int(x) for x in P["gts"].split("-")] if BC and P["gts"] else []

    def set_masks(ev, cps):
        mp = sum(1 << c for c in cps)
        allm = [(S_EV, ev | mp | (mp << P["tg"]) | (mp << (P["tg"] + P["rd"])))]
        if BC:
            allm += [(S_MP, mp), (S_MG, mp << P["tg"]), (S_MR, mp << (P["tg"] + P["rd"])), (S_MO, ev)]
        for r, v in allm:
            assert v < (1 << 48)
            e("s_mov_b32 s%d, 0x%x" % (r, v & 0xffffffff))
            e("s_mov_b32 s%d, 0x%x" % (r + 1, v >> 32))

    FU = P["fuse"]
    k1 = NAME + "_kernel" if FU else "part_kernel"
    e.lines.append(".globl %s" % k1)
    e.lines.append(".p2align 8")
    e.lines.append(".type %s,@function" % k1)
    e.lines.append(k1 + ":")
    e("s_cmp_ge_u32 s2, %d" % NWG)
    e("s_cbranch_scc1 L_exit1")
    e("s_load_dwordx16 s[64:79], s[0:1], 0")
    e("s_load_dwordx4 s[80:83], s[0:1], 64")
    if P["stamp"]:
        e("s_memrealtime s[%d:%d]" % (S_ST, S_ST + 1))
    e("v_lshrrev_b32 v%d, 6, v0" % V_T0)
    e("v_and_b32 v%d, 63, v0" % V_T1)
    e("v_readfirstlane_b32 s%d, v%d" % (S_WAVE, V_T0))
    e("s_lshr_b32 s%d, s2, 3" % S_G)
    e("s_and_b32 s%d, s2, 7" % S_M)
    e("s_lshr_b32 s%d, s2, 6" % S_T)
    e("s_xor_b32 s%d, s%d, s%d" % (S_T, S_T, S_M))
    e("s_lshr_b32 s%d, s%d, 1" % (S_NB, S_T))
    e("s_and_b32 s%d, s%d, 1" % (S_T, S_T))
    e("s_lshl_b32 s%d, s%d, 2" % (S_T, S_T))
    e("s_or_b32 s%d, s%d, s%d" % (S_NB, S_NB, S_T))
    e("s_cmp_ge_u32 s%d, %d" % (S_WAVE, NW))
    e("s_cbranch_scc1 L_helper")

    def srd(dst, ptr, nbytes):
        e("s_mov_b32 s%d, s%d" % (dst, ptr))
        e("s_and_b32 s%d, s%d, 0xffff" % (dst + 1, ptr + 1))
        e("s_mov_b32 s%d, %d" % (dst + 2, nbytes))
        e("s_mov_b32 s%d, 0x00020000" % (dst + 3))

    def lds_wait(tag, vz, vt, st, off, cond, spin, vaddr=None):
        e("s_mov_b32 s%d, 0x100000" % spin)
        e.label("L_w" + tag)
        e("ds_read_b32 v%d, v%d offset:%d" % (vt, vz if vaddr is None else vaddr, off))
        e("s_sub_u32 s%d, s%d, 1" % (spin, spin))
        e("s_cbranch_scc1 L_exit1")
        e("s_waitcnt lgkmcnt(0)")
        e("v_readfirstlane_b32 s%d, v%d" % (st, vt))
        if cond == "nz":
            e("s_cmp_eq_u32 s%d, 0" % st)
        else:
            e("s_cmp_lt_u32 s%d, %s" % (st, cond))
        e("s_cbranch_scc1 L_w" + tag)

    def gate(b, tag, check):
        if b not in GTS:
            return
        if check:
            e("s_cmp_eq_u32 s%d, %d" % (S_I, b % 48))
            e("s_cbranch_scc0 L_gx" + tag)
        e("s_memrealtime s[%d:%d]" % (S_T + 4, S_T + 5))
        lds_wait("g" + tag, V_Z, V_T0, S_T, L_GT + 4 * GTS.index(b), "nz", S_SPIN)
        e("s_and_b32 s%d, s%d, 0xffff" % (S_T, S_T))
        e("s_cbranch_scc0 L_gx" + tag)
        if P["stamp"] == 5:
            e("s_lshl_b32 s%d, s%d, 16" % (S_T + 1, S_T))
            e("s_add_u32 s%d, s%d, s%d" % (S_NBO, S_NBO, S_T + 1))
        e("s_add_u32 s%d, s%d, s%d" % (S_T, S_T, S_T + 4))
        e.label("L_gl" + tag)
        e("s_memrealtime s[%d:%d]" % (S_T + 4, S_T + 5))
        e("s_waitcnt lgkmcnt(0)")
        e("s_sub_u32 s%d, s%d, s%d" % (S_T + 4, S_T + 4, S_T))
        e("s_cmp_lt_i32 s%d, 0" % (S_T + 4))
        e("s_cbranch_scc1 L_gl" + tag)
        e.label("L_gx" + tag)

    def get_table(kind, tag):
        if tag == "tv":
            gate(48, tag, False)
        else:
            for b in ((16, 32) if kind == "K" else (64, 80)):
                gate(b, "%s%d" % (tag, b), True)
        e("s_lshr_b32 s%d, s%d, 4" % (S_T + 1, S_I))
        e("s_lshl_b32 s%d, s%d, 2" % (S_T + 2, S_T + 1))
        if P["stamp"] == 6:
            e("s_memrealtime s[%d:%d]" % (S_T + 4, S_T + 5))
            e("s_lshl_b32 s%d, s2, 2" % S_T)
            e("s_add_u32 s%d, s%d, s%d" % (S_T, S_T, S_WAVE))
            e("s_cmp_eq_u32 s%d, 400" % S_T)
            e("s_cselect_b64 exec, 1, 0")
            e("s_waitcnt lgkmcnt(0)")
            e("s_sub_u32 s%d, s%d, s%d" % (S_T + 4, S_T + 4, S_ST))
            e("v_mov_b32 v%d, s%d" % (V_T1, S_T + 4))
            e("buffer_store_dword v%d, off, s[%d:%d], s%d offset:%d" % (V_T1, S_WS, S_WS + 3, S_T + 2, 40 if kind == "K" else 52))
            e("s_mov_b64 exec, -1")
        e("v_mov_b32 v%d, s%d" % (V_T1, S_T + 2))
        if kind == "K":
            load_q(S_T + 1, False)
        lds_wait(tag, V_Z, V_T0, S_T, L_DEC if kind == "K" else L_GO, "nz", S_SPIN, V_T1)
        e("s_and_b32 s%d, s%d, 7" % (S_N, S_T))
        e("s_xor_b32 s%d, s%d, s%d" % (S_N, S_N, S_NB))
        e("s_bitcmp1_b32 s%d, 3" % S_T)
        e("s_cselect_b64 vcc, -1, 0")
        e("v_cndmask_b32 v%d, v%d, v%d, vcc" % (V_TM, V_T128, V_TMX))

    def load_q(ph, track):
        e("s_lshl_b32 s%d, s%d, 5" % (S_QOFF, ph))
        e("s_add_u32 s%d, s%d, s%d" % (S_QOFF, S_QOFF, S_G))
        e("s_mul_i32 s%d, s%d, 171" % (S_QOFF, S_QOFF))
        e("s_lshr_b32 s%d, s%d, 9" % (S_QOFF, S_QOFF))
        e("s_mul_i32 s%d, s%d, %d" % (S_QOFF, S_QOFF, DH * 2))
        for c in range(3):
            r = V_RAW + 2 * c
            s = "buffer_load_dwordx2 v[%d:%d], v%d, s[%d:%d], s%d offen offset:%d" % (r, r + 1, V_J8, S_Q, S_Q + 3, S_QOFF, c * 128)
            if track:
                e.vmem(s, "p")
            else:
                e(s)

    def tile_addr(kind):
        ch, a, b = S_T, S_T + 1, S_T + 2
        e("s_lshr_b32 s%d, s%d, 6" % (a, S_CI))
        e("s_lshl_b32 s%d, s%d, 11" % (a, a))
        e("s_and_b32 s%d, s%d, 63" % (ch, S_CI))
        e("s_add_u32 s%d, s%d, s%d" % (ch, ch, a))
        e("s_add_u32 s%d, s%d, s%d" % (ch, ch, S_HB))
        e("s_bfe_u32 s%d, s%d, 0x20003" % (a, ch))
        e("s_and_b32 s%d, s%d, 4" % (b, ch))
        e("s_or_b32 s%d, s%d, s%d" % (a, a, b))
        e("s_xor_b32 s%d, s%d, s%d" % (a, a, S_N))
        e("s_lshl_b32 s%d, s%d, 5" % (S_XB, ch))
        e("s_or_b32 s%d, s%d, s%d" % (S_XB, S_XB, a))
        e("s_lshl_b32 s%d, s%d, 4" % (S_XB, S_XB))
        e("s_or_b32 s%d, s%d, 1" % (S_XB, S_XB))
        if kind == "V":
            e("s_lshl_b32 s%d, s%d, 7" % (S_LB, S_CI))
        e("v_xor_b32 v%d, s%d, v%d" % (V_T0, S_XB, V_TM))
        e("v_mul_hi_u32 v%d, v%d, s%d" % (V_T0, V_T0, S_MAGIC))
        e("v_lshrrev_b32 v%d, 1, v%d" % (V_T0, V_T0))
        e("v_and_b32 v%d, 15, v%d" % (V_T1, V_T0))
        e("v_cmp_eq_u32 vcc, 5, v%d" % V_T1)
        e("v_mad_u32_u24 v%d, v%d, s%d, v%d" % (V_OFF, V_T0, S_768, V_J16))
        e("v_add_u32 v%d, %d, v%d" % (V_T1, 5 * ROWB, V_OFF))
        e("v_cndmask_b32 v%d, v%d, v%d, vcc" % (V_OFF6, V_BIG, V_T1))
        if kind == "K":
            e("v_lshrrev_b32 v%d, 6, v%d" % (V_T0, V_T0))
            e("v_mad_u32_u24 v%d, v%d, s%d, v%d" % (V_PO, V_T0, S_384, V_J8))
        else:
            e("v_add_u32 v%d, s%d, v%d" % (V_T0, S_LB, V_PB0))

    def issue_params(kind):
        if kind == "K":
            if P["xkp"] & 2:
                return
            for c in range(3):
                r = V_RAW + 6 + 2 * c
                e.vmem("buffer_load_dwordx2 v[%d:%d], v%d, s[%d:%d], 0 offen offset:%d%s" %
                       (r, r + 1, V_PO, S_KS, S_KS + 3, c * 128, " nt" if P["bnt"] & 4 else ""), "p")
            if P["xb"] & 2:
                for c in range(3):
                    r = NVGPR + 2 + 2 * c
                    e.vmem("buffer_load_dwordx2 v[%d:%d], v%d, s[%d:%d], 0 offen offset:%d" % (r, r + 1, V_PO, 76, 79, c * 128), "p")
        else:
            e("ds_read_b32 v%d, v%d" % (V_PVN, V_T0))

    def issue_group(k, kind, pol=pol):
        srdb = S_K if kind == "K" else S_V
        for l in range(GOFF[k], GOFF[k] + GR[k]):
            r = V_RING + l * 4
            if l < 15:
                vo, off = V_OFF, l * 256
            else:
                vo, off = V_OFF6, (l - 15) * 256
            e.vmem("buffer_load_dwordx4 v[%d:%d], v%d, s[%d:%d], 0 offen offset:%d%s" %
                   (r, r + 3, vo, srdb, srdb + 3, off, pol), "g%d" % k)

    def compute_w():
        e.wait_tag("p")
        for p in range(6):
            rq = V_RAW + p; rs = V_RAW + 6 + p
            i0 = 2 * p
            e("v_lshlrev_b32 v%d, 16, v%d" % (V_T0, rq))
            e("v_lshlrev_b32 v%d, 16, v%d" % (V_W + i0, rs))
            e("v_and_b32 v%d, 0xffff0000, v%d" % (V_T1, rq))
            e("v_and_b32 v%d, 0xffff0000, v%d" % (V_W + i0 + 1, rs))
            e("v_mul_f32 v%d, v%d, v%d" % (V_W + i0, V_W + i0, V_T0))
            e("v_mul_f32 v%d, v%d, v%d" % (V_W + i0 + 1, V_W + i0 + 1, V_T1))

    def advance(kind, to_v, tag):
        nkind = "V" if to_v else kind
        if to_v:
            e("s_mov_b32 s%d, s%d" % (S_CI, S_WAVE))
            e("s_mov_b32 s%d, 0" % S_I)
            get_table("V", "tv")
            ev = (1 << 16) | (1 << 32)
            if P["at"] and not BC:
                ev |= (1 << P["tc"]) | (1 << (P["tc"] + P["tg"])) | (1 << P["te"])
            e("s_mov_b32 s%d, %d" % (S_TD, NT - P["td"] if P["td"] else 255))
            set_masks(ev, CPV)
        else:
            e("s_add_u32 s%d, s%d, %d" % (S_CI, S_CI, NW))
            e("s_add_u32 s%d, s%d, 1" % (S_I, S_I))
            if tag:
                e("s_bitcmp1_b64 s[%d:%d], s%d" % (S_EV, S_EV + 1, S_I))
                sfx = tag if isinstance(tag, str) else ""
                e("s_cbranch_scc1 L_ev%s%s" % (kind, sfx))
                e.flush()
                e.label("L_evret%s%s" % (kind, sfx))
        if P["stamp"] == 4:
            e("s_memrealtime s[%d:%d]" % (S_DBG, S_DBG + 1))
            e("s_add_u32 s%d, s%d, 4" % (S_DBG + 2, S_DBG + 2))
            e("s_waitcnt lgkmcnt(0)")
            e("v_mov_b32 v%d, s%d" % (V_T2, S_DBG))
            e("s_mov_b64 exec, 1")
            e("buffer_store_dword v%d, off, s[%d:%d], s%d" % (V_T2, S_WS, S_WS + 3, S_DBG + 2))
            e("s_mov_b64 exec, -1")
        if P["stamp"] == 5:
            e("s_memrealtime s[%d:%d]" % (S_DBG, S_DBG + 1))
            e("s_add_u32 m0, m0, 1")
            e("s_waitcnt lgkmcnt(0)")
            e("v_writelane_b32 v%d, s%d, m0" % (NVGPR + (1 if kind == "V" else 0), S_DBG))
            if to_v:
                e("s_mov_b32 m0, -1")
        tile_addr(nkind)
        issue_params(nkind)

    def compute(k, kind):
        for l in range(GOFF[k], GOFF[k] + GR[k]):
            q, c = l // 3, l % 3
            base = V_RING + l * 4
            for r in range(4):
                e("v_cvt_f32_i32 v%d, v%d" % (base + r, base + r))
            if kind == "K":
                s = V_S + q
                for r in range(4):
                    if c == 0 and r == 0:
                        e("v_mul_f32 v%d, v%d, v%d" % (s, base, V_W))
                    else:
                        e("v_fmac_f32 v%d, v%d, v%d" % (s, base + r, V_W + 4 * c + r))
                if c == 2:
                    e.defer(["v_add_f32_dpp v%d, v%d, v%d row_ror:%d row_mask:0xf bank_mask:0xf" % (s, s, s, kk)
                             for kk in (8, 4, 2)] +
                            ["v_add_f32_dpp v%d, v%d, v%d row_ror:1 row_mask:0xf bank_mask:0x%x" %
                             (V_D + (q & 1), s, s, 1 << (q >> 1))])
            else:
                for r in range(4):
                    e("v_fmac_f32_dpp v%d, v%d, v%d row_newbcast:%d row_mask:0xf bank_mask:0xf" %
                      (V_ACC + 4 * c + r, V_PV, base + r, q))
        e.flush()

    def finish(kind, to_v):
        if kind == "K":
            e("s_mov_b64 exec, s[%d:%d]" % (S_STM, S_STM + 1))
            e("ds_write_b64 v%d, v[%d:%d]" % (V_LB0, V_D, V_D + 1))
            e("s_mov_b64 exec, -1")
            if not to_v:
                e("v_add_u32 v%d, 48, v%d" % (V_LB0, V_LB0))
                compute_w()
        if kind == "V" or to_v:
            e("s_waitcnt lgkmcnt(0)")
            e("v_mov_b32 v%d, v%d" % (V_PV, V_PVN))

    def body(kind, to_v=False, first=False):
        nkind = "V" if to_v else kind
        for k in range(NG):
            ov = OV[k] if not first else 0
            if ov:
                i = e.vm.index("g%d" % k) + GR[k] - ov
                e("s_waitcnt vmcnt(%d)" % (len(e.vm) - i))
                e.vm = e.vm[i:]
            else:
                e.wait_tag("g%d" % k)
            if k + 1 < NG:
                if not first:
                    issue_group(k + 1, kind)
            else:
                issue_group(0, nkind)
            if ov:
                e("s_waitcnt vmcnt(%d)" % (len(e.vm) - ov))
                e.vm = e.vm[ov:]
            if k == NG - 2:
                advance(kind, to_v, not first)
            compute(k, kind)
        finish(kind, to_v)

    def body_deep(mode):
        if mode == 3:
            advance("V", False, False)
        for k in range(NG):
            i = e.vm.index("g%d" % k) + GR[k]
            e("s_waitcnt vmcnt(%d)" % (len(e.vm) - i))
            e.vm = e.vm[i:]
            if mode == 2:
                issue_group((k + 2) % NG, "V")
                if k == NG - 3:
                    advance("V", False, False)
            compute(k, "V")
            if mode == 3:
                issue_group(k, "V", "" if P["xkp"] & 256 else pol)
        finish("V", False)

    def body_boost(kind):
        for k in range(1, NG):
            issue_group(k, kind)
        e("s_sub_u32 s%d, s%d, 1" % (S_BO, S_BO))
        if P["stamp"] == 5:
            e("s_add_u32 s%d, s%d, 256" % (S_NBO, S_NBO))
        advance(kind, False, "B")
        for k in range(NG):
            e.wait_tag("g%d" % k)
            if k == NG - 1 and not P["be"]:
                issue_group(0, kind)
            compute(k, kind)
            if k == 0 and P["be"]:
                issue_group(0, kind)
        finish(kind, False)

    def lds_inc(off, vz, vt):
        e("v_mov_b32 v%d, 1" % vt)
        e("s_mov_b64 exec, 1")
        e("ds_add_u32 v%d, v%d offset:%d" % (vz, vt, off))
        e("s_mov_b64 exec, -1")

    e("v_lshrrev_b32 v%d, 4, v%d" % (V_T, V_T1))
    e("v_and_b32 v%d, 15, v%d" % (V_T2, V_T1))
    e("v_lshlrev_b32 v%d, 4, v%d" % (V_J16, V_T2))
    e("v_lshlrev_b32 v%d, 3, v%d" % (V_J8, V_T2))
    e("v_lshlrev_b32 v%d, 7, v%d" % (V_T128, V_T))
    e("v_and_b32 v%d, 0x70, v0" % V_TMX)
    e("v_or_b32 v%d, v%d, v%d" % (V_TMX, V_TMX, V_T128))
    e("v_mov_b32 v%d, v%d" % (V_TM, V_TMX))
    if P["h4"]:
        e("v_and_b32 v%d, 0x%x, v%d" % (V_T128, 0xffffff8f | (P["h4"] << 4), V_TMX))
    e("s_mov_b32 s%d, %d" % (S_768, ROWB))
    e("s_mov_b32 s%d, %d" % (S_384, DH * 2))
    e("s_mov_b32 s%d, 0xaaaaaaab" % S_MAGIC)
    e("v_mov_b32 v%d, 0xc0000000" % V_BIG)
    e("s_lshl_b32 s%d, s%d, 6" % (S_HB, S_G))
    e("s_mov_b32 s%d, s%d" % (S_N, S_NB))
    e("s_mov_b32 s%d, s%d" % (S_CI, S_WAVE))
    tile_addr("K")
    SS = P["ss"]
    EB = P["eb"]
    if SS:
        e("s_memrealtime s[84:85]")
    if EB == 3:
        e("s_barrier")
    e("s_waitcnt lgkmcnt(0)")
    if SS:
        e("s_memrealtime s[86:87]")
    if EB == 2:
        e("s_barrier")
    e("s_mov_b32 s%d, 0" % S_I)
    if P["xb"] & 2:
        srd(76, 72, H * NGRP * DH * 2)
    if P["pfi"]:
        srd(S_Q, 64, H * DH * 2)
        load_q(S_I, True)
        srd(S_KS, 70, H * NGRP * DH * 2)
        issue_params("K")
    srd(S_K, 66, H * HEADB)
    issue_group(0, "K")
    if EB == 1:
        e("s_barrier")
    if not P["pfi"]:
        srd(S_Q, 64, H * DH * 2)
        load_q(S_I, True)
        srd(S_KS, 70, H * NGRP * DH * 2)
        issue_params("K")
    if P["ds"]:
        for k in range(1, NG):
            issue_group(k, "K")
    if SS:
        e("s_memrealtime s[88:89]")
    srd(S_V, 68, H * HEADB)
    if P["stamp"] == 6:
        srd(S_WS, 80, 256)
    elif P["stamp"]:
        srd(S_WS, 82, 0x8000000)
    if P["stamp"] == 5:
        e("s_mov_b32 m0, -1")
    if P["stamp"] in (4, 5):
        e("s_mul_i32 s%d, s2, %d" % (S_DBG + 2, NW))
        e("s_add_u32 s%d, s%d, s%d" % (S_DBG + 2, S_DBG + 2, S_WAVE))
        e("s_lshl_b32 s%d, s%d, 9" % (S_DBG + 2, S_DBG + 2))
        e("s_add_u32 s%d, s%d, 0x4010000" % (S_DBG + 2, S_DBG + 2))
    e("v_lshlrev_b32 v%d, 5, v%d" % (V_T1, V_T))
    e("v_bfe_u32 v%d, v0, 4, 3" % V_LB0)
    e("v_mul_u32_u24 v%d, s%d, v%d" % (V_LB0, S_768, V_LB0))
    e("v_lshl_add_u32 v%d, v%d, 1, v%d" % (V_LB0, V_T2, V_LB0))
    e("s_lshr_b32 s%d, s%d, 1" % (S_T, S_WAVE))
    e("s_mul_i32 s%d, s%d, 24" % (S_T, S_T))
    e("s_add_u32 s%d, s%d, %d" % (S_T, S_T, L_LG))
    e("v_add_u32 v%d, s%d, v%d" % (V_LB0, S_T, V_LB0))
    e("v_and_b32 v%d, 7, v%d" % (V_PB0, V_T2))
    e("v_lshl_add_u32 v%d, v%d, 2, v%d" % (V_PB0, V_PB0, V_T1))
    e("v_add_u32 v%d, %d, v%d" % (V_PB0, L_PV, V_PB0))
    e("v_lshlrev_b32 v%d, 2, v%d" % (V_DO, V_T))
    e("v_add_u32 v%d, v%d, v%d" % (V_DO, V_J16, V_DO))
    e("s_mul_i32 s%d, s%d, %d" % (S_T, S_WAVE, ROWB))
    e("s_add_u32 s%d, s%d, %d" % (S_T, S_T, L_ACC))
    e("v_add_u32 v%d, s%d, v%d" % (V_DO, S_T, V_DO))
    e("v_mov_b32 v%d, 0" % V_Z)
    e("v_mov_b32 v%d, 0" % V_D)
    e("v_mov_b32 v%d, 0" % (V_D + 1))
    e("s_mov_b32 s%d, 0x01110111" % S_STM)
    e("s_mov_b32 s%d, 0x01110111" % (S_STM + 1))
    ev = (1 << TRG1) | (1 << N0) | (3 << 16) | (3 << 32) | (((1 << TA) | (1 << TB)) * 0x100010001)
    set_masks(ev, CPK)
    if BC:
        e("s_mov_b32 s%d, 0" % S_BO)
        e("s_mov_b32 s%d, 0" % S_NBO)
        e("s_mov_b32 s%d, 0" % S_LDC)
        e("s_mov_b32 s%d, %d" % (S_CPA, L_TM))
    for i in range(12):
        e("v_mov_b32 v%d, 0" % (V_ACC + i))
    if SS:
        e("s_memrealtime s[90:91]")
    if not EB:
        e("s_barrier")
    if SS:
        e("s_memrealtime s[92:93]")
        e("s_waitcnt vmcnt(23)")
        e("s_memrealtime s[94:95]")
        e("s_waitcnt vmcnt(18)")
        e("s_memrealtime s[96:97]")
    compute_w()
    if SS:
        e("s_memrealtime s[98:99]")
        e("s_waitcnt lgkmcnt(0)")
        for k in range(8):
            e("v_writelane_b32 v%d, s%d, %d" % (NVGPR + 1, 84 + 2 * k, 48 + k))
    steady = ["g0"] * GR[0]
    if P["ds"]:
        body("K", first=True)
    e.vm = list(steady)
    e.lines.append(".p2align 6")
    e.label("L_kloop")
    body("K")
    assert e.vm == steady, (e.vm, steady)
    if BC:
        e.label("L_kchk")
        e("s_cmp_lg_u32 s%d, 0" % S_BO)
        e("s_cbranch_scc1 L_kboost")
        e.label("L_kchk2")
    e("s_cmp_lg_u32 s%d, %d" % (S_I, NT - 1))
    e("s_cbranch_scc1 L_kloop")
    body("K", True)
    lds_inc(L_CF + 8, V_Z, V_T1)
    if P["stamp"] == 1:
        e("s_memrealtime s[%d:%d]" % (S_DBG, S_DBG + 1))
    e.lines.append(".p2align 6")
    e.label("L_vloop")
    body("V")
    assert e.vm == steady, (e.vm, steady)
    if BC:
        e.label("L_vchk")
    if P["td"] or P["at"]:
        e("s_cmp_eq_u32 s%d, s%d" % (S_I, S_TD))
        e("s_cbranch_scc1 L_deep")
    if BC:
        e("s_cmp_lg_u32 s%d, 0" % S_BO)
        e("s_cbranch_scc1 L_vboost")
    e("s_and_b32 s%d, s%d, 15" % (S_T, S_I))
    e("s_cbranch_scc1 L_vloop")
    e.label("L_vend")
    for c in range(3):
        a = V_ACC + 4 * c
        e("v_permlane32_swap_b32 v%d, v%d" % (a, a + 2))
        e("v_permlane32_swap_b32 v%d, v%d" % (a + 1, a + 3))
    for c in range(3):
        a = V_ACC + 4 * c
        e("v_add_f32 v%d, v%d, v%d" % (a, a, a + 2))
        e("v_add_f32 v%d, v%d, v%d" % (a + 1, a + 1, a + 3))
    for c in range(3):
        a = V_ACC + 4 * c
        e("v_permlane16_swap_b32 v%d, v%d" % (a, a + 1))
    e("s_lshr_b32 s%d, s%d, 2" % (S_T, S_I))
    e("v_mov_b32 v%d, s%d" % (V_T0, S_T))
    for c in range(3):
        a = V_ACC + 4 * c
        e("v_add_f32 v%d, v%d, v%d" % (a, a, a + 1))
        e("ds_write_b32 v%d, v%d offset:%d" % (V_DO, a, c * 256))
    lds_inc(L_CA - 4, V_T0, V_T1)
    e("v_add_u32 v%d, %d, v%d" % (V_DO, NW * ROWB, V_DO))
    for i in range(12):
        e("v_mov_b32 v%d, 0" % (V_ACC + i))
    if BC:
        e("s_cmp_lg_u32 s%d, 0" % S_BO)
        e("s_cbranch_scc1 L_vboost2")
        e.label("L_vend2")
    e("s_cmp_lg_u32 s%d, %d" % (S_I, NT))
    e("s_cbranch_scc1 L_vloop")
    if P["stamp"] == 5 and BC:
        e("s_or_b32 s%d, s%d, s%d" % (S_LDC, S_LDC, S_NBO))
    if P["stamp"] == 6:
        e("s_memrealtime s[%d:%d]" % (S_T + 2, S_T + 3))
        e("s_not_b32 s%d, s%d" % (S_T, S_ST))
        e("v_mov_b32 v%d, s%d" % (V_ACC, S_T))
        e("s_waitcnt lgkmcnt(0)")
        e("v_mov_b32 v%d, s%d" % (V_ACC + 1, S_T + 2))
        e("s_mov_b64 exec, 1")
        e("s_cmp_lg_u32 s%d, 0" % S_WAVE)
        e("s_cbranch_scc1 L_exit1")
        e("buffer_atomic_umax v%d, off, s[%d:%d], 0 offset:32" % (V_ACC, S_WS, S_WS + 3))
        e("buffer_atomic_umax v%d, off, s[%d:%d], 0 offset:36" % (V_ACC + 1, S_WS, S_WS + 3))
    elif P["stamp"]:
        e("s_memrealtime s[%d:%d]" % (S_T + 2, S_T + 3))
        e("s_getreg_b32 s%d, hwreg(HW_REG_XCC_ID)" % (S_T + 4))
        e("s_waitcnt lgkmcnt(0)")
        e("v_mov_b32 v%d, s%d" % (V_ACC + 0, S_ST))
        e("v_mov_b32 v%d, s%d" % (V_ACC + 1, S_T + 2))
        e("v_mov_b32 v%d, s%d" % (V_ACC + 2, S_T + 4))
        e("v_mov_b32 v%d, s%d" % (V_ACC + 3, S_LDC if P["stamp"] == 5 else S_DBG))
        e("s_mul_i32 s%d, s2, %d" % (S_T, NW))
        e("s_add_u32 s%d, s%d, s%d" % (S_T, S_T, S_WAVE))
        e("s_lshl_b32 s%d, s%d, 4" % (S_T, S_T))
        e("s_add_u32 s%d, s%d, 0x4000000" % (S_T, S_T))
        e("buffer_store_dwordx4 v[%d:%d], v%d, s[%d:%d], s%d offen" % (V_ACC, V_ACC + 3, V_Z, S_WS, S_WS + 3, S_T))
        if P["stamp"] == 5:
            e("v_and_b32 v%d, 63, v0" % V_T0)
            e("v_lshlrev_b32 v%d, 2, v%d" % (V_T0, V_T0))
            e("s_mov_b32 exec_hi, 0xffff")
            e("buffer_store_dword v%d, v%d, s[%d:%d], s%d offen offset:4" % (NVGPR, V_T0, S_WS, S_WS + 3, S_DBG + 2))
            e("s_mov_b32 exec_hi, -1")
            e("buffer_store_dword v%d, v%d, s[%d:%d], s%d offen offset:196" % (NVGPR + 1, V_T0, S_WS, S_WS + 3, S_DBG + 2))
    e.lines.append("L_exit1:")
    e("s_endpgm")

    if P["td"] or P["at"]:
        e.label("L_deep")
        e.vm = list(steady)
        for k in range(1, P["tdm"] if NG == 3 else NG):
            issue_group(k, "V")
        deep = list(e.vm)
        e.lines.append(".p2align 6")
        e.label("L_dloop")
        body_deep(P["tdm"])
        assert e.vm == deep, (e.vm, deep)
        e("s_cmp_lg_u32 s%d, %d" % (S_I, NT))
        e("s_cbranch_scc1 L_dloop")
        e("s_branch L_vend")

    if BC:
        e.label("L_kboost")
        e("s_cmp_eq_u32 s%d, %d" % (S_I, NT - 1))
        e("s_cbranch_scc1 L_kchk2")
        e.vm = list(steady)
        body_boost("K")
        assert e.vm == steady, (e.vm, steady)
        e("s_branch L_kchk")
        e.label("L_vboost")
        e("s_and_b32 s%d, s%d, 15" % (S_T, S_I))
        e("s_cbranch_scc0 L_vend")
        e.label("L_vboost2")
        e("s_cmp_eq_u32 s%d, %d" % (S_I, NT))
        e("s_cbranch_scc1 L_vend2")
        body_boost("V")
        assert e.vm == steady, (e.vm, steady)
        e("s_branch L_vchk")

    def pace_events(kind, x):
        e("s_bitcmp1_b64 s[%d:%d], s%d" % (S_MP, S_MP + 1, S_I))
        e("s_cbranch_scc0 L_pa%s%s" % (kind, x))
        e("s_memrealtime s[%d:%d]" % (S_TW, S_TW + 1))
        e("s_mov_b32 s%d, s%d" % (S_BP, S_BO))
        lds_inc(L_TC, V_Z, V_T1)
        e.label("L_pa%s%s" % (kind, x))
        e("s_bitcmp1_b64 s[%d:%d], s%d" % (S_MG, S_MG + 1, S_I))
        e("s_cbranch_scc0 L_pb%s%s" % (kind, x))
        lds_inc(L_TC, V_Z, V_T1)
        e.label("L_pb%s%s" % (kind, x))
        e("s_bitcmp1_b64 s[%d:%d], s%d" % (S_MR, S_MR + 1, S_I))
        e("s_cbranch_scc0 L_pc%s%s" % (kind, x))
        e("v_mov_b32 v%d, s%d" % (V_T1, S_CPA))
        e("ds_read_b32 v%d, v%d" % (V_T0, V_T1))
        lds_inc(L_TC, V_Z, V_T1)
        e("s_add_u32 s%d, s%d, 4" % (S_CPA, S_CPA))
        e("s_waitcnt lgkmcnt(0)")
        e("v_readfirstlane_b32 s%d, v%d" % (S_T, V_T0))
        e("s_cmp_eq_u32 s%d, 0" % S_T)
        e("s_cbranch_scc1 L_pc%s%s" % (kind, x))
        e("s_sub_u32 s%d, s%d, s%d" % (S_T, S_TW, S_T))
        e("s_max_i32 s%d, s%d, -4096" % (S_T, S_T))
        e("s_min_i32 s%d, s%d, 4096" % (S_T, S_T))
        if kind == "V":
            e("s_cmp_eq_u32 s%d, %d" % (S_I, P["te"]))
            e("s_cbranch_scc0 L_pd%s" % x)
            e("s_mul_i32 s%d, s%d, %d" % (S_T, S_T, P["ka"]))
            e("s_add_u32 s%d, s%d, %d" % (S_T, S_T, P["kb"]))
            e("s_ashr_i32 s%d, s%d, 10" % (S_T, S_T))
            e("s_max_i32 s%d, s%d, %d" % (S_T, S_T, P["dmin"]))
            e("s_min_i32 s%d, s%d, %d" % (S_T, S_T, min(P["dmax"], NT - P["te"])))
            e("s_sub_u32 s%d, %d, s%d" % (S_TD, NT, S_T))
            e("s_cmp_eq_u32 s%d, %d" % (S_TD, NT))
            e("s_cselect_b32 s%d, 255, s%d" % (S_TD, S_TD))
            e("s_mov_b32 s%d, 0" % S_BO)
            if P["stamp"] == 5:
                e("s_mov_b32 s%d, s%d" % (S_LDC, S_TD))
            e("s_branch L_pc%s%s" % (kind, x))
            e.label("L_pd%s" % x)
        e("s_mul_i32 s%d, s%d, %d" % (S_T, S_T, P["ka2"]))
        e("s_add_u32 s%d, s%d, %d" % (S_T, S_T, P["kb2"]))
        e("s_ashr_i32 s%d, s%d, 10" % (S_T, S_T))
        e("s_sub_u32 s%d, s%d, s%d" % (S_T, S_T, S_BP))
        e("s_add_u32 s%d, s%d, s%d" % (S_T, S_T, S_BO))
        e("s_max_i32 s%d, s%d, 0" % (S_T, S_T))
        e("s_min_i32 s%d, s%d, %d" % (S_BO, S_T, P["bmax"]))
        e.label("L_pc%s%s" % (kind, x))
        e("s_bitcmp1_b64 s[%d:%d], s%d" % (S_MO, S_MO + 1, S_I))
        e("s_cbranch_scc0 L_evret%s%s" % (kind, x))

    for x in (("", "B") if BC else ("",)):
        e.label("L_evK" + x)
        if BC:
            pace_events("K", x)
        e("s_and_b32 s%d, s%d, 15" % (S_T, S_I))
        e("s_cbranch_scc0 L_evK2" + x)
        e("s_cmp_eq_u32 s%d, %d" % (S_I, N0))
        e("s_cbranch_scc1 L_evK2" + x)
        e("s_lshr_b32 s%d, s%d, 2" % (S_T + 1, S_I))
        e("s_andn2_b32 s%d, s%d, 3" % (S_T + 1, S_T + 1))
        e("s_add_u32 s%d, s%d, %d" % (S_T + 1, S_T + 1, L_CF - 4))
        e("s_cmp_eq_u32 s%d, 1" % S_T)
        e("s_cselect_b32 s%d, s%d, %d" % (S_T, S_T + 1, L_EV + 4))
        e("s_cselect_b32 s%d, %d, 0" % (S_T + 1, PHI - 768))
        e("v_add_u32 v%d, s%d, v%d" % (V_LB0, S_T + 1, V_LB0))
        e("s_cmp_eq_u32 s%d, %d" % (S_I, TRG1))
        e("s_cselect_b32 s%d, %d, s%d" % (S_T, L_EV, S_T))
        e("v_mov_b32 v%d, s%d" % (V_T0, S_T))
        lds_inc(0, V_T0, V_T1)
        e("s_branch L_evretK" + x)
        e.label("L_evK2" + x)
        if P["stamp"] == 2:
            e("s_cmp_eq_u32 s%d, %d" % (S_I, N0))
            e("s_cbranch_scc0 L_ns2")
            e("s_memrealtime s[%d:%d]" % (S_DBG, S_DBG + 1))
            e.label("L_ns2")
        get_table("K", "tk" + x)
        if P["stamp"] == 3:
            e("s_cmp_eq_u32 s%d, %d" % (S_I, N0))
            e("s_cbranch_scc0 L_evretK")
            e("s_memrealtime s[%d:%d]" % (S_DBG, S_DBG + 1))
        e("s_branch L_evretK" + x)
        e.label("L_evV" + x)
        if BC:
            pace_events("V", x)
        elif P["at"]:
            e("s_and_b32 s%d, s%d, 15" % (S_T, S_I))
            e("s_cbranch_scc0 L_evV2")
            e("s_cmp_eq_u32 s%d, %d" % (S_I, P["te"]))
            e("s_cbranch_scc1 L_evV3")
            lds_inc(L_TC, V_Z, V_T1)
            e("s_branch L_evretV")
            e.label("L_evV3")
            e("ds_read_b32 v%d, v%d offset:%d" % (V_T0, V_Z, L_TD))
            e("s_waitcnt lgkmcnt(0)")
            e("v_readfirstlane_b32 s%d, v%d" % (S_T, V_T0))
            e("s_cmp_eq_u32 s%d, 0" % S_T)
            e("s_cselect_b32 s%d, s%d, s%d" % (S_TD, S_TD, S_T))
            if P["stamp"] == 5:
                e("s_mov_b32 s%d, s%d" % (S_LDC, S_T))
            e("s_branch L_evretV")
            e.label("L_evV2")
        get_table("V", "tv2" + x)
        e("s_branch L_evretV" + x)

    PG = S_G; PM = S_M
    PNB = 5; PP = 6; PBK = 7
    PB = 8; PWS = 12; PDB = 16
    PO = 20; PFL = 21; PBASE = 22; PPR = 90
    PD = 24
    POF = 32
    PT = 40
    PMN = 44; PJ = 45; PRN = 46; PNR = 47
    PE = 48
    PRB = 56; PACC = 58; PGL = 59; PSP = 60; PPH = 61; PSG = 62; PG0 = 63
    PDC = 84
    PS2 = 92; PS3 = 96
    HL = 1; HZ = 2; HW = 3; HA = 4; HB_ = 5; HC = 6; HD = 7; HK = 8; HV = 9; HE = 10; HF = 11; HR = 12; HG = 13
    HN = 14; HT2 = 15
    HX = 16
    BIAS = 65536
    e.wr = {}; e.tr = {}
    e.label("L_helper")
    e("s_sub_u32 s%d, s%d, %d" % (PP, S_WAVE, NW))
    e("s_mov_b32 s%d, s%d" % (PNB, S_NB))
    e("v_mov_b32 v%d, v%d" % (HL, V_T1))
    e("v_mov_b32 v%d, 0" % HZ)
    e("s_mul_i32 s%d, s%d, %d" % (PGL, PG, 8 * FSTR))
    e("s_add_u32 s%d, s%d, %d" % (PGL, PGL, WS_G))
    if EB:
        e("s_cmp_lg_u32 s%d, 0" % PP)
        e("s_cbranch_scc1 L_hbar")
        e("v_lshlrev_b32 v%d, 2, v%d" % (HB_, HL))
        e("ds_write_b32 v%d, v%d" % (HB_, HZ))
        e("s_waitcnt lgkmcnt(0)")
        e.label("L_hbar")
        e("s_barrier")
    if BC:
        e("s_cmp_eq_u32 s%d, 3" % PP)
        e("s_cbranch_scc1 L_h3")
    e("s_mul_i32 s%d, s%d, 10" % (PE, PP))
    e("s_sub_u32 s%d, s%d, 7" % (PE, PE))
    e("s_cmp_lt_i32 s%d, s%d" % (PG, PE))
    e("s_cselect_b32 s%d, 1, 0" % PPR)
    e("s_cbranch_scc0 L_noprobe1")
    e("s_max_u32 s%d, s%d, 1" % (PBK, PG))
    e("s_sub_u32 s%d, s%d, 1" % (PBK, PBK))
    e("s_lshr_b32 s%d, s%d, 1" % (PBK, PBK))
    e("s_lshl_b32 s%d, s%d, 1" % (PE + 1, PG))
    e("s_add_u32 s%d, s%d, s%d" % (PE + 1, PE + 1, PP))
    e("s_sub_u32 s%d, s%d, 1" % (PE + 1, PE + 1))
    e("s_bitcmp1_b32 s%d, 0" % PG)
    e("s_cselect_b32 s%d, 1, 4" % PE)
    e("s_cmp_eq_u32 s%d, 0" % PBK)
    e("s_cselect_b32 s%d, s%d, s%d" % (PE + 1, PE + 1, PE))
    e("s_and_b32 s%d, s%d, 1" % (PE, PE + 1))
    e("s_mul_i32 s%d, s%d, 20" % (PO, PE + 1))
    e("s_add_u32 s%d, s%d, s%d" % (PO, PO, PE))
    e("s_add_u32 s%d, s%d, 2" % (PO, PO))
    e("s_lshl_b32 s%d, s%d, 21" % (PO, PO))
    e("s_xor_b32 s%d, s%d, s%d" % (PFL, PM, PP))
    e("s_and_b32 s%d, s%d, 1" % (PFL, PFL))
    e("s_lshr_b32 s%d, s%d, 2" % (PE + 1, PM))
    e("s_xor_b32 s%d, s%d, s%d" % (PE, PE, PE + 1))
    e("s_xor_b32 s%d, s%d, s%d" % (PE, PE, PFL))
    e("s_lshl_b32 s%d, s%d, 13" % (PE, PE))
    e("s_lshl_b32 s%d, s%d, 14" % (PE + 1, PP))
    e("s_and_b32 s%d, s%d, 0x4000" % (PE + 1, PE + 1))
    e("s_or_b32 s%d, s%d, s%d" % (PE, PE, PE + 1))
    for u in range(8):
        e("s_xor_b32 s%d, s%d, 0x%x" % (POF + u, PE, ((u & 1) << 13) | (((u >> 1) & 1) << 12) | ((u >> 2) << 14)))
    e("v_and_b32 v%d, 7, v%d" % (HW, HL))
    e("v_lshlrev_b32 v%d, 12, v%d" % (HW, HW))
    e("s_lshl_b32 s%d, s%d, 8" % (PE, PM))
    e("v_add_u32 v%d, s%d, v%d" % (HW, PE, HW))
    e("s_mov_b32 s%d, %d" % (PB + 2, H * HEADB))
    e("s_mov_b32 s%d, 0x00020000" % (PB + 3))
    e("s_cmp_ge_u32 s%d, 3" % PBK)
    e("s_cselect_b32 s%d, 3, 0" % PE)
    e("s_sub_u32 s%d, s%d, s%d" % (PE, PBK, PE))
    e("s_lshl_b32 s%d, s%d, 28" % (PE, PE))
    e("s_add_u32 s%d, s%d, s%d" % (PO, PO, PE))
    e("s_cmp_ge_u32 s%d, 3" % PBK)
    e("s_waitcnt lgkmcnt(0)")
    e("s_cselect_b32 s%d, s68, s66" % PB)
    e("s_cselect_b32 s%d, s69, s67" % (PBASE + 1))
    e("s_and_b32 s%d, s%d, 0xffff" % (PB + 1, PBASE + 1))
    e("s_mov_b64 exec, 0xff")
    e("buffer_load_dword v%d, v%d, s[%d:%d], s%d offen" % (HA, HW, PB, PB + 3, PO))
    e("s_mov_b64 exec, -1")
    e("s_add_u32 s%d, s%d, s%d" % (PBASE, PB, PO))
    e("s_addc_u32 s%d, s%d, 0" % (PBASE + 1, PBASE + 1))
    e("s_lshl_b32 s%d, s%d, 8" % (PE, PM))
    e("s_add_u32 s%d, s%d, 128" % (PE, PE))
    e("s_load_dword s%d, s[%d:%d], s%d" % (PJ, PBASE, PBASE + 1, PE))
    e.label("L_noprobe1")
    e("s_waitcnt lgkmcnt(0)")
    srd(PWS, 82, WS_SIZE)
    if P["wo"]:
        e("s_add_u32 s%d, s%d, %d" % (PWS, PWS, P["wo"] << 20))
        e("s_addc_u32 s%d, s%d, 0" % (PWS + 1, PWS + 1))
    srd(PDB, 80, 256)
    if not EB:
        e("s_cmp_lg_u32 s%d, 0" % PP)
        e("s_cbranch_scc1 L_hbar")
        e("v_lshlrev_b32 v%d, 2, v%d" % (HB_, HL))
        e("ds_write_b32 v%d, v%d" % (HB_, HZ))
        e("s_waitcnt lgkmcnt(0)")
        e.label("L_hbar")
        e("s_barrier")
    if P["hs"]:
        e("s_mov_b32 s%d, 0" % (PD + 4))
    e("s_cmp_eq_u32 s%d, 0" % PPR)
    e("s_cbranch_scc1 L_role")
    e("s_mov_b32 s%d, 1" % PRN)
    e("s_mov_b32 s%d, 0" % PACC)
    e("s_cmp_eq_u32 s%d, 0" % PBK)
    e("s_cselect_b32 s%d, %d, %d" % (PNR, P["nr0"], NR))
    e("s_waitcnt vmcnt(0)")
    e.label("L_round")
    e("s_add_u32 s%d, s%d, s%d" % (PE, PM, PRN))
    e("s_and_b32 s%d, s%d, 7" % (PE, PE))
    e("s_lshl_b32 s%d, s%d, 8" % (PE, PE))
    e("s_add_u32 s%d, s%d, s%d" % (PRB, PBASE, PE))
    e("s_addc_u32 s%d, s%d, 0" % (PRB + 1, PBASE + 1))
    e("s_mov_b32 s%d, -1" % PMN)
    e("s_memtime s[%d:%d]" % (PT, PT + 1))
    e("s_waitcnt lgkmcnt(0)")
    for u in range(8):
        a = PT + 2 * (u & 1); b = PT + 2 * ((u + 1) & 1)
        e("s_load_dword s%d, s[%d:%d], s%d" % (PJ, PRB, PRB + 1, POF + u))
        e("s_waitcnt lgkmcnt(0)")
        e("s_memtime s[%d:%d]" % (b, b + 1))
        e("s_waitcnt lgkmcnt(0)")
        e("s_sub_u32 s%d, s%d, s%d" % (PD + u, b, a))
        if u + 1 == P["ns0"] and u < 7:
            for k in range(u + 1, 8):
                e("s_mov_b32 s%d, -1" % (PD + k))
            e("s_cmp_eq_u32 s%d, 0" % PBK)
            e("s_cbranch_scc1 L_few")
    e.label("L_few")
    for u in range(8):
        e("s_min_u32 s%d, s%d, %d" % (PD + u, PD + u, P["clip"]))
        e("s_min_u32 s%d, s%d, s%d" % (PMN, PMN, PD + u))
    e("s_cmp_lt_u32 s%d, %d" % (PMN, P["l2t"]))
    e("s_cbranch_scc1 L_skip")
    for u in range(8):
        e("s_%s_u32 s%d, s%d, s%d" % ("add" if u & 1 else "sub", PACC, PACC, PD + u))
    e.label("L_skip")
    e("s_add_u32 s%d, s%d, 1" % (PRN, PRN))
    e("s_cmp_le_u32 s%d, s%d" % (PRN, PNR))
    e("s_cbranch_scc1 L_round")
    e("s_sub_u32 s%d, 0, s%d" % (PE, PACC))
    e("s_cmp_eq_u32 s%d, 0" % PFL)
    e("s_cselect_b32 s%d, s%d, s%d" % (PACC, PACC, PE))
    e("s_add_u32 s%d, s%d, 0x%x" % (PACC, PACC, BIAS + (1 << 24)))
    e("v_mov_b32 v%d, s%d" % (HA, PACC))
    e("s_mov_b64 exec, 1")
    e("s_lshl_b32 s%d, s%d, 2" % (PE, PBK))
    e("s_add_u32 s%d, s%d, 124" % (PE, PE))
    e("s_cmp_eq_u32 s%d, 0" % PBK)
    e("s_cbranch_scc0 L_post")
    e("ds_add_rtn_u32 v%d, v%d, v%d offset:%d" % (HB_, HZ, HA, L_PC))
    e("s_mov_b32 s%d, 0" % PE)
    e("s_waitcnt lgkmcnt(0)")
    e("v_add_u32 v%d, v%d, v%d" % (HA, HA, HB_))
    e("v_cmp_ne_u32 vcc, 0, v%d" % HB_)
    e("s_and_b64 exec, exec, vcc")
    if P["vw"]:
        e("buffer_atomic_add v%d, off, s[%d:%d], s%d" % (HA, PDB, PDB + 3, PE))
        e("s_branch L_posted")
        e.label("L_post")
        lds_wait("vw", HZ, HE, PE, L_DEC, "nz", PSP)
        e("s_mul_i32 s%d, s%d, %d" % (PE, PG, FSTR))
        e("s_add_u32 s%d, s%d, %d" % (PE, PE, WS_G + 253 * FSTR))
        e("buffer_atomic_add v%d, off, s[%d:%d], s%d" % (HA, PWS, PWS + 3, PE))
        e.label("L_posted")
    else:
        e.label("L_post")
        e("buffer_atomic_add v%d, off, s[%d:%d], s%d" % (HA, PDB, PDB + 3, PE))
    e("s_mov_b64 exec, -1")
    if P["hs"]:
        e("s_memrealtime s[%d:%d]" % (PD + 4, PD + 5))
    e.label("L_role")
    e("s_cmp_eq_u32 s%d, 0" % PP)
    e("s_cbranch_scc1 L_h0")
    e("s_cmp_eq_u32 s%d, 2" % PP)
    e("s_cbranch_scc1 L_h2")

    def wave_reduce(regs, op, tmp):
        for kk in (8, 4, 2, 1):
            for r in regs:
                e("%s_dpp v%d, v%d, v%d row_ror:%d row_mask:0xf bank_mask:0xf" % (op, r, r, r, kk))
        for sw in ("v_permlane32_swap_b32", "v_permlane16_swap_b32"):
            for r, t in zip(regs, tmp):
                e("v_mov_b32 v%d, v%d" % (t, r))
            for r, t in zip(regs, tmp):
                e("%s v%d, v%d" % (sw, r, t))
            for r, t in zip(regs, tmp):
                e("%s v%d, v%d, v%d" % (op, r, r, t))

    def decode(tag, nl, off, cnt, rounds, dst, b0):
        vw = b0 and P["vw"]
        lds_wait("e" + tag, HZ, HE, PE, L_EV + (4 if b0 else 0), "nz" if b0 else str(P["tw"]), PSP)
        if vw:
            e("v_mul_u32_u24 v%d, %d, v%d" % (HD, FSTR, HL))
            e("s_mov_b32 s%d, %d" % (PE, WS_G + 256 * FSTR))
            e("v_lshrrev_b32 v%d, 1, v%d" % (HB_, HB_))
        e("s_mov_b64 exec, 0x%x" % ((1 << (2 * nl if vw else nl)) - 1))
        e("s_mov_b32 s%d, 0x40000" % PSP)
        if P["hs"] and not b0:
            e("s_memrealtime s[%d:%d]" % (PD, PD + 1))
        if P["l2p"] and not b0:
            e("buffer_load_dword v%d, v%d, s[%d:%d], 0 offen offset:%d" % (HA, HB_, PDB, PDB + 3, off))
            e("s_branch L_pollw" + tag)
        if not P["xkp"] & 4:
            e.label("L_poll" + tag)
            if vw:
                e("buffer_load_dword v%d, v%d, s[%d:%d], s%d offen sc1" % (HA, HD, PWS, PWS + 3, PE))
            else:
                e("buffer_load_dword v%d, v%d, s[%d:%d], 0 offen offset:%d sc1" % (HA, HB_, PDB, PDB + 3, off))
            e("s_sub_u32 s%d, s%d, 1" % (PSP, PSP))
            e("s_cbranch_scc1 L_exit1")
            e.lines.append("L_pollw%s:" % tag)
            e("s_waitcnt vmcnt(0)")
            e("v_lshrrev_b32 v%d, 24, v%d" % (HC, HA))
            e("v_cmp_ne_u32 vcc, %d, v%d" % (cnt // 2 if vw else cnt, HC))
            e("s_cbranch_vccnz L_poll" + tag)
        if vw:
            e("v_add_u32_dpp v%d, v%d, v%d quad_perm:[1,0,3,2] row_mask:0xf bank_mask:0xf" % (HA, HA, HA))
            e("s_mov_b64 exec, 0x%x" % (0x5555 & ((1 << (2 * nl)) - 1)))
        th = P["th"] * cnt * rounds * (8 if b0 else P["ns0"]) // 8
        e("v_and_b32 v%d, 0xffffff, v%d" % (HA, HA))
        e("v_subrev_u32 v%d, %d, v%d" % (HA, cnt * BIAS, HA))
        if P["stamp"] == 6 and b0:
            e("s_cmp_lg_u32 s2, 100")
            e("s_cbranch_scc1 L_nodbg")
            e("buffer_store_dword v%d, v%d, s[%d:%d], 0 offen offset:4" % (HA, HB_, PDB, PDB + 3))
            e.label("L_nodbg")
        e("v_lshrrev_b32 v%d, 30, v%d" % (HC, HA))
        e("v_and_b32 v%d, 2, v%d" % (HC, HC))
        e("v_add_u32 v%d, %d, v%d" % (HA, th, HA))
        e("v_cmp_gt_u32 vcc, %d, v%d" % (2 * th, HA))
        e("v_cndmask_b32 v%d, v%d, 8, vcc" % (HC, HC))
        if P["force"] == 1:
            e("v_mov_b32 v%d, 8" % HC)
        if P["force"] >= 2:
            e("s_mov_b32 s%d, 0x7000000" % PE)
            e("s_load_dwordx4 s[%d:%d], s[82:83], s%d" % (PS2, PS2 + 3, PE))
            e("s_waitcnt lgkmcnt(0)")
            for l in range(nl):
                b = b0 + l
                e("s_lshr_b64 s[%d:%d], s[%d:%d], %d" % (PE, PE + 1, PS2 + 2 * (b // 3), PS2 + 2 * (b // 3) + 1, 16 * (b % 3)))
                e("s_and_b32 s%d, s%d, %d" % (PE, PE, P["ob"]))
                e("s_xor_b32 s%d, s%d, %d" % (PE, PE, P["ox"]))
                e("v_writelane_b32 v%d, s%d, %d" % (HC, PE, 2 * l if vw else l))
        e("v_or_b32 v%d, 16, v%d" % (HC, HC))
        if P["xv"] and vw:
            e("v_lshlrev_b32 v%d, 1, v%d" % (HA, HL))
            e("v_lshrrev_b32 v%d, v%d, %d" % (HA, HA, 0) if False else "v_mov_b32 v%d, 0x%x" % (HD, int(str(P["xv"])[::-1], 16)))
            e("v_lshrrev_b32 v%d, v%d, v%d" % (HA, HA, HD))
            e("v_and_b32 v%d, 7, v%d" % (HA, HA))
            e("v_xor_b32 v%d, v%d, v%d" % (HC, HC, HA))
        e("ds_write_b32 v%d, v%d offset:%d" % (HB_, HC, dst))
        if P["hs"] and not b0:
            e("s_memrealtime s[%d:%d]" % (PD + 2, PD + 3))
            srd(PS2, 82, 0x8000000)
            e("s_waitcnt lgkmcnt(0)")
            e("v_mov_b32 v%d, s%d" % (HX, PD))
            e("v_mov_b32 v%d, s%d" % (HX + 1, PD + 2))
            e("v_mov_b32 v%d, s%d" % (HX + 2, PSP))
            e("v_mov_b32 v%d, s%d" % (HX + 3, PD + 4))
            e("s_lshl_b32 s%d, s2, 4" % PE)
            e("s_add_u32 s%d, s%d, 0x4008000" % (PE, PE))
            e("buffer_store_dwordx4 v[%d:%d], off, s[%d:%d], s%d" % (HX, HX + 3, PS2, PS2 + 3, PE))
        e("s_mov_b64 exec, -1")

    e("s_cmp_lg_u32 s2, %d" % (NWG - 1))
    e("s_cbranch_scc1 L_nolead")
    e("v_mul_u32_u24 v%d, %d, v%d" % (HB_, FSTR, HL))
    e("v_mov_b32 v%d, 0" % (HZ + 1))
    for k in range(5 if P["vw"] else 4):
        e("s_mov_b32 s%d, %d" % (PE + k, WS_G + k * 64 * FSTR))
        if k == 4:
            e("s_mov_b64 exec, 0x3ff")
        e("buffer_store_dwordx2 v[%d:%d], v%d, s[%d:%d], s%d offen sc1" % (HZ, HZ + 1, HB_, PWS, PWS + 3, PE + k))
    e("v_mov_b32 v%d, 0x%x" % (HA, BIAS + (1 << 24)))
    e("s_mov_b64 exec, 1")
    e("s_waitcnt vmcnt(0)")
    e("buffer_atomic_add v%d, off, s[%d:%d], 0" % (HA, PDB, PDB + 3))
    e("s_mov_b64 exec, -1")
    e.label("L_nolead")
    e("v_lshlrev_b32 v%d, 2, v%d" % (HB_, HL))
    decode("a", 1, 0, 49, P["nr0"], L_DEC, 0)
    decode("b", 5, 128, 16, NR, L_DEC + 4, 1)
    if P["lx"]:
        e("s_mul_i32 s%d, s%d, 43" % (PE, PG))
        e("s_lshr_b32 s%d, s%d, 8" % (PE, PE))
        e("s_mul_i32 s%d, s%d, 6" % (PE + 1, PE))
        e("s_sub_u32 s%d, s%d, s%d" % (PBK, PG, PE + 1))
        e("s_cmp_ge_u32 s%d, 3" % PBK)
        e("s_cselect_b32 s%d, s68, s66" % PB)
        e("s_cselect_b32 s%d, s69, s67" % (PBASE + 1))
        e("s_cselect_b32 s%d, 3, 0" % (PE + 1))
        e("s_sub_u32 s%d, s%d, s%d" % (PE + 1, PBK, PE + 1))
        e("s_lshl_b32 s%d, s%d, 28" % (PO, PE + 1))
        e("s_mul_i32 s%d, s%d, %d" % (PE, PE, 21 << 21))
        e("s_add_u32 s%d, s%d, s%d" % (PO, PO, PE))
        e("s_add_u32 s%d, s%d, %d" % (PO, PO, (7 << 21) + (1 << 20)))
        e("s_and_b32 s%d, s%d, 0xffff" % (PB + 1, PBASE + 1))
        e("s_mov_b32 s%d, %d" % (PB + 2, H * HEADB))
        e("s_mov_b32 s%d, 0x00020000" % (PB + 3))
        e("s_add_u32 s%d, s%d, %d" % (PE, PM, P["lx"]))
        e("s_and_b32 s%d, s%d, 7" % (PE, PE))
        e("s_lshl_b32 s%d, s%d, 9" % (PE, PE))
        e("v_lshlrev_b32 v%d, 12, v%d" % (HW, HL))
        e("v_add_u32 v%d, s%d, v%d" % (HW, PE, HW))
        for j in range(3):
            e("buffer_load_dword v%d, v%d, s[%d:%d], s%d offen offset:%d" % (HX + j, HW, PB, PB + 3, PO, j * 128))
        e("s_add_u32 s%d, s%d, s%d" % (PBASE, PB, PO))
        e("s_addc_u32 s%d, s%d, 0" % (PBASE + 1, PBASE + 1))
        e("s_lshl_b32 s%d, s%d, 9" % (PE, PM))
        e("s_add_u32 s%d, s%d, s%d" % (PBASE, PBASE, PE))
        e("s_addc_u32 s%d, s%d, 0" % (PBASE + 1, PBASE + 1))
        e("s_load_dword s%d, s[%d:%d], 384" % (PJ, PBASE, PBASE + 1))
        e("s_load_dword s%d, s[%d:%d], 0x20180" % (PJ, PBASE, PBASE + 1))
        e("s_waitcnt vmcnt(0) lgkmcnt(0)")
        lds_wait("lx", HZ, HE, PE, L_EV + 4, "8", PSP)
        for j in range(3):
            e("s_mov_b32 m0, 0")
            e("s_mov_b32 s%d, %d" % (PE, j * 128))
            e.label("L_lx%d" % j)
            e("s_memtime s[%d:%d]" % (PT, PT + 1))
            e("s_waitcnt lgkmcnt(0)")
            e("s_load_dword s%d, s[%d:%d], s%d" % (PJ, PBASE, PBASE + 1, PE))
            e("s_waitcnt lgkmcnt(0)")
            e("s_memtime s[%d:%d]" % (PT + 2, PT + 3))
            e("s_waitcnt lgkmcnt(0)")
            e("s_sub_u32 s%d, s%d, s%d" % (PT, PT + 2, PT))
            e("v_writelane_b32 v%d, s%d, m0" % (HX + j, PT))
            e("s_add_u32 s%d, s%d, 4096" % (PE, PE))
            e("s_add_u32 m0, m0, 1")
            e("s_cmp_lt_u32 m0, 64")
            e("s_cbranch_scc1 L_lx%d" % j)
        e("s_memrealtime s[%d:%d]" % (PT, PT + 1))
        e("s_waitcnt lgkmcnt(0)")
        e("v_mov_b32 v%d, s%d" % (HX + 3, PT))
        srd(PB, 82, 0x8000000)
        e("s_lshl_b32 s%d, s2, 10" % PE)
        e("s_add_u32 s%d, s%d, 0x4090000" % (PE, PE))
        e("v_lshlrev_b32 v%d, 4, v%d" % (HW, HL))
        e("buffer_store_dwordx4 v[%d:%d], v%d, s[%d:%d], s%d offen" % (HX, HX + 3, HW, PB, PB + 3, PE))
    if FU:
        CSC = 24; CMK = 56; CRB = 57; CO = 92
        e("s_and_b32 s%d, s%d, 7" % (PE, PG))
        e("s_cmp_lg_u32 s%d, s%d" % (PE, PM))
        e("s_cbranch_scc1 L_exit1")
        e("s_mul_i32 s%d, s%d, 3" % (PE, PG))
        e("s_add_u32 s%d, s%d, 2" % (PE, PE))
        e("s_lshr_b32 s%d, s%d, 5" % (PE, PE))
        e("s_lshl_b32 s%d, s%d, 2" % (PE, PE))
        e("v_mov_b32 v%d, s%d" % (HW, PE))
        e("s_mul_i32 s%d, s%d, 24" % (CRB, PG))
        e("v_add_u32 v%d, s%d, v%d" % (HG, CRB, HL))
        e("v_and_b32 v%d, 255, v%d" % (HR, HG))
        e("v_mul_u32_u24 v%d, %d, v%d" % (HR, FSTR, HR))
        e("v_lshlrev_b32 v%d, 6, v%d" % (HG, HG))
        e("s_mov_b32 s%d, %d" % (PE + 1, WS_G))
        e("s_mov_b32 s%d, %d" % (PE + 2, WS_ML))
        e("v_mov_b32 v%d, 0x%08x" % (HA, BIGNEG))
        e("v_mov_b32 v%d, 0" % HB_)
        lds_wait("cg", HZ, HE, PE, L_GO, "nz", PSP, HW)
        for tag, ld, chk in (("f", "buffer_load_dword v%d, v%d, s[%d:%d], s%d offen sc1" % (HD, HR, PWS, PWS + 3, PE + 1), HD),
                             ("m", "buffer_load_dwordx4 v[%d:%d], v%d, s[%d:%d], s%d offen sc1" % (HA, HD, HG, PWS, PWS + 3, PE + 2), HD)):
            e("s_mov_b64 exec, 0xffffff")
            e("s_mov_b32 s%d, 0x40000" % PSP)
            e.label("L_cp" + tag)
            e(ld)
            e("s_sub_u32 s%d, s%d, 1" % (PSP, PSP))
            e("s_cbranch_scc1 L_exit1")
            e("s_waitcnt vmcnt(0)")
            e("v_cmpx_eq_u32 vcc, 0, v%d" % chk)
            e("s_cbranch_execnz L_cp" + tag)
        e("s_mov_b64 exec, -1")
        e("v_mov_b32 v%d, v%d" % (HC, HA))
        wave_reduce([HC], "v_max_f32", [HD])
        e("v_sub_f32 v%d, v%d, v%d" % (HA, HA, HC))
        e("v_exp_f32 v%d, v%d" % (HA, HA))
        e("v_mul_f32 v%d, v%d, v%d" % (HB_, HB_, HA))
        wave_reduce([HB_], "v_add_f32", [HD])
        e("v_rcp_f32 v%d, v%d" % (HB_, HB_))
        e("v_mul_f32 v%d, v%d, v%d" % (HA, HA, HB_))
        for r in range(24):
            e("v_readlane_b32 s%d, v%d, %d" % (CSC + r, HA, r))
        srd(CO, 78, H * DH * 2)
        e("s_lshl_b32 s%d, s%d, 10" % (CRB, CRB))
        e("v_lshlrev_b32 v%d, 4, v%d" % (HG, HL))
        e("v_add_u32 v%d, s%d, v%d" % (HG, CRB, HG))
        for k in range(1, 6):
            e("s_mov_b32 s%d, %d" % (PE + k, 4096 * k))
        for r in (HA, HB_, HC):
            e("v_mov_b32 v%d, 0" % r)
        e("s_mov_b32 s%d, 0xffffff" % CMK)
        e("v_lshlrev_b32 v%d, 1, v%d" % (HR, HL))
        e("s_mul_i32 s%d, s%d, %d" % (CRB, PG, DH * 2))
        lds_wait("cc", HZ, HE, PE, L_CA, "%d" % P["cw"], PSP, HW)
        e("s_mov_b32 s%d, 0x40000" % PSP)
        e.label("L_cr")
        for r in range(24):
            e("s_bitcmp0_b32 s%d, %d" % (CMK, r))
            e("s_cbranch_scc1 L_cl%d" % r)
            e("buffer_load_dwordx4 v[%d:%d], v%d, s[%d:%d], %s offen offset:%d sc1" %
              (HX + 4 * r, HX + 4 * r + 3, HG, PWS, PWS + 3, "s%d" % (PE + r // 4) if r >= 4 else "0", (r % 4) * 1024))
            e.lines.append("L_cl%d:" % r)
        e("s_sub_u32 s%d, s%d, 1" % (PSP, PSP))
        e("s_cbranch_scc1 L_exit1")
        e("s_waitcnt vmcnt(0)")
        for r in range(24):
            e("s_bitcmp0_b32 s%d, %d" % (CMK, r))
            e("s_cbranch_scc1 L_cv%d" % r)
            e("v_cmp_eq_u32 vcc, 0, v%d" % (HX + 4 * r + 3))
            e("s_cbranch_vccnz L_cv%d" % r)
            for k, a_ in enumerate((HA, HB_, HC)):
                e("v_fmac_f32 v%d, s%d, v%d" % (a_, CSC + r, HX + 4 * r + k))
            e("s_bitset0_b32 s%d, %d" % (CMK, r))
            e.lines.append("L_cv%d:" % r)
        e("s_cmp_lg_u32 s%d, 0" % CMK)
        e("s_cbranch_scc1 L_cr")
        for k, a_ in enumerate((HA, HB_, HC)):
            e("v_cvt_pk_bf16_f32 v%d, v%d, v%d" % (a_, a_, a_))
            e("buffer_store_short v%d, v%d, s[%d:%d], s%d offen offset:%d" % (a_, HR, CO, CO + 3, CRB, k * 128))
        if P["stamp"] == 5:
            e("s_memrealtime s[%d:%d]" % (PT, PT + 1))
            e("s_waitcnt vmcnt(0)")
            e("s_memrealtime s[%d:%d]" % (PT + 2, PT + 3))
            srd(PS2, 82, 0x8000000)
            e("s_waitcnt lgkmcnt(0)")
            e("v_mov_b32 v%d, s%d" % (HX, PT))
            e("v_mov_b32 v%d, s%d" % (HX + 1, PT + 2))
            e("v_mov_b32 v%d, s%d" % (HX + 2, PSP))
            e("s_lshl_b32 s%d, s%d, 4" % (PE, PG))
            e("s_add_u32 s%d, s%d, 0x4009000" % (PE, PE))
            e("s_mov_b64 exec, 1")
            e("buffer_store_dwordx4 v[%d:%d], off, s[%d:%d], s%d" % (HX, HX + 3, PS2, PS2 + 3, PE))
    e("s_endpgm")

    def seg_scalars():
        e("s_lshl_b32 s%d, s%d, 5" % (PSG, PPH))
        e("s_add_u32 s%d, s%d, s%d" % (PSG, PSG, PG))
        e("s_lshl_b32 s%d, s%d, 15" % (PG0, PSG))
        e("s_add_u32 s%d, s%d, 1" % (PG0, PG0))
        e("s_mul_hi_u32 s%d, s%d, 0xaaaaaaab" % (PG0, PG0))
        e("s_lshr_b32 s%d, s%d, 7" % (PG0, PG0))

    def get_dec(tag):
        lds_wait(tag, HZ, HE, PE, L_DEC + 20, "nz", PSP)
        e("ds_read_b128 v[%d:%d], v%d offset:%d" % (HX, HX + 3, HZ, L_DEC))
        e("ds_read_b64 v[%d:%d], v%d offset:%d" % (HX + 4, HX + 5, HZ, L_DEC + 16))
        e("s_waitcnt lgkmcnt(0)")
        for i in range(6):
            e("v_readfirstlane_b32 s%d, v%d" % (PDC + i, HX + i))

    e.label("L_h0")
    srd(PB, 64, H * DH * 2)
    srd(PS2, 70, H * NGRP * DH * 2)
    srd(PS3, 72, H * NGRP * DH * 2)
    e("v_lshrrev_b32 v%d, 4, v%d" % (HA, HL))
    e("v_and_b32 v%d, 15, v%d" % (HB_, HL))
    e("v_lshlrev_b32 v%d, 3, v%d" % (HC, HB_))
    e("v_mul_u32_u24 v%d, %d, v%d" % (HD, DH * 2, HA))
    e("v_add_u32 v%d, v%d, v%d" % (HD, HD, HC))
    e("v_lshl_add_u32 v%d, v%d, 2, v%d" % (HG, HB_, HA))
    e("v_lshlrev_b32 v%d, 2, v%d" % (HG, HG))
    BQ = HX; BS = HX + 12; BZ = BS + 36; BR = BZ + 36
    PFA = 32; PIA = 33
    e("v_lshlrev_b32 v%d, 4, v%d" % (HA, HL))
    e("s_mul_i32 s%d, s%d, %d" % (PFA, PNB, FSTR))
    e("s_add_u32 s%d, s%d, s%d" % (PFA, PFA, PGL))
    e("s_lshl_b32 s%d, s%d, 3" % (PIA, PG))
    e("s_add_u32 s%d, s%d, s%d" % (PIA, PIA, PNB))
    IMS = PHI if P["il"] else IMG
    PHS = NWG * PHI if P["il"] else PHI
    e("s_mul_i32 s%d, s%d, %d" % (PIA, PIA, IMS))
    e("s_add_u32 s%d, s%d, %d" % (PIA, PIA, WS_L))

    def bias(ph):
        e("s_mov_b32 s%d, %d" % (PPH, ph))
        seg_scalars()
        e("s_mul_i32 s%d, s%d, 171" % (PE, PSG))
        e("s_lshr_b32 s%d, s%d, 9" % (PE, PE))
        e("s_mul_i32 s%d, s%d, %d" % (PE, PE, DH * 2))
        e("s_mul_i32 s%d, s%d, 24" % (PE + 1, PM))
        e("s_add_u32 s%d, s%d, s%d" % (PE + 2, PE + 1, PG0))
        e("s_mul_i32 s%d, s%d, %d" % (PE + 2, PE + 2, DH * 2))
        e("v_add_u32 v%d, s%d, v%d" % (HE, PE + 2, HD))
        e("v_add_u32 v%d, %d, v%d" % (HF, 8 * DH * 2, HE))
        e("v_add_u32 v%d, %d, v%d" % (HR, 16 * DH * 2, HE))
        for c in range(3):
            e("buffer_load_dwordx2 v[%d:%d], v%d, s[%d:%d], s%d offen offset:%d" % (BR + 2 * c, BR + 2 * c + 1, HC, PB, PB + 3, PE, c * 128))
        for st in range(6):
            va = (HE, HF, HR)[st // 2]
            for sr, bb in ((PS2, BS), (PS3, BZ)):
                for c in range(3):
                    r = bb + st * 6 + 2 * c
                    if P["xb"] & 1:
                        continue
                    e("buffer_load_dwordx2 v[%d:%d], v%d, s[%d:%d], 0 offen offset:%d%s" %
                      (r, r + 1, va, sr, sr + 3, (st & 1) * 4 * DH * 2 + c * 128,
                       " nt" if P["bnt"] & (1 if bb == BZ else 2) else ""))
        e("s_waitcnt vmcnt(0)")
        for p in range(6):
            e("v_lshlrev_b32 v%d, 16, v%d" % (BQ + 2 * p, BR + p))
            e("v_and_b32 v%d, 0xffff0000, v%d" % (BQ + 2 * p + 1, BR + p))
        for st in range(6):
            acc = BR + st
            for p in range(6):
                rs = BS + st * 6 + p; rz = BZ + st * 6 + p
                e("v_lshlrev_b32 v%d, 16, v%d" % (HE, rs))
                e("v_lshlrev_b32 v%d, 16, v%d" % (HF, rz))
                e("v_and_b32 v%d, 0xffff0000, v%d" % (rs, rs))
                e("v_and_b32 v%d, 0xffff0000, v%d" % (rz, rz))
                e("v_mul_f32 v%d, v%d, v%d" % (HE, HE, BQ + 2 * p))
                e("v_mul_f32 v%d, v%d, v%d" % (rs, rs, BQ + 2 * p + 1))
                if p == 0:
                    e("v_mul_f32 v%d, v%d, v%d" % (acc, HE, HF))
                else:
                    e("v_fmac_f32 v%d, v%d, v%d" % (acc, HE, HF))
                e("v_fmac_f32 v%d, v%d, v%d" % (acc, rs, rz))
        for kk in (8, 4, 2, 1):
            for st in range(6):
                e("v_add_f32_dpp v%d, v%d, v%d row_ror:%d row_mask:0xf bank_mask:0xf" % (BR + st, BR + st, BR + st, kk))
        for st in range(1, 6):
            e("v_cmp_eq_u32 vcc, %d, v%d" % (st, HB_))
            e("v_cndmask_b32 v%d, v%d, v%d, vcc" % (BR, BR, BR + st))
        e("s_mul_i32 s%d, s%d, 768" % (PE, PSG))
        e("s_lshl_b32 s%d, s%d, 2" % (PE + 1, PE + 1))
        e("s_add_u32 s%d, s%d, s%d" % (PE, PE, PE + 1))
        e("s_add_u32 s%d, s%d, %d" % (PE, PE, WS_B))
        e("s_mov_b32 exec_lo, 0x003f003f")
        e("s_mov_b32 exec_hi, 0x003f003f")
        e("buffer_store_dword v%d, v%d, s[%d:%d], s%d offen sc1" % (BR, HG, PWS, PWS + 3, PE))
        e("s_mov_b64 exec, -1")

    def flush(p):
        if P["xp"]:
            e("s_cmp_eq_u32 s%d, s%d" % (PDC + p, PDC + 3 + p))
            if p:
                e("s_cbranch_scc1 L_fp%d" % p)
            e("s_add_u32 s%d, s%d, %d" % (PE + 6, PIA, p * PHS))
            e("s_add_u32 s%d, s%d, %d" % (PE + 7, PIA, p * PHS + 4096))
            e("s_cmp_eq_u32 s%d, s%d" % (PDC + p, PDC + 3 + p))
            for k in range(6):
                if p == 0:
                    mk = sum(1 << l for l in range(64) if (64 * k + l) % 48 < (3 * N0 + 7) // 8 * 8)
                    e("s_cselect_b32 exec_lo, 0x%x, -1" % (mk & 0xffffffff))
                    e("s_cselect_b32 exec_hi, 0x%x, -1" % (mk >> 32))
                e("buffer_load_dwordx4 v[%d:%d], v%d, s[%d:%d], s%d offen offset:%d %s" %
                  (HX + 4 * k, HX + 4 * k + 3, HA, PWS, PWS + 3, PE + 6 + k // 4, (k % 4) * 1024, ("", "sc1", "", "nt")[P["xp"]]))
            e("s_mov_b64 exec, -1")
            e("s_waitcnt vmcnt(0)")
            e.label("L_fp%d" % p)
        lds_wait("f%d" % p, HZ, HE, PE, L_CF + 4 * p, "4", PSP)
        e("s_cmp_eq_u32 s%d, s%d" % (PDC + p, PDC + 3 + p))
        if p:
            e("s_cbranch_scc1 L_fl%d" % p)
        for k in range(6):
            e("ds_read_b128 v[%d:%d], v%d offset:%d" % (HX + 4 * k, HX + 4 * k + 3, HA, L_LG + p * PHI + k * 1024))
        e("s_add_u32 s%d, s%d, %d" % (PE + 6, PIA, p * PHS))
        e("s_add_u32 s%d, s%d, %d" % (PE + 7, PIA, p * PHS + 4096))
        e("s_cmp_eq_u32 s%d, s%d" % (PDC + p, PDC + 3 + p))
        e("s_waitcnt lgkmcnt(0)")
        for k in range(6):
            if p == 0:
                mk = sum(1 << l for l in range(64) if (64 * k + l) % 48 < (3 * N0 + 7) // 8 * 8)
                e("s_cselect_b32 exec_lo, 0x%x, -1" % (mk & 0xffffffff))
                e("s_cselect_b32 exec_hi, 0x%x, -1" % (mk >> 32))
            if not P["xkp"] & 16:
                e("buffer_store_dwordx4 v[%d:%d], v%d, s[%d:%d], s%d offen offset:%d %s" %
                  (HX + 4 * k, HX + 4 * k + 3, HA, PWS, PWS + 3, PE + 6 + k // 4, (k % 4) * 1024, P["st"]))
        if p == 0:
            e("s_mov_b64 exec, -1")
        e.label("L_fl%d" % p)
        e("v_mov_b32 v%d, %d" % (HE, p + 1))
        e("s_waitcnt vmcnt(0)")
        e("s_mov_b64 exec, 1")
        opt = p == 2 or (p == 1 and not P["jit"])
        if opt:
            e("s_cbranch_scc1 L_fn%d" % p)
        e("buffer_store_dword v%d, off, s[%d:%d], s%d sc1" % (HE, PWS, PWS + 3, PFA))
        if opt:
            e.label("L_fn%d" % p)
        e("ds_write_b32 v%d, v%d offset:%d" % (HZ, HE, L_FD))
        e("s_mov_b64 exec, -1")

    if FU:
        for i in range(4):
            e("v_mov_b32 v%d, 0" % (HX + i))
        for p in range(3):
            e("s_add_u32 s%d, s2, %d" % (PE, 256 * p))
            e("s_lshl_b32 s%d, s%d, 10" % (PE + 1, PE))
            e("s_lshl_b32 s%d, s%d, 6" % (PE, PE))
            e("s_add_u32 s%d, s%d, %d" % (PE, PE, WS_ML))
            e("buffer_store_dwordx4 v[%d:%d], v%d, s[%d:%d], s%d offen sc1" % (HX, HX + 3, HA, PWS, PWS + 3, PE + 1))
            e("s_mov_b64 exec, 15")
            e("buffer_store_dwordx4 v[%d:%d], v%d, s[%d:%d], s%d offen sc1" % (HX, HX + 3, HA, PWS, PWS + 3, PE))
            e("s_mov_b64 exec, -1")
    bias(0)
    if P["jit"]:
        lds_wait("b1", HZ, HE, PE, L_EV + 4, "1", PSP)
    bias(1)
    if not P["jit"]:
        bias(2)
    get_dec("d0")
    flush(0)
    if P["jit"]:
        lds_wait("b2", HZ, HE, PE, L_EV + 4, "9", PSP)
        bias(2)
    flush(1)
    flush(2)
    if P["at"] and not BC:
        e("v_lshrrev_b32 v%d, 3, v%d" % (HC, HL))
        e("v_xor_b32 v%d, s%d, v%d" % (HC, PM, HC))
        e("v_lshrrev_b32 v%d, 1, v%d" % (HD, HC))
        e("v_and_b32 v%d, 1, v%d" % (HC, HC))
        e("v_lshl_or_b32 v%d, v%d, 2, v%d" % (HD, HC, HD))
        e("v_lshl_or_b32 v%d, v%d, 3, v%d" % (HD, HL, HD))
        e("v_mul_u32_u24 v%d, %d, v%d" % (HD, FSTR, HD))
        lds_wait("t1", HZ, HE, PE, L_TC, "4", PSP)
        e("s_memrealtime s[%d:%d]" % (PT, PT + 1))
        e("s_mov_b64 exec, 1")
        e("s_waitcnt lgkmcnt(0)")
        e("s_or_b32 s%d, s%d, 1" % (PT, PT))
        e("v_mov_b32 v%d, s%d" % (HB_, PT))
        e("buffer_store_dword v%d, off, s[%d:%d], s%d offset:4 sc1" % (HB_, PWS, PWS + 3, PFA))
        e("s_mov_b32 exec_lo, -1")
        e("s_mov_b32 s%d, %d" % (PE + 1, WS_G))
        lds_wait("t2", HZ, HE, PE, L_TC, "5", PSP)
        e("buffer_load_dword v%d, v%d, s[%d:%d], s%d offen offset:4 sc1" % (HB_, HD, PWS, PWS + 3, PE + 1))
        e("v_bfrev_b32 v%d, -2" % HC)
        e("s_mov_b32 s%d, -2048" % PE)
        e("s_waitcnt vmcnt(0)")
        e("v_cmp_eq_u32 vcc, 0, v%d" % HB_)
        e("v_subrev_u32 v%d, s%d, v%d" % (HB_, PT, HB_))
        e("v_cndmask_b32 v%d, v%d, v%d, vcc" % (HB_, HB_, HC))
        for st in (2048, 1024, 512, 256, 128, 64, 32, 16):
            e("s_add_u32 s%d, s%d, %d" % (PE + 1, PE, st))
            e("v_cmp_gt_i32 vcc, s%d, v%d" % (PE + 1, HB_))
            e("s_bcnt1_i32_b64 s%d, vcc" % (PE + 2))
            e("s_cmp_lt_u32 s%d, %d" % (PE + 2, P["aq"]))
            e("s_cselect_b32 s%d, s%d, s%d" % (PE, PE + 1, PE))
        e("s_mul_i32 s%d, s%d, %d" % (PE, PE, -P["ka"]))
        e("s_add_u32 s%d, s%d, %d" % (PE, PE, P["kb"]))
        e("s_ashr_i32 s%d, s%d, 10" % (PE, PE))
        e("s_max_i32 s%d, s%d, %d" % (PE, PE, P["dmin"]))
        e("s_min_i32 s%d, s%d, %d" % (PE, PE, min(P["dmax"], NT - P["te"])))
        e("s_sub_u32 s%d, %d, s%d" % (PE, NT, PE))
        e("s_cmp_eq_u32 s%d, %d" % (PE, NT))
        e("s_cselect_b32 s%d, 255, s%d" % (PE, PE))
        e("v_mov_b32 v%d, s%d" % (HB_, PE))
        e("ds_write_b32 v%d, v%d offset:%d" % (HZ, HB_, L_TD))
    e("s_endpgm")

    if BC:
        e.label("L_h3")
        e("s_waitcnt lgkmcnt(0)")
        srd(PWS, 82, WS_SIZE)
        if not EB:
            e("s_barrier")
        e("v_lshlrev_b32 v%d, 2, v%d" % (HD, HL))
        e("s_mul_i32 s%d, s%d, %d" % (PO, PM, FSTR))
        e("s_add_u32 s%d, s%d, %d" % (PO, PO, WS_T))
        e("s_lshl_b32 s%d, s%d, 2" % (PFL, PG))
        e("s_add_u32 s%d, s%d, s%d" % (PFL, PFL, PO))
        if GTS:
            cps = CPK + [48 + c for c in CPV]
            sel = [max(j for j, c in enumerate(cps) if c + P["tg"] + P["rd"] < b) for b in GTS]
            e("s_mov_b32 s%d, 0x%x" % (PRN, sum(1 << j for j in sel)))
            e("v_lshrrev_b32 v%d, 2, v%d" % (HG, HL))
            e("v_mul_u32_u24 v%d, %d, v%d" % (HG, FSTR, HG))
            e("v_and_or_b32 v%d, v%d, 12, v%d" % (HG, HD, HG))
            e("s_and_b32 s%d, s%d, 3" % (PBK, PM))
            e("s_mul_i32 s%d, s%d, %d" % (PNR, PBK, FSTR))
            e("s_lshl_b32 s%d, s%d, 2" % (PBK, PBK))
            e("v_mov_b32 v%d, %d" % (HK, L_GT))
        e("s_mov_b32 s%d, %d" % (PJ, P["pw"]))
        e("v_mov_b32 v%d, %d" % (HW, L_TM))
        e("v_bfrev_b32 v%d, -2" % HC)
        e("s_mov_b32 exec_hi, 0")
        e.label("L_h3loop")
        lds_wait("p1", HZ, HE, PE, L_TC, "s%d" % PJ, PSP)
        e("s_memrealtime s[%d:%d]" % (PT, PT + 1))
        e("s_add_u32 s%d, s%d, %d" % (PJ, PJ, 5 - P["pw"]))
        e("s_mov_b32 exec_lo, 1")
        e("s_waitcnt lgkmcnt(0)")
        e("v_mov_b32 v%d, s%d" % (HB_, PT))
        e("buffer_store_dword v%d, off, s[%d:%d], s%d" % (HB_, PWS, PWS + 3, PFL))
        e("s_mov_b32 exec_lo, -1")
        lds_wait("p2", HZ, HE, PE, L_TC, "s%d" % PJ, PSP)
        e("buffer_load_dword v%d, v%d, s[%d:%d], s%d offen sc0" % (HB_, HD, PWS, PWS + 3, PO))
        e("s_add_u32 s%d, s%d, 4" % (PJ, PJ))
        e("s_sub_u32 s%d, s%d, 4096" % (PT, PT))
        e("s_waitcnt vmcnt(0)")
        e("v_subrev_u32 v%d, s%d, v%d" % (HB_, PT, HB_))
        e("v_cmp_gt_u32 vcc, 8192, v%d" % HB_)
        e("v_cndmask_b32 v%d, v%d, v%d, vcc" % (HB_, HC, HB_))
        e("s_mov_b32 s%d, 2048" % PE)
        for st in (2048, 1024, 512, 256, 128, 64, 32, 16, 8):
            e("s_add_u32 s%d, s%d, %d" % (PE + 1, PE, st))
            e("v_cmp_gt_u32 vcc, s%d, v%d" % (PE + 1, HB_))
            e("s_bcnt1_i32_b64 s%d, vcc" % (PE + 2))
            e("s_cmp_lt_u32 s%d, %d" % (PE + 2, P["aq"]))
            e("s_cselect_b32 s%d, s%d, s%d" % (PE, PE + 1, PE))
        e("s_add_u32 s%d, s%d, s%d" % (PE + 1, PE, PT))
        e("s_or_b32 s%d, s%d, 1" % (PE + 1, PE + 1))
        e("v_mov_b32 v%d, s%d" % (HB_, PE + 1))
        e("ds_write_b32 v%d, v%d" % (HW, HB_))
        e("v_add_u32 v%d, 4, v%d" % (HW, HW))
        if GTS:
            e("s_bitcmp1_b32 s%d, 0" % PRN)
            e("s_cbranch_scc0 L_h3ng")
            e("s_cmp_lt_u32 s%d, 6136" % PE)
            e("s_cselect_b32 exec_lo, 1, 0")
            e("s_cmp_lt_u32 s%d, 4" % PG)
            e("s_cselect_b32 exec_lo, exec_lo, 0")
            e("buffer_store_dword v%d, off, s[%d:%d], s%d offset:2048 sc1" % (HB_, PWS, PWS + 3, PFL))
            e("s_mov_b32 exec_lo, 0xffff")
            lds_wait("p3", HZ, HE, PE, L_TC, "s%d" % PJ, PSP)
            e("s_sub_u32 s%d, s%d, s%d" % (PE + 3, PO, PNR))
            e("s_mov_b32 s%d, %d" % (PSP, P["gn"]))
            e("s_mov_b32 s%d, 0" % PE)
            e.label("L_h3gp")
            e("buffer_load_dword v%d, v%d, s[%d:%d], s%d offen offset:2048 sc1" % (HA, HG, PWS, PWS + 3, PE + 3))
            e("s_sub_u32 s%d, s%d, 1" % (PSP, PSP))
            e("s_cbranch_scc1 L_h3gw")
            e("s_waitcnt vmcnt(0)")
            e("v_subrev_u32 v%d, s%d, v%d" % (HA, PT, HA))
            e("v_cmp_gt_u32 vcc, 8192, v%d" % HA)
            e("v_cndmask_b32 v%d, v%d, v%d, vcc" % (HA, HC, HA))
            e("v_min_u32_dpp v%d, v%d, v%d quad_perm:[1,0,3,2] row_mask:0xf bank_mask:0xf" % (HA, HA, HA))
            e("v_min_u32_dpp v%d, v%d, v%d quad_perm:[2,3,0,1] row_mask:0xf bank_mask:0xf" % (HA, HA, HA))
            e("v_cmp_eq_u32 vcc, v%d, v%d" % (HC, HA))
            e("s_cbranch_vccnz L_h3gp")
            for k in range(4):
                e("v_readlane_b32 s%d, v%d, %d" % (PE + 4 + k, HA, 4 * k))
            e("v_readlane_b32 s%d, v%d, s%d" % (PE + 1, HA, PBK))
            e("s_max_u32 s%d, s%d, s%d" % (PE + 4, PE + 4, PE + 5))
            e("s_max_u32 s%d, s%d, s%d" % (PE + 6, PE + 6, PE + 7))
            e("s_max_u32 s%d, s%d, s%d" % (PE, PE + 4, PE + 6))
            e("s_sub_u32 s%d, s%d, s%d" % (PE, PE, PE + 1))
            e("s_sub_u32 s%d, s%d, %d" % (PE, PE, P["gtol"]))
            e("s_max_i32 s%d, s%d, 0" % (PE, PE))
            e("s_min_i32 s%d, s%d, %d" % (PE, PE, P["gcap"]))
            e.label("L_h3gw")
            e("s_or_b32 s%d, s%d, 0x10000" % (PE, PE))
            e("v_mov_b32 v%d, s%d" % (HB_, PE))
            e("ds_write_b32 v%d, v%d" % (HK, HB_))
            e("s_mov_b32 exec_lo, -1")
            e("v_add_u32 v%d, 4, v%d" % (HK, HK))
            e("s_waitcnt vmcnt(0)")
            e.label("L_h3ng")
            e("s_lshr_b32 s%d, s%d, 1" % (PRN, PRN))
        e("s_add_u32 s%d, s%d, %d" % (PJ, PJ, 3 + P["pw"]))
        e("s_add_u32 s%d, s%d, 128" % (PO, PO))
        e("s_add_u32 s%d, s%d, 128" % (PFL, PFL))
        e("s_cmp_lt_u32 s%d, %d" % (PJ, 12 * (len(CPK) + len(CPV))))
        e("s_cbranch_scc1 L_h3loop")
        e("s_endpgm")

    e.label("L_h2")
    srd(PS2, 74, H * SKV * 2)
    srd(PS3, 76, H * SKV * 2)
    if P["pf"] >= 2:
        if P["pf"] == 2:
            lds_wait("pf", HZ, HE, PE, L_EV + 4, "1", PSP)
        if P["pf"] == 4:
            lds_wait("pf", HZ, HE, PE, L_EV, "1", PSP)
        e("v_lshlrev_b32 v%d, 4, v%d" % (HA, HL))
        e("s_lshl_b32 s%d, s2, 13" % PE)
        e("s_add_u32 s%d, s%d, 4096" % (PE + 1, PE))
        for a, sr in enumerate((PS2, PS3)):
            for k in range(8):
                r = HX + 4 * (a * 8 + k)
                e("buffer_load_dwordx4 v[%d:%d], v%d, s[%d:%d], s%d offen offset:%d" % (r, r + 3, HA, sr, sr + 3, PE + k // 4, (k % 4) * 1024))
        e("s_waitcnt vmcnt(0)")
    get_dec("d2")
    PSIX = 24
    PKW = 32; PNEED = 33; PN0 = 34; PIM = 35; PCH = 36; PCC = 37; PMG = 38; PWD = 39; PIS = 40
    HT = HW
    HP = HX + 88; PXM = 64
    e("v_and_b32 v%d, 3, v%d" % (HT, HL))
    e("v_and_b32 v%d, 7, v%d" % (HT2, HL))
    e("v_lshrrev_b32 v%d, 2, v%d" % (HR, HL))
    e("s_mov_b32 s%d, %s" % (PCC, f32hex(C)))
    e("s_mov_b32 s%d, 0xaaaaaaab" % PMG)
    e("s_mov_b32 s%d, 0" % PPH)
    e("s_mul_i32 s%d, s%d, %d" % (PIM, PG, 8 * IMS))
    e("s_add_u32 s%d, s%d, %d" % (PIM, PIM, WS_L))
    e("s_mov_b32 s%d, %d" % (PIS, IMS))
    e("v_lshlrev_b32 v%d, 5, v%d" % (HN, HL))
    e("v_lshrrev_b32 v%d, 3, v%d" % (HK, HL))
    e("v_mul_u32_u24 v%d, 24, v%d" % (HK, HK))
    e("v_mov_b32 v%d, 768" % HA)
    e("v_mad_u32_u24 v%d, v%d, v%d, v%d" % (HK, HT2, HA, HK))
    e("v_lshlrev_b32 v%d, 4, v%d" % (HP, HL))
    e("s_mov_b32 s%d, %d" % (PN0, 3 * N0))
    RS = 16
    e.label("L_prep")
    seg_scalars()
    e("s_mov_b32 s%d, s%d" % (PKW, PDC))
    e("s_mov_b32 s%d, s%d" % (PWD, PDC + 3))
    for i in (0, 1, 3, 4):
        e("s_mov_b32 s%d, s%d" % (PDC + i, PDC + i + 1))
    e("s_lshl_b32 s%d, s%d, 3" % (PNEED, PPH))
    e("s_add_u32 s%d, s%d, 1" % (PNEED, PNEED))
    if P["pf"] == 1:
        lds_wait("pf", HZ, HE, PE, L_EV + 4, "s%d" % PNEED, PSP)
        e("v_lshlrev_b32 v%d, 4, v%d" % (HA, HL))
        e("s_mul_i32 s%d, s%d, 2736" % (PE + 1, PM))
        e("s_lshl_b32 s%d, s%d, 16" % (PE, PSG))
        e("s_mul_hi_u32 s%d, s%d, 0xaaaaaaab" % (PE, PE))
        e("s_lshr_b32 s%d, s%d, 5" % (PE, PE))
        e("s_lshl_b32 s%d, s%d, 4" % (PE, PE))
        e("s_add_u32 s%d, s%d, s%d" % (PE, PE, PE + 1))
        for a, sr in enumerate((PS2, PS3)):
            for k in range(3):
                r = HX + 4 * RS + 4 * (a * 3 + k)
                e("buffer_load_dwordx4 v[%d:%d], v%d, s[%d:%d], s%d offen offset:%d%s" % (r, r + 3, HA, sr, sr + 3, PE, k * 1024, " nt" if P["bnt"] & 8 else ""))
    for w, hv in ((PWD, HV),):
        e("s_and_b32 s%d, s%d, 7" % (PE, w))
        e("v_mov_b32 v%d, s%d" % (hv, PE))
        e("s_bitcmp1_b32 s%d, 3" % w)
        e("s_cselect_b64 vcc, -1, 0")
        e("v_cndmask_b32 v%d, v%d, v%d, vcc" % (hv, hv, HT2))
    e("v_xor_b32 v%d, s%d, v%d" % (HG, PNB, HV))
    e("v_lshl_or_b32 v%d, v%d, 3, v%d" % (HG, HT, HG))
    e("s_lshl_b32 s%d, s%d, 6" % (PCH, PSG))
    e("s_mul_i32 s%d, s%d, 768" % (PE + 1, PSG))
    e("s_lshl_b32 s%d, s%d, 2" % (PE + 2, PG0))
    e("s_sub_u32 s%d, s%d, s%d" % (PE + 1, PE + 1, PE + 2))
    e("s_add_u32 s%d, s%d, %d" % (PE + 1, PE + 1, WS_B))
    if P["pace"]:
        e("s_add_u32 s%d, s%d, 4" % (PNEED, PNEED))
        lds_wait("ga", HZ, HE, PE, L_EV + 4, "s%d" % PNEED, PSP)
    else:
        e("s_add_u32 s%d, s%d, 1" % (PNEED, PPH))
        lds_wait("ga", HZ, HE, PE, L_FD, "s%d" % PNEED, PSP)
    for st in range(4):
        R = HX + RS * st
        e("v_add_u32 v%d, %d, v%d" % (HA, 16 * st, HR))
        e("v_bfe_u32 v%d, v%d, 3, 2" % (HB_, HA))
        e("v_and_or_b32 v%d, v%d, 4, v%d" % (HB_, HA, HB_))
        e("v_xor_b32 v%d, v%d, v%d" % (HB_, HG, HB_))
        e("v_add_u32 v%d, s%d, v%d" % (HA, PCH, HA))
        e("v_lshl_add_u32 v%d, v%d, 5, v%d" % (HC, HA, HB_))
        e("v_lshl_add_u32 v%d, v%d, 4, 1" % (HC, HC))
        e("v_mul_hi_u32 v%d, v%d, s%d" % (HC, HC, PMG))
        e("v_lshrrev_b32 v%d, 1, v%d" % (HC, HC))
        e("v_lshrrev_b32 v%d, 1, v%d" % (HF, HC))
        e("v_lshlrev_b32 v%d, 2, v%d" % (HF, HF))
        for b, sr in ((R + 8, PS2), (R + 12, PS3)):
            if P["xkp"] & 8:
                continue
            gnt = " nt" if P["bnt"] & 16 else ""
            e("buffer_load_dwordx3 v[%d:%d], v%d, s[%d:%d], 0 offen%s" % (b, b + 2, HF, sr, sr + 3, gnt))
            if P["pace"] == 2:
                e("s_waitcnt vmcnt(0)")
            e("buffer_load_dword v%d, v%d, s[%d:%d], 0 offen offset:12%s" % (b + 3, HF, sr, sr + 3, gnt))
        e("v_lshrrev_b32 v%d, 6, v%d" % (R + 6, HC))
        e("v_lshl_add_u32 v%d, v%d, 2, s%d" % (R + 6, R + 6, PE + 1))
        e("v_and_b32 v%d, 15, v%d" % (HD, HC))
        e("v_cmp_eq_u32 s[%d:%d], 5, v%d" % (PSIX + 2 * st, PSIX + 2 * st + 1, HD))
        e("v_and_b32 v%d, 1, v%d" % (R + 7, HC))
        e("v_lshlrev_b32 v%d, 4, v%d" % (R + 7, R + 7))
        if P["pace"] == 1:
            e("s_waitcnt vmcnt(0)")
    e("s_add_u32 s%d, s%d, 1" % (PNEED, PPH))
    lds_wait("fd", HZ, HE, PE, L_FD, "s%d" % PNEED, PSP)
    e("v_mul_u32_u24 v%d, %d, v%d" % (HA, FSTR, HL))
    e("s_xor_b32 s%d, s%d, s%d" % (PE, PKW, PWD))
    e("s_xor_b32 s%d, s%d, s%d" % (PE, PE, PNB))
    e("s_and_b32 s%d, s%d, 7" % (PE, PE))
    e("v_mov_b32 v%d, s%d" % (HC, PNEED))
    e("s_lshl_b64 vcc, 1, s%d" % PE)
    e("s_or_b32 s%d, s%d, s%d" % (PE, PKW, PWD))
    e("s_bitcmp1_b32 s%d, 3" % PE)
    e("s_cselect_b64 vcc, 0xff, vcc")
    e("s_cmp_eq_u32 s%d, s%d" % (PKW, PWD))
    e("s_cselect_b64 vcc, 0, vcc")
    e("s_max_u32 s%d, s%d, 1" % (PE, PPH))
    e("v_mov_b32 v%d, s%d" % (HD, PE))
    e("v_cndmask_b32 v%d, v%d, v%d, vcc" % (HC, HD, HC))
    e("s_cmp_%s_u32 s%d, 1" % ("eq" if P["jit"] else "ge", PPH))
    e("s_cselect_b64 exec, vcc, 0xff")
    e("s_mov_b32 s%d, 0x40000" % PSP)
    if not P["xkp"] & 64:
        e("s_cbranch_execz L_noflags")
        e.label("L_flags")
        e("buffer_load_dword v%d, v%d, s[%d:%d], s%d offen sc1" % (HB_, HA, PWS, PWS + 3, PGL))
        e("s_sub_u32 s%d, s%d, 1" % (PSP, PSP))
        e("s_cbranch_scc1 L_exit1")
        e("s_waitcnt vmcnt(0)")
        e("v_cmpx_gt_u32 vcc, v%d, v%d" % (HC, HB_))
        e("s_cbranch_execnz L_flags")
        e.label("L_noflags")
    e("s_mov_b64 exec, -1")
    for st in range(4):
        R = HX + RS * st
        if not P["xkp"] & 32:
            e("buffer_load_dword v%d, v%d, s[%d:%d], 0 offen sc1" % (R + 6, R + 6, PWS, PWS + 3))
    e("s_bitcmp1_b32 s%d, 3" % PWD)
    e("s_cselect_b32 s%d, 0, 7" % (PE + 1))
    e("s_xor_b32 s%d, s%d, s%d" % (PE + 2, PKW, PWD))
    e("s_bitcmp1_b32 s%d, 3" % (PE + 2))
    e("s_cselect_b32 s%d, 7, 0" % (PE + 3))
    e("s_and_b32 s%d, s%d, 7" % (PE + 2, PE + 2))
    e("s_and_b32 s%d, s%d, 7" % (PE + 4, PWD))
    e("s_add_u32 s%d, s%d, 4096" % (PE + 5, PIM))
    for k in range(6):
        R = HX + 4 * RS + 4 * k
        e("v_add_u32 v%d, %d, v%d" % (HA, 64 * k, HL))
        e("v_mul_u32_u24 v%d, 1366, v%d" % (HB_, HA))
        e("v_lshrrev_b32 v%d, 16, v%d" % (HB_, HB_))
        e("v_mul_u32_u24 v%d, 48, v%d" % (HC, HB_))
        e("v_sub_u32 v%d, v%d, v%d" % (HA, HA, HC))
        e("v_cmp_gt_u32 vcc, s%d, v%d" % (PN0, HA))
        e("v_and_b32 v%d, s%d, v%d" % (HC, PE + 3, HB_))
        e("v_xor_b32 v%d, s%d, v%d" % (HC, PE + 2, HC))
        e("v_and_b32 v%d, s%d, v%d" % (HB_, PE + 1, HB_))
        e("v_xor_b32 v%d, s%d, v%d" % (HB_, PE + 4, HB_))
        e("v_cndmask_b32 v%d, v%d, v%d, vcc" % (HC, HC, HB_))
        e("v_cmp_ne_u32 s[%d:%d], 0, v%d" % (PXM + 2 * k, PXM + 2 * k + 1, HC))
        e("v_xor_b32 v%d, s%d, v%d" % (HC, PNB, HC))
        e("v_mad_u32_u24 v%d, v%d, s%d, v%d" % (HC, HC, PIS, HP))
        e("s_mov_b64 exec, s[%d:%d]" % (PXM + 2 * k, PXM + 2 * k + 1))
        if not P["xkp"] & 128:
            e("buffer_load_dwordx4 v[%d:%d], v%d, s[%d:%d], s%d offen offset:%d sc1" %
              (R, R + 3, HC, PWS, PWS + 3, PE + 5 if k >= 4 else PIM, (k % 4) * 1024))
        e("s_mov_b64 exec, -1")
    e("s_waitcnt vmcnt(0)")
    for k in range(6):
        R = HX + 4 * RS + 4 * k
        e("s_mov_b64 exec, s[%d:%d]" % (PXM + 2 * k, PXM + 2 * k + 1))
        e("ds_write_b128 v%d, v[%d:%d] offset:%d" % (HP, R, R + 3, L_LG + k * 1024))
    e("s_mov_b64 exec, -1")
    for st in range(4):
        R = HX + RS * st
        for c in range(3):
            e("ds_read_b64 v[%d:%d], v%d offset:%d" % (R + 2 * c, R + 2 * c + 1, HK, L_LG + st * 192 + 8 * c))
    e("s_mov_b32 s%d, 0" % PN0)
    e("v_mov_b32 v%d, 0x%08x" % (HB_, BIGNEG))
    e("v_mov_b32 v%d, 0x%08x" % (HA, BIGNEG))
    e("s_waitcnt vmcnt(0) lgkmcnt(0)")
    for st in range(4):
        R = HX + RS * st
        for k in range(6):
            e("v_sub_f32 v%d, v%d, v%d" % (R + k, R + k, R + 6))
        for k in range(6):
            e("v_mul_f32 v%d, s%d, v%d" % (R + k, PCC, R + k))
        e("v_cndmask_b32 v%d, v%d, v%d, s[%d:%d]" % (R + 5, HB_, R + 5, PSIX + 2 * st, PSIX + 2 * st + 1))
        for k in range(0, 6, 2):
            e("v_max3_f32 v%d, v%d, v%d, v%d" % (HA, HA, R + k, R + k + 1))
        for b in (R + 8, R + 12):
            for k in range(3):
                e("v_alignbit_b32 v%d, v%d, v%d, v%d" % (b + k, b + k + 1, b + k, R + 7))

    wave_reduce([HA], "v_max_f32", [HB_])
    e("v_mov_b32 v%d, 0" % HB_)
    e("v_mov_b32 v%d, 0" % HC)
    for st in range(4):
        R = HX + RS * st
        for k in range(6):
            e("v_sub_f32 v%d, v%d, v%d" % (R + k, R + k, HA))
        for k in range(6):
            e("v_exp_f32 v%d, v%d" % (R + k, R + k))
        for k in range(6):
            e("v_add_f32 v%d, v%d, v%d" % (HB_, HB_, R + k))
            if k & 1:
                e("v_and_b32 v%d, 0xffff0000, v%d" % (HE, R + 8 + k // 2))
                e("v_and_b32 v%d, 0xffff0000, v%d" % (HF, R + 12 + k // 2))
            else:
                e("v_lshlrev_b32 v%d, 16, v%d" % (HE, R + 8 + k // 2))
                e("v_lshlrev_b32 v%d, 16, v%d" % (HF, R + 12 + k // 2))
            e("v_mul_f32 v%d, v%d, v%d" % (R + k, R + k, HE))
            e("v_fmac_f32 v%d, v%d, v%d" % (HC, R + k, HF))
        e("ds_write_b128 v%d, v[%d:%d] offset:%d" % (HN, R, R + 3, L_PV + st * 2048))
        e("ds_write_b64 v%d, v[%d:%d] offset:%d" % (HN, R + 4, R + 5, L_PV + st * 2048 + 16))
    wave_reduce([HB_, HC], "v_add_f32", [HE, HF])
    e("s_lshl_b32 s%d, s%d, 2" % (PE, PPH))
    e("v_mov_b32 v%d, s%d" % (HE, PE))
    e("v_lshlrev_b32 v%d, 2, v%d" % (HF, HE))
    e("v_mov_b32 v%d, s%d" % (HD, PWD))
    e("s_mov_b64 exec, 1")
    e("ds_write_b128 v%d, v[%d:%d] offset:%d" % (HF, HA, HD, L_ML))
    e("ds_write_b32 v%d, v%d offset:%d" % (HE, HD, L_GO))
    if FU:
        e("s_lshl_b32 s%d, s%d, 8" % (PE, PPH))
        e("s_add_u32 s%d, s%d, s2" % (PE, PE))
        e("s_lshl_b32 s%d, s%d, 6" % (PE, PE))
        e("s_add_u32 s%d, s%d, %d" % (PE, PE, WS_ML))
        e("buffer_store_dwordx4 v[%d:%d], off, s[%d:%d], s%d sc1" % (HA, HD, PWS, PWS + 3, PE))
    e("s_mov_b64 exec, -1")
    e("v_add_u32 v%d, 8192, v%d" % (HN, HN))
    e("v_add_u32 v%d, %d, v%d" % (HK, PHI, HK))
    e("v_add_u32 v%d, %d, v%d" % (HP, PHI, HP))
    if PHS != PHI:
        e("s_add_u32 s%d, s%d, %d" % (PIM, PIM, PHS - PHI))
    e("s_add_u32 s%d, s%d, 1" % (PPH, PPH))
    e("s_cmp_lt_u32 s%d, 3" % PPH)
    e("s_cbranch_scc1 L_prep")
    e("s_mov_b32 s%d, 0" % PPH)
    e("v_lshlrev_b32 v%d, 2, v%d" % (HR, HL))
    e("v_add_u32 v%d, %d, v%d" % (HG, L_ACC, HR))
    e("v_lshlrev_b32 v%d, 4, v%d" % (HK, HL))
    e("v_mov_b32 v%d, 1" % (HX + 15))
    e.label("L_merge")
    e("s_lshl_b32 s%d, s%d, 2" % (PE, PPH))
    e("v_mov_b32 v%d, s%d" % (HW, PE))
    e("v_lshlrev_b32 v%d, 2, v%d" % (HF, HW))
    e("ds_read_b128 v[%d:%d], v%d offset:%d" % (HA, HD, HF, L_ML))
    e("s_lshl_b32 s%d, s%d, 8" % (PSG, PPH))
    e("s_add_u32 s%d, s%d, s2" % (PSG, PSG))
    e("s_lshl_b32 s%d, s%d, 10" % (PSG, PSG))
    lds_wait("m", HZ, HE, PE, L_CA, "4", PSP, HW)
    for kk in range(3):
        for w in range(NW):
            e("ds_read_b32 v%d, v%d offset:%d" % (HX + kk * NW + w, HG, w * ROWB + kk * 256))
    for kk in range(3):
        b = HX + kk * NW
        e("s_waitcnt lgkmcnt(%d)" % (8 - 4 * kk))
        e("v_add_f32 v%d, v%d, v%d" % (b, b, b + 1))
        e("v_add_f32 v%d, v%d, v%d" % (b + 2, b + 2, b + 3))
        e("v_sub_f32 v%d, v%d, v%d" % (b, b, HC))
        if FU:
            e("v_add_f32 v%d, v%d, v%d" % (HX + 12 + kk, b, b + 2))
            continue
        e("v_add_f32 v%d, v%d, v%d" % (b, b, b + 2))
        e("buffer_store_dword v%d, v%d, s[%d:%d], s%d offen offset:%d" % (b, HR, PWS, PWS + 3, PSG, kk * 256))
    if FU:
        e("buffer_store_dwordx4 v[%d:%d], v%d, s[%d:%d], s%d offen sc1" % (HX + 12, HX + 15, HK, PWS, PWS + 3, PSG))
    else:
        e("s_mov_b64 exec, 1")
        e("buffer_store_dwordx2 v[%d:%d], off, s[%d:%d], s%d offset:%d" % (HA, HB_, PWS, PWS + 3, PSG, DH * 4))
        e("s_mov_b64 exec, -1")
    e("v_add_u32 v%d, %d, v%d" % (HG, NW * ROWB, HG))
    e("s_add_u32 s%d, s%d, 1" % (PPH, PPH))
    e("s_cmp_lt_u32 s%d, 3" % PPH)
    e("s_cbranch_scc1 L_merge")
    if P["stamp"] == 5:
        e("s_memrealtime s[%d:%d]" % (PT, PT + 1))
        e("s_waitcnt vmcnt(0)")
        e("s_memrealtime s[%d:%d]" % (PT + 2, PT + 3))
        srd(PS2, 82, 0x8000000)
        e("s_waitcnt lgkmcnt(0)")
        e("v_mov_b32 v%d, s%d" % (HX, PT))
        e("v_mov_b32 v%d, s%d" % (HX + 1, PT + 2))
        e("s_lshl_b32 s%d, s2, 3" % PE)
        e("s_add_u32 s%d, s%d, 0x400a000" % (PE, PE))
        e("s_mov_b64 exec, 1")
        e("buffer_store_dwordx2 v[%d:%d], off, s[%d:%d], s%d" % (HX, HX + 1, PS2, PS2 + 3, PE))
    e("s_endpgm")

    main_text = e.text()
    RPW = 24
    k2 = NAME + "_kernel"
    e.lines.append(".globl %s" % k2)
    e.lines.append(".p2align 8")
    e.lines.append(".type %s,@function" % k2)
    e.lines.append(k2 + ":")
    e.wr = {}; e.tr = {}; e.sw = {}
    e("s_cmp_ge_u32 s2, %d" % H)
    e("s_cbranch_scc1 L_exit2")
    e("s_load_dwordx2 s[4:5], s[0:1], 56")
    e("s_load_dwordx2 s[6:7], s[0:1], 72")
    e("v_lshlrev_b32 v1, 2, v0")
    e("v_mov_b32 v2, 0")
    e("s_mul_i32 s16, s2, %d" % (RPW * PART_STRIDE))
    e("s_mov_b32 s10, %d" % (3 * NWG * PART_STRIDE))
    e("s_mov_b32 s11, 0x00020000")
    e("s_mov_b32 s14, %d" % (H * DH * 2))
    e("s_mov_b32 s15, 0x00020000")
    for k in range(1, RPW // 4):
        e("s_add_u32 s%d, s16, %d" % (16 + k, 4 * k * PART_STRIDE))
    e("s_waitcnt lgkmcnt(0)")
    e("s_mov_b32 s8, s6")
    e("s_and_b32 s9, s7, 0xffff")
    e("s_mov_b32 s12, s4")
    e("s_and_b32 s13, s5, 0xffff")
    MLB = 8
    OB = MLB + 2 * RPW
    for s in range(RPW):
        so = 16 + s // 4
        e("buffer_load_dwordx2 v[%d:%d], v2, s[8:11], s%d offen offset:%d" %
          (MLB + 2 * s, MLB + 2 * s + 1, so, (s % 4) * PART_STRIDE + DH * 4))
        e("buffer_load_dword v%d, v1, s[8:11], s%d offen offset:%d" % (OB + s, so, (s % 4) * PART_STRIDE))
    e("s_waitcnt vmcnt(0)")
    e("v_mov_b32 v4, v%d" % MLB)
    for s in range(1, RPW):
        e("v_max_f32 v4, v4, v%d" % (MLB + 2 * s))
    for s in range(RPW):
        e("v_sub_f32 v%d, v%d, v4" % (MLB + 2 * s, MLB + 2 * s))
    for s in range(RPW):
        e("v_exp_f32 v%d, v%d" % (MLB + 2 * s, MLB + 2 * s))
    e("v_mul_f32 v5, v%d, v%d" % (MLB, MLB + 1))
    e("v_mul_f32 v6, v%d, v%d" % (MLB, OB))
    for s in range(1, RPW):
        e("v_fmac_f32 v5, v%d, v%d" % (MLB + 2 * s, MLB + 2 * s + 1))
        e("v_fmac_f32 v6, v%d, v%d" % (MLB + 2 * s, OB + s))
    e("v_rcp_f32 v5, v5")
    e("v_mul_f32 v6, v6, v5")
    e("v_cvt_pk_bf16_f32 v6, v6, v6")
    e("s_mul_i32 s16, s2, %d" % (DH * 2))
    e("v_lshrrev_b32 v1, 1, v1")
    e("buffer_store_short v6, v1, s[12:15], s16 offen")
    e.lines.append("L_exit2:")
    e("s_endpgm")
    NV2 = OB + RPW

    def kd(name, nv, ns):
        acc = (nv + 3) // 4 * 4
        return """.amdhsa_kernel %s
  .amdhsa_next_free_vgpr %d
  .amdhsa_next_free_sgpr %d
  .amdhsa_accum_offset %d
  .amdhsa_group_segment_fixed_size 0
  .amdhsa_kernarg_size 80
  .amdhsa_user_sgpr_count 2
  .amdhsa_user_sgpr_kernarg_segment_ptr 1
  .amdhsa_system_sgpr_workgroup_id_x 1
.end_amdhsa_kernel
""" % (name, nv, ns, acc)

    out = HEADER.replace("gen.py", "gen6.py").format(params=" ".join("%s=%s" % kv for kv in sorted(P.items())))
    if FU:
        out += "; @launch kernel=%s grid=(%d,1,1) block=(%d,1,1) lds=%d\n" % (k1, NWG, (NW + NHX) * 64, LDS1)
    else:
        out += "; @launch kernel=%s grid=(%d,1,1) block=(%d,1,1) lds=%d\n" % (k1, NWG, (NW + NHX) * 64, LDS1)
        out += "; @launch kernel=%s grid=(%d,1,1) block=(%d,1,1) lds=%d\n" % (k2, H, DH, 0)
    out += '.amdgcn_target "amdgcn-amd-amdhsa--gfx950"\n.text\n'
    out += main_text if FU else e.text()
    out += '.section .rodata,"a"\n.p2align 6\n'
    out += kd(k1, NVGPR + (8 if P["xb"] else 2 if P["stamp"] == 5 else 0), 102)
    if not FU:
        out += ".p2align 6\n"
        out += kd(k2, NV2, 24)
    return out


DEFAULTS = dict(grp="6-6-6", n0=4, trg=1, ta=8, tb=12, jit=1, pace=1, nr0=1, nr=3, nt="nt", ldspad=0, stamp=0, xkp=0, force=0, clip=1400,
                l2t=290, th=200, pf=1, ob=2, ox=0, ds=1, td=3, tdm=3, fuse=1, cw=1,
                lx=0, wo=0, ns0=8, tw=1, ov="0000", st="sc1", xv="", h4=0, bnt=0, vw=1, at=1, tc=36, tg=2, te=40, aq=16, ka=12, kb=3584, dmin=0, dmax=11,
                bc=1, cpk="9-17-25-33-41", cpv="1-9-17-25", rd=2, ka2=8, kb2=512, bmax=6, be=1, pw=2, il=1, xp=0, ss=0, eb=0, pfi=0, hs=0, l2p=0, gts="16-32-48-64-80", gn=8, gtol=25, gcap=1000, xb=0)


def main():
    P = dict(DEFAULTS)
    outp = None
    args = sys.argv[1:]
    i = 0
    while i < len(args):
        a = args[i]
        if a == "-o":
            outp = args[i + 1]; i += 2; continue
        k, v = a.split("=", 1)
        assert k in P, k
        P[k] = type(P[k])(v.replace("+", " ")) if isinstance(P[k], str) else int(v)
        i += 1
    s = gen(P)
    if outp:
        open(outp, "w").write(s)
    else:
        sys.stdout.write(s)


if __name__ == "__main__":
    main()
```

```python
import re
import sys
import math
from gen import f32hex, HEADER, NAME, H, SKV, DH, G, NGRP, ROWB, HEADB
from gen4 import Emit4

PART_STRIDE = 1024
NW = 4
NH = 3
NWG = 256
NT = 48
WS_G = 8 << 20
FSTR = 4096 + 256
WS_ML = 0xe0000
WS_B = 0x120000
WS_L = 2 << 20
WS_T = 0x9c0000
WS_SIZE = 10 << 20
BIGNEG = 0xf149f2ca


def gen(P):
    GR = [int(x) for x in P["grp"].split("-")]
    assert sum(GR) == 18 and len(GR) >= 2
    NG = len(GR)
    GOFF = [sum(GR[:k]) for k in range(NG)]
    OV = [int(x) for x in P["ov"]]
    N0 = P["n0"]
    NR = P["nr"]
    TRG1 = N0 - P["trg"]
    TA = P["ta"]
    TB = P["tb"]
    assert 2 <= TRG1 < N0 < TA < TB < 16 and 1 <= NR <= 7 and N0 <= 8
    pol = (" " + P["nt"]) if P["nt"] else ""
    C = (DH ** -0.5) * math.log2(math.e)
    L_DEC = 0
    L_GO = 24
    L_PC = 36
    L_CF = 40
    L_FD = 52
    L_EV = 56
    L_CA = 64
    L_ML = 80
    L_TC = 128
    L_TD = 132
    L_TM = 144
    L_GT = 208
    L_LG = 256
    PHI = 6144
    IMG = 3 * PHI
    L_PV = L_LG + IMG
    L_ACC = L_PV + 192 * 128
    LDS1 = max(L_ACC + 3 * NW * ROWB, P["ldspad"])

    e = Emit4()
    V_T = 1; V_J16 = 2; V_J8 = 3; V_LB0 = 4; V_PB0 = 5; V_PV = 6; V_PVN = 7; V_DO = 8; V_PO = 9; V_T0 = 10; V_T1 = 11
    V_ACC = 12; V_W = 24; V_RAW = 36
    V_OFF = 48; V_OFF6 = 49; V_TM = 50; V_BIG = 51; V_T2 = 52; V_Z = 53
    V_S = 54
    V_D = 60
    V_T128 = 62; V_TMX = 63
    V_RING = 64
    NVGPR = V_RING + 72
    S_G = 3; S_M = 4; S_N = 5; S_SPIN = 6; S_LDC = 7
    S_K = 8; S_V = 12; S_KS = 16; S_Q = 20; S_WS = 24
    S_WAVE = 28; S_CI = 29; S_I = 30; S_QOFF = 31
    S_T = 32
    S_EV = 40; S_STM = 42; S_HB = 44; S_768 = 45; S_384 = 46; S_MAGIC = 47
    S_NB = 48; S_TD = 49; S_XB = 50; S_LB = 53
    S_ST = 54; S_DBG = 56
    S_BO = 59; S_TW = 60; S_CPA = 62; S_NBO = 63; S_BP = 72
    S_MP = 64; S_MG = 66; S_MR = 68; S_MO = 70
    BC = P["bc"]
    NHX = NH + (1 if BC else 0)
    CPK = [int(x) for x in P["cpk"].split("-")] if BC and P["cpk"] else []
    CPV = [int(x) for x in P["cpv"].split("-")] if BC and P["cpv"] else []
    if BC:
        CPV.append(P["tc"])
        assert P["te"] == P["tc"] + P["tg"] + P["rd"] and len(CPK) + len(CPV) <= 16

    GTS = [int(x) for x in P["gts"].split("-")] if BC and P["gts"] else []

    def set_masks(ev, cps):
        mp = sum(1 << c for c in cps)
        allm = [(S_EV, ev | mp | (mp << P["tg"]) | (mp << (P["tg"] + P["rd"])))]
        if BC:
            allm += [(S_MP, mp), (S_MG, mp << P["tg"]), (S_MR, mp << (P["tg"] + P["rd"])), (S_MO, ev)]
        for r, v in allm:
            assert v < (1 << 48)
            e("s_mov_b32 s%d, 0x%x" % (r, v & 0xffffffff))
            e("s_mov_b32 s%d, 0x%x" % (r + 1, v >> 32))

    FU = P["fuse"]
    k1 = NAME + "_kernel" if FU else "part_kernel"
    e.lines.append(".globl %s" % k1)
    e.lines.append(".p2align 8")
    e.lines.append(".type %s,@function" % k1)
    e.lines.append(k1 + ":")
    e("s_cmp_ge_u32 s2, %d" % NWG)
    e("s_cbranch_scc1 L_exit1")
    e("s_load_dwordx16 s[64:79], s[0:1], 0")
    e("s_load_dwordx4 s[80:83], s[0:1], 64")
    if P["stamp"]:
        e("s_memrealtime s[%d:%d]" % (S_ST, S_ST + 1))
    e("v_lshrrev_b32 v%d, 6, v0" % V_T0)
    e("v_and_b32 v%d, 63, v0" % V_T1)
    e("v_readfirstlane_b32 s%d, v%d" % (S_WAVE, V_T0))
    e("s_lshr_b32 s%d, s2, 3" % S_G)
    e("s_and_b32 s%d, s2, 7" % S_M)
    e("s_lshr_b32 s%d, s2, 6" % S_T)
    e("s_xor_b32 s%d, s%d, s%d" % (S_T, S_T, S_M))
    e("s_lshr_b32 s%d, s%d, 1" % (S_NB, S_T))
    e("s_and_b32 s%d, s%d, 1" % (S_T, S_T))
    e("s_lshl_b32 s%d, s%d, 2" % (S_T, S_T))
    e("s_or_b32 s%d, s%d, s%d" % (S_NB, S_NB, S_T))
    e("s_cmp_ge_u32 s%d, %d" % (S_WAVE, NW))
    e("s_cbranch_scc1 L_helper")

    def srd(dst, ptr, nbytes):
        e("s_mov_b32 s%d, s%d" % (dst, ptr))
        e("s_and_b32 s%d, s%d, 0xffff" % (dst + 1, ptr + 1))
        e("s_mov_b32 s%d, %d" % (dst + 2, nbytes))
        e("s_mov_b32 s%d, 0x00020000" % (dst + 3))

    def lds_wait(tag, vz, vt, st, off, cond, spin, vaddr=None):
        e("s_mov_b32 s%d, 0x100000" % spin)
        e.label("L_w" + tag)
        e("ds_read_b32 v%d, v%d offset:%d" % (vt, vz if vaddr is None else vaddr, off))
        e("s_sub_u32 s%d, s%d, 1" % (spin, spin))
        e("s_cbranch_scc1 L_exit1")
        e("s_waitcnt lgkmcnt(0)")
        e("v_readfirstlane_b32 s%d, v%d" % (st, vt))
        if cond == "nz":
            e("s_cmp_eq_u32 s%d, 0" % st)
        else:
            e("s_cmp_lt_u32 s%d, %s" % (st, cond))
        e("s_cbranch_scc1 L_w" + tag)

    def gate(b, tag, check):
        if b not in GTS:
            return
        if check:
            e("s_cmp_eq_u32 s%d, %d" % (S_I, b % 48))
            e("s_cbranch_scc0 L_gx" + tag)
        e("s_memrealtime s[%d:%d]" % (S_T + 4, S_T + 5))
        lds_wait("g" + tag, V_Z, V_T0, S_T, L_GT + 4 * GTS.index(b), "nz", S_SPIN)
        e("s_and_b32 s%d, s%d, 0xffff" % (S_T, S_T))
        e("s_cbranch_scc0 L_gx" + tag)
        if P["stamp"] == 5:
            e("s_lshl_b32 s%d, s%d, 16" % (S_T + 1, S_T))
            e("s_add_u32 s%d, s%d, s%d" % (S_NBO, S_NBO, S_T + 1))
        e("s_add_u32 s%d, s%d, s%d" % (S_T, S_T, S_T + 4))
        e.label("L_gl" + tag)
        e("s_memrealtime s[%d:%d]" % (S_T + 4, S_T + 5))
        e("s_waitcnt lgkmcnt(0)")
        e("s_sub_u32 s%d, s%d, s%d" % (S_T + 4, S_T + 4, S_T))
        e("s_cmp_lt_i32 s%d, 0" % (S_T + 4))
        e("s_cbranch_scc1 L_gl" + tag)
        e.label("L_gx" + tag)

    def get_table(kind, tag):
        if tag == "tv":
            gate(48, tag, False)
        else:
            for b in ((16, 32) if kind == "K" else (64, 80)):
                gate(b, "%s%d" % (tag, b), True)
        e("s_lshr_b32 s%d, s%d, 4" % (S_T + 1, S_I))
        e("s_lshl_b32 s%d, s%d, 2" % (S_T + 2, S_T + 1))
        if P["stamp"] == 6:
            e("s_memrealtime s[%d:%d]" % (S_T + 4, S_T + 5))
            e("s_lshl_b32 s%d, s2, 2" % S_T)
            e("s_add_u32 s%d, s%d, s%d" % (S_T, S_T, S_WAVE))
            e("s_cmp_eq_u32 s%d, 400" % S_T)
            e("s_cselect_b64 exec, 1, 0")
            e("s_waitcnt lgkmcnt(0)")
            e("s_sub_u32 s%d, s%d, s%d" % (S_T + 4, S_T + 4, S_ST))
            e("v_mov_b32 v%d, s%d" % (V_T1, S_T + 4))
            e("buffer_store_dword v%d, off, s[%d:%d], s%d offset:%d" % (V_T1, S_WS, S_WS + 3, S_T + 2, 40 if kind == "K" else 52))
            e("s_mov_b64 exec, -1")
        e("v_mov_b32 v%d, s%d" % (V_T1, S_T + 2))
        if kind == "K":
            load_q(S_T + 1, False)
        lds_wait(tag, V_Z, V_T0, S_T, L_DEC if kind == "K" else L_GO, "nz", S_SPIN, V_T1)
        e("s_and_b32 s%d, s%d, 7" % (S_N, S_T))
        e("s_xor_b32 s%d, s%d, s%d" % (S_N, S_N, S_NB))
        e("s_bitcmp1_b32 s%d, 3" % S_T)
        e("s_cselect_b64 vcc, -1, 0")
        e("v_cndmask_b32 v%d, v%d, v%d, vcc" % (V_TM, V_T128, V_TMX))

    def load_q(ph, track):
        e("s_lshl_b32 s%d, s%d, 5" % (S_QOFF, ph))
        e("s_add_u32 s%d, s%d, s%d" % (S_QOFF, S_QOFF, S_G))
        e("s_mul_i32 s%d, s%d, 171" % (S_QOFF, S_QOFF))
        e("s_lshr_b32 s%d, s%d, 9" % (S_QOFF, S_QOFF))
        e("s_mul_i32 s%d, s%d, %d" % (S_QOFF, S_QOFF, DH * 2))
        for c in range(3):
            r = V_RAW + 2 * c
            s = "buffer_load_dwordx2 v[%d:%d], v%d, s[%d:%d], s%d offen offset:%d" % (r, r + 1, V_J8, S_Q, S_Q + 3, S_QOFF, c * 128)
            if track:
                e.vmem(s, "p")
            else:
                e(s)

    def tile_addr(kind):
        ch, a, b = S_T, S_T + 1, S_T + 2
        e("s_lshr_b32 s%d, s%d, 6" % (a, S_CI))
        e("s_lshl_b32 s%d, s%d, 11" % (a, a))
        e("s_and_b32 s%d, s%d, 63" % (ch, S_CI))
        e("s_add_u32 s%d, s%d, s%d" % (ch, ch, a))
        e("s_add_u32 s%d, s%d, s%d" % (ch, ch, S_HB))
        e("s_bfe_u32 s%d, s%d, 0x20003" % (a, ch))
        e("s_and_b32 s%d, s%d, 4" % (b, ch))
        e("s_or_b32 s%d, s%d, s%d" % (a, a, b))
        e("s_xor_b32 s%d, s%d, s%d" % (a, a, S_N))
        e("s_lshl_b32 s%d, s%d, 5" % (S_XB, ch))
        e("s_or_b32 s%d, s%d, s%d" % (S_XB, S_XB, a))
        e("s_lshl_b32 s%d, s%d, 4" % (S_XB, S_XB))
        e("s_or_b32 s%d, s%d, 1" % (S_XB, S_XB))
        if kind == "V":
            e("s_lshl_b32 s%d, s%d, 7" % (S_LB, S_CI))
        e("v_xor_b32 v%d, s%d, v%d" % (V_T0, S_XB, V_TM))
        e("v_mul_hi_u32 v%d, v%d, s%d" % (V_T0, V_T0, S_MAGIC))
        e("v_lshrrev_b32 v%d, 1, v%d" % (V_T0, V_T0))
        e("v_and_b32 v%d, 15, v%d" % (V_T1, V_T0))
        e("v_cmp_eq_u32 vcc, 5, v%d" % V_T1)
        e("v_mad_u32_u24 v%d, v%d, s%d, v%d" % (V_OFF, V_T0, S_768, V_J16))
        e("v_add_u32 v%d, %d, v%d" % (V_T1, 5 * ROWB, V_OFF))
        e("v_cndmask_b32 v%d, v%d, v%d, vcc" % (V_OFF6, V_BIG, V_T1))
        if kind == "K":
            e("v_lshrrev_b32 v%d, 6, v%d" % (V_T0, V_T0))
            e("v_mad_u32_u24 v%d, v%d, s%d, v%d" % (V_PO, V_T0, S_384, V_J8))
        else:
            e("v_add_u32 v%d, s%d, v%d" % (V_T0, S_LB, V_PB0))

    def issue_params(kind):
        if kind == "K":
            if P["xkp"] & 2:
                return
            for c in range(3):
                r = V_RAW + 6 + 2 * c
                e.vmem("buffer_load_dwordx2 v[%d:%d], v%d, s[%d:%d], 0 offen offset:%d%s" %
                       (r, r + 1, V_PO, S_KS, S_KS + 3, c * 128, " nt" if P["bnt"] & 4 else ""), "p")
            if P["xb"] & 2:
                for c in range(3):
                    r = NVGPR + 2 + 2 * c
                    e.vmem("buffer_load_dwordx2 v[%d:%d], v%d, s[%d:%d], 0 offen offset:%d" % (r, r + 1, V_PO, 76, 79, c * 128), "p")
        else:
            e("ds_read_b32 v%d, v%d" % (V_PVN, V_T0))

    def issue_group(k, kind, pol=pol):
        srdb = S_K if kind == "K" else S_V
        for l in range(GOFF[k], GOFF[k] + GR[k]):
            r = V_RING + l * 4
            if l < 15:
                vo, off = V_OFF, l * 256
            else:
                vo, off = V_OFF6, (l - 15) * 256
            e.vmem("buffer_load_dwordx4 v[%d:%d], v%d, s[%d:%d], 0 offen offset:%d%s" %
                   (r, r + 3, vo, srdb, srdb + 3, off, pol), "g%d" % k)

    def compute_w():
        e.wait_tag("p")
        for p in range(6):
            rq = V_RAW + p; rs = V_RAW + 6 + p
            i0 = 2 * p
            e("v_lshlrev_b32 v%d, 16, v%d" % (V_T0, rq))
            e("v_lshlrev_b32 v%d, 16, v%d" % (V_W + i0, rs))
            e("v_and_b32 v%d, 0xffff0000, v%d" % (V_T1, rq))
            e("v_and_b32 v%d, 0xffff0000, v%d" % (V_W + i0 + 1, rs))
            e("v_mul_f32 v%d, v%d, v%d" % (V_W + i0, V_W + i0, V_T0))
            e("v_mul_f32 v%d, v%d, v%d" % (V_W + i0 + 1, V_W + i0 + 1, V_T1))

    def advance(kind, to_v, tag):
        nkind = "V" if to_v else kind
        if to_v:
            e("s_mov_b32 s%d, s%d" % (S_CI, S_WAVE))
            e("s_mov_b32 s%d, 0" % S_I)
            get_table("V", "tv")
            ev = (1 << 16) | (1 << 32)
            if P["at"] and not BC:
                ev |= (1 << P["tc"]) | (1 << (P["tc"] + P["tg"])) | (1 << P["te"])
            e("s_mov_b32 s%d, %d" % (S_TD, NT - P["td"] if P["td"] else 255))
            set_masks(ev, CPV)
        else:
            e("s_add_u32 s%d, s%d, %d" % (S_CI, S_CI, NW))
            e("s_add_u32 s%d, s%d, 1" % (S_I, S_I))
            if tag:
                e("s_bitcmp1_b64 s[%d:%d], s%d" % (S_EV, S_EV + 1, S_I))
                sfx = tag if isinstance(tag, str) else ""
                e("s_cbranch_scc1 L_ev%s%s" % (kind, sfx))
                e.flush()
                e.label("L_evret%s%s" % (kind, sfx))
        if P["stamp"] == 4:
            e("s_memrealtime s[%d:%d]" % (S_DBG, S_DBG + 1))
            e("s_add_u32 s%d, s%d, 4" % (S_DBG + 2, S_DBG + 2))
            e("s_waitcnt lgkmcnt(0)")
            e("v_mov_b32 v%d, s%d" % (V_T2, S_DBG))
            e("s_mov_b64 exec, 1")
            e("buffer_store_dword v%d, off, s[%d:%d], s%d" % (V_T2, S_WS, S_WS + 3, S_DBG + 2))
            e("s_mov_b64 exec, -1")
        if P["stamp"] == 5:
            e("s_memrealtime s[%d:%d]" % (S_DBG, S_DBG + 1))
            e("s_add_u32 m0, m0, 1")
            e("s_waitcnt lgkmcnt(0)")
            e("v_writelane_b32 v%d, s%d, m0" % (NVGPR + (1 if kind == "V" else 0), S_DBG))
            if to_v:
                e("s_mov_b32 m0, -1")
        tile_addr(nkind)
        issue_params(nkind)

    def compute(k, kind):
        for l in range(GOFF[k], GOFF[k] + GR[k]):
            q, c = l // 3, l % 3
            base = V_RING + l * 4
            for r in range(4):
                e("v_cvt_f32_i32 v%d, v%d" % (base + r, base + r))
            if kind == "K":
                s = V_S + q
                for r in range(4):
                    if c == 0 and r == 0:
                        e("v_mul_f32 v%d, v%d, v%d" % (s, base, V_W))
                    else:
                        e("v_fmac_f32 v%d, v%d, v%d" % (s, base + r, V_W + 4 * c + r))
                if c == 2:
                    e.defer(["v_add_f32_dpp v%d, v%d, v%d row_ror:%d row_mask:0xf bank_mask:0xf" % (s, s, s, kk)
                             for kk in (8, 4, 2)] +
                            ["v_add_f32_dpp v%d, v%d, v%d row_ror:1 row_mask:0xf bank_mask:0x%x" %
                             (V_D + (q & 1), s, s, 1 << (q >> 1))])
            else:
                for r in range(4):
                    e("v_fmac_f32_dpp v%d, v%d, v%d row_newbcast:%d row_mask:0xf bank_mask:0xf" %
                      (V_ACC + 4 * c + r, V_PV, base + r, q))
        e.flush()

    def finish(kind, to_v):
        if kind == "K":
            e("s_mov_b64 exec, s[%d:%d]" % (S_STM, S_STM + 1))
            e("ds_write_b64 v%d, v[%d:%d]" % (V_LB0, V_D, V_D + 1))
            e("s_mov_b64 exec, -1")
            if not to_v:
                e("v_add_u32 v%d, 48, v%d" % (V_LB0, V_LB0))
                compute_w()
        if kind == "V" or to_v:
            e("s_waitcnt lgkmcnt(0)")
            e("v_mov_b32 v%d, v%d" % (V_PV, V_PVN))

    def body(kind, to_v=False, first=False):
        nkind = "V" if to_v else kind
        for k in range(NG):
            ov = OV[k] if not first else 0
            if ov:
                i = e.vm.index("g%d" % k) + GR[k] - ov
                e("s_waitcnt vmcnt(%d)" % (len(e.vm) - i))
                e.vm = e.vm[i:]
            else:
                e.wait_tag("g%d" % k)
            if k + 1 < NG:
                if not first:
                    issue_group(k + 1, kind)
            else:
                issue_group(0, nkind)
            if ov:
                e("s_waitcnt vmcnt(%d)" % (len(e.vm) - ov))
                e.vm = e.vm[ov:]
            if k == NG - 2:
                advance(kind, to_v, not first)
            compute(k, kind)
        finish(kind, to_v)

    def body_deep(mode):
        if mode == 3:
            advance("V", False, False)
        for k in range(NG):
            i = e.vm.index("g%d" % k) + GR[k]
            e("s_waitcnt vmcnt(%d)" % (len(e.vm) - i))
            e.vm = e.vm[i:]
            if mode == 2:
                issue_group((k + 2) % NG, "V")
                if k == NG - 3:
                    advance("V", False, False)
            compute(k, "V")
            if mode == 3:
                issue_group(k, "V", "" if P["xkp"] & 256 else pol)
        finish("V", False)

    def body_boost(kind):
        for k in range(1, NG):
            issue_group(k, kind)
        e("s_sub_u32 s%d, s%d, 1" % (S_BO, S_BO))
        if P["stamp"] == 5:
            e("s_add_u32 s%d, s%d, 256" % (S_NBO, S_NBO))
        advance(kind, False, "B")
        for k in range(NG):
            e.wait_tag("g%d" % k)
            if k == NG - 1 and not P["be"]:
                issue_group(0, kind)
            compute(k, kind)
            if k == 0 and P["be"]:
                issue_group(0, kind)
        finish(kind, False)

    def lds_inc(off, vz, vt):
        e("v_mov_b32 v%d, 1" % vt)
        e("s_mov_b64 exec, 1")
        e("ds_add_u32 v%d, v%d offset:%d" % (vz, vt, off))
        e("s_mov_b64 exec, -1")

    e("v_lshrrev_b32 v%d, 4, v%d" % (V_T, V_T1))
    e("v_and_b32 v%d, 15, v%d" % (V_T2, V_T1))
    e("v_lshlrev_b32 v%d, 4, v%d" % (V_J16, V_T2))
    e("v_lshlrev_b32 v%d, 3, v%d" % (V_J8, V_T2))
    e("v_lshlrev_b32 v%d, 7, v%d" % (V_T128, V_T))
    e("v_and_b32 v%d, 0x70, v0" % V_TMX)
    e("v_or_b32 v%d, v%d, v%d" % (V_TMX, V_TMX, V_T128))
    e("v_mov_b32 v%d, v%d" % (V_TM, V_TMX))
    if P["h4"]:
        e("v_and_b32 v%d, 0x%x, v%d" % (V_T128, 0xffffff8f | (P["h4"] << 4), V_TMX))
    e("s_mov_b32 s%d, %d" % (S_768, ROWB))
    e("s_mov_b32 s%d, %d" % (S_384, DH * 2))
    e("s_mov_b32 s%d, 0xaaaaaaab" % S_MAGIC)
    e("v_mov_b32 v%d, 0xc0000000" % V_BIG)
    e("s_lshl_b32 s%d, s%d, 6" % (S_HB, S_G))
    e("s_mov_b32 s%d, s%d" % (S_N, S_NB))
    e("s_mov_b32 s%d, s%d" % (S_CI, S_WAVE))
    tile_addr("K")
    SS = P["ss"]
    EB = P["eb"]
    if SS:
        e("s_memrealtime s[84:85]")
    if EB == 3:
        e("s_barrier")
    e("s_waitcnt lgkmcnt(0)")
    if SS:
        e("s_memrealtime s[86:87]")
    if EB == 2:
        e("s_barrier")
    e("s_mov_b32 s%d, 0" % S_I)
    if P["xb"] & 2:
        srd(76, 72, H * NGRP * DH * 2)
    if P["pfi"]:
        srd(S_Q, 64, H * DH * 2)
        load_q(S_I, True)
        srd(S_KS, 70, H * NGRP * DH * 2)
        issue_params("K")
    srd(S_K, 66, H * HEADB)
    issue_group(0, "K")
    if EB == 1:
        e("s_barrier")
    if not P["pfi"]:
        srd(S_Q, 64, H * DH * 2)
        load_q(S_I, True)
        srd(S_KS, 70, H * NGRP * DH * 2)
        issue_params("K")
    if P["ds"]:
        for k in range(1, NG):
            issue_group(k, "K")
    if SS:
        e("s_memrealtime s[88:89]")
    srd(S_V, 68, H * HEADB)
    if P["stamp"] == 6:
        srd(S_WS, 80, 256)
    elif P["stamp"]:
        srd(S_WS, 82, 0x8000000)
    if P["stamp"] == 5:
        e("s_mov_b32 m0, -1")
    if P["stamp"] in (4, 5):
        e("s_mul_i32 s%d, s2, %d" % (S_DBG + 2, NW))
        e("s_add_u32 s%d, s%d, s%d" % (S_DBG + 2, S_DBG + 2, S_WAVE))
        e("s_lshl_b32 s%d, s%d, 9" % (S_DBG + 2, S_DBG + 2))
        e("s_add_u32 s%d, s%d, 0x4010000" % (S_DBG + 2, S_DBG + 2))
    e("v_lshlrev_b32 v%d, 5, v%d" % (V_T1, V_T))
    e("v_bfe_u32 v%d, v0, 4, 3" % V_LB0)
    e("v_mul_u32_u24 v%d, s%d, v%d" % (V_LB0, S_768, V_LB0))
    e("v_lshl_add_u32 v%d, v%d, 1, v%d" % (V_LB0, V_T2, V_LB0))
    e("s_lshr_b32 s%d, s%d, 1" % (S_T, S_WAVE))
    e("s_mul_i32 s%d, s%d, 24" % (S_T, S_T))
    e("s_add_u32 s%d, s%d, %d" % (S_T, S_T, L_LG))
    e("v_add_u32 v%d, s%d, v%d" % (V_LB0, S_T, V_LB0))
    e("v_and_b32 v%d, 7, v%d" % (V_PB0, V_T2))
    e("v_lshl_add_u32 v%d, v%d, 2, v%d" % (V_PB0, V_PB0, V_T1))
    e("v_add_u32 v%d, %d, v%d" % (V_PB0, L_PV, V_PB0))
    e("v_lshlrev_b32 v%d, 2, v%d" % (V_DO, V_T))
    e("v_add_u32 v%d, v%d, v%d" % (V_DO, V_J16, V_DO))
    e("s_mul_i32 s%d, s%d, %d" % (S_T, S_WAVE, ROWB))
    e("s_add_u32 s%d, s%d, %d" % (S_T, S_T, L_ACC))
    e("v_add_u32 v%d, s%d, v%d" % (V_DO, S_T, V_DO))
    e("v_mov_b32 v%d, 0" % V_Z)
    e("v_mov_b32 v%d, 0" % V_D)
    e("v_mov_b32 v%d, 0" % (V_D + 1))
    e("s_mov_b32 s%d, 0x01110111" % S_STM)
    e("s_mov_b32 s%d, 0x01110111" % (S_STM + 1))
    ev = (1 << TRG1) | (1 << N0) | (3 << 16) | (3 << 32) | (((1 << TA) | (1 << TB)) * 0x100010001)
    set_masks(ev, CPK)
    if BC:
        e("s_mov_b32 s%d, 0" % S_BO)
        e("s_mov_b32 s%d, 0" % S_NBO)
        e("s_mov_b32 s%d, 0" % S_LDC)
        e("s_mov_b32 s%d, %d" % (S_CPA, L_TM))
    for i in range(12):
        e("v_mov_b32 v%d, 0" % (V_ACC + i))
    if SS:
        e("s_memrealtime s[90:91]")
    if not EB:
        e("s_barrier")
    if SS:
        e("s_memrealtime s[92:93]")
        e("s_waitcnt vmcnt(23)")
        e("s_memrealtime s[94:95]")
        e("s_waitcnt vmcnt(18)")
        e("s_memrealtime s[96:97]")
    compute_w()
    if SS:
        e("s_memrealtime s[98:99]")
        e("s_waitcnt lgkmcnt(0)")
        for k in range(8):
            e("v_writelane_b32 v%d, s%d, %d" % (NVGPR + 1, 84 + 2 * k, 48 + k))
    steady = ["g0"] * GR[0]
    if P["ds"]:
        body("K", first=True)
    e.vm = list(steady)
    e.lines.append(".p2align 6")
    e.label("L_kloop")
    body("K")
    assert e.vm == steady, (e.vm, steady)
    if BC:
        e.label("L_kchk")
        e("s_cmp_lg_u32 s%d, 0" % S_BO)
        e("s_cbranch_scc1 L_kboost")
        e.label("L_kchk2")
    e("s_cmp_lg_u32 s%d, %d" % (S_I, NT - 1))
    e("s_cbranch_scc1 L_kloop")
    body("K", True)
    lds_inc(L_CF + 8, V_Z, V_T1)
    if P["stamp"] == 1:
        e("s_memrealtime s[%d:%d]" % (S_DBG, S_DBG + 1))
    e.lines.append(".p2align 6")
    e.label("L_vloop")
    body("V")
    assert e.vm == steady, (e.vm, steady)
    if BC:
        e.label("L_vchk")
    if P["td"] or P["at"]:
        e("s_cmp_eq_u32 s%d, s%d" % (S_I, S_TD))
        e("s_cbranch_scc1 L_deep")
    if BC:
        e("s_cmp_lg_u32 s%d, 0" % S_BO)
        e("s_cbranch_scc1 L_vboost")
    e("s_and_b32 s%d, s%d, 15" % (S_T, S_I))
    e("s_cbranch_scc1 L_vloop")
    e.label("L_vend")
    for c in range(3):
        a = V_ACC + 4 * c
        e("v_permlane32_swap_b32 v%d, v%d" % (a, a + 2))
        e("v_permlane32_swap_b32 v%d, v%d" % (a + 1, a + 3))
    for c in range(3):
        a = V_ACC + 4 * c
        e("v_add_f32 v%d, v%d, v%d" % (a, a, a + 2))
        e("v_add_f32 v%d, v%d, v%d" % (a + 1, a + 1, a + 3))
    for c in range(3):
        a = V_ACC + 4 * c
        e("v_permlane16_swap_b32 v%d, v%d" % (a, a + 1))
    e("s_lshr_b32 s%d, s%d, 2" % (S_T, S_I))
    e("v_mov_b32 v%d, s%d" % (V_T0, S_T))
    for c in range(3):
        a = V_ACC + 4 * c
        e("v_add_f32 v%d, v%d, v%d" % (a, a, a + 1))
        e("ds_write_b32 v%d, v%d offset:%d" % (V_DO, a, c * 256))
    lds_inc(L_CA - 4, V_T0, V_T1)
    e("v_add_u32 v%d, %d, v%d" % (V_DO, NW * ROWB, V_DO))
    for i in range(12):
        e("v_mov_b32 v%d, 0" % (V_ACC + i))
    if BC:
        e("s_cmp_lg_u32 s%d, 0" % S_BO)
        e("s_cbranch_scc1 L_vboost2")
        e.label("L_vend2")
    e("s_cmp_lg_u32 s%d, %d" % (S_I, NT))
    e("s_cbranch_scc1 L_vloop")
    if P["stamp"] == 5 and BC:
        e("s_or_b32 s%d, s%d, s%d" % (S_LDC, S_LDC, S_NBO))
    if P["stamp"] == 6:
        e("s_memrealtime s[%d:%d]" % (S_T + 2, S_T + 3))
        e("s_not_b32 s%d, s%d" % (S_T, S_ST))
        e("v_mov_b32 v%d, s%d" % (V_ACC, S_T))
        e("s_waitcnt lgkmcnt(0)")
        e("v_mov_b32 v%d, s%d" % (V_ACC + 1, S_T + 2))
        e("s_mov_b64 exec, 1")
        e("s_cmp_lg_u32 s%d, 0" % S_WAVE)
        e("s_cbranch_scc1 L_exit1")
        e("buffer_atomic_umax v%d, off, s[%d:%d], 0 offset:32" % (V_ACC, S_WS, S_WS + 3))
        e("buffer_atomic_umax v%d, off, s[%d:%d], 0 offset:36" % (V_ACC + 1, S_WS, S_WS + 3))
    elif P["stamp"]:
        e("s_memrealtime s[%d:%d]" % (S_T + 2, S_T + 3))
        e("s_getreg_b32 s%d, hwreg(HW_REG_XCC_ID)" % (S_T + 4))
        e("s_waitcnt lgkmcnt(0)")
        e("v_mov_b32 v%d, s%d" % (V_ACC + 0, S_ST))
        e("v_mov_b32 v%d, s%d" % (V_ACC + 1, S_T + 2))
        e("v_mov_b32 v%d, s%d" % (V_ACC + 2, S_T + 4))
        e("v_mov_b32 v%d, s%d" % (V_ACC + 3, S_LDC if P["stamp"] == 5 else S_DBG))
        e("s_mul_i32 s%d, s2, %d" % (S_T, NW))
        e("s_add_u32 s%d, s%d, s%d" % (S_T, S_T, S_WAVE))
        e("s_lshl_b32 s%d, s%d, 4" % (S_T, S_T))
        e("s_add_u32 s%d, s%d, 0x4000000" % (S_T, S_T))
        e("buffer_store_dwordx4 v[%d:%d], v%d, s[%d:%d], s%d offen" % (V_ACC, V_ACC + 3, V_Z, S_WS, S_WS + 3, S_T))
        if P["stamp"] == 5:
            e("v_and_b32 v%d, 63, v0" % V_T0)
            e("v_lshlrev_b32 v%d, 2, v%d" % (V_T0, V_T0))
            e("s_mov_b32 exec_hi, 0xffff")
            e("buffer_store_dword v%d, v%d, s[%d:%d], s%d offen offset:4" % (NVGPR, V_T0, S_WS, S_WS + 3, S_DBG + 2))
            e("s_mov_b32 exec_hi, -1")
            e("buffer_store_dword v%d, v%d, s[%d:%d], s%d offen offset:196" % (NVGPR + 1, V_T0, S_WS, S_WS + 3, S_DBG + 2))
    e.lines.append("L_exit1:")
    e("s_endpgm")

    if P["td"] or P["at"]:
        e.label("L_deep")
        e.vm = list(steady)
        for k in range(1, P["tdm"] if NG == 3 else NG):
            issue_group(k, "V")
        deep = list(e.vm)
        e.lines.append(".p2align 6")
        e.label("L_dloop")
        body_deep(P["tdm"])
        assert e.vm == deep, (e.vm, deep)
        e("s_cmp_lg_u32 s%d, %d" % (S_I, NT))
        e("s_cbranch_scc1 L_dloop")
        e("s_branch L_vend")

    if BC:
        e.label("L_kboost")
        e("s_cmp_eq_u32 s%d, %d" % (S_I, NT - 1))
        e("s_cbranch_scc1 L_kchk2")
        e.vm = list(steady)
        body_boost("K")
        assert e.vm == steady, (e.vm, steady)
        e("s_branch L_kchk")
        e.label("L_vboost")
        e("s_and_b32 s%d, s%d, 15" % (S_T, S_I))
        e("s_cbranch_scc0 L_vend")
        e.label("L_vboost2")
        e("s_cmp_eq_u32 s%d, %d" % (S_I, NT))
        e("s_cbranch_scc1 L_vend2")
        body_boost("V")
        assert e.vm == steady, (e.vm, steady)
        e("s_branch L_vchk")

    def pace_events(kind, x):
        e("s_bitcmp1_b64 s[%d:%d], s%d" % (S_MP, S_MP + 1, S_I))
        e("s_cbranch_scc0 L_pa%s%s" % (kind, x))
        e("s_memrealtime s[%d:%d]" % (S_TW, S_TW + 1))
        e("s_mov_b32 s%d, s%d" % (S_BP, S_BO))
        lds_inc(L_TC, V_Z, V_T1)
        e.label("L_pa%s%s" % (kind, x))
        e("s_bitcmp1_b64 s[%d:%d], s%d" % (S_MG, S_MG + 1, S_I))
        e("s_cbranch_scc0 L_pb%s%s" % (kind, x))
        lds_inc(L_TC, V_Z, V_T1)
        e.label("L_pb%s%s" % (kind, x))
        e("s_bitcmp1_b64 s[%d:%d], s%d" % (S_MR, S_MR + 1, S_I))
        e("s_cbranch_scc0 L_pc%s%s" % (kind, x))
        e("v_mov_b32 v%d, s%d" % (V_T1, S_CPA))
        e("ds_read_b32 v%d, v%d" % (V_T0, V_T1))
        lds_inc(L_TC, V_Z, V_T1)
        e("s_add_u32 s%d, s%d, 4" % (S_CPA, S_CPA))
        e("s_waitcnt lgkmcnt(0)")
        e("v_readfirstlane_b32 s%d, v%d" % (S_T, V_T0))
        e("s_cmp_eq_u32 s%d, 0" % S_T)
        e("s_cbranch_scc1 L_pc%s%s" % (kind, x))
        e("s_sub_u32 s%d, s%d, s%d" % (S_T, S_TW, S_T))
        e("s_max_i32 s%d, s%d, -4096" % (S_T, S_T))
        e("s_min_i32 s%d, s%d, 4096" % (S_T, S_T))
        if kind == "V":
            e("s_cmp_eq_u32 s%d, %d" % (S_I, P["te"]))
            e("s_cbranch_scc0 L_pd%s" % x)
            e("s_mul_i32 s%d, s%d, %d" % (S_T, S_T, P["ka"]))
            e("s_add_u32 s%d, s%d, %d" % (S_T, S_T, P["kb"]))
            e("s_ashr_i32 s%d, s%d, 10" % (S_T, S_T))
            e("s_max_i32 s%d, s%d, %d" % (S_T, S_T, P["dmin"]))
            e("s_min_i32 s%d, s%d, %d" % (S_T, S_T, min(P["dmax"], NT - P["te"])))
            e("s_sub_u32 s%d, %d, s%d" % (S_TD, NT, S_T))
            e("s_cmp_eq_u32 s%d, %d" % (S_TD, NT))
            e("s_cselect_b32 s%d, 255, s%d" % (S_TD, S_TD))
            e("s_mov_b32 s%d, 0" % S_BO)
            if P["stamp"] == 5:
                e("s_mov_b32 s%d, s%d" % (S_LDC, S_TD))
            e("s_branch L_pc%s%s" % (kind, x))
            e.label("L_pd%s" % x)
        e("s_mul_i32 s%d, s%d, %d" % (S_T, S_T, P["ka2"]))
        e("s_add_u32 s%d, s%d, %d" % (S_T, S_T, P["kb2"]))
        e("s_ashr_i32 s%d, s%d, 10" % (S_T, S_T))
        e("s_sub_u32 s%d, s%d, s%d" % (S_T, S_T, S_BP))
        e("s_add_u32 s%d, s%d, s%d" % (S_T, S_T, S_BO))
        e("s_max_i32 s%d, s%d, 0" % (S_T, S_T))
        e("s_min_i32 s%d, s%d, %d" % (S_BO, S_T, P["bmax"]))
        e.label("L_pc%s%s" % (kind, x))
        e("s_bitcmp1_b64 s[%d:%d], s%d" % (S_MO, S_MO + 1, S_I))
        e("s_cbranch_scc0 L_evret%s%s" % (kind, x))

    for x in (("", "B") if BC else ("",)):
        e.label("L_evK" + x)
        if BC:
            pace_events("K", x)
        e("s_and_b32 s%d, s%d, 15" % (S_T, S_I))
        e("s_cbranch_scc0 L_evK2" + x)
        e("s_cmp_eq_u32 s%d, %d" % (S_I, N0))
        e("s_cbranch_scc1 L_evK2" + x)
        e("s_lshr_b32 s%d, s%d, 2" % (S_T + 1, S_I))
        e("s_andn2_b32 s%d, s%d, 3" % (S_T + 1, S_T + 1))
        e("s_add_u32 s%d, s%d, %d" % (S_T + 1, S_T + 1, L_CF - 4))
        e("s_cmp_eq_u32 s%d, 1" % S_T)
        e("s_cselect_b32 s%d, s%d, %d" % (S_T, S_T + 1, L_EV + 4))
        e("s_cselect_b32 s%d, %d, 0" % (S_T + 1, PHI - 768))
        e("v_add_u32 v%d, s%d, v%d" % (V_LB0, S_T + 1, V_LB0))
        e("s_cmp_eq_u32 s%d, %d" % (S_I, TRG1))
        e("s_cselect_b32 s%d, %d, s%d" % (S_T, L_EV, S_T))
        e("v_mov_b32 v%d, s%d" % (V_T0, S_T))
        lds_inc(0, V_T0, V_T1)
        e("s_branch L_evretK" + x)
        e.label("L_evK2" + x)
        if P["stamp"] == 2:
            e("s_cmp_eq_u32 s%d, %d" % (S_I, N0))
            e("s_cbranch_scc0 L_ns2")
            e("s_memrealtime s[%d:%d]" % (S_DBG, S_DBG + 1))
            e.label("L_ns2")
        get_table("K", "tk" + x)
        if P["stamp"] == 3:
            e("s_cmp_eq_u32 s%d, %d" % (S_I, N0))
            e("s_cbranch_scc0 L_evretK")
            e("s_memrealtime s[%d:%d]" % (S_DBG, S_DBG + 1))
        e("s_branch L_evretK" + x)
        e.label("L_evV" + x)
        if BC:
            pace_events("V", x)
        elif P["at"]:
            e("s_and_b32 s%d, s%d, 15" % (S_T, S_I))
            e("s_cbranch_scc0 L_evV2")
            e("s_cmp_eq_u32 s%d, %d" % (S_I, P["te"]))
            e("s_cbranch_scc1 L_evV3")
            lds_inc(L_TC, V_Z, V_T1)
            e("s_branch L_evretV")
            e.label("L_evV3")
            e("ds_read_b32 v%d, v%d offset:%d" % (V_T0, V_Z, L_TD))
            e("s_waitcnt lgkmcnt(0)")
            e("v_readfirstlane_b32 s%d, v%d" % (S_T, V_T0))
            e("s_cmp_eq_u32 s%d, 0" % S_T)
            e("s_cselect_b32 s%d, s%d, s%d" % (S_TD, S_TD, S_T))
            if P["stamp"] == 5:
                e("s_mov_b32 s%d, s%d" % (S_LDC, S_T))
            e("s_branch L_evretV")
            e.label("L_evV2")
        get_table("V", "tv2" + x)
        e("s_branch L_evretV" + x)

    PG = S_G; PM = S_M
    PNB = 5; PP = 6; PBK = 7
    PB = 8; PWS = 12; PDB = 16
    PO = 20; PFL = 21; PBASE = 22; PPR = 90
    PD = 24
    POF = 32
    PT = 40
    PMN = 44; PJ = 45; PRN = 46; PNR = 47
    PE = 48
    PRB = 56; PACC = 58; PGL = 59; PSP = 60; PPH = 61; PSG = 62; PG0 = 63
    PDC = 84
    PS2 = 92; PS3 = 96
    HL = 1; HZ = 2; HW = 3; HA = 4; HB_ = 5; HC = 6; HD = 7; HK = 8; HV = 9; HE = 10; HF = 11; HR = 12; HG = 13
    HN = 14; HT2 = 15
    HX = 16
    BIAS = 65536
    e.wr = {}; e.tr = {}
    e.label("L_helper")
    e("s_sub_u32 s%d, s%d, %d" % (PP, S_WAVE, NW))
    e("s_mov_b32 s%d, s%d" % (PNB, S_NB))
    e("v_mov_b32 v%d, v%d" % (HL, V_T1))
    e("v_mov_b32 v%d, 0" % HZ)
    e("s_mul_i32 s%d, s%d, %d" % (PGL, PG, 8 * FSTR))
    e("s_add_u32 s%d, s%d, %d" % (PGL, PGL, WS_G))
    if EB:
        e("s_cmp_lg_u32 s%d, 0" % PP)
        e("s_cbranch_scc1 L_hbar")
        e("v_lshlrev_b32 v%d, 2, v%d" % (HB_, HL))
        e("ds_write_b32 v%d, v%d" % (HB_, HZ))
        e("s_waitcnt lgkmcnt(0)")
        e.label("L_hbar")
        e("s_barrier")
    if BC:
        e("s_cmp_eq_u32 s%d, 3" % PP)
        e("s_cbranch_scc1 L_h3")
    e("s_mul_i32 s%d, s%d, 10" % (PE, PP))
    e("s_sub_u32 s%d, s%d, 7" % (PE, PE))
    e("s_cmp_lt_i32 s%d, s%d" % (PG, PE))
    e("s_cselect_b32 s%d, 1, 0" % PPR)
    e("s_cbranch_scc0 L_noprobe1")
    e("s_max_u32 s%d, s%d, 1" % (PBK, PG))
    e("s_sub_u32 s%d, s%d, 1" % (PBK, PBK))
    e("s_lshr_b32 s%d, s%d, 1" % (PBK, PBK))
    e("s_lshl_b32 s%d, s%d, 1" % (PE + 1, PG))
    e("s_add_u32 s%d, s%d, s%d" % (PE + 1, PE + 1, PP))
    e("s_sub_u32 s%d, s%d, 1" % (PE + 1, PE + 1))
    e("s_bitcmp1_b32 s%d, 0" % PG)
    e("s_cselect_b32 s%d, 1, 4" % PE)
    e("s_cmp_eq_u32 s%d, 0" % PBK)
    e("s_cselect_b32 s%d, s%d, s%d" % (PE + 1, PE + 1, PE))
    e("s_and_b32 s%d, s%d, 1" % (PE, PE + 1))
    e("s_mul_i32 s%d, s%d, 20" % (PO, PE + 1))
    e("s_add_u32 s%d, s%d, s%d" % (PO, PO, PE))
    e("s_add_u32 s%d, s%d, 2" % (PO, PO))
    e("s_lshl_b32 s%d, s%d, 21" % (PO, PO))
    e("s_xor_b32 s%d, s%d, s%d" % (PFL, PM, PP))
    e("s_and_b32 s%d, s%d, 1" % (PFL, PFL))
    e("s_lshr_b32 s%d, s%d, 2" % (PE + 1, PM))
    e("s_xor_b32 s%d, s%d, s%d" % (PE, PE, PE + 1))
    e("s_xor_b32 s%d, s%d, s%d" % (PE, PE, PFL))
    e("s_lshl_b32 s%d, s%d, 13" % (PE, PE))
    e("s_lshl_b32 s%d, s%d, 14" % (PE + 1, PP))
    e("s_and_b32 s%d, s%d, 0x4000" % (PE + 1, PE + 1))
    e("s_or_b32 s%d, s%d, s%d" % (PE, PE, PE + 1))
    for u in range(8):
        e("s_xor_b32 s%d, s%d, 0x%x" % (POF + u, PE, ((u & 1) << 13) | (((u >> 1) & 1) << 12) | ((u >> 2) << 14)))
    e("v_and_b32 v%d, 7, v%d" % (HW, HL))
    e("v_lshlrev_b32 v%d, 12, v%d" % (HW, HW))
    e("s_lshl_b32 s%d, s%d, 8" % (PE, PM))
    e("v_add_u32 v%d, s%d, v%d" % (HW, PE, HW))
    e("s_mov_b32 s%d, %d" % (PB + 2, H * HEADB))
    e("s_mov_b32 s%d, 0x00020000" % (PB + 3))
    e("s_cmp_ge_u32 s%d, 3" % PBK)
    e("s_cselect_b32 s%d, 3, 0" % PE)
    e("s_sub_u32 s%d, s%d, s%d" % (PE, PBK, PE))
    e("s_lshl_b32 s%d, s%d, 28" % (PE, PE))
    e("s_add_u32 s%d, s%d, s%d" % (PO, PO, PE))
    e("s_cmp_ge_u32 s%d, 3" % PBK)
    e("s_waitcnt lgkmcnt(0)")
    e("s_cselect_b32 s%d, s68, s66" % PB)
    e("s_cselect_b32 s%d, s69, s67" % (PBASE + 1))
    e("s_and_b32 s%d, s%d, 0xffff" % (PB + 1, PBASE + 1))
    e("s_mov_b64 exec, 0xff")
    e("buffer_load_dword v%d, v%d, s[%d:%d], s%d offen" % (HA, HW, PB, PB + 3, PO))
    e("s_mov_b64 exec, -1")
    e("s_add_u32 s%d, s%d, s%d" % (PBASE, PB, PO))
    e("s_addc_u32 s%d, s%d, 0" % (PBASE + 1, PBASE + 1))
    e("s_lshl_b32 s%d, s%d, 8" % (PE, PM))
    e("s_add_u32 s%d, s%d, 128" % (PE, PE))
    e("s_load_dword s%d, s[%d:%d], s%d" % (PJ, PBASE, PBASE + 1, PE))
    e.label("L_noprobe1")
    e("s_waitcnt lgkmcnt(0)")
    srd(PWS, 82, WS_SIZE)
    if P["wo"]:
        e("s_add_u32 s%d, s%d, %d" % (PWS, PWS, P["wo"] << 20))
        e("s_addc_u32 s%d, s%d, 0" % (PWS + 1, PWS + 1))
    srd(PDB, 80, 256)
    if not EB:
        e("s_cmp_lg_u32 s%d, 0" % PP)
        e("s_cbranch_scc1 L_hbar")
        e("v_lshlrev_b32 v%d, 2, v%d" % (HB_, HL))
        e("ds_write_b32 v%d, v%d" % (HB_, HZ))
        e("s_waitcnt lgkmcnt(0)")
        e.label("L_hbar")
        e("s_barrier")
    if P["hs"]:
        e("s_mov_b32 s%d, 0" % (PD + 4))
    e("s_cmp_eq_u32 s%d, 0" % PPR)
    e("s_cbranch_scc1 L_role")
    e("s_mov_b32 s%d, 1" % PRN)
    e("s_mov_b32 s%d, 0" % PACC)
    e("s_cmp_eq_u32 s%d, 0" % PBK)
    e("s_cselect_b32 s%d, %d, %d" % (PNR, P["nr0"], NR))
    e("s_waitcnt vmcnt(0)")
    e.label("L_round")
    e("s_add_u32 s%d, s%d, s%d" % (PE, PM, PRN))
    e("s_and_b32 s%d, s%d, 7" % (PE, PE))
    e("s_lshl_b32 s%d, s%d, 8" % (PE, PE))
    e("s_add_u32 s%d, s%d, s%d" % (PRB, PBASE, PE))
    e("s_addc_u32 s%d, s%d, 0" % (PRB + 1, PBASE + 1))
    e("s_mov_b32 s%d, -1" % PMN)
    e("s_memtime s[%d:%d]" % (PT, PT + 1))
    e("s_waitcnt lgkmcnt(0)")
    for u in range(8):
        a = PT + 2 * (u & 1); b = PT + 2 * ((u + 1) & 1)
        e("s_load_dword s%d, s[%d:%d], s%d" % (PJ, PRB, PRB + 1, POF + u))
        e("s_waitcnt lgkmcnt(0)")
        e("s_memtime s[%d:%d]" % (b, b + 1))
        e("s_waitcnt lgkmcnt(0)")
        e("s_sub_u32 s%d, s%d, s%d" % (PD + u, b, a))
        if u + 1 == P["ns0"] and u < 7:
            for k in range(u + 1, 8):
                e("s_mov_b32 s%d, -1" % (PD + k))
            e("s_cmp_eq_u32 s%d, 0" % PBK)
            e("s_cbranch_scc1 L_few")
    e.label("L_few")
    for u in range(8):
        e("s_min_u32 s%d, s%d, %d" % (PD + u, PD + u, P["clip"]))
        e("s_min_u32 s%d, s%d, s%d" % (PMN, PMN, PD + u))
    e("s_cmp_lt_u32 s%d, %d" % (PMN, P["l2t"]))
    e("s_cbranch_scc1 L_skip")
    for u in range(8):
        e("s_%s_u32 s%d, s%d, s%d" % ("add" if u & 1 else "sub", PACC, PACC, PD + u))
    e.label("L_skip")
    e("s_add_u32 s%d, s%d, 1" % (PRN, PRN))
    e("s_cmp_le_u32 s%d, s%d" % (PRN, PNR))
    e("s_cbranch_scc1 L_round")
    e("s_sub_u32 s%d, 0, s%d" % (PE, PACC))
    e("s_cmp_eq_u32 s%d, 0" % PFL)
    e("s_cselect_b32 s%d, s%d, s%d" % (PACC, PACC, PE))
    e("s_add_u32 s%d, s%d, 0x%x" % (PACC, PACC, BIAS + (1 << 24)))
    e("v_mov_b32 v%d, s%d" % (HA, PACC))
    e("s_mov_b64 exec, 1")
    e("s_lshl_b32 s%d, s%d, 2" % (PE, PBK))
    e("s_add_u32 s%d, s%d, 124" % (PE, PE))
    e("s_cmp_eq_u32 s%d, 0" % PBK)
    e("s_cbranch_scc0 L_post")
    e("ds_add_rtn_u32 v%d, v%d, v%d offset:%d" % (HB_, HZ, HA, L_PC))
    e("s_mov_b32 s%d, 0" % PE)
    e("s_waitcnt lgkmcnt(0)")
    e("v_add_u32 v%d, v%d, v%d" % (HA, HA, HB_))
    e("v_cmp_ne_u32 vcc, 0, v%d" % HB_)
    e("s_and_b64 exec, exec, vcc")
    if P["vw"]:
        e("buffer_atomic_add v%d, off, s[%d:%d], s%d" % (HA, PDB, PDB + 3, PE))
        e("s_branch L_posted")
        e.label("L_post")
        lds_wait("vw", HZ, HE, PE, L_DEC, "nz", PSP)
        e("s_mul_i32 s%d, s%d, %d" % (PE, PG, FSTR))
        e("s_add_u32 s%d, s%d, %d" % (PE, PE, WS_G + 253 * FSTR))
        e("buffer_atomic_add v%d, off, s[%d:%d], s%d" % (HA, PWS, PWS + 3, PE))
        e.label("L_posted")
    else:
        e.label("L_post")
        e("buffer_atomic_add v%d, off, s[%d:%d], s%d" % (HA, PDB, PDB + 3, PE))
    e("s_mov_b64 exec, -1")
    if P["hs"]:
        e("s_memrealtime s[%d:%d]" % (PD + 4, PD + 5))
    e.label("L_role")
    e("s_cmp_eq_u32 s%d, 0" % PP)
    e("s_cbranch_scc1 L_h0")
    e("s_cmp_eq_u32 s%d, 2" % PP)
    e("s_cbranch_scc1 L_h2")

    def wave_reduce(regs, op, tmp):
        for kk in (8, 4, 2, 1):
            for r in regs:
                e("%s_dpp v%d, v%d, v%d row_ror:%d row_mask:0xf bank_mask:0xf" % (op, r, r, r, kk))
        for sw in ("v_permlane32_swap_b32", "v_permlane16_swap_b32"):
            for r, t in zip(regs, tmp):
                e("v_mov_b32 v%d, v%d" % (t, r))
            for r, t in zip(regs, tmp):
                e("%s v%d, v%d" % (sw, r, t))
            for r, t in zip(regs, tmp):
                e("%s v%d, v%d, v%d" % (op, r, r, t))

    def decode(tag, nl, off, cnt, rounds, dst, b0):
        vw = b0 and P["vw"]
        lds_wait("e" + tag, HZ, HE, PE, L_EV + (4 if b0 else 0), "nz" if b0 else str(P["tw"]), PSP)
        if vw:
            e("v_mul_u32_u24 v%d, %d, v%d" % (HD, FSTR, HL))
            e("s_mov_b32 s%d, %d" % (PE, WS_G + 256 * FSTR))
            e("v_lshrrev_b32 v%d, 1, v%d" % (HB_, HB_))
        e("s_mov_b64 exec, 0x%x" % ((1 << (2 * nl if vw else nl)) - 1))
        e("s_mov_b32 s%d, 0x40000" % PSP)
        if P["hs"] and not b0:
            e("s_memrealtime s[%d:%d]" % (PD, PD + 1))
        if P["l2p"] and not b0:
            e("buffer_load_dword v%d, v%d, s[%d:%d], 0 offen offset:%d" % (HA, HB_, PDB, PDB + 3, off))
            e("s_branch L_pollw" + tag)
        if not P["xkp"] & 4:
            e.label("L_poll" + tag)
            if vw:
                e("buffer_load_dword v%d, v%d, s[%d:%d], s%d offen sc1" % (HA, HD, PWS, PWS + 3, PE))
            else:
                e("buffer_load_dword v%d, v%d, s[%d:%d], 0 offen offset:%d sc1" % (HA, HB_, PDB, PDB + 3, off))
            e("s_sub_u32 s%d, s%d, 1" % (PSP, PSP))
            e("s_cbranch_scc1 L_exit1")
            e.lines.append("L_pollw%s:" % tag)
            e("s_waitcnt vmcnt(0)")
            e("v_lshrrev_b32 v%d, 24, v%d" % (HC, HA))
            e("v_cmp_ne_u32 vcc, %d, v%d" % (cnt // 2 if vw else cnt, HC))
            e("s_cbranch_vccnz L_poll" + tag)
        if vw:
            e("v_add_u32_dpp v%d, v%d, v%d quad_perm:[1,0,3,2] row_mask:0xf bank_mask:0xf" % (HA, HA, HA))
            e("s_mov_b64 exec, 0x%x" % (0x5555 & ((1 << (2 * nl)) - 1)))
        th = P["th"] * cnt * rounds * (8 if b0 else P["ns0"]) // 8
        e("v_and_b32 v%d, 0xffffff, v%d" % (HA, HA))
        e("v_subrev_u32 v%d, %d, v%d" % (HA, cnt * BIAS, HA))
        if P["stamp"] == 6 and b0:
            e("s_cmp_lg_u32 s2, 100")
            e("s_cbranch_scc1 L_nodbg")
            e("buffer_store_dword v%d, v%d, s[%d:%d], 0 offen offset:4" % (HA, HB_, PDB, PDB + 3))
            e.label("L_nodbg")
        e("v_lshrrev_b32 v%d, 30, v%d" % (HC, HA))
        e("v_and_b32 v%d, 2, v%d" % (HC, HC))
        e("v_add_u32 v%d, %d, v%d" % (HA, th, HA))
        e("v_cmp_gt_u32 vcc, %d, v%d" % (2 * th, HA))
        e("v_cndmask_b32 v%d, v%d, 8, vcc" % (HC, HC))
        if P["force"] == 1:
            e("v_mov_b32 v%d, 8" % HC)
        if P["force"] >= 2:
            e("s_mov_b32 s%d, 0x7000000" % PE)
            e("s_load_dwordx4 s[%d:%d], s[82:83], s%d" % (PS2, PS2 + 3, PE))
            e("s_waitcnt lgkmcnt(0)")
            for l in range(nl):
                b = b0 + l
                e("s_lshr_b64 s[%d:%d], s[%d:%d], %d" % (PE, PE + 1, PS2 + 2 * (b // 3), PS2 + 2 * (b // 3) + 1, 16 * (b % 3)))
                e("s_and_b32 s%d, s%d, %d" % (PE, PE, P["ob"]))
                e("s_xor_b32 s%d, s%d, %d" % (PE, PE, P["ox"]))
                e("v_writelane_b32 v%d, s%d, %d" % (HC, PE, 2 * l if vw else l))
        e("v_or_b32 v%d, 16, v%d" % (HC, HC))
        if P["xv"] and vw:
            e("v_lshlrev_b32 v%d, 1, v%d" % (HA, HL))
            e("v_lshrrev_b32 v%d, v%d, %d" % (HA, HA, 0) if False else "v_mov_b32 v%d, 0x%x" % (HD, int(str(P["xv"])[::-1], 16)))
            e("v_lshrrev_b32 v%d, v%d, v%d" % (HA, HA, HD))
            e("v_and_b32 v%d, 7, v%d" % (HA, HA))
            e("v_xor_b32 v%d, v%d, v%d" % (HC, HC, HA))
        e("ds_write_b32 v%d, v%d offset:%d" % (HB_, HC, dst))
        if P["hs"] and not b0:
            e("s_memrealtime s[%d:%d]" % (PD + 2, PD + 3))
            srd(PS2, 82, 0x8000000)
            e("s_waitcnt lgkmcnt(0)")
            e("v_mov_b32 v%d, s%d" % (HX, PD))
            e("v_mov_b32 v%d, s%d" % (HX + 1, PD + 2))
            e("v_mov_b32 v%d, s%d" % (HX + 2, PSP))
            e("v_mov_b32 v%d, s%d" % (HX + 3, PD + 4))
            e("s_lshl_b32 s%d, s2, 4" % PE)
            e("s_add_u32 s%d, s%d, 0x4008000" % (PE, PE))
            e("buffer_store_dwordx4 v[%d:%d], off, s[%d:%d], s%d" % (HX, HX + 3, PS2, PS2 + 3, PE))
        e("s_mov_b64 exec, -1")

    e("s_cmp_lg_u32 s2, %d" % (NWG - 1))
    e("s_cbranch_scc1 L_nolead")
    e("v_mul_u32_u24 v%d, %d, v%d" % (HB_, FSTR, HL))
    e("v_mov_b32 v%d, 0" % (HZ + 1))
    for k in range(5 if P["vw"] else 4):
        e("s_mov_b32 s%d, %d" % (PE + k, WS_G + k * 64 * FSTR))
        if k == 4:
            e("s_mov_b64 exec, 0x3ff")
        e("buffer_store_dwordx2 v[%d:%d], v%d, s[%d:%d], s%d offen sc1" % (HZ, HZ + 1, HB_, PWS, PWS + 3, PE + k))
    e("v_mov_b32 v%d, 0x%x" % (HA, BIAS + (1 << 24)))
    e("s_mov_b64 exec, 1")
    e("s_waitcnt vmcnt(0)")
    e("buffer_atomic_add v%d, off, s[%d:%d], 0" % (HA, PDB, PDB + 3))
    e("s_mov_b64 exec, -1")
    e.label("L_nolead")
    e("v_lshlrev_b32 v%d, 2, v%d" % (HB_, HL))
    decode("a", 1, 0, 49, P["nr0"], L_DEC, 0)
    decode("b", 5, 128, 16, NR, L_DEC + 4, 1)
    if P["lx"]:
        e("s_mul_i32 s%d, s%d, 43" % (PE, PG))
        e("s_lshr_b32 s%d, s%d, 8" % (PE, PE))
        e("s_mul_i32 s%d, s%d, 6" % (PE + 1, PE))
        e("s_sub_u32 s%d, s%d, s%d" % (PBK, PG, PE + 1))
        e("s_cmp_ge_u32 s%d, 3" % PBK)
        e("s_cselect_b32 s%d, s68, s66" % PB)
        e("s_cselect_b32 s%d, s69, s67" % (PBASE + 1))
        e("s_cselect_b32 s%d, 3, 0" % (PE + 1))
        e("s_sub_u32 s%d, s%d, s%d" % (PE + 1, PBK, PE + 1))
        e("s_lshl_b32 s%d, s%d, 28" % (PO, PE + 1))
        e("s_mul_i32 s%d, s%d, %d" % (PE, PE, 21 << 21))
        e("s_add_u32 s%d, s%d, s%d" % (PO, PO, PE))
        e("s_add_u32 s%d, s%d, %d" % (PO, PO, (7 << 21) + (1 << 20)))
        e("s_and_b32 s%d, s%d, 0xffff" % (PB + 1, PBASE + 1))
        e("s_mov_b32 s%d, %d" % (PB + 2, H * HEADB))
        e("s_mov_b32 s%d, 0x00020000" % (PB + 3))
        e("s_add_u32 s%d, s%d, %d" % (PE, PM, P["lx"]))
        e("s_and_b32 s%d, s%d, 7" % (PE, PE))
        e("s_lshl_b32 s%d, s%d, 9" % (PE, PE))
        e("v_lshlrev_b32 v%d, 12, v%d" % (HW, HL))
        e("v_add_u32 v%d, s%d, v%d" % (HW, PE, HW))
        for j in range(3):
            e("buffer_load_dword v%d, v%d, s[%d:%d], s%d offen offset:%d" % (HX + j, HW, PB, PB + 3, PO, j * 128))
        e("s_add_u32 s%d, s%d, s%d" % (PBASE, PB, PO))
        e("s_addc_u32 s%d, s%d, 0" % (PBASE + 1, PBASE + 1))
        e("s_lshl_b32 s%d, s%d, 9" % (PE, PM))
        e("s_add_u32 s%d, s%d, s%d" % (PBASE, PBASE, PE))
        e("s_addc_u32 s%d, s%d, 0" % (PBASE + 1, PBASE + 1))
        e("s_load_dword s%d, s[%d:%d], 384" % (PJ, PBASE, PBASE + 1))
        e("s_load_dword s%d, s[%d:%d], 0x20180" % (PJ, PBASE, PBASE + 1))
        e("s_waitcnt vmcnt(0) lgkmcnt(0)")
        lds_wait("lx", HZ, HE, PE, L_EV + 4, "8", PSP)
        for j in range(3):
            e("s_mov_b32 m0, 0")
            e("s_mov_b32 s%d, %d" % (PE, j * 128))
            e.label("L_lx%d" % j)
            e("s_memtime s[%d:%d]" % (PT, PT + 1))
            e("s_waitcnt lgkmcnt(0)")
            e("s_load_dword s%d, s[%d:%d], s%d" % (PJ, PBASE, PBASE + 1, PE))
            e("s_waitcnt lgkmcnt(0)")
            e("s_memtime s[%d:%d]" % (PT + 2, PT + 3))
            e("s_waitcnt lgkmcnt(0)")
            e("s_sub_u32 s%d, s%d, s%d" % (PT, PT + 2, PT))
            e("v_writelane_b32 v%d, s%d, m0" % (HX + j, PT))
            e("s_add_u32 s%d, s%d, 4096" % (PE, PE))
            e("s_add_u32 m0, m0, 1")
            e("s_cmp_lt_u32 m0, 64")
            e("s_cbranch_scc1 L_lx%d" % j)
        e("s_memrealtime s[%d:%d]" % (PT, PT + 1))
        e("s_waitcnt lgkmcnt(0)")
        e("v_mov_b32 v%d, s%d" % (HX + 3, PT))
        srd(PB, 82, 0x8000000)
        e("s_lshl_b32 s%d, s2, 10" % PE)
        e("s_add_u32 s%d, s%d, 0x4090000" % (PE, PE))
        e("v_lshlrev_b32 v%d, 4, v%d" % (HW, HL))
        e("buffer_store_dwordx4 v[%d:%d], v%d, s[%d:%d], s%d offen" % (HX, HX + 3, HW, PB, PB + 3, PE))
    if FU:
        CSC = 24; CMK = 56; CRB = 57; CO = 92
        e("s_and_b32 s%d, s%d, 7" % (PE, PG))
        e("s_cmp_lg_u32 s%d, s%d" % (PE, PM))
        e("s_cbranch_scc1 L_exit1")
        e("s_mul_i32 s%d, s%d, 3" % (PE, PG))
        e("s_add_u32 s%d, s%d, 2" % (PE, PE))
        e("s_lshr_b32 s%d, s%d, 5" % (PE, PE))
        e("s_lshl_b32 s%d, s%d, 2" % (PE, PE))
        e("v_mov_b32 v%d, s%d" % (HW, PE))
        e("s_mul_i32 s%d, s%d, 24" % (CRB, PG))
        e("v_add_u32 v%d, s%d, v%d" % (HG, CRB, HL))
        e("v_and_b32 v%d, 255, v%d" % (HR, HG))
        e("v_mul_u32_u24 v%d, %d, v%d" % (HR, FSTR, HR))
        e("v_lshlrev_b32 v%d, 6, v%d" % (HG, HG))
        e("s_mov_b32 s%d, %d" % (PE + 1, WS_G))
        e("s_mov_b32 s%d, %d" % (PE + 2, WS_ML))
        e("v_mov_b32 v%d, 0x%08x" % (HA, BIGNEG))
        e("v_mov_b32 v%d, 0" % HB_)
        lds_wait("cg", HZ, HE, PE, L_GO, "nz", PSP, HW)
        for tag, ld, chk in (("f", "buffer_load_dword v%d, v%d, s[%d:%d], s%d offen sc1" % (HD, HR, PWS, PWS + 3, PE + 1), HD),
                             ("m", "buffer_load_dwordx4 v[%d:%d], v%d, s[%d:%d], s%d offen sc1" % (HA, HD, HG, PWS, PWS + 3, PE + 2), HD)):
            e("s_mov_b64 exec, 0xffffff")
            e("s_mov_b32 s%d, 0x40000" % PSP)
            e.label("L_cp" + tag)
            e(ld)
            e("s_sub_u32 s%d, s%d, 1" % (PSP, PSP))
            e("s_cbranch_scc1 L_exit1")
            e("s_waitcnt vmcnt(0)")
            e("v_cmpx_eq_u32 vcc, 0, v%d" % chk)
            e("s_cbranch_execnz L_cp" + tag)
        e("s_mov_b64 exec, -1")
        e("v_mov_b32 v%d, v%d" % (HC, HA))
        wave_reduce([HC], "v_max_f32", [HD])
        e("v_sub_f32 v%d, v%d, v%d" % (HA, HA, HC))
        e("v_exp_f32 v%d, v%d" % (HA, HA))
        e("v_mul_f32 v%d, v%d, v%d" % (HB_, HB_, HA))
        wave_reduce([HB_], "v_add_f32", [HD])
        e("v_rcp_f32 v%d, v%d" % (HB_, HB_))
        e("v_mul_f32 v%d, v%d, v%d" % (HA, HA, HB_))
        for r in range(24):
            e("v_readlane_b32 s%d, v%d, %d" % (CSC + r, HA, r))
        srd(CO, 78, H * DH * 2)
        e("s_lshl_b32 s%d, s%d, 10" % (CRB, CRB))
        e("v_lshlrev_b32 v%d, 4, v%d" % (HG, HL))
        e("v_add_u32 v%d, s%d, v%d" % (HG, CRB, HG))
        for k in range(1, 6):
            e("s_mov_b32 s%d, %d" % (PE + k, 4096 * k))
        for r in (HA, HB_, HC):
            e("v_mov_b32 v%d, 0" % r)
        e("s_mov_b32 s%d, 0xffffff" % CMK)
        e("v_lshlrev_b32 v%d, 1, v%d" % (HR, HL))
        e("s_mul_i32 s%d, s%d, %d" % (CRB, PG, DH * 2))
        lds_wait("cc", HZ, HE, PE, L_CA, "%d" % P["cw"], PSP, HW)
        e("s_mov_b32 s%d, 0x40000" % PSP)
        e.label("L_cr")
        for r in range(24):
            e("s_bitcmp0_b32 s%d, %d" % (CMK, r))
            e("s_cbranch_scc1 L_cl%d" % r)
            e("buffer_load_dwordx4 v[%d:%d], v%d, s[%d:%d], %s offen offset:%d sc1" %
              (HX + 4 * r, HX + 4 * r + 3, HG, PWS, PWS + 3, "s%d" % (PE + r // 4) if r >= 4 else "0", (r % 4) * 1024))
            e.lines.append("L_cl%d:" % r)
        e("s_sub_u32 s%d, s%d, 1" % (PSP, PSP))
        e("s_cbranch_scc1 L_exit1")
        e("s_waitcnt vmcnt(0)")
        for r in range(24):
            e("s_bitcmp0_b32 s%d, %d" % (CMK, r))
            e("s_cbranch_scc1 L_cv%d" % r)
            e("v_cmp_eq_u32 vcc, 0, v%d" % (HX + 4 * r + 3))
            e("s_cbranch_vccnz L_cv%d" % r)
            for k, a_ in enumerate((HA, HB_, HC)):
                e("v_fmac_f32 v%d, s%d, v%d" % (a_, CSC + r, HX + 4 * r + k))
            e("s_bitset0_b32 s%d, %d" % (CMK, r))
            e.lines.append("L_cv%d:" % r)
        e("s_cmp_lg_u32 s%d, 0" % CMK)
        e("s_cbranch_scc1 L_cr")
        for k, a_ in enumerate((HA, HB_, HC)):
            e("v_cvt_pk_bf16_f32 v%d, v%d, v%d" % (a_, a_, a_))
            e("buffer_store_short v%d, v%d, s[%d:%d], s%d offen offset:%d" % (a_, HR, CO, CO + 3, CRB, k * 128))
        if P["stamp"] == 5:
            e("s_memrealtime s[%d:%d]" % (PT, PT + 1))
            e("s_waitcnt vmcnt(0)")
            e("s_memrealtime s[%d:%d]" % (PT + 2, PT + 3))
            srd(PS2, 82, 0x8000000)
            e("s_waitcnt lgkmcnt(0)")
            e("v_mov_b32 v%d, s%d" % (HX, PT))
            e("v_mov_b32 v%d, s%d" % (HX + 1, PT + 2))
            e("v_mov_b32 v%d, s%d" % (HX + 2, PSP))
            e("s_lshl_b32 s%d, s%d, 4" % (PE, PG))
            e("s_add_u32 s%d, s%d, 0x4009000" % (PE, PE))
            e("s_mov_b64 exec, 1")
            e("buffer_store_dwordx4 v[%d:%d], off, s[%d:%d], s%d" % (HX, HX + 3, PS2, PS2 + 3, PE))
    e("s_endpgm")

    def seg_scalars():
        e("s_lshl_b32 s%d, s%d, 5" % (PSG, PPH))
        e("s_add_u32 s%d, s%d, s%d" % (PSG, PSG, PG))
        e("s_lshl_b32 s%d, s%d, 15" % (PG0, PSG))
        e("s_add_u32 s%d, s%d, 1" % (PG0, PG0))
        e("s_mul_hi_u32 s%d, s%d, 0xaaaaaaab" % (PG0, PG0))
        e("s_lshr_b32 s%d, s%d, 7" % (PG0, PG0))

    def get_dec(tag):
        lds_wait(tag, HZ, HE, PE, L_DEC + 20, "nz", PSP)
        e("ds_read_b128 v[%d:%d], v%d offset:%d" % (HX, HX + 3, HZ, L_DEC))
        e("ds_read_b64 v[%d:%d], v%d offset:%d" % (HX + 4, HX + 5, HZ, L_DEC + 16))
        e("s_waitcnt lgkmcnt(0)")
        for i in range(6):
            e("v_readfirstlane_b32 s%d, v%d" % (PDC + i, HX + i))

    e.label("L_h0")
    srd(PB, 64, H * DH * 2)
    srd(PS2, 70, H * NGRP * DH * 2)
    srd(PS3, 72, H * NGRP * DH * 2)
    e("v_lshrrev_b32 v%d, 4, v%d" % (HA, HL))
    e("v_and_b32 v%d, 15, v%d" % (HB_, HL))
    e("v_lshlrev_b32 v%d, 3, v%d" % (HC, HB_))
    e("v_mul_u32_u24 v%d, %d, v%d" % (HD, DH * 2, HA))
    e("v_add_u32 v%d, v%d, v%d" % (HD, HD, HC))
    e("v_lshl_add_u32 v%d, v%d, 2, v%d" % (HG, HB_, HA))
    e("v_lshlrev_b32 v%d, 2, v%d" % (HG, HG))
    BQ = HX; BS = HX + 12; BZ = BS + 36; BR = BZ + 36
    PFA = 32; PIA = 33
    e("v_lshlrev_b32 v%d, 4, v%d" % (HA, HL))
    e("s_mul_i32 s%d, s%d, %d" % (PFA, PNB, FSTR))
    e("s_add_u32 s%d, s%d, s%d" % (PFA, PFA, PGL))
    e("s_lshl_b32 s%d, s%d, 3" % (PIA, PG))
    e("s_add_u32 s%d, s%d, s%d" % (PIA, PIA, PNB))
    IMS = PHI if P["il"] else IMG
    PHS = NWG * PHI if P["il"] else PHI
    e("s_mul_i32 s%d, s%d, %d" % (PIA, PIA, IMS))
    e("s_add_u32 s%d, s%d, %d" % (PIA, PIA, WS_L))

    def bias(ph):
        e("s_mov_b32 s%d, %d" % (PPH, ph))
        seg_scalars()
        e("s_mul_i32 s%d, s%d, 171" % (PE, PSG))
        e("s_lshr_b32 s%d, s%d, 9" % (PE, PE))
        e("s_mul_i32 s%d, s%d, %d" % (PE, PE, DH * 2))
        e("s_mul_i32 s%d, s%d, 24" % (PE + 1, PM))
        e("s_add_u32 s%d, s%d, s%d" % (PE + 2, PE + 1, PG0))
        e("s_mul_i32 s%d, s%d, %d" % (PE + 2, PE + 2, DH * 2))
        e("v_add_u32 v%d, s%d, v%d" % (HE, PE + 2, HD))
        e("v_add_u32 v%d, %d, v%d" % (HF, 8 * DH * 2, HE))
        e("v_add_u32 v%d, %d, v%d" % (HR, 16 * DH * 2, HE))
        for c in range(3):
            e("buffer_load_dwordx2 v[%d:%d], v%d, s[%d:%d], s%d offen offset:%d" % (BR + 2 * c, BR + 2 * c + 1, HC, PB, PB + 3, PE, c * 128))
        for st in range(6):
            va = (HE, HF, HR)[st // 2]
            for sr, bb in ((PS2, BS), (PS3, BZ)):
                for c in range(3):
                    r = bb + st * 6 + 2 * c
                    if P["xb"] & 1:
                        continue
                    e("buffer_load_dwordx2 v[%d:%d], v%d, s[%d:%d], 0 offen offset:%d%s" %
                      (r, r + 1, va, sr, sr + 3, (st & 1) * 4 * DH * 2 + c * 128,
                       " nt" if P["bnt"] & (1 if bb == BZ else 2) else ""))
        e("s_waitcnt vmcnt(0)")
        for p in range(6):
            e("v_lshlrev_b32 v%d, 16, v%d" % (BQ + 2 * p, BR + p))
            e("v_and_b32 v%d, 0xffff0000, v%d" % (BQ + 2 * p + 1, BR + p))
        for st in range(6):
            acc = BR + st
            for p in range(6):
                rs = BS + st * 6 + p; rz = BZ + st * 6 + p
                e("v_lshlrev_b32 v%d, 16, v%d" % (HE, rs))
                e("v_lshlrev_b32 v%d, 16, v%d" % (HF, rz))
                e("v_and_b32 v%d, 0xffff0000, v%d" % (rs, rs))
                e("v_and_b32 v%d, 0xffff0000, v%d" % (rz, rz))
                e("v_mul_f32 v%d, v%d, v%d" % (HE, HE, BQ + 2 * p))
                e("v_mul_f32 v%d, v%d, v%d" % (rs, rs, BQ + 2 * p + 1))
                if p == 0:
                    e("v_mul_f32 v%d, v%d, v%d" % (acc, HE, HF))
                else:
                    e("v_fmac_f32 v%d, v%d, v%d" % (acc, HE, HF))
                e("v_fmac_f32 v%d, v%d, v%d" % (acc, rs, rz))
        for kk in (8, 4, 2, 1):
            for st in range(6):
                e("v_add_f32_dpp v%d, v%d, v%d row_ror:%d row_mask:0xf bank_mask:0xf" % (BR + st, BR + st, BR + st, kk))
        for st in range(1, 6):
            e("v_cmp_eq_u32 vcc, %d, v%d" % (st, HB_))
            e("v_cndmask_b32 v%d, v%d, v%d, vcc" % (BR, BR, BR + st))
        e("s_mul_i32 s%d, s%d, 768" % (PE, PSG))
        e("s_lshl_b32 s%d, s%d, 2" % (PE + 1, PE + 1))
        e("s_add_u32 s%d, s%d, s%d" % (PE, PE, PE + 1))
        e("s_add_u32 s%d, s%d, %d" % (PE, PE, WS_B))
        e("s_mov_b32 exec_lo, 0x003f003f")
        e("s_mov_b32 exec_hi, 0x003f003f")
        e("buffer_store_dword v%d, v%d, s[%d:%d], s%d offen sc1" % (BR, HG, PWS, PWS + 3, PE))
        e("s_mov_b64 exec, -1")

    def flush(p):
        if P["xp"]:
            e("s_cmp_eq_u32 s%d, s%d" % (PDC + p, PDC + 3 + p))
            if p:
                e("s_cbranch_scc1 L_fp%d" % p)
            e("s_add_u32 s%d, s%d, %d" % (PE + 6, PIA, p * PHS))
            e("s_add_u32 s%d, s%d, %d" % (PE + 7, PIA, p * PHS + 4096))
            e("s_cmp_eq_u32 s%d, s%d" % (PDC + p, PDC + 3 + p))
            for k in range(6):
                if p == 0:
                    mk = sum(1 << l for l in range(64) if (64 * k + l) % 48 < (3 * N0 + 7) // 8 * 8)
                    e("s_cselect_b32 exec_lo, 0x%x, -1" % (mk & 0xffffffff))
                    e("s_cselect_b32 exec_hi, 0x%x, -1" % (mk >> 32))
                e("buffer_load_dwordx4 v[%d:%d], v%d, s[%d:%d], s%d offen offset:%d %s" %
                  (HX + 4 * k, HX + 4 * k + 3, HA, PWS, PWS + 3, PE + 6 + k // 4, (k % 4) * 1024, ("", "sc1", "", "nt")[P["xp"]]))
            e("s_mov_b64 exec, -1")
            e("s_waitcnt vmcnt(0)")
            e.label("L_fp%d" % p)
        lds_wait("f%d" % p, HZ, HE, PE, L_CF + 4 * p, "4", PSP)
        e("s_cmp_eq_u32 s%d, s%d" % (PDC + p, PDC + 3 + p))
        if p:
            e("s_cbranch_scc1 L_fl%d" % p)
        for k in range(6):
            e("ds_read_b128 v[%d:%d], v%d offset:%d" % (HX + 4 * k, HX + 4 * k + 3, HA, L_LG + p * PHI + k * 1024))
        e("s_add_u32 s%d, s%d, %d" % (PE + 6, PIA, p * PHS))
        e("s_add_u32 s%d, s%d, %d" % (PE + 7, PIA, p * PHS + 4096))
        e("s_cmp_eq_u32 s%d, s%d" % (PDC + p, PDC + 3 + p))
        e("s_waitcnt lgkmcnt(0)")
        for k in range(6):
            if p == 0:
                mk = sum(1 << l for l in range(64) if (64 * k + l) % 48 < (3 * N0 + 7) // 8 * 8)
                e("s_cselect_b32 exec_lo, 0x%x, -1" % (mk & 0xffffffff))
                e("s_cselect_b32 exec_hi, 0x%x, -1" % (mk >> 32))
            if not P["xkp"] & 16:
                e("buffer_store_dwordx4 v[%d:%d], v%d, s[%d:%d], s%d offen offset:%d %s" %
                  (HX + 4 * k, HX + 4 * k + 3, HA, PWS, PWS + 3, PE + 6 + k // 4, (k % 4) * 1024, P["st"]))
        if p == 0:
            e("s_mov_b64 exec, -1")
        e.label("L_fl%d" % p)
        e("v_mov_b32 v%d, %d" % (HE, p + 1))
        e("s_waitcnt vmcnt(0)")
        e("s_mov_b64 exec, 1")
        opt = p == 2 or (p == 1 and not P["jit"])
        if opt:
            e("s_cbranch_scc1 L_fn%d" % p)
        e("buffer_store_dword v%d, off, s[%d:%d], s%d sc1" % (HE, PWS, PWS + 3, PFA))
        if opt:
            e.label("L_fn%d" % p)
        e("ds_write_b32 v%d, v%d offset:%d" % (HZ, HE, L_FD))
        e("s_mov_b64 exec, -1")

    if FU:
        for i in range(4):
            e("v_mov_b32 v%d, 0" % (HX + i))
        for p in range(3):
            e("s_add_u32 s%d, s2, %d" % (PE, 256 * p))
            e("s_lshl_b32 s%d, s%d, 10" % (PE + 1, PE))
            e("s_lshl_b32 s%d, s%d, 6" % (PE, PE))
            e("s_add_u32 s%d, s%d, %d" % (PE, PE, WS_ML))
            e("buffer_store_dwordx4 v[%d:%d], v%d, s[%d:%d], s%d offen sc1" % (HX, HX + 3, HA, PWS, PWS + 3, PE + 1))
            e("s_mov_b64 exec, 15")
            e("buffer_store_dwordx4 v[%d:%d], v%d, s[%d:%d], s%d offen sc1" % (HX, HX + 3, HA, PWS, PWS + 3, PE))
            e("s_mov_b64 exec, -1")
    bias(0)
    if P["jit"]:
        lds_wait("b1", HZ, HE, PE, L_EV + 4, "1", PSP)
    bias(1)
    if not P["jit"]:
        bias(2)
    get_dec("d0")
    flush(0)
    if P["jit"]:
        lds_wait("b2", HZ, HE, PE, L_EV + 4, "9", PSP)
        bias(2)
    flush(1)
    flush(2)
    if P["at"] and not BC:
        e("v_lshrrev_b32 v%d, 3, v%d" % (HC, HL))
        e("v_xor_b32 v%d, s%d, v%d" % (HC, PM, HC))
        e("v_lshrrev_b32 v%d, 1, v%d" % (HD, HC))
        e("v_and_b32 v%d, 1, v%d" % (HC, HC))
        e("v_lshl_or_b32 v%d, v%d, 2, v%d" % (HD, HC, HD))
        e("v_lshl_or_b32 v%d, v%d, 3, v%d" % (HD, HL, HD))
        e("v_mul_u32_u24 v%d, %d, v%d" % (HD, FSTR, HD))
        lds_wait("t1", HZ, HE, PE, L_TC, "4", PSP)
        e("s_memrealtime s[%d:%d]" % (PT, PT + 1))
        e("s_mov_b64 exec, 1")
        e("s_waitcnt lgkmcnt(0)")
        e("s_or_b32 s%d, s%d, 1" % (PT, PT))
        e("v_mov_b32 v%d, s%d" % (HB_, PT))
        e("buffer_store_dword v%d, off, s[%d:%d], s%d offset:4 sc1" % (HB_, PWS, PWS + 3, PFA))
        e("s_mov_b32 exec_lo, -1")
        e("s_mov_b32 s%d, %d" % (PE + 1, WS_G))
        lds_wait("t2", HZ, HE, PE, L_TC, "5", PSP)
        e("buffer_load_dword v%d, v%d, s[%d:%d], s%d offen offset:4 sc1" % (HB_, HD, PWS, PWS + 3, PE + 1))
        e("v_bfrev_b32 v%d, -2" % HC)
        e("s_mov_b32 s%d, -2048" % PE)
        e("s_waitcnt vmcnt(0)")
        e("v_cmp_eq_u32 vcc, 0, v%d" % HB_)
        e("v_subrev_u32 v%d, s%d, v%d" % (HB_, PT, HB_))
        e("v_cndmask_b32 v%d, v%d, v%d, vcc" % (HB_, HB_, HC))
        for st in (2048, 1024, 512, 256, 128, 64, 32, 16):
            e("s_add_u32 s%d, s%d, %d" % (PE + 1, PE, st))
            e("v_cmp_gt_i32 vcc, s%d, v%d" % (PE + 1, HB_))
            e("s_bcnt1_i32_b64 s%d, vcc" % (PE + 2))
            e("s_cmp_lt_u32 s%d, %d" % (PE + 2, P["aq"]))
            e("s_cselect_b32 s%d, s%d, s%d" % (PE, PE + 1, PE))
        e("s_mul_i32 s%d, s%d, %d" % (PE, PE, -P["ka"]))
        e("s_add_u32 s%d, s%d, %d" % (PE, PE, P["kb"]))
        e("s_ashr_i32 s%d, s%d, 10" % (PE, PE))
        e("s_max_i32 s%d, s%d, %d" % (PE, PE, P["dmin"]))
        e("s_min_i32 s%d, s%d, %d" % (PE, PE, min(P["dmax"], NT - P["te"])))
        e("s_sub_u32 s%d, %d, s%d" % (PE, NT, PE))
        e("s_cmp_eq_u32 s%d, %d" % (PE, NT))
        e("s_cselect_b32 s%d, 255, s%d" % (PE, PE))
        e("v_mov_b32 v%d, s%d" % (HB_, PE))
        e("ds_write_b32 v%d, v%d offset:%d" % (HZ, HB_, L_TD))
    e("s_endpgm")

    if BC:
        e.label("L_h3")
        e("s_waitcnt lgkmcnt(0)")
        srd(PWS, 82, WS_SIZE)
        if not EB:
            e("s_barrier")
        e("v_lshlrev_b32 v%d, 2, v%d" % (HD, HL))
        e("s_mul_i32 s%d, s%d, %d" % (PO, PM, FSTR))
        e("s_add_u32 s%d, s%d, %d" % (PO, PO, WS_T))
        e("s_lshl_b32 s%d, s%d, 2" % (PFL, PG))
        e("s_add_u32 s%d, s%d, s%d" % (PFL, PFL, PO))
        if GTS:
            cps = CPK + [48 + c for c in CPV]
            sel = [max(j for j, c in enumerate(cps) if c + P["tg"] + P["rd"] < b) for b in GTS]
            e("s_mov_b32 s%d, 0x%x" % (PRN, sum(1 << j for j in sel)))
            e("v_lshrrev_b32 v%d, 2, v%d" % (HG, HL))
            e("v_mul_u32_u24 v%d, %d, v%d" % (HG, FSTR, HG))
            e("v_and_or_b32 v%d, v%d, 12, v%d" % (HG, HD, HG))
            e("s_and_b32 s%d, s%d, 3" % (PBK, PM))
            e("s_mul_i32 s%d, s%d, %d" % (PNR, PBK, FSTR))
            e("s_lshl_b32 s%d, s%d, 2" % (PBK, PBK))
            e("v_mov_b32 v%d, %d" % (HK, L_GT))
        e("s_mov_b32 s%d, %d" % (PJ, P["pw"]))
        e("v_mov_b32 v%d, %d" % (HW, L_TM))
        e("v_bfrev_b32 v%d, -2" % HC)
        e("s_mov_b32 exec_hi, 0")
        e.label("L_h3loop")
        lds_wait("p1", HZ, HE, PE, L_TC, "s%d" % PJ, PSP)
        e("s_memrealtime s[%d:%d]" % (PT, PT + 1))
        e("s_add_u32 s%d, s%d, %d" % (PJ, PJ, 5 - P["pw"]))
        e("s_mov_b32 exec_lo, 1")
        e("s_waitcnt lgkmcnt(0)")
        e("v_mov_b32 v%d, s%d" % (HB_, PT))
        e("buffer_store_dword v%d, off, s[%d:%d], s%d" % (HB_, PWS, PWS + 3, PFL))
        e("s_mov_b32 exec_lo, -1")
        lds_wait("p2", HZ, HE, PE, L_TC, "s%d" % PJ, PSP)
        e("buffer_load_dword v%d, v%d, s[%d:%d], s%d offen sc0" % (HB_, HD, PWS, PWS + 3, PO))
        e("s_add_u32 s%d, s%d, 4" % (PJ, PJ))
        e("s_sub_u32 s%d, s%d, 4096" % (PT, PT))
        e("s_waitcnt vmcnt(0)")
        e("v_subrev_u32 v%d, s%d, v%d" % (HB_, PT, HB_))
        e("v_cmp_gt_u32 vcc, 8192, v%d" % HB_)
        e("v_cndmask_b32 v%d, v%d, v%d, vcc" % (HB_, HC, HB_))
        e("s_mov_b32 s%d, 2048" % PE)
        for st in (2048, 1024, 512, 256, 128, 64, 32, 16, 8):
            e("s_add_u32 s%d, s%d, %d" % (PE + 1, PE, st))
            e("v_cmp_gt_u32 vcc, s%d, v%d" % (PE + 1, HB_))
            e("s_bcnt1_i32_b64 s%d, vcc" % (PE + 2))
            e("s_cmp_lt_u32 s%d, %d" % (PE + 2, P["aq"]))
            e("s_cselect_b32 s%d, s%d, s%d" % (PE, PE + 1, PE))
        e("s_add_u32 s%d, s%d, s%d" % (PE + 1, PE, PT))
        e("s_or_b32 s%d, s%d, 1" % (PE + 1, PE + 1))
        e("v_mov_b32 v%d, s%d" % (HB_, PE + 1))
        e("ds_write_b32 v%d, v%d" % (HW, HB_))
        e("v_add_u32 v%d, 4, v%d" % (HW, HW))
        if GTS:
            e("s_bitcmp1_b32 s%d, 0" % PRN)
            e("s_cbranch_scc0 L_h3ng")
            e("s_cmp_lt_u32 s%d, 6136" % PE)
            e("s_cselect_b32 exec_lo, 1, 0")
            e("s_cmp_lt_u32 s%d, 4" % PG)
            e("s_cselect_b32 exec_lo, exec_lo, 0")
            e("buffer_store_dword v%d, off, s[%d:%d], s%d offset:2048 sc1" % (HB_, PWS, PWS + 3, PFL))
            e("s_mov_b32 exec_lo, 0xffff")
            lds_wait("p3", HZ, HE, PE, L_TC, "s%d" % PJ, PSP)
            e("s_sub_u32 s%d, s%d, s%d" % (PE + 3, PO, PNR))
            e("s_mov_b32 s%d, %d" % (PSP, P["gn"]))
            e("s_mov_b32 s%d, 0" % PE)
            e.label("L_h3gp")
            e("buffer_load_dword v%d, v%d, s[%d:%d], s%d offen offset:2048 sc1" % (HA, HG, PWS, PWS + 3, PE + 3))
            e("s_sub_u32 s%d, s%d, 1" % (PSP, PSP))
            e("s_cbranch_scc1 L_h3gw")
            e("s_waitcnt vmcnt(0)")
            e("v_subrev_u32 v%d, s%d, v%d" % (HA, PT, HA))
            e("v_cmp_gt_u32 vcc, 8192, v%d" % HA)
            e("v_cndmask_b32 v%d, v%d, v%d, vcc" % (HA, HC, HA))
            e("v_min_u32_dpp v%d, v%d, v%d quad_perm:[1,0,3,2] row_mask:0xf bank_mask:0xf" % (HA, HA, HA))
            e("v_min_u32_dpp v%d, v%d, v%d quad_perm:[2,3,0,1] row_mask:0xf bank_mask:0xf" % (HA, HA, HA))
            e("v_cmp_eq_u32 vcc, v%d, v%d" % (HC, HA))
            e("s_cbranch_vccnz L_h3gp")
            for k in range(4):
                e("v_readlane_b32 s%d, v%d, %d" % (PE + 4 + k, HA, 4 * k))
            e("v_readlane_b32 s%d, v%d, s%d" % (PE + 1, HA, PBK))
            e("s_max_u32 s%d, s%d, s%d" % (PE + 4, PE + 4, PE + 5))
            e("s_max_u32 s%d, s%d, s%d" % (PE + 6, PE + 6, PE + 7))
            e("s_max_u32 s%d, s%d, s%d" % (PE, PE + 4, PE + 6))
            e("s_sub_u32 s%d, s%d, s%d" % (PE, PE, PE + 1))
            e("s_sub_u32 s%d, s%d, %d" % (PE, PE, P["gtol"]))
            e("s_max_i32 s%d, s%d, 0" % (PE, PE))
            e("s_min_i32 s%d, s%d, %d" % (PE, PE, P["gcap"]))
            e.label("L_h3gw")
            e("s_or_b32 s%d, s%d, 0x10000" % (PE, PE))
            e("v_mov_b32 v%d, s%d" % (HB_, PE))
            e("ds_write_b32 v%d, v%d" % (HK, HB_))
            e("s_mov_b32 exec_lo, -1")
            e("v_add_u32 v%d, 4, v%d" % (HK, HK))
            e("s_waitcnt vmcnt(0)")
            e.label("L_h3ng")
            e("s_lshr_b32 s%d, s%d, 1" % (PRN, PRN))
        e("s_add_u32 s%d, s%d, %d" % (PJ, PJ, 3 + P["pw"]))
        e("s_add_u32 s%d, s%d, 128" % (PO, PO))
        e("s_add_u32 s%d, s%d, 128" % (PFL, PFL))
        e("s_cmp_lt_u32 s%d, %d" % (PJ, 12 * (len(CPK) + len(CPV))))
        e("s_cbranch_scc1 L_h3loop")
        e("s_endpgm")

    e.label("L_h2")
    srd(PS2, 74, H * SKV * 2)
    srd(PS3, 76, H * SKV * 2)
    if P["pf"] >= 2:
        if P["pf"] == 2:
            lds_wait("pf", HZ, HE, PE, L_EV + 4, "1", PSP)
        if P["pf"] == 4:
            lds_wait("pf", HZ, HE, PE, L_EV, "1", PSP)
        e("v_lshlrev_b32 v%d, 4, v%d" % (HA, HL))
        e("s_lshl_b32 s%d, s2, 13" % PE)
        e("s_add_u32 s%d, s%d, 4096" % (PE + 1, PE))
        for a, sr in enumerate((PS2, PS3)):
            for k in range(8):
                r = HX + 4 * (a * 8 + k)
                e("buffer_load_dwordx4 v[%d:%d], v%d, s[%d:%d], s%d offen offset:%d" % (r, r + 3, HA, sr, sr + 3, PE + k // 4, (k % 4) * 1024))
        e("s_waitcnt vmcnt(0)")
    get_dec("d2")
    PSIX = 24
    PKW = 32; PNEED = 33; PN0 = 34; PIM = 35; PCH = 36; PCC = 37; PMG = 38; PWD = 39; PIS = 40
    HT = HW
    HP = HX + 88; PXM = 64
    e("v_and_b32 v%d, 3, v%d" % (HT, HL))
    e("v_and_b32 v%d, 7, v%d" % (HT2, HL))
    e("v_lshrrev_b32 v%d, 2, v%d" % (HR, HL))
    e("s_mov_b32 s%d, %s" % (PCC, f32hex(C)))
    e("s_mov_b32 s%d, 0xaaaaaaab" % PMG)
    e("s_mov_b32 s%d, 0" % PPH)
    e("s_mul_i32 s%d, s%d, %d" % (PIM, PG, 8 * IMS))
    e("s_add_u32 s%d, s%d, %d" % (PIM, PIM, WS_L))
    e("s_mov_b32 s%d, %d" % (PIS, IMS))
    e("v_lshlrev_b32 v%d, 5, v%d" % (HN, HL))
    e("v_lshrrev_b32 v%d, 3, v%d" % (HK, HL))
    e("v_mul_u32_u24 v%d, 24, v%d" % (HK, HK))
    e("v_mov_b32 v%d, 768" % HA)
    e("v_mad_u32_u24 v%d, v%d, v%d, v%d" % (HK, HT2, HA, HK))
    e("v_lshlrev_b32 v%d, 4, v%d" % (HP, HL))
    e("s_mov_b32 s%d, %d" % (PN0, 3 * N0))
    RS = 16
    e.label("L_prep")
    seg_scalars()
    e("s_mov_b32 s%d, s%d" % (PKW, PDC))
    e("s_mov_b32 s%d, s%d" % (PWD, PDC + 3))
    for i in (0, 1, 3, 4):
        e("s_mov_b32 s%d, s%d" % (PDC + i, PDC + i + 1))
    e("s_lshl_b32 s%d, s%d, 3" % (PNEED, PPH))
    e("s_add_u32 s%d, s%d, 1" % (PNEED, PNEED))
    if P["pf"] == 1:
        lds_wait("pf", HZ, HE, PE, L_EV + 4, "s%d" % PNEED, PSP)
        e("v_lshlrev_b32 v%d, 4, v%d" % (HA, HL))
        e("s_mul_i32 s%d, s%d, 2736" % (PE + 1, PM))
        e("s_lshl_b32 s%d, s%d, 16" % (PE, PSG))
        e("s_mul_hi_u32 s%d, s%d, 0xaaaaaaab" % (PE, PE))
        e("s_lshr_b32 s%d, s%d, 5" % (PE, PE))
        e("s_lshl_b32 s%d, s%d, 4" % (PE, PE))
        e("s_add_u32 s%d, s%d, s%d" % (PE, PE, PE + 1))
        for a, sr in enumerate((PS2, PS3)):
            for k in range(3):
                r = HX + 4 * RS + 4 * (a * 3 + k)
                e("buffer_load_dwordx4 v[%d:%d], v%d, s[%d:%d], s%d offen offset:%d%s" % (r, r + 3, HA, sr, sr + 3, PE, k * 1024, " nt" if P["bnt"] & 8 else ""))
    for w, hv in ((PWD, HV),):
        e("s_and_b32 s%d, s%d, 7" % (PE, w))
        e("v_mov_b32 v%d, s%d" % (hv, PE))
        e("s_bitcmp1_b32 s%d, 3" % w)
        e("s_cselect_b64 vcc, -1, 0")
        e("v_cndmask_b32 v%d, v%d, v%d, vcc" % (hv, hv, HT2))
    e("v_xor_b32 v%d, s%d, v%d" % (HG, PNB, HV))
    e("v_lshl_or_b32 v%d, v%d, 3, v%d" % (HG, HT, HG))
    e("s_lshl_b32 s%d, s%d, 6" % (PCH, PSG))
    e("s_mul_i32 s%d, s%d, 768" % (PE + 1, PSG))
    e("s_lshl_b32 s%d, s%d, 2" % (PE + 2, PG0))
    e("s_sub_u32 s%d, s%d, s%d" % (PE + 1, PE + 1, PE + 2))
    e("s_add_u32 s%d, s%d, %d" % (PE + 1, PE + 1, WS_B))
    if P["pace"]:
        e("s_add_u32 s%d, s%d, 4" % (PNEED, PNEED))
        lds_wait("ga", HZ, HE, PE, L_EV + 4, "s%d" % PNEED, PSP)
    else:
        e("s_add_u32 s%d, s%d, 1" % (PNEED, PPH))
        lds_wait("ga", HZ, HE, PE, L_FD, "s%d" % PNEED, PSP)
    for st in range(4):
        R = HX + RS * st
        e("v_add_u32 v%d, %d, v%d" % (HA, 16 * st, HR))
        e("v_bfe_u32 v%d, v%d, 3, 2" % (HB_, HA))
        e("v_and_or_b32 v%d, v%d, 4, v%d" % (HB_, HA, HB_))
        e("v_xor_b32 v%d, v%d, v%d" % (HB_, HG, HB_))
        e("v_add_u32 v%d, s%d, v%d" % (HA, PCH, HA))
        e("v_lshl_add_u32 v%d, v%d, 5, v%d" % (HC, HA, HB_))
        e("v_lshl_add_u32 v%d, v%d, 4, 1" % (HC, HC))
        e("v_mul_hi_u32 v%d, v%d, s%d" % (HC, HC, PMG))
        e("v_lshrrev_b32 v%d, 1, v%d" % (HC, HC))
        e("v_lshrrev_b32 v%d, 1, v%d" % (HF, HC))
        e("v_lshlrev_b32 v%d, 2, v%d" % (HF, HF))
        for b, sr in ((R + 8, PS2), (R + 12, PS3)):
            if P["xkp"] & 8:
                continue
            gnt = " nt" if P["bnt"] & 16 else ""
            e("buffer_load_dwordx3 v[%d:%d], v%d, s[%d:%d], 0 offen%s" % (b, b + 2, HF, sr, sr + 3, gnt))
            if P["pace"] == 2:
                e("s_waitcnt vmcnt(0)")
            e("buffer_load_dword v%d, v%d, s[%d:%d], 0 offen offset:12%s" % (b + 3, HF, sr, sr + 3, gnt))
        e("v_lshrrev_b32 v%d, 6, v%d" % (R + 6, HC))
        e("v_lshl_add_u32 v%d, v%d, 2, s%d" % (R + 6, R + 6, PE + 1))
        e("v_and_b32 v%d, 15, v%d" % (HD, HC))
        e("v_cmp_eq_u32 s[%d:%d], 5, v%d" % (PSIX + 2 * st, PSIX + 2 * st + 1, HD))
        e("v_and_b32 v%d, 1, v%d" % (R + 7, HC))
        e("v_lshlrev_b32 v%d, 4, v%d" % (R + 7, R + 7))
        if P["pace"] == 1:
            e("s_waitcnt vmcnt(0)")
    e("s_add_u32 s%d, s%d, 1" % (PNEED, PPH))
    lds_wait("fd", HZ, HE, PE, L_FD, "s%d" % PNEED, PSP)
    e("v_mul_u32_u24 v%d, %d, v%d" % (HA, FSTR, HL))
    e("s_xor_b32 s%d, s%d, s%d" % (PE, PKW, PWD))
    e("s_xor_b32 s%d, s%d, s%d" % (PE, PE, PNB))
    e("s_and_b32 s%d, s%d, 7" % (PE, PE))
    e("v_mov_b32 v%d, s%d" % (HC, PNEED))
    e("s_lshl_b64 vcc, 1, s%d" % PE)
    e("s_or_b32 s%d, s%d, s%d" % (PE, PKW, PWD))
    e("s_bitcmp1_b32 s%d, 3" % PE)
    e("s_cselect_b64 vcc, 0xff, vcc")
    e("s_cmp_eq_u32 s%d, s%d" % (PKW, PWD))
    e("s_cselect_b64 vcc, 0, vcc")
    e("s_max_u32 s%d, s%d, 1" % (PE, PPH))
    e("v_mov_b32 v%d, s%d" % (HD, PE))
    e("v_cndmask_b32 v%d, v%d, v%d, vcc" % (HC, HD, HC))
    e("s_cmp_%s_u32 s%d, 1" % ("eq" if P["jit"] else "ge", PPH))
    e("s_cselect_b64 exec, vcc, 0xff")
    e("s_mov_b32 s%d, 0x40000" % PSP)
    if not P["xkp"] & 64:
        e("s_cbranch_execz L_noflags")
        e.label("L_flags")
        e("buffer_load_dword v%d, v%d, s[%d:%d], s%d offen sc1" % (HB_, HA, PWS, PWS + 3, PGL))
        e("s_sub_u32 s%d, s%d, 1" % (PSP, PSP))
        e("s_cbranch_scc1 L_exit1")
        e("s_waitcnt vmcnt(0)")
        e("v_cmpx_gt_u32 vcc, v%d, v%d" % (HC, HB_))
        e("s_cbranch_execnz L_flags")
        e.label("L_noflags")
    e("s_mov_b64 exec, -1")
    for st in range(4):
        R = HX + RS * st
        if not P["xkp"] & 32:
            e("buffer_load_dword v%d, v%d, s[%d:%d], 0 offen sc1" % (R + 6, R + 6, PWS, PWS + 3))
    e("s_bitcmp1_b32 s%d, 3" % PWD)
    e("s_cselect_b32 s%d, 0, 7" % (PE + 1))
    e("s_xor_b32 s%d, s%d, s%d" % (PE + 2, PKW, PWD))
    e("s_bitcmp1_b32 s%d, 3" % (PE + 2))
    e("s_cselect_b32 s%d, 7, 0" % (PE + 3))
    e("s_and_b32 s%d, s%d, 7" % (PE + 2, PE + 2))
    e("s_and_b32 s%d, s%d, 7" % (PE + 4, PWD))
    e("s_add_u32 s%d, s%d, 4096" % (PE + 5, PIM))
    for k in range(6):
        R = HX + 4 * RS + 4 * k
        e("v_add_u32 v%d, %d, v%d" % (HA, 64 * k, HL))
        e("v_mul_u32_u24 v%d, 1366, v%d" % (HB_, HA))
        e("v_lshrrev_b32 v%d, 16, v%d" % (HB_, HB_))
        e("v_mul_u32_u24 v%d, 48, v%d" % (HC, HB_))
        e("v_sub_u32 v%d, v%d, v%d" % (HA, HA, HC))
        e("v_cmp_gt_u32 vcc, s%d, v%d" % (PN0, HA))
        e("v_and_b32 v%d, s%d, v%d" % (HC, PE + 3, HB_))
        e("v_xor_b32 v%d, s%d, v%d" % (HC, PE + 2, HC))
        e("v_and_b32 v%d, s%d, v%d" % (HB_, PE + 1, HB_))
        e("v_xor_b32 v%d, s%d, v%d" % (HB_, PE + 4, HB_))
        e("v_cndmask_b32 v%d, v%d, v%d, vcc" % (HC, HC, HB_))
        e("v_cmp_ne_u32 s[%d:%d], 0, v%d" % (PXM + 2 * k, PXM + 2 * k + 1, HC))
        e("v_xor_b32 v%d, s%d, v%d" % (HC, PNB, HC))
        e("v_mad_u32_u24 v%d, v%d, s%d, v%d" % (HC, HC, PIS, HP))
        e("s_mov_b64 exec, s[%d:%d]" % (PXM + 2 * k, PXM + 2 * k + 1))
        if not P["xkp"] & 128:
            e("buffer_load_dwordx4 v[%d:%d], v%d, s[%d:%d], s%d offen offset:%d sc1" %
              (R, R + 3, HC, PWS, PWS + 3, PE + 5 if k >= 4 else PIM, (k % 4) * 1024))
        e("s_mov_b64 exec, -1")
    e("s_waitcnt vmcnt(0)")
    for k in range(6):
        R = HX + 4 * RS + 4 * k
        e("s_mov_b64 exec, s[%d:%d]" % (PXM + 2 * k, PXM + 2 * k + 1))
        e("ds_write_b128 v%d, v[%d:%d] offset:%d" % (HP, R, R + 3, L_LG + k * 1024))
    e("s_mov_b64 exec, -1")
    for st in range(4):
        R = HX + RS * st
        for c in range(3):
            e("ds_read_b64 v[%d:%d], v%d offset:%d" % (R + 2 * c, R + 2 * c + 1, HK, L_LG + st * 192 + 8 * c))
    e("s_mov_b32 s%d, 0" % PN0)
    e("v_mov_b32 v%d, 0x%08x" % (HB_, BIGNEG))
    e("v_mov_b32 v%d, 0x%08x" % (HA, BIGNEG))
    e("s_waitcnt vmcnt(0) lgkmcnt(0)")
    for st in range(4):
        R = HX + RS * st
        for k in range(6):
            e("v_sub_f32 v%d, v%d, v%d" % (R + k, R + k, R + 6))
        for k in range(6):
            e("v_mul_f32 v%d, s%d, v%d" % (R + k, PCC, R + k))
        e("v_cndmask_b32 v%d, v%d, v%d, s[%d:%d]" % (R + 5, HB_, R + 5, PSIX + 2 * st, PSIX + 2 * st + 1))
        for k in range(0, 6, 2):
            e("v_max3_f32 v%d, v%d, v%d, v%d" % (HA, HA, R + k, R + k + 1))
        for b in (R + 8, R + 12):
            for k in range(3):
                e("v_alignbit_b32 v%d, v%d, v%d, v%d" % (b + k, b + k + 1, b + k, R + 7))

    wave_reduce([HA], "v_max_f32", [HB_])
    e("v_mov_b32 v%d, 0" % HB_)
    e("v_mov_b32 v%d, 0" % HC)
    for st in range(4):
        R = HX + RS * st
        for k in range(6):
            e("v_sub_f32 v%d, v%d, v%d" % (R + k, R + k, HA))
        for k in range(6):
            e("v_exp_f32 v%d, v%d" % (R + k, R + k))
        for k in range(6):
            e("v_add_f32 v%d, v%d, v%d" % (HB_, HB_, R + k))
            if k & 1:
                e("v_and_b32 v%d, 0xffff0000, v%d" % (HE, R + 8 + k // 2))
                e("v_and_b32 v%d, 0xffff0000, v%d" % (HF, R + 12 + k // 2))
            else:
                e("v_lshlrev_b32 v%d, 16, v%d" % (HE, R + 8 + k // 2))
                e("v_lshlrev_b32 v%d, 16, v%d" % (HF, R + 12 + k // 2))
            e("v_mul_f32 v%d, v%d, v%d" % (R + k, R + k, HE))
            e("v_fmac_f32 v%d, v%d, v%d" % (HC, R + k, HF))
        e("ds_write_b128 v%d, v[%d:%d] offset:%d" % (HN, R, R + 3, L_PV + st * 2048))
        e("ds_write_b64 v%d, v[%d:%d] offset:%d" % (HN, R + 4, R + 5, L_PV + st * 2048 + 16))
    wave_reduce([HB_, HC], "v_add_f32", [HE, HF])
    e("s_lshl_b32 s%d, s%d, 2" % (PE, PPH))
    e("v_mov_b32 v%d, s%d" % (HE, PE))
    e("v_lshlrev_b32 v%d, 2, v%d" % (HF, HE))
    e("v_mov_b32 v%d, s%d" % (HD, PWD))
    e("s_mov_b64 exec, 1")
    e("ds_write_b128 v%d, v[%d:%d] offset:%d" % (HF, HA, HD, L_ML))
    e("ds_write_b32 v%d, v%d offset:%d" % (HE, HD, L_GO))
    if FU:
        e("s_lshl_b32 s%d, s%d, 8" % (PE, PPH))
        e("s_add_u32 s%d, s%d, s2" % (PE, PE))
        e("s_lshl_b32 s%d, s%d, 6" % (PE, PE))
        e("s_add_u32 s%d, s%d, %d" % (PE, PE, WS_ML))
        e("buffer_store_dwordx4 v[%d:%d], off, s[%d:%d], s%d sc1" % (HA, HD, PWS, PWS + 3, PE))
    e("s_mov_b64 exec, -1")
    e("v_add_u32 v%d, 8192, v%d" % (HN, HN))
    e("v_add_u32 v%d, %d, v%d" % (HK, PHI, HK))
    e("v_add_u32 v%d, %d, v%d" % (HP, PHI, HP))
    if PHS != PHI:
        e("s_add_u32 s%d, s%d, %d" % (PIM, PIM, PHS - PHI))
    e("s_add_u32 s%d, s%d, 1" % (PPH, PPH))
    e("s_cmp_lt_u32 s%d, 3" % PPH)
    e("s_cbranch_scc1 L_prep")
    e("s_mov_b32 s%d, 0" % PPH)
    e("v_lshlrev_b32 v%d, 2, v%d" % (HR, HL))
    e("v_add_u32 v%d, %d, v%d" % (HG, L_ACC, HR))
    e("v_lshlrev_b32 v%d, 4, v%d" % (HK, HL))
    e("v_mov_b32 v%d, 1" % (HX + 15))
    e.label("L_merge")
    e("s_lshl_b32 s%d, s%d, 2" % (PE, PPH))
    e("v_mov_b32 v%d, s%d" % (HW, PE))
    e("v_lshlrev_b32 v%d, 2, v%d" % (HF, HW))
    e("ds_read_b128 v[%d:%d], v%d offset:%d" % (HA, HD, HF, L_ML))
    e("s_lshl_b32 s%d, s%d, 8" % (PSG, PPH))
    e("s_add_u32 s%d, s%d, s2" % (PSG, PSG))
    e("s_lshl_b32 s%d, s%d, 10" % (PSG, PSG))
    lds_wait("m", HZ, HE, PE, L_CA, "4", PSP, HW)
    for kk in range(3):
        for w in range(NW):
            e("ds_read_b32 v%d, v%d offset:%d" % (HX + kk * NW + w, HG, w * ROWB + kk * 256))
    for kk in range(3):
        b = HX + kk * NW
        e("s_waitcnt lgkmcnt(%d)" % (8 - 4 * kk))
        e("v_add_f32 v%d, v%d, v%d" % (b, b, b + 1))
        e("v_add_f32 v%d, v%d, v%d" % (b + 2, b + 2, b + 3))
        e("v_sub_f32 v%d, v%d, v%d" % (b, b, HC))
        if FU:
            e("v_add_f32 v%d, v%d, v%d" % (HX + 12 + kk, b, b + 2))
            continue
        e("v_add_f32 v%d, v%d, v%d" % (b, b, b + 2))
        e("buffer_store_dword v%d, v%d, s[%d:%d], s%d offen offset:%d" % (b, HR, PWS, PWS + 3, PSG, kk * 256))
    if FU:
        e("buffer_store_dwordx4 v[%d:%d], v%d, s[%d:%d], s%d offen sc1" % (HX + 12, HX + 15, HK, PWS, PWS + 3, PSG))
    else:
        e("s_mov_b64 exec, 1")
        e("buffer_store_dwordx2 v[%d:%d], off, s[%d:%d], s%d offset:%d" % (HA, HB_, PWS, PWS + 3, PSG, DH * 4))
        e("s_mov_b64 exec, -1")
    e("v_add_u32 v%d, %d, v%d" % (HG, NW * ROWB, HG))
    e("s_add_u32 s%d, s%d, 1" % (PPH, PPH))
    e("s_cmp_lt_u32 s%d, 3" % PPH)
    e("s_cbranch_scc1 L_merge")
    if P["stamp"] == 5:
        e("s_memrealtime s[%d:%d]" % (PT, PT + 1))
        e("s_waitcnt vmcnt(0)")
        e("s_memrealtime s[%d:%d]" % (PT + 2, PT + 3))
        srd(PS2, 82, 0x8000000)
        e("s_waitcnt lgkmcnt(0)")
        e("v_mov_b32 v%d, s%d" % (HX, PT))
        e("v_mov_b32 v%d, s%d" % (HX + 1, PT + 2))
        e("s_lshl_b32 s%d, s2, 3" % PE)
        e("s_add_u32 s%d, s%d, 0x400a000" % (PE, PE))
        e("s_mov_b64 exec, 1")
        e("buffer_store_dwordx2 v[%d:%d], off, s[%d:%d], s%d" % (HX, HX + 1, PS2, PS2 + 3, PE))
    e("s_endpgm")

    main_text = e.text()
    RPW = 24
    k2 = NAME + "_kernel"
    e.lines.append(".globl %s" % k2)
    e.lines.append(".p2align 8")
    e.lines.append(".type %s,@function" % k2)
    e.lines.append(k2 + ":")
    e.wr = {}; e.tr = {}; e.sw = {}
    e("s_cmp_ge_u32 s2, %d" % H)
    e("s_cbranch_scc1 L_exit2")
    e("s_load_dwordx2 s[4:5], s[0:1], 56")
    e("s_load_dwordx2 s[6:7], s[0:1], 72")
    e("v_lshlrev_b32 v1, 2, v0")
    e("v_mov_b32 v2, 0")
    e("s_mul_i32 s16, s2, %d" % (RPW * PART_STRIDE))
    e("s_mov_b32 s10, %d" % (3 * NWG * PART_STRIDE))
    e("s_mov_b32 s11, 0x00020000")
    e("s_mov_b32 s14, %d" % (H * DH * 2))
    e("s_mov_b32 s15, 0x00020000")
    for k in range(1, RPW // 4):
        e("s_add_u32 s%d, s16, %d" % (16 + k, 4 * k * PART_STRIDE))
    e("s_waitcnt lgkmcnt(0)")
    e("s_mov_b32 s8, s6")
    e("s_and_b32 s9, s7, 0xffff")
    e("s_mov_b32 s12, s4")
    e("s_and_b32 s13, s5, 0xffff")
    MLB = 8
    OB = MLB + 2 * RPW
    for s in range(RPW):
        so = 16 + s // 4
        e("buffer_load_dwordx2 v[%d:%d], v2, s[8:11], s%d offen offset:%d" %
          (MLB + 2 * s, MLB + 2 * s + 1, so, (s % 4) * PART_STRIDE + DH * 4))
        e("buffer_load_dword v%d, v1, s[8:11], s%d offen offset:%d" % (OB + s, so, (s % 4) * PART_STRIDE))
    e("s_waitcnt vmcnt(0)")
    e("v_mov_b32 v4, v%d" % MLB)
    for s in range(1, RPW):
        e("v_max_f32 v4, v4, v%d" % (MLB + 2 * s))
    for s in range(RPW):
        e("v_sub_f32 v%d, v%d, v4" % (MLB + 2 * s, MLB + 2 * s))
    for s in range(RPW):
        e("v_exp_f32 v%d, v%d" % (MLB + 2 * s, MLB + 2 * s))
    e("v_mul_f32 v5, v%d, v%d" % (MLB, MLB + 1))
    e("v_mul_f32 v6, v%d, v%d" % (MLB, OB))
    for s in range(1, RPW):
        e("v_fmac_f32 v5, v%d, v%d" % (MLB + 2 * s, MLB + 2 * s + 1))
        e("v_fmac_f32 v6, v%d, v%d" % (MLB + 2 * s, OB + s))
    e("v_rcp_f32 v5, v5")
    e("v_mul_f32 v6, v6, v5")
    e("v_cvt_pk_bf16_f32 v6, v6, v6")
    e("s_mul_i32 s16, s2, %d" % (DH * 2))
    e("v_lshrrev_b32 v1, 1, v1")
    e("buffer_store_short v6, v1, s[12:15], s16 offen")
    e.lines.append("L_exit2:")
    e("s_endpgm")
    NV2 = OB + RPW

    def kd(name, nv, ns):
        acc = (nv + 3) // 4 * 4
        return """.amdhsa_kernel %s
  .amdhsa_next_free_vgpr %d
  .amdhsa_next_free_sgpr %d
  .amdhsa_accum_offset %d
  .amdhsa_group_segment_fixed_size 0
  .amdhsa_kernarg_size 80
  .amdhsa_user_sgpr_count 2
  .amdhsa_user_sgpr_kernarg_segment_ptr 1
  .amdhsa_system_sgpr_workgroup_id_x 1
.end_amdhsa_kernel
""" % (name, nv, ns, acc)

    diag = ""
    if P["diag"]:
        d = Emit4()
        d.lines += [".globl diag_kernel", ".p2align 8", ".type diag_kernel,@function", "diag_kernel:"]
        d("s_cmp_ge_u32 s2, 1")
        d("s_cbranch_scc1 L_dx")
        d("s_load_dwordx2 s[6:7], s[0:1], 72")
        d("s_memrealtime s[16:17]")
        d("v_lshlrev_b32 v1, 4, v0")
        d("s_mov_b32 s10, 0x8000000")
        d("s_mov_b32 s11, 0x00020000")
        d("s_waitcnt lgkmcnt(0)")
        d("s_mov_b32 s8, s6")
        d("s_and_b32 s9, s7, 0xffff")
        for k in range(16):
            d("s_mov_b32 s12, 0x%x" % (0x4000000 + k * 1024))
            d("buffer_load_dwordx4 v[%d:%d], v1, s[8:11], s12 offen" % (4 + 4 * k, 7 + 4 * k))
        d("s_waitcnt vmcnt(0)")
        d("v_readfirstlane_b32 s13, v4")
        d("v_mov_b32 v2, 0")
        d("v_mov_b32 v3, 0")
        for k in range(16):
            d("v_subrev_u32 v%d, s13, v%d" % (4 + 4 * k, 4 + 4 * k))
            d("v_subrev_u32 v%d, s13, v%d" % (5 + 4 * k, 4 + 4 * k + (P["diag"] & 3)))
            d("v_min_i32 v2, v2, v%d" % (4 + 4 * k))
            d("v_max_i32 v3, v3, v%d" % (5 + 4 * k))
        d("s_mov_b32 s14, 0")
        d("s_mov_b32 s15, 0")
        for l in range(64):
            d("v_readlane_b32 s18, v2, %d" % l)
            d("v_readlane_b32 s19, v3, %d" % l)
            d("s_nop 3")
            d("s_min_i32 s14, s14, s18")
            d("s_max_i32 s15, s15, s19")
        if P["diag"] & 4:
            d("s_sub_u32 s14, s16, s13")
            d("s_sub_u32 s15, s14, s15")
        else:
            d("s_sub_u32 s15, s15, s14")
        d("s_sub_u32 s15, s15, %d" % P["doff"])
        d("s_max_i32 s15, s15, 0")
        d("s_min_i32 s15, s15, 10000")
        d("s_mul_i32 s15, s15, %d" % P["dmul"])
        d("s_add_u32 s15, s15, s16")
        d.label("L_dl")
        d("s_memrealtime s[18:19]")
        d("s_waitcnt lgkmcnt(0)")
        d("s_sub_u32 s18, s18, s15")
        d("s_cmp_lt_i32 s18, 0")
        d("s_cbranch_scc1 L_dl")
        d.lines.append("L_dx:")
        d("s_endpgm")
        diag = d.text()
    out = HEADER.replace("gen.py", "gen6.py").format(params=" ".join("%s=%s" % kv for kv in sorted(P.items())))
    if FU:
        out += "; @launch kernel=%s grid=(%d,1,1) block=(%d,1,1) lds=%d\n" % (k1, NWG, (NW + NHX) * 64, LDS1)
    else:
        out += "; @launch kernel=%s grid=(%d,1,1) block=(%d,1,1) lds=%d\n" % (k1, NWG, (NW + NHX) * 64, LDS1)
        out += "; @launch kernel=%s grid=(%d,1,1) block=(%d,1,1) lds=%d\n" % (k2, H, DH, 0)
    if diag:
        out += "; @launch kernel=diag_kernel grid=(1,1,1) block=(64,1,1) lds=0\n"
    out += '.amdgcn_target "amdgcn-amd-amdhsa--gfx950"\n.text\n'
    out += main_text if FU else e.text()
    out += diag
    out += '.section .rodata,"a"\n.p2align 6\n'
    out += kd(k1, NVGPR + (8 if P["xb"] else 2 if P["stamp"] == 5 else 0), 102)
    if not FU:
        out += ".p2align 6\n"
        out += kd(k2, NV2, 24)
    if diag:
        out += ".p2align 6\n"
        out += kd("diag_kernel", 72, 24)
    return out


DEFAULTS = dict(grp="6-6-6", n0=4, trg=1, ta=8, tb=12, jit=1, pace=1, nr0=1, nr=3, nt="nt", ldspad=0, stamp=0, xkp=0, force=0, clip=1400,
                l2t=290, th=200, pf=1, ob=2, ox=0, ds=1, td=3, tdm=3, fuse=1, cw=1,
                lx=0, wo=0, ns0=8, tw=1, ov="0000", st="sc1", xv="", h4=0, bnt=0, vw=1, at=1, tc=36, tg=2, te=40, aq=16, ka=12, kb=3584, dmin=0, dmax=11,
                bc=1, cpk="9-17-25-33-41", cpv="1-9-17-25", rd=2, ka2=8, kb2=512, bmax=6, be=1, pw=2, il=1, xp=0, ss=0, eb=0, pfi=0, hs=0, l2p=0, gts="16-32-48-64-80", gn=8, gtol=25, gcap=1000, xb=0, diag=0, doff=20000, dmul=8)


def main():
    P = dict(DEFAULTS)
    outp = None
    args = sys.argv[1:]
    i = 0
    while i < len(args):
        a = args[i]
        if a == "-o":
            outp = args[i + 1]; i += 2; continue
        k, v = a.split("=", 1)
        assert k in P, k
        P[k] = type(P[k])(v.replace("+", " ")) if isinstance(P[k], str) else int(v)
        i += 1
    s = gen(P)
    if outp:
        open(outp, "w").write(s)
    else:
        sys.stdout.write(s)


if __name__ == "__main__":
    main()
```

```python
import re
import sys
import math
from gen import f32hex, HEADER, NAME, H, SKV, DH, G, NGRP, ROWB, HEADB
from gen4 import Emit4

PART_STRIDE = 1024
NW = 4
NH = 3
NWG = 256
NT = 48
WS_G = 8 << 20
FSTR = 4096 + 256
WS_ML = 0xe0000
WS_B = 0x120000
WS_L = 2 << 20
WS_T = 0x9c0000
WS_SIZE = 10 << 20
BIGNEG = 0xf149f2ca


def gen(P):
    GR = [int(x) for x in P["grp"].split("-")]
    assert sum(GR) == 18 and len(GR) >= 2
    NG = len(GR)
    GOFF = [sum(GR[:k]) for k in range(NG)]
    OV = [int(x) for x in P["ov"]]
    N0 = P["n0"]
    NR = P["nr"]
    TRG1 = N0 - P["trg"]
    TA = P["ta"]
    TB = P["tb"]
    assert 2 <= TRG1 < N0 < TA < TB < 16 and 1 <= NR <= 7 and N0 <= 8
    pol = (" " + P["nt"]) if P["nt"] else ""
    C = (DH ** -0.5) * math.log2(math.e)
    L_DEC = 0
    L_GO = 24
    L_PC = 36
    L_CF = 40
    L_FD = 52
    L_EV = 56
    L_CA = 64
    L_ML = 80
    L_TC = 128
    L_TD = 132
    L_EL = 136
    L_TM = 144
    L_GT = 208
    L_LG = 256
    PHI = 6144
    IMG = 3 * PHI
    L_PV = L_LG + IMG
    L_ACC = L_PV + 192 * 128
    LDS1 = max(L_ACC + 3 * NW * ROWB, P["ldspad"])

    e = Emit4()
    V_T = 1; V_J16 = 2; V_J8 = 3; V_LB0 = 4; V_PB0 = 5; V_PV = 6; V_PVN = 7; V_DO = 8; V_PO = 9; V_T0 = 10; V_T1 = 11
    V_ACC = 12; V_W = 24; V_RAW = 36
    V_OFF = 48; V_OFF6 = 49; V_TM = 50; V_BIG = 51; V_T2 = 52; V_Z = 53
    V_S = 54
    V_D = 60
    V_T128 = 62; V_TMX = 63
    V_RING = 64
    NVGPR = V_RING + 72
    S_G = 3; S_M = 4; S_N = 5; S_SPIN = 6; S_LDC = 7
    S_K = 8; S_V = 12; S_KS = 16; S_Q = 20; S_WS = 24
    S_WAVE = 28; S_CI = 29; S_I = 30; S_QOFF = 31
    S_T = 32
    S_EV = 40; S_STM = 42; S_HB = 44; S_768 = 45; S_384 = 46; S_MAGIC = 47
    S_NB = 48; S_TD = 49; S_XB = 50; S_LB = 53
    S_ST = 54; S_DBG = 56
    S_BO = 59; S_TW = 60; S_CPA = 62; S_NBO = 63; S_BP = 72
    S_MP = 64; S_MG = 66; S_MR = 68; S_MO = 70
    BC = P["bc"]
    NHX = NH + (1 if BC else 0)
    CPK = [int(x) for x in P["cpk"].split("-")] if BC and P["cpk"] else []
    CPV = [int(x) for x in P["cpv"].split("-")] if BC and P["cpv"] else []
    if BC:
        CPV.append(P["tc"])
        assert P["te"] == P["tc"] + P["tg"] + P["rd"] and len(CPK) + len(CPV) <= 16

    GTS = [int(x) for x in P["gts"].split("-")] if BC and P["gts"] else []

    def set_masks(ev, cps):
        mp = sum(1 << c for c in cps)
        allm = [(S_EV, ev | mp | (mp << P["tg"]) | (mp << (P["tg"] + P["rd"])))]
        if BC:
            allm += [(S_MP, mp), (S_MG, mp << P["tg"]), (S_MR, mp << (P["tg"] + P["rd"])), (S_MO, ev)]
        for r, v in allm:
            assert v < (1 << 48)
            e("s_mov_b32 s%d, 0x%x" % (r, v & 0xffffffff))
            e("s_mov_b32 s%d, 0x%x" % (r + 1, v >> 32))

    FU = P["fuse"]
    k1 = NAME + "_kernel" if FU else "part_kernel"
    e.lines.append(".globl %s" % k1)
    e.lines.append(".p2align 8")
    e.lines.append(".type %s,@function" % k1)
    e.lines.append(k1 + ":")
    e("s_cmp_ge_u32 s2, %d" % NWG)
    e("s_cbranch_scc1 L_exit1")
    e("s_load_dwordx16 s[64:79], s[0:1], 0")
    e("s_load_dwordx4 s[80:83], s[0:1], 64")
    if P["stamp"]:
        e("s_memrealtime s[%d:%d]" % (S_ST, S_ST + 1))
    e("v_lshrrev_b32 v%d, 6, v0" % V_T0)
    e("v_and_b32 v%d, 63, v0" % V_T1)
    e("v_readfirstlane_b32 s%d, v%d" % (S_WAVE, V_T0))
    e("s_lshr_b32 s%d, s2, 3" % S_G)
    e("s_and_b32 s%d, s2, 7" % S_M)
    e("s_lshr_b32 s%d, s2, 6" % S_T)
    e("s_xor_b32 s%d, s%d, s%d" % (S_T, S_T, S_M))
    e("s_lshr_b32 s%d, s%d, 1" % (S_NB, S_T))
    e("s_and_b32 s%d, s%d, 1" % (S_T, S_T))
    e("s_lshl_b32 s%d, s%d, 2" % (S_T, S_T))
    e("s_or_b32 s%d, s%d, s%d" % (S_NB, S_NB, S_T))
    e("s_cmp_ge_u32 s%d, %d" % (S_WAVE, NW))
    e("s_cbranch_scc1 L_helper")

    def srd(dst, ptr, nbytes):
        e("s_mov_b32 s%d, s%d" % (dst, ptr))
        e("s_and_b32 s%d, s%d, 0xffff" % (dst + 1, ptr + 1))
        e("s_mov_b32 s%d, %d" % (dst + 2, nbytes))
        e("s_mov_b32 s%d, 0x00020000" % (dst + 3))

    def lds_wait(tag, vz, vt, st, off, cond, spin, vaddr=None):
        e("s_mov_b32 s%d, 0x100000" % spin)
        e.label("L_w" + tag)
        e("ds_read_b32 v%d, v%d offset:%d" % (vt, vz if vaddr is None else vaddr, off))
        e("s_sub_u32 s%d, s%d, 1" % (spin, spin))
        e("s_cbranch_scc1 L_exit1")
        e("s_waitcnt lgkmcnt(0)")
        e("v_readfirstlane_b32 s%d, v%d" % (st, vt))
        if cond == "nz":
            e("s_cmp_eq_u32 s%d, 0" % st)
        else:
            e("s_cmp_lt_u32 s%d, %s" % (st, cond))
        e("s_cbranch_scc1 L_w" + tag)

    def gate(b, tag, check):
        if b not in GTS:
            return
        if check:
            e("s_cmp_eq_u32 s%d, %d" % (S_I, b % 48))
            e("s_cbranch_scc0 L_gx" + tag)
        e("s_memrealtime s[%d:%d]" % (S_T + 4, S_T + 5))
        lds_wait("g" + tag, V_Z, V_T0, S_T, L_GT + 4 * GTS.index(b), "nz", S_SPIN)
        e("s_and_b32 s%d, s%d, 0xffff" % (S_T, S_T))
        e("s_cbranch_scc0 L_gx" + tag)
        if P["stamp"] == 5:
            e("s_lshl_b32 s%d, s%d, 16" % (S_T + 1, S_T))
            e("s_add_u32 s%d, s%d, s%d" % (S_NBO, S_NBO, S_T + 1))
        e("s_add_u32 s%d, s%d, s%d" % (S_T, S_T, S_T + 4))
        e.label("L_gl" + tag)
        e("s_memrealtime s[%d:%d]" % (S_T + 4, S_T + 5))
        e("s_waitcnt lgkmcnt(0)")
        e("s_sub_u32 s%d, s%d, s%d" % (S_T + 4, S_T + 4, S_T))
        e("s_cmp_lt_i32 s%d, 0" % (S_T + 4))
        e("s_cbranch_scc1 L_gl" + tag)
        e.label("L_gx" + tag)

    def get_table(kind, tag):
        if tag == "tv":
            gate(48, tag, False)
        else:
            for b in ((16, 32) if kind == "K" else (64, 80)):
                gate(b, "%s%d" % (tag, b), True)
        e("s_lshr_b32 s%d, s%d, 4" % (S_T + 1, S_I))
        e("s_lshl_b32 s%d, s%d, 2" % (S_T + 2, S_T + 1))
        if P["stamp"] == 6:
            e("s_memrealtime s[%d:%d]" % (S_T + 4, S_T + 5))
            e("s_lshl_b32 s%d, s2, 2" % S_T)
            e("s_add_u32 s%d, s%d, s%d" % (S_T, S_T, S_WAVE))
            e("s_cmp_eq_u32 s%d, 400" % S_T)
            e("s_cselect_b64 exec, 1, 0")
            e("s_waitcnt lgkmcnt(0)")
            e("s_sub_u32 s%d, s%d, s%d" % (S_T + 4, S_T + 4, S_ST))
            e("v_mov_b32 v%d, s%d" % (V_T1, S_T + 4))
            e("buffer_store_dword v%d, off, s[%d:%d], s%d offset:%d" % (V_T1, S_WS, S_WS + 3, S_T + 2, 40 if kind == "K" else 52))
            e("s_mov_b64 exec, -1")
        e("v_mov_b32 v%d, s%d" % (V_T1, S_T + 2))
        if kind == "K":
            load_q(S_T + 1, False)
        lds_wait(tag, V_Z, V_T0, S_T, L_DEC if kind == "K" else L_GO, "nz", S_SPIN, V_T1)
        e("s_and_b32 s%d, s%d, 7" % (S_N, S_T))
        e("s_xor_b32 s%d, s%d, s%d" % (S_N, S_N, S_NB))
        e("s_bitcmp1_b32 s%d, 3" % S_T)
        e("s_cselect_b64 vcc, -1, 0")
        e("v_cndmask_b32 v%d, v%d, v%d, vcc" % (V_TM, V_T128, V_TMX))

    def load_q(ph, track):
        e("s_lshl_b32 s%d, s%d, 5" % (S_QOFF, ph))
        e("s_add_u32 s%d, s%d, s%d" % (S_QOFF, S_QOFF, S_G))
        e("s_mul_i32 s%d, s%d, 171" % (S_QOFF, S_QOFF))
        e("s_lshr_b32 s%d, s%d, 9" % (S_QOFF, S_QOFF))
        e("s_mul_i32 s%d, s%d, %d" % (S_QOFF, S_QOFF, DH * 2))
        for c in range(3):
            r = V_RAW + 2 * c
            s = "buffer_load_dwordx2 v[%d:%d], v%d, s[%d:%d], s%d offen offset:%d" % (r, r + 1, V_J8, S_Q, S_Q + 3, S_QOFF, c * 128)
            if track:
                e.vmem(s, "p")
            else:
                e(s)

    def tile_addr(kind):
        ch, a, b = S_T, S_T + 1, S_T + 2
        e("s_lshr_b32 s%d, s%d, 6" % (a, S_CI))
        e("s_lshl_b32 s%d, s%d, 11" % (a, a))
        e("s_and_b32 s%d, s%d, 63" % (ch, S_CI))
        e("s_add_u32 s%d, s%d, s%d" % (ch, ch, a))
        e("s_add_u32 s%d, s%d, s%d" % (ch, ch, S_HB))
        e("s_bfe_u32 s%d, s%d, 0x20003" % (a, ch))
        e("s_and_b32 s%d, s%d, 4" % (b, ch))
        e("s_or_b32 s%d, s%d, s%d" % (a, a, b))
        e("s_xor_b32 s%d, s%d, s%d" % (a, a, S_N))
        e("s_lshl_b32 s%d, s%d, 5" % (S_XB, ch))
        e("s_or_b32 s%d, s%d, s%d" % (S_XB, S_XB, a))
        e("s_lshl_b32 s%d, s%d, 4" % (S_XB, S_XB))
        e("s_or_b32 s%d, s%d, 1" % (S_XB, S_XB))
        if kind == "V":
            e("s_lshl_b32 s%d, s%d, 7" % (S_LB, S_CI))
        e("v_xor_b32 v%d, s%d, v%d" % (V_T0, S_XB, V_TM))
        e("v_mul_hi_u32 v%d, v%d, s%d" % (V_T0, V_T0, S_MAGIC))
        e("v_lshrrev_b32 v%d, 1, v%d" % (V_T0, V_T0))
        e("v_and_b32 v%d, 15, v%d" % (V_T1, V_T0))
        e("v_cmp_eq_u32 vcc, 5, v%d" % V_T1)
        e("v_mad_u32_u24 v%d, v%d, s%d, v%d" % (V_OFF, V_T0, S_768, V_J16))
        e("v_add_u32 v%d, %d, v%d" % (V_T1, 5 * ROWB, V_OFF))
        e("v_cndmask_b32 v%d, v%d, v%d, vcc" % (V_OFF6, V_BIG, V_T1))
        if kind == "K":
            e("v_lshrrev_b32 v%d, 6, v%d" % (V_T0, V_T0))
            e("v_mad_u32_u24 v%d, v%d, s%d, v%d" % (V_PO, V_T0, S_384, V_J8))
        else:
            e("v_add_u32 v%d, s%d, v%d" % (V_T0, S_LB, V_PB0))

    def issue_params(kind):
        if kind == "K":
            if P["xkp"] & 2:
                return
            for c in range(3):
                r = V_RAW + 6 + 2 * c
                e.vmem("buffer_load_dwordx2 v[%d:%d], v%d, s[%d:%d], 0 offen offset:%d%s" %
                       (r, r + 1, V_PO, S_KS, S_KS + 3, c * 128, " nt" if P["bnt"] & 4 else ""), "p")
            if P["xb"] & 2:
                for c in range(3):
                    r = NVGPR + 2 + 2 * c
                    e.vmem("buffer_load_dwordx2 v[%d:%d], v%d, s[%d:%d], 0 offen offset:%d" % (r, r + 1, V_PO, 76, 79, c * 128), "p")
        else:
            e("ds_read_b32 v%d, v%d" % (V_PVN, V_T0))

    def issue_group(k, kind, pol=pol):
        srdb = S_K if kind == "K" else S_V
        for l in range(GOFF[k], GOFF[k] + GR[k]):
            r = V_RING + l * 4
            if l < 15:
                vo, off = V_OFF, l * 256
            else:
                vo, off = V_OFF6, (l - 15) * 256
            e.vmem("buffer_load_dwordx4 v[%d:%d], v%d, s[%d:%d], 0 offen offset:%d%s" %
                   (r, r + 3, vo, srdb, srdb + 3, off, pol), "g%d" % k)

    def compute_w():
        e.wait_tag("p")
        for p in range(6):
            rq = V_RAW + p; rs = V_RAW + 6 + p
            i0 = 2 * p
            e("v_lshlrev_b32 v%d, 16, v%d" % (V_T0, rq))
            e("v_lshlrev_b32 v%d, 16, v%d" % (V_W + i0, rs))
            e("v_and_b32 v%d, 0xffff0000, v%d" % (V_T1, rq))
            e("v_and_b32 v%d, 0xffff0000, v%d" % (V_W + i0 + 1, rs))
            e("v_mul_f32 v%d, v%d, v%d" % (V_W + i0, V_W + i0, V_T0))
            e("v_mul_f32 v%d, v%d, v%d" % (V_W + i0 + 1, V_W + i0 + 1, V_T1))

    def advance(kind, to_v, tag):
        nkind = "V" if to_v else kind
        if to_v:
            e("s_mov_b32 s%d, s%d" % (S_CI, S_WAVE))
            e("s_mov_b32 s%d, 0" % S_I)
            get_table("V", "tv")
            ev = (1 << 16) | (1 << 32)
            if P["at"] and not BC:
                ev |= (1 << P["tc"]) | (1 << (P["tc"] + P["tg"])) | (1 << P["te"])
            e("s_mov_b32 s%d, %d" % (S_TD, NT - P["td"] if P["td"] else 255))
            set_masks(ev, CPV)
        else:
            e("s_add_u32 s%d, s%d, %d" % (S_CI, S_CI, NW))
            e("s_add_u32 s%d, s%d, 1" % (S_I, S_I))
            if tag:
                e("s_bitcmp1_b64 s[%d:%d], s%d" % (S_EV, S_EV + 1, S_I))
                sfx = tag if isinstance(tag, str) else ""
                e("s_cbranch_scc1 L_ev%s%s" % (kind, sfx))
                e.flush()
                e.label("L_evret%s%s" % (kind, sfx))
        if P["stamp"] == 4:
            e("s_memrealtime s[%d:%d]" % (S_DBG, S_DBG + 1))
            e("s_add_u32 s%d, s%d, 4" % (S_DBG + 2, S_DBG + 2))
            e("s_waitcnt lgkmcnt(0)")
            e("v_mov_b32 v%d, s%d" % (V_T2, S_DBG))
            e("s_mov_b64 exec, 1")
            e("buffer_store_dword v%d, off, s[%d:%d], s%d" % (V_T2, S_WS, S_WS + 3, S_DBG + 2))
            e("s_mov_b64 exec, -1")
        if P["stamp"] == 5:
            e("s_memrealtime s[%d:%d]" % (S_DBG, S_DBG + 1))
            e("s_add_u32 m0, m0, 1")
            e("s_waitcnt lgkmcnt(0)")
            e("v_writelane_b32 v%d, s%d, m0" % (NVGPR + (1 if kind == "V" else 0), S_DBG))
            if to_v:
                e("s_mov_b32 m0, -1")
        tile_addr(nkind)
        issue_params(nkind)

    def compute(k, kind):
        for l in range(GOFF[k], GOFF[k] + GR[k]):
            q, c = l // 3, l % 3
            base = V_RING + l * 4
            for r in range(4):
                e("v_cvt_f32_i32 v%d, v%d" % (base + r, base + r))
            if kind == "K":
                s = V_S + q
                for r in range(4):
                    if c == 0 and r == 0:
                        e("v_mul_f32 v%d, v%d, v%d" % (s, base, V_W))
                    else:
                        e("v_fmac_f32 v%d, v%d, v%d" % (s, base + r, V_W + 4 * c + r))
                if c == 2:
                    e.defer(["v_add_f32_dpp v%d, v%d, v%d row_ror:%d row_mask:0xf bank_mask:0xf" % (s, s, s, kk)
                             for kk in (8, 4, 2)] +
                            ["v_add_f32_dpp v%d, v%d, v%d row_ror:1 row_mask:0xf bank_mask:0x%x" %
                             (V_D + (q & 1), s, s, 1 << (q >> 1))])
            else:
                for r in range(4):
                    e("v_fmac_f32_dpp v%d, v%d, v%d row_newbcast:%d row_mask:0xf bank_mask:0xf" %
                      (V_ACC + 4 * c + r, V_PV, base + r, q))
        e.flush()

    def finish(kind, to_v):
        if kind == "K":
            e("s_mov_b64 exec, s[%d:%d]" % (S_STM, S_STM + 1))
            e("ds_write_b64 v%d, v[%d:%d]" % (V_LB0, V_D, V_D + 1))
            e("s_mov_b64 exec, -1")
            if not to_v:
                e("v_add_u32 v%d, 48, v%d" % (V_LB0, V_LB0))
                compute_w()
        if kind == "V" or to_v:
            e("s_waitcnt lgkmcnt(0)")
            e("v_mov_b32 v%d, v%d" % (V_PV, V_PVN))

    ELS = []

    def elect(k, kind, lo=0):
        if P["fc"] == 4 and kind == "V" and k == max(P["elk"], lo):
            tag = "L_el%d" % len(ELS)
            ELS.append(tag)
            e("s_cmp_eq_u32 s%d, %d" % (S_I, NT))
            e("s_cbranch_scc1 %s" % tag)
            e.lines.append(tag + "r:")

    def body(kind, to_v=False, first=False):
        nkind = "V" if to_v else kind
        for k in range(NG):
            ov = OV[k] if not first else 0
            if ov:
                i = e.vm.index("g%d" % k) + GR[k] - ov
                e("s_waitcnt vmcnt(%d)" % (len(e.vm) - i))
                e.vm = e.vm[i:]
            else:
                e.wait_tag("g%d" % k)
            if k + 1 < NG:
                if not first:
                    issue_group(k + 1, kind)
            else:
                issue_group(0, nkind)
            if ov:
                e("s_waitcnt vmcnt(%d)" % (len(e.vm) - ov))
                e.vm = e.vm[ov:]
            if k == NG - 2:
                advance(kind, to_v, not first)
            elect(k, kind, NG - 2)
            compute(k, kind)
        finish(kind, to_v)

    def body_deep(mode):
        if mode == 3:
            advance("V", False, False)
        for k in range(NG):
            i = e.vm.index("g%d" % k) + GR[k]
            e("s_waitcnt vmcnt(%d)" % (len(e.vm) - i))
            e.vm = e.vm[i:]
            if mode == 2:
                issue_group((k + 2) % NG, "V")
                if k == NG - 3:
                    advance("V", False, False)
            elect(k, "V")
            compute(k, "V")
            if mode == 3:
                issue_group(k, "V", "" if P["xkp"] & 256 else pol)
        finish("V", False)

    def body_boost(kind):
        for k in range(1, NG):
            issue_group(k, kind)
        e("s_sub_u32 s%d, s%d, 1" % (S_BO, S_BO))
        if P["stamp"] == 5:
            e("s_add_u32 s%d, s%d, 256" % (S_NBO, S_NBO))
        advance(kind, False, "B")
        for k in range(NG):
            e.wait_tag("g%d" % k)
            if k == NG - 1 and not P["be"]:
                issue_group(0, kind)
            elect(k, kind)
            compute(k, kind)
            if k == 0 and P["be"]:
                issue_group(0, kind)
        finish(kind, False)

    def lds_inc(off, vz, vt):
        e("v_mov_b32 v%d, 1" % vt)
        e("s_mov_b64 exec, 1")
        e("ds_add_u32 v%d, v%d offset:%d" % (vz, vt, off))
        e("s_mov_b64 exec, -1")

    e("v_lshrrev_b32 v%d, 4, v%d" % (V_T, V_T1))
    e("v_and_b32 v%d, 15, v%d" % (V_T2, V_T1))
    e("v_lshlrev_b32 v%d, 4, v%d" % (V_J16, V_T2))
    e("v_lshlrev_b32 v%d, 3, v%d" % (V_J8, V_T2))
    e("v_lshlrev_b32 v%d, 7, v%d" % (V_T128, V_T))
    e("v_and_b32 v%d, 0x70, v0" % V_TMX)
    e("v_or_b32 v%d, v%d, v%d" % (V_TMX, V_TMX, V_T128))
    e("v_mov_b32 v%d, v%d" % (V_TM, V_TMX))
    if P["h4"]:
        e("v_and_b32 v%d, 0x%x, v%d" % (V_T128, 0xffffff8f | (P["h4"] << 4), V_TMX))
    e("s_mov_b32 s%d, %d" % (S_768, ROWB))
    e("s_mov_b32 s%d, %d" % (S_384, DH * 2))
    e("s_mov_b32 s%d, 0xaaaaaaab" % S_MAGIC)
    e("v_mov_b32 v%d, 0xc0000000" % V_BIG)
    e("s_lshl_b32 s%d, s%d, 6" % (S_HB, S_G))
    e("s_mov_b32 s%d, s%d" % (S_N, S_NB))
    e("s_mov_b32 s%d, s%d" % (S_CI, S_WAVE))
    tile_addr("K")
    SS = P["ss"]
    EB = P["eb"]
    if SS:
        e("s_memrealtime s[84:85]")
    if EB == 3:
        e("s_barrier")
    e("s_waitcnt lgkmcnt(0)")
    if SS:
        e("s_memrealtime s[86:87]")
    if EB == 2:
        e("s_barrier")
    e("s_mov_b32 s%d, 0" % S_I)
    if P["xb"] & 2:
        srd(76, 72, H * NGRP * DH * 2)
    if P["pfi"]:
        srd(S_Q, 64, H * DH * 2)
        load_q(S_I, True)
        srd(S_KS, 70, H * NGRP * DH * 2)
        issue_params("K")
    srd(S_K, 66, H * HEADB)
    issue_group(0, "K")
    if EB == 1:
        e("s_barrier")
    if not P["pfi"]:
        srd(S_Q, 64, H * DH * 2)
        load_q(S_I, True)
        srd(S_KS, 70, H * NGRP * DH * 2)
        issue_params("K")
    if P["ds"]:
        for k in range(1, NG):
            issue_group(k, "K")
    if SS:
        e("s_memrealtime s[88:89]")
    srd(S_V, 68, H * HEADB)
    if P["stamp"] == 6:
        srd(S_WS, 80, 256)
    elif P["stamp"]:
        srd(S_WS, 82, 0x8000000)
    if P["stamp"] == 5:
        e("s_mov_b32 m0, -1")
    if P["stamp"] in (4, 5):
        e("s_mul_i32 s%d, s2, %d" % (S_DBG + 2, NW))
        e("s_add_u32 s%d, s%d, s%d" % (S_DBG + 2, S_DBG + 2, S_WAVE))
        e("s_lshl_b32 s%d, s%d, 9" % (S_DBG + 2, S_DBG + 2))
        e("s_add_u32 s%d, s%d, 0x4010000" % (S_DBG + 2, S_DBG + 2))
    e("v_lshlrev_b32 v%d, 5, v%d" % (V_T1, V_T))
    e("v_bfe_u32 v%d, v0, 4, 3" % V_LB0)
    e("v_mul_u32_u24 v%d, s%d, v%d" % (V_LB0, S_768, V_LB0))
    e("v_lshl_add_u32 v%d, v%d, 1, v%d" % (V_LB0, V_T2, V_LB0))
    e("s_lshr_b32 s%d, s%d, 1" % (S_T, S_WAVE))
    e("s_mul_i32 s%d, s%d, 24" % (S_T, S_T))
    e("s_add_u32 s%d, s%d, %d" % (S_T, S_T, L_LG))
    e("v_add_u32 v%d, s%d, v%d" % (V_LB0, S_T, V_LB0))
    e("v_and_b32 v%d, 7, v%d" % (V_PB0, V_T2))
    e("v_lshl_add_u32 v%d, v%d, 2, v%d" % (V_PB0, V_PB0, V_T1))
    e("v_add_u32 v%d, %d, v%d" % (V_PB0, L_PV, V_PB0))
    e("v_lshlrev_b32 v%d, 2, v%d" % (V_DO, V_T))
    e("v_add_u32 v%d, v%d, v%d" % (V_DO, V_J16, V_DO))
    e("s_mul_i32 s%d, s%d, %d" % (S_T, S_WAVE, ROWB))
    e("s_add_u32 s%d, s%d, %d" % (S_T, S_T, L_ACC))
    e("v_add_u32 v%d, s%d, v%d" % (V_DO, S_T, V_DO))
    e("v_mov_b32 v%d, 0" % V_Z)
    e("v_mov_b32 v%d, 0" % V_D)
    e("v_mov_b32 v%d, 0" % (V_D + 1))
    e("s_mov_b32 s%d, 0x01110111" % S_STM)
    e("s_mov_b32 s%d, 0x01110111" % (S_STM + 1))
    ev = (1 << TRG1) | (1 << N0) | (3 << 16) | (3 << 32) | (((1 << TA) | (1 << TB)) * 0x100010001)
    set_masks(ev, CPK)
    if BC:
        e("s_mov_b32 s%d, 0" % S_BO)
        e("s_mov_b32 s%d, 0" % S_NBO)
        e("s_mov_b32 s%d, 0" % S_LDC)
        e("s_mov_b32 s%d, %d" % (S_CPA, L_TM))
    for i in range(12):
        e("v_mov_b32 v%d, 0" % (V_ACC + i))
    if SS:
        e("s_memrealtime s[90:91]")
    if not EB:
        e("s_barrier")
    if SS:
        e("s_memrealtime s[92:93]")
        e("s_waitcnt vmcnt(23)")
        e("s_memrealtime s[94:95]")
        e("s_waitcnt vmcnt(18)")
        e("s_memrealtime s[96:97]")
    compute_w()
    if SS:
        e("s_memrealtime s[98:99]")
        e("s_waitcnt lgkmcnt(0)")
        for k in range(8):
            e("v_writelane_b32 v%d, s%d, %d" % (NVGPR + 1, 84 + 2 * k, 48 + k))
    steady = ["g0"] * GR[0]
    if P["ds"]:
        body("K", first=True)
    e.vm = list(steady)
    e.lines.append(".p2align 6")
    e.label("L_kloop")
    body("K")
    assert e.vm == steady, (e.vm, steady)
    if BC:
        e.label("L_kchk")
        e("s_cmp_lg_u32 s%d, 0" % S_BO)
        e("s_cbranch_scc1 L_kboost")
        e.label("L_kchk2")
    e("s_cmp_lg_u32 s%d, %d" % (S_I, NT - 1))
    e("s_cbranch_scc1 L_kloop")
    body("K", True)
    lds_inc(L_CF + 8, V_Z, V_T1)
    if P["stamp"] == 1:
        e("s_memrealtime s[%d:%d]" % (S_DBG, S_DBG + 1))
    e.lines.append(".p2align 6")
    e.label("L_vloop")
    body("V")
    assert e.vm == steady, (e.vm, steady)
    if BC:
        e.label("L_vchk")
    if P["td"] or P["at"]:
        e("s_cmp_eq_u32 s%d, s%d" % (S_I, S_TD))
        e("s_cbranch_scc1 L_deep")
    if BC:
        e("s_cmp_lg_u32 s%d, 0" % S_BO)
        e("s_cbranch_scc1 L_vboost")
    e("s_and_b32 s%d, s%d, 15" % (S_T, S_I))
    e("s_cbranch_scc1 L_vloop")
    e.label("L_vend")
    for c in range(3):
        a = V_ACC + 4 * c
        e("v_permlane32_swap_b32 v%d, v%d" % (a, a + 2))
        e("v_permlane32_swap_b32 v%d, v%d" % (a + 1, a + 3))
    for c in range(3):
        a = V_ACC + 4 * c
        e("v_add_f32 v%d, v%d, v%d" % (a, a, a + 2))
        e("v_add_f32 v%d, v%d, v%d" % (a + 1, a + 1, a + 3))
    for c in range(3):
        a = V_ACC + 4 * c
        e("v_permlane16_swap_b32 v%d, v%d" % (a, a + 1))
    e("s_lshr_b32 s%d, s%d, 2" % (S_T, S_I))
    e("v_mov_b32 v%d, s%d" % (V_T0, S_T))
    for c in range(3):
        a = V_ACC + 4 * c
        e("v_add_f32 v%d, v%d, v%d" % (a, a, a + 1))
        e("ds_write_b32 v%d, v%d offset:%d" % (V_DO, a, c * 256))
    lds_inc(L_CA - 4, V_T0, V_T1)
    e("v_add_u32 v%d, %d, v%d" % (V_DO, NW * ROWB, V_DO))
    for i in range(12):
        e("v_mov_b32 v%d, 0" % (V_ACC + i))
    if BC:
        e("s_cmp_lg_u32 s%d, 0" % S_BO)
        e("s_cbranch_scc1 L_vboost2")
        e.label("L_vend2")
    e("s_cmp_lg_u32 s%d, %d" % (S_I, NT))
    e("s_cbranch_scc1 L_vloop")
    if P["stamp"] == 5 and BC:
        e("s_or_b32 s%d, s%d, s%d" % (S_LDC, S_LDC, S_NBO))
    if P["stamp"] == 6:
        e("s_memrealtime s[%d:%d]" % (S_T + 2, S_T + 3))
        e("s_not_b32 s%d, s%d" % (S_T, S_ST))
        e("v_mov_b32 v%d, s%d" % (V_ACC, S_T))
        e("s_waitcnt lgkmcnt(0)")
        e("v_mov_b32 v%d, s%d" % (V_ACC + 1, S_T + 2))
        e("s_mov_b64 exec, 1")
        e("s_cmp_lg_u32 s%d, 0" % S_WAVE)
        e("s_cbranch_scc1 L_exit1")
        e("buffer_atomic_umax v%d, off, s[%d:%d], 0 offset:32" % (V_ACC, S_WS, S_WS + 3))
        e("buffer_atomic_umax v%d, off, s[%d:%d], 0 offset:36" % (V_ACC + 1, S_WS, S_WS + 3))
    elif P["stamp"]:
        e("s_memrealtime s[%d:%d]" % (S_T + 2, S_T + 3))
        e("s_getreg_b32 s%d, hwreg(HW_REG_XCC_ID)" % (S_T + 4))
        e("s_waitcnt lgkmcnt(0)")
        e("v_mov_b32 v%d, s%d" % (V_ACC + 0, S_ST))
        e("v_mov_b32 v%d, s%d" % (V_ACC + 1, S_T + 2))
        e("v_mov_b32 v%d, s%d" % (V_ACC + 2, S_T + 4))
        e("v_mov_b32 v%d, s%d" % (V_ACC + 3, S_LDC if P["stamp"] == 5 else S_DBG))
        e("s_mul_i32 s%d, s2, %d" % (S_T, NW))
        e("s_add_u32 s%d, s%d, s%d" % (S_T, S_T, S_WAVE))
        e("s_lshl_b32 s%d, s%d, 4" % (S_T, S_T))
        e("s_add_u32 s%d, s%d, 0x4000000" % (S_T, S_T))
        e("buffer_store_dwordx4 v[%d:%d], v%d, s[%d:%d], s%d offen" % (V_ACC, V_ACC + 3, V_Z, S_WS, S_WS + 3, S_T))
        if P["stamp"] == 5:
            e("v_and_b32 v%d, 63, v0" % V_T0)
            e("v_lshlrev_b32 v%d, 2, v%d" % (V_T0, V_T0))
            e("s_mov_b32 exec_hi, 0xffff")
            e("buffer_store_dword v%d, v%d, s[%d:%d], s%d offen offset:4" % (NVGPR, V_T0, S_WS, S_WS + 3, S_DBG + 2))
            e("s_mov_b32 exec_hi, -1")
            e("buffer_store_dword v%d, v%d, s[%d:%d], s%d offen offset:196" % (NVGPR + 1, V_T0, S_WS, S_WS + 3, S_DBG + 2))
    e.lines.append("L_exit1:")
    e("s_endpgm")

    if P["td"] or P["at"]:
        e.label("L_deep")
        e.vm = list(steady)
        for k in range(1, P["tdm"] if NG == 3 else NG):
            issue_group(k, "V")
        deep = list(e.vm)
        e.lines.append(".p2align 6")
        e.label("L_dloop")
        body_deep(P["tdm"])
        assert e.vm == deep, (e.vm, deep)
        e("s_cmp_lg_u32 s%d, %d" % (S_I, NT))
        e("s_cbranch_scc1 L_dloop")
        e("s_branch L_vend")

    if BC:
        e.label("L_kboost")
        e("s_cmp_eq_u32 s%d, %d" % (S_I, NT - 1))
        e("s_cbranch_scc1 L_kchk2")
        e.vm = list(steady)
        body_boost("K")
        assert e.vm == steady, (e.vm, steady)
        e("s_branch L_kchk")
        e.label("L_vboost")
        e("s_and_b32 s%d, s%d, 15" % (S_T, S_I))
        e("s_cbranch_scc0 L_vend")
        e.label("L_vboost2")
        e("s_cmp_eq_u32 s%d, %d" % (S_I, NT))
        e("s_cbranch_scc1 L_vend2")
        body_boost("V")
        assert e.vm == steady, (e.vm, steady)
        e("s_branch L_vchk")

    for tag in ELS:
        e.label(tag)
        lds_inc(L_EL, V_Z, V_T1)
        e("s_branch %sr" % tag)

    def pace_events(kind, x):
        e("s_bitcmp1_b64 s[%d:%d], s%d" % (S_MP, S_MP + 1, S_I))
        e("s_cbranch_scc0 L_pa%s%s" % (kind, x))
        e("s_memrealtime s[%d:%d]" % (S_TW, S_TW + 1))
        e("s_mov_b32 s%d, s%d" % (S_BP, S_BO))
        lds_inc(L_TC, V_Z, V_T1)
        e.label("L_pa%s%s" % (kind, x))
        e("s_bitcmp1_b64 s[%d:%d], s%d" % (S_MG, S_MG + 1, S_I))
        e("s_cbranch_scc0 L_pb%s%s" % (kind, x))
        lds_inc(L_TC, V_Z, V_T1)
        e.label("L_pb%s%s" % (kind, x))
        e("s_bitcmp1_b64 s[%d:%d], s%d" % (S_MR, S_MR + 1, S_I))
        e("s_cbranch_scc0 L_pc%s%s" % (kind, x))
        e("v_mov_b32 v%d, s%d" % (V_T1, S_CPA))
        e("ds_read_b32 v%d, v%d" % (V_T0, V_T1))
        lds_inc(L_TC, V_Z, V_T1)
        e("s_add_u32 s%d, s%d, 4" % (S_CPA, S_CPA))
        e("s_waitcnt lgkmcnt(0)")
        e("v_readfirstlane_b32 s%d, v%d" % (S_T, V_T0))
        e("s_cmp_eq_u32 s%d, 0" % S_T)
        e("s_cbranch_scc1 L_pc%s%s" % (kind, x))
        e("s_sub_u32 s%d, s%d, s%d" % (S_T, S_TW, S_T))
        e("s_max_i32 s%d, s%d, -4096" % (S_T, S_T))
        e("s_min_i32 s%d, s%d, 4096" % (S_T, S_T))
        if kind == "V":
            e("s_cmp_eq_u32 s%d, %d" % (S_I, P["te"]))
            e("s_cbranch_scc0 L_pd%s" % x)
            e("s_mul_i32 s%d, s%d, %d" % (S_T, S_T, P["ka"]))
            e("s_add_u32 s%d, s%d, %d" % (S_T, S_T, P["kb"]))
            e("s_ashr_i32 s%d, s%d, 10" % (S_T, S_T))
            e("s_max_i32 s%d, s%d, %d" % (S_T, S_T, P["dmin"]))
            e("s_min_i32 s%d, s%d, %d" % (S_T, S_T, min(P["dmax"], NT - P["te"])))
            e("s_sub_u32 s%d, %d, s%d" % (S_TD, NT, S_T))
            e("s_cmp_eq_u32 s%d, %d" % (S_TD, NT))
            e("s_cselect_b32 s%d, 255, s%d" % (S_TD, S_TD))
            e("s_mov_b32 s%d, 0" % S_BO)
            if P["stamp"] == 5:
                e("s_mov_b32 s%d, s%d" % (S_LDC, S_TD))
            e("s_branch L_pc%s%s" % (kind, x))
            e.label("L_pd%s" % x)
        e("s_mul_i32 s%d, s%d, %d" % (S_T, S_T, P["ka2"]))
        e("s_add_u32 s%d, s%d, %d" % (S_T, S_T, P["kb2"]))
        e("s_ashr_i32 s%d, s%d, 10" % (S_T, S_T))
        e("s_sub_u32 s%d, s%d, s%d" % (S_T, S_T, S_BP))
        e("s_add_u32 s%d, s%d, s%d" % (S_T, S_T, S_BO))
        e("s_max_i32 s%d, s%d, 0" % (S_T, S_T))
        e("s_min_i32 s%d, s%d, %d" % (S_BO, S_T, P["bmax"]))
        e.label("L_pc%s%s" % (kind, x))
        e("s_bitcmp1_b64 s[%d:%d], s%d" % (S_MO, S_MO + 1, S_I))
        e("s_cbranch_scc0 L_evret%s%s" % (kind, x))

    for x in (("", "B") if BC else ("",)):
        e.label("L_evK" + x)
        if BC:
            pace_events("K", x)
        e("s_and_b32 s%d, s%d, 15" % (S_T, S_I))
        e("s_cbranch_scc0 L_evK2" + x)
        e("s_cmp_eq_u32 s%d, %d" % (S_I, N0))
        e("s_cbranch_scc1 L_evK2" + x)
        e("s_lshr_b32 s%d, s%d, 2" % (S_T + 1, S_I))
        e("s_andn2_b32 s%d, s%d, 3" % (S_T + 1, S_T + 1))
        e("s_add_u32 s%d, s%d, %d" % (S_T + 1, S_T + 1, L_CF - 4))
        e("s_cmp_eq_u32 s%d, 1" % S_T)
        e("s_cselect_b32 s%d, s%d, %d" % (S_T, S_T + 1, L_EV + 4))
        e("s_cselect_b32 s%d, %d, 0" % (S_T + 1, PHI - 768))
        e("v_add_u32 v%d, s%d, v%d" % (V_LB0, S_T + 1, V_LB0))
        e("s_cmp_eq_u32 s%d, %d" % (S_I, TRG1))
        e("s_cselect_b32 s%d, %d, s%d" % (S_T, L_EV, S_T))
        e("v_mov_b32 v%d, s%d" % (V_T0, S_T))
        lds_inc(0, V_T0, V_T1)
        e("s_branch L_evretK" + x)
        e.label("L_evK2" + x)
        if P["stamp"] == 2:
            e("s_cmp_eq_u32 s%d, %d" % (S_I, N0))
            e("s_cbranch_scc0 L_ns2")
            e("s_memrealtime s[%d:%d]" % (S_DBG, S_DBG + 1))
            e.label("L_ns2")
        get_table("K", "tk" + x)
        if P["stamp"] == 3:
            e("s_cmp_eq_u32 s%d, %d" % (S_I, N0))
            e("s_cbranch_scc0 L_evretK")
            e("s_memrealtime s[%d:%d]" % (S_DBG, S_DBG + 1))
        e("s_branch L_evretK" + x)
        e.label("L_evV" + x)
        if BC:
            pace_events("V", x)
        elif P["at"]:
            e("s_and_b32 s%d, s%d, 15" % (S_T, S_I))
            e("s_cbranch_scc0 L_evV2")
            e("s_cmp_eq_u32 s%d, %d" % (S_I, P["te"]))
            e("s_cbranch_scc1 L_evV3")
            lds_inc(L_TC, V_Z, V_T1)
            e("s_branch L_evretV")
            e.label("L_evV3")
            e("ds_read_b32 v%d, v%d offset:%d" % (V_T0, V_Z, L_TD))
            e("s_waitcnt lgkmcnt(0)")
            e("v_readfirstlane_b32 s%d, v%d" % (S_T, V_T0))
            e("s_cmp_eq_u32 s%d, 0" % S_T)
            e("s_cselect_b32 s%d, s%d, s%d" % (S_TD, S_TD, S_T))
            if P["stamp"] == 5:
                e("s_mov_b32 s%d, s%d" % (S_LDC, S_T))
            e("s_branch L_evretV")
            e.label("L_evV2")
        get_table("V", "tv2" + x)
        e("s_branch L_evretV" + x)

    PG = S_G; PM = S_M
    PNB = 5; PP = 6; PBK = 7
    PB = 8; PWS = 12; PDB = 16
    PO = 20; PFL = 21; PBASE = 22; PPR = 90
    PD = 24
    POF = 32
    PT = 40
    PMN = 44; PJ = 45; PRN = 46; PNR = 47
    PE = 48
    PRB = 56; PACC = 58; PGL = 59; PSP = 60; PPH = 61; PSG = 62; PG0 = 63
    PDC = 84
    PS2 = 92; PS3 = 96
    HL = 1; HZ = 2; HW = 3; HA = 4; HB_ = 5; HC = 6; HD = 7; HK = 8; HV = 9; HE = 10; HF = 11; HR = 12; HG = 13
    HN = 14; HT2 = 15
    HX = 16
    BIAS = 65536
    e.wr = {}; e.tr = {}
    e.label("L_helper")
    e("s_sub_u32 s%d, s%d, %d" % (PP, S_WAVE, NW))
    e("s_mov_b32 s%d, s%d" % (PNB, S_NB))
    e("v_mov_b32 v%d, v%d" % (HL, V_T1))
    e("v_mov_b32 v%d, 0" % HZ)
    e("s_mul_i32 s%d, s%d, %d" % (PGL, PG, 8 * FSTR))
    e("s_add_u32 s%d, s%d, %d" % (PGL, PGL, WS_G))
    if EB:
        e("s_cmp_lg_u32 s%d, 0" % PP)
        e("s_cbranch_scc1 L_hbar")
        e("v_lshlrev_b32 v%d, 2, v%d" % (HB_, HL))
        e("ds_write_b32 v%d, v%d" % (HB_, HZ))
        e("s_waitcnt lgkmcnt(0)")
        e.label("L_hbar")
        e("s_barrier")
    if BC:
        e("s_cmp_eq_u32 s%d, 3" % PP)
        e("s_cbranch_scc1 L_h3")
    e("s_mul_i32 s%d, s%d, 10" % (PE, PP))
    e("s_sub_u32 s%d, s%d, 7" % (PE, PE))
    e("s_cmp_lt_i32 s%d, s%d" % (PG, PE))
    e("s_cselect_b32 s%d, 1, 0" % PPR)
    e("s_cbranch_scc0 L_noprobe1")
    e("s_max_u32 s%d, s%d, 1" % (PBK, PG))
    e("s_sub_u32 s%d, s%d, 1" % (PBK, PBK))
    e("s_lshr_b32 s%d, s%d, 1" % (PBK, PBK))
    e("s_lshl_b32 s%d, s%d, 1" % (PE + 1, PG))
    e("s_add_u32 s%d, s%d, s%d" % (PE + 1, PE + 1, PP))
    e("s_sub_u32 s%d, s%d, 1" % (PE + 1, PE + 1))
    e("s_bitcmp1_b32 s%d, 0" % PG)
    e("s_cselect_b32 s%d, 1, 4" % PE)
    e("s_cmp_eq_u32 s%d, 0" % PBK)
    e("s_cselect_b32 s%d, s%d, s%d" % (PE + 1, PE + 1, PE))
    e("s_and_b32 s%d, s%d, 1" % (PE, PE + 1))
    e("s_mul_i32 s%d, s%d, 20" % (PO, PE + 1))
    e("s_add_u32 s%d, s%d, s%d" % (PO, PO, PE))
    e("s_add_u32 s%d, s%d, 2" % (PO, PO))
    e("s_lshl_b32 s%d, s%d, 21" % (PO, PO))
    e("s_xor_b32 s%d, s%d, s%d" % (PFL, PM, PP))
    e("s_and_b32 s%d, s%d, 1" % (PFL, PFL))
    e("s_lshr_b32 s%d, s%d, 2" % (PE + 1, PM))
    e("s_xor_b32 s%d, s%d, s%d" % (PE, PE, PE + 1))
    e("s_xor_b32 s%d, s%d, s%d" % (PE, PE, PFL))
    e("s_lshl_b32 s%d, s%d, 13" % (PE, PE))
    e("s_lshl_b32 s%d, s%d, 14" % (PE + 1, PP))
    e("s_and_b32 s%d, s%d, 0x4000" % (PE + 1, PE + 1))
    e("s_or_b32 s%d, s%d, s%d" % (PE, PE, PE + 1))
    for u in range(8):
        e("s_xor_b32 s%d, s%d, 0x%x" % (POF + u, PE, ((u & 1) << 13) | (((u >> 1) & 1) << 12) | ((u >> 2) << 14)))
    e("v_and_b32 v%d, 7, v%d" % (HW, HL))
    e("v_lshlrev_b32 v%d, 12, v%d" % (HW, HW))
    e("s_lshl_b32 s%d, s%d, 8" % (PE, PM))
    e("v_add_u32 v%d, s%d, v%d" % (HW, PE, HW))
    e("s_mov_b32 s%d, %d" % (PB + 2, H * HEADB))
    e("s_mov_b32 s%d, 0x00020000" % (PB + 3))
    e("s_cmp_ge_u32 s%d, 3" % PBK)
    e("s_cselect_b32 s%d, 3, 0" % PE)
    e("s_sub_u32 s%d, s%d, s%d" % (PE, PBK, PE))
    e("s_lshl_b32 s%d, s%d, 28" % (PE, PE))
    e("s_add_u32 s%d, s%d, s%d" % (PO, PO, PE))
    e("s_cmp_ge_u32 s%d, 3" % PBK)
    e("s_waitcnt lgkmcnt(0)")
    e("s_cselect_b32 s%d, s68, s66" % PB)
    e("s_cselect_b32 s%d, s69, s67" % (PBASE + 1))
    e("s_and_b32 s%d, s%d, 0xffff" % (PB + 1, PBASE + 1))
    e("s_mov_b64 exec, 0xff")
    e("buffer_load_dword v%d, v%d, s[%d:%d], s%d offen" % (HA, HW, PB, PB + 3, PO))
    e("s_mov_b64 exec, -1")
    e("s_add_u32 s%d, s%d, s%d" % (PBASE, PB, PO))
    e("s_addc_u32 s%d, s%d, 0" % (PBASE + 1, PBASE + 1))
    e("s_lshl_b32 s%d, s%d, 8" % (PE, PM))
    e("s_add_u32 s%d, s%d, 128" % (PE, PE))
    e("s_load_dword s%d, s[%d:%d], s%d" % (PJ, PBASE, PBASE + 1, PE))
    e.label("L_noprobe1")
    e("s_waitcnt lgkmcnt(0)")
    srd(PWS, 82, WS_SIZE)
    if P["wo"]:
        e("s_add_u32 s%d, s%d, %d" % (PWS, PWS, P["wo"] << 20))
        e("s_addc_u32 s%d, s%d, 0" % (PWS + 1, PWS + 1))
    srd(PDB, 80, 256)
    if not EB:
        e("s_cmp_lg_u32 s%d, 0" % PP)
        e("s_cbranch_scc1 L_hbar")
        e("v_lshlrev_b32 v%d, 2, v%d" % (HB_, HL))
        e("ds_write_b32 v%d, v%d" % (HB_, HZ))
        e("s_waitcnt lgkmcnt(0)")
        e.label("L_hbar")
        e("s_barrier")
    if P["hs"]:
        e("s_mov_b32 s%d, 0" % (PD + 4))
    e("s_cmp_eq_u32 s%d, 0" % PPR)
    e("s_cbranch_scc1 L_role")
    e("s_mov_b32 s%d, 1" % PRN)
    e("s_mov_b32 s%d, 0" % PACC)
    e("s_cmp_eq_u32 s%d, 0" % PBK)
    e("s_cselect_b32 s%d, %d, %d" % (PNR, P["nr0"], NR))
    e("s_waitcnt vmcnt(0)")
    e.label("L_round")
    e("s_add_u32 s%d, s%d, s%d" % (PE, PM, PRN))
    e("s_and_b32 s%d, s%d, 7" % (PE, PE))
    e("s_lshl_b32 s%d, s%d, 8" % (PE, PE))
    e("s_add_u32 s%d, s%d, s%d" % (PRB, PBASE, PE))
    e("s_addc_u32 s%d, s%d, 0" % (PRB + 1, PBASE + 1))
    e("s_mov_b32 s%d, -1" % PMN)
    e("s_memtime s[%d:%d]" % (PT, PT + 1))
    e("s_waitcnt lgkmcnt(0)")
    for u in range(8):
        a = PT + 2 * (u & 1); b = PT + 2 * ((u + 1) & 1)
        e("s_load_dword s%d, s[%d:%d], s%d" % (PJ, PRB, PRB + 1, POF + u))
        e("s_waitcnt lgkmcnt(0)")
        e("s_memtime s[%d:%d]" % (b, b + 1))
        e("s_waitcnt lgkmcnt(0)")
        e("s_sub_u32 s%d, s%d, s%d" % (PD + u, b, a))
        if u + 1 == P["ns0"] and u < 7:
            for k in range(u + 1, 8):
                e("s_mov_b32 s%d, -1" % (PD + k))
            e("s_cmp_eq_u32 s%d, 0" % PBK)
            e("s_cbranch_scc1 L_few")
    e.label("L_few")
    for u in range(8):
        e("s_min_u32 s%d, s%d, %d" % (PD + u, PD + u, P["clip"]))
        e("s_min_u32 s%d, s%d, s%d" % (PMN, PMN, PD + u))
    e("s_cmp_lt_u32 s%d, %d" % (PMN, P["l2t"]))
    e("s_cbranch_scc1 L_skip")
    for u in range(8):
        e("s_%s_u32 s%d, s%d, s%d" % ("add" if u & 1 else "sub", PACC, PACC, PD + u))
    e.label("L_skip")
    e("s_add_u32 s%d, s%d, 1" % (PRN, PRN))
    e("s_cmp_le_u32 s%d, s%d" % (PRN, PNR))
    e("s_cbranch_scc1 L_round")
    e("s_sub_u32 s%d, 0, s%d" % (PE, PACC))
    e("s_cmp_eq_u32 s%d, 0" % PFL)
    e("s_cselect_b32 s%d, s%d, s%d" % (PACC, PACC, PE))
    e("s_add_u32 s%d, s%d, 0x%x" % (PACC, PACC, BIAS + (1 << 24)))
    e("v_mov_b32 v%d, s%d" % (HA, PACC))
    e("s_mov_b64 exec, 1")
    e("s_lshl_b32 s%d, s%d, 2" % (PE, PBK))
    e("s_add_u32 s%d, s%d, 124" % (PE, PE))
    e("s_cmp_eq_u32 s%d, 0" % PBK)
    e("s_cbranch_scc0 L_post")
    e("ds_add_rtn_u32 v%d, v%d, v%d offset:%d" % (HB_, HZ, HA, L_PC))
    e("s_mov_b32 s%d, 0" % PE)
    e("s_waitcnt lgkmcnt(0)")
    e("v_add_u32 v%d, v%d, v%d" % (HA, HA, HB_))
    e("v_cmp_ne_u32 vcc, 0, v%d" % HB_)
    e("s_and_b64 exec, exec, vcc")
    if P["vw"]:
        e("buffer_atomic_add v%d, off, s[%d:%d], s%d" % (HA, PDB, PDB + 3, PE))
        e("s_branch L_posted")
        e.label("L_post")
        lds_wait("vw", HZ, HE, PE, L_DEC, "nz", PSP)
        e("s_mul_i32 s%d, s%d, %d" % (PE, PG, FSTR))
        e("s_add_u32 s%d, s%d, %d" % (PE, PE, WS_G + 253 * FSTR))
        e("buffer_atomic_add v%d, off, s[%d:%d], s%d" % (HA, PWS, PWS + 3, PE))
        e.label("L_posted")
    else:
        e.label("L_post")
        e("buffer_atomic_add v%d, off, s[%d:%d], s%d" % (HA, PDB, PDB + 3, PE))
    e("s_mov_b64 exec, -1")
    if P["hs"]:
        e("s_memrealtime s[%d:%d]" % (PD + 4, PD + 5))
    e.label("L_role")
    e("s_cmp_eq_u32 s%d, 0" % PP)
    e("s_cbranch_scc1 L_h0")
    e("s_cmp_eq_u32 s%d, 2" % PP)
    e("s_cbranch_scc1 L_h2")

    def wave_reduce(regs, op, tmp):
        for kk in (8, 4, 2, 1):
            for r in regs:
                e("%s_dpp v%d, v%d, v%d row_ror:%d row_mask:0xf bank_mask:0xf" % (op, r, r, r, kk))
        for sw in ("v_permlane32_swap_b32", "v_permlane16_swap_b32"):
            for r, t in zip(regs, tmp):
                e("v_mov_b32 v%d, v%d" % (t, r))
            for r, t in zip(regs, tmp):
                e("%s v%d, v%d" % (sw, r, t))
            for r, t in zip(regs, tmp):
                e("%s v%d, v%d, v%d" % (op, r, r, t))

    def decode(tag, nl, off, cnt, rounds, dst, b0):
        vw = b0 and P["vw"]
        lds_wait("e" + tag, HZ, HE, PE, L_EV + (4 if b0 else 0), "nz" if b0 else str(P["tw"]), PSP)
        if vw:
            e("v_mul_u32_u24 v%d, %d, v%d" % (HD, FSTR, HL))
            e("s_mov_b32 s%d, %d" % (PE, WS_G + 256 * FSTR))
            e("v_lshrrev_b32 v%d, 1, v%d" % (HB_, HB_))
        e("s_mov_b64 exec, 0x%x" % ((1 << (2 * nl if vw else nl)) - 1))
        e("s_mov_b32 s%d, 0x40000" % PSP)
        if P["hs"] and not b0:
            e("s_memrealtime s[%d:%d]" % (PD, PD + 1))
        if P["l2p"] and not b0:
            e("buffer_load_dword v%d, v%d, s[%d:%d], 0 offen offset:%d" % (HA, HB_, PDB, PDB + 3, off))
            e("s_branch L_pollw" + tag)
        if not P["xkp"] & 4:
            e.label("L_poll" + tag)
            if vw:
                e("buffer_load_dword v%d, v%d, s[%d:%d], s%d offen sc1" % (HA, HD, PWS, PWS + 3, PE))
            else:
                e("buffer_load_dword v%d, v%d, s[%d:%d], 0 offen offset:%d sc1" % (HA, HB_, PDB, PDB + 3, off))
            e("s_sub_u32 s%d, s%d, 1" % (PSP, PSP))
            e("s_cbranch_scc1 L_exit1")
            e.lines.append("L_pollw%s:" % tag)
            e("s_waitcnt vmcnt(0)")
            e("v_lshrrev_b32 v%d, 24, v%d" % (HC, HA))
            e("v_cmp_ne_u32 vcc, %d, v%d" % (cnt // 2 if vw else cnt, HC))
            e("s_cbranch_vccnz L_poll" + tag)
        if vw:
            e("v_add_u32_dpp v%d, v%d, v%d quad_perm:[1,0,3,2] row_mask:0xf bank_mask:0xf" % (HA, HA, HA))
            e("s_mov_b64 exec, 0x%x" % (0x5555 & ((1 << (2 * nl)) - 1)))
        th = P["th"] * cnt * rounds * (8 if b0 else P["ns0"]) // 8
        e("v_and_b32 v%d, 0xffffff, v%d" % (HA, HA))
        e("v_subrev_u32 v%d, %d, v%d" % (HA, cnt * BIAS, HA))
        if P["stamp"] == 6 and b0:
            e("s_cmp_lg_u32 s2, 100")
            e("s_cbranch_scc1 L_nodbg")
            e("buffer_store_dword v%d, v%d, s[%d:%d], 0 offen offset:4" % (HA, HB_, PDB, PDB + 3))
            e.label("L_nodbg")
        e("v_lshrrev_b32 v%d, 30, v%d" % (HC, HA))
        e("v_and_b32 v%d, 2, v%d" % (HC, HC))
        e("v_add_u32 v%d, %d, v%d" % (HA, th, HA))
        e("v_cmp_gt_u32 vcc, %d, v%d" % (2 * th, HA))
        e("v_cndmask_b32 v%d, v%d, 8, vcc" % (HC, HC))
        if P["force"] == 1:
            e("v_mov_b32 v%d, 8" % HC)
        if P["force"] >= 2:
            e("s_mov_b32 s%d, 0x7000000" % PE)
            e("s_load_dwordx4 s[%d:%d], s[82:83], s%d" % (PS2, PS2 + 3, PE))
            e("s_waitcnt lgkmcnt(0)")
            for l in range(nl):
                b = b0 + l
                e("s_lshr_b64 s[%d:%d], s[%d:%d], %d" % (PE, PE + 1, PS2 + 2 * (b // 3), PS2 + 2 * (b // 3) + 1, 16 * (b % 3)))
                e("s_and_b32 s%d, s%d, %d" % (PE, PE, P["ob"]))
                e("s_xor_b32 s%d, s%d, %d" % (PE, PE, P["ox"]))
                e("v_writelane_b32 v%d, s%d, %d" % (HC, PE, 2 * l if vw else l))
        e("v_or_b32 v%d, 16, v%d" % (HC, HC))
        if P["xv"] and vw:
            e("v_lshlrev_b32 v%d, 1, v%d" % (HA, HL))
            e("v_lshrrev_b32 v%d, v%d, %d" % (HA, HA, 0) if False else "v_mov_b32 v%d, 0x%x" % (HD, int(str(P["xv"])[::-1], 16)))
            e("v_lshrrev_b32 v%d, v%d, v%d" % (HA, HA, HD))
            e("v_and_b32 v%d, 7, v%d" % (HA, HA))
            e("v_xor_b32 v%d, v%d, v%d" % (HC, HC, HA))
        e("ds_write_b32 v%d, v%d offset:%d" % (HB_, HC, dst))
        if P["hs"] and not b0:
            e("s_memrealtime s[%d:%d]" % (PD + 2, PD + 3))
            srd(PS2, 82, 0x8000000)
            e("s_waitcnt lgkmcnt(0)")
            e("v_mov_b32 v%d, s%d" % (HX, PD))
            e("v_mov_b32 v%d, s%d" % (HX + 1, PD + 2))
            e("v_mov_b32 v%d, s%d" % (HX + 2, PSP))
            e("v_mov_b32 v%d, s%d" % (HX + 3, PD + 4))
            e("s_lshl_b32 s%d, s2, 4" % PE)
            e("s_add_u32 s%d, s%d, 0x4008000" % (PE, PE))
            e("buffer_store_dwordx4 v[%d:%d], off, s[%d:%d], s%d" % (HX, HX + 3, PS2, PS2 + 3, PE))
        e("s_mov_b64 exec, -1")

    e("s_cmp_lg_u32 s2, %d" % (NWG - 1))
    e("s_cbranch_scc1 L_nolead")
    e("v_mul_u32_u24 v%d, %d, v%d" % (HB_, FSTR, HL))
    e("v_mov_b32 v%d, 0" % (HZ + 1))
    for k in range(5 if P["vw"] else 4):
        e("s_mov_b32 s%d, %d" % (PE + k, WS_G + k * 64 * FSTR))
        if k == 4:
            e("s_mov_b64 exec, 0x%x" % (0x1fffff if P["fc"] else 0x3ff))
        e("buffer_store_dwordx2 v[%d:%d], v%d, s[%d:%d], s%d offen sc1" % (HZ, HZ + 1, HB_, PWS, PWS + 3, PE + k))
    e("v_mov_b32 v%d, 0x%x" % (HA, BIAS + (1 << 24)))
    e("s_mov_b64 exec, 1")
    e("s_waitcnt vmcnt(0)")
    e("buffer_atomic_add v%d, off, s[%d:%d], 0" % (HA, PDB, PDB + 3))
    e("s_mov_b64 exec, -1")
    e.label("L_nolead")
    e("v_lshlrev_b32 v%d, 2, v%d" % (HB_, HL))
    decode("a", 1, 0, 49, P["nr0"], L_DEC, 0)
    decode("b", 5, 128, 16, NR, L_DEC + 4, 1)
    if P["lx"]:
        e("s_mul_i32 s%d, s%d, 43" % (PE, PG))
        e("s_lshr_b32 s%d, s%d, 8" % (PE, PE))
        e("s_mul_i32 s%d, s%d, 6" % (PE + 1, PE))
        e("s_sub_u32 s%d, s%d, s%d" % (PBK, PG, PE + 1))
        e("s_cmp_ge_u32 s%d, 3" % PBK)
        e("s_cselect_b32 s%d, s68, s66" % PB)
        e("s_cselect_b32 s%d, s69, s67" % (PBASE + 1))
        e("s_cselect_b32 s%d, 3, 0" % (PE + 1))
        e("s_sub_u32 s%d, s%d, s%d" % (PE + 1, PBK, PE + 1))
        e("s_lshl_b32 s%d, s%d, 28" % (PO, PE + 1))
        e("s_mul_i32 s%d, s%d, %d" % (PE, PE, 21 << 21))
        e("s_add_u32 s%d, s%d, s%d" % (PO, PO, PE))
        e("s_add_u32 s%d, s%d, %d" % (PO, PO, (7 << 21) + (1 << 20)))
        e("s_and_b32 s%d, s%d, 0xffff" % (PB + 1, PBASE + 1))
        e("s_mov_b32 s%d, %d" % (PB + 2, H * HEADB))
        e("s_mov_b32 s%d, 0x00020000" % (PB + 3))
        e("s_add_u32 s%d, s%d, %d" % (PE, PM, P["lx"]))
        e("s_and_b32 s%d, s%d, 7" % (PE, PE))
        e("s_lshl_b32 s%d, s%d, 9" % (PE, PE))
        e("v_lshlrev_b32 v%d, 12, v%d" % (HW, HL))
        e("v_add_u32 v%d, s%d, v%d" % (HW, PE, HW))
        for j in range(3):
            e("buffer_load_dword v%d, v%d, s[%d:%d], s%d offen offset:%d" % (HX + j, HW, PB, PB + 3, PO, j * 128))
        e("s_add_u32 s%d, s%d, s%d" % (PBASE, PB, PO))
        e("s_addc_u32 s%d, s%d, 0" % (PBASE + 1, PBASE + 1))
        e("s_lshl_b32 s%d, s%d, 9" % (PE, PM))
        e("s_add_u32 s%d, s%d, s%d" % (PBASE, PBASE, PE))
        e("s_addc_u32 s%d, s%d, 0" % (PBASE + 1, PBASE + 1))
        e("s_load_dword s%d, s[%d:%d], 384" % (PJ, PBASE, PBASE + 1))
        e("s_load_dword s%d, s[%d:%d], 0x20180" % (PJ, PBASE, PBASE + 1))
        e("s_waitcnt vmcnt(0) lgkmcnt(0)")
        lds_wait("lx", HZ, HE, PE, L_EV + 4, "8", PSP)
        for j in range(3):
            e("s_mov_b32 m0, 0")
            e("s_mov_b32 s%d, %d" % (PE, j * 128))
            e.label("L_lx%d" % j)
            e("s_memtime s[%d:%d]" % (PT, PT + 1))
            e("s_waitcnt lgkmcnt(0)")
            e("s_load_dword s%d, s[%d:%d], s%d" % (PJ, PBASE, PBASE + 1, PE))
            e("s_waitcnt lgkmcnt(0)")
            e("s_memtime s[%d:%d]" % (PT + 2, PT + 3))
            e("s_waitcnt lgkmcnt(0)")
            e("s_sub_u32 s%d, s%d, s%d" % (PT, PT + 2, PT))
            e("v_writelane_b32 v%d, s%d, m0" % (HX + j, PT))
            e("s_add_u32 s%d, s%d, 4096" % (PE, PE))
            e("s_add_u32 m0, m0, 1")
            e("s_cmp_lt_u32 m0, 64")
            e("s_cbranch_scc1 L_lx%d" % j)
        e("s_memrealtime s[%d:%d]" % (PT, PT + 1))
        e("s_waitcnt lgkmcnt(0)")
        e("v_mov_b32 v%d, s%d" % (HX + 3, PT))
        srd(PB, 82, 0x8000000)
        e("s_lshl_b32 s%d, s2, 10" % PE)
        e("s_add_u32 s%d, s%d, 0x4090000" % (PE, PE))
        e("v_lshlrev_b32 v%d, 4, v%d" % (HW, HL))
        e("buffer_store_dwordx4 v[%d:%d], v%d, s[%d:%d], s%d offen" % (HX, HX + 3, HW, PB, PB + 3, PE))
    if FU:
        CSC = 24; CMK = 56; CRB = 57; CO = 92
        e("s_and_b32 s%d, s%d, 7" % (PE, PG))
        e("s_cmp_lg_u32 s%d, s%d" % (PE, PM))
        e("s_cbranch_scc1 L_exit1")
        e("s_mul_i32 s%d, s%d, 3" % (PE, PG))
        e("s_add_u32 s%d, s%d, 2" % (PE, PE))
        e("s_lshr_b32 s%d, s%d, 5" % (PE, PE))
        e("s_lshl_b32 s%d, s%d, 2" % (PE, PE))
        e("v_mov_b32 v%d, s%d" % (HW, PE))
        e("s_mul_i32 s%d, s%d, 24" % (CRB, PG))
        e("v_add_u32 v%d, s%d, v%d" % (HG, CRB, HL))
        e("v_and_b32 v%d, 255, v%d" % (HR, HG))
        e("v_mul_u32_u24 v%d, %d, v%d" % (HR, FSTR, HR))
        e("v_lshlrev_b32 v%d, 6, v%d" % (HG, HG))
        e("s_mov_b32 s%d, %d" % (PE + 1, WS_G))
        e("s_mov_b32 s%d, %d" % (PE + 2, WS_ML))
        e("v_mov_b32 v%d, 0x%08x" % (HA, BIGNEG))
        e("v_mov_b32 v%d, 0" % HB_)
        lds_wait("cg", HZ, HE, PE, L_GO, "nz", PSP, HW)
        for tag, ld, chk in (("f", "buffer_load_dword v%d, v%d, s[%d:%d], s%d offen sc1" % (HD, HR, PWS, PWS + 3, PE + 1), HD),
                             ("m", "buffer_load_dwordx4 v[%d:%d], v%d, s[%d:%d], s%d offen sc1" % (HA, HD, HG, PWS, PWS + 3, PE + 2), HD)):
            e("s_mov_b64 exec, 0xffffff")
            e("s_mov_b32 s%d, 0x40000" % PSP)
            e.label("L_cp" + tag)
            e(ld)
            e("s_sub_u32 s%d, s%d, 1" % (PSP, PSP))
            e("s_cbranch_scc1 L_exit1")
            e("s_waitcnt vmcnt(0)")
            e("v_cmpx_eq_u32 vcc, 0, v%d" % chk)
            e("s_cbranch_execnz L_cp" + tag)
        e("s_mov_b64 exec, -1")
        e("v_mov_b32 v%d, v%d" % (HC, HA))
        wave_reduce([HC], "v_max_f32", [HD])
        e("v_sub_f32 v%d, v%d, v%d" % (HA, HA, HC))
        e("v_exp_f32 v%d, v%d" % (HA, HA))
        e("v_mul_f32 v%d, v%d, v%d" % (HB_, HB_, HA))
        wave_reduce([HB_], "v_add_f32", [HD])
        e("v_rcp_f32 v%d, v%d" % (HB_, HB_))
        e("v_mul_f32 v%d, v%d, v%d" % (HA, HA, HB_))
        if P["fc"]:
            e("s_cmp_lt_u32 s%d, 21" % PG)
            e("s_cbranch_scc1 L_cown")
            e("s_mul_i32 s%d, s%d, %d" % (PE, PG, FSTR))
            e("s_add_u32 s%d, s%d, %d" % (PE, PE, WS_G + 245 * FSTR))
            e("v_lshlrev_b32 v%d, 2, v%d" % (HR, HL))
            e("v_mov_b32 v%d, 1" % HB_)
            e("s_mov_b64 exec, 0xffffff")
            e("buffer_store_dword v%d, v%d, s[%d:%d], s%d offen offset:128 sc1" % (HA, HR, PWS, PWS + 3, PE))
            e("s_mov_b64 exec, 1")
            e("s_waitcnt vmcnt(0)")
            e("buffer_store_dword v%d, off, s[%d:%d], s%d offset:4 sc1" % (HB_, PWS, PWS + 3, PE))
            e("s_endpgm")
            e.label("L_cown")
        for r in range(24):
            e("v_readlane_b32 s%d, v%d, %d" % (CSC + r, HA, r))
        srd(CO, 78, H * DH * 2)
        e("s_lshl_b32 s%d, s%d, 10" % (CRB, CRB))
        e("v_lshlrev_b32 v%d, 4, v%d" % (HG, HL))
        e("v_add_u32 v%d, s%d, v%d" % (HG, CRB, HG))
        for k in range(1, 6):
            e("s_mov_b32 s%d, %d" % (PE + k, 4096 * k))
        for r in (HA, HB_, HC):
            e("v_mov_b32 v%d, 0" % r)
        e("s_mov_b32 s%d, 0xffffff" % CMK)
        e("v_lshlrev_b32 v%d, 1, v%d" % (HR, HL))
        e("s_mul_i32 s%d, s%d, %d" % (CRB, PG, DH * 2))
        lds_wait("cc", HZ, HE, PE, L_CA, "%d" % P["cw"], PSP, HW)
        e("s_mov_b32 s%d, 0x40000" % PSP)
        e.label("L_cr")
        for r in range(24):
            e("s_bitcmp0_b32 s%d, %d" % (CMK, r))
            e("s_cbranch_scc1 L_cl%d" % r)
            e("buffer_load_dwordx4 v[%d:%d], v%d, s[%d:%d], %s offen offset:%d sc1" %
              (HX + 4 * r, HX + 4 * r + 3, HG, PWS, PWS + 3, "s%d" % (PE + r // 4) if r >= 4 else "0", (r % 4) * 1024))
            e.lines.append("L_cl%d:" % r)
        e("s_sub_u32 s%d, s%d, 1" % (PSP, PSP))
        e("s_cbranch_scc1 L_exit1")
        e("s_waitcnt vmcnt(0)")
        for r in range(24):
            e("s_bitcmp0_b32 s%d, %d" % (CMK, r))
            e("s_cbranch_scc1 L_cv%d" % r)
            e("v_cmp_eq_u32 vcc, 0, v%d" % (HX + 4 * r + 3))
            e("s_cbranch_vccnz L_cv%d" % r)
            for k, a_ in enumerate((HA, HB_, HC)):
                e("v_fmac_f32 v%d, s%d, v%d" % (a_, CSC + r, HX + 4 * r + k))
            e("s_bitset0_b32 s%d, %d" % (CMK, r))
            e.lines.append("L_cv%d:" % r)
        e("s_cmp_lg_u32 s%d, 0" % CMK)
        e("s_cbranch_scc1 L_cr")
        for k, a_ in enumerate((HA, HB_, HC)):
            e("v_cvt_pk_bf16_f32 v%d, v%d, v%d" % (a_, a_, a_))
            e("buffer_store_short v%d, v%d, s[%d:%d], s%d offen offset:%d" % (a_, HR, CO, CO + 3, CRB, k * 128))
        if P["stamp"] == 5:
            e("s_memrealtime s[%d:%d]" % (PT, PT + 1))
            e("s_waitcnt vmcnt(0)")
            e("s_memrealtime s[%d:%d]" % (PT + 2, PT + 3))
            srd(PS2, 82, 0x8000000)
            e("s_waitcnt lgkmcnt(0)")
            e("v_mov_b32 v%d, s%d" % (HX, PT))
            e("v_mov_b32 v%d, s%d" % (HX + 1, PT + 2))
            e("v_mov_b32 v%d, s%d" % (HX + 2, PSP))
            e("s_lshl_b32 s%d, s%d, 4" % (PE, PG))
            e("s_add_u32 s%d, s%d, 0x4009000" % (PE, PE))
            e("s_mov_b64 exec, 1")
            e("buffer_store_dwordx4 v[%d:%d], off, s[%d:%d], s%d" % (HX, HX + 3, PS2, PS2 + 3, PE))
    e("s_endpgm")

    def seg_scalars():
        e("s_lshl_b32 s%d, s%d, 5" % (PSG, PPH))
        e("s_add_u32 s%d, s%d, s%d" % (PSG, PSG, PG))
        e("s_lshl_b32 s%d, s%d, 15" % (PG0, PSG))
        e("s_add_u32 s%d, s%d, 1" % (PG0, PG0))
        e("s_mul_hi_u32 s%d, s%d, 0xaaaaaaab" % (PG0, PG0))
        e("s_lshr_b32 s%d, s%d, 7" % (PG0, PG0))

    def get_dec(tag):
        lds_wait(tag, HZ, HE, PE, L_DEC + 20, "nz", PSP)
        e("ds_read_b128 v[%d:%d], v%d offset:%d" % (HX, HX + 3, HZ, L_DEC))
        e("ds_read_b64 v[%d:%d], v%d offset:%d" % (HX + 4, HX + 5, HZ, L_DEC + 16))
        e("s_waitcnt lgkmcnt(0)")
        for i in range(6):
            e("v_readfirstlane_b32 s%d, v%d" % (PDC + i, HX + i))

    e.label("L_h0")
    srd(PB, 64, H * DH * 2)
    srd(PS2, 70, H * NGRP * DH * 2)
    srd(PS3, 72, H * NGRP * DH * 2)
    e("v_lshrrev_b32 v%d, 4, v%d" % (HA, HL))
    e("v_and_b32 v%d, 15, v%d" % (HB_, HL))
    e("v_lshlrev_b32 v%d, 3, v%d" % (HC, HB_))
    e("v_mul_u32_u24 v%d, %d, v%d" % (HD, DH * 2, HA))
    e("v_add_u32 v%d, v%d, v%d" % (HD, HD, HC))
    e("v_lshl_add_u32 v%d, v%d, 2, v%d" % (HG, HB_, HA))
    e("v_lshlrev_b32 v%d, 2, v%d" % (HG, HG))
    BQ = HX; BS = HX + 12; BZ = BS + 36; BR = BZ + 36
    PFA = 32; PIA = 33
    e("v_lshlrev_b32 v%d, 4, v%d" % (HA, HL))
    e("s_mul_i32 s%d, s%d, %d" % (PFA, PNB, FSTR))
    e("s_add_u32 s%d, s%d, s%d" % (PFA, PFA, PGL))
    e("s_lshl_b32 s%d, s%d, 3" % (PIA, PG))
    e("s_add_u32 s%d, s%d, s%d" % (PIA, PIA, PNB))
    IMS = PHI if P["il"] else IMG
    PHS = NWG * PHI if P["il"] else PHI
    e("s_mul_i32 s%d, s%d, %d" % (PIA, PIA, IMS))
    e("s_add_u32 s%d, s%d, %d" % (PIA, PIA, WS_L))

    def bias(ph):
        e("s_mov_b32 s%d, %d" % (PPH, ph))
        seg_scalars()
        e("s_mul_i32 s%d, s%d, 171" % (PE, PSG))
        e("s_lshr_b32 s%d, s%d, 9" % (PE, PE))
        e("s_mul_i32 s%d, s%d, %d" % (PE, PE, DH * 2))
        e("s_mul_i32 s%d, s%d, 24" % (PE + 1, PM))
        e("s_add_u32 s%d, s%d, s%d" % (PE + 2, PE + 1, PG0))
        e("s_mul_i32 s%d, s%d, %d" % (PE + 2, PE + 2, DH * 2))
        e("v_add_u32 v%d, s%d, v%d" % (HE, PE + 2, HD))
        e("v_add_u32 v%d, %d, v%d" % (HF, 8 * DH * 2, HE))
        e("v_add_u32 v%d, %d, v%d" % (HR, 16 * DH * 2, HE))
        for c in range(3):
            e("buffer_load_dwordx2 v[%d:%d], v%d, s[%d:%d], s%d offen offset:%d" % (BR + 2 * c, BR + 2 * c + 1, HC, PB, PB + 3, PE, c * 128))
        for st in range(6):
            va = (HE, HF, HR)[st // 2]
            for sr, bb in ((PS2, BS), (PS3, BZ)):
                for c in range(3):
                    r = bb + st * 6 + 2 * c
                    if P["xb"] & 1:
                        continue
                    e("buffer_load_dwordx2 v[%d:%d], v%d, s[%d:%d], 0 offen offset:%d%s" %
                      (r, r + 1, va, sr, sr + 3, (st & 1) * 4 * DH * 2 + c * 128,
                       " nt" if P["bnt"] & (1 if bb == BZ else 2) else ""))
        e("s_waitcnt vmcnt(0)")
        for p in range(6):
            e("v_lshlrev_b32 v%d, 16, v%d" % (BQ + 2 * p, BR + p))
            e("v_and_b32 v%d, 0xffff0000, v%d" % (BQ + 2 * p + 1, BR + p))
        for st in range(6):
            acc = BR + st
            for p in range(6):
                rs = BS + st * 6 + p; rz = BZ + st * 6 + p
                e("v_lshlrev_b32 v%d, 16, v%d" % (HE, rs))
                e("v_lshlrev_b32 v%d, 16, v%d" % (HF, rz))
                e("v_and_b32 v%d, 0xffff0000, v%d" % (rs, rs))
                e("v_and_b32 v%d, 0xffff0000, v%d" % (rz, rz))
                e("v_mul_f32 v%d, v%d, v%d" % (HE, HE, BQ + 2 * p))
                e("v_mul_f32 v%d, v%d, v%d" % (rs, rs, BQ + 2 * p + 1))
                if p == 0:
                    e("v_mul_f32 v%d, v%d, v%d" % (acc, HE, HF))
                else:
                    e("v_fmac_f32 v%d, v%d, v%d" % (acc, HE, HF))
                e("v_fmac_f32 v%d, v%d, v%d" % (acc, rs, rz))
        for kk in (8, 4, 2, 1):
            for st in range(6):
                e("v_add_f32_dpp v%d, v%d, v%d row_ror:%d row_mask:0xf bank_mask:0xf" % (BR + st, BR + st, BR + st, kk))
        for st in range(1, 6):
            e("v_cmp_eq_u32 vcc, %d, v%d" % (st, HB_))
            e("v_cndmask_b32 v%d, v%d, v%d, vcc" % (BR, BR, BR + st))
        e("s_mul_i32 s%d, s%d, 768" % (PE, PSG))
        e("s_lshl_b32 s%d, s%d, 2" % (PE + 1, PE + 1))
        e("s_add_u32 s%d, s%d, s%d" % (PE, PE, PE + 1))
        e("s_add_u32 s%d, s%d, %d" % (PE, PE, WS_B))
        e("s_mov_b32 exec_lo, 0x003f003f")
        e("s_mov_b32 exec_hi, 0x003f003f")
        e("buffer_store_dword v%d, v%d, s[%d:%d], s%d offen sc1" % (BR, HG, PWS, PWS + 3, PE))
        e("s_mov_b64 exec, -1")

    def flush(p):
        if P["xp"]:
            e("s_cmp_eq_u32 s%d, s%d" % (PDC + p, PDC + 3 + p))
            if p:
                e("s_cbranch_scc1 L_fp%d" % p)
            e("s_add_u32 s%d, s%d, %d" % (PE + 6, PIA, p * PHS))
            e("s_add_u32 s%d, s%d, %d" % (PE + 7, PIA, p * PHS + 4096))
            e("s_cmp_eq_u32 s%d, s%d" % (PDC + p, PDC + 3 + p))
            for k in range(6):
                if p == 0:
                    mk = sum(1 << l for l in range(64) if (64 * k + l) % 48 < (3 * N0 + 7) // 8 * 8)
                    e("s_cselect_b32 exec_lo, 0x%x, -1" % (mk & 0xffffffff))
                    e("s_cselect_b32 exec_hi, 0x%x, -1" % (mk >> 32))
                e("buffer_load_dwordx4 v[%d:%d], v%d, s[%d:%d], s%d offen offset:%d %s" %
                  (HX + 4 * k, HX + 4 * k + 3, HA, PWS, PWS + 3, PE + 6 + k // 4, (k % 4) * 1024, ("", "sc1", "", "nt")[P["xp"]]))
            e("s_mov_b64 exec, -1")
            e("s_waitcnt vmcnt(0)")
            e.label("L_fp%d" % p)
        lds_wait("f%d" % p, HZ, HE, PE, L_CF + 4 * p, "4", PSP)
        e("s_cmp_eq_u32 s%d, s%d" % (PDC + p, PDC + 3 + p))
        if p:
            e("s_cbranch_scc1 L_fl%d" % p)
        for k in range(6):
            e("ds_read_b128 v[%d:%d], v%d offset:%d" % (HX + 4 * k, HX + 4 * k + 3, HA, L_LG + p * PHI + k * 1024))
        e("s_add_u32 s%d, s%d, %d" % (PE + 6, PIA, p * PHS))
        e("s_add_u32 s%d, s%d, %d" % (PE + 7, PIA, p * PHS + 4096))
        e("s_cmp_eq_u32 s%d, s%d" % (PDC + p, PDC + 3 + p))
        e("s_waitcnt lgkmcnt(0)")
        for k in range(6):
            if p == 0:
                mk = sum(1 << l for l in range(64) if (64 * k + l) % 48 < (3 * N0 + 7) // 8 * 8)
                e("s_cselect_b32 exec_lo, 0x%x, -1" % (mk & 0xffffffff))
                e("s_cselect_b32 exec_hi, 0x%x, -1" % (mk >> 32))
            if not P["xkp"] & 16:
                e("buffer_store_dwordx4 v[%d:%d], v%d, s[%d:%d], s%d offen offset:%d %s" %
                  (HX + 4 * k, HX + 4 * k + 3, HA, PWS, PWS + 3, PE + 6 + k // 4, (k % 4) * 1024, P["st"]))
        if p == 0:
            e("s_mov_b64 exec, -1")
        e.label("L_fl%d" % p)
        e("v_mov_b32 v%d, %d" % (HE, p + 1))
        e("s_waitcnt vmcnt(0)")
        e("s_mov_b64 exec, 1")
        opt = p == 2 or (p == 1 and not P["jit"])
        if opt:
            e("s_cbranch_scc1 L_fn%d" % p)
        e("buffer_store_dword v%d, off, s[%d:%d], s%d sc1" % (HE, PWS, PWS + 3, PFA))
        if opt:
            e.label("L_fn%d" % p)
        e("ds_write_b32 v%d, v%d offset:%d" % (HZ, HE, L_FD))
        e("s_mov_b64 exec, -1")

    if FU:
        for i in range(4):
            e("v_mov_b32 v%d, 0" % (HX + i))
        for p in range(3):
            e("s_add_u32 s%d, s2, %d" % (PE, 256 * p))
            e("s_lshl_b32 s%d, s%d, 10" % (PE + 1, PE))
            e("s_lshl_b32 s%d, s%d, 6" % (PE, PE))
            e("s_add_u32 s%d, s%d, %d" % (PE, PE, WS_ML))
            if not (P["xkp"] & 512 and p < 2):
                e("buffer_store_dwordx4 v[%d:%d], v%d, s[%d:%d], s%d offen sc1" % (HX, HX + 3, HA, PWS, PWS + 3, PE + 1))
            e("s_mov_b64 exec, 15")
            e("buffer_store_dwordx4 v[%d:%d], v%d, s[%d:%d], s%d offen sc1" % (HX, HX + 3, HA, PWS, PWS + 3, PE))
            e("s_mov_b64 exec, -1")
    bias(0)
    if P["jit"]:
        lds_wait("b1", HZ, HE, PE, L_EV + 4, "1", PSP)
    bias(1)
    if not P["jit"]:
        bias(2)
    get_dec("d0")
    flush(0)
    if P["jit"]:
        lds_wait("b2", HZ, HE, PE, L_EV + 4, "9", PSP)
        bias(2)
    flush(1)
    flush(2)
    if P["at"] and not BC:
        e("v_lshrrev_b32 v%d, 3, v%d" % (HC, HL))
        e("v_xor_b32 v%d, s%d, v%d" % (HC, PM, HC))
        e("v_lshrrev_b32 v%d, 1, v%d" % (HD, HC))
        e("v_and_b32 v%d, 1, v%d" % (HC, HC))
        e("v_lshl_or_b32 v%d, v%d, 2, v%d" % (HD, HC, HD))
        e("v_lshl_or_b32 v%d, v%d, 3, v%d" % (HD, HL, HD))
        e("v_mul_u32_u24 v%d, %d, v%d" % (HD, FSTR, HD))
        lds_wait("t1", HZ, HE, PE, L_TC, "4", PSP)
        e("s_memrealtime s[%d:%d]" % (PT, PT + 1))
        e("s_mov_b64 exec, 1")
        e("s_waitcnt lgkmcnt(0)")
        e("s_or_b32 s%d, s%d, 1" % (PT, PT))
        e("v_mov_b32 v%d, s%d" % (HB_, PT))
        e("buffer_store_dword v%d, off, s[%d:%d], s%d offset:4 sc1" % (HB_, PWS, PWS + 3, PFA))
        e("s_mov_b32 exec_lo, -1")
        e("s_mov_b32 s%d, %d" % (PE + 1, WS_G))
        lds_wait("t2", HZ, HE, PE, L_TC, "5", PSP)
        e("buffer_load_dword v%d, v%d, s[%d:%d], s%d offen offset:4 sc1" % (HB_, HD, PWS, PWS + 3, PE + 1))
        e("v_bfrev_b32 v%d, -2" % HC)
        e("s_mov_b32 s%d, -2048" % PE)
        e("s_waitcnt vmcnt(0)")
        e("v_cmp_eq_u32 vcc, 0, v%d" % HB_)
        e("v_subrev_u32 v%d, s%d, v%d" % (HB_, PT, HB_))
        e("v_cndmask_b32 v%d, v%d, v%d, vcc" % (HB_, HB_, HC))
        for st in (2048, 1024, 512, 256, 128, 64, 32, 16):
            e("s_add_u32 s%d, s%d, %d" % (PE + 1, PE, st))
            e("v_cmp_gt_i32 vcc, s%d, v%d" % (PE + 1, HB_))
            e("s_bcnt1_i32_b64 s%d, vcc" % (PE + 2))
            e("s_cmp_lt_u32 s%d, %d" % (PE + 2, P["aq"]))
            e("s_cselect_b32 s%d, s%d, s%d" % (PE, PE + 1, PE))
        e("s_mul_i32 s%d, s%d, %d" % (PE, PE, -P["ka"]))
        e("s_add_u32 s%d, s%d, %d" % (PE, PE, P["kb"]))
        e("s_ashr_i32 s%d, s%d, 10" % (PE, PE))
        e("s_max_i32 s%d, s%d, %d" % (PE, PE, P["dmin"]))
        e("s_min_i32 s%d, s%d, %d" % (PE, PE, min(P["dmax"], NT - P["te"])))
        e("s_sub_u32 s%d, %d, s%d" % (PE, NT, PE))
        e("s_cmp_eq_u32 s%d, %d" % (PE, NT))
        e("s_cselect_b32 s%d, 255, s%d" % (PE, PE))
        e("v_mov_b32 v%d, s%d" % (HB_, PE))
        e("ds_write_b32 v%d, v%d offset:%d" % (HZ, HB_, L_TD))
    e("s_endpgm")

    def last_gather():
        EL = P["fc"] == 4
        CSC = 24; CO = 96; CR0 = 56; CSO = 57; CHL = 58; CRB = 59; CN = 20
        COF = list(range(64, 76)) + list(range(84, 96))
        RB = HX + 16
        if EL:
            e("s_mov_b64 exec, -1")
            e("v_lshlrev_b32 v%d, 2, v%d" % (HR, HL))
            e("v_add_u32 v%d, %d, v%d" % (HG, L_ACC + 2 * NW * ROWB, HR))
            e("v_lshlrev_b32 v%d, 4, v%d" % (HK, HL))
        e("s_add_u32 s%d, s%d, 64" % (PE, PG))
        e("s_mul_i32 s%d, s%d, 171" % (PE, PE))
        e("s_lshr_b32 s%d, s%d, 9" % (PE, PE))
        e("s_mul_i32 s%d, s%d, %d" % (CHL, PE, FSTR))
        e("s_add_u32 s%d, s%d, %d" % (CHL, CHL, WS_G + 245 * FSTR))
        e("s_mul_i32 s%d, s%d, %d" % (CRB, PE, DH * 2))
        e("s_cmp_eq_u32 s%d, 21" % PE)
        e("s_cselect_b32 s%d, 15, 23" % CN)
        e("s_mul_i32 s%d, s%d, 24" % (PE, PE))
        e("s_add_u32 s%d, s2, 512" % PSG)
        e("s_sub_u32 s%d, s%d, s%d" % (CR0, PSG, PE))
        e("s_lshl_b32 s%d, s%d, 10" % (PSG, PSG))
        e("s_mov_b32 s%d, 0x40000" % PSP)
        e.label("L_fs")
        e("buffer_load_dword v%d, off, s[%d:%d], s%d offset:4 sc1" % (HA, PWS, PWS + 3, CHL))
        e("s_sub_u32 s%d, s%d, 1" % (PSP, PSP))
        e("s_cbranch_scc1 L_exit1")
        e("s_waitcnt vmcnt(0)")
        e("v_cmp_eq_u32 vcc, 0, v%d" % HA)
        e("s_cbranch_vccnz L_fs")
        e("buffer_load_dword v%d, v%d, s[%d:%d], s%d offen offset:128 sc1" % (HE, HR, PWS, PWS + 3, CHL))
        e("ds_read_b128 v[%d:%d], v%d offset:%d" % (HA, HD, HZ, L_ML + 32))
        e("v_xor_b32 v%d, 1, v%d" % (HF, HL))
        e("v_cmp_eq_u32 vcc, s%d, v%d" % (CR0, HL))
        e("v_cndmask_b32 v%d, v%d, v%d, vcc" % (HF, HL, HF))
        e("v_add_u32 v%d, s%d, v%d" % (HF, PE, HF))
        e("v_lshlrev_b32 v%d, 10, v%d" % (HF, HF))
        for r in range(24):
            e("v_readlane_b32 s%d, v%d, %d" % (COF[r], HF, r))
        srd(CO, 78, H * DH * 2)
        e("v_lshlrev_b32 v%d, 1, v%d" % (HR, HL))
        e("s_waitcnt vmcnt(0)")
        e("v_readlane_b32 s%d, v%d, s%d" % (CSO, HE, CR0))
        e("v_cndmask_b32 v%d, v%d, v%d, vcc" % (HE, HE, HZ))
        for r in range(24):
            e("v_readlane_b32 s%d, v%d, %d" % (CSC + r, HE, r))
        e("v_mov_b32 v%d, 1" % HV)
        if EL:
            e("s_mov_b64 exec, 1")
            lds_wait("el", HZ, HE, PE, L_EL, "4", PSP)
            e("buffer_atomic_add v%d, off, s[%d:%d], s%d sc0" % (HV, PWS, PWS + 3, CHL))
            e("s_mov_b64 exec, -1")
            e("s_waitcnt vmcnt(0)")
            e("v_readfirstlane_b32 s%d, v%d" % (PE, HV))
            e("s_cmp_lg_u32 s%d, s%d" % (PE, CN))
            e("s_cbranch_scc1 L_exit1")
            for r in range(24):
                e("buffer_load_dwordx4 v[%d:%d], v%d, s[%d:%d], s%d offen sc1" % (RB + 4 * r, RB + 4 * r + 3, HK, PWS, PWS + 3, COF[r]))
        lds_wait("n", HZ, HE, PE, L_CA + 8, "4", PSP)
        for kk in range(3):
            for w in range(NW):
                e("ds_read_b32 v%d, v%d offset:%d" % (HX + kk * NW + w, HG, w * ROWB + kk * 256))
        if not EL:
            e("s_mov_b64 exec, 1")
            e("buffer_atomic_add v%d, off, s[%d:%d], s%d sc0" % (HV, PWS, PWS + 3, CHL))
            e("s_mov_b64 exec, -1")
        e("s_mov_b32 s%d, 0x40000" % PSP)
        for kk in range(3):
            b = HX + kk * NW
            e("s_waitcnt lgkmcnt(%d)" % (8 - 4 * kk))
            e("v_add_f32 v%d, v%d, v%d" % (b, b, b + 1))
            e("v_add_f32 v%d, v%d, v%d" % (b + 2, b + 2, b + 3))
            e("v_sub_f32 v%d, v%d, v%d" % (b, b, HC))
            e("v_add_f32 v%d, v%d, v%d" % (HX + 12 + kk, b, b + 2))
        if EL:
            e("s_branch L_fr2")
        else:
            e("buffer_store_dwordx4 v[%d:%d], v%d, s[%d:%d], s%d offen sc1" % (HX + 12, HX + 15, HK, PWS, PWS + 3, PSG))
        if P["stamp"] == 5 and not EL:
            e("s_memrealtime s[%d:%d]" % (PE + 4, PE + 5))
        if 2 <= P["fc"] < 4:
            e("s_waitcnt vmcnt(%d)" % (P["fc"] - 2))
            e("v_readfirstlane_b32 s%d, v%d" % (PE, HV))
            e("s_cmp_lg_u32 s%d, s%d" % (PE, CN))
            e("s_cbranch_scc1 L_fx")
        e.label("L_fr")
        for r in range(24):
            e("buffer_load_dwordx4 v[%d:%d], v%d, s[%d:%d], s%d offen sc1" % (RB + 4 * r, RB + 4 * r + 3, HK, PWS, PWS + 3, COF[r]))
        e.lines.append("L_fr2:")
        for k, a_ in enumerate((HA, HB_, HC)):
            e("v_mul_f32 v%d, s%d, v%d" % (a_, CSO, HX + 12 + k))
        e("v_mov_b32 v%d, 1" % HD)
        e("s_sub_u32 s%d, s%d, 1" % (PSP, PSP))
        e("s_cbranch_scc1 L_exit1")
        for r in range(24):
            if r % 2 == 0:
                e("s_waitcnt vmcnt(%d)" % (22 - r))
            for k, a_ in enumerate((HA, HB_, HC)):
                e("v_fmac_f32 v%d, s%d, v%d" % (a_, CSC + r, RB + 4 * r + k))
            if r % 2:
                e("v_min3_u32 v%d, v%d, v%d, v%d" % (HD, HD, RB + 4 * r - 1, RB + 4 * r + 3))
        if P["fc"] == 1:
            e("v_readfirstlane_b32 s%d, v%d" % (PE, HV))
        e("v_cmp_eq_u32 vcc, 0, v%d" % HD)
        for a_ in (HA, HB_, HC):
            e("v_cvt_pk_bf16_f32 v%d, v%d, v%d" % (a_, a_, a_))
        if P["fc"] == 1:
            e("s_cmp_lg_u32 s%d, s%d" % (PE, CN))
            e("s_cbranch_scc1 L_fx")
        e("s_cbranch_vccnz L_fr")
        for k, a_ in enumerate((HA, HB_, HC)):
            e("buffer_store_short v%d, v%d, s[%d:%d], s%d offen offset:%d" % (a_, HR, CO, CO + 3, CRB, k * 128))
        if P["stamp"] == 5:
            e("s_memrealtime s[%d:%d]" % (PT, PT + 1))
            e("s_waitcnt vmcnt(0)")
            e("s_memrealtime s[%d:%d]" % (PT + 2, PT + 3))
            srd(PS2, 82, 0x8000000)
            e("s_waitcnt lgkmcnt(0)")
            e("v_mov_b32 v%d, s%d" % (HX, PT))
            e("v_mov_b32 v%d, s%d" % (HX + 1, PT + 2))
            e("v_mov_b32 v%d, s%d" % (HX + 2, PSP))
            e("s_mul_i32 s%d, s%d, 171" % (PE, CRB))
            e("s_lshr_b32 s%d, s%d, 16" % (PE, PE))
            e("s_lshl_b32 s%d, s%d, 4" % (PE, PE))
            e("s_add_u32 s%d, s%d, 0x4009000" % (PE, PE))
            e("s_mov_b64 exec, 1")
            e("buffer_store_dwordx4 v[%d:%d], off, s[%d:%d], s%d" % (HX, HX + 3, PS2, PS2 + 3, PE))
        e.lines.append("L_fx:")
        if P["stamp"] == 5 and not EL:
            srd(PS2, 82, 0x8000000)
            e("s_memrealtime s[%d:%d]" % (PT + 2, PT + 3))
            e("s_waitcnt lgkmcnt(0)")
            e("v_mov_b32 v%d, s%d" % (HX, PE + 4))
            e("v_mov_b32 v%d, s%d" % (HX + 1, PT + 2))
            e("s_lshl_b32 s%d, s2, 3" % PE)
            e("s_add_u32 s%d, s%d, 0x400a000" % (PE, PE))
            e("s_mov_b64 exec, 1")
            e("buffer_store_dwordx2 v[%d:%d], off, s[%d:%d], s%d" % (HX, HX + 1, PS2, PS2 + 3, PE))
        e("s_endpgm")

    if BC:
        e.label("L_h3")
        e("s_waitcnt lgkmcnt(0)")
        srd(PWS, 82, WS_SIZE)
        if not EB:
            e("s_barrier")
        e("v_lshlrev_b32 v%d, 2, v%d" % (HD, HL))
        e("s_mul_i32 s%d, s%d, %d" % (PO, PM, FSTR))
        e("s_add_u32 s%d, s%d, %d" % (PO, PO, WS_T))
        e("s_lshl_b32 s%d, s%d, 2" % (PFL, PG))
        e("s_add_u32 s%d, s%d, s%d" % (PFL, PFL, PO))
        if GTS:
            cps = CPK + [48 + c for c in CPV]
            sel = [max(j for j, c in enumerate(cps) if c + P["tg"] + P["rd"] < b) for b in GTS]
            e("s_mov_b32 s%d, 0x%x" % (PRN, sum(1 << j for j in sel)))
            e("v_lshrrev_b32 v%d, 2, v%d" % (HG, HL))
            e("v_mul_u32_u24 v%d, %d, v%d" % (HG, FSTR, HG))
            e("v_and_or_b32 v%d, v%d, 12, v%d" % (HG, HD, HG))
            e("s_and_b32 s%d, s%d, 3" % (PBK, PM))
            e("s_mul_i32 s%d, s%d, %d" % (PNR, PBK, FSTR))
            e("s_lshl_b32 s%d, s%d, 2" % (PBK, PBK))
            e("v_mov_b32 v%d, %d" % (HK, L_GT))
        e("s_mov_b32 s%d, %d" % (PJ, P["pw"]))
        e("v_mov_b32 v%d, %d" % (HW, L_TM))
        e("v_bfrev_b32 v%d, -2" % HC)
        e("s_mov_b32 exec_hi, 0")
        e.label("L_h3loop")
        lds_wait("p1", HZ, HE, PE, L_TC, "s%d" % PJ, PSP)
        e("s_memrealtime s[%d:%d]" % (PT, PT + 1))
        e("s_add_u32 s%d, s%d, %d" % (PJ, PJ, 5 - P["pw"]))
        e("s_mov_b32 exec_lo, 1")
        e("s_waitcnt lgkmcnt(0)")
        e("v_mov_b32 v%d, s%d" % (HB_, PT))
        e("buffer_store_dword v%d, off, s[%d:%d], s%d" % (HB_, PWS, PWS + 3, PFL))
        e("s_mov_b32 exec_lo, -1")
        lds_wait("p2", HZ, HE, PE, L_TC, "s%d" % PJ, PSP)
        e("buffer_load_dword v%d, v%d, s[%d:%d], s%d offen sc0" % (HB_, HD, PWS, PWS + 3, PO))
        e("s_add_u32 s%d, s%d, 4" % (PJ, PJ))
        e("s_sub_u32 s%d, s%d, 4096" % (PT, PT))
        e("s_waitcnt vmcnt(0)")
        e("v_subrev_u32 v%d, s%d, v%d" % (HB_, PT, HB_))
        e("v_cmp_gt_u32 vcc, 8192, v%d" % HB_)
        e("v_cndmask_b32 v%d, v%d, v%d, vcc" % (HB_, HC, HB_))
        e("s_mov_b32 s%d, 2048" % PE)
        for st in (2048, 1024, 512, 256, 128, 64, 32, 16, 8):
            e("s_add_u32 s%d, s%d, %d" % (PE + 1, PE, st))
            e("v_cmp_gt_u32 vcc, s%d, v%d" % (PE + 1, HB_))
            e("s_bcnt1_i32_b64 s%d, vcc" % (PE + 2))
            e("s_cmp_lt_u32 s%d, %d" % (PE + 2, P["aq"]))
            e("s_cselect_b32 s%d, s%d, s%d" % (PE, PE + 1, PE))
        e("s_add_u32 s%d, s%d, s%d" % (PE + 1, PE, PT))
        e("s_or_b32 s%d, s%d, 1" % (PE + 1, PE + 1))
        e("v_mov_b32 v%d, s%d" % (HB_, PE + 1))
        e("ds_write_b32 v%d, v%d" % (HW, HB_))
        e("v_add_u32 v%d, 4, v%d" % (HW, HW))
        if GTS:
            e("s_bitcmp1_b32 s%d, 0" % PRN)
            e("s_cbranch_scc0 L_h3ng")
            e("s_cmp_lt_u32 s%d, 6136" % PE)
            e("s_cselect_b32 exec_lo, 1, 0")
            e("s_cmp_lt_u32 s%d, 4" % PG)
            e("s_cselect_b32 exec_lo, exec_lo, 0")
            e("buffer_store_dword v%d, off, s[%d:%d], s%d offset:2048 sc1" % (HB_, PWS, PWS + 3, PFL))
            e("s_mov_b32 exec_lo, 0xffff")
            e("s_add_u32 s%d, s%d, %d" % (PE + 3, PJ, P["gq"]))
            lds_wait("p3", HZ, HE, PE, L_TC, "s%d" % (PE + 3), PSP)
            e("s_sub_u32 s%d, s%d, s%d" % (PE + 3, PO, PNR))
            e("s_mov_b32 s%d, %d" % (PSP, P["gn"]))
            e("s_mov_b32 s%d, 0" % PE)
            if P["gl2"]:
                e("buffer_load_dword v%d, v%d, s[%d:%d], s%d offen offset:2048" % (HA, HG, PWS, PWS + 3, PE + 3))
                e("s_branch L_h3gq")
            e.label("L_h3gp")
            e("buffer_load_dword v%d, v%d, s[%d:%d], s%d offen offset:2048 sc1" % (HA, HG, PWS, PWS + 3, PE + 3))
            e("s_sub_u32 s%d, s%d, 1" % (PSP, PSP))
            e("s_cbranch_scc1 L_h3gw")
            e.lines.append("L_h3gq:")
            e("s_waitcnt vmcnt(0)")
            e("v_subrev_u32 v%d, s%d, v%d" % (HA, PT, HA))
            e("v_cmp_gt_u32 vcc, 8192, v%d" % HA)
            e("v_cndmask_b32 v%d, v%d, v%d, vcc" % (HA, HC, HA))
            e("v_min_u32_dpp v%d, v%d, v%d quad_perm:[1,0,3,2] row_mask:0xf bank_mask:0xf" % (HA, HA, HA))
            e("v_min_u32_dpp v%d, v%d, v%d quad_perm:[2,3,0,1] row_mask:0xf bank_mask:0xf" % (HA, HA, HA))
            e("v_cmp_eq_u32 vcc, v%d, v%d" % (HC, HA))
            e("s_cbranch_vccnz L_h3gp")
            for k in range(4):
                e("v_readlane_b32 s%d, v%d, %d" % (PE + 4 + k, HA, 4 * k))
            e("v_readlane_b32 s%d, v%d, s%d" % (PE + 1, HA, PBK))
            e("s_max_u32 s%d, s%d, s%d" % (PE + 4, PE + 4, PE + 5))
            e("s_max_u32 s%d, s%d, s%d" % (PE + 6, PE + 6, PE + 7))
            e("s_max_u32 s%d, s%d, s%d" % (PE, PE + 4, PE + 6))
            e("s_sub_u32 s%d, s%d, s%d" % (PE, PE, PE + 1))
            e("s_sub_u32 s%d, s%d, %d" % (PE, PE, P["gtol"]))
            e("s_max_i32 s%d, s%d, 0" % (PE, PE))
            e("s_min_i32 s%d, s%d, %d" % (PE, PE, P["gcap"]))
            e.label("L_h3gw")
            e("s_or_b32 s%d, s%d, 0x10000" % (PE, PE))
            e("v_mov_b32 v%d, s%d" % (HB_, PE))
            e("ds_write_b32 v%d, v%d" % (HK, HB_))
            e("s_mov_b32 exec_lo, -1")
            e("v_add_u32 v%d, 4, v%d" % (HK, HK))
            e("s_waitcnt vmcnt(0)")
            e.label("L_h3ng")
            e("s_lshr_b32 s%d, s%d, 1" % (PRN, PRN))
        e("s_add_u32 s%d, s%d, %d" % (PJ, PJ, 3 + P["pw"]))
        e("s_add_u32 s%d, s%d, 128" % (PO, PO))
        e("s_add_u32 s%d, s%d, 128" % (PFL, PFL))
        e("s_cmp_lt_u32 s%d, %d" % (PJ, 12 * (len(CPK) + len(CPV))))
        e("s_cbranch_scc1 L_h3loop")
        if P["fc"] == 4:
            last_gather()
        else:
            e("s_endpgm")

    e.label("L_h2")
    srd(PS2, 74, H * SKV * 2)
    srd(PS3, 76, H * SKV * 2)
    if P["pf"] >= 2:
        if P["pf"] == 2:
            lds_wait("pf", HZ, HE, PE, L_EV + 4, "1", PSP)
        if P["pf"] == 4:
            lds_wait("pf", HZ, HE, PE, L_EV, "1", PSP)
        e("v_lshlrev_b32 v%d, 4, v%d" % (HA, HL))
        e("s_lshl_b32 s%d, s2, 13" % PE)
        e("s_add_u32 s%d, s%d, 4096" % (PE + 1, PE))
        for a, sr in enumerate((PS2, PS3)):
            for k in range(8):
                r = HX + 4 * (a * 8 + k)
                e("buffer_load_dwordx4 v[%d:%d], v%d, s[%d:%d], s%d offen offset:%d" % (r, r + 3, HA, sr, sr + 3, PE + k // 4, (k % 4) * 1024))
        e("s_waitcnt vmcnt(0)")
    get_dec("d2")
    PSIX = 24
    PKW = 32; PNEED = 33; PN0 = 34; PIM = 35; PCH = 36; PCC = 37; PMG = 38; PWD = 39; PIS = 40
    HT = HW
    HP = HX + 88; PXM = 64
    e("v_and_b32 v%d, 3, v%d" % (HT, HL))
    e("v_and_b32 v%d, 7, v%d" % (HT2, HL))
    e("v_lshrrev_b32 v%d, 2, v%d" % (HR, HL))
    e("s_mov_b32 s%d, %s" % (PCC, f32hex(C)))
    e("s_mov_b32 s%d, 0xaaaaaaab" % PMG)
    e("s_mov_b32 s%d, 0" % PPH)
    e("s_mul_i32 s%d, s%d, %d" % (PIM, PG, 8 * IMS))
    e("s_add_u32 s%d, s%d, %d" % (PIM, PIM, WS_L))
    e("s_mov_b32 s%d, %d" % (PIS, IMS))
    e("v_lshlrev_b32 v%d, 5, v%d" % (HN, HL))
    e("v_lshrrev_b32 v%d, 3, v%d" % (HK, HL))
    e("v_mul_u32_u24 v%d, 24, v%d" % (HK, HK))
    e("v_mov_b32 v%d, 768" % HA)
    e("v_mad_u32_u24 v%d, v%d, v%d, v%d" % (HK, HT2, HA, HK))
    e("v_lshlrev_b32 v%d, 4, v%d" % (HP, HL))
    e("s_mov_b32 s%d, %d" % (PN0, 3 * N0))
    RS = 16
    e.label("L_prep")
    seg_scalars()
    e("s_mov_b32 s%d, s%d" % (PKW, PDC))
    e("s_mov_b32 s%d, s%d" % (PWD, PDC + 3))
    for i in (0, 1, 3, 4):
        e("s_mov_b32 s%d, s%d" % (PDC + i, PDC + i + 1))
    e("s_lshl_b32 s%d, s%d, 3" % (PNEED, PPH))
    e("s_add_u32 s%d, s%d, 1" % (PNEED, PNEED))
    if P["pf"] == 1:
        lds_wait("pf", HZ, HE, PE, L_EV + 4, "s%d" % PNEED, PSP)
        e("v_lshlrev_b32 v%d, 4, v%d" % (HA, HL))
        e("s_mul_i32 s%d, s%d, 2736" % (PE + 1, PM))
        e("s_lshl_b32 s%d, s%d, 16" % (PE, PSG))
        e("s_mul_hi_u32 s%d, s%d, 0xaaaaaaab" % (PE, PE))
        e("s_lshr_b32 s%d, s%d, 5" % (PE, PE))
        e("s_lshl_b32 s%d, s%d, 4" % (PE, PE))
        e("s_add_u32 s%d, s%d, s%d" % (PE, PE, PE + 1))
        for a, sr in enumerate((PS2, PS3)):
            for k in range(3):
                r = HX + 4 * RS + 4 * (a * 3 + k)
                e("buffer_load_dwordx4 v[%d:%d], v%d, s[%d:%d], s%d offen offset:%d%s" % (r, r + 3, HA, sr, sr + 3, PE, k * 1024, " nt" if P["bnt"] & 8 else ""))
    for w, hv in ((PWD, HV),):
        e("s_and_b32 s%d, s%d, 7" % (PE, w))
        e("v_mov_b32 v%d, s%d" % (hv, PE))
        e("s_bitcmp1_b32 s%d, 3" % w)
        e("s_cselect_b64 vcc, -1, 0")
        e("v_cndmask_b32 v%d, v%d, v%d, vcc" % (hv, hv, HT2))
    e("v_xor_b32 v%d, s%d, v%d" % (HG, PNB, HV))
    e("v_lshl_or_b32 v%d, v%d, 3, v%d" % (HG, HT, HG))
    e("s_lshl_b32 s%d, s%d, 6" % (PCH, PSG))
    e("s_mul_i32 s%d, s%d, 768" % (PE + 1, PSG))
    e("s_lshl_b32 s%d, s%d, 2" % (PE + 2, PG0))
    e("s_sub_u32 s%d, s%d, s%d" % (PE + 1, PE + 1, PE + 2))
    e("s_add_u32 s%d, s%d, %d" % (PE + 1, PE + 1, WS_B))
    if P["pace"]:
        e("s_add_u32 s%d, s%d, 4" % (PNEED, PNEED))
        lds_wait("ga", HZ, HE, PE, L_EV + 4, "s%d" % PNEED, PSP)
    else:
        e("s_add_u32 s%d, s%d, 1" % (PNEED, PPH))
        lds_wait("ga", HZ, HE, PE, L_FD, "s%d" % PNEED, PSP)
    for st in range(4):
        R = HX + RS * st
        e("v_add_u32 v%d, %d, v%d" % (HA, 16 * st, HR))
        e("v_bfe_u32 v%d, v%d, 3, 2" % (HB_, HA))
        e("v_and_or_b32 v%d, v%d, 4, v%d" % (HB_, HA, HB_))
        e("v_xor_b32 v%d, v%d, v%d" % (HB_, HG, HB_))
        e("v_add_u32 v%d, s%d, v%d" % (HA, PCH, HA))
        e("v_lshl_add_u32 v%d, v%d, 5, v%d" % (HC, HA, HB_))
        e("v_lshl_add_u32 v%d, v%d, 4, 1" % (HC, HC))
        e("v_mul_hi_u32 v%d, v%d, s%d" % (HC, HC, PMG))
        e("v_lshrrev_b32 v%d, 1, v%d" % (HC, HC))
        e("v_lshrrev_b32 v%d, 1, v%d" % (HF, HC))
        e("v_lshlrev_b32 v%d, 2, v%d" % (HF, HF))
        for b, sr in ((R + 8, PS2), (R + 12, PS3)):
            if P["xkp"] & 8:
                continue
            gnt = " nt" if P["bnt"] & 16 else ""
            e("buffer_load_dwordx3 v[%d:%d], v%d, s[%d:%d], 0 offen%s" % (b, b + 2, HF, sr, sr + 3, gnt))
            if P["pace"] == 2:
                e("s_waitcnt vmcnt(0)")
            e("buffer_load_dword v%d, v%d, s[%d:%d], 0 offen offset:12%s" % (b + 3, HF, sr, sr + 3, gnt))
        e("v_lshrrev_b32 v%d, 6, v%d" % (R + 6, HC))
        e("v_lshl_add_u32 v%d, v%d, 2, s%d" % (R + 6, R + 6, PE + 1))
        e("v_and_b32 v%d, 15, v%d" % (HD, HC))
        e("v_cmp_eq_u32 s[%d:%d], 5, v%d" % (PSIX + 2 * st, PSIX + 2 * st + 1, HD))
        e("v_and_b32 v%d, 1, v%d" % (R + 7, HC))
        e("v_lshlrev_b32 v%d, 4, v%d" % (R + 7, R + 7))
        if P["pace"] == 1:
            e("s_waitcnt vmcnt(0)")
    e("s_add_u32 s%d, s%d, 1" % (PNEED, PPH))
    lds_wait("fd", HZ, HE, PE, L_FD, "s%d" % PNEED, PSP)
    e("v_mul_u32_u24 v%d, %d, v%d" % (HA, FSTR, HL))
    e("s_xor_b32 s%d, s%d, s%d" % (PE, PKW, PWD))
    e("s_xor_b32 s%d, s%d, s%d" % (PE, PE, PNB))
    e("s_and_b32 s%d, s%d, 7" % (PE, PE))
    e("v_mov_b32 v%d, s%d" % (HC, PNEED))
    e("s_lshl_b64 vcc, 1, s%d" % PE)
    e("s_or_b32 s%d, s%d, s%d" % (PE, PKW, PWD))
    e("s_bitcmp1_b32 s%d, 3" % PE)
    e("s_cselect_b64 vcc, 0xff, vcc")
    e("s_cmp_eq_u32 s%d, s%d" % (PKW, PWD))
    e("s_cselect_b64 vcc, 0, vcc")
    e("s_max_u32 s%d, s%d, 1" % (PE, PPH))
    e("v_mov_b32 v%d, s%d" % (HD, PE))
    e("v_cndmask_b32 v%d, v%d, v%d, vcc" % (HC, HD, HC))
    e("s_cmp_%s_u32 s%d, 1" % ("eq" if P["jit"] else "ge", PPH))
    e("s_cselect_b64 exec, vcc, 0xff")
    e("s_mov_b32 s%d, 0x40000" % PSP)
    if not P["xkp"] & 64:
        e("s_cbranch_execz L_noflags")
        e.label("L_flags")
        e("buffer_load_dword v%d, v%d, s[%d:%d], s%d offen sc1" % (HB_, HA, PWS, PWS + 3, PGL))
        e("s_sub_u32 s%d, s%d, 1" % (PSP, PSP))
        e("s_cbranch_scc1 L_exit1")
        e("s_waitcnt vmcnt(0)")
        e("v_cmpx_gt_u32 vcc, v%d, v%d" % (HC, HB_))
        e("s_cbranch_execnz L_flags")
        e.label("L_noflags")
    e("s_mov_b64 exec, -1")
    for st in range(4):
        R = HX + RS * st
        if not P["xkp"] & 32:
            e("buffer_load_dword v%d, v%d, s[%d:%d], 0 offen sc1" % (R + 6, R + 6, PWS, PWS + 3))
    e("s_bitcmp1_b32 s%d, 3" % PWD)
    e("s_cselect_b32 s%d, 0, 7" % (PE + 1))
    e("s_xor_b32 s%d, s%d, s%d" % (PE + 2, PKW, PWD))
    e("s_bitcmp1_b32 s%d, 3" % (PE + 2))
    e("s_cselect_b32 s%d, 7, 0" % (PE + 3))
    e("s_and_b32 s%d, s%d, 7" % (PE + 2, PE + 2))
    e("s_and_b32 s%d, s%d, 7" % (PE + 4, PWD))
    e("s_add_u32 s%d, s%d, 4096" % (PE + 5, PIM))
    for k in range(6):
        R = HX + 4 * RS + 4 * k
        e("v_add_u32 v%d, %d, v%d" % (HA, 64 * k, HL))
        e("v_mul_u32_u24 v%d, 1366, v%d" % (HB_, HA))
        e("v_lshrrev_b32 v%d, 16, v%d" % (HB_, HB_))
        e("v_mul_u32_u24 v%d, 48, v%d" % (HC, HB_))
        e("v_sub_u32 v%d, v%d, v%d" % (HA, HA, HC))
        e("v_cmp_gt_u32 vcc, s%d, v%d" % (PN0, HA))
        e("v_and_b32 v%d, s%d, v%d" % (HC, PE + 3, HB_))
        e("v_xor_b32 v%d, s%d, v%d" % (HC, PE + 2, HC))
        e("v_and_b32 v%d, s%d, v%d" % (HB_, PE + 1, HB_))
        e("v_xor_b32 v%d, s%d, v%d" % (HB_, PE + 4, HB_))
        e("v_cndmask_b32 v%d, v%d, v%d, vcc" % (HC, HC, HB_))
        e("v_cmp_ne_u32 s[%d:%d], 0, v%d" % (PXM + 2 * k, PXM + 2 * k + 1, HC))
        e("v_xor_b32 v%d, s%d, v%d" % (HC, PNB, HC))
        e("v_mad_u32_u24 v%d, v%d, s%d, v%d" % (HC, HC, PIS, HP))
        e("s_mov_b64 exec, s[%d:%d]" % (PXM + 2 * k, PXM + 2 * k + 1))
        if not P["xkp"] & 128:
            e("buffer_load_dwordx4 v[%d:%d], v%d, s[%d:%d], s%d offen offset:%d sc1" %
              (R, R + 3, HC, PWS, PWS + 3, PE + 5 if k >= 4 else PIM, (k % 4) * 1024))
        e("s_mov_b64 exec, -1")
    e("s_waitcnt vmcnt(0)")
    for k in range(6):
        R = HX + 4 * RS + 4 * k
        e("s_mov_b64 exec, s[%d:%d]" % (PXM + 2 * k, PXM + 2 * k + 1))
        e("ds_write_b128 v%d, v[%d:%d] offset:%d" % (HP, R, R + 3, L_LG + k * 1024))
    e("s_mov_b64 exec, -1")
    for st in range(4):
        R = HX + RS * st
        for c in range(3):
            e("ds_read_b64 v[%d:%d], v%d offset:%d" % (R + 2 * c, R + 2 * c + 1, HK, L_LG + st * 192 + 8 * c))
    e("s_mov_b32 s%d, 0" % PN0)
    e("v_mov_b32 v%d, 0x%08x" % (HB_, BIGNEG))
    e("v_mov_b32 v%d, 0x%08x" % (HA, BIGNEG))
    e("s_waitcnt vmcnt(0) lgkmcnt(0)")
    for st in range(4):
        R = HX + RS * st
        for k in range(6):
            e("v_sub_f32 v%d, v%d, v%d" % (R + k, R + k, R + 6))
        for k in range(6):
            e("v_mul_f32 v%d, s%d, v%d" % (R + k, PCC, R + k))
        e("v_cndmask_b32 v%d, v%d, v%d, s[%d:%d]" % (R + 5, HB_, R + 5, PSIX + 2 * st, PSIX + 2 * st + 1))
        for k in range(0, 6, 2):
            e("v_max3_f32 v%d, v%d, v%d, v%d" % (HA, HA, R + k, R + k + 1))
        for b in (R + 8, R + 12):
            for k in range(3):
                e("v_alignbit_b32 v%d, v%d, v%d, v%d" % (b + k, b + k + 1, b + k, R + 7))

    wave_reduce([HA], "v_max_f32", [HB_])
    e("v_mov_b32 v%d, 0" % HB_)
    e("v_mov_b32 v%d, 0" % HC)
    for st in range(4):
        R = HX + RS * st
        for k in range(6):
            e("v_sub_f32 v%d, v%d, v%d" % (R + k, R + k, HA))
        for k in range(6):
            e("v_exp_f32 v%d, v%d" % (R + k, R + k))
        for k in range(6):
            e("v_add_f32 v%d, v%d, v%d" % (HB_, HB_, R + k))
            if k & 1:
                e("v_and_b32 v%d, 0xffff0000, v%d" % (HE, R + 8 + k // 2))
                e("v_and_b32 v%d, 0xffff0000, v%d" % (HF, R + 12 + k // 2))
            else:
                e("v_lshlrev_b32 v%d, 16, v%d" % (HE, R + 8 + k // 2))
                e("v_lshlrev_b32 v%d, 16, v%d" % (HF, R + 12 + k // 2))
            e("v_mul_f32 v%d, v%d, v%d" % (R + k, R + k, HE))
            e("v_fmac_f32 v%d, v%d, v%d" % (HC, R + k, HF))
        e("ds_write_b128 v%d, v[%d:%d] offset:%d" % (HN, R, R + 3, L_PV + st * 2048))
        e("ds_write_b64 v%d, v[%d:%d] offset:%d" % (HN, R + 4, R + 5, L_PV + st * 2048 + 16))
    wave_reduce([HB_, HC], "v_add_f32", [HE, HF])
    e("s_lshl_b32 s%d, s%d, 2" % (PE, PPH))
    e("v_mov_b32 v%d, s%d" % (HE, PE))
    e("v_lshlrev_b32 v%d, 2, v%d" % (HF, HE))
    e("v_mov_b32 v%d, s%d" % (HD, PWD))
    e("s_mov_b64 exec, 1")
    e("ds_write_b128 v%d, v[%d:%d] offset:%d" % (HF, HA, HD, L_ML))
    e("ds_write_b32 v%d, v%d offset:%d" % (HE, HD, L_GO))
    if FU:
        e("s_lshl_b32 s%d, s%d, 8" % (PE, PPH))
        e("s_add_u32 s%d, s%d, s2" % (PE, PE))
        e("s_lshl_b32 s%d, s%d, 6" % (PE, PE))
        e("s_add_u32 s%d, s%d, %d" % (PE, PE, WS_ML))
        e("buffer_store_dwordx4 v[%d:%d], off, s[%d:%d], s%d sc1" % (HA, HD, PWS, PWS + 3, PE))
    e("s_mov_b64 exec, -1")
    e("v_add_u32 v%d, 8192, v%d" % (HN, HN))
    e("v_add_u32 v%d, %d, v%d" % (HK, PHI, HK))
    e("v_add_u32 v%d, %d, v%d" % (HP, PHI, HP))
    if PHS != PHI:
        e("s_add_u32 s%d, s%d, %d" % (PIM, PIM, PHS - PHI))
    e("s_add_u32 s%d, s%d, 1" % (PPH, PPH))
    e("s_cmp_lt_u32 s%d, 3" % PPH)
    e("s_cbranch_scc1 L_prep")
    e("s_mov_b32 s%d, 0" % PPH)
    e("v_lshlrev_b32 v%d, 2, v%d" % (HR, HL))
    e("v_add_u32 v%d, %d, v%d" % (HG, L_ACC, HR))
    e("v_lshlrev_b32 v%d, 4, v%d" % (HK, HL))
    e("v_mov_b32 v%d, 1" % (HX + 15))
    e.label("L_merge")
    e("s_lshl_b32 s%d, s%d, 2" % (PE, PPH))
    e("v_mov_b32 v%d, s%d" % (HW, PE))
    e("v_lshlrev_b32 v%d, 2, v%d" % (HF, HW))
    e("ds_read_b128 v[%d:%d], v%d offset:%d" % (HA, HD, HF, L_ML))
    e("s_lshl_b32 s%d, s%d, 8" % (PSG, PPH))
    e("s_add_u32 s%d, s%d, s2" % (PSG, PSG))
    e("s_lshl_b32 s%d, s%d, 10" % (PSG, PSG))
    lds_wait("m", HZ, HE, PE, L_CA, "4", PSP, HW)
    for kk in range(3):
        for w in range(NW):
            e("ds_read_b32 v%d, v%d offset:%d" % (HX + kk * NW + w, HG, w * ROWB + kk * 256))
    for kk in range(3):
        b = HX + kk * NW
        e("s_waitcnt lgkmcnt(%d)" % (8 - 4 * kk))
        e("v_add_f32 v%d, v%d, v%d" % (b, b, b + 1))
        e("v_add_f32 v%d, v%d, v%d" % (b + 2, b + 2, b + 3))
        e("v_sub_f32 v%d, v%d, v%d" % (b, b, HC))
        if FU:
            e("v_add_f32 v%d, v%d, v%d" % (HX + 12 + kk, b, b + 2))
            continue
        e("v_add_f32 v%d, v%d, v%d" % (b, b, b + 2))
        e("buffer_store_dword v%d, v%d, s[%d:%d], s%d offen offset:%d" % (b, HR, PWS, PWS + 3, PSG, kk * 256))
    if FU:
        e("buffer_store_dwordx4 v[%d:%d], v%d, s[%d:%d], s%d offen sc1" % (HX + 12, HX + 15, HK, PWS, PWS + 3, PSG))
    else:
        e("s_mov_b64 exec, 1")
        e("buffer_store_dwordx2 v[%d:%d], off, s[%d:%d], s%d offset:%d" % (HA, HB_, PWS, PWS + 3, PSG, DH * 4))
        e("s_mov_b64 exec, -1")
    e("v_add_u32 v%d, %d, v%d" % (HG, NW * ROWB, HG))
    e("s_add_u32 s%d, s%d, 1" % (PPH, PPH))
    e("s_cmp_lt_u32 s%d, %d" % (PPH, 2 if 0 < P["fc"] < 4 else 3))
    e("s_cbranch_scc1 L_merge")
    if 0 < P["fc"] < 4:
        last_gather()
    if P["stamp"] == 5:
        e("s_memrealtime s[%d:%d]" % (PT, PT + 1))
        e("s_waitcnt vmcnt(0)")
        e("s_memrealtime s[%d:%d]" % (PT + 2, PT + 3))
        srd(PS2, 82, 0x8000000)
        e("s_waitcnt lgkmcnt(0)")
        e("v_mov_b32 v%d, s%d" % (HX, PT))
        e("v_mov_b32 v%d, s%d" % (HX + 1, PT + 2))
        e("s_lshl_b32 s%d, s2, 3" % PE)
        e("s_add_u32 s%d, s%d, 0x400a000" % (PE, PE))
        e("s_mov_b64 exec, 1")
        e("buffer_store_dwordx2 v[%d:%d], off, s[%d:%d], s%d" % (HX, HX + 1, PS2, PS2 + 3, PE))
    e("s_endpgm")

    main_text = e.text()
    RPW = 24
    k2 = NAME + "_kernel"
    e.lines.append(".globl %s" % k2)
    e.lines.append(".p2align 8")
    e.lines.append(".type %s,@function" % k2)
    e.lines.append(k2 + ":")
    e.wr = {}; e.tr = {}; e.sw = {}
    e("s_cmp_ge_u32 s2, %d" % H)
    e("s_cbranch_scc1 L_exit2")
    e("s_load_dwordx2 s[4:5], s[0:1], 56")
    e("s_load_dwordx2 s[6:7], s[0:1], 72")
    e("v_lshlrev_b32 v1, 2, v0")
    e("v_mov_b32 v2, 0")
    e("s_mul_i32 s16, s2, %d" % (RPW * PART_STRIDE))
    e("s_mov_b32 s10, %d" % (3 * NWG * PART_STRIDE))
    e("s_mov_b32 s11, 0x00020000")
    e("s_mov_b32 s14, %d" % (H * DH * 2))
    e("s_mov_b32 s15, 0x00020000")
    for k in range(1, RPW // 4):
        e("s_add_u32 s%d, s16, %d" % (16 + k, 4 * k * PART_STRIDE))
    e("s_waitcnt lgkmcnt(0)")
    e("s_mov_b32 s8, s6")
    e("s_and_b32 s9, s7, 0xffff")
    e("s_mov_b32 s12, s4")
    e("s_and_b32 s13, s5, 0xffff")
    MLB = 8
    OB = MLB + 2 * RPW
    for s in range(RPW):
        so = 16 + s // 4
        e("buffer_load_dwordx2 v[%d:%d], v2, s[8:11], s%d offen offset:%d" %
          (MLB + 2 * s, MLB + 2 * s + 1, so, (s % 4) * PART_STRIDE + DH * 4))
        e("buffer_load_dword v%d, v1, s[8:11], s%d offen offset:%d" % (OB + s, so, (s % 4) * PART_STRIDE))
    e("s_waitcnt vmcnt(0)")
    e("v_mov_b32 v4, v%d" % MLB)
    for s in range(1, RPW):
        e("v_max_f32 v4, v4, v%d" % (MLB + 2 * s))
    for s in range(RPW):
        e("v_sub_f32 v%d, v%d, v4" % (MLB + 2 * s, MLB + 2 * s))
    for s in range(RPW):
        e("v_exp_f32 v%d, v%d" % (MLB + 2 * s, MLB + 2 * s))
    e("v_mul_f32 v5, v%d, v%d" % (MLB, MLB + 1))
    e("v_mul_f32 v6, v%d, v%d" % (MLB, OB))
    for s in range(1, RPW):
        e("v_fmac_f32 v5, v%d, v%d" % (MLB + 2 * s, MLB + 2 * s + 1))
        e("v_fmac_f32 v6, v%d, v%d" % (MLB + 2 * s, OB + s))
    e("v_rcp_f32 v5, v5")
    e("v_mul_f32 v6, v6, v5")
    e("v_cvt_pk_bf16_f32 v6, v6, v6")
    e("s_mul_i32 s16, s2, %d" % (DH * 2))
    e("v_lshrrev_b32 v1, 1, v1")
    e("buffer_store_short v6, v1, s[12:15], s16 offen")
    e.lines.append("L_exit2:")
    e("s_endpgm")
    NV2 = OB + RPW

    def kd(name, nv, ns):
        acc = (nv + 3) // 4 * 4
        return """.amdhsa_kernel %s
  .amdhsa_next_free_vgpr %d
  .amdhsa_next_free_sgpr %d
  .amdhsa_accum_offset %d
  .amdhsa_group_segment_fixed_size 0
  .amdhsa_kernarg_size 80
  .amdhsa_user_sgpr_count 2
  .amdhsa_user_sgpr_kernarg_segment_ptr 1
  .amdhsa_system_sgpr_workgroup_id_x 1
.end_amdhsa_kernel
""" % (name, nv, ns, acc)

    diag = ""
    if P["diag"]:
        d = Emit4()
        d.lines += [".globl diag_kernel", ".p2align 8", ".type diag_kernel,@function", "diag_kernel:"]
        d("s_cmp_ge_u32 s2, 1")
        d("s_cbranch_scc1 L_dx")
        d("s_load_dwordx2 s[6:7], s[0:1], 72")
        d("s_memrealtime s[16:17]")
        d("v_lshlrev_b32 v1, 4, v0")
        d("s_mov_b32 s10, 0x8000000")
        d("s_mov_b32 s11, 0x00020000")
        d("s_waitcnt lgkmcnt(0)")
        d("s_mov_b32 s8, s6")
        d("s_and_b32 s9, s7, 0xffff")
        for k in range(16):
            d("s_mov_b32 s12, 0x%x" % (0x4000000 + k * 1024))
            d("buffer_load_dwordx4 v[%d:%d], v1, s[8:11], s12 offen" % (4 + 4 * k, 7 + 4 * k))
        d("s_waitcnt vmcnt(0)")
        d("v_readfirstlane_b32 s13, v4")
        d("v_mov_b32 v2, 0")
        d("v_mov_b32 v3, 0")
        for k in range(16):
            d("v_subrev_u32 v%d, s13, v%d" % (4 + 4 * k, 4 + 4 * k))
            d("v_subrev_u32 v%d, s13, v%d" % (5 + 4 * k, 4 + 4 * k + (P["diag"] & 3)))
            d("v_min_i32 v2, v2, v%d" % (4 + 4 * k))
            d("v_max_i32 v3, v3, v%d" % (5 + 4 * k))
        d("s_mov_b32 s14, 0")
        d("s_mov_b32 s15, 0")
        for l in range(64):
            d("v_readlane_b32 s18, v2, %d" % l)
            d("v_readlane_b32 s19, v3, %d" % l)
            d("s_nop 3")
            d("s_min_i32 s14, s14, s18")
            d("s_max_i32 s15, s15, s19")
        if P["diag"] & 4:
            d("s_sub_u32 s14, s16, s13")
            d("s_sub_u32 s15, s14, s15")
        else:
            d("s_sub_u32 s15, s15, s14")
        d("s_sub_u32 s15, s15, %d" % P["doff"])
        d("s_max_i32 s15, s15, 0")
        d("s_min_i32 s15, s15, 10000")
        d("s_mul_i32 s15, s15, %d" % P["dmul"])
        d("s_add_u32 s15, s15, s16")
        d.label("L_dl")
        d("s_memrealtime s[18:19]")
        d("s_waitcnt lgkmcnt(0)")
        d("s_sub_u32 s18, s18, s15")
        d("s_cmp_lt_i32 s18, 0")
        d("s_cbranch_scc1 L_dl")
        d.lines.append("L_dx:")
        d("s_endpgm")
        diag = d.text()
    out = HEADER.replace("gen.py", "gen6.py").format(params=" ".join("%s=%s" % kv for kv in sorted(P.items())))
    if FU:
        out += "; @launch kernel=%s grid=(%d,1,1) block=(%d,1,1) lds=%d\n" % (k1, NWG, (NW + NHX) * 64, LDS1)
    else:
        out += "; @launch kernel=%s grid=(%d,1,1) block=(%d,1,1) lds=%d\n" % (k1, NWG, (NW + NHX) * 64, LDS1)
        out += "; @launch kernel=%s grid=(%d,1,1) block=(%d,1,1) lds=%d\n" % (k2, H, DH, 0)
    if diag:
        out += "; @launch kernel=diag_kernel grid=(1,1,1) block=(64,1,1) lds=0\n"
    out += '.amdgcn_target "amdgcn-amd-amdhsa--gfx950"\n.text\n'
    out += main_text if FU else e.text()
    out += diag
    out += '.section .rodata,"a"\n.p2align 6\n'
    out += kd(k1, NVGPR + (8 if P["xb"] else 2 if P["stamp"] == 5 else 0), 102)
    if not FU:
        out += ".p2align 6\n"
        out += kd(k2, NV2, 24)
    if diag:
        out += ".p2align 6\n"
        out += kd("diag_kernel", 72, 24)
    return out


DEFAULTS = dict(grp="6-6-6", n0=4, trg=1, ta=8, tb=12, jit=1, pace=1, nr0=1, nr=3, nt="nt", ldspad=0, stamp=0, xkp=0, force=0, clip=1400,
                l2t=290, th=200, pf=1, ob=2, ox=0, ds=1, td=3, tdm=3, fuse=1, cw=1,
                lx=0, wo=0, ns0=8, tw=1, ov="0000", st="sc1", xv="", h4=0, bnt=0, vw=1, at=1, tc=40, tg=2, te=44, aq=16, ka=9, kb=2048, dmin=0, dmax=11,
                bc=1, cpk="9-17-25-33-41", cpv="1-9-17-25-33", rd=2, ka2=8, kb2=512, bmax=6, be=1, pw=2, il=1, xp=0, ss=0, eb=0, pfi=0, hs=0, l2p=0, gts="16-32-48-64-80", gn=8, gtol=25, gcap=1000, gq=0, gl2=0, xb=0, diag=0, doff=20000, dmul=8, fc=4, elk=1)


def main():
    P = dict(DEFAULTS)
    outp = None
    args = sys.argv[1:]
    i = 0
    while i < len(args):
        a = args[i]
        if a == "-o":
            outp = args[i + 1]; i += 2; continue
        k, v = a.split("=", 1)
        assert k in P, k
        P[k] = type(P[k])(v.replace("+", " ")) if isinstance(P[k], str) else int(v)
        i += 1
    s = gen(P)
    if outp:
        open(outp, "w").write(s)
    else:
        sys.stdout.write(s)


if __name__ == "__main__":
    main()
```

```python
import re
import sys
import math
from gen import f32hex, HEADER, NAME, H, SKV, DH, G, NGRP, ROWB, HEADB
from gen4 import Emit4

PART_STRIDE = 1024
NW = 4
NH = 3
NWG = 256
NT = 48
WS_G = 8 << 20
FSTR = 4096 + 256
WS_ML = 0xe0000
WS_B = 0x120000
WS_L = 2 << 20
WS_T = 0x9c0000
WS_SIZE = 10 << 20
BIGNEG = 0xf149f2ca


def gen(P):
    GR = [int(x) for x in P["grp"].split("-")]
    assert sum(GR) == 18 and len(GR) >= 2
    NG = len(GR)
    GOFF = [sum(GR[:k]) for k in range(NG)]
    OV = [int(x) for x in P["ov"]]
    N0 = P["n0"]
    NR = P["nr"]
    TRG1 = N0 - P["trg"]
    TA = P["ta"]
    TB = P["tb"]
    assert 2 <= TRG1 < N0 < TA < TB < 16 and 1 <= NR <= 7 and N0 <= 8
    pol = (" " + P["nt"]) if P["nt"] else ""
    C = (DH ** -0.5) * math.log2(math.e)
    L_DEC = 0
    L_GO = 24
    L_PC = 36
    L_CF = 40
    L_FD = 52
    L_EV = 56
    L_CA = 64
    L_ML = 80
    L_TC = 128
    L_TD = 132
    L_EL = 136
    L_TM = 144
    L_GT = 208
    L_LG = 256
    PHI = 6144
    IMG = 3 * PHI
    L_PV = L_LG + IMG
    L_ACC = L_PV + 192 * 128
    LDS1 = max(L_ACC + 3 * NW * ROWB, P["ldspad"])

    e = Emit4()
    V_T = 1; V_J16 = 2; V_J8 = 3; V_LB0 = 4; V_PB0 = 5; V_PV = 6; V_PVN = 7; V_DO = 8; V_PO = 9; V_T0 = 10; V_T1 = 11
    V_ACC = 12; V_W = 24; V_RAW = 36
    V_OFF = 48; V_OFF6 = 49; V_TM = 50; V_BIG = 51; V_T2 = 52; V_Z = 53
    V_S = 54
    V_D = 60
    V_T128 = 62; V_TMX = 63
    V_RING = 64
    NVGPR = V_RING + 72
    S_G = 3; S_M = 4; S_N = 5; S_SPIN = 6; S_LDC = 7
    S_K = 8; S_V = 12; S_KS = 16; S_Q = 20; S_WS = 24
    S_WAVE = 28; S_CI = 29; S_I = 30; S_QOFF = 31
    S_T = 32
    S_EV = 40; S_STM = 42; S_HB = 44; S_768 = 45; S_384 = 46; S_MAGIC = 47
    S_NB = 48; S_TD = 49; S_XB = 50; S_LB = 53
    S_ST = 54; S_DBG = 56
    S_BO = 59; S_TW = 60; S_CPA = 62; S_NBO = 63; S_BP = 72
    S_MP = 64; S_MG = 66; S_MR = 68; S_MO = 70
    BC = P["bc"]
    NHX = NH + (1 if BC else 0)
    CPK = [int(x) for x in P["cpk"].split("-")] if BC and P["cpk"] else []
    CPV = [int(x) for x in P["cpv"].split("-")] if BC and P["cpv"] else []
    if BC:
        CPV.append(P["tc"])
        assert P["te"] == P["tc"] + P["tg"] + P["rd"] and len(CPK) + len(CPV) <= 16

    GTS = [int(x) for x in P["gts"].split("-")] if BC and P["gts"] else []

    def set_masks(ev, cps):
        mp = sum(1 << c for c in cps)
        allm = [(S_EV, ev | mp | (mp << P["tg"]) | (mp << (P["tg"] + P["rd"])))]
        if BC:
            allm += [(S_MP, mp), (S_MG, mp << P["tg"]), (S_MR, mp << (P["tg"] + P["rd"])), (S_MO, ev)]
        for r, v in allm:
            assert v < (1 << 48)
            e("s_mov_b32 s%d, 0x%x" % (r, v & 0xffffffff))
            e("s_mov_b32 s%d, 0x%x" % (r + 1, v >> 32))

    FU = P["fuse"]
    k1 = NAME + "_kernel" if FU else "part_kernel"
    e.lines.append(".globl %s" % k1)
    e.lines.append(".p2align 8")
    e.lines.append(".type %s,@function" % k1)
    e.lines.append(k1 + ":")
    e("s_cmp_ge_u32 s2, %d" % NWG)
    e("s_cbranch_scc1 L_exit1")
    e("s_load_dwordx16 s[64:79], s[0:1], 0")
    e("s_load_dwordx4 s[80:83], s[0:1], 64")
    if P["stamp"]:
        e("s_memrealtime s[%d:%d]" % (S_ST, S_ST + 1))
    e("v_lshrrev_b32 v%d, 6, v0" % V_T0)
    e("v_and_b32 v%d, 63, v0" % V_T1)
    e("v_readfirstlane_b32 s%d, v%d" % (S_WAVE, V_T0))
    e("s_lshr_b32 s%d, s2, 3" % S_G)
    e("s_and_b32 s%d, s2, 7" % S_M)
    e("s_lshr_b32 s%d, s2, 6" % S_T)
    e("s_xor_b32 s%d, s%d, s%d" % (S_T, S_T, S_M))
    e("s_lshr_b32 s%d, s%d, 1" % (S_NB, S_T))
    e("s_and_b32 s%d, s%d, 1" % (S_T, S_T))
    e("s_lshl_b32 s%d, s%d, 2" % (S_T, S_T))
    e("s_or_b32 s%d, s%d, s%d" % (S_NB, S_NB, S_T))
    e("s_cmp_ge_u32 s%d, %d" % (S_WAVE, NW))
    e("s_cbranch_scc1 L_helper")

    def srd(dst, ptr, nbytes):
        e("s_mov_b32 s%d, s%d" % (dst, ptr))
        e("s_and_b32 s%d, s%d, 0xffff" % (dst + 1, ptr + 1))
        e("s_mov_b32 s%d, %d" % (dst + 2, nbytes))
        e("s_mov_b32 s%d, 0x00020000" % (dst + 3))

    def lds_wait(tag, vz, vt, st, off, cond, spin, vaddr=None):
        e("s_mov_b32 s%d, 0x100000" % spin)
        e.label("L_w" + tag)
        e("ds_read_b32 v%d, v%d offset:%d" % (vt, vz if vaddr is None else vaddr, off))
        e("s_sub_u32 s%d, s%d, 1" % (spin, spin))
        e("s_cbranch_scc1 L_exit1")
        e("s_waitcnt lgkmcnt(0)")
        e("v_readfirstlane_b32 s%d, v%d" % (st, vt))
        if cond == "nz":
            e("s_cmp_eq_u32 s%d, 0" % st)
        else:
            e("s_cmp_lt_u32 s%d, %s" % (st, cond))
        e("s_cbranch_scc1 L_w" + tag)

    def gate(b, tag, check):
        if b not in GTS:
            return
        if check:
            e("s_cmp_eq_u32 s%d, %d" % (S_I, b % 48))
            e("s_cbranch_scc0 L_gx" + tag)
        e("s_memrealtime s[%d:%d]" % (S_T + 4, S_T + 5))
        lds_wait("g" + tag, V_Z, V_T0, S_T, L_GT + 4 * GTS.index(b), "nz", S_SPIN)
        e("s_and_b32 s%d, s%d, 0xffff" % (S_T, S_T))
        e("s_cbranch_scc0 L_gx" + tag)
        if P["stamp"] == 5:
            e("s_lshl_b32 s%d, s%d, 16" % (S_T + 1, S_T))
            e("s_add_u32 s%d, s%d, s%d" % (S_NBO, S_NBO, S_T + 1))
        e("s_add_u32 s%d, s%d, s%d" % (S_T, S_T, S_T + 4))
        e.label("L_gl" + tag)
        e("s_memrealtime s[%d:%d]" % (S_T + 4, S_T + 5))
        e("s_waitcnt lgkmcnt(0)")
        e("s_sub_u32 s%d, s%d, s%d" % (S_T + 4, S_T + 4, S_T))
        e("s_cmp_lt_i32 s%d, 0" % (S_T + 4))
        e("s_cbranch_scc1 L_gl" + tag)
        e.label("L_gx" + tag)

    def get_table(kind, tag):
        if tag == "tv":
            gate(48, tag, False)
        else:
            for b in ((16, 32) if kind == "K" else (64, 80)):
                gate(b, "%s%d" % (tag, b), True)
        e("s_lshr_b32 s%d, s%d, 4" % (S_T + 1, S_I))
        e("s_lshl_b32 s%d, s%d, 2" % (S_T + 2, S_T + 1))
        if P["stamp"] == 6:
            e("s_memrealtime s[%d:%d]" % (S_T + 4, S_T + 5))
            e("s_lshl_b32 s%d, s2, 2" % S_T)
            e("s_add_u32 s%d, s%d, s%d" % (S_T, S_T, S_WAVE))
            e("s_cmp_eq_u32 s%d, 400" % S_T)
            e("s_cselect_b64 exec, 1, 0")
            e("s_waitcnt lgkmcnt(0)")
            e("s_sub_u32 s%d, s%d, s%d" % (S_T + 4, S_T + 4, S_ST))
            e("v_mov_b32 v%d, s%d" % (V_T1, S_T + 4))
            e("buffer_store_dword v%d, off, s[%d:%d], s%d offset:%d" % (V_T1, S_WS, S_WS + 3, S_T + 2, 40 if kind == "K" else 52))
            e("s_mov_b64 exec, -1")
        e("v_mov_b32 v%d, s%d" % (V_T1, S_T + 2))
        if kind == "K":
            load_q(S_T + 1, False)
        lds_wait(tag, V_Z, V_T0, S_T, L_DEC if kind == "K" else L_GO, "nz", S_SPIN, V_T1)
        e("s_and_b32 s%d, s%d, 7" % (S_N, S_T))
        e("s_xor_b32 s%d, s%d, s%d" % (S_N, S_N, S_NB))
        e("s_bitcmp1_b32 s%d, 3" % S_T)
        e("s_cselect_b64 vcc, -1, 0")
        e("v_cndmask_b32 v%d, v%d, v%d, vcc" % (V_TM, V_T128, V_TMX))

    def load_q(ph, track):
        e("s_lshl_b32 s%d, s%d, 5" % (S_QOFF, ph))
        e("s_add_u32 s%d, s%d, s%d" % (S_QOFF, S_QOFF, S_G))
        e("s_mul_i32 s%d, s%d, 171" % (S_QOFF, S_QOFF))
        e("s_lshr_b32 s%d, s%d, 9" % (S_QOFF, S_QOFF))
        e("s_mul_i32 s%d, s%d, %d" % (S_QOFF, S_QOFF, DH * 2))
        for c in range(3):
            r = V_RAW + 2 * c
            s = "buffer_load_dwordx2 v[%d:%d], v%d, s[%d:%d], s%d offen offset:%d" % (r, r + 1, V_J8, S_Q, S_Q + 3, S_QOFF, c * 128)
            if track:
                e.vmem(s, "p")
            else:
                e(s)

    def tile_addr(kind):
        ch, a, b = S_T, S_T + 1, S_T + 2
        e("s_lshr_b32 s%d, s%d, 6" % (a, S_CI))
        e("s_lshl_b32 s%d, s%d, 11" % (a, a))
        e("s_and_b32 s%d, s%d, 63" % (ch, S_CI))
        e("s_add_u32 s%d, s%d, s%d" % (ch, ch, a))
        e("s_add_u32 s%d, s%d, s%d" % (ch, ch, S_HB))
        e("s_bfe_u32 s%d, s%d, 0x20003" % (a, ch))
        e("s_and_b32 s%d, s%d, 4" % (b, ch))
        e("s_or_b32 s%d, s%d, s%d" % (a, a, b))
        e("s_xor_b32 s%d, s%d, s%d" % (a, a, S_N))
        e("s_lshl_b32 s%d, s%d, 5" % (S_XB, ch))
        e("s_or_b32 s%d, s%d, s%d" % (S_XB, S_XB, a))
        e("s_lshl_b32 s%d, s%d, 4" % (S_XB, S_XB))
        e("s_or_b32 s%d, s%d, 1" % (S_XB, S_XB))
        if kind == "V":
            e("s_lshl_b32 s%d, s%d, 7" % (S_LB, S_CI))
        e("v_xor_b32 v%d, s%d, v%d" % (V_T0, S_XB, V_TM))
        e("v_mul_hi_u32 v%d, v%d, s%d" % (V_T0, V_T0, S_MAGIC))
        e("v_lshrrev_b32 v%d, 1, v%d" % (V_T0, V_T0))
        e("v_and_b32 v%d, 15, v%d" % (V_T1, V_T0))
        e("v_cmp_eq_u32 vcc, 5, v%d" % V_T1)
        e("v_mad_u32_u24 v%d, v%d, s%d, v%d" % (V_OFF, V_T0, S_768, V_J16))
        e("v_add_u32 v%d, %d, v%d" % (V_T1, 5 * ROWB, V_OFF))
        e("v_cndmask_b32 v%d, v%d, v%d, vcc" % (V_OFF6, V_BIG, V_T1))
        if kind == "K":
            e("v_lshrrev_b32 v%d, 6, v%d" % (V_T0, V_T0))
            e("v_mad_u32_u24 v%d, v%d, s%d, v%d" % (V_PO, V_T0, S_384, V_J8))
        else:
            e("v_add_u32 v%d, s%d, v%d" % (V_T0, S_LB, V_PB0))

    def issue_params(kind):
        if kind == "K":
            if P["xkp"] & 2:
                return
            for c in range(3):
                r = V_RAW + 6 + 2 * c
                e.vmem("buffer_load_dwordx2 v[%d:%d], v%d, s[%d:%d], 0 offen offset:%d%s" %
                       (r, r + 1, V_PO, S_KS, S_KS + 3, c * 128, " nt" if P["bnt"] & 4 else ""), "p")
            if P["xb"] & 2:
                for c in range(3):
                    r = NVGPR + 2 + 2 * c
                    e.vmem("buffer_load_dwordx2 v[%d:%d], v%d, s[%d:%d], 0 offen offset:%d" % (r, r + 1, V_PO, 76, 79, c * 128), "p")
        else:
            e("ds_read_b32 v%d, v%d" % (V_PVN, V_T0))

    def issue_group(k, kind, pol=pol):
        srdb = S_K if kind == "K" else S_V
        for l in range(GOFF[k], GOFF[k] + GR[k]):
            r = V_RING + l * 4
            if l < 15:
                vo, off = V_OFF, l * 256
            else:
                vo, off = V_OFF6, (l - 15) * 256
            e.vmem("buffer_load_dwordx4 v[%d:%d], v%d, s[%d:%d], 0 offen offset:%d%s" %
                   (r, r + 3, vo, srdb, srdb + 3, off, pol), "g%d" % k)

    def compute_w():
        e.wait_tag("p")
        for p in range(6):
            rq = V_RAW + p; rs = V_RAW + 6 + p
            i0 = 2 * p
            e("v_lshlrev_b32 v%d, 16, v%d" % (V_T0, rq))
            e("v_lshlrev_b32 v%d, 16, v%d" % (V_W + i0, rs))
            e("v_and_b32 v%d, 0xffff0000, v%d" % (V_T1, rq))
            e("v_and_b32 v%d, 0xffff0000, v%d" % (V_W + i0 + 1, rs))
            e("v_mul_f32 v%d, v%d, v%d" % (V_W + i0, V_W + i0, V_T0))
            e("v_mul_f32 v%d, v%d, v%d" % (V_W + i0 + 1, V_W + i0 + 1, V_T1))

    def advance(kind, to_v, tag):
        nkind = "V" if to_v else kind
        if to_v:
            e("s_mov_b32 s%d, s%d" % (S_CI, S_WAVE))
            e("s_mov_b32 s%d, 0" % S_I)
            get_table("V", "tv")
            ev = (1 << 16) | (1 << 32)
            if P["at"] and not BC:
                ev |= (1 << P["tc"]) | (1 << (P["tc"] + P["tg"])) | (1 << P["te"])
            e("s_mov_b32 s%d, %d" % (S_TD, NT - P["td"] if P["td"] else 255))
            set_masks(ev, CPV)
        else:
            e("s_add_u32 s%d, s%d, %d" % (S_CI, S_CI, NW))
            e("s_add_u32 s%d, s%d, 1" % (S_I, S_I))
            if tag:
                e("s_bitcmp1_b64 s[%d:%d], s%d" % (S_EV, S_EV + 1, S_I))
                sfx = tag if isinstance(tag, str) else ""
                e("s_cbranch_scc1 L_ev%s%s" % (kind, sfx))
                e.flush()
                e.label("L_evret%s%s" % (kind, sfx))
        if P["stamp"] == 4:
            e("s_memrealtime s[%d:%d]" % (S_DBG, S_DBG + 1))
            e("s_add_u32 s%d, s%d, 4" % (S_DBG + 2, S_DBG + 2))
            e("s_waitcnt lgkmcnt(0)")
            e("v_mov_b32 v%d, s%d" % (V_T2, S_DBG))
            e("s_mov_b64 exec, 1")
            e("buffer_store_dword v%d, off, s[%d:%d], s%d" % (V_T2, S_WS, S_WS + 3, S_DBG + 2))
            e("s_mov_b64 exec, -1")
        if P["stamp"] == 5:
            e("s_memrealtime s[%d:%d]" % (S_DBG, S_DBG + 1))
            e("s_add_u32 m0, m0, 1")
            e("s_waitcnt lgkmcnt(0)")
            e("v_writelane_b32 v%d, s%d, m0" % (NVGPR + (1 if kind == "V" else 0), S_DBG))
            if to_v:
                e("s_mov_b32 m0, -1")
        tile_addr(nkind)
        issue_params(nkind)

    def compute(k, kind):
        for l in range(GOFF[k], GOFF[k] + GR[k]):
            q, c = l // 3, l % 3
            base = V_RING + l * 4
            for r in range(4):
                e("v_cvt_f32_i32 v%d, v%d" % (base + r, base + r))
            if kind == "K":
                s = V_S + q
                for r in range(4):
                    if c == 0 and r == 0:
                        e("v_mul_f32 v%d, v%d, v%d" % (s, base, V_W))
                    else:
                        e("v_fmac_f32 v%d, v%d, v%d" % (s, base + r, V_W + 4 * c + r))
                if c == 2:
                    e.defer(["v_add_f32_dpp v%d, v%d, v%d row_ror:%d row_mask:0xf bank_mask:0xf" % (s, s, s, kk)
                             for kk in (8, 4, 2)] +
                            ["v_add_f32_dpp v%d, v%d, v%d row_ror:1 row_mask:0xf bank_mask:0x%x" %
                             (V_D + (q & 1), s, s, 1 << (q >> 1))])
            else:
                for r in range(4):
                    e("v_fmac_f32_dpp v%d, v%d, v%d row_newbcast:%d row_mask:0xf bank_mask:0xf" %
                      (V_ACC + 4 * c + r, V_PV, base + r, q))
        e.flush()

    def finish(kind, to_v):
        if kind == "K":
            e("s_mov_b64 exec, s[%d:%d]" % (S_STM, S_STM + 1))
            e("ds_write_b64 v%d, v[%d:%d]" % (V_LB0, V_D, V_D + 1))
            e("s_mov_b64 exec, -1")
            if not to_v:
                e("v_add_u32 v%d, 48, v%d" % (V_LB0, V_LB0))
                compute_w()
        if kind == "V" or to_v:
            e("s_waitcnt lgkmcnt(0)")
            e("v_mov_b32 v%d, v%d" % (V_PV, V_PVN))

    ELS = []

    def elect(k, kind, lo=0):
        if P["fc"] == 4 and kind == "V" and k == max(P["elk"], lo):
            tag = "L_el%d" % len(ELS)
            ELS.append(tag)
            e("s_cmp_eq_u32 s%d, %d" % (S_I, NT))
            e("s_cbranch_scc1 %s" % tag)
            e.lines.append(tag + "r:")

    def body(kind, to_v=False, first=False):
        nkind = "V" if to_v else kind
        for k in range(NG):
            ov = OV[k] if not first else 0
            if ov:
                i = e.vm.index("g%d" % k) + GR[k] - ov
                e("s_waitcnt vmcnt(%d)" % (len(e.vm) - i))
                e.vm = e.vm[i:]
            else:
                e.wait_tag("g%d" % k)
            if k + 1 < NG:
                if not first:
                    issue_group(k + 1, kind)
            else:
                issue_group(0, nkind)
            if ov:
                e("s_waitcnt vmcnt(%d)" % (len(e.vm) - ov))
                e.vm = e.vm[ov:]
            if k == NG - 2:
                advance(kind, to_v, not first)
            elect(k, kind, NG - 2)
            compute(k, kind)
        finish(kind, to_v)

    def body_deep(mode):
        if mode == 3:
            advance("V", False, False)
        for k in range(NG):
            i = e.vm.index("g%d" % k) + GR[k]
            e("s_waitcnt vmcnt(%d)" % (len(e.vm) - i))
            e.vm = e.vm[i:]
            if mode == 2:
                issue_group((k + 2) % NG, "V")
                if k == NG - 3:
                    advance("V", False, False)
            elect(k, "V")
            compute(k, "V")
            if mode == 3:
                issue_group(k, "V", "" if P["xkp"] & 256 else pol)
        finish("V", False)

    def body_boost(kind):
        for k in range(1, NG):
            issue_group(k, kind)
        e("s_sub_u32 s%d, s%d, 1" % (S_BO, S_BO))
        if P["stamp"] == 5:
            e("s_add_u32 s%d, s%d, 256" % (S_NBO, S_NBO))
        advance(kind, False, "B")
        for k in range(NG):
            e.wait_tag("g%d" % k)
            if k == NG - 1 and not P["be"]:
                issue_group(0, kind)
            elect(k, kind)
            compute(k, kind)
            if k == 0 and P["be"]:
                issue_group(0, kind)
        finish(kind, False)

    def lds_inc(off, vz, vt):
        e("v_mov_b32 v%d, 1" % vt)
        e("s_mov_b64 exec, 1")
        e("ds_add_u32 v%d, v%d offset:%d" % (vz, vt, off))
        e("s_mov_b64 exec, -1")

    if P["prio"]:
        e("s_setprio %d" % P["prio"])
    e("v_lshrrev_b32 v%d, 4, v%d" % (V_T, V_T1))
    e("v_and_b32 v%d, 15, v%d" % (V_T2, V_T1))
    e("v_lshlrev_b32 v%d, 4, v%d" % (V_J16, V_T2))
    e("v_lshlrev_b32 v%d, 3, v%d" % (V_J8, V_T2))
    e("v_lshlrev_b32 v%d, 7, v%d" % (V_T128, V_T))
    e("v_and_b32 v%d, 0x70, v0" % V_TMX)
    e("v_or_b32 v%d, v%d, v%d" % (V_TMX, V_TMX, V_T128))
    e("v_mov_b32 v%d, v%d" % (V_TM, V_TMX))
    if P["h4"]:
        e("v_and_b32 v%d, 0x%x, v%d" % (V_T128, 0xffffff8f | (P["h4"] << 4), V_TMX))
    e("s_mov_b32 s%d, %d" % (S_768, ROWB))
    e("s_mov_b32 s%d, %d" % (S_384, DH * 2))
    e("s_mov_b32 s%d, 0xaaaaaaab" % S_MAGIC)
    e("v_mov_b32 v%d, 0xc0000000" % V_BIG)
    e("s_lshl_b32 s%d, s%d, 6" % (S_HB, S_G))
    e("s_mov_b32 s%d, s%d" % (S_N, S_NB))
    e("s_mov_b32 s%d, s%d" % (S_CI, S_WAVE))
    tile_addr("K")
    SS = P["ss"]
    EB = P["eb"]
    if SS:
        e("s_memrealtime s[84:85]")
    if EB == 3:
        e("s_barrier")
    e("s_waitcnt lgkmcnt(0)")
    if SS:
        e("s_memrealtime s[86:87]")
    if EB == 2:
        e("s_barrier")
    e("s_mov_b32 s%d, 0" % S_I)
    if P["xb"] & 2:
        srd(76, 72, H * NGRP * DH * 2)
    if P["pfi"]:
        srd(S_Q, 64, H * DH * 2)
        load_q(S_I, True)
        srd(S_KS, 70, H * NGRP * DH * 2)
        issue_params("K")
    srd(S_K, 66, H * HEADB)
    issue_group(0, "K")
    if EB == 1:
        e("s_barrier")
    if not P["pfi"]:
        srd(S_Q, 64, H * DH * 2)
        load_q(S_I, True)
        srd(S_KS, 70, H * NGRP * DH * 2)
        issue_params("K")
    if P["ds"]:
        for k in range(1, NG):
            issue_group(k, "K")
    if SS:
        e("s_memrealtime s[88:89]")
    srd(S_V, 68, H * HEADB)
    if P["stamp"] == 6:
        srd(S_WS, 80, 256)
    elif P["stamp"]:
        srd(S_WS, 82, 0x8000000)
    if P["stamp"] == 5:
        e("s_mov_b32 m0, -1")
    if P["stamp"] in (4, 5):
        e("s_mul_i32 s%d, s2, %d" % (S_DBG + 2, NW))
        e("s_add_u32 s%d, s%d, s%d" % (S_DBG + 2, S_DBG + 2, S_WAVE))
        e("s_lshl_b32 s%d, s%d, 9" % (S_DBG + 2, S_DBG + 2))
        e("s_add_u32 s%d, s%d, 0x4010000" % (S_DBG + 2, S_DBG + 2))
    e("v_lshlrev_b32 v%d, 5, v%d" % (V_T1, V_T))
    e("v_bfe_u32 v%d, v0, 4, 3" % V_LB0)
    e("v_mul_u32_u24 v%d, s%d, v%d" % (V_LB0, S_768, V_LB0))
    e("v_lshl_add_u32 v%d, v%d, 1, v%d" % (V_LB0, V_T2, V_LB0))
    e("s_lshr_b32 s%d, s%d, 1" % (S_T, S_WAVE))
    e("s_mul_i32 s%d, s%d, 24" % (S_T, S_T))
    e("s_add_u32 s%d, s%d, %d" % (S_T, S_T, L_LG))
    e("v_add_u32 v%d, s%d, v%d" % (V_LB0, S_T, V_LB0))
    e("v_and_b32 v%d, 7, v%d" % (V_PB0, V_T2))
    e("v_lshl_add_u32 v%d, v%d, 2, v%d" % (V_PB0, V_PB0, V_T1))
    e("v_add_u32 v%d, %d, v%d" % (V_PB0, L_PV, V_PB0))
    e("v_lshlrev_b32 v%d, 2, v%d" % (V_DO, V_T))
    e("v_add_u32 v%d, v%d, v%d" % (V_DO, V_J16, V_DO))
    e("s_mul_i32 s%d, s%d, %d" % (S_T, S_WAVE, ROWB))
    e("s_add_u32 s%d, s%d, %d" % (S_T, S_T, L_ACC))
    e("v_add_u32 v%d, s%d, v%d" % (V_DO, S_T, V_DO))
    e("v_mov_b32 v%d, 0" % V_Z)
    e("v_mov_b32 v%d, 0" % V_D)
    e("v_mov_b32 v%d, 0" % (V_D + 1))
    e("s_mov_b32 s%d, 0x01110111" % S_STM)
    e("s_mov_b32 s%d, 0x01110111" % (S_STM + 1))
    ev = (1 << TRG1) | (1 << N0) | (3 << 16) | (3 << 32) | (((1 << TA) | (1 << TB)) * 0x100010001)
    set_masks(ev, CPK)
    if BC:
        e("s_mov_b32 s%d, 0" % S_BO)
        e("s_mov_b32 s%d, 0" % S_NBO)
        e("s_mov_b32 s%d, 0" % S_LDC)
        e("s_mov_b32 s%d, %d" % (S_CPA, L_TM))
    for i in range(12):
        e("v_mov_b32 v%d, 0" % (V_ACC + i))
    if SS:
        e("s_memrealtime s[90:91]")
    if not EB:
        e("s_barrier")
    if SS:
        e("s_memrealtime s[92:93]")
        e("s_waitcnt vmcnt(23)")
        e("s_memrealtime s[94:95]")
        e("s_waitcnt vmcnt(18)")
        e("s_memrealtime s[96:97]")
    compute_w()
    if SS:
        e("s_memrealtime s[98:99]")
        e("s_waitcnt lgkmcnt(0)")
        for k in range(8):
            e("v_writelane_b32 v%d, s%d, %d" % (NVGPR + 1, 84 + 2 * k, 48 + k))
    steady = ["g0"] * GR[0]
    if P["ds"]:
        body("K", first=True)
    e.vm = list(steady)
    e.lines.append(".p2align 6")
    e.label("L_kloop")
    body("K")
    assert e.vm == steady, (e.vm, steady)
    if BC:
        e.label("L_kchk")
        e("s_cmp_lg_u32 s%d, 0" % S_BO)
        e("s_cbranch_scc1 L_kboost")
        e.label("L_kchk2")
    e("s_cmp_lg_u32 s%d, %d" % (S_I, NT - 1))
    e("s_cbranch_scc1 L_kloop")
    body("K", True)
    lds_inc(L_CF + 8, V_Z, V_T1)
    if P["stamp"] == 1:
        e("s_memrealtime s[%d:%d]" % (S_DBG, S_DBG + 1))
    e.lines.append(".p2align 6")
    e.label("L_vloop")
    body("V")
    assert e.vm == steady, (e.vm, steady)
    if BC:
        e.label("L_vchk")
    if P["td"] or P["at"]:
        e("s_cmp_eq_u32 s%d, s%d" % (S_I, S_TD))
        e("s_cbranch_scc1 L_deep")
    if BC:
        e("s_cmp_lg_u32 s%d, 0" % S_BO)
        e("s_cbranch_scc1 L_vboost")
    e("s_and_b32 s%d, s%d, 15" % (S_T, S_I))
    e("s_cbranch_scc1 L_vloop")
    e.label("L_vend")
    for c in range(3):
        a = V_ACC + 4 * c
        e("v_permlane32_swap_b32 v%d, v%d" % (a, a + 2))
        e("v_permlane32_swap_b32 v%d, v%d" % (a + 1, a + 3))
    for c in range(3):
        a = V_ACC + 4 * c
        e("v_add_f32 v%d, v%d, v%d" % (a, a, a + 2))
        e("v_add_f32 v%d, v%d, v%d" % (a + 1, a + 1, a + 3))
    for c in range(3):
        a = V_ACC + 4 * c
        e("v_permlane16_swap_b32 v%d, v%d" % (a, a + 1))
    e("s_lshr_b32 s%d, s%d, 2" % (S_T, S_I))
    e("v_mov_b32 v%d, s%d" % (V_T0, S_T))
    for c in range(3):
        a = V_ACC + 4 * c
        e("v_add_f32 v%d, v%d, v%d" % (a, a, a + 1))
        e("ds_write_b32 v%d, v%d offset:%d" % (V_DO, a, c * 256))
    lds_inc(L_CA - 4, V_T0, V_T1)
    e("v_add_u32 v%d, %d, v%d" % (V_DO, NW * ROWB, V_DO))
    for i in range(12):
        e("v_mov_b32 v%d, 0" % (V_ACC + i))
    if BC:
        e("s_cmp_lg_u32 s%d, 0" % S_BO)
        e("s_cbranch_scc1 L_vboost2")
        e.label("L_vend2")
    e("s_cmp_lg_u32 s%d, %d" % (S_I, NT))
    e("s_cbranch_scc1 L_vloop")
    if P["stamp"] == 5 and BC:
        e("s_or_b32 s%d, s%d, s%d" % (S_LDC, S_LDC, S_NBO))
    if P["stamp"] == 6:
        e("s_memrealtime s[%d:%d]" % (S_T + 2, S_T + 3))
        e("s_not_b32 s%d, s%d" % (S_T, S_ST))
        e("v_mov_b32 v%d, s%d" % (V_ACC, S_T))
        e("s_waitcnt lgkmcnt(0)")
        e("v_mov_b32 v%d, s%d" % (V_ACC + 1, S_T + 2))
        e("s_mov_b64 exec, 1")
        e("s_cmp_lg_u32 s%d, 0" % S_WAVE)
        e("s_cbranch_scc1 L_exit1")
        e("buffer_atomic_umax v%d, off, s[%d:%d], 0 offset:32" % (V_ACC, S_WS, S_WS + 3))
        e("buffer_atomic_umax v%d, off, s[%d:%d], 0 offset:36" % (V_ACC + 1, S_WS, S_WS + 3))
    elif P["stamp"]:
        e("s_memrealtime s[%d:%d]" % (S_T + 2, S_T + 3))
        e("s_getreg_b32 s%d, hwreg(HW_REG_XCC_ID)" % (S_T + 4))
        e("s_waitcnt lgkmcnt(0)")
        e("v_mov_b32 v%d, s%d" % (V_ACC + 0, S_ST))
        e("v_mov_b32 v%d, s%d" % (V_ACC + 1, S_T + 2))
        e("v_mov_b32 v%d, s%d" % (V_ACC + 2, S_T + 4))
        e("v_mov_b32 v%d, s%d" % (V_ACC + 3, S_LDC if P["stamp"] == 5 else S_DBG))
        e("s_mul_i32 s%d, s2, %d" % (S_T, NW))
        e("s_add_u32 s%d, s%d, s%d" % (S_T, S_T, S_WAVE))
        e("s_lshl_b32 s%d, s%d, 4" % (S_T, S_T))
        e("s_add_u32 s%d, s%d, 0x4000000" % (S_T, S_T))
        e("buffer_store_dwordx4 v[%d:%d], v%d, s[%d:%d], s%d offen" % (V_ACC, V_ACC + 3, V_Z, S_WS, S_WS + 3, S_T))
        if P["stamp"] == 5:
            e("v_and_b32 v%d, 63, v0" % V_T0)
            e("v_lshlrev_b32 v%d, 2, v%d" % (V_T0, V_T0))
            e("s_mov_b32 exec_hi, 0xffff")
            e("buffer_store_dword v%d, v%d, s[%d:%d], s%d offen offset:4" % (NVGPR, V_T0, S_WS, S_WS + 3, S_DBG + 2))
            e("s_mov_b32 exec_hi, -1")
            e("buffer_store_dword v%d, v%d, s[%d:%d], s%d offen offset:196" % (NVGPR + 1, V_T0, S_WS, S_WS + 3, S_DBG + 2))
    e.lines.append("L_exit1:")
    e("s_endpgm")

    if P["td"] or P["at"]:
        e.label("L_deep")
        e.vm = list(steady)
        for k in range(1, P["tdm"] if NG == 3 else NG):
            issue_group(k, "V")
        deep = list(e.vm)
        e.lines.append(".p2align 6")
        e.label("L_dloop")
        body_deep(P["tdm"])
        assert e.vm == deep, (e.vm, deep)
        e("s_cmp_lg_u32 s%d, %d" % (S_I, NT))
        e("s_cbranch_scc1 L_dloop")
        e("s_branch L_vend")

    if BC:
        e.label("L_kboost")
        e("s_cmp_eq_u32 s%d, %d" % (S_I, NT - 1))
        e("s_cbranch_scc1 L_kchk2")
        e.vm = list(steady)
        body_boost("K")
        assert e.vm == steady, (e.vm, steady)
        e("s_branch L_kchk")
        e.label("L_vboost")
        e("s_and_b32 s%d, s%d, 15" % (S_T, S_I))
        e("s_cbranch_scc0 L_vend")
        e.label("L_vboost2")
        e("s_cmp_eq_u32 s%d, %d" % (S_I, NT))
        e("s_cbranch_scc1 L_vend2")
        body_boost("V")
        assert e.vm == steady, (e.vm, steady)
        e("s_branch L_vchk")

    for tag in ELS:
        e.label(tag)
        lds_inc(L_EL, V_Z, V_T1)
        e("s_branch %sr" % tag)

    def pace_events(kind, x):
        e("s_bitcmp1_b64 s[%d:%d], s%d" % (S_MP, S_MP + 1, S_I))
        e("s_cbranch_scc0 L_pa%s%s" % (kind, x))
        e("s_memrealtime s[%d:%d]" % (S_TW, S_TW + 1))
        e("s_mov_b32 s%d, s%d" % (S_BP, S_BO))
        lds_inc(L_TC, V_Z, V_T1)
        e.label("L_pa%s%s" % (kind, x))
        e("s_bitcmp1_b64 s[%d:%d], s%d" % (S_MG, S_MG + 1, S_I))
        e("s_cbranch_scc0 L_pb%s%s" % (kind, x))
        lds_inc(L_TC, V_Z, V_T1)
        e.label("L_pb%s%s" % (kind, x))
        e("s_bitcmp1_b64 s[%d:%d], s%d" % (S_MR, S_MR + 1, S_I))
        e("s_cbranch_scc0 L_pc%s%s" % (kind, x))
        e("v_mov_b32 v%d, s%d" % (V_T1, S_CPA))
        e("ds_read_b32 v%d, v%d" % (V_T0, V_T1))
        lds_inc(L_TC, V_Z, V_T1)
        e("s_add_u32 s%d, s%d, 4" % (S_CPA, S_CPA))
        e("s_waitcnt lgkmcnt(0)")
        e("v_readfirstlane_b32 s%d, v%d" % (S_T, V_T0))
        e("s_cmp_eq_u32 s%d, 0" % S_T)
        e("s_cbranch_scc1 L_pc%s%s" % (kind, x))
        e("s_sub_u32 s%d, s%d, s%d" % (S_T, S_TW, S_T))
        e("s_max_i32 s%d, s%d, -4096" % (S_T, S_T))
        e("s_min_i32 s%d, s%d, 4096" % (S_T, S_T))
        if kind == "V":
            e("s_cmp_eq_u32 s%d, %d" % (S_I, P["te"]))
            e("s_cbranch_scc0 L_pd%s" % x)
            e("s_mul_i32 s%d, s%d, %d" % (S_T, S_T, P["ka"]))
            e("s_add_u32 s%d, s%d, %d" % (S_T, S_T, P["kb"]))
            e("s_ashr_i32 s%d, s%d, 10" % (S_T, S_T))
            e("s_max_i32 s%d, s%d, %d" % (S_T, S_T, P["dmin"]))
            e("s_min_i32 s%d, s%d, %d" % (S_T, S_T, min(P["dmax"], NT - P["te"])))
            e("s_sub_u32 s%d, %d, s%d" % (S_TD, NT, S_T))
            e("s_cmp_eq_u32 s%d, %d" % (S_TD, NT))
            e("s_cselect_b32 s%d, 255, s%d" % (S_TD, S_TD))
            e("s_mov_b32 s%d, 0" % S_BO)
            if P["stamp"] == 5:
                e("s_mov_b32 s%d, s%d" % (S_LDC, S_TD))
            e("s_branch L_pc%s%s" % (kind, x))
            e.label("L_pd%s" % x)
        e("s_mul_i32 s%d, s%d, %d" % (S_T, S_T, P["ka2"]))
        e("s_add_u32 s%d, s%d, %d" % (S_T, S_T, P["kb2"]))
        e("s_ashr_i32 s%d, s%d, 10" % (S_T, S_T))
        e("s_sub_u32 s%d, s%d, s%d" % (S_T, S_T, S_BP))
        e("s_add_u32 s%d, s%d, s%d" % (S_T, S_T, S_BO))
        e("s_max_i32 s%d, s%d, 0" % (S_T, S_T))
        e("s_min_i32 s%d, s%d, %d" % (S_BO, S_T, P["bmax"]))
        e.label("L_pc%s%s" % (kind, x))
        e("s_bitcmp1_b64 s[%d:%d], s%d" % (S_MO, S_MO + 1, S_I))
        e("s_cbranch_scc0 L_evret%s%s" % (kind, x))

    for x in (("", "B") if BC else ("",)):
        e.label("L_evK" + x)
        if BC:
            pace_events("K", x)
        e("s_and_b32 s%d, s%d, 15" % (S_T, S_I))
        e("s_cbranch_scc0 L_evK2" + x)
        e("s_cmp_eq_u32 s%d, %d" % (S_I, N0))
        e("s_cbranch_scc1 L_evK2" + x)
        e("s_lshr_b32 s%d, s%d, 2" % (S_T + 1, S_I))
        e("s_andn2_b32 s%d, s%d, 3" % (S_T + 1, S_T + 1))
        e("s_add_u32 s%d, s%d, %d" % (S_T + 1, S_T + 1, L_CF - 4))
        e("s_cmp_eq_u32 s%d, 1" % S_T)
        e("s_cselect_b32 s%d, s%d, %d" % (S_T, S_T + 1, L_EV + 4))
        e("s_cselect_b32 s%d, %d, 0" % (S_T + 1, PHI - 768))
        e("v_add_u32 v%d, s%d, v%d" % (V_LB0, S_T + 1, V_LB0))
        e("s_cmp_eq_u32 s%d, %d" % (S_I, TRG1))
        e("s_cselect_b32 s%d, %d, s%d" % (S_T, L_EV, S_T))
        e("v_mov_b32 v%d, s%d" % (V_T0, S_T))
        lds_inc(0, V_T0, V_T1)
        e("s_branch L_evretK" + x)
        e.label("L_evK2" + x)
        if P["stamp"] == 2:
            e("s_cmp_eq_u32 s%d, %d" % (S_I, N0))
            e("s_cbranch_scc0 L_ns2")
            e("s_memrealtime s[%d:%d]" % (S_DBG, S_DBG + 1))
            e.label("L_ns2")
        get_table("K", "tk" + x)
        if P["stamp"] == 3:
            e("s_cmp_eq_u32 s%d, %d" % (S_I, N0))
            e("s_cbranch_scc0 L_evretK")
            e("s_memrealtime s[%d:%d]" % (S_DBG, S_DBG + 1))
        e("s_branch L_evretK" + x)
        e.label("L_evV" + x)
        if BC:
            pace_events("V", x)
        elif P["at"]:
            e("s_and_b32 s%d, s%d, 15" % (S_T, S_I))
            e("s_cbranch_scc0 L_evV2")
            e("s_cmp_eq_u32 s%d, %d" % (S_I, P["te"]))
            e("s_cbranch_scc1 L_evV3")
            lds_inc(L_TC, V_Z, V_T1)
            e("s_branch L_evretV")
            e.label("L_evV3")
            e("ds_read_b32 v%d, v%d offset:%d" % (V_T0, V_Z, L_TD))
            e("s_waitcnt lgkmcnt(0)")
            e("v_readfirstlane_b32 s%d, v%d" % (S_T, V_T0))
            e("s_cmp_eq_u32 s%d, 0" % S_T)
            e("s_cselect_b32 s%d, s%d, s%d" % (S_TD, S_TD, S_T))
            if P["stamp"] == 5:
                e("s_mov_b32 s%d, s%d" % (S_LDC, S_T))
            e("s_branch L_evretV")
            e.label("L_evV2")
        get_table("V", "tv2" + x)
        e("s_branch L_evretV" + x)

    PG = S_G; PM = S_M
    PNB = 5; PP = 6; PBK = 7
    PB = 8; PWS = 12; PDB = 16
    PO = 20; PFL = 21; PBASE = 22; PPR = 90
    PD = 24
    POF = 32
    PT = 40
    PMN = 44; PJ = 45; PRN = 46; PNR = 47
    PE = 48
    PRB = 56; PACC = 58; PGL = 59; PSP = 60; PPH = 61; PSG = 62; PG0 = 63
    PDC = 84
    PS2 = 92; PS3 = 96
    HL = 1; HZ = 2; HW = 3; HA = 4; HB_ = 5; HC = 6; HD = 7; HK = 8; HV = 9; HE = 10; HF = 11; HR = 12; HG = 13
    HN = 14; HT2 = 15
    HX = 16
    BIAS = 65536
    e.wr = {}; e.tr = {}
    e.label("L_helper")
    e("s_sub_u32 s%d, s%d, %d" % (PP, S_WAVE, NW))
    e("s_mov_b32 s%d, s%d" % (PNB, S_NB))
    e("v_mov_b32 v%d, v%d" % (HL, V_T1))
    e("v_mov_b32 v%d, 0" % HZ)
    e("s_mul_i32 s%d, s%d, %d" % (PGL, PG, 8 * FSTR))
    e("s_add_u32 s%d, s%d, %d" % (PGL, PGL, WS_G))
    if EB:
        e("s_cmp_lg_u32 s%d, 0" % PP)
        e("s_cbranch_scc1 L_hbar")
        e("v_lshlrev_b32 v%d, 2, v%d" % (HB_, HL))
        e("ds_write_b32 v%d, v%d" % (HB_, HZ))
        e("s_waitcnt lgkmcnt(0)")
        e.label("L_hbar")
        e("s_barrier")
    if BC:
        e("s_cmp_eq_u32 s%d, 3" % PP)
        e("s_cbranch_scc1 L_h3")
    e("s_mul_i32 s%d, s%d, 10" % (PE, PP))
    e("s_sub_u32 s%d, s%d, 7" % (PE, PE))
    e("s_cmp_lt_i32 s%d, s%d" % (PG, PE))
    e("s_cselect_b32 s%d, 1, 0" % PPR)
    e("s_cbranch_scc0 L_noprobe1")
    e("s_max_u32 s%d, s%d, 1" % (PBK, PG))
    e("s_sub_u32 s%d, s%d, 1" % (PBK, PBK))
    e("s_lshr_b32 s%d, s%d, 1" % (PBK, PBK))
    e("s_lshl_b32 s%d, s%d, 1" % (PE + 1, PG))
    e("s_add_u32 s%d, s%d, s%d" % (PE + 1, PE + 1, PP))
    e("s_sub_u32 s%d, s%d, 1" % (PE + 1, PE + 1))
    e("s_bitcmp1_b32 s%d, 0" % PG)
    e("s_cselect_b32 s%d, 1, 4" % PE)
    e("s_cmp_eq_u32 s%d, 0" % PBK)
    e("s_cselect_b32 s%d, s%d, s%d" % (PE + 1, PE + 1, PE))
    e("s_and_b32 s%d, s%d, 1" % (PE, PE + 1))
    e("s_mul_i32 s%d, s%d, 20" % (PO, PE + 1))
    e("s_add_u32 s%d, s%d, s%d" % (PO, PO, PE))
    e("s_add_u32 s%d, s%d, 2" % (PO, PO))
    e("s_lshl_b32 s%d, s%d, 21" % (PO, PO))
    e("s_xor_b32 s%d, s%d, s%d" % (PFL, PM, PP))
    e("s_and_b32 s%d, s%d, 1" % (PFL, PFL))
    e("s_lshr_b32 s%d, s%d, 2" % (PE + 1, PM))
    e("s_xor_b32 s%d, s%d, s%d" % (PE, PE, PE + 1))
    e("s_xor_b32 s%d, s%d, s%d" % (PE, PE, PFL))
    e("s_lshl_b32 s%d, s%d, 13" % (PE, PE))
    e("s_lshl_b32 s%d, s%d, 14" % (PE + 1, PP))
    e("s_and_b32 s%d, s%d, 0x4000" % (PE + 1, PE + 1))
    e("s_or_b32 s%d, s%d, s%d" % (PE, PE, PE + 1))
    for u in range(8):
        e("s_xor_b32 s%d, s%d, 0x%x" % (POF + u, PE, ((u & 1) << 13) | (((u >> 1) & 1) << 12) | ((u >> 2) << 14)))
    e("v_and_b32 v%d, 7, v%d" % (HW, HL))
    e("v_lshlrev_b32 v%d, 12, v%d" % (HW, HW))
    e("s_lshl_b32 s%d, s%d, 8" % (PE, PM))
    e("v_add_u32 v%d, s%d, v%d" % (HW, PE, HW))
    e("s_mov_b32 s%d, %d" % (PB + 2, H * HEADB))
    e("s_mov_b32 s%d, 0x00020000" % (PB + 3))
    e("s_cmp_ge_u32 s%d, 3" % PBK)
    e("s_cselect_b32 s%d, 3, 0" % PE)
    e("s_sub_u32 s%d, s%d, s%d" % (PE, PBK, PE))
    e("s_lshl_b32 s%d, s%d, 28" % (PE, PE))
    e("s_add_u32 s%d, s%d, s%d" % (PO, PO, PE))
    e("s_cmp_ge_u32 s%d, 3" % PBK)
    e("s_waitcnt lgkmcnt(0)")
    e("s_cselect_b32 s%d, s68, s66" % PB)
    e("s_cselect_b32 s%d, s69, s67" % (PBASE + 1))
    e("s_and_b32 s%d, s%d, 0xffff" % (PB + 1, PBASE + 1))
    e("s_mov_b64 exec, 0xff")
    e("buffer_load_dword v%d, v%d, s[%d:%d], s%d offen" % (HA, HW, PB, PB + 3, PO))
    e("s_mov_b64 exec, -1")
    e("s_add_u32 s%d, s%d, s%d" % (PBASE, PB, PO))
    e("s_addc_u32 s%d, s%d, 0" % (PBASE + 1, PBASE + 1))
    e("s_lshl_b32 s%d, s%d, 8" % (PE, PM))
    e("s_add_u32 s%d, s%d, 128" % (PE, PE))
    e("s_load_dword s%d, s[%d:%d], s%d" % (PJ, PBASE, PBASE + 1, PE))
    e.label("L_noprobe1")
    e("s_waitcnt lgkmcnt(0)")
    srd(PWS, 82, WS_SIZE)
    if P["wo"]:
        e("s_add_u32 s%d, s%d, %d" % (PWS, PWS, P["wo"] << 20))
        e("s_addc_u32 s%d, s%d, 0" % (PWS + 1, PWS + 1))
    srd(PDB, 80, 256)
    if not EB:
        e("s_cmp_lg_u32 s%d, 0" % PP)
        e("s_cbranch_scc1 L_hbar")
        e("v_lshlrev_b32 v%d, 2, v%d" % (HB_, HL))
        e("ds_write_b32 v%d, v%d" % (HB_, HZ))
        e("s_waitcnt lgkmcnt(0)")
        e.label("L_hbar")
        e("s_barrier")
    if P["hs"]:
        e("s_mov_b32 s%d, 0" % (PD + 4))
    e("s_cmp_eq_u32 s%d, 0" % PPR)
    e("s_cbranch_scc1 L_role")
    e("s_mov_b32 s%d, 1" % PRN)
    e("s_mov_b32 s%d, 0" % PACC)
    e("s_cmp_eq_u32 s%d, 0" % PBK)
    e("s_cselect_b32 s%d, %d, %d" % (PNR, P["nr0"], NR))
    e("s_waitcnt vmcnt(0)")
    e.label("L_round")
    e("s_add_u32 s%d, s%d, s%d" % (PE, PM, PRN))
    e("s_and_b32 s%d, s%d, 7" % (PE, PE))
    e("s_lshl_b32 s%d, s%d, 8" % (PE, PE))
    e("s_add_u32 s%d, s%d, s%d" % (PRB, PBASE, PE))
    e("s_addc_u32 s%d, s%d, 0" % (PRB + 1, PBASE + 1))
    e("s_mov_b32 s%d, -1" % PMN)
    e("s_memtime s[%d:%d]" % (PT, PT + 1))
    e("s_waitcnt lgkmcnt(0)")
    for u in range(8):
        a = PT + 2 * (u & 1); b = PT + 2 * ((u + 1) & 1)
        e("s_load_dword s%d, s[%d:%d], s%d" % (PJ, PRB, PRB + 1, POF + u))
        e("s_waitcnt lgkmcnt(0)")
        e("s_memtime s[%d:%d]" % (b, b + 1))
        e("s_waitcnt lgkmcnt(0)")
        e("s_sub_u32 s%d, s%d, s%d" % (PD + u, b, a))
        if u + 1 == P["ns0"] and u < 7:
            for k in range(u + 1, 8):
                e("s_mov_b32 s%d, -1" % (PD + k))
            e("s_cmp_eq_u32 s%d, 0" % PBK)
            e("s_cbranch_scc1 L_few")
    e.label("L_few")
    for u in range(8):
        e("s_min_u32 s%d, s%d, %d" % (PD + u, PD + u, P["clip"]))
        e("s_min_u32 s%d, s%d, s%d" % (PMN, PMN, PD + u))
    e("s_cmp_lt_u32 s%d, %d" % (PMN, P["l2t"]))
    e("s_cbranch_scc1 L_skip")
    for u in range(8):
        e("s_%s_u32 s%d, s%d, s%d" % ("add" if u & 1 else "sub", PACC, PACC, PD + u))
    e.label("L_skip")
    e("s_add_u32 s%d, s%d, 1" % (PRN, PRN))
    e("s_cmp_le_u32 s%d, s%d" % (PRN, PNR))
    e("s_cbranch_scc1 L_round")
    e("s_sub_u32 s%d, 0, s%d" % (PE, PACC))
    e("s_cmp_eq_u32 s%d, 0" % PFL)
    e("s_cselect_b32 s%d, s%d, s%d" % (PACC, PACC, PE))
    e("s_add_u32 s%d, s%d, 0x%x" % (PACC, PACC, BIAS + (1 << 24)))
    e("v_mov_b32 v%d, s%d" % (HA, PACC))
    e("s_mov_b64 exec, 1")
    e("s_lshl_b32 s%d, s%d, 2" % (PE, PBK))
    e("s_add_u32 s%d, s%d, 124" % (PE, PE))
    e("s_cmp_eq_u32 s%d, 0" % PBK)
    e("s_cbranch_scc0 L_post")
    e("ds_add_rtn_u32 v%d, v%d, v%d offset:%d" % (HB_, HZ, HA, L_PC))
    e("s_mov_b32 s%d, 0" % PE)
    e("s_waitcnt lgkmcnt(0)")
    e("v_add_u32 v%d, v%d, v%d" % (HA, HA, HB_))
    e("v_cmp_ne_u32 vcc, 0, v%d" % HB_)
    e("s_and_b64 exec, exec, vcc")
    if P["vw"]:
        e("buffer_atomic_add v%d, off, s[%d:%d], s%d" % (HA, PDB, PDB + 3, PE))
        e("s_branch L_posted")
        e.label("L_post")
        lds_wait("vw", HZ, HE, PE, L_DEC, "nz", PSP)
        e("s_mul_i32 s%d, s%d, %d" % (PE, PG, FSTR))
        e("s_add_u32 s%d, s%d, %d" % (PE, PE, WS_G + 253 * FSTR))
        e("buffer_atomic_add v%d, off, s[%d:%d], s%d" % (HA, PWS, PWS + 3, PE))
        e.label("L_posted")
    else:
        e.label("L_post")
        e("buffer_atomic_add v%d, off, s[%d:%d], s%d" % (HA, PDB, PDB + 3, PE))
    e("s_mov_b64 exec, -1")
    if P["hs"]:
        e("s_memrealtime s[%d:%d]" % (PD + 4, PD + 5))
    e.label("L_role")
    e("s_cmp_eq_u32 s%d, 0" % PP)
    e("s_cbranch_scc1 L_h0")
    e("s_cmp_eq_u32 s%d, 2" % PP)
    e("s_cbranch_scc1 L_h2")

    def wave_reduce(regs, op, tmp):
        for kk in (8, 4, 2, 1):
            for r in regs:
                e("%s_dpp v%d, v%d, v%d row_ror:%d row_mask:0xf bank_mask:0xf" % (op, r, r, r, kk))
        for sw in ("v_permlane32_swap_b32", "v_permlane16_swap_b32"):
            for r, t in zip(regs, tmp):
                e("v_mov_b32 v%d, v%d" % (t, r))
            for r, t in zip(regs, tmp):
                e("%s v%d, v%d" % (sw, r, t))
            for r, t in zip(regs, tmp):
                e("%s v%d, v%d, v%d" % (op, r, r, t))

    def decode(tag, nl, off, cnt, rounds, dst, b0):
        vw = b0 and P["vw"]
        lds_wait("e" + tag, HZ, HE, PE, L_EV + (4 if b0 else 0), "nz" if b0 else str(P["tw"]), PSP)
        if vw:
            e("v_mul_u32_u24 v%d, %d, v%d" % (HD, FSTR, HL))
            e("s_mov_b32 s%d, %d" % (PE, WS_G + 256 * FSTR))
            e("v_lshrrev_b32 v%d, 1, v%d" % (HB_, HB_))
        e("s_mov_b64 exec, 0x%x" % ((1 << (2 * nl if vw else nl)) - 1))
        e("s_mov_b32 s%d, 0x40000" % PSP)
        if P["hs"] and not b0:
            e("s_memrealtime s[%d:%d]" % (PD, PD + 1))
        if P["l2p"] and not b0:
            e("buffer_load_dword v%d, v%d, s[%d:%d], 0 offen offset:%d" % (HA, HB_, PDB, PDB + 3, off))
            e("s_branch L_pollw" + tag)
        if not P["xkp"] & 4:
            e.label("L_poll" + tag)
            if vw:
                e("buffer_load_dword v%d, v%d, s[%d:%d], s%d offen sc1" % (HA, HD, PWS, PWS + 3, PE))
            else:
                e("buffer_load_dword v%d, v%d, s[%d:%d], 0 offen offset:%d sc1" % (HA, HB_, PDB, PDB + 3, off))
            e("s_sub_u32 s%d, s%d, 1" % (PSP, PSP))
            e("s_cbranch_scc1 L_exit1")
            e.lines.append("L_pollw%s:" % tag)
            e("s_waitcnt vmcnt(0)")
            e("v_lshrrev_b32 v%d, 24, v%d" % (HC, HA))
            e("v_cmp_ne_u32 vcc, %d, v%d" % (cnt // 2 if vw else cnt, HC))
            e("s_cbranch_vccnz L_poll" + tag)
        if vw:
            e("v_add_u32_dpp v%d, v%d, v%d quad_perm:[1,0,3,2] row_mask:0xf bank_mask:0xf" % (HA, HA, HA))
            e("s_mov_b64 exec, 0x%x" % (0x5555 & ((1 << (2 * nl)) - 1)))
        th = P["th"] * cnt * rounds * (8 if b0 else P["ns0"]) // 8
        e("v_and_b32 v%d, 0xffffff, v%d" % (HA, HA))
        e("v_subrev_u32 v%d, %d, v%d" % (HA, cnt * BIAS, HA))
        if P["stamp"] == 6 and b0:
            e("s_cmp_lg_u32 s2, 100")
            e("s_cbranch_scc1 L_nodbg")
            e("buffer_store_dword v%d, v%d, s[%d:%d], 0 offen offset:4" % (HA, HB_, PDB, PDB + 3))
            e.label("L_nodbg")
        e("v_lshrrev_b32 v%d, 30, v%d" % (HC, HA))
        e("v_and_b32 v%d, 2, v%d" % (HC, HC))
        e("v_add_u32 v%d, %d, v%d" % (HA, th, HA))
        e("v_cmp_gt_u32 vcc, %d, v%d" % (2 * th, HA))
        e("v_cndmask_b32 v%d, v%d, 8, vcc" % (HC, HC))
        if P["force"] == 1:
            e("v_mov_b32 v%d, 8" % HC)
        if P["force"] >= 2:
            e("s_mov_b32 s%d, 0x%x" % (PE, 0x7000000 + 128 * (P["force"] - 2)))
            e("s_load_dwordx4 s[%d:%d], s[82:83], s%d" % (PS2, PS2 + 3, PE))
            e("s_waitcnt lgkmcnt(0)")
            for l in range(nl):
                b = b0 + l
                e("s_lshr_b64 s[%d:%d], s[%d:%d], %d" % (PE, PE + 1, PS2 + 2 * (b // 3), PS2 + 2 * (b // 3) + 1, 16 * (b % 3)))
                e("s_and_b32 s%d, s%d, %d" % (PE, PE, P["ob"]))
                e("s_xor_b32 s%d, s%d, %d" % (PE, PE, P["ox"]))
                e("v_writelane_b32 v%d, s%d, %d" % (HC, PE, 2 * l if vw else l))
        e("v_or_b32 v%d, 16, v%d" % (HC, HC))
        if P["xv"] and vw:
            e("v_lshlrev_b32 v%d, 1, v%d" % (HA, HL))
            e("v_lshrrev_b32 v%d, v%d, %d" % (HA, HA, 0) if False else "v_mov_b32 v%d, 0x%x" % (HD, int(str(P["xv"])[::-1], 16)))
            e("v_lshrrev_b32 v%d, v%d, v%d" % (HA, HA, HD))
            e("v_and_b32 v%d, 7, v%d" % (HA, HA))
            e("v_xor_b32 v%d, v%d, v%d" % (HC, HC, HA))
        e("ds_write_b32 v%d, v%d offset:%d" % (HB_, HC, dst))
        if P["hs"] and not b0:
            e("s_memrealtime s[%d:%d]" % (PD + 2, PD + 3))
            srd(PS2, 82, 0x8000000)
            e("s_waitcnt lgkmcnt(0)")
            e("v_mov_b32 v%d, s%d" % (HX, PD))
            e("v_mov_b32 v%d, s%d" % (HX + 1, PD + 2))
            e("v_mov_b32 v%d, s%d" % (HX + 2, PSP))
            e("v_mov_b32 v%d, s%d" % (HX + 3, PD + 4))
            e("s_lshl_b32 s%d, s2, 4" % PE)
            e("s_add_u32 s%d, s%d, 0x4008000" % (PE, PE))
            e("buffer_store_dwordx4 v[%d:%d], off, s[%d:%d], s%d" % (HX, HX + 3, PS2, PS2 + 3, PE))
        e("s_mov_b64 exec, -1")

    e("s_cmp_lg_u32 s2, %d" % (NWG - 1))
    e("s_cbranch_scc1 L_nolead")
    e("v_mul_u32_u24 v%d, %d, v%d" % (HB_, FSTR, HL))
    e("v_mov_b32 v%d, 0" % (HZ + 1))
    for k in range(5 if P["vw"] else 4):
        e("s_mov_b32 s%d, %d" % (PE + k, WS_G + k * 64 * FSTR))
        if k == 4:
            e("s_mov_b64 exec, 0x%x" % (0x1fffff if P["fc"] else 0x3ff))
        e("buffer_store_dwordx2 v[%d:%d], v%d, s[%d:%d], s%d offen sc1" % (HZ, HZ + 1, HB_, PWS, PWS + 3, PE + k))
    e("v_mov_b32 v%d, 0x%x" % (HA, BIAS + (1 << 24)))
    e("s_mov_b64 exec, 1")
    e("s_waitcnt vmcnt(0)")
    e("buffer_atomic_add v%d, off, s[%d:%d], 0" % (HA, PDB, PDB + 3))
    e("s_mov_b64 exec, -1")
    e.label("L_nolead")
    e("v_lshlrev_b32 v%d, 2, v%d" % (HB_, HL))
    decode("a", 1, 0, 49, P["nr0"], L_DEC, 0)
    decode("b", 5, 128, 16, NR, L_DEC + 4, 1)
    if P["lx"]:
        e("s_mul_i32 s%d, s%d, 43" % (PE, PG))
        e("s_lshr_b32 s%d, s%d, 8" % (PE, PE))
        e("s_mul_i32 s%d, s%d, 6" % (PE + 1, PE))
        e("s_sub_u32 s%d, s%d, s%d" % (PBK, PG, PE + 1))
        e("s_cmp_ge_u32 s%d, 3" % PBK)
        e("s_cselect_b32 s%d, s68, s66" % PB)
        e("s_cselect_b32 s%d, s69, s67" % (PBASE + 1))
        e("s_cselect_b32 s%d, 3, 0" % (PE + 1))
        e("s_sub_u32 s%d, s%d, s%d" % (PE + 1, PBK, PE + 1))
        e("s_lshl_b32 s%d, s%d, 28" % (PO, PE + 1))
        e("s_mul_i32 s%d, s%d, %d" % (PE, PE, 21 << 21))
        e("s_add_u32 s%d, s%d, s%d" % (PO, PO, PE))
        e("s_add_u32 s%d, s%d, %d" % (PO, PO, (7 << 21) + (1 << 20)))
        e("s_and_b32 s%d, s%d, 0xffff" % (PB + 1, PBASE + 1))
        e("s_mov_b32 s%d, %d" % (PB + 2, H * HEADB))
        e("s_mov_b32 s%d, 0x00020000" % (PB + 3))
        e("s_add_u32 s%d, s%d, %d" % (PE, PM, P["lx"]))
        e("s_and_b32 s%d, s%d, 7" % (PE, PE))
        e("s_lshl_b32 s%d, s%d, 9" % (PE, PE))
        e("v_lshlrev_b32 v%d, 12, v%d" % (HW, HL))
        e("v_add_u32 v%d, s%d, v%d" % (HW, PE, HW))
        for j in range(3):
            e("buffer_load_dword v%d, v%d, s[%d:%d], s%d offen offset:%d" % (HX + j, HW, PB, PB + 3, PO, j * 128))
        e("s_add_u32 s%d, s%d, s%d" % (PBASE, PB, PO))
        e("s_addc_u32 s%d, s%d, 0" % (PBASE + 1, PBASE + 1))
        e("s_lshl_b32 s%d, s%d, 9" % (PE, PM))
        e("s_add_u32 s%d, s%d, s%d" % (PBASE, PBASE, PE))
        e("s_addc_u32 s%d, s%d, 0" % (PBASE + 1, PBASE + 1))
        e("s_load_dword s%d, s[%d:%d], 384" % (PJ, PBASE, PBASE + 1))
        e("s_load_dword s%d, s[%d:%d], 0x20180" % (PJ, PBASE, PBASE + 1))
        e("s_waitcnt vmcnt(0) lgkmcnt(0)")
        lds_wait("lx", HZ, HE, PE, L_EV + 4, "8", PSP)
        for j in range(3):
            e("s_mov_b32 m0, 0")
            e("s_mov_b32 s%d, %d" % (PE, j * 128))
            e.label("L_lx%d" % j)
            e("s_memtime s[%d:%d]" % (PT, PT + 1))
            e("s_waitcnt lgkmcnt(0)")
            e("s_load_dword s%d, s[%d:%d], s%d" % (PJ, PBASE, PBASE + 1, PE))
            e("s_waitcnt lgkmcnt(0)")
            e("s_memtime s[%d:%d]" % (PT + 2, PT + 3))
            e("s_waitcnt lgkmcnt(0)")
            e("s_sub_u32 s%d, s%d, s%d" % (PT, PT + 2, PT))
            e("v_writelane_b32 v%d, s%d, m0" % (HX + j, PT))
            e("s_add_u32 s%d, s%d, 4096" % (PE, PE))
            e("s_add_u32 m0, m0, 1")
            e("s_cmp_lt_u32 m0, 64")
            e("s_cbranch_scc1 L_lx%d" % j)
        e("s_memrealtime s[%d:%d]" % (PT, PT + 1))
        e("s_waitcnt lgkmcnt(0)")
        e("v_mov_b32 v%d, s%d" % (HX + 3, PT))
        srd(PB, 82, 0x8000000)
        e("s_lshl_b32 s%d, s2, 10" % PE)
        e("s_add_u32 s%d, s%d, 0x4090000" % (PE, PE))
        e("v_lshlrev_b32 v%d, 4, v%d" % (HW, HL))
        e("buffer_store_dwordx4 v[%d:%d], v%d, s[%d:%d], s%d offen" % (HX, HX + 3, HW, PB, PB + 3, PE))
    if FU:
        CSC = 24; CMK = 56; CRB = 57; CO = 92
        e("s_and_b32 s%d, s%d, 7" % (PE, PG))
        e("s_cmp_lg_u32 s%d, s%d" % (PE, PM))
        e("s_cbranch_scc1 L_exit1")
        e("s_mul_i32 s%d, s%d, 3" % (PE, PG))
        e("s_add_u32 s%d, s%d, 2" % (PE, PE))
        e("s_lshr_b32 s%d, s%d, 5" % (PE, PE))
        e("s_lshl_b32 s%d, s%d, 2" % (PE, PE))
        e("v_mov_b32 v%d, s%d" % (HW, PE))
        e("s_mul_i32 s%d, s%d, 24" % (CRB, PG))
        e("v_add_u32 v%d, s%d, v%d" % (HG, CRB, HL))
        e("v_and_b32 v%d, 255, v%d" % (HR, HG))
        e("v_mul_u32_u24 v%d, %d, v%d" % (HR, FSTR, HR))
        e("v_lshlrev_b32 v%d, 6, v%d" % (HG, HG))
        e("s_mov_b32 s%d, %d" % (PE + 1, WS_G))
        e("s_mov_b32 s%d, %d" % (PE + 2, WS_ML))
        e("v_mov_b32 v%d, 0x%08x" % (HA, BIGNEG))
        e("v_mov_b32 v%d, 0" % HB_)
        if P["cd"]:
            th = [12 * (len(CPK) + min(j for j, c in enumerate(CPV) if c > b)) + P["cd"] for b in (16, 32, 4)]
            e("s_mov_b32 s%d, %d" % (PE + 3, th[0]))
            e("s_cmp_eq_u32 s%d, 4" % PE)
            e("s_cselect_b32 s%d, %d, s%d" % (PE + 3, th[1], PE + 3))
            e("s_cmp_eq_u32 s%d, 8" % PE)
            e("s_cselect_b32 s%d, %d, s%d" % (PE + 3, th[2], PE + 3))
            lds_wait("cg", HZ, HE, PE, L_TC, "s%d" % (PE + 3), PSP)
        else:
            lds_wait("cg", HZ, HE, PE, L_GO, "nz", PSP, HW)
        for tag, ld, chk in (("f", "buffer_load_dword v%d, v%d, s[%d:%d], s%d offen sc1" % (HD, HR, PWS, PWS + 3, PE + 1), HD),
                             ("m", "buffer_load_dwordx4 v[%d:%d], v%d, s[%d:%d], s%d offen sc1" % (HA, HD, HG, PWS, PWS + 3, PE + 2), HD)):
            e("s_mov_b64 exec, 0xffffff")
            e("s_mov_b32 s%d, 0x40000" % PSP)
            e.label("L_cp" + tag)
            e(ld)
            e("s_sub_u32 s%d, s%d, 1" % (PSP, PSP))
            e("s_cbranch_scc1 L_exit1")
            e("s_waitcnt vmcnt(0)")
            e("v_cmpx_eq_u32 vcc, 0, v%d" % chk)
            e("s_cbranch_execnz L_cp" + tag)
        e("s_mov_b64 exec, -1")
        e("v_mov_b32 v%d, v%d" % (HC, HA))
        wave_reduce([HC], "v_max_f32", [HD])
        e("v_sub_f32 v%d, v%d, v%d" % (HA, HA, HC))
        e("v_exp_f32 v%d, v%d" % (HA, HA))
        e("v_mul_f32 v%d, v%d, v%d" % (HB_, HB_, HA))
        wave_reduce([HB_], "v_add_f32", [HD])
        e("v_rcp_f32 v%d, v%d" % (HB_, HB_))
        e("v_mul_f32 v%d, v%d, v%d" % (HA, HA, HB_))
        if P["fc"]:
            e("s_cmp_lt_u32 s%d, 21" % PG)
            e("s_cbranch_scc1 L_cown")
            e("s_mul_i32 s%d, s%d, %d" % (PE, PG, FSTR))
            e("s_add_u32 s%d, s%d, %d" % (PE, PE, WS_G + 245 * FSTR))
            e("v_lshlrev_b32 v%d, 2, v%d" % (HR, HL))
            e("v_mov_b32 v%d, 1" % HB_)
            e("s_mov_b64 exec, 0xffffff")
            e("buffer_store_dword v%d, v%d, s[%d:%d], s%d offen offset:128 sc1" % (HA, HR, PWS, PWS + 3, PE))
            e("s_mov_b64 exec, 1")
            e("s_waitcnt vmcnt(0)")
            e("buffer_store_dword v%d, off, s[%d:%d], s%d offset:4 sc1" % (HB_, PWS, PWS + 3, PE))
            e("s_endpgm")
            e.label("L_cown")
        for r in range(24):
            e("v_readlane_b32 s%d, v%d, %d" % (CSC + r, HA, r))
        srd(CO, 78, H * DH * 2)
        e("s_lshl_b32 s%d, s%d, 10" % (CRB, CRB))
        e("v_lshlrev_b32 v%d, 4, v%d" % (HG, HL))
        e("v_add_u32 v%d, s%d, v%d" % (HG, CRB, HG))
        for k in range(1, 6):
            e("s_mov_b32 s%d, %d" % (PE + k, 4096 * k))
        for r in (HA, HB_, HC):
            e("v_mov_b32 v%d, 0" % r)
        e("s_mov_b32 s%d, 0xffffff" % CMK)
        e("v_lshlrev_b32 v%d, 1, v%d" % (HR, HL))
        e("s_mul_i32 s%d, s%d, %d" % (CRB, PG, DH * 2))
        lds_wait("cc", HZ, HE, PE, L_CA, "%d" % P["cw"], PSP, HW)
        e("s_mov_b32 s%d, 0x40000" % PSP)
        e.label("L_cr")
        for r in range(24):
            e("s_bitcmp0_b32 s%d, %d" % (CMK, r))
            e("s_cbranch_scc1 L_cl%d" % r)
            e("buffer_load_dwordx4 v[%d:%d], v%d, s[%d:%d], %s offen offset:%d sc1" %
              (HX + 4 * r, HX + 4 * r + 3, HG, PWS, PWS + 3, "s%d" % (PE + r // 4) if r >= 4 else "0", (r % 4) * 1024))
            e.lines.append("L_cl%d:" % r)
        e("s_sub_u32 s%d, s%d, 1" % (PSP, PSP))
        e("s_cbranch_scc1 L_exit1")
        e("s_waitcnt vmcnt(0)")
        for r in range(24):
            e("s_bitcmp0_b32 s%d, %d" % (CMK, r))
            e("s_cbranch_scc1 L_cv%d" % r)
            e("v_cmp_eq_u32 vcc, 0, v%d" % (HX + 4 * r + 3))
            e("s_cbranch_vccnz L_cv%d" % r)
            for k, a_ in enumerate((HA, HB_, HC)):
                e("v_fmac_f32 v%d, s%d, v%d" % (a_, CSC + r, HX + 4 * r + k))
            e("s_bitset0_b32 s%d, %d" % (CMK, r))
            e.lines.append("L_cv%d:" % r)
        e("s_cmp_lg_u32 s%d, 0" % CMK)
        e("s_cbranch_scc1 L_cr")
        for k, a_ in enumerate((HA, HB_, HC)):
            e("v_cvt_pk_bf16_f32 v%d, v%d, v%d" % (a_, a_, a_))
            e("buffer_store_short v%d, v%d, s[%d:%d], s%d offen offset:%d" % (a_, HR, CO, CO + 3, CRB, k * 128))
        if P["stamp"] == 5:
            e("s_memrealtime s[%d:%d]" % (PT, PT + 1))
            e("s_waitcnt vmcnt(0)")
            e("s_memrealtime s[%d:%d]" % (PT + 2, PT + 3))
            srd(PS2, 82, 0x8000000)
            e("s_waitcnt lgkmcnt(0)")
            e("v_mov_b32 v%d, s%d" % (HX, PT))
            e("v_mov_b32 v%d, s%d" % (HX + 1, PT + 2))
            e("v_mov_b32 v%d, s%d" % (HX + 2, PSP))
            e("s_lshl_b32 s%d, s%d, 4" % (PE, PG))
            e("s_add_u32 s%d, s%d, 0x4009000" % (PE, PE))
            e("s_mov_b64 exec, 1")
            e("buffer_store_dwordx4 v[%d:%d], off, s[%d:%d], s%d" % (HX, HX + 3, PS2, PS2 + 3, PE))
    e("s_endpgm")

    def seg_scalars():
        e("s_lshl_b32 s%d, s%d, 5" % (PSG, PPH))
        e("s_add_u32 s%d, s%d, s%d" % (PSG, PSG, PG))
        e("s_lshl_b32 s%d, s%d, 15" % (PG0, PSG))
        e("s_add_u32 s%d, s%d, 1" % (PG0, PG0))
        e("s_mul_hi_u32 s%d, s%d, 0xaaaaaaab" % (PG0, PG0))
        e("s_lshr_b32 s%d, s%d, 7" % (PG0, PG0))

    def get_dec(tag):
        lds_wait(tag, HZ, HE, PE, L_DEC + 20, "nz", PSP)
        e("ds_read_b128 v[%d:%d], v%d offset:%d" % (HX, HX + 3, HZ, L_DEC))
        e("ds_read_b64 v[%d:%d], v%d offset:%d" % (HX + 4, HX + 5, HZ, L_DEC + 16))
        e("s_waitcnt lgkmcnt(0)")
        for i in range(6):
            e("v_readfirstlane_b32 s%d, v%d" % (PDC + i, HX + i))

    e.label("L_h0")
    srd(PB, 64, H * DH * 2)
    srd(PS2, 70, H * NGRP * DH * 2)
    srd(PS3, 72, H * NGRP * DH * 2)
    e("v_lshrrev_b32 v%d, 4, v%d" % (HA, HL))
    e("v_and_b32 v%d, 15, v%d" % (HB_, HL))
    e("v_lshlrev_b32 v%d, 3, v%d" % (HC, HB_))
    e("v_mul_u32_u24 v%d, %d, v%d" % (HD, DH * 2, HA))
    e("v_add_u32 v%d, v%d, v%d" % (HD, HD, HC))
    e("v_lshl_add_u32 v%d, v%d, 2, v%d" % (HG, HB_, HA))
    e("v_lshlrev_b32 v%d, 2, v%d" % (HG, HG))
    BQ = HX; BS = HX + 12; BZ = BS + 36; BR = BZ + 36
    PFA = 32; PIA = 33
    e("v_lshlrev_b32 v%d, 4, v%d" % (HA, HL))
    e("s_mul_i32 s%d, s%d, %d" % (PFA, PNB, FSTR))
    e("s_add_u32 s%d, s%d, s%d" % (PFA, PFA, PGL))
    e("s_lshl_b32 s%d, s%d, 3" % (PIA, PG))
    e("s_add_u32 s%d, s%d, s%d" % (PIA, PIA, PNB))
    IMS = PHI if P["il"] else IMG
    PHS = NWG * PHI if P["il"] else PHI
    e("s_mul_i32 s%d, s%d, %d" % (PIA, PIA, IMS))
    e("s_add_u32 s%d, s%d, %d" % (PIA, PIA, WS_L))

    def bias(ph):
        e("s_mov_b32 s%d, %d" % (PPH, ph))
        seg_scalars()
        e("s_mul_i32 s%d, s%d, 171" % (PE, PSG))
        e("s_lshr_b32 s%d, s%d, 9" % (PE, PE))
        e("s_mul_i32 s%d, s%d, %d" % (PE, PE, DH * 2))
        e("s_mul_i32 s%d, s%d, 24" % (PE + 1, PM))
        e("s_add_u32 s%d, s%d, s%d" % (PE + 2, PE + 1, PG0))
        e("s_mul_i32 s%d, s%d, %d" % (PE + 2, PE + 2, DH * 2))
        e("v_add_u32 v%d, s%d, v%d" % (HE, PE + 2, HD))
        e("v_add_u32 v%d, %d, v%d" % (HF, 8 * DH * 2, HE))
        e("v_add_u32 v%d, %d, v%d" % (HR, 16 * DH * 2, HE))
        for c in range(3):
            e("buffer_load_dwordx2 v[%d:%d], v%d, s[%d:%d], s%d offen offset:%d" % (BR + 2 * c, BR + 2 * c + 1, HC, PB, PB + 3, PE, c * 128))
        for st in range(6):
            va = (HE, HF, HR)[st // 2]
            for sr, bb in ((PS2, BS), (PS3, BZ)):
                for c in range(3):
                    r = bb + st * 6 + 2 * c
                    if P["xb"] & 1:
                        continue
                    e("buffer_load_dwordx2 v[%d:%d], v%d, s[%d:%d], 0 offen offset:%d%s" %
                      (r, r + 1, va, sr, sr + 3, (st & 1) * 4 * DH * 2 + c * 128,
                       " nt" if P["bnt"] & (1 if bb == BZ else 2) else ""))
                if P["bp"] == 2 and (ph or P["bp0"]):
                    e("s_waitcnt vmcnt(%d)" % P["bq"])
            if P["bp"] == 1 and (ph or P["bp0"]):
                e("s_waitcnt vmcnt(%d)" % P["bq"])
        e("s_waitcnt vmcnt(0)")
        for p in range(6):
            e("v_lshlrev_b32 v%d, 16, v%d" % (BQ + 2 * p, BR + p))
            e("v_and_b32 v%d, 0xffff0000, v%d" % (BQ + 2 * p + 1, BR + p))
        for st in range(6):
            acc = BR + st
            for p in range(6):
                rs = BS + st * 6 + p; rz = BZ + st * 6 + p
                e("v_lshlrev_b32 v%d, 16, v%d" % (HE, rs))
                e("v_lshlrev_b32 v%d, 16, v%d" % (HF, rz))
                e("v_and_b32 v%d, 0xffff0000, v%d" % (rs, rs))
                e("v_and_b32 v%d, 0xffff0000, v%d" % (rz, rz))
                e("v_mul_f32 v%d, v%d, v%d" % (HE, HE, BQ + 2 * p))
                e("v_mul_f32 v%d, v%d, v%d" % (rs, rs, BQ + 2 * p + 1))
                if p == 0:
                    e("v_mul_f32 v%d, v%d, v%d" % (acc, HE, HF))
                else:
                    e("v_fmac_f32 v%d, v%d, v%d" % (acc, HE, HF))
                e("v_fmac_f32 v%d, v%d, v%d" % (acc, rs, rz))
        for kk in (8, 4, 2, 1):
            for st in range(6):
                e("v_add_f32_dpp v%d, v%d, v%d row_ror:%d row_mask:0xf bank_mask:0xf" % (BR + st, BR + st, BR + st, kk))
        for st in range(1, 6):
            e("v_cmp_eq_u32 vcc, %d, v%d" % (st, HB_))
            e("v_cndmask_b32 v%d, v%d, v%d, vcc" % (BR, BR, BR + st))
        e("s_mul_i32 s%d, s%d, 768" % (PE, PSG))
        e("s_lshl_b32 s%d, s%d, 2" % (PE + 1, PE + 1))
        e("s_add_u32 s%d, s%d, s%d" % (PE, PE, PE + 1))
        e("s_add_u32 s%d, s%d, %d" % (PE, PE, WS_B))
        e("s_mov_b32 exec_lo, 0x003f003f")
        e("s_mov_b32 exec_hi, 0x003f003f")
        e("buffer_store_dword v%d, v%d, s[%d:%d], s%d offen sc1" % (BR, HG, PWS, PWS + 3, PE))
        e("s_mov_b64 exec, -1")

    def flush(p):
        if P["xp"]:
            e("s_cmp_eq_u32 s%d, s%d" % (PDC + p, PDC + 3 + p))
            if p:
                e("s_cbranch_scc1 L_fp%d" % p)
            e("s_add_u32 s%d, s%d, %d" % (PE + 6, PIA, p * PHS))
            e("s_add_u32 s%d, s%d, %d" % (PE + 7, PIA, p * PHS + 4096))
            e("s_cmp_eq_u32 s%d, s%d" % (PDC + p, PDC + 3 + p))
            for k in range(6):
                if p == 0:
                    mk = sum(1 << l for l in range(64) if (64 * k + l) % 48 < (3 * N0 + 7) // 8 * 8)
                    e("s_cselect_b32 exec_lo, 0x%x, -1" % (mk & 0xffffffff))
                    e("s_cselect_b32 exec_hi, 0x%x, -1" % (mk >> 32))
                e("buffer_load_dwordx4 v[%d:%d], v%d, s[%d:%d], s%d offen offset:%d %s" %
                  (HX + 4 * k, HX + 4 * k + 3, HA, PWS, PWS + 3, PE + 6 + k // 4, (k % 4) * 1024, ("", "sc1", "", "nt")[P["xp"]]))
            e("s_mov_b64 exec, -1")
            e("s_waitcnt vmcnt(0)")
            e.label("L_fp%d" % p)
        lds_wait("f%d" % p, HZ, HE, PE, L_CF + 4 * p, "4", PSP)
        e("s_cmp_eq_u32 s%d, s%d" % (PDC + p, PDC + 3 + p))
        if p:
            e("s_cbranch_scc1 L_fl%d" % p)
        for k in range(6):
            e("ds_read_b128 v[%d:%d], v%d offset:%d" % (HX + 4 * k, HX + 4 * k + 3, HA, L_LG + p * PHI + k * 1024))
        e("s_add_u32 s%d, s%d, %d" % (PE + 6, PIA, p * PHS))
        e("s_add_u32 s%d, s%d, %d" % (PE + 7, PIA, p * PHS + 4096))
        e("s_cmp_eq_u32 s%d, s%d" % (PDC + p, PDC + 3 + p))
        e("s_waitcnt lgkmcnt(0)")
        for k in range(6):
            if p == 0:
                mk = sum(1 << l for l in range(64) if (64 * k + l) % 48 < (3 * N0 + 7) // 8 * 8)
                e("s_cselect_b32 exec_lo, 0x%x, -1" % (mk & 0xffffffff))
                e("s_cselect_b32 exec_hi, 0x%x, -1" % (mk >> 32))
            if not P["xkp"] & 16:
                e("buffer_store_dwordx4 v[%d:%d], v%d, s[%d:%d], s%d offen offset:%d %s" %
                  (HX + 4 * k, HX + 4 * k + 3, HA, PWS, PWS + 3, PE + 6 + k // 4, (k % 4) * 1024, P["st"]))
        if p == 0:
            e("s_mov_b64 exec, -1")
        e.label("L_fl%d" % p)
        e("v_mov_b32 v%d, %d" % (HE, p + 1))
        e("s_waitcnt vmcnt(0)")
        e("s_mov_b64 exec, 1")
        opt = p == 2 or (p == 1 and not P["jit"])
        if opt:
            e("s_cbranch_scc1 L_fn%d" % p)
        e("buffer_store_dword v%d, off, s[%d:%d], s%d sc1" % (HE, PWS, PWS + 3, PFA))
        if opt:
            e.label("L_fn%d" % p)
        e("ds_write_b32 v%d, v%d offset:%d" % (HZ, HE, L_FD))
        e("s_mov_b64 exec, -1")

    if FU:
        for i in range(4):
            e("v_mov_b32 v%d, 0" % (HX + i))
        for p in range(3):
            e("s_add_u32 s%d, s2, %d" % (PE, 256 * p))
            e("s_lshl_b32 s%d, s%d, 10" % (PE + 1, PE))
            e("s_lshl_b32 s%d, s%d, 6" % (PE, PE))
            e("s_add_u32 s%d, s%d, %d" % (PE, PE, WS_ML))
            if not (P["xkp"] & 512 and p < 2):
                e("buffer_store_dwordx4 v[%d:%d], v%d, s[%d:%d], s%d offen sc1" % (HX, HX + 3, HA, PWS, PWS + 3, PE + 1))
            e("s_mov_b64 exec, 15")
            e("buffer_store_dwordx4 v[%d:%d], v%d, s[%d:%d], s%d offen sc1" % (HX, HX + 3, HA, PWS, PWS + 3, PE))
            e("s_mov_b64 exec, -1")
    bias(0)
    if P["jit"]:
        lds_wait("b1", HZ, HE, PE, L_EV + 4, "1", PSP)
    bias(1)
    if not P["jit"]:
        bias(2)
    get_dec("d0")
    flush(0)
    if P["jit"]:
        lds_wait("b2", HZ, HE, PE, L_EV + 4, "9", PSP)
        bias(2)
    flush(1)
    flush(2)
    if P["at"] and not BC:
        e("v_lshrrev_b32 v%d, 3, v%d" % (HC, HL))
        e("v_xor_b32 v%d, s%d, v%d" % (HC, PM, HC))
        e("v_lshrrev_b32 v%d, 1, v%d" % (HD, HC))
        e("v_and_b32 v%d, 1, v%d" % (HC, HC))
        e("v_lshl_or_b32 v%d, v%d, 2, v%d" % (HD, HC, HD))
        e("v_lshl_or_b32 v%d, v%d, 3, v%d" % (HD, HL, HD))
        e("v_mul_u32_u24 v%d, %d, v%d" % (HD, FSTR, HD))
        lds_wait("t1", HZ, HE, PE, L_TC, "4", PSP)
        e("s_memrealtime s[%d:%d]" % (PT, PT + 1))
        e("s_mov_b64 exec, 1")
        e("s_waitcnt lgkmcnt(0)")
        e("s_or_b32 s%d, s%d, 1" % (PT, PT))
        e("v_mov_b32 v%d, s%d" % (HB_, PT))
        e("buffer_store_dword v%d, off, s[%d:%d], s%d offset:4 sc1" % (HB_, PWS, PWS + 3, PFA))
        e("s_mov_b32 exec_lo, -1")
        e("s_mov_b32 s%d, %d" % (PE + 1, WS_G))
        lds_wait("t2", HZ, HE, PE, L_TC, "5", PSP)
        e("buffer_load_dword v%d, v%d, s[%d:%d], s%d offen offset:4 sc1" % (HB_, HD, PWS, PWS + 3, PE + 1))
        e("v_bfrev_b32 v%d, -2" % HC)
        e("s_mov_b32 s%d, -2048" % PE)
        e("s_waitcnt vmcnt(0)")
        e("v_cmp_eq_u32 vcc, 0, v%d" % HB_)
        e("v_subrev_u32 v%d, s%d, v%d" % (HB_, PT, HB_))
        e("v_cndmask_b32 v%d, v%d, v%d, vcc" % (HB_, HB_, HC))
        for st in (2048, 1024, 512, 256, 128, 64, 32, 16):
            e("s_add_u32 s%d, s%d, %d" % (PE + 1, PE, st))
            e("v_cmp_gt_i32 vcc, s%d, v%d" % (PE + 1, HB_))
            e("s_bcnt1_i32_b64 s%d, vcc" % (PE + 2))
            e("s_cmp_lt_u32 s%d, %d" % (PE + 2, P["aq"]))
            e("s_cselect_b32 s%d, s%d, s%d" % (PE, PE + 1, PE))
        e("s_mul_i32 s%d, s%d, %d" % (PE, PE, -P["ka"]))
        e("s_add_u32 s%d, s%d, %d" % (PE, PE, P["kb"]))
        e("s_ashr_i32 s%d, s%d, 10" % (PE, PE))
        e("s_max_i32 s%d, s%d, %d" % (PE, PE, P["dmin"]))
        e("s_min_i32 s%d, s%d, %d" % (PE, PE, min(P["dmax"], NT - P["te"])))
        e("s_sub_u32 s%d, %d, s%d" % (PE, NT, PE))
        e("s_cmp_eq_u32 s%d, %d" % (PE, NT))
        e("s_cselect_b32 s%d, 255, s%d" % (PE, PE))
        e("v_mov_b32 v%d, s%d" % (HB_, PE))
        e("ds_write_b32 v%d, v%d offset:%d" % (HZ, HB_, L_TD))
    e("s_endpgm")

    def last_gather():
        EL = P["fc"] == 4
        CSC = 24; CO = 96; CR0 = 56; CSO = 57; CHL = 58; CRB = 59; CN = 20
        COF = list(range(64, 76)) + list(range(84, 96))
        RB = HX + 16
        if EL:
            e("s_mov_b64 exec, -1")
            e("v_lshlrev_b32 v%d, 2, v%d" % (HR, HL))
            e("v_add_u32 v%d, %d, v%d" % (HG, L_ACC + 2 * NW * ROWB, HR))
            e("v_lshlrev_b32 v%d, 4, v%d" % (HK, HL))
        e("s_add_u32 s%d, s%d, 64" % (PE, PG))
        e("s_mul_i32 s%d, s%d, 171" % (PE, PE))
        e("s_lshr_b32 s%d, s%d, 9" % (PE, PE))
        e("s_mul_i32 s%d, s%d, %d" % (CHL, PE, FSTR))
        e("s_add_u32 s%d, s%d, %d" % (CHL, CHL, WS_G + 245 * FSTR))
        e("s_mul_i32 s%d, s%d, %d" % (CRB, PE, DH * 2))
        e("s_cmp_eq_u32 s%d, 21" % PE)
        e("s_cselect_b32 s%d, 15, 23" % CN)
        e("s_mul_i32 s%d, s%d, 24" % (PE, PE))
        e("s_add_u32 s%d, s2, 512" % PSG)
        e("s_sub_u32 s%d, s%d, s%d" % (CR0, PSG, PE))
        e("s_lshl_b32 s%d, s%d, 10" % (PSG, PSG))
        e("s_mov_b32 s%d, 0x40000" % PSP)
        e.label("L_fs")
        e("buffer_load_dword v%d, off, s[%d:%d], s%d offset:4 sc1" % (HA, PWS, PWS + 3, CHL))
        e("s_sub_u32 s%d, s%d, 1" % (PSP, PSP))
        e("s_cbranch_scc1 L_exit1")
        e("s_waitcnt vmcnt(0)")
        e("v_cmp_eq_u32 vcc, 0, v%d" % HA)
        e("s_cbranch_vccnz L_fs")
        e("buffer_load_dword v%d, v%d, s[%d:%d], s%d offen offset:128 sc1" % (HE, HR, PWS, PWS + 3, CHL))
        e("ds_read_b128 v[%d:%d], v%d offset:%d" % (HA, HD, HZ, L_ML + 32))
        e("v_xor_b32 v%d, 1, v%d" % (HF, HL))
        e("v_cmp_eq_u32 vcc, s%d, v%d" % (CR0, HL))
        e("v_cndmask_b32 v%d, v%d, v%d, vcc" % (HF, HL, HF))
        e("v_add_u32 v%d, s%d, v%d" % (HF, PE, HF))
        e("v_lshlrev_b32 v%d, 10, v%d" % (HF, HF))
        for r in range(24):
            e("v_readlane_b32 s%d, v%d, %d" % (COF[r], HF, r))
        srd(CO, 78, H * DH * 2)
        e("v_lshlrev_b32 v%d, 1, v%d" % (HR, HL))
        e("s_waitcnt vmcnt(0)")
        e("v_readlane_b32 s%d, v%d, s%d" % (CSO, HE, CR0))
        e("v_cndmask_b32 v%d, v%d, v%d, vcc" % (HE, HE, HZ))
        for r in range(24):
            e("v_readlane_b32 s%d, v%d, %d" % (CSC + r, HE, r))
        e("v_mov_b32 v%d, 1" % HV)
        if EL:
            e("s_mov_b64 exec, 1")
            lds_wait("el", HZ, HE, PE, L_EL, "4", PSP)
            e("buffer_atomic_add v%d, off, s[%d:%d], s%d sc0" % (HV, PWS, PWS + 3, CHL))
            e("s_mov_b64 exec, -1")
            e("s_waitcnt vmcnt(0)")
            e("v_readfirstlane_b32 s%d, v%d" % (PE, HV))
            e("s_cmp_lg_u32 s%d, s%d" % (PE, CN))
            e("s_cbranch_scc1 L_exit1")
            for r in range(24):
                e("buffer_load_dwordx4 v[%d:%d], v%d, s[%d:%d], s%d offen sc1" % (RB + 4 * r, RB + 4 * r + 3, HK, PWS, PWS + 3, COF[r]))
        lds_wait("n", HZ, HE, PE, L_CA + 8, "4", PSP)
        for kk in range(3):
            for w in range(NW):
                e("ds_read_b32 v%d, v%d offset:%d" % (HX + kk * NW + w, HG, w * ROWB + kk * 256))
        if not EL:
            e("s_mov_b64 exec, 1")
            e("buffer_atomic_add v%d, off, s[%d:%d], s%d sc0" % (HV, PWS, PWS + 3, CHL))
            e("s_mov_b64 exec, -1")
        e("s_mov_b32 s%d, 0x40000" % PSP)
        for kk in range(3):
            b = HX + kk * NW
            e("s_waitcnt lgkmcnt(%d)" % (8 - 4 * kk))
            e("v_add_f32 v%d, v%d, v%d" % (b, b, b + 1))
            e("v_add_f32 v%d, v%d, v%d" % (b + 2, b + 2, b + 3))
            e("v_sub_f32 v%d, v%d, v%d" % (b, b, HC))
            e("v_add_f32 v%d, v%d, v%d" % (HX + 12 + kk, b, b + 2))
        if EL:
            e("s_branch L_fr2")
        else:
            e("buffer_store_dwordx4 v[%d:%d], v%d, s[%d:%d], s%d offen sc1" % (HX + 12, HX + 15, HK, PWS, PWS + 3, PSG))
        if P["stamp"] == 5 and not EL:
            e("s_memrealtime s[%d:%d]" % (PE + 4, PE + 5))
        if 2 <= P["fc"] < 4:
            e("s_waitcnt vmcnt(%d)" % (P["fc"] - 2))
            e("v_readfirstlane_b32 s%d, v%d" % (PE, HV))
            e("s_cmp_lg_u32 s%d, s%d" % (PE, CN))
            e("s_cbranch_scc1 L_fx")
        e.label("L_fr")
        for r in range(24):
            e("buffer_load_dwordx4 v[%d:%d], v%d, s[%d:%d], s%d offen sc1" % (RB + 4 * r, RB + 4 * r + 3, HK, PWS, PWS + 3, COF[r]))
        e.lines.append("L_fr2:")
        for k, a_ in enumerate((HA, HB_, HC)):
            e("v_mul_f32 v%d, s%d, v%d" % (a_, CSO, HX + 12 + k))
        e("v_mov_b32 v%d, 1" % HD)
        e("s_sub_u32 s%d, s%d, 1" % (PSP, PSP))
        e("s_cbranch_scc1 L_exit1")
        for r in range(24):
            if r % 2 == 0:
                e("s_waitcnt vmcnt(%d)" % (22 - r))
            for k, a_ in enumerate((HA, HB_, HC)):
                e("v_fmac_f32 v%d, s%d, v%d" % (a_, CSC + r, RB + 4 * r + k))
            if r % 2:
                e("v_min3_u32 v%d, v%d, v%d, v%d" % (HD, HD, RB + 4 * r - 1, RB + 4 * r + 3))
        if P["fc"] == 1:
            e("v_readfirstlane_b32 s%d, v%d" % (PE, HV))
        e("v_cmp_eq_u32 vcc, 0, v%d" % HD)
        for a_ in (HA, HB_, HC):
            e("v_cvt_pk_bf16_f32 v%d, v%d, v%d" % (a_, a_, a_))
        if P["fc"] == 1:
            e("s_cmp_lg_u32 s%d, s%d" % (PE, CN))
            e("s_cbranch_scc1 L_fx")
        e("s_cbranch_vccnz L_fr")
        for k, a_ in enumerate((HA, HB_, HC)):
            e("buffer_store_short v%d, v%d, s[%d:%d], s%d offen offset:%d" % (a_, HR, CO, CO + 3, CRB, k * 128))
        if P["stamp"] == 5:
            e("s_memrealtime s[%d:%d]" % (PT, PT + 1))
            e("s_waitcnt vmcnt(0)")
            e("s_memrealtime s[%d:%d]" % (PT + 2, PT + 3))
            srd(PS2, 82, 0x8000000)
            e("s_waitcnt lgkmcnt(0)")
            e("v_mov_b32 v%d, s%d" % (HX, PT))
            e("v_mov_b32 v%d, s%d" % (HX + 1, PT + 2))
            e("v_mov_b32 v%d, s%d" % (HX + 2, PSP))
            e("s_mul_i32 s%d, s%d, 171" % (PE, CRB))
            e("s_lshr_b32 s%d, s%d, 16" % (PE, PE))
            e("s_lshl_b32 s%d, s%d, 4" % (PE, PE))
            e("s_add_u32 s%d, s%d, 0x4009000" % (PE, PE))
            e("s_mov_b64 exec, 1")
            e("buffer_store_dwordx4 v[%d:%d], off, s[%d:%d], s%d" % (HX, HX + 3, PS2, PS2 + 3, PE))
        e.lines.append("L_fx:")
        if P["stamp"] == 5 and not EL:
            srd(PS2, 82, 0x8000000)
            e("s_memrealtime s[%d:%d]" % (PT + 2, PT + 3))
            e("s_waitcnt lgkmcnt(0)")
            e("v_mov_b32 v%d, s%d" % (HX, PE + 4))
            e("v_mov_b32 v%d, s%d" % (HX + 1, PT + 2))
            e("s_lshl_b32 s%d, s2, 3" % PE)
            e("s_add_u32 s%d, s%d, 0x400a000" % (PE, PE))
            e("s_mov_b64 exec, 1")
            e("buffer_store_dwordx2 v[%d:%d], off, s[%d:%d], s%d" % (HX, HX + 1, PS2, PS2 + 3, PE))
        e("s_endpgm")

    if BC:
        e.label("L_h3")
        e("s_waitcnt lgkmcnt(0)")
        srd(PWS, 82, WS_SIZE)
        if not EB:
            e("s_barrier")
        e("v_lshlrev_b32 v%d, 2, v%d" % (HD, HL))
        e("s_mul_i32 s%d, s%d, %d" % (PO, PM, FSTR))
        e("s_add_u32 s%d, s%d, %d" % (PO, PO, WS_T))
        e("s_lshl_b32 s%d, s%d, 2" % (PFL, PG))
        e("s_add_u32 s%d, s%d, s%d" % (PFL, PFL, PO))
        if GTS:
            cps = CPK + [48 + c for c in CPV]
            sel = [max(j for j, c in enumerate(cps) if c + P["tg"] + P["rd"] < b) for b in GTS]
            e("s_mov_b32 s%d, 0x%x" % (PRN, sum(1 << j for j in sel)))
            e("v_lshrrev_b32 v%d, 2, v%d" % (HG, HL))
            e("v_mul_u32_u24 v%d, %d, v%d" % (HG, FSTR, HG))
            e("v_and_or_b32 v%d, v%d, 12, v%d" % (HG, HD, HG))
            e("s_and_b32 s%d, s%d, 3" % (PBK, PM))
            e("s_mul_i32 s%d, s%d, %d" % (PNR, PBK, FSTR))
            e("s_lshl_b32 s%d, s%d, 2" % (PBK, PBK))
            e("v_mov_b32 v%d, %d" % (HK, L_GT))
        e("s_mov_b32 s%d, %d" % (PJ, P["pw"]))
        e("v_mov_b32 v%d, %d" % (HW, L_TM))
        e("v_bfrev_b32 v%d, -2" % HC)
        e("s_mov_b32 exec_hi, 0")
        e.label("L_h3loop")
        lds_wait("p1", HZ, HE, PE, L_TC, "s%d" % PJ, PSP)
        e("s_memrealtime s[%d:%d]" % (PT, PT + 1))
        e("s_add_u32 s%d, s%d, %d" % (PJ, PJ, 5 - P["pw"]))
        e("s_mov_b32 exec_lo, 1")
        e("s_waitcnt lgkmcnt(0)")
        e("v_mov_b32 v%d, s%d" % (HB_, PT))
        e("buffer_store_dword v%d, off, s[%d:%d], s%d" % (HB_, PWS, PWS + 3, PFL))
        e("s_mov_b32 exec_lo, -1")
        lds_wait("p2", HZ, HE, PE, L_TC, "s%d" % PJ, PSP)
        e("buffer_load_dword v%d, v%d, s[%d:%d], s%d offen sc0" % (HB_, HD, PWS, PWS + 3, PO))
        e("s_add_u32 s%d, s%d, 4" % (PJ, PJ))
        e("s_sub_u32 s%d, s%d, 4096" % (PT, PT))
        e("s_waitcnt vmcnt(0)")
        e("v_subrev_u32 v%d, s%d, v%d" % (HB_, PT, HB_))
        e("v_cmp_gt_u32 vcc, 8192, v%d" % HB_)
        e("v_cndmask_b32 v%d, v%d, v%d, vcc" % (HB_, HC, HB_))
        e("s_mov_b32 s%d, 2048" % PE)
        for st in (2048, 1024, 512, 256, 128, 64, 32, 16, 8):
            e("s_add_u32 s%d, s%d, %d" % (PE + 1, PE, st))
            e("v_cmp_gt_u32 vcc, s%d, v%d" % (PE + 1, HB_))
            e("s_bcnt1_i32_b64 s%d, vcc" % (PE + 2))
            e("s_cmp_lt_u32 s%d, %d" % (PE + 2, P["aq"]))
            e("s_cselect_b32 s%d, s%d, s%d" % (PE, PE + 1, PE))
        e("s_add_u32 s%d, s%d, s%d" % (PE + 1, PE, PT))
        e("s_or_b32 s%d, s%d, 1" % (PE + 1, PE + 1))
        e("v_mov_b32 v%d, s%d" % (HB_, PE + 1))
        e("ds_write_b32 v%d, v%d" % (HW, HB_))
        e("v_add_u32 v%d, 4, v%d" % (HW, HW))
        if GTS:
            e("s_bitcmp1_b32 s%d, 0" % PRN)
            e("s_cbranch_scc0 L_h3ng")
            e("s_cmp_lt_u32 s%d, 6136" % PE)
            e("s_cselect_b32 exec_lo, 1, 0")
            e("s_cmp_lt_u32 s%d, 4" % PG)
            e("s_cselect_b32 exec_lo, exec_lo, 0")
            e("buffer_store_dword v%d, off, s[%d:%d], s%d offset:2048 sc1" % (HB_, PWS, PWS + 3, PFL))
            e("s_mov_b32 exec_lo, 0xffff")
            e("s_add_u32 s%d, s%d, %d" % (PE + 3, PJ, P["gq"]))
            lds_wait("p3", HZ, HE, PE, L_TC, "s%d" % (PE + 3), PSP)
            e("s_sub_u32 s%d, s%d, s%d" % (PE + 3, PO, PNR))
            e("s_mov_b32 s%d, %d" % (PSP, P["gn"]))
            e("s_mov_b32 s%d, 0" % PE)
            if P["gl2"]:
                e("buffer_load_dword v%d, v%d, s[%d:%d], s%d offen offset:2048" % (HA, HG, PWS, PWS + 3, PE + 3))
                e("s_branch L_h3gq")
            e.label("L_h3gp")
            e("buffer_load_dword v%d, v%d, s[%d:%d], s%d offen offset:2048 sc1" % (HA, HG, PWS, PWS + 3, PE + 3))
            e("s_sub_u32 s%d, s%d, 1" % (PSP, PSP))
            e("s_cbranch_scc1 L_h3gw")
            e.lines.append("L_h3gq:")
            e("s_waitcnt vmcnt(0)")
            e("v_subrev_u32 v%d, s%d, v%d" % (HA, PT, HA))
            e("v_cmp_gt_u32 vcc, 8192, v%d" % HA)
            e("v_cndmask_b32 v%d, v%d, v%d, vcc" % (HA, HC, HA))
            e("v_min_u32_dpp v%d, v%d, v%d quad_perm:[1,0,3,2] row_mask:0xf bank_mask:0xf" % (HA, HA, HA))
            e("v_min_u32_dpp v%d, v%d, v%d quad_perm:[2,3,0,1] row_mask:0xf bank_mask:0xf" % (HA, HA, HA))
            e("v_cmp_eq_u32 vcc, v%d, v%d" % (HC, HA))
            e("s_cbranch_vccnz L_h3gp")
            for k in range(4):
                e("v_readlane_b32 s%d, v%d, %d" % (PE + 4 + k, HA, 4 * k))
            e("v_readlane_b32 s%d, v%d, s%d" % (PE + 1, HA, PBK))
            e("s_max_u32 s%d, s%d, s%d" % (PE + 4, PE + 4, PE + 5))
            e("s_max_u32 s%d, s%d, s%d" % (PE + 6, PE + 6, PE + 7))
            e("s_max_u32 s%d, s%d, s%d" % (PE, PE + 4, PE + 6))
            e("s_sub_u32 s%d, s%d, s%d" % (PE, PE, PE + 1))
            e("s_sub_u32 s%d, s%d, %d" % (PE, PE, P["gtol"]))
            e("s_max_i32 s%d, s%d, 0" % (PE, PE))
            e("s_min_i32 s%d, s%d, %d" % (PE, PE, P["gcap"]))
            e.label("L_h3gw")
            e("s_or_b32 s%d, s%d, 0x10000" % (PE, PE))
            e("v_mov_b32 v%d, s%d" % (HB_, PE))
            e("ds_write_b32 v%d, v%d" % (HK, HB_))
            e("s_mov_b32 exec_lo, -1")
            e("v_add_u32 v%d, 4, v%d" % (HK, HK))
            e("s_waitcnt vmcnt(0)")
            e.label("L_h3ng")
            e("s_lshr_b32 s%d, s%d, 1" % (PRN, PRN))
        e("s_add_u32 s%d, s%d, %d" % (PJ, PJ, 3 + P["pw"]))
        e("s_add_u32 s%d, s%d, 128" % (PO, PO))
        e("s_add_u32 s%d, s%d, 128" % (PFL, PFL))
        e("s_cmp_lt_u32 s%d, %d" % (PJ, 12 * (len(CPK) + len(CPV))))
        e("s_cbranch_scc1 L_h3loop")
        if P["fc"] == 4:
            last_gather()
        else:
            e("s_endpgm")

    e.label("L_h2")
    srd(PS2, 74, H * SKV * 2)
    srd(PS3, 76, H * SKV * 2)
    if P["pf"] >= 2:
        if P["pf"] == 2:
            lds_wait("pf", HZ, HE, PE, L_EV + 4, "1", PSP)
        if P["pf"] == 4:
            lds_wait("pf", HZ, HE, PE, L_EV, "1", PSP)
        e("v_lshlrev_b32 v%d, 4, v%d" % (HA, HL))
        e("s_lshl_b32 s%d, s2, 13" % PE)
        e("s_add_u32 s%d, s%d, 4096" % (PE + 1, PE))
        for a, sr in enumerate((PS2, PS3)):
            for k in range(8):
                r = HX + 4 * (a * 8 + k)
                e("buffer_load_dwordx4 v[%d:%d], v%d, s[%d:%d], s%d offen offset:%d" % (r, r + 3, HA, sr, sr + 3, PE + k // 4, (k % 4) * 1024))
        e("s_waitcnt vmcnt(0)")
    get_dec("d2")
    PSIX = 24
    PKW = 32; PNEED = 33; PN0 = 34; PIM = 35; PCH = 36; PCC = 37; PMG = 38; PWD = 39; PIS = 40
    HT = HW
    HP = HX + 88; PXM = 64
    e("v_and_b32 v%d, 3, v%d" % (HT, HL))
    e("v_and_b32 v%d, 7, v%d" % (HT2, HL))
    e("v_lshrrev_b32 v%d, 2, v%d" % (HR, HL))
    e("s_mov_b32 s%d, %s" % (PCC, f32hex(C)))
    e("s_mov_b32 s%d, 0xaaaaaaab" % PMG)
    e("s_mov_b32 s%d, 0" % PPH)
    e("s_mul_i32 s%d, s%d, %d" % (PIM, PG, 8 * IMS))
    e("s_add_u32 s%d, s%d, %d" % (PIM, PIM, WS_L))
    e("s_mov_b32 s%d, %d" % (PIS, IMS))
    e("v_lshlrev_b32 v%d, 5, v%d" % (HN, HL))
    e("v_lshrrev_b32 v%d, 3, v%d" % (HK, HL))
    e("v_mul_u32_u24 v%d, 24, v%d" % (HK, HK))
    e("v_mov_b32 v%d, 768" % HA)
    e("v_mad_u32_u24 v%d, v%d, v%d, v%d" % (HK, HT2, HA, HK))
    e("v_lshlrev_b32 v%d, 4, v%d" % (HP, HL))
    e("s_mov_b32 s%d, %d" % (PN0, 3 * N0))
    RS = 16
    e.label("L_prep")
    seg_scalars()
    e("s_mov_b32 s%d, s%d" % (PKW, PDC))
    e("s_mov_b32 s%d, s%d" % (PWD, PDC + 3))
    for i in (0, 1, 3, 4):
        e("s_mov_b32 s%d, s%d" % (PDC + i, PDC + i + 1))
    e("s_lshl_b32 s%d, s%d, 3" % (PNEED, PPH))
    e("s_add_u32 s%d, s%d, 1" % (PNEED, PNEED))
    if P["pf"] == 1:
        lds_wait("pf", HZ, HE, PE, L_EV + 4, "s%d" % PNEED, PSP)
        e("v_lshlrev_b32 v%d, 4, v%d" % (HA, HL))
        e("s_mul_i32 s%d, s%d, 2736" % (PE + 1, PM))
        e("s_lshl_b32 s%d, s%d, 16" % (PE, PSG))
        e("s_mul_hi_u32 s%d, s%d, 0xaaaaaaab" % (PE, PE))
        e("s_lshr_b32 s%d, s%d, 5" % (PE, PE))
        e("s_lshl_b32 s%d, s%d, 4" % (PE, PE))
        e("s_add_u32 s%d, s%d, s%d" % (PE, PE, PE + 1))
        for a, sr in enumerate((PS2, PS3)):
            for k in range(3):
                r = HX + 4 * RS + 4 * (a * 3 + k)
                e("buffer_load_dwordx4 v[%d:%d], v%d, s[%d:%d], s%d offen offset:%d%s" % (r, r + 3, HA, sr, sr + 3, PE, k * 1024, " nt" if P["bnt"] & 8 else ""))
    for w, hv in ((PWD, HV),):
        e("s_and_b32 s%d, s%d, 7" % (PE, w))
        e("v_mov_b32 v%d, s%d" % (hv, PE))
        e("s_bitcmp1_b32 s%d, 3" % w)
        e("s_cselect_b64 vcc, -1, 0")
        e("v_cndmask_b32 v%d, v%d, v%d, vcc" % (hv, hv, HT2))
    e("v_xor_b32 v%d, s%d, v%d" % (HG, PNB, HV))
    e("v_lshl_or_b32 v%d, v%d, 3, v%d" % (HG, HT, HG))
    e("s_lshl_b32 s%d, s%d, 6" % (PCH, PSG))
    e("s_mul_i32 s%d, s%d, 768" % (PE + 1, PSG))
    e("s_lshl_b32 s%d, s%d, 2" % (PE + 2, PG0))
    e("s_sub_u32 s%d, s%d, s%d" % (PE + 1, PE + 1, PE + 2))
    e("s_add_u32 s%d, s%d, %d" % (PE + 1, PE + 1, WS_B))
    if P["pace"]:
        e("s_add_u32 s%d, s%d, 4" % (PNEED, PNEED))
        lds_wait("ga", HZ, HE, PE, L_EV + 4, "s%d" % PNEED, PSP)
    else:
        e("s_add_u32 s%d, s%d, 1" % (PNEED, PPH))
        lds_wait("ga", HZ, HE, PE, L_FD, "s%d" % PNEED, PSP)
    for st in range(4):
        R = HX + RS * st
        e("v_add_u32 v%d, %d, v%d" % (HA, 16 * st, HR))
        e("v_bfe_u32 v%d, v%d, 3, 2" % (HB_, HA))
        e("v_and_or_b32 v%d, v%d, 4, v%d" % (HB_, HA, HB_))
        e("v_xor_b32 v%d, v%d, v%d" % (HB_, HG, HB_))
        e("v_add_u32 v%d, s%d, v%d" % (HA, PCH, HA))
        e("v_lshl_add_u32 v%d, v%d, 5, v%d" % (HC, HA, HB_))
        e("v_lshl_add_u32 v%d, v%d, 4, 1" % (HC, HC))
        e("v_mul_hi_u32 v%d, v%d, s%d" % (HC, HC, PMG))
        e("v_lshrrev_b32 v%d, 1, v%d" % (HC, HC))
        e("v_lshrrev_b32 v%d, 1, v%d" % (HF, HC))
        e("v_lshlrev_b32 v%d, 2, v%d" % (HF, HF))
        for b, sr in ((R + 8, PS2), (R + 12, PS3)):
            if P["xkp"] & 8:
                continue
            gnt = " nt" if P["bnt"] & 16 else ""
            e("buffer_load_dwordx3 v[%d:%d], v%d, s[%d:%d], 0 offen%s" % (b, b + 2, HF, sr, sr + 3, gnt))
            if P["pace"] == 2:
                e("s_waitcnt vmcnt(0)")
            e("buffer_load_dword v%d, v%d, s[%d:%d], 0 offen offset:12%s" % (b + 3, HF, sr, sr + 3, gnt))
        e("v_lshrrev_b32 v%d, 6, v%d" % (R + 6, HC))
        e("v_lshl_add_u32 v%d, v%d, 2, s%d" % (R + 6, R + 6, PE + 1))
        e("v_and_b32 v%d, 15, v%d" % (HD, HC))
        e("v_cmp_eq_u32 s[%d:%d], 5, v%d" % (PSIX + 2 * st, PSIX + 2 * st + 1, HD))
        e("v_and_b32 v%d, 1, v%d" % (R + 7, HC))
        e("v_lshlrev_b32 v%d, 4, v%d" % (R + 7, R + 7))
        if P["pace"] == 1:
            e("s_waitcnt vmcnt(0)")
    e("s_add_u32 s%d, s%d, 1" % (PNEED, PPH))
    if P["fd"]:
        cps = CPK + [48 + c for c in CPV]
        th = [12 * min(j for j, c in enumerate(cps) if c > b) + P["fd"] for b in (16, 32, 48)]
        assert th[2] - th[1] == th[1] - th[0]
        e("s_mul_i32 s%d, s%d, %d" % (PE + 6, PPH, th[1] - th[0]))
        e("s_add_u32 s%d, s%d, %d" % (PE + 6, PE + 6, th[0]))
        lds_wait("fe", HZ, HE, PE, L_TC, "s%d" % (PE + 6), PSP)
    lds_wait("fd", HZ, HE, PE, L_FD, "s%d" % PNEED, PSP)
    e("v_mul_u32_u24 v%d, %d, v%d" % (HA, FSTR, HL))
    e("s_xor_b32 s%d, s%d, s%d" % (PE, PKW, PWD))
    e("s_xor_b32 s%d, s%d, s%d" % (PE, PE, PNB))
    e("s_and_b32 s%d, s%d, 7" % (PE, PE))
    e("v_mov_b32 v%d, s%d" % (HC, PNEED))
    e("s_lshl_b64 vcc, 1, s%d" % PE)
    e("s_or_b32 s%d, s%d, s%d" % (PE, PKW, PWD))
    e("s_bitcmp1_b32 s%d, 3" % PE)
    e("s_cselect_b64 vcc, 0xff, vcc")
    e("s_cmp_eq_u32 s%d, s%d" % (PKW, PWD))
    e("s_cselect_b64 vcc, 0, vcc")
    e("s_max_u32 s%d, s%d, 1" % (PE, PPH))
    e("v_mov_b32 v%d, s%d" % (HD, PE))
    e("v_cndmask_b32 v%d, v%d, v%d, vcc" % (HC, HD, HC))
    e("s_cmp_%s_u32 s%d, 1" % ("eq" if P["jit"] else "ge", PPH))
    e("s_cselect_b64 exec, vcc, 0xff")
    e("s_mov_b32 s%d, 0x40000" % PSP)
    if not P["xkp"] & 64:
        e("s_cbranch_execz L_noflags")
        e.label("L_flags")
        e("buffer_load_dword v%d, v%d, s[%d:%d], s%d offen sc1" % (HB_, HA, PWS, PWS + 3, PGL))
        e("s_sub_u32 s%d, s%d, 1" % (PSP, PSP))
        e("s_cbranch_scc1 L_exit1")
        e("s_waitcnt vmcnt(0)")
        e("v_cmpx_gt_u32 vcc, v%d, v%d" % (HC, HB_))
        e("s_cbranch_execnz L_flags")
        e.label("L_noflags")
    e("s_mov_b64 exec, -1")
    for st in range(4):
        R = HX + RS * st
        if not P["xkp"] & 32:
            e("buffer_load_dword v%d, v%d, s[%d:%d], 0 offen sc1" % (R + 6, R + 6, PWS, PWS + 3))
    e("s_bitcmp1_b32 s%d, 3" % PWD)
    e("s_cselect_b32 s%d, 0, 7" % (PE + 1))
    e("s_xor_b32 s%d, s%d, s%d" % (PE + 2, PKW, PWD))
    e("s_bitcmp1_b32 s%d, 3" % (PE + 2))
    e("s_cselect_b32 s%d, 7, 0" % (PE + 3))
    e("s_and_b32 s%d, s%d, 7" % (PE + 2, PE + 2))
    e("s_and_b32 s%d, s%d, 7" % (PE + 4, PWD))
    e("s_add_u32 s%d, s%d, 4096" % (PE + 5, PIM))
    for k in range(6):
        R = HX + 4 * RS + 4 * k
        e("v_add_u32 v%d, %d, v%d" % (HA, 64 * k, HL))
        e("v_mul_u32_u24 v%d, 1366, v%d" % (HB_, HA))
        e("v_lshrrev_b32 v%d, 16, v%d" % (HB_, HB_))
        e("v_mul_u32_u24 v%d, 48, v%d" % (HC, HB_))
        e("v_sub_u32 v%d, v%d, v%d" % (HA, HA, HC))
        e("v_cmp_gt_u32 vcc, s%d, v%d" % (PN0, HA))
        e("v_and_b32 v%d, s%d, v%d" % (HC, PE + 3, HB_))
        e("v_xor_b32 v%d, s%d, v%d" % (HC, PE + 2, HC))
        e("v_and_b32 v%d, s%d, v%d" % (HB_, PE + 1, HB_))
        e("v_xor_b32 v%d, s%d, v%d" % (HB_, PE + 4, HB_))
        e("v_cndmask_b32 v%d, v%d, v%d, vcc" % (HC, HC, HB_))
        e("v_cmp_ne_u32 s[%d:%d], 0, v%d" % (PXM + 2 * k, PXM + 2 * k + 1, HC))
        e("v_xor_b32 v%d, s%d, v%d" % (HC, PNB, HC))
        e("v_mad_u32_u24 v%d, v%d, s%d, v%d" % (HC, HC, PIS, HP))
        e("s_mov_b64 exec, s[%d:%d]" % (PXM + 2 * k, PXM + 2 * k + 1))
        if not P["xkp"] & 128:
            e("buffer_load_dwordx4 v[%d:%d], v%d, s[%d:%d], s%d offen offset:%d sc1" %
              (R, R + 3, HC, PWS, PWS + 3, PE + 5 if k >= 4 else PIM, (k % 4) * 1024))
        e("s_mov_b64 exec, -1")
    e("s_waitcnt vmcnt(0)")
    for k in range(6):
        R = HX + 4 * RS + 4 * k
        e("s_mov_b64 exec, s[%d:%d]" % (PXM + 2 * k, PXM + 2 * k + 1))
        e("ds_write_b128 v%d, v[%d:%d] offset:%d" % (HP, R, R + 3, L_LG + k * 1024))
    e("s_mov_b64 exec, -1")
    for st in range(4):
        R = HX + RS * st
        for c in range(3):
            e("ds_read_b64 v[%d:%d], v%d offset:%d" % (R + 2 * c, R + 2 * c + 1, HK, L_LG + st * 192 + 8 * c))
    e("s_mov_b32 s%d, 0" % PN0)
    e("v_mov_b32 v%d, 0x%08x" % (HB_, BIGNEG))
    e("v_mov_b32 v%d, 0x%08x" % (HA, BIGNEG))
    e("s_waitcnt vmcnt(0) lgkmcnt(0)")
    for st in range(4):
        R = HX + RS * st
        for k in range(6):
            e("v_sub_f32 v%d, v%d, v%d" % (R + k, R + k, R + 6))
        for k in range(6):
            e("v_mul_f32 v%d, s%d, v%d" % (R + k, PCC, R + k))
        e("v_cndmask_b32 v%d, v%d, v%d, s[%d:%d]" % (R + 5, HB_, R + 5, PSIX + 2 * st, PSIX + 2 * st + 1))
        for k in range(0, 6, 2):
            e("v_max3_f32 v%d, v%d, v%d, v%d" % (HA, HA, R + k, R + k + 1))
        for b in (R + 8, R + 12):
            for k in range(3):
                e("v_alignbit_b32 v%d, v%d, v%d, v%d" % (b + k, b + k + 1, b + k, R + 7))

    wave_reduce([HA], "v_max_f32", [HB_])
    e("v_mov_b32 v%d, 0" % HB_)
    e("v_mov_b32 v%d, 0" % HC)
    for st in range(4):
        R = HX + RS * st
        for k in range(6):
            e("v_sub_f32 v%d, v%d, v%d" % (R + k, R + k, HA))
        for k in range(6):
            e("v_exp_f32 v%d, v%d" % (R + k, R + k))
        for k in range(6):
            e("v_add_f32 v%d, v%d, v%d" % (HB_, HB_, R + k))
            if k & 1:
                e("v_and_b32 v%d, 0xffff0000, v%d" % (HE, R + 8 + k // 2))
                e("v_and_b32 v%d, 0xffff0000, v%d" % (HF, R + 12 + k // 2))
            else:
                e("v_lshlrev_b32 v%d, 16, v%d" % (HE, R + 8 + k // 2))
                e("v_lshlrev_b32 v%d, 16, v%d" % (HF, R + 12 + k // 2))
            e("v_mul_f32 v%d, v%d, v%d" % (R + k, R + k, HE))
            e("v_fmac_f32 v%d, v%d, v%d" % (HC, R + k, HF))
        e("ds_write_b128 v%d, v[%d:%d] offset:%d" % (HN, R, R + 3, L_PV + st * 2048))
        e("ds_write_b64 v%d, v[%d:%d] offset:%d" % (HN, R + 4, R + 5, L_PV + st * 2048 + 16))
    wave_reduce([HB_, HC], "v_add_f32", [HE, HF])
    e("s_lshl_b32 s%d, s%d, 2" % (PE, PPH))
    e("v_mov_b32 v%d, s%d" % (HE, PE))
    e("v_lshlrev_b32 v%d, 2, v%d" % (HF, HE))
    e("v_mov_b32 v%d, s%d" % (HD, PWD))
    e("s_mov_b64 exec, 1")
    e("ds_write_b128 v%d, v[%d:%d] offset:%d" % (HF, HA, HD, L_ML))
    e("ds_write_b32 v%d, v%d offset:%d" % (HE, HD, L_GO))
    if FU:
        e("s_lshl_b32 s%d, s%d, 8" % (PE, PPH))
        e("s_add_u32 s%d, s%d, s2" % (PE, PE))
        e("s_lshl_b32 s%d, s%d, 6" % (PE, PE))
        e("s_add_u32 s%d, s%d, %d" % (PE, PE, WS_ML))
        e("buffer_store_dwordx4 v[%d:%d], off, s[%d:%d], s%d sc1" % (HA, HD, PWS, PWS + 3, PE))
    e("s_mov_b64 exec, -1")
    e("v_add_u32 v%d, 8192, v%d" % (HN, HN))
    e("v_add_u32 v%d, %d, v%d" % (HK, PHI, HK))
    e("v_add_u32 v%d, %d, v%d" % (HP, PHI, HP))
    if PHS != PHI:
        e("s_add_u32 s%d, s%d, %d" % (PIM, PIM, PHS - PHI))
    e("s_add_u32 s%d, s%d, 1" % (PPH, PPH))
    e("s_cmp_lt_u32 s%d, 3" % PPH)
    e("s_cbranch_scc1 L_prep")
    e("s_mov_b32 s%d, 0" % PPH)
    e("v_lshlrev_b32 v%d, 2, v%d" % (HR, HL))
    e("v_add_u32 v%d, %d, v%d" % (HG, L_ACC, HR))
    e("v_lshlrev_b32 v%d, 4, v%d" % (HK, HL))
    e("v_mov_b32 v%d, 1" % (HX + 15))
    e.label("L_merge")
    e("s_lshl_b32 s%d, s%d, 2" % (PE, PPH))
    e("v_mov_b32 v%d, s%d" % (HW, PE))
    e("v_lshlrev_b32 v%d, 2, v%d" % (HF, HW))
    e("ds_read_b128 v[%d:%d], v%d offset:%d" % (HA, HD, HF, L_ML))
    e("s_lshl_b32 s%d, s%d, 8" % (PSG, PPH))
    e("s_add_u32 s%d, s%d, s2" % (PSG, PSG))
    e("s_lshl_b32 s%d, s%d, 10" % (PSG, PSG))
    lds_wait("m", HZ, HE, PE, L_CA, "4", PSP, HW)
    for kk in range(3):
        for w in range(NW):
            e("ds_read_b32 v%d, v%d offset:%d" % (HX + kk * NW + w, HG, w * ROWB + kk * 256))
    for kk in range(3):
        b = HX + kk * NW
        e("s_waitcnt lgkmcnt(%d)" % (8 - 4 * kk))
        e("v_add_f32 v%d, v%d, v%d" % (b, b, b + 1))
        e("v_add_f32 v%d, v%d, v%d" % (b + 2, b + 2, b + 3))
        e("v_sub_f32 v%d, v%d, v%d" % (b, b, HC))
        if FU:
            e("v_add_f32 v%d, v%d, v%d" % (HX + 12 + kk, b, b + 2))
            continue
        e("v_add_f32 v%d, v%d, v%d" % (b, b, b + 2))
        e("buffer_store_dword v%d, v%d, s[%d:%d], s%d offen offset:%d" % (b, HR, PWS, PWS + 3, PSG, kk * 256))
    if FU:
        e("buffer_store_dwordx4 v[%d:%d], v%d, s[%d:%d], s%d offen sc1" % (HX + 12, HX + 15, HK, PWS, PWS + 3, PSG))
    else:
        e("s_mov_b64 exec, 1")
        e("buffer_store_dwordx2 v[%d:%d], off, s[%d:%d], s%d offset:%d" % (HA, HB_, PWS, PWS + 3, PSG, DH * 4))
        e("s_mov_b64 exec, -1")
    e("v_add_u32 v%d, %d, v%d" % (HG, NW * ROWB, HG))
    e("s_add_u32 s%d, s%d, 1" % (PPH, PPH))
    e("s_cmp_lt_u32 s%d, %d" % (PPH, 2 if 0 < P["fc"] < 4 else 3))
    e("s_cbranch_scc1 L_merge")
    if 0 < P["fc"] < 4:
        last_gather()
    if P["stamp"] == 5:
        e("s_memrealtime s[%d:%d]" % (PT, PT + 1))
        e("s_waitcnt vmcnt(0)")
        e("s_memrealtime s[%d:%d]" % (PT + 2, PT + 3))
        srd(PS2, 82, 0x8000000)
        e("s_waitcnt lgkmcnt(0)")
        e("v_mov_b32 v%d, s%d" % (HX, PT))
        e("v_mov_b32 v%d, s%d" % (HX + 1, PT + 2))
        e("s_lshl_b32 s%d, s2, 3" % PE)
        e("s_add_u32 s%d, s%d, 0x400a000" % (PE, PE))
        e("s_mov_b64 exec, 1")
        e("buffer_store_dwordx2 v[%d:%d], off, s[%d:%d], s%d" % (HX, HX + 1, PS2, PS2 + 3, PE))
    e("s_endpgm")

    main_text = e.text()
    RPW = 24
    k2 = NAME + "_kernel"
    e.lines.append(".globl %s" % k2)
    e.lines.append(".p2align 8")
    e.lines.append(".type %s,@function" % k2)
    e.lines.append(k2 + ":")
    e.wr = {}; e.tr = {}; e.sw = {}
    e("s_cmp_ge_u32 s2, %d" % H)
    e("s_cbranch_scc1 L_exit2")
    e("s_load_dwordx2 s[4:5], s[0:1], 56")
    e("s_load_dwordx2 s[6:7], s[0:1], 72")
    e("v_lshlrev_b32 v1, 2, v0")
    e("v_mov_b32 v2, 0")
    e("s_mul_i32 s16, s2, %d" % (RPW * PART_STRIDE))
    e("s_mov_b32 s10, %d" % (3 * NWG * PART_STRIDE))
    e("s_mov_b32 s11, 0x00020000")
    e("s_mov_b32 s14, %d" % (H * DH * 2))
    e("s_mov_b32 s15, 0x00020000")
    for k in range(1, RPW // 4):
        e("s_add_u32 s%d, s16, %d" % (16 + k, 4 * k * PART_STRIDE))
    e("s_waitcnt lgkmcnt(0)")
    e("s_mov_b32 s8, s6")
    e("s_and_b32 s9, s7, 0xffff")
    e("s_mov_b32 s12, s4")
    e("s_and_b32 s13, s5, 0xffff")
    MLB = 8
    OB = MLB + 2 * RPW
    for s in range(RPW):
        so = 16 + s // 4
        e("buffer_load_dwordx2 v[%d:%d], v2, s[8:11], s%d offen offset:%d" %
          (MLB + 2 * s, MLB + 2 * s + 1, so, (s % 4) * PART_STRIDE + DH * 4))
        e("buffer_load_dword v%d, v1, s[8:11], s%d offen offset:%d" % (OB + s, so, (s % 4) * PART_STRIDE))
    e("s_waitcnt vmcnt(0)")
    e("v_mov_b32 v4, v%d" % MLB)
    for s in range(1, RPW):
        e("v_max_f32 v4, v4, v%d" % (MLB + 2 * s))
    for s in range(RPW):
        e("v_sub_f32 v%d, v%d, v4" % (MLB + 2 * s, MLB + 2 * s))
    for s in range(RPW):
        e("v_exp_f32 v%d, v%d" % (MLB + 2 * s, MLB + 2 * s))
    e("v_mul_f32 v5, v%d, v%d" % (MLB, MLB + 1))
    e("v_mul_f32 v6, v%d, v%d" % (MLB, OB))
    for s in range(1, RPW):
        e("v_fmac_f32 v5, v%d, v%d" % (MLB + 2 * s, MLB + 2 * s + 1))
        e("v_fmac_f32 v6, v%d, v%d" % (MLB + 2 * s, OB + s))
    e("v_rcp_f32 v5, v5")
    e("v_mul_f32 v6, v6, v5")
    e("v_cvt_pk_bf16_f32 v6, v6, v6")
    e("s_mul_i32 s16, s2, %d" % (DH * 2))
    e("v_lshrrev_b32 v1, 1, v1")
    e("buffer_store_short v6, v1, s[12:15], s16 offen")
    e.lines.append("L_exit2:")
    e("s_endpgm")
    NV2 = OB + RPW

    def kd(name, nv, ns):
        acc = (nv + 3) // 4 * 4
        return """.amdhsa_kernel %s
  .amdhsa_next_free_vgpr %d
  .amdhsa_next_free_sgpr %d
  .amdhsa_accum_offset %d
  .amdhsa_group_segment_fixed_size 0
  .amdhsa_kernarg_size 80
  .amdhsa_user_sgpr_count 2
  .amdhsa_user_sgpr_kernarg_segment_ptr 1
  .amdhsa_system_sgpr_workgroup_id_x 1
.end_amdhsa_kernel
""" % (name, nv, ns, acc)

    diag = ""
    if P["diag"]:
        d = Emit4()
        d.lines += [".globl diag_kernel", ".p2align 8", ".type diag_kernel,@function", "diag_kernel:"]
        d("s_cmp_ge_u32 s2, 1")
        d("s_cbranch_scc1 L_dx")
        d("s_load_dwordx2 s[6:7], s[0:1], 72")
        d("s_memrealtime s[16:17]")
        d("v_lshlrev_b32 v1, 4, v0")
        d("s_mov_b32 s10, 0x8000000")
        d("s_mov_b32 s11, 0x00020000")
        d("s_waitcnt lgkmcnt(0)")
        d("s_mov_b32 s8, s6")
        d("s_and_b32 s9, s7, 0xffff")
        for k in range(16):
            d("s_mov_b32 s12, 0x%x" % (0x4000000 + k * 1024))
            d("buffer_load_dwordx4 v[%d:%d], v1, s[8:11], s12 offen" % (4 + 4 * k, 7 + 4 * k))
        d("s_waitcnt vmcnt(0)")
        d("v_readfirstlane_b32 s13, v4")
        d("v_mov_b32 v2, 0")
        d("v_mov_b32 v3, 0")
        for k in range(16):
            d("v_subrev_u32 v%d, s13, v%d" % (4 + 4 * k, 4 + 4 * k))
            d("v_subrev_u32 v%d, s13, v%d" % (5 + 4 * k, 4 + 4 * k + (P["diag"] & 3)))
            d("v_min_i32 v2, v2, v%d" % (4 + 4 * k))
            d("v_max_i32 v3, v3, v%d" % (5 + 4 * k))
        d("s_mov_b32 s14, 0")
        d("s_mov_b32 s15, 0")
        for l in range(64):
            d("v_readlane_b32 s18, v2, %d" % l)
            d("v_readlane_b32 s19, v3, %d" % l)
            d("s_nop 3")
            d("s_min_i32 s14, s14, s18")
            d("s_max_i32 s15, s15, s19")
        if P["diag"] & 4:
            d("s_sub_u32 s14, s16, s13")
            d("s_sub_u32 s15, s14, s15")
        else:
            d("s_sub_u32 s15, s15, s14")
        d("s_sub_u32 s15, s15, %d" % P["doff"])
        d("s_max_i32 s15, s15, 0")
        d("s_min_i32 s15, s15, 10000")
        d("s_mul_i32 s15, s15, %d" % P["dmul"])
        d("s_add_u32 s15, s15, s16")
        d.label("L_dl")
        d("s_memrealtime s[18:19]")
        d("s_waitcnt lgkmcnt(0)")
        d("s_sub_u32 s18, s18, s15")
        d("s_cmp_lt_i32 s18, 0")
        d("s_cbranch_scc1 L_dl")
        d.lines.append("L_dx:")
        d("s_endpgm")
        diag = d.text()
    out = HEADER.replace("gen.py", "gen6.py").format(params=" ".join("%s=%s" % kv for kv in sorted(P.items())))
    if FU:
        out += "; @launch kernel=%s grid=(%d,1,1) block=(%d,1,1) lds=%d\n" % (k1, NWG, (NW + NHX) * 64, LDS1)
    else:
        out += "; @launch kernel=%s grid=(%d,1,1) block=(%d,1,1) lds=%d\n" % (k1, NWG, (NW + NHX) * 64, LDS1)
        out += "; @launch kernel=%s grid=(%d,1,1) block=(%d,1,1) lds=%d\n" % (k2, H, DH, 0)
    if diag:
        out += "; @launch kernel=diag_kernel grid=(1,1,1) block=(64,1,1) lds=0\n"
    out += '.amdgcn_target "amdgcn-amd-amdhsa--gfx950"\n.text\n'
    out += main_text if FU else e.text()
    out += diag
    out += '.section .rodata,"a"\n.p2align 6\n'
    out += kd(k1, NVGPR + (8 if P["xb"] else 2 if P["stamp"] == 5 else 0), 102)
    if not FU:
        out += ".p2align 6\n"
        out += kd(k2, NV2, 24)
    if diag:
        out += ".p2align 6\n"
        out += kd("diag_kernel", 72, 24)
    return out


DEFAULTS = dict(grp="6-6-6", n0=4, trg=1, ta=14, tb=15, jit=1, pace=1, nr0=1, nr=3, nt="nt", ldspad=0, stamp=0, xkp=0, force=0, clip=1400,
                l2t=290, th=200, pf=1, ob=2, ox=0, ds=1, td=3, tdm=3, fuse=1, cw=1,
                lx=0, wo=0, ns0=8, tw=1, ov="0000", st="sc1", xv="", h4=0, bnt=0, vw=1, at=1, tc=40, tg=2, te=44, aq=16, ka=9, kb=2048, dmin=0, dmax=11,
                bc=1, cpk="9-17-25-33-41", cpv="1-9-17-25-33", rd=2, ka2=8, kb2=512, bmax=6, be=1, pw=2, il=1, xp=0, ss=0, eb=0, pfi=0, hs=0, l2p=0, gts="16-32-48-64-80", gn=8, gtol=25, gcap=1000, gq=0, gl2=0, xb=0, diag=0, doff=20000, dmul=8, fc=4, elk=1, cd=9, fd=0, prio=0, bp=0, bp0=0, bq=0)


def main():
    P = dict(DEFAULTS)
    outp = None
    args = sys.argv[1:]
    i = 0
    while i < len(args):
        a = args[i]
        if a == "-o":
            outp = args[i + 1]; i += 2; continue
        k, v = a.split("=", 1)
        assert k in P, k
        P[k] = type(P[k])(v.replace("+", " ")) if isinstance(P[k], str) else int(v)
        i += 1
    s = gen(P)
    if outp:
        open(outp, "w").write(s)
    else:
        sys.stdout.write(s)


if __name__ == "__main__":
    main()
```

```python
import re
import sys
import math
from gen import f32hex, HEADER, NAME, H, SKV, DH, G, NGRP, ROWB, HEADB
from gen4 import Emit4

PART_STRIDE = 1024
NW = 4
NH = 3
NWG = 256
NT = 48
WS_G = 8 << 20
FSTR = 4096 + 256
WS_ML = 0xe0000
WS_B = 0x120000
WS_L = 2 << 20
WS_T = 0x9c0000
WS_SIZE = 10 << 20
BIGNEG = 0xf149f2ca


def gen(P):
    global WS_L, WS_T
    WS_L = P["wl"] << 10
    WS_T = P["wt"] << 10
    assert P["sw"] or not P["dc"]
    GR = [int(x) for x in P["grp"].split("-")]
    assert sum(GR) == 18 and len(GR) >= 2
    NG = len(GR)
    GOFF = [sum(GR[:k]) for k in range(NG)]
    OV = [int(x) for x in P["ov"]]
    N0 = P["n0"]
    NR = P["nr"]
    TRG1 = N0 - P["trg"]
    TA = P["ta"]
    TB = P["tb"]
    assert 2 <= TRG1 < N0 < TA < TB < 16 and 1 <= NR <= 7 and N0 <= 8
    pol = (" " + P["nt"]) if P["nt"] else ""
    C = (DH ** -0.5) * math.log2(math.e)
    L_DEC = 0
    L_GO = 24
    L_PC = 36
    L_CF = 40
    L_FD = 52
    L_EV = 56
    L_CA = 64
    L_ML = 80
    L_TC = 128
    L_TD = 132
    L_EL = 136
    L_TM = 144
    L_GT = 208
    L_LG = 256
    PHI = 6144
    IMG = 3 * PHI
    L_PV = L_LG + IMG
    L_ACC = L_PV + 192 * 128
    LDS1 = max(L_ACC + 3 * NW * ROWB, P["ldspad"])

    e = Emit4()
    V_T = 1; V_J16 = 2; V_J8 = 3; V_LB0 = 4; V_PB0 = 5; V_PV = 6; V_PVN = 7; V_DO = 8; V_PO = 9; V_T0 = 10; V_T1 = 11
    V_ACC = 12; V_W = 24; V_RAW = 36
    V_OFF = 48; V_OFF6 = 49; V_TM = 50; V_BIG = 51; V_T2 = 52; V_Z = 53
    V_S = 54
    V_D = 60
    V_T128 = 62; V_TMX = 63
    V_RING = 64
    NVGPR = V_RING + 72
    S_G = 3; S_M = 4; S_N = 5; S_SPIN = 6; S_LDC = 7
    S_K = 8; S_V = 12; S_KS = 16; S_Q = 20; S_WS = 24
    S_WAVE = 28; S_CI = 29; S_I = 30; S_QOFF = 31
    S_T = 32
    S_EV = 40; S_STM = 42; S_HB = 44; S_768 = 45; S_384 = 46; S_MAGIC = 47
    S_NB = 48; S_TD = 49; S_XB = 50; S_LB = 53
    S_ST = 54; S_DBG = 56
    S_BO = 59; S_TW = 60; S_CPA = 62; S_NBO = 63; S_BP = 72
    S_MP = 64; S_MG = 66; S_MR = 68; S_MO = 70
    BC = P["bc"]
    NHX = NH + (1 if BC else 0)
    CPK = [int(x) for x in P["cpk"].split("-")] if BC and P["cpk"] else []
    CPV = [int(x) for x in P["cpv"].split("-")] if BC and P["cpv"] else []
    if BC:
        CPV.append(P["tc"])
        assert P["te"] == P["tc"] + P["tg"] + P["rd"] and len(CPK) + len(CPV) <= 16

    GTS = [int(x) for x in P["gts"].split("-")] if BC and P["gts"] else []

    def set_masks(ev, cps):
        mp = sum(1 << c for c in cps)
        allm = [(S_EV, ev | mp | (mp << P["tg"]) | (mp << (P["tg"] + P["rd"])))]
        if BC:
            allm += [(S_MP, mp), (S_MG, mp << P["tg"]), (S_MR, mp << (P["tg"] + P["rd"])), (S_MO, ev)]
        for r, v in allm:
            assert v < (1 << 48)
            e("s_mov_b32 s%d, 0x%x" % (r, v & 0xffffffff))
            e("s_mov_b32 s%d, 0x%x" % (r + 1, v >> 32))

    FU = P["fuse"]
    k1 = NAME + "_kernel" if FU else "part_kernel"
    e.lines.append(".globl %s" % k1)
    e.lines.append(".p2align 8")
    e.lines.append(".type %s,@function" % k1)
    e.lines.append(k1 + ":")
    e("s_cmp_ge_u32 s2, %d" % NWG)
    e("s_cbranch_scc1 L_exit1")
    e("s_load_dwordx16 s[64:79], s[0:1], 0")
    e("s_load_dwordx4 s[80:83], s[0:1], 64")
    if P["stamp"]:
        e("s_memrealtime s[%d:%d]" % (S_ST, S_ST + 1))
    e("v_lshrrev_b32 v%d, 6, v0" % V_T0)
    e("v_and_b32 v%d, 63, v0" % V_T1)
    e("v_readfirstlane_b32 s%d, v%d" % (S_WAVE, V_T0))
    if P["eb"] == 4:
        e("v_lshlrev_b32 v%d, 2, v%d" % (V_T0, V_T1))
        e("v_mov_b32 v%d, 0" % V_Z)
        e("ds_write_b32 v%d, v%d" % (V_T0, V_Z))
    e("s_lshr_b32 s%d, s2, 3" % S_G)
    e("s_and_b32 s%d, s2, 7" % S_M)
    e("s_lshr_b32 s%d, s2, 6" % S_T)
    e("s_xor_b32 s%d, s%d, s%d" % (S_T, S_T, S_M))
    e("s_lshr_b32 s%d, s%d, 1" % (S_NB, S_T))
    e("s_and_b32 s%d, s%d, 1" % (S_T, S_T))
    e("s_lshl_b32 s%d, s%d, 2" % (S_T, S_T))
    e("s_or_b32 s%d, s%d, s%d" % (S_NB, S_NB, S_T))
    if P["eb"] != 4:
        e("s_cmp_ge_u32 s%d, %d" % (S_WAVE, NW))
        e("s_cbranch_scc1 L_helper")

    def srd(dst, ptr, nbytes):
        e("s_mov_b32 s%d, s%d" % (dst, ptr))
        e("s_and_b32 s%d, s%d, 0xffff" % (dst + 1, ptr + 1))
        e("s_mov_b32 s%d, %d" % (dst + 2, nbytes))
        e("s_mov_b32 s%d, 0x00020000" % (dst + 3))

    def lds_wait(tag, vz, vt, st, off, cond, spin, vaddr=None):
        e("s_mov_b32 s%d, 0x100000" % spin)
        e.label("L_w" + tag)
        e("ds_read_b32 v%d, v%d offset:%d" % (vt, vz if vaddr is None else vaddr, off))
        e("s_sub_u32 s%d, s%d, 1" % (spin, spin))
        e("s_cbranch_scc1 L_exit1")
        e("s_waitcnt lgkmcnt(0)")
        e("v_readfirstlane_b32 s%d, v%d" % (st, vt))
        if cond == "nz":
            e("s_cmp_eq_u32 s%d, 0" % st)
        else:
            e("s_cmp_lt_u32 s%d, %s" % (st, cond))
        e("s_cbranch_scc1 L_w" + tag)

    def gate(b, tag, check):
        if b not in GTS:
            return
        if check:
            e("s_cmp_eq_u32 s%d, %d" % (S_I, b % 48))
            e("s_cbranch_scc0 L_gx" + tag)
        e("s_memrealtime s[%d:%d]" % (S_T + 4, S_T + 5))
        lds_wait("g" + tag, V_Z, V_T0, S_T, L_GT + 4 * GTS.index(b), "nz", S_SPIN)
        e("s_and_b32 s%d, s%d, 0xffff" % (S_T, S_T))
        e("s_cbranch_scc0 L_gx" + tag)
        if P["stamp"] == 5:
            e("s_lshl_b32 s%d, s%d, 16" % (S_T + 1, S_T))
            e("s_add_u32 s%d, s%d, s%d" % (S_NBO, S_NBO, S_T + 1))
        e("s_add_u32 s%d, s%d, s%d" % (S_T, S_T, S_T + 4))
        e.label("L_gl" + tag)
        e("s_memrealtime s[%d:%d]" % (S_T + 4, S_T + 5))
        e("s_waitcnt lgkmcnt(0)")
        e("s_sub_u32 s%d, s%d, s%d" % (S_T + 4, S_T + 4, S_T))
        e("s_cmp_lt_i32 s%d, 0" % (S_T + 4))
        e("s_cbranch_scc1 L_gl" + tag)
        e.label("L_gx" + tag)

    def get_table(kind, tag):
        if tag == "tv":
            gate(48, tag, False)
        else:
            for b in ((16, 32) if kind == "K" else (64, 80)):
                gate(b, "%s%d" % (tag, b), True)
        e("s_lshr_b32 s%d, s%d, 4" % (S_T + 1, S_I))
        e("s_lshl_b32 s%d, s%d, 2" % (S_T + 2, S_T + 1))
        if P["stamp"] == 6:
            e("s_memrealtime s[%d:%d]" % (S_T + 4, S_T + 5))
            e("s_lshl_b32 s%d, s2, 2" % S_T)
            e("s_add_u32 s%d, s%d, s%d" % (S_T, S_T, S_WAVE))
            e("s_cmp_eq_u32 s%d, 400" % S_T)
            e("s_cselect_b64 exec, 1, 0")
            e("s_waitcnt lgkmcnt(0)")
            e("s_sub_u32 s%d, s%d, s%d" % (S_T + 4, S_T + 4, S_ST))
            e("v_mov_b32 v%d, s%d" % (V_T1, S_T + 4))
            e("buffer_store_dword v%d, off, s[%d:%d], s%d offset:%d" % (V_T1, S_WS, S_WS + 3, S_T + 2, 40 if kind == "K" else 52))
            e("s_mov_b64 exec, -1")
        e("v_mov_b32 v%d, s%d" % (V_T1, S_T + 2))
        if kind == "K":
            load_q(S_T + 1, False)
        lds_wait(tag, V_Z, V_T0, S_T, L_DEC if kind == "K" else L_GO, "nz", S_SPIN, V_T1)
        e("s_and_b32 s%d, s%d, 7" % (S_N, S_T))
        e("s_xor_b32 s%d, s%d, s%d" % (S_N, S_N, S_NB))
        e("s_bitcmp1_b32 s%d, 3" % S_T)
        e("s_cselect_b64 vcc, -1, 0")
        e("v_cndmask_b32 v%d, v%d, v%d, vcc" % (V_TM, V_T128, V_TMX))

    def load_q(ph, track):
        e("s_lshl_b32 s%d, s%d, 5" % (S_QOFF, ph))
        e("s_add_u32 s%d, s%d, s%d" % (S_QOFF, S_QOFF, S_G))
        e("s_mul_i32 s%d, s%d, 171" % (S_QOFF, S_QOFF))
        e("s_lshr_b32 s%d, s%d, 9" % (S_QOFF, S_QOFF))
        e("s_mul_i32 s%d, s%d, %d" % (S_QOFF, S_QOFF, DH * 2))
        for c in range(3):
            r = V_RAW + 2 * c
            s = "buffer_load_dwordx2 v[%d:%d], v%d, s[%d:%d], s%d offen offset:%d" % (r, r + 1, V_J8, S_Q, S_Q + 3, S_QOFF, c * 128)
            if track:
                e.vmem(s, "p")
            else:
                e(s)

    def tile_addr(kind):
        ch, a, b = S_T, S_T + 1, S_T + 2
        e("s_lshr_b32 s%d, s%d, 6" % (a, S_CI))
        e("s_lshl_b32 s%d, s%d, 11" % (a, a))
        e("s_and_b32 s%d, s%d, 63" % (ch, S_CI))
        e("s_add_u32 s%d, s%d, s%d" % (ch, ch, a))
        e("s_add_u32 s%d, s%d, s%d" % (ch, ch, S_HB))
        e("s_bfe_u32 s%d, s%d, 0x20003" % (a, ch))
        e("s_and_b32 s%d, s%d, 4" % (b, ch))
        e("s_or_b32 s%d, s%d, s%d" % (a, a, b))
        e("s_xor_b32 s%d, s%d, s%d" % (a, a, S_N))
        e("s_lshl_b32 s%d, s%d, 5" % (S_XB, ch))
        e("s_or_b32 s%d, s%d, s%d" % (S_XB, S_XB, a))
        e("s_lshl_b32 s%d, s%d, 4" % (S_XB, S_XB))
        e("s_or_b32 s%d, s%d, 1" % (S_XB, S_XB))
        if kind == "V":
            e("s_lshl_b32 s%d, s%d, 7" % (S_LB, S_CI))
        e("v_xor_b32 v%d, s%d, v%d" % (V_T0, S_XB, V_TM))
        e("v_mul_hi_u32 v%d, v%d, s%d" % (V_T0, V_T0, S_MAGIC))
        e("v_lshrrev_b32 v%d, 1, v%d" % (V_T0, V_T0))
        e("v_and_b32 v%d, 15, v%d" % (V_T1, V_T0))
        e("v_cmp_eq_u32 vcc, 5, v%d" % V_T1)
        e("v_mad_u32_u24 v%d, v%d, s%d, v%d" % (V_OFF, V_T0, S_768, V_J16))
        e("v_add_u32 v%d, %d, v%d" % (V_T1, 5 * ROWB, V_OFF))
        e("v_cndmask_b32 v%d, v%d, v%d, vcc" % (V_OFF6, V_BIG, V_T1))
        if kind == "K":
            e("v_lshrrev_b32 v%d, 6, v%d" % (V_T0, V_T0))
            e("v_mad_u32_u24 v%d, v%d, s%d, v%d" % (V_PO, V_T0, S_384, V_J8))
        else:
            e("v_add_u32 v%d, s%d, v%d" % (V_T0, S_LB, V_PB0))

    def issue_params(kind):
        if kind == "K":
            if P["xkp"] & 2:
                return
            for c in range(3):
                r = V_RAW + 6 + 2 * c
                e.vmem("buffer_load_dwordx2 v[%d:%d], v%d, s[%d:%d], 0 offen offset:%d%s" %
                       (r, r + 1, V_PO, S_KS, S_KS + 3, c * 128, " nt" if P["bnt"] & 4 else ""), "p")
            if P["xb"] & 2:
                for c in range(3):
                    r = NVGPR + 2 + 2 * c
                    e.vmem("buffer_load_dwordx2 v[%d:%d], v%d, s[%d:%d], 0 offen offset:%d" % (r, r + 1, V_PO, 76, 79, c * 128), "p")
        else:
            e("ds_read_b32 v%d, v%d" % (V_PVN, V_T0))

    def issue_group(k, kind, pol=pol):
        srdb = S_K if kind == "K" else S_V
        for l in range(GOFF[k], GOFF[k] + GR[k]):
            r = V_RING + l * 4
            if l < 15:
                vo, off = V_OFF, l * 256
            else:
                vo, off = V_OFF6, (l - 15) * 256
            e.vmem("buffer_load_dwordx4 v[%d:%d], v%d, s[%d:%d], 0 offen offset:%d%s" %
                   (r, r + 3, vo, srdb, srdb + 3, off, pol), "g%d" % k)

    def compute_w():
        e.wait_tag("p")
        for p in range(6):
            rq = V_RAW + p; rs = V_RAW + 6 + p
            i0 = 2 * p
            e("v_lshlrev_b32 v%d, 16, v%d" % (V_T0, rq))
            e("v_lshlrev_b32 v%d, 16, v%d" % (V_W + i0, rs))
            e("v_and_b32 v%d, 0xffff0000, v%d" % (V_T1, rq))
            e("v_and_b32 v%d, 0xffff0000, v%d" % (V_W + i0 + 1, rs))
            e("v_mul_f32 v%d, v%d, v%d" % (V_W + i0, V_W + i0, V_T0))
            e("v_mul_f32 v%d, v%d, v%d" % (V_W + i0 + 1, V_W + i0 + 1, V_T1))

    def advance(kind, to_v, tag):
        nkind = "V" if to_v else kind
        if to_v:
            e("s_mov_b32 s%d, s%d" % (S_CI, S_WAVE))
            e("s_mov_b32 s%d, 0" % S_I)
            get_table("V", "tv")
            ev = (1 << 16) | (1 << 32)
            if P["at"] and not BC:
                ev |= (1 << P["tc"]) | (1 << (P["tc"] + P["tg"])) | (1 << P["te"])
            e("s_mov_b32 s%d, %d" % (S_TD, NT - P["td"] if P["td"] else 255))
            set_masks(ev, CPV)
        else:
            e("s_add_u32 s%d, s%d, %d" % (S_CI, S_CI, NW))
            e("s_add_u32 s%d, s%d, 1" % (S_I, S_I))
            if tag:
                e("s_bitcmp1_b64 s[%d:%d], s%d" % (S_EV, S_EV + 1, S_I))
                sfx = tag if isinstance(tag, str) else ""
                e("s_cbranch_scc1 L_ev%s%s" % (kind, sfx))
                e.flush()
                e.label("L_evret%s%s" % (kind, sfx))
        if P["stamp"] == 4:
            e("s_memrealtime s[%d:%d]" % (S_DBG, S_DBG + 1))
            e("s_add_u32 s%d, s%d, 4" % (S_DBG + 2, S_DBG + 2))
            e("s_waitcnt lgkmcnt(0)")
            e("v_mov_b32 v%d, s%d" % (V_T2, S_DBG))
            e("s_mov_b64 exec, 1")
            e("buffer_store_dword v%d, off, s[%d:%d], s%d" % (V_T2, S_WS, S_WS + 3, S_DBG + 2))
            e("s_mov_b64 exec, -1")
        if P["stamp"] == 5:
            e("s_memrealtime s[%d:%d]" % (S_DBG, S_DBG + 1))
            e("s_add_u32 m0, m0, 1")
            e("s_waitcnt lgkmcnt(0)")
            e("v_writelane_b32 v%d, s%d, m0" % (NVGPR + (1 if kind == "V" else 0), S_DBG))
            if to_v:
                e("s_mov_b32 m0, -1")
        tile_addr(nkind)
        issue_params(nkind)

    def compute(k, kind):
        for l in range(GOFF[k], GOFF[k] + GR[k]):
            q, c = l // 3, l % 3
            base = V_RING + l * 4
            for r in range(4):
                e("v_cvt_f32_i32 v%d, v%d" % (base + r, base + r))
            if kind == "K":
                s = V_S + q
                for r in range(4):
                    if c == 0 and r == 0:
                        e("v_mul_f32 v%d, v%d, v%d" % (s, base, V_W))
                    else:
                        e("v_fmac_f32 v%d, v%d, v%d" % (s, base + r, V_W + 4 * c + r))
                if c == 2:
                    e.defer(["v_add_f32_dpp v%d, v%d, v%d row_ror:%d row_mask:0xf bank_mask:0xf" % (s, s, s, kk)
                             for kk in (8, 4, 2)] +
                            ["v_add_f32_dpp v%d, v%d, v%d row_ror:1 row_mask:0xf bank_mask:0x%x" %
                             (V_D + (q & 1), s, s, 1 << (q >> 1))])
            else:
                for r in range(4):
                    e("v_fmac_f32_dpp v%d, v%d, v%d row_newbcast:%d row_mask:0xf bank_mask:0xf" %
                      (V_ACC + 4 * c + r, V_PV, base + r, q))
        e.flush()

    def finish(kind, to_v):
        if kind == "K":
            e("s_mov_b64 exec, s[%d:%d]" % (S_STM, S_STM + 1))
            e("ds_write_b64 v%d, v[%d:%d]" % (V_LB0, V_D, V_D + 1))
            e("s_mov_b64 exec, -1")
            if not to_v:
                e("v_add_u32 v%d, 48, v%d" % (V_LB0, V_LB0))
                compute_w()
        if kind == "V" or to_v:
            e("s_waitcnt lgkmcnt(0)")
            e("v_mov_b32 v%d, v%d" % (V_PV, V_PVN))

    ELS = []

    def elect(k, kind, lo=0):
        if P["fc"] == 4 and kind == "V" and k == max(P["elk"], lo):
            tag = "L_el%d" % len(ELS)
            ELS.append(tag)
            e("s_cmp_eq_u32 s%d, %d" % (S_I, NT))
            e("s_cbranch_scc1 %s" % tag)
            e.lines.append(tag + "r:")

    def body(kind, to_v=False, first=False):
        nkind = "V" if to_v else kind
        for k in range(NG):
            ov = OV[k] if not first else 0
            if ov:
                i = e.vm.index("g%d" % k) + GR[k] - ov
                e("s_waitcnt vmcnt(%d)" % (len(e.vm) - i))
                e.vm = e.vm[i:]
            else:
                e.wait_tag("g%d" % k)
            if k + 1 < NG:
                if not first:
                    issue_group(k + 1, kind)
            else:
                issue_group(0, nkind)
            if ov:
                e("s_waitcnt vmcnt(%d)" % (len(e.vm) - ov))
                e.vm = e.vm[ov:]
            if k == NG - 2:
                advance(kind, to_v, not first)
            elect(k, kind, NG - 2)
            compute(k, kind)
        finish(kind, to_v)

    def body_deep(mode):
        if mode == 3:
            advance("V", False, False)
        for k in range(NG):
            i = e.vm.index("g%d" % k) + GR[k]
            e("s_waitcnt vmcnt(%d)" % (len(e.vm) - i))
            e.vm = e.vm[i:]
            if mode == 2:
                issue_group((k + 2) % NG, "V")
                if k == NG - 3:
                    advance("V", False, False)
            elect(k, "V")
            compute(k, "V")
            if mode == 3:
                issue_group(k, "V", "" if P["xkp"] & 256 else pol)
        finish("V", False)

    def body_boost(kind):
        for k in range(1, NG):
            issue_group(k, kind)
        e("s_sub_u32 s%d, s%d, 1" % (S_BO, S_BO))
        if P["stamp"] == 5:
            e("s_add_u32 s%d, s%d, 256" % (S_NBO, S_NBO))
        advance(kind, False, "B")
        for k in range(NG):
            e.wait_tag("g%d" % k)
            if k == NG - 1 and not P["be"]:
                issue_group(0, kind)
            elect(k, kind)
            compute(k, kind)
            if k == 0 and P["be"]:
                issue_group(0, kind)
        finish(kind, False)

    def lds_inc(off, vz, vt):
        e("v_mov_b32 v%d, 1" % vt)
        e("s_mov_b64 exec, 1")
        e("ds_add_u32 v%d, v%d offset:%d" % (vz, vt, off))
        e("s_mov_b64 exec, -1")

    if P["prio"]:
        e("s_setprio %d" % P["prio"])
    e("v_lshrrev_b32 v%d, 4, v%d" % (V_T, V_T1))
    e("v_and_b32 v%d, 15, v%d" % (V_T2, V_T1))
    e("v_lshlrev_b32 v%d, 4, v%d" % (V_J16, V_T2))
    e("v_lshlrev_b32 v%d, 3, v%d" % (V_J8, V_T2))
    e("v_lshlrev_b32 v%d, 7, v%d" % (V_T128, V_T))
    e("v_and_b32 v%d, 0x70, v0" % V_TMX)
    e("v_or_b32 v%d, v%d, v%d" % (V_TMX, V_TMX, V_T128))
    e("v_mov_b32 v%d, v%d" % (V_TM, V_TMX))
    if P["h4"]:
        e("v_and_b32 v%d, 0x%x, v%d" % (V_T128, 0xffffff8f | (P["h4"] << 4), V_TMX))
    e("s_mov_b32 s%d, %d" % (S_768, ROWB))
    e("s_mov_b32 s%d, %d" % (S_384, DH * 2))
    e("s_mov_b32 s%d, 0xaaaaaaab" % S_MAGIC)
    e("v_mov_b32 v%d, 0xc0000000" % V_BIG)
    e("s_lshl_b32 s%d, s%d, 6" % (S_HB, S_G))
    e("s_mov_b32 s%d, s%d" % (S_N, S_NB))
    e("s_mov_b32 s%d, s%d" % (S_CI, S_WAVE))
    tile_addr("K")
    SS = P["ss"]
    EB = P["eb"]
    if SS:
        e("s_memrealtime s[84:85]")
    if EB == 3:
        e("s_barrier")
    e("s_waitcnt lgkmcnt(0)")
    if SS:
        e("s_memrealtime s[86:87]")
    if EB == 2:
        e("s_barrier")
    if EB == 4:
        e("s_cmp_ge_u32 s%d, %d" % (S_WAVE, NW))
        e("s_barrier")
        e("s_cbranch_scc1 L_helper")
    e("s_mov_b32 s%d, 0" % S_I)
    if P["xb"] & 2:
        srd(76, 72, H * NGRP * DH * 2)
    if P["pfi"]:
        srd(S_Q, 64, H * DH * 2)
        load_q(S_I, True)
        srd(S_KS, 70, H * NGRP * DH * 2)
        issue_params("K")
    srd(S_K, 66, H * HEADB)
    issue_group(0, "K")
    if EB == 1:
        e("s_barrier")
    if not P["pfi"]:
        srd(S_Q, 64, H * DH * 2)
        load_q(S_I, True)
        srd(S_KS, 70, H * NGRP * DH * 2)
        issue_params("K")
    if P["ds"]:
        for k in range(1, NG):
            issue_group(k, "K")
    if SS:
        e("s_memrealtime s[88:89]")
    srd(S_V, 68, H * HEADB)
    if P["stamp"] == 6:
        srd(S_WS, 80, 256)
    elif P["stamp"]:
        srd(S_WS, 82, 0x8000000)
    if P["stamp"] == 5:
        e("s_mov_b32 m0, -1")
    if P["stamp"] in (4, 5):
        e("s_mul_i32 s%d, s2, %d" % (S_DBG + 2, NW))
        e("s_add_u32 s%d, s%d, s%d" % (S_DBG + 2, S_DBG + 2, S_WAVE))
        e("s_lshl_b32 s%d, s%d, 9" % (S_DBG + 2, S_DBG + 2))
        e("s_add_u32 s%d, s%d, 0x4010000" % (S_DBG + 2, S_DBG + 2))
    e("v_lshlrev_b32 v%d, 5, v%d" % (V_T1, V_T))
    e("v_bfe_u32 v%d, v0, 4, 3" % V_LB0)
    e("v_mul_u32_u24 v%d, s%d, v%d" % (V_LB0, S_768, V_LB0))
    e("v_lshl_add_u32 v%d, v%d, 1, v%d" % (V_LB0, V_T2, V_LB0))
    e("s_lshr_b32 s%d, s%d, 1" % (S_T, S_WAVE))
    e("s_mul_i32 s%d, s%d, 24" % (S_T, S_T))
    e("s_add_u32 s%d, s%d, %d" % (S_T, S_T, L_LG))
    e("v_add_u32 v%d, s%d, v%d" % (V_LB0, S_T, V_LB0))
    e("v_and_b32 v%d, 7, v%d" % (V_PB0, V_T2))
    e("v_lshl_add_u32 v%d, v%d, 2, v%d" % (V_PB0, V_PB0, V_T1))
    e("v_add_u32 v%d, %d, v%d" % (V_PB0, L_PV, V_PB0))
    e("v_lshlrev_b32 v%d, 2, v%d" % (V_DO, V_T))
    e("v_add_u32 v%d, v%d, v%d" % (V_DO, V_J16, V_DO))
    e("s_mul_i32 s%d, s%d, %d" % (S_T, S_WAVE, ROWB))
    e("s_add_u32 s%d, s%d, %d" % (S_T, S_T, L_ACC))
    e("v_add_u32 v%d, s%d, v%d" % (V_DO, S_T, V_DO))
    e("v_mov_b32 v%d, 0" % V_Z)
    e("v_mov_b32 v%d, 0" % V_D)
    e("v_mov_b32 v%d, 0" % (V_D + 1))
    e("s_mov_b32 s%d, 0x01110111" % S_STM)
    e("s_mov_b32 s%d, 0x01110111" % (S_STM + 1))
    ev = (1 << TRG1) | (1 << N0) | (3 << 16) | (3 << 32) | (((1 << TA) | (1 << TB)) * 0x100010001)
    set_masks(ev, CPK)
    if BC:
        e("s_mov_b32 s%d, 0" % S_BO)
        e("s_mov_b32 s%d, 0" % S_NBO)
        e("s_mov_b32 s%d, 0" % S_LDC)
        e("s_mov_b32 s%d, %d" % (S_CPA, L_TM))
    for i in range(12):
        e("v_mov_b32 v%d, 0" % (V_ACC + i))
    if SS:
        e("s_memrealtime s[90:91]")
    if not EB:
        e("s_barrier")
    if SS:
        e("s_memrealtime s[92:93]")
        e("s_waitcnt vmcnt(23)")
        e("s_memrealtime s[94:95]")
        e("s_waitcnt vmcnt(18)")
        e("s_memrealtime s[96:97]")
    compute_w()
    if SS:
        e("s_memrealtime s[98:99]")
        e("s_waitcnt lgkmcnt(0)")
        for k in range(8):
            e("v_writelane_b32 v%d, s%d, %d" % (NVGPR + 1, 84 + 2 * k, 48 + k))
    steady = ["g0"] * GR[0]
    if P["ds"]:
        body("K", first=True)
    e.vm = list(steady)
    e.lines.append(".p2align 6")
    e.label("L_kloop")
    body("K")
    assert e.vm == steady, (e.vm, steady)
    if BC:
        e.label("L_kchk")
        e("s_cmp_lg_u32 s%d, 0" % S_BO)
        e("s_cbranch_scc1 L_kboost")
        e.label("L_kchk2")
    e("s_cmp_lg_u32 s%d, %d" % (S_I, NT - 1))
    e("s_cbranch_scc1 L_kloop")
    body("K", True)
    lds_inc(L_CF + 8, V_Z, V_T1)
    if P["stamp"] == 1:
        e("s_memrealtime s[%d:%d]" % (S_DBG, S_DBG + 1))
    e.lines.append(".p2align 6")
    e.label("L_vloop")
    body("V")
    assert e.vm == steady, (e.vm, steady)
    if BC:
        e.label("L_vchk")
    if P["td"] or P["at"]:
        e("s_cmp_eq_u32 s%d, s%d" % (S_I, S_TD))
        e("s_cbranch_scc1 L_deep")
    if BC:
        e("s_cmp_lg_u32 s%d, 0" % S_BO)
        e("s_cbranch_scc1 L_vboost")
    e("s_and_b32 s%d, s%d, 15" % (S_T, S_I))
    e("s_cbranch_scc1 L_vloop")
    e.label("L_vend")
    for c in range(3):
        a = V_ACC + 4 * c
        e("v_permlane32_swap_b32 v%d, v%d" % (a, a + 2))
        e("v_permlane32_swap_b32 v%d, v%d" % (a + 1, a + 3))
    for c in range(3):
        a = V_ACC + 4 * c
        e("v_add_f32 v%d, v%d, v%d" % (a, a, a + 2))
        e("v_add_f32 v%d, v%d, v%d" % (a + 1, a + 1, a + 3))
    for c in range(3):
        a = V_ACC + 4 * c
        e("v_permlane16_swap_b32 v%d, v%d" % (a, a + 1))
    e("s_lshr_b32 s%d, s%d, 2" % (S_T, S_I))
    e("v_mov_b32 v%d, s%d" % (V_T0, S_T))
    for c in range(3):
        a = V_ACC + 4 * c
        e("v_add_f32 v%d, v%d, v%d" % (a, a, a + 1))
        e("ds_write_b32 v%d, v%d offset:%d" % (V_DO, a, c * 256))
    lds_inc(L_CA - 4, V_T0, V_T1)
    e("v_add_u32 v%d, %d, v%d" % (V_DO, NW * ROWB, V_DO))
    for i in range(12):
        e("v_mov_b32 v%d, 0" % (V_ACC + i))
    if BC:
        e("s_cmp_lg_u32 s%d, 0" % S_BO)
        e("s_cbranch_scc1 L_vboost2")
        e.label("L_vend2")
    e("s_cmp_lg_u32 s%d, %d" % (S_I, NT))
    e("s_cbranch_scc1 L_vloop")
    if P["stamp"] == 5 and BC:
        e("s_or_b32 s%d, s%d, s%d" % (S_LDC, S_LDC, S_NBO))
    if P["stamp"] == 6:
        e("s_memrealtime s[%d:%d]" % (S_T + 2, S_T + 3))
        e("s_not_b32 s%d, s%d" % (S_T, S_ST))
        e("v_mov_b32 v%d, s%d" % (V_ACC, S_T))
        e("s_waitcnt lgkmcnt(0)")
        e("v_mov_b32 v%d, s%d" % (V_ACC + 1, S_T + 2))
        e("s_mov_b64 exec, 1")
        e("s_cmp_lg_u32 s%d, 0" % S_WAVE)
        e("s_cbranch_scc1 L_exit1")
        e("buffer_atomic_umax v%d, off, s[%d:%d], 0 offset:32" % (V_ACC, S_WS, S_WS + 3))
        e("buffer_atomic_umax v%d, off, s[%d:%d], 0 offset:36" % (V_ACC + 1, S_WS, S_WS + 3))
    elif P["stamp"]:
        e("s_memrealtime s[%d:%d]" % (S_T + 2, S_T + 3))
        e("s_getreg_b32 s%d, hwreg(HW_REG_XCC_ID)" % (S_T + 4))
        e("s_waitcnt lgkmcnt(0)")
        e("v_mov_b32 v%d, s%d" % (V_ACC + 0, S_ST))
        e("v_mov_b32 v%d, s%d" % (V_ACC + 1, S_T + 2))
        e("v_mov_b32 v%d, s%d" % (V_ACC + 2, S_T + 4))
        e("v_mov_b32 v%d, s%d" % (V_ACC + 3, S_LDC if P["stamp"] == 5 else S_DBG))
        e("s_mul_i32 s%d, s2, %d" % (S_T, NW))
        e("s_add_u32 s%d, s%d, s%d" % (S_T, S_T, S_WAVE))
        e("s_lshl_b32 s%d, s%d, 4" % (S_T, S_T))
        e("s_add_u32 s%d, s%d, 0x4000000" % (S_T, S_T))
        e("buffer_store_dwordx4 v[%d:%d], v%d, s[%d:%d], s%d offen" % (V_ACC, V_ACC + 3, V_Z, S_WS, S_WS + 3, S_T))
        if P["stamp"] == 5:
            e("v_and_b32 v%d, 63, v0" % V_T0)
            e("v_lshlrev_b32 v%d, 2, v%d" % (V_T0, V_T0))
            e("s_mov_b32 exec_hi, 0xffff")
            e("buffer_store_dword v%d, v%d, s[%d:%d], s%d offen offset:4" % (NVGPR, V_T0, S_WS, S_WS + 3, S_DBG + 2))
            e("s_mov_b32 exec_hi, -1")
            e("buffer_store_dword v%d, v%d, s[%d:%d], s%d offen offset:196" % (NVGPR + 1, V_T0, S_WS, S_WS + 3, S_DBG + 2))
    e.lines.append("L_exit1:")
    e("s_endpgm")

    if P["td"] or P["at"]:
        e.label("L_deep")
        e.vm = list(steady)
        for k in range(1, P["tdm"] if NG == 3 else NG):
            issue_group(k, "V")
        deep = list(e.vm)
        e.lines.append(".p2align 6")
        e.label("L_dloop")
        body_deep(P["tdm"])
        assert e.vm == deep, (e.vm, deep)
        e("s_cmp_lg_u32 s%d, %d" % (S_I, NT))
        e("s_cbranch_scc1 L_dloop")
        e("s_branch L_vend")

    if BC:
        e.label("L_kboost")
        e("s_cmp_eq_u32 s%d, %d" % (S_I, NT - 1))
        e("s_cbranch_scc1 L_kchk2")
        e.vm = list(steady)
        body_boost("K")
        assert e.vm == steady, (e.vm, steady)
        e("s_branch L_kchk")
        e.label("L_vboost")
        e("s_and_b32 s%d, s%d, 15" % (S_T, S_I))
        e("s_cbranch_scc0 L_vend")
        e.label("L_vboost2")
        e("s_cmp_eq_u32 s%d, %d" % (S_I, NT))
        e("s_cbranch_scc1 L_vend2")
        body_boost("V")
        assert e.vm == steady, (e.vm, steady)
        e("s_branch L_vchk")

    for tag in ELS:
        e.label(tag)
        lds_inc(L_EL, V_Z, V_T1)
        e("s_branch %sr" % tag)

    def pace_events(kind, x):
        e("s_bitcmp1_b64 s[%d:%d], s%d" % (S_MP, S_MP + 1, S_I))
        e("s_cbranch_scc0 L_pa%s%s" % (kind, x))
        e("s_memrealtime s[%d:%d]" % (S_TW, S_TW + 1))
        e("s_mov_b32 s%d, s%d" % (S_BP, S_BO))
        lds_inc(L_TC, V_Z, V_T1)
        e.label("L_pa%s%s" % (kind, x))
        e("s_bitcmp1_b64 s[%d:%d], s%d" % (S_MG, S_MG + 1, S_I))
        e("s_cbranch_scc0 L_pb%s%s" % (kind, x))
        lds_inc(L_TC, V_Z, V_T1)
        e.label("L_pb%s%s" % (kind, x))
        e("s_bitcmp1_b64 s[%d:%d], s%d" % (S_MR, S_MR + 1, S_I))
        e("s_cbranch_scc0 L_pc%s%s" % (kind, x))
        e("v_mov_b32 v%d, s%d" % (V_T1, S_CPA))
        e("ds_read_b32 v%d, v%d" % (V_T0, V_T1))
        lds_inc(L_TC, V_Z, V_T1)
        e("s_add_u32 s%d, s%d, 4" % (S_CPA, S_CPA))
        e("s_waitcnt lgkmcnt(0)")
        e("v_readfirstlane_b32 s%d, v%d" % (S_T, V_T0))
        e("s_cmp_eq_u32 s%d, 0" % S_T)
        e("s_cbranch_scc1 L_pc%s%s" % (kind, x))
        e("s_sub_u32 s%d, s%d, s%d" % (S_T, S_TW, S_T))
        e("s_max_i32 s%d, s%d, -4096" % (S_T, S_T))
        e("s_min_i32 s%d, s%d, 4096" % (S_T, S_T))
        if kind == "V":
            e("s_cmp_eq_u32 s%d, %d" % (S_I, P["te"]))
            e("s_cbranch_scc0 L_pd%s" % x)
            e("s_mul_i32 s%d, s%d, %d" % (S_T, S_T, P["ka"]))
            e("s_add_u32 s%d, s%d, %d" % (S_T, S_T, P["kb"]))
            e("s_ashr_i32 s%d, s%d, 10" % (S_T, S_T))
            e("s_max_i32 s%d, s%d, %d" % (S_T, S_T, P["dmin"]))
            e("s_min_i32 s%d, s%d, %d" % (S_T, S_T, min(P["dmax"], NT - P["te"])))
            e("s_sub_u32 s%d, %d, s%d" % (S_TD, NT, S_T))
            e("s_cmp_eq_u32 s%d, %d" % (S_TD, NT))
            e("s_cselect_b32 s%d, 255, s%d" % (S_TD, S_TD))
            e("s_mov_b32 s%d, 0" % S_BO)
            if P["stamp"] == 5:
                e("s_mov_b32 s%d, s%d" % (S_LDC, S_TD))
            e("s_branch L_pc%s%s" % (kind, x))
            e.label("L_pd%s" % x)
        e("s_mul_i32 s%d, s%d, %d" % (S_T, S_T, P["ka2"]))
        e("s_add_u32 s%d, s%d, %d" % (S_T, S_T, P["kb2"]))
        e("s_ashr_i32 s%d, s%d, 10" % (S_T, S_T))
        e("s_sub_u32 s%d, s%d, s%d" % (S_T, S_T, S_BP))
        e("s_add_u32 s%d, s%d, s%d" % (S_T, S_T, S_BO))
        e("s_max_i32 s%d, s%d, 0" % (S_T, S_T))
        e("s_min_i32 s%d, s%d, %d" % (S_BO, S_T, P["bmax"]))
        e.label("L_pc%s%s" % (kind, x))
        e("s_bitcmp1_b64 s[%d:%d], s%d" % (S_MO, S_MO + 1, S_I))
        e("s_cbranch_scc0 L_evret%s%s" % (kind, x))

    for x in (("", "B") if BC else ("",)):
        e.label("L_evK" + x)
        if BC:
            pace_events("K", x)
        e("s_and_b32 s%d, s%d, 15" % (S_T, S_I))
        e("s_cbranch_scc0 L_evK2" + x)
        e("s_cmp_eq_u32 s%d, %d" % (S_I, N0))
        e("s_cbranch_scc1 L_evK2" + x)
        e("s_lshr_b32 s%d, s%d, 2" % (S_T + 1, S_I))
        e("s_andn2_b32 s%d, s%d, 3" % (S_T + 1, S_T + 1))
        e("s_add_u32 s%d, s%d, %d" % (S_T + 1, S_T + 1, L_CF - 4))
        e("s_cmp_eq_u32 s%d, 1" % S_T)
        e("s_cselect_b32 s%d, s%d, %d" % (S_T, S_T + 1, L_EV + 4))
        e("s_cselect_b32 s%d, %d, 0" % (S_T + 1, PHI - 768))
        e("v_add_u32 v%d, s%d, v%d" % (V_LB0, S_T + 1, V_LB0))
        e("s_cmp_eq_u32 s%d, %d" % (S_I, TRG1))
        e("s_cselect_b32 s%d, %d, s%d" % (S_T, L_EV, S_T))
        e("v_mov_b32 v%d, s%d" % (V_T0, S_T))
        lds_inc(0, V_T0, V_T1)
        e("s_branch L_evretK" + x)
        e.label("L_evK2" + x)
        if P["stamp"] == 2:
            e("s_cmp_eq_u32 s%d, %d" % (S_I, N0))
            e("s_cbranch_scc0 L_ns2")
            e("s_memrealtime s[%d:%d]" % (S_DBG, S_DBG + 1))
            e.label("L_ns2")
        get_table("K", "tk" + x)
        if P["stamp"] == 3:
            e("s_cmp_eq_u32 s%d, %d" % (S_I, N0))
            e("s_cbranch_scc0 L_evretK")
            e("s_memrealtime s[%d:%d]" % (S_DBG, S_DBG + 1))
        e("s_branch L_evretK" + x)
        e.label("L_evV" + x)
        if BC:
            pace_events("V", x)
        elif P["at"]:
            e("s_and_b32 s%d, s%d, 15" % (S_T, S_I))
            e("s_cbranch_scc0 L_evV2")
            e("s_cmp_eq_u32 s%d, %d" % (S_I, P["te"]))
            e("s_cbranch_scc1 L_evV3")
            lds_inc(L_TC, V_Z, V_T1)
            e("s_branch L_evretV")
            e.label("L_evV3")
            e("ds_read_b32 v%d, v%d offset:%d" % (V_T0, V_Z, L_TD))
            e("s_waitcnt lgkmcnt(0)")
            e("v_readfirstlane_b32 s%d, v%d" % (S_T, V_T0))
            e("s_cmp_eq_u32 s%d, 0" % S_T)
            e("s_cselect_b32 s%d, s%d, s%d" % (S_TD, S_TD, S_T))
            if P["stamp"] == 5:
                e("s_mov_b32 s%d, s%d" % (S_LDC, S_T))
            e("s_branch L_evretV")
            e.label("L_evV2")
        get_table("V", "tv2" + x)
        e("s_branch L_evretV" + x)

    PG = S_G; PM = S_M
    PNB = 5; PP = 6; PBK = 7
    PB = 8; PWS = 12; PDB = 16
    PO = 20; PFL = 21; PBASE = 22; PPR = 90
    PD = 24
    POF = 32
    PT = 40
    PMN = 44; PJ = 45; PRN = 46; PNR = 47
    PE = 48
    PRB = 56; PACC = 58; PGL = 59; PSP = 60; PPH = 61; PSG = 62; PG0 = 63
    PDC = 84
    PS2 = 92; PS3 = 96
    HL = 1; HZ = 2; HW = 3; HA = 4; HB_ = 5; HC = 6; HD = 7; HK = 8; HV = 9; HE = 10; HF = 11; HR = 12; HG = 13
    HN = 14; HT2 = 15
    HX = 16
    BIAS = 65536
    e.wr = {}; e.tr = {}
    e.label("L_helper")
    e("s_sub_u32 s%d, s%d, %d" % (PP, S_WAVE, NW))
    e("s_mov_b32 s%d, s%d" % (PNB, S_NB))
    e("v_and_b32 v%d, 63, v0" % HL)
    e("v_mov_b32 v%d, 0" % HZ)
    e("s_mul_i32 s%d, s%d, %d" % (PGL, PG, 8 * FSTR))
    e("s_add_u32 s%d, s%d, %d" % (PGL, PGL, WS_G))
    if EB and EB != 4:
        e("s_cmp_lg_u32 s%d, 0" % PP)
        e("s_cbranch_scc1 L_hbar")
        e("v_lshlrev_b32 v%d, 2, v%d" % (HB_, HL))
        e("ds_write_b32 v%d, v%d" % (HB_, HZ))
        e("s_waitcnt lgkmcnt(0)")
        e.label("L_hbar")
        e("s_barrier")
    if BC:
        e("s_cmp_eq_u32 s%d, 3" % PP)
        e("s_cbranch_scc1 L_h3")
    e("s_mul_i32 s%d, s%d, 10" % (PE, PP))
    e("s_sub_u32 s%d, s%d, 7" % (PE, PE))
    e("s_cmp_lt_i32 s%d, s%d" % (PG, PE))
    e("s_cselect_b32 s%d, 1, 0" % PPR)
    e("s_cbranch_scc0 L_noprobe1")
    e("s_max_u32 s%d, s%d, 1" % (PBK, PG))
    e("s_sub_u32 s%d, s%d, 1" % (PBK, PBK))
    e("s_lshr_b32 s%d, s%d, 1" % (PBK, PBK))
    e("s_lshl_b32 s%d, s%d, 1" % (PE + 1, PG))
    e("s_add_u32 s%d, s%d, s%d" % (PE + 1, PE + 1, PP))
    e("s_sub_u32 s%d, s%d, 1" % (PE + 1, PE + 1))
    e("s_bitcmp1_b32 s%d, 0" % PG)
    e("s_cselect_b32 s%d, 1, 4" % PE)
    e("s_cmp_eq_u32 s%d, 0" % PBK)
    e("s_cselect_b32 s%d, s%d, s%d" % (PE + 1, PE + 1, PE))
    e("s_and_b32 s%d, s%d, 1" % (PE, PE + 1))
    e("s_mul_i32 s%d, s%d, 20" % (PO, PE + 1))
    e("s_add_u32 s%d, s%d, s%d" % (PO, PO, PE))
    e("s_add_u32 s%d, s%d, 2" % (PO, PO))
    e("s_lshl_b32 s%d, s%d, 21" % (PO, PO))
    e("s_xor_b32 s%d, s%d, s%d" % (PFL, PM, PP))
    e("s_and_b32 s%d, s%d, 1" % (PFL, PFL))
    e("s_lshr_b32 s%d, s%d, 2" % (PE + 1, PM))
    e("s_xor_b32 s%d, s%d, s%d" % (PE, PE, PE + 1))
    e("s_xor_b32 s%d, s%d, s%d" % (PE, PE, PFL))
    e("s_lshl_b32 s%d, s%d, 13" % (PE, PE))
    e("s_lshl_b32 s%d, s%d, 14" % (PE + 1, PP))
    e("s_and_b32 s%d, s%d, 0x4000" % (PE + 1, PE + 1))
    e("s_or_b32 s%d, s%d, s%d" % (PE, PE, PE + 1))
    for u in range(8):
        e("s_xor_b32 s%d, s%d, 0x%x" % (POF + u, PE, ((u & 1) << 13) | (((u >> 1) & 1) << 12) | ((u >> 2) << 14)))
    e("v_and_b32 v%d, 7, v%d" % (HW, HL))
    e("v_lshlrev_b32 v%d, 12, v%d" % (HW, HW))
    e("s_lshl_b32 s%d, s%d, 8" % (PE, PM))
    e("v_add_u32 v%d, s%d, v%d" % (HW, PE, HW))
    e("s_mov_b32 s%d, %d" % (PB + 2, H * HEADB))
    e("s_mov_b32 s%d, 0x00020000" % (PB + 3))
    e("s_cmp_ge_u32 s%d, 3" % PBK)
    e("s_cselect_b32 s%d, 3, 0" % PE)
    e("s_sub_u32 s%d, s%d, s%d" % (PE, PBK, PE))
    e("s_lshl_b32 s%d, s%d, 28" % (PE, PE))
    e("s_add_u32 s%d, s%d, s%d" % (PO, PO, PE))
    e("s_cmp_ge_u32 s%d, 3" % PBK)
    e("s_waitcnt lgkmcnt(0)")
    e("s_cselect_b32 s%d, s68, s66" % PB)
    e("s_cselect_b32 s%d, s69, s67" % (PBASE + 1))
    e("s_and_b32 s%d, s%d, 0xffff" % (PB + 1, PBASE + 1))
    if not P["sw"]:
        e("s_mov_b64 exec, 0xff")
        e("buffer_load_dword v%d, v%d, s[%d:%d], s%d offen" % (HA, HW, PB, PB + 3, PO))
        e("s_mov_b64 exec, -1")
    e("s_add_u32 s%d, s%d, s%d" % (PBASE, PB, PO))
    e("s_addc_u32 s%d, s%d, 0" % (PBASE + 1, PBASE + 1))
    e("s_lshl_b32 s%d, s%d, 8" % (PE, PM))
    if P["sw"]:
        e("s_add_u32 s%d, s%d, s%d" % (PRB, PBASE, PE))
        e("s_addc_u32 s%d, s%d, 0" % (PRB + 1, PBASE + 1))
        for u in range(8):
            e("s_load_dword s%d, s[%d:%d], 0x%x" % (PD + u, PRB, PRB + 1, u * 4096))
        if P["dc"]:
            assert not P["wo"]
            srd(PWS, 82, WS_SIZE)
            e("s_lshl_b32 s%d, s2, 1" % PE)
            e("s_add_u32 s%d, s%d, s%d" % (PE, PE, PP))
            e("s_mul_i32 s%d, s%d, %d" % (PE, PE, 6 * FSTR))
            e("s_add_u32 s%d, s%d, %d" % (PE, PE, WS_G - 6 * FSTR))
            e("v_mul_u32_u24 v%d, %d, v%d" % (HB_, FSTR, HL))
            e("v_mov_b32 v%d, 0" % (HZ + 1))
            e("s_cmp_eq_u32 s%d, 0" % PBK)
            e("s_cselect_b64 exec, 0x3f, 0")
            e("buffer_store_dwordx2 v[%d:%d], v%d, s[%d:%d], s%d offen sc1" % (HZ, HZ + 1, HB_, PWS, PWS + 3, PE))
            e("s_mov_b64 exec, -1")
        for k in range(1, P["sw"]):
            e("s_waitcnt lgkmcnt(0)")
            e("s_load_dword s%d, s[%d:%d], 0x%x" % (PD, PRB, PRB + 1, k * 4096 + 128))
    else:
        e("s_add_u32 s%d, s%d, 128" % (PE, PE))
        e("s_load_dword s%d, s[%d:%d], s%d" % (PJ, PBASE, PBASE + 1, PE))
    e.label("L_noprobe1")
    e("s_waitcnt lgkmcnt(0)")
    srd(PWS, 82, WS_SIZE)
    if P["wo"]:
        e("s_add_u32 s%d, s%d, %d" % (PWS, PWS, P["wo"] << 20))
        e("s_addc_u32 s%d, s%d, 0" % (PWS + 1, PWS + 1))
    srd(PDB, 80, 256)
    if not EB:
        e("s_cmp_lg_u32 s%d, 0" % PP)
        e("s_cbranch_scc1 L_hbar")
        e("v_lshlrev_b32 v%d, 2, v%d" % (HB_, HL))
        e("ds_write_b32 v%d, v%d" % (HB_, HZ))
        e("s_waitcnt lgkmcnt(0)")
        e.label("L_hbar")
        e("s_barrier")
    if P["hs"]:
        e("s_mov_b32 s%d, 0" % (PD + 4))
    e("s_cmp_eq_u32 s%d, 0" % PPR)
    e("s_cbranch_scc1 L_role")
    e("s_mov_b32 s%d, 1" % PRN)
    e("s_mov_b32 s%d, 0" % PACC)
    e("s_cmp_eq_u32 s%d, 0" % PBK)
    e("s_cselect_b32 s%d, %d, %d" % (PNR, P["nr0"], NR))
    if not P["sw"]:
        e("s_waitcnt vmcnt(0)")
    e.label("L_round")
    e("s_add_u32 s%d, s%d, s%d" % (PE, PM, PRN))
    e("s_and_b32 s%d, s%d, 7" % (PE, PE))
    e("s_lshl_b32 s%d, s%d, 8" % (PE, PE))
    e("s_add_u32 s%d, s%d, s%d" % (PRB, PBASE, PE))
    e("s_addc_u32 s%d, s%d, 0" % (PRB + 1, PBASE + 1))
    e("s_mov_b32 s%d, -1" % PMN)
    e("s_memtime s[%d:%d]" % (PT, PT + 1))
    e("s_waitcnt lgkmcnt(0)")
    for u in range(8):
        a = PT + 2 * (u & 1); b = PT + 2 * ((u + 1) & 1)
        e("s_load_dword s%d, s[%d:%d], s%d" % (PJ, PRB, PRB + 1, POF + u))
        e("s_waitcnt lgkmcnt(0)")
        e("s_memtime s[%d:%d]" % (b, b + 1))
        e("s_waitcnt lgkmcnt(0)")
        e("s_sub_u32 s%d, s%d, s%d" % (PD + u, b, a))
        if u + 1 == P["ns0"] and u < 7:
            for k in range(u + 1, 8):
                e("s_mov_b32 s%d, -1" % (PD + k))
            e("s_cmp_eq_u32 s%d, 0" % PBK)
            e("s_cbranch_scc1 L_few")
    e.label("L_few")
    for u in range(8):
        e("s_min_u32 s%d, s%d, %d" % (PD + u, PD + u, P["clip"]))
        e("s_min_u32 s%d, s%d, s%d" % (PMN, PMN, PD + u))
    e("s_cmp_lt_u32 s%d, %d" % (PMN, P["l2t"]))
    e("s_cbranch_scc1 L_skip")
    for u in range(8):
        e("s_%s_u32 s%d, s%d, s%d" % ("add" if u & 1 else "sub", PACC, PACC, PD + u))
    e.label("L_skip")
    e("s_add_u32 s%d, s%d, 1" % (PRN, PRN))
    e("s_cmp_le_u32 s%d, s%d" % (PRN, PNR))
    e("s_cbranch_scc1 L_round")
    e("s_sub_u32 s%d, 0, s%d" % (PE, PACC))
    e("s_cmp_eq_u32 s%d, 0" % PFL)
    e("s_cselect_b32 s%d, s%d, s%d" % (PACC, PACC, PE))
    e("s_add_u32 s%d, s%d, 0x%x" % (PACC, PACC, BIAS + (1 << 24)))
    e("v_mov_b32 v%d, s%d" % (HA, PACC))
    e("s_mov_b64 exec, 1")
    e("s_lshl_b32 s%d, s%d, 2" % (PE, PBK))
    e("s_add_u32 s%d, s%d, 124" % (PE, PE))
    e("s_cmp_eq_u32 s%d, 0" % PBK)
    e("s_cbranch_scc0 L_post")
    if P["dc"]:
        e("s_waitcnt vmcnt(0)")
    e("ds_add_rtn_u32 v%d, v%d, v%d offset:%d" % (HB_, HZ, HA, L_PC))
    e("s_mov_b32 s%d, 0" % PE)
    e("s_waitcnt lgkmcnt(0)")
    e("v_add_u32 v%d, v%d, v%d" % (HA, HA, HB_))
    e("v_cmp_ne_u32 vcc, 0, v%d" % HB_)
    e("s_and_b64 exec, exec, vcc")
    if P["vw"]:
        e("buffer_atomic_add v%d, off, s[%d:%d], s%d" % (HA, PDB, PDB + 3, PE))
        e("s_branch L_posted")
        e.label("L_post")
        lds_wait("vw", HZ, HE, PE, L_DEC, "nz", PSP)
        e("s_mul_i32 s%d, s%d, %d" % (PE, PG, FSTR))
        e("s_add_u32 s%d, s%d, %d" % (PE, PE, WS_G + 253 * FSTR))
        e("buffer_atomic_add v%d, off, s[%d:%d], s%d" % (HA, PWS, PWS + 3, PE))
        e.label("L_posted")
    else:
        e.label("L_post")
        e("buffer_atomic_add v%d, off, s[%d:%d], s%d" % (HA, PDB, PDB + 3, PE))
    e("s_mov_b64 exec, -1")
    if P["hs"]:
        if P["hs"] == 2:
            e("s_waitcnt vmcnt(0)")
        e("s_memrealtime s[%d:%d]" % (PD + 4, PD + 5))
    e.label("L_role")
    e("s_cmp_eq_u32 s%d, 0" % PP)
    e("s_cbranch_scc1 L_h0")
    e("s_cmp_eq_u32 s%d, 2" % PP)
    e("s_cbranch_scc1 L_h2")

    def wave_reduce(regs, op, tmp):
        for kk in (8, 4, 2, 1):
            for r in regs:
                e("%s_dpp v%d, v%d, v%d row_ror:%d row_mask:0xf bank_mask:0xf" % (op, r, r, r, kk))
        for sw in ("v_permlane32_swap_b32", "v_permlane16_swap_b32"):
            for r, t in zip(regs, tmp):
                e("v_mov_b32 v%d, v%d" % (t, r))
            for r, t in zip(regs, tmp):
                e("%s v%d, v%d" % (sw, r, t))
            for r, t in zip(regs, tmp):
                e("%s v%d, v%d, v%d" % (op, r, r, t))

    def decode(tag, nl, off, cnt, rounds, dst, b0):
        vw = b0 and P["vw"]
        lds_wait("e" + tag, HZ, HE, PE, L_EV + (4 if b0 else 0), "nz" if b0 else str(P["tw"]), PSP)
        if vw:
            e("v_mul_u32_u24 v%d, %d, v%d" % (HD, FSTR, HL))
            e("s_mov_b32 s%d, %d" % (PE, WS_G + 256 * FSTR))
            e("v_lshrrev_b32 v%d, 1, v%d" % (HB_, HB_))
        e("s_mov_b64 exec, 0x%x" % ((1 << (2 * nl if vw else nl)) - 1))
        e("s_mov_b32 s%d, 0x40000" % PSP)
        if P["hs"] and not b0:
            e("s_memrealtime s[%d:%d]" % (PD, PD + 1))
        if P["l2p"] and not b0:
            e("buffer_load_dword v%d, v%d, s[%d:%d], 0 offen offset:%d" % (HA, HB_, PDB, PDB + 3, off))
            e("s_branch L_pollw" + tag)
        if not P["xkp"] & 4:
            e.label("L_poll" + tag)
            if vw:
                e("buffer_load_dword v%d, v%d, s[%d:%d], s%d offen sc1" % (HA, HD, PWS, PWS + 3, PE))
            else:
                e("buffer_load_dword v%d, v%d, s[%d:%d], 0 offen offset:%d sc1" % (HA, HB_, PDB, PDB + 3, off))
            e("s_sub_u32 s%d, s%d, 1" % (PSP, PSP))
            e("s_cbranch_scc1 L_exit1")
            e.lines.append("L_pollw%s:" % tag)
            e("s_waitcnt vmcnt(0)")
            e("v_lshrrev_b32 v%d, 24, v%d" % (HC, HA))
            e("v_cmp_ne_u32 vcc, %d, v%d" % (cnt // 2 if vw else cnt, HC))
            e("s_cbranch_vccnz L_poll" + tag)
        if vw:
            e("v_add_u32_dpp v%d, v%d, v%d quad_perm:[1,0,3,2] row_mask:0xf bank_mask:0xf" % (HA, HA, HA))
            e("s_mov_b64 exec, 0x%x" % (0x5555 & ((1 << (2 * nl)) - 1)))
        th = P["th"] * cnt * rounds * (8 if b0 else P["ns0"]) // 8
        e("v_and_b32 v%d, 0xffffff, v%d" % (HA, HA))
        e("v_subrev_u32 v%d, %d, v%d" % (HA, cnt * BIAS, HA))
        if P["stamp"] == 6 and b0:
            e("s_cmp_lg_u32 s2, 100")
            e("s_cbranch_scc1 L_nodbg")
            e("buffer_store_dword v%d, v%d, s[%d:%d], 0 offen offset:4" % (HA, HB_, PDB, PDB + 3))
            e.label("L_nodbg")
        e("v_lshrrev_b32 v%d, 30, v%d" % (HC, HA))
        e("v_and_b32 v%d, 2, v%d" % (HC, HC))
        e("v_add_u32 v%d, %d, v%d" % (HA, th, HA))
        e("v_cmp_gt_u32 vcc, %d, v%d" % (2 * th, HA))
        e("v_cndmask_b32 v%d, v%d, 8, vcc" % (HC, HC))
        if P["force"] == 1:
            e("v_mov_b32 v%d, 8" % HC)
        if P["force"] >= 2:
            e("s_mov_b32 s%d, 0x%x" % (PE, 0x7000000 + 128 * (P["force"] - 2)))
            e("s_load_dwordx4 s[%d:%d], s[82:83], s%d" % (PS2, PS2 + 3, PE))
            e("s_waitcnt lgkmcnt(0)")
            for l in range(nl):
                b = b0 + l
                e("s_lshr_b64 s[%d:%d], s[%d:%d], %d" % (PE, PE + 1, PS2 + 2 * (b // 3), PS2 + 2 * (b // 3) + 1, 16 * (b % 3)))
                e("s_and_b32 s%d, s%d, %d" % (PE, PE, P["ob"]))
                e("s_xor_b32 s%d, s%d, %d" % (PE, PE, P["ox"]))
                e("v_writelane_b32 v%d, s%d, %d" % (HC, PE, 2 * l if vw else l))
        e("v_or_b32 v%d, 16, v%d" % (HC, HC))
        if P["xv"] and vw:
            e("v_lshlrev_b32 v%d, 1, v%d" % (HA, HL))
            e("v_lshrrev_b32 v%d, v%d, %d" % (HA, HA, 0) if False else "v_mov_b32 v%d, 0x%x" % (HD, int(str(P["xv"])[::-1], 16)))
            e("v_lshrrev_b32 v%d, v%d, v%d" % (HA, HA, HD))
            e("v_and_b32 v%d, 7, v%d" % (HA, HA))
            e("v_xor_b32 v%d, v%d, v%d" % (HC, HC, HA))
        e("ds_write_b32 v%d, v%d offset:%d" % (HB_, HC, dst))
        if P["hs"] and not b0:
            e("s_memrealtime s[%d:%d]" % (PD + 2, PD + 3))
            srd(PS2, 82, 0x8000000)
            e("s_waitcnt lgkmcnt(0)")
            e("v_mov_b32 v%d, s%d" % (HX, PD))
            e("v_mov_b32 v%d, s%d" % (HX + 1, PD + 2))
            e("v_mov_b32 v%d, s%d" % (HX + 2, PSP))
            e("v_mov_b32 v%d, s%d" % (HX + 3, PD + 4))
            e("s_lshl_b32 s%d, s2, 4" % PE)
            e("s_add_u32 s%d, s%d, 0x4008000" % (PE, PE))
            e("buffer_store_dwordx4 v[%d:%d], off, s[%d:%d], s%d" % (HX, HX + 3, PS2, PS2 + 3, PE))
        e("s_mov_b64 exec, -1")

    if not P["dc"]:
        e("s_cmp_lg_u32 s2, %d" % (NWG - 1))
        e("s_cbranch_scc1 L_nolead")
        e("v_mul_u32_u24 v%d, %d, v%d" % (HB_, FSTR, HL))
        e("v_mov_b32 v%d, 0" % (HZ + 1))
        for k in range(5 if P["vw"] else 4):
            e("s_mov_b32 s%d, %d" % (PE + k, WS_G + k * 64 * FSTR))
            if k == 4:
                e("s_mov_b64 exec, 0x%x" % (0x1fffff if P["fc"] else 0x3ff))
            e("buffer_store_dwordx2 v[%d:%d], v%d, s[%d:%d], s%d offen sc1" % (HZ, HZ + 1, HB_, PWS, PWS + 3, PE + k))
        e("v_mov_b32 v%d, 0x%x" % (HA, BIAS + (1 << 24)))
        e("s_mov_b64 exec, 1")
        e("s_waitcnt vmcnt(0)")
        e("buffer_atomic_add v%d, off, s[%d:%d], 0" % (HA, PDB, PDB + 3))
        e("s_mov_b64 exec, -1")
        if P["hs"]:
            if P["hs"] == 2:
                e("s_waitcnt vmcnt(0)")
            e("s_memrealtime s[%d:%d]" % (PD + 4, PD + 5))
        e.label("L_nolead")
    e("v_lshlrev_b32 v%d, 2, v%d" % (HB_, HL))
    decode("a", 1, 0, 48 if P["dc"] else 49, P["nr0"], L_DEC, 0)
    decode("b", 5, 128, 16, NR, L_DEC + 4, 1)
    if P["lx"]:
        e("s_mul_i32 s%d, s%d, 43" % (PE, PG))
        e("s_lshr_b32 s%d, s%d, 8" % (PE, PE))
        e("s_mul_i32 s%d, s%d, 6" % (PE + 1, PE))
        e("s_sub_u32 s%d, s%d, s%d" % (PBK, PG, PE + 1))
        e("s_cmp_ge_u32 s%d, 3" % PBK)
        e("s_cselect_b32 s%d, s68, s66" % PB)
        e("s_cselect_b32 s%d, s69, s67" % (PBASE + 1))
        e("s_cselect_b32 s%d, 3, 0" % (PE + 1))
        e("s_sub_u32 s%d, s%d, s%d" % (PE + 1, PBK, PE + 1))
        e("s_lshl_b32 s%d, s%d, 28" % (PO, PE + 1))
        e("s_mul_i32 s%d, s%d, %d" % (PE, PE, 21 << 21))
        e("s_add_u32 s%d, s%d, s%d" % (PO, PO, PE))
        e("s_add_u32 s%d, s%d, %d" % (PO, PO, (7 << 21) + (1 << 20)))
        e("s_and_b32 s%d, s%d, 0xffff" % (PB + 1, PBASE + 1))
        e("s_mov_b32 s%d, %d" % (PB + 2, H * HEADB))
        e("s_mov_b32 s%d, 0x00020000" % (PB + 3))
        e("s_add_u32 s%d, s%d, %d" % (PE, PM, P["lx"]))
        e("s_and_b32 s%d, s%d, 7" % (PE, PE))
        e("s_lshl_b32 s%d, s%d, 9" % (PE, PE))
        e("v_lshlrev_b32 v%d, 12, v%d" % (HW, HL))
        e("v_add_u32 v%d, s%d, v%d" % (HW, PE, HW))
        for j in range(3):
            e("buffer_load_dword v%d, v%d, s[%d:%d], s%d offen offset:%d" % (HX + j, HW, PB, PB + 3, PO, j * 128))
        e("s_add_u32 s%d, s%d, s%d" % (PBASE, PB, PO))
        e("s_addc_u32 s%d, s%d, 0" % (PBASE + 1, PBASE + 1))
        e("s_lshl_b32 s%d, s%d, 9" % (PE, PM))
        e("s_add_u32 s%d, s%d, s%d" % (PBASE, PBASE, PE))
        e("s_addc_u32 s%d, s%d, 0" % (PBASE + 1, PBASE + 1))
        e("s_load_dword s%d, s[%d:%d], 384" % (PJ, PBASE, PBASE + 1))
        e("s_load_dword s%d, s[%d:%d], 0x20180" % (PJ, PBASE, PBASE + 1))
        e("s_waitcnt vmcnt(0) lgkmcnt(0)")
        lds_wait("lx", HZ, HE, PE, L_EV + 4, "8", PSP)
        for j in range(3):
            e("s_mov_b32 m0, 0")
            e("s_mov_b32 s%d, %d" % (PE, j * 128))
            e.label("L_lx%d" % j)
            e("s_memtime s[%d:%d]" % (PT, PT + 1))
            e("s_waitcnt lgkmcnt(0)")
            e("s_load_dword s%d, s[%d:%d], s%d" % (PJ, PBASE, PBASE + 1, PE))
            e("s_waitcnt lgkmcnt(0)")
            e("s_memtime s[%d:%d]" % (PT + 2, PT + 3))
            e("s_waitcnt lgkmcnt(0)")
            e("s_sub_u32 s%d, s%d, s%d" % (PT, PT + 2, PT))
            e("v_writelane_b32 v%d, s%d, m0" % (HX + j, PT))
            e("s_add_u32 s%d, s%d, 4096" % (PE, PE))
            e("s_add_u32 m0, m0, 1")
            e("s_cmp_lt_u32 m0, 64")
            e("s_cbranch_scc1 L_lx%d" % j)
        e("s_memrealtime s[%d:%d]" % (PT, PT + 1))
        e("s_waitcnt lgkmcnt(0)")
        e("v_mov_b32 v%d, s%d" % (HX + 3, PT))
        srd(PB, 82, 0x8000000)
        e("s_lshl_b32 s%d, s2, 10" % PE)
        e("s_add_u32 s%d, s%d, 0x4090000" % (PE, PE))
        e("v_lshlrev_b32 v%d, 4, v%d" % (HW, HL))
        e("buffer_store_dwordx4 v[%d:%d], v%d, s[%d:%d], s%d offen" % (HX, HX + 3, HW, PB, PB + 3, PE))
    if FU:
        CSC = 24; CMK = 56; CRB = 57; CO = 92
        e("s_and_b32 s%d, s%d, 7" % (PE, PG))
        e("s_cmp_lg_u32 s%d, s%d" % (PE, PM))
        e("s_cbranch_scc1 L_exit1")
        e("s_mul_i32 s%d, s%d, 3" % (PE, PG))
        e("s_add_u32 s%d, s%d, 2" % (PE, PE))
        e("s_lshr_b32 s%d, s%d, 5" % (PE, PE))
        e("s_lshl_b32 s%d, s%d, 2" % (PE, PE))
        e("v_mov_b32 v%d, s%d" % (HW, PE))
        e("s_mul_i32 s%d, s%d, 24" % (CRB, PG))
        e("v_add_u32 v%d, s%d, v%d" % (HG, CRB, HL))
        e("v_and_b32 v%d, 255, v%d" % (HR, HG))
        e("v_mul_u32_u24 v%d, %d, v%d" % (HR, FSTR, HR))
        e("v_lshlrev_b32 v%d, 6, v%d" % (HG, HG))
        e("s_mov_b32 s%d, %d" % (PE + 1, WS_G))
        e("s_mov_b32 s%d, %d" % (PE + 2, WS_ML))
        e("v_mov_b32 v%d, 0x%08x" % (HA, BIGNEG))
        e("v_mov_b32 v%d, 0" % HB_)
        if P["cd"]:
            th = [12 * (len(CPK) + min(j for j, c in enumerate(CPV) if c > b)) + P["cd"] for b in (16, 32, 4)]
            e("s_mov_b32 s%d, %d" % (PE + 3, th[0]))
            e("s_cmp_eq_u32 s%d, 4" % PE)
            e("s_cselect_b32 s%d, %d, s%d" % (PE + 3, th[1], PE + 3))
            e("s_cmp_eq_u32 s%d, 8" % PE)
            e("s_cselect_b32 s%d, %d, s%d" % (PE + 3, th[2], PE + 3))
            lds_wait("cg", HZ, HE, PE, L_TC, "s%d" % (PE + 3), PSP)
        else:
            lds_wait("cg", HZ, HE, PE, L_GO, "nz", PSP, HW)
        for tag, ld, chk in (("f", "buffer_load_dword v%d, v%d, s[%d:%d], s%d offen sc1" % (HD, HR, PWS, PWS + 3, PE + 1), HD),
                             ("m", "buffer_load_dwordx4 v[%d:%d], v%d, s[%d:%d], s%d offen sc1" % (HA, HD, HG, PWS, PWS + 3, PE + 2), HD)):
            e("s_mov_b64 exec, 0xffffff")
            e("s_mov_b32 s%d, 0x40000" % PSP)
            e.label("L_cp" + tag)
            e(ld)
            e("s_sub_u32 s%d, s%d, 1" % (PSP, PSP))
            e("s_cbranch_scc1 L_exit1")
            e("s_waitcnt vmcnt(0)")
            e("v_cmpx_eq_u32 vcc, 0, v%d" % chk)
            e("s_cbranch_execnz L_cp" + tag)
        e("s_mov_b64 exec, -1")
        e("v_mov_b32 v%d, v%d" % (HC, HA))
        wave_reduce([HC], "v_max_f32", [HD])
        e("v_sub_f32 v%d, v%d, v%d" % (HA, HA, HC))
        e("v_exp_f32 v%d, v%d" % (HA, HA))
        e("v_mul_f32 v%d, v%d, v%d" % (HB_, HB_, HA))
        wave_reduce([HB_], "v_add_f32", [HD])
        e("v_rcp_f32 v%d, v%d" % (HB_, HB_))
        e("v_mul_f32 v%d, v%d, v%d" % (HA, HA, HB_))
        if P["fc"]:
            e("s_cmp_lt_u32 s%d, 21" % PG)
            e("s_cbranch_scc1 L_cown")
            e("s_mul_i32 s%d, s%d, %d" % (PE, PG, FSTR))
            e("s_add_u32 s%d, s%d, %d" % (PE, PE, WS_G + 245 * FSTR))
            e("v_lshlrev_b32 v%d, 2, v%d" % (HR, HL))
            e("v_mov_b32 v%d, 1" % HB_)
            e("s_mov_b64 exec, 0xffffff")
            e("buffer_store_dword v%d, v%d, s[%d:%d], s%d offen offset:128 sc1" % (HA, HR, PWS, PWS + 3, PE))
            e("s_mov_b64 exec, 1")
            e("s_waitcnt vmcnt(0)")
            e("buffer_store_dword v%d, off, s[%d:%d], s%d offset:4 sc1" % (HB_, PWS, PWS + 3, PE))
            e("s_endpgm")
            e.label("L_cown")
        for r in range(24):
            e("v_readlane_b32 s%d, v%d, %d" % (CSC + r, HA, r))
        srd(CO, 78, H * DH * 2)
        e("s_lshl_b32 s%d, s%d, 10" % (CRB, CRB))
        e("v_lshlrev_b32 v%d, 4, v%d" % (HG, HL))
        e("v_add_u32 v%d, s%d, v%d" % (HG, CRB, HG))
        for k in range(1, 6):
            e("s_mov_b32 s%d, %d" % (PE + k, 4096 * k))
        for r in (HA, HB_, HC):
            e("v_mov_b32 v%d, 0" % r)
        e("s_mov_b32 s%d, 0xffffff" % CMK)
        e("v_lshlrev_b32 v%d, 1, v%d" % (HR, HL))
        e("s_mul_i32 s%d, s%d, %d" % (CRB, PG, DH * 2))
        lds_wait("cc", HZ, HE, PE, L_CA, "%d" % P["cw"], PSP, HW)
        e("s_mov_b32 s%d, 0x40000" % PSP)
        e.label("L_cr")
        for r in range(24):
            e("s_bitcmp0_b32 s%d, %d" % (CMK, r))
            e("s_cbranch_scc1 L_cl%d" % r)
            e("buffer_load_dwordx4 v[%d:%d], v%d, s[%d:%d], %s offen offset:%d sc1" %
              (HX + 4 * r, HX + 4 * r + 3, HG, PWS, PWS + 3, "s%d" % (PE + r // 4) if r >= 4 else "0", (r % 4) * 1024))
            e.lines.append("L_cl%d:" % r)
        e("s_sub_u32 s%d, s%d, 1" % (PSP, PSP))
        e("s_cbranch_scc1 L_exit1")
        e("s_waitcnt vmcnt(0)")
        for r in range(24):
            e("s_bitcmp0_b32 s%d, %d" % (CMK, r))
            e("s_cbranch_scc1 L_cv%d" % r)
            e("v_cmp_eq_u32 vcc, 0, v%d" % (HX + 4 * r + 3))
            e("s_cbranch_vccnz L_cv%d" % r)
            for k, a_ in enumerate((HA, HB_, HC)):
                e("v_fmac_f32 v%d, s%d, v%d" % (a_, CSC + r, HX + 4 * r + k))
            e("s_bitset0_b32 s%d, %d" % (CMK, r))
            e.lines.append("L_cv%d:" % r)
        e("s_cmp_lg_u32 s%d, 0" % CMK)
        e("s_cbranch_scc1 L_cr")
        for k, a_ in enumerate((HA, HB_, HC)):
            e("v_cvt_pk_bf16_f32 v%d, v%d, v%d" % (a_, a_, a_))
            e("buffer_store_short v%d, v%d, s[%d:%d], s%d offen offset:%d" % (a_, HR, CO, CO + 3, CRB, k * 128))
        if P["stamp"] == 5:
            e("s_memrealtime s[%d:%d]" % (PT, PT + 1))
            e("s_waitcnt vmcnt(0)")
            e("s_memrealtime s[%d:%d]" % (PT + 2, PT + 3))
            srd(PS2, 82, 0x8000000)
            e("s_waitcnt lgkmcnt(0)")
            e("v_mov_b32 v%d, s%d" % (HX, PT))
            e("v_mov_b32 v%d, s%d" % (HX + 1, PT + 2))
            e("v_mov_b32 v%d, s%d" % (HX + 2, PSP))
            e("s_lshl_b32 s%d, s%d, 4" % (PE, PG))
            e("s_add_u32 s%d, s%d, 0x4009000" % (PE, PE))
            e("s_mov_b64 exec, 1")
            e("buffer_store_dwordx4 v[%d:%d], off, s[%d:%d], s%d" % (HX, HX + 3, PS2, PS2 + 3, PE))
    e("s_endpgm")

    def seg_scalars():
        e("s_lshl_b32 s%d, s%d, 5" % (PSG, PPH))
        e("s_add_u32 s%d, s%d, s%d" % (PSG, PSG, PG))
        e("s_lshl_b32 s%d, s%d, 15" % (PG0, PSG))
        e("s_add_u32 s%d, s%d, 1" % (PG0, PG0))
        e("s_mul_hi_u32 s%d, s%d, 0xaaaaaaab" % (PG0, PG0))
        e("s_lshr_b32 s%d, s%d, 7" % (PG0, PG0))

    def get_dec(tag):
        lds_wait(tag, HZ, HE, PE, L_DEC + 20, "nz", PSP)
        e("ds_read_b128 v[%d:%d], v%d offset:%d" % (HX, HX + 3, HZ, L_DEC))
        e("ds_read_b64 v[%d:%d], v%d offset:%d" % (HX + 4, HX + 5, HZ, L_DEC + 16))
        e("s_waitcnt lgkmcnt(0)")
        for i in range(6):
            e("v_readfirstlane_b32 s%d, v%d" % (PDC + i, HX + i))

    e.label("L_h0")
    srd(PB, 64, H * DH * 2)
    srd(PS2, 70, H * NGRP * DH * 2)
    srd(PS3, 72, H * NGRP * DH * 2)
    e("v_lshrrev_b32 v%d, 4, v%d" % (HA, HL))
    e("v_and_b32 v%d, 15, v%d" % (HB_, HL))
    e("v_lshlrev_b32 v%d, 3, v%d" % (HC, HB_))
    e("v_mul_u32_u24 v%d, %d, v%d" % (HD, DH * 2, HA))
    e("v_add_u32 v%d, v%d, v%d" % (HD, HD, HC))
    e("v_lshl_add_u32 v%d, v%d, 2, v%d" % (HG, HB_, HA))
    e("v_lshlrev_b32 v%d, 2, v%d" % (HG, HG))
    BQ = HX; BS = HX + 12; BZ = BS + 36; BR = BZ + 36
    PFA = 32; PIA = 33
    e("v_lshlrev_b32 v%d, 4, v%d" % (HA, HL))
    e("s_mul_i32 s%d, s%d, %d" % (PFA, PNB, FSTR))
    e("s_add_u32 s%d, s%d, s%d" % (PFA, PFA, PGL))
    e("s_lshl_b32 s%d, s%d, 3" % (PIA, PG))
    e("s_add_u32 s%d, s%d, s%d" % (PIA, PIA, PNB))
    IMS = PHI if P["il"] else IMG
    PHS = NWG * PHI if P["il"] else PHI
    e("s_mul_i32 s%d, s%d, %d" % (PIA, PIA, IMS))
    e("s_add_u32 s%d, s%d, %d" % (PIA, PIA, WS_L))

    def bias(ph):
        e("s_mov_b32 s%d, %d" % (PPH, ph))
        seg_scalars()
        e("s_mul_i32 s%d, s%d, 171" % (PE, PSG))
        e("s_lshr_b32 s%d, s%d, 9" % (PE, PE))
        e("s_mul_i32 s%d, s%d, %d" % (PE, PE, DH * 2))
        e("s_mul_i32 s%d, s%d, 24" % (PE + 1, PM))
        e("s_add_u32 s%d, s%d, s%d" % (PE + 2, PE + 1, PG0))
        e("s_mul_i32 s%d, s%d, %d" % (PE + 2, PE + 2, DH * 2))
        e("v_add_u32 v%d, s%d, v%d" % (HE, PE + 2, HD))
        e("v_add_u32 v%d, %d, v%d" % (HF, 8 * DH * 2, HE))
        e("v_add_u32 v%d, %d, v%d" % (HR, 16 * DH * 2, HE))
        for c in range(3):
            e("buffer_load_dwordx2 v[%d:%d], v%d, s[%d:%d], s%d offen offset:%d" % (BR + 2 * c, BR + 2 * c + 1, HC, PB, PB + 3, PE, c * 128))
        for st in range(6):
            va = (HE, HF, HR)[st // 2]
            for sr, bb in ((PS2, BS), (PS3, BZ)):
                for c in range(3):
                    r = bb + st * 6 + 2 * c
                    if P["xb"] & 1:
                        continue
                    e("buffer_load_dwordx2 v[%d:%d], v%d, s[%d:%d], 0 offen offset:%d%s" %
                      (r, r + 1, va, sr, sr + 3, (st & 1) * 4 * DH * 2 + c * 128,
                       " nt" if P["bnt"] & (1 if bb == BZ else 2) else ""))
                if P["bp"] == 2 and (ph or P["bp0"]):
                    e("s_waitcnt vmcnt(%d)" % P["bq"])
            if P["bp"] == 1 and (ph or P["bp0"]):
                e("s_waitcnt vmcnt(%d)" % P["bq"])
        e("s_waitcnt vmcnt(0)")
        for p in range(6):
            e("v_lshlrev_b32 v%d, 16, v%d" % (BQ + 2 * p, BR + p))
            e("v_and_b32 v%d, 0xffff0000, v%d" % (BQ + 2 * p + 1, BR + p))
        for st in range(6):
            acc = BR + st
            for p in range(6):
                rs = BS + st * 6 + p; rz = BZ + st * 6 + p
                e("v_lshlrev_b32 v%d, 16, v%d" % (HE, rs))
                e("v_lshlrev_b32 v%d, 16, v%d" % (HF, rz))
                e("v_and_b32 v%d, 0xffff0000, v%d" % (rs, rs))
                e("v_and_b32 v%d, 0xffff0000, v%d" % (rz, rz))
                e("v_mul_f32 v%d, v%d, v%d" % (HE, HE, BQ + 2 * p))
                e("v_mul_f32 v%d, v%d, v%d" % (rs, rs, BQ + 2 * p + 1))
                if p == 0:
                    e("v_mul_f32 v%d, v%d, v%d" % (acc, HE, HF))
                else:
                    e("v_fmac_f32 v%d, v%d, v%d" % (acc, HE, HF))
                e("v_fmac_f32 v%d, v%d, v%d" % (acc, rs, rz))
        for kk in (8, 4, 2, 1):
            for st in range(6):
                e("v_add_f32_dpp v%d, v%d, v%d row_ror:%d row_mask:0xf bank_mask:0xf" % (BR + st, BR + st, BR + st, kk))
        for st in range(1, 6):
            e("v_cmp_eq_u32 vcc, %d, v%d" % (st, HB_))
            e("v_cndmask_b32 v%d, v%d, v%d, vcc" % (BR, BR, BR + st))
        e("s_mul_i32 s%d, s%d, 768" % (PE, PSG))
        e("s_lshl_b32 s%d, s%d, 2" % (PE + 1, PE + 1))
        e("s_add_u32 s%d, s%d, s%d" % (PE, PE, PE + 1))
        e("s_add_u32 s%d, s%d, %d" % (PE, PE, WS_B))
        e("s_mov_b32 exec_lo, 0x003f003f")
        e("s_mov_b32 exec_hi, 0x003f003f")
        e("buffer_store_dword v%d, v%d, s[%d:%d], s%d offen sc1" % (BR, HG, PWS, PWS + 3, PE))
        e("s_mov_b64 exec, -1")

    def flush(p):
        if P["xp"]:
            e("s_cmp_eq_u32 s%d, s%d" % (PDC + p, PDC + 3 + p))
            if p:
                e("s_cbranch_scc1 L_fp%d" % p)
            e("s_add_u32 s%d, s%d, %d" % (PE + 6, PIA, p * PHS))
            e("s_add_u32 s%d, s%d, %d" % (PE + 7, PIA, p * PHS + 4096))
            e("s_cmp_eq_u32 s%d, s%d" % (PDC + p, PDC + 3 + p))
            for k in range(6):
                if p == 0:
                    mk = sum(1 << l for l in range(64) if (64 * k + l) % 48 < (3 * N0 + 7) // 8 * 8)
                    e("s_cselect_b32 exec_lo, 0x%x, -1" % (mk & 0xffffffff))
                    e("s_cselect_b32 exec_hi, 0x%x, -1" % (mk >> 32))
                e("buffer_load_dwordx4 v[%d:%d], v%d, s[%d:%d], s%d offen offset:%d %s" %
                  (HX + 4 * k, HX + 4 * k + 3, HA, PWS, PWS + 3, PE + 6 + k // 4, (k % 4) * 1024, ("", "sc1", "", "nt")[P["xp"]]))
            e("s_mov_b64 exec, -1")
            e("s_waitcnt vmcnt(0)")
            e.label("L_fp%d" % p)
        lds_wait("f%d" % p, HZ, HE, PE, L_CF + 4 * p, "4", PSP)
        e("s_cmp_eq_u32 s%d, s%d" % (PDC + p, PDC + 3 + p))
        if p:
            e("s_cbranch_scc1 L_fl%d" % p)
        for k in range(6):
            e("ds_read_b128 v[%d:%d], v%d offset:%d" % (HX + 4 * k, HX + 4 * k + 3, HA, L_LG + p * PHI + k * 1024))
        e("s_add_u32 s%d, s%d, %d" % (PE + 6, PIA, p * PHS))
        e("s_add_u32 s%d, s%d, %d" % (PE + 7, PIA, p * PHS + 4096))
        e("s_cmp_eq_u32 s%d, s%d" % (PDC + p, PDC + 3 + p))
        e("s_waitcnt lgkmcnt(0)")
        for k in range(6):
            if p == 0:
                mk = sum(1 << l for l in range(64) if (64 * k + l) % 48 < (3 * N0 + 7) // 8 * 8)
                e("s_cselect_b32 exec_lo, 0x%x, -1" % (mk & 0xffffffff))
                e("s_cselect_b32 exec_hi, 0x%x, -1" % (mk >> 32))
            if not P["xkp"] & 16:
                e("buffer_store_dwordx4 v[%d:%d], v%d, s[%d:%d], s%d offen offset:%d %s" %
                  (HX + 4 * k, HX + 4 * k + 3, HA, PWS, PWS + 3, PE + 6 + k // 4, (k % 4) * 1024, P["st"]))
        if p == 0:
            e("s_mov_b64 exec, -1")
        e.label("L_fl%d" % p)
        e("v_mov_b32 v%d, %d" % (HE, p + 1))
        e("s_waitcnt vmcnt(0)")
        e("s_mov_b64 exec, 1")
        opt = p == 2 or (p == 1 and not P["jit"])
        if opt:
            e("s_cbranch_scc1 L_fn%d" % p)
        e("buffer_store_dword v%d, off, s[%d:%d], s%d sc1" % (HE, PWS, PWS + 3, PFA))
        if opt:
            e.label("L_fn%d" % p)
        e("ds_write_b32 v%d, v%d offset:%d" % (HZ, HE, L_FD))
        e("s_mov_b64 exec, -1")

    if FU:
        for i in range(4):
            e("v_mov_b32 v%d, 0" % (HX + i))
        for p in range(3):
            e("s_add_u32 s%d, s2, %d" % (PE, 256 * p))
            e("s_lshl_b32 s%d, s%d, 10" % (PE + 1, PE))
            e("s_lshl_b32 s%d, s%d, 6" % (PE, PE))
            e("s_add_u32 s%d, s%d, %d" % (PE, PE, WS_ML))
            if not (P["xkp"] & 512 and p < 2):
                e("buffer_store_dwordx4 v[%d:%d], v%d, s[%d:%d], s%d offen sc1" % (HX, HX + 3, HA, PWS, PWS + 3, PE + 1))
            e("s_mov_b64 exec, 15")
            e("buffer_store_dwordx4 v[%d:%d], v%d, s[%d:%d], s%d offen sc1" % (HX, HX + 3, HA, PWS, PWS + 3, PE))
            e("s_mov_b64 exec, -1")
    bias(0)
    if P["jit"]:
        lds_wait("b1", HZ, HE, PE, L_EV + 4, "1", PSP)
    bias(1)
    if not P["jit"]:
        bias(2)
    get_dec("d0")
    flush(0)
    if P["jit"]:
        lds_wait("b2", HZ, HE, PE, L_EV + 4, "9", PSP)
        bias(2)
    flush(1)
    flush(2)
    if P["at"] and not BC:
        e("v_lshrrev_b32 v%d, 3, v%d" % (HC, HL))
        e("v_xor_b32 v%d, s%d, v%d" % (HC, PM, HC))
        e("v_lshrrev_b32 v%d, 1, v%d" % (HD, HC))
        e("v_and_b32 v%d, 1, v%d" % (HC, HC))
        e("v_lshl_or_b32 v%d, v%d, 2, v%d" % (HD, HC, HD))
        e("v_lshl_or_b32 v%d, v%d, 3, v%d" % (HD, HL, HD))
        e("v_mul_u32_u24 v%d, %d, v%d" % (HD, FSTR, HD))
        lds_wait("t1", HZ, HE, PE, L_TC, "4", PSP)
        e("s_memrealtime s[%d:%d]" % (PT, PT + 1))
        e("s_mov_b64 exec, 1")
        e("s_waitcnt lgkmcnt(0)")
        e("s_or_b32 s%d, s%d, 1" % (PT, PT))
        e("v_mov_b32 v%d, s%d" % (HB_, PT))
        e("buffer_store_dword v%d, off, s[%d:%d], s%d offset:4 sc1" % (HB_, PWS, PWS + 3, PFA))
        e("s_mov_b32 exec_lo, -1")
        e("s_mov_b32 s%d, %d" % (PE + 1, WS_G))
        lds_wait("t2", HZ, HE, PE, L_TC, "5", PSP)
        e("buffer_load_dword v%d, v%d, s[%d:%d], s%d offen offset:4 sc1" % (HB_, HD, PWS, PWS + 3, PE + 1))
        e("v_bfrev_b32 v%d, -2" % HC)
        e("s_mov_b32 s%d, -2048" % PE)
        e("s_waitcnt vmcnt(0)")
        e("v_cmp_eq_u32 vcc, 0, v%d" % HB_)
        e("v_subrev_u32 v%d, s%d, v%d" % (HB_, PT, HB_))
        e("v_cndmask_b32 v%d, v%d, v%d, vcc" % (HB_, HB_, HC))
        for st in (2048, 1024, 512, 256, 128, 64, 32, 16):
            e("s_add_u32 s%d, s%d, %d" % (PE + 1, PE, st))
            e("v_cmp_gt_i32 vcc, s%d, v%d" % (PE + 1, HB_))
            e("s_bcnt1_i32_b64 s%d, vcc" % (PE + 2))
            e("s_cmp_lt_u32 s%d, %d" % (PE + 2, P["aq"]))
            e("s_cselect_b32 s%d, s%d, s%d" % (PE, PE + 1, PE))
        e("s_mul_i32 s%d, s%d, %d" % (PE, PE, -P["ka"]))
        e("s_add_u32 s%d, s%d, %d" % (PE, PE, P["kb"]))
        e("s_ashr_i32 s%d, s%d, 10" % (PE, PE))
        e("s_max_i32 s%d, s%d, %d" % (PE, PE, P["dmin"]))
        e("s_min_i32 s%d, s%d, %d" % (PE, PE, min(P["dmax"], NT - P["te"])))
        e("s_sub_u32 s%d, %d, s%d" % (PE, NT, PE))
        e("s_cmp_eq_u32 s%d, %d" % (PE, NT))
        e("s_cselect_b32 s%d, 255, s%d" % (PE, PE))
        e("v_mov_b32 v%d, s%d" % (HB_, PE))
        e("ds_write_b32 v%d, v%d offset:%d" % (HZ, HB_, L_TD))
    e("s_endpgm")

    def last_gather():
        EL = P["fc"] == 4
        CSC = 24; CO = 96; CR0 = 56; CSO = 57; CHL = 58; CRB = 59; CN = 20
        COF = list(range(64, 76)) + list(range(84, 96))
        RB = HX + 16
        if EL:
            e("s_mov_b64 exec, -1")
            e("v_lshlrev_b32 v%d, 2, v%d" % (HR, HL))
            e("v_add_u32 v%d, %d, v%d" % (HG, L_ACC + 2 * NW * ROWB, HR))
            e("v_lshlrev_b32 v%d, 4, v%d" % (HK, HL))
        e("s_add_u32 s%d, s%d, 64" % (PE, PG))
        e("s_mul_i32 s%d, s%d, 171" % (PE, PE))
        e("s_lshr_b32 s%d, s%d, 9" % (PE, PE))
        e("s_mul_i32 s%d, s%d, %d" % (CHL, PE, FSTR))
        e("s_add_u32 s%d, s%d, %d" % (CHL, CHL, WS_G + 245 * FSTR))
        e("s_mul_i32 s%d, s%d, %d" % (CRB, PE, DH * 2))
        e("s_cmp_eq_u32 s%d, 21" % PE)
        e("s_cselect_b32 s%d, 15, 23" % CN)
        e("s_mul_i32 s%d, s%d, 24" % (PE, PE))
        e("s_add_u32 s%d, s2, 512" % PSG)
        e("s_sub_u32 s%d, s%d, s%d" % (CR0, PSG, PE))
        e("s_lshl_b32 s%d, s%d, 10" % (PSG, PSG))
        e("s_mov_b32 s%d, 0x40000" % PSP)
        e.label("L_fs")
        e("buffer_load_dword v%d, off, s[%d:%d], s%d offset:4 sc1" % (HA, PWS, PWS + 3, CHL))
        e("s_sub_u32 s%d, s%d, 1" % (PSP, PSP))
        e("s_cbranch_scc1 L_exit1")
        e("s_waitcnt vmcnt(0)")
        e("v_cmp_eq_u32 vcc, 0, v%d" % HA)
        e("s_cbranch_vccnz L_fs")
        e("buffer_load_dword v%d, v%d, s[%d:%d], s%d offen offset:128 sc1" % (HE, HR, PWS, PWS + 3, CHL))
        e("ds_read_b128 v[%d:%d], v%d offset:%d" % (HA, HD, HZ, L_ML + 32))
        e("v_xor_b32 v%d, 1, v%d" % (HF, HL))
        e("v_cmp_eq_u32 vcc, s%d, v%d" % (CR0, HL))
        e("v_cndmask_b32 v%d, v%d, v%d, vcc" % (HF, HL, HF))
        e("v_add_u32 v%d, s%d, v%d" % (HF, PE, HF))
        e("v_lshlrev_b32 v%d, 10, v%d" % (HF, HF))
        for r in range(24):
            e("v_readlane_b32 s%d, v%d, %d" % (COF[r], HF, r))
        srd(CO, 78, H * DH * 2)
        e("v_lshlrev_b32 v%d, 1, v%d" % (HR, HL))
        e("s_waitcnt vmcnt(0)")
        e("v_readlane_b32 s%d, v%d, s%d" % (CSO, HE, CR0))
        e("v_cndmask_b32 v%d, v%d, v%d, vcc" % (HE, HE, HZ))
        for r in range(24):
            e("v_readlane_b32 s%d, v%d, %d" % (CSC + r, HE, r))
        e("v_mov_b32 v%d, 1" % HV)
        if EL:
            e("s_mov_b64 exec, 1")
            lds_wait("el", HZ, HE, PE, L_EL, "4", PSP)
            e("buffer_atomic_add v%d, off, s[%d:%d], s%d sc0" % (HV, PWS, PWS + 3, CHL))
            e("s_mov_b64 exec, -1")
            e("s_waitcnt vmcnt(0)")
            e("v_readfirstlane_b32 s%d, v%d" % (PE, HV))
            e("s_cmp_lg_u32 s%d, s%d" % (PE, CN))
            e("s_cbranch_scc1 L_exit1")
            for r in range(24):
                e("buffer_load_dwordx4 v[%d:%d], v%d, s[%d:%d], s%d offen sc1" % (RB + 4 * r, RB + 4 * r + 3, HK, PWS, PWS + 3, COF[r]))
        lds_wait("n", HZ, HE, PE, L_CA + 8, "4", PSP)
        for kk in range(3):
            for w in range(NW):
                e("ds_read_b32 v%d, v%d offset:%d" % (HX + kk * NW + w, HG, w * ROWB + kk * 256))
        if not EL:
            e("s_mov_b64 exec, 1")
            e("buffer_atomic_add v%d, off, s[%d:%d], s%d sc0" % (HV, PWS, PWS + 3, CHL))
            e("s_mov_b64 exec, -1")
        e("s_mov_b32 s%d, 0x40000" % PSP)
        for kk in range(3):
            b = HX + kk * NW
            e("s_waitcnt lgkmcnt(%d)" % (8 - 4 * kk))
            e("v_add_f32 v%d, v%d, v%d" % (b, b, b + 1))
            e("v_add_f32 v%d, v%d, v%d" % (b + 2, b + 2, b + 3))
            e("v_sub_f32 v%d, v%d, v%d" % (b, b, HC))
            e("v_add_f32 v%d, v%d, v%d" % (HX + 12 + kk, b, b + 2))
        if EL:
            e("s_branch L_fr2")
        else:
            e("buffer_store_dwordx4 v[%d:%d], v%d, s[%d:%d], s%d offen sc1" % (HX + 12, HX + 15, HK, PWS, PWS + 3, PSG))
        if P["stamp"] == 5 and not EL:
            e("s_memrealtime s[%d:%d]" % (PE + 4, PE + 5))
        if 2 <= P["fc"] < 4:
            e("s_waitcnt vmcnt(%d)" % (P["fc"] - 2))
            e("v_readfirstlane_b32 s%d, v%d" % (PE, HV))
            e("s_cmp_lg_u32 s%d, s%d" % (PE, CN))
            e("s_cbranch_scc1 L_fx")
        e.label("L_fr")
        for r in range(24):
            e("buffer_load_dwordx4 v[%d:%d], v%d, s[%d:%d], s%d offen sc1" % (RB + 4 * r, RB + 4 * r + 3, HK, PWS, PWS + 3, COF[r]))
        e.lines.append("L_fr2:")
        for k, a_ in enumerate((HA, HB_, HC)):
            e("v_mul_f32 v%d, s%d, v%d" % (a_, CSO, HX + 12 + k))
        e("v_mov_b32 v%d, 1" % HD)
        e("s_sub_u32 s%d, s%d, 1" % (PSP, PSP))
        e("s_cbranch_scc1 L_exit1")
        for r in range(24):
            if r % 2 == 0:
                e("s_waitcnt vmcnt(%d)" % (22 - r))
            for k, a_ in enumerate((HA, HB_, HC)):
                e("v_fmac_f32 v%d, s%d, v%d" % (a_, CSC + r, RB + 4 * r + k))
            if r % 2:
                e("v_min3_u32 v%d, v%d, v%d, v%d" % (HD, HD, RB + 4 * r - 1, RB + 4 * r + 3))
        if P["fc"] == 1:
            e("v_readfirstlane_b32 s%d, v%d" % (PE, HV))
        e("v_cmp_eq_u32 vcc, 0, v%d" % HD)
        for a_ in (HA, HB_, HC):
            e("v_cvt_pk_bf16_f32 v%d, v%d, v%d" % (a_, a_, a_))
        if P["fc"] == 1:
            e("s_cmp_lg_u32 s%d, s%d" % (PE, CN))
            e("s_cbranch_scc1 L_fx")
        e("s_cbranch_vccnz L_fr")
        for k, a_ in enumerate((HA, HB_, HC)):
            e("buffer_store_short v%d, v%d, s[%d:%d], s%d offen offset:%d" % (a_, HR, CO, CO + 3, CRB, k * 128))
        if P["stamp"] == 5:
            e("s_memrealtime s[%d:%d]" % (PT, PT + 1))
            e("s_waitcnt vmcnt(0)")
            e("s_memrealtime s[%d:%d]" % (PT + 2, PT + 3))
            srd(PS2, 82, 0x8000000)
            e("s_waitcnt lgkmcnt(0)")
            e("v_mov_b32 v%d, s%d" % (HX, PT))
            e("v_mov_b32 v%d, s%d" % (HX + 1, PT + 2))
            e("v_mov_b32 v%d, s%d" % (HX + 2, PSP))
            e("s_mul_i32 s%d, s%d, 171" % (PE, CRB))
            e("s_lshr_b32 s%d, s%d, 16" % (PE, PE))
            e("s_lshl_b32 s%d, s%d, 4" % (PE, PE))
            e("s_add_u32 s%d, s%d, 0x4009000" % (PE, PE))
            e("s_mov_b64 exec, 1")
            e("buffer_store_dwordx4 v[%d:%d], off, s[%d:%d], s%d" % (HX, HX + 3, PS2, PS2 + 3, PE))
        e.lines.append("L_fx:")
        if P["stamp"] == 5 and not EL:
            srd(PS2, 82, 0x8000000)
            e("s_memrealtime s[%d:%d]" % (PT + 2, PT + 3))
            e("s_waitcnt lgkmcnt(0)")
            e("v_mov_b32 v%d, s%d" % (HX, PE + 4))
            e("v_mov_b32 v%d, s%d" % (HX + 1, PT + 2))
            e("s_lshl_b32 s%d, s2, 3" % PE)
            e("s_add_u32 s%d, s%d, 0x400a000" % (PE, PE))
            e("s_mov_b64 exec, 1")
            e("buffer_store_dwordx2 v[%d:%d], off, s[%d:%d], s%d" % (HX, HX + 1, PS2, PS2 + 3, PE))
        e("s_endpgm")

    if BC:
        e.label("L_h3")
        e("s_waitcnt lgkmcnt(0)")
        srd(PWS, 82, WS_SIZE)
        if not EB:
            e("s_barrier")
        e("v_lshlrev_b32 v%d, 2, v%d" % (HD, HL))
        e("s_mul_i32 s%d, s%d, %d" % (PO, PM, FSTR))
        e("s_add_u32 s%d, s%d, %d" % (PO, PO, WS_T))
        e("s_lshl_b32 s%d, s%d, 2" % (PFL, PG))
        e("s_add_u32 s%d, s%d, s%d" % (PFL, PFL, PO))
        if GTS:
            cps = CPK + [48 + c for c in CPV]
            sel = [max(j for j, c in enumerate(cps) if c + P["tg"] + P["rd"] < b) for b in GTS]
            e("s_mov_b32 s%d, 0x%x" % (PRN, sum(1 << j for j in sel)))
            e("v_lshrrev_b32 v%d, 2, v%d" % (HG, HL))
            e("v_mul_u32_u24 v%d, %d, v%d" % (HG, FSTR, HG))
            e("v_and_or_b32 v%d, v%d, 12, v%d" % (HG, HD, HG))
            e("s_and_b32 s%d, s%d, 3" % (PBK, PM))
            e("s_mul_i32 s%d, s%d, %d" % (PNR, PBK, FSTR))
            e("s_lshl_b32 s%d, s%d, 2" % (PBK, PBK))
            e("v_mov_b32 v%d, %d" % (HK, L_GT))
        e("s_mov_b32 s%d, %d" % (PJ, P["pw"]))
        e("v_mov_b32 v%d, %d" % (HW, L_TM))
        e("v_bfrev_b32 v%d, -2" % HC)
        e("s_mov_b32 exec_hi, 0")
        e.label("L_h3loop")
        lds_wait("p1", HZ, HE, PE, L_TC, "s%d" % PJ, PSP)
        e("s_memrealtime s[%d:%d]" % (PT, PT + 1))
        e("s_add_u32 s%d, s%d, %d" % (PJ, PJ, 5 - P["pw"]))
        e("s_mov_b32 exec_lo, 1")
        e("s_waitcnt lgkmcnt(0)")
        e("v_mov_b32 v%d, s%d" % (HB_, PT))
        e("buffer_store_dword v%d, off, s[%d:%d], s%d" % (HB_, PWS, PWS + 3, PFL))
        e("s_mov_b32 exec_lo, -1")
        lds_wait("p2", HZ, HE, PE, L_TC, "s%d" % PJ, PSP)
        e("buffer_load_dword v%d, v%d, s[%d:%d], s%d offen sc0" % (HB_, HD, PWS, PWS + 3, PO))
        e("s_add_u32 s%d, s%d, 4" % (PJ, PJ))
        e("s_sub_u32 s%d, s%d, 4096" % (PT, PT))
        e("s_waitcnt vmcnt(0)")
        e("v_subrev_u32 v%d, s%d, v%d" % (HB_, PT, HB_))
        e("v_cmp_gt_u32 vcc, 8192, v%d" % HB_)
        e("v_cndmask_b32 v%d, v%d, v%d, vcc" % (HB_, HC, HB_))
        e("s_mov_b32 s%d, 2048" % PE)
        for st in (2048, 1024, 512, 256, 128, 64, 32, 16, 8):
            e("s_add_u32 s%d, s%d, %d" % (PE + 1, PE, st))
            e("v_cmp_gt_u32 vcc, s%d, v%d" % (PE + 1, HB_))
            e("s_bcnt1_i32_b64 s%d, vcc" % (PE + 2))
            e("s_cmp_lt_u32 s%d, %d" % (PE + 2, P["aq"]))
            e("s_cselect_b32 s%d, s%d, s%d" % (PE, PE + 1, PE))
        e("s_add_u32 s%d, s%d, s%d" % (PE + 1, PE, PT))
        e("s_or_b32 s%d, s%d, 1" % (PE + 1, PE + 1))
        e("v_mov_b32 v%d, s%d" % (HB_, PE + 1))
        e("ds_write_b32 v%d, v%d" % (HW, HB_))
        e("v_add_u32 v%d, 4, v%d" % (HW, HW))
        if GTS:
            e("s_bitcmp1_b32 s%d, 0" % PRN)
            e("s_cbranch_scc0 L_h3ng")
            e("s_cmp_lt_u32 s%d, 6136" % PE)
            e("s_cselect_b32 exec_lo, 1, 0")
            e("s_cmp_lt_u32 s%d, 4" % PG)
            e("s_cselect_b32 exec_lo, exec_lo, 0")
            e("buffer_store_dword v%d, off, s[%d:%d], s%d offset:2048 sc1" % (HB_, PWS, PWS + 3, PFL))
            e("s_mov_b32 exec_lo, 0xffff")
            e("s_add_u32 s%d, s%d, %d" % (PE + 3, PJ, P["gq"]))
            lds_wait("p3", HZ, HE, PE, L_TC, "s%d" % (PE + 3), PSP)
            e("s_sub_u32 s%d, s%d, s%d" % (PE + 3, PO, PNR))
            e("s_mov_b32 s%d, %d" % (PSP, P["gn"]))
            e("s_mov_b32 s%d, 0" % PE)
            if P["gl2"]:
                e("buffer_load_dword v%d, v%d, s[%d:%d], s%d offen offset:2048" % (HA, HG, PWS, PWS + 3, PE + 3))
                e("s_branch L_h3gq")
            e.label("L_h3gp")
            e("buffer_load_dword v%d, v%d, s[%d:%d], s%d offen offset:2048 sc1" % (HA, HG, PWS, PWS + 3, PE + 3))
            e("s_sub_u32 s%d, s%d, 1" % (PSP, PSP))
            e("s_cbranch_scc1 L_h3gw")
            e.lines.append("L_h3gq:")
            e("s_waitcnt vmcnt(0)")
            e("v_subrev_u32 v%d, s%d, v%d" % (HA, PT, HA))
            e("v_cmp_gt_u32 vcc, 8192, v%d" % HA)
            e("v_cndmask_b32 v%d, v%d, v%d, vcc" % (HA, HC, HA))
            e("v_min_u32_dpp v%d, v%d, v%d quad_perm:[1,0,3,2] row_mask:0xf bank_mask:0xf" % (HA, HA, HA))
            e("v_min_u32_dpp v%d, v%d, v%d quad_perm:[2,3,0,1] row_mask:0xf bank_mask:0xf" % (HA, HA, HA))
            e("v_cmp_eq_u32 vcc, v%d, v%d" % (HC, HA))
            e("s_cbranch_vccnz L_h3gp")
            for k in range(4):
                e("v_readlane_b32 s%d, v%d, %d" % (PE + 4 + k, HA, 4 * k))
            e("v_readlane_b32 s%d, v%d, s%d" % (PE + 1, HA, PBK))
            e("s_max_u32 s%d, s%d, s%d" % (PE + 4, PE + 4, PE + 5))
            e("s_max_u32 s%d, s%d, s%d" % (PE + 6, PE + 6, PE + 7))
            e("s_max_u32 s%d, s%d, s%d" % (PE, PE + 4, PE + 6))
            e("s_sub_u32 s%d, s%d, s%d" % (PE, PE, PE + 1))
            e("s_sub_u32 s%d, s%d, %d" % (PE, PE, P["gtol"]))
            e("s_max_i32 s%d, s%d, 0" % (PE, PE))
            e("s_min_i32 s%d, s%d, %d" % (PE, PE, P["gcap"]))
            e.label("L_h3gw")
            e("s_or_b32 s%d, s%d, 0x10000" % (PE, PE))
            e("v_mov_b32 v%d, s%d" % (HB_, PE))
            e("ds_write_b32 v%d, v%d" % (HK, HB_))
            e("s_mov_b32 exec_lo, -1")
            e("v_add_u32 v%d, 4, v%d" % (HK, HK))
            e("s_waitcnt vmcnt(0)")
            e.label("L_h3ng")
            e("s_lshr_b32 s%d, s%d, 1" % (PRN, PRN))
        e("s_add_u32 s%d, s%d, %d" % (PJ, PJ, 3 + P["pw"]))
        e("s_add_u32 s%d, s%d, 128" % (PO, PO))
        e("s_add_u32 s%d, s%d, 128" % (PFL, PFL))
        e("s_cmp_lt_u32 s%d, %d" % (PJ, 12 * (len(CPK) + len(CPV))))
        e("s_cbranch_scc1 L_h3loop")
        if P["fc"] == 4:
            last_gather()
        else:
            e("s_endpgm")

    e.label("L_h2")
    srd(PS2, 74, H * SKV * 2)
    srd(PS3, 76, H * SKV * 2)
    if P["pf"] >= 2:
        if P["pf"] == 2:
            lds_wait("pf", HZ, HE, PE, L_EV + 4, "1", PSP)
        if P["pf"] == 4:
            lds_wait("pf", HZ, HE, PE, L_EV, "1", PSP)
        e("v_lshlrev_b32 v%d, 4, v%d" % (HA, HL))
        e("s_lshl_b32 s%d, s2, 13" % PE)
        e("s_add_u32 s%d, s%d, 4096" % (PE + 1, PE))
        for a, sr in enumerate((PS2, PS3)):
            for k in range(8):
                r = HX + 4 * (a * 8 + k)
                e("buffer_load_dwordx4 v[%d:%d], v%d, s[%d:%d], s%d offen offset:%d" % (r, r + 3, HA, sr, sr + 3, PE + k // 4, (k % 4) * 1024))
        e("s_waitcnt vmcnt(0)")
    get_dec("d2")
    PSIX = 24
    PKW = 32; PNEED = 33; PN0 = 34; PIM = 35; PCH = 36; PCC = 37; PMG = 38; PWD = 39; PIS = 40
    HT = HW
    HP = HX + 88; PXM = 64
    e("v_and_b32 v%d, 3, v%d" % (HT, HL))
    e("v_and_b32 v%d, 7, v%d" % (HT2, HL))
    e("v_lshrrev_b32 v%d, 2, v%d" % (HR, HL))
    e("s_mov_b32 s%d, %s" % (PCC, f32hex(C)))
    e("s_mov_b32 s%d, 0xaaaaaaab" % PMG)
    e("s_mov_b32 s%d, 0" % PPH)
    e("s_mul_i32 s%d, s%d, %d" % (PIM, PG, 8 * IMS))
    e("s_add_u32 s%d, s%d, %d" % (PIM, PIM, WS_L))
    e("s_mov_b32 s%d, %d" % (PIS, IMS))
    e("v_lshlrev_b32 v%d, 5, v%d" % (HN, HL))
    e("v_lshrrev_b32 v%d, 3, v%d" % (HK, HL))
    e("v_mul_u32_u24 v%d, 24, v%d" % (HK, HK))
    e("v_mov_b32 v%d, 768" % HA)
    e("v_mad_u32_u24 v%d, v%d, v%d, v%d" % (HK, HT2, HA, HK))
    e("v_lshlrev_b32 v%d, 4, v%d" % (HP, HL))
    e("s_mov_b32 s%d, %d" % (PN0, 3 * N0))
    RS = 16
    e.label("L_prep")
    seg_scalars()
    e("s_mov_b32 s%d, s%d" % (PKW, PDC))
    e("s_mov_b32 s%d, s%d" % (PWD, PDC + 3))
    for i in (0, 1, 3, 4):
        e("s_mov_b32 s%d, s%d" % (PDC + i, PDC + i + 1))
    e("s_lshl_b32 s%d, s%d, 3" % (PNEED, PPH))
    e("s_add_u32 s%d, s%d, 1" % (PNEED, PNEED))
    if P["pf"] == 1:
        lds_wait("pf", HZ, HE, PE, L_EV + 4, "s%d" % PNEED, PSP)
        e("v_lshlrev_b32 v%d, 4, v%d" % (HA, HL))
        e("s_mul_i32 s%d, s%d, 2736" % (PE + 1, PM))
        e("s_lshl_b32 s%d, s%d, 16" % (PE, PSG))
        e("s_mul_hi_u32 s%d, s%d, 0xaaaaaaab" % (PE, PE))
        e("s_lshr_b32 s%d, s%d, 5" % (PE, PE))
        e("s_lshl_b32 s%d, s%d, 4" % (PE, PE))
        e("s_add_u32 s%d, s%d, s%d" % (PE, PE, PE + 1))
        for a, sr in enumerate((PS2, PS3)):
            for k in range(3):
                r = HX + 4 * RS + 4 * (a * 3 + k)
                e("buffer_load_dwordx4 v[%d:%d], v%d, s[%d:%d], s%d offen offset:%d%s" % (r, r + 3, HA, sr, sr + 3, PE, k * 1024, " nt" if P["bnt"] & 8 else ""))
    for w, hv in ((PWD, HV),):
        e("s_and_b32 s%d, s%d, 7" % (PE, w))
        e("v_mov_b32 v%d, s%d" % (hv, PE))
        e("s_bitcmp1_b32 s%d, 3" % w)
        e("s_cselect_b64 vcc, -1, 0")
        e("v_cndmask_b32 v%d, v%d, v%d, vcc" % (hv, hv, HT2))
    e("v_xor_b32 v%d, s%d, v%d" % (HG, PNB, HV))
    e("v_lshl_or_b32 v%d, v%d, 3, v%d" % (HG, HT, HG))
    e("s_lshl_b32 s%d, s%d, 6" % (PCH, PSG))
    e("s_mul_i32 s%d, s%d, 768" % (PE + 1, PSG))
    e("s_lshl_b32 s%d, s%d, 2" % (PE + 2, PG0))
    e("s_sub_u32 s%d, s%d, s%d" % (PE + 1, PE + 1, PE + 2))
    e("s_add_u32 s%d, s%d, %d" % (PE + 1, PE + 1, WS_B))
    if P["pace"]:
        e("s_add_u32 s%d, s%d, 4" % (PNEED, PNEED))
        lds_wait("ga", HZ, HE, PE, L_EV + 4, "s%d" % PNEED, PSP)
    else:
        e("s_add_u32 s%d, s%d, 1" % (PNEED, PPH))
        lds_wait("ga", HZ, HE, PE, L_FD, "s%d" % PNEED, PSP)
    for st in range(4):
        R = HX + RS * st
        e("v_add_u32 v%d, %d, v%d" % (HA, 16 * st, HR))
        e("v_bfe_u32 v%d, v%d, 3, 2" % (HB_, HA))
        e("v_and_or_b32 v%d, v%d, 4, v%d" % (HB_, HA, HB_))
        e("v_xor_b32 v%d, v%d, v%d" % (HB_, HG, HB_))
        e("v_add_u32 v%d, s%d, v%d" % (HA, PCH, HA))
        e("v_lshl_add_u32 v%d, v%d, 5, v%d" % (HC, HA, HB_))
        e("v_lshl_add_u32 v%d, v%d, 4, 1" % (HC, HC))
        e("v_mul_hi_u32 v%d, v%d, s%d" % (HC, HC, PMG))
        e("v_lshrrev_b32 v%d, 1, v%d" % (HC, HC))
        e("v_lshrrev_b32 v%d, 1, v%d" % (HF, HC))
        e("v_lshlrev_b32 v%d, 2, v%d" % (HF, HF))
        for b, sr in ((R + 8, PS2), (R + 12, PS3)):
            if P["xkp"] & 8:
                continue
            gnt = " nt" if P["bnt"] & 16 else ""
            e("buffer_load_dwordx3 v[%d:%d], v%d, s[%d:%d], 0 offen%s" % (b, b + 2, HF, sr, sr + 3, gnt))
            if P["pace"] == 2:
                e("s_waitcnt vmcnt(0)")
            e("buffer_load_dword v%d, v%d, s[%d:%d], 0 offen offset:12%s" % (b + 3, HF, sr, sr + 3, gnt))
        e("v_lshrrev_b32 v%d, 6, v%d" % (R + 6, HC))
        e("v_lshl_add_u32 v%d, v%d, 2, s%d" % (R + 6, R + 6, PE + 1))
        e("v_and_b32 v%d, 15, v%d" % (HD, HC))
        e("v_cmp_eq_u32 s[%d:%d], 5, v%d" % (PSIX + 2 * st, PSIX + 2 * st + 1, HD))
        e("v_and_b32 v%d, 1, v%d" % (R + 7, HC))
        e("v_lshlrev_b32 v%d, 4, v%d" % (R + 7, R + 7))
        if P["pace"] == 1:
            e("s_waitcnt vmcnt(0)")
    e("s_add_u32 s%d, s%d, 1" % (PNEED, PPH))
    if P["fd"]:
        cps = CPK + [48 + c for c in CPV]
        th = [12 * min(j for j, c in enumerate(cps) if c > b) + P["fd"] for b in (16, 32, 48)]
        assert th[2] - th[1] == th[1] - th[0]
        e("s_mul_i32 s%d, s%d, %d" % (PE + 6, PPH, th[1] - th[0]))
        e("s_add_u32 s%d, s%d, %d" % (PE + 6, PE + 6, th[0]))
        lds_wait("fe", HZ, HE, PE, L_TC, "s%d" % (PE + 6), PSP)
    lds_wait("fd", HZ, HE, PE, L_FD, "s%d" % PNEED, PSP)
    e("v_mul_u32_u24 v%d, %d, v%d" % (HA, FSTR, HL))
    e("s_xor_b32 s%d, s%d, s%d" % (PE, PKW, PWD))
    e("s_xor_b32 s%d, s%d, s%d" % (PE, PE, PNB))
    e("s_and_b32 s%d, s%d, 7" % (PE, PE))
    e("v_mov_b32 v%d, s%d" % (HC, PNEED))
    e("s_lshl_b64 vcc, 1, s%d" % PE)
    e("s_or_b32 s%d, s%d, s%d" % (PE, PKW, PWD))
    e("s_bitcmp1_b32 s%d, 3" % PE)
    e("s_cselect_b64 vcc, 0xff, vcc")
    e("s_cmp_eq_u32 s%d, s%d" % (PKW, PWD))
    e("s_cselect_b64 vcc, 0, vcc")
    e("s_max_u32 s%d, s%d, 1" % (PE, PPH))
    e("v_mov_b32 v%d, s%d" % (HD, PE))
    e("v_cndmask_b32 v%d, v%d, v%d, vcc" % (HC, HD, HC))
    e("s_cmp_%s_u32 s%d, 1" % ("eq" if P["jit"] else "ge", PPH))
    e("s_cselect_b64 exec, vcc, 0xff")
    e("s_mov_b32 s%d, 0x40000" % PSP)
    if not P["xkp"] & 64:
        e("s_cbranch_execz L_noflags")
        e.label("L_flags")
        e("buffer_load_dword v%d, v%d, s[%d:%d], s%d offen sc1" % (HB_, HA, PWS, PWS + 3, PGL))
        e("s_sub_u32 s%d, s%d, 1" % (PSP, PSP))
        e("s_cbranch_scc1 L_exit1")
        e("s_waitcnt vmcnt(0)")
        e("v_cmpx_gt_u32 vcc, v%d, v%d" % (HC, HB_))
        e("s_cbranch_execnz L_flags")
        e.label("L_noflags")
    e("s_mov_b64 exec, -1")
    for st in range(4):
        R = HX + RS * st
        if not P["xkp"] & 32:
            e("buffer_load_dword v%d, v%d, s[%d:%d], 0 offen sc1" % (R + 6, R + 6, PWS, PWS + 3))
    e("s_bitcmp1_b32 s%d, 3" % PWD)
    e("s_cselect_b32 s%d, 0, 7" % (PE + 1))
    e("s_xor_b32 s%d, s%d, s%d" % (PE + 2, PKW, PWD))
    e("s_bitcmp1_b32 s%d, 3" % (PE + 2))
    e("s_cselect_b32 s%d, 7, 0" % (PE + 3))
    e("s_and_b32 s%d, s%d, 7" % (PE + 2, PE + 2))
    e("s_and_b32 s%d, s%d, 7" % (PE + 4, PWD))
    e("s_add_u32 s%d, s%d, 4096" % (PE + 5, PIM))
    for k in range(6):
        R = HX + 4 * RS + 4 * k
        e("v_add_u32 v%d, %d, v%d" % (HA, 64 * k, HL))
        e("v_mul_u32_u24 v%d, 1366, v%d" % (HB_, HA))
        e("v_lshrrev_b32 v%d, 16, v%d" % (HB_, HB_))
        e("v_mul_u32_u24 v%d, 48, v%d" % (HC, HB_))
        e("v_sub_u32 v%d, v%d, v%d" % (HA, HA, HC))
        e("v_cmp_gt_u32 vcc, s%d, v%d" % (PN0, HA))
        e("v_and_b32 v%d, s%d, v%d" % (HC, PE + 3, HB_))
        e("v_xor_b32 v%d, s%d, v%d" % (HC, PE + 2, HC))
        e("v_and_b32 v%d, s%d, v%d" % (HB_, PE + 1, HB_))
        e("v_xor_b32 v%d, s%d, v%d" % (HB_, PE + 4, HB_))
        e("v_cndmask_b32 v%d, v%d, v%d, vcc" % (HC, HC, HB_))
        e("v_cmp_ne_u32 s[%d:%d], 0, v%d" % (PXM + 2 * k, PXM + 2 * k + 1, HC))
        e("v_xor_b32 v%d, s%d, v%d" % (HC, PNB, HC))
        e("v_mad_u32_u24 v%d, v%d, s%d, v%d" % (HC, HC, PIS, HP))
        e("s_mov_b64 exec, s[%d:%d]" % (PXM + 2 * k, PXM + 2 * k + 1))
        if not P["xkp"] & 128:
            e("buffer_load_dwordx4 v[%d:%d], v%d, s[%d:%d], s%d offen offset:%d sc1" %
              (R, R + 3, HC, PWS, PWS + 3, PE + 5 if k >= 4 else PIM, (k % 4) * 1024))
        e("s_mov_b64 exec, -1")
    e("s_waitcnt vmcnt(0)")
    for k in range(6):
        R = HX + 4 * RS + 4 * k
        e("s_mov_b64 exec, s[%d:%d]" % (PXM + 2 * k, PXM + 2 * k + 1))
        e("ds_write_b128 v%d, v[%d:%d] offset:%d" % (HP, R, R + 3, L_LG + k * 1024))
    e("s_mov_b64 exec, -1")
    for st in range(4):
        R = HX + RS * st
        for c in range(3):
            e("ds_read_b64 v[%d:%d], v%d offset:%d" % (R + 2 * c, R + 2 * c + 1, HK, L_LG + st * 192 + 8 * c))
    e("s_mov_b32 s%d, 0" % PN0)
    e("v_mov_b32 v%d, 0x%08x" % (HB_, BIGNEG))
    e("v_mov_b32 v%d, 0x%08x" % (HA, BIGNEG))
    e("s_waitcnt vmcnt(0) lgkmcnt(0)")
    for st in range(4):
        R = HX + RS * st
        for k in range(6):
            e("v_sub_f32 v%d, v%d, v%d" % (R + k, R + k, R + 6))
        for k in range(6):
            e("v_mul_f32 v%d, s%d, v%d" % (R + k, PCC, R + k))
        e("v_cndmask_b32 v%d, v%d, v%d, s[%d:%d]" % (R + 5, HB_, R + 5, PSIX + 2 * st, PSIX + 2 * st + 1))
        for k in range(0, 6, 2):
            e("v_max3_f32 v%d, v%d, v%d, v%d" % (HA, HA, R + k, R + k + 1))
        for b in (R + 8, R + 12):
            for k in range(3):
                e("v_alignbit_b32 v%d, v%d, v%d, v%d" % (b + k, b + k + 1, b + k, R + 7))

    wave_reduce([HA], "v_max_f32", [HB_])
    e("v_mov_b32 v%d, 0" % HB_)
    e("v_mov_b32 v%d, 0" % HC)
    for st in range(4):
        R = HX + RS * st
        for k in range(6):
            e("v_sub_f32 v%d, v%d, v%d" % (R + k, R + k, HA))
        for k in range(6):
            e("v_exp_f32 v%d, v%d" % (R + k, R + k))
        for k in range(6):
            e("v_add_f32 v%d, v%d, v%d" % (HB_, HB_, R + k))
            if k & 1:
                e("v_and_b32 v%d, 0xffff0000, v%d" % (HE, R + 8 + k // 2))
                e("v_and_b32 v%d, 0xffff0000, v%d" % (HF, R + 12 + k // 2))
            else:
                e("v_lshlrev_b32 v%d, 16, v%d" % (HE, R + 8 + k // 2))
                e("v_lshlrev_b32 v%d, 16, v%d" % (HF, R + 12 + k // 2))
            e("v_mul_f32 v%d, v%d, v%d" % (R + k, R + k, HE))
            e("v_fmac_f32 v%d, v%d, v%d" % (HC, R + k, HF))
        e("ds_write_b128 v%d, v[%d:%d] offset:%d" % (HN, R, R + 3, L_PV + st * 2048))
        e("ds_write_b64 v%d, v[%d:%d] offset:%d" % (HN, R + 4, R + 5, L_PV + st * 2048 + 16))
    wave_reduce([HB_, HC], "v_add_f32", [HE, HF])
    e("s_lshl_b32 s%d, s%d, 2" % (PE, PPH))
    e("v_mov_b32 v%d, s%d" % (HE, PE))
    e("v_lshlrev_b32 v%d, 2, v%d" % (HF, HE))
    e("v_mov_b32 v%d, s%d" % (HD, PWD))
    e("s_mov_b64 exec, 1")
    e("ds_write_b128 v%d, v[%d:%d] offset:%d" % (HF, HA, HD, L_ML))
    e("ds_write_b32 v%d, v%d offset:%d" % (HE, HD, L_GO))
    if FU:
        e("s_lshl_b32 s%d, s%d, 8" % (PE, PPH))
        e("s_add_u32 s%d, s%d, s2" % (PE, PE))
        e("s_lshl_b32 s%d, s%d, 6" % (PE, PE))
        e("s_add_u32 s%d, s%d, %d" % (PE, PE, WS_ML))
        e("buffer_store_dwordx4 v[%d:%d], off, s[%d:%d], s%d sc1" % (HA, HD, PWS, PWS + 3, PE))
    e("s_mov_b64 exec, -1")
    e("v_add_u32 v%d, 8192, v%d" % (HN, HN))
    e("v_add_u32 v%d, %d, v%d" % (HK, PHI, HK))
    e("v_add_u32 v%d, %d, v%d" % (HP, PHI, HP))
    if PHS != PHI:
        e("s_add_u32 s%d, s%d, %d" % (PIM, PIM, PHS - PHI))
    e("s_add_u32 s%d, s%d, 1" % (PPH, PPH))
    e("s_cmp_lt_u32 s%d, 3" % PPH)
    e("s_cbranch_scc1 L_prep")
    e("s_mov_b32 s%d, 0" % PPH)
    e("v_lshlrev_b32 v%d, 2, v%d" % (HR, HL))
    e("v_add_u32 v%d, %d, v%d" % (HG, L_ACC, HR))
    e("v_lshlrev_b32 v%d, 4, v%d" % (HK, HL))
    e("v_mov_b32 v%d, 1" % (HX + 15))
    e.label("L_merge")
    e("s_lshl_b32 s%d, s%d, 2" % (PE, PPH))
    e("v_mov_b32 v%d, s%d" % (HW, PE))
    e("v_lshlrev_b32 v%d, 2, v%d" % (HF, HW))
    e("ds_read_b128 v[%d:%d], v%d offset:%d" % (HA, HD, HF, L_ML))
    e("s_lshl_b32 s%d, s%d, 8" % (PSG, PPH))
    e("s_add_u32 s%d, s%d, s2" % (PSG, PSG))
    e("s_lshl_b32 s%d, s%d, 10" % (PSG, PSG))
    lds_wait("m", HZ, HE, PE, L_CA, "4", PSP, HW)
    for kk in range(3):
        for w in range(NW):
            e("ds_read_b32 v%d, v%d offset:%d" % (HX + kk * NW + w, HG, w * ROWB + kk * 256))
    for kk in range(3):
        b = HX + kk * NW
        e("s_waitcnt lgkmcnt(%d)" % (8 - 4 * kk))
        e("v_add_f32 v%d, v%d, v%d" % (b, b, b + 1))
        e("v_add_f32 v%d, v%d, v%d" % (b + 2, b + 2, b + 3))
        e("v_sub_f32 v%d, v%d, v%d" % (b, b, HC))
        if FU:
            e("v_add_f32 v%d, v%d, v%d" % (HX + 12 + kk, b, b + 2))
            continue
        e("v_add_f32 v%d, v%d, v%d" % (b, b, b + 2))
        e("buffer_store_dword v%d, v%d, s[%d:%d], s%d offen offset:%d" % (b, HR, PWS, PWS + 3, PSG, kk * 256))
    if FU:
        e("buffer_store_dwordx4 v[%d:%d], v%d, s[%d:%d], s%d offen sc1" % (HX + 12, HX + 15, HK, PWS, PWS + 3, PSG))
    else:
        e("s_mov_b64 exec, 1")
        e("buffer_store_dwordx2 v[%d:%d], off, s[%d:%d], s%d offset:%d" % (HA, HB_, PWS, PWS + 3, PSG, DH * 4))
        e("s_mov_b64 exec, -1")
    e("v_add_u32 v%d, %d, v%d" % (HG, NW * ROWB, HG))
    e("s_add_u32 s%d, s%d, 1" % (PPH, PPH))
    e("s_cmp_lt_u32 s%d, %d" % (PPH, 2 if 0 < P["fc"] < 4 else 3))
    e("s_cbranch_scc1 L_merge")
    if 0 < P["fc"] < 4:
        last_gather()
    if P["stamp"] == 5:
        e("s_memrealtime s[%d:%d]" % (PT, PT + 1))
        e("s_waitcnt vmcnt(0)")
        e("s_memrealtime s[%d:%d]" % (PT + 2, PT + 3))
        srd(PS2, 82, 0x8000000)
        e("s_waitcnt lgkmcnt(0)")
        e("v_mov_b32 v%d, s%d" % (HX, PT))
        e("v_mov_b32 v%d, s%d" % (HX + 1, PT + 2))
        e("s_lshl_b32 s%d, s2, 3" % PE)
        e("s_add_u32 s%d, s%d, 0x400a000" % (PE, PE))
        e("s_mov_b64 exec, 1")
        e("buffer_store_dwordx2 v[%d:%d], off, s[%d:%d], s%d" % (HX, HX + 1, PS2, PS2 + 3, PE))
    e("s_endpgm")

    main_text = e.text()
    RPW = 24
    k2 = NAME + "_kernel"
    e.lines.append(".globl %s" % k2)
    e.lines.append(".p2align 8")
    e.lines.append(".type %s,@function" % k2)
    e.lines.append(k2 + ":")
    e.wr = {}; e.tr = {}; e.sw = {}
    e("s_cmp_ge_u32 s2, %d" % H)
    e("s_cbranch_scc1 L_exit2")
    e("s_load_dwordx2 s[4:5], s[0:1], 56")
    e("s_load_dwordx2 s[6:7], s[0:1], 72")
    e("v_lshlrev_b32 v1, 2, v0")
    e("v_mov_b32 v2, 0")
    e("s_mul_i32 s16, s2, %d" % (RPW * PART_STRIDE))
    e("s_mov_b32 s10, %d" % (3 * NWG * PART_STRIDE))
    e("s_mov_b32 s11, 0x00020000")
    e("s_mov_b32 s14, %d" % (H * DH * 2))
    e("s_mov_b32 s15, 0x00020000")
    for k in range(1, RPW // 4):
        e("s_add_u32 s%d, s16, %d" % (16 + k, 4 * k * PART_STRIDE))
    e("s_waitcnt lgkmcnt(0)")
    e("s_mov_b32 s8, s6")
    e("s_and_b32 s9, s7, 0xffff")
    e("s_mov_b32 s12, s4")
    e("s_and_b32 s13, s5, 0xffff")
    MLB = 8
    OB = MLB + 2 * RPW
    for s in range(RPW):
        so = 16 + s // 4
        e("buffer_load_dwordx2 v[%d:%d], v2, s[8:11], s%d offen offset:%d" %
          (MLB + 2 * s, MLB + 2 * s + 1, so, (s % 4) * PART_STRIDE + DH * 4))
        e("buffer_load_dword v%d, v1, s[8:11], s%d offen offset:%d" % (OB + s, so, (s % 4) * PART_STRIDE))
    e("s_waitcnt vmcnt(0)")
    e("v_mov_b32 v4, v%d" % MLB)
    for s in range(1, RPW):
        e("v_max_f32 v4, v4, v%d" % (MLB + 2 * s))
    for s in range(RPW):
        e("v_sub_f32 v%d, v%d, v4" % (MLB + 2 * s, MLB + 2 * s))
    for s in range(RPW):
        e("v_exp_f32 v%d, v%d" % (MLB + 2 * s, MLB + 2 * s))
    e("v_mul_f32 v5, v%d, v%d" % (MLB, MLB + 1))
    e("v_mul_f32 v6, v%d, v%d" % (MLB, OB))
    for s in range(1, RPW):
        e("v_fmac_f32 v5, v%d, v%d" % (MLB + 2 * s, MLB + 2 * s + 1))
        e("v_fmac_f32 v6, v%d, v%d" % (MLB + 2 * s, OB + s))
    e("v_rcp_f32 v5, v5")
    e("v_mul_f32 v6, v6, v5")
    e("v_cvt_pk_bf16_f32 v6, v6, v6")
    e("s_mul_i32 s16, s2, %d" % (DH * 2))
    e("v_lshrrev_b32 v1, 1, v1")
    e("buffer_store_short v6, v1, s[12:15], s16 offen")
    e.lines.append("L_exit2:")
    e("s_endpgm")
    NV2 = OB + RPW

    def kd(name, nv, ns):
        acc = (nv + 3) // 4 * 4
        return """.amdhsa_kernel %s
  .amdhsa_next_free_vgpr %d
  .amdhsa_next_free_sgpr %d
  .amdhsa_accum_offset %d
  .amdhsa_group_segment_fixed_size 0
  .amdhsa_kernarg_size 80
  .amdhsa_user_sgpr_count 2
  .amdhsa_user_sgpr_kernarg_segment_ptr 1
  .amdhsa_system_sgpr_workgroup_id_x 1
.end_amdhsa_kernel
""" % (name, nv, ns, acc)

    diag = ""
    if P["diag"]:
        d = Emit4()
        d.lines += [".globl diag_kernel", ".p2align 8", ".type diag_kernel,@function", "diag_kernel:"]
        d("s_cmp_ge_u32 s2, 1")
        d("s_cbranch_scc1 L_dx")
        d("s_load_dwordx2 s[6:7], s[0:1], 72")
        d("s_memrealtime s[16:17]")
        d("v_lshlrev_b32 v1, 4, v0")
        d("s_mov_b32 s10, 0x8000000")
        d("s_mov_b32 s11, 0x00020000")
        d("s_waitcnt lgkmcnt(0)")
        d("s_mov_b32 s8, s6")
        d("s_and_b32 s9, s7, 0xffff")
        for k in range(16):
            d("s_mov_b32 s12, 0x%x" % (0x4000000 + k * 1024))
            d("buffer_load_dwordx4 v[%d:%d], v1, s[8:11], s12 offen" % (4 + 4 * k, 7 + 4 * k))
        d("s_waitcnt vmcnt(0)")
        d("v_readfirstlane_b32 s13, v4")
        d("v_mov_b32 v2, 0")
        d("v_mov_b32 v3, 0")
        for k in range(16):
            d("v_subrev_u32 v%d, s13, v%d" % (4 + 4 * k, 4 + 4 * k))
            d("v_subrev_u32 v%d, s13, v%d" % (5 + 4 * k, 4 + 4 * k + (P["diag"] & 3)))
            d("v_min_i32 v2, v2, v%d" % (4 + 4 * k))
            d("v_max_i32 v3, v3, v%d" % (5 + 4 * k))
        d("s_mov_b32 s14, 0")
        d("s_mov_b32 s15, 0")
        for l in range(64):
            d("v_readlane_b32 s18, v2, %d" % l)
            d("v_readlane_b32 s19, v3, %d" % l)
            d("s_nop 3")
            d("s_min_i32 s14, s14, s18")
            d("s_max_i32 s15, s15, s19")
        if P["diag"] & 4:
            d("s_sub_u32 s14, s16, s13")
            d("s_sub_u32 s15, s14, s15")
        else:
            d("s_sub_u32 s15, s15, s14")
        d("s_sub_u32 s15, s15, %d" % P["doff"])
        d("s_max_i32 s15, s15, 0")
        d("s_min_i32 s15, s15, 10000")
        d("s_mul_i32 s15, s15, %d" % P["dmul"])
        d("s_add_u32 s15, s15, s16")
        d.label("L_dl")
        d("s_memrealtime s[18:19]")
        d("s_waitcnt lgkmcnt(0)")
        d("s_sub_u32 s18, s18, s15")
        d("s_cmp_lt_i32 s18, 0")
        d("s_cbranch_scc1 L_dl")
        d.lines.append("L_dx:")
        d("s_endpgm")
        diag = d.text()
    out = HEADER.replace("gen.py", "gen6.py").format(params=" ".join("%s=%s" % kv for kv in sorted(P.items())))
    if FU:
        out += "; @launch kernel=%s grid=(%d,1,1) block=(%d,1,1) lds=%d\n" % (k1, NWG, (NW + NHX) * 64, LDS1)
    else:
        out += "; @launch kernel=%s grid=(%d,1,1) block=(%d,1,1) lds=%d\n" % (k1, NWG, (NW + NHX) * 64, LDS1)
        out += "; @launch kernel=%s grid=(%d,1,1) block=(%d,1,1) lds=%d\n" % (k2, H, DH, 0)
    if diag:
        out += "; @launch kernel=diag_kernel grid=(1,1,1) block=(64,1,1) lds=0\n"
    out += '.amdgcn_target "amdgcn-amd-amdhsa--gfx950"\n.text\n'
    out += main_text if FU else e.text()
    out += diag
    out += '.section .rodata,"a"\n.p2align 6\n'
    out += kd(k1, NVGPR + (8 if P["xb"] else 2 if P["stamp"] == 5 else 0), 102)
    if not FU:
        out += ".p2align 6\n"
        out += kd(k2, NV2, 24)
    if diag:
        out += ".p2align 6\n"
        out += kd("diag_kernel", 72, 24)
    return out


DEFAULTS = dict(grp="6-6-6", n0=3, trg=1, ta=14, tb=15, jit=1, pace=1, nr0=1, nr=3, nt="nt", ldspad=0, stamp=0, xkp=0, force=0, clip=1400,
                l2t=290, th=200, pf=1, ob=2, ox=0, ds=1, td=3, tdm=3, fuse=1, cw=1,
                lx=0, wo=0, ns0=4, tw=4, ov="0000", st="sc1", xv="", h4=0, bnt=0, vw=1, at=1, tc=40, tg=2, te=44, aq=16, ka=9, kb=2048, dmin=0, dmax=11,
                bc=1, cpk="9-17-25-33-41", cpv="1-9-17-25-33", rd=2, ka2=8, kb2=512, bmax=6, be=1, pw=2, il=1, xp=0, ss=0, eb=0, pfi=0, hs=0, l2p=0, gts="16-32-48-64-80", gn=8, gtol=25, gcap=1000, gq=0, gl2=0, xb=0, diag=0, doff=20000, dmul=8, fc=4, elk=1, cd=9, fd=0, prio=0, bp=0, bp0=0, bq=0, wl=2048, wt=9984, sw=1, dc=1)


def main():
    P = dict(DEFAULTS)
    outp = None
    args = sys.argv[1:]
    i = 0
    while i < len(args):
        a = args[i]
        if a == "-o":
            outp = args[i + 1]; i += 2; continue
        k, v = a.split("=", 1)
        assert k in P, k
        P[k] = type(P[k])(v.replace("+", " ")) if isinstance(P[k], str) else int(v)
        i += 1
    s = gen(P)
    if outp:
        open(outp, "w").write(s)
    else:
        sys.stdout.write(s)


if __name__ == "__main__":
    main()
```

```python
import re
import sys
import math
from gen import f32hex, HEADER, NAME, H, SKV, DH, G, NGRP, ROWB, HEADB
from gen4 import Emit4

PART_STRIDE = 1024
NW = 4
NH = 3
NWG = 256
NT = 48
WS_G = 8 << 20
FSTR = 4096 + 256
WS_ML = 0xe0000
WS_B = 0x120000
WS_L = 2 << 20
WS_T = 0x9c0000
WS_SIZE = 10 << 20
BIGNEG = 0xf149f2ca


def gen(P):
    global WS_L, WS_T
    WS_L = P["wl"] << 10
    WS_T = P["wt"] << 10
    assert P["sw"] or not P["dc"]
    GR = [int(x) for x in P["grp"].split("-")]
    assert sum(GR) == 18 and len(GR) >= 2
    NG = len(GR)
    GOFF = [sum(GR[:k]) for k in range(NG)]
    OV = [int(x) for x in P["ov"]]
    N0 = P["n0"]
    NR = P["nr"]
    TRG1 = N0 - P["trg"]
    TA = P["ta"]
    TB = P["tb"]
    assert 2 <= TRG1 < N0 < TA < TB < 16 and 1 <= NR <= 7 and N0 <= 8
    pol = (" " + P["nt"]) if P["nt"] else ""
    C = (DH ** -0.5) * math.log2(math.e)
    L_DEC = 0
    L_GO = 24
    L_PC = 36
    L_CF = 40
    L_FD = 52
    L_EV = 56
    L_CA = 64
    L_ML = 80
    L_TC = 128
    L_TD = 132
    L_EL = 136
    L_TM = 144
    L_GT = 208
    L_LG = 256
    PHI = 6144
    IMG = 3 * PHI
    L_PV = L_LG + IMG
    L_ACC = L_PV + 192 * 128
    LDS1 = max(L_ACC + 3 * NW * ROWB, P["ldspad"])

    e = Emit4()
    V_T = 1; V_J16 = 2; V_J8 = 3; V_LB0 = 4; V_PB0 = 5; V_PV = 6; V_PVN = 7; V_DO = 8; V_PO = 9; V_T0 = 10; V_T1 = 11
    V_ACC = 12; V_W = 24; V_RAW = 36
    V_OFF = 48; V_OFF6 = 49; V_TM = 50; V_BIG = 51; V_T2 = 52; V_Z = 53
    V_S = 54
    V_D = 60
    V_T128 = 62; V_TMX = 63
    V_RING = 64
    NVGPR = V_RING + 72
    S_G = 3; S_M = 4; S_N = 5; S_SPIN = 6; S_LDC = 7
    S_K = 8; S_V = 12; S_KS = 16; S_Q = 20; S_WS = 24
    S_WAVE = 28; S_CI = 29; S_I = 30; S_QOFF = 31
    S_T = 32
    S_EV = 40; S_STM = 42; S_HB = 44; S_768 = 45; S_384 = 46; S_MAGIC = 47
    S_NB = 48; S_TD = 49; S_XB = 50; S_LB = 53
    S_ST = 54; S_DBG = 56
    S_BO = 59; S_TW = 60; S_CPA = 62; S_NBO = 63; S_BP = 72
    S_MP = 64; S_MG = 66; S_MR = 68; S_MO = 70
    BC = P["bc"]
    NHX = NH + (1 if BC else 0)
    CPK = [int(x) for x in P["cpk"].split("-")] if BC and P["cpk"] else []
    CPV = [int(x) for x in P["cpv"].split("-")] if BC and P["cpv"] else []
    if BC:
        CPV.append(P["tc"])
        assert P["te"] == P["tc"] + P["tg"] + P["rd"] and len(CPK) + len(CPV) <= 16

    GTS = [int(x) for x in P["gts"].split("-")] if BC and P["gts"] else []

    def set_masks(ev, cps):
        mp = sum(1 << c for c in cps)
        allm = [(S_EV, ev | mp | (mp << P["tg"]) | (mp << (P["tg"] + P["rd"])))]
        if BC:
            allm += [(S_MP, mp), (S_MG, mp << P["tg"]), (S_MR, mp << (P["tg"] + P["rd"])), (S_MO, ev)]
        for r, v in allm:
            assert v < (1 << 48)
            e("s_mov_b32 s%d, 0x%x" % (r, v & 0xffffffff))
            e("s_mov_b32 s%d, 0x%x" % (r + 1, v >> 32))

    FU = P["fuse"]
    k1 = NAME + "_kernel" if FU else "part_kernel"
    e.lines.append(".globl %s" % k1)
    e.lines.append(".p2align 8")
    e.lines.append(".type %s,@function" % k1)
    e.lines.append(k1 + ":")
    e("s_cmp_ge_u32 s2, %d" % NWG)
    e("s_cbranch_scc1 L_exit1")
    e("s_load_dwordx16 s[64:79], s[0:1], 0")
    e("s_load_dwordx4 s[80:83], s[0:1], 64")
    if P["stamp"]:
        e("s_memrealtime s[%d:%d]" % (S_ST, S_ST + 1))
    e("v_lshrrev_b32 v%d, 6, v0" % V_T0)
    e("v_and_b32 v%d, 63, v0" % V_T1)
    e("v_readfirstlane_b32 s%d, v%d" % (S_WAVE, V_T0))
    if P["eb"] == 4:
        e("v_lshlrev_b32 v%d, 2, v%d" % (V_T0, V_T1))
        e("v_mov_b32 v%d, 0" % V_Z)
        e("ds_write_b32 v%d, v%d" % (V_T0, V_Z))
    e("s_lshr_b32 s%d, s2, 3" % S_G)
    e("s_and_b32 s%d, s2, 7" % S_M)
    e("s_lshr_b32 s%d, s2, 6" % S_T)
    e("s_xor_b32 s%d, s%d, s%d" % (S_T, S_T, S_M))
    e("s_lshr_b32 s%d, s%d, 1" % (S_NB, S_T))
    e("s_and_b32 s%d, s%d, 1" % (S_T, S_T))
    e("s_lshl_b32 s%d, s%d, 2" % (S_T, S_T))
    e("s_or_b32 s%d, s%d, s%d" % (S_NB, S_NB, S_T))
    if P["eb"] != 4:
        e("s_cmp_ge_u32 s%d, %d" % (S_WAVE, NW))
        e("s_cbranch_scc1 L_helper")

    def srd(dst, ptr, nbytes):
        e("s_mov_b32 s%d, s%d" % (dst, ptr))
        e("s_and_b32 s%d, s%d, 0xffff" % (dst + 1, ptr + 1))
        e("s_mov_b32 s%d, %d" % (dst + 2, nbytes))
        e("s_mov_b32 s%d, 0x00020000" % (dst + 3))

    def lds_wait(tag, vz, vt, st, off, cond, spin, vaddr=None):
        e("s_mov_b32 s%d, 0x100000" % spin)
        e.label("L_w" + tag)
        e("ds_read_b32 v%d, v%d offset:%d" % (vt, vz if vaddr is None else vaddr, off))
        e("s_sub_u32 s%d, s%d, 1" % (spin, spin))
        e("s_cbranch_scc1 L_exit1")
        e("s_waitcnt lgkmcnt(0)")
        e("v_readfirstlane_b32 s%d, v%d" % (st, vt))
        if cond == "nz":
            e("s_cmp_eq_u32 s%d, 0" % st)
        else:
            e("s_cmp_lt_u32 s%d, %s" % (st, cond))
        e("s_cbranch_scc1 L_w" + tag)

    def gate(b, tag, check):
        if b not in GTS:
            return
        if check:
            e("s_cmp_eq_u32 s%d, %d" % (S_I, b % 48))
            e("s_cbranch_scc0 L_gx" + tag)
        e("s_memrealtime s[%d:%d]" % (S_T + 4, S_T + 5))
        lds_wait("g" + tag, V_Z, V_T0, S_T, L_GT + 4 * GTS.index(b), "nz", S_SPIN)
        e("s_and_b32 s%d, s%d, 0xffff" % (S_T, S_T))
        e("s_cbranch_scc0 L_gx" + tag)
        if P["stamp"] == 5:
            e("s_lshl_b32 s%d, s%d, 16" % (S_T + 1, S_T))
            e("s_add_u32 s%d, s%d, s%d" % (S_NBO, S_NBO, S_T + 1))
        e("s_add_u32 s%d, s%d, s%d" % (S_T, S_T, S_T + 4))
        e.label("L_gl" + tag)
        e("s_memrealtime s[%d:%d]" % (S_T + 4, S_T + 5))
        e("s_waitcnt lgkmcnt(0)")
        e("s_sub_u32 s%d, s%d, s%d" % (S_T + 4, S_T + 4, S_T))
        e("s_cmp_lt_i32 s%d, 0" % (S_T + 4))
        e("s_cbranch_scc1 L_gl" + tag)
        e.label("L_gx" + tag)

    def get_table(kind, tag):
        if tag == "tv":
            gate(48, tag, False)
        else:
            for b in ((16, 32) if kind == "K" else (64, 80)):
                gate(b, "%s%d" % (tag, b), True)
        e("s_lshr_b32 s%d, s%d, 4" % (S_T + 1, S_I))
        e("s_lshl_b32 s%d, s%d, 2" % (S_T + 2, S_T + 1))
        if P["stamp"] == 6:
            e("s_memrealtime s[%d:%d]" % (S_T + 4, S_T + 5))
            e("s_lshl_b32 s%d, s2, 2" % S_T)
            e("s_add_u32 s%d, s%d, s%d" % (S_T, S_T, S_WAVE))
            e("s_cmp_eq_u32 s%d, 400" % S_T)
            e("s_cselect_b64 exec, 1, 0")
            e("s_waitcnt lgkmcnt(0)")
            e("s_sub_u32 s%d, s%d, s%d" % (S_T + 4, S_T + 4, S_ST))
            e("v_mov_b32 v%d, s%d" % (V_T1, S_T + 4))
            e("buffer_store_dword v%d, off, s[%d:%d], s%d offset:%d" % (V_T1, S_WS, S_WS + 3, S_T + 2, 40 if kind == "K" else 52))
            e("s_mov_b64 exec, -1")
        e("v_mov_b32 v%d, s%d" % (V_T1, S_T + 2))
        if kind == "K":
            load_q(S_T + 1, False)
        lds_wait(tag, V_Z, V_T0, S_T, L_DEC if kind == "K" else L_GO, "nz", S_SPIN, V_T1)
        e("s_and_b32 s%d, s%d, 7" % (S_N, S_T))
        e("s_xor_b32 s%d, s%d, s%d" % (S_N, S_N, S_NB))
        e("s_bitcmp1_b32 s%d, 3" % S_T)
        e("s_cselect_b64 vcc, -1, 0")
        e("v_cndmask_b32 v%d, v%d, v%d, vcc" % (V_TM, V_T128, V_TMX))

    def load_q(ph, track):
        e("s_lshl_b32 s%d, s%d, 5" % (S_QOFF, ph))
        e("s_add_u32 s%d, s%d, s%d" % (S_QOFF, S_QOFF, S_G))
        e("s_mul_i32 s%d, s%d, 171" % (S_QOFF, S_QOFF))
        e("s_lshr_b32 s%d, s%d, 9" % (S_QOFF, S_QOFF))
        e("s_mul_i32 s%d, s%d, %d" % (S_QOFF, S_QOFF, DH * 2))
        for c in range(3):
            r = V_RAW + 2 * c
            s = "buffer_load_dwordx2 v[%d:%d], v%d, s[%d:%d], s%d offen offset:%d" % (r, r + 1, V_J8, S_Q, S_Q + 3, S_QOFF, c * 128)
            if track:
                e.vmem(s, "p")
            else:
                e(s)

    def tile_addr(kind):
        ch, a, b = S_T, S_T + 1, S_T + 2
        e("s_lshr_b32 s%d, s%d, 6" % (a, S_CI))
        e("s_lshl_b32 s%d, s%d, 11" % (a, a))
        e("s_and_b32 s%d, s%d, 63" % (ch, S_CI))
        e("s_add_u32 s%d, s%d, s%d" % (ch, ch, a))
        e("s_add_u32 s%d, s%d, s%d" % (ch, ch, S_HB))
        e("s_bfe_u32 s%d, s%d, 0x20003" % (a, ch))
        e("s_and_b32 s%d, s%d, 4" % (b, ch))
        e("s_or_b32 s%d, s%d, s%d" % (a, a, b))
        e("s_xor_b32 s%d, s%d, s%d" % (a, a, S_N))
        e("s_lshl_b32 s%d, s%d, 5" % (S_XB, ch))
        e("s_or_b32 s%d, s%d, s%d" % (S_XB, S_XB, a))
        e("s_lshl_b32 s%d, s%d, 4" % (S_XB, S_XB))
        e("s_or_b32 s%d, s%d, 1" % (S_XB, S_XB))
        if kind == "V":
            e("s_lshl_b32 s%d, s%d, 7" % (S_LB, S_CI))
        e("v_xor_b32 v%d, s%d, v%d" % (V_T0, S_XB, V_TM))
        e("v_mul_hi_u32 v%d, v%d, s%d" % (V_T0, V_T0, S_MAGIC))
        e("v_lshrrev_b32 v%d, 1, v%d" % (V_T0, V_T0))
        e("v_and_b32 v%d, 15, v%d" % (V_T1, V_T0))
        e("v_cmp_eq_u32 vcc, 5, v%d" % V_T1)
        e("v_mad_u32_u24 v%d, v%d, s%d, v%d" % (V_OFF, V_T0, S_768, V_J16))
        e("v_add_u32 v%d, %d, v%d" % (V_T1, 5 * ROWB, V_OFF))
        e("v_cndmask_b32 v%d, v%d, v%d, vcc" % (V_OFF6, V_BIG, V_T1))
        if kind == "K":
            e("v_lshrrev_b32 v%d, 6, v%d" % (V_T0, V_T0))
            e("v_mad_u32_u24 v%d, v%d, s%d, v%d" % (V_PO, V_T0, S_384, V_J8))
        else:
            e("v_add_u32 v%d, s%d, v%d" % (V_T0, S_LB, V_PB0))

    def issue_params(kind):
        if kind == "K":
            if P["xkp"] & 2:
                return
            for c in range(3):
                r = V_RAW + 6 + 2 * c
                e.vmem("buffer_load_dwordx2 v[%d:%d], v%d, s[%d:%d], 0 offen offset:%d%s" %
                       (r, r + 1, V_PO, S_KS, S_KS + 3, c * 128, " nt" if P["bnt"] & 4 else ""), "p")
            if P["xb"] & 2:
                for c in range(3):
                    r = NVGPR + 2 + 2 * c
                    e.vmem("buffer_load_dwordx2 v[%d:%d], v%d, s[%d:%d], 0 offen offset:%d" % (r, r + 1, V_PO, 76, 79, c * 128), "p")
        else:
            e("ds_read_b32 v%d, v%d" % (V_PVN, V_T0))

    def issue_group(k, kind, pol=pol):
        srdb = S_K if kind == "K" else S_V
        for l in range(GOFF[k], GOFF[k] + GR[k]):
            r = V_RING + l * 4
            if l < 15:
                vo, off = V_OFF, l * 256
            else:
                vo, off = V_OFF6, (l - 15) * 256
            e.vmem("buffer_load_dwordx4 v[%d:%d], v%d, s[%d:%d], 0 offen offset:%d%s" %
                   (r, r + 3, vo, srdb, srdb + 3, off, pol), "g%d" % k)

    def compute_w():
        e.wait_tag("p")
        for p in range(6):
            rq = V_RAW + p; rs = V_RAW + 6 + p
            i0 = 2 * p
            e("v_lshlrev_b32 v%d, 16, v%d" % (V_T0, rq))
            e("v_lshlrev_b32 v%d, 16, v%d" % (V_W + i0, rs))
            e("v_and_b32 v%d, 0xffff0000, v%d" % (V_T1, rq))
            e("v_and_b32 v%d, 0xffff0000, v%d" % (V_W + i0 + 1, rs))
            e("v_mul_f32 v%d, v%d, v%d" % (V_W + i0, V_W + i0, V_T0))
            e("v_mul_f32 v%d, v%d, v%d" % (V_W + i0 + 1, V_W + i0 + 1, V_T1))

    def advance(kind, to_v, tag):
        nkind = "V" if to_v else kind
        if to_v:
            e("s_mov_b32 s%d, s%d" % (S_CI, S_WAVE))
            e("s_mov_b32 s%d, 0" % S_I)
            get_table("V", "tv")
            ev = (1 << 16) | (1 << 32)
            if P["at"] and not BC:
                ev |= (1 << P["tc"]) | (1 << (P["tc"] + P["tg"])) | (1 << P["te"])
            e("s_mov_b32 s%d, %d" % (S_TD, NT - P["td"] if P["td"] else 255))
            set_masks(ev, CPV)
        else:
            e("s_add_u32 s%d, s%d, %d" % (S_CI, S_CI, NW))
            e("s_add_u32 s%d, s%d, 1" % (S_I, S_I))
            if tag:
                e("s_bitcmp1_b64 s[%d:%d], s%d" % (S_EV, S_EV + 1, S_I))
                sfx = tag if isinstance(tag, str) else ""
                e("s_cbranch_scc1 L_ev%s%s" % (kind, sfx))
                e.flush()
                e.label("L_evret%s%s" % (kind, sfx))
        if P["stamp"] == 4:
            e("s_memrealtime s[%d:%d]" % (S_DBG, S_DBG + 1))
            e("s_add_u32 s%d, s%d, 4" % (S_DBG + 2, S_DBG + 2))
            e("s_waitcnt lgkmcnt(0)")
            e("v_mov_b32 v%d, s%d" % (V_T2, S_DBG))
            e("s_mov_b64 exec, 1")
            e("buffer_store_dword v%d, off, s[%d:%d], s%d" % (V_T2, S_WS, S_WS + 3, S_DBG + 2))
            e("s_mov_b64 exec, -1")
        if P["stamp"] == 5:
            e("s_memrealtime s[%d:%d]" % (S_DBG, S_DBG + 1))
            e("s_add_u32 m0, m0, 1")
            e("s_waitcnt lgkmcnt(0)")
            e("v_writelane_b32 v%d, s%d, m0" % (NVGPR + (1 if kind == "V" else 0), S_DBG))
            if to_v:
                e("s_mov_b32 m0, -1")
        tile_addr(nkind)
        issue_params(nkind)

    def compute(k, kind):
        for l in range(GOFF[k], GOFF[k] + GR[k]):
            q, c = l // 3, l % 3
            base = V_RING + l * 4
            for r in range(4):
                e("v_cvt_f32_i32 v%d, v%d" % (base + r, base + r))
            if kind == "K":
                s = V_S + q
                for r in range(4):
                    if c == 0 and r == 0:
                        e("v_mul_f32 v%d, v%d, v%d" % (s, base, V_W))
                    else:
                        e("v_fmac_f32 v%d, v%d, v%d" % (s, base + r, V_W + 4 * c + r))
                if c == 2:
                    e.defer(["v_add_f32_dpp v%d, v%d, v%d row_ror:%d row_mask:0xf bank_mask:0xf" % (s, s, s, kk)
                             for kk in (8, 4, 2)] +
                            ["v_add_f32_dpp v%d, v%d, v%d row_ror:1 row_mask:0xf bank_mask:0x%x" %
                             (V_D + (q & 1), s, s, 1 << (q >> 1))])
            else:
                for r in range(4):
                    e("v_fmac_f32_dpp v%d, v%d, v%d row_newbcast:%d row_mask:0xf bank_mask:0xf" %
                      (V_ACC + 4 * c + r, V_PV, base + r, q))
        e.flush()

    def finish(kind, to_v):
        if kind == "K":
            e("s_mov_b64 exec, s[%d:%d]" % (S_STM, S_STM + 1))
            e("ds_write_b64 v%d, v[%d:%d]" % (V_LB0, V_D, V_D + 1))
            e("s_mov_b64 exec, -1")
            if not to_v:
                e("v_add_u32 v%d, 48, v%d" % (V_LB0, V_LB0))
                compute_w()
        if kind == "V" or to_v:
            e("s_waitcnt lgkmcnt(0)")
            e("v_mov_b32 v%d, v%d" % (V_PV, V_PVN))

    ELS = []

    def elect(k, kind, lo=0):
        if P["fc"] == 4 and kind == "V" and k == max(P["elk"], lo):
            tag = "L_el%d" % len(ELS)
            ELS.append(tag)
            e("s_cmp_eq_u32 s%d, %d" % (S_I, NT))
            e("s_cbranch_scc1 %s" % tag)
            e.lines.append(tag + "r:")

    def body(kind, to_v=False, first=False):
        nkind = "V" if to_v else kind
        for k in range(NG):
            ov = OV[k] if not first else 0
            if ov:
                i = e.vm.index("g%d" % k) + GR[k] - ov
                e("s_waitcnt vmcnt(%d)" % (len(e.vm) - i))
                e.vm = e.vm[i:]
            else:
                e.wait_tag("g%d" % k)
            if k + 1 < NG:
                if not first:
                    issue_group(k + 1, kind)
            else:
                issue_group(0, nkind)
            if ov:
                e("s_waitcnt vmcnt(%d)" % (len(e.vm) - ov))
                e.vm = e.vm[ov:]
            if k == NG - 2:
                advance(kind, to_v, not first)
            elect(k, kind, NG - 2)
            compute(k, kind)
        finish(kind, to_v)

    def body_deep(mode):
        if mode == 3:
            advance("V", False, False)
        for k in range(NG):
            i = e.vm.index("g%d" % k) + GR[k]
            e("s_waitcnt vmcnt(%d)" % (len(e.vm) - i))
            e.vm = e.vm[i:]
            if mode == 2:
                issue_group((k + 2) % NG, "V")
                if k == NG - 3:
                    advance("V", False, False)
            elect(k, "V")
            compute(k, "V")
            if mode == 3:
                issue_group(k, "V", "" if P["xkp"] & 256 else pol)
        finish("V", False)

    def body_boost(kind):
        for k in range(1, NG):
            issue_group(k, kind)
        e("s_sub_u32 s%d, s%d, 1" % (S_BO, S_BO))
        if P["stamp"] == 5:
            e("s_add_u32 s%d, s%d, 256" % (S_NBO, S_NBO))
        advance(kind, False, "B")
        for k in range(NG):
            e.wait_tag("g%d" % k)
            if k == NG - 1 and not P["be"]:
                issue_group(0, kind)
            elect(k, kind)
            compute(k, kind)
            if k == 0 and P["be"]:
                issue_group(0, kind)
        finish(kind, False)

    def lds_inc(off, vz, vt):
        e("v_mov_b32 v%d, 1" % vt)
        e("s_mov_b64 exec, 1")
        e("ds_add_u32 v%d, v%d offset:%d" % (vz, vt, off))
        e("s_mov_b64 exec, -1")

    if P["prio"]:
        e("s_setprio %d" % P["prio"])
    e("v_lshrrev_b32 v%d, 4, v%d" % (V_T, V_T1))
    e("v_and_b32 v%d, 15, v%d" % (V_T2, V_T1))
    e("v_lshlrev_b32 v%d, 4, v%d" % (V_J16, V_T2))
    e("v_lshlrev_b32 v%d, 3, v%d" % (V_J8, V_T2))
    e("v_lshlrev_b32 v%d, 7, v%d" % (V_T128, V_T))
    e("v_and_b32 v%d, 0x70, v0" % V_TMX)
    e("v_or_b32 v%d, v%d, v%d" % (V_TMX, V_TMX, V_T128))
    e("v_mov_b32 v%d, v%d" % (V_TM, V_TMX))
    if P["h4"]:
        e("v_and_b32 v%d, 0x%x, v%d" % (V_T128, 0xffffff8f | (P["h4"] << 4), V_TMX))
    e("s_mov_b32 s%d, %d" % (S_768, ROWB))
    e("s_mov_b32 s%d, %d" % (S_384, DH * 2))
    e("s_mov_b32 s%d, 0xaaaaaaab" % S_MAGIC)
    e("v_mov_b32 v%d, 0xc0000000" % V_BIG)
    e("s_lshl_b32 s%d, s%d, 6" % (S_HB, S_G))
    e("s_mov_b32 s%d, s%d" % (S_N, S_NB))
    e("s_mov_b32 s%d, s%d" % (S_CI, S_WAVE))
    tile_addr("K")
    SS = P["ss"]
    EB = P["eb"]
    if SS:
        e("s_memrealtime s[84:85]")
    if EB == 3:
        e("s_barrier")
    e("s_waitcnt lgkmcnt(0)")
    if SS:
        e("s_memrealtime s[86:87]")
    if EB == 2:
        e("s_barrier")
    if EB == 4:
        e("s_cmp_ge_u32 s%d, %d" % (S_WAVE, NW))
        e("s_barrier")
        e("s_cbranch_scc1 L_helper")
    e("s_mov_b32 s%d, 0" % S_I)
    if P["xb"] & 2:
        srd(76, 72, H * NGRP * DH * 2)
    if P["pfi"]:
        srd(S_Q, 64, H * DH * 2)
        load_q(S_I, True)
        srd(S_KS, 70, H * NGRP * DH * 2)
        issue_params("K")
    srd(S_K, 66, H * HEADB)
    issue_group(0, "K")
    if EB == 1:
        e("s_barrier")
    if not P["pfi"]:
        srd(S_Q, 64, H * DH * 2)
        load_q(S_I, True)
        srd(S_KS, 70, H * NGRP * DH * 2)
        issue_params("K")
    if P["ds"]:
        for k in range(1, NG):
            issue_group(k, "K")
    if SS:
        e("s_memrealtime s[88:89]")
    srd(S_V, 68, H * HEADB)
    if P["stamp"] == 6:
        srd(S_WS, 80, 256)
    elif P["stamp"]:
        srd(S_WS, 82, 0x8000000)
    if P["stamp"] == 5:
        e("s_mov_b32 m0, -1")
    if P["stamp"] in (4, 5):
        e("s_mul_i32 s%d, s2, %d" % (S_DBG + 2, NW))
        e("s_add_u32 s%d, s%d, s%d" % (S_DBG + 2, S_DBG + 2, S_WAVE))
        e("s_lshl_b32 s%d, s%d, 9" % (S_DBG + 2, S_DBG + 2))
        e("s_add_u32 s%d, s%d, 0x4010000" % (S_DBG + 2, S_DBG + 2))
    e("v_lshlrev_b32 v%d, 5, v%d" % (V_T1, V_T))
    e("v_bfe_u32 v%d, v0, 4, 3" % V_LB0)
    e("v_mul_u32_u24 v%d, s%d, v%d" % (V_LB0, S_768, V_LB0))
    e("v_lshl_add_u32 v%d, v%d, 1, v%d" % (V_LB0, V_T2, V_LB0))
    e("s_lshr_b32 s%d, s%d, 1" % (S_T, S_WAVE))
    e("s_mul_i32 s%d, s%d, 24" % (S_T, S_T))
    e("s_add_u32 s%d, s%d, %d" % (S_T, S_T, L_LG))
    e("v_add_u32 v%d, s%d, v%d" % (V_LB0, S_T, V_LB0))
    e("v_and_b32 v%d, 7, v%d" % (V_PB0, V_T2))
    e("v_lshl_add_u32 v%d, v%d, 2, v%d" % (V_PB0, V_PB0, V_T1))
    e("v_add_u32 v%d, %d, v%d" % (V_PB0, L_PV, V_PB0))
    e("v_lshlrev_b32 v%d, 2, v%d" % (V_DO, V_T))
    e("v_add_u32 v%d, v%d, v%d" % (V_DO, V_J16, V_DO))
    e("s_mul_i32 s%d, s%d, %d" % (S_T, S_WAVE, ROWB))
    e("s_add_u32 s%d, s%d, %d" % (S_T, S_T, L_ACC))
    e("v_add_u32 v%d, s%d, v%d" % (V_DO, S_T, V_DO))
    e("v_mov_b32 v%d, 0" % V_Z)
    e("v_mov_b32 v%d, 0" % V_D)
    e("v_mov_b32 v%d, 0" % (V_D + 1))
    e("s_mov_b32 s%d, 0x01110111" % S_STM)
    e("s_mov_b32 s%d, 0x01110111" % (S_STM + 1))
    ev = (1 << TRG1) | (1 << N0) | (3 << 16) | (3 << 32) | (((1 << TA) | (1 << TB)) * 0x100010001)
    set_masks(ev, CPK)
    if BC:
        e("s_mov_b32 s%d, 0" % S_BO)
        e("s_mov_b32 s%d, 0" % S_NBO)
        e("s_mov_b32 s%d, 0" % S_LDC)
        e("s_mov_b32 s%d, %d" % (S_CPA, L_TM))
    for i in range(12):
        e("v_mov_b32 v%d, 0" % (V_ACC + i))
    if SS:
        e("s_memrealtime s[90:91]")
    if not EB:
        e("s_barrier")
    if SS:
        e("s_memrealtime s[92:93]")
        e("s_waitcnt vmcnt(23)")
        e("s_memrealtime s[94:95]")
        e("s_waitcnt vmcnt(18)")
        e("s_memrealtime s[96:97]")
    compute_w()
    if SS:
        e("s_memrealtime s[98:99]")
        e("s_waitcnt lgkmcnt(0)")
        for k in range(8):
            e("v_writelane_b32 v%d, s%d, %d" % (NVGPR + 1, 84 + 2 * k, 48 + k))
    steady = ["g0"] * GR[0]
    if P["ds"]:
        body("K", first=True)
    e.vm = list(steady)
    e.lines.append(".p2align 6")
    e.label("L_kloop")
    body("K")
    assert e.vm == steady, (e.vm, steady)
    if BC:
        e.label("L_kchk")
        e("s_cmp_lg_u32 s%d, 0" % S_BO)
        e("s_cbranch_scc1 L_kboost")
        e.label("L_kchk2")
    e("s_cmp_lg_u32 s%d, %d" % (S_I, NT - 1))
    e("s_cbranch_scc1 L_kloop")
    body("K", True)
    lds_inc(L_CF + 8, V_Z, V_T1)
    if P["stamp"] == 1:
        e("s_memrealtime s[%d:%d]" % (S_DBG, S_DBG + 1))
    e.lines.append(".p2align 6")
    e.label("L_vloop")
    body("V")
    assert e.vm == steady, (e.vm, steady)
    if BC:
        e.label("L_vchk")
    if P["td"] or P["at"]:
        e("s_cmp_eq_u32 s%d, s%d" % (S_I, S_TD))
        e("s_cbranch_scc1 L_deep")
    if BC:
        e("s_cmp_lg_u32 s%d, 0" % S_BO)
        e("s_cbranch_scc1 L_vboost")
    e("s_and_b32 s%d, s%d, 15" % (S_T, S_I))
    e("s_cbranch_scc1 L_vloop")
    e.label("L_vend")
    for c in range(3):
        a = V_ACC + 4 * c
        e("v_permlane32_swap_b32 v%d, v%d" % (a, a + 2))
        e("v_permlane32_swap_b32 v%d, v%d" % (a + 1, a + 3))
    for c in range(3):
        a = V_ACC + 4 * c
        e("v_add_f32 v%d, v%d, v%d" % (a, a, a + 2))
        e("v_add_f32 v%d, v%d, v%d" % (a + 1, a + 1, a + 3))
    for c in range(3):
        a = V_ACC + 4 * c
        e("v_permlane16_swap_b32 v%d, v%d" % (a, a + 1))
    e("s_lshr_b32 s%d, s%d, 2" % (S_T, S_I))
    e("v_mov_b32 v%d, s%d" % (V_T0, S_T))
    for c in range(3):
        a = V_ACC + 4 * c
        e("v_add_f32 v%d, v%d, v%d" % (a, a, a + 1))
        e("ds_write_b32 v%d, v%d offset:%d" % (V_DO, a, c * 256))
    lds_inc(L_CA - 4, V_T0, V_T1)
    e("v_add_u32 v%d, %d, v%d" % (V_DO, NW * ROWB, V_DO))
    for i in range(12):
        e("v_mov_b32 v%d, 0" % (V_ACC + i))
    if BC:
        e("s_cmp_lg_u32 s%d, 0" % S_BO)
        e("s_cbranch_scc1 L_vboost2")
        e.label("L_vend2")
    e("s_cmp_lg_u32 s%d, %d" % (S_I, NT))
    e("s_cbranch_scc1 L_vloop")
    if P["stamp"] == 5 and BC:
        e("s_or_b32 s%d, s%d, s%d" % (S_LDC, S_LDC, S_NBO))
    if P["stamp"] == 6:
        e("s_memrealtime s[%d:%d]" % (S_T + 2, S_T + 3))
        e("s_not_b32 s%d, s%d" % (S_T, S_ST))
        e("v_mov_b32 v%d, s%d" % (V_ACC, S_T))
        e("s_waitcnt lgkmcnt(0)")
        e("v_mov_b32 v%d, s%d" % (V_ACC + 1, S_T + 2))
        e("s_mov_b64 exec, 1")
        e("s_cmp_lg_u32 s%d, 0" % S_WAVE)
        e("s_cbranch_scc1 L_exit1")
        e("buffer_atomic_umax v%d, off, s[%d:%d], 0 offset:32" % (V_ACC, S_WS, S_WS + 3))
        e("buffer_atomic_umax v%d, off, s[%d:%d], 0 offset:36" % (V_ACC + 1, S_WS, S_WS + 3))
    elif P["stamp"]:
        e("s_memrealtime s[%d:%d]" % (S_T + 2, S_T + 3))
        e("s_getreg_b32 s%d, hwreg(HW_REG_XCC_ID)" % (S_T + 4))
        e("s_waitcnt lgkmcnt(0)")
        e("v_mov_b32 v%d, s%d" % (V_ACC + 0, S_ST))
        e("v_mov_b32 v%d, s%d" % (V_ACC + 1, S_T + 2))
        e("v_mov_b32 v%d, s%d" % (V_ACC + 2, S_T + 4))
        e("v_mov_b32 v%d, s%d" % (V_ACC + 3, S_LDC if P["stamp"] == 5 else S_DBG))
        e("s_mul_i32 s%d, s2, %d" % (S_T, NW))
        e("s_add_u32 s%d, s%d, s%d" % (S_T, S_T, S_WAVE))
        e("s_lshl_b32 s%d, s%d, 4" % (S_T, S_T))
        e("s_add_u32 s%d, s%d, 0x4000000" % (S_T, S_T))
        e("buffer_store_dwordx4 v[%d:%d], v%d, s[%d:%d], s%d offen" % (V_ACC, V_ACC + 3, V_Z, S_WS, S_WS + 3, S_T))
        if P["stamp"] == 5:
            e("v_and_b32 v%d, 63, v0" % V_T0)
            e("v_lshlrev_b32 v%d, 2, v%d" % (V_T0, V_T0))
            e("s_mov_b32 exec_hi, 0xffff")
            e("buffer_store_dword v%d, v%d, s[%d:%d], s%d offen offset:4" % (NVGPR, V_T0, S_WS, S_WS + 3, S_DBG + 2))
            e("s_mov_b32 exec_hi, -1")
            e("buffer_store_dword v%d, v%d, s[%d:%d], s%d offen offset:196" % (NVGPR + 1, V_T0, S_WS, S_WS + 3, S_DBG + 2))
    e.lines.append("L_exit1:")
    e("s_endpgm")

    if P["td"] or P["at"]:
        e.label("L_deep")
        e.vm = list(steady)
        for k in range(1, P["tdm"] if NG == 3 else NG):
            issue_group(k, "V")
        deep = list(e.vm)
        e.lines.append(".p2align 6")
        e.label("L_dloop")
        body_deep(P["tdm"])
        assert e.vm == deep, (e.vm, deep)
        e("s_cmp_lg_u32 s%d, %d" % (S_I, NT))
        e("s_cbranch_scc1 L_dloop")
        e("s_branch L_vend")

    if BC:
        e.label("L_kboost")
        e("s_cmp_eq_u32 s%d, %d" % (S_I, NT - 1))
        e("s_cbranch_scc1 L_kchk2")
        e.vm = list(steady)
        body_boost("K")
        assert e.vm == steady, (e.vm, steady)
        e("s_branch L_kchk")
        e.label("L_vboost")
        e("s_and_b32 s%d, s%d, 15" % (S_T, S_I))
        e("s_cbranch_scc0 L_vend")
        e.label("L_vboost2")
        e("s_cmp_eq_u32 s%d, %d" % (S_I, NT))
        e("s_cbranch_scc1 L_vend2")
        body_boost("V")
        assert e.vm == steady, (e.vm, steady)
        e("s_branch L_vchk")

    for tag in ELS:
        e.label(tag)
        lds_inc(L_EL, V_Z, V_T1)
        e("s_branch %sr" % tag)

    def pace_events(kind, x):
        e("s_bitcmp1_b64 s[%d:%d], s%d" % (S_MP, S_MP + 1, S_I))
        e("s_cbranch_scc0 L_pa%s%s" % (kind, x))
        e("s_memrealtime s[%d:%d]" % (S_TW, S_TW + 1))
        e("s_mov_b32 s%d, s%d" % (S_BP, S_BO))
        lds_inc(L_TC, V_Z, V_T1)
        e.label("L_pa%s%s" % (kind, x))
        e("s_bitcmp1_b64 s[%d:%d], s%d" % (S_MG, S_MG + 1, S_I))
        e("s_cbranch_scc0 L_pb%s%s" % (kind, x))
        lds_inc(L_TC, V_Z, V_T1)
        e.label("L_pb%s%s" % (kind, x))
        e("s_bitcmp1_b64 s[%d:%d], s%d" % (S_MR, S_MR + 1, S_I))
        e("s_cbranch_scc0 L_pc%s%s" % (kind, x))
        e("v_mov_b32 v%d, s%d" % (V_T1, S_CPA))
        e("ds_read_b32 v%d, v%d" % (V_T0, V_T1))
        lds_inc(L_TC, V_Z, V_T1)
        e("s_add_u32 s%d, s%d, 4" % (S_CPA, S_CPA))
        e("s_waitcnt lgkmcnt(0)")
        e("v_readfirstlane_b32 s%d, v%d" % (S_T, V_T0))
        e("s_cmp_eq_u32 s%d, 0" % S_T)
        e("s_cbranch_scc1 L_pc%s%s" % (kind, x))
        e("s_sub_u32 s%d, s%d, s%d" % (S_T, S_TW, S_T))
        e("s_max_i32 s%d, s%d, -4096" % (S_T, S_T))
        e("s_min_i32 s%d, s%d, 4096" % (S_T, S_T))
        if kind == "V":
            e("s_cmp_eq_u32 s%d, %d" % (S_I, P["te"]))
            e("s_cbranch_scc0 L_pd%s" % x)
            e("s_mul_i32 s%d, s%d, %d" % (S_T, S_T, P["ka"]))
            e("s_add_u32 s%d, s%d, %d" % (S_T, S_T, P["kb"]))
            e("s_ashr_i32 s%d, s%d, 10" % (S_T, S_T))
            e("s_max_i32 s%d, s%d, %d" % (S_T, S_T, P["dmin"]))
            e("s_min_i32 s%d, s%d, %d" % (S_T, S_T, min(P["dmax"], NT - P["te"])))
            e("s_sub_u32 s%d, %d, s%d" % (S_TD, NT, S_T))
            e("s_cmp_eq_u32 s%d, %d" % (S_TD, NT))
            e("s_cselect_b32 s%d, 255, s%d" % (S_TD, S_TD))
            e("s_mov_b32 s%d, 0" % S_BO)
            if P["stamp"] == 5:
                e("s_mov_b32 s%d, s%d" % (S_LDC, S_TD))
            e("s_branch L_pc%s%s" % (kind, x))
            e.label("L_pd%s" % x)
        e("s_mul_i32 s%d, s%d, %d" % (S_T, S_T, P["ka2"]))
        e("s_add_u32 s%d, s%d, %d" % (S_T, S_T, P["kb2"]))
        e("s_ashr_i32 s%d, s%d, 10" % (S_T, S_T))
        e("s_sub_u32 s%d, s%d, s%d" % (S_T, S_T, S_BP))
        e("s_add_u32 s%d, s%d, s%d" % (S_T, S_T, S_BO))
        e("s_max_i32 s%d, s%d, 0" % (S_T, S_T))
        e("s_min_i32 s%d, s%d, %d" % (S_BO, S_T, P["bmax"]))
        e.label("L_pc%s%s" % (kind, x))
        e("s_bitcmp1_b64 s[%d:%d], s%d" % (S_MO, S_MO + 1, S_I))
        e("s_cbranch_scc0 L_evret%s%s" % (kind, x))

    for x in (("", "B") if BC else ("",)):
        e.label("L_evK" + x)
        if BC:
            pace_events("K", x)
        e("s_and_b32 s%d, s%d, 15" % (S_T, S_I))
        e("s_cbranch_scc0 L_evK2" + x)
        e("s_cmp_eq_u32 s%d, %d" % (S_I, N0))
        e("s_cbranch_scc1 L_evK2" + x)
        e("s_lshr_b32 s%d, s%d, 2" % (S_T + 1, S_I))
        e("s_andn2_b32 s%d, s%d, 3" % (S_T + 1, S_T + 1))
        e("s_add_u32 s%d, s%d, %d" % (S_T + 1, S_T + 1, L_CF - 4))
        e("s_cmp_eq_u32 s%d, 1" % S_T)
        e("s_cselect_b32 s%d, s%d, %d" % (S_T, S_T + 1, L_EV + 4))
        e("s_cselect_b32 s%d, %d, 0" % (S_T + 1, PHI - 768))
        e("v_add_u32 v%d, s%d, v%d" % (V_LB0, S_T + 1, V_LB0))
        e("s_cmp_eq_u32 s%d, %d" % (S_I, TRG1))
        e("s_cselect_b32 s%d, %d, s%d" % (S_T, L_EV, S_T))
        e("v_mov_b32 v%d, s%d" % (V_T0, S_T))
        lds_inc(0, V_T0, V_T1)
        e("s_branch L_evretK" + x)
        e.label("L_evK2" + x)
        if P["stamp"] == 2:
            e("s_cmp_eq_u32 s%d, %d" % (S_I, N0))
            e("s_cbranch_scc0 L_ns2")
            e("s_memrealtime s[%d:%d]" % (S_DBG, S_DBG + 1))
            e.label("L_ns2")
        get_table("K", "tk" + x)
        if P["stamp"] == 3:
            e("s_cmp_eq_u32 s%d, %d" % (S_I, N0))
            e("s_cbranch_scc0 L_evretK")
            e("s_memrealtime s[%d:%d]" % (S_DBG, S_DBG + 1))
        e("s_branch L_evretK" + x)
        e.label("L_evV" + x)
        if BC:
            pace_events("V", x)
        elif P["at"]:
            e("s_and_b32 s%d, s%d, 15" % (S_T, S_I))
            e("s_cbranch_scc0 L_evV2")
            e("s_cmp_eq_u32 s%d, %d" % (S_I, P["te"]))
            e("s_cbranch_scc1 L_evV3")
            lds_inc(L_TC, V_Z, V_T1)
            e("s_branch L_evretV")
            e.label("L_evV3")
            e("ds_read_b32 v%d, v%d offset:%d" % (V_T0, V_Z, L_TD))
            e("s_waitcnt lgkmcnt(0)")
            e("v_readfirstlane_b32 s%d, v%d" % (S_T, V_T0))
            e("s_cmp_eq_u32 s%d, 0" % S_T)
            e("s_cselect_b32 s%d, s%d, s%d" % (S_TD, S_TD, S_T))
            if P["stamp"] == 5:
                e("s_mov_b32 s%d, s%d" % (S_LDC, S_T))
            e("s_branch L_evretV")
            e.label("L_evV2")
        get_table("V", "tv2" + x)
        e("s_branch L_evretV" + x)

    PG = S_G; PM = S_M
    PNB = 5; PP = 6; PBK = 7
    PB = 8; PWS = 12; PDB = 16
    PO = 20; PFL = 21; PBASE = 22; PPR = 90
    PD = 24
    POF = 32
    PT = 40
    PMN = 44; PJ = 45; PRN = 46; PNR = 47
    PE = 48
    PRB = 56; PACC = 58; PGL = 59; PSP = 60; PPH = 61; PSG = 62; PG0 = 63
    PDC = 84
    PS2 = 92; PS3 = 96
    HL = 1; HZ = 2; HW = 3; HA = 4; HB_ = 5; HC = 6; HD = 7; HK = 8; HV = 9; HE = 10; HF = 11; HR = 12; HG = 13
    HN = 14; HT2 = 15
    HX = 16
    BIAS = 65536
    e.wr = {}; e.tr = {}
    e.label("L_helper")
    e("s_sub_u32 s%d, s%d, %d" % (PP, S_WAVE, NW))
    e("s_mov_b32 s%d, s%d" % (PNB, S_NB))
    e("v_and_b32 v%d, 63, v0" % HL)
    e("v_mov_b32 v%d, 0" % HZ)
    e("s_mul_i32 s%d, s%d, %d" % (PGL, PG, 8 * FSTR))
    e("s_add_u32 s%d, s%d, %d" % (PGL, PGL, WS_G))
    if EB and EB != 4:
        e("s_cmp_lg_u32 s%d, 0" % PP)
        e("s_cbranch_scc1 L_hbar")
        e("v_lshlrev_b32 v%d, 2, v%d" % (HB_, HL))
        e("ds_write_b32 v%d, v%d" % (HB_, HZ))
        e("s_waitcnt lgkmcnt(0)")
        e.label("L_hbar")
        e("s_barrier")
    if BC:
        e("s_cmp_eq_u32 s%d, 3" % PP)
        e("s_cbranch_scc1 L_h3")
    e("s_mul_i32 s%d, s%d, 10" % (PE, PP))
    e("s_sub_u32 s%d, s%d, 7" % (PE, PE))
    e("s_cmp_lt_i32 s%d, s%d" % (PG, PE))
    e("s_cselect_b32 s%d, 1, 0" % PPR)
    e("s_cbranch_scc0 L_noprobe1")
    e("s_max_u32 s%d, s%d, 1" % (PBK, PG))
    e("s_sub_u32 s%d, s%d, 1" % (PBK, PBK))
    e("s_lshr_b32 s%d, s%d, 1" % (PBK, PBK))
    e("s_lshl_b32 s%d, s%d, 1" % (PE + 1, PG))
    e("s_add_u32 s%d, s%d, s%d" % (PE + 1, PE + 1, PP))
    e("s_sub_u32 s%d, s%d, 1" % (PE + 1, PE + 1))
    e("s_bitcmp1_b32 s%d, 0" % PG)
    e("s_cselect_b32 s%d, 1, 4" % PE)
    e("s_cmp_eq_u32 s%d, 0" % PBK)
    e("s_cselect_b32 s%d, s%d, s%d" % (PE + 1, PE + 1, PE))
    e("s_and_b32 s%d, s%d, 1" % (PE, PE + 1))
    e("s_mul_i32 s%d, s%d, 20" % (PO, PE + 1))
    e("s_add_u32 s%d, s%d, s%d" % (PO, PO, PE))
    e("s_add_u32 s%d, s%d, 2" % (PO, PO))
    e("s_lshl_b32 s%d, s%d, 21" % (PO, PO))
    e("s_xor_b32 s%d, s%d, s%d" % (PFL, PM, PP))
    e("s_and_b32 s%d, s%d, 1" % (PFL, PFL))
    e("s_lshr_b32 s%d, s%d, 2" % (PE + 1, PM))
    e("s_xor_b32 s%d, s%d, s%d" % (PE, PE, PE + 1))
    e("s_xor_b32 s%d, s%d, s%d" % (PE, PE, PFL))
    e("s_lshl_b32 s%d, s%d, 13" % (PE, PE))
    e("s_lshl_b32 s%d, s%d, 14" % (PE + 1, PP))
    e("s_and_b32 s%d, s%d, 0x4000" % (PE + 1, PE + 1))
    e("s_or_b32 s%d, s%d, s%d" % (PE, PE, PE + 1))
    for u in range(8):
        e("s_xor_b32 s%d, s%d, 0x%x" % (POF + u, PE, ((u & 1) << 13) | (((u >> 1) & 1) << 12) | ((u >> 2) << 14)))
    e("v_and_b32 v%d, 7, v%d" % (HW, HL))
    e("v_lshlrev_b32 v%d, 12, v%d" % (HW, HW))
    e("s_lshl_b32 s%d, s%d, 8" % (PE, PM))
    e("v_add_u32 v%d, s%d, v%d" % (HW, PE, HW))
    e("s_mov_b32 s%d, %d" % (PB + 2, H * HEADB))
    e("s_mov_b32 s%d, 0x00020000" % (PB + 3))
    e("s_cmp_ge_u32 s%d, 3" % PBK)
    e("s_cselect_b32 s%d, 3, 0" % PE)
    e("s_sub_u32 s%d, s%d, s%d" % (PE, PBK, PE))
    e("s_lshl_b32 s%d, s%d, 28" % (PE, PE))
    e("s_add_u32 s%d, s%d, s%d" % (PO, PO, PE))
    e("s_cmp_ge_u32 s%d, 3" % PBK)
    e("s_waitcnt lgkmcnt(0)")
    e("s_cselect_b32 s%d, s68, s66" % PB)
    e("s_cselect_b32 s%d, s69, s67" % (PBASE + 1))
    e("s_and_b32 s%d, s%d, 0xffff" % (PB + 1, PBASE + 1))
    if not P["sw"]:
        e("s_mov_b64 exec, 0xff")
        e("buffer_load_dword v%d, v%d, s[%d:%d], s%d offen" % (HA, HW, PB, PB + 3, PO))
        e("s_mov_b64 exec, -1")
    e("s_add_u32 s%d, s%d, s%d" % (PBASE, PB, PO))
    e("s_addc_u32 s%d, s%d, 0" % (PBASE + 1, PBASE + 1))
    e("s_lshl_b32 s%d, s%d, 8" % (PE, PM))
    if P["sw"]:
        e("s_add_u32 s%d, s%d, s%d" % (PRB, PBASE, PE))
        e("s_addc_u32 s%d, s%d, 0" % (PRB + 1, PBASE + 1))
        for u in range(8):
            e("s_load_dword s%d, s[%d:%d], 0x%x" % (PD + u, PRB, PRB + 1, u * 4096))
        if P["dc"]:
            assert not P["wo"]
            srd(PWS, 82, WS_SIZE)
            e("s_lshl_b32 s%d, s2, 1" % PE)
            e("s_add_u32 s%d, s%d, s%d" % (PE, PE, PP))
            e("s_mul_i32 s%d, s%d, %d" % (PE, PE, 6 * FSTR))
            e("s_add_u32 s%d, s%d, %d" % (PE, PE, WS_G - 6 * FSTR))
            e("v_mul_u32_u24 v%d, %d, v%d" % (HB_, FSTR, HL))
            e("v_mov_b32 v%d, 0" % (HZ + 1))
            e("s_cmp_eq_u32 s%d, 0" % PBK)
            e("s_cselect_b64 exec, 0x3f, 0")
            e("buffer_store_dwordx2 v[%d:%d], v%d, s[%d:%d], s%d offen sc1" % (HZ, HZ + 1, HB_, PWS, PWS + 3, PE))
            e("s_mov_b64 exec, -1")
        for k in range(1, P["sw"]):
            e("s_waitcnt lgkmcnt(0)")
            e("s_load_dword s%d, s[%d:%d], 0x%x" % (PD, PRB, PRB + 1, k * 4096 + 128))
    else:
        e("s_add_u32 s%d, s%d, 128" % (PE, PE))
        e("s_load_dword s%d, s[%d:%d], s%d" % (PJ, PBASE, PBASE + 1, PE))
    e.label("L_noprobe1")
    e("s_waitcnt lgkmcnt(0)")
    srd(PWS, 82, WS_SIZE)
    if P["wo"]:
        e("s_add_u32 s%d, s%d, %d" % (PWS, PWS, P["wo"] << 20))
        e("s_addc_u32 s%d, s%d, 0" % (PWS + 1, PWS + 1))
    srd(PDB, 80, 256)
    if not EB:
        e("s_cmp_lg_u32 s%d, 0" % PP)
        e("s_cbranch_scc1 L_hbar")
        e("v_lshlrev_b32 v%d, 2, v%d" % (HB_, HL))
        e("ds_write_b32 v%d, v%d" % (HB_, HZ))
        e("s_waitcnt lgkmcnt(0)")
        e.label("L_hbar")
        e("s_barrier")
    if P["hs"]:
        e("s_mov_b32 s%d, 0" % (PD + 4))
    e("s_cmp_eq_u32 s%d, 0" % PPR)
    e("s_cbranch_scc1 L_role")
    e("s_mov_b32 s%d, 1" % PRN)
    e("s_mov_b32 s%d, 0" % PACC)
    e("s_cmp_eq_u32 s%d, 0" % PBK)
    e("s_cselect_b32 s%d, %d, %d" % (PNR, P["nr0"], NR))
    if not P["sw"]:
        e("s_waitcnt vmcnt(0)")
    e.label("L_round")
    e("s_add_u32 s%d, s%d, s%d" % (PE, PM, PRN))
    e("s_and_b32 s%d, s%d, 7" % (PE, PE))
    e("s_lshl_b32 s%d, s%d, 8" % (PE, PE))
    e("s_add_u32 s%d, s%d, s%d" % (PRB, PBASE, PE))
    e("s_addc_u32 s%d, s%d, 0" % (PRB + 1, PBASE + 1))
    e("s_mov_b32 s%d, -1" % PMN)
    e("s_memtime s[%d:%d]" % (PT, PT + 1))
    e("s_waitcnt lgkmcnt(0)")
    for u in range(8):
        a = PT + 2 * (u & 1); b = PT + 2 * ((u + 1) & 1)
        e("s_load_dword s%d, s[%d:%d], s%d" % (PJ, PRB, PRB + 1, POF + u))
        e("s_waitcnt lgkmcnt(0)")
        e("s_memtime s[%d:%d]" % (b, b + 1))
        e("s_waitcnt lgkmcnt(0)")
        e("s_sub_u32 s%d, s%d, s%d" % (PD + u, b, a))
        if u + 1 == P["ns0"] and u < 7:
            for k in range(u + 1, 8):
                e("s_mov_b32 s%d, -1" % (PD + k))
            e("s_cmp_eq_u32 s%d, 0" % PBK)
            e("s_cbranch_scc1 L_few")
    e.label("L_few")
    for u in range(8):
        e("s_min_u32 s%d, s%d, %d" % (PD + u, PD + u, P["clip"]))
        e("s_min_u32 s%d, s%d, s%d" % (PMN, PMN, PD + u))
    e("s_cmp_lt_u32 s%d, %d" % (PMN, P["l2t"]))
    e("s_cbranch_scc1 L_skip")
    for u in range(8):
        e("s_%s_u32 s%d, s%d, s%d" % ("add" if u & 1 else "sub", PACC, PACC, PD + u))
    e.label("L_skip")
    e("s_add_u32 s%d, s%d, 1" % (PRN, PRN))
    e("s_cmp_le_u32 s%d, s%d" % (PRN, PNR))
    e("s_cbranch_scc1 L_round")
    e("s_sub_u32 s%d, 0, s%d" % (PE, PACC))
    e("s_cmp_eq_u32 s%d, 0" % PFL)
    e("s_cselect_b32 s%d, s%d, s%d" % (PACC, PACC, PE))
    e("s_add_u32 s%d, s%d, 0x%x" % (PACC, PACC, BIAS + (1 << 24)))
    e("v_mov_b32 v%d, s%d" % (HA, PACC))
    e("s_mov_b64 exec, 1")
    e("s_lshl_b32 s%d, s%d, 2" % (PE, PBK))
    e("s_add_u32 s%d, s%d, 124" % (PE, PE))
    e("s_cmp_eq_u32 s%d, 0" % PBK)
    e("s_cbranch_scc0 L_post")
    if P["dc"]:
        e("s_waitcnt vmcnt(0)")
    e("ds_add_rtn_u32 v%d, v%d, v%d offset:%d" % (HB_, HZ, HA, L_PC))
    e("s_mov_b32 s%d, 0" % PE)
    e("s_waitcnt lgkmcnt(0)")
    e("v_add_u32 v%d, v%d, v%d" % (HA, HA, HB_))
    e("v_cmp_ne_u32 vcc, 0, v%d" % HB_)
    e("s_and_b64 exec, exec, vcc")
    if P["vw"]:
        e("buffer_atomic_add v%d, off, s[%d:%d], s%d" % (HA, PDB, PDB + 3, PE))
        e("s_branch L_posted")
        e.label("L_post")
        lds_wait("vw", HZ, HE, PE, L_DEC, "nz", PSP)
        e("s_mul_i32 s%d, s%d, %d" % (PE, PG, FSTR))
        e("s_add_u32 s%d, s%d, %d" % (PE, PE, WS_G + 253 * FSTR))
        e("buffer_atomic_add v%d, off, s[%d:%d], s%d" % (HA, PWS, PWS + 3, PE))
        e.label("L_posted")
    else:
        e.label("L_post")
        e("buffer_atomic_add v%d, off, s[%d:%d], s%d" % (HA, PDB, PDB + 3, PE))
    e("s_mov_b64 exec, -1")
    if P["hs"]:
        if P["hs"] == 2:
            e("s_waitcnt vmcnt(0)")
        e("s_memrealtime s[%d:%d]" % (PD + 4, PD + 5))
    e.label("L_role")
    e("s_cmp_eq_u32 s%d, 0" % PP)
    e("s_cbranch_scc1 L_h0")
    e("s_cmp_eq_u32 s%d, 2" % PP)
    e("s_cbranch_scc1 L_h2")

    def wave_reduce(regs, op, tmp):
        for kk in (8, 4, 2, 1):
            for r in regs:
                e("%s_dpp v%d, v%d, v%d row_ror:%d row_mask:0xf bank_mask:0xf" % (op, r, r, r, kk))
        for sw in ("v_permlane32_swap_b32", "v_permlane16_swap_b32"):
            for r, t in zip(regs, tmp):
                e("v_mov_b32 v%d, v%d" % (t, r))
            for r, t in zip(regs, tmp):
                e("%s v%d, v%d" % (sw, r, t))
            for r, t in zip(regs, tmp):
                e("%s v%d, v%d, v%d" % (op, r, r, t))

    def decode(tag, nl, off, cnt, rounds, dst, b0):
        vw = b0 and P["vw"]
        lds_wait("e" + tag, HZ, HE, PE, L_EV + (4 if b0 else 0), "nz" if b0 else str(P["tw"]), PSP)
        if vw:
            e("v_mul_u32_u24 v%d, %d, v%d" % (HD, FSTR, HL))
            e("s_mov_b32 s%d, %d" % (PE, WS_G + 256 * FSTR))
            e("v_lshrrev_b32 v%d, 1, v%d" % (HB_, HB_))
        e("s_mov_b64 exec, 0x%x" % ((1 << (2 * nl if vw else nl)) - 1))
        e("s_mov_b32 s%d, 0x40000" % PSP)
        if P["hs"] and not b0:
            e("s_memrealtime s[%d:%d]" % (PD, PD + 1))
        if P["l2p"] and not b0:
            e("buffer_load_dword v%d, v%d, s[%d:%d], 0 offen offset:%d" % (HA, HB_, PDB, PDB + 3, off))
            e("s_branch L_pollw" + tag)
        if not P["xkp"] & 4:
            e.label("L_poll" + tag)
            if vw:
                e("buffer_load_dword v%d, v%d, s[%d:%d], s%d offen sc1" % (HA, HD, PWS, PWS + 3, PE))
            else:
                e("buffer_load_dword v%d, v%d, s[%d:%d], 0 offen offset:%d sc1" % (HA, HB_, PDB, PDB + 3, off))
            e("s_sub_u32 s%d, s%d, 1" % (PSP, PSP))
            e("s_cbranch_scc1 L_exit1")
            e.lines.append("L_pollw%s:" % tag)
            e("s_waitcnt vmcnt(0)")
            e("v_lshrrev_b32 v%d, 24, v%d" % (HC, HA))
            e("v_cmp_ne_u32 vcc, %d, v%d" % (cnt // 2 if vw else cnt, HC))
            e("s_cbranch_vccnz L_poll" + tag)
        if vw:
            e("v_add_u32_dpp v%d, v%d, v%d quad_perm:[1,0,3,2] row_mask:0xf bank_mask:0xf" % (HA, HA, HA))
            e("s_mov_b64 exec, 0x%x" % (0x5555 & ((1 << (2 * nl)) - 1)))
        th = P["th"] * cnt * rounds * (8 if b0 else P["ns0"]) // 8
        e("v_and_b32 v%d, 0xffffff, v%d" % (HA, HA))
        e("v_subrev_u32 v%d, %d, v%d" % (HA, cnt * BIAS, HA))
        if P["stamp"] == 6 and b0:
            e("s_cmp_lg_u32 s2, 100")
            e("s_cbranch_scc1 L_nodbg")
            e("buffer_store_dword v%d, v%d, s[%d:%d], 0 offen offset:4" % (HA, HB_, PDB, PDB + 3))
            e.label("L_nodbg")
        e("v_lshrrev_b32 v%d, 30, v%d" % (HC, HA))
        e("v_and_b32 v%d, 2, v%d" % (HC, HC))
        e("v_add_u32 v%d, %d, v%d" % (HA, th, HA))
        e("v_cmp_gt_u32 vcc, %d, v%d" % (2 * th, HA))
        e("v_cndmask_b32 v%d, v%d, 8, vcc" % (HC, HC))
        if P["force"] == 1:
            e("v_mov_b32 v%d, 8" % HC)
        if P["force"] >= 2:
            e("s_mov_b32 s%d, 0x%x" % (PE, 0x7000000 + 128 * (P["force"] - 2)))
            e("s_load_dwordx4 s[%d:%d], s[82:83], s%d" % (PS2, PS2 + 3, PE))
            e("s_waitcnt lgkmcnt(0)")
            for l in range(nl):
                b = b0 + l
                e("s_lshr_b64 s[%d:%d], s[%d:%d], %d" % (PE, PE + 1, PS2 + 2 * (b // 3), PS2 + 2 * (b // 3) + 1, 16 * (b % 3)))
                e("s_and_b32 s%d, s%d, %d" % (PE, PE, P["ob"]))
                e("s_xor_b32 s%d, s%d, %d" % (PE, PE, P["ox"]))
                e("v_writelane_b32 v%d, s%d, %d" % (HC, PE, 2 * l if vw else l))
        e("v_or_b32 v%d, 16, v%d" % (HC, HC))
        if P["xv"] and vw:
            e("v_lshlrev_b32 v%d, 1, v%d" % (HA, HL))
            e("v_lshrrev_b32 v%d, v%d, %d" % (HA, HA, 0) if False else "v_mov_b32 v%d, 0x%x" % (HD, int(str(P["xv"])[::-1], 16)))
            e("v_lshrrev_b32 v%d, v%d, v%d" % (HA, HA, HD))
            e("v_and_b32 v%d, 7, v%d" % (HA, HA))
            e("v_xor_b32 v%d, v%d, v%d" % (HC, HC, HA))
        e("ds_write_b32 v%d, v%d offset:%d" % (HB_, HC, dst))
        if P["hs"] and not b0:
            e("s_memrealtime s[%d:%d]" % (PD + 2, PD + 3))
            srd(PS2, 82, 0x8000000)
            e("s_waitcnt lgkmcnt(0)")
            e("v_mov_b32 v%d, s%d" % (HX, PD))
            e("v_mov_b32 v%d, s%d" % (HX + 1, PD + 2))
            e("v_mov_b32 v%d, s%d" % (HX + 2, PSP))
            e("v_mov_b32 v%d, s%d" % (HX + 3, PD + 4))
            e("s_lshl_b32 s%d, s2, 4" % PE)
            e("s_add_u32 s%d, s%d, 0x4008000" % (PE, PE))
            e("buffer_store_dwordx4 v[%d:%d], off, s[%d:%d], s%d" % (HX, HX + 3, PS2, PS2 + 3, PE))
        e("s_mov_b64 exec, -1")

    if not P["dc"]:
        e("s_cmp_lg_u32 s2, %d" % (NWG - 1))
        e("s_cbranch_scc1 L_nolead")
        e("v_mul_u32_u24 v%d, %d, v%d" % (HB_, FSTR, HL))
        e("v_mov_b32 v%d, 0" % (HZ + 1))
        for k in range(5 if P["vw"] else 4):
            e("s_mov_b32 s%d, %d" % (PE + k, WS_G + k * 64 * FSTR))
            if k == 4:
                e("s_mov_b64 exec, 0x%x" % (0x1fffff if P["fc"] else 0x3ff))
            e("buffer_store_dwordx2 v[%d:%d], v%d, s[%d:%d], s%d offen sc1" % (HZ, HZ + 1, HB_, PWS, PWS + 3, PE + k))
        e("v_mov_b32 v%d, 0x%x" % (HA, BIAS + (1 << 24)))
        e("s_mov_b64 exec, 1")
        e("s_waitcnt vmcnt(0)")
        e("buffer_atomic_add v%d, off, s[%d:%d], 0" % (HA, PDB, PDB + 3))
        e("s_mov_b64 exec, -1")
        if P["hs"]:
            if P["hs"] == 2:
                e("s_waitcnt vmcnt(0)")
            e("s_memrealtime s[%d:%d]" % (PD + 4, PD + 5))
        e.label("L_nolead")
    e("v_lshlrev_b32 v%d, 2, v%d" % (HB_, HL))
    decode("a", 1, 0, 48 if P["dc"] else 49, P["nr0"], L_DEC, 0)
    decode("b", 5, 128, 16, NR, L_DEC + 4, 1)
    if P["lx"]:
        e("s_mul_i32 s%d, s%d, 43" % (PE, PG))
        e("s_lshr_b32 s%d, s%d, 8" % (PE, PE))
        e("s_mul_i32 s%d, s%d, 6" % (PE + 1, PE))
        e("s_sub_u32 s%d, s%d, s%d" % (PBK, PG, PE + 1))
        e("s_cmp_ge_u32 s%d, 3" % PBK)
        e("s_cselect_b32 s%d, s68, s66" % PB)
        e("s_cselect_b32 s%d, s69, s67" % (PBASE + 1))
        e("s_cselect_b32 s%d, 3, 0" % (PE + 1))
        e("s_sub_u32 s%d, s%d, s%d" % (PE + 1, PBK, PE + 1))
        e("s_lshl_b32 s%d, s%d, 28" % (PO, PE + 1))
        e("s_mul_i32 s%d, s%d, %d" % (PE, PE, 21 << 21))
        e("s_add_u32 s%d, s%d, s%d" % (PO, PO, PE))
        e("s_add_u32 s%d, s%d, %d" % (PO, PO, (7 << 21) + (1 << 20)))
        e("s_and_b32 s%d, s%d, 0xffff" % (PB + 1, PBASE + 1))
        e("s_mov_b32 s%d, %d" % (PB + 2, H * HEADB))
        e("s_mov_b32 s%d, 0x00020000" % (PB + 3))
        e("s_add_u32 s%d, s%d, %d" % (PE, PM, P["lx"]))
        e("s_and_b32 s%d, s%d, 7" % (PE, PE))
        e("s_lshl_b32 s%d, s%d, 9" % (PE, PE))
        e("v_lshlrev_b32 v%d, 12, v%d" % (HW, HL))
        e("v_add_u32 v%d, s%d, v%d" % (HW, PE, HW))
        for j in range(3):
            e("buffer_load_dword v%d, v%d, s[%d:%d], s%d offen offset:%d" % (HX + j, HW, PB, PB + 3, PO, j * 128))
        e("s_add_u32 s%d, s%d, s%d" % (PBASE, PB, PO))
        e("s_addc_u32 s%d, s%d, 0" % (PBASE + 1, PBASE + 1))
        e("s_lshl_b32 s%d, s%d, 9" % (PE, PM))
        e("s_add_u32 s%d, s%d, s%d" % (PBASE, PBASE, PE))
        e("s_addc_u32 s%d, s%d, 0" % (PBASE + 1, PBASE + 1))
        e("s_load_dword s%d, s[%d:%d], 384" % (PJ, PBASE, PBASE + 1))
        e("s_load_dword s%d, s[%d:%d], 0x20180" % (PJ, PBASE, PBASE + 1))
        e("s_waitcnt vmcnt(0) lgkmcnt(0)")
        lds_wait("lx", HZ, HE, PE, L_EV + 4, "8", PSP)
        for j in range(3):
            e("s_mov_b32 m0, 0")
            e("s_mov_b32 s%d, %d" % (PE, j * 128))
            e.label("L_lx%d" % j)
            e("s_memtime s[%d:%d]" % (PT, PT + 1))
            e("s_waitcnt lgkmcnt(0)")
            e("s_load_dword s%d, s[%d:%d], s%d" % (PJ, PBASE, PBASE + 1, PE))
            e("s_waitcnt lgkmcnt(0)")
            e("s_memtime s[%d:%d]" % (PT + 2, PT + 3))
            e("s_waitcnt lgkmcnt(0)")
            e("s_sub_u32 s%d, s%d, s%d" % (PT, PT + 2, PT))
            e("v_writelane_b32 v%d, s%d, m0" % (HX + j, PT))
            e("s_add_u32 s%d, s%d, 4096" % (PE, PE))
            e("s_add_u32 m0, m0, 1")
            e("s_cmp_lt_u32 m0, 64")
            e("s_cbranch_scc1 L_lx%d" % j)
        e("s_memrealtime s[%d:%d]" % (PT, PT + 1))
        e("s_waitcnt lgkmcnt(0)")
        e("v_mov_b32 v%d, s%d" % (HX + 3, PT))
        srd(PB, 82, 0x8000000)
        e("s_lshl_b32 s%d, s2, 10" % PE)
        e("s_add_u32 s%d, s%d, 0x4090000" % (PE, PE))
        e("v_lshlrev_b32 v%d, 4, v%d" % (HW, HL))
        e("buffer_store_dwordx4 v[%d:%d], v%d, s[%d:%d], s%d offen" % (HX, HX + 3, HW, PB, PB + 3, PE))
    if FU:
        CSC = 24; CMK = 56; CRB = 57; CO = 92
        e("s_and_b32 s%d, s%d, 7" % (PE, PG))
        e("s_cmp_lg_u32 s%d, s%d" % (PE, PM))
        e("s_cbranch_scc1 L_exit1")
        e("s_mul_i32 s%d, s%d, 3" % (PE, PG))
        e("s_add_u32 s%d, s%d, 2" % (PE, PE))
        e("s_lshr_b32 s%d, s%d, 5" % (PE, PE))
        e("s_lshl_b32 s%d, s%d, 2" % (PE, PE))
        e("v_mov_b32 v%d, s%d" % (HW, PE))
        e("s_mul_i32 s%d, s%d, 24" % (CRB, PG))
        e("v_add_u32 v%d, s%d, v%d" % (HG, CRB, HL))
        e("v_and_b32 v%d, 255, v%d" % (HR, HG))
        e("v_mul_u32_u24 v%d, %d, v%d" % (HR, FSTR, HR))
        e("v_lshlrev_b32 v%d, 6, v%d" % (HG, HG))
        e("s_mov_b32 s%d, %d" % (PE + 1, WS_G))
        e("s_mov_b32 s%d, %d" % (PE + 2, WS_ML))
        e("v_mov_b32 v%d, 0x%08x" % (HA, BIGNEG))
        e("v_mov_b32 v%d, 0" % HB_)
        if P["cd"]:
            th = [12 * (len(CPK) + min(j for j, c in enumerate(CPV) if c > b)) + P["cd"] for b in (16, 32, 4)]
            e("s_mov_b32 s%d, %d" % (PE + 3, th[0]))
            e("s_cmp_eq_u32 s%d, 4" % PE)
            e("s_cselect_b32 s%d, %d, s%d" % (PE + 3, th[1], PE + 3))
            e("s_cmp_eq_u32 s%d, 8" % PE)
            e("s_cselect_b32 s%d, %d, s%d" % (PE + 3, th[2], PE + 3))
            lds_wait("cg", HZ, HE, PE, L_TC, "s%d" % (PE + 3), PSP)
        else:
            lds_wait("cg", HZ, HE, PE, L_GO, "nz", PSP, HW)
        for tag, ld, chk in (("f", "buffer_load_dword v%d, v%d, s[%d:%d], s%d offen sc1" % (HD, HR, PWS, PWS + 3, PE + 1), HD),
                             ("m", "buffer_load_dwordx4 v[%d:%d], v%d, s[%d:%d], s%d offen sc1" % (HA, HD, HG, PWS, PWS + 3, PE + 2), HD)):
            e("s_mov_b64 exec, 0xffffff")
            e("s_mov_b32 s%d, 0x40000" % PSP)
            e.label("L_cp" + tag)
            e(ld)
            e("s_sub_u32 s%d, s%d, 1" % (PSP, PSP))
            e("s_cbranch_scc1 L_exit1")
            e("s_waitcnt vmcnt(0)")
            e("v_cmpx_eq_u32 vcc, 0, v%d" % chk)
            e("s_cbranch_execnz L_cp" + tag)
        e("s_mov_b64 exec, -1")
        e("v_mov_b32 v%d, v%d" % (HC, HA))
        wave_reduce([HC], "v_max_f32", [HD])
        e("v_sub_f32 v%d, v%d, v%d" % (HA, HA, HC))
        e("v_exp_f32 v%d, v%d" % (HA, HA))
        e("v_mul_f32 v%d, v%d, v%d" % (HB_, HB_, HA))
        wave_reduce([HB_], "v_add_f32", [HD])
        e("v_rcp_f32 v%d, v%d" % (HB_, HB_))
        e("v_mul_f32 v%d, v%d, v%d" % (HA, HA, HB_))
        if P["fc"]:
            e("s_cmp_lt_u32 s%d, 21" % PG)
            e("s_cbranch_scc1 L_cown")
            e("s_mul_i32 s%d, s%d, %d" % (PE, PG, FSTR))
            e("s_add_u32 s%d, s%d, %d" % (PE, PE, WS_G + 245 * FSTR))
            e("v_lshlrev_b32 v%d, 2, v%d" % (HR, HL))
            e("v_mov_b32 v%d, 1" % HB_)
            e("s_mov_b64 exec, 0xffffff")
            e("buffer_store_dword v%d, v%d, s[%d:%d], s%d offen offset:128 sc1" % (HA, HR, PWS, PWS + 3, PE))
            e("s_mov_b64 exec, 1")
            e("s_waitcnt vmcnt(0)")
            e("buffer_store_dword v%d, off, s[%d:%d], s%d offset:4 sc1" % (HB_, PWS, PWS + 3, PE))
            e("s_endpgm")
            e.label("L_cown")
        for r in range(24):
            e("v_readlane_b32 s%d, v%d, %d" % (CSC + r, HA, r))
        srd(CO, 78, H * DH * 2)
        e("s_lshl_b32 s%d, s%d, 10" % (CRB, CRB))
        e("v_lshlrev_b32 v%d, 4, v%d" % (HG, HL))
        e("v_add_u32 v%d, s%d, v%d" % (HG, CRB, HG))
        for k in range(1, 6):
            e("s_mov_b32 s%d, %d" % (PE + k, 4096 * k))
        for r in (HA, HB_, HC):
            e("v_mov_b32 v%d, 0" % r)
        e("s_mov_b32 s%d, 0xffffff" % CMK)
        e("v_lshlrev_b32 v%d, 1, v%d" % (HR, HL))
        e("s_mul_i32 s%d, s%d, %d" % (CRB, PG, DH * 2))
        lds_wait("cc", HZ, HE, PE, L_CA, "%d" % P["cw"], PSP, HW)
        e("s_mov_b32 s%d, 0x40000" % PSP)
        e.label("L_cr")
        for r in range(24):
            e("s_bitcmp0_b32 s%d, %d" % (CMK, r))
            e("s_cbranch_scc1 L_cl%d" % r)
            e("buffer_load_dwordx4 v[%d:%d], v%d, s[%d:%d], %s offen offset:%d sc1" %
              (HX + 4 * r, HX + 4 * r + 3, HG, PWS, PWS + 3, "s%d" % (PE + r // 4) if r >= 4 else "0", (r % 4) * 1024))
            e.lines.append("L_cl%d:" % r)
        e("s_sub_u32 s%d, s%d, 1" % (PSP, PSP))
        e("s_cbranch_scc1 L_exit1")
        e("s_waitcnt vmcnt(0)")
        for r in range(24):
            e("s_bitcmp0_b32 s%d, %d" % (CMK, r))
            e("s_cbranch_scc1 L_cv%d" % r)
            e("v_cmp_eq_u32 vcc, 0, v%d" % (HX + 4 * r + 3))
            e("s_cbranch_vccnz L_cv%d" % r)
            for k, a_ in enumerate((HA, HB_, HC)):
                e("v_fmac_f32 v%d, s%d, v%d" % (a_, CSC + r, HX + 4 * r + k))
            e("s_bitset0_b32 s%d, %d" % (CMK, r))
            e.lines.append("L_cv%d:" % r)
        e("s_cmp_lg_u32 s%d, 0" % CMK)
        e("s_cbranch_scc1 L_cr")
        for k, a_ in enumerate((HA, HB_, HC)):
            e("v_cvt_pk_bf16_f32 v%d, v%d, v%d" % (a_, a_, a_))
            e("buffer_store_short v%d, v%d, s[%d:%d], s%d offen offset:%d" % (a_, HR, CO, CO + 3, CRB, k * 128))
        if P["stamp"] == 5:
            e("s_memrealtime s[%d:%d]" % (PT, PT + 1))
            e("s_waitcnt vmcnt(0)")
            e("s_memrealtime s[%d:%d]" % (PT + 2, PT + 3))
            srd(PS2, 82, 0x8000000)
            e("s_waitcnt lgkmcnt(0)")
            e("v_mov_b32 v%d, s%d" % (HX, PT))
            e("v_mov_b32 v%d, s%d" % (HX + 1, PT + 2))
            e("v_mov_b32 v%d, s%d" % (HX + 2, PSP))
            e("s_lshl_b32 s%d, s%d, 4" % (PE, PG))
            e("s_add_u32 s%d, s%d, 0x4009000" % (PE, PE))
            e("s_mov_b64 exec, 1")
            e("buffer_store_dwordx4 v[%d:%d], off, s[%d:%d], s%d" % (HX, HX + 3, PS2, PS2 + 3, PE))
    e("s_endpgm")

    def seg_scalars():
        e("s_lshl_b32 s%d, s%d, 5" % (PSG, PPH))
        e("s_add_u32 s%d, s%d, s%d" % (PSG, PSG, PG))
        e("s_lshl_b32 s%d, s%d, 15" % (PG0, PSG))
        e("s_add_u32 s%d, s%d, 1" % (PG0, PG0))
        e("s_mul_hi_u32 s%d, s%d, 0xaaaaaaab" % (PG0, PG0))
        e("s_lshr_b32 s%d, s%d, 7" % (PG0, PG0))

    def get_dec(tag):
        lds_wait(tag, HZ, HE, PE, L_DEC + 20, "nz", PSP)
        e("ds_read_b128 v[%d:%d], v%d offset:%d" % (HX, HX + 3, HZ, L_DEC))
        e("ds_read_b64 v[%d:%d], v%d offset:%d" % (HX + 4, HX + 5, HZ, L_DEC + 16))
        e("s_waitcnt lgkmcnt(0)")
        for i in range(6):
            e("v_readfirstlane_b32 s%d, v%d" % (PDC + i, HX + i))

    e.label("L_h0")
    srd(PB, 64, H * DH * 2)
    srd(PS2, 70, H * NGRP * DH * 2)
    srd(PS3, 72, H * NGRP * DH * 2)
    e("v_lshrrev_b32 v%d, 4, v%d" % (HA, HL))
    e("v_and_b32 v%d, 15, v%d" % (HB_, HL))
    e("v_lshlrev_b32 v%d, 3, v%d" % (HC, HB_))
    e("v_mul_u32_u24 v%d, %d, v%d" % (HD, DH * 2, HA))
    e("v_add_u32 v%d, v%d, v%d" % (HD, HD, HC))
    e("v_lshl_add_u32 v%d, v%d, 2, v%d" % (HG, HB_, HA))
    e("v_lshlrev_b32 v%d, 2, v%d" % (HG, HG))
    BQ = HX; BS = HX + 12; BZ = BS + 36; BR = BZ + 36
    PFA = 32; PIA = 33
    e("v_lshlrev_b32 v%d, 4, v%d" % (HA, HL))
    e("s_mul_i32 s%d, s%d, %d" % (PFA, PNB, FSTR))
    e("s_add_u32 s%d, s%d, s%d" % (PFA, PFA, PGL))
    e("s_lshl_b32 s%d, s%d, 3" % (PIA, PG))
    e("s_add_u32 s%d, s%d, s%d" % (PIA, PIA, PNB))
    IMS = PHI if P["il"] else IMG
    PHS = NWG * PHI if P["il"] else PHI
    CX = P["cx"]
    if CX:
        assert N0 <= 4 and not P["xp"]
        IMS = 4096; PHS = NWG * IMS
        e("v_and_b32 v%d, 7, v%d" % (HN, HL))
        e("v_lshrrev_b32 v%d, 3, v%d" % (HE, HL))
        e("v_mul_u32_u24 v%d, 24, v%d" % (HK, HE))
        e("v_mov_b32 v%d, 768" % HF)
        e("v_mad_u32_u24 v%d, v%d, v%d, v%d" % (HK, HN, HF, HK))
        e("v_lshlrev_b32 v%d, 7, v%d" % (HN, HN))
        e("v_lshl_add_u32 v%d, v%d, 4, v%d" % (HN, HE, HN))
    e("s_mul_i32 s%d, s%d, %d" % (PIA, PIA, IMS))
    e("s_add_u32 s%d, s%d, %d" % (PIA, PIA, WS_L))

    def bias(ph):
        e("s_mov_b32 s%d, %d" % (PPH, ph))
        seg_scalars()
        e("s_mul_i32 s%d, s%d, 171" % (PE, PSG))
        e("s_lshr_b32 s%d, s%d, 9" % (PE, PE))
        e("s_mul_i32 s%d, s%d, %d" % (PE, PE, DH * 2))
        e("s_mul_i32 s%d, s%d, 24" % (PE + 1, PM))
        e("s_add_u32 s%d, s%d, s%d" % (PE + 2, PE + 1, PG0))
        e("s_mul_i32 s%d, s%d, %d" % (PE + 2, PE + 2, DH * 2))
        e("v_add_u32 v%d, s%d, v%d" % (HE, PE + 2, HD))
        e("v_add_u32 v%d, %d, v%d" % (HF, 8 * DH * 2, HE))
        e("v_add_u32 v%d, %d, v%d" % (HR, 16 * DH * 2, HE))
        for c in range(3):
            e("buffer_load_dwordx2 v[%d:%d], v%d, s[%d:%d], s%d offen offset:%d" % (BR + 2 * c, BR + 2 * c + 1, HC, PB, PB + 3, PE, c * 128))
        for st in range(6):
            va = (HE, HF, HR)[st // 2]
            for sr, bb in ((PS2, BS), (PS3, BZ)):
                for c in range(3):
                    r = bb + st * 6 + 2 * c
                    if P["xb"] & 1:
                        continue
                    e("buffer_load_dwordx2 v[%d:%d], v%d, s[%d:%d], 0 offen offset:%d%s" %
                      (r, r + 1, va, sr, sr + 3, (st & 1) * 4 * DH * 2 + c * 128,
                       " nt" if P["bnt"] & (1 if bb == BZ else 2) else ""))
                if P["bp"] == 2 and (ph or P["bp0"]):
                    e("s_waitcnt vmcnt(%d)" % P["bq"])
            if P["bp"] == 1 and (ph or P["bp0"]):
                e("s_waitcnt vmcnt(%d)" % P["bq"])
        e("s_waitcnt vmcnt(0)")
        for p in range(6):
            e("v_lshlrev_b32 v%d, 16, v%d" % (BQ + 2 * p, BR + p))
            e("v_and_b32 v%d, 0xffff0000, v%d" % (BQ + 2 * p + 1, BR + p))
        for st in range(6):
            acc = BR + st
            for p in range(6):
                rs = BS + st * 6 + p; rz = BZ + st * 6 + p
                e("v_lshlrev_b32 v%d, 16, v%d" % (HE, rs))
                e("v_lshlrev_b32 v%d, 16, v%d" % (HF, rz))
                e("v_and_b32 v%d, 0xffff0000, v%d" % (rs, rs))
                e("v_and_b32 v%d, 0xffff0000, v%d" % (rz, rz))
                e("v_mul_f32 v%d, v%d, v%d" % (HE, HE, BQ + 2 * p))
                e("v_mul_f32 v%d, v%d, v%d" % (rs, rs, BQ + 2 * p + 1))
                if p == 0:
                    e("v_mul_f32 v%d, v%d, v%d" % (acc, HE, HF))
                else:
                    e("v_fmac_f32 v%d, v%d, v%d" % (acc, HE, HF))
                e("v_fmac_f32 v%d, v%d, v%d" % (acc, rs, rz))
        for kk in (8, 4, 2, 1):
            for st in range(6):
                e("v_add_f32_dpp v%d, v%d, v%d row_ror:%d row_mask:0xf bank_mask:0xf" % (BR + st, BR + st, BR + st, kk))
        for st in range(1, 6):
            e("v_cmp_eq_u32 vcc, %d, v%d" % (st, HB_))
            e("v_cndmask_b32 v%d, v%d, v%d, vcc" % (BR, BR, BR + st))
        e("s_mul_i32 s%d, s%d, 768" % (PE, PSG))
        e("s_lshl_b32 s%d, s%d, 2" % (PE + 1, PE + 1))
        e("s_add_u32 s%d, s%d, s%d" % (PE, PE, PE + 1))
        e("s_add_u32 s%d, s%d, %d" % (PE, PE, WS_B))
        e("s_mov_b32 exec_lo, 0x003f003f")
        e("s_mov_b32 exec_hi, 0x003f003f")
        e("buffer_store_dword v%d, v%d, s[%d:%d], s%d offen sc1" % (BR, HG, PWS, PWS + 3, PE))
        e("s_mov_b64 exec, -1")

    def flush(p):
        if P["xp"]:
            e("s_cmp_eq_u32 s%d, s%d" % (PDC + p, PDC + 3 + p))
            if p:
                e("s_cbranch_scc1 L_fp%d" % p)
            e("s_add_u32 s%d, s%d, %d" % (PE + 6, PIA, p * PHS))
            e("s_add_u32 s%d, s%d, %d" % (PE + 7, PIA, p * PHS + 4096))
            e("s_cmp_eq_u32 s%d, s%d" % (PDC + p, PDC + 3 + p))
            for k in range(6):
                if p == 0:
                    mk = sum(1 << l for l in range(64) if (64 * k + l) % 48 < (3 * N0 + 7) // 8 * 8)
                    e("s_cselect_b32 exec_lo, 0x%x, -1" % (mk & 0xffffffff))
                    e("s_cselect_b32 exec_hi, 0x%x, -1" % (mk >> 32))
                e("buffer_load_dwordx4 v[%d:%d], v%d, s[%d:%d], s%d offen offset:%d %s" %
                  (HX + 4 * k, HX + 4 * k + 3, HA, PWS, PWS + 3, PE + 6 + k // 4, (k % 4) * 1024, ("", "sc1", "", "nt")[P["xp"]]))
            e("s_mov_b64 exec, -1")
            e("s_waitcnt vmcnt(0)")
            e.label("L_fp%d" % p)
        lds_wait("f%d" % p, HZ, HE, PE, L_CF + 4 * p, "4", PSP)
        e("s_cmp_eq_u32 s%d, s%d" % (PDC + p, PDC + 3 + p))
        if p:
            e("s_cbranch_scc1 L_fl%d" % p)
        if CX:
            for st in range(4):
                for c in range(3):
                    r = HX + 12 * st + 2 * c
                    e("ds_read_b64 v[%d:%d], v%d offset:%d" % (r, r + 1, HK, L_LG + p * PHI + st * 192 + 8 * c))
            e("s_add_u32 s%d, s%d, %d" % (PE + 6, PIA, p * PHS))
            e("s_cmp_eq_u32 s%d, s%d" % (PDC + p, PDC + 3 + p))
            e("s_waitcnt lgkmcnt(0)")
            for st in range(4):
                B = HX + 12 * st
                e("v_cmp_eq_f32 vcc, 0, v%d" % (B + 5))
                e("v_max3_f32 v%d, v%d, v%d, v%d" % (B + 9, B, B + 1, B + 2))
                e("v_cndmask_b32 v%d, v%d, v%d, vcc" % (B + 8, B + 5, B + 4))
                e("v_max3_f32 v%d, v%d, v%d, v%d" % (B + 9, B + 9, B + 3, B + 4))
                e("v_max_f32 v%d, v%d, v%d" % (B + 8, B + 8, B + 9))
                for k in range(6):
                    e("v_sub_f32 v%d, v%d, v%d" % (B + k, B + k, B + 8))
                for k in range(3):
                    e("v_cvt_pk_f16_f32 v%d, v%d, v%d" % (B + 9 + k, B + 2 * k, B + 2 * k + 1))
                if not P["xkp"] & 16:
                    e("buffer_store_dwordx4 v[%d:%d], v%d, s[%d:%d], s%d offen offset:%d %s" %
                      (B + 8, B + 11, HN, PWS, PWS + 3, PE + 6, st * 1024, P["st"]))
                if p == 0 and st == 0:
                    e("s_cbranch_scc1 L_fl0")
        else:
            for k in range(6):
                e("ds_read_b128 v[%d:%d], v%d offset:%d" % (HX + 4 * k, HX + 4 * k + 3, HA, L_LG + p * PHI + k * 1024))
            e("s_add_u32 s%d, s%d, %d" % (PE + 6, PIA, p * PHS))
            e("s_add_u32 s%d, s%d, %d" % (PE + 7, PIA, p * PHS + 4096))
            e("s_cmp_eq_u32 s%d, s%d" % (PDC + p, PDC + 3 + p))
            e("s_waitcnt lgkmcnt(0)")
            for k in range(6):
                if p == 0:
                    mk = sum(1 << l for l in range(64) if (64 * k + l) % 48 < (3 * N0 + 7) // 8 * 8)
                    e("s_cselect_b32 exec_lo, 0x%x, -1" % (mk & 0xffffffff))
                    e("s_cselect_b32 exec_hi, 0x%x, -1" % (mk >> 32))
                if not P["xkp"] & 16:
                    e("buffer_store_dwordx4 v[%d:%d], v%d, s[%d:%d], s%d offen offset:%d %s" %
                      (HX + 4 * k, HX + 4 * k + 3, HA, PWS, PWS + 3, PE + 6 + k // 4, (k % 4) * 1024, P["st"]))
            if p == 0:
                e("s_mov_b64 exec, -1")
        e.label("L_fl%d" % p)
        e("v_mov_b32 v%d, %d" % (HE, p + 1))
        e("s_waitcnt vmcnt(0)")
        e("s_mov_b64 exec, 1")
        opt = p == 2 or (p == 1 and not P["jit"])
        if opt:
            e("s_cbranch_scc1 L_fn%d" % p)
        e("buffer_store_dword v%d, off, s[%d:%d], s%d sc1" % (HE, PWS, PWS + 3, PFA))
        if opt:
            e.label("L_fn%d" % p)
        e("ds_write_b32 v%d, v%d offset:%d" % (HZ, HE, L_FD))
        e("s_mov_b64 exec, -1")

    if FU:
        for i in range(4):
            e("v_mov_b32 v%d, 0" % (HX + i))
        for p in range(3):
            e("s_add_u32 s%d, s2, %d" % (PE, 256 * p))
            e("s_lshl_b32 s%d, s%d, 10" % (PE + 1, PE))
            e("s_lshl_b32 s%d, s%d, 6" % (PE, PE))
            e("s_add_u32 s%d, s%d, %d" % (PE, PE, WS_ML))
            if not (P["xkp"] & 512 and p < 2):
                e("buffer_store_dwordx4 v[%d:%d], v%d, s[%d:%d], s%d offen sc1" % (HX, HX + 3, HA, PWS, PWS + 3, PE + 1))
            e("s_mov_b64 exec, 15")
            e("buffer_store_dwordx4 v[%d:%d], v%d, s[%d:%d], s%d offen sc1" % (HX, HX + 3, HA, PWS, PWS + 3, PE))
            e("s_mov_b64 exec, -1")
    bias(0)
    if P["jit"]:
        lds_wait("b1", HZ, HE, PE, L_EV + 4, "1", PSP)
    bias(1)
    if not P["jit"]:
        bias(2)
    get_dec("d0")
    flush(0)
    if P["jit"]:
        lds_wait("b2", HZ, HE, PE, L_EV + 4, "9", PSP)
        bias(2)
    flush(1)
    flush(2)
    if P["at"] and not BC:
        e("v_lshrrev_b32 v%d, 3, v%d" % (HC, HL))
        e("v_xor_b32 v%d, s%d, v%d" % (HC, PM, HC))
        e("v_lshrrev_b32 v%d, 1, v%d" % (HD, HC))
        e("v_and_b32 v%d, 1, v%d" % (HC, HC))
        e("v_lshl_or_b32 v%d, v%d, 2, v%d" % (HD, HC, HD))
        e("v_lshl_or_b32 v%d, v%d, 3, v%d" % (HD, HL, HD))
        e("v_mul_u32_u24 v%d, %d, v%d" % (HD, FSTR, HD))
        lds_wait("t1", HZ, HE, PE, L_TC, "4", PSP)
        e("s_memrealtime s[%d:%d]" % (PT, PT + 1))
        e("s_mov_b64 exec, 1")
        e("s_waitcnt lgkmcnt(0)")
        e("s_or_b32 s%d, s%d, 1" % (PT, PT))
        e("v_mov_b32 v%d, s%d" % (HB_, PT))
        e("buffer_store_dword v%d, off, s[%d:%d], s%d offset:4 sc1" % (HB_, PWS, PWS + 3, PFA))
        e("s_mov_b32 exec_lo, -1")
        e("s_mov_b32 s%d, %d" % (PE + 1, WS_G))
        lds_wait("t2", HZ, HE, PE, L_TC, "5", PSP)
        e("buffer_load_dword v%d, v%d, s[%d:%d], s%d offen offset:4 sc1" % (HB_, HD, PWS, PWS + 3, PE + 1))
        e("v_bfrev_b32 v%d, -2" % HC)
        e("s_mov_b32 s%d, -2048" % PE)
        e("s_waitcnt vmcnt(0)")
        e("v_cmp_eq_u32 vcc, 0, v%d" % HB_)
        e("v_subrev_u32 v%d, s%d, v%d" % (HB_, PT, HB_))
        e("v_cndmask_b32 v%d, v%d, v%d, vcc" % (HB_, HB_, HC))
        for st in (2048, 1024, 512, 256, 128, 64, 32, 16):
            e("s_add_u32 s%d, s%d, %d" % (PE + 1, PE, st))
            e("v_cmp_gt_i32 vcc, s%d, v%d" % (PE + 1, HB_))
            e("s_bcnt1_i32_b64 s%d, vcc" % (PE + 2))
            e("s_cmp_lt_u32 s%d, %d" % (PE + 2, P["aq"]))
            e("s_cselect_b32 s%d, s%d, s%d" % (PE, PE + 1, PE))
        e("s_mul_i32 s%d, s%d, %d" % (PE, PE, -P["ka"]))
        e("s_add_u32 s%d, s%d, %d" % (PE, PE, P["kb"]))
        e("s_ashr_i32 s%d, s%d, 10" % (PE, PE))
        e("s_max_i32 s%d, s%d, %d" % (PE, PE, P["dmin"]))
        e("s_min_i32 s%d, s%d, %d" % (PE, PE, min(P["dmax"], NT - P["te"])))
        e("s_sub_u32 s%d, %d, s%d" % (PE, NT, PE))
        e("s_cmp_eq_u32 s%d, %d" % (PE, NT))
        e("s_cselect_b32 s%d, 255, s%d" % (PE, PE))
        e("v_mov_b32 v%d, s%d" % (HB_, PE))
        e("ds_write_b32 v%d, v%d offset:%d" % (HZ, HB_, L_TD))
    e("s_endpgm")

    def last_gather():
        EL = P["fc"] == 4
        CSC = 24; CO = 96; CR0 = 56; CSO = 57; CHL = 58; CRB = 59; CN = 20
        COF = list(range(64, 76)) + list(range(84, 96))
        RB = HX + 16
        if EL:
            e("s_mov_b64 exec, -1")
            e("v_lshlrev_b32 v%d, 2, v%d" % (HR, HL))
            e("v_add_u32 v%d, %d, v%d" % (HG, L_ACC + 2 * NW * ROWB, HR))
            e("v_lshlrev_b32 v%d, 4, v%d" % (HK, HL))
        e("s_add_u32 s%d, s%d, 64" % (PE, PG))
        e("s_mul_i32 s%d, s%d, 171" % (PE, PE))
        e("s_lshr_b32 s%d, s%d, 9" % (PE, PE))
        e("s_mul_i32 s%d, s%d, %d" % (CHL, PE, FSTR))
        e("s_add_u32 s%d, s%d, %d" % (CHL, CHL, WS_G + 245 * FSTR))
        e("s_mul_i32 s%d, s%d, %d" % (CRB, PE, DH * 2))
        e("s_cmp_eq_u32 s%d, 21" % PE)
        e("s_cselect_b32 s%d, 15, 23" % CN)
        e("s_mul_i32 s%d, s%d, 24" % (PE, PE))
        e("s_add_u32 s%d, s2, 512" % PSG)
        e("s_sub_u32 s%d, s%d, s%d" % (CR0, PSG, PE))
        e("s_lshl_b32 s%d, s%d, 10" % (PSG, PSG))
        e("s_mov_b32 s%d, 0x40000" % PSP)
        e.label("L_fs")
        e("buffer_load_dword v%d, off, s[%d:%d], s%d offset:4 sc1" % (HA, PWS, PWS + 3, CHL))
        e("s_sub_u32 s%d, s%d, 1" % (PSP, PSP))
        e("s_cbranch_scc1 L_exit1")
        e("s_waitcnt vmcnt(0)")
        e("v_cmp_eq_u32 vcc, 0, v%d" % HA)
        e("s_cbranch_vccnz L_fs")
        e("buffer_load_dword v%d, v%d, s[%d:%d], s%d offen offset:128 sc1" % (HE, HR, PWS, PWS + 3, CHL))
        e("ds_read_b128 v[%d:%d], v%d offset:%d" % (HA, HD, HZ, L_ML + 32))
        e("v_xor_b32 v%d, 1, v%d" % (HF, HL))
        e("v_cmp_eq_u32 vcc, s%d, v%d" % (CR0, HL))
        e("v_cndmask_b32 v%d, v%d, v%d, vcc" % (HF, HL, HF))
        e("v_add_u32 v%d, s%d, v%d" % (HF, PE, HF))
        e("v_lshlrev_b32 v%d, 10, v%d" % (HF, HF))
        for r in range(24):
            e("v_readlane_b32 s%d, v%d, %d" % (COF[r], HF, r))
        srd(CO, 78, H * DH * 2)
        e("v_lshlrev_b32 v%d, 1, v%d" % (HR, HL))
        e("s_waitcnt vmcnt(0)")
        e("v_readlane_b32 s%d, v%d, s%d" % (CSO, HE, CR0))
        e("v_cndmask_b32 v%d, v%d, v%d, vcc" % (HE, HE, HZ))
        for r in range(24):
            e("v_readlane_b32 s%d, v%d, %d" % (CSC + r, HE, r))
        e("v_mov_b32 v%d, 1" % HV)
        if EL:
            e("s_mov_b64 exec, 1")
            lds_wait("el", HZ, HE, PE, L_EL, "4", PSP)
            e("buffer_atomic_add v%d, off, s[%d:%d], s%d sc0" % (HV, PWS, PWS + 3, CHL))
            e("s_mov_b64 exec, -1")
            e("s_waitcnt vmcnt(0)")
            e("v_readfirstlane_b32 s%d, v%d" % (PE, HV))
            e("s_cmp_lg_u32 s%d, s%d" % (PE, CN))
            e("s_cbranch_scc1 L_exit1")
            for r in range(24):
                e("buffer_load_dwordx4 v[%d:%d], v%d, s[%d:%d], s%d offen sc1" % (RB + 4 * r, RB + 4 * r + 3, HK, PWS, PWS + 3, COF[r]))
        lds_wait("n", HZ, HE, PE, L_CA + 8, "4", PSP)
        for kk in range(3):
            for w in range(NW):
                e("ds_read_b32 v%d, v%d offset:%d" % (HX + kk * NW + w, HG, w * ROWB + kk * 256))
        if not EL:
            e("s_mov_b64 exec, 1")
            e("buffer_atomic_add v%d, off, s[%d:%d], s%d sc0" % (HV, PWS, PWS + 3, CHL))
            e("s_mov_b64 exec, -1")
        e("s_mov_b32 s%d, 0x40000" % PSP)
        for kk in range(3):
            b = HX + kk * NW
            e("s_waitcnt lgkmcnt(%d)" % (8 - 4 * kk))
            e("v_add_f32 v%d, v%d, v%d" % (b, b, b + 1))
            e("v_add_f32 v%d, v%d, v%d" % (b + 2, b + 2, b + 3))
            e("v_sub_f32 v%d, v%d, v%d" % (b, b, HC))
            e("v_add_f32 v%d, v%d, v%d" % (HX + 12 + kk, b, b + 2))
        if EL:
            e("s_branch L_fr2")
        else:
            e("buffer_store_dwordx4 v[%d:%d], v%d, s[%d:%d], s%d offen sc1" % (HX + 12, HX + 15, HK, PWS, PWS + 3, PSG))
        if P["stamp"] == 5 and not EL:
            e("s_memrealtime s[%d:%d]" % (PE + 4, PE + 5))
        if 2 <= P["fc"] < 4:
            e("s_waitcnt vmcnt(%d)" % (P["fc"] - 2))
            e("v_readfirstlane_b32 s%d, v%d" % (PE, HV))
            e("s_cmp_lg_u32 s%d, s%d" % (PE, CN))
            e("s_cbranch_scc1 L_fx")
        e.label("L_fr")
        for r in range(24):
            e("buffer_load_dwordx4 v[%d:%d], v%d, s[%d:%d], s%d offen sc1" % (RB + 4 * r, RB + 4 * r + 3, HK, PWS, PWS + 3, COF[r]))
        e.lines.append("L_fr2:")
        for k, a_ in enumerate((HA, HB_, HC)):
            e("v_mul_f32 v%d, s%d, v%d" % (a_, CSO, HX + 12 + k))
        e("v_mov_b32 v%d, 1" % HD)
        e("s_sub_u32 s%d, s%d, 1" % (PSP, PSP))
        e("s_cbranch_scc1 L_exit1")
        for r in range(24):
            if r % 2 == 0:
                e("s_waitcnt vmcnt(%d)" % (22 - r))
            for k, a_ in enumerate((HA, HB_, HC)):
                e("v_fmac_f32 v%d, s%d, v%d" % (a_, CSC + r, RB + 4 * r + k))
            if r % 2:
                e("v_min3_u32 v%d, v%d, v%d, v%d" % (HD, HD, RB + 4 * r - 1, RB + 4 * r + 3))
        if P["fc"] == 1:
            e("v_readfirstlane_b32 s%d, v%d" % (PE, HV))
        e("v_cmp_eq_u32 vcc, 0, v%d" % HD)
        for a_ in (HA, HB_, HC):
            e("v_cvt_pk_bf16_f32 v%d, v%d, v%d" % (a_, a_, a_))
        if P["fc"] == 1:
            e("s_cmp_lg_u32 s%d, s%d" % (PE, CN))
            e("s_cbranch_scc1 L_fx")
        e("s_cbranch_vccnz L_fr")
        for k, a_ in enumerate((HA, HB_, HC)):
            e("buffer_store_short v%d, v%d, s[%d:%d], s%d offen offset:%d" % (a_, HR, CO, CO + 3, CRB, k * 128))
        if P["stamp"] == 5:
            e("s_memrealtime s[%d:%d]" % (PT, PT + 1))
            e("s_waitcnt vmcnt(0)")
            e("s_memrealtime s[%d:%d]" % (PT + 2, PT + 3))
            srd(PS2, 82, 0x8000000)
            e("s_waitcnt lgkmcnt(0)")
            e("v_mov_b32 v%d, s%d" % (HX, PT))
            e("v_mov_b32 v%d, s%d" % (HX + 1, PT + 2))
            e("v_mov_b32 v%d, s%d" % (HX + 2, PSP))
            e("s_mul_i32 s%d, s%d, 171" % (PE, CRB))
            e("s_lshr_b32 s%d, s%d, 16" % (PE, PE))
            e("s_lshl_b32 s%d, s%d, 4" % (PE, PE))
            e("s_add_u32 s%d, s%d, 0x4009000" % (PE, PE))
            e("s_mov_b64 exec, 1")
            e("buffer_store_dwordx4 v[%d:%d], off, s[%d:%d], s%d" % (HX, HX + 3, PS2, PS2 + 3, PE))
        e.lines.append("L_fx:")
        if P["stamp"] == 5 and not EL:
            srd(PS2, 82, 0x8000000)
            e("s_memrealtime s[%d:%d]" % (PT + 2, PT + 3))
            e("s_waitcnt lgkmcnt(0)")
            e("v_mov_b32 v%d, s%d" % (HX, PE + 4))
            e("v_mov_b32 v%d, s%d" % (HX + 1, PT + 2))
            e("s_lshl_b32 s%d, s2, 3" % PE)
            e("s_add_u32 s%d, s%d, 0x400a000" % (PE, PE))
            e("s_mov_b64 exec, 1")
            e("buffer_store_dwordx2 v[%d:%d], off, s[%d:%d], s%d" % (HX, HX + 1, PS2, PS2 + 3, PE))
        e("s_endpgm")

    if BC:
        e.label("L_h3")
        e("s_waitcnt lgkmcnt(0)")
        srd(PWS, 82, WS_SIZE)
        if not EB:
            e("s_barrier")
        e("v_lshlrev_b32 v%d, 2, v%d" % (HD, HL))
        e("s_mul_i32 s%d, s%d, %d" % (PO, PM, FSTR))
        e("s_add_u32 s%d, s%d, %d" % (PO, PO, WS_T))
        e("s_lshl_b32 s%d, s%d, 2" % (PFL, PG))
        e("s_add_u32 s%d, s%d, s%d" % (PFL, PFL, PO))
        if GTS:
            cps = CPK + [48 + c for c in CPV]
            sel = [max(j for j, c in enumerate(cps) if c + P["tg"] + P["rd"] < b) for b in GTS]
            e("s_mov_b32 s%d, 0x%x" % (PRN, sum(1 << j for j in sel)))
            e("v_lshrrev_b32 v%d, 2, v%d" % (HG, HL))
            e("v_mul_u32_u24 v%d, %d, v%d" % (HG, FSTR, HG))
            e("v_and_or_b32 v%d, v%d, 12, v%d" % (HG, HD, HG))
            e("s_and_b32 s%d, s%d, 3" % (PBK, PM))
            e("s_mul_i32 s%d, s%d, %d" % (PNR, PBK, FSTR))
            e("s_lshl_b32 s%d, s%d, 2" % (PBK, PBK))
            e("v_mov_b32 v%d, %d" % (HK, L_GT))
        e("s_mov_b32 s%d, %d" % (PJ, P["pw"]))
        e("v_mov_b32 v%d, %d" % (HW, L_TM))
        e("v_bfrev_b32 v%d, -2" % HC)
        e("s_mov_b32 exec_hi, 0")
        e.label("L_h3loop")
        lds_wait("p1", HZ, HE, PE, L_TC, "s%d" % PJ, PSP)
        e("s_memrealtime s[%d:%d]" % (PT, PT + 1))
        e("s_add_u32 s%d, s%d, %d" % (PJ, PJ, 5 - P["pw"]))
        e("s_mov_b32 exec_lo, 1")
        e("s_waitcnt lgkmcnt(0)")
        e("v_mov_b32 v%d, s%d" % (HB_, PT))
        e("buffer_store_dword v%d, off, s[%d:%d], s%d" % (HB_, PWS, PWS + 3, PFL))
        e("s_mov_b32 exec_lo, -1")
        if P["xs"]:
            XS = P["xs"]
            e("s_lshl_b32 s%d, s2, %d" % (PE, 10 if XS & 8 else 12))
            e("s_add_u32 s%d, s%d, 0x700000" % (PE, PE))
            e("v_lshlrev_b32 v%d, 4, v%d" % (HX, HL))
            e("s_mov_b64 exec, %s" % ("-1" if XS & 2 else "1"))
            e("v_lshlrev_b32 v%d, 4, v%d" % (HX, HL))
            for k in range(4 if XS & 16 else 1):
                e("buffer_%s_dwordx4 v[%d:%d], v%d, s[%d:%d], s%d offen offset:%d %s" %
                  ("load" if XS & 4 else "store", HX + 4, HX + 7, HX, PWS, PWS + 3, PE, 1024 * k, "sc1" if XS & 1 else "" if not XS & 32 else "sc0 sc1"))
            e("s_mov_b64 exec, 0xffffffff")
        lds_wait("p2", HZ, HE, PE, L_TC, "s%d" % PJ, PSP)
        e("buffer_load_dword v%d, v%d, s[%d:%d], s%d offen sc0" % (HB_, HD, PWS, PWS + 3, PO))
        e("s_add_u32 s%d, s%d, 4" % (PJ, PJ))
        e("s_sub_u32 s%d, s%d, 4096" % (PT, PT))
        e("s_waitcnt vmcnt(0)")
        e("v_subrev_u32 v%d, s%d, v%d" % (HB_, PT, HB_))
        e("v_cmp_gt_u32 vcc, 8192, v%d" % HB_)
        e("v_cndmask_b32 v%d, v%d, v%d, vcc" % (HB_, HC, HB_))
        e("s_mov_b32 s%d, 2048" % PE)
        for st in (2048, 1024, 512, 256, 128, 64, 32, 16, 8):
            e("s_add_u32 s%d, s%d, %d" % (PE + 1, PE, st))
            e("v_cmp_gt_u32 vcc, s%d, v%d" % (PE + 1, HB_))
            e("s_bcnt1_i32_b64 s%d, vcc" % (PE + 2))
            e("s_cmp_lt_u32 s%d, %d" % (PE + 2, P["aq"]))
            e("s_cselect_b32 s%d, s%d, s%d" % (PE, PE + 1, PE))
        e("s_add_u32 s%d, s%d, s%d" % (PE + 1, PE, PT))
        e("s_or_b32 s%d, s%d, 1" % (PE + 1, PE + 1))
        e("v_mov_b32 v%d, s%d" % (HB_, PE + 1))
        e("ds_write_b32 v%d, v%d" % (HW, HB_))
        e("v_add_u32 v%d, 4, v%d" % (HW, HW))
        if GTS:
            e("s_bitcmp1_b32 s%d, 0" % PRN)
            e("s_cbranch_scc0 L_h3ng")
            e("s_cmp_lt_u32 s%d, 6136" % PE)
            e("s_cselect_b32 exec_lo, 1, 0")
            e("s_cmp_lt_u32 s%d, 4" % PG)
            e("s_cselect_b32 exec_lo, exec_lo, 0")
            e("buffer_store_dword v%d, off, s[%d:%d], s%d offset:2048 sc1" % (HB_, PWS, PWS + 3, PFL))
            e("s_mov_b32 exec_lo, 0xffff")
            e("s_add_u32 s%d, s%d, %d" % (PE + 3, PJ, P["gq"]))
            lds_wait("p3", HZ, HE, PE, L_TC, "s%d" % (PE + 3), PSP)
            e("s_sub_u32 s%d, s%d, s%d" % (PE + 3, PO, PNR))
            e("s_mov_b32 s%d, %d" % (PSP, P["gn"]))
            e("s_mov_b32 s%d, 0" % PE)
            if P["gl2"]:
                e("buffer_load_dword v%d, v%d, s[%d:%d], s%d offen offset:2048" % (HA, HG, PWS, PWS + 3, PE + 3))
                e("s_branch L_h3gq")
            e.label("L_h3gp")
            e("buffer_load_dword v%d, v%d, s[%d:%d], s%d offen offset:2048 sc1" % (HA, HG, PWS, PWS + 3, PE + 3))
            e("s_sub_u32 s%d, s%d, 1" % (PSP, PSP))
            e("s_cbranch_scc1 L_h3gw")
            e.lines.append("L_h3gq:")
            e("s_waitcnt vmcnt(0)")
            e("v_subrev_u32 v%d, s%d, v%d" % (HA, PT, HA))
            e("v_cmp_gt_u32 vcc, 8192, v%d" % HA)
            e("v_cndmask_b32 v%d, v%d, v%d, vcc" % (HA, HC, HA))
            e("v_min_u32_dpp v%d, v%d, v%d quad_perm:[1,0,3,2] row_mask:0xf bank_mask:0xf" % (HA, HA, HA))
            e("v_min_u32_dpp v%d, v%d, v%d quad_perm:[2,3,0,1] row_mask:0xf bank_mask:0xf" % (HA, HA, HA))
            e("v_cmp_eq_u32 vcc, v%d, v%d" % (HC, HA))
            e("s_cbranch_vccnz L_h3gp")
            for k in range(4):
                e("v_readlane_b32 s%d, v%d, %d" % (PE + 4 + k, HA, 4 * k))
            e("v_readlane_b32 s%d, v%d, s%d" % (PE + 1, HA, PBK))
            e("s_max_u32 s%d, s%d, s%d" % (PE + 4, PE + 4, PE + 5))
            e("s_max_u32 s%d, s%d, s%d" % (PE + 6, PE + 6, PE + 7))
            e("s_max_u32 s%d, s%d, s%d" % (PE, PE + 4, PE + 6))
            e("s_sub_u32 s%d, s%d, s%d" % (PE, PE, PE + 1))
            e("s_sub_u32 s%d, s%d, %d" % (PE, PE, P["gtol"]))
            e("s_max_i32 s%d, s%d, 0" % (PE, PE))
            e("s_min_i32 s%d, s%d, %d" % (PE, PE, P["gcap"]))
            e.label("L_h3gw")
            e("s_or_b32 s%d, s%d, 0x10000" % (PE, PE))
            e("v_mov_b32 v%d, s%d" % (HB_, PE))
            e("ds_write_b32 v%d, v%d" % (HK, HB_))
            e("s_mov_b32 exec_lo, -1")
            e("v_add_u32 v%d, 4, v%d" % (HK, HK))
            e("s_waitcnt vmcnt(0)")
            e.label("L_h3ng")
            e("s_lshr_b32 s%d, s%d, 1" % (PRN, PRN))
        e("s_add_u32 s%d, s%d, %d" % (PJ, PJ, 3 + P["pw"]))
        e("s_add_u32 s%d, s%d, 128" % (PO, PO))
        e("s_add_u32 s%d, s%d, 128" % (PFL, PFL))
        e("s_cmp_lt_u32 s%d, %d" % (PJ, 12 * (len(CPK) + len(CPV))))
        e("s_cbranch_scc1 L_h3loop")
        if P["fc"] == 4:
            last_gather()
        else:
            e("s_endpgm")

    e.label("L_h2")
    srd(PS2, 74, H * SKV * 2)
    srd(PS3, 76, H * SKV * 2)
    if P["pf"] >= 2:
        if P["pf"] == 2:
            lds_wait("pf", HZ, HE, PE, L_EV + 4, "1", PSP)
        if P["pf"] == 4:
            lds_wait("pf", HZ, HE, PE, L_EV, "1", PSP)
        e("v_lshlrev_b32 v%d, 4, v%d" % (HA, HL))
        e("s_lshl_b32 s%d, s2, 13" % PE)
        e("s_add_u32 s%d, s%d, 4096" % (PE + 1, PE))
        for a, sr in enumerate((PS2, PS3)):
            for k in range(8):
                r = HX + 4 * (a * 8 + k)
                e("buffer_load_dwordx4 v[%d:%d], v%d, s[%d:%d], s%d offen offset:%d" % (r, r + 3, HA, sr, sr + 3, PE + k // 4, (k % 4) * 1024))
        e("s_waitcnt vmcnt(0)")
    get_dec("d2")
    PSIX = 24
    PKW = 32; PNEED = 33; PN0 = 34; PIM = 35; PCH = 36; PCC = 37; PMG = 38; PWD = 39; PIS = 40
    HT = HW
    HP = HX + 88; PXM = 64
    e("v_and_b32 v%d, 3, v%d" % (HT, HL))
    e("v_and_b32 v%d, 7, v%d" % (HT2, HL))
    e("v_lshrrev_b32 v%d, 2, v%d" % (HR, HL))
    e("s_mov_b32 s%d, %s" % (PCC, f32hex(C)))
    e("s_mov_b32 s%d, 0xaaaaaaab" % PMG)
    e("s_mov_b32 s%d, 0" % PPH)
    e("s_mul_i32 s%d, s%d, %d" % (PIM, PG, 8 * IMS))
    e("s_add_u32 s%d, s%d, %d" % (PIM, PIM, WS_L))
    e("s_mov_b32 s%d, %d" % (PIS, IMS))
    e("v_lshlrev_b32 v%d, 5, v%d" % (HN, HL))
    e("v_lshrrev_b32 v%d, 3, v%d" % (HK, HL))
    e("v_mul_u32_u24 v%d, 24, v%d" % (HK, HK))
    e("v_mov_b32 v%d, 768" % HA)
    e("v_mad_u32_u24 v%d, v%d, v%d, v%d" % (HK, HT2, HA, HK))
    if CX:
        e("v_lshrrev_b32 v%d, 3, v%d" % (HA, HL))
        e("v_lshlrev_b32 v%d, 7, v%d" % (HP, HT2))
        e("v_lshl_add_u32 v%d, v%d, 4, v%d" % (HP, HA, HP))
    else:
        e("v_lshlrev_b32 v%d, 4, v%d" % (HP, HL))
    e("s_mov_b32 s%d, %d" % (PN0, (2 if CX else 3) * N0))
    RS = 16
    e.label("L_prep")
    seg_scalars()
    e("s_mov_b32 s%d, s%d" % (PKW, PDC))
    e("s_mov_b32 s%d, s%d" % (PWD, PDC + 3))
    for i in (0, 1, 3, 4):
        e("s_mov_b32 s%d, s%d" % (PDC + i, PDC + i + 1))
    e("s_lshl_b32 s%d, s%d, 3" % (PNEED, PPH))
    e("s_add_u32 s%d, s%d, 1" % (PNEED, PNEED))
    if P["pf"] == 1:
        lds_wait("pf", HZ, HE, PE, L_EV + 4, "s%d" % PNEED, PSP)
        e("v_lshlrev_b32 v%d, 4, v%d" % (HA, HL))
        e("s_mul_i32 s%d, s%d, 2736" % (PE + 1, PM))
        e("s_lshl_b32 s%d, s%d, 16" % (PE, PSG))
        e("s_mul_hi_u32 s%d, s%d, 0xaaaaaaab" % (PE, PE))
        e("s_lshr_b32 s%d, s%d, 5" % (PE, PE))
        e("s_lshl_b32 s%d, s%d, 4" % (PE, PE))
        e("s_add_u32 s%d, s%d, s%d" % (PE, PE, PE + 1))
        for a, sr in enumerate((PS2, PS3)):
            for k in range(3):
                r = HX + 4 * RS + 4 * (a * 3 + k)
                e("buffer_load_dwordx4 v[%d:%d], v%d, s[%d:%d], s%d offen offset:%d%s" % (r, r + 3, HA, sr, sr + 3, PE, k * 1024, " nt" if P["bnt"] & 8 else ""))
    for w, hv in ((PWD, HV),):
        e("s_and_b32 s%d, s%d, 7" % (PE, w))
        e("v_mov_b32 v%d, s%d" % (hv, PE))
        e("s_bitcmp1_b32 s%d, 3" % w)
        e("s_cselect_b64 vcc, -1, 0")
        e("v_cndmask_b32 v%d, v%d, v%d, vcc" % (hv, hv, HT2))
    e("v_xor_b32 v%d, s%d, v%d" % (HG, PNB, HV))
    e("v_lshl_or_b32 v%d, v%d, 3, v%d" % (HG, HT, HG))
    e("s_lshl_b32 s%d, s%d, 6" % (PCH, PSG))
    e("s_mul_i32 s%d, s%d, 768" % (PE + 1, PSG))
    e("s_lshl_b32 s%d, s%d, 2" % (PE + 2, PG0))
    e("s_sub_u32 s%d, s%d, s%d" % (PE + 1, PE + 1, PE + 2))
    e("s_add_u32 s%d, s%d, %d" % (PE + 1, PE + 1, WS_B))
    if P["pace"]:
        e("s_add_u32 s%d, s%d, 4" % (PNEED, PNEED))
        lds_wait("ga", HZ, HE, PE, L_EV + 4, "s%d" % PNEED, PSP)
    else:
        e("s_add_u32 s%d, s%d, 1" % (PNEED, PPH))
        lds_wait("ga", HZ, HE, PE, L_FD, "s%d" % PNEED, PSP)
    for st in range(4):
        R = HX + RS * st
        e("v_add_u32 v%d, %d, v%d" % (HA, 16 * st, HR))
        e("v_bfe_u32 v%d, v%d, 3, 2" % (HB_, HA))
        e("v_and_or_b32 v%d, v%d, 4, v%d" % (HB_, HA, HB_))
        e("v_xor_b32 v%d, v%d, v%d" % (HB_, HG, HB_))
        e("v_add_u32 v%d, s%d, v%d" % (HA, PCH, HA))
        e("v_lshl_add_u32 v%d, v%d, 5, v%d" % (HC, HA, HB_))
        e("v_lshl_add_u32 v%d, v%d, 4, 1" % (HC, HC))
        e("v_mul_hi_u32 v%d, v%d, s%d" % (HC, HC, PMG))
        e("v_lshrrev_b32 v%d, 1, v%d" % (HC, HC))
        e("v_lshrrev_b32 v%d, 1, v%d" % (HF, HC))
        e("v_lshlrev_b32 v%d, 2, v%d" % (HF, HF))
        for b, sr in ((R + 8, PS2), (R + 12, PS3)):
            if P["xkp"] & 8:
                continue
            gnt = " nt" if P["bnt"] & 16 else ""
            e("buffer_load_dwordx3 v[%d:%d], v%d, s[%d:%d], 0 offen%s" % (b, b + 2, HF, sr, sr + 3, gnt))
            if P["pace"] == 2:
                e("s_waitcnt vmcnt(0)")
            e("buffer_load_dword v%d, v%d, s[%d:%d], 0 offen offset:12%s" % (b + 3, HF, sr, sr + 3, gnt))
        e("v_lshrrev_b32 v%d, 6, v%d" % (R + 6, HC))
        e("v_lshl_add_u32 v%d, v%d, 2, s%d" % (R + 6, R + 6, PE + 1))
        e("v_and_b32 v%d, 15, v%d" % (HD, HC))
        e("v_cmp_eq_u32 s[%d:%d], 5, v%d" % (PSIX + 2 * st, PSIX + 2 * st + 1, HD))
        e("v_and_b32 v%d, 1, v%d" % (R + 7, HC))
        e("v_lshlrev_b32 v%d, 4, v%d" % (R + 7, R + 7))
        if P["pace"] == 1:
            e("s_waitcnt vmcnt(0)")
    e("s_add_u32 s%d, s%d, 1" % (PNEED, PPH))
    if P["fd"]:
        cps = CPK + [48 + c for c in CPV]
        th = [12 * min(j for j, c in enumerate(cps) if c > b) + P["fd"] for b in (16, 32, 48)]
        assert th[2] - th[1] == th[1] - th[0]
        e("s_mul_i32 s%d, s%d, %d" % (PE + 6, PPH, th[1] - th[0]))
        e("s_add_u32 s%d, s%d, %d" % (PE + 6, PE + 6, th[0]))
        lds_wait("fe", HZ, HE, PE, L_TC, "s%d" % (PE + 6), PSP)
    lds_wait("fd", HZ, HE, PE, L_FD, "s%d" % PNEED, PSP)
    e("v_mul_u32_u24 v%d, %d, v%d" % (HA, FSTR, HL))
    e("s_xor_b32 s%d, s%d, s%d" % (PE, PKW, PWD))
    e("s_xor_b32 s%d, s%d, s%d" % (PE, PE, PNB))
    e("s_and_b32 s%d, s%d, 7" % (PE, PE))
    e("v_mov_b32 v%d, s%d" % (HC, PNEED))
    e("s_lshl_b64 vcc, 1, s%d" % PE)
    e("s_or_b32 s%d, s%d, s%d" % (PE, PKW, PWD))
    e("s_bitcmp1_b32 s%d, 3" % PE)
    e("s_cselect_b64 vcc, 0xff, vcc")
    e("s_cmp_eq_u32 s%d, s%d" % (PKW, PWD))
    e("s_cselect_b64 vcc, 0, vcc")
    e("s_max_u32 s%d, s%d, 1" % (PE, PPH))
    e("v_mov_b32 v%d, s%d" % (HD, PE))
    e("v_cndmask_b32 v%d, v%d, v%d, vcc" % (HC, HD, HC))
    e("s_cmp_%s_u32 s%d, 1" % ("eq" if P["jit"] else "ge", PPH))
    e("s_cselect_b64 exec, vcc, 0xff")
    e("s_mov_b32 s%d, 0x40000" % PSP)
    if not P["xkp"] & 64:
        e("s_cbranch_execz L_noflags")
        e.label("L_flags")
        e("buffer_load_dword v%d, v%d, s[%d:%d], s%d offen sc1" % (HB_, HA, PWS, PWS + 3, PGL))
        e("s_sub_u32 s%d, s%d, 1" % (PSP, PSP))
        e("s_cbranch_scc1 L_exit1")
        e("s_waitcnt vmcnt(0)")
        e("v_cmpx_gt_u32 vcc, v%d, v%d" % (HC, HB_))
        e("s_cbranch_execnz L_flags")
        e.label("L_noflags")
    e("s_mov_b64 exec, -1")
    for st in range(4):
        R = HX + RS * st
        if not P["xkp"] & 32:
            e("buffer_load_dword v%d, v%d, s[%d:%d], 0 offen sc1" % (R + 6, R + 6, PWS, PWS + 3))
    e("s_bitcmp1_b32 s%d, 3" % PWD)
    e("s_cselect_b32 s%d, 0, 7" % (PE + 1))
    e("s_xor_b32 s%d, s%d, s%d" % (PE + 2, PKW, PWD))
    e("s_bitcmp1_b32 s%d, 3" % (PE + 2))
    e("s_cselect_b32 s%d, 7, 0" % (PE + 3))
    e("s_and_b32 s%d, s%d, 7" % (PE + 2, PE + 2))
    e("s_and_b32 s%d, s%d, 7" % (PE + 4, PWD))
    if CX:
        e("v_lshrrev_b32 v%d, 3, v%d" % (HA, HL))
        e("v_cmp_gt_u32 vcc, s%d, v%d" % (PN0, HA))
        e("v_and_b32 v%d, s%d, v%d" % (HC, PE + 3, HT2))
        e("v_xor_b32 v%d, s%d, v%d" % (HC, PE + 2, HC))
        e("v_and_b32 v%d, s%d, v%d" % (HB_, PE + 1, HT2))
        e("v_xor_b32 v%d, s%d, v%d" % (HB_, PE + 4, HB_))
        e("v_cndmask_b32 v%d, v%d, v%d, vcc" % (HB_, HC, HB_))
        for k, hv in enumerate((HB_, HC)):
            e("v_cmp_ne_u32 s[%d:%d], 0, v%d" % (PXM + 2 * k, PXM + 2 * k + 1, hv))
            e("v_xor_b32 v%d, s%d, v%d" % (hv, PNB, hv))
            e("v_mad_u32_u24 v%d, v%d, s%d, v%d" % (hv, hv, PIS, HP))
        for st in range(4):
            R = HX + 4 * RS + 4 * st
            if st < 2:
                e("s_mov_b64 exec, s[%d:%d]" % (PXM + 2 * st, PXM + 2 * st + 1))
            if not P["xkp"] & 128:
                e("buffer_load_dwordx4 v[%d:%d], v%d, s[%d:%d], s%d offen offset:%d sc1" %
                  (R, R + 3, HC if st else HB_, PWS, PWS + 3, PIM, st * 1024))
        e("s_mov_b64 exec, -1")
    else:
        e("s_add_u32 s%d, s%d, 4096" % (PE + 5, PIM))
        for k in range(6):
            R = HX + 4 * RS + 4 * k
            e("v_add_u32 v%d, %d, v%d" % (HA, 64 * k, HL))
            e("v_mul_u32_u24 v%d, 1366, v%d" % (HB_, HA))
            e("v_lshrrev_b32 v%d, 16, v%d" % (HB_, HB_))
            e("v_mul_u32_u24 v%d, 48, v%d" % (HC, HB_))
            e("v_sub_u32 v%d, v%d, v%d" % (HA, HA, HC))
            e("v_cmp_gt_u32 vcc, s%d, v%d" % (PN0, HA))
            e("v_and_b32 v%d, s%d, v%d" % (HC, PE + 3, HB_))
            e("v_xor_b32 v%d, s%d, v%d" % (HC, PE + 2, HC))
            e("v_and_b32 v%d, s%d, v%d" % (HB_, PE + 1, HB_))
            e("v_xor_b32 v%d, s%d, v%d" % (HB_, PE + 4, HB_))
            e("v_cndmask_b32 v%d, v%d, v%d, vcc" % (HC, HC, HB_))
            e("v_cmp_ne_u32 s[%d:%d], 0, v%d" % (PXM + 2 * k, PXM + 2 * k + 1, HC))
            e("v_xor_b32 v%d, s%d, v%d" % (HC, PNB, HC))
            e("v_mad_u32_u24 v%d, v%d, s%d, v%d" % (HC, HC, PIS, HP))
            e("s_mov_b64 exec, s[%d:%d]" % (PXM + 2 * k, PXM + 2 * k + 1))
            if not P["xkp"] & 128:
                e("buffer_load_dwordx4 v[%d:%d], v%d, s[%d:%d], s%d offen offset:%d sc1" %
                  (R, R + 3, HC, PWS, PWS + 3, PE + 5 if k >= 4 else PIM, (k % 4) * 1024))
            e("s_mov_b64 exec, -1")
        e("s_waitcnt vmcnt(0)")
        for k in range(6):
            R = HX + 4 * RS + 4 * k
            e("s_mov_b64 exec, s[%d:%d]" % (PXM + 2 * k, PXM + 2 * k + 1))
            e("ds_write_b128 v%d, v[%d:%d] offset:%d" % (HP, R, R + 3, L_LG + k * 1024))
        e("s_mov_b64 exec, -1")
    for st in range(4):
        R = HX + RS * st
        for c in range(3):
            e("ds_read_b64 v[%d:%d], v%d offset:%d" % (R + 2 * c, R + 2 * c + 1, HK, L_LG + st * 192 + 8 * c))
    e("s_mov_b32 s%d, 0" % PN0)
    e("v_mov_b32 v%d, 0x%08x" % (HB_, BIGNEG))
    e("v_mov_b32 v%d, 0x%08x" % (HA, BIGNEG))
    e("s_waitcnt vmcnt(0) lgkmcnt(0)")
    if CX:
        for st in range(4):
            R = HX + RS * st
            Q = HX + 4 * RS + 4 * st
            if st < 2:
                e("s_mov_b64 exec, s[%d:%d]" % (PXM + 2 * st, PXM + 2 * st + 1))
            for k in range(6):
                e("v_fma_mix_f32 v%d, v%d, 1.0, v%d op_sel:[%d,0,0] op_sel_hi:[1,0,0]" % (R + k, Q + 1 + k // 2, Q, k & 1))
            e("v_cmp_lt_f32 vcc, v%d, v%d" % (Q, R + 5))
            e("v_cndmask_b32 v%d, v%d, v%d, vcc" % (R + 5, R + 5, HZ))
        e("s_mov_b64 exec, -1")
    for st in range(4):
        R = HX + RS * st
        for k in range(6):
            e("v_sub_f32 v%d, v%d, v%d" % (R + k, R + k, R + 6))
        for k in range(6):
            e("v_mul_f32 v%d, s%d, v%d" % (R + k, PCC, R + k))
        e("v_cndmask_b32 v%d, v%d, v%d, s[%d:%d]" % (R + 5, HB_, R + 5, PSIX + 2 * st, PSIX + 2 * st + 1))
        for k in range(0, 6, 2):
            e("v_max3_f32 v%d, v%d, v%d, v%d" % (HA, HA, R + k, R + k + 1))
        for b in (R + 8, R + 12):
            for k in range(3):
                e("v_alignbit_b32 v%d, v%d, v%d, v%d" % (b + k, b + k + 1, b + k, R + 7))

    wave_reduce([HA], "v_max_f32", [HB_])
    e("v_mov_b32 v%d, 0" % HB_)
    e("v_mov_b32 v%d, 0" % HC)
    for st in range(4):
        R = HX + RS * st
        for k in range(6):
            e("v_sub_f32 v%d, v%d, v%d" % (R + k, R + k, HA))
        for k in range(6):
            e("v_exp_f32 v%d, v%d" % (R + k, R + k))
        for k in range(6):
            e("v_add_f32 v%d, v%d, v%d" % (HB_, HB_, R + k))
            if k & 1:
                e("v_and_b32 v%d, 0xffff0000, v%d" % (HE, R + 8 + k // 2))
                e("v_and_b32 v%d, 0xffff0000, v%d" % (HF, R + 12 + k // 2))
            else:
                e("v_lshlrev_b32 v%d, 16, v%d" % (HE, R + 8 + k // 2))
                e("v_lshlrev_b32 v%d, 16, v%d" % (HF, R + 12 + k // 2))
            e("v_mul_f32 v%d, v%d, v%d" % (R + k, R + k, HE))
            e("v_fmac_f32 v%d, v%d, v%d" % (HC, R + k, HF))
        e("ds_write_b128 v%d, v[%d:%d] offset:%d" % (HN, R, R + 3, L_PV + st * 2048))
        e("ds_write_b64 v%d, v[%d:%d] offset:%d" % (HN, R + 4, R + 5, L_PV + st * 2048 + 16))
    wave_reduce([HB_, HC], "v_add_f32", [HE, HF])
    e("s_lshl_b32 s%d, s%d, 2" % (PE, PPH))
    e("v_mov_b32 v%d, s%d" % (HE, PE))
    e("v_lshlrev_b32 v%d, 2, v%d" % (HF, HE))
    e("v_mov_b32 v%d, s%d" % (HD, PWD))
    e("s_mov_b64 exec, 1")
    e("ds_write_b128 v%d, v[%d:%d] offset:%d" % (HF, HA, HD, L_ML))
    e("ds_write_b32 v%d, v%d offset:%d" % (HE, HD, L_GO))
    if FU:
        e("s_lshl_b32 s%d, s%d, 8" % (PE, PPH))
        e("s_add_u32 s%d, s%d, s2" % (PE, PE))
        e("s_lshl_b32 s%d, s%d, 6" % (PE, PE))
        e("s_add_u32 s%d, s%d, %d" % (PE, PE, WS_ML))
        e("buffer_store_dwordx4 v[%d:%d], off, s[%d:%d], s%d sc1" % (HA, HD, PWS, PWS + 3, PE))
    e("s_mov_b64 exec, -1")
    e("v_add_u32 v%d, 8192, v%d" % (HN, HN))
    e("v_add_u32 v%d, %d, v%d" % (HK, PHI, HK))
    if CX:
        e("s_add_u32 s%d, s%d, %d" % (PIM, PIM, PHS))
    else:
        e("v_add_u32 v%d, %d, v%d" % (HP, PHI, HP))
        if PHS != PHI:
            e("s_add_u32 s%d, s%d, %d" % (PIM, PIM, PHS - PHI))
    e("s_add_u32 s%d, s%d, 1" % (PPH, PPH))
    e("s_cmp_lt_u32 s%d, 3" % PPH)
    e("s_cbranch_scc1 L_prep")
    e("s_mov_b32 s%d, 0" % PPH)
    e("v_lshlrev_b32 v%d, 2, v%d" % (HR, HL))
    e("v_add_u32 v%d, %d, v%d" % (HG, L_ACC, HR))
    e("v_lshlrev_b32 v%d, 4, v%d" % (HK, HL))
    e("v_mov_b32 v%d, 1" % (HX + 15))
    e.label("L_merge")
    e("s_lshl_b32 s%d, s%d, 2" % (PE, PPH))
    e("v_mov_b32 v%d, s%d" % (HW, PE))
    e("v_lshlrev_b32 v%d, 2, v%d" % (HF, HW))
    e("ds_read_b128 v[%d:%d], v%d offset:%d" % (HA, HD, HF, L_ML))
    e("s_lshl_b32 s%d, s%d, 8" % (PSG, PPH))
    e("s_add_u32 s%d, s%d, s2" % (PSG, PSG))
    e("s_lshl_b32 s%d, s%d, 10" % (PSG, PSG))
    lds_wait("m", HZ, HE, PE, L_CA, "4", PSP, HW)
    for kk in range(3):
        for w in range(NW):
            e("ds_read_b32 v%d, v%d offset:%d" % (HX + kk * NW + w, HG, w * ROWB + kk * 256))
    for kk in range(3):
        b = HX + kk * NW
        e("s_waitcnt lgkmcnt(%d)" % (8 - 4 * kk))
        e("v_add_f32 v%d, v%d, v%d" % (b, b, b + 1))
        e("v_add_f32 v%d, v%d, v%d" % (b + 2, b + 2, b + 3))
        e("v_sub_f32 v%d, v%d, v%d" % (b, b, HC))
        if FU:
            e("v_add_f32 v%d, v%d, v%d" % (HX + 12 + kk, b, b + 2))
            continue
        e("v_add_f32 v%d, v%d, v%d" % (b, b, b + 2))
        e("buffer_store_dword v%d, v%d, s[%d:%d], s%d offen offset:%d" % (b, HR, PWS, PWS + 3, PSG, kk * 256))
    if FU:
        e("buffer_store_dwordx4 v[%d:%d], v%d, s[%d:%d], s%d offen sc1" % (HX + 12, HX + 15, HK, PWS, PWS + 3, PSG))
    else:
        e("s_mov_b64 exec, 1")
        e("buffer_store_dwordx2 v[%d:%d], off, s[%d:%d], s%d offset:%d" % (HA, HB_, PWS, PWS + 3, PSG, DH * 4))
        e("s_mov_b64 exec, -1")
    e("v_add_u32 v%d, %d, v%d" % (HG, NW * ROWB, HG))
    e("s_add_u32 s%d, s%d, 1" % (PPH, PPH))
    e("s_cmp_lt_u32 s%d, %d" % (PPH, 2 if 0 < P["fc"] < 4 else 3))
    e("s_cbranch_scc1 L_merge")
    if 0 < P["fc"] < 4:
        last_gather()
    if P["stamp"] == 5:
        e("s_memrealtime s[%d:%d]" % (PT, PT + 1))
        e("s_waitcnt vmcnt(0)")
        e("s_memrealtime s[%d:%d]" % (PT + 2, PT + 3))
        srd(PS2, 82, 0x8000000)
        e("s_waitcnt lgkmcnt(0)")
        e("v_mov_b32 v%d, s%d" % (HX, PT))
        e("v_mov_b32 v%d, s%d" % (HX + 1, PT + 2))
        e("s_lshl_b32 s%d, s2, 3" % PE)
        e("s_add_u32 s%d, s%d, 0x400a000" % (PE, PE))
        e("s_mov_b64 exec, 1")
        e("buffer_store_dwordx2 v[%d:%d], off, s[%d:%d], s%d" % (HX, HX + 1, PS2, PS2 + 3, PE))
    e("s_endpgm")

    main_text = e.text()
    RPW = 24
    k2 = NAME + "_kernel"
    e.lines.append(".globl %s" % k2)
    e.lines.append(".p2align 8")
    e.lines.append(".type %s,@function" % k2)
    e.lines.append(k2 + ":")
    e.wr = {}; e.tr = {}; e.sw = {}
    e("s_cmp_ge_u32 s2, %d" % H)
    e("s_cbranch_scc1 L_exit2")
    e("s_load_dwordx2 s[4:5], s[0:1], 56")
    e("s_load_dwordx2 s[6:7], s[0:1], 72")
    e("v_lshlrev_b32 v1, 2, v0")
    e("v_mov_b32 v2, 0")
    e("s_mul_i32 s16, s2, %d" % (RPW * PART_STRIDE))
    e("s_mov_b32 s10, %d" % (3 * NWG * PART_STRIDE))
    e("s_mov_b32 s11, 0x00020000")
    e("s_mov_b32 s14, %d" % (H * DH * 2))
    e("s_mov_b32 s15, 0x00020000")
    for k in range(1, RPW // 4):
        e("s_add_u32 s%d, s16, %d" % (16 + k, 4 * k * PART_STRIDE))
    e("s_waitcnt lgkmcnt(0)")
    e("s_mov_b32 s8, s6")
    e("s_and_b32 s9, s7, 0xffff")
    e("s_mov_b32 s12, s4")
    e("s_and_b32 s13, s5, 0xffff")
    MLB = 8
    OB = MLB + 2 * RPW
    for s in range(RPW):
        so = 16 + s // 4
        e("buffer_load_dwordx2 v[%d:%d], v2, s[8:11], s%d offen offset:%d" %
          (MLB + 2 * s, MLB + 2 * s + 1, so, (s % 4) * PART_STRIDE + DH * 4))
        e("buffer_load_dword v%d, v1, s[8:11], s%d offen offset:%d" % (OB + s, so, (s % 4) * PART_STRIDE))
    e("s_waitcnt vmcnt(0)")
    e("v_mov_b32 v4, v%d" % MLB)
    for s in range(1, RPW):
        e("v_max_f32 v4, v4, v%d" % (MLB + 2 * s))
    for s in range(RPW):
        e("v_sub_f32 v%d, v%d, v4" % (MLB + 2 * s, MLB + 2 * s))
    for s in range(RPW):
        e("v_exp_f32 v%d, v%d" % (MLB + 2 * s, MLB + 2 * s))
    e("v_mul_f32 v5, v%d, v%d" % (MLB, MLB + 1))
    e("v_mul_f32 v6, v%d, v%d" % (MLB, OB))
    for s in range(1, RPW):
        e("v_fmac_f32 v5, v%d, v%d" % (MLB + 2 * s, MLB + 2 * s + 1))
        e("v_fmac_f32 v6, v%d, v%d" % (MLB + 2 * s, OB + s))
    e("v_rcp_f32 v5, v5")
    e("v_mul_f32 v6, v6, v5")
    e("v_cvt_pk_bf16_f32 v6, v6, v6")
    e("s_mul_i32 s16, s2, %d" % (DH * 2))
    e("v_lshrrev_b32 v1, 1, v1")
    e("buffer_store_short v6, v1, s[12:15], s16 offen")
    e.lines.append("L_exit2:")
    e("s_endpgm")
    NV2 = OB + RPW

    def kd(name, nv, ns):
        acc = (nv + 3) // 4 * 4
        return """.amdhsa_kernel %s
  .amdhsa_next_free_vgpr %d
  .amdhsa_next_free_sgpr %d
  .amdhsa_accum_offset %d
  .amdhsa_group_segment_fixed_size 0
  .amdhsa_kernarg_size 80
  .amdhsa_user_sgpr_count 2
  .amdhsa_user_sgpr_kernarg_segment_ptr 1
  .amdhsa_system_sgpr_workgroup_id_x 1
.end_amdhsa_kernel
""" % (name, nv, ns, acc)

    diag = ""
    if P["diag"]:
        d = Emit4()
        d.lines += [".globl diag_kernel", ".p2align 8", ".type diag_kernel,@function", "diag_kernel:"]
        d("s_cmp_ge_u32 s2, 1")
        d("s_cbranch_scc1 L_dx")
        d("s_load_dwordx2 s[6:7], s[0:1], 72")
        d("s_memrealtime s[16:17]")
        d("v_lshlrev_b32 v1, 4, v0")
        d("s_mov_b32 s10, 0x8000000")
        d("s_mov_b32 s11, 0x00020000")
        d("s_waitcnt lgkmcnt(0)")
        d("s_mov_b32 s8, s6")
        d("s_and_b32 s9, s7, 0xffff")
        for k in range(16):
            d("s_mov_b32 s12, 0x%x" % (0x4000000 + k * 1024))
            d("buffer_load_dwordx4 v[%d:%d], v1, s[8:11], s12 offen" % (4 + 4 * k, 7 + 4 * k))
        d("s_waitcnt vmcnt(0)")
        d("v_readfirstlane_b32 s13, v4")
        d("v_mov_b32 v2, 0")
        d("v_mov_b32 v3, 0")
        for k in range(16):
            d("v_subrev_u32 v%d, s13, v%d" % (4 + 4 * k, 4 + 4 * k))
            d("v_subrev_u32 v%d, s13, v%d" % (5 + 4 * k, 4 + 4 * k + (P["diag"] & 3)))
            d("v_min_i32 v2, v2, v%d" % (4 + 4 * k))
            d("v_max_i32 v3, v3, v%d" % (5 + 4 * k))
        d("s_mov_b32 s14, 0")
        d("s_mov_b32 s15, 0")
        for l in range(64):
            d("v_readlane_b32 s18, v2, %d" % l)
            d("v_readlane_b32 s19, v3, %d" % l)
            d("s_nop 3")
            d("s_min_i32 s14, s14, s18")
            d("s_max_i32 s15, s15, s19")
        if P["diag"] & 4:
            d("s_sub_u32 s14, s16, s13")
            d("s_sub_u32 s15, s14, s15")
        else:
            d("s_sub_u32 s15, s15, s14")
        d("s_sub_u32 s15, s15, %d" % P["doff"])
        d("s_max_i32 s15, s15, 0")
        d("s_min_i32 s15, s15, 10000")
        d("s_mul_i32 s15, s15, %d" % P["dmul"])
        d("s_add_u32 s15, s15, s16")
        d.label("L_dl")
        d("s_memrealtime s[18:19]")
        d("s_waitcnt lgkmcnt(0)")
        d("s_sub_u32 s18, s18, s15")
        d("s_cmp_lt_i32 s18, 0")
        d("s_cbranch_scc1 L_dl")
        d.lines.append("L_dx:")
        d("s_endpgm")
        diag = d.text()
    out = HEADER.replace("gen.py", "gen6.py").format(params=" ".join("%s=%s" % kv for kv in sorted(P.items())))
    if FU:
        out += "; @launch kernel=%s grid=(%d,1,1) block=(%d,1,1) lds=%d\n" % (k1, NWG, (NW + NHX) * 64, LDS1)
    else:
        out += "; @launch kernel=%s grid=(%d,1,1) block=(%d,1,1) lds=%d\n" % (k1, NWG, (NW + NHX) * 64, LDS1)
        out += "; @launch kernel=%s grid=(%d,1,1) block=(%d,1,1) lds=%d\n" % (k2, H, DH, 0)
    if diag:
        out += "; @launch kernel=diag_kernel grid=(1,1,1) block=(64,1,1) lds=0\n"
    out += '.amdgcn_target "amdgcn-amd-amdhsa--gfx950"\n.text\n'
    out += main_text if FU else e.text()
    out += diag
    out += '.section .rodata,"a"\n.p2align 6\n'
    out += kd(k1, NVGPR + (8 if P["xb"] else 2 if P["stamp"] == 5 else 0), 102)
    if not FU:
        out += ".p2align 6\n"
        out += kd(k2, NV2, 24)
    if diag:
        out += ".p2align 6\n"
        out += kd("diag_kernel", 72, 24)
    return out


DEFAULTS = dict(grp="6-6-6", n0=3, trg=1, ta=14, tb=15, jit=1, pace=1, nr0=1, nr=3, nt="nt", ldspad=0, stamp=0, xkp=0, force=0, clip=1400,
                l2t=290, th=200, pf=1, ob=2, ox=0, ds=1, td=3, tdm=3, fuse=1, cw=1,
                lx=0, wo=0, ns0=4, tw=4, ov="0000", st="sc1", xv="", h4=0, bnt=0, vw=1, at=1, tc=40, tg=2, te=44, aq=16, ka=9, kb=2048, dmin=0, dmax=11,
                bc=1, cpk="9-17-25-33-41", cpv="1-9-17-25-33", rd=2, ka2=8, kb2=512, bmax=6, be=1, pw=2, il=1, xp=0, ss=0, eb=0, pfi=0, hs=0, l2p=0, gts="16-32-48-64-80", gn=8, gtol=25, gcap=1000, gq=0, gl2=0, xb=0, diag=0, doff=20000, dmul=8, fc=4, elk=1, cd=9, fd=0, prio=0, bp=0, bp0=0, bq=0, wl=2048, wt=9984, sw=1, dc=1, xs=0, cx=0)


def main():
    P = dict(DEFAULTS)
    outp = None
    args = sys.argv[1:]
    i = 0
    while i < len(args):
        a = args[i]
        if a == "-o":
            outp = args[i + 1]; i += 2; continue
        k, v = a.split("=", 1)
        assert k in P, k
        P[k] = type(P[k])(v.replace("+", " ")) if isinstance(P[k], str) else int(v)
        i += 1
    s = gen(P)
    if outp:
        open(outp, "w").write(s)
    else:
        sys.stdout.write(s)


if __name__ == "__main__":
    main()
```

```python
import re
import sys
import math
from gen import f32hex, HEADER, NAME, H, SKV, DH, G, NGRP, ROWB, HEADB
from gen4 import Emit4

PART_STRIDE = 1024
NW = 4
NH = 3
NWG = 256
NT = 48
WS_G = 8 << 20
FSTR = 4096 + 256
WS_ML = 0xe0000
WS_B = 0x120000
WS_L = 2 << 20
WS_T = 0x9c0000
WS_SIZE = 10 << 20
BIGNEG = 0xf149f2ca


def gen(P):
    global WS_L, WS_T
    WS_L = P["wl"] << 10
    WS_T = P["wt"] << 10
    assert P["sw"] or not P["dc"]
    GR = [int(x) for x in P["grp"].split("-")]
    assert sum(GR) == 18 and len(GR) >= 2
    NG = len(GR)
    GOFF = [sum(GR[:k]) for k in range(NG)]
    OV = [int(x) for x in P["ov"]]
    N0 = P["n0"]
    NR = P["nr"]
    TRG1 = N0 - P["trg"]
    TA = P["ta"]
    TB = P["tb"]
    assert 2 <= TRG1 < N0 < TA < TB < 16 and 1 <= NR <= 7 and N0 <= 8
    pol = (" " + P["nt"]) if P["nt"] else ""
    C = (DH ** -0.5) * math.log2(math.e)
    L_DEC = 0
    L_GO = 24
    L_PC = 36
    L_CF = 40
    L_FD = 52
    L_EV = 56
    L_CA = 64
    L_ML = 80
    L_TC = 128
    L_TD = 132
    L_EL = 136
    L_TM = 144
    L_GT = 208
    L_LG = 256
    PHI = 6144
    IMG = 3 * PHI
    L_PV = L_LG + IMG
    L_ACC = L_PV + 192 * 128
    LDS1 = max(L_ACC + 3 * NW * ROWB, P["ldspad"])

    e = Emit4()
    V_T = 1; V_J16 = 2; V_J8 = 3; V_LB0 = 4; V_PB0 = 5; V_PV = 6; V_PVN = 7; V_DO = 8; V_PO = 9; V_T0 = 10; V_T1 = 11
    V_ACC = 12; V_W = 24; V_RAW = 36
    V_OFF = 48; V_OFF6 = 49; V_TM = 50; V_BIG = 51; V_T2 = 52; V_Z = 53
    V_S = 54
    V_D = 60
    V_T128 = 62; V_TMX = 63
    V_RING = 64
    NVGPR = V_RING + 72
    S_G = 3; S_M = 4; S_N = 5; S_SPIN = 6; S_LDC = 7
    S_K = 8; S_V = 12; S_KS = 16; S_Q = 20; S_WS = 24
    S_WAVE = 28; S_CI = 29; S_I = 30; S_QOFF = 31
    S_T = 32
    S_EV = 40; S_STM = 42; S_HB = 44; S_768 = 45; S_384 = 46; S_MAGIC = 47
    S_NB = 48; S_TD = 49; S_XB = 50; S_LB = 53
    S_ST = 54; S_DBG = 56
    S_BO = 59; S_TW = 60; S_CPA = 62; S_NBO = 63; S_BP = 72
    S_MP = 64; S_MG = 66; S_MR = 68; S_MO = 70
    BC = P["bc"]
    NHX = NH + (1 if BC else 0)
    CPK = [int(x) for x in P["cpk"].split("-")] if BC and P["cpk"] else []
    CPV = [int(x) for x in P["cpv"].split("-")] if BC and P["cpv"] else []
    if BC:
        CPV.append(P["tc"])
        assert P["te"] == P["tc"] + P["tg"] + P["rd"] and len(CPK) + len(CPV) <= 16

    GTS = [int(x) for x in P["gts"].split("-")] if BC and P["gts"] else []

    def set_masks(ev, cps):
        mp = sum(1 << c for c in cps)
        allm = [(S_EV, ev | mp | (mp << P["tg"]) | (mp << (P["tg"] + P["rd"])))]
        if BC:
            allm += [(S_MP, mp), (S_MG, mp << P["tg"]), (S_MR, mp << (P["tg"] + P["rd"])), (S_MO, ev)]
        for r, v in allm:
            assert v < (1 << 48)
            e("s_mov_b32 s%d, 0x%x" % (r, v & 0xffffffff))
            e("s_mov_b32 s%d, 0x%x" % (r + 1, v >> 32))

    FU = P["fuse"]
    k1 = NAME + "_kernel" if FU else "part_kernel"
    e.lines.append(".globl %s" % k1)
    e.lines.append(".p2align 8")
    e.lines.append(".type %s,@function" % k1)
    e.lines.append(k1 + ":")
    e("s_cmp_ge_u32 s2, %d" % NWG)
    e("s_cbranch_scc1 L_exit1")
    e("s_load_dwordx16 s[64:79], s[0:1], 0")
    e("s_load_dwordx4 s[80:83], s[0:1], 64")
    if P["stamp"]:
        e("s_memrealtime s[%d:%d]" % (S_ST, S_ST + 1))
    e("v_lshrrev_b32 v%d, 6, v0" % V_T0)
    e("v_and_b32 v%d, 63, v0" % V_T1)
    e("v_readfirstlane_b32 s%d, v%d" % (S_WAVE, V_T0))
    if P["eb"] == 4:
        e("v_lshlrev_b32 v%d, 2, v%d" % (V_T0, V_T1))
        e("v_mov_b32 v%d, 0" % V_Z)
        e("ds_write_b32 v%d, v%d" % (V_T0, V_Z))
    e("s_lshr_b32 s%d, s2, 3" % S_G)
    e("s_and_b32 s%d, s2, 7" % S_M)
    e("s_lshr_b32 s%d, s2, 6" % S_T)
    e("s_xor_b32 s%d, s%d, s%d" % (S_T, S_T, S_M))
    e("s_lshr_b32 s%d, s%d, 1" % (S_NB, S_T))
    e("s_and_b32 s%d, s%d, 1" % (S_T, S_T))
    e("s_lshl_b32 s%d, s%d, 2" % (S_T, S_T))
    e("s_or_b32 s%d, s%d, s%d" % (S_NB, S_NB, S_T))
    if P["eb"] != 4:
        e("s_cmp_ge_u32 s%d, %d" % (S_WAVE, NW))
        e("s_cbranch_scc1 L_helper")

    def srd(dst, ptr, nbytes):
        e("s_mov_b32 s%d, s%d" % (dst, ptr))
        e("s_and_b32 s%d, s%d, 0xffff" % (dst + 1, ptr + 1))
        e("s_mov_b32 s%d, %d" % (dst + 2, nbytes))
        e("s_mov_b32 s%d, 0x00020000" % (dst + 3))

    def lds_wait(tag, vz, vt, st, off, cond, spin, vaddr=None):
        e("s_mov_b32 s%d, 0x100000" % spin)
        e.label("L_w" + tag)
        e("ds_read_b32 v%d, v%d offset:%d" % (vt, vz if vaddr is None else vaddr, off))
        e("s_sub_u32 s%d, s%d, 1" % (spin, spin))
        e("s_cbranch_scc1 L_exit1")
        e("s_waitcnt lgkmcnt(0)")
        e("v_readfirstlane_b32 s%d, v%d" % (st, vt))
        if cond == "nz":
            e("s_cmp_eq_u32 s%d, 0" % st)
        else:
            e("s_cmp_lt_u32 s%d, %s" % (st, cond))
        e("s_cbranch_scc1 L_w" + tag)

    def gate(b, tag, check):
        if b not in GTS:
            return
        if check:
            e("s_cmp_eq_u32 s%d, %d" % (S_I, b % 48))
            e("s_cbranch_scc0 L_gx" + tag)
        e("s_memrealtime s[%d:%d]" % (S_T + 4, S_T + 5))
        lds_wait("g" + tag, V_Z, V_T0, S_T, L_GT + 4 * GTS.index(b), "nz", S_SPIN)
        e("s_and_b32 s%d, s%d, 0xffff" % (S_T, S_T))
        e("s_cbranch_scc0 L_gx" + tag)
        if P["stamp"] == 5:
            e("s_lshl_b32 s%d, s%d, 16" % (S_T + 1, S_T))
            e("s_add_u32 s%d, s%d, s%d" % (S_NBO, S_NBO, S_T + 1))
        e("s_add_u32 s%d, s%d, s%d" % (S_T, S_T, S_T + 4))
        e.label("L_gl" + tag)
        e("s_memrealtime s[%d:%d]" % (S_T + 4, S_T + 5))
        e("s_waitcnt lgkmcnt(0)")
        e("s_sub_u32 s%d, s%d, s%d" % (S_T + 4, S_T + 4, S_T))
        e("s_cmp_lt_i32 s%d, 0" % (S_T + 4))
        e("s_cbranch_scc1 L_gl" + tag)
        e.label("L_gx" + tag)

    def get_table(kind, tag):
        if tag == "tv":
            gate(48, tag, False)
        else:
            for b in ((16, 32) if kind == "K" else (64, 80)):
                gate(b, "%s%d" % (tag, b), True)
        e("s_lshr_b32 s%d, s%d, 4" % (S_T + 1, S_I))
        e("s_lshl_b32 s%d, s%d, 2" % (S_T + 2, S_T + 1))
        if P["stamp"] == 6:
            e("s_memrealtime s[%d:%d]" % (S_T + 4, S_T + 5))
            e("s_lshl_b32 s%d, s2, 2" % S_T)
            e("s_add_u32 s%d, s%d, s%d" % (S_T, S_T, S_WAVE))
            e("s_cmp_eq_u32 s%d, 400" % S_T)
            e("s_cselect_b64 exec, 1, 0")
            e("s_waitcnt lgkmcnt(0)")
            e("s_sub_u32 s%d, s%d, s%d" % (S_T + 4, S_T + 4, S_ST))
            e("v_mov_b32 v%d, s%d" % (V_T1, S_T + 4))
            e("buffer_store_dword v%d, off, s[%d:%d], s%d offset:%d" % (V_T1, S_WS, S_WS + 3, S_T + 2, 40 if kind == "K" else 52))
            e("s_mov_b64 exec, -1")
        e("v_mov_b32 v%d, s%d" % (V_T1, S_T + 2))
        if kind == "K":
            load_q(S_T + 1, False)
        lds_wait(tag, V_Z, V_T0, S_T, L_DEC if kind == "K" else L_GO, "nz", S_SPIN, V_T1)
        e("s_and_b32 s%d, s%d, 7" % (S_N, S_T))
        e("s_xor_b32 s%d, s%d, s%d" % (S_N, S_N, S_NB))
        e("s_bitcmp1_b32 s%d, 3" % S_T)
        e("s_cselect_b64 vcc, -1, 0")
        e("v_cndmask_b32 v%d, v%d, v%d, vcc" % (V_TM, V_T128, V_TMX))

    def load_q(ph, track):
        e("s_lshl_b32 s%d, s%d, 5" % (S_QOFF, ph))
        e("s_add_u32 s%d, s%d, s%d" % (S_QOFF, S_QOFF, S_G))
        e("s_mul_i32 s%d, s%d, 171" % (S_QOFF, S_QOFF))
        e("s_lshr_b32 s%d, s%d, 9" % (S_QOFF, S_QOFF))
        e("s_mul_i32 s%d, s%d, %d" % (S_QOFF, S_QOFF, DH * 2))
        for c in range(3):
            r = V_RAW + 2 * c
            s = "buffer_load_dwordx2 v[%d:%d], v%d, s[%d:%d], s%d offen offset:%d" % (r, r + 1, V_J8, S_Q, S_Q + 3, S_QOFF, c * 128)
            if track:
                e.vmem(s, "p")
            else:
                e(s)

    def tile_addr(kind):
        ch, a, b = S_T, S_T + 1, S_T + 2
        e("s_lshr_b32 s%d, s%d, 6" % (a, S_CI))
        e("s_lshl_b32 s%d, s%d, 11" % (a, a))
        e("s_and_b32 s%d, s%d, 63" % (ch, S_CI))
        e("s_add_u32 s%d, s%d, s%d" % (ch, ch, a))
        e("s_add_u32 s%d, s%d, s%d" % (ch, ch, S_HB))
        e("s_bfe_u32 s%d, s%d, 0x20003" % (a, ch))
        e("s_and_b32 s%d, s%d, 4" % (b, ch))
        e("s_or_b32 s%d, s%d, s%d" % (a, a, b))
        e("s_xor_b32 s%d, s%d, s%d" % (a, a, S_N))
        e("s_lshl_b32 s%d, s%d, 5" % (S_XB, ch))
        e("s_or_b32 s%d, s%d, s%d" % (S_XB, S_XB, a))
        e("s_lshl_b32 s%d, s%d, 4" % (S_XB, S_XB))
        e("s_or_b32 s%d, s%d, 1" % (S_XB, S_XB))
        if kind == "V":
            e("s_lshl_b32 s%d, s%d, 7" % (S_LB, S_CI))
            if P["ut"]:
                e("s_cmp_ge_u32 s%d, %d" % (S_I, NT - P["ut"]))
                e("s_cselect_b64 vcc, -1, 0")
                e("v_cndmask_b32 v%d, v%d, v%d, vcc" % (V_TM, V_TM, V_TMX))
        e("v_xor_b32 v%d, s%d, v%d" % (V_T0, S_XB, V_TM))
        e("v_mul_hi_u32 v%d, v%d, s%d" % (V_T0, V_T0, S_MAGIC))
        e("v_lshrrev_b32 v%d, 1, v%d" % (V_T0, V_T0))
        e("v_and_b32 v%d, 15, v%d" % (V_T1, V_T0))
        e("v_cmp_eq_u32 vcc, 5, v%d" % V_T1)
        e("v_mad_u32_u24 v%d, v%d, s%d, v%d" % (V_OFF, V_T0, S_768, V_J16))
        e("v_add_u32 v%d, %d, v%d" % (V_T1, 5 * ROWB, V_OFF))
        e("v_cndmask_b32 v%d, v%d, v%d, vcc" % (V_OFF6, V_BIG, V_T1))
        if kind == "K":
            e("v_lshrrev_b32 v%d, 6, v%d" % (V_T0, V_T0))
            e("v_mad_u32_u24 v%d, v%d, s%d, v%d" % (V_PO, V_T0, S_384, V_J8))
        else:
            e("v_add_u32 v%d, s%d, v%d" % (V_T0, S_LB, V_PB0))

    def issue_params(kind):
        if kind == "K":
            if P["xkp"] & 2:
                return
            for c in range(3):
                r = V_RAW + 6 + 2 * c
                e.vmem("buffer_load_dwordx2 v[%d:%d], v%d, s[%d:%d], 0 offen offset:%d%s" %
                       (r, r + 1, V_PO, S_KS, S_KS + 3, c * 128, " nt" if P["bnt"] & 4 else ""), "p")
            if P["xb"] & 2:
                for c in range(3):
                    r = NVGPR + 2 + 2 * c
                    e.vmem("buffer_load_dwordx2 v[%d:%d], v%d, s[%d:%d], 0 offen offset:%d" % (r, r + 1, V_PO, 76, 79, c * 128), "p")
        else:
            e("ds_read_b32 v%d, v%d" % (V_PVN, V_T0))

    def issue_group(k, kind, pol=pol):
        srdb = S_K if kind == "K" else S_V
        for l in range(GOFF[k], GOFF[k] + GR[k]):
            r = V_RING + l * 4
            if l < 15:
                vo, off = V_OFF, l * 256
            else:
                vo, off = V_OFF6, (l - 15) * 256
            e.vmem("buffer_load_dwordx4 v[%d:%d], v%d, s[%d:%d], 0 offen offset:%d%s" %
                   (r, r + 3, vo, srdb, srdb + 3, off, pol), "g%d" % k)

    def compute_w():
        e.wait_tag("p")
        for p in range(6):
            rq = V_RAW + p; rs = V_RAW + 6 + p
            i0 = 2 * p
            e("v_lshlrev_b32 v%d, 16, v%d" % (V_T0, rq))
            e("v_lshlrev_b32 v%d, 16, v%d" % (V_W + i0, rs))
            e("v_and_b32 v%d, 0xffff0000, v%d" % (V_T1, rq))
            e("v_and_b32 v%d, 0xffff0000, v%d" % (V_W + i0 + 1, rs))
            e("v_mul_f32 v%d, v%d, v%d" % (V_W + i0, V_W + i0, V_T0))
            e("v_mul_f32 v%d, v%d, v%d" % (V_W + i0 + 1, V_W + i0 + 1, V_T1))

    def advance(kind, to_v, tag):
        nkind = "V" if to_v else kind
        if to_v:
            e("s_mov_b32 s%d, s%d" % (S_CI, S_WAVE))
            e("s_mov_b32 s%d, 0" % S_I)
            get_table("V", "tv")
            ev = (1 << 16) | (1 << 32)
            if P["at"] and not BC:
                ev |= (1 << P["tc"]) | (1 << (P["tc"] + P["tg"])) | (1 << P["te"])
            e("s_mov_b32 s%d, %d" % (S_TD, NT - P["td"] if P["td"] else 255))
            set_masks(ev, CPV)
        else:
            e("s_add_u32 s%d, s%d, %d" % (S_CI, S_CI, NW))
            e("s_add_u32 s%d, s%d, 1" % (S_I, S_I))
            if tag:
                e("s_bitcmp1_b64 s[%d:%d], s%d" % (S_EV, S_EV + 1, S_I))
                sfx = tag if isinstance(tag, str) else ""
                e("s_cbranch_scc1 L_ev%s%s" % (kind, sfx))
                e.flush()
                e.label("L_evret%s%s" % (kind, sfx))
        if P["stamp"] == 4:
            e("s_memrealtime s[%d:%d]" % (S_DBG, S_DBG + 1))
            e("s_add_u32 s%d, s%d, 4" % (S_DBG + 2, S_DBG + 2))
            e("s_waitcnt lgkmcnt(0)")
            e("v_mov_b32 v%d, s%d" % (V_T2, S_DBG))
            e("s_mov_b64 exec, 1")
            e("buffer_store_dword v%d, off, s[%d:%d], s%d" % (V_T2, S_WS, S_WS + 3, S_DBG + 2))
            e("s_mov_b64 exec, -1")
        if P["stamp"] == 5:
            e("s_memrealtime s[%d:%d]" % (S_DBG, S_DBG + 1))
            e("s_add_u32 m0, m0, 1")
            e("s_waitcnt lgkmcnt(0)")
            e("v_writelane_b32 v%d, s%d, m0" % (NVGPR + (1 if kind == "V" else 0), S_DBG))
            if to_v:
                e("s_mov_b32 m0, -1")
        tile_addr(nkind)
        issue_params(nkind)

    def compute(k, kind):
        for l in range(GOFF[k], GOFF[k] + GR[k]):
            q, c = l // 3, l % 3
            base = V_RING + l * 4
            for r in range(4):
                e("v_cvt_f32_i32 v%d, v%d" % (base + r, base + r))
            if kind == "K":
                s = V_S + q
                for r in range(4):
                    if c == 0 and r == 0:
                        e("v_mul_f32 v%d, v%d, v%d" % (s, base, V_W))
                    else:
                        e("v_fmac_f32 v%d, v%d, v%d" % (s, base + r, V_W + 4 * c + r))
                if c == 2:
                    e.defer(["v_add_f32_dpp v%d, v%d, v%d row_ror:%d row_mask:0xf bank_mask:0xf" % (s, s, s, kk)
                             for kk in (8, 4, 2)] +
                            ["v_add_f32_dpp v%d, v%d, v%d row_ror:1 row_mask:0xf bank_mask:0x%x" %
                             (V_D + (q & 1), s, s, 1 << (q >> 1))])
            else:
                for r in range(4):
                    e("v_fmac_f32_dpp v%d, v%d, v%d row_newbcast:%d row_mask:0xf bank_mask:0xf" %
                      (V_ACC + 4 * c + r, V_PV, base + r, q))
        e.flush()

    def finish(kind, to_v):
        if kind == "K":
            e("s_mov_b64 exec, s[%d:%d]" % (S_STM, S_STM + 1))
            e("ds_write_b64 v%d, v[%d:%d]" % (V_LB0, V_D, V_D + 1))
            e("s_mov_b64 exec, -1")
            if not to_v:
                e("v_add_u32 v%d, 48, v%d" % (V_LB0, V_LB0))
                compute_w()
        if kind == "V" or to_v:
            e("s_waitcnt lgkmcnt(0)")
            e("v_mov_b32 v%d, v%d" % (V_PV, V_PVN))

    ELS = []

    def elect(k, kind, lo=0):
        if P["fc"] == 4 and kind == "V" and k == max(P["elk"], lo):
            tag = "L_el%d" % len(ELS)
            ELS.append(tag)
            e("s_cmp_eq_u32 s%d, %d" % (S_I, NT))
            e("s_cbranch_scc1 %s" % tag)
            e.lines.append(tag + "r:")

    def body(kind, to_v=False, first=False):
        nkind = "V" if to_v else kind
        for k in range(NG):
            ov = OV[k] if not first else 0
            if ov:
                i = e.vm.index("g%d" % k) + GR[k] - ov
                e("s_waitcnt vmcnt(%d)" % (len(e.vm) - i))
                e.vm = e.vm[i:]
            else:
                e.wait_tag("g%d" % k)
            if k + 1 < NG:
                if not first:
                    issue_group(k + 1, kind)
            else:
                issue_group(0, nkind)
            if ov:
                e("s_waitcnt vmcnt(%d)" % (len(e.vm) - ov))
                e.vm = e.vm[ov:]
            if k == NG - 2:
                advance(kind, to_v, not first)
            elect(k, kind, NG - 2)
            compute(k, kind)
        finish(kind, to_v)

    def body_deep(mode):
        if mode == 3:
            advance("V", False, False)
        for k in range(NG):
            i = e.vm.index("g%d" % k) + GR[k]
            e("s_waitcnt vmcnt(%d)" % (len(e.vm) - i))
            e.vm = e.vm[i:]
            if mode == 2:
                issue_group((k + 2) % NG, "V")
                if k == NG - 3:
                    advance("V", False, False)
            elect(k, "V")
            compute(k, "V")
            if mode == 3:
                issue_group(k, "V", "" if P["xkp"] & 256 else pol)
        finish("V", False)

    def body_boost(kind):
        for k in range(1, NG):
            issue_group(k, kind)
        e("s_sub_u32 s%d, s%d, 1" % (S_BO, S_BO))
        if P["stamp"] == 5:
            e("s_add_u32 s%d, s%d, 256" % (S_NBO, S_NBO))
        advance(kind, False, "B")
        for k in range(NG):
            e.wait_tag("g%d" % k)
            if k == NG - 1 and not P["be"]:
                issue_group(0, kind)
            elect(k, kind)
            compute(k, kind)
            if k == 0 and P["be"]:
                issue_group(0, kind)
        finish(kind, False)

    def lds_inc(off, vz, vt):
        e("v_mov_b32 v%d, 1" % vt)
        e("s_mov_b64 exec, 1")
        e("ds_add_u32 v%d, v%d offset:%d" % (vz, vt, off))
        e("s_mov_b64 exec, -1")

    if P["prio"]:
        e("s_setprio %d" % P["prio"])
    e("v_lshrrev_b32 v%d, 4, v%d" % (V_T, V_T1))
    e("v_and_b32 v%d, 15, v%d" % (V_T2, V_T1))
    e("v_lshlrev_b32 v%d, 4, v%d" % (V_J16, V_T2))
    e("v_lshlrev_b32 v%d, 3, v%d" % (V_J8, V_T2))
    e("v_lshlrev_b32 v%d, 7, v%d" % (V_T128, V_T))
    e("v_and_b32 v%d, 0x70, v0" % V_TMX)
    e("v_or_b32 v%d, v%d, v%d" % (V_TMX, V_TMX, V_T128))
    e("v_mov_b32 v%d, v%d" % (V_TM, V_TMX))
    if P["h4"]:
        e("v_and_b32 v%d, 0x%x, v%d" % (V_T128, 0xffffff8f | (P["h4"] << 4), V_TMX))
    e("s_mov_b32 s%d, %d" % (S_768, ROWB))
    e("s_mov_b32 s%d, %d" % (S_384, DH * 2))
    e("s_mov_b32 s%d, 0xaaaaaaab" % S_MAGIC)
    e("v_mov_b32 v%d, 0xc0000000" % V_BIG)
    e("s_lshl_b32 s%d, s%d, 6" % (S_HB, S_G))
    e("s_mov_b32 s%d, s%d" % (S_N, S_NB))
    e("s_mov_b32 s%d, s%d" % (S_CI, S_WAVE))
    tile_addr("K")
    SS = P["ss"]
    EB = P["eb"]
    if SS:
        e("s_memrealtime s[84:85]")
    if EB == 3:
        e("s_barrier")
    e("s_waitcnt lgkmcnt(0)")
    if SS:
        e("s_memrealtime s[86:87]")
    if EB == 2:
        e("s_barrier")
    if EB == 4:
        e("s_cmp_ge_u32 s%d, %d" % (S_WAVE, NW))
        e("s_barrier")
        e("s_cbranch_scc1 L_helper")
    e("s_mov_b32 s%d, 0" % S_I)
    if P["xb"] & 2:
        srd(76, 72, H * NGRP * DH * 2)
    if P["pfi"]:
        srd(S_Q, 64, H * DH * 2)
        load_q(S_I, True)
        srd(S_KS, 70, H * NGRP * DH * 2)
        issue_params("K")
    srd(S_K, 66, H * HEADB)
    issue_group(0, "K")
    if EB == 1:
        e("s_barrier")
    if not P["pfi"]:
        srd(S_Q, 64, H * DH * 2)
        load_q(S_I, True)
        srd(S_KS, 70, H * NGRP * DH * 2)
        issue_params("K")
    if P["ds"]:
        for k in range(1, NG):
            issue_group(k, "K")
    if SS:
        e("s_memrealtime s[88:89]")
    srd(S_V, 68, H * HEADB)
    if P["stamp"] == 6:
        srd(S_WS, 80, 256)
    elif P["stamp"]:
        srd(S_WS, 82, 0x8000000)
    if P["stamp"] == 5:
        e("s_mov_b32 m0, -1")
    if P["stamp"] in (4, 5):
        e("s_mul_i32 s%d, s2, %d" % (S_DBG + 2, NW))
        e("s_add_u32 s%d, s%d, s%d" % (S_DBG + 2, S_DBG + 2, S_WAVE))
        e("s_lshl_b32 s%d, s%d, 9" % (S_DBG + 2, S_DBG + 2))
        e("s_add_u32 s%d, s%d, 0x4010000" % (S_DBG + 2, S_DBG + 2))
    e("v_lshlrev_b32 v%d, 5, v%d" % (V_T1, V_T))
    e("v_bfe_u32 v%d, v0, 4, 3" % V_LB0)
    e("v_mul_u32_u24 v%d, s%d, v%d" % (V_LB0, S_768, V_LB0))
    e("v_lshl_add_u32 v%d, v%d, 1, v%d" % (V_LB0, V_T2, V_LB0))
    e("s_lshr_b32 s%d, s%d, 1" % (S_T, S_WAVE))
    e("s_mul_i32 s%d, s%d, 24" % (S_T, S_T))
    e("s_add_u32 s%d, s%d, %d" % (S_T, S_T, L_LG))
    e("v_add_u32 v%d, s%d, v%d" % (V_LB0, S_T, V_LB0))
    e("v_and_b32 v%d, 7, v%d" % (V_PB0, V_T2))
    e("v_lshl_add_u32 v%d, v%d, 2, v%d" % (V_PB0, V_PB0, V_T1))
    e("v_add_u32 v%d, %d, v%d" % (V_PB0, L_PV, V_PB0))
    e("v_lshlrev_b32 v%d, 2, v%d" % (V_DO, V_T))
    e("v_add_u32 v%d, v%d, v%d" % (V_DO, V_J16, V_DO))
    e("s_mul_i32 s%d, s%d, %d" % (S_T, S_WAVE, ROWB))
    e("s_add_u32 s%d, s%d, %d" % (S_T, S_T, L_ACC))
    e("v_add_u32 v%d, s%d, v%d" % (V_DO, S_T, V_DO))
    e("v_mov_b32 v%d, 0" % V_Z)
    e("v_mov_b32 v%d, 0" % V_D)
    e("v_mov_b32 v%d, 0" % (V_D + 1))
    e("s_mov_b32 s%d, 0x01110111" % S_STM)
    e("s_mov_b32 s%d, 0x01110111" % (S_STM + 1))
    ev = (1 << TRG1) | (1 << N0) | (3 << 16) | (3 << 32) | (((1 << TA) | (1 << TB)) * 0x100010001)
    set_masks(ev, CPK)
    if BC:
        e("s_mov_b32 s%d, %d" % (S_BO, P["ib"] & 15))
        e("s_mov_b32 s%d, 0" % S_NBO)
        e("s_mov_b32 s%d, 0" % S_LDC)
        e("s_mov_b32 s%d, %d" % (S_CPA, L_TM))
    for i in range(12):
        e("v_mov_b32 v%d, 0" % (V_ACC + i))
    if SS:
        e("s_memrealtime s[90:91]")
    if not EB:
        e("s_barrier")
    if SS:
        e("s_memrealtime s[92:93]")
        e("s_waitcnt vmcnt(23)")
        e("s_memrealtime s[94:95]")
        e("s_waitcnt vmcnt(18)")
        e("s_memrealtime s[96:97]")
    compute_w()
    if SS:
        e("s_memrealtime s[98:99]")
        e("s_waitcnt lgkmcnt(0)")
        for k in range(8):
            e("v_writelane_b32 v%d, s%d, %d" % (NVGPR + 1, 84 + 2 * k, 48 + k))
    steady = ["g0"] * GR[0]
    if P["fb"]:
        advance("K", False, False)
        for k in range(NG):
            if "g%d" % k in e.vm:
                i = e.vm.index("g%d" % k) + GR[k]
                e("s_waitcnt vmcnt(%d)" % (len(e.vm) - i))
                e.vm = e.vm[i:]
            compute(k, "K")
            if k == P["fb"] - 1:
                issue_group(0, "K")
        finish("K", False)
        assert e.vm == steady, (e.vm, steady)
    elif P["ds"]:
        body("K", first=True)
    if P["ib"] & 16:
        e("s_branch L_kchk")
    e.vm = list(steady)
    e.lines.append(".p2align 6")
    e.label("L_kloop")
    body("K")
    assert e.vm == steady, (e.vm, steady)
    if BC:
        e.label("L_kchk")
        e("s_cmp_lg_u32 s%d, 0" % S_BO)
        e("s_cbranch_scc1 L_kboost")
        e.label("L_kchk2")
    e("s_cmp_lg_u32 s%d, %d" % (S_I, NT - 1))
    e("s_cbranch_scc1 L_kloop")
    body("K", True)
    lds_inc(L_CF + 8, V_Z, V_T1)
    if P["stamp"] == 1:
        e("s_memrealtime s[%d:%d]" % (S_DBG, S_DBG + 1))
    e.lines.append(".p2align 6")
    e.label("L_vloop")
    body("V")
    assert e.vm == steady, (e.vm, steady)
    if BC:
        e.label("L_vchk")
    if P["td"] or P["at"]:
        e("s_cmp_eq_u32 s%d, s%d" % (S_I, S_TD))
        e("s_cbranch_scc1 L_deep")
    if BC:
        e("s_cmp_lg_u32 s%d, 0" % S_BO)
        e("s_cbranch_scc1 L_vboost")
    e("s_and_b32 s%d, s%d, 15" % (S_T, S_I))
    e("s_cbranch_scc1 L_vloop")
    e.label("L_vend")
    for c in range(3):
        a = V_ACC + 4 * c
        e("v_permlane32_swap_b32 v%d, v%d" % (a, a + 2))
        e("v_permlane32_swap_b32 v%d, v%d" % (a + 1, a + 3))
    for c in range(3):
        a = V_ACC + 4 * c
        e("v_add_f32 v%d, v%d, v%d" % (a, a, a + 2))
        e("v_add_f32 v%d, v%d, v%d" % (a + 1, a + 1, a + 3))
    for c in range(3):
        a = V_ACC + 4 * c
        e("v_permlane16_swap_b32 v%d, v%d" % (a, a + 1))
    e("s_lshr_b32 s%d, s%d, 2" % (S_T, S_I))
    e("v_mov_b32 v%d, s%d" % (V_T0, S_T))
    for c in range(3):
        a = V_ACC + 4 * c
        e("v_add_f32 v%d, v%d, v%d" % (a, a, a + 1))
        e("ds_write_b32 v%d, v%d offset:%d" % (V_DO, a, c * 256))
    lds_inc(L_CA - 4, V_T0, V_T1)
    e("v_add_u32 v%d, %d, v%d" % (V_DO, NW * ROWB, V_DO))
    for i in range(12):
        e("v_mov_b32 v%d, 0" % (V_ACC + i))
    if BC:
        e("s_cmp_lg_u32 s%d, 0" % S_BO)
        e("s_cbranch_scc1 L_vboost2")
        e.label("L_vend2")
    e("s_cmp_lg_u32 s%d, %d" % (S_I, NT))
    e("s_cbranch_scc1 L_vloop")
    if P["stamp"] == 5 and BC:
        e("s_or_b32 s%d, s%d, s%d" % (S_LDC, S_LDC, S_NBO))
    if P["stamp"] == 6:
        e("s_memrealtime s[%d:%d]" % (S_T + 2, S_T + 3))
        e("s_not_b32 s%d, s%d" % (S_T, S_ST))
        e("v_mov_b32 v%d, s%d" % (V_ACC, S_T))
        e("s_waitcnt lgkmcnt(0)")
        e("v_mov_b32 v%d, s%d" % (V_ACC + 1, S_T + 2))
        e("s_mov_b64 exec, 1")
        e("s_cmp_lg_u32 s%d, 0" % S_WAVE)
        e("s_cbranch_scc1 L_exit1")
        e("buffer_atomic_umax v%d, off, s[%d:%d], 0 offset:32" % (V_ACC, S_WS, S_WS + 3))
        e("buffer_atomic_umax v%d, off, s[%d:%d], 0 offset:36" % (V_ACC + 1, S_WS, S_WS + 3))
    elif P["stamp"]:
        e("s_memrealtime s[%d:%d]" % (S_T + 2, S_T + 3))
        e("s_getreg_b32 s%d, hwreg(HW_REG_XCC_ID)" % (S_T + 4))
        e("s_waitcnt lgkmcnt(0)")
        e("v_mov_b32 v%d, s%d" % (V_ACC + 0, S_ST))
        e("v_mov_b32 v%d, s%d" % (V_ACC + 1, S_T + 2))
        e("v_mov_b32 v%d, s%d" % (V_ACC + 2, S_T + 4))
        e("v_mov_b32 v%d, s%d" % (V_ACC + 3, S_LDC if P["stamp"] == 5 else S_DBG))
        e("s_mul_i32 s%d, s2, %d" % (S_T, NW))
        e("s_add_u32 s%d, s%d, s%d" % (S_T, S_T, S_WAVE))
        e("s_lshl_b32 s%d, s%d, 4" % (S_T, S_T))
        e("s_add_u32 s%d, s%d, 0x4000000" % (S_T, S_T))
        e("buffer_store_dwordx4 v[%d:%d], v%d, s[%d:%d], s%d offen" % (V_ACC, V_ACC + 3, V_Z, S_WS, S_WS + 3, S_T))
        if P["stamp"] == 5:
            e("v_and_b32 v%d, 63, v0" % V_T0)
            e("v_lshlrev_b32 v%d, 2, v%d" % (V_T0, V_T0))
            e("s_mov_b32 exec_hi, 0xffff")
            e("buffer_store_dword v%d, v%d, s[%d:%d], s%d offen offset:4" % (NVGPR, V_T0, S_WS, S_WS + 3, S_DBG + 2))
            e("s_mov_b32 exec_hi, -1")
            e("buffer_store_dword v%d, v%d, s[%d:%d], s%d offen offset:196" % (NVGPR + 1, V_T0, S_WS, S_WS + 3, S_DBG + 2))
    e.lines.append("L_exit1:")
    e("s_endpgm")

    if P["td"] or P["at"]:
        e.label("L_deep")
        e.vm = list(steady)
        for k in range(1, P["tdm"] if NG == 3 else NG):
            issue_group(k, "V")
        deep = list(e.vm)
        e.lines.append(".p2align 6")
        e.label("L_dloop")
        body_deep(P["tdm"])
        assert e.vm == deep, (e.vm, deep)
        e("s_cmp_lg_u32 s%d, %d" % (S_I, NT))
        e("s_cbranch_scc1 L_dloop")
        e("s_branch L_vend")

    if BC:
        e.label("L_kboost")
        e("s_cmp_eq_u32 s%d, %d" % (S_I, NT - 1))
        e("s_cbranch_scc1 L_kchk2")
        e.vm = list(steady)
        body_boost("K")
        assert e.vm == steady, (e.vm, steady)
        e("s_branch L_kchk")
        e.label("L_vboost")
        e("s_and_b32 s%d, s%d, 15" % (S_T, S_I))
        e("s_cbranch_scc0 L_vend")
        e.label("L_vboost2")
        e("s_cmp_eq_u32 s%d, %d" % (S_I, NT))
        e("s_cbranch_scc1 L_vend2")
        body_boost("V")
        assert e.vm == steady, (e.vm, steady)
        e("s_branch L_vchk")

    for tag in ELS:
        e.label(tag)
        lds_inc(L_EL, V_Z, V_T1)
        e("s_branch %sr" % tag)

    def pace_events(kind, x):
        e("s_bitcmp1_b64 s[%d:%d], s%d" % (S_MP, S_MP + 1, S_I))
        e("s_cbranch_scc0 L_pa%s%s" % (kind, x))
        e("s_memrealtime s[%d:%d]" % (S_TW, S_TW + 1))
        e("s_mov_b32 s%d, s%d" % (S_BP, S_BO))
        lds_inc(L_TC, V_Z, V_T1)
        e.label("L_pa%s%s" % (kind, x))
        e("s_bitcmp1_b64 s[%d:%d], s%d" % (S_MG, S_MG + 1, S_I))
        e("s_cbranch_scc0 L_pb%s%s" % (kind, x))
        lds_inc(L_TC, V_Z, V_T1)
        e.label("L_pb%s%s" % (kind, x))
        e("s_bitcmp1_b64 s[%d:%d], s%d" % (S_MR, S_MR + 1, S_I))
        e("s_cbranch_scc0 L_pc%s%s" % (kind, x))
        e("v_mov_b32 v%d, s%d" % (V_T1, S_CPA))
        e("ds_read_b32 v%d, v%d" % (V_T0, V_T1))
        lds_inc(L_TC, V_Z, V_T1)
        e("s_add_u32 s%d, s%d, 4" % (S_CPA, S_CPA))
        e("s_waitcnt lgkmcnt(0)")
        e("v_readfirstlane_b32 s%d, v%d" % (S_T, V_T0))
        e("s_cmp_eq_u32 s%d, 0" % S_T)
        e("s_cbranch_scc1 L_pc%s%s" % (kind, x))
        e("s_sub_u32 s%d, s%d, s%d" % (S_T, S_TW, S_T))
        e("s_max_i32 s%d, s%d, -4096" % (S_T, S_T))
        e("s_min_i32 s%d, s%d, 4096" % (S_T, S_T))
        if kind == "V":
            e("s_cmp_eq_u32 s%d, %d" % (S_I, P["te"]))
            e("s_cbranch_scc0 L_pd%s" % x)
            e("s_mul_i32 s%d, s%d, %d" % (S_T, S_T, P["ka"]))
            e("s_add_u32 s%d, s%d, %d" % (S_T, S_T, P["kb"]))
            e("s_ashr_i32 s%d, s%d, 10" % (S_T, S_T))
            e("s_max_i32 s%d, s%d, %d" % (S_T, S_T, P["dmin"]))
            e("s_min_i32 s%d, s%d, %d" % (S_T, S_T, min(P["dmax"], NT - P["te"])))
            e("s_sub_u32 s%d, %d, s%d" % (S_TD, NT, S_T))
            e("s_cmp_eq_u32 s%d, %d" % (S_TD, NT))
            e("s_cselect_b32 s%d, 255, s%d" % (S_TD, S_TD))
            e("s_mov_b32 s%d, 0" % S_BO)
            if P["stamp"] == 5:
                e("s_mov_b32 s%d, s%d" % (S_LDC, S_TD))
            e("s_branch L_pc%s%s" % (kind, x))
            e.label("L_pd%s" % x)
        e("s_mul_i32 s%d, s%d, %d" % (S_T, S_T, P["ka2"]))
        e("s_add_u32 s%d, s%d, %d" % (S_T, S_T, P["kb2"]))
        e("s_ashr_i32 s%d, s%d, 10" % (S_T, S_T))
        e("s_sub_u32 s%d, s%d, s%d" % (S_T, S_T, S_BP))
        e("s_add_u32 s%d, s%d, s%d" % (S_T, S_T, S_BO))
        e("s_max_i32 s%d, s%d, 0" % (S_T, S_T))
        e("s_min_i32 s%d, s%d, %d" % (S_BO, S_T, P["bmax"]))
        e.label("L_pc%s%s" % (kind, x))
        e("s_bitcmp1_b64 s[%d:%d], s%d" % (S_MO, S_MO + 1, S_I))
        e("s_cbranch_scc0 L_evret%s%s" % (kind, x))

    for x in (("", "B") if BC else ("",)):
        e.label("L_evK" + x)
        if BC:
            pace_events("K", x)
        e("s_and_b32 s%d, s%d, 15" % (S_T, S_I))
        e("s_cbranch_scc0 L_evK2" + x)
        e("s_cmp_eq_u32 s%d, %d" % (S_I, N0))
        e("s_cbranch_scc1 L_evK2" + x)
        e("s_lshr_b32 s%d, s%d, 2" % (S_T + 1, S_I))
        e("s_andn2_b32 s%d, s%d, 3" % (S_T + 1, S_T + 1))
        e("s_add_u32 s%d, s%d, %d" % (S_T + 1, S_T + 1, L_CF - 4))
        e("s_cmp_eq_u32 s%d, 1" % S_T)
        e("s_cselect_b32 s%d, s%d, %d" % (S_T, S_T + 1, L_EV + 4))
        e("s_cselect_b32 s%d, %d, 0" % (S_T + 1, PHI - 768))
        e("v_add_u32 v%d, s%d, v%d" % (V_LB0, S_T + 1, V_LB0))
        e("s_cmp_eq_u32 s%d, %d" % (S_I, TRG1))
        e("s_cselect_b32 s%d, %d, s%d" % (S_T, L_EV, S_T))
        e("v_mov_b32 v%d, s%d" % (V_T0, S_T))
        lds_inc(0, V_T0, V_T1)
        e("s_branch L_evretK" + x)
        e.label("L_evK2" + x)
        if P["stamp"] == 2:
            e("s_cmp_eq_u32 s%d, %d" % (S_I, N0))
            e("s_cbranch_scc0 L_ns2")
            e("s_memrealtime s[%d:%d]" % (S_DBG, S_DBG + 1))
            e.label("L_ns2")
        get_table("K", "tk" + x)
        if P["stamp"] == 3:
            e("s_cmp_eq_u32 s%d, %d" % (S_I, N0))
            e("s_cbranch_scc0 L_evretK")
            e("s_memrealtime s[%d:%d]" % (S_DBG, S_DBG + 1))
        e("s_branch L_evretK" + x)
        e.label("L_evV" + x)
        if BC:
            pace_events("V", x)
        elif P["at"]:
            e("s_and_b32 s%d, s%d, 15" % (S_T, S_I))
            e("s_cbranch_scc0 L_evV2")
            e("s_cmp_eq_u32 s%d, %d" % (S_I, P["te"]))
            e("s_cbranch_scc1 L_evV3")
            lds_inc(L_TC, V_Z, V_T1)
            e("s_branch L_evretV")
            e.label("L_evV3")
            e("ds_read_b32 v%d, v%d offset:%d" % (V_T0, V_Z, L_TD))
            e("s_waitcnt lgkmcnt(0)")
            e("v_readfirstlane_b32 s%d, v%d" % (S_T, V_T0))
            e("s_cmp_eq_u32 s%d, 0" % S_T)
            e("s_cselect_b32 s%d, s%d, s%d" % (S_TD, S_TD, S_T))
            if P["stamp"] == 5:
                e("s_mov_b32 s%d, s%d" % (S_LDC, S_T))
            e("s_branch L_evretV")
            e.label("L_evV2")
        get_table("V", "tv2" + x)
        e("s_branch L_evretV" + x)

    PG = S_G; PM = S_M
    PNB = 5; PP = 6; PBK = 7
    PB = 8; PWS = 12; PDB = 16
    PO = 20; PFL = 21; PBASE = 22; PPR = 90
    PD = 24
    POF = 32
    PT = 40
    PMN = 44; PJ = 45; PRN = 46; PNR = 47
    PE = 48
    PRB = 56; PACC = 58; PGL = 59; PSP = 60; PPH = 61; PSG = 62; PG0 = 63
    PDC = 84
    PS2 = 92; PS3 = 96
    HL = 1; HZ = 2; HW = 3; HA = 4; HB_ = 5; HC = 6; HD = 7; HK = 8; HV = 9; HE = 10; HF = 11; HR = 12; HG = 13
    HN = 14; HT2 = 15
    HX = 16
    BIAS = 65536
    e.wr = {}; e.tr = {}
    e.label("L_helper")
    e("s_sub_u32 s%d, s%d, %d" % (PP, S_WAVE, NW))
    e("s_mov_b32 s%d, s%d" % (PNB, S_NB))
    e("v_and_b32 v%d, 63, v0" % HL)
    e("v_mov_b32 v%d, 0" % HZ)
    e("s_mul_i32 s%d, s%d, %d" % (PGL, PG, 8 * FSTR))
    e("s_add_u32 s%d, s%d, %d" % (PGL, PGL, WS_G))
    if EB and EB != 4:
        e("s_cmp_lg_u32 s%d, 0" % PP)
        e("s_cbranch_scc1 L_hbar")
        e("v_lshlrev_b32 v%d, 2, v%d" % (HB_, HL))
        e("ds_write_b32 v%d, v%d" % (HB_, HZ))
        e("s_waitcnt lgkmcnt(0)")
        e.label("L_hbar")
        e("s_barrier")
    if BC:
        e("s_cmp_eq_u32 s%d, 3" % PP)
        e("s_cbranch_scc1 L_h3")
    e("s_mul_i32 s%d, s%d, 10" % (PE, PP))
    e("s_sub_u32 s%d, s%d, 7" % (PE, PE))
    e("s_cmp_lt_i32 s%d, s%d" % (PG, PE))
    e("s_cselect_b32 s%d, 1, 0" % PPR)
    e("s_cbranch_scc0 L_noprobe1")
    e("s_max_u32 s%d, s%d, 1" % (PBK, PG))
    e("s_sub_u32 s%d, s%d, 1" % (PBK, PBK))
    e("s_lshr_b32 s%d, s%d, 1" % (PBK, PBK))
    e("s_lshl_b32 s%d, s%d, 1" % (PE + 1, PG))
    e("s_add_u32 s%d, s%d, s%d" % (PE + 1, PE + 1, PP))
    e("s_sub_u32 s%d, s%d, 1" % (PE + 1, PE + 1))
    e("s_bitcmp1_b32 s%d, 0" % PG)
    e("s_cselect_b32 s%d, 1, 4" % PE)
    e("s_cmp_eq_u32 s%d, 0" % PBK)
    e("s_cselect_b32 s%d, s%d, s%d" % (PE + 1, PE + 1, PE))
    e("s_and_b32 s%d, s%d, 1" % (PE, PE + 1))
    e("s_mul_i32 s%d, s%d, 20" % (PO, PE + 1))
    e("s_add_u32 s%d, s%d, s%d" % (PO, PO, PE))
    e("s_add_u32 s%d, s%d, 2" % (PO, PO))
    e("s_lshl_b32 s%d, s%d, 21" % (PO, PO))
    e("s_xor_b32 s%d, s%d, s%d" % (PFL, PM, PP))
    e("s_and_b32 s%d, s%d, 1" % (PFL, PFL))
    e("s_lshr_b32 s%d, s%d, 2" % (PE + 1, PM))
    e("s_xor_b32 s%d, s%d, s%d" % (PE, PE, PE + 1))
    e("s_xor_b32 s%d, s%d, s%d" % (PE, PE, PFL))
    e("s_lshl_b32 s%d, s%d, 13" % (PE, PE))
    e("s_lshl_b32 s%d, s%d, 14" % (PE + 1, PP))
    e("s_and_b32 s%d, s%d, 0x4000" % (PE + 1, PE + 1))
    e("s_or_b32 s%d, s%d, s%d" % (PE, PE, PE + 1))
    for u in range(8):
        e("s_xor_b32 s%d, s%d, 0x%x" % (POF + u, PE, ((u & 1) << 13) | (((u >> 1) & 1) << 12) | ((u >> 2) << 14)))
    e("v_and_b32 v%d, 7, v%d" % (HW, HL))
    e("v_lshlrev_b32 v%d, 12, v%d" % (HW, HW))
    e("s_lshl_b32 s%d, s%d, 8" % (PE, PM))
    e("v_add_u32 v%d, s%d, v%d" % (HW, PE, HW))
    e("s_mov_b32 s%d, %d" % (PB + 2, H * HEADB))
    e("s_mov_b32 s%d, 0x00020000" % (PB + 3))
    e("s_cmp_ge_u32 s%d, 3" % PBK)
    e("s_cselect_b32 s%d, 3, 0" % PE)
    e("s_sub_u32 s%d, s%d, s%d" % (PE, PBK, PE))
    e("s_lshl_b32 s%d, s%d, 28" % (PE, PE))
    e("s_add_u32 s%d, s%d, s%d" % (PO, PO, PE))
    e("s_cmp_ge_u32 s%d, 3" % PBK)
    e("s_waitcnt lgkmcnt(0)")
    e("s_cselect_b32 s%d, s68, s66" % PB)
    e("s_cselect_b32 s%d, s69, s67" % (PBASE + 1))
    e("s_and_b32 s%d, s%d, 0xffff" % (PB + 1, PBASE + 1))
    if not P["sw"]:
        e("s_mov_b64 exec, 0xff")
        e("buffer_load_dword v%d, v%d, s[%d:%d], s%d offen" % (HA, HW, PB, PB + 3, PO))
        e("s_mov_b64 exec, -1")
    e("s_add_u32 s%d, s%d, s%d" % (PBASE, PB, PO))
    e("s_addc_u32 s%d, s%d, 0" % (PBASE + 1, PBASE + 1))
    e("s_lshl_b32 s%d, s%d, 8" % (PE, PM))
    if P["sw"]:
        e("s_add_u32 s%d, s%d, s%d" % (PRB, PBASE, PE))
        e("s_addc_u32 s%d, s%d, 0" % (PRB + 1, PBASE + 1))
        for u in range(8):
            e("s_load_dword s%d, s[%d:%d], 0x%x" % (PD + u, PRB, PRB + 1, u * 4096))
        if P["dc"]:
            assert not P["wo"]
            srd(PWS, 82, WS_SIZE)
            e("s_lshl_b32 s%d, s2, 1" % PE)
            e("s_add_u32 s%d, s%d, s%d" % (PE, PE, PP))
            e("s_mul_i32 s%d, s%d, %d" % (PE, PE, 6 * FSTR))
            e("s_add_u32 s%d, s%d, %d" % (PE, PE, WS_G - 6 * FSTR))
            e("v_mul_u32_u24 v%d, %d, v%d" % (HB_, FSTR, HL))
            e("v_mov_b32 v%d, 0" % (HZ + 1))
            e("s_cmp_eq_u32 s%d, 0" % PBK)
            e("s_cselect_b64 exec, 0x3f, 0")
            e("buffer_store_dwordx2 v[%d:%d], v%d, s[%d:%d], s%d offen sc1" % (HZ, HZ + 1, HB_, PWS, PWS + 3, PE))
            e("s_mov_b64 exec, -1")
        for k in range(1, P["sw"]):
            e("s_waitcnt lgkmcnt(0)")
            e("s_load_dword s%d, s[%d:%d], 0x%x" % (PD, PRB, PRB + 1, k * 4096 + 128))
    else:
        e("s_add_u32 s%d, s%d, 128" % (PE, PE))
        e("s_load_dword s%d, s[%d:%d], s%d" % (PJ, PBASE, PBASE + 1, PE))
    e.label("L_noprobe1")
    e("s_waitcnt lgkmcnt(0)")
    srd(PWS, 82, WS_SIZE)
    if P["wo"]:
        e("s_add_u32 s%d, s%d, %d" % (PWS, PWS, P["wo"] << 20))
        e("s_addc_u32 s%d, s%d, 0" % (PWS + 1, PWS + 1))
    srd(PDB, 80, 256)
    if not EB:
        e("s_cmp_lg_u32 s%d, 0" % PP)
        e("s_cbranch_scc1 L_hbar")
        e("v_lshlrev_b32 v%d, 2, v%d" % (HB_, HL))
        e("ds_write_b32 v%d, v%d" % (HB_, HZ))
        e("s_waitcnt lgkmcnt(0)")
        e.label("L_hbar")
        e("s_barrier")
    if P["hs"]:
        e("s_mov_b32 s%d, 0" % (PD + 4))
    e("s_cmp_eq_u32 s%d, 0" % PPR)
    e("s_cbranch_scc1 L_role")
    e("s_mov_b32 s%d, 1" % PRN)
    e("s_mov_b32 s%d, 0" % PACC)
    e("s_cmp_eq_u32 s%d, 0" % PBK)
    e("s_cselect_b32 s%d, %d, %d" % (PNR, P["nr0"], NR))
    if not P["sw"]:
        e("s_waitcnt vmcnt(0)")
    e.label("L_round")
    e("s_add_u32 s%d, s%d, s%d" % (PE, PM, PRN))
    e("s_and_b32 s%d, s%d, 7" % (PE, PE))
    e("s_lshl_b32 s%d, s%d, 8" % (PE, PE))
    e("s_add_u32 s%d, s%d, s%d" % (PRB, PBASE, PE))
    e("s_addc_u32 s%d, s%d, 0" % (PRB + 1, PBASE + 1))
    e("s_mov_b32 s%d, -1" % PMN)
    e("s_memtime s[%d:%d]" % (PT, PT + 1))
    e("s_waitcnt lgkmcnt(0)")
    for u in range(8):
        a = PT + 2 * (u & 1); b = PT + 2 * ((u + 1) & 1)
        e("s_load_dword s%d, s[%d:%d], s%d" % (PJ, PRB, PRB + 1, POF + u))
        e("s_waitcnt lgkmcnt(0)")
        e("s_memtime s[%d:%d]" % (b, b + 1))
        e("s_waitcnt lgkmcnt(0)")
        e("s_sub_u32 s%d, s%d, s%d" % (PD + u, b, a))
        if u + 1 == P["ns0"] and u < 7:
            for k in range(u + 1, 8):
                e("s_mov_b32 s%d, -1" % (PD + k))
            e("s_cmp_eq_u32 s%d, 0" % PBK)
            e("s_cbranch_scc1 L_few")
    e.label("L_few")
    for u in range(8):
        e("s_min_u32 s%d, s%d, %d" % (PD + u, PD + u, P["clip"]))
        e("s_min_u32 s%d, s%d, s%d" % (PMN, PMN, PD + u))
    e("s_cmp_lt_u32 s%d, %d" % (PMN, P["l2t"]))
    e("s_cbranch_scc1 L_skip")
    for u in range(8):
        e("s_%s_u32 s%d, s%d, s%d" % ("add" if u & 1 else "sub", PACC, PACC, PD + u))
    e.label("L_skip")
    e("s_add_u32 s%d, s%d, 1" % (PRN, PRN))
    e("s_cmp_le_u32 s%d, s%d" % (PRN, PNR))
    e("s_cbranch_scc1 L_round")
    e("s_sub_u32 s%d, 0, s%d" % (PE, PACC))
    e("s_cmp_eq_u32 s%d, 0" % PFL)
    e("s_cselect_b32 s%d, s%d, s%d" % (PACC, PACC, PE))
    e("s_add_u32 s%d, s%d, 0x%x" % (PACC, PACC, BIAS + (1 << 24)))
    e("v_mov_b32 v%d, s%d" % (HA, PACC))
    e("s_mov_b64 exec, 1")
    e("s_lshl_b32 s%d, s%d, 2" % (PE, PBK))
    e("s_add_u32 s%d, s%d, 124" % (PE, PE))
    e("s_cmp_eq_u32 s%d, 0" % PBK)
    e("s_cbranch_scc0 L_post")
    if P["dc"]:
        e("s_waitcnt vmcnt(0)")
    e("ds_add_rtn_u32 v%d, v%d, v%d offset:%d" % (HB_, HZ, HA, L_PC))
    e("s_mov_b32 s%d, 0" % PE)
    e("s_waitcnt lgkmcnt(0)")
    e("v_add_u32 v%d, v%d, v%d" % (HA, HA, HB_))
    e("v_cmp_ne_u32 vcc, 0, v%d" % HB_)
    e("s_and_b64 exec, exec, vcc")
    if P["vw"]:
        e("buffer_atomic_add v%d, off, s[%d:%d], s%d" % (HA, PDB, PDB + 3, PE))
        e("s_branch L_posted")
        e.label("L_post")
        lds_wait("vw", HZ, HE, PE, L_DEC, "nz", PSP)
        e("s_mul_i32 s%d, s%d, %d" % (PE, PG, FSTR))
        e("s_add_u32 s%d, s%d, %d" % (PE, PE, WS_G + 253 * FSTR))
        e("buffer_atomic_add v%d, off, s[%d:%d], s%d" % (HA, PWS, PWS + 3, PE))
        e.label("L_posted")
    else:
        e.label("L_post")
        e("buffer_atomic_add v%d, off, s[%d:%d], s%d" % (HA, PDB, PDB + 3, PE))
    e("s_mov_b64 exec, -1")
    if P["hs"]:
        if P["hs"] == 2:
            e("s_waitcnt vmcnt(0)")
        e("s_memrealtime s[%d:%d]" % (PD + 4, PD + 5))
    e.label("L_role")
    e("s_cmp_eq_u32 s%d, 0" % PP)
    e("s_cbranch_scc1 L_h0")
    e("s_cmp_eq_u32 s%d, 2" % PP)
    e("s_cbranch_scc1 L_h2")

    def wave_reduce(regs, op, tmp):
        for kk in (8, 4, 2, 1):
            for r in regs:
                e("%s_dpp v%d, v%d, v%d row_ror:%d row_mask:0xf bank_mask:0xf" % (op, r, r, r, kk))
        for sw in ("v_permlane32_swap_b32", "v_permlane16_swap_b32"):
            for r, t in zip(regs, tmp):
                e("v_mov_b32 v%d, v%d" % (t, r))
            for r, t in zip(regs, tmp):
                e("%s v%d, v%d" % (sw, r, t))
            for r, t in zip(regs, tmp):
                e("%s v%d, v%d, v%d" % (op, r, r, t))

    def decode(tag, nl, off, cnt, rounds, dst, b0):
        vw = b0 and P["vw"]
        lds_wait("e" + tag, HZ, HE, PE, L_EV + (4 if b0 else 0), "nz" if b0 else str(P["tw"]), PSP)
        if vw:
            e("v_mul_u32_u24 v%d, %d, v%d" % (HD, FSTR, HL))
            e("s_mov_b32 s%d, %d" % (PE, WS_G + 256 * FSTR))
            e("v_lshrrev_b32 v%d, 1, v%d" % (HB_, HB_))
        e("s_mov_b64 exec, 0x%x" % ((1 << (2 * nl if vw else nl)) - 1))
        e("s_mov_b32 s%d, 0x40000" % PSP)
        if P["hs"] and not b0:
            e("s_memrealtime s[%d:%d]" % (PD, PD + 1))
        if P["l2p"] and not b0:
            e("buffer_load_dword v%d, v%d, s[%d:%d], 0 offen offset:%d" % (HA, HB_, PDB, PDB + 3, off))
            e("s_branch L_pollw" + tag)
        if not P["xkp"] & 4:
            e.label("L_poll" + tag)
            if vw:
                e("buffer_load_dword v%d, v%d, s[%d:%d], s%d offen sc1" % (HA, HD, PWS, PWS + 3, PE))
            else:
                e("buffer_load_dword v%d, v%d, s[%d:%d], 0 offen offset:%d sc1" % (HA, HB_, PDB, PDB + 3, off))
            e("s_sub_u32 s%d, s%d, 1" % (PSP, PSP))
            e("s_cbranch_scc1 L_exit1")
            e.lines.append("L_pollw%s:" % tag)
            e("s_waitcnt vmcnt(0)")
            e("v_lshrrev_b32 v%d, 24, v%d" % (HC, HA))
            e("v_cmp_ne_u32 vcc, %d, v%d" % (cnt // 2 if vw else cnt, HC))
            e("s_cbranch_vccnz L_poll" + tag)
        if vw:
            e("v_add_u32_dpp v%d, v%d, v%d quad_perm:[1,0,3,2] row_mask:0xf bank_mask:0xf" % (HA, HA, HA))
            e("s_mov_b64 exec, 0x%x" % (0x5555 & ((1 << (2 * nl)) - 1)))
        th = P["th"] * cnt * rounds * (8 if b0 else P["ns0"]) // 8
        e("v_and_b32 v%d, 0xffffff, v%d" % (HA, HA))
        e("v_subrev_u32 v%d, %d, v%d" % (HA, cnt * BIAS, HA))
        if P["stamp"] == 6 and b0:
            e("s_cmp_lg_u32 s2, 100")
            e("s_cbranch_scc1 L_nodbg")
            e("buffer_store_dword v%d, v%d, s[%d:%d], 0 offen offset:4" % (HA, HB_, PDB, PDB + 3))
            e.label("L_nodbg")
        e("v_lshrrev_b32 v%d, 30, v%d" % (HC, HA))
        e("v_and_b32 v%d, 2, v%d" % (HC, HC))
        e("v_add_u32 v%d, %d, v%d" % (HA, th, HA))
        e("v_cmp_gt_u32 vcc, %d, v%d" % (2 * th, HA))
        e("v_cndmask_b32 v%d, v%d, 8, vcc" % (HC, HC))
        if P["force"] == 1:
            e("v_mov_b32 v%d, 8" % HC)
        if P["force"] >= 2:
            e("s_mov_b32 s%d, 0x%x" % (PE, 0x7000000 + 128 * (P["force"] - 2)))
            e("s_load_dwordx4 s[%d:%d], s[82:83], s%d" % (PS2, PS2 + 3, PE))
            e("s_waitcnt lgkmcnt(0)")
            for l in range(nl):
                b = b0 + l
                e("s_lshr_b64 s[%d:%d], s[%d:%d], %d" % (PE, PE + 1, PS2 + 2 * (b // 3), PS2 + 2 * (b // 3) + 1, 16 * (b % 3)))
                e("s_and_b32 s%d, s%d, %d" % (PE, PE, P["ob"]))
                e("s_xor_b32 s%d, s%d, %d" % (PE, PE, P["ox"]))
                e("v_writelane_b32 v%d, s%d, %d" % (HC, PE, 2 * l if vw else l))
        e("v_or_b32 v%d, 16, v%d" % (HC, HC))
        if P["xv"] and vw:
            e("v_lshlrev_b32 v%d, 1, v%d" % (HA, HL))
            e("v_lshrrev_b32 v%d, v%d, %d" % (HA, HA, 0) if False else "v_mov_b32 v%d, 0x%x" % (HD, int(str(P["xv"])[::-1], 16)))
            e("v_lshrrev_b32 v%d, v%d, v%d" % (HA, HA, HD))
            e("v_and_b32 v%d, 7, v%d" % (HA, HA))
            e("v_xor_b32 v%d, v%d, v%d" % (HC, HC, HA))
        e("ds_write_b32 v%d, v%d offset:%d" % (HB_, HC, dst))
        if P["hs"] and not b0:
            e("s_memrealtime s[%d:%d]" % (PD + 2, PD + 3))
            srd(PS2, 82, 0x8000000)
            e("s_waitcnt lgkmcnt(0)")
            e("v_mov_b32 v%d, s%d" % (HX, PD))
            e("v_mov_b32 v%d, s%d" % (HX + 1, PD + 2))
            e("v_mov_b32 v%d, s%d" % (HX + 2, PSP))
            e("v_mov_b32 v%d, s%d" % (HX + 3, PD + 4))
            e("s_lshl_b32 s%d, s2, 4" % PE)
            e("s_add_u32 s%d, s%d, 0x4008000" % (PE, PE))
            e("buffer_store_dwordx4 v[%d:%d], off, s[%d:%d], s%d" % (HX, HX + 3, PS2, PS2 + 3, PE))
        e("s_mov_b64 exec, -1")

    if not P["dc"]:
        e("s_cmp_lg_u32 s2, %d" % (NWG - 1))
        e("s_cbranch_scc1 L_nolead")
        e("v_mul_u32_u24 v%d, %d, v%d" % (HB_, FSTR, HL))
        e("v_mov_b32 v%d, 0" % (HZ + 1))
        for k in range(5 if P["vw"] else 4):
            e("s_mov_b32 s%d, %d" % (PE + k, WS_G + k * 64 * FSTR))
            if k == 4:
                e("s_mov_b64 exec, 0x%x" % (0x1fffff if P["fc"] else 0x3ff))
            e("buffer_store_dwordx2 v[%d:%d], v%d, s[%d:%d], s%d offen sc1" % (HZ, HZ + 1, HB_, PWS, PWS + 3, PE + k))
        e("v_mov_b32 v%d, 0x%x" % (HA, BIAS + (1 << 24)))
        e("s_mov_b64 exec, 1")
        e("s_waitcnt vmcnt(0)")
        e("buffer_atomic_add v%d, off, s[%d:%d], 0" % (HA, PDB, PDB + 3))
        e("s_mov_b64 exec, -1")
        if P["hs"]:
            if P["hs"] == 2:
                e("s_waitcnt vmcnt(0)")
            e("s_memrealtime s[%d:%d]" % (PD + 4, PD + 5))
        e.label("L_nolead")
    e("v_lshlrev_b32 v%d, 2, v%d" % (HB_, HL))
    decode("a", 1, 0, 48 if P["dc"] else 49, P["nr0"], L_DEC, 0)
    decode("b", 5, 128, 16, NR, L_DEC + 4, 1)
    if P["lx"]:
        e("s_mul_i32 s%d, s%d, 43" % (PE, PG))
        e("s_lshr_b32 s%d, s%d, 8" % (PE, PE))
        e("s_mul_i32 s%d, s%d, 6" % (PE + 1, PE))
        e("s_sub_u32 s%d, s%d, s%d" % (PBK, PG, PE + 1))
        e("s_cmp_ge_u32 s%d, 3" % PBK)
        e("s_cselect_b32 s%d, s68, s66" % PB)
        e("s_cselect_b32 s%d, s69, s67" % (PBASE + 1))
        e("s_cselect_b32 s%d, 3, 0" % (PE + 1))
        e("s_sub_u32 s%d, s%d, s%d" % (PE + 1, PBK, PE + 1))
        e("s_lshl_b32 s%d, s%d, 28" % (PO, PE + 1))
        e("s_mul_i32 s%d, s%d, %d" % (PE, PE, 21 << 21))
        e("s_add_u32 s%d, s%d, s%d" % (PO, PO, PE))
        e("s_add_u32 s%d, s%d, %d" % (PO, PO, (7 << 21) + (1 << 20)))
        e("s_and_b32 s%d, s%d, 0xffff" % (PB + 1, PBASE + 1))
        e("s_mov_b32 s%d, %d" % (PB + 2, H * HEADB))
        e("s_mov_b32 s%d, 0x00020000" % (PB + 3))
        e("s_add_u32 s%d, s%d, %d" % (PE, PM, P["lx"]))
        e("s_and_b32 s%d, s%d, 7" % (PE, PE))
        e("s_lshl_b32 s%d, s%d, 9" % (PE, PE))
        e("v_lshlrev_b32 v%d, 12, v%d" % (HW, HL))
        e("v_add_u32 v%d, s%d, v%d" % (HW, PE, HW))
        for j in range(3):
            e("buffer_load_dword v%d, v%d, s[%d:%d], s%d offen offset:%d" % (HX + j, HW, PB, PB + 3, PO, j * 128))
        e("s_add_u32 s%d, s%d, s%d" % (PBASE, PB, PO))
        e("s_addc_u32 s%d, s%d, 0" % (PBASE + 1, PBASE + 1))
        e("s_lshl_b32 s%d, s%d, 9" % (PE, PM))
        e("s_add_u32 s%d, s%d, s%d" % (PBASE, PBASE, PE))
        e("s_addc_u32 s%d, s%d, 0" % (PBASE + 1, PBASE + 1))
        e("s_load_dword s%d, s[%d:%d], 384" % (PJ, PBASE, PBASE + 1))
        e("s_load_dword s%d, s[%d:%d], 0x20180" % (PJ, PBASE, PBASE + 1))
        e("s_waitcnt vmcnt(0) lgkmcnt(0)")
        lds_wait("lx", HZ, HE, PE, L_EV + 4, "8", PSP)
        for j in range(3):
            e("s_mov_b32 m0, 0")
            e("s_mov_b32 s%d, %d" % (PE, j * 128))
            e.label("L_lx%d" % j)
            e("s_memtime s[%d:%d]" % (PT, PT + 1))
            e("s_waitcnt lgkmcnt(0)")
            e("s_load_dword s%d, s[%d:%d], s%d" % (PJ, PBASE, PBASE + 1, PE))
            e("s_waitcnt lgkmcnt(0)")
            e("s_memtime s[%d:%d]" % (PT + 2, PT + 3))
            e("s_waitcnt lgkmcnt(0)")
            e("s_sub_u32 s%d, s%d, s%d" % (PT, PT + 2, PT))
            e("v_writelane_b32 v%d, s%d, m0" % (HX + j, PT))
            e("s_add_u32 s%d, s%d, 4096" % (PE, PE))
            e("s_add_u32 m0, m0, 1")
            e("s_cmp_lt_u32 m0, 64")
            e("s_cbranch_scc1 L_lx%d" % j)
        e("s_memrealtime s[%d:%d]" % (PT, PT + 1))
        e("s_waitcnt lgkmcnt(0)")
        e("v_mov_b32 v%d, s%d" % (HX + 3, PT))
        srd(PB, 82, 0x8000000)
        e("s_lshl_b32 s%d, s2, 10" % PE)
        e("s_add_u32 s%d, s%d, 0x4090000" % (PE, PE))
        e("v_lshlrev_b32 v%d, 4, v%d" % (HW, HL))
        e("buffer_store_dwordx4 v[%d:%d], v%d, s[%d:%d], s%d offen" % (HX, HX + 3, HW, PB, PB + 3, PE))
    if FU:
        CSC = 24; CMK = 56; CRB = 57; CO = 92
        e("s_and_b32 s%d, s%d, 7" % (PE, PG))
        e("s_cmp_lg_u32 s%d, s%d" % (PE, PM))
        e("s_cbranch_scc1 L_exit1")
        e("s_mul_i32 s%d, s%d, 3" % (PE, PG))
        e("s_add_u32 s%d, s%d, 2" % (PE, PE))
        e("s_lshr_b32 s%d, s%d, 5" % (PE, PE))
        e("s_lshl_b32 s%d, s%d, 2" % (PE, PE))
        e("v_mov_b32 v%d, s%d" % (HW, PE))
        e("s_mul_i32 s%d, s%d, 24" % (CRB, PG))
        e("v_add_u32 v%d, s%d, v%d" % (HG, CRB, HL))
        e("v_and_b32 v%d, 255, v%d" % (HR, HG))
        e("v_mul_u32_u24 v%d, %d, v%d" % (HR, FSTR, HR))
        e("v_lshlrev_b32 v%d, 6, v%d" % (HG, HG))
        e("s_mov_b32 s%d, %d" % (PE + 1, WS_G))
        e("s_mov_b32 s%d, %d" % (PE + 2, WS_ML))
        e("v_mov_b32 v%d, 0x%08x" % (HA, BIGNEG))
        e("v_mov_b32 v%d, 0" % HB_)
        if P["cd"]:
            th = [12 * (len(CPK) + min(j for j, c in enumerate(CPV) if c > b)) + P["cd"] for b in (16, 32, 4)]
            e("s_mov_b32 s%d, %d" % (PE + 3, th[0]))
            e("s_cmp_eq_u32 s%d, 4" % PE)
            e("s_cselect_b32 s%d, %d, s%d" % (PE + 3, th[1], PE + 3))
            e("s_cmp_eq_u32 s%d, 8" % PE)
            e("s_cselect_b32 s%d, %d, s%d" % (PE + 3, th[2], PE + 3))
            lds_wait("cg", HZ, HE, PE, L_TC, "s%d" % (PE + 3), PSP)
        else:
            lds_wait("cg", HZ, HE, PE, L_GO, "nz", PSP, HW)
        for tag, ld, chk in (("f", "buffer_load_dword v%d, v%d, s[%d:%d], s%d offen sc1" % (HD, HR, PWS, PWS + 3, PE + 1), HD),
                             ("m", "buffer_load_dwordx4 v[%d:%d], v%d, s[%d:%d], s%d offen sc1" % (HA, HD, HG, PWS, PWS + 3, PE + 2), HD)):
            e("s_mov_b64 exec, 0xffffff")
            e("s_mov_b32 s%d, 0x40000" % PSP)
            e.label("L_cp" + tag)
            e(ld)
            e("s_sub_u32 s%d, s%d, 1" % (PSP, PSP))
            e("s_cbranch_scc1 L_exit1")
            e("s_waitcnt vmcnt(0)")
            e("v_cmpx_eq_u32 vcc, 0, v%d" % chk)
            e("s_cbranch_execnz L_cp" + tag)
        e("s_mov_b64 exec, -1")
        e("v_mov_b32 v%d, v%d" % (HC, HA))
        wave_reduce([HC], "v_max_f32", [HD])
        e("v_sub_f32 v%d, v%d, v%d" % (HA, HA, HC))
        e("v_exp_f32 v%d, v%d" % (HA, HA))
        e("v_mul_f32 v%d, v%d, v%d" % (HB_, HB_, HA))
        wave_reduce([HB_], "v_add_f32", [HD])
        e("v_rcp_f32 v%d, v%d" % (HB_, HB_))
        e("v_mul_f32 v%d, v%d, v%d" % (HA, HA, HB_))
        if P["fc"]:
            e("s_cmp_lt_u32 s%d, 21" % PG)
            e("s_cbranch_scc1 L_cown")
            e("s_mul_i32 s%d, s%d, %d" % (PE, PG, FSTR))
            e("s_add_u32 s%d, s%d, %d" % (PE, PE, WS_G + 245 * FSTR))
            e("v_lshlrev_b32 v%d, 2, v%d" % (HR, HL))
            e("v_mov_b32 v%d, 1" % HB_)
            e("s_mov_b64 exec, 0xffffff")
            e("buffer_store_dword v%d, v%d, s[%d:%d], s%d offen offset:128 sc1" % (HA, HR, PWS, PWS + 3, PE))
            e("s_mov_b64 exec, 1")
            e("s_waitcnt vmcnt(0)")
            e("buffer_store_dword v%d, off, s[%d:%d], s%d offset:4 sc1" % (HB_, PWS, PWS + 3, PE))
            e("s_endpgm")
            e.label("L_cown")
        for r in range(24):
            e("v_readlane_b32 s%d, v%d, %d" % (CSC + r, HA, r))
        srd(CO, 78, H * DH * 2)
        e("s_lshl_b32 s%d, s%d, 10" % (CRB, CRB))
        e("v_lshlrev_b32 v%d, 4, v%d" % (HG, HL))
        e("v_add_u32 v%d, s%d, v%d" % (HG, CRB, HG))
        for k in range(1, 6):
            e("s_mov_b32 s%d, %d" % (PE + k, 4096 * k))
        for r in (HA, HB_, HC):
            e("v_mov_b32 v%d, 0" % r)
        e("s_mov_b32 s%d, 0xffffff" % CMK)
        e("v_lshlrev_b32 v%d, 1, v%d" % (HR, HL))
        e("s_mul_i32 s%d, s%d, %d" % (CRB, PG, DH * 2))
        lds_wait("cc", HZ, HE, PE, L_CA, "%d" % P["cw"], PSP, HW)
        e("s_mov_b32 s%d, 0x40000" % PSP)
        e.label("L_cr")
        for r in range(24):
            e("s_bitcmp0_b32 s%d, %d" % (CMK, r))
            e("s_cbranch_scc1 L_cl%d" % r)
            e("buffer_load_dwordx4 v[%d:%d], v%d, s[%d:%d], %s offen offset:%d sc1" %
              (HX + 4 * r, HX + 4 * r + 3, HG, PWS, PWS + 3, "s%d" % (PE + r // 4) if r >= 4 else "0", (r % 4) * 1024))
            e.lines.append("L_cl%d:" % r)
        e("s_sub_u32 s%d, s%d, 1" % (PSP, PSP))
        e("s_cbranch_scc1 L_exit1")
        e("s_waitcnt vmcnt(0)")
        for r in range(24):
            e("s_bitcmp0_b32 s%d, %d" % (CMK, r))
            e("s_cbranch_scc1 L_cv%d" % r)
            e("v_cmp_eq_u32 vcc, 0, v%d" % (HX + 4 * r + 3))
            e("s_cbranch_vccnz L_cv%d" % r)
            for k, a_ in enumerate((HA, HB_, HC)):
                e("v_fmac_f32 v%d, s%d, v%d" % (a_, CSC + r, HX + 4 * r + k))
            e("s_bitset0_b32 s%d, %d" % (CMK, r))
            e.lines.append("L_cv%d:" % r)
        e("s_cmp_lg_u32 s%d, 0" % CMK)
        e("s_cbranch_scc1 L_cr")
        for k, a_ in enumerate((HA, HB_, HC)):
            e("v_cvt_pk_bf16_f32 v%d, v%d, v%d" % (a_, a_, a_))
            e("buffer_store_short v%d, v%d, s[%d:%d], s%d offen offset:%d" % (a_, HR, CO, CO + 3, CRB, k * 128))
        if P["stamp"] == 5:
            e("s_memrealtime s[%d:%d]" % (PT, PT + 1))
            e("s_waitcnt vmcnt(0)")
            e("s_memrealtime s[%d:%d]" % (PT + 2, PT + 3))
            srd(PS2, 82, 0x8000000)
            e("s_waitcnt lgkmcnt(0)")
            e("v_mov_b32 v%d, s%d" % (HX, PT))
            e("v_mov_b32 v%d, s%d" % (HX + 1, PT + 2))
            e("v_mov_b32 v%d, s%d" % (HX + 2, PSP))
            e("s_lshl_b32 s%d, s%d, 4" % (PE, PG))
            e("s_add_u32 s%d, s%d, 0x4009000" % (PE, PE))
            e("s_mov_b64 exec, 1")
            e("buffer_store_dwordx4 v[%d:%d], off, s[%d:%d], s%d" % (HX, HX + 3, PS2, PS2 + 3, PE))
    e("s_endpgm")

    def seg_scalars():
        e("s_lshl_b32 s%d, s%d, 5" % (PSG, PPH))
        e("s_add_u32 s%d, s%d, s%d" % (PSG, PSG, PG))
        e("s_lshl_b32 s%d, s%d, 15" % (PG0, PSG))
        e("s_add_u32 s%d, s%d, 1" % (PG0, PG0))
        e("s_mul_hi_u32 s%d, s%d, 0xaaaaaaab" % (PG0, PG0))
        e("s_lshr_b32 s%d, s%d, 7" % (PG0, PG0))

    def get_dec(tag):
        lds_wait(tag, HZ, HE, PE, L_DEC + 20, "nz", PSP)
        e("ds_read_b128 v[%d:%d], v%d offset:%d" % (HX, HX + 3, HZ, L_DEC))
        e("ds_read_b64 v[%d:%d], v%d offset:%d" % (HX + 4, HX + 5, HZ, L_DEC + 16))
        e("s_waitcnt lgkmcnt(0)")
        for i in range(6):
            e("v_readfirstlane_b32 s%d, v%d" % (PDC + i, HX + i))

    e.label("L_h0")
    srd(PB, 64, H * DH * 2)
    srd(PS2, 70, H * NGRP * DH * 2)
    srd(PS3, 72, H * NGRP * DH * 2)
    e("v_lshrrev_b32 v%d, 4, v%d" % (HA, HL))
    e("v_and_b32 v%d, 15, v%d" % (HB_, HL))
    e("v_lshlrev_b32 v%d, 3, v%d" % (HC, HB_))
    e("v_mul_u32_u24 v%d, %d, v%d" % (HD, DH * 2, HA))
    e("v_add_u32 v%d, v%d, v%d" % (HD, HD, HC))
    e("v_lshl_add_u32 v%d, v%d, 2, v%d" % (HG, HB_, HA))
    e("v_lshlrev_b32 v%d, 2, v%d" % (HG, HG))
    BQ = HX; BS = HX + 12; BZ = BS + 36; BR = BZ + 36
    PFA = 32; PIA = 33
    e("v_lshlrev_b32 v%d, 4, v%d" % (HA, HL))
    e("s_mul_i32 s%d, s%d, %d" % (PFA, PNB, FSTR))
    e("s_add_u32 s%d, s%d, s%d" % (PFA, PFA, PGL))
    e("s_lshl_b32 s%d, s%d, 3" % (PIA, PG))
    e("s_add_u32 s%d, s%d, s%d" % (PIA, PIA, PNB))
    IMS = PHI if P["il"] else IMG
    PHS = NWG * PHI if P["il"] else PHI
    CX = P["cx"]
    if CX:
        assert N0 <= 4 and not P["xp"]
        IMS = 4096; PHS = NWG * IMS
        e("v_and_b32 v%d, 7, v%d" % (HN, HL))
        e("v_lshrrev_b32 v%d, 3, v%d" % (HE, HL))
        e("v_mul_u32_u24 v%d, 24, v%d" % (HK, HE))
        e("v_mov_b32 v%d, 768" % HF)
        e("v_mad_u32_u24 v%d, v%d, v%d, v%d" % (HK, HN, HF, HK))
        e("v_lshlrev_b32 v%d, 7, v%d" % (HN, HN))
        e("v_lshl_add_u32 v%d, v%d, 4, v%d" % (HN, HE, HN))
    e("s_mul_i32 s%d, s%d, %d" % (PIA, PIA, IMS))
    e("s_add_u32 s%d, s%d, %d" % (PIA, PIA, WS_L))

    def bias(ph):
        e("s_mov_b32 s%d, %d" % (PPH, ph))
        seg_scalars()
        e("s_mul_i32 s%d, s%d, 171" % (PE, PSG))
        e("s_lshr_b32 s%d, s%d, 9" % (PE, PE))
        e("s_mul_i32 s%d, s%d, %d" % (PE, PE, DH * 2))
        e("s_mul_i32 s%d, s%d, 24" % (PE + 1, PM))
        e("s_add_u32 s%d, s%d, s%d" % (PE + 2, PE + 1, PG0))
        e("s_mul_i32 s%d, s%d, %d" % (PE + 2, PE + 2, DH * 2))
        e("v_add_u32 v%d, s%d, v%d" % (HE, PE + 2, HD))
        e("v_add_u32 v%d, %d, v%d" % (HF, 8 * DH * 2, HE))
        e("v_add_u32 v%d, %d, v%d" % (HR, 16 * DH * 2, HE))
        for c in range(3):
            e("buffer_load_dwordx2 v[%d:%d], v%d, s[%d:%d], s%d offen offset:%d" % (BR + 2 * c, BR + 2 * c + 1, HC, PB, PB + 3, PE, c * 128))
        for st in range(6):
            va = (HE, HF, HR)[st // 2]
            for sr, bb in ((PS2, BS), (PS3, BZ)):
                for c in range(3):
                    r = bb + st * 6 + 2 * c
                    if P["xb"] & 1:
                        continue
                    e("buffer_load_dwordx2 v[%d:%d], v%d, s[%d:%d], 0 offen offset:%d%s" %
                      (r, r + 1, va, sr, sr + 3, (st & 1) * 4 * DH * 2 + c * 128,
                       " nt" if P["bnt"] & (1 if bb == BZ else 2) else ""))
                if P["bp"] == 2 and (ph or P["bp0"]):
                    e("s_waitcnt vmcnt(%d)" % P["bq"])
            if P["bp"] == 1 and (ph or P["bp0"]):
                e("s_waitcnt vmcnt(%d)" % P["bq"])
        e("s_waitcnt vmcnt(0)")
        for p in range(6):
            e("v_lshlrev_b32 v%d, 16, v%d" % (BQ + 2 * p, BR + p))
            e("v_and_b32 v%d, 0xffff0000, v%d" % (BQ + 2 * p + 1, BR + p))
        for st in range(6):
            acc = BR + st
            for p in range(6):
                rs = BS + st * 6 + p; rz = BZ + st * 6 + p
                e("v_lshlrev_b32 v%d, 16, v%d" % (HE, rs))
                e("v_lshlrev_b32 v%d, 16, v%d" % (HF, rz))
                e("v_and_b32 v%d, 0xffff0000, v%d" % (rs, rs))
                e("v_and_b32 v%d, 0xffff0000, v%d" % (rz, rz))
                e("v_mul_f32 v%d, v%d, v%d" % (HE, HE, BQ + 2 * p))
                e("v_mul_f32 v%d, v%d, v%d" % (rs, rs, BQ + 2 * p + 1))
                if p == 0:
                    e("v_mul_f32 v%d, v%d, v%d" % (acc, HE, HF))
                else:
                    e("v_fmac_f32 v%d, v%d, v%d" % (acc, HE, HF))
                e("v_fmac_f32 v%d, v%d, v%d" % (acc, rs, rz))
        for kk in (8, 4, 2, 1):
            for st in range(6):
                e("v_add_f32_dpp v%d, v%d, v%d row_ror:%d row_mask:0xf bank_mask:0xf" % (BR + st, BR + st, BR + st, kk))
        for st in range(1, 6):
            e("v_cmp_eq_u32 vcc, %d, v%d" % (st, HB_))
            e("v_cndmask_b32 v%d, v%d, v%d, vcc" % (BR, BR, BR + st))
        e("s_mul_i32 s%d, s%d, 768" % (PE, PSG))
        e("s_lshl_b32 s%d, s%d, 2" % (PE + 1, PE + 1))
        e("s_add_u32 s%d, s%d, s%d" % (PE, PE, PE + 1))
        e("s_add_u32 s%d, s%d, %d" % (PE, PE, WS_B))
        e("s_mov_b32 exec_lo, 0x003f003f")
        e("s_mov_b32 exec_hi, 0x003f003f")
        e("buffer_store_dword v%d, v%d, s[%d:%d], s%d offen sc1" % (BR, HG, PWS, PWS + 3, PE))
        e("s_mov_b64 exec, -1")

    def flush(p):
        if P["xp"]:
            e("s_cmp_eq_u32 s%d, s%d" % (PDC + p, PDC + 3 + p))
            if p:
                e("s_cbranch_scc1 L_fp%d" % p)
            e("s_add_u32 s%d, s%d, %d" % (PE + 6, PIA, p * PHS))
            e("s_add_u32 s%d, s%d, %d" % (PE + 7, PIA, p * PHS + 4096))
            e("s_cmp_eq_u32 s%d, s%d" % (PDC + p, PDC + 3 + p))
            for k in range(6):
                if p == 0:
                    mk = sum(1 << l for l in range(64) if (64 * k + l) % 48 < (3 * N0 + 7) // 8 * 8)
                    e("s_cselect_b32 exec_lo, 0x%x, -1" % (mk & 0xffffffff))
                    e("s_cselect_b32 exec_hi, 0x%x, -1" % (mk >> 32))
                e("buffer_load_dwordx4 v[%d:%d], v%d, s[%d:%d], s%d offen offset:%d %s" %
                  (HX + 4 * k, HX + 4 * k + 3, HA, PWS, PWS + 3, PE + 6 + k // 4, (k % 4) * 1024, ("", "sc1", "", "nt")[P["xp"]]))
            e("s_mov_b64 exec, -1")
            e("s_waitcnt vmcnt(0)")
            e.label("L_fp%d" % p)
        lds_wait("f%d" % p, HZ, HE, PE, L_CF + 4 * p, "4", PSP)
        e("s_cmp_eq_u32 s%d, s%d" % (PDC + p, PDC + 3 + p))
        if p:
            e("s_cbranch_scc1 L_fl%d" % p)
        if CX:
            for st in range(4):
                for c in range(3):
                    r = HX + 12 * st + 2 * c
                    e("ds_read_b64 v[%d:%d], v%d offset:%d" % (r, r + 1, HK, L_LG + p * PHI + st * 192 + 8 * c))
            e("s_add_u32 s%d, s%d, %d" % (PE + 6, PIA, p * PHS))
            e("s_cmp_eq_u32 s%d, s%d" % (PDC + p, PDC + 3 + p))
            e("s_waitcnt lgkmcnt(0)")
            for st in range(4):
                B = HX + 12 * st
                e("v_cmp_eq_f32 vcc, 0, v%d" % (B + 5))
                e("v_max3_f32 v%d, v%d, v%d, v%d" % (B + 9, B, B + 1, B + 2))
                e("v_cndmask_b32 v%d, v%d, v%d, vcc" % (B + 8, B + 5, B + 4))
                e("v_max3_f32 v%d, v%d, v%d, v%d" % (B + 9, B + 9, B + 3, B + 4))
                e("v_max_f32 v%d, v%d, v%d" % (B + 8, B + 8, B + 9))
                for k in range(6):
                    e("v_sub_f32 v%d, v%d, v%d" % (B + k, B + k, B + 8))
                for k in range(3):
                    e("v_cvt_pk_f16_f32 v%d, v%d, v%d" % (B + 9 + k, B + 2 * k, B + 2 * k + 1))
                if not P["xkp"] & 16:
                    e("buffer_store_dwordx4 v[%d:%d], v%d, s[%d:%d], s%d offen offset:%d %s" %
                      (B + 8, B + 11, HN, PWS, PWS + 3, PE + 6, st * 1024, P["st"]))
                if p == 0 and st == 0:
                    e("s_cbranch_scc1 L_fl0")
        else:
            for k in range(6):
                e("ds_read_b128 v[%d:%d], v%d offset:%d" % (HX + 4 * k, HX + 4 * k + 3, HA, L_LG + p * PHI + k * 1024))
            e("s_add_u32 s%d, s%d, %d" % (PE + 6, PIA, p * PHS))
            e("s_add_u32 s%d, s%d, %d" % (PE + 7, PIA, p * PHS + 4096))
            e("s_cmp_eq_u32 s%d, s%d" % (PDC + p, PDC + 3 + p))
            e("s_waitcnt lgkmcnt(0)")
            for k in range(6):
                if p == 0:
                    mk = sum(1 << l for l in range(64) if (64 * k + l) % 48 < (3 * N0 + 7) // 8 * 8)
                    e("s_cselect_b32 exec_lo, 0x%x, -1" % (mk & 0xffffffff))
                    e("s_cselect_b32 exec_hi, 0x%x, -1" % (mk >> 32))
                if not P["xkp"] & 16:
                    e("buffer_store_dwordx4 v[%d:%d], v%d, s[%d:%d], s%d offen offset:%d %s" %
                      (HX + 4 * k, HX + 4 * k + 3, HA, PWS, PWS + 3, PE + 6 + k // 4, (k % 4) * 1024, P["st"]))
            if p == 0:
                e("s_mov_b64 exec, -1")
            if P["wb"]:
                e("s_waitcnt vmcnt(0)")
                e("buffer_wbl2 sc1")
        e.label("L_fl%d" % p)
        e("v_mov_b32 v%d, %d" % (HE, p + 1))
        e("s_waitcnt vmcnt(0)")
        e("s_mov_b64 exec, 1")
        opt = p == 2 or (p == 1 and not P["jit"])
        if opt:
            e("s_cbranch_scc1 L_fn%d" % p)
        e("buffer_store_dword v%d, off, s[%d:%d], s%d sc1" % (HE, PWS, PWS + 3, PFA))
        if opt:
            e.label("L_fn%d" % p)
        e("ds_write_b32 v%d, v%d offset:%d" % (HZ, HE, L_FD))
        e("s_mov_b64 exec, -1")

    if FU:
        for i in range(4):
            e("v_mov_b32 v%d, 0" % (HX + i))
        for p in range(3):
            e("s_add_u32 s%d, s2, %d" % (PE, 256 * p))
            e("s_lshl_b32 s%d, s%d, 10" % (PE + 1, PE))
            e("s_lshl_b32 s%d, s%d, 6" % (PE, PE))
            e("s_add_u32 s%d, s%d, %d" % (PE, PE, WS_ML))
            if not (P["xkp"] & 512 and p < 2):
                e("buffer_store_dwordx4 v[%d:%d], v%d, s[%d:%d], s%d offen sc1" % (HX, HX + 3, HA, PWS, PWS + 3, PE + 1))
            e("s_mov_b64 exec, 15")
            e("buffer_store_dwordx4 v[%d:%d], v%d, s[%d:%d], s%d offen sc1" % (HX, HX + 3, HA, PWS, PWS + 3, PE))
            e("s_mov_b64 exec, -1")
    bias(0)
    if P["jit"]:
        lds_wait("b1", HZ, HE, PE, L_EV + 4, "1", PSP)
    bias(1)
    if not P["jit"]:
        bias(2)
    get_dec("d0")
    flush(0)
    if P["jit"]:
        lds_wait("b2", HZ, HE, PE, L_EV + 4, "9", PSP)
        bias(2)
    flush(1)
    flush(2)
    if P["at"] and not BC:
        e("v_lshrrev_b32 v%d, 3, v%d" % (HC, HL))
        e("v_xor_b32 v%d, s%d, v%d" % (HC, PM, HC))
        e("v_lshrrev_b32 v%d, 1, v%d" % (HD, HC))
        e("v_and_b32 v%d, 1, v%d" % (HC, HC))
        e("v_lshl_or_b32 v%d, v%d, 2, v%d" % (HD, HC, HD))
        e("v_lshl_or_b32 v%d, v%d, 3, v%d" % (HD, HL, HD))
        e("v_mul_u32_u24 v%d, %d, v%d" % (HD, FSTR, HD))
        lds_wait("t1", HZ, HE, PE, L_TC, "4", PSP)
        e("s_memrealtime s[%d:%d]" % (PT, PT + 1))
        e("s_mov_b64 exec, 1")
        e("s_waitcnt lgkmcnt(0)")
        e("s_or_b32 s%d, s%d, 1" % (PT, PT))
        e("v_mov_b32 v%d, s%d" % (HB_, PT))
        e("buffer_store_dword v%d, off, s[%d:%d], s%d offset:4 sc1" % (HB_, PWS, PWS + 3, PFA))
        e("s_mov_b32 exec_lo, -1")
        e("s_mov_b32 s%d, %d" % (PE + 1, WS_G))
        lds_wait("t2", HZ, HE, PE, L_TC, "5", PSP)
        e("buffer_load_dword v%d, v%d, s[%d:%d], s%d offen offset:4 sc1" % (HB_, HD, PWS, PWS + 3, PE + 1))
        e("v_bfrev_b32 v%d, -2" % HC)
        e("s_mov_b32 s%d, -2048" % PE)
        e("s_waitcnt vmcnt(0)")
        e("v_cmp_eq_u32 vcc, 0, v%d" % HB_)
        e("v_subrev_u32 v%d, s%d, v%d" % (HB_, PT, HB_))
        e("v_cndmask_b32 v%d, v%d, v%d, vcc" % (HB_, HB_, HC))
        for st in (2048, 1024, 512, 256, 128, 64, 32, 16):
            e("s_add_u32 s%d, s%d, %d" % (PE + 1, PE, st))
            e("v_cmp_gt_i32 vcc, s%d, v%d" % (PE + 1, HB_))
            e("s_bcnt1_i32_b64 s%d, vcc" % (PE + 2))
            e("s_cmp_lt_u32 s%d, %d" % (PE + 2, P["aq"]))
            e("s_cselect_b32 s%d, s%d, s%d" % (PE, PE + 1, PE))
        e("s_mul_i32 s%d, s%d, %d" % (PE, PE, -P["ka"]))
        e("s_add_u32 s%d, s%d, %d" % (PE, PE, P["kb"]))
        e("s_ashr_i32 s%d, s%d, 10" % (PE, PE))
        e("s_max_i32 s%d, s%d, %d" % (PE, PE, P["dmin"]))
        e("s_min_i32 s%d, s%d, %d" % (PE, PE, min(P["dmax"], NT - P["te"])))
        e("s_sub_u32 s%d, %d, s%d" % (PE, NT, PE))
        e("s_cmp_eq_u32 s%d, %d" % (PE, NT))
        e("s_cselect_b32 s%d, 255, s%d" % (PE, PE))
        e("v_mov_b32 v%d, s%d" % (HB_, PE))
        e("ds_write_b32 v%d, v%d offset:%d" % (HZ, HB_, L_TD))
    e("s_endpgm")

    def last_gather():
        EL = P["fc"] == 4
        CSC = 24; CO = 96; CR0 = 56; CSO = 57; CHL = 58; CRB = 59; CN = 20
        COF = list(range(64, 76)) + list(range(84, 96))
        RB = HX + 16
        if EL:
            e("s_mov_b64 exec, -1")
            e("v_lshlrev_b32 v%d, 2, v%d" % (HR, HL))
            e("v_add_u32 v%d, %d, v%d" % (HG, L_ACC + 2 * NW * ROWB, HR))
            e("v_lshlrev_b32 v%d, 4, v%d" % (HK, HL))
        e("s_add_u32 s%d, s%d, 64" % (PE, PG))
        e("s_mul_i32 s%d, s%d, 171" % (PE, PE))
        e("s_lshr_b32 s%d, s%d, 9" % (PE, PE))
        e("s_mul_i32 s%d, s%d, %d" % (CHL, PE, FSTR))
        e("s_add_u32 s%d, s%d, %d" % (CHL, CHL, WS_G + 245 * FSTR))
        e("s_mul_i32 s%d, s%d, %d" % (CRB, PE, DH * 2))
        e("s_cmp_eq_u32 s%d, 21" % PE)
        e("s_cselect_b32 s%d, 15, 23" % CN)
        e("s_mul_i32 s%d, s%d, 24" % (PE, PE))
        e("s_add_u32 s%d, s2, 512" % PSG)
        e("s_sub_u32 s%d, s%d, s%d" % (CR0, PSG, PE))
        e("s_lshl_b32 s%d, s%d, 10" % (PSG, PSG))
        e("s_mov_b32 s%d, 0x40000" % PSP)
        e.label("L_fs")
        e("buffer_load_dword v%d, off, s[%d:%d], s%d offset:4 sc1" % (HA, PWS, PWS + 3, CHL))
        e("s_sub_u32 s%d, s%d, 1" % (PSP, PSP))
        e("s_cbranch_scc1 L_exit1")
        e("s_waitcnt vmcnt(0)")
        e("v_cmp_eq_u32 vcc, 0, v%d" % HA)
        e("s_cbranch_vccnz L_fs")
        e("buffer_load_dword v%d, v%d, s[%d:%d], s%d offen offset:128 sc1" % (HE, HR, PWS, PWS + 3, CHL))
        e("ds_read_b128 v[%d:%d], v%d offset:%d" % (HA, HD, HZ, L_ML + 32))
        e("v_xor_b32 v%d, 1, v%d" % (HF, HL))
        e("v_cmp_eq_u32 vcc, s%d, v%d" % (CR0, HL))
        e("v_cndmask_b32 v%d, v%d, v%d, vcc" % (HF, HL, HF))
        e("v_add_u32 v%d, s%d, v%d" % (HF, PE, HF))
        e("v_lshlrev_b32 v%d, 10, v%d" % (HF, HF))
        for r in range(24):
            e("v_readlane_b32 s%d, v%d, %d" % (COF[r], HF, r))
        srd(CO, 78, H * DH * 2)
        e("v_lshlrev_b32 v%d, 1, v%d" % (HR, HL))
        e("s_waitcnt vmcnt(0)")
        e("v_readlane_b32 s%d, v%d, s%d" % (CSO, HE, CR0))
        e("v_cndmask_b32 v%d, v%d, v%d, vcc" % (HE, HE, HZ))
        for r in range(24):
            e("v_readlane_b32 s%d, v%d, %d" % (CSC + r, HE, r))
        e("v_mov_b32 v%d, 1" % HV)
        if EL:
            e("s_mov_b64 exec, 1")
            lds_wait("el", HZ, HE, PE, L_EL, "4", PSP)
            e("buffer_atomic_add v%d, off, s[%d:%d], s%d sc0" % (HV, PWS, PWS + 3, CHL))
            e("s_mov_b64 exec, -1")
            e("s_waitcnt vmcnt(0)")
            e("v_readfirstlane_b32 s%d, v%d" % (PE, HV))
            e("s_cmp_lg_u32 s%d, s%d" % (PE, CN))
            e("s_cbranch_scc1 L_exit1")
            for r in range(24):
                e("buffer_load_dwordx4 v[%d:%d], v%d, s[%d:%d], s%d offen sc1" % (RB + 4 * r, RB + 4 * r + 3, HK, PWS, PWS + 3, COF[r]))
        lds_wait("n", HZ, HE, PE, L_CA + 8, "4", PSP)
        for kk in range(3):
            for w in range(NW):
                e("ds_read_b32 v%d, v%d offset:%d" % (HX + kk * NW + w, HG, w * ROWB + kk * 256))
        if not EL:
            e("s_mov_b64 exec, 1")
            e("buffer_atomic_add v%d, off, s[%d:%d], s%d sc0" % (HV, PWS, PWS + 3, CHL))
            e("s_mov_b64 exec, -1")
        e("s_mov_b32 s%d, 0x40000" % PSP)
        for kk in range(3):
            b = HX + kk * NW
            e("s_waitcnt lgkmcnt(%d)" % (8 - 4 * kk))
            e("v_add_f32 v%d, v%d, v%d" % (b, b, b + 1))
            e("v_add_f32 v%d, v%d, v%d" % (b + 2, b + 2, b + 3))
            e("v_sub_f32 v%d, v%d, v%d" % (b, b, HC))
            e("v_add_f32 v%d, v%d, v%d" % (HX + 12 + kk, b, b + 2))
        if EL:
            e("s_branch L_fr2")
        else:
            e("buffer_store_dwordx4 v[%d:%d], v%d, s[%d:%d], s%d offen sc1" % (HX + 12, HX + 15, HK, PWS, PWS + 3, PSG))
        if P["stamp"] == 5 and not EL:
            e("s_memrealtime s[%d:%d]" % (PE + 4, PE + 5))
        if 2 <= P["fc"] < 4:
            e("s_waitcnt vmcnt(%d)" % (P["fc"] - 2))
            e("v_readfirstlane_b32 s%d, v%d" % (PE, HV))
            e("s_cmp_lg_u32 s%d, s%d" % (PE, CN))
            e("s_cbranch_scc1 L_fx")
        e.label("L_fr")
        for r in range(24):
            e("buffer_load_dwordx4 v[%d:%d], v%d, s[%d:%d], s%d offen sc1" % (RB + 4 * r, RB + 4 * r + 3, HK, PWS, PWS + 3, COF[r]))
        e.lines.append("L_fr2:")
        for k, a_ in enumerate((HA, HB_, HC)):
            e("v_mul_f32 v%d, s%d, v%d" % (a_, CSO, HX + 12 + k))
        e("v_mov_b32 v%d, 1" % HD)
        e("s_sub_u32 s%d, s%d, 1" % (PSP, PSP))
        e("s_cbranch_scc1 L_exit1")
        for r in range(24):
            if r % 2 == 0:
                e("s_waitcnt vmcnt(%d)" % (22 - r))
            for k, a_ in enumerate((HA, HB_, HC)):
                e("v_fmac_f32 v%d, s%d, v%d" % (a_, CSC + r, RB + 4 * r + k))
            if r % 2:
                e("v_min3_u32 v%d, v%d, v%d, v%d" % (HD, HD, RB + 4 * r - 1, RB + 4 * r + 3))
        if P["fc"] == 1:
            e("v_readfirstlane_b32 s%d, v%d" % (PE, HV))
        e("v_cmp_eq_u32 vcc, 0, v%d" % HD)
        for a_ in (HA, HB_, HC):
            e("v_cvt_pk_bf16_f32 v%d, v%d, v%d" % (a_, a_, a_))
        if P["fc"] == 1:
            e("s_cmp_lg_u32 s%d, s%d" % (PE, CN))
            e("s_cbranch_scc1 L_fx")
        e("s_cbranch_vccnz L_fr")
        for k, a_ in enumerate((HA, HB_, HC)):
            e("buffer_store_short v%d, v%d, s[%d:%d], s%d offen offset:%d" % (a_, HR, CO, CO + 3, CRB, k * 128))
        if P["stamp"] == 5:
            e("s_memrealtime s[%d:%d]" % (PT, PT + 1))
            e("s_waitcnt vmcnt(0)")
            e("s_memrealtime s[%d:%d]" % (PT + 2, PT + 3))
            srd(PS2, 82, 0x8000000)
            e("s_waitcnt lgkmcnt(0)")
            e("v_mov_b32 v%d, s%d" % (HX, PT))
            e("v_mov_b32 v%d, s%d" % (HX + 1, PT + 2))
            e("v_mov_b32 v%d, s%d" % (HX + 2, PSP))
            e("s_mul_i32 s%d, s%d, 171" % (PE, CRB))
            e("s_lshr_b32 s%d, s%d, 16" % (PE, PE))
            e("s_lshl_b32 s%d, s%d, 4" % (PE, PE))
            e("s_add_u32 s%d, s%d, 0x4009000" % (PE, PE))
            e("s_mov_b64 exec, 1")
            e("buffer_store_dwordx4 v[%d:%d], off, s[%d:%d], s%d" % (HX, HX + 3, PS2, PS2 + 3, PE))
        e.lines.append("L_fx:")
        if P["stamp"] == 5 and not EL:
            srd(PS2, 82, 0x8000000)
            e("s_memrealtime s[%d:%d]" % (PT + 2, PT + 3))
            e("s_waitcnt lgkmcnt(0)")
            e("v_mov_b32 v%d, s%d" % (HX, PE + 4))
            e("v_mov_b32 v%d, s%d" % (HX + 1, PT + 2))
            e("s_lshl_b32 s%d, s2, 3" % PE)
            e("s_add_u32 s%d, s%d, 0x400a000" % (PE, PE))
            e("s_mov_b64 exec, 1")
            e("buffer_store_dwordx2 v[%d:%d], off, s[%d:%d], s%d" % (HX, HX + 1, PS2, PS2 + 3, PE))
        e("s_endpgm")

    if BC:
        e.label("L_h3")
        e("s_waitcnt lgkmcnt(0)")
        srd(PWS, 82, WS_SIZE)
        if not EB:
            e("s_barrier")
        e("v_lshlrev_b32 v%d, 2, v%d" % (HD, HL))
        e("s_mul_i32 s%d, s%d, %d" % (PO, PM, FSTR))
        e("s_add_u32 s%d, s%d, %d" % (PO, PO, WS_T))
        e("s_lshl_b32 s%d, s%d, 2" % (PFL, PG))
        e("s_add_u32 s%d, s%d, s%d" % (PFL, PFL, PO))
        if GTS:
            cps = CPK + [48 + c for c in CPV]
            sel = [max(j for j, c in enumerate(cps) if c + P["tg"] + P["rd"] < b) for b in GTS]
            e("s_mov_b32 s%d, 0x%x" % (PRN, sum(1 << j for j in sel)))
            e("v_lshrrev_b32 v%d, 2, v%d" % (HG, HL))
            e("v_mul_u32_u24 v%d, %d, v%d" % (HG, FSTR, HG))
            e("v_and_or_b32 v%d, v%d, 12, v%d" % (HG, HD, HG))
            e("s_and_b32 s%d, s%d, 3" % (PBK, PM))
            e("s_mul_i32 s%d, s%d, %d" % (PNR, PBK, FSTR))
            e("s_lshl_b32 s%d, s%d, 2" % (PBK, PBK))
            e("v_mov_b32 v%d, %d" % (HK, L_GT))
        e("s_mov_b32 s%d, %d" % (PJ, P["pw"]))
        e("v_mov_b32 v%d, %d" % (HW, L_TM))
        e("v_bfrev_b32 v%d, -2" % HC)
        e("s_mov_b32 exec_hi, 0")
        e.label("L_h3loop")
        lds_wait("p1", HZ, HE, PE, L_TC, "s%d" % PJ, PSP)
        e("s_memrealtime s[%d:%d]" % (PT, PT + 1))
        e("s_add_u32 s%d, s%d, %d" % (PJ, PJ, 5 - P["pw"]))
        e("s_mov_b32 exec_lo, 1")
        e("s_waitcnt lgkmcnt(0)")
        e("v_mov_b32 v%d, s%d" % (HB_, PT))
        e("buffer_store_dword v%d, off, s[%d:%d], s%d" % (HB_, PWS, PWS + 3, PFL))
        e("s_mov_b32 exec_lo, -1")
        if P["xs"]:
            XS = P["xs"]
            e("s_lshl_b32 s%d, s2, %d" % (PE, 10 if XS & 8 else 12))
            e("s_add_u32 s%d, s%d, 0x700000" % (PE, PE))
            e("v_lshlrev_b32 v%d, 4, v%d" % (HX, HL))
            e("s_mov_b64 exec, %s" % ("-1" if XS & 2 else "1"))
            e("v_lshlrev_b32 v%d, 4, v%d" % (HX, HL))
            for k in range(4 if XS & 16 else 1):
                e("buffer_%s_dwordx4 v[%d:%d], v%d, s[%d:%d], s%d offen offset:%d %s" %
                  ("load" if XS & 4 else "store", HX + 4, HX + 7, HX, PWS, PWS + 3, PE, 1024 * k, "sc1" if XS & 1 else "" if not XS & 32 else "sc0 sc1"))
            e("s_mov_b64 exec, 0xffffffff")
        lds_wait("p2", HZ, HE, PE, L_TC, "s%d" % PJ, PSP)
        e("buffer_load_dword v%d, v%d, s[%d:%d], s%d offen sc0" % (HB_, HD, PWS, PWS + 3, PO))
        e("s_add_u32 s%d, s%d, 4" % (PJ, PJ))
        e("s_sub_u32 s%d, s%d, 4096" % (PT, PT))
        e("s_waitcnt vmcnt(0)")
        e("v_subrev_u32 v%d, s%d, v%d" % (HB_, PT, HB_))
        e("v_cmp_gt_u32 vcc, 8192, v%d" % HB_)
        e("v_cndmask_b32 v%d, v%d, v%d, vcc" % (HB_, HC, HB_))
        e("s_mov_b32 s%d, 2048" % PE)
        for st in (2048, 1024, 512, 256, 128, 64, 32, 16, 8):
            e("s_add_u32 s%d, s%d, %d" % (PE + 1, PE, st))
            e("v_cmp_gt_u32 vcc, s%d, v%d" % (PE + 1, HB_))
            e("s_bcnt1_i32_b64 s%d, vcc" % (PE + 2))
            e("s_cmp_lt_u32 s%d, %d" % (PE + 2, P["aq"]))
            e("s_cselect_b32 s%d, s%d, s%d" % (PE, PE + 1, PE))
        e("s_add_u32 s%d, s%d, s%d" % (PE + 1, PE, PT))
        e("s_or_b32 s%d, s%d, 1" % (PE + 1, PE + 1))
        e("v_mov_b32 v%d, s%d" % (HB_, PE + 1))
        e("ds_write_b32 v%d, v%d" % (HW, HB_))
        e("v_add_u32 v%d, 4, v%d" % (HW, HW))
        if GTS:
            e("s_bitcmp1_b32 s%d, 0" % PRN)
            e("s_cbranch_scc0 L_h3ng")
            e("s_cmp_lt_u32 s%d, 6136" % PE)
            e("s_cselect_b32 exec_lo, 1, 0")
            e("s_cmp_lt_u32 s%d, 4" % PG)
            e("s_cselect_b32 exec_lo, exec_lo, 0")
            e("buffer_store_dword v%d, off, s[%d:%d], s%d offset:2048 sc1" % (HB_, PWS, PWS + 3, PFL))
            e("s_mov_b32 exec_lo, 0xffff")
            e("s_add_u32 s%d, s%d, %d" % (PE + 3, PJ, P["gq"]))
            lds_wait("p3", HZ, HE, PE, L_TC, "s%d" % (PE + 3), PSP)
            e("s_sub_u32 s%d, s%d, s%d" % (PE + 3, PO, PNR))
            e("s_mov_b32 s%d, %d" % (PSP, P["gn"]))
            e("s_mov_b32 s%d, 0" % PE)
            if P["gl2"]:
                e("buffer_load_dword v%d, v%d, s[%d:%d], s%d offen offset:2048" % (HA, HG, PWS, PWS + 3, PE + 3))
                e("s_branch L_h3gq")
            e.label("L_h3gp")
            e("buffer_load_dword v%d, v%d, s[%d:%d], s%d offen offset:2048 sc1" % (HA, HG, PWS, PWS + 3, PE + 3))
            e("s_sub_u32 s%d, s%d, 1" % (PSP, PSP))
            e("s_cbranch_scc1 L_h3gw")
            e.lines.append("L_h3gq:")
            e("s_waitcnt vmcnt(0)")
            e("v_subrev_u32 v%d, s%d, v%d" % (HA, PT, HA))
            e("v_cmp_gt_u32 vcc, 8192, v%d" % HA)
            e("v_cndmask_b32 v%d, v%d, v%d, vcc" % (HA, HC, HA))
            e("v_min_u32_dpp v%d, v%d, v%d quad_perm:[1,0,3,2] row_mask:0xf bank_mask:0xf" % (HA, HA, HA))
            e("v_min_u32_dpp v%d, v%d, v%d quad_perm:[2,3,0,1] row_mask:0xf bank_mask:0xf" % (HA, HA, HA))
            e("v_cmp_eq_u32 vcc, v%d, v%d" % (HC, HA))
            e("s_cbranch_vccnz L_h3gp")
            for k in range(4):
                e("v_readlane_b32 s%d, v%d, %d" % (PE + 4 + k, HA, 4 * k))
            e("v_readlane_b32 s%d, v%d, s%d" % (PE + 1, HA, PBK))
            e("s_max_u32 s%d, s%d, s%d" % (PE + 4, PE + 4, PE + 5))
            e("s_max_u32 s%d, s%d, s%d" % (PE + 6, PE + 6, PE + 7))
            e("s_max_u32 s%d, s%d, s%d" % (PE, PE + 4, PE + 6))
            e("s_sub_u32 s%d, s%d, s%d" % (PE, PE, PE + 1))
            e("s_sub_u32 s%d, s%d, %d" % (PE, PE, P["gtol"]))
            e("s_max_i32 s%d, s%d, 0" % (PE, PE))
            e("s_min_i32 s%d, s%d, %d" % (PE, PE, P["gcap"]))
            e.label("L_h3gw")
            e("s_or_b32 s%d, s%d, 0x10000" % (PE, PE))
            e("v_mov_b32 v%d, s%d" % (HB_, PE))
            e("ds_write_b32 v%d, v%d" % (HK, HB_))
            e("s_mov_b32 exec_lo, -1")
            e("v_add_u32 v%d, 4, v%d" % (HK, HK))
            e("s_waitcnt vmcnt(0)")
            e.label("L_h3ng")
            e("s_lshr_b32 s%d, s%d, 1" % (PRN, PRN))
        e("s_add_u32 s%d, s%d, %d" % (PJ, PJ, 3 + P["pw"]))
        e("s_add_u32 s%d, s%d, 128" % (PO, PO))
        e("s_add_u32 s%d, s%d, 128" % (PFL, PFL))
        e("s_cmp_lt_u32 s%d, %d" % (PJ, 12 * (len(CPK) + len(CPV))))
        e("s_cbranch_scc1 L_h3loop")
        if P["fc"] == 4:
            last_gather()
        else:
            e("s_endpgm")

    e.label("L_h2")
    srd(PS2, 74, H * SKV * 2)
    srd(PS3, 76, H * SKV * 2)
    if P["pf"] >= 2:
        if P["pf"] == 2:
            lds_wait("pf", HZ, HE, PE, L_EV + 4, "1", PSP)
        if P["pf"] == 4:
            lds_wait("pf", HZ, HE, PE, L_EV, "1", PSP)
        e("v_lshlrev_b32 v%d, 4, v%d" % (HA, HL))
        e("s_lshl_b32 s%d, s2, 13" % PE)
        e("s_add_u32 s%d, s%d, 4096" % (PE + 1, PE))
        for a, sr in enumerate((PS2, PS3)):
            for k in range(8):
                r = HX + 4 * (a * 8 + k)
                e("buffer_load_dwordx4 v[%d:%d], v%d, s[%d:%d], s%d offen offset:%d" % (r, r + 3, HA, sr, sr + 3, PE + k // 4, (k % 4) * 1024))
        e("s_waitcnt vmcnt(0)")
    get_dec("d2")
    PSIX = 24
    PKW = 32; PNEED = 33; PN0 = 34; PIM = 35; PCH = 36; PCC = 37; PMG = 38; PWD = 39; PIS = 40
    HT = HW
    HP = HX + 88; PXM = 64
    e("v_and_b32 v%d, 3, v%d" % (HT, HL))
    e("v_and_b32 v%d, 7, v%d" % (HT2, HL))
    e("v_lshrrev_b32 v%d, 2, v%d" % (HR, HL))
    e("s_mov_b32 s%d, %s" % (PCC, f32hex(C)))
    e("s_mov_b32 s%d, 0xaaaaaaab" % PMG)
    e("s_mov_b32 s%d, 0" % PPH)
    e("s_mul_i32 s%d, s%d, %d" % (PIM, PG, 8 * IMS))
    e("s_add_u32 s%d, s%d, %d" % (PIM, PIM, WS_L))
    e("s_mov_b32 s%d, %d" % (PIS, IMS))
    e("v_lshlrev_b32 v%d, 5, v%d" % (HN, HL))
    e("v_lshrrev_b32 v%d, 3, v%d" % (HK, HL))
    e("v_mul_u32_u24 v%d, 24, v%d" % (HK, HK))
    e("v_mov_b32 v%d, 768" % HA)
    e("v_mad_u32_u24 v%d, v%d, v%d, v%d" % (HK, HT2, HA, HK))
    if CX:
        e("v_lshrrev_b32 v%d, 3, v%d" % (HA, HL))
        e("v_lshlrev_b32 v%d, 7, v%d" % (HP, HT2))
        e("v_lshl_add_u32 v%d, v%d, 4, v%d" % (HP, HA, HP))
    else:
        e("v_lshlrev_b32 v%d, 4, v%d" % (HP, HL))
    e("s_mov_b32 s%d, %d" % (PN0, (2 if CX else 3) * N0))
    RS = 16
    e.label("L_prep")
    seg_scalars()
    e("s_mov_b32 s%d, s%d" % (PKW, PDC))
    e("s_mov_b32 s%d, s%d" % (PWD, PDC + 3))
    for i in (0, 1, 3, 4):
        e("s_mov_b32 s%d, s%d" % (PDC + i, PDC + i + 1))
    e("s_lshl_b32 s%d, s%d, 3" % (PNEED, PPH))
    e("s_add_u32 s%d, s%d, 1" % (PNEED, PNEED))
    if P["pf"] == 1:
        lds_wait("pf", HZ, HE, PE, L_EV + 4, "s%d" % PNEED, PSP)
        e("v_lshlrev_b32 v%d, 4, v%d" % (HA, HL))
        e("s_mul_i32 s%d, s%d, 2736" % (PE + 1, PM))
        e("s_lshl_b32 s%d, s%d, 16" % (PE, PSG))
        e("s_mul_hi_u32 s%d, s%d, 0xaaaaaaab" % (PE, PE))
        e("s_lshr_b32 s%d, s%d, 5" % (PE, PE))
        e("s_lshl_b32 s%d, s%d, 4" % (PE, PE))
        e("s_add_u32 s%d, s%d, s%d" % (PE, PE, PE + 1))
        for a, sr in enumerate((PS2, PS3)):
            for k in range(3):
                r = HX + 4 * RS + 4 * (a * 3 + k)
                e("buffer_load_dwordx4 v[%d:%d], v%d, s[%d:%d], s%d offen offset:%d%s" % (r, r + 3, HA, sr, sr + 3, PE, k * 1024, " nt" if P["bnt"] & 8 else ""))
    for w, hv in ((PWD, HV),):
        e("s_and_b32 s%d, s%d, 7" % (PE, w))
        e("v_mov_b32 v%d, s%d" % (hv, PE))
        e("s_bitcmp1_b32 s%d, 3" % w)
        e("s_cselect_b64 vcc, -1, 0")
        e("v_cndmask_b32 v%d, v%d, v%d, vcc" % (hv, hv, HT2))
    e("v_xor_b32 v%d, s%d, v%d" % (HG, PNB, HV))
    e("v_lshl_or_b32 v%d, v%d, 3, v%d" % (HG, HT, HG))
    e("s_lshl_b32 s%d, s%d, 6" % (PCH, PSG))
    e("s_mul_i32 s%d, s%d, 768" % (PE + 1, PSG))
    e("s_lshl_b32 s%d, s%d, 2" % (PE + 2, PG0))
    e("s_sub_u32 s%d, s%d, s%d" % (PE + 1, PE + 1, PE + 2))
    e("s_add_u32 s%d, s%d, %d" % (PE + 1, PE + 1, WS_B))
    if P["pace"]:
        e("s_add_u32 s%d, s%d, 4" % (PNEED, PNEED))
        lds_wait("ga", HZ, HE, PE, L_EV + 4, "s%d" % PNEED, PSP)
    else:
        e("s_add_u32 s%d, s%d, 1" % (PNEED, PPH))
        lds_wait("ga", HZ, HE, PE, L_FD, "s%d" % PNEED, PSP)
    for st in range(4):
        R = HX + RS * st
        e("v_add_u32 v%d, %d, v%d" % (HA, 16 * st, HR))
        e("v_bfe_u32 v%d, v%d, 3, 2" % (HB_, HA))
        e("v_and_or_b32 v%d, v%d, 4, v%d" % (HB_, HA, HB_))
        e("v_xor_b32 v%d, v%d, v%d" % (HB_, HG, HB_))
        e("v_add_u32 v%d, s%d, v%d" % (HA, PCH, HA))
        e("v_lshl_add_u32 v%d, v%d, 5, v%d" % (HC, HA, HB_))
        e("v_lshl_add_u32 v%d, v%d, 4, 1" % (HC, HC))
        e("v_mul_hi_u32 v%d, v%d, s%d" % (HC, HC, PMG))
        e("v_lshrrev_b32 v%d, 1, v%d" % (HC, HC))
        e("v_lshrrev_b32 v%d, 1, v%d" % (HF, HC))
        e("v_lshlrev_b32 v%d, 2, v%d" % (HF, HF))
        for b, sr in ((R + 8, PS2), (R + 12, PS3)):
            if P["xkp"] & 8:
                continue
            gnt = " nt" if P["bnt"] & 16 else ""
            e("buffer_load_dwordx3 v[%d:%d], v%d, s[%d:%d], 0 offen%s" % (b, b + 2, HF, sr, sr + 3, gnt))
            if P["pace"] == 2:
                e("s_waitcnt vmcnt(0)")
            e("buffer_load_dword v%d, v%d, s[%d:%d], 0 offen offset:12%s" % (b + 3, HF, sr, sr + 3, gnt))
        e("v_lshrrev_b32 v%d, 6, v%d" % (R + 6, HC))
        e("v_lshl_add_u32 v%d, v%d, 2, s%d" % (R + 6, R + 6, PE + 1))
        e("v_and_b32 v%d, 15, v%d" % (HD, HC))
        e("v_cmp_eq_u32 s[%d:%d], 5, v%d" % (PSIX + 2 * st, PSIX + 2 * st + 1, HD))
        e("v_and_b32 v%d, 1, v%d" % (R + 7, HC))
        e("v_lshlrev_b32 v%d, 4, v%d" % (R + 7, R + 7))
        if P["pace"] == 1:
            e("s_waitcnt vmcnt(0)")
    e("s_add_u32 s%d, s%d, 1" % (PNEED, PPH))
    if P["fd"]:
        cps = CPK + [48 + c for c in CPV]
        th = [12 * min(j for j, c in enumerate(cps) if c > b) + P["fd"] for b in (16, 32, 48)]
        assert th[2] - th[1] == th[1] - th[0]
        e("s_mul_i32 s%d, s%d, %d" % (PE + 6, PPH, th[1] - th[0]))
        e("s_add_u32 s%d, s%d, %d" % (PE + 6, PE + 6, th[0]))
        lds_wait("fe", HZ, HE, PE, L_TC, "s%d" % (PE + 6), PSP)
    lds_wait("fd", HZ, HE, PE, L_FD, "s%d" % PNEED, PSP)
    e("v_mul_u32_u24 v%d, %d, v%d" % (HA, FSTR, HL))
    e("s_xor_b32 s%d, s%d, s%d" % (PE, PKW, PWD))
    e("s_xor_b32 s%d, s%d, s%d" % (PE, PE, PNB))
    e("s_and_b32 s%d, s%d, 7" % (PE, PE))
    e("v_mov_b32 v%d, s%d" % (HC, PNEED))
    e("s_lshl_b64 vcc, 1, s%d" % PE)
    e("s_or_b32 s%d, s%d, s%d" % (PE, PKW, PWD))
    e("s_bitcmp1_b32 s%d, 3" % PE)
    e("s_cselect_b64 vcc, 0xff, vcc")
    e("s_cmp_eq_u32 s%d, s%d" % (PKW, PWD))
    e("s_cselect_b64 vcc, 0, vcc")
    e("s_max_u32 s%d, s%d, 1" % (PE, PPH))
    e("v_mov_b32 v%d, s%d" % (HD, PE))
    e("v_cndmask_b32 v%d, v%d, v%d, vcc" % (HC, HD, HC))
    e("s_cmp_%s_u32 s%d, 1" % ("eq" if P["jit"] else "ge", PPH))
    e("s_cselect_b64 exec, vcc, 0xff")
    e("s_mov_b32 s%d, 0x40000" % PSP)
    if not P["xkp"] & 64:
        e("s_cbranch_execz L_noflags")
        e.label("L_flags")
        e("buffer_load_dword v%d, v%d, s[%d:%d], s%d offen sc1" % (HB_, HA, PWS, PWS + 3, PGL))
        e("s_sub_u32 s%d, s%d, 1" % (PSP, PSP))
        e("s_cbranch_scc1 L_exit1")
        e("s_waitcnt vmcnt(0)")
        e("v_cmpx_gt_u32 vcc, v%d, v%d" % (HC, HB_))
        e("s_cbranch_execnz L_flags")
        e.label("L_noflags")
    e("s_mov_b64 exec, -1")
    for st in range(4):
        R = HX + RS * st
        if not P["xkp"] & 32:
            e("buffer_load_dword v%d, v%d, s[%d:%d], 0 offen sc1" % (R + 6, R + 6, PWS, PWS + 3))
    e("s_bitcmp1_b32 s%d, 3" % PWD)
    e("s_cselect_b32 s%d, 0, 7" % (PE + 1))
    e("s_xor_b32 s%d, s%d, s%d" % (PE + 2, PKW, PWD))
    e("s_bitcmp1_b32 s%d, 3" % (PE + 2))
    e("s_cselect_b32 s%d, 7, 0" % (PE + 3))
    e("s_and_b32 s%d, s%d, 7" % (PE + 2, PE + 2))
    e("s_and_b32 s%d, s%d, 7" % (PE + 4, PWD))
    if CX:
        e("v_lshrrev_b32 v%d, 3, v%d" % (HA, HL))
        e("v_cmp_gt_u32 vcc, s%d, v%d" % (PN0, HA))
        e("v_and_b32 v%d, s%d, v%d" % (HC, PE + 3, HT2))
        e("v_xor_b32 v%d, s%d, v%d" % (HC, PE + 2, HC))
        e("v_and_b32 v%d, s%d, v%d" % (HB_, PE + 1, HT2))
        e("v_xor_b32 v%d, s%d, v%d" % (HB_, PE + 4, HB_))
        e("v_cndmask_b32 v%d, v%d, v%d, vcc" % (HB_, HC, HB_))
        for k, hv in enumerate((HB_, HC)):
            e("v_cmp_ne_u32 s[%d:%d], 0, v%d" % (PXM + 2 * k, PXM + 2 * k + 1, hv))
            e("v_xor_b32 v%d, s%d, v%d" % (hv, PNB, hv))
            e("v_mad_u32_u24 v%d, v%d, s%d, v%d" % (hv, hv, PIS, HP))
        for st in range(4):
            R = HX + 4 * RS + 4 * st
            if st < 2:
                e("s_mov_b64 exec, s[%d:%d]" % (PXM + 2 * st, PXM + 2 * st + 1))
            if not P["xkp"] & 128:
                e("buffer_load_dwordx4 v[%d:%d], v%d, s[%d:%d], s%d offen offset:%d sc1" %
                  (R, R + 3, HC if st else HB_, PWS, PWS + 3, PIM, st * 1024))
        e("s_mov_b64 exec, -1")
    else:
        e("s_add_u32 s%d, s%d, 4096" % (PE + 5, PIM))
        for k in range(6):
            R = HX + 4 * RS + 4 * k
            e("v_add_u32 v%d, %d, v%d" % (HA, 64 * k, HL))
            e("v_mul_u32_u24 v%d, 1366, v%d" % (HB_, HA))
            e("v_lshrrev_b32 v%d, 16, v%d" % (HB_, HB_))
            e("v_mul_u32_u24 v%d, 48, v%d" % (HC, HB_))
            e("v_sub_u32 v%d, v%d, v%d" % (HA, HA, HC))
            e("v_cmp_gt_u32 vcc, s%d, v%d" % (PN0, HA))
            e("v_and_b32 v%d, s%d, v%d" % (HC, PE + 3, HB_))
            e("v_xor_b32 v%d, s%d, v%d" % (HC, PE + 2, HC))
            e("v_and_b32 v%d, s%d, v%d" % (HB_, PE + 1, HB_))
            e("v_xor_b32 v%d, s%d, v%d" % (HB_, PE + 4, HB_))
            e("v_cndmask_b32 v%d, v%d, v%d, vcc" % (HC, HC, HB_))
            e("v_cmp_ne_u32 s[%d:%d], 0, v%d" % (PXM + 2 * k, PXM + 2 * k + 1, HC))
            e("v_xor_b32 v%d, s%d, v%d" % (HC, PNB, HC))
            e("v_mad_u32_u24 v%d, v%d, s%d, v%d" % (HC, HC, PIS, HP))
            e("s_mov_b64 exec, s[%d:%d]" % (PXM + 2 * k, PXM + 2 * k + 1))
            if not P["xkp"] & 128:
                e("buffer_load_dwordx4 v[%d:%d], v%d, s[%d:%d], s%d offen offset:%d sc1" %
                  (R, R + 3, HC, PWS, PWS + 3, PE + 5 if k >= 4 else PIM, (k % 4) * 1024))
            e("s_mov_b64 exec, -1")
        e("s_waitcnt vmcnt(0)")
        for k in range(6):
            R = HX + 4 * RS + 4 * k
            e("s_mov_b64 exec, s[%d:%d]" % (PXM + 2 * k, PXM + 2 * k + 1))
            e("ds_write_b128 v%d, v[%d:%d] offset:%d" % (HP, R, R + 3, L_LG + k * 1024))
        e("s_mov_b64 exec, -1")
    for st in range(4):
        R = HX + RS * st
        for c in range(3):
            e("ds_read_b64 v[%d:%d], v%d offset:%d" % (R + 2 * c, R + 2 * c + 1, HK, L_LG + st * 192 + 8 * c))
    e("s_mov_b32 s%d, 0" % PN0)
    e("v_mov_b32 v%d, 0x%08x" % (HB_, BIGNEG))
    e("v_mov_b32 v%d, 0x%08x" % (HA, BIGNEG))
    e("s_waitcnt vmcnt(0) lgkmcnt(0)")
    if CX:
        for st in range(4):
            R = HX + RS * st
            Q = HX + 4 * RS + 4 * st
            if st < 2:
                e("s_mov_b64 exec, s[%d:%d]" % (PXM + 2 * st, PXM + 2 * st + 1))
            for k in range(6):
                e("v_fma_mix_f32 v%d, v%d, 1.0, v%d op_sel:[%d,0,0] op_sel_hi:[1,0,0]" % (R + k, Q + 1 + k // 2, Q, k & 1))
            e("v_cmp_lt_f32 vcc, v%d, v%d" % (Q, R + 5))
            e("v_cndmask_b32 v%d, v%d, v%d, vcc" % (R + 5, R + 5, HZ))
        e("s_mov_b64 exec, -1")
    for st in range(4):
        R = HX + RS * st
        for k in range(6):
            e("v_sub_f32 v%d, v%d, v%d" % (R + k, R + k, R + 6))
        for k in range(6):
            e("v_mul_f32 v%d, s%d, v%d" % (R + k, PCC, R + k))
        e("v_cndmask_b32 v%d, v%d, v%d, s[%d:%d]" % (R + 5, HB_, R + 5, PSIX + 2 * st, PSIX + 2 * st + 1))
        for k in range(0, 6, 2):
            e("v_max3_f32 v%d, v%d, v%d, v%d" % (HA, HA, R + k, R + k + 1))
        for b in (R + 8, R + 12):
            for k in range(3):
                e("v_alignbit_b32 v%d, v%d, v%d, v%d" % (b + k, b + k + 1, b + k, R + 7))

    wave_reduce([HA], "v_max_f32", [HB_])
    e("v_mov_b32 v%d, 0" % HB_)
    e("v_mov_b32 v%d, 0" % HC)
    for st in range(4):
        R = HX + RS * st
        for k in range(6):
            e("v_sub_f32 v%d, v%d, v%d" % (R + k, R + k, HA))
        for k in range(6):
            e("v_exp_f32 v%d, v%d" % (R + k, R + k))
        for k in range(6):
            e("v_add_f32 v%d, v%d, v%d" % (HB_, HB_, R + k))
            if k & 1:
                e("v_and_b32 v%d, 0xffff0000, v%d" % (HE, R + 8 + k // 2))
                e("v_and_b32 v%d, 0xffff0000, v%d" % (HF, R + 12 + k // 2))
            else:
                e("v_lshlrev_b32 v%d, 16, v%d" % (HE, R + 8 + k // 2))
                e("v_lshlrev_b32 v%d, 16, v%d" % (HF, R + 12 + k // 2))
            e("v_mul_f32 v%d, v%d, v%d" % (R + k, R + k, HE))
            e("v_fmac_f32 v%d, v%d, v%d" % (HC, R + k, HF))
        e("ds_write_b128 v%d, v[%d:%d] offset:%d" % (HN, R, R + 3, L_PV + st * 2048))
        e("ds_write_b64 v%d, v[%d:%d] offset:%d" % (HN, R + 4, R + 5, L_PV + st * 2048 + 16))
    wave_reduce([HB_, HC], "v_add_f32", [HE, HF])
    e("s_lshl_b32 s%d, s%d, 2" % (PE, PPH))
    e("v_mov_b32 v%d, s%d" % (HE, PE))
    e("v_lshlrev_b32 v%d, 2, v%d" % (HF, HE))
    e("v_mov_b32 v%d, s%d" % (HD, PWD))
    e("s_mov_b64 exec, 1")
    e("ds_write_b128 v%d, v[%d:%d] offset:%d" % (HF, HA, HD, L_ML))
    e("ds_write_b32 v%d, v%d offset:%d" % (HE, HD, L_GO))
    if FU:
        e("s_lshl_b32 s%d, s%d, 8" % (PE, PPH))
        e("s_add_u32 s%d, s%d, s2" % (PE, PE))
        e("s_lshl_b32 s%d, s%d, 6" % (PE, PE))
        e("s_add_u32 s%d, s%d, %d" % (PE, PE, WS_ML))
        e("buffer_store_dwordx4 v[%d:%d], off, s[%d:%d], s%d sc1" % (HA, HD, PWS, PWS + 3, PE))
    e("s_mov_b64 exec, -1")
    e("v_add_u32 v%d, 8192, v%d" % (HN, HN))
    e("v_add_u32 v%d, %d, v%d" % (HK, PHI, HK))
    if CX:
        e("s_add_u32 s%d, s%d, %d" % (PIM, PIM, PHS))
    else:
        e("v_add_u32 v%d, %d, v%d" % (HP, PHI, HP))
        if PHS != PHI:
            e("s_add_u32 s%d, s%d, %d" % (PIM, PIM, PHS - PHI))
    e("s_add_u32 s%d, s%d, 1" % (PPH, PPH))
    e("s_cmp_lt_u32 s%d, 3" % PPH)
    e("s_cbranch_scc1 L_prep")
    e("s_mov_b32 s%d, 0" % PPH)
    e("v_lshlrev_b32 v%d, 2, v%d" % (HR, HL))
    e("v_add_u32 v%d, %d, v%d" % (HG, L_ACC, HR))
    e("v_lshlrev_b32 v%d, 4, v%d" % (HK, HL))
    e("v_mov_b32 v%d, 1" % (HX + 15))
    e.label("L_merge")
    e("s_lshl_b32 s%d, s%d, 2" % (PE, PPH))
    e("v_mov_b32 v%d, s%d" % (HW, PE))
    e("v_lshlrev_b32 v%d, 2, v%d" % (HF, HW))
    e("ds_read_b128 v[%d:%d], v%d offset:%d" % (HA, HD, HF, L_ML))
    e("s_lshl_b32 s%d, s%d, 8" % (PSG, PPH))
    e("s_add_u32 s%d, s%d, s2" % (PSG, PSG))
    e("s_lshl_b32 s%d, s%d, 10" % (PSG, PSG))
    lds_wait("m", HZ, HE, PE, L_CA, "4", PSP, HW)
    for kk in range(3):
        for w in range(NW):
            e("ds_read_b32 v%d, v%d offset:%d" % (HX + kk * NW + w, HG, w * ROWB + kk * 256))
    for kk in range(3):
        b = HX + kk * NW
        e("s_waitcnt lgkmcnt(%d)" % (8 - 4 * kk))
        e("v_add_f32 v%d, v%d, v%d" % (b, b, b + 1))
        e("v_add_f32 v%d, v%d, v%d" % (b + 2, b + 2, b + 3))
        e("v_sub_f32 v%d, v%d, v%d" % (b, b, HC))
        if FU:
            e("v_add_f32 v%d, v%d, v%d" % (HX + 12 + kk, b, b + 2))
            continue
        e("v_add_f32 v%d, v%d, v%d" % (b, b, b + 2))
        e("buffer_store_dword v%d, v%d, s[%d:%d], s%d offen offset:%d" % (b, HR, PWS, PWS + 3, PSG, kk * 256))
    if FU:
        e("buffer_store_dwordx4 v[%d:%d], v%d, s[%d:%d], s%d offen sc1" % (HX + 12, HX + 15, HK, PWS, PWS + 3, PSG))
    else:
        e("s_mov_b64 exec, 1")
        e("buffer_store_dwordx2 v[%d:%d], off, s[%d:%d], s%d offset:%d" % (HA, HB_, PWS, PWS + 3, PSG, DH * 4))
        e("s_mov_b64 exec, -1")
    e("v_add_u32 v%d, %d, v%d" % (HG, NW * ROWB, HG))
    e("s_add_u32 s%d, s%d, 1" % (PPH, PPH))
    e("s_cmp_lt_u32 s%d, %d" % (PPH, 2 if 0 < P["fc"] < 4 else 3))
    e("s_cbranch_scc1 L_merge")
    if 0 < P["fc"] < 4:
        last_gather()
    if P["stamp"] == 5:
        e("s_memrealtime s[%d:%d]" % (PT, PT + 1))
        e("s_waitcnt vmcnt(0)")
        e("s_memrealtime s[%d:%d]" % (PT + 2, PT + 3))
        srd(PS2, 82, 0x8000000)
        e("s_waitcnt lgkmcnt(0)")
        e("v_mov_b32 v%d, s%d" % (HX, PT))
        e("v_mov_b32 v%d, s%d" % (HX + 1, PT + 2))
        e("s_lshl_b32 s%d, s2, 3" % PE)
        e("s_add_u32 s%d, s%d, 0x400a000" % (PE, PE))
        e("s_mov_b64 exec, 1")
        e("buffer_store_dwordx2 v[%d:%d], off, s[%d:%d], s%d" % (HX, HX + 1, PS2, PS2 + 3, PE))
    e("s_endpgm")

    main_text = e.text()
    if P["nts"]:
        ls = []
        for l in main_text.split("\n"):
            w = l.split()
            if w and w[-1] == "sc1":
                big = w[0].endswith("x4")
                bit = (1 if big else 2) if w[0].startswith("buffer_store") else (4 if big else 8)
                if P["nts"] & bit:
                    l += " nt"
            ls.append(l)
        main_text = "\n".join(ls)
    RPW = 24
    k2 = NAME + "_kernel"
    e.lines.append(".globl %s" % k2)
    e.lines.append(".p2align 8")
    e.lines.append(".type %s,@function" % k2)
    e.lines.append(k2 + ":")
    e.wr = {}; e.tr = {}; e.sw = {}
    e("s_cmp_ge_u32 s2, %d" % H)
    e("s_cbranch_scc1 L_exit2")
    e("s_load_dwordx2 s[4:5], s[0:1], 56")
    e("s_load_dwordx2 s[6:7], s[0:1], 72")
    e("v_lshlrev_b32 v1, 2, v0")
    e("v_mov_b32 v2, 0")
    e("s_mul_i32 s16, s2, %d" % (RPW * PART_STRIDE))
    e("s_mov_b32 s10, %d" % (3 * NWG * PART_STRIDE))
    e("s_mov_b32 s11, 0x00020000")
    e("s_mov_b32 s14, %d" % (H * DH * 2))
    e("s_mov_b32 s15, 0x00020000")
    for k in range(1, RPW // 4):
        e("s_add_u32 s%d, s16, %d" % (16 + k, 4 * k * PART_STRIDE))
    e("s_waitcnt lgkmcnt(0)")
    e("s_mov_b32 s8, s6")
    e("s_and_b32 s9, s7, 0xffff")
    e("s_mov_b32 s12, s4")
    e("s_and_b32 s13, s5, 0xffff")
    MLB = 8
    OB = MLB + 2 * RPW
    for s in range(RPW):
        so = 16 + s // 4
        e("buffer_load_dwordx2 v[%d:%d], v2, s[8:11], s%d offen offset:%d" %
          (MLB + 2 * s, MLB + 2 * s + 1, so, (s % 4) * PART_STRIDE + DH * 4))
        e("buffer_load_dword v%d, v1, s[8:11], s%d offen offset:%d" % (OB + s, so, (s % 4) * PART_STRIDE))
    e("s_waitcnt vmcnt(0)")
    e("v_mov_b32 v4, v%d" % MLB)
    for s in range(1, RPW):
        e("v_max_f32 v4, v4, v%d" % (MLB + 2 * s))
    for s in range(RPW):
        e("v_sub_f32 v%d, v%d, v4" % (MLB + 2 * s, MLB + 2 * s))
    for s in range(RPW):
        e("v_exp_f32 v%d, v%d" % (MLB + 2 * s, MLB + 2 * s))
    e("v_mul_f32 v5, v%d, v%d" % (MLB, MLB + 1))
    e("v_mul_f32 v6, v%d, v%d" % (MLB, OB))
    for s in range(1, RPW):
        e("v_fmac_f32 v5, v%d, v%d" % (MLB + 2 * s, MLB + 2 * s + 1))
        e("v_fmac_f32 v6, v%d, v%d" % (MLB + 2 * s, OB + s))
    e("v_rcp_f32 v5, v5")
    e("v_mul_f32 v6, v6, v5")
    e("v_cvt_pk_bf16_f32 v6, v6, v6")
    e("s_mul_i32 s16, s2, %d" % (DH * 2))
    e("v_lshrrev_b32 v1, 1, v1")
    e("buffer_store_short v6, v1, s[12:15], s16 offen")
    e.lines.append("L_exit2:")
    e("s_endpgm")
    NV2 = OB + RPW

    def kd(name, nv, ns):
        acc = (nv + 3) // 4 * 4
        return """.amdhsa_kernel %s
  .amdhsa_next_free_vgpr %d
  .amdhsa_next_free_sgpr %d
  .amdhsa_accum_offset %d
  .amdhsa_group_segment_fixed_size 0
  .amdhsa_kernarg_size 80
  .amdhsa_user_sgpr_count 2
  .amdhsa_user_sgpr_kernarg_segment_ptr 1
  .amdhsa_system_sgpr_workgroup_id_x 1
.end_amdhsa_kernel
""" % (name, nv, ns, acc)

    diag = ""
    if P["diag"]:
        d = Emit4()
        d.lines += [".globl diag_kernel", ".p2align 8", ".type diag_kernel,@function", "diag_kernel:"]
        d("s_cmp_ge_u32 s2, 1")
        d("s_cbranch_scc1 L_dx")
        d("s_load_dwordx2 s[6:7], s[0:1], 72")
        d("s_memrealtime s[16:17]")
        d("v_lshlrev_b32 v1, 4, v0")
        d("s_mov_b32 s10, 0x8000000")
        d("s_mov_b32 s11, 0x00020000")
        d("s_waitcnt lgkmcnt(0)")
        d("s_mov_b32 s8, s6")
        d("s_and_b32 s9, s7, 0xffff")
        for k in range(16):
            d("s_mov_b32 s12, 0x%x" % (0x4000000 + k * 1024))
            d("buffer_load_dwordx4 v[%d:%d], v1, s[8:11], s12 offen" % (4 + 4 * k, 7 + 4 * k))
        d("s_waitcnt vmcnt(0)")
        d("v_readfirstlane_b32 s13, v4")
        d("v_mov_b32 v2, 0")
        d("v_mov_b32 v3, 0")
        for k in range(16):
            d("v_subrev_u32 v%d, s13, v%d" % (4 + 4 * k, 4 + 4 * k))
            d("v_subrev_u32 v%d, s13, v%d" % (5 + 4 * k, 4 + 4 * k + (P["diag"] & 3)))
            d("v_min_i32 v2, v2, v%d" % (4 + 4 * k))
            d("v_max_i32 v3, v3, v%d" % (5 + 4 * k))
        d("s_mov_b32 s14, 0")
        d("s_mov_b32 s15, 0")
        for l in range(64):
            d("v_readlane_b32 s18, v2, %d" % l)
            d("v_readlane_b32 s19, v3, %d" % l)
            d("s_nop 3")
            d("s_min_i32 s14, s14, s18")
            d("s_max_i32 s15, s15, s19")
        if P["diag"] & 96:
            d("s_mov_b32 s12, 0x4100000")
            d("buffer_load_dwordx4 v[8:11], off, s[8:11], s12")
            d("v_readfirstlane_b32 s18, v6")
            d("s_waitcnt vmcnt(0)")
            d("v_readfirstlane_b32 s19, v8")
            d("v_readfirstlane_b32 s20, v9")
            d("v_readfirstlane_b32 s21, v10")
            d("s_and_b32 s18, s18, %d" % P["dth"])
            d("s_min_u32 s18, s18, 1")
            d("s_cmp_eq_u32 s19, 0x13572468")
            d("s_cselect_b32 s20, s20, 0")
            d("s_cselect_b32 s21, s21, 0")
            d("s_add_u32 s20, s20, s18")
            d("s_add_u32 s21, s21, 1")
            d("v_mov_b32 v8, 0x13572468")
            d("v_mov_b32 v9, s20")
            d("v_mov_b32 v10, s21")
            d("s_mov_b64 exec, 1")
            d("buffer_store_dwordx4 v[8:11], off, s[8:11], s12")
            d("s_mov_b32 s15, s%d" % (20 if P["diag"] & 32 else 21))
        elif P["diag"] & 8:
            d("s_load_dwordx2 s[20:21], s[0:1], 64")
            d("s_waitcnt lgkmcnt(0)")
            d("s_sub_u32 s20, s20, 512")
            d("s_subb_u32 s21, s21, 0")
            d("s_load_dword s15, s[20:21], 0")
            d("s_waitcnt lgkmcnt(0)")
            d("s_and_b32 s15, s15, 0xffffff")
            d("s_sub_u32 s15, s15, %d" % (48 * 65536))
            d("s_abs_i32 s15, s15")
            d("s_lshr_b32 s15, s15, 2")
            if P["diag"] & 16:
                d("s_cmp_lt_u32 s15, %d" % (P["dth"] // 4))
                d("s_cselect_b32 s15, 3000, 0")
                d("s_and_b32 s14, s16, 0xf0")
                d("s_cmp_lt_u32 s14, %d" % (16 * P["drn"]))
                d("s_cselect_b32 s15, 3000, s15")
        elif P["diag"] & 4:
            d("s_sub_u32 s14, s16, s13")
            d("s_sub_u32 s15, s14, s15")
        else:
            d("s_sub_u32 s15, s15, s14")
        d("s_sub_u32 s15, s15, %d" % P["doff"])
        d("s_max_i32 s15, s15, 0")
        d("s_min_i32 s15, s15, 10000")
        d("s_mul_i32 s15, s15, %d" % P["dmul"])
        d("s_add_u32 s15, s15, s16")
        d.label("L_dl")
        d("s_memrealtime s[18:19]")
        d("s_waitcnt lgkmcnt(0)")
        d("s_sub_u32 s18, s18, s15")
        d("s_cmp_lt_i32 s18, 0")
        d("s_cbranch_scc1 L_dl")
        d.lines.append("L_dx:")
        d("s_endpgm")
        diag = d.text()
    out = HEADER.replace("gen.py", "gen6.py").format(params=" ".join("%s=%s" % kv for kv in sorted(P.items())))
    if FU:
        out += "; @launch kernel=%s grid=(%d,1,1) block=(%d,1,1) lds=%d\n" % (k1, NWG, (NW + NHX) * 64, LDS1)
    else:
        out += "; @launch kernel=%s grid=(%d,1,1) block=(%d,1,1) lds=%d\n" % (k1, NWG, (NW + NHX) * 64, LDS1)
        out += "; @launch kernel=%s grid=(%d,1,1) block=(%d,1,1) lds=%d\n" % (k2, H, DH, 0)
    if diag:
        out += "; @launch kernel=diag_kernel grid=(1,1,1) block=(64,1,1) lds=0\n"
    out += '.amdgcn_target "amdgcn-amd-amdhsa--gfx950"\n.text\n'
    out += main_text if FU else e.text()
    out += diag
    out += '.section .rodata,"a"\n.p2align 6\n'
    out += kd(k1, NVGPR + (8 if P["xb"] else 2 if P["stamp"] == 5 else 0), 102)
    if not FU:
        out += ".p2align 6\n"
        out += kd(k2, NV2, 24)
    if diag:
        out += ".p2align 6\n"
        out += kd("diag_kernel", 72, 24)
    return out


DEFAULTS = dict(grp="6-6-6", n0=3, trg=1, ta=14, tb=15, jit=1, pace=1, nr0=1, nr=3, nt="nt", ldspad=0, stamp=0, xkp=0, force=0, clip=1400,
                l2t=290, th=200, pf=1, ob=2, ox=0, ds=1, td=3, tdm=3, fuse=1, cw=1,
                lx=0, wo=0, ns0=4, tw=4, ov="0000", st="sc1", xv="", h4=0, bnt=0, vw=1, at=1, tc=40, tg=2, te=44, aq=16, ka=9, kb=2048, dmin=0, dmax=11,
                bc=1, cpk="9-17-25-33-41", cpv="1-9-17-25-33", rd=2, ka2=8, kb2=512, bmax=6, be=1, pw=2, il=1, xp=0, ss=0, eb=0, pfi=0, hs=0, l2p=0, gts="16-32-48-64-80", gn=8, gtol=25, gcap=1000, gq=0, gl2=0, xb=0, diag=0, doff=20000, dmul=8, fc=4, elk=1, cd=9, fd=0, prio=0, bp=0, bp0=0, bq=0, wl=2048, wt=9984, sw=1, dc=1, xs=0, cx=0, fb=0, ib=0, dth=4800, drn=6, ut=0, wb=0, nts=0)


def main():
    P = dict(DEFAULTS)
    outp = None
    args = sys.argv[1:]
    i = 0
    while i < len(args):
        a = args[i]
        if a == "-o":
            outp = args[i + 1]; i += 2; continue
        k, v = a.split("=", 1)
        assert k in P, k
        P[k] = type(P[k])(v.replace("+", " ")) if isinstance(P[k], str) else int(v)
        i += 1
    s = gen(P)
    if outp:
        open(outp, "w").write(s)
    else:
        sys.stdout.write(s)


if __name__ == "__main__":
    main()
```

```python
import re
import sys
import math
from gen import f32hex, HEADER, NAME, H, SKV, DH, G, NGRP, ROWB, HEADB
from gen4 import Emit4

PART_STRIDE = 1024
NW = 4
NH = 3
NWG = 256
NT = 48
WS_G = 8 << 20
FSTR = 4096 + 256
WS_ML = 0xe0000
WS_B = 0x120000
WS_L = 2 << 20
WS_T = 0x9c0000
WS_SIZE = 10 << 20
BIGNEG = 0xf149f2ca


def gen(P):
    global WS_L, WS_T, WS_G, WS_ML, WS_B
    WS_L = P["wl"] << 10
    WS_T = P["wt"] << 10
    WS_G = P["wg"] << 10
    WS_ML = P["wm"] << 10
    WS_B = P["wbi"] << 10
    assert P["sw"] or not P["dc"]
    GR = [int(x) for x in P["grp"].split("-")]
    assert sum(GR) == 18 and len(GR) >= 2
    NG = len(GR)
    GOFF = [sum(GR[:k]) for k in range(NG)]
    OV = [int(x) for x in P["ov"]]
    N0 = P["n0"]
    NR = P["nr"]
    TRG1 = N0 - P["trg"]
    TA = P["ta"]
    TB = P["tb"]
    assert 2 <= TRG1 < N0 < TA < TB < 16 and 1 <= NR <= 7 and N0 <= 8
    pol = (" " + P["nt"]) if P["nt"] else ""
    C = (DH ** -0.5) * math.log2(math.e)
    L_DEC = 0
    L_GO = 24
    L_PC = 36
    L_CF = 40
    L_FD = 52
    L_EV = 56
    L_CA = 64
    L_ML = 80
    L_TC = 128
    L_TD = 132
    L_EL = 136
    L_TM = 144
    L_GT = 208
    L_LG = 256
    PHI = 6144
    IMG = 3 * PHI
    L_PV = L_LG + IMG
    L_ACC = L_PV + 192 * 128
    LDS1 = max(L_ACC + 3 * NW * ROWB, P["ldspad"])

    e = Emit4()
    V_T = 1; V_J16 = 2; V_J8 = 3; V_LB0 = 4; V_PB0 = 5; V_PV = 6; V_PVN = 7; V_DO = 8; V_PO = 9; V_T0 = 10; V_T1 = 11
    V_ACC = 12; V_W = 24; V_RAW = 36
    V_OFF = 48; V_OFF6 = 49; V_TM = 50; V_BIG = 51; V_T2 = 52; V_Z = 53
    V_S = 54
    V_D = 60
    V_T128 = 62; V_TMX = 63
    V_RING = 64
    NVGPR = V_RING + 72
    S_G = 3; S_M = 4; S_N = 5; S_SPIN = 6; S_LDC = 7
    S_K = 8; S_V = 12; S_KS = 16; S_Q = 20; S_WS = 24
    S_WAVE = 28; S_CI = 29; S_I = 30; S_QOFF = 31
    S_T = 32
    S_EV = 40; S_STM = 42; S_HB = 44; S_768 = 45; S_384 = 46; S_MAGIC = 47
    S_NB = 48; S_TD = 49; S_XB = 50; S_LB = 53
    S_ST = 54; S_DBG = 56
    S_BO = 59; S_TW = 60; S_CPA = 62; S_NBO = 63; S_BP = 72; S_TH = 73; S_TT = 74
    S_MP = 64; S_MG = 66; S_MR = 68; S_MO = 70
    BC = P["bc"]
    NHX = NH + (1 if BC else 0)
    CPK = [int(x) for x in P["cpk"].split("-")] if BC and P["cpk"] else []
    CPV = [int(x) for x in P["cpv"].split("-")] if BC and P["cpv"] else []
    if BC:
        CPV.append(P["tc"])
        assert P["te"] == P["tc"] + P["tg"] + P["rd"] and len(CPK) + len(CPV) <= 16

    GTS = [int(x) for x in P["gts"].split("-")] if BC and P["gts"] else []

    def set_masks(ev, cps):
        mp = sum(1 << c for c in cps)
        allm = [(S_EV, ev | mp | (mp << P["tg"]) | (mp << (P["tg"] + P["rd"])))]
        if BC:
            allm += [(S_MP, mp), (S_MG, mp << P["tg"]), (S_MR, mp << (P["tg"] + P["rd"])), (S_MO, ev)]
        for r, v in allm:
            assert v < (1 << 48)
            e("s_mov_b32 s%d, 0x%x" % (r, v & 0xffffffff))
            e("s_mov_b32 s%d, 0x%x" % (r + 1, v >> 32))

    FU = P["fuse"]
    k1 = NAME + "_kernel" if FU else "part_kernel"
    e.lines.append(".globl %s" % k1)
    e.lines.append(".p2align 8")
    e.lines.append(".type %s,@function" % k1)
    e.lines.append(k1 + ":")
    e("s_cmp_ge_u32 s2, %d" % NWG)
    e("s_cbranch_scc1 L_exit1")
    e("s_load_dwordx16 s[64:79], s[0:1], 0")
    e("s_load_dwordx4 s[80:83], s[0:1], 64")
    if P["stamp"]:
        e("s_memrealtime s[%d:%d]" % (S_ST, S_ST + 1))
    e("v_lshrrev_b32 v%d, 6, v0" % V_T0)
    e("v_and_b32 v%d, 63, v0" % V_T1)
    e("v_readfirstlane_b32 s%d, v%d" % (S_WAVE, V_T0))
    if P["eb"] == 4:
        e("v_lshlrev_b32 v%d, 2, v%d" % (V_T0, V_T1))
        e("v_mov_b32 v%d, 0" % V_Z)
        e("ds_write_b32 v%d, v%d" % (V_T0, V_Z))
    e("s_lshr_b32 s%d, s2, 3" % S_G)
    e("s_and_b32 s%d, s2, 7" % S_M)
    e("s_lshr_b32 s%d, s2, 6" % S_T)
    e("s_xor_b32 s%d, s%d, s%d" % (S_T, S_T, S_M))
    e("s_lshr_b32 s%d, s%d, 1" % (S_NB, S_T))
    e("s_and_b32 s%d, s%d, 1" % (S_T, S_T))
    e("s_lshl_b32 s%d, s%d, 2" % (S_T, S_T))
    e("s_or_b32 s%d, s%d, s%d" % (S_NB, S_NB, S_T))
    if P["eb"] != 4:
        e("s_cmp_ge_u32 s%d, %d" % (S_WAVE, NW))
        e("s_cbranch_scc1 L_helper")

    def srd(dst, ptr, nbytes):
        e("s_mov_b32 s%d, s%d" % (dst, ptr))
        e("s_and_b32 s%d, s%d, 0xffff" % (dst + 1, ptr + 1))
        e("s_mov_b32 s%d, %d" % (dst + 2, nbytes))
        e("s_mov_b32 s%d, 0x00020000" % (dst + 3))

    def srd_ws(dst):
        srd(dst, 82, WS_SIZE)
        if P["wo"]:
            e("s_add_u32 s%d, s%d, %d" % (dst, dst, P["wo"] << 10))
            e("s_addc_u32 s%d, s%d, 0" % (dst + 1, dst + 1))

    def lds_wait(tag, vz, vt, st, off, cond, spin, vaddr=None):
        e("s_mov_b32 s%d, 0x100000" % spin)
        e.label("L_w" + tag)
        e("ds_read_b32 v%d, v%d offset:%d" % (vt, vz if vaddr is None else vaddr, off))
        e("s_sub_u32 s%d, s%d, 1" % (spin, spin))
        e("s_cbranch_scc1 L_exit1")
        e("s_waitcnt lgkmcnt(0)")
        e("v_readfirstlane_b32 s%d, v%d" % (st, vt))
        if cond == "nz":
            e("s_cmp_eq_u32 s%d, 0" % st)
        else:
            e("s_cmp_lt_u32 s%d, %s" % (st, cond))
        e("s_cbranch_scc1 L_w" + tag)

    TWN = [0]

    def twait(dl, tmp, step):
        TWN[0] += 1
        e.label("L_tw%d" % TWN[0])
        e("s_memrealtime s[%d:%d]" % (tmp, tmp + 1))
        e("s_waitcnt lgkmcnt(0)")
        e("s_sub_u32 s%d, s%d, s%d" % (tmp + 1, tmp, dl))
        e("s_cmp_lt_i32 s%d, 0" % (tmp + 1))
        e("s_cbranch_scc1 L_tw%d" % TWN[0])
        e("s_add_u32 s%d, s%d, %d" % (dl, tmp, step))

    def gate(b, tag, check):
        if b not in GTS:
            return
        if check:
            e("s_cmp_eq_u32 s%d, %d" % (S_I, b % 48))
            e("s_cbranch_scc0 L_gx" + tag)
        e("s_memrealtime s[%d:%d]" % (S_T + 4, S_T + 5))
        lds_wait("g" + tag, V_Z, V_T0, S_T, L_GT + 4 * GTS.index(b), "nz", S_SPIN)
        e("s_and_b32 s%d, s%d, 0xffff" % (S_T, S_T))
        e("s_cbranch_scc0 L_gx" + tag)
        if P["stamp"] == 5:
            e("s_lshl_b32 s%d, s%d, 16" % (S_T + 1, S_T))
            e("s_add_u32 s%d, s%d, s%d" % (S_NBO, S_NBO, S_T + 1))
        e("s_add_u32 s%d, s%d, s%d" % (S_T, S_T, S_T + 4))
        e.label("L_gl" + tag)
        e("s_memrealtime s[%d:%d]" % (S_T + 4, S_T + 5))
        e("s_waitcnt lgkmcnt(0)")
        e("s_sub_u32 s%d, s%d, s%d" % (S_T + 4, S_T + 4, S_T))
        e("s_cmp_lt_i32 s%d, 0" % (S_T + 4))
        e("s_cbranch_scc1 L_gl" + tag)
        e.label("L_gx" + tag)

    def get_table(kind, tag):
        if tag == "tv":
            gate(48, tag, False)
        else:
            for b in ((16, 32) if kind == "K" else (64, 80)):
                gate(b, "%s%d" % (tag, b), True)
        e("s_lshr_b32 s%d, s%d, 4" % (S_T + 1, S_I))
        e("s_lshl_b32 s%d, s%d, 2" % (S_T + 2, S_T + 1))
        if P["stamp"] == 6:
            e("s_memrealtime s[%d:%d]" % (S_T + 4, S_T + 5))
            e("s_lshl_b32 s%d, s2, 2" % S_T)
            e("s_add_u32 s%d, s%d, s%d" % (S_T, S_T, S_WAVE))
            e("s_cmp_eq_u32 s%d, 400" % S_T)
            e("s_cselect_b64 exec, 1, 0")
            e("s_waitcnt lgkmcnt(0)")
            e("s_sub_u32 s%d, s%d, s%d" % (S_T + 4, S_T + 4, S_ST))
            e("v_mov_b32 v%d, s%d" % (V_T1, S_T + 4))
            e("buffer_store_dword v%d, off, s[%d:%d], s%d offset:%d" % (V_T1, S_WS, S_WS + 3, S_T + 2, 40 if kind == "K" else 52))
            e("s_mov_b64 exec, -1")
        e("v_mov_b32 v%d, s%d" % (V_T1, S_T + 2))
        if kind == "K":
            load_q(S_T + 1, False)
        lds_wait(tag, V_Z, V_T0, S_T, L_DEC if kind == "K" else L_GO, "nz", S_SPIN, V_T1)
        e("s_and_b32 s%d, s%d, 7" % (S_N, S_T))
        e("s_xor_b32 s%d, s%d, s%d" % (S_N, S_N, S_NB))
        e("s_bitcmp1_b32 s%d, 3" % S_T)
        e("s_cselect_b64 vcc, -1, 0")
        e("v_cndmask_b32 v%d, v%d, v%d, vcc" % (V_TM, V_T128, V_TMX))

    def load_q(ph, track):
        e("s_lshl_b32 s%d, s%d, 5" % (S_QOFF, ph))
        e("s_add_u32 s%d, s%d, s%d" % (S_QOFF, S_QOFF, S_G))
        e("s_mul_i32 s%d, s%d, 171" % (S_QOFF, S_QOFF))
        e("s_lshr_b32 s%d, s%d, 9" % (S_QOFF, S_QOFF))
        e("s_mul_i32 s%d, s%d, %d" % (S_QOFF, S_QOFF, DH * 2))
        for c in range(3):
            r = V_RAW + 2 * c
            s = "buffer_load_dwordx2 v[%d:%d], v%d, s[%d:%d], s%d offen offset:%d" % (r, r + 1, V_J8, S_Q, S_Q + 3, S_QOFF, c * 128)
            if track:
                e.vmem(s, "p")
            else:
                e(s)

    def tile_addr(kind):
        ch, a, b = S_T, S_T + 1, S_T + 2
        e("s_lshr_b32 s%d, s%d, 6" % (a, S_CI))
        e("s_lshl_b32 s%d, s%d, 11" % (a, a))
        e("s_and_b32 s%d, s%d, 63" % (ch, S_CI))
        e("s_add_u32 s%d, s%d, s%d" % (ch, ch, a))
        e("s_add_u32 s%d, s%d, s%d" % (ch, ch, S_HB))
        e("s_bfe_u32 s%d, s%d, 0x20003" % (a, ch))
        e("s_and_b32 s%d, s%d, 4" % (b, ch))
        e("s_or_b32 s%d, s%d, s%d" % (a, a, b))
        e("s_xor_b32 s%d, s%d, s%d" % (a, a, S_N))
        e("s_lshl_b32 s%d, s%d, 5" % (S_XB, ch))
        e("s_or_b32 s%d, s%d, s%d" % (S_XB, S_XB, a))
        e("s_lshl_b32 s%d, s%d, 4" % (S_XB, S_XB))
        e("s_or_b32 s%d, s%d, 1" % (S_XB, S_XB))
        if kind == "V":
            e("s_lshl_b32 s%d, s%d, 7" % (S_LB, S_CI))
            if P["ut"]:
                e("s_cmp_ge_u32 s%d, %d" % (S_I, NT - P["ut"]))
                e("s_cselect_b64 vcc, -1, 0")
                e("v_cndmask_b32 v%d, v%d, v%d, vcc" % (V_TM, V_TM, V_TMX))
        e("v_xor_b32 v%d, s%d, v%d" % (V_T0, S_XB, V_TM))
        e("v_mul_hi_u32 v%d, v%d, s%d" % (V_T0, V_T0, S_MAGIC))
        e("v_lshrrev_b32 v%d, 1, v%d" % (V_T0, V_T0))
        e("v_and_b32 v%d, 15, v%d" % (V_T1, V_T0))
        e("v_cmp_eq_u32 vcc, 5, v%d" % V_T1)
        e("v_mad_u32_u24 v%d, v%d, s%d, v%d" % (V_OFF, V_T0, S_768, V_J16))
        e("v_add_u32 v%d, %d, v%d" % (V_T1, 5 * ROWB, V_OFF))
        e("v_cndmask_b32 v%d, v%d, v%d, vcc" % (V_OFF6, V_BIG, V_T1))
        if kind == "K":
            e("v_lshrrev_b32 v%d, 6, v%d" % (V_T0, V_T0))
            e("v_mad_u32_u24 v%d, v%d, s%d, v%d" % (V_PO, V_T0, S_384, V_J8))
        else:
            e("v_add_u32 v%d, s%d, v%d" % (V_T0, S_LB, V_PB0))

    def issue_params(kind):
        if kind == "K":
            if P["xkp"] & 2:
                return
            if P["xkp"] & 1024:
                e("s_cmp_lt_u32 s%d, 16" % S_I)
                e("s_cselect_b64 exec, -1, 0")
            for c in range(3):
                r = V_RAW + 6 + 2 * c
                e.vmem("buffer_load_dwordx2 v[%d:%d], v%d, s[%d:%d], 0 offen offset:%d%s" %
                       (r, r + 1, V_PO, S_KS, S_KS + 3, c * 128, " nt" if P["bnt"] & 4 else ""), "p")
            if P["xkp"] & 1024:
                e("s_mov_b64 exec, -1")
            if P["xb"] & 2:
                for c in range(3):
                    r = NVGPR + 2 + 2 * c
                    e.vmem("buffer_load_dwordx2 v[%d:%d], v%d, s[%d:%d], 0 offen offset:%d" % (r, r + 1, V_PO, 76, 79, c * 128), "p")
        else:
            e("ds_read_b32 v%d, v%d" % (V_PVN, V_T0))

    def issue_group(k, kind, pol=pol):
        srdb = S_K if kind == "K" else S_V
        for l in range(GOFF[k], GOFF[k] + GR[k]):
            r = V_RING + l * 4
            if l < 15:
                vo, off = V_OFF, l * 256
            else:
                vo, off = V_OFF6, (l - 15) * 256
            e.vmem("buffer_load_dwordx4 v[%d:%d], v%d, s[%d:%d], 0 offen offset:%d%s" %
                   (r, r + 3, vo, srdb, srdb + 3, off, pol), "g%d" % k)

    def compute_w():
        e.wait_tag("p")
        for p in range(6):
            rq = V_RAW + p; rs = V_RAW + 6 + p
            i0 = 2 * p
            e("v_lshlrev_b32 v%d, 16, v%d" % (V_T0, rq))
            e("v_lshlrev_b32 v%d, 16, v%d" % (V_W + i0, rs))
            e("v_and_b32 v%d, 0xffff0000, v%d" % (V_T1, rq))
            e("v_and_b32 v%d, 0xffff0000, v%d" % (V_W + i0 + 1, rs))
            e("v_mul_f32 v%d, v%d, v%d" % (V_W + i0, V_W + i0, V_T0))
            e("v_mul_f32 v%d, v%d, v%d" % (V_W + i0 + 1, V_W + i0 + 1, V_T1))

    def advance(kind, to_v, tag):
        nkind = "V" if to_v else kind
        if to_v:
            e("s_mov_b32 s%d, s%d" % (S_CI, S_WAVE))
            e("s_mov_b32 s%d, 0" % S_I)
            get_table("V", "tv")
            ev = (1 << 16) | (1 << 32)
            if P["at"] and not BC:
                ev |= (1 << P["tc"]) | (1 << (P["tc"] + P["tg"])) | (1 << P["te"])
            e("s_mov_b32 s%d, %d" % (S_TD, NT - P["td"] if P["td"] else 255))
            if P["tt"]:
                e("s_mov_b32 s%d, 255" % S_TT)
            set_masks(ev, CPV)
        else:
            e("s_add_u32 s%d, s%d, %d" % (S_CI, S_CI, NW))
            e("s_add_u32 s%d, s%d, 1" % (S_I, S_I))
            if tag:
                e("s_bitcmp1_b64 s[%d:%d], s%d" % (S_EV, S_EV + 1, S_I))
                sfx = tag if isinstance(tag, str) else ""
                e("s_cbranch_scc1 L_ev%s%s" % (kind, sfx))
                e.flush()
                e.label("L_evret%s%s" % (kind, sfx))
        if P["stamp"] == 4:
            e("s_memrealtime s[%d:%d]" % (S_DBG, S_DBG + 1))
            e("s_add_u32 s%d, s%d, 4" % (S_DBG + 2, S_DBG + 2))
            e("s_waitcnt lgkmcnt(0)")
            e("v_mov_b32 v%d, s%d" % (V_T2, S_DBG))
            e("s_mov_b64 exec, 1")
            e("buffer_store_dword v%d, off, s[%d:%d], s%d" % (V_T2, S_WS, S_WS + 3, S_DBG + 2))
            e("s_mov_b64 exec, -1")
        if P["stamp"] == 5:
            e("s_memrealtime s[%d:%d]" % (S_DBG, S_DBG + 1))
            e("s_add_u32 m0, m0, 1")
            e("s_waitcnt lgkmcnt(0)")
            e("v_writelane_b32 v%d, s%d, m0" % (NVGPR + (1 if kind == "V" else 0), S_DBG))
            if to_v:
                e("s_mov_b32 m0, -1")
        tile_addr(nkind)
        issue_params(nkind)

    def compute(k, kind):
        for l in range(GOFF[k], GOFF[k] + GR[k]):
            q, c = l // 3, l % 3
            base = V_RING + l * 4
            for r in range(4):
                e("v_cvt_f32_i32 v%d, v%d" % (base + r, base + r))
            if kind == "K":
                s = V_S + q
                for r in range(4):
                    if c == 0 and r == 0:
                        e("v_mul_f32 v%d, v%d, v%d" % (s, base, V_W))
                    else:
                        e("v_fmac_f32 v%d, v%d, v%d" % (s, base + r, V_W + 4 * c + r))
                if c == 2:
                    e.defer(["v_add_f32_dpp v%d, v%d, v%d row_ror:%d row_mask:0xf bank_mask:0xf" % (s, s, s, kk)
                             for kk in (8, 4, 2)] +
                            ["v_add_f32_dpp v%d, v%d, v%d row_ror:1 row_mask:0xf bank_mask:0x%x" %
                             (V_D + (q & 1), s, s, 1 << (q >> 1))])
            else:
                for r in range(4):
                    e("v_fmac_f32_dpp v%d, v%d, v%d row_newbcast:%d row_mask:0xf bank_mask:0xf" %
                      (V_ACC + 4 * c + r, V_PV, base + r, q))
        e.flush()

    EFS = []

    def finish(kind, to_v):
        if kind == "K":
            e("s_mov_b64 exec, s[%d:%d]" % (S_STM, S_STM + 1))
            e("ds_write_b64 v%d, v[%d:%d]" % (V_LB0, V_D, V_D + 1))
            e("s_mov_b64 exec, -1")
            if not to_v:
                if P["ef"]:
                    tag = "L_ef%d" % len(EFS)
                    EFS.append(tag)
                    e("s_and_b32 s%d, s%d, 15" % (S_T, S_I))
                    e("s_cbranch_scc0 %s" % tag)
                    e.lines.append(tag + "r:")
                e("v_add_u32 v%d, 48, v%d" % (V_LB0, V_LB0))
                compute_w()
        if kind == "V" or to_v:
            e("s_waitcnt lgkmcnt(0)")
            e("v_mov_b32 v%d, v%d" % (V_PV, V_PVN))

    ELS = []

    def elect(k, kind, lo=0):
        if P["fc"] == 4 and kind == "V" and k == max(P["elk"], lo):
            tag = "L_el%d" % len(ELS)
            ELS.append(tag)
            e("s_cmp_eq_u32 s%d, %d" % (S_I, NT))
            e("s_cbranch_scc1 %s" % tag)
            e.lines.append(tag + "r:")

    def body(kind, to_v=False, first=False):
        nkind = "V" if to_v else kind
        for k in range(NG):
            ov = OV[k] if not first else 0
            if ov:
                i = e.vm.index("g%d" % k) + GR[k] - ov
                e("s_waitcnt vmcnt(%d)" % (len(e.vm) - i))
                e.vm = e.vm[i:]
            else:
                e.wait_tag("g%d" % k)
            if k + 1 < NG:
                if not first:
                    issue_group(k + 1, kind)
            else:
                issue_group(0, nkind)
            if ov:
                e("s_waitcnt vmcnt(%d)" % (len(e.vm) - ov))
                e.vm = e.vm[ov:]
            if k == NG - 2:
                advance(kind, to_v, not first)
            elect(k, kind, NG - 2)
            compute(k, kind)
        finish(kind, to_v)

    DKV = {}

    def body_deep(mode):
        if mode == 3:
            advance("V", False, False)
        for k in range(NG):
            i = e.vm.index("g%d" % k) + GR[k]
            e("s_waitcnt vmcnt(%d)" % (len(e.vm) - i))
            e.vm = e.vm[i:]
            if P["tt"] and k < 2:
                e.lines.append("L_dk%d:" % k)
                DKV[k] = list(e.vm)
            if mode == 2:
                issue_group((k + 2) % NG, "V")
                if k == NG - 3:
                    advance("V", False, False)
            elect(k, "V")
            compute(k, "V")
            if mode == 3:
                issue_group(k, "V", "" if P["xkp"] & 256 else pol)
        finish("V", False)

    def body_boost(kind):
        for k in range(1, NG):
            issue_group(k, kind)
        e("s_sub_u32 s%d, s%d, 1" % (S_BO, S_BO))
        if P["stamp"] == 5:
            e("s_add_u32 s%d, s%d, 256" % (S_NBO, S_NBO))
        advance(kind, False, "B")
        for k in range(NG):
            e.wait_tag("g%d" % k)
            if k == NG - 1 and not P["be"]:
                issue_group(0, kind)
            elect(k, kind)
            compute(k, kind)
            if k == 0 and P["be"]:
                issue_group(0, kind)
        finish(kind, False)

    def lds_inc(off, vz, vt):
        e("v_mov_b32 v%d, 1" % vt)
        e("s_mov_b64 exec, 1")
        e("ds_add_u32 v%d, v%d offset:%d" % (vz, vt, off))
        e("s_mov_b64 exec, -1")

    if P["prio"]:
        e("s_setprio %d" % P["prio"])
    e("v_lshrrev_b32 v%d, 4, v%d" % (V_T, V_T1))
    e("v_and_b32 v%d, 15, v%d" % (V_T2, V_T1))
    e("v_lshlrev_b32 v%d, 4, v%d" % (V_J16, V_T2))
    e("v_lshlrev_b32 v%d, 3, v%d" % (V_J8, V_T2))
    e("v_lshlrev_b32 v%d, 7, v%d" % (V_T128, V_T))
    e("v_and_b32 v%d, 0x70, v0" % V_TMX)
    e("v_or_b32 v%d, v%d, v%d" % (V_TMX, V_TMX, V_T128))
    e("v_mov_b32 v%d, v%d" % (V_TM, V_TMX))
    if P["h4"]:
        e("v_and_b32 v%d, 0x%x, v%d" % (V_T128, 0xffffff8f | (P["h4"] << 4), V_TMX))
    e("s_mov_b32 s%d, %d" % (S_768, ROWB))
    e("s_mov_b32 s%d, %d" % (S_384, DH * 2))
    e("s_mov_b32 s%d, 0xaaaaaaab" % S_MAGIC)
    e("v_mov_b32 v%d, 0xc0000000" % V_BIG)
    e("s_lshl_b32 s%d, s%d, 6" % (S_HB, S_G))
    e("s_mov_b32 s%d, s%d" % (S_N, S_NB))
    e("s_mov_b32 s%d, s%d" % (S_CI, S_WAVE))
    tile_addr("K")
    SS = P["ss"]
    EB = P["eb"]
    if SS:
        e("s_memrealtime s[84:85]")
    if EB == 3:
        e("s_barrier")
    e("s_waitcnt lgkmcnt(0)")
    if SS:
        e("s_memrealtime s[86:87]")
    if EB == 2:
        e("s_barrier")
    if EB == 4:
        e("s_cmp_ge_u32 s%d, %d" % (S_WAVE, NW))
        e("s_barrier")
        e("s_cbranch_scc1 L_helper")
    e("s_mov_b32 s%d, 0" % S_I)
    if P["xb"] & 2:
        srd(76, 72, H * NGRP * DH * 2)
    if P["pfi"]:
        srd(S_Q, 64, H * DH * 2)
        load_q(S_I, True)
        srd(S_KS, 70, H * NGRP * DH * 2)
        issue_params("K")
    srd(S_K, 66, H * HEADB)
    issue_group(0, "K")
    if EB == 1:
        e("s_barrier")
    if not P["pfi"]:
        srd(S_Q, 64, H * DH * 2)
        load_q(S_I, True)
        srd(S_KS, 70, H * NGRP * DH * 2)
        issue_params("K")
    if P["ds"]:
        for k in range(1, NG):
            issue_group(k, "K")
    if SS:
        e("s_memrealtime s[88:89]")
    srd(S_V, 68, H * HEADB)
    if P["stamp"] == 6:
        srd(S_WS, 80, 256)
    elif P["stamp"]:
        srd(S_WS, 82, 0x8000000)
    if P["stamp"] == 5:
        e("s_mov_b32 m0, -1")
    if P["stamp"] in (4, 5):
        e("s_mul_i32 s%d, s2, %d" % (S_DBG + 2, NW))
        e("s_add_u32 s%d, s%d, s%d" % (S_DBG + 2, S_DBG + 2, S_WAVE))
        e("s_lshl_b32 s%d, s%d, 9" % (S_DBG + 2, S_DBG + 2))
        e("s_add_u32 s%d, s%d, 0x4010000" % (S_DBG + 2, S_DBG + 2))
    e("v_lshlrev_b32 v%d, 5, v%d" % (V_T1, V_T))
    e("v_bfe_u32 v%d, v0, 4, 3" % V_LB0)
    e("v_mul_u32_u24 v%d, s%d, v%d" % (V_LB0, S_768, V_LB0))
    e("v_lshl_add_u32 v%d, v%d, 1, v%d" % (V_LB0, V_T2, V_LB0))
    e("s_lshr_b32 s%d, s%d, 1" % (S_T, S_WAVE))
    e("s_mul_i32 s%d, s%d, 24" % (S_T, S_T))
    e("s_add_u32 s%d, s%d, %d" % (S_T, S_T, L_LG))
    e("v_add_u32 v%d, s%d, v%d" % (V_LB0, S_T, V_LB0))
    e("v_and_b32 v%d, 7, v%d" % (V_PB0, V_T2))
    e("v_lshl_add_u32 v%d, v%d, 2, v%d" % (V_PB0, V_PB0, V_T1))
    e("v_add_u32 v%d, %d, v%d" % (V_PB0, L_PV, V_PB0))
    e("v_lshlrev_b32 v%d, 2, v%d" % (V_DO, V_T))
    e("v_add_u32 v%d, v%d, v%d" % (V_DO, V_J16, V_DO))
    e("s_mul_i32 s%d, s%d, %d" % (S_T, S_WAVE, ROWB))
    e("s_add_u32 s%d, s%d, %d" % (S_T, S_T, L_ACC))
    e("v_add_u32 v%d, s%d, v%d" % (V_DO, S_T, V_DO))
    e("v_mov_b32 v%d, 0" % V_Z)
    e("v_mov_b32 v%d, 0" % V_D)
    e("v_mov_b32 v%d, 0" % (V_D + 1))
    e("s_mov_b32 s%d, 0x01110111" % S_STM)
    e("s_mov_b32 s%d, 0x01110111" % (S_STM + 1))
    ev = (1 << TRG1) | (1 << N0) | (3 << 16) | (3 << 32) | (((1 << TA) | (1 << TB)) * 0x100010001)
    set_masks(ev, CPK)
    if BC:
        e("s_mov_b32 s%d, %d" % (S_BO, P["ib"] & 15))
        e("s_mov_b32 s%d, 0" % S_NBO)
        e("s_mov_b32 s%d, 0" % S_LDC)
        e("s_mov_b32 s%d, %d" % (S_CPA, L_TM))
    for i in range(12):
        e("v_mov_b32 v%d, 0" % (V_ACC + i))
    if SS:
        e("s_memrealtime s[90:91]")
    if not EB:
        e("s_barrier")
    if SS:
        e("s_memrealtime s[92:93]")
        e("s_waitcnt vmcnt(23)")
        e("s_memrealtime s[94:95]")
        e("s_waitcnt vmcnt(18)")
        e("s_memrealtime s[96:97]")
    compute_w()
    if SS:
        e("s_memrealtime s[98:99]")
        e("s_waitcnt lgkmcnt(0)")
        for k in range(8):
            e("v_writelane_b32 v%d, s%d, %d" % (NVGPR + 1, 84 + 2 * k, 48 + k))
    steady = ["g0"] * GR[0]
    if P["fb"]:
        advance("K", False, False)
        for k in range(NG):
            if "g%d" % k in e.vm:
                i = e.vm.index("g%d" % k) + GR[k]
                e("s_waitcnt vmcnt(%d)" % (len(e.vm) - i))
                e.vm = e.vm[i:]
            compute(k, "K")
            if k == P["fb"] - 1:
                issue_group(0, "K")
        finish("K", False)
        assert e.vm == steady, (e.vm, steady)
    elif P["ds"]:
        body("K", first=True)
    if P["ib"] & 16:
        e("s_branch L_kchk")
    e.vm = list(steady)
    e.lines.append(".p2align 6")
    e.label("L_kloop")
    body("K")
    assert e.vm == steady, (e.vm, steady)
    if BC:
        e.label("L_kchk")
        e("s_cmp_lg_u32 s%d, 0" % S_BO)
        e("s_cbranch_scc1 L_kboost")
        e.label("L_kchk2")
    e("s_cmp_lg_u32 s%d, %d" % (S_I, NT - 1))
    e("s_cbranch_scc1 L_kloop")
    body("K", True)
    lds_inc(L_CF + 8, V_Z, V_T1)
    if P["stamp"] == 1:
        e("s_memrealtime s[%d:%d]" % (S_DBG, S_DBG + 1))
    e.lines.append(".p2align 6")
    e.label("L_vloop")
    body("V")
    assert e.vm == steady, (e.vm, steady)
    if BC:
        e.label("L_vchk")
    if P["td"] or P["at"]:
        e("s_cmp_eq_u32 s%d, s%d" % (S_I, S_TD))
        e("s_cbranch_scc1 %s" % ("L_tail0" if P["tt"] else "L_deep"))
    if BC:
        e("s_cmp_lg_u32 s%d, 0" % S_BO)
        e("s_cbranch_scc1 L_vboost")
    e("s_and_b32 s%d, s%d, 15" % (S_T, S_I))
    e("s_cbranch_scc1 L_vloop")
    e.label("L_vend")
    for c in range(3):
        a = V_ACC + 4 * c
        e("v_permlane32_swap_b32 v%d, v%d" % (a, a + 2))
        e("v_permlane32_swap_b32 v%d, v%d" % (a + 1, a + 3))
    for c in range(3):
        a = V_ACC + 4 * c
        e("v_add_f32 v%d, v%d, v%d" % (a, a, a + 2))
        e("v_add_f32 v%d, v%d, v%d" % (a + 1, a + 1, a + 3))
    for c in range(3):
        a = V_ACC + 4 * c
        e("v_permlane16_swap_b32 v%d, v%d" % (a, a + 1))
    e("s_lshr_b32 s%d, s%d, 2" % (S_T, S_I))
    e("v_mov_b32 v%d, s%d" % (V_T0, S_T))
    for c in range(3):
        a = V_ACC + 4 * c
        e("v_add_f32 v%d, v%d, v%d" % (a, a, a + 1))
        e("ds_write_b32 v%d, v%d offset:%d" % (V_DO, a, c * 256))
    lds_inc(L_CA - 4, V_T0, V_T1)
    e("v_add_u32 v%d, %d, v%d" % (V_DO, NW * ROWB, V_DO))
    for i in range(12):
        e("v_mov_b32 v%d, 0" % (V_ACC + i))
    if BC:
        e("s_cmp_lg_u32 s%d, 0" % S_BO)
        e("s_cbranch_scc1 L_vboost2")
        e.label("L_vend2")
    e("s_cmp_lg_u32 s%d, %d" % (S_I, NT))
    e("s_cbranch_scc1 L_vloop")
    if P["stamp"] == 5 and BC:
        e("s_or_b32 s%d, s%d, s%d" % (S_LDC, S_LDC, S_NBO))
    if P["stamp"] == 6:
        e("s_memrealtime s[%d:%d]" % (S_T + 2, S_T + 3))
        e("s_not_b32 s%d, s%d" % (S_T, S_ST))
        e("v_mov_b32 v%d, s%d" % (V_ACC, S_T))
        e("s_waitcnt lgkmcnt(0)")
        e("v_mov_b32 v%d, s%d" % (V_ACC + 1, S_T + 2))
        e("s_mov_b64 exec, 1")
        e("s_cmp_lg_u32 s%d, 0" % S_WAVE)
        e("s_cbranch_scc1 L_exit1")
        e("buffer_atomic_umax v%d, off, s[%d:%d], 0 offset:32" % (V_ACC, S_WS, S_WS + 3))
        e("buffer_atomic_umax v%d, off, s[%d:%d], 0 offset:36" % (V_ACC + 1, S_WS, S_WS + 3))
    elif P["stamp"]:
        e("s_memrealtime s[%d:%d]" % (S_T + 2, S_T + 3))
        e("s_getreg_b32 s%d, hwreg(HW_REG_XCC_ID)" % (S_T + 4))
        e("s_waitcnt lgkmcnt(0)")
        e("v_mov_b32 v%d, s%d" % (V_ACC + 0, S_ST))
        e("v_mov_b32 v%d, s%d" % (V_ACC + 1, S_T + 2))
        e("v_mov_b32 v%d, s%d" % (V_ACC + 2, S_T + 4))
        e("v_mov_b32 v%d, s%d" % (V_ACC + 3, S_LDC if P["stamp"] == 5 else S_DBG))
        e("s_mul_i32 s%d, s2, %d" % (S_T, NW))
        e("s_add_u32 s%d, s%d, s%d" % (S_T, S_T, S_WAVE))
        e("s_lshl_b32 s%d, s%d, 4" % (S_T, S_T))
        e("s_add_u32 s%d, s%d, 0x4000000" % (S_T, S_T))
        e("buffer_store_dwordx4 v[%d:%d], v%d, s[%d:%d], s%d offen" % (V_ACC, V_ACC + 3, V_Z, S_WS, S_WS + 3, S_T))
        if P["stamp"] == 5:
            e("v_and_b32 v%d, 63, v0" % V_T0)
            e("v_lshlrev_b32 v%d, 2, v%d" % (V_T0, V_T0))
            e("s_mov_b32 exec_hi, 0xffff")
            e("buffer_store_dword v%d, v%d, s[%d:%d], s%d offen offset:4" % (NVGPR, V_T0, S_WS, S_WS + 3, S_DBG + 2))
            e("s_mov_b32 exec_hi, -1")
            e("buffer_store_dword v%d, v%d, s[%d:%d], s%d offen offset:196" % (NVGPR + 1, V_T0, S_WS, S_WS + 3, S_DBG + 2))
    e.lines.append("L_exit1:")
    e("s_endpgm")

    if P["td"] or P["at"]:
        e.label("L_deep")
        e.vm = list(steady)
        for k in range(1, P["tdm"] if NG == 3 else NG):
            issue_group(k, "V")
        deep = list(e.vm)
        e.lines.append(".p2align 6")
        e.label("L_dloop")
        body_deep(P["tdm"])
        assert e.vm == deep, (e.vm, deep)
        e("s_cmp_lg_u32 s%d, %d" % (S_I, NT))
        e("s_cbranch_scc1 L_dloop")
        e("s_branch L_vend")
        if P["tt"]:
            assert P["tdm"] == 3 and NG == 3 and BC

            def tcheck(k, dst):
                e("s_waitcnt lgkmcnt(0)")
                e("s_sub_u32 s%d, s%d, s%d" % (S_TW, S_TW, S_TH))
                e("s_add_u32 s%d, s%d, %d" % (S_TH, S_TH, P["d3"]))
                if P["stamp"] == 5:
                    e("s_add_u32 s%d, s%d, 1" % (S_LDC, S_LDC))
                e("s_cmp_ge_i32 s%d, 0" % S_TW)
                e("s_cbranch_scc1 %s" % dst)
            e.label("L_tail0")
            e("s_cmp_lg_u32 s%d, 0" % S_TT)
            e("s_cbranch_scc1 L_deep")
            e.lines.append(".p2align 6")
            e.label("L_tail")
            e.vm = list(steady)
            e("s_memrealtime s[%d:%d]" % (S_TW, S_TW + 1))
            tcheck(0, "L_deep")
            e.wait_tag("g0")
            e("s_memrealtime s[%d:%d]" % (S_TW, S_TW + 1))
            issue_group(1, "V")
            tcheck(1, "L_dB")
            vb = list(e.vm)
            compute(0, "V")
            e.wait_tag("g1")
            e("s_memrealtime s[%d:%d]" % (S_TW, S_TW + 1))
            issue_group(2, "V")
            advance("V", False, False)
            tcheck(2, "L_dC")
            vc = list(e.vm)
            elect(1, "V", 1)
            compute(1, "V")
            e.wait_tag("g2")
            issue_group(0, "V")
            elect(2, "V", 1)
            compute(2, "V")
            finish("V", False)
            assert e.vm == steady
            e("s_cmp_lg_u32 s%d, %d" % (S_I, NT))
            e("s_cbranch_scc1 L_tail")
            e("s_branch L_vend")
            e.label("L_dB")
            e.vm = vb
            issue_group(2, "V")
            advance("V", False, False)
            assert e.vm == DKV[0]
            e("s_branch L_dk0")
            e.label("L_dC")
            e.vm = vc
            issue_group(0, "V")
            assert e.vm == DKV[1]
            e("s_branch L_dk1")

    if BC:
        e.label("L_kboost")
        e("s_cmp_eq_u32 s%d, %d" % (S_I, NT - 1))
        e("s_cbranch_scc1 L_kchk2")
        e.vm = list(steady)
        body_boost("K")
        assert e.vm == steady, (e.vm, steady)
        e("s_branch L_kchk")
        e.label("L_vboost")
        e("s_and_b32 s%d, s%d, 15" % (S_T, S_I))
        e("s_cbranch_scc0 L_vend")
        e.label("L_vboost2")
        e("s_cmp_eq_u32 s%d, %d" % (S_I, NT))
        e("s_cbranch_scc1 L_vend2")
        body_boost("V")
        assert e.vm == steady, (e.vm, steady)
        e("s_branch L_vchk")

    for tag in EFS:
        e.label(tag)
        e("s_lshr_b32 s%d, s%d, 2" % (S_T, S_I))
        e("v_mov_b32 v%d, s%d" % (V_T0, S_T))
        lds_inc(L_CF - 4, V_T0, V_T1)
        e("s_branch %sr" % tag)
    for tag in ELS:
        e.label(tag)
        lds_inc(L_EL, V_Z, V_T1)
        e("s_branch %sr" % tag)

    def pace_events(kind, x):
        e("s_bitcmp1_b64 s[%d:%d], s%d" % (S_MP, S_MP + 1, S_I))
        e("s_cbranch_scc0 L_pa%s%s" % (kind, x))
        e("s_memrealtime s[%d:%d]" % (S_TW, S_TW + 1))
        e("s_mov_b32 s%d, s%d" % (S_BP, S_BO))
        lds_inc(L_TC, V_Z, V_T1)
        e.label("L_pa%s%s" % (kind, x))
        e("s_bitcmp1_b64 s[%d:%d], s%d" % (S_MG, S_MG + 1, S_I))
        e("s_cbranch_scc0 L_pb%s%s" % (kind, x))
        lds_inc(L_TC, V_Z, V_T1)
        e.label("L_pb%s%s" % (kind, x))
        e("s_bitcmp1_b64 s[%d:%d], s%d" % (S_MR, S_MR + 1, S_I))
        e("s_cbranch_scc0 L_pc%s%s" % (kind, x))
        e("v_mov_b32 v%d, s%d" % (V_T1, S_CPA))
        e("ds_read_b32 v%d, v%d" % (V_T0, V_T1))
        lds_inc(L_TC, V_Z, V_T1)
        e("s_add_u32 s%d, s%d, 4" % (S_CPA, S_CPA))
        e("s_waitcnt lgkmcnt(0)")
        e("v_readfirstlane_b32 s%d, v%d" % (S_T, V_T0))
        e("s_cmp_eq_u32 s%d, 0" % S_T)
        e("s_cbranch_scc1 L_pc%s%s" % (kind, x))
        if kind == "V" and P["tt"]:
            e("s_cmp_eq_u32 s%d, %d" % (S_I, P["te"]))
            e("s_cbranch_scc0 L_pe%s" % x)
            e("s_add_u32 s%d, s%d, %d" % (S_TH, S_T, P["tx"] - 3 * (NT - P["te"]) * P["d3"]))
            e("s_mov_b32 s%d, %d" % (S_TD, P["te"]))
            e("s_mov_b32 s%d, 0" % S_TT)
            e("s_mov_b32 s%d, 0" % S_BO)
            e("s_branch L_pc%s%s" % (kind, x))
            e.label("L_pe%s" % x)
        e("s_sub_u32 s%d, s%d, s%d" % (S_T, S_TW, S_T))
        e("s_max_i32 s%d, s%d, -4096" % (S_T, S_T))
        e("s_min_i32 s%d, s%d, 4096" % (S_T, S_T))
        if kind == "V" and not P["tt"]:
            e("s_cmp_eq_u32 s%d, %d" % (S_I, P["te"]))
            e("s_cbranch_scc0 L_pd%s" % x)
            e("s_mul_i32 s%d, s%d, %d" % (S_T, S_T, P["ka"]))
            e("s_add_u32 s%d, s%d, %d" % (S_T, S_T, P["kb"]))
            e("s_ashr_i32 s%d, s%d, 10" % (S_T, S_T))
            e("s_max_i32 s%d, s%d, %d" % (S_T, S_T, P["dmin"]))
            e("s_min_i32 s%d, s%d, %d" % (S_T, S_T, min(P["dmax"], NT - P["te"])))
            e("s_sub_u32 s%d, %d, s%d" % (S_TD, NT, S_T))
            e("s_cmp_eq_u32 s%d, %d" % (S_TD, NT))
            e("s_cselect_b32 s%d, 255, s%d" % (S_TD, S_TD))
            e("s_mov_b32 s%d, 0" % S_BO)
            if P["stamp"] == 5:
                e("s_mov_b32 s%d, s%d" % (S_LDC, S_TD))
            e("s_branch L_pc%s%s" % (kind, x))
            e.label("L_pd%s" % x)
        e("s_mul_i32 s%d, s%d, %d" % (S_T, S_T, P["ka2"]))
        e("s_add_u32 s%d, s%d, %d" % (S_T, S_T, P["kb2"]))
        e("s_ashr_i32 s%d, s%d, 10" % (S_T, S_T))
        e("s_sub_u32 s%d, s%d, s%d" % (S_T, S_T, S_BP))
        e("s_add_u32 s%d, s%d, s%d" % (S_T, S_T, S_BO))
        e("s_max_i32 s%d, s%d, 0" % (S_T, S_T))
        e("s_min_i32 s%d, s%d, %d" % (S_BO, S_T, P["bmax"]))
        e.label("L_pc%s%s" % (kind, x))
        e("s_bitcmp1_b64 s[%d:%d], s%d" % (S_MO, S_MO + 1, S_I))
        e("s_cbranch_scc0 L_evret%s%s" % (kind, x))

    for x in (("", "B") if BC else ("",)):
        e.label("L_evK" + x)
        if BC:
            pace_events("K", x)
        e("s_and_b32 s%d, s%d, 15" % (S_T, S_I))
        e("s_cbranch_scc0 L_evK2" + x)
        e("s_cmp_eq_u32 s%d, %d" % (S_I, N0))
        e("s_cbranch_scc1 L_evK2" + x)
        e("s_lshr_b32 s%d, s%d, 2" % (S_T + 1, S_I))
        e("s_andn2_b32 s%d, s%d, 3" % (S_T + 1, S_T + 1))
        e("s_add_u32 s%d, s%d, %d" % (S_T + 1, S_T + 1, 236 if P["ef"] else L_CF - 4))
        e("s_cmp_eq_u32 s%d, 1" % S_T)
        e("s_cselect_b32 s%d, s%d, %d" % (S_T, S_T + 1, L_EV + 4))
        e("s_cselect_b32 s%d, %d, 0" % (S_T + 1, PHI - 768))
        e("v_add_u32 v%d, s%d, v%d" % (V_LB0, S_T + 1, V_LB0))
        e("s_cmp_eq_u32 s%d, %d" % (S_I, TRG1))
        e("s_cselect_b32 s%d, %d, s%d" % (S_T, L_EV, S_T))
        e("v_mov_b32 v%d, s%d" % (V_T0, S_T))
        lds_inc(0, V_T0, V_T1)
        e("s_branch L_evretK" + x)
        e.label("L_evK2" + x)
        if P["stamp"] == 2:
            e("s_cmp_eq_u32 s%d, %d" % (S_I, N0))
            e("s_cbranch_scc0 L_ns2" + x)
            e("s_memrealtime s[%d:%d]" % (S_DBG, S_DBG + 1))
            e.label("L_ns2" + x)
        get_table("K", "tk" + x)
        if P["stamp"] == 3:
            e("s_cmp_eq_u32 s%d, %d" % (S_I, N0))
            e("s_cbranch_scc0 L_evretK")
            e("s_memrealtime s[%d:%d]" % (S_DBG, S_DBG + 1))
        e("s_branch L_evretK" + x)
        e.label("L_evV" + x)
        if BC:
            pace_events("V", x)
        elif P["at"]:
            e("s_and_b32 s%d, s%d, 15" % (S_T, S_I))
            e("s_cbranch_scc0 L_evV2")
            e("s_cmp_eq_u32 s%d, %d" % (S_I, P["te"]))
            e("s_cbranch_scc1 L_evV3")
            lds_inc(L_TC, V_Z, V_T1)
            e("s_branch L_evretV")
            e.label("L_evV3")
            e("ds_read_b32 v%d, v%d offset:%d" % (V_T0, V_Z, L_TD))
            e("s_waitcnt lgkmcnt(0)")
            e("v_readfirstlane_b32 s%d, v%d" % (S_T, V_T0))
            e("s_cmp_eq_u32 s%d, 0" % S_T)
            e("s_cselect_b32 s%d, s%d, s%d" % (S_TD, S_TD, S_T))
            if P["stamp"] == 5:
                e("s_mov_b32 s%d, s%d" % (S_LDC, S_T))
            e("s_branch L_evretV")
            e.label("L_evV2")
        get_table("V", "tv2" + x)
        e("s_branch L_evretV" + x)

    PG = S_G; PM = S_M
    PNB = 5; PP = 6; PBK = 7
    PB = 8; PWS = 12; PDB = 16
    PO = 20; PFL = 21; PBASE = 22; PPR = 90
    PD = 24
    POF = 32
    PT = 40
    PMN = 44; PJ = 45; PRN = 46; PNR = 47
    PE = 48
    PRB = 56; PACC = 58; PGL = 59; PSP = 60; PPH = 61; PSG = 62; PG0 = 63
    PDC = 84
    PS2 = 92; PS3 = 96
    HL = 1; HZ = 2; HW = 3; HA = 4; HB_ = 5; HC = 6; HD = 7; HK = 8; HV = 9; HE = 10; HF = 11; HR = 12; HG = 13
    HN = 14; HT2 = 15
    HX = 16
    BIAS = 65536
    e.wr = {}; e.tr = {}
    e.label("L_helper")
    e("s_sub_u32 s%d, s%d, %d" % (PP, S_WAVE, NW))
    e("s_mov_b32 s%d, s%d" % (PNB, S_NB))
    e("v_and_b32 v%d, 63, v0" % HL)
    e("v_mov_b32 v%d, 0" % HZ)
    e("s_mul_i32 s%d, s%d, %d" % (PGL, PG, 8 * FSTR))
    e("s_add_u32 s%d, s%d, %d" % (PGL, PGL, WS_G))
    if EB and EB != 4:
        e("s_cmp_lg_u32 s%d, 0" % PP)
        e("s_cbranch_scc1 L_hbar")
        e("v_lshlrev_b32 v%d, 2, v%d" % (HB_, HL))
        e("ds_write_b32 v%d, v%d" % (HB_, HZ))
        e("s_waitcnt lgkmcnt(0)")
        e.label("L_hbar")
        e("s_barrier")
    if BC:
        e("s_cmp_eq_u32 s%d, 3" % PP)
        e("s_cbranch_scc1 L_h3")
    LB = P["lb"]
    PA = PPH
    PKB = 91
    VLN = 20 if LB else 10
    ELN = 256 + VLN - 21
    if LB:
        assert P["sw"] and P["dc"] and P["vw"]
        e("s_mul_i32 s%d, s%d, 25" % (PE, PP))
        e("s_sub_u32 s%d, s%d, 22" % (PE, PE))
        e("s_cmp_lt_i32 s%d, s%d" % (PG, PE))
        e("s_cselect_b32 s%d, 1, 0" % PPR)
        e("s_cbranch_scc0 L_noprobe1")
        e("s_add_u32 s%d, s%d, 2" % (PE + 1, PG))
        e("s_mul_i32 s%d, s%d, 205" % (PE, PE + 1))
        e("s_lshr_b32 s%d, s%d, 10" % (PE, PE))
        e("s_mul_i32 s%d, s%d, 5" % (PBK, PE))
        e("s_sub_u32 s%d, s%d, s%d" % (PBK, PE + 1, PBK))
        e("s_add_u32 s%d, s%d, 1" % (PBK, PBK))
        e("s_lshl_b32 s%d, s%d, 1" % (PE + 1, PG))
        e("s_add_u32 s%d, s%d, s%d" % (PE + 1, PE + 1, PP))
        e("s_sub_u32 s%d, s%d, 1" % (PE + 1, PE + 1))
        e("s_cmp_lt_u32 s%d, 3" % PG)
        e("s_cselect_b32 s%d, 0, s%d" % (PBK, PBK))
        e("s_cselect_b32 s%d, s%d, s%d" % (PE + 1, PE + 1, PE))
    else:
        e("s_mul_i32 s%d, s%d, 10" % (PE, PP))
        e("s_sub_u32 s%d, s%d, 7" % (PE, PE))
        e("s_cmp_lt_i32 s%d, s%d" % (PG, PE))
        e("s_cselect_b32 s%d, 1, 0" % PPR)
        e("s_cbranch_scc0 L_noprobe1")
        e("s_max_u32 s%d, s%d, 1" % (PBK, PG))
        e("s_sub_u32 s%d, s%d, 1" % (PBK, PBK))
        e("s_lshr_b32 s%d, s%d, 1" % (PBK, PBK))
        e("s_lshl_b32 s%d, s%d, 1" % (PE + 1, PG))
        e("s_add_u32 s%d, s%d, s%d" % (PE + 1, PE + 1, PP))
        e("s_sub_u32 s%d, s%d, 1" % (PE + 1, PE + 1))
        e("s_bitcmp1_b32 s%d, 0" % PG)
        e("s_cselect_b32 s%d, 1, 4" % PE)
        e("s_cmp_eq_u32 s%d, 0" % PBK)
        e("s_cselect_b32 s%d, s%d, s%d" % (PE + 1, PE + 1, PE))
    e("s_and_b32 s%d, s%d, 1" % (PE, PE + 1))
    e("s_mul_i32 s%d, s%d, 20" % (PO, PE + 1))
    e("s_add_u32 s%d, s%d, s%d" % (PO, PO, PE))
    e("s_add_u32 s%d, s%d, 2" % (PO, PO))
    if LB:
        e("s_lshr_b32 s%d, s%d, 5" % (PKB, PO))
        e("s_xor_b32 s%d, s%d, s%d" % (PKB, PKB, PM))
    e("s_lshl_b32 s%d, s%d, 21" % (PO, PO))
    e("s_xor_b32 s%d, s%d, s%d" % (PFL, PM, PP))
    e("s_and_b32 s%d, s%d, 1" % (PFL, PFL))
    e("s_lshr_b32 s%d, s%d, 2" % (PE + 1, PM))
    e("s_xor_b32 s%d, s%d, s%d" % (PE, PE, PE + 1))
    e("s_xor_b32 s%d, s%d, s%d" % (PE, PE, PFL))
    e("s_lshl_b32 s%d, s%d, 13" % (PE, PE))
    e("s_lshl_b32 s%d, s%d, 14" % (PE + 1, PP))
    e("s_and_b32 s%d, s%d, 0x4000" % (PE + 1, PE + 1))
    e("s_or_b32 s%d, s%d, s%d" % (PE, PE, PE + 1))
    for u in range(8):
        e("s_xor_b32 s%d, s%d, 0x%x" % (POF + u, PE, ((u & 1) << 13) | (((u >> 1) & 1) << 12) | ((u >> 2) << 14)))
    e("v_and_b32 v%d, 7, v%d" % (HW, HL))
    e("v_lshlrev_b32 v%d, 12, v%d" % (HW, HW))
    e("s_lshl_b32 s%d, s%d, 8" % (PE, PM))
    e("v_add_u32 v%d, s%d, v%d" % (HW, PE, HW))
    e("s_mov_b32 s%d, %d" % (PB + 2, H * HEADB))
    e("s_mov_b32 s%d, 0x00020000" % (PB + 3))
    e("s_cmp_ge_u32 s%d, 3" % PBK)
    e("s_cselect_b32 s%d, 3, 0" % PE)
    e("s_sub_u32 s%d, s%d, s%d" % (PE, PBK, PE))
    e("s_lshl_b32 s%d, s%d, 28" % (PE, PE))
    e("s_add_u32 s%d, s%d, s%d" % (PO, PO, PE))
    e("s_cmp_ge_u32 s%d, 3" % PBK)
    e("s_waitcnt lgkmcnt(0)")
    e("s_cselect_b32 s%d, s68, s66" % PB)
    e("s_cselect_b32 s%d, s69, s67" % (PBASE + 1))
    e("s_and_b32 s%d, s%d, 0xffff" % (PB + 1, PBASE + 1))
    if not P["sw"]:
        e("s_mov_b64 exec, 0xff")
        e("buffer_load_dword v%d, v%d, s[%d:%d], s%d offen" % (HA, HW, PB, PB + 3, PO))
        e("s_mov_b64 exec, -1")
    e("s_add_u32 s%d, s%d, s%d" % (PBASE, PB, PO))
    e("s_addc_u32 s%d, s%d, 0" % (PBASE + 1, PBASE + 1))
    e("s_lshl_b32 s%d, s%d, 8" % (PE, PM))
    if P["sw"]:
        e("s_add_u32 s%d, s%d, s%d" % (PRB, PBASE, PE))
        e("s_addc_u32 s%d, s%d, 0" % (PRB + 1, PBASE + 1))
        for u in range(8):
            e("s_load_dword s%d, s[%d:%d], 0x%x" % (PD + u, PRB, PRB + 1, u * 4096))
        if P["dc"]:
            srd_ws(PWS)
            e("s_lshl_b32 s%d, s2, 1" % PE)
            e("s_add_u32 s%d, s%d, s%d" % (PE, PE, PP))
            e("s_mul_i32 s%d, s%d, %d" % (PE, PE, 6 * FSTR))
            e("s_add_u32 s%d, s%d, %d" % (PE, PE, WS_G - 6 * FSTR))
            e("v_mul_u32_u24 v%d, %d, v%d" % (HB_, FSTR, HL))
            e("v_mov_b32 v%d, 0" % (HZ + 1))
            if LB:
                e("v_mov_b32 v%d, 0" % (HZ + 2))
            e("s_cmp_eq_u32 s%d, 0" % PBK)
            e("s_cselect_b64 exec, 0x3f, 0")
            e("buffer_store_dwordx%d v[%d:%d], v%d, s[%d:%d], s%d offen sc1" % (3 if LB else 2, HZ, HZ + (2 if LB else 1), HB_, PWS, PWS + 3, PE))
            e("s_mov_b64 exec, -1")
        for k in range(1, P["sw"]):
            e("s_waitcnt lgkmcnt(0)")
            e("s_load_dword s%d, s[%d:%d], 0x%x" % (PD, PRB, PRB + 1, k * 4096 + 128))
    else:
        e("s_add_u32 s%d, s%d, 128" % (PE, PE))
        e("s_load_dword s%d, s[%d:%d], s%d" % (PJ, PBASE, PBASE + 1, PE))
    if P["pb"]:
        if P["pb"] == 1:
            e("s_cmp_lg_u32 s%d, 0" % PBK)
            e("s_cbranch_scc1 L_noprobe2")
        else:
            e("s_branch L_noprobe2")
    e.label("L_noprobe1")
    e("s_waitcnt lgkmcnt(0)")
    if P["pb"]:
        e.label("L_noprobe2")
    srd_ws(PWS)
    srd(PDB, 80, 256)
    if not EB:
        e("s_cmp_lg_u32 s%d, 0" % PP)
        e("s_cbranch_scc1 L_hbar")
        e("v_lshlrev_b32 v%d, 2, v%d" % (HB_, HL))
        e("ds_write_b32 v%d, v%d" % (HB_, HZ))
        e("s_waitcnt lgkmcnt(0)")
        e.label("L_hbar")
        e("s_barrier")
    if P["hs"]:
        e("s_mov_b32 s%d, 0" % (PD + 4))
    e("s_cmp_eq_u32 s%d, 0" % PPR)
    e("s_cbranch_scc1 L_role")
    e("s_mov_b32 s%d, 1" % PRN)
    e("s_mov_b32 s%d, 0" % PACC)
    if LB:
        for k in range(3):
            e("s_mov_b32 s%d, 0" % (PA + k))
        if LB & 2:
            e("s_mov_b32 m0, 0")
    e("s_cmp_eq_u32 s%d, 0" % PBK)
    e("s_cselect_b32 s%d, %d, %d" % (PNR, P["nr0"], NR))
    if not P["sw"]:
        e("s_waitcnt vmcnt(0)")
    if P["pb"]:
        e("s_waitcnt lgkmcnt(0)")
    e.label("L_round")
    e("s_add_u32 s%d, s%d, s%d" % (PE, PM, PRN))
    e("s_and_b32 s%d, s%d, 7" % (PE, PE))
    e("s_lshl_b32 s%d, s%d, 8" % (PE, PE))
    e("s_add_u32 s%d, s%d, s%d" % (PRB, PBASE, PE))
    e("s_addc_u32 s%d, s%d, 0" % (PRB + 1, PBASE + 1))
    e("s_mov_b32 s%d, -1" % PMN)
    e("s_memtime s[%d:%d]" % (PT, PT + 1))
    e("s_waitcnt lgkmcnt(0)")
    for u in range(8):
        a = PT + 2 * (u & 1); b = PT + 2 * ((u + 1) & 1)
        e("s_load_dword s%d, s[%d:%d], s%d" % (PJ, PRB, PRB + 1, POF + u))
        e("s_waitcnt lgkmcnt(0)")
        e("s_memtime s[%d:%d]" % (b, b + 1))
        e("s_waitcnt lgkmcnt(0)")
        e("s_sub_u32 s%d, s%d, s%d" % (PD + u, b, a))
        if u + 1 == P["ns0"] and u < 7:
            for k in range(u + 1, 8):
                e("s_mov_b32 s%d, -1" % (PD + k))
            e("s_cmp_eq_u32 s%d, 0" % PBK)
            e("s_cbranch_scc1 L_few")
    if LB & 2:
        for u in range(8):
            e("v_writelane_b32 v%d, s%d, m0" % (HX, PD + u))
            e("s_add_u32 m0, m0, 1")
    e.label("L_few")
    for u in range(8):
        e("s_min_u32 s%d, s%d, %d" % (PD + u, PD + u, P["clip"]))
        e("s_min_u32 s%d, s%d, s%d" % (PMN, PMN, PD + u))
    e("s_cmp_lt_u32 s%d, %d" % (PMN, P["l2t"]))
    e("s_cbranch_scc1 L_skip")
    for u in range(8):
        e("s_%s_u32 s%d, s%d, s%d" % ("add" if u & 1 else "sub", PACC, PACC, PD + u))
    if LB:
        e("s_cmp_eq_u32 s%d, 0" % PBK)
        e("s_cbranch_scc1 L_skip")
        if P["cl2"]:
            for h in range(2):
                e("s_min_u32 s%d, s%d, s%d" % (PE + h, PD + h, PD + 2 + h))
                e("s_min_u32 s%d, s%d, s%d" % (PE + 2, PD + 4 + h, PD + 6 + h))
                e("s_min_u32 s%d, s%d, s%d" % (PE + h, PE + h, PE + 2))
                e("s_add_u32 s%d, s%d, %d" % (PE + h, PE + h, P["cl2"]))
            for u in range(8):
                e("s_min_u32 s%d, s%d, s%d" % (PD + u, PD + u, PE + (u & 1)))
        for u in range(8):
            for k, bit in enumerate(((u ^ (u >> 1)) & 1, (u >> 2) & 1, (u ^ (u >> 2)) & 1)):
                e("s_%s_u32 s%d, s%d, s%d" % ("add" if bit else "sub", PA + k, PA + k, PD + u))
    e.label("L_skip")
    e("s_add_u32 s%d, s%d, 1" % (PRN, PRN))
    e("s_cmp_le_u32 s%d, s%d" % (PRN, PNR))
    e("s_cbranch_scc1 L_round")
    e("s_sub_u32 s%d, 0, s%d" % (PE, PACC))
    e("s_cmp_eq_u32 s%d, 0" % PFL)
    e("s_cselect_b32 s%d, s%d, s%d" % (PACC, PACC, PE))
    e("s_add_u32 s%d, s%d, 0x%x" % (PACC, PACC, BIAS + (1 << 24)))
    e("v_mov_b32 v%d, s%d" % (HA, PACC))
    e("s_mov_b64 exec, 1")
    e("s_lshl_b32 s%d, s%d, 2" % (PE, PBK))
    e("s_add_u32 s%d, s%d, 124" % (PE, PE))
    e("s_cmp_eq_u32 s%d, 0" % PBK)
    e("s_cbranch_scc0 L_post")
    if P["dc"]:
        e("s_waitcnt vmcnt(0)")
    e("ds_add_rtn_u32 v%d, v%d, v%d offset:%d" % (HB_, HZ, HA, L_PC))
    e("s_mov_b32 s%d, 0" % PE)
    e("s_waitcnt lgkmcnt(0)")
    e("v_add_u32 v%d, v%d, v%d" % (HA, HA, HB_))
    e("v_cmp_ne_u32 vcc, 0, v%d" % HB_)
    e("s_and_b64 exec, exec, vcc")
    if P["vw"]:
        e("buffer_atomic_add v%d, off, s[%d:%d], s%d" % (HA, PDB, PDB + 3, PE))
        e("s_branch L_posted")
        e.label("L_post")
        lds_wait("vw", HZ, HE, PE, L_DEC, "nz", PSP)
        if LB:
            e("s_lshr_b32 s%d, s%d, 1" % (PE, PKB))
            e("s_xor_b32 s%d, s%d, s%d" % (PE, PE, PFL))
            e("s_sub_u32 s%d, 0, s%d" % (PE + 1, PA))
            e("s_bitcmp1_b32 s%d, 0" % PE)
            e("s_cselect_b32 s%d, s%d, s%d" % (PA, PE + 1, PA))
            e("s_xor_b32 s%d, s%d, s%d" % (PE, PKB, PFL))
            e("s_bitcmp1_b32 s%d, 0" % PM)
            e("s_cselect_b32 s%d, s%d, s%d" % (PE, PKB, PE))
            e("s_cselect_b32 s%d, s%d, s%d" % (PA + 1, PA + 1, PA + 2))
            e("s_sub_u32 s%d, 0, s%d" % (PE + 1, PA + 1))
            e("s_bitcmp1_b32 s%d, 0" % PE)
            e("s_cselect_b32 s%d, s%d, s%d" % (PA + 1, PE + 1, PA + 1))
            for k in range(2):
                e("s_add_u32 s%d, s%d, 0x%x" % (PA + k, PA + k, BIAS + (1 << 24)))
                e("v_writelane_b32 v%d, s%d, %d" % (HA, PA + k, k + 1))
            e("s_lshl_b32 s%d, s%d, 2" % (PE, PBK))
            e("s_and_b32 s%d, s%d, 1" % (PE + 1, PM))
            e("s_or_b32 s%d, s%d, s%d" % (PE, PE, PE + 1))
            e("s_lshr_b32 s%d, s%d, 1" % (PE + 1, PM))
            e("s_and_b32 s%d, s%d, 2" % (PE + 1, PE + 1))
            e("s_or_b32 s%d, s%d, s%d" % (PE, PE, PE + 1))
            e("s_mul_i32 s%d, s%d, %d" % (PE, PE, FSTR))
            e("s_add_u32 s%d, s%d, %d" % (PE, PE, WS_G + 252 * FSTR))
            e("s_mov_b64 exec, 7")
            e("v_lshlrev_b32 v%d, 2, v%d" % (HB_, HL))
            e("buffer_atomic_add v%d, v%d, s[%d:%d], s%d offen" % (HA, HB_, PWS, PWS + 3, PE))
            if LB & 2:
                e("s_mov_b64 exec, -1")
                e("s_memrealtime s[%d:%d]" % (PT, PT + 1))
                e("v_mov_b32 v%d, s%d" % (HX + 1, POF))
                e("v_mov_b32 v%d, s%d" % (HX + 2, PO))
                e("s_waitcnt lgkmcnt(0)")
                e("v_mov_b32 v%d, s%d" % (HX + 3, PT))
                srd(PB, 82, 0x8000000)
                e("s_lshl_b32 s%d, s2, 10" % PE)
                e("s_add_u32 s%d, s%d, 0x4090000" % (PE, PE))
                e("v_lshlrev_b32 v%d, 4, v%d" % (HW, HL))
                e("buffer_store_dwordx4 v[%d:%d], v%d, s[%d:%d], s%d offen" % (HX, HX + 3, HW, PB, PB + 3, PE))
        else:
            e("s_mul_i32 s%d, s%d, %d" % (PE, PG, FSTR))
            e("s_add_u32 s%d, s%d, %d" % (PE, PE, WS_G + 253 * FSTR))
            e("buffer_atomic_add v%d, off, s[%d:%d], s%d" % (HA, PWS, PWS + 3, PE))
        e.label("L_posted")
    else:
        e.label("L_post")
        e("buffer_atomic_add v%d, off, s[%d:%d], s%d" % (HA, PDB, PDB + 3, PE))
    e("s_mov_b64 exec, -1")
    if P["hs"]:
        if P["hs"] == 2:
            e("s_waitcnt vmcnt(0)")
        e("s_memrealtime s[%d:%d]" % (PD + 4, PD + 5))
    e.label("L_role")
    e("s_cmp_eq_u32 s%d, 0" % PP)
    e("s_cbranch_scc1 L_h0")
    e("s_cmp_eq_u32 s%d, 2" % PP)
    e("s_cbranch_scc1 L_h2")

    def wave_reduce(regs, op, tmp):
        for kk in (8, 4, 2, 1):
            for r in regs:
                e("%s_dpp v%d, v%d, v%d row_ror:%d row_mask:0xf bank_mask:0xf" % (op, r, r, r, kk))
        for sw in ("v_permlane32_swap_b32", "v_permlane16_swap_b32"):
            for r, t in zip(regs, tmp):
                e("v_mov_b32 v%d, v%d" % (t, r))
            for r, t in zip(regs, tmp):
                e("%s v%d, v%d" % (sw, r, t))
            for r, t in zip(regs, tmp):
                e("%s v%d, v%d, v%d" % (op, r, r, t))

    def decode(tag, nl, off, cnt, rounds, dst, b0):
        vw = b0 and P["vw"]
        lds_wait("e" + tag, HZ, HE, PE, L_EV + (4 if b0 else 0), "nz" if b0 else str(P["tw"]), PSP)
        if vw:
            e("v_mul_u32_u24 v%d, %d, v%d" % (HD, FSTR, HL))
            e("s_mov_b32 s%d, %d" % (PE, WS_G + 256 * FSTR))
            e("v_lshrrev_b32 v%d, 1, v%d" % (HB_, HB_))
        e("s_mov_b64 exec, 0x%x" % ((1 << (2 * nl if vw else nl)) - 1))
        e("s_mov_b32 s%d, 0x40000" % PSP)
        if P["hs"] and not b0:
            e("s_memrealtime s[%d:%d]" % (PD, PD + 1))
        if P["l2p"] and not b0:
            e("buffer_load_dword v%d, v%d, s[%d:%d], 0 offen offset:%d" % (HA, HB_, PDB, PDB + 3, off))
            e("s_branch L_pollw" + tag)
        if not P["xkp"] & 4:
            e.label("L_poll" + tag)
            if vw:
                e("buffer_load_dword v%d, v%d, s[%d:%d], s%d offen sc1" % (HA, HD, PWS, PWS + 3, PE))
            else:
                e("buffer_load_dword v%d, v%d, s[%d:%d], 0 offen offset:%d sc1" % (HA, HB_, PDB, PDB + 3, off))
            e("s_sub_u32 s%d, s%d, 1" % (PSP, PSP))
            e("s_cbranch_scc1 L_exit1")
            e.lines.append("L_pollw%s:" % tag)
            e("s_waitcnt vmcnt(0)")
            e("v_lshrrev_b32 v%d, 24, v%d" % (HC, HA))
            e("v_cmp_ne_u32 vcc, %d, v%d" % (cnt // 2 if vw else cnt, HC))
            e("s_cbranch_vccnz L_poll" + tag)
        if vw:
            e("v_add_u32_dpp v%d, v%d, v%d quad_perm:[1,0,3,2] row_mask:0xf bank_mask:0xf" % (HA, HA, HA))
            e("s_mov_b64 exec, 0x%x" % (0x5555 & ((1 << (2 * nl)) - 1)))
        th = P["th"] * cnt * rounds * (8 if b0 else P["ns0"]) // 8
        e("v_and_b32 v%d, 0xffffff, v%d" % (HA, HA))
        e("v_subrev_u32 v%d, %d, v%d" % (HA, cnt * BIAS, HA))
        if P["stamp"] == 6 and b0:
            e("s_cmp_lg_u32 s2, 100")
            e("s_cbranch_scc1 L_nodbg")
            e("buffer_store_dword v%d, v%d, s[%d:%d], 0 offen offset:4" % (HA, HB_, PDB, PDB + 3))
            e.label("L_nodbg")
        e("v_lshrrev_b32 v%d, 30, v%d" % (HC, HA))
        e("v_and_b32 v%d, 2, v%d" % (HC, HC))
        e("v_add_u32 v%d, %d, v%d" % (HA, th, HA))
        e("v_cmp_gt_u32 vcc, %d, v%d" % (2 * th, HA))
        e("v_cndmask_b32 v%d, v%d, 8, vcc" % (HC, HC))
        if P["force"] == 1:
            e("v_mov_b32 v%d, 8" % HC)
        if P["force"] >= 2:
            e("s_mov_b32 s%d, 0x%x" % (PE, 0x7000000 + 128 * (P["force"] - 2)))
            e("s_load_dwordx4 s[%d:%d], s[82:83], s%d" % (PS2, PS2 + 3, PE))
            e("s_waitcnt lgkmcnt(0)")
            for l in range(nl):
                b = b0 + l
                e("s_lshr_b64 s[%d:%d], s[%d:%d], %d" % (PE, PE + 1, PS2 + 2 * (b // 3), PS2 + 2 * (b // 3) + 1, 16 * (b % 3)))
                e("s_and_b32 s%d, s%d, %d" % (PE, PE, P["ob"]))
                e("s_xor_b32 s%d, s%d, %d" % (PE, PE, P["ox"]))
                e("v_writelane_b32 v%d, s%d, %d" % (HC, PE, 2 * l if vw else l))
        e("v_or_b32 v%d, 16, v%d" % (HC, HC))
        if P["xv"] and vw:
            e("v_lshlrev_b32 v%d, 1, v%d" % (HA, HL))
            e("v_lshrrev_b32 v%d, v%d, %d" % (HA, HA, 0) if False else "v_mov_b32 v%d, 0x%x" % (HD, int(str(P["xv"])[::-1], 16)))
            e("v_lshrrev_b32 v%d, v%d, v%d" % (HA, HA, HD))
            e("v_and_b32 v%d, 7, v%d" % (HA, HA))
            e("v_xor_b32 v%d, v%d, v%d" % (HC, HC, HA))
        e("ds_write_b32 v%d, v%d offset:%d" % (HB_, HC, dst))
        if P["hs"] and not b0:
            e("s_memrealtime s[%d:%d]" % (PD + 2, PD + 3))
            srd(PS2, 82, 0x8000000)
            e("s_waitcnt lgkmcnt(0)")
            e("v_mov_b32 v%d, s%d" % (HX, PD))
            e("v_mov_b32 v%d, s%d" % (HX + 1, PD + 2))
            e("v_mov_b32 v%d, s%d" % (HX + 2, PSP))
            e("v_mov_b32 v%d, s%d" % (HX + 3, PD + 4))
            e("s_lshl_b32 s%d, s2, 4" % PE)
            e("s_add_u32 s%d, s%d, 0x4008000" % (PE, PE))
            e("buffer_store_dwordx4 v[%d:%d], off, s[%d:%d], s%d" % (HX, HX + 3, PS2, PS2 + 3, PE))
        e("s_mov_b64 exec, -1")

    if not P["dc"]:
        e("s_cmp_lg_u32 s2, %d" % (NWG - 1))
        e("s_cbranch_scc1 L_nolead")
        e("v_mul_u32_u24 v%d, %d, v%d" % (HB_, FSTR, HL))
        e("v_mov_b32 v%d, 0" % (HZ + 1))
        for k in range(5 if P["vw"] else 4):
            e("s_mov_b32 s%d, %d" % (PE + k, WS_G + k * 64 * FSTR))
            if k == 4:
                e("s_mov_b64 exec, 0x%x" % (0x1fffff if P["fc"] else 0x3ff))
            e("buffer_store_dwordx2 v[%d:%d], v%d, s[%d:%d], s%d offen sc1" % (HZ, HZ + 1, HB_, PWS, PWS + 3, PE + k))
        e("v_mov_b32 v%d, 0x%x" % (HA, BIAS + (1 << 24)))
        e("s_mov_b64 exec, 1")
        e("s_waitcnt vmcnt(0)")
        e("buffer_atomic_add v%d, off, s[%d:%d], 0" % (HA, PDB, PDB + 3))
        e("s_mov_b64 exec, -1")
        if P["hs"]:
            if P["hs"] == 2:
                e("s_waitcnt vmcnt(0)")
            e("s_memrealtime s[%d:%d]" % (PD + 4, PD + 5))
        e.label("L_nolead")
    e("v_lshlrev_b32 v%d, 2, v%d" % (HB_, HL))
    decode("a", 1, 0, 48 if P["dc"] else 49, P["nr0"], L_DEC, 0)
    if LB:
        DA = HX; DB = HX + 1; DC = HX + 2; DW = HX + 4
        lds_wait("eb", HZ, HE, PE, L_EV + 4, "nz", PSP)
        e("v_mul_u32_u24 v%d, %d, v%d" % (HD, FSTR, HL))
        e("s_mov_b32 s%d, %d" % (PE, WS_G + 256 * FSTR))
        e("s_mov_b64 exec, 0xfffff")
        e("s_mov_b32 s%d, 0x40000" % PSP)
        e.label("L_pollb")
        e("buffer_load_dwordx3 v[%d:%d], v%d, s[%d:%d], s%d offen sc1" % (DA, DC, HD, PWS, PWS + 3, PE))
        e("s_sub_u32 s%d, s%d, 1" % (PSP, PSP))
        e("s_cbranch_scc1 L_exit1")
        e("s_waitcnt vmcnt(0)")
        e("v_min3_u32 v%d, v%d, v%d, v%d" % (HC, DA, DB, DC))
        e("v_lshrrev_b32 v%d, 24, v%d" % (HC, HC))
        e("v_cmp_ne_u32 vcc, 10, v%d" % HC)
        e("s_cbranch_vccnz L_pollb")
        for r in (DA, DB, DC):
            e("v_subrev_u32 v%d, 0x%x, v%d" % (r, 10 * (BIAS + (1 << 24)), r))
        for qp in ("[1,0,3,2]", "[2,3,0,1]"):
            for r in (DA, DB):
                e("v_add_u32_dpp v%d, v%d, v%d quad_perm:%s row_mask:0xf bank_mask:0xf" % (r, r, r, qp))
        e("v_ashrrev_i32 v%d, 31, v%d" % (HC, DA))
        e("v_xor_b32 v%d, v%d, v%d" % (DB, DB, HC))
        e("v_xor_b32 v%d, v%d, v%d" % (HA, DC, HC))
        e("s_mov_b64 vcc, 0x55555")
        e("v_cndmask_b32 v%d, v%d, v%d, vcc" % (DC, DC, HA))
        for qp in ("[1,0,3,2]", "[2,3,0,1]"):
            e("v_add_u32_dpp v%d, v%d, v%d quad_perm:%s row_mask:0xf bank_mask:0xf" % (DC, DC, DC, qp))
        e("v_and_b32 v%d, 2, v%d" % (DW, HC))
        for r, bit, th in ((DB, 1, P["th1"]), (DC, 4, P["th0"])):
            e("v_or_b32 v%d, %d, v%d" % (HA, bit, DW))
            e("v_cmp_gt_i32 vcc, %d, v%d" % (-th * 40 * NR, r))
            e("v_cndmask_b32 v%d, v%d, v%d, vcc" % (DW, DW, HA))
        th = P["th"] * 40 * NR
        e("v_add_u32 v%d, %d, v%d" % (HA, th, DA))
        e("v_cmp_gt_u32 vcc, %d, v%d" % (2 * th, HA))
        e("v_cndmask_b32 v%d, v%d, 8, vcc" % (DW, DW))
        e("v_and_b32 v%d, %d, v%d" % (DW, P["lm"] | 8, DW))
        for b in range(5):
            e("v_readlane_b32 s%d, v%d, %d" % (PD + b, DW, 4 * b))
        for b in range(2):
            e("s_xor_b32 s%d, s%d, s%d" % (PE, PD + b, PD + 3 + b))
            e("s_and_b32 s%d, s%d, 10" % (PE, PE))
            e("s_cselect_b32 s%d, s%d, s%d" % (PD + b, PD + b, PD + 3 + b))
        for b in range(5):
            e("s_or_b32 s%d, s%d, 16" % (PD + b, PD + b))
            e("v_writelane_b32 v%d, s%d, %d" % (HC, PD + b, b))
        e("s_mov_b64 exec, 0x1f")
        e("ds_write_b32 v%d, v%d offset:%d" % (HB_, HC, L_DEC + 4))
        e("s_mov_b64 exec, -1")
    else:
        decode("b", 5, 128, 16, NR, L_DEC + 4, 1)
    if P["xkp"] & 2048:
        srd(PB, 70, H * NGRP * DH * 2)
        e("s_memrealtime s[%d:%d]" % (PT, PT + 1))
        e("v_lshlrev_b32 v%d, 4, v%d" % (HW, HL))
        e("s_add_u32 s%d, s%d, 32" % (PE, PG))
        e("s_lshl_b32 s%d, s%d, 16" % (PE, PE))
        e("s_mov_b32 s%d, 0" % PRN)
        e("s_waitcnt lgkmcnt(0)")
        e("s_add_u32 s%d, s%d, %d" % (PT, PT, P["xa"]))
        e.label("L_xk")
        e("s_memrealtime s[%d:%d]" % (PT + 2, PT + 3))
        e("s_waitcnt lgkmcnt(0)")
        e("s_sub_u32 s%d, s%d, s%d" % (PT + 2, PT + 2, PT))
        e("s_cmp_lt_i32 s%d, 0" % (PT + 2))
        e("s_cbranch_scc1 L_xk")
        for k in range(P["xn"]):
            e("buffer_load_dwordx4 v[%d:%d], v%d, s[%d:%d], s%d offen offset:%d" % (HX + 4 * k, HX + 4 * k + 3, HW, PB, PB + 3, PE, (k % 4) * 1024))
            if k % 4 == 3 or k == P["xn"] - 1:
                e("s_add_u32 s%d, s%d, %d" % (PE, PE, 1024 * (k % 4 + 1)))
        e("s_add_u32 s%d, s%d, %d" % (PT, PT, 222 * P["xn"] // 4))
        e("s_add_u32 s%d, s%d, %d" % (PRN, PRN, P["xn"]))
        e("s_cmp_eq_u32 s%d, 64" % PRN)
        e("s_cselect_b32 s%d, %d, 0" % (PE + 1, 31 << 16))
        e("s_add_u32 s%d, s%d, s%d" % (PE, PE, PE + 1))
        e("s_waitcnt vmcnt(0)")
        e("s_cmp_lt_u32 s%d, 128" % PRN)
        e("s_cbranch_scc1 L_xk")
    if P["xkp"] & 4096:
        srd(PB, 74, H * SKV * 2)
        srd(PS2, 76, H * SKV * 2)
        e("s_memrealtime s[%d:%d]" % (PT, PT + 1))
        e("v_lshlrev_b32 v%d, 4, v%d" % (HW, HL))
        e("s_mul_i32 s%d, s%d, 21845" % (PE, PG))
        e("s_andn2_b32 s%d, s%d, 127" % (PE, PE))
        e("s_mov_b32 s%d, 0" % PRN)
        e("s_mov_b32 s%d, 0" % PMN)
        e("s_waitcnt lgkmcnt(0)")
        e("s_add_u32 s%d, s%d, %d" % (PT, PT, P["xa"]))
        e.label("L_xv")
        for sr in (PB, PS2):
            twait(PT, PT + 2, P["xn"])
            e("buffer_load_dwordx4 v[%d:%d], v%d, s[%d:%d], s%d offen" % (HX, HX + 3, HW, sr, sr + 3, PE))
        e("s_add_u32 s%d, s%d, 1024" % (PE, PE))
        e("s_add_u32 s%d, s%d, 1" % (PRN, PRN))
        e("s_cmp_lt_u32 s%d, 22" % PRN)
        e("s_cbranch_scc1 L_xv")
        e("s_mov_b32 s%d, 0" % PRN)
        e("s_add_u32 s%d, s%d, %d" % (PE, PE, 32 * 21845 // 128 * 128 - 22 * 1024))
        e("s_add_u32 s%d, s%d, %d" % (PT, PT, 3520 - 44 * P["xn"]))
        e("s_add_u32 s%d, s%d, 1" % (PMN, PMN))
        e("s_cmp_lt_u32 s%d, 3" % PMN)
        e("s_cbranch_scc1 L_xv")
        e("s_waitcnt vmcnt(0)")
    if P["lx"]:
        e("s_mul_i32 s%d, s%d, 43" % (PE, PG))
        e("s_lshr_b32 s%d, s%d, 8" % (PE, PE))
        e("s_mul_i32 s%d, s%d, 6" % (PE + 1, PE))
        e("s_sub_u32 s%d, s%d, s%d" % (PBK, PG, PE + 1))
        e("s_cmp_ge_u32 s%d, 3" % PBK)
        e("s_cselect_b32 s%d, s68, s66" % PB)
        e("s_cselect_b32 s%d, s69, s67" % (PBASE + 1))
        e("s_cselect_b32 s%d, 3, 0" % (PE + 1))
        e("s_sub_u32 s%d, s%d, s%d" % (PE + 1, PBK, PE + 1))
        e("s_lshl_b32 s%d, s%d, 28" % (PO, PE + 1))
        e("s_mul_i32 s%d, s%d, %d" % (PE, PE, 21 << 21))
        e("s_add_u32 s%d, s%d, s%d" % (PO, PO, PE))
        e("s_add_u32 s%d, s%d, %d" % (PO, PO, (7 << 21) + (1 << 20)))
        e("s_and_b32 s%d, s%d, 0xffff" % (PB + 1, PBASE + 1))
        e("s_mov_b32 s%d, %d" % (PB + 2, H * HEADB))
        e("s_mov_b32 s%d, 0x00020000" % (PB + 3))
        e("s_add_u32 s%d, s%d, %d" % (PE, PM, P["lx"]))
        e("s_and_b32 s%d, s%d, 7" % (PE, PE))
        e("s_lshl_b32 s%d, s%d, 9" % (PE, PE))
        e("v_lshlrev_b32 v%d, 12, v%d" % (HW, HL))
        e("v_add_u32 v%d, s%d, v%d" % (HW, PE, HW))
        for j in range(3):
            e("buffer_load_dword v%d, v%d, s[%d:%d], s%d offen offset:%d" % (HX + j, HW, PB, PB + 3, PO, j * 128))
        e("s_add_u32 s%d, s%d, s%d" % (PBASE, PB, PO))
        e("s_addc_u32 s%d, s%d, 0" % (PBASE + 1, PBASE + 1))
        e("s_lshl_b32 s%d, s%d, 9" % (PE, PM))
        e("s_add_u32 s%d, s%d, s%d" % (PBASE, PBASE, PE))
        e("s_addc_u32 s%d, s%d, 0" % (PBASE + 1, PBASE + 1))
        e("s_load_dword s%d, s[%d:%d], 384" % (PJ, PBASE, PBASE + 1))
        e("s_load_dword s%d, s[%d:%d], 0x20180" % (PJ, PBASE, PBASE + 1))
        e("s_waitcnt vmcnt(0) lgkmcnt(0)")
        lds_wait("lx", HZ, HE, PE, L_EV + 4, "8", PSP)
        for j in range(3):
            e("s_mov_b32 m0, 0")
            e("s_mov_b32 s%d, %d" % (PE, j * 128))
            e.label("L_lx%d" % j)
            e("s_memtime s[%d:%d]" % (PT, PT + 1))
            e("s_waitcnt lgkmcnt(0)")
            e("s_load_dword s%d, s[%d:%d], s%d" % (PJ, PBASE, PBASE + 1, PE))
            e("s_waitcnt lgkmcnt(0)")
            e("s_memtime s[%d:%d]" % (PT + 2, PT + 3))
            e("s_waitcnt lgkmcnt(0)")
            e("s_sub_u32 s%d, s%d, s%d" % (PT, PT + 2, PT))
            e("v_writelane_b32 v%d, s%d, m0" % (HX + j, PT))
            e("s_add_u32 s%d, s%d, 4096" % (PE, PE))
            e("s_add_u32 m0, m0, 1")
            e("s_cmp_lt_u32 m0, 64")
            e("s_cbranch_scc1 L_lx%d" % j)
        e("s_memrealtime s[%d:%d]" % (PT, PT + 1))
        e("s_waitcnt lgkmcnt(0)")
        e("v_mov_b32 v%d, s%d" % (HX + 3, PT))
        srd(PB, 82, 0x8000000)
        e("s_lshl_b32 s%d, s2, 10" % PE)
        e("s_add_u32 s%d, s%d, 0x4090000" % (PE, PE))
        e("v_lshlrev_b32 v%d, 4, v%d" % (HW, HL))
        e("buffer_store_dwordx4 v[%d:%d], v%d, s[%d:%d], s%d offen" % (HX, HX + 3, HW, PB, PB + 3, PE))
    if FU:
        CSC = 24; CMK = 56; CRB = 57; CO = 92
        e("s_and_b32 s%d, s%d, 7" % (PE, PG))
        e("s_cmp_lg_u32 s%d, s%d" % (PE, PM))
        e("s_cbranch_scc1 L_exit1")
        e("s_mul_i32 s%d, s%d, 3" % (PE, PG))
        e("s_add_u32 s%d, s%d, 2" % (PE, PE))
        e("s_lshr_b32 s%d, s%d, 5" % (PE, PE))
        e("s_lshl_b32 s%d, s%d, 2" % (PE, PE))
        e("v_mov_b32 v%d, s%d" % (HW, PE))
        e("s_mul_i32 s%d, s%d, 24" % (CRB, PG))
        e("v_add_u32 v%d, s%d, v%d" % (HG, CRB, HL))
        e("v_and_b32 v%d, 255, v%d" % (HR, HG))
        e("v_mul_u32_u24 v%d, %d, v%d" % (HR, FSTR, HR))
        e("v_lshlrev_b32 v%d, 6, v%d" % (HG, HG))
        e("s_mov_b32 s%d, %d" % (PE + 1, WS_G))
        e("s_mov_b32 s%d, %d" % (PE + 2, WS_ML))
        e("v_mov_b32 v%d, 0x%08x" % (HA, BIGNEG))
        e("v_mov_b32 v%d, 0" % HB_)
        if P["cd"]:
            th = [12 * (len(CPK) + min(j for j, c in enumerate(CPV) if c > b)) + P["cd"] for b in (16, 32, 4)]
            e("s_mov_b32 s%d, %d" % (PE + 3, th[0]))
            e("s_cmp_eq_u32 s%d, 4" % PE)
            e("s_cselect_b32 s%d, %d, s%d" % (PE + 3, th[1], PE + 3))
            e("s_cmp_eq_u32 s%d, 8" % PE)
            e("s_cselect_b32 s%d, %d, s%d" % (PE + 3, th[2], PE + 3))
            lds_wait("cg", HZ, HE, PE, L_TC, "s%d" % (PE + 3), PSP)
        else:
            lds_wait("cg", HZ, HE, PE, L_GO, "nz", PSP, HW)
        for tag, ld, chk in (("f", "buffer_load_dword v%d, v%d, s[%d:%d], s%d offen sc1" % (HD, HR, PWS, PWS + 3, PE + 1), HD),
                             ("m", "buffer_load_dwordx4 v[%d:%d], v%d, s[%d:%d], s%d offen sc1" % (HA, HD, HG, PWS, PWS + 3, PE + 2), HD)):
            e("s_mov_b64 exec, 0xffffff")
            e("s_mov_b32 s%d, 0x40000" % PSP)
            e.label("L_cp" + tag)
            e(ld)
            e("s_sub_u32 s%d, s%d, 1" % (PSP, PSP))
            e("s_cbranch_scc1 L_exit1")
            e("s_waitcnt vmcnt(0)")
            e("v_cmpx_eq_u32 vcc, 0, v%d" % chk)
            e("s_cbranch_execnz L_cp" + tag)
        e("s_mov_b64 exec, -1")
        e("v_mov_b32 v%d, v%d" % (HC, HA))
        wave_reduce([HC], "v_max_f32", [HD])
        e("v_sub_f32 v%d, v%d, v%d" % (HA, HA, HC))
        e("v_exp_f32 v%d, v%d" % (HA, HA))
        e("v_mul_f32 v%d, v%d, v%d" % (HB_, HB_, HA))
        wave_reduce([HB_], "v_add_f32", [HD])
        e("v_rcp_f32 v%d, v%d" % (HB_, HB_))
        e("v_mul_f32 v%d, v%d, v%d" % (HA, HA, HB_))
        if P["fc"]:
            e("s_cmp_lt_u32 s%d, 21" % PG)
            e("s_cbranch_scc1 L_cown")
            e("s_mul_i32 s%d, s%d, %d" % (PE, PG, FSTR))
            e("s_add_u32 s%d, s%d, %d" % (PE, PE, WS_G + ELN * FSTR))
            e("v_lshlrev_b32 v%d, 2, v%d" % (HR, HL))
            e("v_mov_b32 v%d, 1" % HB_)
            e("s_mov_b64 exec, 0xffffff")
            e("buffer_store_dword v%d, v%d, s[%d:%d], s%d offen offset:128 sc1" % (HA, HR, PWS, PWS + 3, PE))
            e("s_mov_b64 exec, 1")
            e("s_waitcnt vmcnt(0)")
            e("buffer_store_dword v%d, off, s[%d:%d], s%d offset:4 sc1" % (HB_, PWS, PWS + 3, PE))
            e("s_endpgm")
            e.label("L_cown")
        for r in range(24):
            e("v_readlane_b32 s%d, v%d, %d" % (CSC + r, HA, r))
        srd(CO, 78, H * DH * 2)
        e("s_lshl_b32 s%d, s%d, 10" % (CRB, CRB))
        e("v_lshlrev_b32 v%d, 4, v%d" % (HG, HL))
        e("v_add_u32 v%d, s%d, v%d" % (HG, CRB, HG))
        for k in range(1, 6):
            e("s_mov_b32 s%d, %d" % (PE + k, 4096 * k))
        for r in (HA, HB_, HC):
            e("v_mov_b32 v%d, 0" % r)
        e("s_mov_b32 s%d, 0xffffff" % CMK)
        e("v_lshlrev_b32 v%d, 1, v%d" % (HR, HL))
        e("s_mul_i32 s%d, s%d, %d" % (CRB, PG, DH * 2))
        lds_wait("cc", HZ, HE, PE, L_CA, "%d" % P["cw"], PSP, HW)
        e("s_mov_b32 s%d, 0x40000" % PSP)
        e.label("L_cr")
        for r in range(24):
            e("s_bitcmp0_b32 s%d, %d" % (CMK, r))
            e("s_cbranch_scc1 L_cl%d" % r)
            e("buffer_load_dwordx4 v[%d:%d], v%d, s[%d:%d], %s offen offset:%d sc1" %
              (HX + 4 * r, HX + 4 * r + 3, HG, PWS, PWS + 3, "s%d" % (PE + r // 4) if r >= 4 else "0", (r % 4) * 1024))
            e.lines.append("L_cl%d:" % r)
        e("s_sub_u32 s%d, s%d, 1" % (PSP, PSP))
        e("s_cbranch_scc1 L_exit1")
        e("s_waitcnt vmcnt(0)")
        for r in range(24):
            e("s_bitcmp0_b32 s%d, %d" % (CMK, r))
            e("s_cbranch_scc1 L_cv%d" % r)
            e("v_cmp_eq_u32 vcc, 0, v%d" % (HX + 4 * r + 3))
            e("s_cbranch_vccnz L_cv%d" % r)
            for k, a_ in enumerate((HA, HB_, HC)):
                e("v_fmac_f32 v%d, s%d, v%d" % (a_, CSC + r, HX + 4 * r + k))
            e("s_bitset0_b32 s%d, %d" % (CMK, r))
            e.lines.append("L_cv%d:" % r)
        e("s_cmp_lg_u32 s%d, 0" % CMK)
        e("s_cbranch_scc1 L_cr")
        for k, a_ in enumerate((HA, HB_, HC)):
            e("v_cvt_pk_bf16_f32 v%d, v%d, v%d" % (a_, a_, a_))
            e("buffer_store_short v%d, v%d, s[%d:%d], s%d offen offset:%d" % (a_, HR, CO, CO + 3, CRB, k * 128))
        if P["stamp"] == 5:
            e("s_memrealtime s[%d:%d]" % (PT, PT + 1))
            e("s_waitcnt vmcnt(0)")
            e("s_memrealtime s[%d:%d]" % (PT + 2, PT + 3))
            srd(PS2, 82, 0x8000000)
            e("s_waitcnt lgkmcnt(0)")
            e("v_mov_b32 v%d, s%d" % (HX, PT))
            e("v_mov_b32 v%d, s%d" % (HX + 1, PT + 2))
            e("v_mov_b32 v%d, s%d" % (HX + 2, PSP))
            e("s_lshl_b32 s%d, s%d, 4" % (PE, PG))
            e("s_add_u32 s%d, s%d, 0x4009000" % (PE, PE))
            e("s_mov_b64 exec, 1")
            e("buffer_store_dwordx4 v[%d:%d], off, s[%d:%d], s%d" % (HX, HX + 3, PS2, PS2 + 3, PE))
    e("s_endpgm")

    def seg_scalars():
        e("s_lshl_b32 s%d, s%d, 5" % (PSG, PPH))
        e("s_add_u32 s%d, s%d, s%d" % (PSG, PSG, PG))
        e("s_lshl_b32 s%d, s%d, 15" % (PG0, PSG))
        e("s_add_u32 s%d, s%d, 1" % (PG0, PG0))
        e("s_mul_hi_u32 s%d, s%d, 0xaaaaaaab" % (PG0, PG0))
        e("s_lshr_b32 s%d, s%d, 7" % (PG0, PG0))

    def get_dec(tag):
        lds_wait(tag, HZ, HE, PE, L_DEC + 20, "nz", PSP)
        e("ds_read_b128 v[%d:%d], v%d offset:%d" % (HX, HX + 3, HZ, L_DEC))
        e("ds_read_b64 v[%d:%d], v%d offset:%d" % (HX + 4, HX + 5, HZ, L_DEC + 16))
        e("s_waitcnt lgkmcnt(0)")
        for i in range(6):
            e("v_readfirstlane_b32 s%d, v%d" % (PDC + i, HX + i))

    e.label("L_h0")
    srd(PB, 64, H * DH * 2)
    srd(PS2, 70, H * NGRP * DH * 2)
    srd(PS3, 72, H * NGRP * DH * 2)
    e("v_lshrrev_b32 v%d, 4, v%d" % (HA, HL))
    e("v_and_b32 v%d, 15, v%d" % (HB_, HL))
    e("v_lshlrev_b32 v%d, 3, v%d" % (HC, HB_))
    e("v_mul_u32_u24 v%d, %d, v%d" % (HD, DH * 2, HA))
    e("v_add_u32 v%d, v%d, v%d" % (HD, HD, HC))
    e("v_lshl_add_u32 v%d, v%d, 2, v%d" % (HG, HB_, HA))
    e("v_lshlrev_b32 v%d, 2, v%d" % (HG, HG))
    BQ = HX; BS = HX + 12; BZ = BS + 36; BR = BZ + 36
    PFA = 32; PIA = 33
    e("v_lshlrev_b32 v%d, 4, v%d" % (HA, HL))
    e("s_mul_i32 s%d, s%d, %d" % (PFA, PNB, FSTR))
    e("s_add_u32 s%d, s%d, s%d" % (PFA, PFA, PGL))
    e("s_lshl_b32 s%d, s%d, 3" % (PIA, PG))
    e("s_add_u32 s%d, s%d, s%d" % (PIA, PIA, PNB))
    IMS = PHI if P["il"] else IMG
    PHS = NWG * PHI if P["il"] else PHI
    CX = P["cx"]
    if CX:
        assert N0 <= 4 and not P["xp"]
        IMS = 4096; PHS = NWG * IMS
        e("v_and_b32 v%d, 7, v%d" % (HN, HL))
        e("v_lshrrev_b32 v%d, 3, v%d" % (HE, HL))
        e("v_mul_u32_u24 v%d, 24, v%d" % (HK, HE))
        e("v_mov_b32 v%d, 768" % HF)
        e("v_mad_u32_u24 v%d, v%d, v%d, v%d" % (HK, HN, HF, HK))
        e("v_lshlrev_b32 v%d, 7, v%d" % (HN, HN))
        e("v_lshl_add_u32 v%d, v%d, 4, v%d" % (HN, HE, HN))
    XZ = P["xz"]; XS = 1 << P["xr"]

    def img_lane(dst, tmp):
        if XZ >= 1024:
            e("v_lshlrev_b32 v%d, 4, v%d" % (dst, HL))
            return
        lz = (XZ // 16).bit_length() - 1
        e("v_lshrrev_b32 v%d, %d, v%d" % (dst, lz, HL))
        e("v_lshlrev_b32 v%d, %d, v%d" % (dst, P["xr"], dst))
        e("v_and_b32 v%d, %d, v%d" % (tmp, XZ // 16 - 1, HL))
        e("v_lshl_add_u32 v%d, v%d, 4, v%d" % (dst, tmp, dst))

    def img_base(dst, slot, tmp):
        spr = XS // XZ
        assert 8 <= spr <= 256 and PHI % XZ == 0
        e("s_lshr_b32 s%d, s%d, %d" % (tmp, slot, spr.bit_length() - 1))
        e("s_mul_i32 s%d, s%d, %d" % (tmp, tmp, XS * (PHI // XZ)))
        e("s_and_b32 s%d, s%d, %d" % (dst, slot, spr - 1))
        e("s_mul_i32 s%d, s%d, %d" % (dst, dst, XZ))
        e("s_add_u32 s%d, s%d, s%d" % (dst, dst, tmp))

    def img_k(k):
        return (k * 1024 // XZ) * XS + k * 1024 % XZ

    if XZ:
        assert P["il"] and not CX and not P["xp"]
        img_base(PIA, PIA, PE)
        img_lane(HN, HE)
    else:
        e("s_mul_i32 s%d, s%d, %d" % (PIA, PIA, IMS))
    e("s_add_u32 s%d, s%d, %d" % (PIA, PIA, WS_L))

    def bias(ph):
        e("s_mov_b32 s%d, %d" % (PPH, ph))
        seg_scalars()
        e("s_mul_i32 s%d, s%d, 171" % (PE, PSG))
        e("s_lshr_b32 s%d, s%d, 9" % (PE, PE))
        e("s_mul_i32 s%d, s%d, %d" % (PE, PE, DH * 2))
        e("s_mul_i32 s%d, s%d, 24" % (PE + 1, PM))
        e("s_add_u32 s%d, s%d, s%d" % (PE + 2, PE + 1, PG0))
        e("s_mul_i32 s%d, s%d, %d" % (PE + 2, PE + 2, DH * 2))
        e("v_add_u32 v%d, s%d, v%d" % (HE, PE + 2, HD))
        e("v_add_u32 v%d, %d, v%d" % (HF, 8 * DH * 2, HE))
        e("v_add_u32 v%d, %d, v%d" % (HR, 16 * DH * 2, HE))
        for c in range(3):
            e("buffer_load_dwordx2 v[%d:%d], v%d, s[%d:%d], s%d offen offset:%d" % (BR + 2 * c, BR + 2 * c + 1, HC, PB, PB + 3, PE, c * 128))
        for st in range(6):
            va = (HE, HF, HR)[st // 2]
            for sr, bb in ((PS2, BS), (PS3, BZ)):
                bt = P["bt"] if ph else P["bt0"]
                if bt:
                    if st == 0 and bb == BS:
                        e("s_memrealtime s[%d:%d]" % (PT, PT + 1))
                        e("s_waitcnt lgkmcnt(0)")
                    twait(PT, PT + 2, bt)
                for c in range(3):
                    r = bb + st * 6 + 2 * c
                    if P["xb"] & 1:
                        continue
                    e("buffer_load_dwordx2 v[%d:%d], v%d, s[%d:%d], 0 offen offset:%d%s" %
                      (r, r + 1, va, sr, sr + 3, (st & 1) * 4 * DH * 2 + c * 128,
                       " nt" if P["bnt"] & (1 if bb == BZ else 2) else ""))
                if P["bp"] == 2 and (ph or P["bp0"]):
                    e("s_waitcnt vmcnt(%d)" % P["bq"])
            if P["bp"] == 1 and (ph or P["bp0"]):
                e("s_waitcnt vmcnt(%d)" % P["bq"])
        e("s_waitcnt vmcnt(0)")
        for p in range(6):
            e("v_lshlrev_b32 v%d, 16, v%d" % (BQ + 2 * p, BR + p))
            e("v_and_b32 v%d, 0xffff0000, v%d" % (BQ + 2 * p + 1, BR + p))
        for st in range(6):
            acc = BR + st
            for p in range(6):
                rs = BS + st * 6 + p; rz = BZ + st * 6 + p
                e("v_lshlrev_b32 v%d, 16, v%d" % (HE, rs))
                e("v_lshlrev_b32 v%d, 16, v%d" % (HF, rz))
                e("v_and_b32 v%d, 0xffff0000, v%d" % (rs, rs))
                e("v_and_b32 v%d, 0xffff0000, v%d" % (rz, rz))
                e("v_mul_f32 v%d, v%d, v%d" % (HE, HE, BQ + 2 * p))
                e("v_mul_f32 v%d, v%d, v%d" % (rs, rs, BQ + 2 * p + 1))
                if p == 0:
                    e("v_mul_f32 v%d, v%d, v%d" % (acc, HE, HF))
                else:
                    e("v_fmac_f32 v%d, v%d, v%d" % (acc, HE, HF))
                e("v_fmac_f32 v%d, v%d, v%d" % (acc, rs, rz))
        for kk in (8, 4, 2, 1):
            for st in range(6):
                e("v_add_f32_dpp v%d, v%d, v%d row_ror:%d row_mask:0xf bank_mask:0xf" % (BR + st, BR + st, BR + st, kk))
        for st in range(1, 6):
            e("v_cmp_eq_u32 vcc, %d, v%d" % (st, HB_))
            e("v_cndmask_b32 v%d, v%d, v%d, vcc" % (BR, BR, BR + st))
        e("s_mul_i32 s%d, s%d, 768" % (PE, PSG))
        e("s_lshl_b32 s%d, s%d, 2" % (PE + 1, PE + 1))
        e("s_add_u32 s%d, s%d, s%d" % (PE, PE, PE + 1))
        e("s_add_u32 s%d, s%d, %d" % (PE, PE, WS_B))
        e("s_mov_b32 exec_lo, 0x003f003f")
        e("s_mov_b32 exec_hi, 0x003f003f")
        e("buffer_store_dword v%d, v%d, s[%d:%d], s%d offen sc1" % (BR, HG, PWS, PWS + 3, PE))
        e("s_mov_b64 exec, -1")

    def flush(p):
        if P["xp"]:
            e("s_cmp_eq_u32 s%d, s%d" % (PDC + p, PDC + 3 + p))
            if p:
                e("s_cbranch_scc1 L_fp%d" % p)
            e("s_add_u32 s%d, s%d, %d" % (PE + 6, PIA, p * PHS))
            e("s_add_u32 s%d, s%d, %d" % (PE + 7, PIA, p * PHS + 4096))
            e("s_cmp_eq_u32 s%d, s%d" % (PDC + p, PDC + 3 + p))
            for k in range(6):
                if p == 0:
                    mk = sum(1 << l for l in range(64) if (64 * k + l) % 48 < (3 * N0 + 7) // 8 * 8)
                    e("s_cselect_b32 exec_lo, 0x%x, -1" % (mk & 0xffffffff))
                    e("s_cselect_b32 exec_hi, 0x%x, -1" % (mk >> 32))
                e("buffer_load_dwordx4 v[%d:%d], v%d, s[%d:%d], s%d offen offset:%d %s" %
                  (HX + 4 * k, HX + 4 * k + 3, HA, PWS, PWS + 3, PE + 6 + k // 4, (k % 4) * 1024, ("", "sc1", "", "nt")[P["xp"]]))
            e("s_mov_b64 exec, -1")
            e("s_waitcnt vmcnt(0)")
            e.label("L_fp%d" % p)
        lds_wait("f%d" % p, HZ, HE, PE, L_CF + 4 * p, "4", PSP)
        e("s_cmp_eq_u32 s%d, s%d" % (PDC + p, PDC + 3 + p))
        if p:
            e("s_cbranch_scc1 L_fl%d" % p)
        if CX:
            for st in range(4):
                for c in range(3):
                    r = HX + 12 * st + 2 * c
                    e("ds_read_b64 v[%d:%d], v%d offset:%d" % (r, r + 1, HK, L_LG + p * PHI + st * 192 + 8 * c))
            e("s_add_u32 s%d, s%d, %d" % (PE + 6, PIA, p * PHS))
            e("s_cmp_eq_u32 s%d, s%d" % (PDC + p, PDC + 3 + p))
            e("s_waitcnt lgkmcnt(0)")
            for st in range(4):
                B = HX + 12 * st
                e("v_cmp_eq_f32 vcc, 0, v%d" % (B + 5))
                e("v_max3_f32 v%d, v%d, v%d, v%d" % (B + 9, B, B + 1, B + 2))
                e("v_cndmask_b32 v%d, v%d, v%d, vcc" % (B + 8, B + 5, B + 4))
                e("v_max3_f32 v%d, v%d, v%d, v%d" % (B + 9, B + 9, B + 3, B + 4))
                e("v_max_f32 v%d, v%d, v%d" % (B + 8, B + 8, B + 9))
                for k in range(6):
                    e("v_sub_f32 v%d, v%d, v%d" % (B + k, B + k, B + 8))
                for k in range(3):
                    e("v_cvt_pk_f16_f32 v%d, v%d, v%d" % (B + 9 + k, B + 2 * k, B + 2 * k + 1))
                if not P["xkp"] & 16:
                    e("buffer_store_dwordx4 v[%d:%d], v%d, s[%d:%d], s%d offen offset:%d %s" %
                      (B + 8, B + 11, HN, PWS, PWS + 3, PE + 6, st * 1024, P["st"]))
                if p == 0 and st == 0:
                    e("s_cbranch_scc1 L_fl0")
        else:
            for k in range(6):
                e("ds_read_b128 v[%d:%d], v%d offset:%d" % (HX + 4 * k, HX + 4 * k + 3, HA, L_LG + p * PHI + k * 1024))
            if XZ:
                for k in range(6):
                    e("s_add_u32 s%d, s%d, %d" % (PE + k, PIA, p * PHS + img_k(k)))
            else:
                e("s_add_u32 s%d, s%d, %d" % (PE + 6, PIA, p * PHS))
                e("s_add_u32 s%d, s%d, %d" % (PE + 7, PIA, p * PHS + 4096))
            e("s_cmp_eq_u32 s%d, s%d" % (PDC + p, PDC + 3 + p))
            e("s_waitcnt lgkmcnt(0)")
            for k in range(6):
                if P["fw"]:
                    if k == 0:
                        e("s_memrealtime s[%d:%d]" % (PT, PT + 1))
                        e("s_waitcnt lgkmcnt(0)")
                    twait(PT, PT + 2, P["fw"])
                    e("s_cmp_eq_u32 s%d, s%d" % (PDC + p, PDC + 3 + p))
                if p == 0:
                    mk = sum(1 << l for l in range(64) if (64 * k + l) % 48 < (3 * N0 + 7) // 8 * 8)
                    e("s_cselect_b32 exec_lo, 0x%x, -1" % (mk & 0xffffffff))
                    e("s_cselect_b32 exec_hi, 0x%x, -1" % (mk >> 32))
                if XZ:
                    e("buffer_store_dwordx4 v[%d:%d], v%d, s[%d:%d], s%d offen %s" %
                      (HX + 4 * k, HX + 4 * k + 3, HN, PWS, PWS + 3, PE + k, P["st"]))
                elif not P["xkp"] & 16:
                    e("buffer_store_dwordx4 v[%d:%d], v%d, s[%d:%d], s%d offen offset:%d %s" %
                      (HX + 4 * k, HX + 4 * k + 3, HA, PWS, PWS + 3, PE + 6 + k // 4, (k % 4) * 1024, P["st"]))
            if p == 0:
                e("s_mov_b64 exec, -1")
            if P["wb"]:
                e("s_waitcnt vmcnt(0)")
                e("buffer_wbl2 sc1")
        e.label("L_fl%d" % p)
        e("v_mov_b32 v%d, %d" % (HE, p + 1))
        e("s_waitcnt vmcnt(0)")
        e("s_mov_b64 exec, 1")
        opt = p == 2 or (p == 1 and not P["jit"])
        if opt:
            e("s_cbranch_scc1 L_fn%d" % p)
        e("buffer_store_dword v%d, off, s[%d:%d], s%d sc1" % (HE, PWS, PWS + 3, PFA))
        if opt:
            e.label("L_fn%d" % p)
        e("ds_write_b32 v%d, v%d offset:%d" % (HZ, HE, L_FD))
        e("s_mov_b64 exec, -1")

    if FU:
        for i in range(4):
            e("v_mov_b32 v%d, 0" % (HX + i))
        for p in range(3):
            e("s_add_u32 s%d, s2, %d" % (PE, 256 * p))
            e("s_lshl_b32 s%d, s%d, 10" % (PE + 1, PE))
            e("s_lshl_b32 s%d, s%d, 6" % (PE, PE))
            e("s_add_u32 s%d, s%d, %d" % (PE, PE, WS_ML))
            if not (P["xkp"] & 512 and p < 2):
                e("buffer_store_dwordx4 v[%d:%d], v%d, s[%d:%d], s%d offen sc1" % (HX, HX + 3, HA, PWS, PWS + 3, PE + 1))
            e("s_mov_b64 exec, 15")
            e("buffer_store_dwordx4 v[%d:%d], v%d, s[%d:%d], s%d offen sc1" % (HX, HX + 3, HA, PWS, PWS + 3, PE))
            e("s_mov_b64 exec, -1")
    bias(0)
    if P["jit"] and not P["be1"] & 1:
        lds_wait("b1", HZ, HE, PE, L_EV + 4, "1", PSP)
    bias(1)
    if not P["jit"]:
        bias(2)
    get_dec("d0")
    flush(0)
    if P["jit"]:
        if not P["be1"] & 2:
            lds_wait("b2", HZ, HE, PE, L_EV + 4, "9", PSP)
        bias(2)
    flush(1)
    flush(2)
    if P["at"] and not BC:
        e("v_lshrrev_b32 v%d, 3, v%d" % (HC, HL))
        e("v_xor_b32 v%d, s%d, v%d" % (HC, PM, HC))
        e("v_lshrrev_b32 v%d, 1, v%d" % (HD, HC))
        e("v_and_b32 v%d, 1, v%d" % (HC, HC))
        e("v_lshl_or_b32 v%d, v%d, 2, v%d" % (HD, HC, HD))
        e("v_lshl_or_b32 v%d, v%d, 3, v%d" % (HD, HL, HD))
        e("v_mul_u32_u24 v%d, %d, v%d" % (HD, FSTR, HD))
        lds_wait("t1", HZ, HE, PE, L_TC, "4", PSP)
        e("s_memrealtime s[%d:%d]" % (PT, PT + 1))
        e("s_mov_b64 exec, 1")
        e("s_waitcnt lgkmcnt(0)")
        e("s_or_b32 s%d, s%d, 1" % (PT, PT))
        e("v_mov_b32 v%d, s%d" % (HB_, PT))
        e("buffer_store_dword v%d, off, s[%d:%d], s%d offset:4 sc1" % (HB_, PWS, PWS + 3, PFA))
        e("s_mov_b32 exec_lo, -1")
        e("s_mov_b32 s%d, %d" % (PE + 1, WS_G))
        lds_wait("t2", HZ, HE, PE, L_TC, "5", PSP)
        e("buffer_load_dword v%d, v%d, s[%d:%d], s%d offen offset:4 sc1" % (HB_, HD, PWS, PWS + 3, PE + 1))
        e("v_bfrev_b32 v%d, -2" % HC)
        e("s_mov_b32 s%d, -2048" % PE)
        e("s_waitcnt vmcnt(0)")
        e("v_cmp_eq_u32 vcc, 0, v%d" % HB_)
        e("v_subrev_u32 v%d, s%d, v%d" % (HB_, PT, HB_))
        e("v_cndmask_b32 v%d, v%d, v%d, vcc" % (HB_, HB_, HC))
        for st in (2048, 1024, 512, 256, 128, 64, 32, 16):
            e("s_add_u32 s%d, s%d, %d" % (PE + 1, PE, st))
            e("v_cmp_gt_i32 vcc, s%d, v%d" % (PE + 1, HB_))
            e("s_bcnt1_i32_b64 s%d, vcc" % (PE + 2))
            e("s_cmp_lt_u32 s%d, %d" % (PE + 2, P["aq"]))
            e("s_cselect_b32 s%d, s%d, s%d" % (PE, PE + 1, PE))
        e("s_mul_i32 s%d, s%d, %d" % (PE, PE, -P["ka"]))
        e("s_add_u32 s%d, s%d, %d" % (PE, PE, P["kb"]))
        e("s_ashr_i32 s%d, s%d, 10" % (PE, PE))
        e("s_max_i32 s%d, s%d, %d" % (PE, PE, P["dmin"]))
        e("s_min_i32 s%d, s%d, %d" % (PE, PE, min(P["dmax"], NT - P["te"])))
        e("s_sub_u32 s%d, %d, s%d" % (PE, NT, PE))
        e("s_cmp_eq_u32 s%d, %d" % (PE, NT))
        e("s_cselect_b32 s%d, 255, s%d" % (PE, PE))
        e("v_mov_b32 v%d, s%d" % (HB_, PE))
        e("ds_write_b32 v%d, v%d offset:%d" % (HZ, HB_, L_TD))
    e("s_endpgm")

    def last_gather():
        EL = P["fc"] == 4
        CSC = 24; CO = 96; CR0 = 56; CSO = 57; CHL = 58; CRB = 59; CN = 20
        COF = list(range(64, 76)) + list(range(84, 96))
        RB = HX + 16
        if EL:
            e("s_mov_b64 exec, -1")
            e("v_lshlrev_b32 v%d, 2, v%d" % (HR, HL))
            e("v_add_u32 v%d, %d, v%d" % (HG, L_ACC + 2 * NW * ROWB, HR))
            e("v_lshlrev_b32 v%d, 4, v%d" % (HK, HL))
        e("s_add_u32 s%d, s%d, 64" % (PE, PG))
        e("s_mul_i32 s%d, s%d, 171" % (PE, PE))
        e("s_lshr_b32 s%d, s%d, 9" % (PE, PE))
        e("s_mul_i32 s%d, s%d, %d" % (CHL, PE, FSTR))
        e("s_add_u32 s%d, s%d, %d" % (CHL, CHL, WS_G + ELN * FSTR))
        e("s_mul_i32 s%d, s%d, %d" % (CRB, PE, DH * 2))
        e("s_cmp_eq_u32 s%d, 21" % PE)
        e("s_cselect_b32 s%d, 15, 23" % CN)
        e("s_mul_i32 s%d, s%d, 24" % (PE, PE))
        e("s_add_u32 s%d, s2, 512" % PSG)
        e("s_sub_u32 s%d, s%d, s%d" % (CR0, PSG, PE))
        e("s_lshl_b32 s%d, s%d, 10" % (PSG, PSG))
        e("s_mov_b32 s%d, 0x40000" % PSP)
        e.label("L_fs")
        e("buffer_load_dword v%d, off, s[%d:%d], s%d offset:4 sc1" % (HA, PWS, PWS + 3, CHL))
        e("s_sub_u32 s%d, s%d, 1" % (PSP, PSP))
        e("s_cbranch_scc1 L_exit1")
        e("s_waitcnt vmcnt(0)")
        e("v_cmp_eq_u32 vcc, 0, v%d" % HA)
        e("s_cbranch_vccnz L_fs")
        e("buffer_load_dword v%d, v%d, s[%d:%d], s%d offen offset:128 sc1" % (HE, HR, PWS, PWS + 3, CHL))
        e("ds_read_b128 v[%d:%d], v%d offset:%d" % (HA, HD, HZ, L_ML + 32))
        e("v_xor_b32 v%d, 1, v%d" % (HF, HL))
        e("v_cmp_eq_u32 vcc, s%d, v%d" % (CR0, HL))
        e("v_cndmask_b32 v%d, v%d, v%d, vcc" % (HF, HL, HF))
        e("v_add_u32 v%d, s%d, v%d" % (HF, PE, HF))
        e("v_lshlrev_b32 v%d, 10, v%d" % (HF, HF))
        for r in range(24):
            e("v_readlane_b32 s%d, v%d, %d" % (COF[r], HF, r))
        srd(CO, 78, H * DH * 2)
        e("v_lshlrev_b32 v%d, 1, v%d" % (HR, HL))
        e("s_waitcnt vmcnt(0)")
        e("v_readlane_b32 s%d, v%d, s%d" % (CSO, HE, CR0))
        e("v_cndmask_b32 v%d, v%d, v%d, vcc" % (HE, HE, HZ))
        for r in range(24):
            e("v_readlane_b32 s%d, v%d, %d" % (CSC + r, HE, r))
        e("v_mov_b32 v%d, 1" % HV)
        if EL:
            e("s_mov_b64 exec, 1")
            lds_wait("el", HZ, HE, PE, L_EL, "4", PSP)
            e("buffer_atomic_add v%d, off, s[%d:%d], s%d sc0" % (HV, PWS, PWS + 3, CHL))
            e("s_mov_b64 exec, -1")
            e("s_waitcnt vmcnt(0)")
            e("v_readfirstlane_b32 s%d, v%d" % (PE, HV))
            e("s_cmp_lg_u32 s%d, s%d" % (PE, CN))
            e("s_cbranch_scc1 L_exit1")
            for r in range(24):
                e("buffer_load_dwordx4 v[%d:%d], v%d, s[%d:%d], s%d offen sc1" % (RB + 4 * r, RB + 4 * r + 3, HK, PWS, PWS + 3, COF[r]))
        lds_wait("n", HZ, HE, PE, L_CA + 8, "4", PSP)
        for kk in range(3):
            for w in range(NW):
                e("ds_read_b32 v%d, v%d offset:%d" % (HX + kk * NW + w, HG, w * ROWB + kk * 256))
        if not EL:
            e("s_mov_b64 exec, 1")
            e("buffer_atomic_add v%d, off, s[%d:%d], s%d sc0" % (HV, PWS, PWS + 3, CHL))
            e("s_mov_b64 exec, -1")
        e("s_mov_b32 s%d, 0x40000" % PSP)
        for kk in range(3):
            b = HX + kk * NW
            e("s_waitcnt lgkmcnt(%d)" % (8 - 4 * kk))
            e("v_add_f32 v%d, v%d, v%d" % (b, b, b + 1))
            e("v_add_f32 v%d, v%d, v%d" % (b + 2, b + 2, b + 3))
            e("v_sub_f32 v%d, v%d, v%d" % (b, b, HC))
            e("v_add_f32 v%d, v%d, v%d" % (HX + 12 + kk, b, b + 2))
        if EL:
            e("s_branch L_fr2")
        else:
            e("buffer_store_dwordx4 v[%d:%d], v%d, s[%d:%d], s%d offen sc1" % (HX + 12, HX + 15, HK, PWS, PWS + 3, PSG))
        if P["stamp"] == 5 and not EL:
            e("s_memrealtime s[%d:%d]" % (PE + 4, PE + 5))
        if 2 <= P["fc"] < 4:
            e("s_waitcnt vmcnt(%d)" % (P["fc"] - 2))
            e("v_readfirstlane_b32 s%d, v%d" % (PE, HV))
            e("s_cmp_lg_u32 s%d, s%d" % (PE, CN))
            e("s_cbranch_scc1 L_fx")
        e.label("L_fr")
        for r in range(24):
            e("buffer_load_dwordx4 v[%d:%d], v%d, s[%d:%d], s%d offen sc1" % (RB + 4 * r, RB + 4 * r + 3, HK, PWS, PWS + 3, COF[r]))
        e.lines.append("L_fr2:")
        for k, a_ in enumerate((HA, HB_, HC)):
            e("v_mul_f32 v%d, s%d, v%d" % (a_, CSO, HX + 12 + k))
        e("v_mov_b32 v%d, 1" % HD)
        e("s_sub_u32 s%d, s%d, 1" % (PSP, PSP))
        e("s_cbranch_scc1 L_exit1")
        for r in range(24):
            if r % 2 == 0:
                e("s_waitcnt vmcnt(%d)" % (22 - r))
            for k, a_ in enumerate((HA, HB_, HC)):
                e("v_fmac_f32 v%d, s%d, v%d" % (a_, CSC + r, RB + 4 * r + k))
            if r % 2:
                e("v_min3_u32 v%d, v%d, v%d, v%d" % (HD, HD, RB + 4 * r - 1, RB + 4 * r + 3))
        if P["fc"] == 1:
            e("v_readfirstlane_b32 s%d, v%d" % (PE, HV))
        e("v_cmp_eq_u32 vcc, 0, v%d" % HD)
        for a_ in (HA, HB_, HC):
            e("v_cvt_pk_bf16_f32 v%d, v%d, v%d" % (a_, a_, a_))
        if P["fc"] == 1:
            e("s_cmp_lg_u32 s%d, s%d" % (PE, CN))
            e("s_cbranch_scc1 L_fx")
        e("s_cbranch_vccnz L_fr")
        for k, a_ in enumerate((HA, HB_, HC)):
            e("buffer_store_short v%d, v%d, s[%d:%d], s%d offen offset:%d" % (a_, HR, CO, CO + 3, CRB, k * 128))
        if P["stamp"] == 5:
            e("s_memrealtime s[%d:%d]" % (PT, PT + 1))
            e("s_waitcnt vmcnt(0)")
            e("s_memrealtime s[%d:%d]" % (PT + 2, PT + 3))
            srd(PS2, 82, 0x8000000)
            e("s_waitcnt lgkmcnt(0)")
            e("v_mov_b32 v%d, s%d" % (HX, PT))
            e("v_mov_b32 v%d, s%d" % (HX + 1, PT + 2))
            e("v_mov_b32 v%d, s%d" % (HX + 2, PSP))
            e("s_mul_i32 s%d, s%d, 171" % (PE, CRB))
            e("s_lshr_b32 s%d, s%d, 16" % (PE, PE))
            e("s_lshl_b32 s%d, s%d, 4" % (PE, PE))
            e("s_add_u32 s%d, s%d, 0x4009000" % (PE, PE))
            e("s_mov_b64 exec, 1")
            e("buffer_store_dwordx4 v[%d:%d], off, s[%d:%d], s%d" % (HX, HX + 3, PS2, PS2 + 3, PE))
        e.lines.append("L_fx:")
        if P["stamp"] == 5 and not EL:
            srd(PS2, 82, 0x8000000)
            e("s_memrealtime s[%d:%d]" % (PT + 2, PT + 3))
            e("s_waitcnt lgkmcnt(0)")
            e("v_mov_b32 v%d, s%d" % (HX, PE + 4))
            e("v_mov_b32 v%d, s%d" % (HX + 1, PT + 2))
            e("s_lshl_b32 s%d, s2, 3" % PE)
            e("s_add_u32 s%d, s%d, 0x400a000" % (PE, PE))
            e("s_mov_b64 exec, 1")
            e("buffer_store_dwordx2 v[%d:%d], off, s[%d:%d], s%d" % (HX, HX + 1, PS2, PS2 + 3, PE))
        e("s_endpgm")

    if BC:
        e.label("L_h3")
        e("s_waitcnt lgkmcnt(0)")
        srd_ws(PWS)
        if not EB:
            e("s_barrier")
        e("v_lshlrev_b32 v%d, 2, v%d" % (HD, HL))
        e("s_mul_i32 s%d, s%d, %d" % (PO, PM, FSTR))
        e("s_add_u32 s%d, s%d, %d" % (PO, PO, WS_T))
        e("s_lshl_b32 s%d, s%d, 2" % (PFL, PG))
        e("s_add_u32 s%d, s%d, s%d" % (PFL, PFL, PO))
        if GTS:
            cps = CPK + [48 + c for c in CPV]
            sel = [max(j for j, c in enumerate(cps) if c + P["tg"] + P["rd"] < b) for b in GTS]
            e("s_mov_b32 s%d, 0x%x" % (PRN, sum(1 << j for j in sel)))
            e("v_lshrrev_b32 v%d, 2, v%d" % (HG, HL))
            e("v_mul_u32_u24 v%d, %d, v%d" % (HG, FSTR, HG))
            e("v_and_or_b32 v%d, v%d, 12, v%d" % (HG, HD, HG))
            e("s_and_b32 s%d, s%d, 3" % (PBK, PM))
            e("s_mul_i32 s%d, s%d, %d" % (PNR, PBK, FSTR))
            e("s_lshl_b32 s%d, s%d, 2" % (PBK, PBK))
            e("v_mov_b32 v%d, %d" % (HK, L_GT))
        e("s_mov_b32 s%d, %d" % (PJ, P["pw"]))
        e("v_mov_b32 v%d, %d" % (HW, L_TM))
        e("v_bfrev_b32 v%d, -2" % HC)
        e("s_mov_b32 exec_hi, 0")
        e.label("L_h3loop")
        lds_wait("p1", HZ, HE, PE, L_TC, "s%d" % PJ, PSP)
        e("s_memrealtime s[%d:%d]" % (PT, PT + 1))
        e("s_add_u32 s%d, s%d, %d" % (PJ, PJ, 5 - P["pw"]))
        e("s_mov_b32 exec_lo, 1")
        e("s_waitcnt lgkmcnt(0)")
        e("v_mov_b32 v%d, s%d" % (HB_, PT))
        e("buffer_store_dword v%d, off, s[%d:%d], s%d" % (HB_, PWS, PWS + 3, PFL))
        e("s_mov_b32 exec_lo, -1")
        if P["xs"]:
            XS = P["xs"]
            e("s_lshl_b32 s%d, s2, %d" % (PE, 10 if XS & 8 else 12))
            e("s_add_u32 s%d, s%d, 0x700000" % (PE, PE))
            e("v_lshlrev_b32 v%d, 4, v%d" % (HX, HL))
            e("s_mov_b64 exec, %s" % ("-1" if XS & 2 else "1"))
            e("v_lshlrev_b32 v%d, 4, v%d" % (HX, HL))
            for k in range(4 if XS & 16 else 1):
                e("buffer_%s_dwordx4 v[%d:%d], v%d, s[%d:%d], s%d offen offset:%d %s" %
                  ("load" if XS & 4 else "store", HX + 4, HX + 7, HX, PWS, PWS + 3, PE, 1024 * k, "sc1" if XS & 1 else "" if not XS & 32 else "sc0 sc1"))
            e("s_mov_b64 exec, 0xffffffff")
        lds_wait("p2", HZ, HE, PE, L_TC, "s%d" % PJ, PSP)
        e("buffer_load_dword v%d, v%d, s[%d:%d], s%d offen sc0" % (HB_, HD, PWS, PWS + 3, PO))
        e("s_add_u32 s%d, s%d, 4" % (PJ, PJ))
        e("s_sub_u32 s%d, s%d, 4096" % (PT, PT))
        e("s_waitcnt vmcnt(0)")
        e("v_subrev_u32 v%d, s%d, v%d" % (HB_, PT, HB_))
        e("v_cmp_gt_u32 vcc, 8192, v%d" % HB_)
        e("v_cndmask_b32 v%d, v%d, v%d, vcc" % (HB_, HC, HB_))
        e("s_mov_b32 s%d, 2048" % PE)
        for st in (2048, 1024, 512, 256, 128, 64, 32, 16, 8):
            e("s_add_u32 s%d, s%d, %d" % (PE + 1, PE, st))
            e("v_cmp_gt_u32 vcc, s%d, v%d" % (PE + 1, HB_))
            e("s_bcnt1_i32_b64 s%d, vcc" % (PE + 2))
            e("s_cmp_lt_u32 s%d, %d" % (PE + 2, P["aq"]))
            e("s_cselect_b32 s%d, s%d, s%d" % (PE, PE + 1, PE))
        e("s_add_u32 s%d, s%d, s%d" % (PE + 1, PE, PT))
        e("s_or_b32 s%d, s%d, 1" % (PE + 1, PE + 1))
        e("v_mov_b32 v%d, s%d" % (HB_, PE + 1))
        e("ds_write_b32 v%d, v%d" % (HW, HB_))
        e("v_add_u32 v%d, 4, v%d" % (HW, HW))
        if GTS:
            e("s_bitcmp1_b32 s%d, 0" % PRN)
            e("s_cbranch_scc0 L_h3ng")
            e("s_cmp_lt_u32 s%d, 6136" % PE)
            e("s_cselect_b32 exec_lo, 1, 0")
            e("s_cmp_lt_u32 s%d, 4" % PG)
            e("s_cselect_b32 exec_lo, exec_lo, 0")
            e("buffer_store_dword v%d, off, s[%d:%d], s%d offset:2048 sc1" % (HB_, PWS, PWS + 3, PFL))
            e("s_mov_b32 exec_lo, 0xffff")
            e("s_add_u32 s%d, s%d, %d" % (PE + 3, PJ, P["gq"]))
            lds_wait("p3", HZ, HE, PE, L_TC, "s%d" % (PE + 3), PSP)
            e("s_sub_u32 s%d, s%d, s%d" % (PE + 3, PO, PNR))
            e("s_mov_b32 s%d, %d" % (PSP, P["gn"]))
            e("s_mov_b32 s%d, 0" % PE)
            if P["gl2"]:
                e("buffer_load_dword v%d, v%d, s[%d:%d], s%d offen offset:2048" % (HA, HG, PWS, PWS + 3, PE + 3))
                e("s_branch L_h3gq")
            e.label("L_h3gp")
            e("buffer_load_dword v%d, v%d, s[%d:%d], s%d offen offset:2048 sc1" % (HA, HG, PWS, PWS + 3, PE + 3))
            e("s_sub_u32 s%d, s%d, 1" % (PSP, PSP))
            e("s_cbranch_scc1 L_h3gw")
            e.lines.append("L_h3gq:")
            e("s_waitcnt vmcnt(0)")
            e("v_subrev_u32 v%d, s%d, v%d" % (HA, PT, HA))
            e("v_cmp_gt_u32 vcc, 8192, v%d" % HA)
            e("v_cndmask_b32 v%d, v%d, v%d, vcc" % (HA, HC, HA))
            e("v_min_u32_dpp v%d, v%d, v%d quad_perm:[1,0,3,2] row_mask:0xf bank_mask:0xf" % (HA, HA, HA))
            e("v_min_u32_dpp v%d, v%d, v%d quad_perm:[2,3,0,1] row_mask:0xf bank_mask:0xf" % (HA, HA, HA))
            e("v_cmp_eq_u32 vcc, v%d, v%d" % (HC, HA))
            e("s_cbranch_vccnz L_h3gp")
            for k in range(4):
                e("v_readlane_b32 s%d, v%d, %d" % (PE + 4 + k, HA, 4 * k))
            e("v_readlane_b32 s%d, v%d, s%d" % (PE + 1, HA, PBK))
            e("s_max_u32 s%d, s%d, s%d" % (PE + 4, PE + 4, PE + 5))
            e("s_max_u32 s%d, s%d, s%d" % (PE + 6, PE + 6, PE + 7))
            e("s_max_u32 s%d, s%d, s%d" % (PE, PE + 4, PE + 6))
            e("s_sub_u32 s%d, s%d, s%d" % (PE, PE, PE + 1))
            e("s_sub_u32 s%d, s%d, %d" % (PE, PE, P["gtol"]))
            e("s_max_i32 s%d, s%d, 0" % (PE, PE))
            e("s_min_i32 s%d, s%d, %d" % (PE, PE, P["gcap"]))
            e.label("L_h3gw")
            e("s_or_b32 s%d, s%d, 0x10000" % (PE, PE))
            e("v_mov_b32 v%d, s%d" % (HB_, PE))
            e("ds_write_b32 v%d, v%d" % (HK, HB_))
            e("s_mov_b32 exec_lo, -1")
            e("v_add_u32 v%d, 4, v%d" % (HK, HK))
            e("s_waitcnt vmcnt(0)")
            e.label("L_h3ng")
            e("s_lshr_b32 s%d, s%d, 1" % (PRN, PRN))
        e("s_add_u32 s%d, s%d, %d" % (PJ, PJ, 3 + P["pw"]))
        e("s_add_u32 s%d, s%d, 128" % (PO, PO))
        e("s_add_u32 s%d, s%d, 128" % (PFL, PFL))
        e("s_cmp_lt_u32 s%d, %d" % (PJ, 12 * (len(CPK) + len(CPV))))
        e("s_cbranch_scc1 L_h3loop")
        if P["fc"] == 4:
            last_gather()
        else:
            e("s_endpgm")

    e.label("L_h2")
    srd(PS2, 74, H * SKV * 2)
    srd(PS3, 76, H * SKV * 2)
    if P["pf"] >= 2:
        if P["pf"] == 2:
            lds_wait("pf", HZ, HE, PE, L_EV + 4, "1", PSP)
        if P["pf"] == 4:
            lds_wait("pf", HZ, HE, PE, L_EV, "1", PSP)
        e("v_lshlrev_b32 v%d, 4, v%d" % (HA, HL))
        e("s_lshl_b32 s%d, s2, 13" % PE)
        e("s_add_u32 s%d, s%d, 4096" % (PE + 1, PE))
        for a, sr in enumerate((PS2, PS3)):
            for k in range(8):
                r = HX + 4 * (a * 8 + k)
                e("buffer_load_dwordx4 v[%d:%d], v%d, s[%d:%d], s%d offen offset:%d" % (r, r + 3, HA, sr, sr + 3, PE + k // 4, (k % 4) * 1024))
        e("s_waitcnt vmcnt(0)")
    get_dec("d2")
    PSIX = 24
    PKW = 32; PNEED = 33; PN0 = 34; PIM = 35; PCH = 36; PCC = 37; PMG = 38; PWD = 39; PIS = 40
    PGT = 42
    HT = HW
    HP = HX + 88; PXM = 64
    e("v_and_b32 v%d, 3, v%d" % (HT, HL))
    e("v_and_b32 v%d, 7, v%d" % (HT2, HL))
    e("v_lshrrev_b32 v%d, 2, v%d" % (HR, HL))
    e("s_mov_b32 s%d, %s" % (PCC, f32hex(C)))
    e("s_mov_b32 s%d, 0xaaaaaaab" % PMG)
    e("s_mov_b32 s%d, 0" % PPH)
    HPG = HP + 1 if XZ else HP
    if XZ:
        e("s_lshl_b32 s%d, s%d, 3" % (PIM, PG))
        img_base(PIM, PIM, PE)
        img_lane(HPG, HA)
    else:
        e("s_mul_i32 s%d, s%d, %d" % (PIM, PG, 8 * IMS))
    e("s_add_u32 s%d, s%d, %d" % (PIM, PIM, WS_L))
    e("s_mov_b32 s%d, %d" % (PIS, XZ or IMS))
    e("v_lshlrev_b32 v%d, 5, v%d" % (HN, HL))
    e("v_lshrrev_b32 v%d, 3, v%d" % (HK, HL))
    e("v_mul_u32_u24 v%d, 24, v%d" % (HK, HK))
    e("v_mov_b32 v%d, 768" % HA)
    e("v_mad_u32_u24 v%d, v%d, v%d, v%d" % (HK, HT2, HA, HK))
    if CX:
        e("v_lshrrev_b32 v%d, 3, v%d" % (HA, HL))
        e("v_lshlrev_b32 v%d, 7, v%d" % (HP, HT2))
        e("v_lshl_add_u32 v%d, v%d, 4, v%d" % (HP, HA, HP))
    else:
        e("v_lshlrev_b32 v%d, 4, v%d" % (HP, HL))
    e("s_mov_b32 s%d, %d" % (PN0, (2 if CX else 3) * N0))
    RS = 16
    e.label("L_prep")
    seg_scalars()
    e("s_mov_b32 s%d, s%d" % (PKW, PDC))
    e("s_mov_b32 s%d, s%d" % (PWD, PDC + 3))
    for i in (0, 1, 3, 4):
        e("s_mov_b32 s%d, s%d" % (PDC + i, PDC + i + 1))
    e("s_lshl_b32 s%d, s%d, 3" % (PNEED, PPH))
    e("s_add_u32 s%d, s%d, 1" % (PNEED, PNEED))
    if P["pf"] == 1:
        lds_wait("pf", HZ, HE, PE, L_EV + 4, "s%d" % PNEED, PSP)
        e("v_lshlrev_b32 v%d, 4, v%d" % (HA, HL))
        e("s_mul_i32 s%d, s%d, 2736" % (PE + 1, PM))
        e("s_lshl_b32 s%d, s%d, 16" % (PE, PSG))
        e("s_mul_hi_u32 s%d, s%d, 0xaaaaaaab" % (PE, PE))
        e("s_lshr_b32 s%d, s%d, 5" % (PE, PE))
        e("s_lshl_b32 s%d, s%d, 4" % (PE, PE))
        e("s_add_u32 s%d, s%d, s%d" % (PE, PE, PE + 1))
        if P["pp"]:
            e("s_memrealtime s[%d:%d]" % (PGT, PGT + 1))
            e("s_waitcnt lgkmcnt(0)")
        for a, sr in enumerate((PS2, PS3)):
            for k in range(3):
                r = HX + 4 * RS + 4 * (a * 3 + k)
                if P["pp"]:
                    twait(PGT, PGT + 2, P["pp"])
                e("buffer_load_dwordx4 v[%d:%d], v%d, s[%d:%d], s%d offen offset:%d%s" % (r, r + 3, HA, sr, sr + 3, PE, k * 1024, " nt" if P["bnt"] & 8 else ""))
    for w, hv in ((PWD, HV),):
        e("s_and_b32 s%d, s%d, 7" % (PE, w))
        e("v_mov_b32 v%d, s%d" % (hv, PE))
        e("s_bitcmp1_b32 s%d, 3" % w)
        e("s_cselect_b64 vcc, -1, 0")
        e("v_cndmask_b32 v%d, v%d, v%d, vcc" % (hv, hv, HT2))
    e("v_xor_b32 v%d, s%d, v%d" % (HG, PNB, HV))
    e("v_lshl_or_b32 v%d, v%d, 3, v%d" % (HG, HT, HG))
    e("s_lshl_b32 s%d, s%d, 6" % (PCH, PSG))
    e("s_mul_i32 s%d, s%d, 768" % (PE + 1, PSG))
    e("s_lshl_b32 s%d, s%d, 2" % (PE + 2, PG0))
    e("s_sub_u32 s%d, s%d, s%d" % (PE + 1, PE + 1, PE + 2))
    e("s_add_u32 s%d, s%d, %d" % (PE + 1, PE + 1, WS_B))
    if P["pace"]:
        e("s_add_u32 s%d, s%d, 4" % (PNEED, PNEED))
        lds_wait("ga", HZ, HE, PE, L_EV + 4, "s%d" % PNEED, PSP)
    else:
        e("s_add_u32 s%d, s%d, 1" % (PNEED, PPH))
        lds_wait("ga", HZ, HE, PE, L_FD, "s%d" % PNEED, PSP)
    def first_token(st):
        e("v_add_u32 v%d, %d, v%d" % (HA, 16 * st, HR))
        e("v_bfe_u32 v%d, v%d, 3, 2" % (HB_, HA))
        e("v_and_or_b32 v%d, v%d, 4, v%d" % (HB_, HA, HB_))
        e("v_xor_b32 v%d, v%d, v%d" % (HB_, HG, HB_))
        e("v_add_u32 v%d, s%d, v%d" % (HA, PCH, HA))
        e("v_lshl_add_u32 v%d, v%d, 5, v%d" % (HC, HA, HB_))
        e("v_lshl_add_u32 v%d, v%d, 4, 1" % (HC, HC))
        e("v_mul_hi_u32 v%d, v%d, s%d" % (HC, HC, PMG))
        e("v_lshrrev_b32 v%d, 1, v%d" % (HC, HC))

    def gathers(st):
        R = HX + RS * st
        e("v_lshrrev_b32 v%d, 1, v%d" % (HF, HC))
        e("v_lshlrev_b32 v%d, 2, v%d" % (HF, HF))
        for b, sr in ((R + 8, PS2), (R + 12, PS3)):
            if P["xkp"] & 8:
                continue
            gnt = " nt" if P["bnt"] & 16 else ""
            if P["gp"]:
                if st == 0 and sr == PS2:
                    e("s_memrealtime s[%d:%d]" % (PGT, PGT + 1))
                    e("s_waitcnt lgkmcnt(0)")
                n = P["gs"]
                for q in range(n):
                    twait(PGT, PGT + 2, P["gp"])
                    if n > 1:
                        mk = ((1 << (64 // n)) - 1) << (64 // n * q)
                        e("s_mov_b32 exec_lo, 0x%x" % (mk & 0xffffffff))
                        e("s_mov_b32 exec_hi, 0x%x" % (mk >> 32))
                    if P["gf"]:
                        e("buffer_load_dwordx4 v[%d:%d], v%d, s[%d:%d], 0 offen %s" % (b, b + 3, HF, sr, sr + 3, P["gf"].replace("x", "")))
                        continue
                    e("buffer_load_dwordx3 v[%d:%d], v%d, s[%d:%d], 0 offen%s" % (b, b + 2, HF, sr, sr + 3, gnt))
                    e("buffer_load_dword v%d, v%d, s[%d:%d], 0 offen offset:12%s" % (b + 3, HF, sr, sr + 3, gnt))
                e("s_mov_b64 exec, -1")
                continue
            e("buffer_load_dwordx3 v[%d:%d], v%d, s[%d:%d], 0 offen%s" % (b, b + 2, HF, sr, sr + 3, gnt))
            if P["pace"] == 2:
                e("s_waitcnt vmcnt(0)")
            e("buffer_load_dword v%d, v%d, s[%d:%d], 0 offen offset:12%s" % (b + 3, HF, sr, sr + 3, gnt))

    for st in range(4):
        R = HX + RS * st
        first_token(st)
        if not P["go"]:
            gathers(st)
        e("v_lshrrev_b32 v%d, 6, v%d" % (R + 6, HC))
        e("v_lshl_add_u32 v%d, v%d, 2, s%d" % (R + 6, R + 6, PE + 1))
        e("v_and_b32 v%d, 15, v%d" % (HD, HC))
        e("v_cmp_eq_u32 s[%d:%d], 5, v%d" % (PSIX + 2 * st, PSIX + 2 * st + 1, HD))
        e("v_and_b32 v%d, 1, v%d" % (R + 7, HC))
        e("v_lshlrev_b32 v%d, 4, v%d" % (R + 7, R + 7))
        if P["pace"] == 1:
            e("s_waitcnt vmcnt(0)")
    e("s_add_u32 s%d, s%d, 1" % (PNEED, PPH))
    if P["fd"]:
        cps = CPK + [48 + c for c in CPV]
        th = [12 * min(j for j, c in enumerate(cps) if c > b) + P["fd"] for b in (16, 32, 48)]
        assert th[2] - th[1] == th[1] - th[0]
        e("s_mul_i32 s%d, s%d, %d" % (PE + 6, PPH, th[1] - th[0]))
        e("s_add_u32 s%d, s%d, %d" % (PE + 6, PE + 6, th[0]))
        lds_wait("fe", HZ, HE, PE, L_TC, "s%d" % (PE + 6), PSP)
    lds_wait("fd", HZ, HE, PE, L_FD, "s%d" % PNEED, PSP)
    e("v_mul_u32_u24 v%d, %d, v%d" % (HA, FSTR, HL))
    e("s_xor_b32 s%d, s%d, s%d" % (PE, PKW, PWD))
    e("s_xor_b32 s%d, s%d, s%d" % (PE, PE, PNB))
    e("s_and_b32 s%d, s%d, 7" % (PE, PE))
    e("v_mov_b32 v%d, s%d" % (HC, PNEED))
    e("s_lshl_b64 vcc, 1, s%d" % PE)
    e("s_or_b32 s%d, s%d, s%d" % (PE, PKW, PWD))
    e("s_bitcmp1_b32 s%d, 3" % PE)
    e("s_cselect_b64 vcc, 0xff, vcc")
    e("s_cmp_eq_u32 s%d, s%d" % (PKW, PWD))
    e("s_cselect_b64 vcc, 0, vcc")
    e("s_max_u32 s%d, s%d, 1" % (PE, PPH))
    e("v_mov_b32 v%d, s%d" % (HD, PE))
    e("v_cndmask_b32 v%d, v%d, v%d, vcc" % (HC, HD, HC))
    e("s_cmp_%s_u32 s%d, 1" % ("eq" if P["jit"] else "ge", PPH))
    e("s_cselect_b64 exec, vcc, 0xff")
    e("s_mov_b32 s%d, 0x40000" % PSP)
    if not P["xkp"] & 64:
        e("s_cbranch_execz L_noflags")
        e.label("L_flags")
        e("buffer_load_dword v%d, v%d, s[%d:%d], s%d offen sc1" % (HB_, HA, PWS, PWS + 3, PGL))
        e("s_sub_u32 s%d, s%d, 1" % (PSP, PSP))
        e("s_cbranch_scc1 L_exit1")
        e("s_waitcnt vmcnt(0)")
        e("v_cmpx_gt_u32 vcc, v%d, v%d" % (HC, HB_))
        e("s_cbranch_execnz L_flags")
        e.label("L_noflags")
    e("s_mov_b64 exec, -1")
    for st in range(4):
        R = HX + RS * st
        if not P["xkp"] & 32:
            e("buffer_load_dword v%d, v%d, s[%d:%d], 0 offen sc1" % (R + 6, R + 6, PWS, PWS + 3))
    e("s_bitcmp1_b32 s%d, 3" % PWD)
    e("s_cselect_b32 s%d, 0, 7" % (PE + 1))
    e("s_xor_b32 s%d, s%d, s%d" % (PE + 2, PKW, PWD))
    e("s_bitcmp1_b32 s%d, 3" % (PE + 2))
    e("s_cselect_b32 s%d, 7, 0" % (PE + 3))
    e("s_and_b32 s%d, s%d, 7" % (PE + 2, PE + 2))
    e("s_and_b32 s%d, s%d, 7" % (PE + 4, PWD))
    if CX:
        e("v_lshrrev_b32 v%d, 3, v%d" % (HA, HL))
        e("v_cmp_gt_u32 vcc, s%d, v%d" % (PN0, HA))
        e("v_and_b32 v%d, s%d, v%d" % (HC, PE + 3, HT2))
        e("v_xor_b32 v%d, s%d, v%d" % (HC, PE + 2, HC))
        e("v_and_b32 v%d, s%d, v%d" % (HB_, PE + 1, HT2))
        e("v_xor_b32 v%d, s%d, v%d" % (HB_, PE + 4, HB_))
        e("v_cndmask_b32 v%d, v%d, v%d, vcc" % (HB_, HC, HB_))
        for k, hv in enumerate((HB_, HC)):
            e("v_cmp_ne_u32 s[%d:%d], 0, v%d" % (PXM + 2 * k, PXM + 2 * k + 1, hv))
            e("v_xor_b32 v%d, s%d, v%d" % (hv, PNB, hv))
            e("v_mad_u32_u24 v%d, v%d, s%d, v%d" % (hv, hv, PIS, HP))
        for st in range(4):
            R = HX + 4 * RS + 4 * st
            if st < 2:
                e("s_mov_b64 exec, s[%d:%d]" % (PXM + 2 * st, PXM + 2 * st + 1))
            if not P["xkp"] & 128:
                e("buffer_load_dwordx4 v[%d:%d], v%d, s[%d:%d], s%d offen offset:%d sc1" %
                  (R, R + 3, HC if st else HB_, PWS, PWS + 3, PIM, st * 1024))
        e("s_mov_b64 exec, -1")
    else:
        e("s_add_u32 s%d, s%d, 4096" % (PE + 5, PIM))
        for k in range(6):
            R = HX + 4 * RS + 4 * k
            e("v_add_u32 v%d, %d, v%d" % (HA, 64 * k, HL))
            e("v_mul_u32_u24 v%d, 1366, v%d" % (HB_, HA))
            e("v_lshrrev_b32 v%d, 16, v%d" % (HB_, HB_))
            e("v_mul_u32_u24 v%d, 48, v%d" % (HC, HB_))
            e("v_sub_u32 v%d, v%d, v%d" % (HA, HA, HC))
            e("v_cmp_gt_u32 vcc, s%d, v%d" % (PN0, HA))
            e("v_and_b32 v%d, s%d, v%d" % (HC, PE + 3, HB_))
            e("v_xor_b32 v%d, s%d, v%d" % (HC, PE + 2, HC))
            e("v_and_b32 v%d, s%d, v%d" % (HB_, PE + 1, HB_))
            e("v_xor_b32 v%d, s%d, v%d" % (HB_, PE + 4, HB_))
            e("v_cndmask_b32 v%d, v%d, v%d, vcc" % (HC, HC, HB_))
            e("v_cmp_ne_u32 s[%d:%d], 0, v%d" % (PXM + 2 * k, PXM + 2 * k + 1, HC))
            e("v_xor_b32 v%d, s%d, v%d" % (HC, PNB, HC))
            e("v_mad_u32_u24 v%d, v%d, s%d, v%d" % (HC, HC, PIS, HPG))
            if XZ:
                e("s_add_u32 s%d, s%d, %d" % (PE + 5, PIM, img_k(k)))
            if P["fr"]:
                if k == 0:
                    e("s_memrealtime s[%d:%d]" % (PGT, PGT + 1))
                    e("s_waitcnt lgkmcnt(0)")
                twait(PGT, PGT + 2, P["fr"])
            e("s_mov_b64 exec, s[%d:%d]" % (PXM + 2 * k, PXM + 2 * k + 1))
            if XZ:
                e("buffer_load_dwordx4 v[%d:%d], v%d, s[%d:%d], s%d offen sc1" % (R, R + 3, HC, PWS, PWS + 3, PE + 5))
            elif not P["xkp"] & 128:
                e("buffer_load_dwordx4 v[%d:%d], v%d, s[%d:%d], s%d offen offset:%d sc1" %
                  (R, R + 3, HC, PWS, PWS + 3, PE + 5 if k >= 4 else PIM, (k % 4) * 1024))
            e("s_mov_b64 exec, -1")
        e("s_waitcnt vmcnt(0)")
        for k in range(6):
            R = HX + 4 * RS + 4 * k
            e("s_mov_b64 exec, s[%d:%d]" % (PXM + 2 * k, PXM + 2 * k + 1))
            e("ds_write_b128 v%d, v[%d:%d] offset:%d" % (HP, R, R + 3, L_LG + k * 1024))
        e("s_mov_b64 exec, -1")
    if P["go"]:
        for st in range(4):
            first_token(st)
            gathers(st)
    for st in range(4):
        R = HX + RS * st
        for c in range(3):
            e("ds_read_b64 v[%d:%d], v%d offset:%d" % (R + 2 * c, R + 2 * c + 1, HK, L_LG + st * 192 + 8 * c))
    e("s_mov_b32 s%d, 0" % PN0)
    e("v_mov_b32 v%d, 0x%08x" % (HB_, BIGNEG))
    e("v_mov_b32 v%d, 0x%08x" % (HA, BIGNEG))
    e("s_waitcnt vmcnt(0) lgkmcnt(0)")
    if CX:
        for st in range(4):
            R = HX + RS * st
            Q = HX + 4 * RS + 4 * st
            if st < 2:
                e("s_mov_b64 exec, s[%d:%d]" % (PXM + 2 * st, PXM + 2 * st + 1))
            for k in range(6):
                e("v_fma_mix_f32 v%d, v%d, 1.0, v%d op_sel:[%d,0,0] op_sel_hi:[1,0,0]" % (R + k, Q + 1 + k // 2, Q, k & 1))
            e("v_cmp_lt_f32 vcc, v%d, v%d" % (Q, R + 5))
            e("v_cndmask_b32 v%d, v%d, v%d, vcc" % (R + 5, R + 5, HZ))
        e("s_mov_b64 exec, -1")
    for st in range(4):
        R = HX + RS * st
        for k in range(6):
            e("v_sub_f32 v%d, v%d, v%d" % (R + k, R + k, R + 6))
        for k in range(6):
            e("v_mul_f32 v%d, s%d, v%d" % (R + k, PCC, R + k))
        e("v_cndmask_b32 v%d, v%d, v%d, s[%d:%d]" % (R + 5, HB_, R + 5, PSIX + 2 * st, PSIX + 2 * st + 1))
        for k in range(0, 6, 2):
            e("v_max3_f32 v%d, v%d, v%d, v%d" % (HA, HA, R + k, R + k + 1))
        for b in (R + 8, R + 12):
            for k in range(3):
                e("v_alignbit_b32 v%d, v%d, v%d, v%d" % (b + k, b + k + 1, b + k, R + 7))

    wave_reduce([HA], "v_max_f32", [HB_])
    e("v_mov_b32 v%d, 0" % HB_)
    e("v_mov_b32 v%d, 0" % HC)
    for st in range(4):
        R = HX + RS * st
        for k in range(6):
            e("v_sub_f32 v%d, v%d, v%d" % (R + k, R + k, HA))
        for k in range(6):
            e("v_exp_f32 v%d, v%d" % (R + k, R + k))
        for k in range(6):
            e("v_add_f32 v%d, v%d, v%d" % (HB_, HB_, R + k))
            if k & 1:
                e("v_and_b32 v%d, 0xffff0000, v%d" % (HE, R + 8 + k // 2))
                e("v_and_b32 v%d, 0xffff0000, v%d" % (HF, R + 12 + k // 2))
            else:
                e("v_lshlrev_b32 v%d, 16, v%d" % (HE, R + 8 + k // 2))
                e("v_lshlrev_b32 v%d, 16, v%d" % (HF, R + 12 + k // 2))
            e("v_mul_f32 v%d, v%d, v%d" % (R + k, R + k, HE))
            e("v_fmac_f32 v%d, v%d, v%d" % (HC, R + k, HF))
        e("ds_write_b128 v%d, v[%d:%d] offset:%d" % (HN, R, R + 3, L_PV + st * 2048))
        e("ds_write_b64 v%d, v[%d:%d] offset:%d" % (HN, R + 4, R + 5, L_PV + st * 2048 + 16))
    wave_reduce([HB_, HC], "v_add_f32", [HE, HF])
    e("s_lshl_b32 s%d, s%d, 2" % (PE, PPH))
    e("v_mov_b32 v%d, s%d" % (HE, PE))
    e("v_lshlrev_b32 v%d, 2, v%d" % (HF, HE))
    e("v_mov_b32 v%d, s%d" % (HD, PWD))
    e("s_mov_b64 exec, 1")
    e("ds_write_b128 v%d, v[%d:%d] offset:%d" % (HF, HA, HD, L_ML))
    e("ds_write_b32 v%d, v%d offset:%d" % (HE, HD, L_GO))
    if FU:
        e("s_lshl_b32 s%d, s%d, 8" % (PE, PPH))
        e("s_add_u32 s%d, s%d, s2" % (PE, PE))
        e("s_lshl_b32 s%d, s%d, 6" % (PE, PE))
        e("s_add_u32 s%d, s%d, %d" % (PE, PE, WS_ML))
        e("buffer_store_dwordx4 v[%d:%d], off, s[%d:%d], s%d sc1" % (HA, HD, PWS, PWS + 3, PE))
    e("s_mov_b64 exec, -1")
    e("v_add_u32 v%d, 8192, v%d" % (HN, HN))
    e("v_add_u32 v%d, %d, v%d" % (HK, PHI, HK))
    if CX:
        e("s_add_u32 s%d, s%d, %d" % (PIM, PIM, PHS))
    else:
        e("v_add_u32 v%d, %d, v%d" % (HP, PHI, HP))
        if PHS != PHI:
            e("s_add_u32 s%d, s%d, %d" % (PIM, PIM, PHS if XZ else PHS - PHI))
    e("s_add_u32 s%d, s%d, 1" % (PPH, PPH))
    e("s_cmp_lt_u32 s%d, 3" % PPH)
    e("s_cbranch_scc1 L_prep")
    e("s_mov_b32 s%d, 0" % PPH)
    e("v_lshlrev_b32 v%d, 2, v%d" % (HR, HL))
    e("v_add_u32 v%d, %d, v%d" % (HG, L_ACC, HR))
    e("v_lshlrev_b32 v%d, 4, v%d" % (HK, HL))
    e("v_mov_b32 v%d, 1" % (HX + 15))
    e.label("L_merge")
    e("s_lshl_b32 s%d, s%d, 2" % (PE, PPH))
    e("v_mov_b32 v%d, s%d" % (HW, PE))
    e("v_lshlrev_b32 v%d, 2, v%d" % (HF, HW))
    e("ds_read_b128 v[%d:%d], v%d offset:%d" % (HA, HD, HF, L_ML))
    e("s_lshl_b32 s%d, s%d, 8" % (PSG, PPH))
    e("s_add_u32 s%d, s%d, s2" % (PSG, PSG))
    e("s_lshl_b32 s%d, s%d, 10" % (PSG, PSG))
    lds_wait("m", HZ, HE, PE, L_CA, "4", PSP, HW)
    for kk in range(3):
        for w in range(NW):
            e("ds_read_b32 v%d, v%d offset:%d" % (HX + kk * NW + w, HG, w * ROWB + kk * 256))
    for kk in range(3):
        b = HX + kk * NW
        e("s_waitcnt lgkmcnt(%d)" % (8 - 4 * kk))
        e("v_add_f32 v%d, v%d, v%d" % (b, b, b + 1))
        e("v_add_f32 v%d, v%d, v%d" % (b + 2, b + 2, b + 3))
        e("v_sub_f32 v%d, v%d, v%d" % (b, b, HC))
        if FU:
            e("v_add_f32 v%d, v%d, v%d" % (HX + 12 + kk, b, b + 2))
            continue
        e("v_add_f32 v%d, v%d, v%d" % (b, b, b + 2))
        e("buffer_store_dword v%d, v%d, s[%d:%d], s%d offen offset:%d" % (b, HR, PWS, PWS + 3, PSG, kk * 256))
    if FU:
        e("buffer_store_dwordx4 v[%d:%d], v%d, s[%d:%d], s%d offen sc1" % (HX + 12, HX + 15, HK, PWS, PWS + 3, PSG))
    else:
        e("s_mov_b64 exec, 1")
        e("buffer_store_dwordx2 v[%d:%d], off, s[%d:%d], s%d offset:%d" % (HA, HB_, PWS, PWS + 3, PSG, DH * 4))
        e("s_mov_b64 exec, -1")
    e("v_add_u32 v%d, %d, v%d" % (HG, NW * ROWB, HG))
    e("s_add_u32 s%d, s%d, 1" % (PPH, PPH))
    e("s_cmp_lt_u32 s%d, %d" % (PPH, 2 if 0 < P["fc"] < 4 else 3))
    e("s_cbranch_scc1 L_merge")
    if 0 < P["fc"] < 4:
        last_gather()
    if P["stamp"] == 5:
        e("s_memrealtime s[%d:%d]" % (PT, PT + 1))
        e("s_waitcnt vmcnt(0)")
        e("s_memrealtime s[%d:%d]" % (PT + 2, PT + 3))
        srd(PS2, 82, 0x8000000)
        e("s_waitcnt lgkmcnt(0)")
        e("v_mov_b32 v%d, s%d" % (HX, PT))
        e("v_mov_b32 v%d, s%d" % (HX + 1, PT + 2))
        e("s_lshl_b32 s%d, s2, 3" % PE)
        e("s_add_u32 s%d, s%d, 0x400a000" % (PE, PE))
        e("s_mov_b64 exec, 1")
        e("buffer_store_dwordx2 v[%d:%d], off, s[%d:%d], s%d" % (HX, HX + 1, PS2, PS2 + 3, PE))
    e("s_endpgm")

    main_text = e.text()
    if P["nts"]:
        ls = []
        for l in main_text.split("\n"):
            w = l.split()
            if w and w[-1] == "sc1":
                big = w[0].endswith("x4")
                bit = (1 if big else 2) if w[0].startswith("buffer_store") else (4 if big else 8)
                if P["nts"] & bit:
                    l += " nt"
            ls.append(l)
        main_text = "\n".join(ls)
    RPW = 24
    k2 = NAME + "_kernel"
    e.lines.append(".globl %s" % k2)
    e.lines.append(".p2align 8")
    e.lines.append(".type %s,@function" % k2)
    e.lines.append(k2 + ":")
    e.wr = {}; e.tr = {}; e.sw = {}
    e("s_cmp_ge_u32 s2, %d" % H)
    e("s_cbranch_scc1 L_exit2")
    e("s_load_dwordx2 s[4:5], s[0:1], 56")
    e("s_load_dwordx2 s[6:7], s[0:1], 72")
    e("v_lshlrev_b32 v1, 2, v0")
    e("v_mov_b32 v2, 0")
    e("s_mul_i32 s16, s2, %d" % (RPW * PART_STRIDE))
    e("s_mov_b32 s10, %d" % (3 * NWG * PART_STRIDE))
    e("s_mov_b32 s11, 0x00020000")
    e("s_mov_b32 s14, %d" % (H * DH * 2))
    e("s_mov_b32 s15, 0x00020000")
    for k in range(1, RPW // 4):
        e("s_add_u32 s%d, s16, %d" % (16 + k, 4 * k * PART_STRIDE))
    e("s_waitcnt lgkmcnt(0)")
    e("s_mov_b32 s8, s6")
    e("s_and_b32 s9, s7, 0xffff")
    e("s_mov_b32 s12, s4")
    e("s_and_b32 s13, s5, 0xffff")
    MLB = 8
    OB = MLB + 2 * RPW
    for s in range(RPW):
        so = 16 + s // 4
        e("buffer_load_dwordx2 v[%d:%d], v2, s[8:11], s%d offen offset:%d" %
          (MLB + 2 * s, MLB + 2 * s + 1, so, (s % 4) * PART_STRIDE + DH * 4))
        e("buffer_load_dword v%d, v1, s[8:11], s%d offen offset:%d" % (OB + s, so, (s % 4) * PART_STRIDE))
    e("s_waitcnt vmcnt(0)")
    e("v_mov_b32 v4, v%d" % MLB)
    for s in range(1, RPW):
        e("v_max_f32 v4, v4, v%d" % (MLB + 2 * s))
    for s in range(RPW):
        e("v_sub_f32 v%d, v%d, v4" % (MLB + 2 * s, MLB + 2 * s))
    for s in range(RPW):
        e("v_exp_f32 v%d, v%d" % (MLB + 2 * s, MLB + 2 * s))
    e("v_mul_f32 v5, v%d, v%d" % (MLB, MLB + 1))
    e("v_mul_f32 v6, v%d, v%d" % (MLB, OB))
    for s in range(1, RPW):
        e("v_fmac_f32 v5, v%d, v%d" % (MLB + 2 * s, MLB + 2 * s + 1))
        e("v_fmac_f32 v6, v%d, v%d" % (MLB + 2 * s, OB + s))
    e("v_rcp_f32 v5, v5")
    e("v_mul_f32 v6, v6, v5")
    e("v_cvt_pk_bf16_f32 v6, v6, v6")
    e("s_mul_i32 s16, s2, %d" % (DH * 2))
    e("v_lshrrev_b32 v1, 1, v1")
    e("buffer_store_short v6, v1, s[12:15], s16 offen")
    e.lines.append("L_exit2:")
    e("s_endpgm")
    NV2 = OB + RPW

    def kd(name, nv, ns):
        acc = (nv + 3) // 4 * 4
        return """.amdhsa_kernel %s
  .amdhsa_next_free_vgpr %d
  .amdhsa_next_free_sgpr %d
  .amdhsa_accum_offset %d
  .amdhsa_group_segment_fixed_size 0
  .amdhsa_kernarg_size 80
  .amdhsa_user_sgpr_count 2
  .amdhsa_user_sgpr_kernarg_segment_ptr 1
  .amdhsa_system_sgpr_workgroup_id_x 1
.end_amdhsa_kernel
""" % (name, nv, ns, acc)

    diag = ""
    if P["diag"]:
        d = Emit4()
        d.lines += [".globl diag_kernel", ".p2align 8", ".type diag_kernel,@function", "diag_kernel:"]
        d("s_cmp_ge_u32 s2, 1")
        d("s_cbranch_scc1 L_dx")
        d("s_load_dwordx2 s[6:7], s[0:1], 72")
        d("s_memrealtime s[16:17]")
        d("v_lshlrev_b32 v1, 4, v0")
        d("s_mov_b32 s10, 0x8000000")
        d("s_mov_b32 s11, 0x00020000")
        d("s_waitcnt lgkmcnt(0)")
        d("s_mov_b32 s8, s6")
        d("s_and_b32 s9, s7, 0xffff")
        for k in range(16):
            d("s_mov_b32 s12, 0x%x" % (0x4000000 + k * 1024))
            d("buffer_load_dwordx4 v[%d:%d], v1, s[8:11], s12 offen" % (4 + 4 * k, 7 + 4 * k))
        d("s_waitcnt vmcnt(0)")
        d("v_readfirstlane_b32 s13, v4")
        d("v_mov_b32 v2, 0")
        d("v_mov_b32 v3, 0")
        for k in range(16):
            d("v_subrev_u32 v%d, s13, v%d" % (4 + 4 * k, 4 + 4 * k))
            d("v_subrev_u32 v%d, s13, v%d" % (5 + 4 * k, 4 + 4 * k + (P["diag"] & 3)))
            d("v_min_i32 v2, v2, v%d" % (4 + 4 * k))
            d("v_%s v3, v3, v%d" % ("add_u32" if P["diag"] & 128 else "max_i32", 5 + 4 * k))
        d("s_mov_b32 s14, 0")
        d("s_mov_b32 s15, 0")
        for l in range(64):
            d("v_readlane_b32 s18, v2, %d" % l)
            d("v_readlane_b32 s19, v3, %d" % l)
            d("s_nop 3")
            d("s_min_i32 s14, s14, s18")
            d("s_%s s15, s15, s19" % ("add_u32" if P["diag"] & 128 else "max_i32"))
        if P["diag"] & 128:
            d("s_ashr_i32 s15, s15, 10")
        if P["diag"] & 96:
            d("s_mov_b32 s12, 0x4100000")
            d("buffer_load_dwordx4 v[8:11], off, s[8:11], s12")
            d("v_readfirstlane_b32 s18, v6")
            d("s_waitcnt vmcnt(0)")
            d("v_readfirstlane_b32 s19, v8")
            d("v_readfirstlane_b32 s20, v9")
            d("v_readfirstlane_b32 s21, v10")
            d("s_and_b32 s18, s18, %d" % P["dth"])
            d("s_min_u32 s18, s18, 1")
            d("s_cmp_eq_u32 s19, 0x13572468")
            d("s_cselect_b32 s20, s20, 0")
            d("s_cselect_b32 s21, s21, 0")
            d("s_add_u32 s20, s20, s18")
            d("s_add_u32 s21, s21, 1")
            d("v_mov_b32 v8, 0x13572468")
            d("v_mov_b32 v9, s20")
            d("v_mov_b32 v10, s21")
            d("s_mov_b64 exec, 1")
            d("buffer_store_dwordx4 v[8:11], off, s[8:11], s12")
            d("s_mov_b32 s15, s%d" % (20 if P["diag"] & 32 else 21))
        elif P["diag"] & 8:
            d("s_load_dwordx2 s[20:21], s[0:1], 64")
            d("s_waitcnt lgkmcnt(0)")
            d("s_sub_u32 s20, s20, 512")
            d("s_subb_u32 s21, s21, 0")
            d("s_load_dword s15, s[20:21], 0")
            d("s_waitcnt lgkmcnt(0)")
            d("s_and_b32 s15, s15, 0xffffff")
            d("s_sub_u32 s15, s15, %d" % (48 * 65536))
            d("s_abs_i32 s15, s15")
            d("s_lshr_b32 s15, s15, 2")
            if P["diag"] & 16:
                d("s_cmp_lt_u32 s15, %d" % (P["dth"] // 4))
                d("s_cselect_b32 s15, 3000, 0")
                d("s_and_b32 s14, s16, 0xf0")
                d("s_cmp_lt_u32 s14, %d" % (16 * P["drn"]))
                d("s_cselect_b32 s15, 3000, s15")
        elif P["diag"] & 4:
            d("s_sub_u32 s14, s16, s13")
            d("s_sub_u32 s15, s14, s15")
        else:
            d("s_sub_u32 s15, s15, s14")
        d("s_sub_u32 s15, s15, %d" % P["doff"])
        d("s_max_i32 s15, s15, 0")
        d("s_min_i32 s15, s15, 10000")
        d("s_mul_i32 s15, s15, %d" % P["dmul"])
        d("s_add_u32 s15, s15, s16")
        d.label("L_dl")
        d("s_memrealtime s[18:19]")
        d("s_waitcnt lgkmcnt(0)")
        d("s_sub_u32 s18, s18, s15")
        d("s_cmp_lt_i32 s18, 0")
        d("s_cbranch_scc1 L_dl")
        d.lines.append("L_dx:")
        d("s_endpgm")
        diag = d.text()
    out = HEADER.replace("gen.py", "gen6.py").format(params=" ".join("%s=%s" % kv for kv in sorted(P.items())))
    if FU:
        out += "; @launch kernel=%s grid=(%d,1,1) block=(%d,1,1) lds=%d\n" % (k1, NWG, (NW + NHX) * 64, LDS1)
    else:
        out += "; @launch kernel=%s grid=(%d,1,1) block=(%d,1,1) lds=%d\n" % (k1, NWG, (NW + NHX) * 64, LDS1)
        out += "; @launch kernel=%s grid=(%d,1,1) block=(%d,1,1) lds=%d\n" % (k2, H, DH, 0)
    if diag:
        out += "; @launch kernel=diag_kernel grid=(1,1,1) block=(64,1,1) lds=0\n"
    out += '.amdgcn_target "amdgcn-amd-amdhsa--gfx950"\n.text\n'
    out += main_text if FU else e.text()
    out += diag
    out += '.section .rodata,"a"\n.p2align 6\n'
    out += kd(k1, NVGPR + (8 if P["xb"] else 2 if P["stamp"] == 5 else 0), 102)
    if not FU:
        out += ".p2align 6\n"
        out += kd(k2, NV2, 24)
    if diag:
        out += ".p2align 6\n"
        out += kd("diag_kernel", 72, 24)
    return out


DEFAULTS = dict(grp="6-6-6", n0=3, trg=1, ta=14, tb=15, jit=1, pace=1, nr0=1, nr=7, nt="nt", ldspad=0, stamp=0, xkp=0, force=0, clip=1400,
                l2t=290, th=200, pf=1, ob=2, ox=0, ds=1, td=3, tdm=3, fuse=1, cw=1,
                lx=0, wo=0, ns0=4, tw=4, ov="0000", st="sc1", xv="", h4=0, bnt=0, vw=1, at=1, tc=40, tg=2, te=44, aq=16, ka=9, kb=2048, dmin=0, dmax=11,
                bc=1, cpk="9-17-25-33-41", cpv="1-9-17-25-33", rd=2, ka2=8, kb2=512, bmax=6, be=1, pw=2, il=1, xp=0, ss=0, eb=0, pfi=0, hs=0, l2p=0, gts="16-32-48-64-80", gn=8, gtol=10, gcap=1000, gq=0, gl2=0, xb=0, diag=0, doff=20000, dmul=8, fc=4, elk=1, cd=9, fd=0, prio=0, bp=0, bp0=0, bq=0, wl=2048, wt=9984, sw=1, dc=1, xs=0, cx=1, fb=0, ib=0, dth=4800, drn=6, ut=0, wb=0, nts=0, wg=8192, wm=896, wbi=1152, lb=1, pb=1, cl2=100, th1=10, th0=10, lm=7, tt=0, tx=1584, d3=33, xa=200, xn=4, bt=0, bt0=0, be1=0, gp=140, gs=2, pp=0, go=1, fw=0, fr=0, xz=0, xr=15, ef=0, gf="")


def main():
    P = dict(DEFAULTS)
    outp = None
    args = sys.argv[1:]
    i = 0
    while i < len(args):
        a = args[i]
        if a == "-o":
            outp = args[i + 1]; i += 2; continue
        k, v = a.split("=", 1)
        assert k in P, k
        P[k] = type(P[k])(v.replace("+", " ")) if isinstance(P[k], str) else int(v)
        i += 1
    s = gen(P)
    if outp:
        open(outp, "w").write(s)
    else:
        sys.stdout.write(s)


if __name__ == "__main__":
    main()
```

```python
import re
import sys
import math
from gen import f32hex, HEADER, NAME, H, SKV, DH, G, NGRP, ROWB, HEADB
from gen4 import Emit4

PART_STRIDE = 1024
NW = 4
NH = 3
NWG = 256
NT = 48
WS_G = 8 << 20
FSTR = 4096 + 256
WS_ML = 0xe0000
WS_B = 0x120000
WS_L = 2 << 20
WS_T = 0x9c0000
WS_SIZE = 10 << 20
BIGNEG = 0xf149f2ca


def gen(P):
    global WS_L, WS_T, WS_G, WS_ML, WS_B
    WS_L = P["wl"] << 10
    WS_T = P["wt"] << 10
    WS_G = P["wg"] << 10
    WS_ML = P["wm"] << 10
    WS_B = P["wbi"] << 10
    assert P["sw"] or not P["dc"]
    GR = [int(x) for x in P["grp"].split("-")]
    assert sum(GR) == 18 and len(GR) >= 2
    NG = len(GR)
    GOFF = [sum(GR[:k]) for k in range(NG)]
    OV = [int(x) for x in P["ov"]]
    N0 = P["n0"]
    NR = P["nr"]
    TRG1 = N0 - P["trg"]
    TA = P["ta"]
    TB = P["tb"]
    assert (2 <= TRG1 < N0 or P["force"] >= 2) and N0 < TA < TB < 16 and 1 <= NR <= 7 and N0 <= 8
    pol = (" " + P["nt"]) if P["nt"] else ""
    C = (DH ** -0.5) * math.log2(math.e)
    L_DEC = 0
    L_GO = 24
    L_PC = 36
    L_CF = 40
    L_FD = 52
    L_EV = 56
    L_CA = 64
    L_ML = 80
    L_TC = 128
    L_TD = 132
    L_EL = 136
    L_TM = 144
    L_GT = 208
    L_LG = 256
    PHI = 6144
    IMG = 3 * PHI
    L_PV = L_LG + IMG
    L_ACC = L_PV + 192 * 128
    LDS1 = max(L_ACC + 3 * NW * ROWB, P["ldspad"])

    e = Emit4()
    V_T = 1; V_J16 = 2; V_J8 = 3; V_LB0 = 4; V_PB0 = 5; V_PV = 6; V_PVN = 7; V_DO = 8; V_PO = 9; V_T0 = 10; V_T1 = 11
    V_ACC = 12; V_W = 24; V_RAW = 36
    V_OFF = 48; V_OFF6 = 49; V_TM = 50; V_BIG = 51; V_T2 = 52; V_Z = 53
    V_S = 54
    V_D = 60
    V_T128 = 62; V_TMX = 63
    V_RING = 64
    NVGPR = V_RING + 72
    S_G = 3; S_M = 4; S_N = 5; S_SPIN = 6; S_LDC = 7
    S_K = 8; S_V = 12; S_KS = 16; S_Q = 20; S_WS = 24
    S_WAVE = 28; S_CI = 29; S_I = 30; S_QOFF = 31
    S_T = 32
    S_EV = 40; S_STM = 42; S_HB = 44; S_768 = 45; S_384 = 46; S_MAGIC = 47
    S_NB = 48; S_TD = 49; S_XB = 50; S_LB = 53
    S_ST = 54; S_DBG = 56
    S_BO = 59; S_TW = 60; S_CPA = 62; S_NBO = 63; S_BP = 72; S_TH = 73; S_TT = 74
    S_MP = 64; S_MG = 66; S_MR = 68; S_MO = 70
    BC = P["bc"]
    NHX = NH + (1 if BC else 0)
    CPK = [int(x) for x in P["cpk"].split("-")] if BC and P["cpk"] else []
    CPV = [int(x) for x in P["cpv"].split("-")] if BC and P["cpv"] else []
    if BC:
        CPV.append(P["tc"])
        assert P["te"] == P["tc"] + P["tg"] + P["rd"] and len(CPK) + len(CPV) <= 16

    GTS = [int(x) for x in P["gts"].split("-")] if BC and P["gts"] else []

    def set_masks(ev, cps):
        mp = sum(1 << c for c in cps)
        allm = [(S_EV, ev | mp | (mp << P["tg"]) | (mp << (P["tg"] + P["rd"])))]
        if BC:
            allm += [(S_MP, mp), (S_MG, mp << P["tg"]), (S_MR, mp << (P["tg"] + P["rd"])), (S_MO, ev)]
        for r, v in allm:
            assert v < (1 << 48)
            e("s_mov_b32 s%d, 0x%x" % (r, v & 0xffffffff))
            e("s_mov_b32 s%d, 0x%x" % (r + 1, v >> 32))

    FU = P["fuse"]
    k1 = NAME + "_kernel" if FU else "part_kernel"
    e.lines.append(".globl %s" % k1)
    e.lines.append(".p2align 8")
    e.lines.append(".type %s,@function" % k1)
    e.lines.append(k1 + ":")
    e("s_cmp_ge_u32 s2, %d" % NWG)
    e("s_cbranch_scc1 L_exit1")
    e("s_load_dwordx16 s[64:79], s[0:1], 0")
    e("s_load_dwordx4 s[80:83], s[0:1], 64")
    if P["stamp"]:
        e("s_memrealtime s[%d:%d]" % (S_ST, S_ST + 1))
    e("v_lshrrev_b32 v%d, 6, v0" % V_T0)
    e("v_and_b32 v%d, 63, v0" % V_T1)
    e("v_readfirstlane_b32 s%d, v%d" % (S_WAVE, V_T0))
    if P["eb"] == 4:
        e("v_lshlrev_b32 v%d, 2, v%d" % (V_T0, V_T1))
        e("v_mov_b32 v%d, 0" % V_Z)
        e("ds_write_b32 v%d, v%d" % (V_T0, V_Z))
    e("s_lshr_b32 s%d, s2, 3" % S_G)
    e("s_and_b32 s%d, s2, 7" % S_M)
    e("s_lshr_b32 s%d, s2, 6" % S_T)
    e("s_xor_b32 s%d, s%d, s%d" % (S_T, S_T, S_M))
    e("s_lshr_b32 s%d, s%d, 1" % (S_NB, S_T))
    e("s_and_b32 s%d, s%d, 1" % (S_T, S_T))
    e("s_lshl_b32 s%d, s%d, 2" % (S_T, S_T))
    e("s_or_b32 s%d, s%d, s%d" % (S_NB, S_NB, S_T))
    if P["eb"] != 4:
        e("s_cmp_ge_u32 s%d, %d" % (S_WAVE, NW))
        e("s_cbranch_scc1 L_helper")

    def srd(dst, ptr, nbytes):
        e("s_mov_b32 s%d, s%d" % (dst, ptr))
        e("s_and_b32 s%d, s%d, 0xffff" % (dst + 1, ptr + 1))
        e("s_mov_b32 s%d, %d" % (dst + 2, nbytes))
        e("s_mov_b32 s%d, 0x00020000" % (dst + 3))

    def srd_ws(dst):
        srd(dst, 82, WS_SIZE)
        if P["wo"]:
            e("s_add_u32 s%d, s%d, %d" % (dst, dst, P["wo"] << 10))
            e("s_addc_u32 s%d, s%d, 0" % (dst + 1, dst + 1))

    def lds_wait(tag, vz, vt, st, off, cond, spin, vaddr=None):
        e("s_mov_b32 s%d, 0x100000" % spin)
        e.label("L_w" + tag)
        e("ds_read_b32 v%d, v%d offset:%d" % (vt, vz if vaddr is None else vaddr, off))
        e("s_sub_u32 s%d, s%d, 1" % (spin, spin))
        e("s_cbranch_scc1 L_exit1")
        e("s_waitcnt lgkmcnt(0)")
        e("v_readfirstlane_b32 s%d, v%d" % (st, vt))
        if cond == "nz":
            e("s_cmp_eq_u32 s%d, 0" % st)
        else:
            e("s_cmp_lt_u32 s%d, %s" % (st, cond))
        e("s_cbranch_scc1 L_w" + tag)

    TWN = [0]

    def twait(dl, tmp, step):
        TWN[0] += 1
        e.label("L_tw%d" % TWN[0])
        e("s_memrealtime s[%d:%d]" % (tmp, tmp + 1))
        e("s_waitcnt lgkmcnt(0)")
        e("s_sub_u32 s%d, s%d, s%d" % (tmp + 1, tmp, dl))
        e("s_cmp_lt_i32 s%d, 0" % (tmp + 1))
        e("s_cbranch_scc1 L_tw%d" % TWN[0])
        e("s_add_u32 s%d, s%d, %d" % (dl, tmp, step))

    def gate(b, tag, check):
        if b not in GTS:
            return
        if check:
            e("s_cmp_eq_u32 s%d, %d" % (S_I, b % 48))
            e("s_cbranch_scc0 L_gx" + tag)
        e("s_memrealtime s[%d:%d]" % (S_T + 4, S_T + 5))
        lds_wait("g" + tag, V_Z, V_T0, S_T, L_GT + 4 * GTS.index(b), "nz", S_SPIN)
        e("s_and_b32 s%d, s%d, 0xffff" % (S_T, S_T))
        e("s_cbranch_scc0 L_gx" + tag)
        if P["stamp"] == 5:
            e("s_lshl_b32 s%d, s%d, 16" % (S_T + 1, S_T))
            e("s_add_u32 s%d, s%d, s%d" % (S_NBO, S_NBO, S_T + 1))
        e("s_add_u32 s%d, s%d, s%d" % (S_T, S_T, S_T + 4))
        e.label("L_gl" + tag)
        e("s_memrealtime s[%d:%d]" % (S_T + 4, S_T + 5))
        e("s_waitcnt lgkmcnt(0)")
        e("s_sub_u32 s%d, s%d, s%d" % (S_T + 4, S_T + 4, S_T))
        e("s_cmp_lt_i32 s%d, 0" % (S_T + 4))
        e("s_cbranch_scc1 L_gl" + tag)
        e.label("L_gx" + tag)

    def get_table(kind, tag):
        if tag == "tv":
            gate(48, tag, False)
        else:
            for b in ((16, 32) if kind == "K" else (64, 80)):
                gate(b, "%s%d" % (tag, b), True)
        e("s_lshr_b32 s%d, s%d, 4" % (S_T + 1, S_I))
        e("s_lshl_b32 s%d, s%d, 2" % (S_T + 2, S_T + 1))
        if P["stamp"] == 6:
            e("s_memrealtime s[%d:%d]" % (S_T + 4, S_T + 5))
            e("s_lshl_b32 s%d, s2, 2" % S_T)
            e("s_add_u32 s%d, s%d, s%d" % (S_T, S_T, S_WAVE))
            e("s_cmp_eq_u32 s%d, 400" % S_T)
            e("s_cselect_b64 exec, 1, 0")
            e("s_waitcnt lgkmcnt(0)")
            e("s_sub_u32 s%d, s%d, s%d" % (S_T + 4, S_T + 4, S_ST))
            e("v_mov_b32 v%d, s%d" % (V_T1, S_T + 4))
            e("buffer_store_dword v%d, off, s[%d:%d], s%d offset:%d" % (V_T1, S_WS, S_WS + 3, S_T + 2, 40 if kind == "K" else 52))
            e("s_mov_b64 exec, -1")
        e("v_mov_b32 v%d, s%d" % (V_T1, S_T + 2))
        if kind == "K":
            load_q(S_T + 1, False)
        lds_wait(tag, V_Z, V_T0, S_T, L_DEC if kind == "K" else L_GO, "nz", S_SPIN, V_T1)
        e("s_and_b32 s%d, s%d, 7" % (S_N, S_T))
        e("s_xor_b32 s%d, s%d, s%d" % (S_N, S_N, S_NB))
        e("s_bitcmp1_b32 s%d, 3" % S_T)
        e("s_cselect_b64 vcc, -1, 0")
        e("v_cndmask_b32 v%d, v%d, v%d, vcc" % (V_TM, V_T128, V_TMX))

    def load_q(ph, track):
        e("s_lshl_b32 s%d, s%d, 5" % (S_QOFF, ph))
        e("s_add_u32 s%d, s%d, s%d" % (S_QOFF, S_QOFF, S_G))
        e("s_mul_i32 s%d, s%d, 171" % (S_QOFF, S_QOFF))
        e("s_lshr_b32 s%d, s%d, 9" % (S_QOFF, S_QOFF))
        e("s_mul_i32 s%d, s%d, %d" % (S_QOFF, S_QOFF, DH * 2))
        for c in range(3):
            r = V_RAW + 2 * c
            s = "buffer_load_dwordx2 v[%d:%d], v%d, s[%d:%d], s%d offen offset:%d" % (r, r + 1, V_J8, S_Q, S_Q + 3, S_QOFF, c * 128)
            if track:
                e.vmem(s, "p")
            else:
                e(s)

    def tile_addr(kind):
        ch, a, b = S_T, S_T + 1, S_T + 2
        e("s_lshr_b32 s%d, s%d, 6" % (a, S_CI))
        e("s_lshl_b32 s%d, s%d, 11" % (a, a))
        e("s_and_b32 s%d, s%d, 63" % (ch, S_CI))
        e("s_add_u32 s%d, s%d, s%d" % (ch, ch, a))
        e("s_add_u32 s%d, s%d, s%d" % (ch, ch, S_HB))
        e("s_bfe_u32 s%d, s%d, 0x20003" % (a, ch))
        e("s_and_b32 s%d, s%d, 4" % (b, ch))
        e("s_or_b32 s%d, s%d, s%d" % (a, a, b))
        e("s_xor_b32 s%d, s%d, s%d" % (a, a, S_N))
        e("s_lshl_b32 s%d, s%d, 5" % (S_XB, ch))
        e("s_or_b32 s%d, s%d, s%d" % (S_XB, S_XB, a))
        e("s_lshl_b32 s%d, s%d, 4" % (S_XB, S_XB))
        e("s_or_b32 s%d, s%d, 1" % (S_XB, S_XB))
        if kind == "V":
            e("s_lshl_b32 s%d, s%d, 7" % (S_LB, S_CI))
            if P["ut"]:
                e("s_cmp_ge_u32 s%d, %d" % (S_I, NT - P["ut"]))
                e("s_cselect_b64 vcc, -1, 0")
                e("v_cndmask_b32 v%d, v%d, v%d, vcc" % (V_TM, V_TM, V_TMX))
        e("v_xor_b32 v%d, s%d, v%d" % (V_T0, S_XB, V_TM))
        e("v_mul_hi_u32 v%d, v%d, s%d" % (V_T0, V_T0, S_MAGIC))
        e("v_lshrrev_b32 v%d, 1, v%d" % (V_T0, V_T0))
        e("v_and_b32 v%d, 15, v%d" % (V_T1, V_T0))
        e("v_cmp_eq_u32 vcc, 5, v%d" % V_T1)
        e("v_mad_u32_u24 v%d, v%d, s%d, v%d" % (V_OFF, V_T0, S_768, V_J16))
        e("v_add_u32 v%d, %d, v%d" % (V_T1, 5 * ROWB, V_OFF))
        e("v_cndmask_b32 v%d, v%d, v%d, vcc" % (V_OFF6, V_BIG, V_T1))
        if kind == "K":
            e("v_lshrrev_b32 v%d, 6, v%d" % (V_T0, V_T0))
            e("v_mad_u32_u24 v%d, v%d, s%d, v%d" % (V_PO, V_T0, S_384, V_J8))
        else:
            e("v_add_u32 v%d, s%d, v%d" % (V_T0, S_LB, V_PB0))

    def issue_params(kind):
        if kind == "K":
            if P["xkp"] & 2:
                return
            if P["xkp"] & 1024:
                e("s_cmp_lt_u32 s%d, 16" % S_I)
                e("s_cselect_b64 exec, -1, 0")
            for c in range(3):
                r = V_RAW + 6 + 2 * c
                e.vmem("buffer_load_dwordx2 v[%d:%d], v%d, s[%d:%d], 0 offen offset:%d%s" %
                       (r, r + 1, V_PO, S_KS, S_KS + 3, c * 128, " nt" if P["bnt"] & 4 else ""), "p")
            if P["xkp"] & 1024:
                e("s_mov_b64 exec, -1")
            if P["xb"] & 2:
                for c in range(3):
                    r = NVGPR + 2 + 2 * c
                    e.vmem("buffer_load_dwordx2 v[%d:%d], v%d, s[%d:%d], 0 offen offset:%d" % (r, r + 1, V_PO, 76, 79, c * 128), "p")
        else:
            e("ds_read_b32 v%d, v%d" % (V_PVN, V_T0))

    def issue_group(k, kind, pol=pol):
        srdb = S_K if kind == "K" else S_V
        for l in range(GOFF[k], GOFF[k] + GR[k]):
            r = V_RING + l * 4
            if l < 15:
                vo, off = V_OFF, l * 256
            else:
                vo, off = V_OFF6, (l - 15) * 256
            e.vmem("buffer_load_dwordx4 v[%d:%d], v%d, s[%d:%d], 0 offen offset:%d%s" %
                   (r, r + 3, vo, srdb, srdb + 3, off, pol), "g%d" % k)

    def compute_w():
        e.wait_tag("p")
        for p in range(6):
            rq = V_RAW + p; rs = V_RAW + 6 + p
            i0 = 2 * p
            e("v_lshlrev_b32 v%d, 16, v%d" % (V_T0, rq))
            e("v_lshlrev_b32 v%d, 16, v%d" % (V_W + i0, rs))
            e("v_and_b32 v%d, 0xffff0000, v%d" % (V_T1, rq))
            e("v_and_b32 v%d, 0xffff0000, v%d" % (V_W + i0 + 1, rs))
            e("v_mul_f32 v%d, v%d, v%d" % (V_W + i0, V_W + i0, V_T0))
            e("v_mul_f32 v%d, v%d, v%d" % (V_W + i0 + 1, V_W + i0 + 1, V_T1))

    def advance(kind, to_v, tag):
        nkind = "V" if to_v else kind
        if to_v:
            e("s_mov_b32 s%d, s%d" % (S_CI, S_WAVE))
            e("s_mov_b32 s%d, 0" % S_I)
            get_table("V", "tv")
            ev = (1 << 16) | (1 << 32)
            if P["at"] and not BC:
                ev |= (1 << P["tc"]) | (1 << (P["tc"] + P["tg"])) | (1 << P["te"])
            e("s_mov_b32 s%d, %d" % (S_TD, NT - P["td"] if P["td"] else 255))
            if P["tt"]:
                e("s_mov_b32 s%d, 255" % S_TT)
            set_masks(ev, CPV)
        else:
            e("s_add_u32 s%d, s%d, %d" % (S_CI, S_CI, NW))
            e("s_add_u32 s%d, s%d, 1" % (S_I, S_I))
            if tag:
                e("s_bitcmp1_b64 s[%d:%d], s%d" % (S_EV, S_EV + 1, S_I))
                sfx = tag if isinstance(tag, str) else ""
                e("s_cbranch_scc1 L_ev%s%s" % (kind, sfx))
                e.flush()
                e.label("L_evret%s%s" % (kind, sfx))
        if P["stamp"] == 4:
            e("s_memrealtime s[%d:%d]" % (S_DBG, S_DBG + 1))
            e("s_add_u32 s%d, s%d, 4" % (S_DBG + 2, S_DBG + 2))
            e("s_waitcnt lgkmcnt(0)")
            e("v_mov_b32 v%d, s%d" % (V_T2, S_DBG))
            e("s_mov_b64 exec, 1")
            e("buffer_store_dword v%d, off, s[%d:%d], s%d" % (V_T2, S_WS, S_WS + 3, S_DBG + 2))
            e("s_mov_b64 exec, -1")
        if P["stamp"] == 5:
            e("s_memrealtime s[%d:%d]" % (S_DBG, S_DBG + 1))
            e("s_add_u32 m0, m0, 1")
            e("s_waitcnt lgkmcnt(0)")
            e("v_writelane_b32 v%d, s%d, m0" % (NVGPR + (1 if kind == "V" else 0), S_DBG))
            if to_v:
                e("s_mov_b32 m0, -1")
        tile_addr(nkind)
        issue_params(nkind)

    def compute(k, kind):
        for l in range(GOFF[k], GOFF[k] + GR[k]):
            q, c = l // 3, l % 3
            base = V_RING + l * 4
            for r in range(4):
                e("v_cvt_f32_i32 v%d, v%d" % (base + r, base + r))
            if kind == "K":
                s = V_S + q
                for r in range(4):
                    if c == 0 and r == 0:
                        e("v_mul_f32 v%d, v%d, v%d" % (s, base, V_W))
                    else:
                        e("v_fmac_f32 v%d, v%d, v%d" % (s, base + r, V_W + 4 * c + r))
                if c == 2:
                    e.defer(["v_add_f32_dpp v%d, v%d, v%d row_ror:%d row_mask:0xf bank_mask:0xf" % (s, s, s, kk)
                             for kk in (8, 4, 2)] +
                            ["v_add_f32_dpp v%d, v%d, v%d row_ror:1 row_mask:0xf bank_mask:0x%x" %
                             (V_D + (q & 1), s, s, 1 << (q >> 1))])
            else:
                for r in range(4):
                    e("v_fmac_f32_dpp v%d, v%d, v%d row_newbcast:%d row_mask:0xf bank_mask:0xf" %
                      (V_ACC + 4 * c + r, V_PV, base + r, q))
        e.flush()

    EFS = []

    def finish(kind, to_v):
        if kind == "K":
            e("s_mov_b64 exec, s[%d:%d]" % (S_STM, S_STM + 1))
            e("ds_write_b64 v%d, v[%d:%d]" % (V_LB0, V_D, V_D + 1))
            e("s_mov_b64 exec, -1")
            if not to_v:
                if P["ef"]:
                    tag = "L_ef%d" % len(EFS)
                    EFS.append(tag)
                    e("s_and_b32 s%d, s%d, 15" % (S_T, S_I))
                    e("s_cbranch_scc0 %s" % tag)
                    e.lines.append(tag + "r:")
                e("v_add_u32 v%d, 48, v%d" % (V_LB0, V_LB0))
                compute_w()
        if kind == "V" or to_v:
            e("s_waitcnt lgkmcnt(0)")
            e("v_mov_b32 v%d, v%d" % (V_PV, V_PVN))

    ELS = []

    def elect(k, kind, lo=0):
        if P["fc"] == 4 and kind == "V" and k == max(P["elk"], lo):
            tag = "L_el%d" % len(ELS)
            ELS.append(tag)
            e("s_cmp_eq_u32 s%d, %d" % (S_I, NT))
            e("s_cbranch_scc1 %s" % tag)
            e.lines.append(tag + "r:")

    def body(kind, to_v=False, first=False):
        nkind = "V" if to_v else kind
        for k in range(NG):
            ov = OV[k] if not first else 0
            if ov:
                i = e.vm.index("g%d" % k) + GR[k] - ov
                e("s_waitcnt vmcnt(%d)" % (len(e.vm) - i))
                e.vm = e.vm[i:]
            else:
                e.wait_tag("g%d" % k)
            if k + 1 < NG:
                if not first:
                    issue_group(k + 1, kind)
            else:
                issue_group(0, nkind)
            if ov:
                e("s_waitcnt vmcnt(%d)" % (len(e.vm) - ov))
                e.vm = e.vm[ov:]
            if k == NG - 2:
                advance(kind, to_v, not first)
            elect(k, kind, NG - 2)
            compute(k, kind)
        finish(kind, to_v)

    DKV = {}

    def body_deep(mode):
        if mode == 3:
            advance("V", False, False)
        for k in range(NG):
            i = e.vm.index("g%d" % k) + GR[k]
            e("s_waitcnt vmcnt(%d)" % (len(e.vm) - i))
            e.vm = e.vm[i:]
            if P["tt"] and k < 2:
                e.lines.append("L_dk%d:" % k)
                DKV[k] = list(e.vm)
            if mode == 2:
                issue_group((k + 2) % NG, "V")
                if k == NG - 3:
                    advance("V", False, False)
            elect(k, "V")
            compute(k, "V")
            if mode == 3:
                issue_group(k, "V", "" if P["xkp"] & 256 else pol)
        finish("V", False)

    def body_boost(kind):
        for k in range(1, NG):
            issue_group(k, kind)
        e("s_sub_u32 s%d, s%d, 1" % (S_BO, S_BO))
        if P["stamp"] == 5:
            e("s_add_u32 s%d, s%d, 256" % (S_NBO, S_NBO))
        advance(kind, False, "B")
        for k in range(NG):
            e.wait_tag("g%d" % k)
            if k == NG - 1 and not P["be"]:
                issue_group(0, kind)
            elect(k, kind)
            compute(k, kind)
            if k == 0 and P["be"]:
                issue_group(0, kind)
        finish(kind, False)

    def lds_inc(off, vz, vt):
        e("v_mov_b32 v%d, 1" % vt)
        e("s_mov_b64 exec, 1")
        e("ds_add_u32 v%d, v%d offset:%d" % (vz, vt, off))
        e("s_mov_b64 exec, -1")

    if P["prio"]:
        e("s_setprio %d" % P["prio"])
    e("v_lshrrev_b32 v%d, 4, v%d" % (V_T, V_T1))
    e("v_and_b32 v%d, 15, v%d" % (V_T2, V_T1))
    e("v_lshlrev_b32 v%d, 4, v%d" % (V_J16, V_T2))
    e("v_lshlrev_b32 v%d, 3, v%d" % (V_J8, V_T2))
    e("v_lshlrev_b32 v%d, 7, v%d" % (V_T128, V_T))
    e("v_and_b32 v%d, 0x70, v0" % V_TMX)
    e("v_or_b32 v%d, v%d, v%d" % (V_TMX, V_TMX, V_T128))
    e("v_mov_b32 v%d, v%d" % (V_TM, V_TMX))
    if P["h4"]:
        e("v_and_b32 v%d, 0x%x, v%d" % (V_T128, 0xffffff8f | (P["h4"] << 4), V_TMX))
    e("s_mov_b32 s%d, %d" % (S_768, ROWB))
    e("s_mov_b32 s%d, %d" % (S_384, DH * 2))
    e("s_mov_b32 s%d, 0xaaaaaaab" % S_MAGIC)
    e("v_mov_b32 v%d, 0xc0000000" % V_BIG)
    e("s_lshl_b32 s%d, s%d, 6" % (S_HB, S_G))
    e("s_mov_b32 s%d, s%d" % (S_N, S_NB))
    e("s_mov_b32 s%d, s%d" % (S_CI, S_WAVE))
    tile_addr("K")
    SS = P["ss"]
    EB = P["eb"]
    if SS:
        e("s_memrealtime s[84:85]")
    if EB == 3:
        e("s_barrier")
    e("s_waitcnt lgkmcnt(0)")
    if SS:
        e("s_memrealtime s[86:87]")
    if EB == 2:
        e("s_barrier")
    if EB == 4:
        e("s_cmp_ge_u32 s%d, %d" % (S_WAVE, NW))
        e("s_barrier")
        e("s_cbranch_scc1 L_helper")
    e("s_mov_b32 s%d, 0" % S_I)
    if P["xb"] & 2:
        srd(76, 72, H * NGRP * DH * 2)
    if P["pfi"]:
        srd(S_Q, 64, H * DH * 2)
        load_q(S_I, True)
        srd(S_KS, 70, H * NGRP * DH * 2)
        issue_params("K")
    srd(S_K, 66, H * HEADB)
    issue_group(0, "K")
    if EB == 1:
        e("s_barrier")
    if not P["pfi"]:
        srd(S_Q, 64, H * DH * 2)
        load_q(S_I, True)
        srd(S_KS, 70, H * NGRP * DH * 2)
        issue_params("K")
    if P["ds"]:
        for k in range(1, NG):
            issue_group(k, "K")
    if SS:
        e("s_memrealtime s[88:89]")
    srd(S_V, 68, H * HEADB)
    if P["stamp"] == 6:
        srd(S_WS, 80, 256)
    elif P["stamp"]:
        srd(S_WS, 82, 0x8000000)
    if P["stamp"] == 5:
        e("s_mov_b32 m0, -1")
    if P["stamp"] in (4, 5):
        e("s_mul_i32 s%d, s2, %d" % (S_DBG + 2, NW))
        e("s_add_u32 s%d, s%d, s%d" % (S_DBG + 2, S_DBG + 2, S_WAVE))
        e("s_lshl_b32 s%d, s%d, 9" % (S_DBG + 2, S_DBG + 2))
        e("s_add_u32 s%d, s%d, 0x4010000" % (S_DBG + 2, S_DBG + 2))
    e("v_lshlrev_b32 v%d, 5, v%d" % (V_T1, V_T))
    e("v_bfe_u32 v%d, v0, 4, 3" % V_LB0)
    e("v_mul_u32_u24 v%d, s%d, v%d" % (V_LB0, S_768, V_LB0))
    e("v_lshl_add_u32 v%d, v%d, 1, v%d" % (V_LB0, V_T2, V_LB0))
    e("s_lshr_b32 s%d, s%d, 1" % (S_T, S_WAVE))
    e("s_mul_i32 s%d, s%d, 24" % (S_T, S_T))
    e("s_add_u32 s%d, s%d, %d" % (S_T, S_T, L_LG))
    e("v_add_u32 v%d, s%d, v%d" % (V_LB0, S_T, V_LB0))
    e("v_and_b32 v%d, 7, v%d" % (V_PB0, V_T2))
    e("v_lshl_add_u32 v%d, v%d, 2, v%d" % (V_PB0, V_PB0, V_T1))
    e("v_add_u32 v%d, %d, v%d" % (V_PB0, L_PV, V_PB0))
    e("v_lshlrev_b32 v%d, 2, v%d" % (V_DO, V_T))
    e("v_add_u32 v%d, v%d, v%d" % (V_DO, V_J16, V_DO))
    e("s_mul_i32 s%d, s%d, %d" % (S_T, S_WAVE, ROWB))
    e("s_add_u32 s%d, s%d, %d" % (S_T, S_T, L_ACC))
    e("v_add_u32 v%d, s%d, v%d" % (V_DO, S_T, V_DO))
    e("v_mov_b32 v%d, 0" % V_Z)
    e("v_mov_b32 v%d, 0" % V_D)
    e("v_mov_b32 v%d, 0" % (V_D + 1))
    e("s_mov_b32 s%d, 0x01110111" % S_STM)
    e("s_mov_b32 s%d, 0x01110111" % (S_STM + 1))
    ev = (1 << TRG1) | (1 << N0) | (3 << 16) | (3 << 32) | (((1 << TA) | (1 << TB)) * 0x100010001)
    set_masks(ev, CPK)
    if BC:
        e("s_mov_b32 s%d, %d" % (S_BO, P["ib"] & 15))
        e("s_mov_b32 s%d, 0" % S_NBO)
        e("s_mov_b32 s%d, 0" % S_LDC)
        e("s_mov_b32 s%d, %d" % (S_CPA, L_TM))
    for i in range(12):
        e("v_mov_b32 v%d, 0" % (V_ACC + i))
    if SS:
        e("s_memrealtime s[90:91]")
    if not EB:
        e("s_barrier")
    if SS:
        e("s_memrealtime s[92:93]")
        e("s_waitcnt vmcnt(23)")
        e("s_memrealtime s[94:95]")
        e("s_waitcnt vmcnt(18)")
        e("s_memrealtime s[96:97]")
    compute_w()
    if SS:
        e("s_memrealtime s[98:99]")
        e("s_waitcnt lgkmcnt(0)")
        for k in range(8):
            e("v_writelane_b32 v%d, s%d, %d" % (NVGPR + 1, 84 + 2 * k, 48 + k))
    steady = ["g0"] * GR[0]
    if P["fb"]:
        advance("K", False, False)
        for k in range(NG):
            if "g%d" % k in e.vm:
                i = e.vm.index("g%d" % k) + GR[k]
                e("s_waitcnt vmcnt(%d)" % (len(e.vm) - i))
                e.vm = e.vm[i:]
            compute(k, "K")
            if k == P["fb"] - 1:
                issue_group(0, "K")
        finish("K", False)
        assert e.vm == steady, (e.vm, steady)
    elif P["ds"]:
        body("K", first=True)
    if P["ib"] & 16:
        e("s_branch L_kchk")
    e.vm = list(steady)
    e.lines.append(".p2align 6")
    e.label("L_kloop")
    body("K")
    assert e.vm == steady, (e.vm, steady)
    if BC:
        e.label("L_kchk")
        e("s_cmp_lg_u32 s%d, 0" % S_BO)
        e("s_cbranch_scc1 L_kboost")
        e.label("L_kchk2")
    e("s_cmp_lg_u32 s%d, %d" % (S_I, NT - 1))
    e("s_cbranch_scc1 L_kloop")
    body("K", True)
    lds_inc(L_CF + 8, V_Z, V_T1)
    if P["stamp"] == 1:
        e("s_memrealtime s[%d:%d]" % (S_DBG, S_DBG + 1))
    e.lines.append(".p2align 6")
    e.label("L_vloop")
    body("V")
    assert e.vm == steady, (e.vm, steady)
    if BC:
        e.label("L_vchk")
    if P["td"] or P["at"]:
        e("s_cmp_eq_u32 s%d, s%d" % (S_I, S_TD))
        e("s_cbranch_scc1 %s" % ("L_tail0" if P["tt"] else "L_deep"))
    if BC:
        e("s_cmp_lg_u32 s%d, 0" % S_BO)
        e("s_cbranch_scc1 L_vboost")
    e("s_and_b32 s%d, s%d, 15" % (S_T, S_I))
    e("s_cbranch_scc1 L_vloop")
    e.label("L_vend")
    for c in range(3):
        a = V_ACC + 4 * c
        e("v_permlane32_swap_b32 v%d, v%d" % (a, a + 2))
        e("v_permlane32_swap_b32 v%d, v%d" % (a + 1, a + 3))
    for c in range(3):
        a = V_ACC + 4 * c
        e("v_add_f32 v%d, v%d, v%d" % (a, a, a + 2))
        e("v_add_f32 v%d, v%d, v%d" % (a + 1, a + 1, a + 3))
    for c in range(3):
        a = V_ACC + 4 * c
        e("v_permlane16_swap_b32 v%d, v%d" % (a, a + 1))
    e("s_lshr_b32 s%d, s%d, 2" % (S_T, S_I))
    e("v_mov_b32 v%d, s%d" % (V_T0, S_T))
    for c in range(3):
        a = V_ACC + 4 * c
        e("v_add_f32 v%d, v%d, v%d" % (a, a, a + 1))
        e("ds_write_b32 v%d, v%d offset:%d" % (V_DO, a, c * 256))
    lds_inc(L_CA - 4, V_T0, V_T1)
    e("v_add_u32 v%d, %d, v%d" % (V_DO, NW * ROWB, V_DO))
    for i in range(12):
        e("v_mov_b32 v%d, 0" % (V_ACC + i))
    if BC:
        e("s_cmp_lg_u32 s%d, 0" % S_BO)
        e("s_cbranch_scc1 L_vboost2")
        e.label("L_vend2")
    e("s_cmp_lg_u32 s%d, %d" % (S_I, NT))
    e("s_cbranch_scc1 L_vloop")
    if P["stamp"] == 5 and BC:
        e("s_or_b32 s%d, s%d, s%d" % (S_LDC, S_LDC, S_NBO))
    if P["stamp"] == 6:
        e("s_memrealtime s[%d:%d]" % (S_T + 2, S_T + 3))
        e("s_not_b32 s%d, s%d" % (S_T, S_ST))
        e("v_mov_b32 v%d, s%d" % (V_ACC, S_T))
        e("s_waitcnt lgkmcnt(0)")
        e("v_mov_b32 v%d, s%d" % (V_ACC + 1, S_T + 2))
        e("s_mov_b64 exec, 1")
        e("s_cmp_lg_u32 s%d, 0" % S_WAVE)
        e("s_cbranch_scc1 L_exit1")
        e("buffer_atomic_umax v%d, off, s[%d:%d], 0 offset:32" % (V_ACC, S_WS, S_WS + 3))
        e("buffer_atomic_umax v%d, off, s[%d:%d], 0 offset:36" % (V_ACC + 1, S_WS, S_WS + 3))
    elif P["stamp"]:
        e("s_memrealtime s[%d:%d]" % (S_T + 2, S_T + 3))
        e("s_getreg_b32 s%d, hwreg(HW_REG_XCC_ID)" % (S_T + 4))
        e("s_waitcnt lgkmcnt(0)")
        e("v_mov_b32 v%d, s%d" % (V_ACC + 0, S_ST))
        e("v_mov_b32 v%d, s%d" % (V_ACC + 1, S_T + 2))
        e("v_mov_b32 v%d, s%d" % (V_ACC + 2, S_T + 4))
        e("v_mov_b32 v%d, s%d" % (V_ACC + 3, S_LDC if P["stamp"] == 5 else S_DBG))
        e("s_mul_i32 s%d, s2, %d" % (S_T, NW))
        e("s_add_u32 s%d, s%d, s%d" % (S_T, S_T, S_WAVE))
        e("s_lshl_b32 s%d, s%d, 4" % (S_T, S_T))
        e("s_add_u32 s%d, s%d, 0x4000000" % (S_T, S_T))
        e("buffer_store_dwordx4 v[%d:%d], v%d, s[%d:%d], s%d offen" % (V_ACC, V_ACC + 3, V_Z, S_WS, S_WS + 3, S_T))
        if P["stamp"] == 5:
            e("v_and_b32 v%d, 63, v0" % V_T0)
            e("v_lshlrev_b32 v%d, 2, v%d" % (V_T0, V_T0))
            e("s_mov_b32 exec_hi, 0xffff")
            e("buffer_store_dword v%d, v%d, s[%d:%d], s%d offen offset:4" % (NVGPR, V_T0, S_WS, S_WS + 3, S_DBG + 2))
            e("s_mov_b32 exec_hi, -1")
            e("buffer_store_dword v%d, v%d, s[%d:%d], s%d offen offset:196" % (NVGPR + 1, V_T0, S_WS, S_WS + 3, S_DBG + 2))
    e.lines.append("L_exit1:")
    e("s_endpgm")

    if P["td"] or P["at"]:
        e.label("L_deep")
        e.vm = list(steady)
        for k in range(1, P["tdm"] if NG == 3 else NG):
            issue_group(k, "V")
        deep = list(e.vm)
        e.lines.append(".p2align 6")
        e.label("L_dloop")
        body_deep(P["tdm"])
        assert e.vm == deep, (e.vm, deep)
        e("s_cmp_lg_u32 s%d, %d" % (S_I, NT))
        e("s_cbranch_scc1 L_dloop")
        e("s_branch L_vend")
        if P["tt"]:
            assert P["tdm"] == 3 and NG == 3 and BC

            def tcheck(k, dst):
                e("s_waitcnt lgkmcnt(0)")
                e("s_sub_u32 s%d, s%d, s%d" % (S_TW, S_TW, S_TH))
                e("s_add_u32 s%d, s%d, %d" % (S_TH, S_TH, P["d3"]))
                if P["stamp"] == 5:
                    e("s_add_u32 s%d, s%d, 1" % (S_LDC, S_LDC))
                e("s_cmp_ge_i32 s%d, 0" % S_TW)
                e("s_cbranch_scc1 %s" % dst)
            e.label("L_tail0")
            e("s_cmp_lg_u32 s%d, 0" % S_TT)
            e("s_cbranch_scc1 L_deep")
            e.lines.append(".p2align 6")
            e.label("L_tail")
            e.vm = list(steady)
            e("s_memrealtime s[%d:%d]" % (S_TW, S_TW + 1))
            tcheck(0, "L_deep")
            e.wait_tag("g0")
            e("s_memrealtime s[%d:%d]" % (S_TW, S_TW + 1))
            issue_group(1, "V")
            tcheck(1, "L_dB")
            vb = list(e.vm)
            compute(0, "V")
            e.wait_tag("g1")
            e("s_memrealtime s[%d:%d]" % (S_TW, S_TW + 1))
            issue_group(2, "V")
            advance("V", False, False)
            tcheck(2, "L_dC")
            vc = list(e.vm)
            elect(1, "V", 1)
            compute(1, "V")
            e.wait_tag("g2")
            issue_group(0, "V")
            elect(2, "V", 1)
            compute(2, "V")
            finish("V", False)
            assert e.vm == steady
            e("s_cmp_lg_u32 s%d, %d" % (S_I, NT))
            e("s_cbranch_scc1 L_tail")
            e("s_branch L_vend")
            e.label("L_dB")
            e.vm = vb
            issue_group(2, "V")
            advance("V", False, False)
            assert e.vm == DKV[0]
            e("s_branch L_dk0")
            e.label("L_dC")
            e.vm = vc
            issue_group(0, "V")
            assert e.vm == DKV[1]
            e("s_branch L_dk1")

    if BC:
        e.label("L_kboost")
        e("s_cmp_eq_u32 s%d, %d" % (S_I, NT - 1))
        e("s_cbranch_scc1 L_kchk2")
        e.vm = list(steady)
        body_boost("K")
        assert e.vm == steady, (e.vm, steady)
        e("s_branch L_kchk")
        e.label("L_vboost")
        e("s_and_b32 s%d, s%d, 15" % (S_T, S_I))
        e("s_cbranch_scc0 L_vend")
        e.label("L_vboost2")
        e("s_cmp_eq_u32 s%d, %d" % (S_I, NT))
        e("s_cbranch_scc1 L_vend2")
        body_boost("V")
        assert e.vm == steady, (e.vm, steady)
        e("s_branch L_vchk")

    for tag in EFS:
        e.label(tag)
        e("s_lshr_b32 s%d, s%d, 2" % (S_T, S_I))
        e("v_mov_b32 v%d, s%d" % (V_T0, S_T))
        lds_inc(L_CF - 4, V_T0, V_T1)
        e("s_branch %sr" % tag)
    for tag in ELS:
        e.label(tag)
        lds_inc(L_EL, V_Z, V_T1)
        e("s_branch %sr" % tag)

    def pace_events(kind, x):
        e("s_bitcmp1_b64 s[%d:%d], s%d" % (S_MP, S_MP + 1, S_I))
        e("s_cbranch_scc0 L_pa%s%s" % (kind, x))
        e("s_memrealtime s[%d:%d]" % (S_TW, S_TW + 1))
        e("s_mov_b32 s%d, s%d" % (S_BP, S_BO))
        lds_inc(L_TC, V_Z, V_T1)
        e.label("L_pa%s%s" % (kind, x))
        e("s_bitcmp1_b64 s[%d:%d], s%d" % (S_MG, S_MG + 1, S_I))
        e("s_cbranch_scc0 L_pb%s%s" % (kind, x))
        lds_inc(L_TC, V_Z, V_T1)
        e.label("L_pb%s%s" % (kind, x))
        e("s_bitcmp1_b64 s[%d:%d], s%d" % (S_MR, S_MR + 1, S_I))
        e("s_cbranch_scc0 L_pc%s%s" % (kind, x))
        e("v_mov_b32 v%d, s%d" % (V_T1, S_CPA))
        e("ds_read_b32 v%d, v%d" % (V_T0, V_T1))
        lds_inc(L_TC, V_Z, V_T1)
        e("s_add_u32 s%d, s%d, 4" % (S_CPA, S_CPA))
        e("s_waitcnt lgkmcnt(0)")
        e("v_readfirstlane_b32 s%d, v%d" % (S_T, V_T0))
        e("s_cmp_eq_u32 s%d, 0" % S_T)
        e("s_cbranch_scc1 L_pc%s%s" % (kind, x))
        if kind == "V" and P["tt"]:
            e("s_cmp_eq_u32 s%d, %d" % (S_I, P["te"]))
            e("s_cbranch_scc0 L_pe%s" % x)
            e("s_add_u32 s%d, s%d, %d" % (S_TH, S_T, P["tx"] - 3 * (NT - P["te"]) * P["d3"]))
            e("s_mov_b32 s%d, %d" % (S_TD, P["te"]))
            e("s_mov_b32 s%d, 0" % S_TT)
            e("s_mov_b32 s%d, 0" % S_BO)
            e("s_branch L_pc%s%s" % (kind, x))
            e.label("L_pe%s" % x)
        e("s_sub_u32 s%d, s%d, s%d" % (S_T, S_TW, S_T))
        e("s_max_i32 s%d, s%d, -4096" % (S_T, S_T))
        e("s_min_i32 s%d, s%d, 4096" % (S_T, S_T))
        if kind == "V" and not P["tt"]:
            e("s_cmp_eq_u32 s%d, %d" % (S_I, P["te"]))
            e("s_cbranch_scc0 L_pd%s" % x)
            e("s_mul_i32 s%d, s%d, %d" % (S_T, S_T, P["ka"]))
            e("s_add_u32 s%d, s%d, %d" % (S_T, S_T, P["kb"]))
            e("s_ashr_i32 s%d, s%d, 10" % (S_T, S_T))
            e("s_max_i32 s%d, s%d, %d" % (S_T, S_T, P["dmin"]))
            e("s_min_i32 s%d, s%d, %d" % (S_T, S_T, min(P["dmax"], NT - P["te"])))
            e("s_sub_u32 s%d, %d, s%d" % (S_TD, NT, S_T))
            e("s_cmp_eq_u32 s%d, %d" % (S_TD, NT))
            e("s_cselect_b32 s%d, 255, s%d" % (S_TD, S_TD))
            e("s_mov_b32 s%d, 0" % S_BO)
            if P["stamp"] == 5:
                e("s_mov_b32 s%d, s%d" % (S_LDC, S_TD))
            e("s_branch L_pc%s%s" % (kind, x))
            e.label("L_pd%s" % x)
        e("s_mul_i32 s%d, s%d, %d" % (S_T, S_T, P["ka2"]))
        e("s_add_u32 s%d, s%d, %d" % (S_T, S_T, P["kb2"]))
        e("s_ashr_i32 s%d, s%d, 10" % (S_T, S_T))
        e("s_sub_u32 s%d, s%d, s%d" % (S_T, S_T, S_BP))
        e("s_add_u32 s%d, s%d, s%d" % (S_T, S_T, S_BO))
        e("s_max_i32 s%d, s%d, 0" % (S_T, S_T))
        e("s_min_i32 s%d, s%d, %d" % (S_BO, S_T, P["bmax"]))
        e.label("L_pc%s%s" % (kind, x))
        e("s_bitcmp1_b64 s[%d:%d], s%d" % (S_MO, S_MO + 1, S_I))
        e("s_cbranch_scc0 L_evret%s%s" % (kind, x))

    for x in (("", "B") if BC else ("",)):
        e.label("L_evK" + x)
        if BC:
            pace_events("K", x)
        e("s_and_b32 s%d, s%d, 15" % (S_T, S_I))
        e("s_cbranch_scc0 L_evK2" + x)
        e("s_cmp_eq_u32 s%d, %d" % (S_I, N0))
        e("s_cbranch_scc1 L_evK2" + x)
        e("s_lshr_b32 s%d, s%d, 2" % (S_T + 1, S_I))
        e("s_andn2_b32 s%d, s%d, 3" % (S_T + 1, S_T + 1))
        e("s_add_u32 s%d, s%d, %d" % (S_T + 1, S_T + 1, 236 if P["ef"] else L_CF - 4))
        e("s_cmp_eq_u32 s%d, 1" % S_T)
        e("s_cselect_b32 s%d, s%d, %d" % (S_T, S_T + 1, L_EV + 4))
        e("s_cselect_b32 s%d, %d, 0" % (S_T + 1, PHI - 768))
        e("v_add_u32 v%d, s%d, v%d" % (V_LB0, S_T + 1, V_LB0))
        e("s_cmp_eq_u32 s%d, %d" % (S_I, TRG1))
        e("s_cselect_b32 s%d, %d, s%d" % (S_T, L_EV, S_T))
        e("v_mov_b32 v%d, s%d" % (V_T0, S_T))
        lds_inc(0, V_T0, V_T1)
        e("s_branch L_evretK" + x)
        e.label("L_evK2" + x)
        if P["stamp"] == 2:
            e("s_cmp_eq_u32 s%d, %d" % (S_I, N0))
            e("s_cbranch_scc0 L_ns2" + x)
            e("s_memrealtime s[%d:%d]" % (S_DBG, S_DBG + 1))
            e.label("L_ns2" + x)
        get_table("K", "tk" + x)
        if P["stamp"] == 3:
            e("s_cmp_eq_u32 s%d, %d" % (S_I, N0))
            e("s_cbranch_scc0 L_evretK")
            e("s_memrealtime s[%d:%d]" % (S_DBG, S_DBG + 1))
        e("s_branch L_evretK" + x)
        e.label("L_evV" + x)
        if BC:
            pace_events("V", x)
        elif P["at"]:
            e("s_and_b32 s%d, s%d, 15" % (S_T, S_I))
            e("s_cbranch_scc0 L_evV2")
            e("s_cmp_eq_u32 s%d, %d" % (S_I, P["te"]))
            e("s_cbranch_scc1 L_evV3")
            lds_inc(L_TC, V_Z, V_T1)
            e("s_branch L_evretV")
            e.label("L_evV3")
            e("ds_read_b32 v%d, v%d offset:%d" % (V_T0, V_Z, L_TD))
            e("s_waitcnt lgkmcnt(0)")
            e("v_readfirstlane_b32 s%d, v%d" % (S_T, V_T0))
            e("s_cmp_eq_u32 s%d, 0" % S_T)
            e("s_cselect_b32 s%d, s%d, s%d" % (S_TD, S_TD, S_T))
            if P["stamp"] == 5:
                e("s_mov_b32 s%d, s%d" % (S_LDC, S_T))
            e("s_branch L_evretV")
            e.label("L_evV2")
        get_table("V", "tv2" + x)
        e("s_branch L_evretV" + x)

    PG = S_G; PM = S_M
    PNB = 5; PP = 6; PBK = 7
    PB = 8; PWS = 12; PDB = 16
    PO = 20; PFL = 21; PBASE = 22; PPR = 90
    PD = 24
    POF = 32
    PT = 40
    PMN = 44; PJ = 45; PRN = 46; PNR = 47
    PE = 48
    PRB = 56; PACC = 58; PGL = 59; PSP = 60; PPH = 61; PSG = 62; PG0 = 63
    PDC = 84
    PS2 = 92; PS3 = 96
    HL = 1; HZ = 2; HW = 3; HA = 4; HB_ = 5; HC = 6; HD = 7; HK = 8; HV = 9; HE = 10; HF = 11; HR = 12; HG = 13
    HN = 14; HT2 = 15
    HX = 16
    BIAS = 65536
    e.wr = {}; e.tr = {}
    e.label("L_helper")
    e("s_sub_u32 s%d, s%d, %d" % (PP, S_WAVE, NW))
    e("s_mov_b32 s%d, s%d" % (PNB, S_NB))
    e("v_and_b32 v%d, 63, v0" % HL)
    e("v_mov_b32 v%d, 0" % HZ)
    e("s_mul_i32 s%d, s%d, %d" % (PGL, PG, 8 * FSTR))
    e("s_add_u32 s%d, s%d, %d" % (PGL, PGL, WS_G))
    if EB and EB != 4:
        e("s_cmp_lg_u32 s%d, 0" % PP)
        e("s_cbranch_scc1 L_hbar")
        e("v_lshlrev_b32 v%d, 2, v%d" % (HB_, HL))
        e("ds_write_b32 v%d, v%d" % (HB_, HZ))
        e("s_waitcnt lgkmcnt(0)")
        e.label("L_hbar")
        e("s_barrier")
    if BC:
        e("s_cmp_eq_u32 s%d, 3" % PP)
        e("s_cbranch_scc1 L_h3")
    LB = P["lb"]
    PA = PPH
    PKB = 91
    VLN = 20 if LB else 10
    ELN = 256 + VLN - 21
    if LB:
        assert P["sw"] and P["dc"] and P["vw"]
        e("s_mul_i32 s%d, s%d, 25" % (PE, PP))
        e("s_sub_u32 s%d, s%d, 22" % (PE, PE))
        e("s_cmp_lt_i32 s%d, s%d" % (PG, PE))
        e("s_cselect_b32 s%d, 1, 0" % PPR)
        e("s_cbranch_scc0 L_noprobe1")
        e("s_add_u32 s%d, s%d, 2" % (PE + 1, PG))
        e("s_mul_i32 s%d, s%d, 205" % (PE, PE + 1))
        e("s_lshr_b32 s%d, s%d, 10" % (PE, PE))
        e("s_mul_i32 s%d, s%d, 5" % (PBK, PE))
        e("s_sub_u32 s%d, s%d, s%d" % (PBK, PE + 1, PBK))
        e("s_add_u32 s%d, s%d, 1" % (PBK, PBK))
        e("s_lshl_b32 s%d, s%d, 1" % (PE + 1, PG))
        e("s_add_u32 s%d, s%d, s%d" % (PE + 1, PE + 1, PP))
        e("s_sub_u32 s%d, s%d, 1" % (PE + 1, PE + 1))
        e("s_cmp_lt_u32 s%d, 3" % PG)
        e("s_cselect_b32 s%d, 0, s%d" % (PBK, PBK))
        e("s_cselect_b32 s%d, s%d, s%d" % (PE + 1, PE + 1, PE))
    else:
        e("s_mul_i32 s%d, s%d, 10" % (PE, PP))
        e("s_sub_u32 s%d, s%d, 7" % (PE, PE))
        e("s_cmp_lt_i32 s%d, s%d" % (PG, PE))
        e("s_cselect_b32 s%d, 1, 0" % PPR)
        e("s_cbranch_scc0 L_noprobe1")
        e("s_max_u32 s%d, s%d, 1" % (PBK, PG))
        e("s_sub_u32 s%d, s%d, 1" % (PBK, PBK))
        e("s_lshr_b32 s%d, s%d, 1" % (PBK, PBK))
        e("s_lshl_b32 s%d, s%d, 1" % (PE + 1, PG))
        e("s_add_u32 s%d, s%d, s%d" % (PE + 1, PE + 1, PP))
        e("s_sub_u32 s%d, s%d, 1" % (PE + 1, PE + 1))
        e("s_bitcmp1_b32 s%d, 0" % PG)
        e("s_cselect_b32 s%d, 1, 4" % PE)
        e("s_cmp_eq_u32 s%d, 0" % PBK)
        e("s_cselect_b32 s%d, s%d, s%d" % (PE + 1, PE + 1, PE))
    e("s_and_b32 s%d, s%d, 1" % (PE, PE + 1))
    e("s_mul_i32 s%d, s%d, 20" % (PO, PE + 1))
    e("s_add_u32 s%d, s%d, s%d" % (PO, PO, PE))
    e("s_add_u32 s%d, s%d, 2" % (PO, PO))
    if LB:
        e("s_lshr_b32 s%d, s%d, 5" % (PKB, PO))
        e("s_xor_b32 s%d, s%d, s%d" % (PKB, PKB, PM))
    e("s_lshl_b32 s%d, s%d, 21" % (PO, PO))
    e("s_xor_b32 s%d, s%d, s%d" % (PFL, PM, PP))
    e("s_and_b32 s%d, s%d, 1" % (PFL, PFL))
    e("s_lshr_b32 s%d, s%d, 2" % (PE + 1, PM))
    e("s_xor_b32 s%d, s%d, s%d" % (PE, PE, PE + 1))
    e("s_xor_b32 s%d, s%d, s%d" % (PE, PE, PFL))
    e("s_lshl_b32 s%d, s%d, 13" % (PE, PE))
    e("s_lshl_b32 s%d, s%d, 14" % (PE + 1, PP))
    e("s_and_b32 s%d, s%d, 0x4000" % (PE + 1, PE + 1))
    e("s_or_b32 s%d, s%d, s%d" % (PE, PE, PE + 1))
    for u in range(8):
        e("s_xor_b32 s%d, s%d, 0x%x" % (POF + u, PE, ((u & 1) << 13) | (((u >> 1) & 1) << 12) | ((u >> 2) << 14)))
    e("v_and_b32 v%d, 7, v%d" % (HW, HL))
    e("v_lshlrev_b32 v%d, 12, v%d" % (HW, HW))
    e("s_lshl_b32 s%d, s%d, 8" % (PE, PM))
    e("v_add_u32 v%d, s%d, v%d" % (HW, PE, HW))
    e("s_mov_b32 s%d, %d" % (PB + 2, H * HEADB))
    e("s_mov_b32 s%d, 0x00020000" % (PB + 3))
    e("s_cmp_ge_u32 s%d, 3" % PBK)
    e("s_cselect_b32 s%d, 3, 0" % PE)
    e("s_sub_u32 s%d, s%d, s%d" % (PE, PBK, PE))
    e("s_lshl_b32 s%d, s%d, 28" % (PE, PE))
    e("s_add_u32 s%d, s%d, s%d" % (PO, PO, PE))
    e("s_cmp_ge_u32 s%d, 3" % PBK)
    e("s_waitcnt lgkmcnt(0)")
    e("s_cselect_b32 s%d, s68, s66" % PB)
    e("s_cselect_b32 s%d, s69, s67" % (PBASE + 1))
    e("s_and_b32 s%d, s%d, 0xffff" % (PB + 1, PBASE + 1))
    if not P["sw"]:
        e("s_mov_b64 exec, 0xff")
        e("buffer_load_dword v%d, v%d, s[%d:%d], s%d offen" % (HA, HW, PB, PB + 3, PO))
        e("s_mov_b64 exec, -1")
    e("s_add_u32 s%d, s%d, s%d" % (PBASE, PB, PO))
    e("s_addc_u32 s%d, s%d, 0" % (PBASE + 1, PBASE + 1))
    e("s_lshl_b32 s%d, s%d, 8" % (PE, PM))
    if P["sw"]:
        e("s_add_u32 s%d, s%d, s%d" % (PRB, PBASE, PE))
        e("s_addc_u32 s%d, s%d, 0" % (PRB + 1, PBASE + 1))
        for u in range(8):
            e("s_load_dword s%d, s[%d:%d], 0x%x" % (PD + u, PRB, PRB + 1, u * 4096))
        if P["dc"]:
            srd_ws(PWS)
            e("s_lshl_b32 s%d, s2, 1" % PE)
            e("s_add_u32 s%d, s%d, s%d" % (PE, PE, PP))
            e("s_mul_i32 s%d, s%d, %d" % (PE, PE, 6 * FSTR))
            e("s_add_u32 s%d, s%d, %d" % (PE, PE, WS_G - 6 * FSTR))
            e("v_mul_u32_u24 v%d, %d, v%d" % (HB_, FSTR, HL))
            e("v_mov_b32 v%d, 0" % (HZ + 1))
            if LB:
                e("v_mov_b32 v%d, 0" % (HZ + 2))
            e("s_cmp_eq_u32 s%d, 0" % PBK)
            e("s_cselect_b64 exec, 0x3f, 0")
            e("buffer_store_dwordx%d v[%d:%d], v%d, s[%d:%d], s%d offen sc1" % (3 if LB else 2, HZ, HZ + (2 if LB else 1), HB_, PWS, PWS + 3, PE))
            e("s_mov_b64 exec, -1")
        for k in range(1, P["sw"]):
            e("s_waitcnt lgkmcnt(0)")
            e("s_load_dword s%d, s[%d:%d], 0x%x" % (PD, PRB, PRB + 1, k * 4096 + 128))
    else:
        e("s_add_u32 s%d, s%d, 128" % (PE, PE))
        e("s_load_dword s%d, s[%d:%d], s%d" % (PJ, PBASE, PBASE + 1, PE))
    if P["pb"]:
        if P["pb"] == 1:
            e("s_cmp_lg_u32 s%d, 0" % PBK)
            e("s_cbranch_scc1 L_noprobe2")
        else:
            e("s_branch L_noprobe2")
    e.label("L_noprobe1")
    e("s_waitcnt lgkmcnt(0)")
    if P["pb"]:
        e.label("L_noprobe2")
    srd_ws(PWS)
    srd(PDB, 80, 256)
    if not EB:
        e("s_cmp_lg_u32 s%d, 0" % PP)
        e("s_cbranch_scc1 L_hbar")
        e("v_lshlrev_b32 v%d, 2, v%d" % (HB_, HL))
        e("ds_write_b32 v%d, v%d" % (HB_, HZ))
        e("s_waitcnt lgkmcnt(0)")
        e.label("L_hbar")
        e("s_barrier")
    if P["hs"]:
        e("s_mov_b32 s%d, 0" % (PD + 4))
    e("s_cmp_eq_u32 s%d, 0" % PPR)
    e("s_cbranch_scc1 L_role")
    e("s_mov_b32 s%d, 1" % PRN)
    e("s_mov_b32 s%d, 0" % PACC)
    if LB:
        for k in range(3):
            e("s_mov_b32 s%d, 0" % (PA + k))
        if LB & 2:
            e("s_mov_b32 m0, 0")
    e("s_cmp_eq_u32 s%d, 0" % PBK)
    e("s_cselect_b32 s%d, %d, %d" % (PNR, P["nr0"], NR))
    if not P["sw"]:
        e("s_waitcnt vmcnt(0)")
    if P["pb"]:
        e("s_waitcnt lgkmcnt(0)")
    e.label("L_round")
    e("s_add_u32 s%d, s%d, s%d" % (PE, PM, PRN))
    e("s_and_b32 s%d, s%d, 7" % (PE, PE))
    e("s_lshl_b32 s%d, s%d, 8" % (PE, PE))
    e("s_add_u32 s%d, s%d, s%d" % (PRB, PBASE, PE))
    e("s_addc_u32 s%d, s%d, 0" % (PRB + 1, PBASE + 1))
    e("s_mov_b32 s%d, -1" % PMN)
    e("s_memtime s[%d:%d]" % (PT, PT + 1))
    e("s_waitcnt lgkmcnt(0)")
    for u in range(8):
        a = PT + 2 * (u & 1); b = PT + 2 * ((u + 1) & 1)
        e("s_load_dword s%d, s[%d:%d], s%d" % (PJ, PRB, PRB + 1, POF + u))
        e("s_waitcnt lgkmcnt(0)")
        e("s_memtime s[%d:%d]" % (b, b + 1))
        e("s_waitcnt lgkmcnt(0)")
        e("s_sub_u32 s%d, s%d, s%d" % (PD + u, b, a))
        if u + 1 == P["ns0"] and u < 7:
            for k in range(u + 1, 8):
                e("s_mov_b32 s%d, -1" % (PD + k))
            e("s_cmp_eq_u32 s%d, 0" % PBK)
            e("s_cbranch_scc1 L_few")
    if LB & 2:
        for u in range(8):
            e("v_writelane_b32 v%d, s%d, m0" % (HX, PD + u))
            e("s_add_u32 m0, m0, 1")
    e.label("L_few")
    for u in range(8):
        e("s_min_u32 s%d, s%d, %d" % (PD + u, PD + u, P["clip"]))
        e("s_min_u32 s%d, s%d, s%d" % (PMN, PMN, PD + u))
    e("s_cmp_lt_u32 s%d, %d" % (PMN, P["l2t"]))
    e("s_cbranch_scc1 L_skip")
    for u in range(8):
        e("s_%s_u32 s%d, s%d, s%d" % ("add" if u & 1 else "sub", PACC, PACC, PD + u))
    if LB:
        e("s_cmp_eq_u32 s%d, 0" % PBK)
        e("s_cbranch_scc1 L_skip")
        if P["cl2"]:
            for h in range(2):
                e("s_min_u32 s%d, s%d, s%d" % (PE + h, PD + h, PD + 2 + h))
                e("s_min_u32 s%d, s%d, s%d" % (PE + 2, PD + 4 + h, PD + 6 + h))
                e("s_min_u32 s%d, s%d, s%d" % (PE + h, PE + h, PE + 2))
                e("s_add_u32 s%d, s%d, %d" % (PE + h, PE + h, P["cl2"]))
            for u in range(8):
                e("s_min_u32 s%d, s%d, s%d" % (PD + u, PD + u, PE + (u & 1)))
        for u in range(8):
            for k, bit in enumerate(((u ^ (u >> 1)) & 1, (u >> 2) & 1, (u ^ (u >> 2)) & 1)):
                e("s_%s_u32 s%d, s%d, s%d" % ("add" if bit else "sub", PA + k, PA + k, PD + u))
    e.label("L_skip")
    e("s_add_u32 s%d, s%d, 1" % (PRN, PRN))
    e("s_cmp_le_u32 s%d, s%d" % (PRN, PNR))
    e("s_cbranch_scc1 L_round")
    e("s_sub_u32 s%d, 0, s%d" % (PE, PACC))
    e("s_cmp_eq_u32 s%d, 0" % PFL)
    e("s_cselect_b32 s%d, s%d, s%d" % (PACC, PACC, PE))
    e("s_add_u32 s%d, s%d, 0x%x" % (PACC, PACC, BIAS + (1 << 24)))
    e("v_mov_b32 v%d, s%d" % (HA, PACC))
    e("s_mov_b64 exec, 1")
    e("s_lshl_b32 s%d, s%d, 2" % (PE, PBK))
    e("s_add_u32 s%d, s%d, 124" % (PE, PE))
    e("s_cmp_eq_u32 s%d, 0" % PBK)
    e("s_cbranch_scc0 L_post")
    if P["dc"]:
        e("s_waitcnt vmcnt(0)")
    e("ds_add_rtn_u32 v%d, v%d, v%d offset:%d" % (HB_, HZ, HA, L_PC))
    e("s_mov_b32 s%d, 0" % PE)
    e("s_waitcnt lgkmcnt(0)")
    e("v_add_u32 v%d, v%d, v%d" % (HA, HA, HB_))
    e("v_cmp_ne_u32 vcc, 0, v%d" % HB_)
    e("s_and_b64 exec, exec, vcc")
    if P["vw"]:
        e("buffer_atomic_add v%d, off, s[%d:%d], s%d" % (HA, PDB, PDB + 3, PE))
        e("s_branch L_posted")
        e.label("L_post")
        lds_wait("vw", HZ, HE, PE, L_DEC, "nz", PSP)
        if LB:
            e("s_lshr_b32 s%d, s%d, 1" % (PE, PKB))
            e("s_xor_b32 s%d, s%d, s%d" % (PE, PE, PFL))
            e("s_sub_u32 s%d, 0, s%d" % (PE + 1, PA))
            e("s_bitcmp1_b32 s%d, 0" % PE)
            e("s_cselect_b32 s%d, s%d, s%d" % (PA, PE + 1, PA))
            e("s_xor_b32 s%d, s%d, s%d" % (PE, PKB, PFL))
            e("s_bitcmp1_b32 s%d, 0" % PM)
            e("s_cselect_b32 s%d, s%d, s%d" % (PE, PKB, PE))
            e("s_cselect_b32 s%d, s%d, s%d" % (PA + 1, PA + 1, PA + 2))
            e("s_sub_u32 s%d, 0, s%d" % (PE + 1, PA + 1))
            e("s_bitcmp1_b32 s%d, 0" % PE)
            e("s_cselect_b32 s%d, s%d, s%d" % (PA + 1, PE + 1, PA + 1))
            for k in range(2):
                e("s_add_u32 s%d, s%d, 0x%x" % (PA + k, PA + k, BIAS + (1 << 24)))
                e("v_writelane_b32 v%d, s%d, %d" % (HA, PA + k, k + 1))
            e("s_lshl_b32 s%d, s%d, 2" % (PE, PBK))
            e("s_and_b32 s%d, s%d, 1" % (PE + 1, PM))
            e("s_or_b32 s%d, s%d, s%d" % (PE, PE, PE + 1))
            e("s_lshr_b32 s%d, s%d, 1" % (PE + 1, PM))
            e("s_and_b32 s%d, s%d, 2" % (PE + 1, PE + 1))
            e("s_or_b32 s%d, s%d, s%d" % (PE, PE, PE + 1))
            e("s_mul_i32 s%d, s%d, %d" % (PE, PE, FSTR))
            e("s_add_u32 s%d, s%d, %d" % (PE, PE, WS_G + 252 * FSTR))
            e("s_mov_b64 exec, 7")
            e("v_lshlrev_b32 v%d, 2, v%d" % (HB_, HL))
            e("buffer_atomic_add v%d, v%d, s[%d:%d], s%d offen" % (HA, HB_, PWS, PWS + 3, PE))
            if LB & 2:
                e("s_mov_b64 exec, -1")
                e("s_memrealtime s[%d:%d]" % (PT, PT + 1))
                e("v_mov_b32 v%d, s%d" % (HX + 1, POF))
                e("v_mov_b32 v%d, s%d" % (HX + 2, PO))
                e("s_waitcnt lgkmcnt(0)")
                e("v_mov_b32 v%d, s%d" % (HX + 3, PT))
                srd(PB, 82, 0x8000000)
                e("s_lshl_b32 s%d, s2, 10" % PE)
                e("s_add_u32 s%d, s%d, 0x4090000" % (PE, PE))
                e("v_lshlrev_b32 v%d, 4, v%d" % (HW, HL))
                e("buffer_store_dwordx4 v[%d:%d], v%d, s[%d:%d], s%d offen" % (HX, HX + 3, HW, PB, PB + 3, PE))
        else:
            e("s_mul_i32 s%d, s%d, %d" % (PE, PG, FSTR))
            e("s_add_u32 s%d, s%d, %d" % (PE, PE, WS_G + 253 * FSTR))
            e("buffer_atomic_add v%d, off, s[%d:%d], s%d" % (HA, PWS, PWS + 3, PE))
        e.label("L_posted")
    else:
        e.label("L_post")
        e("buffer_atomic_add v%d, off, s[%d:%d], s%d" % (HA, PDB, PDB + 3, PE))
    e("s_mov_b64 exec, -1")
    if P["hs"]:
        if P["hs"] == 2:
            e("s_waitcnt vmcnt(0)")
        e("s_memrealtime s[%d:%d]" % (PD + 4, PD + 5))
    e.label("L_role")
    e("s_cmp_eq_u32 s%d, 0" % PP)
    e("s_cbranch_scc1 L_h0")
    e("s_cmp_eq_u32 s%d, 2" % PP)
    e("s_cbranch_scc1 L_h2")

    def wave_reduce(regs, op, tmp):
        for kk in (8, 4, 2, 1):
            for r in regs:
                e("%s_dpp v%d, v%d, v%d row_ror:%d row_mask:0xf bank_mask:0xf" % (op, r, r, r, kk))
        for sw in ("v_permlane32_swap_b32", "v_permlane16_swap_b32"):
            for r, t in zip(regs, tmp):
                e("v_mov_b32 v%d, v%d" % (t, r))
            for r, t in zip(regs, tmp):
                e("%s v%d, v%d" % (sw, r, t))
            for r, t in zip(regs, tmp):
                e("%s v%d, v%d, v%d" % (op, r, r, t))

    def decode(tag, nl, off, cnt, rounds, dst, b0):
        vw = b0 and P["vw"]
        lds_wait("e" + tag, HZ, HE, PE, L_EV + (4 if b0 else 0), "nz" if b0 else str(P["tw"]), PSP)
        if vw:
            e("v_mul_u32_u24 v%d, %d, v%d" % (HD, FSTR, HL))
            e("s_mov_b32 s%d, %d" % (PE, WS_G + 256 * FSTR))
            e("v_lshrrev_b32 v%d, 1, v%d" % (HB_, HB_))
        e("s_mov_b64 exec, 0x%x" % ((1 << (2 * nl if vw else nl)) - 1))
        e("s_mov_b32 s%d, 0x40000" % PSP)
        if P["hs"] and not b0:
            e("s_memrealtime s[%d:%d]" % (PD, PD + 1))
        if P["l2p"] and not b0:
            e("buffer_load_dword v%d, v%d, s[%d:%d], 0 offen offset:%d" % (HA, HB_, PDB, PDB + 3, off))
            e("s_branch L_pollw" + tag)
        if not P["xkp"] & 4:
            e.label("L_poll" + tag)
            if vw:
                e("buffer_load_dword v%d, v%d, s[%d:%d], s%d offen sc1" % (HA, HD, PWS, PWS + 3, PE))
            else:
                e("buffer_load_dword v%d, v%d, s[%d:%d], 0 offen offset:%d sc1" % (HA, HB_, PDB, PDB + 3, off))
            e("s_sub_u32 s%d, s%d, 1" % (PSP, PSP))
            e("s_cbranch_scc1 L_exit1")
            e.lines.append("L_pollw%s:" % tag)
            e("s_waitcnt vmcnt(0)")
            e("v_lshrrev_b32 v%d, 24, v%d" % (HC, HA))
            e("v_cmp_ne_u32 vcc, %d, v%d" % (cnt // 2 if vw else cnt, HC))
            e("s_cbranch_vccnz L_poll" + tag)
        if vw:
            e("v_add_u32_dpp v%d, v%d, v%d quad_perm:[1,0,3,2] row_mask:0xf bank_mask:0xf" % (HA, HA, HA))
            e("s_mov_b64 exec, 0x%x" % (0x5555 & ((1 << (2 * nl)) - 1)))
        th = P["th"] * cnt * rounds * (8 if b0 else P["ns0"]) // 8
        e("v_and_b32 v%d, 0xffffff, v%d" % (HA, HA))
        e("v_subrev_u32 v%d, %d, v%d" % (HA, cnt * BIAS, HA))
        if P["stamp"] == 6 and b0:
            e("s_cmp_lg_u32 s2, 100")
            e("s_cbranch_scc1 L_nodbg")
            e("buffer_store_dword v%d, v%d, s[%d:%d], 0 offen offset:4" % (HA, HB_, PDB, PDB + 3))
            e.label("L_nodbg")
        e("v_lshrrev_b32 v%d, 30, v%d" % (HC, HA))
        e("v_and_b32 v%d, 2, v%d" % (HC, HC))
        e("v_add_u32 v%d, %d, v%d" % (HA, th, HA))
        e("v_cmp_gt_u32 vcc, %d, v%d" % (2 * th, HA))
        e("v_cndmask_b32 v%d, v%d, 8, vcc" % (HC, HC))
        if P["force"] == 1:
            e("v_mov_b32 v%d, 8" % HC)
        if P["force"] >= 2:
            e("s_mov_b32 s%d, 0x%x" % (PE, 0x7000000 + 128 * (P["force"] - 2)))
            e("s_load_dwordx4 s[%d:%d], s[82:83], s%d" % (PS2, PS2 + 3, PE))
            e("s_waitcnt lgkmcnt(0)")
            for l in range(nl):
                b = b0 + l
                e("s_lshr_b64 s[%d:%d], s[%d:%d], %d" % (PE, PE + 1, PS2 + 2 * (b // 3), PS2 + 2 * (b // 3) + 1, 16 * (b % 3)))
                e("s_and_b32 s%d, s%d, %d" % (PE, PE, P["ob"]))
                e("s_xor_b32 s%d, s%d, %d" % (PE, PE, P["ox"]))
                e("v_writelane_b32 v%d, s%d, %d" % (HC, PE, 2 * l if vw else l))
        e("v_or_b32 v%d, 16, v%d" % (HC, HC))
        if P["xv"] and vw:
            e("v_lshlrev_b32 v%d, 1, v%d" % (HA, HL))
            e("v_lshrrev_b32 v%d, v%d, %d" % (HA, HA, 0) if False else "v_mov_b32 v%d, 0x%x" % (HD, int(str(P["xv"])[::-1], 16)))
            e("v_lshrrev_b32 v%d, v%d, v%d" % (HA, HA, HD))
            e("v_and_b32 v%d, 7, v%d" % (HA, HA))
            e("v_xor_b32 v%d, v%d, v%d" % (HC, HC, HA))
        e("ds_write_b32 v%d, v%d offset:%d" % (HB_, HC, dst))
        if P["hs"] and not b0:
            e("s_memrealtime s[%d:%d]" % (PD + 2, PD + 3))
            srd(PS2, 82, 0x8000000)
            e("s_waitcnt lgkmcnt(0)")
            e("v_mov_b32 v%d, s%d" % (HX, PD))
            e("v_mov_b32 v%d, s%d" % (HX + 1, PD + 2))
            e("v_mov_b32 v%d, s%d" % (HX + 2, PSP))
            e("v_mov_b32 v%d, s%d" % (HX + 3, PD + 4))
            e("s_lshl_b32 s%d, s2, 4" % PE)
            e("s_add_u32 s%d, s%d, 0x4008000" % (PE, PE))
            e("buffer_store_dwordx4 v[%d:%d], off, s[%d:%d], s%d" % (HX, HX + 3, PS2, PS2 + 3, PE))
        e("s_mov_b64 exec, -1")

    if not P["dc"]:
        e("s_cmp_lg_u32 s2, %d" % (NWG - 1))
        e("s_cbranch_scc1 L_nolead")
        e("v_mul_u32_u24 v%d, %d, v%d" % (HB_, FSTR, HL))
        e("v_mov_b32 v%d, 0" % (HZ + 1))
        for k in range(5 if P["vw"] else 4):
            e("s_mov_b32 s%d, %d" % (PE + k, WS_G + k * 64 * FSTR))
            if k == 4:
                e("s_mov_b64 exec, 0x%x" % (0x1fffff if P["fc"] else 0x3ff))
            e("buffer_store_dwordx2 v[%d:%d], v%d, s[%d:%d], s%d offen sc1" % (HZ, HZ + 1, HB_, PWS, PWS + 3, PE + k))
        e("v_mov_b32 v%d, 0x%x" % (HA, BIAS + (1 << 24)))
        e("s_mov_b64 exec, 1")
        e("s_waitcnt vmcnt(0)")
        e("buffer_atomic_add v%d, off, s[%d:%d], 0" % (HA, PDB, PDB + 3))
        e("s_mov_b64 exec, -1")
        if P["hs"]:
            if P["hs"] == 2:
                e("s_waitcnt vmcnt(0)")
            e("s_memrealtime s[%d:%d]" % (PD + 4, PD + 5))
        e.label("L_nolead")
    e("v_lshlrev_b32 v%d, 2, v%d" % (HB_, HL))
    decode("a", 1, 0, 48 if P["dc"] else 49, P["nr0"], L_DEC, 0)
    if LB:
        if P["ro"]:
            e("v_readfirstlane_b32 s%d, v%d" % (PMN, HC))
        if P["rx"]:
            MB = 1 << 20
            TG = [(66, 254 * MB), (66, 258 * MB), (66, 514 * MB), (68, 2 * MB), (68, 258 * MB), (68, 514 * MB),
                  (70, 4 * MB), (72, 4 * MB), (74, MB // 2), (76, MB // 2), (82, 32 * MB), (82, 2336 * MB)]
            e("s_mul_i32 s%d, s2, 4352" % PJ)
            for j in range(-1, P["rx"]):
                for t, (ptr, off) in enumerate(TG):
                    e("s_add_u32 s%d, s%d, 0x%x" % (PRB, ptr, off))
                    e("s_addc_u32 s%d, s%d, 0" % (PRB + 1, ptr + 1))
                    e("s_add_u32 s%d, s%d, %d" % (PE, PJ, 512 if j < 0 else 1024 * j))
                    if j < 0:
                        e("s_load_dword s%d, s[%d:%d], s%d" % (PD, PRB, PRB + 1, PE))
                        continue
                    e("s_waitcnt lgkmcnt(0)")
                    e("s_memtime s[%d:%d]" % (PT, PT + 1))
                    e("s_waitcnt lgkmcnt(0)")
                    e("s_load_dword s%d, s[%d:%d], s%d" % (PD, PRB, PRB + 1, PE))
                    e("s_waitcnt lgkmcnt(0)")
                    e("s_memtime s[%d:%d]" % (PT + 2, PT + 3))
                    e("s_waitcnt lgkmcnt(0)")
                    e("s_sub_u32 s%d, s%d, s%d" % (PT, PT + 2, PT))
                    e("v_writelane_b32 v%d, s%d, %d" % (HX, PT, 12 * j + t))
            e("s_memrealtime s[%d:%d]" % (PT, PT + 1))
            e("s_waitcnt lgkmcnt(0)")
            e("v_mov_b32 v%d, s%d" % (HX + 3, PT))
            srd(PB, 82, 0x8000000)
            e("s_lshl_b32 s%d, s2, 10" % PE)
            e("s_add_u32 s%d, s%d, 0x4090000" % (PE, PE))
            e("v_lshlrev_b32 v%d, 4, v%d" % (HW, HL))
            e("buffer_store_dwordx4 v[%d:%d], v%d, s[%d:%d], s%d offen" % (HX, HX + 3, HW, PB, PB + 3, PE))
            e("s_waitcnt vmcnt(0)")
        DA = HX; DB = HX + 1; DC = HX + 2; DW = HX + 4
        lds_wait("eb", HZ, HE, PE, L_EV + 4, "nz", PSP)
        e("v_mul_u32_u24 v%d, %d, v%d" % (HD, FSTR, HL))
        e("s_mov_b32 s%d, %d" % (PE, WS_G + 256 * FSTR))
        e("s_mov_b64 exec, 0xfffff")
        e("s_mov_b32 s%d, 0x40000" % PSP)
        e.label("L_pollb")
        e("buffer_load_dwordx3 v[%d:%d], v%d, s[%d:%d], s%d offen sc1" % (DA, DC, HD, PWS, PWS + 3, PE))
        e("s_sub_u32 s%d, s%d, 1" % (PSP, PSP))
        e("s_cbranch_scc1 L_exit1")
        e("s_waitcnt vmcnt(0)")
        e("v_min3_u32 v%d, v%d, v%d, v%d" % (HC, DA, DB, DC))
        e("v_lshrrev_b32 v%d, 24, v%d" % (HC, HC))
        e("v_cmp_ne_u32 vcc, 10, v%d" % HC)
        e("s_cbranch_vccnz L_pollb")
        for r in (DA, DB, DC):
            e("v_subrev_u32 v%d, 0x%x, v%d" % (r, 10 * (BIAS + (1 << 24)), r))
        for qp in ("[1,0,3,2]", "[2,3,0,1]"):
            for r in (DA, DB):
                e("v_add_u32_dpp v%d, v%d, v%d quad_perm:%s row_mask:0xf bank_mask:0xf" % (r, r, r, qp))
        e("v_ashrrev_i32 v%d, 31, v%d" % (HC, DA))
        e("v_xor_b32 v%d, v%d, v%d" % (DB, DB, HC))
        e("v_xor_b32 v%d, v%d, v%d" % (HA, DC, HC))
        e("s_mov_b64 vcc, 0x55555")
        e("v_cndmask_b32 v%d, v%d, v%d, vcc" % (DC, DC, HA))
        for qp in ("[1,0,3,2]", "[2,3,0,1]"):
            e("v_add_u32_dpp v%d, v%d, v%d quad_perm:%s row_mask:0xf bank_mask:0xf" % (DC, DC, DC, qp))
        e("v_and_b32 v%d, 2, v%d" % (DW, HC))
        for r, bit, th in ((DB, 1, P["th1"]), (DC, 4, P["th0"])):
            e("v_or_b32 v%d, %d, v%d" % (HA, bit, DW))
            e("v_cmp_gt_i32 vcc, %d, v%d" % (-th * 40 * NR, r))
            e("v_cndmask_b32 v%d, v%d, v%d, vcc" % (DW, DW, HA))
        th = P["th"] * 40 * NR
        e("v_add_u32 v%d, %d, v%d" % (HA, th, DA))
        e("v_cmp_gt_u32 vcc, %d, v%d" % (2 * th, HA))
        e("v_cndmask_b32 v%d, v%d, 8, vcc" % (DW, DW))
        e("v_and_b32 v%d, %d, v%d" % (DW, P["lm"] | 8, DW))
        for b in range(5):
            e("v_readlane_b32 s%d, v%d, %d" % (PD + b, DW, 4 * b))
        if P["ro"]:
            e("s_xor_b32 s%d, s%d, s%d" % (PE, PMN, PD + 2))
            e("s_and_b32 s%d, s%d, 15" % (PE, PE))
            e("s_and_b32 s%d, s%d, %d" % (PE + 1, PE, 10 if P["ro"] & 1 else 14))
            e("s_cselect_b32 s%d, 0, s%d" % (PE, PE))
            if P["ro"] & 4:
                e("s_cselect_b32 s%d, s%d, 4" % (PE + 1, PD))
                e("s_bitcmp0_b32 s%d, 2" % (PE + 1))
                e("s_cselect_b32 s%d, s%d, 0" % (PE + 1, PE + 1))
                e("s_and_b32 s%d, s%d, 1" % (PE + 1, PE + 1))
                e("s_or_b32 s%d, s%d, s%d" % (PE, PE, PE + 1))
            for b in range(5):
                e("s_xor_b32 s%d, s%d, s%d" % (PE + 1, PD + b, PE))
                e("s_bitcmp1_b32 s%d, 3" % (PD + b))
                e("s_cselect_b32 s%d, s%d, s%d" % (PD + b, PD + b, PE + 1))
        if P["pol"] == 4:
            e("s_xor_b32 s%d, s%d, s%d" % (PE, PD, PD + 3))
            e("s_xor_b32 s%d, s%d, s%d" % (PE + 1, PD + 1, PD + 4))
            e("s_xor_b32 s%d, s%d, s%d" % (PE + 1, PE + 1, PE))
            e("s_and_b32 s%d, s%d, 10" % (PE, PE))
            e("s_or_b32 s%d, s%d, s%d" % (PE, PE, PE + 1))
            for b in range(2):
                e("s_cselect_b32 s%d, s%d, s%d" % (PD + b, PD + b, PD + 3 + b))
        if P["pol"] == 7:
            e("s_xor_b32 s%d, s%d, s%d" % (PE, PD, PD + 3))
            e("s_and_b32 s%d, s%d, 10" % (PE + 1, PE))
            e("s_cselect_b32 s%d, 0, s%d" % (PE, PE))
            e("s_xor_b32 s%d, s%d, s%d" % (PD, PD, PE))
            e("s_xor_b32 s%d, s%d, s%d" % (PE, PE, PD + 1))
            e("s_cmp_eq_u32 s%d, s%d" % (PE, PD + 4))
            e("s_cselect_b32 s%d, s%d, s%d" % (PD + 1, PE, PD + 1))
        if P["pol"] >= 8:
            e("s_xor_b32 s%d, s%d, s%d" % (PE, PD, PD + 3))
            e("s_xor_b32 s%d, s%d, s%d" % (PE + 1, PD + 1, PD + 4))
            if P["pol"] == 8:
                e("s_and_b32 s%d, s%d, 5" % (PE + 2, PD + 3))
                e("s_cselect_b32 s%d, 14, 10" % (PE + 2))
                e("s_cmp_eq_u32 s%d, s%d" % (PE, PE + 1))
                e("s_cselect_b32 s%d, 10, s%d" % (PE + 2, PE + 2))
                e("s_and_b32 s%d, s%d, s%d" % (PE + 2, PE + 2, PE))
            else:
                e("s_and_b32 s%d, s%d, 10" % (PE + 2, PE))
            e("s_cselect_b32 s%d, 0, s%d" % (PE, PE))
            e("s_xor_b32 s%d, s%d, s%d" % (PD, PD, PE))
            e("s_cmp_eq_u32 s%d, s%d" % (PE, PE + 1))
            e("s_cselect_b32 s%d, 1, s%d" % (PE + 1, PE + 1))
            e("s_cmp_eq_u32 s%d, 1" % (PE + 1))
            e("s_cselect_b32 s%d, s%d, s%d" % (PD + 1, PD + 4, PD + 1))
        for b in range(2):
            if not (0, 0, 1, 2, 0, 3, 3, 0, 0, 0)[P["pol"] or 5] >> b & 1:
                continue
            e("s_xor_b32 s%d, s%d, s%d" % (PE, PD + b, PD + 3 + b))
            e("s_and_b32 s%d, s%d, %d" % (PE, PE, 14 if P["pol"] == 6 else 10))
            e("s_cselect_b32 s%d, s%d, s%d" % (PD + b, PD + b, PD + 3 + b))
        for b in range(5):
            e("s_or_b32 s%d, s%d, 16" % (PD + b, PD + b))
            e("v_writelane_b32 v%d, s%d, %d" % (HC, PD + b, b))
        e("s_mov_b64 exec, 0x1f")
        e("ds_write_b32 v%d, v%d offset:%d" % (HB_, HC, L_DEC + 4))
        e("s_mov_b64 exec, -1")
    else:
        decode("b", 5, 128, 16, NR, L_DEC + 4, 1)
    if P["xkp"] & 2048:
        srd(PB, 70, H * NGRP * DH * 2)
        e("s_memrealtime s[%d:%d]" % (PT, PT + 1))
        e("v_lshlrev_b32 v%d, 4, v%d" % (HW, HL))
        e("s_add_u32 s%d, s%d, 32" % (PE, PG))
        e("s_lshl_b32 s%d, s%d, 16" % (PE, PE))
        e("s_mov_b32 s%d, 0" % PRN)
        e("s_waitcnt lgkmcnt(0)")
        e("s_add_u32 s%d, s%d, %d" % (PT, PT, P["xa"]))
        e.label("L_xk")
        e("s_memrealtime s[%d:%d]" % (PT + 2, PT + 3))
        e("s_waitcnt lgkmcnt(0)")
        e("s_sub_u32 s%d, s%d, s%d" % (PT + 2, PT + 2, PT))
        e("s_cmp_lt_i32 s%d, 0" % (PT + 2))
        e("s_cbranch_scc1 L_xk")
        for k in range(P["xn"]):
            e("buffer_load_dwordx4 v[%d:%d], v%d, s[%d:%d], s%d offen offset:%d" % (HX + 4 * k, HX + 4 * k + 3, HW, PB, PB + 3, PE, (k % 4) * 1024))
            if k % 4 == 3 or k == P["xn"] - 1:
                e("s_add_u32 s%d, s%d, %d" % (PE, PE, 1024 * (k % 4 + 1)))
        e("s_add_u32 s%d, s%d, %d" % (PT, PT, 222 * P["xn"] // 4))
        e("s_add_u32 s%d, s%d, %d" % (PRN, PRN, P["xn"]))
        e("s_cmp_eq_u32 s%d, 64" % PRN)
        e("s_cselect_b32 s%d, %d, 0" % (PE + 1, 31 << 16))
        e("s_add_u32 s%d, s%d, s%d" % (PE, PE, PE + 1))
        e("s_waitcnt vmcnt(0)")
        e("s_cmp_lt_u32 s%d, 128" % PRN)
        e("s_cbranch_scc1 L_xk")
    if P["xkp"] & 4096:
        srd(PB, 74, H * SKV * 2)
        srd(PS2, 76, H * SKV * 2)
        e("s_memrealtime s[%d:%d]" % (PT, PT + 1))
        e("v_lshlrev_b32 v%d, 4, v%d" % (HW, HL))
        e("s_mul_i32 s%d, s%d, 21845" % (PE, PG))
        e("s_andn2_b32 s%d, s%d, 127" % (PE, PE))
        e("s_mov_b32 s%d, 0" % PRN)
        e("s_mov_b32 s%d, 0" % PMN)
        e("s_waitcnt lgkmcnt(0)")
        e("s_add_u32 s%d, s%d, %d" % (PT, PT, P["xa"]))
        e.label("L_xv")
        for sr in (PB, PS2):
            twait(PT, PT + 2, P["xn"])
            e("buffer_load_dwordx4 v[%d:%d], v%d, s[%d:%d], s%d offen" % (HX, HX + 3, HW, sr, sr + 3, PE))
        e("s_add_u32 s%d, s%d, 1024" % (PE, PE))
        e("s_add_u32 s%d, s%d, 1" % (PRN, PRN))
        e("s_cmp_lt_u32 s%d, 22" % PRN)
        e("s_cbranch_scc1 L_xv")
        e("s_mov_b32 s%d, 0" % PRN)
        e("s_add_u32 s%d, s%d, %d" % (PE, PE, 32 * 21845 // 128 * 128 - 22 * 1024))
        e("s_add_u32 s%d, s%d, %d" % (PT, PT, 3520 - 44 * P["xn"]))
        e("s_add_u32 s%d, s%d, 1" % (PMN, PMN))
        e("s_cmp_lt_u32 s%d, 3" % PMN)
        e("s_cbranch_scc1 L_xv")
        e("s_waitcnt vmcnt(0)")
    if P["lx"]:
        e("s_mul_i32 s%d, s%d, 43" % (PE, PG))
        e("s_lshr_b32 s%d, s%d, 8" % (PE, PE))
        e("s_mul_i32 s%d, s%d, 6" % (PE + 1, PE))
        e("s_sub_u32 s%d, s%d, s%d" % (PBK, PG, PE + 1))
        e("s_cmp_ge_u32 s%d, 3" % PBK)
        e("s_cselect_b32 s%d, s68, s66" % PB)
        e("s_cselect_b32 s%d, s69, s67" % (PBASE + 1))
        e("s_cselect_b32 s%d, 3, 0" % (PE + 1))
        e("s_sub_u32 s%d, s%d, s%d" % (PE + 1, PBK, PE + 1))
        e("s_lshl_b32 s%d, s%d, 28" % (PO, PE + 1))
        e("s_mul_i32 s%d, s%d, %d" % (PE, PE, 21 << 21))
        e("s_add_u32 s%d, s%d, s%d" % (PO, PO, PE))
        e("s_add_u32 s%d, s%d, %d" % (PO, PO, (7 << 21) + (1 << 20)))
        e("s_and_b32 s%d, s%d, 0xffff" % (PB + 1, PBASE + 1))
        e("s_mov_b32 s%d, %d" % (PB + 2, H * HEADB))
        e("s_mov_b32 s%d, 0x00020000" % (PB + 3))
        e("s_add_u32 s%d, s%d, %d" % (PE, PM, P["lx"]))
        e("s_and_b32 s%d, s%d, 7" % (PE, PE))
        e("s_lshl_b32 s%d, s%d, 9" % (PE, PE))
        e("v_lshlrev_b32 v%d, 12, v%d" % (HW, HL))
        e("v_add_u32 v%d, s%d, v%d" % (HW, PE, HW))
        for j in range(3):
            e("buffer_load_dword v%d, v%d, s[%d:%d], s%d offen offset:%d" % (HX + j, HW, PB, PB + 3, PO, j * 128))
        e("s_add_u32 s%d, s%d, s%d" % (PBASE, PB, PO))
        e("s_addc_u32 s%d, s%d, 0" % (PBASE + 1, PBASE + 1))
        e("s_lshl_b32 s%d, s%d, 9" % (PE, PM))
        e("s_add_u32 s%d, s%d, s%d" % (PBASE, PBASE, PE))
        e("s_addc_u32 s%d, s%d, 0" % (PBASE + 1, PBASE + 1))
        e("s_load_dword s%d, s[%d:%d], 384" % (PJ, PBASE, PBASE + 1))
        e("s_load_dword s%d, s[%d:%d], 0x20180" % (PJ, PBASE, PBASE + 1))
        e("s_waitcnt vmcnt(0) lgkmcnt(0)")
        lds_wait("lx", HZ, HE, PE, L_EV + 4, "8", PSP)
        for j in range(3):
            e("s_mov_b32 m0, 0")
            e("s_mov_b32 s%d, %d" % (PE, j * 128))
            e.label("L_lx%d" % j)
            e("s_memtime s[%d:%d]" % (PT, PT + 1))
            e("s_waitcnt lgkmcnt(0)")
            e("s_load_dword s%d, s[%d:%d], s%d" % (PJ, PBASE, PBASE + 1, PE))
            e("s_waitcnt lgkmcnt(0)")
            e("s_memtime s[%d:%d]" % (PT + 2, PT + 3))
            e("s_waitcnt lgkmcnt(0)")
            e("s_sub_u32 s%d, s%d, s%d" % (PT, PT + 2, PT))
            e("v_writelane_b32 v%d, s%d, m0" % (HX + j, PT))
            e("s_add_u32 s%d, s%d, 4096" % (PE, PE))
            e("s_add_u32 m0, m0, 1")
            e("s_cmp_lt_u32 m0, 64")
            e("s_cbranch_scc1 L_lx%d" % j)
        e("s_memrealtime s[%d:%d]" % (PT, PT + 1))
        e("s_waitcnt lgkmcnt(0)")
        e("v_mov_b32 v%d, s%d" % (HX + 3, PT))
        srd(PB, 82, 0x8000000)
        e("s_lshl_b32 s%d, s2, 10" % PE)
        e("s_add_u32 s%d, s%d, 0x4090000" % (PE, PE))
        e("v_lshlrev_b32 v%d, 4, v%d" % (HW, HL))
        e("buffer_store_dwordx4 v[%d:%d], v%d, s[%d:%d], s%d offen" % (HX, HX + 3, HW, PB, PB + 3, PE))
    if FU:
        CSC = 24; CMK = 56; CRB = 57; CO = 92
        e("s_and_b32 s%d, s%d, 7" % (PE, PG))
        e("s_cmp_lg_u32 s%d, s%d" % (PE, PM))
        e("s_cbranch_scc1 L_exit1")
        e("s_mul_i32 s%d, s%d, 3" % (PE, PG))
        e("s_add_u32 s%d, s%d, 2" % (PE, PE))
        e("s_lshr_b32 s%d, s%d, 5" % (PE, PE))
        e("s_lshl_b32 s%d, s%d, 2" % (PE, PE))
        e("v_mov_b32 v%d, s%d" % (HW, PE))
        e("s_mul_i32 s%d, s%d, 24" % (CRB, PG))
        e("v_add_u32 v%d, s%d, v%d" % (HG, CRB, HL))
        e("v_and_b32 v%d, 255, v%d" % (HR, HG))
        e("v_mul_u32_u24 v%d, %d, v%d" % (HR, FSTR, HR))
        e("v_lshlrev_b32 v%d, 6, v%d" % (HG, HG))
        e("s_mov_b32 s%d, %d" % (PE + 1, WS_G))
        e("s_mov_b32 s%d, %d" % (PE + 2, WS_ML))
        e("v_mov_b32 v%d, 0x%08x" % (HA, BIGNEG))
        e("v_mov_b32 v%d, 0" % HB_)
        if P["cd"]:
            th = [12 * (len(CPK) + min(j for j, c in enumerate(CPV) if c > b)) + P["cd"] for b in (16, 32, 4)]
            e("s_mov_b32 s%d, %d" % (PE + 3, th[0]))
            e("s_cmp_eq_u32 s%d, 4" % PE)
            e("s_cselect_b32 s%d, %d, s%d" % (PE + 3, th[1], PE + 3))
            e("s_cmp_eq_u32 s%d, 8" % PE)
            e("s_cselect_b32 s%d, %d, s%d" % (PE + 3, th[2], PE + 3))
            lds_wait("cg", HZ, HE, PE, L_TC, "s%d" % (PE + 3), PSP)
        else:
            lds_wait("cg", HZ, HE, PE, L_GO, "nz", PSP, HW)
        for tag, ld, chk in (("f", "buffer_load_dword v%d, v%d, s[%d:%d], s%d offen sc1" % (HD, HR, PWS, PWS + 3, PE + 1), HD),
                             ("m", "buffer_load_dwordx4 v[%d:%d], v%d, s[%d:%d], s%d offen sc1" % (HA, HD, HG, PWS, PWS + 3, PE + 2), HD)):
            e("s_mov_b64 exec, 0xffffff")
            e("s_mov_b32 s%d, 0x40000" % PSP)
            e.label("L_cp" + tag)
            e(ld)
            e("s_sub_u32 s%d, s%d, 1" % (PSP, PSP))
            e("s_cbranch_scc1 L_exit1")
            e("s_waitcnt vmcnt(0)")
            e("v_cmpx_eq_u32 vcc, 0, v%d" % chk)
            e("s_cbranch_execnz L_cp" + tag)
        e("s_mov_b64 exec, -1")
        e("v_mov_b32 v%d, v%d" % (HC, HA))
        wave_reduce([HC], "v_max_f32", [HD])
        e("v_sub_f32 v%d, v%d, v%d" % (HA, HA, HC))
        e("v_exp_f32 v%d, v%d" % (HA, HA))
        e("v_mul_f32 v%d, v%d, v%d" % (HB_, HB_, HA))
        wave_reduce([HB_], "v_add_f32", [HD])
        e("v_rcp_f32 v%d, v%d" % (HB_, HB_))
        e("v_mul_f32 v%d, v%d, v%d" % (HA, HA, HB_))
        if P["fc"]:
            e("s_cmp_lt_u32 s%d, 21" % PG)
            e("s_cbranch_scc1 L_cown")
            e("s_mul_i32 s%d, s%d, %d" % (PE, PG, FSTR))
            e("s_add_u32 s%d, s%d, %d" % (PE, PE, WS_G + ELN * FSTR))
            e("v_lshlrev_b32 v%d, 2, v%d" % (HR, HL))
            e("v_mov_b32 v%d, 1" % HB_)
            e("s_mov_b64 exec, 0xffffff")
            e("buffer_store_dword v%d, v%d, s[%d:%d], s%d offen offset:128 sc1" % (HA, HR, PWS, PWS + 3, PE))
            e("s_mov_b64 exec, 1")
            e("s_waitcnt vmcnt(0)")
            e("buffer_store_dword v%d, off, s[%d:%d], s%d offset:4 sc1" % (HB_, PWS, PWS + 3, PE))
            e("s_endpgm")
            e.label("L_cown")
        for r in range(24):
            e("v_readlane_b32 s%d, v%d, %d" % (CSC + r, HA, r))
        srd(CO, 78, H * DH * 2)
        e("s_lshl_b32 s%d, s%d, 10" % (CRB, CRB))
        e("v_lshlrev_b32 v%d, 4, v%d" % (HG, HL))
        e("v_add_u32 v%d, s%d, v%d" % (HG, CRB, HG))
        for k in range(1, 6):
            e("s_mov_b32 s%d, %d" % (PE + k, 4096 * k))
        for r in (HA, HB_, HC):
            e("v_mov_b32 v%d, 0" % r)
        e("s_mov_b32 s%d, 0xffffff" % CMK)
        e("v_lshlrev_b32 v%d, 1, v%d" % (HR, HL))
        e("s_mul_i32 s%d, s%d, %d" % (CRB, PG, DH * 2))
        lds_wait("cc", HZ, HE, PE, L_CA, "%d" % P["cw"], PSP, HW)
        e("s_mov_b32 s%d, 0x40000" % PSP)
        e.label("L_cr")
        for r in range(24):
            e("s_bitcmp0_b32 s%d, %d" % (CMK, r))
            e("s_cbranch_scc1 L_cl%d" % r)
            e("buffer_load_dwordx4 v[%d:%d], v%d, s[%d:%d], %s offen offset:%d sc1" %
              (HX + 4 * r, HX + 4 * r + 3, HG, PWS, PWS + 3, "s%d" % (PE + r // 4) if r >= 4 else "0", (r % 4) * 1024))
            e.lines.append("L_cl%d:" % r)
        e("s_sub_u32 s%d, s%d, 1" % (PSP, PSP))
        e("s_cbranch_scc1 L_exit1")
        e("s_waitcnt vmcnt(0)")
        for r in range(24):
            e("s_bitcmp0_b32 s%d, %d" % (CMK, r))
            e("s_cbranch_scc1 L_cv%d" % r)
            e("v_cmp_eq_u32 vcc, 0, v%d" % (HX + 4 * r + 3))
            e("s_cbranch_vccnz L_cv%d" % r)
            for k, a_ in enumerate((HA, HB_, HC)):
                e("v_fmac_f32 v%d, s%d, v%d" % (a_, CSC + r, HX + 4 * r + k))
            e("s_bitset0_b32 s%d, %d" % (CMK, r))
            e.lines.append("L_cv%d:" % r)
        e("s_cmp_lg_u32 s%d, 0" % CMK)
        e("s_cbranch_scc1 L_cr")
        for k, a_ in enumerate((HA, HB_, HC)):
            e("v_cvt_pk_bf16_f32 v%d, v%d, v%d" % (a_, a_, a_))
            e("buffer_store_short v%d, v%d, s[%d:%d], s%d offen offset:%d" % (a_, HR, CO, CO + 3, CRB, k * 128))
        if P["stamp"] == 5:
            e("s_memrealtime s[%d:%d]" % (PT, PT + 1))
            e("s_waitcnt vmcnt(0)")
            e("s_memrealtime s[%d:%d]" % (PT + 2, PT + 3))
            srd(PS2, 82, 0x8000000)
            e("s_waitcnt lgkmcnt(0)")
            e("v_mov_b32 v%d, s%d" % (HX, PT))
            e("v_mov_b32 v%d, s%d" % (HX + 1, PT + 2))
            e("v_mov_b32 v%d, s%d" % (HX + 2, PSP))
            e("s_lshl_b32 s%d, s%d, 4" % (PE, PG))
            e("s_add_u32 s%d, s%d, 0x4009000" % (PE, PE))
            e("s_mov_b64 exec, 1")
            e("buffer_store_dwordx4 v[%d:%d], off, s[%d:%d], s%d" % (HX, HX + 3, PS2, PS2 + 3, PE))
    e("s_endpgm")

    def seg_scalars():
        e("s_lshl_b32 s%d, s%d, 5" % (PSG, PPH))
        e("s_add_u32 s%d, s%d, s%d" % (PSG, PSG, PG))
        e("s_lshl_b32 s%d, s%d, 15" % (PG0, PSG))
        e("s_add_u32 s%d, s%d, 1" % (PG0, PG0))
        e("s_mul_hi_u32 s%d, s%d, 0xaaaaaaab" % (PG0, PG0))
        e("s_lshr_b32 s%d, s%d, 7" % (PG0, PG0))

    def get_dec(tag):
        lds_wait(tag, HZ, HE, PE, L_DEC + 20, "nz", PSP)
        e("ds_read_b128 v[%d:%d], v%d offset:%d" % (HX, HX + 3, HZ, L_DEC))
        e("ds_read_b64 v[%d:%d], v%d offset:%d" % (HX + 4, HX + 5, HZ, L_DEC + 16))
        e("s_waitcnt lgkmcnt(0)")
        for i in range(6):
            e("v_readfirstlane_b32 s%d, v%d" % (PDC + i, HX + i))

    e.label("L_h0")
    srd(PB, 64, H * DH * 2)
    srd(PS2, 70, H * NGRP * DH * 2)
    srd(PS3, 72, H * NGRP * DH * 2)
    e("v_lshrrev_b32 v%d, 4, v%d" % (HA, HL))
    e("v_and_b32 v%d, 15, v%d" % (HB_, HL))
    e("v_lshlrev_b32 v%d, 3, v%d" % (HC, HB_))
    e("v_mul_u32_u24 v%d, %d, v%d" % (HD, DH * 2, HA))
    e("v_add_u32 v%d, v%d, v%d" % (HD, HD, HC))
    e("v_lshl_add_u32 v%d, v%d, 2, v%d" % (HG, HB_, HA))
    e("v_lshlrev_b32 v%d, 2, v%d" % (HG, HG))
    BQ = HX; BS = HX + 12; BZ = BS + 36; BR = BZ + 36
    PFA = 32; PIA = 33
    e("v_lshlrev_b32 v%d, 4, v%d" % (HA, HL))
    e("s_mul_i32 s%d, s%d, %d" % (PFA, PNB, FSTR))
    e("s_add_u32 s%d, s%d, s%d" % (PFA, PFA, PGL))
    e("s_lshl_b32 s%d, s%d, 3" % (PIA, PG))
    e("s_add_u32 s%d, s%d, s%d" % (PIA, PIA, PNB))
    IMS = PHI if P["il"] else IMG
    PHS = NWG * PHI if P["il"] else PHI
    CX = P["cx"]
    if CX:
        assert N0 <= 4 and not P["xp"]
        IMS = 4096; PHS = NWG * IMS
        e("v_and_b32 v%d, 7, v%d" % (HN, HL))
        e("v_lshrrev_b32 v%d, 3, v%d" % (HE, HL))
        e("v_mul_u32_u24 v%d, 24, v%d" % (HK, HE))
        e("v_mov_b32 v%d, 768" % HF)
        e("v_mad_u32_u24 v%d, v%d, v%d, v%d" % (HK, HN, HF, HK))
        e("v_lshlrev_b32 v%d, 7, v%d" % (HN, HN))
        e("v_lshl_add_u32 v%d, v%d, 4, v%d" % (HN, HE, HN))
    XZ = P["xz"]; XS = 1 << P["xr"]

    def img_lane(dst, tmp):
        if XZ >= 1024:
            e("v_lshlrev_b32 v%d, 4, v%d" % (dst, HL))
            return
        lz = (XZ // 16).bit_length() - 1
        e("v_lshrrev_b32 v%d, %d, v%d" % (dst, lz, HL))
        e("v_lshlrev_b32 v%d, %d, v%d" % (dst, P["xr"], dst))
        e("v_and_b32 v%d, %d, v%d" % (tmp, XZ // 16 - 1, HL))
        e("v_lshl_add_u32 v%d, v%d, 4, v%d" % (dst, tmp, dst))

    def img_base(dst, slot, tmp):
        spr = XS // XZ
        assert 8 <= spr <= 256 and PHI % XZ == 0
        e("s_lshr_b32 s%d, s%d, %d" % (tmp, slot, spr.bit_length() - 1))
        e("s_mul_i32 s%d, s%d, %d" % (tmp, tmp, XS * (PHI // XZ)))
        e("s_and_b32 s%d, s%d, %d" % (dst, slot, spr - 1))
        e("s_mul_i32 s%d, s%d, %d" % (dst, dst, XZ))
        e("s_add_u32 s%d, s%d, s%d" % (dst, dst, tmp))

    def img_k(k):
        return (k * 1024 // XZ) * XS + k * 1024 % XZ

    if XZ:
        assert P["il"] and not CX and not P["xp"]
        img_base(PIA, PIA, PE)
        img_lane(HN, HE)
    else:
        e("s_mul_i32 s%d, s%d, %d" % (PIA, PIA, IMS))
    e("s_add_u32 s%d, s%d, %d" % (PIA, PIA, WS_L))

    def bias(ph):
        e("s_mov_b32 s%d, %d" % (PPH, ph))
        seg_scalars()
        e("s_mul_i32 s%d, s%d, 171" % (PE, PSG))
        e("s_lshr_b32 s%d, s%d, 9" % (PE, PE))
        e("s_mul_i32 s%d, s%d, %d" % (PE, PE, DH * 2))
        e("s_mul_i32 s%d, s%d, 24" % (PE + 1, PM))
        e("s_add_u32 s%d, s%d, s%d" % (PE + 2, PE + 1, PG0))
        e("s_mul_i32 s%d, s%d, %d" % (PE + 2, PE + 2, DH * 2))
        e("v_add_u32 v%d, s%d, v%d" % (HE, PE + 2, HD))
        e("v_add_u32 v%d, %d, v%d" % (HF, 8 * DH * 2, HE))
        e("v_add_u32 v%d, %d, v%d" % (HR, 16 * DH * 2, HE))
        for c in range(3):
            e("buffer_load_dwordx2 v[%d:%d], v%d, s[%d:%d], s%d offen offset:%d" % (BR + 2 * c, BR + 2 * c + 1, HC, PB, PB + 3, PE, c * 128))
        split = P["bs"] & (1 if ph else 2)
        order = [(st, a) for st in range(6) for a in range(2)]
        if split:
            order.sort(key=lambda x: x[1])
        for st, a in order:
            va = (HE, HF, HR)[st // 2]
            sr, bb = ((PS2, BS), (PS3, BZ))[a]
            if split and (st, a) == (0, 1):
                if ph:
                    lds_wait("z%d" % ph, HZ, HV, PE + 3, L_EV + 4, str(8 * ph - 8 + P["bz"]), PSP)
                else:
                    lds_wait("z0", HZ, HV, PE + 3, L_TC, str(P["bz0"]), PSP)
            bt = P["bt"] if ph else P["bt0"]
            if bt:
                if st == 0 and bb == BS:
                    e("s_memrealtime s[%d:%d]" % (PT, PT + 1))
                    e("s_waitcnt lgkmcnt(0)")
                twait(PT, PT + 2, bt)
            for c in range(3):
                r = bb + st * 6 + 2 * c
                if P["xb"] & 1:
                    continue
                e("buffer_load_dwordx2 v[%d:%d], v%d, s[%d:%d], 0 offen offset:%d%s" %
                  (r, r + 1, va, sr, sr + 3, (st & 1) * 4 * DH * 2 + c * 128,
                   " nt" if P["bnt"] & (1 if bb == BZ else 2) else ""))
            if (P["bp"] == 2 or P["bp"] == 1 and a) and (ph or P["bp0"]):
                e("s_waitcnt vmcnt(%d)" % P["bq"])
        e("s_waitcnt vmcnt(0)")
        for p in range(6):
            e("v_lshlrev_b32 v%d, 16, v%d" % (BQ + 2 * p, BR + p))
            e("v_and_b32 v%d, 0xffff0000, v%d" % (BQ + 2 * p + 1, BR + p))
        for st in range(6):
            acc = BR + st
            for p in range(6):
                rs = BS + st * 6 + p; rz = BZ + st * 6 + p
                e("v_lshlrev_b32 v%d, 16, v%d" % (HE, rs))
                e("v_lshlrev_b32 v%d, 16, v%d" % (HF, rz))
                e("v_and_b32 v%d, 0xffff0000, v%d" % (rs, rs))
                e("v_and_b32 v%d, 0xffff0000, v%d" % (rz, rz))
                e("v_mul_f32 v%d, v%d, v%d" % (HE, HE, BQ + 2 * p))
                e("v_mul_f32 v%d, v%d, v%d" % (rs, rs, BQ + 2 * p + 1))
                if p == 0:
                    e("v_mul_f32 v%d, v%d, v%d" % (acc, HE, HF))
                else:
                    e("v_fmac_f32 v%d, v%d, v%d" % (acc, HE, HF))
                e("v_fmac_f32 v%d, v%d, v%d" % (acc, rs, rz))
        for kk in (8, 4, 2, 1):
            for st in range(6):
                e("v_add_f32_dpp v%d, v%d, v%d row_ror:%d row_mask:0xf bank_mask:0xf" % (BR + st, BR + st, BR + st, kk))
        for st in range(1, 6):
            e("v_cmp_eq_u32 vcc, %d, v%d" % (st, HB_))
            e("v_cndmask_b32 v%d, v%d, v%d, vcc" % (BR, BR, BR + st))
        e("s_mul_i32 s%d, s%d, 768" % (PE, PSG))
        e("s_lshl_b32 s%d, s%d, 2" % (PE + 1, PE + 1))
        e("s_add_u32 s%d, s%d, s%d" % (PE, PE, PE + 1))
        e("s_add_u32 s%d, s%d, %d" % (PE, PE, WS_B))
        e("s_mov_b32 exec_lo, 0x003f003f")
        e("s_mov_b32 exec_hi, 0x003f003f")
        e("buffer_store_dword v%d, v%d, s[%d:%d], s%d offen sc1" % (BR, HG, PWS, PWS + 3, PE))
        e("s_mov_b64 exec, -1")

    def flush(p):
        if P["xp"]:
            e("s_cmp_eq_u32 s%d, s%d" % (PDC + p, PDC + 3 + p))
            if p:
                e("s_cbranch_scc1 L_fp%d" % p)
            e("s_add_u32 s%d, s%d, %d" % (PE + 6, PIA, p * PHS))
            e("s_add_u32 s%d, s%d, %d" % (PE + 7, PIA, p * PHS + 4096))
            e("s_cmp_eq_u32 s%d, s%d" % (PDC + p, PDC + 3 + p))
            for k in range(6):
                if p == 0:
                    mk = sum(1 << l for l in range(64) if (64 * k + l) % 48 < (3 * N0 + 7) // 8 * 8)
                    e("s_cselect_b32 exec_lo, 0x%x, -1" % (mk & 0xffffffff))
                    e("s_cselect_b32 exec_hi, 0x%x, -1" % (mk >> 32))
                e("buffer_load_dwordx4 v[%d:%d], v%d, s[%d:%d], s%d offen offset:%d %s" %
                  (HX + 4 * k, HX + 4 * k + 3, HA, PWS, PWS + 3, PE + 6 + k // 4, (k % 4) * 1024, ("", "sc1", "", "nt")[P["xp"]]))
            e("s_mov_b64 exec, -1")
            e("s_waitcnt vmcnt(0)")
            e.label("L_fp%d" % p)
        lds_wait("f%d" % p, HZ, HE, PE, L_CF + 4 * p, "4", PSP)
        e("s_cmp_eq_u32 s%d, s%d" % (PDC + p, PDC + 3 + p))
        if p:
            e("s_cbranch_scc1 L_fl%d" % p)
        if CX:
            for st in range(4):
                for c in range(3):
                    r = HX + 12 * st + 2 * c
                    e("ds_read_b64 v[%d:%d], v%d offset:%d" % (r, r + 1, HK, L_LG + p * PHI + st * 192 + 8 * c))
            e("s_add_u32 s%d, s%d, %d" % (PE + 6, PIA, p * PHS))
            e("s_cmp_eq_u32 s%d, s%d" % (PDC + p, PDC + 3 + p))
            e("s_waitcnt lgkmcnt(0)")
            for st in range(4):
                B = HX + 12 * st
                e("v_cmp_eq_f32 vcc, 0, v%d" % (B + 5))
                e("v_max3_f32 v%d, v%d, v%d, v%d" % (B + 9, B, B + 1, B + 2))
                e("v_cndmask_b32 v%d, v%d, v%d, vcc" % (B + 8, B + 5, B + 4))
                e("v_max3_f32 v%d, v%d, v%d, v%d" % (B + 9, B + 9, B + 3, B + 4))
                e("v_max_f32 v%d, v%d, v%d" % (B + 8, B + 8, B + 9))
                for k in range(6):
                    e("v_sub_f32 v%d, v%d, v%d" % (B + k, B + k, B + 8))
                for k in range(3):
                    e("v_cvt_pk_f16_f32 v%d, v%d, v%d" % (B + 9 + k, B + 2 * k, B + 2 * k + 1))
                if not P["xkp"] & 16:
                    e("buffer_store_dwordx4 v[%d:%d], v%d, s[%d:%d], s%d offen offset:%d %s" %
                      (B + 8, B + 11, HN, PWS, PWS + 3, PE + 6, st * 1024, P["st"]))
                if p == 0 and st == 0:
                    e("s_cbranch_scc1 L_fl0")
        else:
            for k in range(6):
                e("ds_read_b128 v[%d:%d], v%d offset:%d" % (HX + 4 * k, HX + 4 * k + 3, HA, L_LG + p * PHI + k * 1024))
            if XZ:
                for k in range(6):
                    e("s_add_u32 s%d, s%d, %d" % (PE + k, PIA, p * PHS + img_k(k)))
            else:
                e("s_add_u32 s%d, s%d, %d" % (PE + 6, PIA, p * PHS))
                e("s_add_u32 s%d, s%d, %d" % (PE + 7, PIA, p * PHS + 4096))
            e("s_cmp_eq_u32 s%d, s%d" % (PDC + p, PDC + 3 + p))
            e("s_waitcnt lgkmcnt(0)")
            for k in range(6):
                if P["fw"]:
                    if k == 0:
                        e("s_memrealtime s[%d:%d]" % (PT, PT + 1))
                        e("s_waitcnt lgkmcnt(0)")
                    twait(PT, PT + 2, P["fw"])
                    e("s_cmp_eq_u32 s%d, s%d" % (PDC + p, PDC + 3 + p))
                if p == 0:
                    mk = sum(1 << l for l in range(64) if (64 * k + l) % 48 < (3 * N0 + 7) // 8 * 8)
                    e("s_cselect_b32 exec_lo, 0x%x, -1" % (mk & 0xffffffff))
                    e("s_cselect_b32 exec_hi, 0x%x, -1" % (mk >> 32))
                if XZ:
                    e("buffer_store_dwordx4 v[%d:%d], v%d, s[%d:%d], s%d offen %s" %
                      (HX + 4 * k, HX + 4 * k + 3, HN, PWS, PWS + 3, PE + k, P["st"]))
                elif not P["xkp"] & 16:
                    e("buffer_store_dwordx4 v[%d:%d], v%d, s[%d:%d], s%d offen offset:%d %s" %
                      (HX + 4 * k, HX + 4 * k + 3, HA, PWS, PWS + 3, PE + 6 + k // 4, (k % 4) * 1024, P["st"]))
            if p == 0:
                e("s_mov_b64 exec, -1")
            if P["wb"]:
                e("s_waitcnt vmcnt(0)")
                e("buffer_wbl2 sc1")
        e.label("L_fl%d" % p)
        e("v_mov_b32 v%d, %d" % (HE, p + 1))
        e("s_waitcnt vmcnt(0)")
        e("s_mov_b64 exec, 1")
        opt = p == 2 or (p == 1 and not P["jit"])
        if opt:
            e("s_cbranch_scc1 L_fn%d" % p)
        e("buffer_store_dword v%d, off, s[%d:%d], s%d sc1" % (HE, PWS, PWS + 3, PFA))
        if opt:
            e.label("L_fn%d" % p)
        e("ds_write_b32 v%d, v%d offset:%d" % (HZ, HE, L_FD))
        e("s_mov_b64 exec, -1")

    if FU:
        for i in range(4):
            e("v_mov_b32 v%d, 0" % (HX + i))
        for p in range(3):
            e("s_add_u32 s%d, s2, %d" % (PE, 256 * p))
            e("s_lshl_b32 s%d, s%d, 10" % (PE + 1, PE))
            e("s_lshl_b32 s%d, s%d, 6" % (PE, PE))
            e("s_add_u32 s%d, s%d, %d" % (PE, PE, WS_ML))
            if not (P["xkp"] & 512 and p < 2):
                e("buffer_store_dwordx4 v[%d:%d], v%d, s[%d:%d], s%d offen sc1" % (HX, HX + 3, HA, PWS, PWS + 3, PE + 1))
            e("s_mov_b64 exec, 15")
            e("buffer_store_dwordx4 v[%d:%d], v%d, s[%d:%d], s%d offen sc1" % (HX, HX + 3, HA, PWS, PWS + 3, PE))
            e("s_mov_b64 exec, -1")
    bias(0)
    if P["jit"] and not P["be1"] & 1:
        lds_wait("b1", HZ, HE, PE, L_EV + 4, "1", PSP)
    bias(1)
    if not P["jit"]:
        bias(2)
    get_dec("d0")
    flush(0)
    if P["jit"]:
        if not P["be1"] & 2:
            lds_wait("b2", HZ, HE, PE, L_EV + 4, "9", PSP)
        bias(2)
    flush(1)
    flush(2)
    if P["at"] and not BC:
        e("v_lshrrev_b32 v%d, 3, v%d" % (HC, HL))
        e("v_xor_b32 v%d, s%d, v%d" % (HC, PM, HC))
        e("v_lshrrev_b32 v%d, 1, v%d" % (HD, HC))
        e("v_and_b32 v%d, 1, v%d" % (HC, HC))
        e("v_lshl_or_b32 v%d, v%d, 2, v%d" % (HD, HC, HD))
        e("v_lshl_or_b32 v%d, v%d, 3, v%d" % (HD, HL, HD))
        e("v_mul_u32_u24 v%d, %d, v%d" % (HD, FSTR, HD))
        lds_wait("t1", HZ, HE, PE, L_TC, "4", PSP)
        e("s_memrealtime s[%d:%d]" % (PT, PT + 1))
        e("s_mov_b64 exec, 1")
        e("s_waitcnt lgkmcnt(0)")
        e("s_or_b32 s%d, s%d, 1" % (PT, PT))
        e("v_mov_b32 v%d, s%d" % (HB_, PT))
        e("buffer_store_dword v%d, off, s[%d:%d], s%d offset:4 sc1" % (HB_, PWS, PWS + 3, PFA))
        e("s_mov_b32 exec_lo, -1")
        e("s_mov_b32 s%d, %d" % (PE + 1, WS_G))
        lds_wait("t2", HZ, HE, PE, L_TC, "5", PSP)
        e("buffer_load_dword v%d, v%d, s[%d:%d], s%d offen offset:4 sc1" % (HB_, HD, PWS, PWS + 3, PE + 1))
        e("v_bfrev_b32 v%d, -2" % HC)
        e("s_mov_b32 s%d, -2048" % PE)
        e("s_waitcnt vmcnt(0)")
        e("v_cmp_eq_u32 vcc, 0, v%d" % HB_)
        e("v_subrev_u32 v%d, s%d, v%d" % (HB_, PT, HB_))
        e("v_cndmask_b32 v%d, v%d, v%d, vcc" % (HB_, HB_, HC))
        for st in (2048, 1024, 512, 256, 128, 64, 32, 16):
            e("s_add_u32 s%d, s%d, %d" % (PE + 1, PE, st))
            e("v_cmp_gt_i32 vcc, s%d, v%d" % (PE + 1, HB_))
            e("s_bcnt1_i32_b64 s%d, vcc" % (PE + 2))
            e("s_cmp_lt_u32 s%d, %d" % (PE + 2, P["aq"]))
            e("s_cselect_b32 s%d, s%d, s%d" % (PE, PE + 1, PE))
        e("s_mul_i32 s%d, s%d, %d" % (PE, PE, -P["ka"]))
        e("s_add_u32 s%d, s%d, %d" % (PE, PE, P["kb"]))
        e("s_ashr_i32 s%d, s%d, 10" % (PE, PE))
        e("s_max_i32 s%d, s%d, %d" % (PE, PE, P["dmin"]))
        e("s_min_i32 s%d, s%d, %d" % (PE, PE, min(P["dmax"], NT - P["te"])))
        e("s_sub_u32 s%d, %d, s%d" % (PE, NT, PE))
        e("s_cmp_eq_u32 s%d, %d" % (PE, NT))
        e("s_cselect_b32 s%d, 255, s%d" % (PE, PE))
        e("v_mov_b32 v%d, s%d" % (HB_, PE))
        e("ds_write_b32 v%d, v%d offset:%d" % (HZ, HB_, L_TD))
    e("s_endpgm")

    def last_gather():
        EL = P["fc"] == 4
        CSC = 24; CO = 96; CR0 = 56; CSO = 57; CHL = 58; CRB = 59; CN = 20
        COF = list(range(64, 76)) + list(range(84, 96))
        RB = HX + 16
        if EL:
            e("s_mov_b64 exec, -1")
            e("v_lshlrev_b32 v%d, 2, v%d" % (HR, HL))
            e("v_add_u32 v%d, %d, v%d" % (HG, L_ACC + 2 * NW * ROWB, HR))
            e("v_lshlrev_b32 v%d, 4, v%d" % (HK, HL))
        e("s_add_u32 s%d, s%d, 64" % (PE, PG))
        e("s_mul_i32 s%d, s%d, 171" % (PE, PE))
        e("s_lshr_b32 s%d, s%d, 9" % (PE, PE))
        e("s_mul_i32 s%d, s%d, %d" % (CHL, PE, FSTR))
        e("s_add_u32 s%d, s%d, %d" % (CHL, CHL, WS_G + ELN * FSTR))
        e("s_mul_i32 s%d, s%d, %d" % (CRB, PE, DH * 2))
        e("s_cmp_eq_u32 s%d, 21" % PE)
        e("s_cselect_b32 s%d, 15, 23" % CN)
        e("s_mul_i32 s%d, s%d, 24" % (PE, PE))
        e("s_add_u32 s%d, s2, 512" % PSG)
        e("s_sub_u32 s%d, s%d, s%d" % (CR0, PSG, PE))
        e("s_lshl_b32 s%d, s%d, 10" % (PSG, PSG))
        e("s_mov_b32 s%d, 0x40000" % PSP)
        e.label("L_fs")
        e("buffer_load_dword v%d, off, s[%d:%d], s%d offset:4 sc1" % (HA, PWS, PWS + 3, CHL))
        e("s_sub_u32 s%d, s%d, 1" % (PSP, PSP))
        e("s_cbranch_scc1 L_exit1")
        e("s_waitcnt vmcnt(0)")
        e("v_cmp_eq_u32 vcc, 0, v%d" % HA)
        e("s_cbranch_vccnz L_fs")
        e("buffer_load_dword v%d, v%d, s[%d:%d], s%d offen offset:128 sc1" % (HE, HR, PWS, PWS + 3, CHL))
        e("ds_read_b128 v[%d:%d], v%d offset:%d" % (HA, HD, HZ, L_ML + 32))
        e("v_xor_b32 v%d, 1, v%d" % (HF, HL))
        e("v_cmp_eq_u32 vcc, s%d, v%d" % (CR0, HL))
        e("v_cndmask_b32 v%d, v%d, v%d, vcc" % (HF, HL, HF))
        e("v_add_u32 v%d, s%d, v%d" % (HF, PE, HF))
        e("v_lshlrev_b32 v%d, 10, v%d" % (HF, HF))
        for r in range(24):
            e("v_readlane_b32 s%d, v%d, %d" % (COF[r], HF, r))
        srd(CO, 78, H * DH * 2)
        e("v_lshlrev_b32 v%d, 1, v%d" % (HR, HL))
        e("s_waitcnt vmcnt(0)")
        e("v_readlane_b32 s%d, v%d, s%d" % (CSO, HE, CR0))
        e("v_cndmask_b32 v%d, v%d, v%d, vcc" % (HE, HE, HZ))
        for r in range(24):
            e("v_readlane_b32 s%d, v%d, %d" % (CSC + r, HE, r))
        e("v_mov_b32 v%d, 1" % HV)
        if EL:
            e("s_mov_b64 exec, 1")
            lds_wait("el", HZ, HE, PE, L_EL, "4", PSP)
            e("buffer_atomic_add v%d, off, s[%d:%d], s%d sc0" % (HV, PWS, PWS + 3, CHL))
            e("s_mov_b64 exec, -1")
            e("s_waitcnt vmcnt(0)")
            e("v_readfirstlane_b32 s%d, v%d" % (PE, HV))
            e("s_cmp_lg_u32 s%d, s%d" % (PE, CN))
            e("s_cbranch_scc1 L_exit1")
            for r in range(24):
                e("buffer_load_dwordx4 v[%d:%d], v%d, s[%d:%d], s%d offen sc1" % (RB + 4 * r, RB + 4 * r + 3, HK, PWS, PWS + 3, COF[r]))
        lds_wait("n", HZ, HE, PE, L_CA + 8, "4", PSP)
        for kk in range(3):
            for w in range(NW):
                e("ds_read_b32 v%d, v%d offset:%d" % (HX + kk * NW + w, HG, w * ROWB + kk * 256))
        if not EL:
            e("s_mov_b64 exec, 1")
            e("buffer_atomic_add v%d, off, s[%d:%d], s%d sc0" % (HV, PWS, PWS + 3, CHL))
            e("s_mov_b64 exec, -1")
        e("s_mov_b32 s%d, 0x40000" % PSP)
        for kk in range(3):
            b = HX + kk * NW
            e("s_waitcnt lgkmcnt(%d)" % (8 - 4 * kk))
            e("v_add_f32 v%d, v%d, v%d" % (b, b, b + 1))
            e("v_add_f32 v%d, v%d, v%d" % (b + 2, b + 2, b + 3))
            e("v_sub_f32 v%d, v%d, v%d" % (b, b, HC))
            e("v_add_f32 v%d, v%d, v%d" % (HX + 12 + kk, b, b + 2))
        if EL:
            e("s_branch L_fr2")
        else:
            e("buffer_store_dwordx4 v[%d:%d], v%d, s[%d:%d], s%d offen sc1" % (HX + 12, HX + 15, HK, PWS, PWS + 3, PSG))
        if P["stamp"] == 5 and not EL:
            e("s_memrealtime s[%d:%d]" % (PE + 4, PE + 5))
        if 2 <= P["fc"] < 4:
            e("s_waitcnt vmcnt(%d)" % (P["fc"] - 2))
            e("v_readfirstlane_b32 s%d, v%d" % (PE, HV))
            e("s_cmp_lg_u32 s%d, s%d" % (PE, CN))
            e("s_cbranch_scc1 L_fx")
        e.label("L_fr")
        for r in range(24):
            e("buffer_load_dwordx4 v[%d:%d], v%d, s[%d:%d], s%d offen sc1" % (RB + 4 * r, RB + 4 * r + 3, HK, PWS, PWS + 3, COF[r]))
        e.lines.append("L_fr2:")
        for k, a_ in enumerate((HA, HB_, HC)):
            e("v_mul_f32 v%d, s%d, v%d" % (a_, CSO, HX + 12 + k))
        e("v_mov_b32 v%d, 1" % HD)
        e("s_sub_u32 s%d, s%d, 1" % (PSP, PSP))
        e("s_cbranch_scc1 L_exit1")
        for r in range(24):
            if r % 2 == 0:
                e("s_waitcnt vmcnt(%d)" % (22 - r))
            for k, a_ in enumerate((HA, HB_, HC)):
                e("v_fmac_f32 v%d, s%d, v%d" % (a_, CSC + r, RB + 4 * r + k))
            if r % 2:
                e("v_min3_u32 v%d, v%d, v%d, v%d" % (HD, HD, RB + 4 * r - 1, RB + 4 * r + 3))
        if P["fc"] == 1:
            e("v_readfirstlane_b32 s%d, v%d" % (PE, HV))
        e("v_cmp_eq_u32 vcc, 0, v%d" % HD)
        for a_ in (HA, HB_, HC):
            e("v_cvt_pk_bf16_f32 v%d, v%d, v%d" % (a_, a_, a_))
        if P["fc"] == 1:
            e("s_cmp_lg_u32 s%d, s%d" % (PE, CN))
            e("s_cbranch_scc1 L_fx")
        e("s_cbranch_vccnz L_fr")
        for k, a_ in enumerate((HA, HB_, HC)):
            e("buffer_store_short v%d, v%d, s[%d:%d], s%d offen offset:%d" % (a_, HR, CO, CO + 3, CRB, k * 128))
        if P["stamp"] == 5:
            e("s_memrealtime s[%d:%d]" % (PT, PT + 1))
            e("s_waitcnt vmcnt(0)")
            e("s_memrealtime s[%d:%d]" % (PT + 2, PT + 3))
            srd(PS2, 82, 0x8000000)
            e("s_waitcnt lgkmcnt(0)")
            e("v_mov_b32 v%d, s%d" % (HX, PT))
            e("v_mov_b32 v%d, s%d" % (HX + 1, PT + 2))
            e("v_mov_b32 v%d, s%d" % (HX + 2, PSP))
            e("s_mul_i32 s%d, s%d, 171" % (PE, CRB))
            e("s_lshr_b32 s%d, s%d, 16" % (PE, PE))
            e("s_lshl_b32 s%d, s%d, 4" % (PE, PE))
            e("s_add_u32 s%d, s%d, 0x4009000" % (PE, PE))
            e("s_mov_b64 exec, 1")
            e("buffer_store_dwordx4 v[%d:%d], off, s[%d:%d], s%d" % (HX, HX + 3, PS2, PS2 + 3, PE))
        e.lines.append("L_fx:")
        if P["stamp"] == 5 and not EL:
            srd(PS2, 82, 0x8000000)
            e("s_memrealtime s[%d:%d]" % (PT + 2, PT + 3))
            e("s_waitcnt lgkmcnt(0)")
            e("v_mov_b32 v%d, s%d" % (HX, PE + 4))
            e("v_mov_b32 v%d, s%d" % (HX + 1, PT + 2))
            e("s_lshl_b32 s%d, s2, 3" % PE)
            e("s_add_u32 s%d, s%d, 0x400a000" % (PE, PE))
            e("s_mov_b64 exec, 1")
            e("buffer_store_dwordx2 v[%d:%d], off, s[%d:%d], s%d" % (HX, HX + 1, PS2, PS2 + 3, PE))
        e("s_endpgm")

    if BC:
        e.label("L_h3")
        e("s_waitcnt lgkmcnt(0)")
        srd_ws(PWS)
        if not EB:
            e("s_barrier")
        e("v_lshlrev_b32 v%d, 2, v%d" % (HD, HL))
        e("s_mul_i32 s%d, s%d, %d" % (PO, PM, FSTR))
        e("s_add_u32 s%d, s%d, %d" % (PO, PO, WS_T))
        e("s_lshl_b32 s%d, s%d, 2" % (PFL, PG))
        e("s_add_u32 s%d, s%d, s%d" % (PFL, PFL, PO))
        if GTS:
            cps = CPK + [48 + c for c in CPV]
            sel = [max(j for j, c in enumerate(cps) if c + P["tg"] + P["rd"] < b) for b in GTS]
            e("s_mov_b32 s%d, 0x%x" % (PRN, sum(1 << j for j in sel)))
            e("v_lshrrev_b32 v%d, 2, v%d" % (HG, HL))
            e("v_mul_u32_u24 v%d, %d, v%d" % (HG, FSTR, HG))
            e("v_and_or_b32 v%d, v%d, 12, v%d" % (HG, HD, HG))
            e("s_and_b32 s%d, s%d, 3" % (PBK, PM))
            e("s_mul_i32 s%d, s%d, %d" % (PNR, PBK, FSTR))
            e("s_lshl_b32 s%d, s%d, 2" % (PBK, PBK))
            e("v_mov_b32 v%d, %d" % (HK, L_GT))
        e("s_mov_b32 s%d, %d" % (PJ, P["pw"]))
        e("v_mov_b32 v%d, %d" % (HW, L_TM))
        e("v_bfrev_b32 v%d, -2" % HC)
        e("s_mov_b32 exec_hi, 0")
        e.label("L_h3loop")
        lds_wait("p1", HZ, HE, PE, L_TC, "s%d" % PJ, PSP)
        e("s_memrealtime s[%d:%d]" % (PT, PT + 1))
        e("s_add_u32 s%d, s%d, %d" % (PJ, PJ, 5 - P["pw"]))
        e("s_mov_b32 exec_lo, 1")
        e("s_waitcnt lgkmcnt(0)")
        e("v_mov_b32 v%d, s%d" % (HB_, PT))
        e("buffer_store_dword v%d, off, s[%d:%d], s%d" % (HB_, PWS, PWS + 3, PFL))
        e("s_mov_b32 exec_lo, -1")
        if P["xs"]:
            XS = P["xs"]
            e("s_lshl_b32 s%d, s2, %d" % (PE, 10 if XS & 8 else 12))
            e("s_add_u32 s%d, s%d, 0x700000" % (PE, PE))
            e("v_lshlrev_b32 v%d, 4, v%d" % (HX, HL))
            e("s_mov_b64 exec, %s" % ("-1" if XS & 2 else "1"))
            e("v_lshlrev_b32 v%d, 4, v%d" % (HX, HL))
            for k in range(4 if XS & 16 else 1):
                e("buffer_%s_dwordx4 v[%d:%d], v%d, s[%d:%d], s%d offen offset:%d %s" %
                  ("load" if XS & 4 else "store", HX + 4, HX + 7, HX, PWS, PWS + 3, PE, 1024 * k, "sc1" if XS & 1 else "" if not XS & 32 else "sc0 sc1"))
            e("s_mov_b64 exec, 0xffffffff")
        lds_wait("p2", HZ, HE, PE, L_TC, "s%d" % PJ, PSP)
        e("buffer_load_dword v%d, v%d, s[%d:%d], s%d offen sc0" % (HB_, HD, PWS, PWS + 3, PO))
        e("s_add_u32 s%d, s%d, 4" % (PJ, PJ))
        e("s_sub_u32 s%d, s%d, 4096" % (PT, PT))
        e("s_waitcnt vmcnt(0)")
        e("v_subrev_u32 v%d, s%d, v%d" % (HB_, PT, HB_))
        e("v_cmp_gt_u32 vcc, 8192, v%d" % HB_)
        e("v_cndmask_b32 v%d, v%d, v%d, vcc" % (HB_, HC, HB_))
        e("s_mov_b32 s%d, 2048" % PE)
        for st in (2048, 1024, 512, 256, 128, 64, 32, 16, 8):
            e("s_add_u32 s%d, s%d, %d" % (PE + 1, PE, st))
            e("v_cmp_gt_u32 vcc, s%d, v%d" % (PE + 1, HB_))
            e("s_bcnt1_i32_b64 s%d, vcc" % (PE + 2))
            e("s_cmp_lt_u32 s%d, %d" % (PE + 2, P["aq"]))
            e("s_cselect_b32 s%d, s%d, s%d" % (PE, PE + 1, PE))
        e("s_add_u32 s%d, s%d, s%d" % (PE + 1, PE, PT))
        e("s_or_b32 s%d, s%d, 1" % (PE + 1, PE + 1))
        e("v_mov_b32 v%d, s%d" % (HB_, PE + 1))
        e("ds_write_b32 v%d, v%d" % (HW, HB_))
        e("v_add_u32 v%d, 4, v%d" % (HW, HW))
        if GTS:
            e("s_bitcmp1_b32 s%d, 0" % PRN)
            e("s_cbranch_scc0 L_h3ng")
            e("s_cmp_lt_u32 s%d, 6136" % PE)
            e("s_cselect_b32 exec_lo, 1, 0")
            e("s_cmp_lt_u32 s%d, 4" % PG)
            e("s_cselect_b32 exec_lo, exec_lo, 0")
            e("buffer_store_dword v%d, off, s[%d:%d], s%d offset:2048 sc1" % (HB_, PWS, PWS + 3, PFL))
            e("s_mov_b32 exec_lo, 0xffff")
            e("s_add_u32 s%d, s%d, %d" % (PE + 3, PJ, P["gq"]))
            lds_wait("p3", HZ, HE, PE, L_TC, "s%d" % (PE + 3), PSP)
            e("s_sub_u32 s%d, s%d, s%d" % (PE + 3, PO, PNR))
            e("s_mov_b32 s%d, %d" % (PSP, P["gn"]))
            e("s_mov_b32 s%d, 0" % PE)
            if P["gl2"]:
                e("buffer_load_dword v%d, v%d, s[%d:%d], s%d offen offset:2048" % (HA, HG, PWS, PWS + 3, PE + 3))
                e("s_branch L_h3gq")
            e.label("L_h3gp")
            e("buffer_load_dword v%d, v%d, s[%d:%d], s%d offen offset:2048 sc1" % (HA, HG, PWS, PWS + 3, PE + 3))
            e("s_sub_u32 s%d, s%d, 1" % (PSP, PSP))
            e("s_cbranch_scc1 L_h3gw")
            e.lines.append("L_h3gq:")
            e("s_waitcnt vmcnt(0)")
            e("v_subrev_u32 v%d, s%d, v%d" % (HA, PT, HA))
            e("v_cmp_gt_u32 vcc, 8192, v%d" % HA)
            e("v_cndmask_b32 v%d, v%d, v%d, vcc" % (HA, HC, HA))
            e("v_min_u32_dpp v%d, v%d, v%d quad_perm:[1,0,3,2] row_mask:0xf bank_mask:0xf" % (HA, HA, HA))
            e("v_min_u32_dpp v%d, v%d, v%d quad_perm:[2,3,0,1] row_mask:0xf bank_mask:0xf" % (HA, HA, HA))
            e("v_cmp_eq_u32 vcc, v%d, v%d" % (HC, HA))
            e("s_cbranch_vccnz L_h3gp")
            for k in range(4):
                e("v_readlane_b32 s%d, v%d, %d" % (PE + 4 + k, HA, 4 * k))
            e("v_readlane_b32 s%d, v%d, s%d" % (PE + 1, HA, PBK))
            e("s_max_u32 s%d, s%d, s%d" % (PE + 4, PE + 4, PE + 5))
            e("s_max_u32 s%d, s%d, s%d" % (PE + 6, PE + 6, PE + 7))
            e("s_max_u32 s%d, s%d, s%d" % (PE, PE + 4, PE + 6))
            e("s_sub_u32 s%d, s%d, s%d" % (PE, PE, PE + 1))
            e("s_sub_u32 s%d, s%d, %d" % (PE, PE, P["gtol"]))
            e("s_max_i32 s%d, s%d, 0" % (PE, PE))
            e("s_min_i32 s%d, s%d, %d" % (PE, PE, P["gcap"]))
            e.label("L_h3gw")
            e("s_or_b32 s%d, s%d, 0x10000" % (PE, PE))
            e("v_mov_b32 v%d, s%d" % (HB_, PE))
            e("ds_write_b32 v%d, v%d" % (HK, HB_))
            e("s_mov_b32 exec_lo, -1")
            e("v_add_u32 v%d, 4, v%d" % (HK, HK))
            e("s_waitcnt vmcnt(0)")
            e.label("L_h3ng")
            e("s_lshr_b32 s%d, s%d, 1" % (PRN, PRN))
        e("s_add_u32 s%d, s%d, %d" % (PJ, PJ, 3 + P["pw"]))
        e("s_add_u32 s%d, s%d, 128" % (PO, PO))
        e("s_add_u32 s%d, s%d, 128" % (PFL, PFL))
        e("s_cmp_lt_u32 s%d, %d" % (PJ, 12 * (len(CPK) + len(CPV))))
        e("s_cbranch_scc1 L_h3loop")
        if P["fc"] == 4:
            last_gather()
        else:
            e("s_endpgm")

    e.label("L_h2")
    srd(PS2, 74, H * SKV * 2)
    srd(PS3, 76, H * SKV * 2)
    if P["pf"] >= 2:
        if P["pf"] == 2:
            lds_wait("pf", HZ, HE, PE, L_EV + 4, "1", PSP)
        if P["pf"] == 4:
            lds_wait("pf", HZ, HE, PE, L_EV, "1", PSP)
        e("v_lshlrev_b32 v%d, 4, v%d" % (HA, HL))
        e("s_lshl_b32 s%d, s2, 13" % PE)
        e("s_add_u32 s%d, s%d, 4096" % (PE + 1, PE))
        for a, sr in enumerate((PS2, PS3)):
            for k in range(8):
                r = HX + 4 * (a * 8 + k)
                e("buffer_load_dwordx4 v[%d:%d], v%d, s[%d:%d], s%d offen offset:%d" % (r, r + 3, HA, sr, sr + 3, PE + k // 4, (k % 4) * 1024))
        e("s_waitcnt vmcnt(0)")
    get_dec("d2")
    PSIX = 24
    PKW = 32; PNEED = 33; PN0 = 34; PIM = 35; PCH = 36; PCC = 37; PMG = 38; PWD = 39; PIS = 40
    PGT = 42
    HT = HW
    HP = HX + 88; PXM = 64
    e("v_and_b32 v%d, 3, v%d" % (HT, HL))
    e("v_and_b32 v%d, 7, v%d" % (HT2, HL))
    e("v_lshrrev_b32 v%d, 2, v%d" % (HR, HL))
    e("s_mov_b32 s%d, %s" % (PCC, f32hex(C)))
    e("s_mov_b32 s%d, 0xaaaaaaab" % PMG)
    e("s_mov_b32 s%d, 0" % PPH)
    HPG = HP + 1 if XZ else HP
    if XZ:
        e("s_lshl_b32 s%d, s%d, 3" % (PIM, PG))
        img_base(PIM, PIM, PE)
        img_lane(HPG, HA)
    else:
        e("s_mul_i32 s%d, s%d, %d" % (PIM, PG, 8 * IMS))
    e("s_add_u32 s%d, s%d, %d" % (PIM, PIM, WS_L))
    e("s_mov_b32 s%d, %d" % (PIS, XZ or IMS))
    e("v_lshlrev_b32 v%d, 5, v%d" % (HN, HL))
    e("v_lshrrev_b32 v%d, 3, v%d" % (HK, HL))
    e("v_mul_u32_u24 v%d, 24, v%d" % (HK, HK))
    e("v_mov_b32 v%d, 768" % HA)
    e("v_mad_u32_u24 v%d, v%d, v%d, v%d" % (HK, HT2, HA, HK))
    if CX:
        e("v_lshrrev_b32 v%d, 3, v%d" % (HA, HL))
        e("v_lshlrev_b32 v%d, 7, v%d" % (HP, HT2))
        e("v_lshl_add_u32 v%d, v%d, 4, v%d" % (HP, HA, HP))
    else:
        e("v_lshlrev_b32 v%d, 4, v%d" % (HP, HL))
    e("s_mov_b32 s%d, %d" % (PN0, (2 if CX else 3) * N0))
    RS = 16
    e.label("L_prep")
    seg_scalars()
    e("s_mov_b32 s%d, s%d" % (PKW, PDC))
    e("s_mov_b32 s%d, s%d" % (PWD, PDC + 3))
    for i in (0, 1, 3, 4):
        e("s_mov_b32 s%d, s%d" % (PDC + i, PDC + i + 1))
    e("s_lshl_b32 s%d, s%d, 3" % (PNEED, PPH))
    e("s_add_u32 s%d, s%d, 1" % (PNEED, PNEED))
    if P["pf"] == 1:
        lds_wait("pf", HZ, HE, PE, L_EV + 4, "s%d" % PNEED, PSP)
        e("v_lshlrev_b32 v%d, 4, v%d" % (HA, HL))
        e("s_mul_i32 s%d, s%d, 2736" % (PE + 1, PM))
        e("s_lshl_b32 s%d, s%d, 16" % (PE, PSG))
        e("s_mul_hi_u32 s%d, s%d, 0xaaaaaaab" % (PE, PE))
        e("s_lshr_b32 s%d, s%d, 5" % (PE, PE))
        e("s_lshl_b32 s%d, s%d, 4" % (PE, PE))
        e("s_add_u32 s%d, s%d, s%d" % (PE, PE, PE + 1))
        if P["pp"]:
            e("s_memrealtime s[%d:%d]" % (PGT, PGT + 1))
            e("s_waitcnt lgkmcnt(0)")
        for a, sr in enumerate((PS2, PS3)):
            if a and P["bs"] & 4:
                e("s_add_u32 s%d, s%d, %d" % (PE + 1, PNEED, P["bz"] - 1))
                lds_wait("pz", HZ, HE, PE + 2, L_EV + 4, "s%d" % (PE + 1), PSP)
            for k in range(3):
                r = HX + 4 * RS + 4 * (a * 3 + k)
                if P["pp"]:
                    twait(PGT, PGT + 2, P["pp"])
                e("buffer_load_dwordx4 v[%d:%d], v%d, s[%d:%d], s%d offen offset:%d%s" % (r, r + 3, HA, sr, sr + 3, PE, k * 1024, " nt" if P["bnt"] & 8 else ""))
    for w, hv in ((PWD, HV),):
        e("s_and_b32 s%d, s%d, 7" % (PE, w))
        e("v_mov_b32 v%d, s%d" % (hv, PE))
        e("s_bitcmp1_b32 s%d, 3" % w)
        e("s_cselect_b64 vcc, -1, 0")
        e("v_cndmask_b32 v%d, v%d, v%d, vcc" % (hv, hv, HT2))
    e("v_xor_b32 v%d, s%d, v%d" % (HG, PNB, HV))
    e("v_lshl_or_b32 v%d, v%d, 3, v%d" % (HG, HT, HG))
    e("s_lshl_b32 s%d, s%d, 6" % (PCH, PSG))
    e("s_mul_i32 s%d, s%d, 768" % (PE + 1, PSG))
    e("s_lshl_b32 s%d, s%d, 2" % (PE + 2, PG0))
    e("s_sub_u32 s%d, s%d, s%d" % (PE + 1, PE + 1, PE + 2))
    e("s_add_u32 s%d, s%d, %d" % (PE + 1, PE + 1, WS_B))
    if P["pace"]:
        e("s_add_u32 s%d, s%d, 4" % (PNEED, PNEED))
        lds_wait("ga", HZ, HE, PE, L_EV + 4, "s%d" % PNEED, PSP)
    else:
        e("s_add_u32 s%d, s%d, 1" % (PNEED, PPH))
        lds_wait("ga", HZ, HE, PE, L_FD, "s%d" % PNEED, PSP)
    def first_token(st):
        e("v_add_u32 v%d, %d, v%d" % (HA, 16 * st, HR))
        e("v_bfe_u32 v%d, v%d, 3, 2" % (HB_, HA))
        e("v_and_or_b32 v%d, v%d, 4, v%d" % (HB_, HA, HB_))
        e("v_xor_b32 v%d, v%d, v%d" % (HB_, HG, HB_))
        e("v_add_u32 v%d, s%d, v%d" % (HA, PCH, HA))
        e("v_lshl_add_u32 v%d, v%d, 5, v%d" % (HC, HA, HB_))
        e("v_lshl_add_u32 v%d, v%d, 4, 1" % (HC, HC))
        e("v_mul_hi_u32 v%d, v%d, s%d" % (HC, HC, PMG))
        e("v_lshrrev_b32 v%d, 1, v%d" % (HC, HC))

    def gathers(st):
        R = HX + RS * st
        e("v_lshrrev_b32 v%d, 1, v%d" % (HF, HC))
        e("v_lshlrev_b32 v%d, 2, v%d" % (HF, HF))
        for b, sr in ((R + 8, PS2), (R + 12, PS3)):
            if P["xkp"] & 8:
                continue
            gnt = " nt" if P["bnt"] & 16 else ""
            if P["gp"]:
                if st == 0 and sr == PS2:
                    e("s_memrealtime s[%d:%d]" % (PGT, PGT + 1))
                    e("s_waitcnt lgkmcnt(0)")
                n = P["gs"]
                for q in range(n):
                    twait(PGT, PGT + 2, P["gp"])
                    if n > 1:
                        mk = ((1 << (64 // n)) - 1) << (64 // n * q)
                        e("s_mov_b32 exec_lo, 0x%x" % (mk & 0xffffffff))
                        e("s_mov_b32 exec_hi, 0x%x" % (mk >> 32))
                    if P["gf"]:
                        e("buffer_load_dwordx4 v[%d:%d], v%d, s[%d:%d], 0 offen %s" % (b, b + 3, HF, sr, sr + 3, P["gf"].replace("x", "")))
                        continue
                    e("buffer_load_dwordx3 v[%d:%d], v%d, s[%d:%d], 0 offen%s" % (b, b + 2, HF, sr, sr + 3, gnt))
                    e("buffer_load_dword v%d, v%d, s[%d:%d], 0 offen offset:12%s" % (b + 3, HF, sr, sr + 3, gnt))
                e("s_mov_b64 exec, -1")
                continue
            e("buffer_load_dwordx3 v[%d:%d], v%d, s[%d:%d], 0 offen%s" % (b, b + 2, HF, sr, sr + 3, gnt))
            if P["pace"] == 2:
                e("s_waitcnt vmcnt(0)")
            e("buffer_load_dword v%d, v%d, s[%d:%d], 0 offen offset:12%s" % (b + 3, HF, sr, sr + 3, gnt))

    for st in range(4):
        R = HX + RS * st
        first_token(st)
        if not P["go"]:
            gathers(st)
        e("v_lshrrev_b32 v%d, 6, v%d" % (R + 6, HC))
        e("v_lshl_add_u32 v%d, v%d, 2, s%d" % (R + 6, R + 6, PE + 1))
        e("v_and_b32 v%d, 15, v%d" % (HD, HC))
        e("v_cmp_eq_u32 s[%d:%d], 5, v%d" % (PSIX + 2 * st, PSIX + 2 * st + 1, HD))
        e("v_and_b32 v%d, 1, v%d" % (R + 7, HC))
        e("v_lshlrev_b32 v%d, 4, v%d" % (R + 7, R + 7))
        if P["pace"] == 1:
            e("s_waitcnt vmcnt(0)")
    e("s_add_u32 s%d, s%d, 1" % (PNEED, PPH))
    if P["fd"]:
        cps = CPK + [48 + c for c in CPV]
        th = [12 * min(j for j, c in enumerate(cps) if c > b) + P["fd"] for b in (16, 32, 48)]
        assert th[2] - th[1] == th[1] - th[0]
        e("s_mul_i32 s%d, s%d, %d" % (PE + 6, PPH, th[1] - th[0]))
        e("s_add_u32 s%d, s%d, %d" % (PE + 6, PE + 6, th[0]))
        lds_wait("fe", HZ, HE, PE, L_TC, "s%d" % (PE + 6), PSP)
    lds_wait("fd", HZ, HE, PE, L_FD, "s%d" % PNEED, PSP)
    e("v_mul_u32_u24 v%d, %d, v%d" % (HA, FSTR, HL))
    e("s_xor_b32 s%d, s%d, s%d" % (PE, PKW, PWD))
    e("s_xor_b32 s%d, s%d, s%d" % (PE, PE, PNB))
    e("s_and_b32 s%d, s%d, 7" % (PE, PE))
    e("v_mov_b32 v%d, s%d" % (HC, PNEED))
    e("s_lshl_b64 vcc, 1, s%d" % PE)
    e("s_or_b32 s%d, s%d, s%d" % (PE, PKW, PWD))
    e("s_bitcmp1_b32 s%d, 3" % PE)
    e("s_cselect_b64 vcc, 0xff, vcc")
    e("s_cmp_eq_u32 s%d, s%d" % (PKW, PWD))
    e("s_cselect_b64 vcc, 0, vcc")
    e("s_max_u32 s%d, s%d, 1" % (PE, PPH))
    e("v_mov_b32 v%d, s%d" % (HD, PE))
    e("v_cndmask_b32 v%d, v%d, v%d, vcc" % (HC, HD, HC))
    e("s_cmp_%s_u32 s%d, 1" % ("eq" if P["jit"] else "ge", PPH))
    e("s_cselect_b64 exec, vcc, 0xff")
    e("s_mov_b32 s%d, 0x40000" % PSP)
    if not P["xkp"] & 64:
        e("s_cbranch_execz L_noflags")
        e.label("L_flags")
        e("buffer_load_dword v%d, v%d, s[%d:%d], s%d offen sc1" % (HB_, HA, PWS, PWS + 3, PGL))
        e("s_sub_u32 s%d, s%d, 1" % (PSP, PSP))
        e("s_cbranch_scc1 L_exit1")
        e("s_waitcnt vmcnt(0)")
        e("v_cmpx_gt_u32 vcc, v%d, v%d" % (HC, HB_))
        e("s_cbranch_execnz L_flags")
        e.label("L_noflags")
    e("s_mov_b64 exec, -1")
    for st in range(4):
        R = HX + RS * st
        if not P["xkp"] & 32:
            e("buffer_load_dword v%d, v%d, s[%d:%d], 0 offen sc1" % (R + 6, R + 6, PWS, PWS + 3))
    e("s_bitcmp1_b32 s%d, 3" % PWD)
    e("s_cselect_b32 s%d, 0, 7" % (PE + 1))
    e("s_xor_b32 s%d, s%d, s%d" % (PE + 2, PKW, PWD))
    e("s_bitcmp1_b32 s%d, 3" % (PE + 2))
    e("s_cselect_b32 s%d, 7, 0" % (PE + 3))
    e("s_and_b32 s%d, s%d, 7" % (PE + 2, PE + 2))
    e("s_and_b32 s%d, s%d, 7" % (PE + 4, PWD))
    if CX:
        e("v_lshrrev_b32 v%d, 3, v%d" % (HA, HL))
        e("v_cmp_gt_u32 vcc, s%d, v%d" % (PN0, HA))
        e("v_and_b32 v%d, s%d, v%d" % (HC, PE + 3, HT2))
        e("v_xor_b32 v%d, s%d, v%d" % (HC, PE + 2, HC))
        e("v_and_b32 v%d, s%d, v%d" % (HB_, PE + 1, HT2))
        e("v_xor_b32 v%d, s%d, v%d" % (HB_, PE + 4, HB_))
        e("v_cndmask_b32 v%d, v%d, v%d, vcc" % (HB_, HC, HB_))
        for k, hv in enumerate((HB_, HC)):
            e("v_cmp_ne_u32 s[%d:%d], 0, v%d" % (PXM + 2 * k, PXM + 2 * k + 1, hv))
            e("v_xor_b32 v%d, s%d, v%d" % (hv, PNB, hv))
            e("v_mad_u32_u24 v%d, v%d, s%d, v%d" % (hv, hv, PIS, HP))
        for st in range(4):
            R = HX + 4 * RS + 4 * st
            if st < 2:
                e("s_mov_b64 exec, s[%d:%d]" % (PXM + 2 * st, PXM + 2 * st + 1))
            if not P["xkp"] & 128:
                e("buffer_load_dwordx4 v[%d:%d], v%d, s[%d:%d], s%d offen offset:%d sc1" %
                  (R, R + 3, HC if st else HB_, PWS, PWS + 3, PIM, st * 1024))
        e("s_mov_b64 exec, -1")
    else:
        e("s_add_u32 s%d, s%d, 4096" % (PE + 5, PIM))
        for k in range(6):
            R = HX + 4 * RS + 4 * k
            e("v_add_u32 v%d, %d, v%d" % (HA, 64 * k, HL))
            e("v_mul_u32_u24 v%d, 1366, v%d" % (HB_, HA))
            e("v_lshrrev_b32 v%d, 16, v%d" % (HB_, HB_))
            e("v_mul_u32_u24 v%d, 48, v%d" % (HC, HB_))
            e("v_sub_u32 v%d, v%d, v%d" % (HA, HA, HC))
            e("v_cmp_gt_u32 vcc, s%d, v%d" % (PN0, HA))
            e("v_and_b32 v%d, s%d, v%d" % (HC, PE + 3, HB_))
            e("v_xor_b32 v%d, s%d, v%d" % (HC, PE + 2, HC))
            e("v_and_b32 v%d, s%d, v%d" % (HB_, PE + 1, HB_))
            e("v_xor_b32 v%d, s%d, v%d" % (HB_, PE + 4, HB_))
            e("v_cndmask_b32 v%d, v%d, v%d, vcc" % (HC, HC, HB_))
            e("v_cmp_ne_u32 s[%d:%d], 0, v%d" % (PXM + 2 * k, PXM + 2 * k + 1, HC))
            e("v_xor_b32 v%d, s%d, v%d" % (HC, PNB, HC))
            e("v_mad_u32_u24 v%d, v%d, s%d, v%d" % (HC, HC, PIS, HPG))
            if XZ:
                e("s_add_u32 s%d, s%d, %d" % (PE + 5, PIM, img_k(k)))
            if P["fr"]:
                if k == 0:
                    e("s_memrealtime s[%d:%d]" % (PGT, PGT + 1))
                    e("s_waitcnt lgkmcnt(0)")
                twait(PGT, PGT + 2, P["fr"])
            e("s_mov_b64 exec, s[%d:%d]" % (PXM + 2 * k, PXM + 2 * k + 1))
            if XZ:
                e("buffer_load_dwordx4 v[%d:%d], v%d, s[%d:%d], s%d offen sc1" % (R, R + 3, HC, PWS, PWS + 3, PE + 5))
            elif not P["xkp"] & 128:
                e("buffer_load_dwordx4 v[%d:%d], v%d, s[%d:%d], s%d offen offset:%d sc1" %
                  (R, R + 3, HC, PWS, PWS + 3, PE + 5 if k >= 4 else PIM, (k % 4) * 1024))
            e("s_mov_b64 exec, -1")
        e("s_waitcnt vmcnt(0)")
        for k in range(6):
            R = HX + 4 * RS + 4 * k
            e("s_mov_b64 exec, s[%d:%d]" % (PXM + 2 * k, PXM + 2 * k + 1))
            e("ds_write_b128 v%d, v[%d:%d] offset:%d" % (HP, R, R + 3, L_LG + k * 1024))
        e("s_mov_b64 exec, -1")
    if P["go"]:
        for st in range(4):
            first_token(st)
            gathers(st)
    for st in range(4):
        R = HX + RS * st
        for c in range(3):
            e("ds_read_b64 v[%d:%d], v%d offset:%d" % (R + 2 * c, R + 2 * c + 1, HK, L_LG + st * 192 + 8 * c))
    e("s_mov_b32 s%d, 0" % PN0)
    e("v_mov_b32 v%d, 0x%08x" % (HB_, BIGNEG))
    e("v_mov_b32 v%d, 0x%08x" % (HA, BIGNEG))
    e("s_waitcnt vmcnt(0) lgkmcnt(0)")
    if CX:
        for st in range(4):
            R = HX + RS * st
            Q = HX + 4 * RS + 4 * st
            if st < 2:
                e("s_mov_b64 exec, s[%d:%d]" % (PXM + 2 * st, PXM + 2 * st + 1))
            for k in range(6):
                e("v_fma_mix_f32 v%d, v%d, 1.0, v%d op_sel:[%d,0,0] op_sel_hi:[1,0,0]" % (R + k, Q + 1 + k // 2, Q, k & 1))
            e("v_cmp_lt_f32 vcc, v%d, v%d" % (Q, R + 5))
            e("v_cndmask_b32 v%d, v%d, v%d, vcc" % (R + 5, R + 5, HZ))
        e("s_mov_b64 exec, -1")
    for st in range(4):
        R = HX + RS * st
        for k in range(6):
            e("v_sub_f32 v%d, v%d, v%d" % (R + k, R + k, R + 6))
        for k in range(6):
            e("v_mul_f32 v%d, s%d, v%d" % (R + k, PCC, R + k))
        e("v_cndmask_b32 v%d, v%d, v%d, s[%d:%d]" % (R + 5, HB_, R + 5, PSIX + 2 * st, PSIX + 2 * st + 1))
        for k in range(0, 6, 2):
            e("v_max3_f32 v%d, v%d, v%d, v%d" % (HA, HA, R + k, R + k + 1))
        for b in (R + 8, R + 12):
            for k in range(3):
                e("v_alignbit_b32 v%d, v%d, v%d, v%d" % (b + k, b + k + 1, b + k, R + 7))

    wave_reduce([HA], "v_max_f32", [HB_])
    e("v_mov_b32 v%d, 0" % HB_)
    e("v_mov_b32 v%d, 0" % HC)
    for st in range(4):
        R = HX + RS * st
        for k in range(6):
            e("v_sub_f32 v%d, v%d, v%d" % (R + k, R + k, HA))
        for k in range(6):
            e("v_exp_f32 v%d, v%d" % (R + k, R + k))
        for k in range(6):
            e("v_add_f32 v%d, v%d, v%d" % (HB_, HB_, R + k))
            if k & 1:
                e("v_and_b32 v%d, 0xffff0000, v%d" % (HE, R + 8 + k // 2))
                e("v_and_b32 v%d, 0xffff0000, v%d" % (HF, R + 12 + k // 2))
            else:
                e("v_lshlrev_b32 v%d, 16, v%d" % (HE, R + 8 + k // 2))
                e("v_lshlrev_b32 v%d, 16, v%d" % (HF, R + 12 + k // 2))
            e("v_mul_f32 v%d, v%d, v%d" % (R + k, R + k, HE))
            e("v_fmac_f32 v%d, v%d, v%d" % (HC, R + k, HF))
        e("ds_write_b128 v%d, v[%d:%d] offset:%d" % (HN, R, R + 3, L_PV + st * 2048))
        e("ds_write_b64 v%d, v[%d:%d] offset:%d" % (HN, R + 4, R + 5, L_PV + st * 2048 + 16))
    wave_reduce([HB_, HC], "v_add_f32", [HE, HF])
    e("s_lshl_b32 s%d, s%d, 2" % (PE, PPH))
    e("v_mov_b32 v%d, s%d" % (HE, PE))
    e("v_lshlrev_b32 v%d, 2, v%d" % (HF, HE))
    e("v_mov_b32 v%d, s%d" % (HD, PWD))
    e("s_mov_b64 exec, 1")
    e("ds_write_b128 v%d, v[%d:%d] offset:%d" % (HF, HA, HD, L_ML))
    e("ds_write_b32 v%d, v%d offset:%d" % (HE, HD, L_GO))
    if FU:
        e("s_lshl_b32 s%d, s%d, 8" % (PE, PPH))
        e("s_add_u32 s%d, s%d, s2" % (PE, PE))
        e("s_lshl_b32 s%d, s%d, 6" % (PE, PE))
        e("s_add_u32 s%d, s%d, %d" % (PE, PE, WS_ML))
        e("buffer_store_dwordx4 v[%d:%d], off, s[%d:%d], s%d sc1" % (HA, HD, PWS, PWS + 3, PE))
    e("s_mov_b64 exec, -1")
    e("v_add_u32 v%d, 8192, v%d" % (HN, HN))
    e("v_add_u32 v%d, %d, v%d" % (HK, PHI, HK))
    if CX:
        e("s_add_u32 s%d, s%d, %d" % (PIM, PIM, PHS))
    else:
        e("v_add_u32 v%d, %d, v%d" % (HP, PHI, HP))
        if PHS != PHI:
            e("s_add_u32 s%d, s%d, %d" % (PIM, PIM, PHS if XZ else PHS - PHI))
    e("s_add_u32 s%d, s%d, 1" % (PPH, PPH))
    e("s_cmp_lt_u32 s%d, 3" % PPH)
    e("s_cbranch_scc1 L_prep")
    e("s_mov_b32 s%d, 0" % PPH)
    e("v_lshlrev_b32 v%d, 2, v%d" % (HR, HL))
    e("v_add_u32 v%d, %d, v%d" % (HG, L_ACC, HR))
    e("v_lshlrev_b32 v%d, 4, v%d" % (HK, HL))
    e("v_mov_b32 v%d, 1" % (HX + 15))
    e.label("L_merge")
    e("s_lshl_b32 s%d, s%d, 2" % (PE, PPH))
    e("v_mov_b32 v%d, s%d" % (HW, PE))
    e("v_lshlrev_b32 v%d, 2, v%d" % (HF, HW))
    e("ds_read_b128 v[%d:%d], v%d offset:%d" % (HA, HD, HF, L_ML))
    e("s_lshl_b32 s%d, s%d, 8" % (PSG, PPH))
    e("s_add_u32 s%d, s%d, s2" % (PSG, PSG))
    e("s_lshl_b32 s%d, s%d, 10" % (PSG, PSG))
    lds_wait("m", HZ, HE, PE, L_CA, "4", PSP, HW)
    for kk in range(3):
        for w in range(NW):
            e("ds_read_b32 v%d, v%d offset:%d" % (HX + kk * NW + w, HG, w * ROWB + kk * 256))
    for kk in range(3):
        b = HX + kk * NW
        e("s_waitcnt lgkmcnt(%d)" % (8 - 4 * kk))
        e("v_add_f32 v%d, v%d, v%d" % (b, b, b + 1))
        e("v_add_f32 v%d, v%d, v%d" % (b + 2, b + 2, b + 3))
        e("v_sub_f32 v%d, v%d, v%d" % (b, b, HC))
        if FU:
            e("v_add_f32 v%d, v%d, v%d" % (HX + 12 + kk, b, b + 2))
            continue
        e("v_add_f32 v%d, v%d, v%d" % (b, b, b + 2))
        e("buffer_store_dword v%d, v%d, s[%d:%d], s%d offen offset:%d" % (b, HR, PWS, PWS + 3, PSG, kk * 256))
    if FU:
        e("buffer_store_dwordx4 v[%d:%d], v%d, s[%d:%d], s%d offen sc1" % (HX + 12, HX + 15, HK, PWS, PWS + 3, PSG))
    else:
        e("s_mov_b64 exec, 1")
        e("buffer_store_dwordx2 v[%d:%d], off, s[%d:%d], s%d offset:%d" % (HA, HB_, PWS, PWS + 3, PSG, DH * 4))
        e("s_mov_b64 exec, -1")
    e("v_add_u32 v%d, %d, v%d" % (HG, NW * ROWB, HG))
    e("s_add_u32 s%d, s%d, 1" % (PPH, PPH))
    e("s_cmp_lt_u32 s%d, %d" % (PPH, 2 if 0 < P["fc"] < 4 else 3))
    e("s_cbranch_scc1 L_merge")
    if 0 < P["fc"] < 4:
        last_gather()
    if P["stamp"] == 5:
        e("s_memrealtime s[%d:%d]" % (PT, PT + 1))
        e("s_waitcnt vmcnt(0)")
        e("s_memrealtime s[%d:%d]" % (PT + 2, PT + 3))
        srd(PS2, 82, 0x8000000)
        e("s_waitcnt lgkmcnt(0)")
        e("v_mov_b32 v%d, s%d" % (HX, PT))
        e("v_mov_b32 v%d, s%d" % (HX + 1, PT + 2))
        e("s_lshl_b32 s%d, s2, 3" % PE)
        e("s_add_u32 s%d, s%d, 0x400a000" % (PE, PE))
        e("s_mov_b64 exec, 1")
        e("buffer_store_dwordx2 v[%d:%d], off, s[%d:%d], s%d" % (HX, HX + 1, PS2, PS2 + 3, PE))
    e("s_endpgm")

    main_text = e.text()
    if P["nts"]:
        ls = []
        for l in main_text.split("\n"):
            w = l.split()
            if w and w[-1] == "sc1":
                big = w[0].endswith("x4")
                bit = (1 if big else 2) if w[0].startswith("buffer_store") else (4 if big else 8)
                if P["nts"] & bit:
                    l += " nt"
            ls.append(l)
        main_text = "\n".join(ls)
    RPW = 24
    k2 = NAME + "_kernel"
    e.lines.append(".globl %s" % k2)
    e.lines.append(".p2align 8")
    e.lines.append(".type %s,@function" % k2)
    e.lines.append(k2 + ":")
    e.wr = {}; e.tr = {}; e.sw = {}
    e("s_cmp_ge_u32 s2, %d" % H)
    e("s_cbranch_scc1 L_exit2")
    e("s_load_dwordx2 s[4:5], s[0:1], 56")
    e("s_load_dwordx2 s[6:7], s[0:1], 72")
    e("v_lshlrev_b32 v1, 2, v0")
    e("v_mov_b32 v2, 0")
    e("s_mul_i32 s16, s2, %d" % (RPW * PART_STRIDE))
    e("s_mov_b32 s10, %d" % (3 * NWG * PART_STRIDE))
    e("s_mov_b32 s11, 0x00020000")
    e("s_mov_b32 s14, %d" % (H * DH * 2))
    e("s_mov_b32 s15, 0x00020000")
    for k in range(1, RPW // 4):
        e("s_add_u32 s%d, s16, %d" % (16 + k, 4 * k * PART_STRIDE))
    e("s_waitcnt lgkmcnt(0)")
    e("s_mov_b32 s8, s6")
    e("s_and_b32 s9, s7, 0xffff")
    e("s_mov_b32 s12, s4")
    e("s_and_b32 s13, s5, 0xffff")
    MLB = 8
    OB = MLB + 2 * RPW
    for s in range(RPW):
        so = 16 + s // 4
        e("buffer_load_dwordx2 v[%d:%d], v2, s[8:11], s%d offen offset:%d" %
          (MLB + 2 * s, MLB + 2 * s + 1, so, (s % 4) * PART_STRIDE + DH * 4))
        e("buffer_load_dword v%d, v1, s[8:11], s%d offen offset:%d" % (OB + s, so, (s % 4) * PART_STRIDE))
    e("s_waitcnt vmcnt(0)")
    e("v_mov_b32 v4, v%d" % MLB)
    for s in range(1, RPW):
        e("v_max_f32 v4, v4, v%d" % (MLB + 2 * s))
    for s in range(RPW):
        e("v_sub_f32 v%d, v%d, v4" % (MLB + 2 * s, MLB + 2 * s))
    for s in range(RPW):
        e("v_exp_f32 v%d, v%d" % (MLB + 2 * s, MLB + 2 * s))
    e("v_mul_f32 v5, v%d, v%d" % (MLB, MLB + 1))
    e("v_mul_f32 v6, v%d, v%d" % (MLB, OB))
    for s in range(1, RPW):
        e("v_fmac_f32 v5, v%d, v%d" % (MLB + 2 * s, MLB + 2 * s + 1))
        e("v_fmac_f32 v6, v%d, v%d" % (MLB + 2 * s, OB + s))
    e("v_rcp_f32 v5, v5")
    e("v_mul_f32 v6, v6, v5")
    e("v_cvt_pk_bf16_f32 v6, v6, v6")
    e("s_mul_i32 s16, s2, %d" % (DH * 2))
    e("v_lshrrev_b32 v1, 1, v1")
    e("buffer_store_short v6, v1, s[12:15], s16 offen")
    e.lines.append("L_exit2:")
    e("s_endpgm")
    NV2 = OB + RPW

    def kd(name, nv, ns):
        acc = (nv + 3) // 4 * 4
        return """.amdhsa_kernel %s
  .amdhsa_next_free_vgpr %d
  .amdhsa_next_free_sgpr %d
  .amdhsa_accum_offset %d
  .amdhsa_group_segment_fixed_size 0
  .amdhsa_kernarg_size 80
  .amdhsa_user_sgpr_count 2
  .amdhsa_user_sgpr_kernarg_segment_ptr 1
  .amdhsa_system_sgpr_workgroup_id_x 1
.end_amdhsa_kernel
""" % (name, nv, ns, acc)

    diag = ""
    if P["diag"]:
        d = Emit4()
        d.lines += [".globl diag_kernel", ".p2align 8", ".type diag_kernel,@function", "diag_kernel:"]
        d("s_cmp_ge_u32 s2, 1")
        d("s_cbranch_scc1 L_dx")
        d("s_load_dwordx2 s[6:7], s[0:1], 72")
        d("s_memrealtime s[16:17]")
        d("v_lshlrev_b32 v1, 4, v0")
        d("s_mov_b32 s10, 0x8000000")
        d("s_mov_b32 s11, 0x00020000")
        d("s_waitcnt lgkmcnt(0)")
        d("s_mov_b32 s8, s6")
        d("s_and_b32 s9, s7, 0xffff")
        for k in range(16):
            d("s_mov_b32 s12, 0x%x" % (0x4000000 + k * 1024))
            d("buffer_load_dwordx4 v[%d:%d], v1, s[8:11], s12 offen" % (4 + 4 * k, 7 + 4 * k))
        d("s_waitcnt vmcnt(0)")
        d("v_readfirstlane_b32 s13, v4")
        d("v_mov_b32 v2, 0")
        d("v_mov_b32 v3, 0")
        for k in range(16):
            d("v_subrev_u32 v%d, s13, v%d" % (4 + 4 * k, 4 + 4 * k))
            d("v_subrev_u32 v%d, s13, v%d" % (5 + 4 * k, 4 + 4 * k + (P["diag"] & 3)))
            d("v_min_i32 v2, v2, v%d" % (4 + 4 * k))
            d("v_%s v3, v3, v%d" % ("add_u32" if P["diag"] & 128 else "max_i32", 5 + 4 * k))
        d("s_mov_b32 s14, 0")
        d("s_mov_b32 s15, 0")
        for l in range(64):
            d("v_readlane_b32 s18, v2, %d" % l)
            d("v_readlane_b32 s19, v3, %d" % l)
            d("s_nop 3")
            d("s_min_i32 s14, s14, s18")
            d("s_%s s15, s15, s19" % ("add_u32" if P["diag"] & 128 else "max_i32"))
        if P["diag"] & 128:
            d("s_ashr_i32 s15, s15, 10")
        if P["diag"] & 96:
            d("s_mov_b32 s12, 0x4100000")
            d("buffer_load_dwordx4 v[8:11], off, s[8:11], s12")
            d("v_readfirstlane_b32 s18, v6")
            d("s_waitcnt vmcnt(0)")
            d("v_readfirstlane_b32 s19, v8")
            d("v_readfirstlane_b32 s20, v9")
            d("v_readfirstlane_b32 s21, v10")
            d("s_and_b32 s18, s18, %d" % P["dth"])
            d("s_min_u32 s18, s18, 1")
            d("s_cmp_eq_u32 s19, 0x13572468")
            d("s_cselect_b32 s20, s20, 0")
            d("s_cselect_b32 s21, s21, 0")
            d("s_add_u32 s20, s20, s18")
            d("s_add_u32 s21, s21, 1")
            d("v_mov_b32 v8, 0x13572468")
            d("v_mov_b32 v9, s20")
            d("v_mov_b32 v10, s21")
            d("s_mov_b64 exec, 1")
            d("buffer_store_dwordx4 v[8:11], off, s[8:11], s12")
            d("s_mov_b32 s15, s%d" % (20 if P["diag"] & 32 else 21))
        elif P["diag"] & 8:
            d("s_load_dwordx2 s[20:21], s[0:1], 64")
            d("s_waitcnt lgkmcnt(0)")
            d("s_sub_u32 s20, s20, 512")
            d("s_subb_u32 s21, s21, 0")
            d("s_load_dword s15, s[20:21], 0")
            d("s_waitcnt lgkmcnt(0)")
            d("s_and_b32 s15, s15, 0xffffff")
            d("s_sub_u32 s15, s15, %d" % (48 * 65536))
            d("s_abs_i32 s15, s15")
            d("s_lshr_b32 s15, s15, 2")
            if P["diag"] & 16:
                d("s_cmp_lt_u32 s15, %d" % (P["dth"] // 4))
                d("s_cselect_b32 s15, 3000, 0")
                d("s_and_b32 s14, s16, 0xf0")
                d("s_cmp_lt_u32 s14, %d" % (16 * P["drn"]))
                d("s_cselect_b32 s15, 3000, s15")
        elif P["diag"] & 4:
            d("s_sub_u32 s14, s16, s13")
            d("s_sub_u32 s15, s14, s15")
        else:
            d("s_sub_u32 s15, s15, s14")
        d("s_sub_u32 s15, s15, %d" % P["doff"])
        d("s_max_i32 s15, s15, 0")
        d("s_min_i32 s15, s15, 10000")
        d("s_mul_i32 s15, s15, %d" % P["dmul"])
        d("s_add_u32 s15, s15, s16")
        d.label("L_dl")
        d("s_memrealtime s[18:19]")
        d("s_waitcnt lgkmcnt(0)")
        d("s_sub_u32 s18, s18, s15")
        d("s_cmp_lt_i32 s18, 0")
        d("s_cbranch_scc1 L_dl")
        d.lines.append("L_dx:")
        d("s_endpgm")
        diag = d.text()
    out = HEADER.replace("gen.py", "gen6.py").format(params=" ".join("%s=%s" % kv for kv in sorted(P.items())))
    if FU:
        out += "; @launch kernel=%s grid=(%d,1,1) block=(%d,1,1) lds=%d\n" % (k1, NWG, (NW + NHX) * 64, LDS1)
    else:
        out += "; @launch kernel=%s grid=(%d,1,1) block=(%d,1,1) lds=%d\n" % (k1, NWG, (NW + NHX) * 64, LDS1)
        out += "; @launch kernel=%s grid=(%d,1,1) block=(%d,1,1) lds=%d\n" % (k2, H, DH, 0)
    if diag:
        out += "; @launch kernel=diag_kernel grid=(1,1,1) block=(64,1,1) lds=0\n"
    out += '.amdgcn_target "amdgcn-amd-amdhsa--gfx950"\n.text\n'
    out += main_text if FU else e.text()
    out += diag
    out += '.section .rodata,"a"\n.p2align 6\n'
    out += kd(k1, NVGPR + (8 if P["xb"] else 2 if P["stamp"] == 5 else 0), 102)
    if not FU:
        out += ".p2align 6\n"
        out += kd(k2, NV2, 24)
    if diag:
        out += ".p2align 6\n"
        out += kd("diag_kernel", 72, 24)
    return out


DEFAULTS = dict(grp="6-6-6", n0=3, trg=1, ta=14, tb=15, jit=1, pace=1, nr0=1, nr=7, nt="nt", ldspad=0, stamp=0, xkp=0, force=0, clip=1400,
                l2t=290, th=200, pf=1, ob=2, ox=0, ds=1, td=3, tdm=3, fuse=1, cw=1,
                lx=0, wo=0, ns0=4, tw=4, ov="0000", st="sc1", xv="", h4=0, bnt=0, vw=1, at=1, tc=40, tg=2, te=44, aq=16, ka=9, kb=2048, dmin=0, dmax=11,
                bc=1, cpk="9-17-25-33-41", cpv="1-9-17-25-33", rd=2, ka2=8, kb2=512, bmax=6, be=1, pw=2, il=1, xp=0, ss=0, eb=0, pfi=0, hs=0, l2p=0, gts="16-32-48-64-80", gn=8, gtol=10, gcap=1000, gq=0, gl2=0, xb=0, diag=0, doff=20000, dmul=8, fc=4, elk=1, cd=9, fd=0, prio=0, bp=0, bp0=0, bq=0, wl=2048, wt=9984, sw=1, dc=1, xs=0, cx=1, fb=0, ib=0, dth=4800, drn=6, ut=0, wb=0, nts=0, wg=8192, wm=896, wbi=1152, lb=1, pb=1, cl2=100, th1=10, th0=10, lm=7, tt=0, tx=1584, d3=33, xa=200, xn=4, bt=0, bt0=0, be1=0, gp=140, gs=2, pp=0, go=1, fw=0, fr=0, xz=0, xr=15, ef=0, gf="", pol=0, ro=2, bs=0, bz=5, bz0=1, rx=0)


def main():
    P = dict(DEFAULTS)
    outp = None
    args = sys.argv[1:]
    i = 0
    while i < len(args):
        a = args[i]
        if a == "-o":
            outp = args[i + 1]; i += 2; continue
        k, v = a.split("=", 1)
        assert k in P, k
        P[k] = type(P[k])(v.replace("+", " ")) if isinstance(P[k], str) else int(v)
        i += 1
    s = gen(P)
    if outp:
        open(outp, "w").write(s)
    else:
        sys.stdout.write(s)


if __name__ == "__main__":
    main()
```

```python
import re
import sys
import math
from gen import f32hex, HEADER, NAME, H, SKV, DH, G, NGRP, ROWB, HEADB
from gen4 import Emit4

PART_STRIDE = 1024
NW = 4
NH = 3
NWG = 256
NT = 48
WS_G = 8 << 20
FSTR = 4096 + 256
WS_ML = 0xe0000
WS_B = 0x120000
WS_L = 2 << 20
WS_T = 0x9c0000
WS_SIZE = 10 << 20
BIGNEG = 0xf149f2ca


def gen(P):
    global WS_L, WS_T, WS_G, WS_ML, WS_B
    WS_L = P["wl"] << 10
    WS_T = P["wt"] << 10
    WS_G = P["wg"] << 10
    WS_ML = P["wm"] << 10
    WS_B = P["wbi"] << 10
    assert P["sw"] or not P["dc"]
    GR = [int(x) for x in P["grp"].split("-")]
    assert sum(GR) == 18 and len(GR) >= 2
    NG = len(GR)
    GOFF = [sum(GR[:k]) for k in range(NG)]
    OV = [int(x) for x in P["ov"]]
    N0 = P["n0"]
    NR = P["nr"]
    TRG1 = N0 - P["trg"]
    TA = P["ta"]
    TB = P["tb"]
    assert (2 <= TRG1 < N0 or P["force"] >= 2 or P["pt"] and TRG1 == N0) and N0 < TA < TB < 16 and 1 <= NR <= 7 and N0 <= 8
    pol = (" " + P["nt"]) if P["nt"] else ""
    C = (DH ** -0.5) * math.log2(math.e)
    L_DEC = 0
    L_GO = 24
    L_PC = 36
    L_CF = 40
    L_FD = 52
    L_EV = 56
    L_CA = 64
    L_ML = 80
    L_TC = 128
    L_TD = 132
    L_EL = 136
    L_PF = 140
    L_TM = 144
    L_GT = 208
    L_LG = 256
    PHI = 6144
    IMG = 3 * PHI
    L_PV = L_LG + IMG
    L_ACC = L_PV + 192 * 128
    LDS1 = max(L_ACC + 3 * NW * ROWB, P["ldspad"])

    e = Emit4()
    V_T = 1; V_J16 = 2; V_J8 = 3; V_LB0 = 4; V_PB0 = 5; V_PV = 6; V_PVN = 7; V_DO = 8; V_PO = 9; V_T0 = 10; V_T1 = 11
    V_ACC = 12; V_W = 24; V_RAW = 36
    V_OFF = 48; V_OFF6 = 49; V_TM = 50; V_BIG = 51; V_T2 = 52; V_Z = 53
    V_S = 54
    V_D = 60
    V_T128 = 62; V_TMX = 63
    V_RING = 64
    NVGPR = V_RING + 72
    S_G = 3; S_M = 4; S_N = 5; S_SPIN = 6; S_LDC = 7
    S_K = 8; S_V = 12; S_KS = 16; S_Q = 20; S_WS = 24
    S_WAVE = 28; S_CI = 29; S_I = 30; S_QOFF = 31
    S_T = 32
    S_EV = 40; S_STM = 42; S_HB = 44; S_768 = 45; S_384 = 46; S_MAGIC = 47
    S_NB = 48; S_TD = 49; S_XB = 50; S_LB = 53
    S_ST = 54; S_DBG = 56
    S_BO = 59; S_TW = 60; S_CPA = 62; S_NBO = 63; S_BP = 72; S_TH = 73; S_TT = 74
    S_MP = 64; S_MG = 66; S_MR = 68; S_MO = 70
    BC = P["bc"]
    NHX = NH + (1 if BC else 0)
    CPK = [int(x) for x in P["cpk"].split("-")] if BC and P["cpk"] else []
    CPV = [int(x) for x in P["cpv"].split("-")] if BC and P["cpv"] else []
    if BC:
        CPV.append(P["tc"])
        assert P["te"] == P["tc"] + P["tg"] + P["rd"] and len(CPK) + len(CPV) <= 16

    GTS = [int(x) for x in P["gts"].split("-")] if BC and P["gts"] else []

    def set_masks(ev, cps):
        mp = sum(1 << c for c in cps)
        allm = [(S_EV, ev | mp | (mp << P["tg"]) | (mp << (P["tg"] + P["rd"])))]
        if BC:
            allm += [(S_MP, mp), (S_MG, mp << P["tg"]), (S_MR, mp << (P["tg"] + P["rd"])), (S_MO, ev)]
        for r, v in allm:
            assert v < (1 << 48)
            e("s_mov_b32 s%d, 0x%x" % (r, v & 0xffffffff))
            e("s_mov_b32 s%d, 0x%x" % (r + 1, v >> 32))

    FU = P["fuse"]
    k1 = NAME + "_kernel" if FU else "part_kernel"
    e.lines.append(".globl %s" % k1)
    e.lines.append(".p2align 8")
    e.lines.append(".type %s,@function" % k1)
    e.lines.append(k1 + ":")
    e("s_cmp_ge_u32 s2, %d" % NWG)
    e("s_cbranch_scc1 L_exit1")
    e("s_load_dwordx16 s[64:79], s[0:1], 0")
    e("s_load_dwordx4 s[80:83], s[0:1], 64")
    if P["stamp"]:
        e("s_memrealtime s[%d:%d]" % (S_ST, S_ST + 1))
    e("v_lshrrev_b32 v%d, 6, v0" % V_T0)
    e("v_and_b32 v%d, 63, v0" % V_T1)
    e("v_readfirstlane_b32 s%d, v%d" % (S_WAVE, V_T0))
    if P["eb"] == 4:
        e("v_lshlrev_b32 v%d, 2, v%d" % (V_T0, V_T1))
        e("v_mov_b32 v%d, 0" % V_Z)
        e("ds_write_b32 v%d, v%d" % (V_T0, V_Z))
    e("s_lshr_b32 s%d, s2, 3" % S_G)
    e("s_and_b32 s%d, s2, 7" % S_M)
    e("s_lshr_b32 s%d, s2, 6" % S_T)
    e("s_xor_b32 s%d, s%d, s%d" % (S_T, S_T, S_M))
    e("s_lshr_b32 s%d, s%d, 1" % (S_NB, S_T))
    e("s_and_b32 s%d, s%d, 1" % (S_T, S_T))
    e("s_lshl_b32 s%d, s%d, 2" % (S_T, S_T))
    e("s_or_b32 s%d, s%d, s%d" % (S_NB, S_NB, S_T))
    if P["eb"] != 4:
        e("s_cmp_ge_u32 s%d, %d" % (S_WAVE, NW))
        e("s_cbranch_scc1 L_helper")

    def srd(dst, ptr, nbytes):
        e("s_mov_b32 s%d, s%d" % (dst, ptr))
        e("s_and_b32 s%d, s%d, 0xffff" % (dst + 1, ptr + 1))
        e("s_mov_b32 s%d, %d" % (dst + 2, nbytes))
        e("s_mov_b32 s%d, 0x00020000" % (dst + 3))

    def srd_ws(dst):
        srd(dst, 82, WS_SIZE)
        if P["wo"]:
            e("s_add_u32 s%d, s%d, %d" % (dst, dst, P["wo"] << 10))
            e("s_addc_u32 s%d, s%d, 0" % (dst + 1, dst + 1))

    def lds_wait(tag, vz, vt, st, off, cond, spin, vaddr=None):
        e("s_mov_b32 s%d, 0x100000" % spin)
        e.label("L_w" + tag)
        e("ds_read_b32 v%d, v%d offset:%d" % (vt, vz if vaddr is None else vaddr, off))
        e("s_sub_u32 s%d, s%d, 1" % (spin, spin))
        e("s_cbranch_scc1 L_exit1")
        e("s_waitcnt lgkmcnt(0)")
        e("v_readfirstlane_b32 s%d, v%d" % (st, vt))
        if cond == "nz":
            e("s_cmp_eq_u32 s%d, 0" % st)
        else:
            e("s_cmp_lt_u32 s%d, %s" % (st, cond))
        e("s_cbranch_scc1 L_w" + tag)

    TWN = [0]

    def twait(dl, tmp, step):
        TWN[0] += 1
        e.label("L_tw%d" % TWN[0])
        e("s_memrealtime s[%d:%d]" % (tmp, tmp + 1))
        e("s_waitcnt lgkmcnt(0)")
        e("s_sub_u32 s%d, s%d, s%d" % (tmp + 1, tmp, dl))
        e("s_cmp_lt_i32 s%d, 0" % (tmp + 1))
        e("s_cbranch_scc1 L_tw%d" % TWN[0])
        e("s_add_u32 s%d, s%d, %d" % (dl, tmp, step))

    def gate(b, tag, check):
        if b not in GTS:
            return
        if check:
            e("s_cmp_eq_u32 s%d, %d" % (S_I, b % 48))
            e("s_cbranch_scc0 L_gx" + tag)
        e("s_memrealtime s[%d:%d]" % (S_T + 4, S_T + 5))
        lds_wait("g" + tag, V_Z, V_T0, S_T, L_GT + 4 * GTS.index(b), "nz", S_SPIN)
        e("s_and_b32 s%d, s%d, 0xffff" % (S_T, S_T))
        e("s_cbranch_scc0 L_gx" + tag)
        if P["stamp"] == 5:
            e("s_lshl_b32 s%d, s%d, 16" % (S_T + 1, S_T))
            e("s_add_u32 s%d, s%d, s%d" % (S_NBO, S_NBO, S_T + 1))
        e("s_add_u32 s%d, s%d, s%d" % (S_T, S_T, S_T + 4))
        e.label("L_gl" + tag)
        e("s_memrealtime s[%d:%d]" % (S_T + 4, S_T + 5))
        e("s_waitcnt lgkmcnt(0)")
        e("s_sub_u32 s%d, s%d, s%d" % (S_T + 4, S_T + 4, S_T))
        e("s_cmp_lt_i32 s%d, 0" % (S_T + 4))
        e("s_cbranch_scc1 L_gl" + tag)
        e.label("L_gx" + tag)

    def get_table(kind, tag):
        if tag == "tv":
            gate(48, tag, False)
        else:
            for b in ((16, 32) if kind == "K" else (64, 80)):
                gate(b, "%s%d" % (tag, b), True)
        e("s_lshr_b32 s%d, s%d, 4" % (S_T + 1, S_I))
        e("s_lshl_b32 s%d, s%d, 2" % (S_T + 2, S_T + 1))
        if P["stamp"] == 6:
            e("s_memrealtime s[%d:%d]" % (S_T + 4, S_T + 5))
            e("s_lshl_b32 s%d, s2, 2" % S_T)
            e("s_add_u32 s%d, s%d, s%d" % (S_T, S_T, S_WAVE))
            e("s_cmp_eq_u32 s%d, 400" % S_T)
            e("s_cselect_b64 exec, 1, 0")
            e("s_waitcnt lgkmcnt(0)")
            e("s_sub_u32 s%d, s%d, s%d" % (S_T + 4, S_T + 4, S_ST))
            e("v_mov_b32 v%d, s%d" % (V_T1, S_T + 4))
            e("buffer_store_dword v%d, off, s[%d:%d], s%d offset:%d" % (V_T1, S_WS, S_WS + 3, S_T + 2, 40 if kind == "K" else 52))
            e("s_mov_b64 exec, -1")
        e("v_mov_b32 v%d, s%d" % (V_T1, S_T + 2))
        if kind == "K":
            load_q(S_T + 1, False)
        lds_wait(tag, V_Z, V_T0, S_T, L_DEC if kind == "K" else L_GO, "nz", S_SPIN, V_T1)
        e("s_and_b32 s%d, s%d, 7" % (S_N, S_T))
        e("s_xor_b32 s%d, s%d, s%d" % (S_N, S_N, S_NB))
        e("s_bitcmp1_b32 s%d, 3" % S_T)
        e("s_cselect_b64 vcc, -1, 0")
        e("v_cndmask_b32 v%d, v%d, v%d, vcc" % (V_TM, V_T128, V_TMX))

    def load_q(ph, track):
        e("s_lshl_b32 s%d, s%d, 5" % (S_QOFF, ph))
        e("s_add_u32 s%d, s%d, s%d" % (S_QOFF, S_QOFF, S_G))
        e("s_mul_i32 s%d, s%d, 171" % (S_QOFF, S_QOFF))
        e("s_lshr_b32 s%d, s%d, 9" % (S_QOFF, S_QOFF))
        e("s_mul_i32 s%d, s%d, %d" % (S_QOFF, S_QOFF, DH * 2))
        for c in range(3):
            r = V_RAW + 2 * c
            s = "buffer_load_dwordx2 v[%d:%d], v%d, s[%d:%d], s%d offen offset:%d" % (r, r + 1, V_J8, S_Q, S_Q + 3, S_QOFF, c * 128)
            if track:
                e.vmem(s, "p")
            else:
                e(s)

    def tile_addr(kind):
        ch, a, b = S_T, S_T + 1, S_T + 2
        e("s_lshr_b32 s%d, s%d, 6" % (a, S_CI))
        e("s_lshl_b32 s%d, s%d, 11" % (a, a))
        e("s_and_b32 s%d, s%d, 63" % (ch, S_CI))
        e("s_add_u32 s%d, s%d, s%d" % (ch, ch, a))
        e("s_add_u32 s%d, s%d, s%d" % (ch, ch, S_HB))
        e("s_bfe_u32 s%d, s%d, 0x20003" % (a, ch))
        e("s_and_b32 s%d, s%d, 4" % (b, ch))
        e("s_or_b32 s%d, s%d, s%d" % (a, a, b))
        e("s_xor_b32 s%d, s%d, s%d" % (a, a, S_N))
        e("s_lshl_b32 s%d, s%d, 5" % (S_XB, ch))
        e("s_or_b32 s%d, s%d, s%d" % (S_XB, S_XB, a))
        e("s_lshl_b32 s%d, s%d, 4" % (S_XB, S_XB))
        e("s_or_b32 s%d, s%d, 1" % (S_XB, S_XB))
        if kind == "V":
            e("s_lshl_b32 s%d, s%d, 7" % (S_LB, S_CI))
            if P["ut"]:
                e("s_cmp_ge_u32 s%d, %d" % (S_I, NT - P["ut"]))
                e("s_cselect_b64 vcc, -1, 0")
                e("v_cndmask_b32 v%d, v%d, v%d, vcc" % (V_TM, V_TM, V_TMX))
        e("v_xor_b32 v%d, s%d, v%d" % (V_T0, S_XB, V_TM))
        e("v_mul_hi_u32 v%d, v%d, s%d" % (V_T0, V_T0, S_MAGIC))
        e("v_lshrrev_b32 v%d, 1, v%d" % (V_T0, V_T0))
        e("v_and_b32 v%d, 15, v%d" % (V_T1, V_T0))
        e("v_cmp_eq_u32 vcc, 5, v%d" % V_T1)
        e("v_mad_u32_u24 v%d, v%d, s%d, v%d" % (V_OFF, V_T0, S_768, V_J16))
        e("v_add_u32 v%d, %d, v%d" % (V_T1, 5 * ROWB, V_OFF))
        e("v_cndmask_b32 v%d, v%d, v%d, vcc" % (V_OFF6, V_BIG, V_T1))
        if kind == "K":
            e("v_lshrrev_b32 v%d, 6, v%d" % (V_T0, V_T0))
            e("v_mad_u32_u24 v%d, v%d, s%d, v%d" % (V_PO, V_T0, S_384, V_J8))
        else:
            e("v_add_u32 v%d, s%d, v%d" % (V_T0, S_LB, V_PB0))

    def issue_params(kind):
        if kind == "K":
            if P["xkp"] & 2:
                return
            if P["xkp"] & 1024:
                e("s_cmp_lt_u32 s%d, 16" % S_I)
                e("s_cselect_b64 exec, -1, 0")
            for c in range(3):
                r = V_RAW + 6 + 2 * c
                e.vmem("buffer_load_dwordx2 v[%d:%d], v%d, s[%d:%d], 0 offen offset:%d%s" %
                       (r, r + 1, V_PO, S_KS, S_KS + 3, c * 128, " nt" if P["bnt"] & 4 else ""), "p")
            if P["xkp"] & 1024:
                e("s_mov_b64 exec, -1")
            if P["xb"] & 2:
                for c in range(3):
                    r = NVGPR + 2 + 2 * c
                    e.vmem("buffer_load_dwordx2 v[%d:%d], v%d, s[%d:%d], 0 offen offset:%d" % (r, r + 1, V_PO, 76, 79, c * 128), "p")
        else:
            e("ds_read_b32 v%d, v%d" % (V_PVN, V_T0))

    def issue_group(k, kind, pol=pol):
        srdb = S_K if kind == "K" else S_V
        for l in range(GOFF[k], GOFF[k] + GR[k]):
            r = V_RING + l * 4
            if l < 15:
                vo, off = V_OFF, l * 256
            else:
                vo, off = V_OFF6, (l - 15) * 256
            e.vmem("buffer_load_dwordx4 v[%d:%d], v%d, s[%d:%d], 0 offen offset:%d%s" %
                   (r, r + 3, vo, srdb, srdb + 3, off, pol), "g%d" % k)

    def compute_w():
        e.wait_tag("p")
        for p in range(6):
            rq = V_RAW + p; rs = V_RAW + 6 + p
            i0 = 2 * p
            e("v_lshlrev_b32 v%d, 16, v%d" % (V_T0, rq))
            e("v_lshlrev_b32 v%d, 16, v%d" % (V_W + i0, rs))
            e("v_and_b32 v%d, 0xffff0000, v%d" % (V_T1, rq))
            e("v_and_b32 v%d, 0xffff0000, v%d" % (V_W + i0 + 1, rs))
            e("v_mul_f32 v%d, v%d, v%d" % (V_W + i0, V_W + i0, V_T0))
            e("v_mul_f32 v%d, v%d, v%d" % (V_W + i0 + 1, V_W + i0 + 1, V_T1))

    def advance(kind, to_v, tag):
        nkind = "V" if to_v else kind
        if to_v:
            e("s_mov_b32 s%d, s%d" % (S_CI, S_WAVE))
            e("s_mov_b32 s%d, 0" % S_I)
            get_table("V", "tv")
            ev = (1 << 16) | (1 << 32)
            if P["at"] and not BC:
                ev |= (1 << P["tc"]) | (1 << (P["tc"] + P["tg"])) | (1 << P["te"])
            e("s_mov_b32 s%d, %d" % (S_TD, NT - P["td"] if P["td"] else 255))
            if P["tt"]:
                e("s_mov_b32 s%d, 255" % S_TT)
            set_masks(ev, CPV)
        else:
            e("s_add_u32 s%d, s%d, %d" % (S_CI, S_CI, NW))
            e("s_add_u32 s%d, s%d, 1" % (S_I, S_I))
            if tag:
                e("s_bitcmp1_b64 s[%d:%d], s%d" % (S_EV, S_EV + 1, S_I))
                sfx = tag if isinstance(tag, str) else ""
                e("s_cbranch_scc1 L_ev%s%s" % (kind, sfx))
                e.flush()
                e.label("L_evret%s%s" % (kind, sfx))
        if P["stamp"] == 4:
            e("s_memrealtime s[%d:%d]" % (S_DBG, S_DBG + 1))
            e("s_add_u32 s%d, s%d, 4" % (S_DBG + 2, S_DBG + 2))
            e("s_waitcnt lgkmcnt(0)")
            e("v_mov_b32 v%d, s%d" % (V_T2, S_DBG))
            e("s_mov_b64 exec, 1")
            e("buffer_store_dword v%d, off, s[%d:%d], s%d" % (V_T2, S_WS, S_WS + 3, S_DBG + 2))
            e("s_mov_b64 exec, -1")
        if P["stamp"] == 5:
            e("s_memrealtime s[%d:%d]" % (S_DBG, S_DBG + 1))
            e("s_add_u32 m0, m0, 1")
            e("s_waitcnt lgkmcnt(0)")
            e("v_writelane_b32 v%d, s%d, m0" % (NVGPR + (1 if kind == "V" else 0), S_DBG))
            if to_v:
                e("s_mov_b32 m0, -1")
        tile_addr(nkind)
        issue_params(nkind)

    def compute(k, kind):
        for l in range(GOFF[k], GOFF[k] + GR[k]):
            q, c = l // 3, l % 3
            base = V_RING + l * 4
            for r in range(4):
                e("v_cvt_f32_i32 v%d, v%d" % (base + r, base + r))
            if kind == "K":
                s = V_S + q
                for r in range(4):
                    if c == 0 and r == 0:
                        e("v_mul_f32 v%d, v%d, v%d" % (s, base, V_W))
                    else:
                        e("v_fmac_f32 v%d, v%d, v%d" % (s, base + r, V_W + 4 * c + r))
                if c == 2:
                    e.defer(["v_add_f32_dpp v%d, v%d, v%d row_ror:%d row_mask:0xf bank_mask:0xf" % (s, s, s, kk)
                             for kk in (8, 4, 2)] +
                            ["v_add_f32_dpp v%d, v%d, v%d row_ror:1 row_mask:0xf bank_mask:0x%x" %
                             (V_D + (q & 1), s, s, 1 << (q >> 1))])
            else:
                for r in range(4):
                    e("v_fmac_f32_dpp v%d, v%d, v%d row_newbcast:%d row_mask:0xf bank_mask:0xf" %
                      (V_ACC + 4 * c + r, V_PV, base + r, q))
        e.flush()

    EFS = []

    def finish(kind, to_v):
        if kind == "K":
            e("s_mov_b64 exec, s[%d:%d]" % (S_STM, S_STM + 1))
            e("ds_write_b64 v%d, v[%d:%d]" % (V_LB0, V_D, V_D + 1))
            e("s_mov_b64 exec, -1")
            if not to_v:
                if P["ef"]:
                    tag = "L_ef%d" % len(EFS)
                    EFS.append(tag)
                    e("s_and_b32 s%d, s%d, 15" % (S_T, S_I))
                    e("s_cbranch_scc0 %s" % tag)
                    e.lines.append(tag + "r:")
                e("v_add_u32 v%d, 48, v%d" % (V_LB0, V_LB0))
                compute_w()
        if kind == "V" or to_v:
            e("s_waitcnt lgkmcnt(0)")
            e("v_mov_b32 v%d, v%d" % (V_PV, V_PVN))

    ELS = []

    def elect(k, kind, lo=0):
        if P["fc"] == 4 and kind == "V" and k == max(P["elk"], lo):
            tag = "L_el%d" % len(ELS)
            ELS.append(tag)
            e("s_cmp_eq_u32 s%d, %d" % (S_I, NT))
            e("s_cbranch_scc1 %s" % tag)
            e.lines.append(tag + "r:")

    def body(kind, to_v=False, first=False):
        nkind = "V" if to_v else kind
        for k in range(NG):
            ov = OV[k] if not first else 0
            if ov:
                i = e.vm.index("g%d" % k) + GR[k] - ov
                e("s_waitcnt vmcnt(%d)" % (len(e.vm) - i))
                e.vm = e.vm[i:]
            else:
                e.wait_tag("g%d" % k)
            if k + 1 < NG:
                if not first:
                    issue_group(k + 1, kind)
            else:
                issue_group(0, nkind)
            if ov:
                e("s_waitcnt vmcnt(%d)" % (len(e.vm) - ov))
                e.vm = e.vm[ov:]
            if k == NG - 2:
                advance(kind, to_v, not first)
            elect(k, kind, NG - 2)
            compute(k, kind)
        finish(kind, to_v)

    DKV = {}

    def body_deep(mode):
        if mode == 3:
            advance("V", False, False)
        for k in range(NG):
            i = e.vm.index("g%d" % k) + GR[k]
            e("s_waitcnt vmcnt(%d)" % (len(e.vm) - i))
            e.vm = e.vm[i:]
            if P["tt"] and k < 2:
                e.lines.append("L_dk%d:" % k)
                DKV[k] = list(e.vm)
            if mode == 2:
                issue_group((k + 2) % NG, "V")
                if k == NG - 3:
                    advance("V", False, False)
            elect(k, "V")
            compute(k, "V")
            if mode == 3:
                issue_group(k, "V", "" if P["xkp"] & 256 else pol)
        finish("V", False)

    def body_boost(kind):
        for k in range(1, NG):
            issue_group(k, kind)
        e("s_sub_u32 s%d, s%d, 1" % (S_BO, S_BO))
        if P["stamp"] == 5:
            e("s_add_u32 s%d, s%d, 256" % (S_NBO, S_NBO))
        advance(kind, False, "B")
        for k in range(NG):
            e.wait_tag("g%d" % k)
            if k == NG - 1 and not P["be"]:
                issue_group(0, kind)
            elect(k, kind)
            compute(k, kind)
            if k == 0 and P["be"]:
                issue_group(0, kind)
        finish(kind, False)

    def lds_inc(off, vz, vt):
        e("v_mov_b32 v%d, 1" % vt)
        e("s_mov_b64 exec, 1")
        e("ds_add_u32 v%d, v%d offset:%d" % (vz, vt, off))
        e("s_mov_b64 exec, -1")

    if P["prio"]:
        e("s_setprio %d" % P["prio"])
    e("v_lshrrev_b32 v%d, 4, v%d" % (V_T, V_T1))
    e("v_and_b32 v%d, 15, v%d" % (V_T2, V_T1))
    e("v_lshlrev_b32 v%d, 4, v%d" % (V_J16, V_T2))
    e("v_lshlrev_b32 v%d, 3, v%d" % (V_J8, V_T2))
    e("v_lshlrev_b32 v%d, 7, v%d" % (V_T128, V_T))
    e("v_and_b32 v%d, 0x70, v0" % V_TMX)
    e("v_or_b32 v%d, v%d, v%d" % (V_TMX, V_TMX, V_T128))
    e("v_mov_b32 v%d, v%d" % (V_TM, V_TMX))
    if P["h4"]:
        e("v_and_b32 v%d, 0x%x, v%d" % (V_T128, 0xffffff8f | (P["h4"] << 4), V_TMX))
    e("s_mov_b32 s%d, %d" % (S_768, ROWB))
    e("s_mov_b32 s%d, %d" % (S_384, DH * 2))
    e("s_mov_b32 s%d, 0xaaaaaaab" % S_MAGIC)
    e("v_mov_b32 v%d, 0xc0000000" % V_BIG)
    e("s_lshl_b32 s%d, s%d, 6" % (S_HB, S_G))
    e("s_mov_b32 s%d, s%d" % (S_N, S_NB))
    e("s_mov_b32 s%d, s%d" % (S_CI, S_WAVE))
    tile_addr("K")
    SS = P["ss"]
    EB = P["eb"]
    if SS:
        e("s_memrealtime s[84:85]")
    if EB == 3:
        e("s_barrier")
    e("s_waitcnt lgkmcnt(0)")
    if SS:
        e("s_memrealtime s[86:87]")
    if EB == 2:
        e("s_barrier")
    if EB == 4:
        e("s_cmp_ge_u32 s%d, %d" % (S_WAVE, NW))
        e("s_barrier")
        e("s_cbranch_scc1 L_helper")
    e("s_mov_b32 s%d, 0" % S_I)
    if P["xb"] & 2:
        srd(76, 72, H * NGRP * DH * 2)
    if P["pfi"]:
        srd(S_Q, 64, H * DH * 2)
        load_q(S_I, True)
        srd(S_KS, 70, H * NGRP * DH * 2)
        issue_params("K")
    srd(S_K, 66, H * HEADB)
    issue_group(0, "K")
    if EB == 1:
        e("s_barrier")
    if not P["pfi"]:
        srd(S_Q, 64, H * DH * 2)
        load_q(S_I, True)
        srd(S_KS, 70, H * NGRP * DH * 2)
        issue_params("K")
    if P["ds"]:
        for k in range(1, NG):
            issue_group(k, "K")
    if SS:
        e("s_memrealtime s[88:89]")
    srd(S_V, 68, H * HEADB)
    if P["stamp"] == 6:
        srd(S_WS, 80, 256)
    elif P["stamp"]:
        srd(S_WS, 82, 0x8000000)
    if P["stamp"] == 5:
        e("s_mov_b32 m0, -1")
    if P["stamp"] in (4, 5):
        e("s_mul_i32 s%d, s2, %d" % (S_DBG + 2, NW))
        e("s_add_u32 s%d, s%d, s%d" % (S_DBG + 2, S_DBG + 2, S_WAVE))
        e("s_lshl_b32 s%d, s%d, 9" % (S_DBG + 2, S_DBG + 2))
        e("s_add_u32 s%d, s%d, 0x4010000" % (S_DBG + 2, S_DBG + 2))
    e("v_lshlrev_b32 v%d, 5, v%d" % (V_T1, V_T))
    e("v_bfe_u32 v%d, v0, 4, 3" % V_LB0)
    e("v_mul_u32_u24 v%d, s%d, v%d" % (V_LB0, S_768, V_LB0))
    e("v_lshl_add_u32 v%d, v%d, 1, v%d" % (V_LB0, V_T2, V_LB0))
    e("s_lshr_b32 s%d, s%d, 1" % (S_T, S_WAVE))
    e("s_mul_i32 s%d, s%d, 24" % (S_T, S_T))
    e("s_add_u32 s%d, s%d, %d" % (S_T, S_T, L_LG))
    e("v_add_u32 v%d, s%d, v%d" % (V_LB0, S_T, V_LB0))
    e("v_and_b32 v%d, 7, v%d" % (V_PB0, V_T2))
    e("v_lshl_add_u32 v%d, v%d, 2, v%d" % (V_PB0, V_PB0, V_T1))
    e("v_add_u32 v%d, %d, v%d" % (V_PB0, L_PV, V_PB0))
    e("v_lshlrev_b32 v%d, 2, v%d" % (V_DO, V_T))
    e("v_add_u32 v%d, v%d, v%d" % (V_DO, V_J16, V_DO))
    e("s_mul_i32 s%d, s%d, %d" % (S_T, S_WAVE, ROWB))
    e("s_add_u32 s%d, s%d, %d" % (S_T, S_T, L_ACC))
    e("v_add_u32 v%d, s%d, v%d" % (V_DO, S_T, V_DO))
    e("v_mov_b32 v%d, 0" % V_Z)
    e("v_mov_b32 v%d, 0" % V_D)
    e("v_mov_b32 v%d, 0" % (V_D + 1))
    e("s_mov_b32 s%d, 0x01110111" % S_STM)
    e("s_mov_b32 s%d, 0x01110111" % (S_STM + 1))
    ev = (1 << TRG1) | (1 << N0) | (3 << 16) | (3 << 32) | (((1 << TA) | (1 << TB)) * 0x100010001)
    set_masks(ev, CPK)
    if BC:
        e("s_mov_b32 s%d, %d" % (S_BO, P["ib"] & 15))
        e("s_mov_b32 s%d, 0" % S_NBO)
        e("s_mov_b32 s%d, 0" % S_LDC)
        e("s_mov_b32 s%d, %d" % (S_CPA, L_TM))
    for i in range(12):
        e("v_mov_b32 v%d, 0" % (V_ACC + i))
    if SS:
        e("s_memrealtime s[90:91]")
    if not EB:
        e("s_barrier")
    if SS:
        e("s_memrealtime s[92:93]")
        e("s_waitcnt vmcnt(23)")
        e("s_memrealtime s[94:95]")
        e("s_waitcnt vmcnt(18)")
        e("s_memrealtime s[96:97]")
    compute_w()
    if SS:
        e("s_memrealtime s[98:99]")
        e("s_waitcnt lgkmcnt(0)")
        for k in range(8):
            e("v_writelane_b32 v%d, s%d, %d" % (NVGPR + 1, 84 + 2 * k, 48 + k))
    steady = ["g0"] * GR[0]
    if P["fb"]:
        advance("K", False, False)
        for k in range(NG):
            if "g%d" % k in e.vm:
                i = e.vm.index("g%d" % k) + GR[k]
                e("s_waitcnt vmcnt(%d)" % (len(e.vm) - i))
                e.vm = e.vm[i:]
            compute(k, "K")
            if k == P["fb"] - 1:
                issue_group(0, "K")
        finish("K", False)
        assert e.vm == steady, (e.vm, steady)
    elif P["ds"]:
        body("K", first=True)
    if P["ib"] & 16:
        e("s_branch L_kchk")
    e.vm = list(steady)
    e.lines.append(".p2align 6")
    e.label("L_kloop")
    body("K")
    assert e.vm == steady, (e.vm, steady)
    if BC:
        e.label("L_kchk")
        e("s_cmp_lg_u32 s%d, 0" % S_BO)
        e("s_cbranch_scc1 L_kboost")
        e.label("L_kchk2")
    e("s_cmp_lg_u32 s%d, %d" % (S_I, NT - 1))
    e("s_cbranch_scc1 L_kloop")
    body("K", True)
    lds_inc(L_CF + 8, V_Z, V_T1)
    if P["stamp"] == 1:
        e("s_memrealtime s[%d:%d]" % (S_DBG, S_DBG + 1))
    e.lines.append(".p2align 6")
    e.label("L_vloop")
    body("V")
    assert e.vm == steady, (e.vm, steady)
    if BC:
        e.label("L_vchk")
    if P["td"] or P["at"]:
        e("s_cmp_eq_u32 s%d, s%d" % (S_I, S_TD))
        e("s_cbranch_scc1 %s" % ("L_tail0" if P["tt"] else "L_deep"))
    if BC:
        e("s_cmp_lg_u32 s%d, 0" % S_BO)
        e("s_cbranch_scc1 L_vboost")
    e("s_and_b32 s%d, s%d, 15" % (S_T, S_I))
    e("s_cbranch_scc1 L_vloop")
    e.label("L_vend")
    for c in range(3):
        a = V_ACC + 4 * c
        e("v_permlane32_swap_b32 v%d, v%d" % (a, a + 2))
        e("v_permlane32_swap_b32 v%d, v%d" % (a + 1, a + 3))
    for c in range(3):
        a = V_ACC + 4 * c
        e("v_add_f32 v%d, v%d, v%d" % (a, a, a + 2))
        e("v_add_f32 v%d, v%d, v%d" % (a + 1, a + 1, a + 3))
    for c in range(3):
        a = V_ACC + 4 * c
        e("v_permlane16_swap_b32 v%d, v%d" % (a, a + 1))
    e("s_lshr_b32 s%d, s%d, 2" % (S_T, S_I))
    e("v_mov_b32 v%d, s%d" % (V_T0, S_T))
    for c in range(3):
        a = V_ACC + 4 * c
        e("v_add_f32 v%d, v%d, v%d" % (a, a, a + 1))
        e("ds_write_b32 v%d, v%d offset:%d" % (V_DO, a, c * 256))
    lds_inc(L_CA - 4, V_T0, V_T1)
    e("v_add_u32 v%d, %d, v%d" % (V_DO, NW * ROWB, V_DO))
    for i in range(12):
        e("v_mov_b32 v%d, 0" % (V_ACC + i))
    if BC:
        e("s_cmp_lg_u32 s%d, 0" % S_BO)
        e("s_cbranch_scc1 L_vboost2")
        e.label("L_vend2")
    e("s_cmp_lg_u32 s%d, %d" % (S_I, NT))
    e("s_cbranch_scc1 L_vloop")
    if P["stamp"] == 5 and BC:
        e("s_or_b32 s%d, s%d, s%d" % (S_LDC, S_LDC, S_NBO))
    if P["stamp"] == 6:
        e("s_memrealtime s[%d:%d]" % (S_T + 2, S_T + 3))
        e("s_not_b32 s%d, s%d" % (S_T, S_ST))
        e("v_mov_b32 v%d, s%d" % (V_ACC, S_T))
        e("s_waitcnt lgkmcnt(0)")
        e("v_mov_b32 v%d, s%d" % (V_ACC + 1, S_T + 2))
        e("s_mov_b64 exec, 1")
        e("s_cmp_lg_u32 s%d, 0" % S_WAVE)
        e("s_cbranch_scc1 L_exit1")
        e("buffer_atomic_umax v%d, off, s[%d:%d], 0 offset:32" % (V_ACC, S_WS, S_WS + 3))
        e("buffer_atomic_umax v%d, off, s[%d:%d], 0 offset:36" % (V_ACC + 1, S_WS, S_WS + 3))
    elif P["stamp"]:
        e("s_memrealtime s[%d:%d]" % (S_T + 2, S_T + 3))
        e("s_getreg_b32 s%d, hwreg(HW_REG_XCC_ID)" % (S_T + 4))
        e("s_waitcnt lgkmcnt(0)")
        e("v_mov_b32 v%d, s%d" % (V_ACC + 0, S_ST))
        e("v_mov_b32 v%d, s%d" % (V_ACC + 1, S_T + 2))
        e("v_mov_b32 v%d, s%d" % (V_ACC + 2, S_T + 4))
        e("v_mov_b32 v%d, s%d" % (V_ACC + 3, S_LDC if P["stamp"] == 5 else S_DBG))
        e("s_mul_i32 s%d, s2, %d" % (S_T, NW))
        e("s_add_u32 s%d, s%d, s%d" % (S_T, S_T, S_WAVE))
        e("s_lshl_b32 s%d, s%d, 4" % (S_T, S_T))
        e("s_add_u32 s%d, s%d, 0x4000000" % (S_T, S_T))
        e("buffer_store_dwordx4 v[%d:%d], v%d, s[%d:%d], s%d offen" % (V_ACC, V_ACC + 3, V_Z, S_WS, S_WS + 3, S_T))
        if P["stamp"] == 5:
            e("v_and_b32 v%d, 63, v0" % V_T0)
            e("v_lshlrev_b32 v%d, 2, v%d" % (V_T0, V_T0))
            e("s_mov_b32 exec_hi, 0xffff")
            e("buffer_store_dword v%d, v%d, s[%d:%d], s%d offen offset:4" % (NVGPR, V_T0, S_WS, S_WS + 3, S_DBG + 2))
            e("s_mov_b32 exec_hi, -1")
            e("buffer_store_dword v%d, v%d, s[%d:%d], s%d offen offset:196" % (NVGPR + 1, V_T0, S_WS, S_WS + 3, S_DBG + 2))
    e.lines.append("L_exit1:")
    e("s_endpgm")

    if P["td"] or P["at"]:
        e.label("L_deep")
        e.vm = list(steady)
        for k in range(1, P["tdm"] if NG == 3 else NG):
            issue_group(k, "V")
        deep = list(e.vm)
        e.lines.append(".p2align 6")
        e.label("L_dloop")
        body_deep(P["tdm"])
        assert e.vm == deep, (e.vm, deep)
        e("s_cmp_lg_u32 s%d, %d" % (S_I, NT))
        e("s_cbranch_scc1 L_dloop")
        e("s_branch L_vend")
        if P["tt"]:
            assert P["tdm"] == 3 and NG == 3 and BC

            def tcheck(k, dst):
                e("s_waitcnt lgkmcnt(0)")
                e("s_sub_u32 s%d, s%d, s%d" % (S_TW, S_TW, S_TH))
                e("s_add_u32 s%d, s%d, %d" % (S_TH, S_TH, P["d3"]))
                if P["stamp"] == 5:
                    e("s_add_u32 s%d, s%d, 1" % (S_LDC, S_LDC))
                e("s_cmp_ge_i32 s%d, 0" % S_TW)
                e("s_cbranch_scc1 %s" % dst)
            e.label("L_tail0")
            e("s_cmp_lg_u32 s%d, 0" % S_TT)
            e("s_cbranch_scc1 L_deep")
            e.lines.append(".p2align 6")
            e.label("L_tail")
            e.vm = list(steady)
            e("s_memrealtime s[%d:%d]" % (S_TW, S_TW + 1))
            tcheck(0, "L_deep")
            e.wait_tag("g0")
            e("s_memrealtime s[%d:%d]" % (S_TW, S_TW + 1))
            issue_group(1, "V")
            tcheck(1, "L_dB")
            vb = list(e.vm)
            compute(0, "V")
            e.wait_tag("g1")
            e("s_memrealtime s[%d:%d]" % (S_TW, S_TW + 1))
            issue_group(2, "V")
            advance("V", False, False)
            tcheck(2, "L_dC")
            vc = list(e.vm)
            elect(1, "V", 1)
            compute(1, "V")
            e.wait_tag("g2")
            issue_group(0, "V")
            elect(2, "V", 1)
            compute(2, "V")
            finish("V", False)
            assert e.vm == steady
            e("s_cmp_lg_u32 s%d, %d" % (S_I, NT))
            e("s_cbranch_scc1 L_tail")
            e("s_branch L_vend")
            e.label("L_dB")
            e.vm = vb
            issue_group(2, "V")
            advance("V", False, False)
            assert e.vm == DKV[0]
            e("s_branch L_dk0")
            e.label("L_dC")
            e.vm = vc
            issue_group(0, "V")
            assert e.vm == DKV[1]
            e("s_branch L_dk1")

    if BC:
        e.label("L_kboost")
        e("s_cmp_eq_u32 s%d, %d" % (S_I, NT - 1))
        e("s_cbranch_scc1 L_kchk2")
        e.vm = list(steady)
        body_boost("K")
        assert e.vm == steady, (e.vm, steady)
        e("s_branch L_kchk")
        e.label("L_vboost")
        e("s_and_b32 s%d, s%d, 15" % (S_T, S_I))
        e("s_cbranch_scc0 L_vend")
        e.label("L_vboost2")
        e("s_cmp_eq_u32 s%d, %d" % (S_I, NT))
        e("s_cbranch_scc1 L_vend2")
        body_boost("V")
        assert e.vm == steady, (e.vm, steady)
        e("s_branch L_vchk")

    for tag in EFS:
        e.label(tag)
        e("s_lshr_b32 s%d, s%d, 2" % (S_T, S_I))
        e("v_mov_b32 v%d, s%d" % (V_T0, S_T))
        lds_inc(L_CF - 4, V_T0, V_T1)
        e("s_branch %sr" % tag)
    for tag in ELS:
        e.label(tag)
        lds_inc(L_EL, V_Z, V_T1)
        e("s_branch %sr" % tag)

    def pace_events(kind, x):
        e("s_bitcmp1_b64 s[%d:%d], s%d" % (S_MP, S_MP + 1, S_I))
        e("s_cbranch_scc0 L_pa%s%s" % (kind, x))
        e("s_memrealtime s[%d:%d]" % (S_TW, S_TW + 1))
        e("s_mov_b32 s%d, s%d" % (S_BP, S_BO))
        lds_inc(L_TC, V_Z, V_T1)
        e.label("L_pa%s%s" % (kind, x))
        e("s_bitcmp1_b64 s[%d:%d], s%d" % (S_MG, S_MG + 1, S_I))
        e("s_cbranch_scc0 L_pb%s%s" % (kind, x))
        lds_inc(L_TC, V_Z, V_T1)
        e.label("L_pb%s%s" % (kind, x))
        e("s_bitcmp1_b64 s[%d:%d], s%d" % (S_MR, S_MR + 1, S_I))
        e("s_cbranch_scc0 L_pc%s%s" % (kind, x))
        e("v_mov_b32 v%d, s%d" % (V_T1, S_CPA))
        e("ds_read_b32 v%d, v%d" % (V_T0, V_T1))
        lds_inc(L_TC, V_Z, V_T1)
        e("s_add_u32 s%d, s%d, 4" % (S_CPA, S_CPA))
        e("s_waitcnt lgkmcnt(0)")
        e("v_readfirstlane_b32 s%d, v%d" % (S_T, V_T0))
        e("s_cmp_eq_u32 s%d, 0" % S_T)
        e("s_cbranch_scc1 L_pc%s%s" % (kind, x))
        if kind == "V" and P["tt"]:
            e("s_cmp_eq_u32 s%d, %d" % (S_I, P["te"]))
            e("s_cbranch_scc0 L_pe%s" % x)
            e("s_add_u32 s%d, s%d, %d" % (S_TH, S_T, P["tx"] - 3 * (NT - P["te"]) * P["d3"]))
            e("s_mov_b32 s%d, %d" % (S_TD, P["te"]))
            e("s_mov_b32 s%d, 0" % S_TT)
            e("s_mov_b32 s%d, 0" % S_BO)
            e("s_branch L_pc%s%s" % (kind, x))
            e.label("L_pe%s" % x)
        e("s_sub_u32 s%d, s%d, s%d" % (S_T, S_TW, S_T))
        e("s_max_i32 s%d, s%d, -4096" % (S_T, S_T))
        e("s_min_i32 s%d, s%d, 4096" % (S_T, S_T))
        if kind == "V" and not P["tt"]:
            e("s_cmp_eq_u32 s%d, %d" % (S_I, P["te"]))
            e("s_cbranch_scc0 L_pd%s" % x)
            e("s_mul_i32 s%d, s%d, %d" % (S_T, S_T, P["ka"]))
            e("s_add_u32 s%d, s%d, %d" % (S_T, S_T, P["kb"]))
            e("s_ashr_i32 s%d, s%d, 10" % (S_T, S_T))
            e("s_max_i32 s%d, s%d, %d" % (S_T, S_T, P["dmin"]))
            e("s_min_i32 s%d, s%d, %d" % (S_T, S_T, min(P["dmax"], NT - P["te"])))
            e("s_sub_u32 s%d, %d, s%d" % (S_TD, NT, S_T))
            e("s_cmp_eq_u32 s%d, %d" % (S_TD, NT))
            e("s_cselect_b32 s%d, 255, s%d" % (S_TD, S_TD))
            e("s_mov_b32 s%d, 0" % S_BO)
            if P["stamp"] == 5:
                e("s_mov_b32 s%d, s%d" % (S_LDC, S_TD))
            e("s_branch L_pc%s%s" % (kind, x))
            e.label("L_pd%s" % x)
        e("s_mul_i32 s%d, s%d, %d" % (S_T, S_T, P["ka2"]))
        e("s_add_u32 s%d, s%d, %d" % (S_T, S_T, P["kb2"]))
        e("s_ashr_i32 s%d, s%d, 10" % (S_T, S_T))
        e("s_sub_u32 s%d, s%d, s%d" % (S_T, S_T, S_BP))
        e("s_add_u32 s%d, s%d, s%d" % (S_T, S_T, S_BO))
        e("s_max_i32 s%d, s%d, 0" % (S_T, S_T))
        e("s_min_i32 s%d, s%d, %d" % (S_BO, S_T, P["bmax"]))
        e.label("L_pc%s%s" % (kind, x))
        e("s_bitcmp1_b64 s[%d:%d], s%d" % (S_MO, S_MO + 1, S_I))
        e("s_cbranch_scc0 L_evret%s%s" % (kind, x))

    for x in (("", "B") if BC else ("",)):
        e.label("L_evK" + x)
        if BC:
            pace_events("K", x)
        e("s_and_b32 s%d, s%d, 15" % (S_T, S_I))
        e("s_cbranch_scc0 L_evK2" + x)
        e("s_cmp_eq_u32 s%d, %d" % (S_I, N0))
        e("s_cbranch_scc1 L_evK2" + x)
        e("s_lshr_b32 s%d, s%d, 2" % (S_T + 1, S_I))
        e("s_andn2_b32 s%d, s%d, 3" % (S_T + 1, S_T + 1))
        e("s_add_u32 s%d, s%d, %d" % (S_T + 1, S_T + 1, 236 if P["ef"] else L_CF - 4))
        e("s_cmp_eq_u32 s%d, 1" % S_T)
        e("s_cselect_b32 s%d, s%d, %d" % (S_T, S_T + 1, L_EV + 4))
        e("s_cselect_b32 s%d, %d, 0" % (S_T + 1, PHI - 768))
        e("v_add_u32 v%d, s%d, v%d" % (V_LB0, S_T + 1, V_LB0))
        e("s_cmp_eq_u32 s%d, %d" % (S_I, TRG1))
        e("s_cselect_b32 s%d, %d, s%d" % (S_T, L_EV, S_T))
        e("v_mov_b32 v%d, s%d" % (V_T0, S_T))
        lds_inc(0, V_T0, V_T1)
        e("s_branch L_evretK" + x)
        e.label("L_evK2" + x)
        if P["stamp"] == 2:
            e("s_cmp_eq_u32 s%d, %d" % (S_I, N0))
            e("s_cbranch_scc0 L_ns2" + x)
            e("s_memrealtime s[%d:%d]" % (S_DBG, S_DBG + 1))
            e.label("L_ns2" + x)
        get_table("K", "tk" + x)
        if P["stamp"] == 3:
            e("s_cmp_eq_u32 s%d, %d" % (S_I, N0))
            e("s_cbranch_scc0 L_evretK")
            e("s_memrealtime s[%d:%d]" % (S_DBG, S_DBG + 1))
        e("s_branch L_evretK" + x)
        e.label("L_evV" + x)
        if BC:
            pace_events("V", x)
        elif P["at"]:
            e("s_and_b32 s%d, s%d, 15" % (S_T, S_I))
            e("s_cbranch_scc0 L_evV2")
            e("s_cmp_eq_u32 s%d, %d" % (S_I, P["te"]))
            e("s_cbranch_scc1 L_evV3")
            lds_inc(L_TC, V_Z, V_T1)
            e("s_branch L_evretV")
            e.label("L_evV3")
            e("ds_read_b32 v%d, v%d offset:%d" % (V_T0, V_Z, L_TD))
            e("s_waitcnt lgkmcnt(0)")
            e("v_readfirstlane_b32 s%d, v%d" % (S_T, V_T0))
            e("s_cmp_eq_u32 s%d, 0" % S_T)
            e("s_cselect_b32 s%d, s%d, s%d" % (S_TD, S_TD, S_T))
            if P["stamp"] == 5:
                e("s_mov_b32 s%d, s%d" % (S_LDC, S_T))
            e("s_branch L_evretV")
            e.label("L_evV2")
        get_table("V", "tv2" + x)
        e("s_branch L_evretV" + x)

    PG = S_G; PM = S_M
    PNB = 5; PP = 6; PBK = 7
    PB = 8; PWS = 12; PDB = 16
    PO = 20; PFL = 21; PBASE = 22; PPR = 90
    PD = 24
    POF = 32
    PT = 40
    PMN = 44; PJ = 45; PRN = 46; PNR = 47
    PE = 48
    PRB = 56; PACC = 58; PGL = 59; PSP = 60; PPH = 61; PSG = 62; PG0 = 63
    PDC = 84
    PS2 = 92; PS3 = 96
    HL = 1; HZ = 2; HW = 3; HA = 4; HB_ = 5; HC = 6; HD = 7; HK = 8; HV = 9; HE = 10; HF = 11; HR = 12; HG = 13
    HN = 14; HT2 = 15
    HX = 16
    BIAS = 65536
    e.wr = {}; e.tr = {}
    e.label("L_helper")
    PST = 100
    if P["pt"] or P["pd"]:
        e("s_memrealtime s[%d:%d]" % (PST, PST + 1))
    e("s_sub_u32 s%d, s%d, %d" % (PP, S_WAVE, NW))
    e("s_mov_b32 s%d, s%d" % (PNB, S_NB))
    e("v_and_b32 v%d, 63, v0" % HL)
    e("v_mov_b32 v%d, 0" % HZ)
    e("s_mul_i32 s%d, s%d, %d" % (PGL, PG, 8 * FSTR))
    e("s_add_u32 s%d, s%d, %d" % (PGL, PGL, WS_G))
    if EB and EB != 4:
        e("s_cmp_lg_u32 s%d, 0" % PP)
        e("s_cbranch_scc1 L_hbar")
        e("v_lshlrev_b32 v%d, 2, v%d" % (HB_, HL))
        e("ds_write_b32 v%d, v%d" % (HB_, HZ))
        e("s_waitcnt lgkmcnt(0)")
        e.label("L_hbar")
        e("s_barrier")
    if BC:
        e("s_cmp_eq_u32 s%d, 3" % PP)
        e("s_cbranch_scc1 L_h3")
    LB = P["lb"]
    PA = PPH
    PKB = 91
    VLN = 20 if LB else 10
    ELN = 256 + VLN - 21
    if LB:
        assert P["sw"] and P["dc"] and P["vw"]
        e("s_mul_i32 s%d, s%d, 25" % (PE, PP))
        e("s_sub_u32 s%d, s%d, 22" % (PE, PE))
        e("s_cmp_lt_i32 s%d, s%d" % (PG, PE))
        e("s_cselect_b32 s%d, 1, 0" % PPR)
        e("s_cbranch_scc0 L_noprobe1")
        e("s_add_u32 s%d, s%d, 2" % (PE + 1, PG))
        e("s_mul_i32 s%d, s%d, 205" % (PE, PE + 1))
        e("s_lshr_b32 s%d, s%d, 10" % (PE, PE))
        e("s_mul_i32 s%d, s%d, 5" % (PBK, PE))
        e("s_sub_u32 s%d, s%d, s%d" % (PBK, PE + 1, PBK))
        e("s_add_u32 s%d, s%d, 1" % (PBK, PBK))
        e("s_lshl_b32 s%d, s%d, 1" % (PE + 1, PG))
        e("s_add_u32 s%d, s%d, s%d" % (PE + 1, PE + 1, PP))
        e("s_sub_u32 s%d, s%d, 1" % (PE + 1, PE + 1))
        e("s_cmp_lt_u32 s%d, 3" % PG)
        e("s_cselect_b32 s%d, 0, s%d" % (PBK, PBK))
        e("s_cselect_b32 s%d, s%d, s%d" % (PE + 1, PE + 1, PE))
    else:
        e("s_mul_i32 s%d, s%d, 10" % (PE, PP))
        e("s_sub_u32 s%d, s%d, 7" % (PE, PE))
        e("s_cmp_lt_i32 s%d, s%d" % (PG, PE))
        e("s_cselect_b32 s%d, 1, 0" % PPR)
        e("s_cbranch_scc0 L_noprobe1")
        e("s_max_u32 s%d, s%d, 1" % (PBK, PG))
        e("s_sub_u32 s%d, s%d, 1" % (PBK, PBK))
        e("s_lshr_b32 s%d, s%d, 1" % (PBK, PBK))
        e("s_lshl_b32 s%d, s%d, 1" % (PE + 1, PG))
        e("s_add_u32 s%d, s%d, s%d" % (PE + 1, PE + 1, PP))
        e("s_sub_u32 s%d, s%d, 1" % (PE + 1, PE + 1))
        e("s_bitcmp1_b32 s%d, 0" % PG)
        e("s_cselect_b32 s%d, 1, 4" % PE)
        e("s_cmp_eq_u32 s%d, 0" % PBK)
        e("s_cselect_b32 s%d, s%d, s%d" % (PE + 1, PE + 1, PE))
    e("s_and_b32 s%d, s%d, 1" % (PE, PE + 1))
    e("s_mul_i32 s%d, s%d, 20" % (PO, PE + 1))
    e("s_add_u32 s%d, s%d, s%d" % (PO, PO, PE))
    e("s_add_u32 s%d, s%d, 2" % (PO, PO))
    if LB:
        e("s_lshr_b32 s%d, s%d, 5" % (PKB, PO))
        e("s_xor_b32 s%d, s%d, s%d" % (PKB, PKB, PM))
    e("s_lshl_b32 s%d, s%d, 21" % (PO, PO))
    e("s_xor_b32 s%d, s%d, s%d" % (PFL, PM, PP))
    e("s_and_b32 s%d, s%d, 1" % (PFL, PFL))
    e("s_lshr_b32 s%d, s%d, 2" % (PE + 1, PM))
    e("s_xor_b32 s%d, s%d, s%d" % (PE, PE, PE + 1))
    e("s_xor_b32 s%d, s%d, s%d" % (PE, PE, PFL))
    e("s_lshl_b32 s%d, s%d, 13" % (PE, PE))
    e("s_lshl_b32 s%d, s%d, 14" % (PE + 1, PP))
    e("s_and_b32 s%d, s%d, 0x4000" % (PE + 1, PE + 1))
    e("s_or_b32 s%d, s%d, s%d" % (PE, PE, PE + 1))
    for u in range(8):
        e("s_xor_b32 s%d, s%d, 0x%x" % (POF + u, PE, ((u & 1) << 13) | (((u >> 1) & 1) << 12) | ((u >> 2) << 14)))
    e("v_and_b32 v%d, 7, v%d" % (HW, HL))
    e("v_lshlrev_b32 v%d, 12, v%d" % (HW, HW))
    e("s_lshl_b32 s%d, s%d, 8" % (PE, PM))
    e("v_add_u32 v%d, s%d, v%d" % (HW, PE, HW))
    e("s_mov_b32 s%d, %d" % (PB + 2, H * HEADB))
    e("s_mov_b32 s%d, 0x00020000" % (PB + 3))
    e("s_cmp_ge_u32 s%d, 3" % PBK)
    e("s_cselect_b32 s%d, 3, 0" % PE)
    e("s_sub_u32 s%d, s%d, s%d" % (PE, PBK, PE))
    e("s_lshl_b32 s%d, s%d, 28" % (PE, PE))
    e("s_add_u32 s%d, s%d, s%d" % (PO, PO, PE))
    e("s_cmp_ge_u32 s%d, 3" % PBK)
    e("s_waitcnt lgkmcnt(0)")
    e("s_cselect_b32 s%d, s68, s66" % PB)
    e("s_cselect_b32 s%d, s69, s67" % (PBASE + 1))
    e("s_and_b32 s%d, s%d, 0xffff" % (PB + 1, PBASE + 1))
    if not P["sw"]:
        e("s_mov_b64 exec, 0xff")
        e("buffer_load_dword v%d, v%d, s[%d:%d], s%d offen" % (HA, HW, PB, PB + 3, PO))
        e("s_mov_b64 exec, -1")
    e("s_add_u32 s%d, s%d, s%d" % (PBASE, PB, PO))
    e("s_addc_u32 s%d, s%d, 0" % (PBASE + 1, PBASE + 1))
    e("s_lshl_b32 s%d, s%d, 8" % (PE, PM))
    if P["sw"]:
        e("s_add_u32 s%d, s%d, s%d" % (PRB, PBASE, PE))
        e("s_addc_u32 s%d, s%d, 0" % (PRB + 1, PBASE + 1))
        for u in range(8):
            e("s_load_dword s%d, s[%d:%d], 0x%x" % (PD + u, PRB, PRB + 1, u * 4096))
        if P["dc"]:
            srd_ws(PWS)
            e("s_lshl_b32 s%d, s2, 1" % PE)
            e("s_add_u32 s%d, s%d, s%d" % (PE, PE, PP))
            e("s_mul_i32 s%d, s%d, %d" % (PE, PE, 6 * FSTR))
            e("s_add_u32 s%d, s%d, %d" % (PE, PE, WS_G - 6 * FSTR))
            e("v_mul_u32_u24 v%d, %d, v%d" % (HB_, FSTR, HL))
            e("v_mov_b32 v%d, 0" % (HZ + 1))
            if LB:
                e("v_mov_b32 v%d, 0" % (HZ + 2))
            e("s_cmp_eq_u32 s%d, 0" % PBK)
            e("s_cselect_b64 exec, 0x3f, 0")
            e("buffer_store_dwordx%d v[%d:%d], v%d, s[%d:%d], s%d offen sc1" % (3 if LB else 2, HZ, HZ + (2 if LB else 1), HB_, PWS, PWS + 3, PE))
            e("s_mov_b64 exec, -1")
        for k in range(1, P["sw"]):
            e("s_waitcnt lgkmcnt(0)")
            e("s_load_dword s%d, s[%d:%d], 0x%x" % (PD, PRB, PRB + 1, k * 4096 + 128))
    else:
        e("s_add_u32 s%d, s%d, 128" % (PE, PE))
        e("s_load_dword s%d, s[%d:%d], s%d" % (PJ, PBASE, PBASE + 1, PE))
    if P["pb"]:
        if P["pb"] == 1:
            e("s_cmp_lg_u32 s%d, 0" % PBK)
            e("s_cbranch_scc1 L_noprobe2")
        else:
            e("s_branch L_noprobe2")
    e.label("L_noprobe1")
    e("s_waitcnt lgkmcnt(0)")
    if P["pb"]:
        e.label("L_noprobe2")
    srd_ws(PWS)
    srd(PDB, 80, 256)
    if not EB:
        e("s_cmp_lg_u32 s%d, 0" % PP)
        e("s_cbranch_scc1 L_hbar")
        e("v_lshlrev_b32 v%d, 2, v%d" % (HB_, HL))
        e("ds_write_b32 v%d, v%d" % (HB_, HZ))
        e("s_waitcnt lgkmcnt(0)")
        e.label("L_hbar")
        e("s_barrier")
    if P["hs"]:
        e("s_mov_b32 s%d, 0" % (PD + 4))
    e("s_cmp_eq_u32 s%d, 0" % PPR)
    e("s_cbranch_scc1 L_role")
    e("s_mov_b32 s%d, 1" % PRN)
    e("s_mov_b32 s%d, 0" % PACC)
    if LB:
        for k in range(3):
            e("s_mov_b32 s%d, 0" % (PA + k))
        if LB & 2:
            e("s_mov_b32 m0, 0")
    e("s_cmp_eq_u32 s%d, 0" % PBK)
    e("s_cselect_b32 s%d, %d, %d" % (PNR, P["nr0"], NR))
    if not P["sw"]:
        e("s_waitcnt vmcnt(0)")
    if P["pb"]:
        e("s_waitcnt lgkmcnt(0)")
    e.label("L_round")
    e("s_add_u32 s%d, s%d, s%d" % (PE, PM, PRN))
    e("s_and_b32 s%d, s%d, 7" % (PE, PE))
    e("s_lshl_b32 s%d, s%d, 8" % (PE, PE))
    e("s_add_u32 s%d, s%d, s%d" % (PRB, PBASE, PE))
    e("s_addc_u32 s%d, s%d, 0" % (PRB + 1, PBASE + 1))
    e("s_mov_b32 s%d, -1" % PMN)
    e("s_memtime s[%d:%d]" % (PT, PT + 1))
    e("s_waitcnt lgkmcnt(0)")
    for u in range(8):
        a = PT + 2 * (u & 1); b = PT + 2 * ((u + 1) & 1)
        e("s_load_dword s%d, s[%d:%d], s%d" % (PJ, PRB, PRB + 1, POF + u))
        e("s_waitcnt lgkmcnt(0)")
        e("s_memtime s[%d:%d]" % (b, b + 1))
        e("s_waitcnt lgkmcnt(0)")
        e("s_sub_u32 s%d, s%d, s%d" % (PD + u, b, a))
        if u + 1 == P["ns0"] and u < 7:
            for k in range(u + 1, 8):
                e("s_mov_b32 s%d, -1" % (PD + k))
            e("s_cmp_eq_u32 s%d, 0" % PBK)
            e("s_cbranch_scc1 L_few")
    if LB & 2:
        for u in range(8):
            e("v_writelane_b32 v%d, s%d, m0" % (HX, PD + u))
            e("s_add_u32 m0, m0, 1")
    e.label("L_few")
    for u in range(8):
        e("s_min_u32 s%d, s%d, %d" % (PD + u, PD + u, P["clip"]))
        e("s_min_u32 s%d, s%d, s%d" % (PMN, PMN, PD + u))
    e("s_cmp_lt_u32 s%d, %d" % (PMN, P["l2t"]))
    e("s_cbranch_scc1 L_skip")
    for u in range(8):
        e("s_%s_u32 s%d, s%d, s%d" % ("add" if u & 1 else "sub", PACC, PACC, PD + u))
    if LB:
        e("s_cmp_eq_u32 s%d, 0" % PBK)
        e("s_cbranch_scc1 L_skip")
        if P["cl2"]:
            for h in range(2):
                e("s_min_u32 s%d, s%d, s%d" % (PE + h, PD + h, PD + 2 + h))
                e("s_min_u32 s%d, s%d, s%d" % (PE + 2, PD + 4 + h, PD + 6 + h))
                e("s_min_u32 s%d, s%d, s%d" % (PE + h, PE + h, PE + 2))
                e("s_add_u32 s%d, s%d, %d" % (PE + h, PE + h, P["cl2"]))
            for u in range(8):
                e("s_min_u32 s%d, s%d, s%d" % (PD + u, PD + u, PE + (u & 1)))
        for u in range(8):
            for k, bit in enumerate(((u ^ (u >> 1)) & 1, (u >> 2) & 1, (u ^ (u >> 2)) & 1)):
                e("s_%s_u32 s%d, s%d, s%d" % ("add" if bit else "sub", PA + k, PA + k, PD + u))
    e.label("L_skip")
    e("s_add_u32 s%d, s%d, 1" % (PRN, PRN))
    e("s_cmp_le_u32 s%d, s%d" % (PRN, PNR))
    e("s_cbranch_scc1 L_round")
    e("s_sub_u32 s%d, 0, s%d" % (PE, PACC))
    e("s_cmp_eq_u32 s%d, 0" % PFL)
    e("s_cselect_b32 s%d, s%d, s%d" % (PACC, PACC, PE))
    e("s_add_u32 s%d, s%d, 0x%x" % (PACC, PACC, BIAS + (1 << 24)))
    e("v_mov_b32 v%d, s%d" % (HA, PACC))
    e("s_mov_b64 exec, 1")
    e("s_lshl_b32 s%d, s%d, 2" % (PE, PBK))
    e("s_add_u32 s%d, s%d, 124" % (PE, PE))
    e("s_cmp_eq_u32 s%d, 0" % PBK)
    e("s_cbranch_scc0 L_post")
    if P["dc"]:
        e("s_waitcnt vmcnt(0)")
    e("ds_add_rtn_u32 v%d, v%d, v%d offset:%d" % (HB_, HZ, HA, L_PC))
    e("s_mov_b32 s%d, 0" % PE)
    e("s_waitcnt lgkmcnt(0)")
    e("v_add_u32 v%d, v%d, v%d" % (HA, HA, HB_))
    e("v_cmp_ne_u32 vcc, 0, v%d" % HB_)
    e("s_and_b64 exec, exec, vcc")
    if P["vw"]:
        e("buffer_atomic_add v%d, off, s[%d:%d], s%d" % (HA, PDB, PDB + 3, PE))
        e("s_branch L_posted")
        e.label("L_post")
        lds_wait("vw", HZ, HE, PE, L_DEC, "nz", PSP)
        if LB:
            e("s_lshr_b32 s%d, s%d, 1" % (PE, PKB))
            e("s_xor_b32 s%d, s%d, s%d" % (PE, PE, PFL))
            e("s_sub_u32 s%d, 0, s%d" % (PE + 1, PA))
            e("s_bitcmp1_b32 s%d, 0" % PE)
            e("s_cselect_b32 s%d, s%d, s%d" % (PA, PE + 1, PA))
            e("s_xor_b32 s%d, s%d, s%d" % (PE, PKB, PFL))
            e("s_bitcmp1_b32 s%d, 0" % PM)
            e("s_cselect_b32 s%d, s%d, s%d" % (PE, PKB, PE))
            e("s_cselect_b32 s%d, s%d, s%d" % (PA + 1, PA + 1, PA + 2))
            e("s_sub_u32 s%d, 0, s%d" % (PE + 1, PA + 1))
            e("s_bitcmp1_b32 s%d, 0" % PE)
            e("s_cselect_b32 s%d, s%d, s%d" % (PA + 1, PE + 1, PA + 1))
            for k in range(2):
                e("s_add_u32 s%d, s%d, 0x%x" % (PA + k, PA + k, BIAS + (1 << 24)))
                e("v_writelane_b32 v%d, s%d, %d" % (HA, PA + k, k + 1))
            e("s_lshl_b32 s%d, s%d, 2" % (PE, PBK))
            e("s_and_b32 s%d, s%d, 1" % (PE + 1, PM))
            e("s_or_b32 s%d, s%d, s%d" % (PE, PE, PE + 1))
            e("s_lshr_b32 s%d, s%d, 1" % (PE + 1, PM))
            e("s_and_b32 s%d, s%d, 2" % (PE + 1, PE + 1))
            e("s_or_b32 s%d, s%d, s%d" % (PE, PE, PE + 1))
            e("s_mul_i32 s%d, s%d, %d" % (PE, PE, FSTR))
            e("s_add_u32 s%d, s%d, %d" % (PE, PE, WS_G + 252 * FSTR))
            e("s_mov_b64 exec, 7")
            e("v_lshlrev_b32 v%d, 2, v%d" % (HB_, HL))
            e("buffer_atomic_add v%d, v%d, s[%d:%d], s%d offen" % (HA, HB_, PWS, PWS + 3, PE))
            if LB & 2:
                e("s_mov_b64 exec, -1")
                e("s_memrealtime s[%d:%d]" % (PT, PT + 1))
                e("v_mov_b32 v%d, s%d" % (HX + 1, POF))
                e("v_mov_b32 v%d, s%d" % (HX + 2, PO))
                e("s_waitcnt lgkmcnt(0)")
                e("v_mov_b32 v%d, s%d" % (HX + 3, PT))
                srd(PB, 82, 0x8000000)
                e("s_lshl_b32 s%d, s2, 10" % PE)
                e("s_add_u32 s%d, s%d, 0x4090000" % (PE, PE))
                e("v_lshlrev_b32 v%d, 4, v%d" % (HW, HL))
                e("buffer_store_dwordx4 v[%d:%d], v%d, s[%d:%d], s%d offen" % (HX, HX + 3, HW, PB, PB + 3, PE))
        else:
            e("s_mul_i32 s%d, s%d, %d" % (PE, PG, FSTR))
            e("s_add_u32 s%d, s%d, %d" % (PE, PE, WS_G + 253 * FSTR))
            e("buffer_atomic_add v%d, off, s[%d:%d], s%d" % (HA, PWS, PWS + 3, PE))
        e.label("L_posted")
    else:
        e.label("L_post")
        e("buffer_atomic_add v%d, off, s[%d:%d], s%d" % (HA, PDB, PDB + 3, PE))
    e("s_mov_b64 exec, -1")
    if P["hs"]:
        if P["hs"] == 2:
            e("s_waitcnt vmcnt(0)")
        e("s_memrealtime s[%d:%d]" % (PD + 4, PD + 5))
    e.label("L_role")
    e("s_cmp_eq_u32 s%d, 0" % PP)
    e("s_cbranch_scc1 L_h0")
    e("s_cmp_eq_u32 s%d, 2" % PP)
    e("s_cbranch_scc1 L_h2")

    def wave_reduce(regs, op, tmp):
        for kk in (8, 4, 2, 1):
            for r in regs:
                e("%s_dpp v%d, v%d, v%d row_ror:%d row_mask:0xf bank_mask:0xf" % (op, r, r, r, kk))
        for sw in ("v_permlane32_swap_b32", "v_permlane16_swap_b32"):
            for r, t in zip(regs, tmp):
                e("v_mov_b32 v%d, v%d" % (t, r))
            for r, t in zip(regs, tmp):
                e("%s v%d, v%d" % (sw, r, t))
            for r, t in zip(regs, tmp):
                e("%s v%d, v%d, v%d" % (op, r, r, t))

    def decode(tag, nl, off, cnt, rounds, dst, b0):
        vw = b0 and P["vw"]
        if P["pt"] and not b0:
            e("s_add_u32 s%d, s%d, %d" % (PST, PST, P["pt"]))
        else:
            lds_wait("e" + tag, HZ, HE, PE, L_EV + (4 if b0 else 0), "nz" if b0 else str(P["tw"]), PSP)
        if vw:
            e("v_mul_u32_u24 v%d, %d, v%d" % (HD, FSTR, HL))
            e("s_mov_b32 s%d, %d" % (PE, WS_G + 256 * FSTR))
            e("v_lshrrev_b32 v%d, 1, v%d" % (HB_, HB_))
        e("s_mov_b64 exec, 0x%x" % ((1 << (2 * nl if vw else nl)) - 1))
        e("s_mov_b32 s%d, 0x40000" % PSP)
        if P["hs"] and not b0:
            e("s_memrealtime s[%d:%d]" % (PD, PD + 1))
        if P["l2p"] and not b0:
            e("buffer_load_dword v%d, v%d, s[%d:%d], 0 offen offset:%d" % (HA, HB_, PDB, PDB + 3, off))
            e("s_branch L_pollw" + tag)
        if not P["xkp"] & 4:
            e.label("L_poll" + tag)
            if P["pt"] and not b0:
                twait(PST, PT, P["pk"])
            if vw:
                e("buffer_load_dword v%d, v%d, s[%d:%d], s%d offen sc1" % (HA, HD, PWS, PWS + 3, PE))
            else:
                e("buffer_load_dword v%d, v%d, s[%d:%d], 0 offen offset:%d sc1" % (HA, HB_, PDB, PDB + 3, off))
            e("s_sub_u32 s%d, s%d, 1" % (PSP, PSP))
            e("s_cbranch_scc1 L_exit1")
            e.lines.append("L_pollw%s:" % tag)
            e("s_waitcnt vmcnt(0)")
            e("v_lshrrev_b32 v%d, 24, v%d" % (HC, HA))
            e("v_cmp_ne_u32 vcc, %d, v%d" % (cnt // 2 if vw else cnt, HC))
            e("s_cbranch_vccnz L_poll" + tag)
        if vw:
            e("v_add_u32_dpp v%d, v%d, v%d quad_perm:[1,0,3,2] row_mask:0xf bank_mask:0xf" % (HA, HA, HA))
            e("s_mov_b64 exec, 0x%x" % (0x5555 & ((1 << (2 * nl)) - 1)))
        th = P["th"] * cnt * rounds * (8 if b0 else P["ns0"]) // 8
        e("v_and_b32 v%d, 0xffffff, v%d" % (HA, HA))
        e("v_subrev_u32 v%d, %d, v%d" % (HA, cnt * BIAS, HA))
        if P["stamp"] == 6 and b0:
            e("s_cmp_lg_u32 s2, 100")
            e("s_cbranch_scc1 L_nodbg")
            e("buffer_store_dword v%d, v%d, s[%d:%d], 0 offen offset:4" % (HA, HB_, PDB, PDB + 3))
            e.label("L_nodbg")
        e("v_lshrrev_b32 v%d, 30, v%d" % (HC, HA))
        e("v_and_b32 v%d, 2, v%d" % (HC, HC))
        e("v_add_u32 v%d, %d, v%d" % (HA, th, HA))
        e("v_cmp_gt_u32 vcc, %d, v%d" % (2 * th, HA))
        e("v_cndmask_b32 v%d, v%d, 8, vcc" % (HC, HC))
        if P["force"] == 1:
            e("v_mov_b32 v%d, 8" % HC)
        if P["force"] >= 2:
            e("s_mov_b32 s%d, 0x%x" % (PE, 0x7000000 + 128 * (P["force"] - 2)))
            e("s_load_dwordx4 s[%d:%d], s[82:83], s%d" % (PS2, PS2 + 3, PE))
            e("s_waitcnt lgkmcnt(0)")
            for l in range(nl):
                b = b0 + l
                e("s_lshr_b64 s[%d:%d], s[%d:%d], %d" % (PE, PE + 1, PS2 + 2 * (b // 3), PS2 + 2 * (b // 3) + 1, 16 * (b % 3)))
                e("s_and_b32 s%d, s%d, %d" % (PE, PE, P["ob"]))
                e("s_xor_b32 s%d, s%d, %d" % (PE, PE, P["ox"]))
                e("v_writelane_b32 v%d, s%d, %d" % (HC, PE, 2 * l if vw else l))
        e("v_or_b32 v%d, 16, v%d" % (HC, HC))
        if P["xv"] and vw:
            e("v_lshlrev_b32 v%d, 1, v%d" % (HA, HL))
            e("v_lshrrev_b32 v%d, v%d, %d" % (HA, HA, 0) if False else "v_mov_b32 v%d, 0x%x" % (HD, int(str(P["xv"])[::-1], 16)))
            e("v_lshrrev_b32 v%d, v%d, v%d" % (HA, HA, HD))
            e("v_and_b32 v%d, 7, v%d" % (HA, HA))
            e("v_xor_b32 v%d, v%d, v%d" % (HC, HC, HA))
        e("ds_write_b32 v%d, v%d offset:%d" % (HB_, HC, dst))
        if P["hs"] and not b0:
            e("s_memrealtime s[%d:%d]" % (PD + 2, PD + 3))
            srd(PS2, 82, 0x8000000)
            e("s_waitcnt lgkmcnt(0)")
            e("v_mov_b32 v%d, s%d" % (HX, PD))
            e("v_mov_b32 v%d, s%d" % (HX + 1, PD + 2))
            e("v_mov_b32 v%d, s%d" % (HX + 2, PSP))
            e("v_mov_b32 v%d, s%d" % (HX + 3, PD + 4))
            e("s_lshl_b32 s%d, s2, 4" % PE)
            e("s_add_u32 s%d, s%d, 0x4008000" % (PE, PE))
            e("buffer_store_dwordx4 v[%d:%d], off, s[%d:%d], s%d" % (HX, HX + 3, PS2, PS2 + 3, PE))
        e("s_mov_b64 exec, -1")

    if not P["dc"]:
        e("s_cmp_lg_u32 s2, %d" % (NWG - 1))
        e("s_cbranch_scc1 L_nolead")
        e("v_mul_u32_u24 v%d, %d, v%d" % (HB_, FSTR, HL))
        e("v_mov_b32 v%d, 0" % (HZ + 1))
        for k in range(5 if P["vw"] else 4):
            e("s_mov_b32 s%d, %d" % (PE + k, WS_G + k * 64 * FSTR))
            if k == 4:
                e("s_mov_b64 exec, 0x%x" % (0x1fffff if P["fc"] else 0x3ff))
            e("buffer_store_dwordx2 v[%d:%d], v%d, s[%d:%d], s%d offen sc1" % (HZ, HZ + 1, HB_, PWS, PWS + 3, PE + k))
        e("v_mov_b32 v%d, 0x%x" % (HA, BIAS + (1 << 24)))
        e("s_mov_b64 exec, 1")
        e("s_waitcnt vmcnt(0)")
        e("buffer_atomic_add v%d, off, s[%d:%d], 0" % (HA, PDB, PDB + 3))
        e("s_mov_b64 exec, -1")
        if P["hs"]:
            if P["hs"] == 2:
                e("s_waitcnt vmcnt(0)")
            e("s_memrealtime s[%d:%d]" % (PD + 4, PD + 5))
        e.label("L_nolead")
    e("v_lshlrev_b32 v%d, 2, v%d" % (HB_, HL))
    decode("a", 1, 0, 48 if P["dc"] else 49, P["nr0"], L_DEC, 0)
    if LB:
        if P["ro"]:
            e("v_readfirstlane_b32 s%d, v%d" % (PMN, HC))
        if P["rx"]:
            MB = 1 << 20
            TG = [(66, 254 * MB), (66, 258 * MB), (66, 514 * MB), (68, 2 * MB), (68, 258 * MB), (68, 514 * MB),
                  (70, 4 * MB), (72, 4 * MB), (74, MB // 2), (76, MB // 2), (82, 32 * MB), (82, 2336 * MB)]
            e("s_mul_i32 s%d, s2, 4352" % PJ)
            for j in range(-1, P["rx"]):
                for t, (ptr, off) in enumerate(TG):
                    e("s_add_u32 s%d, s%d, 0x%x" % (PRB, ptr, off))
                    e("s_addc_u32 s%d, s%d, 0" % (PRB + 1, ptr + 1))
                    e("s_add_u32 s%d, s%d, %d" % (PE, PJ, 512 if j < 0 else 1024 * j))
                    if j < 0:
                        e("s_load_dword s%d, s[%d:%d], s%d" % (PD, PRB, PRB + 1, PE))
                        continue
                    e("s_waitcnt lgkmcnt(0)")
                    e("s_memtime s[%d:%d]" % (PT, PT + 1))
                    e("s_waitcnt lgkmcnt(0)")
                    e("s_load_dword s%d, s[%d:%d], s%d" % (PD, PRB, PRB + 1, PE))
                    e("s_waitcnt lgkmcnt(0)")
                    e("s_memtime s[%d:%d]" % (PT + 2, PT + 3))
                    e("s_waitcnt lgkmcnt(0)")
                    e("s_sub_u32 s%d, s%d, s%d" % (PT, PT + 2, PT))
                    e("v_writelane_b32 v%d, s%d, %d" % (HX, PT, 12 * j + t))
            e("s_memrealtime s[%d:%d]" % (PT, PT + 1))
            e("s_waitcnt lgkmcnt(0)")
            e("v_mov_b32 v%d, s%d" % (HX + 3, PT))
            srd(PB, 82, 0x8000000)
            e("s_lshl_b32 s%d, s2, 10" % PE)
            e("s_add_u32 s%d, s%d, 0x4090000" % (PE, PE))
            e("v_lshlrev_b32 v%d, 4, v%d" % (HW, HL))
            e("buffer_store_dwordx4 v[%d:%d], v%d, s[%d:%d], s%d offen" % (HX, HX + 3, HW, PB, PB + 3, PE))
            e("s_waitcnt vmcnt(0)")
        DA = HX; DB = HX + 1; DC = HX + 2; DW = HX + 4
        lds_wait("eb", HZ, HE, PE, L_EV + 4, "nz", PSP)
        e("v_mul_u32_u24 v%d, %d, v%d" % (HD, FSTR, HL))
        e("s_mov_b32 s%d, %d" % (PE, WS_G + 256 * FSTR))
        e("s_mov_b64 exec, 0xfffff")
        e("s_mov_b32 s%d, 0x40000" % PSP)
        e.label("L_pollb")
        e("buffer_load_dwordx3 v[%d:%d], v%d, s[%d:%d], s%d offen sc1" % (DA, DC, HD, PWS, PWS + 3, PE))
        e("s_sub_u32 s%d, s%d, 1" % (PSP, PSP))
        e("s_cbranch_scc1 L_exit1")
        e("s_waitcnt vmcnt(0)")
        e("v_min3_u32 v%d, v%d, v%d, v%d" % (HC, DA, DB, DC))
        e("v_lshrrev_b32 v%d, 24, v%d" % (HC, HC))
        e("v_cmp_ne_u32 vcc, 10, v%d" % HC)
        e("s_cbranch_vccnz L_pollb")
        for r in (DA, DB, DC):
            e("v_subrev_u32 v%d, 0x%x, v%d" % (r, 10 * (BIAS + (1 << 24)), r))
        for qp in ("[1,0,3,2]", "[2,3,0,1]"):
            for r in (DA, DB):
                e("v_add_u32_dpp v%d, v%d, v%d quad_perm:%s row_mask:0xf bank_mask:0xf" % (r, r, r, qp))
        e("v_ashrrev_i32 v%d, 31, v%d" % (HC, DA))
        e("v_xor_b32 v%d, v%d, v%d" % (DB, DB, HC))
        e("v_xor_b32 v%d, v%d, v%d" % (HA, DC, HC))
        e("s_mov_b64 vcc, 0x55555")
        e("v_cndmask_b32 v%d, v%d, v%d, vcc" % (DC, DC, HA))
        for qp in ("[1,0,3,2]", "[2,3,0,1]"):
            e("v_add_u32_dpp v%d, v%d, v%d quad_perm:%s row_mask:0xf bank_mask:0xf" % (DC, DC, DC, qp))
        e("v_and_b32 v%d, 2, v%d" % (DW, HC))
        for r, bit, th in ((DB, 1, P["th1"]), (DC, 4, P["th0"])):
            e("v_or_b32 v%d, %d, v%d" % (HA, bit, DW))
            e("v_cmp_gt_i32 vcc, %d, v%d" % (-th * 40 * NR, r))
            e("v_cndmask_b32 v%d, v%d, v%d, vcc" % (DW, DW, HA))
        th = P["th"] * 40 * NR
        e("v_add_u32 v%d, %d, v%d" % (HA, th, DA))
        e("v_cmp_gt_u32 vcc, %d, v%d" % (2 * th, HA))
        e("v_cndmask_b32 v%d, v%d, 8, vcc" % (DW, DW))
        e("v_and_b32 v%d, %d, v%d" % (DW, P["lm"] | 8, DW))
        for b in range(5):
            e("v_readlane_b32 s%d, v%d, %d" % (PD + b, DW, 4 * b))
        if P["ro"]:
            e("s_xor_b32 s%d, s%d, s%d" % (PE, PMN, PD + 2))
            e("s_and_b32 s%d, s%d, 15" % (PE, PE))
            e("s_and_b32 s%d, s%d, %d" % (PE + 1, PE, 10 if P["ro"] & 1 else 14))
            e("s_cselect_b32 s%d, 0, s%d" % (PE, PE))
            if P["ro"] & 4:
                e("s_cselect_b32 s%d, s%d, 4" % (PE + 1, PD))
                e("s_bitcmp0_b32 s%d, 2" % (PE + 1))
                e("s_cselect_b32 s%d, s%d, 0" % (PE + 1, PE + 1))
                e("s_and_b32 s%d, s%d, 1" % (PE + 1, PE + 1))
                e("s_or_b32 s%d, s%d, s%d" % (PE, PE, PE + 1))
            for b in range(5):
                e("s_xor_b32 s%d, s%d, s%d" % (PE + 1, PD + b, PE))
                e("s_bitcmp1_b32 s%d, 3" % (PD + b))
                e("s_cselect_b32 s%d, s%d, s%d" % (PD + b, PD + b, PE + 1))
        if P["pol"] == 4:
            e("s_xor_b32 s%d, s%d, s%d" % (PE, PD, PD + 3))
            e("s_xor_b32 s%d, s%d, s%d" % (PE + 1, PD + 1, PD + 4))
            e("s_xor_b32 s%d, s%d, s%d" % (PE + 1, PE + 1, PE))
            e("s_and_b32 s%d, s%d, 10" % (PE, PE))
            e("s_or_b32 s%d, s%d, s%d" % (PE, PE, PE + 1))
            for b in range(2):
                e("s_cselect_b32 s%d, s%d, s%d" % (PD + b, PD + b, PD + 3 + b))
        if P["pol"] == 7:
            e("s_xor_b32 s%d, s%d, s%d" % (PE, PD, PD + 3))
            e("s_and_b32 s%d, s%d, 10" % (PE + 1, PE))
            e("s_cselect_b32 s%d, 0, s%d" % (PE, PE))
            e("s_xor_b32 s%d, s%d, s%d" % (PD, PD, PE))
            e("s_xor_b32 s%d, s%d, s%d" % (PE, PE, PD + 1))
            e("s_cmp_eq_u32 s%d, s%d" % (PE, PD + 4))
            e("s_cselect_b32 s%d, s%d, s%d" % (PD + 1, PE, PD + 1))
        if P["pol"] >= 8:
            e("s_xor_b32 s%d, s%d, s%d" % (PE, PD, PD + 3))
            e("s_xor_b32 s%d, s%d, s%d" % (PE + 1, PD + 1, PD + 4))
            if P["pol"] == 8:
                e("s_and_b32 s%d, s%d, 5" % (PE + 2, PD + 3))
                e("s_cselect_b32 s%d, 14, 10" % (PE + 2))
                e("s_cmp_eq_u32 s%d, s%d" % (PE, PE + 1))
                e("s_cselect_b32 s%d, 10, s%d" % (PE + 2, PE + 2))
                e("s_and_b32 s%d, s%d, s%d" % (PE + 2, PE + 2, PE))
            else:
                e("s_and_b32 s%d, s%d, 10" % (PE + 2, PE))
            e("s_cselect_b32 s%d, 0, s%d" % (PE, PE))
            e("s_xor_b32 s%d, s%d, s%d" % (PD, PD, PE))
            e("s_cmp_eq_u32 s%d, s%d" % (PE, PE + 1))
            e("s_cselect_b32 s%d, 1, s%d" % (PE + 1, PE + 1))
            e("s_cmp_eq_u32 s%d, 1" % (PE + 1))
            e("s_cselect_b32 s%d, s%d, s%d" % (PD + 1, PD + 4, PD + 1))
        for b in range(2):
            if not (0, 0, 1, 2, 0, 3, 3, 0, 0, 0)[P["pol"] or 5] >> b & 1:
                continue
            e("s_xor_b32 s%d, s%d, s%d" % (PE, PD + b, PD + 3 + b))
            e("s_and_b32 s%d, s%d, %d" % (PE, PE, 14 if P["pol"] == 6 else 10))
            e("s_cselect_b32 s%d, s%d, s%d" % (PD + b, PD + b, PD + 3 + b))
        for b in range(5):
            e("s_or_b32 s%d, s%d, 16" % (PD + b, PD + b))
            e("v_writelane_b32 v%d, s%d, %d" % (HC, PD + b, b))
        e("s_mov_b64 exec, 0x1f")
        e("ds_write_b32 v%d, v%d offset:%d" % (HB_, HC, L_DEC + 4))
        e("s_mov_b64 exec, -1")
    else:
        decode("b", 5, 128, 16, NR, L_DEC + 4, 1)
    if P["xkp"] & 2048:
        srd(PB, 70, H * NGRP * DH * 2)
        e("s_memrealtime s[%d:%d]" % (PT, PT + 1))
        e("v_lshlrev_b32 v%d, 4, v%d" % (HW, HL))
        e("s_add_u32 s%d, s%d, 32" % (PE, PG))
        e("s_lshl_b32 s%d, s%d, 16" % (PE, PE))
        e("s_mov_b32 s%d, 0" % PRN)
        e("s_waitcnt lgkmcnt(0)")
        e("s_add_u32 s%d, s%d, %d" % (PT, PT, P["xa"]))
        e.label("L_xk")
        e("s_memrealtime s[%d:%d]" % (PT + 2, PT + 3))
        e("s_waitcnt lgkmcnt(0)")
        e("s_sub_u32 s%d, s%d, s%d" % (PT + 2, PT + 2, PT))
        e("s_cmp_lt_i32 s%d, 0" % (PT + 2))
        e("s_cbranch_scc1 L_xk")
        for k in range(P["xn"]):
            e("buffer_load_dwordx4 v[%d:%d], v%d, s[%d:%d], s%d offen offset:%d" % (HX + 4 * k, HX + 4 * k + 3, HW, PB, PB + 3, PE, (k % 4) * 1024))
            if k % 4 == 3 or k == P["xn"] - 1:
                e("s_add_u32 s%d, s%d, %d" % (PE, PE, 1024 * (k % 4 + 1)))
        e("s_add_u32 s%d, s%d, %d" % (PT, PT, 222 * P["xn"] // 4))
        e("s_add_u32 s%d, s%d, %d" % (PRN, PRN, P["xn"]))
        e("s_cmp_eq_u32 s%d, 64" % PRN)
        e("s_cselect_b32 s%d, %d, 0" % (PE + 1, 31 << 16))
        e("s_add_u32 s%d, s%d, s%d" % (PE, PE, PE + 1))
        e("s_waitcnt vmcnt(0)")
        e("s_cmp_lt_u32 s%d, 128" % PRN)
        e("s_cbranch_scc1 L_xk")
    if P["xkp"] & 4096:
        srd(PB, 74, H * SKV * 2)
        srd(PS2, 76, H * SKV * 2)
        e("s_memrealtime s[%d:%d]" % (PT, PT + 1))
        e("v_lshlrev_b32 v%d, 4, v%d" % (HW, HL))
        e("s_mul_i32 s%d, s%d, 21845" % (PE, PG))
        e("s_andn2_b32 s%d, s%d, 127" % (PE, PE))
        e("s_mov_b32 s%d, 0" % PRN)
        e("s_mov_b32 s%d, 0" % PMN)
        e("s_waitcnt lgkmcnt(0)")
        e("s_add_u32 s%d, s%d, %d" % (PT, PT, P["xa"]))
        e.label("L_xv")
        for sr in (PB, PS2):
            twait(PT, PT + 2, P["xn"])
            e("buffer_load_dwordx4 v[%d:%d], v%d, s[%d:%d], s%d offen" % (HX, HX + 3, HW, sr, sr + 3, PE))
        e("s_add_u32 s%d, s%d, 1024" % (PE, PE))
        e("s_add_u32 s%d, s%d, 1" % (PRN, PRN))
        e("s_cmp_lt_u32 s%d, 22" % PRN)
        e("s_cbranch_scc1 L_xv")
        e("s_mov_b32 s%d, 0" % PRN)
        e("s_add_u32 s%d, s%d, %d" % (PE, PE, 32 * 21845 // 128 * 128 - 22 * 1024))
        e("s_add_u32 s%d, s%d, %d" % (PT, PT, 3520 - 44 * P["xn"]))
        e("s_add_u32 s%d, s%d, 1" % (PMN, PMN))
        e("s_cmp_lt_u32 s%d, 3" % PMN)
        e("s_cbranch_scc1 L_xv")
        e("s_waitcnt vmcnt(0)")
    if P["lx"]:
        e("s_mul_i32 s%d, s%d, 43" % (PE, PG))
        e("s_lshr_b32 s%d, s%d, 8" % (PE, PE))
        e("s_mul_i32 s%d, s%d, 6" % (PE + 1, PE))
        e("s_sub_u32 s%d, s%d, s%d" % (PBK, PG, PE + 1))
        e("s_cmp_ge_u32 s%d, 3" % PBK)
        e("s_cselect_b32 s%d, s68, s66" % PB)
        e("s_cselect_b32 s%d, s69, s67" % (PBASE + 1))
        e("s_cselect_b32 s%d, 3, 0" % (PE + 1))
        e("s_sub_u32 s%d, s%d, s%d" % (PE + 1, PBK, PE + 1))
        e("s_lshl_b32 s%d, s%d, 28" % (PO, PE + 1))
        e("s_mul_i32 s%d, s%d, %d" % (PE, PE, 21 << 21))
        e("s_add_u32 s%d, s%d, s%d" % (PO, PO, PE))
        e("s_add_u32 s%d, s%d, %d" % (PO, PO, (7 << 21) + (1 << 20)))
        e("s_and_b32 s%d, s%d, 0xffff" % (PB + 1, PBASE + 1))
        e("s_mov_b32 s%d, %d" % (PB + 2, H * HEADB))
        e("s_mov_b32 s%d, 0x00020000" % (PB + 3))
        e("s_add_u32 s%d, s%d, %d" % (PE, PM, P["lx"]))
        e("s_and_b32 s%d, s%d, 7" % (PE, PE))
        e("s_lshl_b32 s%d, s%d, 9" % (PE, PE))
        e("v_lshlrev_b32 v%d, 12, v%d" % (HW, HL))
        e("v_add_u32 v%d, s%d, v%d" % (HW, PE, HW))
        for j in range(3):
            e("buffer_load_dword v%d, v%d, s[%d:%d], s%d offen offset:%d" % (HX + j, HW, PB, PB + 3, PO, j * 128))
        e("s_add_u32 s%d, s%d, s%d" % (PBASE, PB, PO))
        e("s_addc_u32 s%d, s%d, 0" % (PBASE + 1, PBASE + 1))
        e("s_lshl_b32 s%d, s%d, 9" % (PE, PM))
        e("s_add_u32 s%d, s%d, s%d" % (PBASE, PBASE, PE))
        e("s_addc_u32 s%d, s%d, 0" % (PBASE + 1, PBASE + 1))
        e("s_load_dword s%d, s[%d:%d], 384" % (PJ, PBASE, PBASE + 1))
        e("s_load_dword s%d, s[%d:%d], 0x20180" % (PJ, PBASE, PBASE + 1))
        e("s_waitcnt vmcnt(0) lgkmcnt(0)")
        lds_wait("lx", HZ, HE, PE, L_EV + 4, "8", PSP)
        for j in range(3):
            e("s_mov_b32 m0, 0")
            e("s_mov_b32 s%d, %d" % (PE, j * 128))
            e.label("L_lx%d" % j)
            e("s_memtime s[%d:%d]" % (PT, PT + 1))
            e("s_waitcnt lgkmcnt(0)")
            e("s_load_dword s%d, s[%d:%d], s%d" % (PJ, PBASE, PBASE + 1, PE))
            e("s_waitcnt lgkmcnt(0)")
            e("s_memtime s[%d:%d]" % (PT + 2, PT + 3))
            e("s_waitcnt lgkmcnt(0)")
            e("s_sub_u32 s%d, s%d, s%d" % (PT, PT + 2, PT))
            e("v_writelane_b32 v%d, s%d, m0" % (HX + j, PT))
            e("s_add_u32 s%d, s%d, 4096" % (PE, PE))
            e("s_add_u32 m0, m0, 1")
            e("s_cmp_lt_u32 m0, 64")
            e("s_cbranch_scc1 L_lx%d" % j)
        e("s_memrealtime s[%d:%d]" % (PT, PT + 1))
        e("s_waitcnt lgkmcnt(0)")
        e("v_mov_b32 v%d, s%d" % (HX + 3, PT))
        srd(PB, 82, 0x8000000)
        e("s_lshl_b32 s%d, s2, 10" % PE)
        e("s_add_u32 s%d, s%d, 0x4090000" % (PE, PE))
        e("v_lshlrev_b32 v%d, 4, v%d" % (HW, HL))
        e("buffer_store_dwordx4 v[%d:%d], v%d, s[%d:%d], s%d offen" % (HX, HX + 3, HW, PB, PB + 3, PE))
    if FU:
        CSC = 24; CMK = 56; CRB = 57; CO = 92
        e("s_and_b32 s%d, s%d, 7" % (PE, PG))
        e("s_cmp_lg_u32 s%d, s%d" % (PE, PM))
        e("s_cbranch_scc1 L_exit1")
        e("s_mul_i32 s%d, s%d, 3" % (PE, PG))
        e("s_add_u32 s%d, s%d, 2" % (PE, PE))
        e("s_lshr_b32 s%d, s%d, 5" % (PE, PE))
        e("s_lshl_b32 s%d, s%d, 2" % (PE, PE))
        e("v_mov_b32 v%d, s%d" % (HW, PE))
        e("s_mul_i32 s%d, s%d, 24" % (CRB, PG))
        e("v_add_u32 v%d, s%d, v%d" % (HG, CRB, HL))
        e("v_and_b32 v%d, 255, v%d" % (HR, HG))
        e("v_mul_u32_u24 v%d, %d, v%d" % (HR, FSTR, HR))
        e("v_lshlrev_b32 v%d, 6, v%d" % (HG, HG))
        e("s_mov_b32 s%d, %d" % (PE + 1, WS_G))
        e("s_mov_b32 s%d, %d" % (PE + 2, WS_ML))
        e("v_mov_b32 v%d, 0x%08x" % (HA, BIGNEG))
        e("v_mov_b32 v%d, 0" % HB_)
        if P["cd"]:
            th = [12 * (len(CPK) + min(j for j, c in enumerate(CPV) if c > b)) + P["cd"] for b in (16, 32, 4)]
            e("s_mov_b32 s%d, %d" % (PE + 3, th[0]))
            e("s_cmp_eq_u32 s%d, 4" % PE)
            e("s_cselect_b32 s%d, %d, s%d" % (PE + 3, th[1], PE + 3))
            e("s_cmp_eq_u32 s%d, 8" % PE)
            e("s_cselect_b32 s%d, %d, s%d" % (PE + 3, th[2], PE + 3))
            lds_wait("cg", HZ, HE, PE, L_TC, "s%d" % (PE + 3), PSP)
        else:
            lds_wait("cg", HZ, HE, PE, L_GO, "nz", PSP, HW)
        for tag, ld, chk in (("f", "buffer_load_dword v%d, v%d, s[%d:%d], s%d offen sc1" % (HD, HR, PWS, PWS + 3, PE + 1), HD),
                             ("m", "buffer_load_dwordx4 v[%d:%d], v%d, s[%d:%d], s%d offen sc1" % (HA, HD, HG, PWS, PWS + 3, PE + 2), HD)):
            e("s_mov_b64 exec, 0xffffff")
            e("s_mov_b32 s%d, 0x40000" % PSP)
            e.label("L_cp" + tag)
            e(ld)
            e("s_sub_u32 s%d, s%d, 1" % (PSP, PSP))
            e("s_cbranch_scc1 L_exit1")
            e("s_waitcnt vmcnt(0)")
            e("v_cmpx_eq_u32 vcc, 0, v%d" % chk)
            e("s_cbranch_execnz L_cp" + tag)
        e("s_mov_b64 exec, -1")
        e("v_mov_b32 v%d, v%d" % (HC, HA))
        wave_reduce([HC], "v_max_f32", [HD])
        e("v_sub_f32 v%d, v%d, v%d" % (HA, HA, HC))
        e("v_exp_f32 v%d, v%d" % (HA, HA))
        e("v_mul_f32 v%d, v%d, v%d" % (HB_, HB_, HA))
        wave_reduce([HB_], "v_add_f32", [HD])
        e("v_rcp_f32 v%d, v%d" % (HB_, HB_))
        e("v_mul_f32 v%d, v%d, v%d" % (HA, HA, HB_))
        if P["fc"]:
            e("s_cmp_lt_u32 s%d, 21" % PG)
            e("s_cbranch_scc1 L_cown")
            e("s_mul_i32 s%d, s%d, %d" % (PE, PG, FSTR))
            e("s_add_u32 s%d, s%d, %d" % (PE, PE, WS_G + ELN * FSTR))
            e("v_lshlrev_b32 v%d, 2, v%d" % (HR, HL))
            e("v_mov_b32 v%d, 1" % HB_)
            e("s_mov_b64 exec, 0xffffff")
            e("buffer_store_dword v%d, v%d, s[%d:%d], s%d offen offset:128 sc1" % (HA, HR, PWS, PWS + 3, PE))
            e("s_mov_b64 exec, 1")
            e("s_waitcnt vmcnt(0)")
            e("buffer_store_dword v%d, off, s[%d:%d], s%d offset:4 sc1" % (HB_, PWS, PWS + 3, PE))
            e("s_endpgm")
            e.label("L_cown")
        for r in range(24):
            e("v_readlane_b32 s%d, v%d, %d" % (CSC + r, HA, r))
        srd(CO, 78, H * DH * 2)
        e("s_lshl_b32 s%d, s%d, 10" % (CRB, CRB))
        e("v_lshlrev_b32 v%d, 4, v%d" % (HG, HL))
        e("v_add_u32 v%d, s%d, v%d" % (HG, CRB, HG))
        for k in range(1, 6):
            e("s_mov_b32 s%d, %d" % (PE + k, 4096 * k))
        for r in (HA, HB_, HC):
            e("v_mov_b32 v%d, 0" % r)
        e("s_mov_b32 s%d, 0xffffff" % CMK)
        e("v_lshlrev_b32 v%d, 1, v%d" % (HR, HL))
        e("s_mul_i32 s%d, s%d, %d" % (CRB, PG, DH * 2))
        lds_wait("cc", HZ, HE, PE, L_CA, "%d" % P["cw"], PSP, HW)
        e("s_mov_b32 s%d, 0x40000" % PSP)
        e.label("L_cr")
        for r in range(24):
            e("s_bitcmp0_b32 s%d, %d" % (CMK, r))
            e("s_cbranch_scc1 L_cl%d" % r)
            e("buffer_load_dwordx4 v[%d:%d], v%d, s[%d:%d], %s offen offset:%d sc1" %
              (HX + 4 * r, HX + 4 * r + 3, HG, PWS, PWS + 3, "s%d" % (PE + r // 4) if r >= 4 else "0", (r % 4) * 1024))
            e.lines.append("L_cl%d:" % r)
        e("s_sub_u32 s%d, s%d, 1" % (PSP, PSP))
        e("s_cbranch_scc1 L_exit1")
        e("s_waitcnt vmcnt(0)")
        for r in range(24):
            e("s_bitcmp0_b32 s%d, %d" % (CMK, r))
            e("s_cbranch_scc1 L_cv%d" % r)
            e("v_cmp_eq_u32 vcc, 0, v%d" % (HX + 4 * r + 3))
            e("s_cbranch_vccnz L_cv%d" % r)
            for k, a_ in enumerate((HA, HB_, HC)):
                e("v_fmac_f32 v%d, s%d, v%d" % (a_, CSC + r, HX + 4 * r + k))
            e("s_bitset0_b32 s%d, %d" % (CMK, r))
            e.lines.append("L_cv%d:" % r)
        e("s_cmp_lg_u32 s%d, 0" % CMK)
        e("s_cbranch_scc1 L_cr")
        for k, a_ in enumerate((HA, HB_, HC)):
            e("v_cvt_pk_bf16_f32 v%d, v%d, v%d" % (a_, a_, a_))
            e("buffer_store_short v%d, v%d, s[%d:%d], s%d offen offset:%d" % (a_, HR, CO, CO + 3, CRB, k * 128))
        if P["stamp"] == 5:
            e("s_memrealtime s[%d:%d]" % (PT, PT + 1))
            e("s_waitcnt vmcnt(0)")
            e("s_memrealtime s[%d:%d]" % (PT + 2, PT + 3))
            srd(PS2, 82, 0x8000000)
            e("s_waitcnt lgkmcnt(0)")
            e("v_mov_b32 v%d, s%d" % (HX, PT))
            e("v_mov_b32 v%d, s%d" % (HX + 1, PT + 2))
            e("v_mov_b32 v%d, s%d" % (HX + 2, PSP))
            e("s_lshl_b32 s%d, s%d, 4" % (PE, PG))
            e("s_add_u32 s%d, s%d, 0x4009000" % (PE, PE))
            e("s_mov_b64 exec, 1")
            e("buffer_store_dwordx4 v[%d:%d], off, s[%d:%d], s%d" % (HX, HX + 3, PS2, PS2 + 3, PE))
    e("s_endpgm")

    def seg_scalars():
        e("s_lshl_b32 s%d, s%d, 5" % (PSG, PPH))
        e("s_add_u32 s%d, s%d, s%d" % (PSG, PSG, PG))
        e("s_lshl_b32 s%d, s%d, 15" % (PG0, PSG))
        e("s_add_u32 s%d, s%d, 1" % (PG0, PG0))
        e("s_mul_hi_u32 s%d, s%d, 0xaaaaaaab" % (PG0, PG0))
        e("s_lshr_b32 s%d, s%d, 7" % (PG0, PG0))

    def get_dec(tag):
        lds_wait(tag, HZ, HE, PE, L_DEC + 20, "nz", PSP)
        e("ds_read_b128 v[%d:%d], v%d offset:%d" % (HX, HX + 3, HZ, L_DEC))
        e("ds_read_b64 v[%d:%d], v%d offset:%d" % (HX + 4, HX + 5, HZ, L_DEC + 16))
        e("s_waitcnt lgkmcnt(0)")
        for i in range(6):
            e("v_readfirstlane_b32 s%d, v%d" % (PDC + i, HX + i))

    e.label("L_h0")
    srd(PB, 64, H * DH * 2)
    srd(PS2, 70, H * NGRP * DH * 2)
    srd(PS3, 72, H * NGRP * DH * 2)
    e("v_lshrrev_b32 v%d, 4, v%d" % (HA, HL))
    e("v_and_b32 v%d, 15, v%d" % (HB_, HL))
    e("v_lshlrev_b32 v%d, 3, v%d" % (HC, HB_))
    e("v_mul_u32_u24 v%d, %d, v%d" % (HD, DH * 2, HA))
    e("v_add_u32 v%d, v%d, v%d" % (HD, HD, HC))
    e("v_lshl_add_u32 v%d, v%d, 2, v%d" % (HG, HB_, HA))
    e("v_lshlrev_b32 v%d, 2, v%d" % (HG, HG))
    BQ = HX; BS = HX + 12; BZ = BS + 36; BR = BZ + 36
    PFA = 32; PIA = 33
    e("v_lshlrev_b32 v%d, 4, v%d" % (HA, HL))
    e("s_mul_i32 s%d, s%d, %d" % (PFA, PNB, FSTR))
    e("s_add_u32 s%d, s%d, s%d" % (PFA, PFA, PGL))
    e("s_lshl_b32 s%d, s%d, 3" % (PIA, PG))
    e("s_add_u32 s%d, s%d, s%d" % (PIA, PIA, PNB))
    IMS = PHI if P["il"] else IMG
    PHS = NWG * PHI if P["il"] else PHI
    CX = P["cx"]
    if CX:
        assert N0 <= 4 and not P["xp"]
        IMS = 4096; PHS = NWG * IMS
        e("v_and_b32 v%d, 7, v%d" % (HN, HL))
        e("v_lshrrev_b32 v%d, 3, v%d" % (HE, HL))
        e("v_mul_u32_u24 v%d, 24, v%d" % (HK, HE))
        e("v_mov_b32 v%d, 768" % HF)
        e("v_mad_u32_u24 v%d, v%d, v%d, v%d" % (HK, HN, HF, HK))
        e("v_lshlrev_b32 v%d, 7, v%d" % (HN, HN))
        e("v_lshl_add_u32 v%d, v%d, 4, v%d" % (HN, HE, HN))
    XZ = P["xz"]; XS = 1 << P["xr"]

    def img_lane(dst, tmp):
        if XZ >= 1024:
            e("v_lshlrev_b32 v%d, 4, v%d" % (dst, HL))
            return
        lz = (XZ // 16).bit_length() - 1
        e("v_lshrrev_b32 v%d, %d, v%d" % (dst, lz, HL))
        e("v_lshlrev_b32 v%d, %d, v%d" % (dst, P["xr"], dst))
        e("v_and_b32 v%d, %d, v%d" % (tmp, XZ // 16 - 1, HL))
        e("v_lshl_add_u32 v%d, v%d, 4, v%d" % (dst, tmp, dst))

    def img_base(dst, slot, tmp):
        spr = XS // XZ
        assert 8 <= spr <= 256 and PHI % XZ == 0
        e("s_lshr_b32 s%d, s%d, %d" % (tmp, slot, spr.bit_length() - 1))
        e("s_mul_i32 s%d, s%d, %d" % (tmp, tmp, XS * (PHI // XZ)))
        e("s_and_b32 s%d, s%d, %d" % (dst, slot, spr - 1))
        e("s_mul_i32 s%d, s%d, %d" % (dst, dst, XZ))
        e("s_add_u32 s%d, s%d, s%d" % (dst, dst, tmp))

    def img_k(k):
        return (k * 1024 // XZ) * XS + k * 1024 % XZ

    if XZ:
        assert P["il"] and not CX and not P["xp"]
        img_base(PIA, PIA, PE)
        img_lane(HN, HE)
    else:
        e("s_mul_i32 s%d, s%d, %d" % (PIA, PIA, IMS))
    e("s_add_u32 s%d, s%d, %d" % (PIA, PIA, WS_L))

    def bias(ph):
        e("s_mov_b32 s%d, %d" % (PPH, ph))
        seg_scalars()
        e("s_mul_i32 s%d, s%d, 171" % (PE, PSG))
        e("s_lshr_b32 s%d, s%d, 9" % (PE, PE))
        e("s_mul_i32 s%d, s%d, %d" % (PE, PE, DH * 2))
        e("s_mul_i32 s%d, s%d, 24" % (PE + 1, PM))
        e("s_add_u32 s%d, s%d, s%d" % (PE + 2, PE + 1, PG0))
        e("s_mul_i32 s%d, s%d, %d" % (PE + 2, PE + 2, DH * 2))
        e("v_add_u32 v%d, s%d, v%d" % (HE, PE + 2, HD))
        e("v_add_u32 v%d, %d, v%d" % (HF, 8 * DH * 2, HE))
        e("v_add_u32 v%d, %d, v%d" % (HR, 16 * DH * 2, HE))
        for c in range(3):
            e("buffer_load_dwordx2 v[%d:%d], v%d, s[%d:%d], s%d offen offset:%d" % (BR + 2 * c, BR + 2 * c + 1, HC, PB, PB + 3, PE, c * 128))
        split = P["bs"] & (1 if ph else 2)
        order = [(st, a) for st in range(6) for a in range(2)]
        if split:
            order.sort(key=lambda x: x[1])
        for st, a in order:
            va = (HE, HF, HR)[st // 2]
            sr, bb = ((PS2, BS), (PS3, BZ))[a]
            if split and (st, a) == (0, 1):
                if ph:
                    lds_wait("z%d" % ph, HZ, HV, PE + 3, L_EV + 4, str(8 * ph - 8 + P["bz"]), PSP)
                else:
                    lds_wait("z0", HZ, HV, PE + 3, L_TC, str(P["bz0"]), PSP)
            bt = P["bt"] if ph else P["bt0"]
            if bt:
                if st == 0 and bb == BS:
                    e("s_memrealtime s[%d:%d]" % (PT, PT + 1))
                    e("s_waitcnt lgkmcnt(0)")
                twait(PT, PT + 2, bt)
            for c in range(3):
                r = bb + st * 6 + 2 * c
                if P["xb"] & 1:
                    continue
                e("buffer_load_dwordx2 v[%d:%d], v%d, s[%d:%d], 0 offen offset:%d%s" %
                  (r, r + 1, va, sr, sr + 3, (st & 1) * 4 * DH * 2 + c * 128,
                   " nt" if P["bnt"] & (1 if bb == BZ else 2) else ""))
            if (P["bp"] == 2 or P["bp"] == 1 and a) and (ph or P["bp0"]):
                e("s_waitcnt vmcnt(%d)" % P["bq"])
        e("s_waitcnt vmcnt(0)")
        for p in range(6):
            e("v_lshlrev_b32 v%d, 16, v%d" % (BQ + 2 * p, BR + p))
            e("v_and_b32 v%d, 0xffff0000, v%d" % (BQ + 2 * p + 1, BR + p))
        for st in range(6):
            acc = BR + st
            for p in range(6):
                rs = BS + st * 6 + p; rz = BZ + st * 6 + p
                e("v_lshlrev_b32 v%d, 16, v%d" % (HE, rs))
                e("v_lshlrev_b32 v%d, 16, v%d" % (HF, rz))
                e("v_and_b32 v%d, 0xffff0000, v%d" % (rs, rs))
                e("v_and_b32 v%d, 0xffff0000, v%d" % (rz, rz))
                e("v_mul_f32 v%d, v%d, v%d" % (HE, HE, BQ + 2 * p))
                e("v_mul_f32 v%d, v%d, v%d" % (rs, rs, BQ + 2 * p + 1))
                if p == 0:
                    e("v_mul_f32 v%d, v%d, v%d" % (acc, HE, HF))
                else:
                    e("v_fmac_f32 v%d, v%d, v%d" % (acc, HE, HF))
                e("v_fmac_f32 v%d, v%d, v%d" % (acc, rs, rz))
        for kk in (8, 4, 2, 1):
            for st in range(6):
                e("v_add_f32_dpp v%d, v%d, v%d row_ror:%d row_mask:0xf bank_mask:0xf" % (BR + st, BR + st, BR + st, kk))
        for st in range(1, 6):
            e("v_cmp_eq_u32 vcc, %d, v%d" % (st, HB_))
            e("v_cndmask_b32 v%d, v%d, v%d, vcc" % (BR, BR, BR + st))
        e("s_mul_i32 s%d, s%d, 768" % (PE, PSG))
        e("s_lshl_b32 s%d, s%d, 2" % (PE + 1, PE + 1))
        e("s_add_u32 s%d, s%d, s%d" % (PE, PE, PE + 1))
        e("s_add_u32 s%d, s%d, %d" % (PE, PE, WS_B))
        e("s_mov_b32 exec_lo, 0x003f003f")
        e("s_mov_b32 exec_hi, 0x003f003f")
        e("buffer_store_dword v%d, v%d, s[%d:%d], s%d offen sc1" % (BR, HG, PWS, PWS + 3, PE))
        e("s_mov_b64 exec, -1")

    def vpf(late):
        srd(PS2, 74, H * SKV * 2)
        srd(PS3, 76, H * SKV * 2)
        if late:
            lds_wait("pf", HZ, HE, PE, L_EV, "1", PSP)
        e("v_lshlrev_b32 v%d, 4, v%d" % (HE, HL))
        e("s_lshl_b32 s%d, s2, 13" % PE)
        e("s_add_u32 s%d, s%d, 4096" % (PE + 1, PE))
        for a, sr in enumerate((PS2, PS3)):
            for k in range(8):
                r = HX + 4 * (a * 8 + k)
                e("buffer_load_dwordx4 v[%d:%d], v%d, s[%d:%d], s%d offen offset:%d" % (r, r + 3, HE, sr, sr + 3, PE + k // 4, (k % 4) * 1024))
        e("s_waitcnt vmcnt(0)")

    def flush(p):
        if P["xp"]:
            e("s_cmp_eq_u32 s%d, s%d" % (PDC + p, PDC + 3 + p))
            if p:
                e("s_cbranch_scc1 L_fp%d" % p)
            e("s_add_u32 s%d, s%d, %d" % (PE + 6, PIA, p * PHS))
            e("s_add_u32 s%d, s%d, %d" % (PE + 7, PIA, p * PHS + 4096))
            e("s_cmp_eq_u32 s%d, s%d" % (PDC + p, PDC + 3 + p))
            for k in range(6):
                if p == 0:
                    mk = sum(1 << l for l in range(64) if (64 * k + l) % 48 < (3 * N0 + 7) // 8 * 8)
                    e("s_cselect_b32 exec_lo, 0x%x, -1" % (mk & 0xffffffff))
                    e("s_cselect_b32 exec_hi, 0x%x, -1" % (mk >> 32))
                e("buffer_load_dwordx4 v[%d:%d], v%d, s[%d:%d], s%d offen offset:%d %s" %
                  (HX + 4 * k, HX + 4 * k + 3, HA, PWS, PWS + 3, PE + 6 + k // 4, (k % 4) * 1024, ("", "sc1", "", "nt")[P["xp"]]))
            e("s_mov_b64 exec, -1")
            e("s_waitcnt vmcnt(0)")
            e.label("L_fp%d" % p)
        lds_wait("f%d" % p, HZ, HE, PE, L_CF + 4 * p, "4", PSP)
        e("s_cmp_eq_u32 s%d, s%d" % (PDC + p, PDC + 3 + p))
        if p:
            e("s_cbranch_scc1 L_fl%d" % p)
        if CX:
            for st in range(4):
                for c in range(3):
                    r = HX + 12 * st + 2 * c
                    e("ds_read_b64 v[%d:%d], v%d offset:%d" % (r, r + 1, HK, L_LG + p * PHI + st * 192 + 8 * c))
            e("s_add_u32 s%d, s%d, %d" % (PE + 6, PIA, p * PHS))
            e("s_cmp_eq_u32 s%d, s%d" % (PDC + p, PDC + 3 + p))
            e("s_waitcnt lgkmcnt(0)")
            for st in range(4):
                B = HX + 12 * st
                e("v_cmp_eq_f32 vcc, 0, v%d" % (B + 5))
                e("v_max3_f32 v%d, v%d, v%d, v%d" % (B + 9, B, B + 1, B + 2))
                e("v_cndmask_b32 v%d, v%d, v%d, vcc" % (B + 8, B + 5, B + 4))
                e("v_max3_f32 v%d, v%d, v%d, v%d" % (B + 9, B + 9, B + 3, B + 4))
                e("v_max_f32 v%d, v%d, v%d" % (B + 8, B + 8, B + 9))
                for k in range(6):
                    e("v_sub_f32 v%d, v%d, v%d" % (B + k, B + k, B + 8))
                for k in range(3):
                    e("v_cvt_pk_f16_f32 v%d, v%d, v%d" % (B + 9 + k, B + 2 * k, B + 2 * k + 1))
                if not P["xkp"] & 16:
                    e("buffer_store_dwordx4 v[%d:%d], v%d, s[%d:%d], s%d offen offset:%d %s" %
                      (B + 8, B + 11, HN, PWS, PWS + 3, PE + 6, st * 1024, P["st"]))
                if p == 0 and st == 0:
                    e("s_cbranch_scc1 L_fl0")
        else:
            for k in range(6):
                e("ds_read_b128 v[%d:%d], v%d offset:%d" % (HX + 4 * k, HX + 4 * k + 3, HA, L_LG + p * PHI + k * 1024))
            if XZ:
                for k in range(6):
                    e("s_add_u32 s%d, s%d, %d" % (PE + k, PIA, p * PHS + img_k(k)))
            else:
                e("s_add_u32 s%d, s%d, %d" % (PE + 6, PIA, p * PHS))
                e("s_add_u32 s%d, s%d, %d" % (PE + 7, PIA, p * PHS + 4096))
            e("s_cmp_eq_u32 s%d, s%d" % (PDC + p, PDC + 3 + p))
            e("s_waitcnt lgkmcnt(0)")
            for k in range(6):
                if P["fw"]:
                    if k == 0:
                        e("s_memrealtime s[%d:%d]" % (PT, PT + 1))
                        e("s_waitcnt lgkmcnt(0)")
                    twait(PT, PT + 2, P["fw"])
                    e("s_cmp_eq_u32 s%d, s%d" % (PDC + p, PDC + 3 + p))
                if p == 0:
                    mk = sum(1 << l for l in range(64) if (64 * k + l) % 48 < (3 * N0 + 7) // 8 * 8)
                    e("s_cselect_b32 exec_lo, 0x%x, -1" % (mk & 0xffffffff))
                    e("s_cselect_b32 exec_hi, 0x%x, -1" % (mk >> 32))
                if XZ:
                    e("buffer_store_dwordx4 v[%d:%d], v%d, s[%d:%d], s%d offen %s" %
                      (HX + 4 * k, HX + 4 * k + 3, HN, PWS, PWS + 3, PE + k, P["st"]))
                elif not P["xkp"] & 16:
                    e("buffer_store_dwordx4 v[%d:%d], v%d, s[%d:%d], s%d offen offset:%d %s" %
                      (HX + 4 * k, HX + 4 * k + 3, HA, PWS, PWS + 3, PE + 6 + k // 4, (k % 4) * 1024, P["st"]))
            if p == 0:
                e("s_mov_b64 exec, -1")
            if P["wb"]:
                e("s_waitcnt vmcnt(0)")
                e("buffer_wbl2 sc1")
        e.label("L_fl%d" % p)
        e("v_mov_b32 v%d, %d" % (HE, p + 1))
        e("s_waitcnt vmcnt(0)")
        e("s_mov_b64 exec, 1")
        opt = p == 2 or (p == 1 and not P["jit"])
        if opt:
            e("s_cbranch_scc1 L_fn%d" % p)
        e("buffer_store_dword v%d, off, s[%d:%d], s%d sc1" % (HE, PWS, PWS + 3, PFA))
        if opt:
            e.label("L_fn%d" % p)
        e("ds_write_b32 v%d, v%d offset:%d" % (HZ, HE, L_FD))
        e("s_mov_b64 exec, -1")

    if FU:
        for i in range(4):
            e("v_mov_b32 v%d, 0" % (HX + i))
        for p in range(3):
            e("s_add_u32 s%d, s2, %d" % (PE, 256 * p))
            e("s_lshl_b32 s%d, s%d, 10" % (PE + 1, PE))
            e("s_lshl_b32 s%d, s%d, 6" % (PE, PE))
            e("s_add_u32 s%d, s%d, %d" % (PE, PE, WS_ML))
            if not (P["xkp"] & 512 and p < 2):
                e("buffer_store_dwordx4 v[%d:%d], v%d, s[%d:%d], s%d offen sc1" % (HX, HX + 3, HA, PWS, PWS + 3, PE + 1))
            e("s_mov_b64 exec, 15")
            e("buffer_store_dwordx4 v[%d:%d], v%d, s[%d:%d], s%d offen sc1" % (HX, HX + 3, HA, PWS, PWS + 3, PE))
            e("s_mov_b64 exec, -1")
    bias(0)
    if P["pf"] >= 8:
        lds_wait("b0", HZ, HE, PE, L_PF, "nz", PSP)
    if P["jit"] and not P["be1"] & 1:
        lds_wait("b1", HZ, HE, PE, L_EV + 4, "1", PSP)
    bias(1)
    if not P["jit"]:
        bias(2)
    if P["pf"] == 7:
        vpf(False)
    get_dec("d0")
    flush(0)
    if P["jit"]:
        if not P["be1"] & 2:
            lds_wait("b2", HZ, HE, PE, L_EV + 4, "9", PSP)
        bias(2)
    flush(1)
    flush(2)
    if P["at"] and not BC:
        e("v_lshrrev_b32 v%d, 3, v%d" % (HC, HL))
        e("v_xor_b32 v%d, s%d, v%d" % (HC, PM, HC))
        e("v_lshrrev_b32 v%d, 1, v%d" % (HD, HC))
        e("v_and_b32 v%d, 1, v%d" % (HC, HC))
        e("v_lshl_or_b32 v%d, v%d, 2, v%d" % (HD, HC, HD))
        e("v_lshl_or_b32 v%d, v%d, 3, v%d" % (HD, HL, HD))
        e("v_mul_u32_u24 v%d, %d, v%d" % (HD, FSTR, HD))
        lds_wait("t1", HZ, HE, PE, L_TC, "4", PSP)
        e("s_memrealtime s[%d:%d]" % (PT, PT + 1))
        e("s_mov_b64 exec, 1")
        e("s_waitcnt lgkmcnt(0)")
        e("s_or_b32 s%d, s%d, 1" % (PT, PT))
        e("v_mov_b32 v%d, s%d" % (HB_, PT))
        e("buffer_store_dword v%d, off, s[%d:%d], s%d offset:4 sc1" % (HB_, PWS, PWS + 3, PFA))
        e("s_mov_b32 exec_lo, -1")
        e("s_mov_b32 s%d, %d" % (PE + 1, WS_G))
        lds_wait("t2", HZ, HE, PE, L_TC, "5", PSP)
        e("buffer_load_dword v%d, v%d, s[%d:%d], s%d offen offset:4 sc1" % (HB_, HD, PWS, PWS + 3, PE + 1))
        e("v_bfrev_b32 v%d, -2" % HC)
        e("s_mov_b32 s%d, -2048" % PE)
        e("s_waitcnt vmcnt(0)")
        e("v_cmp_eq_u32 vcc, 0, v%d" % HB_)
        e("v_subrev_u32 v%d, s%d, v%d" % (HB_, PT, HB_))
        e("v_cndmask_b32 v%d, v%d, v%d, vcc" % (HB_, HB_, HC))
        for st in (2048, 1024, 512, 256, 128, 64, 32, 16):
            e("s_add_u32 s%d, s%d, %d" % (PE + 1, PE, st))
            e("v_cmp_gt_i32 vcc, s%d, v%d" % (PE + 1, HB_))
            e("s_bcnt1_i32_b64 s%d, vcc" % (PE + 2))
            e("s_cmp_lt_u32 s%d, %d" % (PE + 2, P["aq"]))
            e("s_cselect_b32 s%d, s%d, s%d" % (PE, PE + 1, PE))
        e("s_mul_i32 s%d, s%d, %d" % (PE, PE, -P["ka"]))
        e("s_add_u32 s%d, s%d, %d" % (PE, PE, P["kb"]))
        e("s_ashr_i32 s%d, s%d, 10" % (PE, PE))
        e("s_max_i32 s%d, s%d, %d" % (PE, PE, P["dmin"]))
        e("s_min_i32 s%d, s%d, %d" % (PE, PE, min(P["dmax"], NT - P["te"])))
        e("s_sub_u32 s%d, %d, s%d" % (PE, NT, PE))
        e("s_cmp_eq_u32 s%d, %d" % (PE, NT))
        e("s_cselect_b32 s%d, 255, s%d" % (PE, PE))
        e("v_mov_b32 v%d, s%d" % (HB_, PE))
        e("ds_write_b32 v%d, v%d offset:%d" % (HZ, HB_, L_TD))
    e("s_endpgm")

    def last_gather():
        EL = P["fc"] == 4
        CSC = 24; CO = 96; CR0 = 56; CSO = 57; CHL = 58; CRB = 59; CN = 20
        COF = list(range(64, 76)) + list(range(84, 96))
        RB = HX + 16
        if EL:
            e("s_mov_b64 exec, -1")
            e("v_lshlrev_b32 v%d, 2, v%d" % (HR, HL))
            e("v_add_u32 v%d, %d, v%d" % (HG, L_ACC + 2 * NW * ROWB, HR))
            e("v_lshlrev_b32 v%d, 4, v%d" % (HK, HL))
        e("s_add_u32 s%d, s%d, 64" % (PE, PG))
        e("s_mul_i32 s%d, s%d, 171" % (PE, PE))
        e("s_lshr_b32 s%d, s%d, 9" % (PE, PE))
        e("s_mul_i32 s%d, s%d, %d" % (CHL, PE, FSTR))
        e("s_add_u32 s%d, s%d, %d" % (CHL, CHL, WS_G + ELN * FSTR))
        e("s_mul_i32 s%d, s%d, %d" % (CRB, PE, DH * 2))
        e("s_cmp_eq_u32 s%d, 21" % PE)
        e("s_cselect_b32 s%d, 15, 23" % CN)
        e("s_mul_i32 s%d, s%d, 24" % (PE, PE))
        e("s_add_u32 s%d, s2, 512" % PSG)
        e("s_sub_u32 s%d, s%d, s%d" % (CR0, PSG, PE))
        e("s_lshl_b32 s%d, s%d, 10" % (PSG, PSG))
        e("s_mov_b32 s%d, 0x40000" % PSP)
        e.label("L_fs")
        e("buffer_load_dword v%d, off, s[%d:%d], s%d offset:4 sc1" % (HA, PWS, PWS + 3, CHL))
        e("s_sub_u32 s%d, s%d, 1" % (PSP, PSP))
        e("s_cbranch_scc1 L_exit1")
        e("s_waitcnt vmcnt(0)")
        e("v_cmp_eq_u32 vcc, 0, v%d" % HA)
        e("s_cbranch_vccnz L_fs")
        e("buffer_load_dword v%d, v%d, s[%d:%d], s%d offen offset:128 sc1" % (HE, HR, PWS, PWS + 3, CHL))
        e("ds_read_b128 v[%d:%d], v%d offset:%d" % (HA, HD, HZ, L_ML + 32))
        e("v_xor_b32 v%d, 1, v%d" % (HF, HL))
        e("v_cmp_eq_u32 vcc, s%d, v%d" % (CR0, HL))
        e("v_cndmask_b32 v%d, v%d, v%d, vcc" % (HF, HL, HF))
        e("v_add_u32 v%d, s%d, v%d" % (HF, PE, HF))
        e("v_lshlrev_b32 v%d, 10, v%d" % (HF, HF))
        for r in range(24):
            e("v_readlane_b32 s%d, v%d, %d" % (COF[r], HF, r))
        srd(CO, 78, H * DH * 2)
        e("v_lshlrev_b32 v%d, 1, v%d" % (HR, HL))
        e("s_waitcnt vmcnt(0)")
        e("v_readlane_b32 s%d, v%d, s%d" % (CSO, HE, CR0))
        e("v_cndmask_b32 v%d, v%d, v%d, vcc" % (HE, HE, HZ))
        for r in range(24):
            e("v_readlane_b32 s%d, v%d, %d" % (CSC + r, HE, r))
        e("v_mov_b32 v%d, 1" % HV)
        if EL:
            e("s_mov_b64 exec, 1")
            lds_wait("el", HZ, HE, PE, L_EL, "4", PSP)
            e("buffer_atomic_add v%d, off, s[%d:%d], s%d sc0" % (HV, PWS, PWS + 3, CHL))
            e("s_mov_b64 exec, -1")
            e("s_waitcnt vmcnt(0)")
            e("v_readfirstlane_b32 s%d, v%d" % (PE, HV))
            e("s_cmp_lg_u32 s%d, s%d" % (PE, CN))
            e("s_cbranch_scc1 L_exit1")
            for r in range(24):
                e("buffer_load_dwordx4 v[%d:%d], v%d, s[%d:%d], s%d offen sc1" % (RB + 4 * r, RB + 4 * r + 3, HK, PWS, PWS + 3, COF[r]))
        lds_wait("n", HZ, HE, PE, L_CA + 8, "4", PSP)
        for kk in range(3):
            for w in range(NW):
                e("ds_read_b32 v%d, v%d offset:%d" % (HX + kk * NW + w, HG, w * ROWB + kk * 256))
        if not EL:
            e("s_mov_b64 exec, 1")
            e("buffer_atomic_add v%d, off, s[%d:%d], s%d sc0" % (HV, PWS, PWS + 3, CHL))
            e("s_mov_b64 exec, -1")
        e("s_mov_b32 s%d, 0x40000" % PSP)
        for kk in range(3):
            b = HX + kk * NW
            e("s_waitcnt lgkmcnt(%d)" % (8 - 4 * kk))
            e("v_add_f32 v%d, v%d, v%d" % (b, b, b + 1))
            e("v_add_f32 v%d, v%d, v%d" % (b + 2, b + 2, b + 3))
            e("v_sub_f32 v%d, v%d, v%d" % (b, b, HC))
            e("v_add_f32 v%d, v%d, v%d" % (HX + 12 + kk, b, b + 2))
        if EL:
            e("s_branch L_fr2")
        else:
            e("buffer_store_dwordx4 v[%d:%d], v%d, s[%d:%d], s%d offen sc1" % (HX + 12, HX + 15, HK, PWS, PWS + 3, PSG))
        if P["stamp"] == 5 and not EL:
            e("s_memrealtime s[%d:%d]" % (PE + 4, PE + 5))
        if 2 <= P["fc"] < 4:
            e("s_waitcnt vmcnt(%d)" % (P["fc"] - 2))
            e("v_readfirstlane_b32 s%d, v%d" % (PE, HV))
            e("s_cmp_lg_u32 s%d, s%d" % (PE, CN))
            e("s_cbranch_scc1 L_fx")
        e.label("L_fr")
        for r in range(24):
            e("buffer_load_dwordx4 v[%d:%d], v%d, s[%d:%d], s%d offen sc1" % (RB + 4 * r, RB + 4 * r + 3, HK, PWS, PWS + 3, COF[r]))
        e.lines.append("L_fr2:")
        for k, a_ in enumerate((HA, HB_, HC)):
            e("v_mul_f32 v%d, s%d, v%d" % (a_, CSO, HX + 12 + k))
        e("v_mov_b32 v%d, 1" % HD)
        e("s_sub_u32 s%d, s%d, 1" % (PSP, PSP))
        e("s_cbranch_scc1 L_exit1")
        for r in range(24):
            if r % 2 == 0:
                e("s_waitcnt vmcnt(%d)" % (22 - r))
            for k, a_ in enumerate((HA, HB_, HC)):
                e("v_fmac_f32 v%d, s%d, v%d" % (a_, CSC + r, RB + 4 * r + k))
            if r % 2:
                e("v_min3_u32 v%d, v%d, v%d, v%d" % (HD, HD, RB + 4 * r - 1, RB + 4 * r + 3))
        if P["fc"] == 1:
            e("v_readfirstlane_b32 s%d, v%d" % (PE, HV))
        e("v_cmp_eq_u32 vcc, 0, v%d" % HD)
        for a_ in (HA, HB_, HC):
            e("v_cvt_pk_bf16_f32 v%d, v%d, v%d" % (a_, a_, a_))
        if P["fc"] == 1:
            e("s_cmp_lg_u32 s%d, s%d" % (PE, CN))
            e("s_cbranch_scc1 L_fx")
        e("s_cbranch_vccnz L_fr")
        for k, a_ in enumerate((HA, HB_, HC)):
            e("buffer_store_short v%d, v%d, s[%d:%d], s%d offen offset:%d" % (a_, HR, CO, CO + 3, CRB, k * 128))
        if P["stamp"] == 5:
            e("s_memrealtime s[%d:%d]" % (PT, PT + 1))
            e("s_waitcnt vmcnt(0)")
            e("s_memrealtime s[%d:%d]" % (PT + 2, PT + 3))
            srd(PS2, 82, 0x8000000)
            e("s_waitcnt lgkmcnt(0)")
            e("v_mov_b32 v%d, s%d" % (HX, PT))
            e("v_mov_b32 v%d, s%d" % (HX + 1, PT + 2))
            e("v_mov_b32 v%d, s%d" % (HX + 2, PSP))
            e("s_mul_i32 s%d, s%d, 171" % (PE, CRB))
            e("s_lshr_b32 s%d, s%d, 16" % (PE, PE))
            e("s_lshl_b32 s%d, s%d, 4" % (PE, PE))
            e("s_add_u32 s%d, s%d, 0x4009000" % (PE, PE))
            e("s_mov_b64 exec, 1")
            e("buffer_store_dwordx4 v[%d:%d], off, s[%d:%d], s%d" % (HX, HX + 3, PS2, PS2 + 3, PE))
        e.lines.append("L_fx:")
        if P["stamp"] == 5 and not EL:
            srd(PS2, 82, 0x8000000)
            e("s_memrealtime s[%d:%d]" % (PT + 2, PT + 3))
            e("s_waitcnt lgkmcnt(0)")
            e("v_mov_b32 v%d, s%d" % (HX, PE + 4))
            e("v_mov_b32 v%d, s%d" % (HX + 1, PT + 2))
            e("s_lshl_b32 s%d, s2, 3" % PE)
            e("s_add_u32 s%d, s%d, 0x400a000" % (PE, PE))
            e("s_mov_b64 exec, 1")
            e("buffer_store_dwordx2 v[%d:%d], off, s[%d:%d], s%d" % (HX, HX + 1, PS2, PS2 + 3, PE))
        e("s_endpgm")

    if BC:
        e.label("L_h3")
        e("s_waitcnt lgkmcnt(0)")
        srd_ws(PWS)
        if not EB:
            e("s_barrier")
        if P["pf"] in (5, 6):
            vpf(P["pf"] == 6)
        if P["pf"] >= 8:
            srd(PS2, 70, H * NGRP * DH * 2)
            srd(PS3, 72, H * NGRP * DH * 2)
            e("v_lshlrev_b32 v%d, 4, v%d" % (HE, HL))
            if P["pd"]:
                e("s_add_u32 s%d, s%d, %d" % (PST, PST, P["pd"]))
                twait(PST, PT, P["pe"])
            for ph in (1, 2):
                e("s_mov_b32 s%d, %d" % (PPH, ph))
                seg_scalars()
                e("s_mul_i32 s%d, s%d, 24" % (PE + 1, PM))
                e("s_add_u32 s%d, s%d, s%d" % (PE + 2, PE + 1, PG0))
                e("s_mul_i32 s%d, s%d, %d" % (PE, PE + 2, DH * 2))
                e("v_add_u32 v%d, s%d, v%d" % (HA, PE, HE))
                e("v_add_u32 v%d, 0x1000, v%d" % (HB_, HA))
                e("v_add_u32 v%d, 0x2000, v%d" % (HC, HA))
                for sr in (PS2, PS3):
                    for k in range(9):
                        e("buffer_load_dwordx4 v[%d:%d], v%d, s[%d:%d], 0 offen offset:%d" % (HX + 64, HX + 67, (HA, HB_, HC)[k // 4], sr, sr + 3, (k % 4) * 1024))
                if P["pe"]:
                    twait(PST, PT, P["pe"])
            vpf(False)
            e("v_mov_b32 v%d, 1" % HE)
            e("ds_write_b32 v%d, v%d offset:%d" % (HZ, HE, L_PF))
        e("v_lshlrev_b32 v%d, 2, v%d" % (HD, HL))
        e("s_mul_i32 s%d, s%d, %d" % (PO, PM, FSTR))
        e("s_add_u32 s%d, s%d, %d" % (PO, PO, WS_T))
        e("s_lshl_b32 s%d, s%d, 2" % (PFL, PG))
        e("s_add_u32 s%d, s%d, s%d" % (PFL, PFL, PO))
        if GTS:
            cps = CPK + [48 + c for c in CPV]
            sel = [max(j for j, c in enumerate(cps) if c + P["tg"] + P["rd"] < b) for b in GTS]
            e("s_mov_b32 s%d, 0x%x" % (PRN, sum(1 << j for j in sel)))
            e("v_lshrrev_b32 v%d, 2, v%d" % (HG, HL))
            e("v_mul_u32_u24 v%d, %d, v%d" % (HG, FSTR, HG))
            e("v_and_or_b32 v%d, v%d, 12, v%d" % (HG, HD, HG))
            e("s_and_b32 s%d, s%d, 3" % (PBK, PM))
            e("s_mul_i32 s%d, s%d, %d" % (PNR, PBK, FSTR))
            e("s_lshl_b32 s%d, s%d, 2" % (PBK, PBK))
            e("v_mov_b32 v%d, %d" % (HK, L_GT))
        e("s_mov_b32 s%d, %d" % (PJ, P["pw"]))
        e("v_mov_b32 v%d, %d" % (HW, L_TM))
        e("v_bfrev_b32 v%d, -2" % HC)
        e("s_mov_b32 exec_hi, 0")
        e.label("L_h3loop")
        lds_wait("p1", HZ, HE, PE, L_TC, "s%d" % PJ, PSP)
        e("s_memrealtime s[%d:%d]" % (PT, PT + 1))
        e("s_add_u32 s%d, s%d, %d" % (PJ, PJ, 5 - P["pw"]))
        e("s_mov_b32 exec_lo, 1")
        e("s_waitcnt lgkmcnt(0)")
        e("v_mov_b32 v%d, s%d" % (HB_, PT))
        e("buffer_store_dword v%d, off, s[%d:%d], s%d" % (HB_, PWS, PWS + 3, PFL))
        e("s_mov_b32 exec_lo, -1")
        if P["xs"]:
            XS = P["xs"]
            e("s_lshl_b32 s%d, s2, %d" % (PE, 10 if XS & 8 else 12))
            e("s_add_u32 s%d, s%d, 0x700000" % (PE, PE))
            e("v_lshlrev_b32 v%d, 4, v%d" % (HX, HL))
            e("s_mov_b64 exec, %s" % ("-1" if XS & 2 else "1"))
            e("v_lshlrev_b32 v%d, 4, v%d" % (HX, HL))
            for k in range(4 if XS & 16 else 1):
                e("buffer_%s_dwordx4 v[%d:%d], v%d, s[%d:%d], s%d offen offset:%d %s" %
                  ("load" if XS & 4 else "store", HX + 4, HX + 7, HX, PWS, PWS + 3, PE, 1024 * k, "sc1" if XS & 1 else "" if not XS & 32 else "sc0 sc1"))
            e("s_mov_b64 exec, 0xffffffff")
        lds_wait("p2", HZ, HE, PE, L_TC, "s%d" % PJ, PSP)
        e("buffer_load_dword v%d, v%d, s[%d:%d], s%d offen sc0" % (HB_, HD, PWS, PWS + 3, PO))
        e("s_add_u32 s%d, s%d, 4" % (PJ, PJ))
        e("s_sub_u32 s%d, s%d, 4096" % (PT, PT))
        e("s_waitcnt vmcnt(0)")
        e("v_subrev_u32 v%d, s%d, v%d" % (HB_, PT, HB_))
        e("v_cmp_gt_u32 vcc, 8192, v%d" % HB_)
        e("v_cndmask_b32 v%d, v%d, v%d, vcc" % (HB_, HC, HB_))
        e("s_mov_b32 s%d, 2048" % PE)
        for st in (2048, 1024, 512, 256, 128, 64, 32, 16, 8):
            e("s_add_u32 s%d, s%d, %d" % (PE + 1, PE, st))
            e("v_cmp_gt_u32 vcc, s%d, v%d" % (PE + 1, HB_))
            e("s_bcnt1_i32_b64 s%d, vcc" % (PE + 2))
            e("s_cmp_lt_u32 s%d, %d" % (PE + 2, P["aq"]))
            e("s_cselect_b32 s%d, s%d, s%d" % (PE, PE + 1, PE))
        e("s_add_u32 s%d, s%d, s%d" % (PE + 1, PE, PT))
        e("s_or_b32 s%d, s%d, 1" % (PE + 1, PE + 1))
        e("v_mov_b32 v%d, s%d" % (HB_, PE + 1))
        e("ds_write_b32 v%d, v%d" % (HW, HB_))
        e("v_add_u32 v%d, 4, v%d" % (HW, HW))
        if GTS:
            e("s_bitcmp1_b32 s%d, 0" % PRN)
            e("s_cbranch_scc0 L_h3ng")
            e("s_cmp_lt_u32 s%d, 6136" % PE)
            e("s_cselect_b32 exec_lo, 1, 0")
            e("s_cmp_lt_u32 s%d, 4" % PG)
            e("s_cselect_b32 exec_lo, exec_lo, 0")
            e("buffer_store_dword v%d, off, s[%d:%d], s%d offset:2048 sc1" % (HB_, PWS, PWS + 3, PFL))
            e("s_mov_b32 exec_lo, 0xffff")
            e("s_add_u32 s%d, s%d, %d" % (PE + 3, PJ, P["gq"]))
            lds_wait("p3", HZ, HE, PE, L_TC, "s%d" % (PE + 3), PSP)
            e("s_sub_u32 s%d, s%d, s%d" % (PE + 3, PO, PNR))
            e("s_mov_b32 s%d, %d" % (PSP, P["gn"]))
            e("s_mov_b32 s%d, 0" % PE)
            if P["gl2"]:
                e("buffer_load_dword v%d, v%d, s[%d:%d], s%d offen offset:2048" % (HA, HG, PWS, PWS + 3, PE + 3))
                e("s_branch L_h3gq")
            e.label("L_h3gp")
            e("buffer_load_dword v%d, v%d, s[%d:%d], s%d offen offset:2048 sc1" % (HA, HG, PWS, PWS + 3, PE + 3))
            e("s_sub_u32 s%d, s%d, 1" % (PSP, PSP))
            e("s_cbranch_scc1 L_h3gw")
            e.lines.append("L_h3gq:")
            e("s_waitcnt vmcnt(0)")
            e("v_subrev_u32 v%d, s%d, v%d" % (HA, PT, HA))
            e("v_cmp_gt_u32 vcc, 8192, v%d" % HA)
            e("v_cndmask_b32 v%d, v%d, v%d, vcc" % (HA, HC, HA))
            e("v_min_u32_dpp v%d, v%d, v%d quad_perm:[1,0,3,2] row_mask:0xf bank_mask:0xf" % (HA, HA, HA))
            e("v_min_u32_dpp v%d, v%d, v%d quad_perm:[2,3,0,1] row_mask:0xf bank_mask:0xf" % (HA, HA, HA))
            e("v_cmp_eq_u32 vcc, v%d, v%d" % (HC, HA))
            e("s_cbranch_vccnz L_h3gp")
            for k in range(4):
                e("v_readlane_b32 s%d, v%d, %d" % (PE + 4 + k, HA, 4 * k))
            e("v_readlane_b32 s%d, v%d, s%d" % (PE + 1, HA, PBK))
            e("s_max_u32 s%d, s%d, s%d" % (PE + 4, PE + 4, PE + 5))
            e("s_max_u32 s%d, s%d, s%d" % (PE + 6, PE + 6, PE + 7))
            e("s_max_u32 s%d, s%d, s%d" % (PE, PE + 4, PE + 6))
            e("s_sub_u32 s%d, s%d, s%d" % (PE, PE, PE + 1))
            e("s_sub_u32 s%d, s%d, %d" % (PE, PE, P["gtol"]))
            e("s_max_i32 s%d, s%d, 0" % (PE, PE))
            e("s_min_i32 s%d, s%d, %d" % (PE, PE, P["gcap"]))
            e.label("L_h3gw")
            e("s_or_b32 s%d, s%d, 0x10000" % (PE, PE))
            e("v_mov_b32 v%d, s%d" % (HB_, PE))
            e("ds_write_b32 v%d, v%d" % (HK, HB_))
            e("s_mov_b32 exec_lo, -1")
            e("v_add_u32 v%d, 4, v%d" % (HK, HK))
            e("s_waitcnt vmcnt(0)")
            e.label("L_h3ng")
            e("s_lshr_b32 s%d, s%d, 1" % (PRN, PRN))
        e("s_add_u32 s%d, s%d, %d" % (PJ, PJ, 3 + P["pw"]))
        e("s_add_u32 s%d, s%d, 128" % (PO, PO))
        e("s_add_u32 s%d, s%d, 128" % (PFL, PFL))
        e("s_cmp_lt_u32 s%d, %d" % (PJ, 12 * (len(CPK) + len(CPV))))
        e("s_cbranch_scc1 L_h3loop")
        if P["fc"] == 4:
            last_gather()
        else:
            e("s_endpgm")

    e.label("L_h2")
    srd(PS2, 74, H * SKV * 2)
    srd(PS3, 76, H * SKV * 2)
    if 2 <= P["pf"] <= 4:
        if P["pf"] == 2:
            lds_wait("pf", HZ, HE, PE, L_EV + 4, "1", PSP)
        if P["pf"] == 4:
            lds_wait("pf", HZ, HE, PE, L_EV, "1", PSP)
        e("v_lshlrev_b32 v%d, 4, v%d" % (HA, HL))
        e("s_lshl_b32 s%d, s2, 13" % PE)
        e("s_add_u32 s%d, s%d, 4096" % (PE + 1, PE))
        for a, sr in enumerate((PS2, PS3)):
            for k in range(8):
                r = HX + 4 * (a * 8 + k)
                e("buffer_load_dwordx4 v[%d:%d], v%d, s[%d:%d], s%d offen offset:%d" % (r, r + 3, HA, sr, sr + 3, PE + k // 4, (k % 4) * 1024))
        e("s_waitcnt vmcnt(0)")
    get_dec("d2")
    PSIX = 24
    PKW = 32; PNEED = 33; PN0 = 34; PIM = 35; PCH = 36; PCC = 37; PMG = 38; PWD = 39; PIS = 40
    PGT = 42
    HT = HW
    HP = HX + 88; PXM = 64
    e("v_and_b32 v%d, 3, v%d" % (HT, HL))
    e("v_and_b32 v%d, 7, v%d" % (HT2, HL))
    e("v_lshrrev_b32 v%d, 2, v%d" % (HR, HL))
    e("s_mov_b32 s%d, %s" % (PCC, f32hex(C)))
    e("s_mov_b32 s%d, 0xaaaaaaab" % PMG)
    e("s_mov_b32 s%d, 0" % PPH)
    HPG = HP + 1 if XZ else HP
    if XZ:
        e("s_lshl_b32 s%d, s%d, 3" % (PIM, PG))
        img_base(PIM, PIM, PE)
        img_lane(HPG, HA)
    else:
        e("s_mul_i32 s%d, s%d, %d" % (PIM, PG, 8 * IMS))
    e("s_add_u32 s%d, s%d, %d" % (PIM, PIM, WS_L))
    e("s_mov_b32 s%d, %d" % (PIS, XZ or IMS))
    e("v_lshlrev_b32 v%d, 5, v%d" % (HN, HL))
    e("v_lshrrev_b32 v%d, 3, v%d" % (HK, HL))
    e("v_mul_u32_u24 v%d, 24, v%d" % (HK, HK))
    e("v_mov_b32 v%d, 768" % HA)
    e("v_mad_u32_u24 v%d, v%d, v%d, v%d" % (HK, HT2, HA, HK))
    if CX:
        e("v_lshrrev_b32 v%d, 3, v%d" % (HA, HL))
        e("v_lshlrev_b32 v%d, 7, v%d" % (HP, HT2))
        e("v_lshl_add_u32 v%d, v%d, 4, v%d" % (HP, HA, HP))
    else:
        e("v_lshlrev_b32 v%d, 4, v%d" % (HP, HL))
    e("s_mov_b32 s%d, %d" % (PN0, (2 if CX else 3) * N0))
    RS = 16
    e.label("L_prep")
    seg_scalars()
    e("s_mov_b32 s%d, s%d" % (PKW, PDC))
    e("s_mov_b32 s%d, s%d" % (PWD, PDC + 3))
    for i in (0, 1, 3, 4):
        e("s_mov_b32 s%d, s%d" % (PDC + i, PDC + i + 1))
    e("s_lshl_b32 s%d, s%d, 3" % (PNEED, PPH))
    e("s_add_u32 s%d, s%d, 1" % (PNEED, PNEED))
    if P["pf"] == 1:
        lds_wait("pf", HZ, HE, PE, L_EV + 4, "s%d" % PNEED, PSP)
        e("v_lshlrev_b32 v%d, 4, v%d" % (HA, HL))
        e("s_mul_i32 s%d, s%d, 2736" % (PE + 1, PM))
        e("s_lshl_b32 s%d, s%d, 16" % (PE, PSG))
        e("s_mul_hi_u32 s%d, s%d, 0xaaaaaaab" % (PE, PE))
        e("s_lshr_b32 s%d, s%d, 5" % (PE, PE))
        e("s_lshl_b32 s%d, s%d, 4" % (PE, PE))
        e("s_add_u32 s%d, s%d, s%d" % (PE, PE, PE + 1))
        if P["pp"]:
            e("s_memrealtime s[%d:%d]" % (PGT, PGT + 1))
            e("s_waitcnt lgkmcnt(0)")
        for a, sr in enumerate((PS2, PS3)):
            if a and P["bs"] & 4:
                e("s_add_u32 s%d, s%d, %d" % (PE + 1, PNEED, P["bz"] - 1))
                lds_wait("pz", HZ, HE, PE + 2, L_EV + 4, "s%d" % (PE + 1), PSP)
            for k in range(3):
                r = HX + 4 * RS + 4 * (a * 3 + k)
                if P["pp"]:
                    twait(PGT, PGT + 2, P["pp"])
                e("buffer_load_dwordx4 v[%d:%d], v%d, s[%d:%d], s%d offen offset:%d%s" % (r, r + 3, HA, sr, sr + 3, PE, k * 1024, " nt" if P["bnt"] & 8 else ""))
    for w, hv in ((PWD, HV),):
        e("s_and_b32 s%d, s%d, 7" % (PE, w))
        e("v_mov_b32 v%d, s%d" % (hv, PE))
        e("s_bitcmp1_b32 s%d, 3" % w)
        e("s_cselect_b64 vcc, -1, 0")
        e("v_cndmask_b32 v%d, v%d, v%d, vcc" % (hv, hv, HT2))
    e("v_xor_b32 v%d, s%d, v%d" % (HG, PNB, HV))
    e("v_lshl_or_b32 v%d, v%d, 3, v%d" % (HG, HT, HG))
    e("s_lshl_b32 s%d, s%d, 6" % (PCH, PSG))
    e("s_mul_i32 s%d, s%d, 768" % (PE + 1, PSG))
    e("s_lshl_b32 s%d, s%d, 2" % (PE + 2, PG0))
    e("s_sub_u32 s%d, s%d, s%d" % (PE + 1, PE + 1, PE + 2))
    e("s_add_u32 s%d, s%d, %d" % (PE + 1, PE + 1, WS_B))
    if P["pace"]:
        e("s_add_u32 s%d, s%d, 4" % (PNEED, PNEED))
        lds_wait("ga", HZ, HE, PE, L_EV + 4, "s%d" % PNEED, PSP)
    else:
        e("s_add_u32 s%d, s%d, 1" % (PNEED, PPH))
        lds_wait("ga", HZ, HE, PE, L_FD, "s%d" % PNEED, PSP)
    def first_token(st):
        e("v_add_u32 v%d, %d, v%d" % (HA, 16 * st, HR))
        e("v_bfe_u32 v%d, v%d, 3, 2" % (HB_, HA))
        e("v_and_or_b32 v%d, v%d, 4, v%d" % (HB_, HA, HB_))
        e("v_xor_b32 v%d, v%d, v%d" % (HB_, HG, HB_))
        e("v_add_u32 v%d, s%d, v%d" % (HA, PCH, HA))
        e("v_lshl_add_u32 v%d, v%d, 5, v%d" % (HC, HA, HB_))
        e("v_lshl_add_u32 v%d, v%d, 4, 1" % (HC, HC))
        e("v_mul_hi_u32 v%d, v%d, s%d" % (HC, HC, PMG))
        e("v_lshrrev_b32 v%d, 1, v%d" % (HC, HC))

    def gathers(st):
        R = HX + RS * st
        e("v_lshrrev_b32 v%d, 1, v%d" % (HF, HC))
        e("v_lshlrev_b32 v%d, 2, v%d" % (HF, HF))
        for b, sr in ((R + 8, PS2), (R + 12, PS3)):
            if P["xkp"] & 8:
                continue
            gnt = " nt" if P["bnt"] & 16 else ""
            if P["gp"]:
                if st == 0 and sr == PS2:
                    e("s_memrealtime s[%d:%d]" % (PGT, PGT + 1))
                    e("s_waitcnt lgkmcnt(0)")
                n = P["gs"]
                for q in range(n):
                    twait(PGT, PGT + 2, P["gp"])
                    if n > 1:
                        mk = ((1 << (64 // n)) - 1) << (64 // n * q)
                        e("s_mov_b32 exec_lo, 0x%x" % (mk & 0xffffffff))
                        e("s_mov_b32 exec_hi, 0x%x" % (mk >> 32))
                    if P["gf"]:
                        e("buffer_load_dwordx4 v[%d:%d], v%d, s[%d:%d], 0 offen %s" % (b, b + 3, HF, sr, sr + 3, P["gf"].replace("x", "")))
                        continue
                    e("buffer_load_dwordx3 v[%d:%d], v%d, s[%d:%d], 0 offen%s" % (b, b + 2, HF, sr, sr + 3, gnt))
                    e("buffer_load_dword v%d, v%d, s[%d:%d], 0 offen offset:12%s" % (b + 3, HF, sr, sr + 3, gnt))
                e("s_mov_b64 exec, -1")
                continue
            e("buffer_load_dwordx3 v[%d:%d], v%d, s[%d:%d], 0 offen%s" % (b, b + 2, HF, sr, sr + 3, gnt))
            if P["pace"] == 2:
                e("s_waitcnt vmcnt(0)")
            e("buffer_load_dword v%d, v%d, s[%d:%d], 0 offen offset:12%s" % (b + 3, HF, sr, sr + 3, gnt))

    for st in range(4):
        R = HX + RS * st
        first_token(st)
        if not P["go"]:
            gathers(st)
        e("v_lshrrev_b32 v%d, 6, v%d" % (R + 6, HC))
        e("v_lshl_add_u32 v%d, v%d, 2, s%d" % (R + 6, R + 6, PE + 1))
        e("v_and_b32 v%d, 15, v%d" % (HD, HC))
        e("v_cmp_eq_u32 s[%d:%d], 5, v%d" % (PSIX + 2 * st, PSIX + 2 * st + 1, HD))
        e("v_and_b32 v%d, 1, v%d" % (R + 7, HC))
        e("v_lshlrev_b32 v%d, 4, v%d" % (R + 7, R + 7))
        if P["pace"] == 1:
            e("s_waitcnt vmcnt(0)")
    e("s_add_u32 s%d, s%d, 1" % (PNEED, PPH))
    if P["fd"]:
        cps = CPK + [48 + c for c in CPV]
        th = [12 * min(j for j, c in enumerate(cps) if c > b) + P["fd"] for b in (16, 32, 48)]
        assert th[2] - th[1] == th[1] - th[0]
        e("s_mul_i32 s%d, s%d, %d" % (PE + 6, PPH, th[1] - th[0]))
        e("s_add_u32 s%d, s%d, %d" % (PE + 6, PE + 6, th[0]))
        lds_wait("fe", HZ, HE, PE, L_TC, "s%d" % (PE + 6), PSP)
    lds_wait("fd", HZ, HE, PE, L_FD, "s%d" % PNEED, PSP)
    e("v_mul_u32_u24 v%d, %d, v%d" % (HA, FSTR, HL))
    e("s_xor_b32 s%d, s%d, s%d" % (PE, PKW, PWD))
    e("s_xor_b32 s%d, s%d, s%d" % (PE, PE, PNB))
    e("s_and_b32 s%d, s%d, 7" % (PE, PE))
    e("v_mov_b32 v%d, s%d" % (HC, PNEED))
    e("s_lshl_b64 vcc, 1, s%d" % PE)
    e("s_or_b32 s%d, s%d, s%d" % (PE, PKW, PWD))
    e("s_bitcmp1_b32 s%d, 3" % PE)
    e("s_cselect_b64 vcc, 0xff, vcc")
    e("s_cmp_eq_u32 s%d, s%d" % (PKW, PWD))
    e("s_cselect_b64 vcc, 0, vcc")
    e("s_max_u32 s%d, s%d, 1" % (PE, PPH))
    e("v_mov_b32 v%d, s%d" % (HD, PE))
    e("v_cndmask_b32 v%d, v%d, v%d, vcc" % (HC, HD, HC))
    e("s_cmp_%s_u32 s%d, 1" % ("eq" if P["jit"] else "ge", PPH))
    e("s_cselect_b64 exec, vcc, 0xff")
    e("s_mov_b32 s%d, 0x40000" % PSP)
    if not P["xkp"] & 64:
        e("s_cbranch_execz L_noflags")
        e.label("L_flags")
        e("buffer_load_dword v%d, v%d, s[%d:%d], s%d offen sc1" % (HB_, HA, PWS, PWS + 3, PGL))
        e("s_sub_u32 s%d, s%d, 1" % (PSP, PSP))
        e("s_cbranch_scc1 L_exit1")
        e("s_waitcnt vmcnt(0)")
        e("v_cmpx_gt_u32 vcc, v%d, v%d" % (HC, HB_))
        e("s_cbranch_execnz L_flags")
        e.label("L_noflags")
    e("s_mov_b64 exec, -1")
    for st in range(4):
        R = HX + RS * st
        if not P["xkp"] & 32:
            e("buffer_load_dword v%d, v%d, s[%d:%d], 0 offen sc1" % (R + 6, R + 6, PWS, PWS + 3))
    e("s_bitcmp1_b32 s%d, 3" % PWD)
    e("s_cselect_b32 s%d, 0, 7" % (PE + 1))
    e("s_xor_b32 s%d, s%d, s%d" % (PE + 2, PKW, PWD))
    e("s_bitcmp1_b32 s%d, 3" % (PE + 2))
    e("s_cselect_b32 s%d, 7, 0" % (PE + 3))
    e("s_and_b32 s%d, s%d, 7" % (PE + 2, PE + 2))
    e("s_and_b32 s%d, s%d, 7" % (PE + 4, PWD))
    if CX:
        e("v_lshrrev_b32 v%d, 3, v%d" % (HA, HL))
        e("v_cmp_gt_u32 vcc, s%d, v%d" % (PN0, HA))
        e("v_and_b32 v%d, s%d, v%d" % (HC, PE + 3, HT2))
        e("v_xor_b32 v%d, s%d, v%d" % (HC, PE + 2, HC))
        e("v_and_b32 v%d, s%d, v%d" % (HB_, PE + 1, HT2))
        e("v_xor_b32 v%d, s%d, v%d" % (HB_, PE + 4, HB_))
        e("v_cndmask_b32 v%d, v%d, v%d, vcc" % (HB_, HC, HB_))
        for k, hv in enumerate((HB_, HC)):
            e("v_cmp_ne_u32 s[%d:%d], 0, v%d" % (PXM + 2 * k, PXM + 2 * k + 1, hv))
            e("v_xor_b32 v%d, s%d, v%d" % (hv, PNB, hv))
            e("v_mad_u32_u24 v%d, v%d, s%d, v%d" % (hv, hv, PIS, HP))
        for st in range(4):
            R = HX + 4 * RS + 4 * st
            if st < 2:
                e("s_mov_b64 exec, s[%d:%d]" % (PXM + 2 * st, PXM + 2 * st + 1))
            if not P["xkp"] & 128:
                e("buffer_load_dwordx4 v[%d:%d], v%d, s[%d:%d], s%d offen offset:%d sc1" %
                  (R, R + 3, HC if st else HB_, PWS, PWS + 3, PIM, st * 1024))
        e("s_mov_b64 exec, -1")
    else:
        e("s_add_u32 s%d, s%d, 4096" % (PE + 5, PIM))
        for k in range(6):
            R = HX + 4 * RS + 4 * k
            e("v_add_u32 v%d, %d, v%d" % (HA, 64 * k, HL))
            e("v_mul_u32_u24 v%d, 1366, v%d" % (HB_, HA))
            e("v_lshrrev_b32 v%d, 16, v%d" % (HB_, HB_))
            e("v_mul_u32_u24 v%d, 48, v%d" % (HC, HB_))
            e("v_sub_u32 v%d, v%d, v%d" % (HA, HA, HC))
            e("v_cmp_gt_u32 vcc, s%d, v%d" % (PN0, HA))
            e("v_and_b32 v%d, s%d, v%d" % (HC, PE + 3, HB_))
            e("v_xor_b32 v%d, s%d, v%d" % (HC, PE + 2, HC))
            e("v_and_b32 v%d, s%d, v%d" % (HB_, PE + 1, HB_))
            e("v_xor_b32 v%d, s%d, v%d" % (HB_, PE + 4, HB_))
            e("v_cndmask_b32 v%d, v%d, v%d, vcc" % (HC, HC, HB_))
            e("v_cmp_ne_u32 s[%d:%d], 0, v%d" % (PXM + 2 * k, PXM + 2 * k + 1, HC))
            e("v_xor_b32 v%d, s%d, v%d" % (HC, PNB, HC))
            e("v_mad_u32_u24 v%d, v%d, s%d, v%d" % (HC, HC, PIS, HPG))
            if XZ:
                e("s_add_u32 s%d, s%d, %d" % (PE + 5, PIM, img_k(k)))
            if P["fr"]:
                if k == 0:
                    e("s_memrealtime s[%d:%d]" % (PGT, PGT + 1))
                    e("s_waitcnt lgkmcnt(0)")
                twait(PGT, PGT + 2, P["fr"])
            e("s_mov_b64 exec, s[%d:%d]" % (PXM + 2 * k, PXM + 2 * k + 1))
            if XZ:
                e("buffer_load_dwordx4 v[%d:%d], v%d, s[%d:%d], s%d offen sc1" % (R, R + 3, HC, PWS, PWS + 3, PE + 5))
            elif not P["xkp"] & 128:
                e("buffer_load_dwordx4 v[%d:%d], v%d, s[%d:%d], s%d offen offset:%d sc1" %
                  (R, R + 3, HC, PWS, PWS + 3, PE + 5 if k >= 4 else PIM, (k % 4) * 1024))
            e("s_mov_b64 exec, -1")
        e("s_waitcnt vmcnt(0)")
        for k in range(6):
            R = HX + 4 * RS + 4 * k
            e("s_mov_b64 exec, s[%d:%d]" % (PXM + 2 * k, PXM + 2 * k + 1))
            e("ds_write_b128 v%d, v[%d:%d] offset:%d" % (HP, R, R + 3, L_LG + k * 1024))
        e("s_mov_b64 exec, -1")
    if P["go"]:
        for st in range(4):
            first_token(st)
            gathers(st)
    for st in range(4):
        R = HX + RS * st
        for c in range(3):
            e("ds_read_b64 v[%d:%d], v%d offset:%d" % (R + 2 * c, R + 2 * c + 1, HK, L_LG + st * 192 + 8 * c))
    e("s_mov_b32 s%d, 0" % PN0)
    e("v_mov_b32 v%d, 0x%08x" % (HB_, BIGNEG))
    e("v_mov_b32 v%d, 0x%08x" % (HA, BIGNEG))
    e("s_waitcnt vmcnt(0) lgkmcnt(0)")
    if CX:
        for st in range(4):
            R = HX + RS * st
            Q = HX + 4 * RS + 4 * st
            if st < 2:
                e("s_mov_b64 exec, s[%d:%d]" % (PXM + 2 * st, PXM + 2 * st + 1))
            for k in range(6):
                e("v_fma_mix_f32 v%d, v%d, 1.0, v%d op_sel:[%d,0,0] op_sel_hi:[1,0,0]" % (R + k, Q + 1 + k // 2, Q, k & 1))
            e("v_cmp_lt_f32 vcc, v%d, v%d" % (Q, R + 5))
            e("v_cndmask_b32 v%d, v%d, v%d, vcc" % (R + 5, R + 5, HZ))
        e("s_mov_b64 exec, -1")
    for st in range(4):
        R = HX + RS * st
        for k in range(6):
            e("v_sub_f32 v%d, v%d, v%d" % (R + k, R + k, R + 6))
        for k in range(6):
            e("v_mul_f32 v%d, s%d, v%d" % (R + k, PCC, R + k))
        e("v_cndmask_b32 v%d, v%d, v%d, s[%d:%d]" % (R + 5, HB_, R + 5, PSIX + 2 * st, PSIX + 2 * st + 1))
        for k in range(0, 6, 2):
            e("v_max3_f32 v%d, v%d, v%d, v%d" % (HA, HA, R + k, R + k + 1))
        for b in (R + 8, R + 12):
            for k in range(3):
                e("v_alignbit_b32 v%d, v%d, v%d, v%d" % (b + k, b + k + 1, b + k, R + 7))

    wave_reduce([HA], "v_max_f32", [HB_])
    e("v_mov_b32 v%d, 0" % HB_)
    e("v_mov_b32 v%d, 0" % HC)
    for st in range(4):
        R = HX + RS * st
        for k in range(6):
            e("v_sub_f32 v%d, v%d, v%d" % (R + k, R + k, HA))
        for k in range(6):
            e("v_exp_f32 v%d, v%d" % (R + k, R + k))
        for k in range(6):
            e("v_add_f32 v%d, v%d, v%d" % (HB_, HB_, R + k))
            if k & 1:
                e("v_and_b32 v%d, 0xffff0000, v%d" % (HE, R + 8 + k // 2))
                e("v_and_b32 v%d, 0xffff0000, v%d" % (HF, R + 12 + k // 2))
            else:
                e("v_lshlrev_b32 v%d, 16, v%d" % (HE, R + 8 + k // 2))
                e("v_lshlrev_b32 v%d, 16, v%d" % (HF, R + 12 + k // 2))
            e("v_mul_f32 v%d, v%d, v%d" % (R + k, R + k, HE))
            e("v_fmac_f32 v%d, v%d, v%d" % (HC, R + k, HF))
        e("ds_write_b128 v%d, v[%d:%d] offset:%d" % (HN, R, R + 3, L_PV + st * 2048))
        e("ds_write_b64 v%d, v[%d:%d] offset:%d" % (HN, R + 4, R + 5, L_PV + st * 2048 + 16))
    wave_reduce([HB_, HC], "v_add_f32", [HE, HF])
    e("s_lshl_b32 s%d, s%d, 2" % (PE, PPH))
    e("v_mov_b32 v%d, s%d" % (HE, PE))
    e("v_lshlrev_b32 v%d, 2, v%d" % (HF, HE))
    e("v_mov_b32 v%d, s%d" % (HD, PWD))
    e("s_mov_b64 exec, 1")
    e("ds_write_b128 v%d, v[%d:%d] offset:%d" % (HF, HA, HD, L_ML))
    e("ds_write_b32 v%d, v%d offset:%d" % (HE, HD, L_GO))
    if FU:
        e("s_lshl_b32 s%d, s%d, 8" % (PE, PPH))
        e("s_add_u32 s%d, s%d, s2" % (PE, PE))
        e("s_lshl_b32 s%d, s%d, 6" % (PE, PE))
        e("s_add_u32 s%d, s%d, %d" % (PE, PE, WS_ML))
        e("buffer_store_dwordx4 v[%d:%d], off, s[%d:%d], s%d sc1" % (HA, HD, PWS, PWS + 3, PE))
    e("s_mov_b64 exec, -1")
    e("v_add_u32 v%d, 8192, v%d" % (HN, HN))
    e("v_add_u32 v%d, %d, v%d" % (HK, PHI, HK))
    if CX:
        e("s_add_u32 s%d, s%d, %d" % (PIM, PIM, PHS))
    else:
        e("v_add_u32 v%d, %d, v%d" % (HP, PHI, HP))
        if PHS != PHI:
            e("s_add_u32 s%d, s%d, %d" % (PIM, PIM, PHS if XZ else PHS - PHI))
    e("s_add_u32 s%d, s%d, 1" % (PPH, PPH))
    e("s_cmp_lt_u32 s%d, 3" % PPH)
    e("s_cbranch_scc1 L_prep")
    e("s_mov_b32 s%d, 0" % PPH)
    e("v_lshlrev_b32 v%d, 2, v%d" % (HR, HL))
    e("v_add_u32 v%d, %d, v%d" % (HG, L_ACC, HR))
    e("v_lshlrev_b32 v%d, 4, v%d" % (HK, HL))
    e("v_mov_b32 v%d, 1" % (HX + 15))
    e.label("L_merge")
    e("s_lshl_b32 s%d, s%d, 2" % (PE, PPH))
    e("v_mov_b32 v%d, s%d" % (HW, PE))
    e("v_lshlrev_b32 v%d, 2, v%d" % (HF, HW))
    e("ds_read_b128 v[%d:%d], v%d offset:%d" % (HA, HD, HF, L_ML))
    e("s_lshl_b32 s%d, s%d, 8" % (PSG, PPH))
    e("s_add_u32 s%d, s%d, s2" % (PSG, PSG))
    e("s_lshl_b32 s%d, s%d, 10" % (PSG, PSG))
    lds_wait("m", HZ, HE, PE, L_CA, "4", PSP, HW)
    for kk in range(3):
        for w in range(NW):
            e("ds_read_b32 v%d, v%d offset:%d" % (HX + kk * NW + w, HG, w * ROWB + kk * 256))
    for kk in range(3):
        b = HX + kk * NW
        e("s_waitcnt lgkmcnt(%d)" % (8 - 4 * kk))
        e("v_add_f32 v%d, v%d, v%d" % (b, b, b + 1))
        e("v_add_f32 v%d, v%d, v%d" % (b + 2, b + 2, b + 3))
        e("v_sub_f32 v%d, v%d, v%d" % (b, b, HC))
        if FU:
            e("v_add_f32 v%d, v%d, v%d" % (HX + 12 + kk, b, b + 2))
            continue
        e("v_add_f32 v%d, v%d, v%d" % (b, b, b + 2))
        e("buffer_store_dword v%d, v%d, s[%d:%d], s%d offen offset:%d" % (b, HR, PWS, PWS + 3, PSG, kk * 256))
    if FU:
        e("buffer_store_dwordx4 v[%d:%d], v%d, s[%d:%d], s%d offen sc1" % (HX + 12, HX + 15, HK, PWS, PWS + 3, PSG))
    else:
        e("s_mov_b64 exec, 1")
        e("buffer_store_dwordx2 v[%d:%d], off, s[%d:%d], s%d offset:%d" % (HA, HB_, PWS, PWS + 3, PSG, DH * 4))
        e("s_mov_b64 exec, -1")
    e("v_add_u32 v%d, %d, v%d" % (HG, NW * ROWB, HG))
    e("s_add_u32 s%d, s%d, 1" % (PPH, PPH))
    e("s_cmp_lt_u32 s%d, %d" % (PPH, 2 if 0 < P["fc"] < 4 else 3))
    e("s_cbranch_scc1 L_merge")
    if 0 < P["fc"] < 4:
        last_gather()
    if P["stamp"] == 5:
        e("s_memrealtime s[%d:%d]" % (PT, PT + 1))
        e("s_waitcnt vmcnt(0)")
        e("s_memrealtime s[%d:%d]" % (PT + 2, PT + 3))
        srd(PS2, 82, 0x8000000)
        e("s_waitcnt lgkmcnt(0)")
        e("v_mov_b32 v%d, s%d" % (HX, PT))
        e("v_mov_b32 v%d, s%d" % (HX + 1, PT + 2))
        e("s_lshl_b32 s%d, s2, 3" % PE)
        e("s_add_u32 s%d, s%d, 0x400a000" % (PE, PE))
        e("s_mov_b64 exec, 1")
        e("buffer_store_dwordx2 v[%d:%d], off, s[%d:%d], s%d" % (HX, HX + 1, PS2, PS2 + 3, PE))
    e("s_endpgm")

    main_text = e.text()
    if P["nts"]:
        ls = []
        for l in main_text.split("\n"):
            w = l.split()
            if w and w[-1] == "sc1":
                big = w[0].endswith("x4")
                bit = (1 if big else 2) if w[0].startswith("buffer_store") else (4 if big else 8)
                if P["nts"] & bit:
                    l += " nt"
            ls.append(l)
        main_text = "\n".join(ls)
    RPW = 24
    k2 = NAME + "_kernel"
    e.lines.append(".globl %s" % k2)
    e.lines.append(".p2align 8")
    e.lines.append(".type %s,@function" % k2)
    e.lines.append(k2 + ":")
    e.wr = {}; e.tr = {}; e.sw = {}
    e("s_cmp_ge_u32 s2, %d" % H)
    e("s_cbranch_scc1 L_exit2")
    e("s_load_dwordx2 s[4:5], s[0:1], 56")
    e("s_load_dwordx2 s[6:7], s[0:1], 72")
    e("v_lshlrev_b32 v1, 2, v0")
    e("v_mov_b32 v2, 0")
    e("s_mul_i32 s16, s2, %d" % (RPW * PART_STRIDE))
    e("s_mov_b32 s10, %d" % (3 * NWG * PART_STRIDE))
    e("s_mov_b32 s11, 0x00020000")
    e("s_mov_b32 s14, %d" % (H * DH * 2))
    e("s_mov_b32 s15, 0x00020000")
    for k in range(1, RPW // 4):
        e("s_add_u32 s%d, s16, %d" % (16 + k, 4 * k * PART_STRIDE))
    e("s_waitcnt lgkmcnt(0)")
    e("s_mov_b32 s8, s6")
    e("s_and_b32 s9, s7, 0xffff")
    e("s_mov_b32 s12, s4")
    e("s_and_b32 s13, s5, 0xffff")
    MLB = 8
    OB = MLB + 2 * RPW
    for s in range(RPW):
        so = 16 + s // 4
        e("buffer_load_dwordx2 v[%d:%d], v2, s[8:11], s%d offen offset:%d" %
          (MLB + 2 * s, MLB + 2 * s + 1, so, (s % 4) * PART_STRIDE + DH * 4))
        e("buffer_load_dword v%d, v1, s[8:11], s%d offen offset:%d" % (OB + s, so, (s % 4) * PART_STRIDE))
    e("s_waitcnt vmcnt(0)")
    e("v_mov_b32 v4, v%d" % MLB)
    for s in range(1, RPW):
        e("v_max_f32 v4, v4, v%d" % (MLB + 2 * s))
    for s in range(RPW):
        e("v_sub_f32 v%d, v%d, v4" % (MLB + 2 * s, MLB + 2 * s))
    for s in range(RPW):
        e("v_exp_f32 v%d, v%d" % (MLB + 2 * s, MLB + 2 * s))
    e("v_mul_f32 v5, v%d, v%d" % (MLB, MLB + 1))
    e("v_mul_f32 v6, v%d, v%d" % (MLB, OB))
    for s in range(1, RPW):
        e("v_fmac_f32 v5, v%d, v%d" % (MLB + 2 * s, MLB + 2 * s + 1))
        e("v_fmac_f32 v6, v%d, v%d" % (MLB + 2 * s, OB + s))
    e("v_rcp_f32 v5, v5")
    e("v_mul_f32 v6, v6, v5")
    e("v_cvt_pk_bf16_f32 v6, v6, v6")
    e("s_mul_i32 s16, s2, %d" % (DH * 2))
    e("v_lshrrev_b32 v1, 1, v1")
    e("buffer_store_short v6, v1, s[12:15], s16 offen")
    e.lines.append("L_exit2:")
    e("s_endpgm")
    NV2 = OB + RPW

    def kd(name, nv, ns):
        acc = (nv + 3) // 4 * 4
        return """.amdhsa_kernel %s
  .amdhsa_next_free_vgpr %d
  .amdhsa_next_free_sgpr %d
  .amdhsa_accum_offset %d
  .amdhsa_group_segment_fixed_size 0
  .amdhsa_kernarg_size 80
  .amdhsa_user_sgpr_count 2
  .amdhsa_user_sgpr_kernarg_segment_ptr 1
  .amdhsa_system_sgpr_workgroup_id_x 1
.end_amdhsa_kernel
""" % (name, nv, ns, acc)

    diag = ""
    if P["diag"]:
        d = Emit4()
        d.lines += [".globl diag_kernel", ".p2align 8", ".type diag_kernel,@function", "diag_kernel:"]
        d("s_cmp_ge_u32 s2, 1")
        d("s_cbranch_scc1 L_dx")
        d("s_load_dwordx2 s[6:7], s[0:1], 72")
        d("s_memrealtime s[16:17]")
        d("v_lshlrev_b32 v1, 4, v0")
        d("s_mov_b32 s10, 0x8000000")
        d("s_mov_b32 s11, 0x00020000")
        d("s_waitcnt lgkmcnt(0)")
        d("s_mov_b32 s8, s6")
        d("s_and_b32 s9, s7, 0xffff")
        for k in range(16):
            d("s_mov_b32 s12, 0x%x" % (0x4000000 + k * 1024))
            d("buffer_load_dwordx4 v[%d:%d], v1, s[8:11], s12 offen" % (4 + 4 * k, 7 + 4 * k))
        d("s_waitcnt vmcnt(0)")
        d("v_readfirstlane_b32 s13, v4")
        d("v_mov_b32 v2, 0")
        d("v_mov_b32 v3, 0")
        for k in range(16):
            d("v_subrev_u32 v%d, s13, v%d" % (4 + 4 * k, 4 + 4 * k))
            d("v_subrev_u32 v%d, s13, v%d" % (5 + 4 * k, 4 + 4 * k + (P["diag"] & 3)))
            d("v_min_i32 v2, v2, v%d" % (4 + 4 * k))
            d("v_%s v3, v3, v%d" % ("add_u32" if P["diag"] & 128 else "max_i32", 5 + 4 * k))
        d("s_mov_b32 s14, 0")
        d("s_mov_b32 s15, 0")
        for l in range(64):
            d("v_readlane_b32 s18, v2, %d" % l)
            d("v_readlane_b32 s19, v3, %d" % l)
            d("s_nop 3")
            d("s_min_i32 s14, s14, s18")
            d("s_%s s15, s15, s19" % ("add_u32" if P["diag"] & 128 else "max_i32"))
        if P["diag"] & 128:
            d("s_ashr_i32 s15, s15, 10")
        if P["diag"] & 96:
            d("s_mov_b32 s12, 0x4100000")
            d("buffer_load_dwordx4 v[8:11], off, s[8:11], s12")
            d("v_readfirstlane_b32 s18, v6")
            d("s_waitcnt vmcnt(0)")
            d("v_readfirstlane_b32 s19, v8")
            d("v_readfirstlane_b32 s20, v9")
            d("v_readfirstlane_b32 s21, v10")
            d("s_and_b32 s18, s18, %d" % P["dth"])
            d("s_min_u32 s18, s18, 1")
            d("s_cmp_eq_u32 s19, 0x13572468")
            d("s_cselect_b32 s20, s20, 0")
            d("s_cselect_b32 s21, s21, 0")
            d("s_add_u32 s20, s20, s18")
            d("s_add_u32 s21, s21, 1")
            d("v_mov_b32 v8, 0x13572468")
            d("v_mov_b32 v9, s20")
            d("v_mov_b32 v10, s21")
            d("s_mov_b64 exec, 1")
            d("buffer_store_dwordx4 v[8:11], off, s[8:11], s12")
            d("s_mov_b32 s15, s%d" % (20 if P["diag"] & 32 else 21))
        elif P["diag"] & 8:
            d("s_load_dwordx2 s[20:21], s[0:1], 64")
            d("s_waitcnt lgkmcnt(0)")
            d("s_sub_u32 s20, s20, 512")
            d("s_subb_u32 s21, s21, 0")
            d("s_load_dword s15, s[20:21], 0")
            d("s_waitcnt lgkmcnt(0)")
            d("s_and_b32 s15, s15, 0xffffff")
            d("s_sub_u32 s15, s15, %d" % (48 * 65536))
            d("s_abs_i32 s15, s15")
            d("s_lshr_b32 s15, s15, 2")
            if P["diag"] & 16:
                d("s_cmp_lt_u32 s15, %d" % (P["dth"] // 4))
                d("s_cselect_b32 s15, 3000, 0")
                d("s_and_b32 s14, s16, 0xf0")
                d("s_cmp_lt_u32 s14, %d" % (16 * P["drn"]))
                d("s_cselect_b32 s15, 3000, s15")
        elif P["diag"] & 4:
            d("s_sub_u32 s14, s16, s13")
            d("s_sub_u32 s15, s14, s15")
        else:
            d("s_sub_u32 s15, s15, s14")
        d("s_sub_u32 s15, s15, %d" % P["doff"])
        d("s_max_i32 s15, s15, 0")
        d("s_min_i32 s15, s15, 10000")
        d("s_mul_i32 s15, s15, %d" % P["dmul"])
        d("s_add_u32 s15, s15, s16")
        d.label("L_dl")
        d("s_memrealtime s[18:19]")
        d("s_waitcnt lgkmcnt(0)")
        d("s_sub_u32 s18, s18, s15")
        d("s_cmp_lt_i32 s18, 0")
        d("s_cbranch_scc1 L_dl")
        d.lines.append("L_dx:")
        d("s_endpgm")
        diag = d.text()
    out = HEADER.replace("gen.py", "gen6.py").format(params=" ".join("%s=%s" % kv for kv in sorted(P.items())))
    if FU:
        out += "; @launch kernel=%s grid=(%d,1,1) block=(%d,1,1) lds=%d\n" % (k1, NWG, (NW + NHX) * 64, LDS1)
    else:
        out += "; @launch kernel=%s grid=(%d,1,1) block=(%d,1,1) lds=%d\n" % (k1, NWG, (NW + NHX) * 64, LDS1)
        out += "; @launch kernel=%s grid=(%d,1,1) block=(%d,1,1) lds=%d\n" % (k2, H, DH, 0)
    if diag:
        out += "; @launch kernel=diag_kernel grid=(1,1,1) block=(64,1,1) lds=0\n"
    out += '.amdgcn_target "amdgcn-amd-amdhsa--gfx950"\n.text\n'
    out += main_text if FU else e.text()
    out += diag
    out += '.section .rodata,"a"\n.p2align 6\n'
    out += kd(k1, NVGPR + (8 if P["xb"] else 2 if P["stamp"] == 5 else 0), 102)
    if not FU:
        out += ".p2align 6\n"
        out += kd(k2, NV2, 24)
    if diag:
        out += ".p2align 6\n"
        out += kd("diag_kernel", 72, 24)
    return out


DEFAULTS = dict(grp="6-6-6", n0=3, trg=1, ta=14, tb=15, jit=0, pace=1, nr0=1, nr=7, nt="nt", ldspad=0, stamp=0, xkp=0, force=0, clip=1400,
                l2t=290, th=200, pf=7, ob=2, ox=0, ds=1, td=3, tdm=3, fuse=1, cw=1,
                lx=0, wo=0, ns0=4, tw=4, ov="0000", st="sc1", xv="", h4=0, bnt=0, vw=1, at=1, tc=40, tg=2, te=44, aq=16, ka=9, kb=2048, dmin=0, dmax=11,
                bc=1, cpk="9-17-25-33-41", cpv="1-9-17-25-33", rd=2, ka2=8, kb2=512, bmax=6, be=1, pw=2, il=1, xp=0, ss=0, eb=0, pfi=0, hs=0, l2p=0, gts="16-32-48-64-80", gn=8, gtol=10, gcap=1000, gq=0, gl2=0, xb=0, diag=0, doff=20000, dmul=8, fc=4, elk=1, cd=9, fd=0, prio=0, bp=0, bp0=0, bq=0, wl=2048, wt=9984, sw=1, dc=1, xs=0, cx=1, fb=0, ib=0, dth=4800, drn=6, ut=0, wb=0, nts=0, wg=8192, wm=896, wbi=1152, lb=1, pb=1, cl2=100, th1=10, th0=10, lm=7, tt=0, tx=1584, d3=33, xa=200, xn=4, bt=0, bt0=0, be1=0, gp=140, gs=2, pp=0, go=1, fw=0, fr=0, xz=0, xr=15, ef=0, gf="", pol=0, ro=2, bs=0, bz=5, bz0=1, rx=0, pt=0, pk=30, pd=0, pe=0)


def main():
    P = dict(DEFAULTS)
    outp = None
    args = sys.argv[1:]
    i = 0
    while i < len(args):
        a = args[i]
        if a == "-o":
            outp = args[i + 1]; i += 2; continue
        k, v = a.split("=", 1)
        assert k in P, k
        P[k] = type(P[k])(v.replace("+", " ")) if isinstance(P[k], str) else int(v)
        i += 1
    s = gen(P)
    if outp:
        open(outp, "w").write(s)
    else:
        sys.stdout.write(s)


if __name__ == "__main__":
    main()
```

```python
import re
import sys
import math
from gen import f32hex, HEADER, NAME, H, SKV, DH, G, NGRP, ROWB, HEADB
from gen4 import Emit4

PART_STRIDE = 1024
NW = 4
NH = 3
NWG = 256
NT = 48
WS_G = 8 << 20
FSTR = 4096 + 256
WS_ML = 0xe0000
WS_B = 0x120000
WS_L = 2 << 20
WS_T = 0x9c0000
WS_SIZE = 10 << 20
BIGNEG = 0xf149f2ca


def gen(P):
    global WS_L, WS_T, WS_G, WS_ML, WS_B
    WS_L = P["wl"] << 10
    WS_T = P["wt"] << 10
    WS_G = P["wg"] << 10
    WS_ML = P["wm"] << 10
    WS_B = P["wbi"] << 10
    assert P["sw"] or not P["dc"]
    GR = [int(x) for x in P["grp"].split("-")]
    assert sum(GR) == 18 and len(GR) >= 2
    NG = len(GR)
    GOFF = [sum(GR[:k]) for k in range(NG)]
    OV = [int(x) for x in P["ov"]]
    N0 = P["n0"]
    NR = P["nr"]
    TRG1 = N0 - P["trg"]
    TA = P["ta"]
    TB = P["tb"]
    assert (2 <= TRG1 < N0 or P["force"] >= 2 or P["pt"] and TRG1 == N0) and N0 < TA < TB < 16 and 1 <= NR <= 7 and N0 <= 8
    pol = (" " + P["nt"]) if P["nt"] else ""
    C = (DH ** -0.5) * math.log2(math.e)
    L_DEC = 0
    L_GO = 24
    L_PC = 36
    L_CF = 40
    L_FD = 52
    L_EV = 56
    L_CA = 64
    L_ML = 80
    L_TC = 128
    L_TD = 132
    L_EL = 136
    L_PF = 140
    L_TM = 144
    L_GT = 208
    L_LG = 256
    PHI = 6144
    IMG = 3 * PHI
    L_PV = L_LG + IMG
    L_ACC = L_PV + 192 * 128
    LDS1 = max(L_ACC + 3 * NW * ROWB, P["ldspad"])

    e = Emit4()
    V_T = 1; V_J16 = 2; V_J8 = 3; V_LB0 = 4; V_PB0 = 5; V_PV = 6; V_PVN = 7; V_DO = 8; V_PO = 9; V_T0 = 10; V_T1 = 11
    V_ACC = 12; V_W = 24; V_RAW = 36
    V_OFF = 48; V_OFF6 = 49; V_TM = 50; V_BIG = 51; V_T2 = 52; V_Z = 53
    V_S = 54
    V_D = 60
    V_T128 = 62; V_TMX = 63
    V_RING = 64
    NVGPR = V_RING + 72
    S_G = 3; S_M = 4; S_N = 5; S_SPIN = 6; S_LDC = 7
    S_K = 8; S_V = 12; S_KS = 16; S_Q = 20; S_WS = 24
    S_WAVE = 28; S_CI = 29; S_I = 30; S_QOFF = 31
    S_T = 32
    S_EV = 40; S_STM = 42; S_HB = 44; S_768 = 45; S_384 = 46; S_MAGIC = 47
    S_NB = 48; S_TD = 49; S_XB = 50; S_LB = 53
    S_ST = 54; S_DBG = 56
    S_BO = 59; S_TW = 60; S_CPA = 62; S_NBO = 63; S_BP = 72; S_TH = 73; S_TT = 74
    S_MP = 64; S_MG = 66; S_MR = 68; S_MO = 70
    BC = P["bc"]
    NHX = NH + (1 if BC else 0)
    CPK = [int(x) for x in P["cpk"].split("-")] if BC and P["cpk"] else []
    CPV = [int(x) for x in P["cpv"].split("-")] if BC and P["cpv"] else []
    if BC:
        CPV.append(P["tc"])
        assert P["te"] == P["tc"] + P["tg"] + P["rd"] and len(CPK) + len(CPV) <= 16

    GTS = [int(x) for x in P["gts"].split("-")] if BC and P["gts"] else []

    def set_masks(ev, cps):
        mp = sum(1 << c for c in cps)
        allm = [(S_EV, ev | mp | (mp << P["tg"]) | (mp << (P["tg"] + P["rd"])))]
        if BC:
            allm += [(S_MP, mp), (S_MG, mp << P["tg"]), (S_MR, mp << (P["tg"] + P["rd"])), (S_MO, ev)]
        for r, v in allm:
            assert v < (1 << 48)
            e("s_mov_b32 s%d, 0x%x" % (r, v & 0xffffffff))
            e("s_mov_b32 s%d, 0x%x" % (r + 1, v >> 32))

    FU = P["fuse"]
    k1 = NAME + "_kernel" if FU else "part_kernel"
    e.lines.append(".globl %s" % k1)
    e.lines.append(".p2align 8")
    e.lines.append(".type %s,@function" % k1)
    e.lines.append(k1 + ":")
    e("s_cmp_ge_u32 s2, %d" % NWG)
    e("s_cbranch_scc1 L_exit1")
    e("s_load_dwordx16 s[64:79], s[0:1], 0")
    e("s_load_dwordx4 s[80:83], s[0:1], 64")
    if P["stamp"]:
        e("s_memrealtime s[%d:%d]" % (S_ST, S_ST + 1))
    e("v_lshrrev_b32 v%d, 6, v0" % V_T0)
    e("v_and_b32 v%d, 63, v0" % V_T1)
    e("v_readfirstlane_b32 s%d, v%d" % (S_WAVE, V_T0))
    if P["eb"] == 4:
        e("v_lshlrev_b32 v%d, 2, v%d" % (V_T0, V_T1))
        e("v_mov_b32 v%d, 0" % V_Z)
        e("ds_write_b32 v%d, v%d" % (V_T0, V_Z))
    e("s_lshr_b32 s%d, s2, 3" % S_G)
    e("s_and_b32 s%d, s2, 7" % S_M)
    e("s_lshr_b32 s%d, s2, 6" % S_T)
    e("s_xor_b32 s%d, s%d, s%d" % (S_T, S_T, S_M))
    e("s_lshr_b32 s%d, s%d, 1" % (S_NB, S_T))
    e("s_and_b32 s%d, s%d, 1" % (S_T, S_T))
    e("s_lshl_b32 s%d, s%d, 2" % (S_T, S_T))
    e("s_or_b32 s%d, s%d, s%d" % (S_NB, S_NB, S_T))
    if P["eb"] != 4:
        e("s_cmp_ge_u32 s%d, %d" % (S_WAVE, NW))
        e("s_cbranch_scc1 L_helper")

    def srd(dst, ptr, nbytes):
        e("s_mov_b32 s%d, s%d" % (dst, ptr))
        e("s_and_b32 s%d, s%d, 0xffff" % (dst + 1, ptr + 1))
        e("s_mov_b32 s%d, %d" % (dst + 2, nbytes))
        e("s_mov_b32 s%d, 0x00020000" % (dst + 3))

    def srd_ws(dst):
        srd(dst, 82, WS_SIZE)
        if P["wo"]:
            e("s_add_u32 s%d, s%d, %d" % (dst, dst, P["wo"] << 10))
            e("s_addc_u32 s%d, s%d, 0" % (dst + 1, dst + 1))

    def lds_wait(tag, vz, vt, st, off, cond, spin, vaddr=None):
        e("s_mov_b32 s%d, 0x100000" % spin)
        e.label("L_w" + tag)
        e("ds_read_b32 v%d, v%d offset:%d" % (vt, vz if vaddr is None else vaddr, off))
        e("s_sub_u32 s%d, s%d, 1" % (spin, spin))
        e("s_cbranch_scc1 L_exit1")
        e("s_waitcnt lgkmcnt(0)")
        e("v_readfirstlane_b32 s%d, v%d" % (st, vt))
        if cond == "nz":
            e("s_cmp_eq_u32 s%d, 0" % st)
        else:
            e("s_cmp_lt_u32 s%d, %s" % (st, cond))
        e("s_cbranch_scc1 L_w" + tag)

    TWN = [0]

    def twait(dl, tmp, step):
        TWN[0] += 1
        e.label("L_tw%d" % TWN[0])
        e("s_memrealtime s[%d:%d]" % (tmp, tmp + 1))
        e("s_waitcnt lgkmcnt(0)")
        e("s_sub_u32 s%d, s%d, s%d" % (tmp + 1, tmp, dl))
        e("s_cmp_lt_i32 s%d, 0" % (tmp + 1))
        e("s_cbranch_scc1 L_tw%d" % TWN[0])
        e("s_add_u32 s%d, s%d, %d" % (dl, tmp, step))

    def gate(b, tag, check):
        if b not in GTS:
            return
        if check:
            e("s_cmp_eq_u32 s%d, %d" % (S_I, b % 48))
            e("s_cbranch_scc0 L_gx" + tag)
        e("s_memrealtime s[%d:%d]" % (S_T + 4, S_T + 5))
        lds_wait("g" + tag, V_Z, V_T0, S_T, L_GT + 4 * GTS.index(b), "nz", S_SPIN)
        e("s_and_b32 s%d, s%d, 0xffff" % (S_T, S_T))
        e("s_cbranch_scc0 L_gx" + tag)
        if P["stamp"] == 5:
            e("s_lshl_b32 s%d, s%d, 16" % (S_T + 1, S_T))
            e("s_add_u32 s%d, s%d, s%d" % (S_NBO, S_NBO, S_T + 1))
        e("s_add_u32 s%d, s%d, s%d" % (S_T, S_T, S_T + 4))
        e.label("L_gl" + tag)
        e("s_memrealtime s[%d:%d]" % (S_T + 4, S_T + 5))
        e("s_waitcnt lgkmcnt(0)")
        e("s_sub_u32 s%d, s%d, s%d" % (S_T + 4, S_T + 4, S_T))
        e("s_cmp_lt_i32 s%d, 0" % (S_T + 4))
        e("s_cbranch_scc1 L_gl" + tag)
        e.label("L_gx" + tag)

    def get_table(kind, tag):
        if tag == "tv":
            gate(48, tag, False)
        else:
            for b in ((16, 32) if kind == "K" else (64, 80)):
                gate(b, "%s%d" % (tag, b), True)
        e("s_lshr_b32 s%d, s%d, 4" % (S_T + 1, S_I))
        e("s_lshl_b32 s%d, s%d, 2" % (S_T + 2, S_T + 1))
        if P["stamp"] == 6:
            e("s_memrealtime s[%d:%d]" % (S_T + 4, S_T + 5))
            e("s_lshl_b32 s%d, s2, 2" % S_T)
            e("s_add_u32 s%d, s%d, s%d" % (S_T, S_T, S_WAVE))
            e("s_cmp_eq_u32 s%d, 400" % S_T)
            e("s_cselect_b64 exec, 1, 0")
            e("s_waitcnt lgkmcnt(0)")
            e("s_sub_u32 s%d, s%d, s%d" % (S_T + 4, S_T + 4, S_ST))
            e("v_mov_b32 v%d, s%d" % (V_T1, S_T + 4))
            e("buffer_store_dword v%d, off, s[%d:%d], s%d offset:%d" % (V_T1, S_WS, S_WS + 3, S_T + 2, 40 if kind == "K" else 52))
            e("s_mov_b64 exec, -1")
        e("v_mov_b32 v%d, s%d" % (V_T1, S_T + 2))
        if kind == "K":
            load_q(S_T + 1, False)
        lds_wait(tag, V_Z, V_T0, S_T, L_DEC if kind == "K" else L_GO, "nz", S_SPIN, V_T1)
        e("s_and_b32 s%d, s%d, 7" % (S_N, S_T))
        e("s_xor_b32 s%d, s%d, s%d" % (S_N, S_N, S_NB))
        e("s_bitcmp1_b32 s%d, 3" % S_T)
        e("s_cselect_b64 vcc, -1, 0")
        e("v_cndmask_b32 v%d, v%d, v%d, vcc" % (V_TM, V_T128, V_TMX))

    def load_q(ph, track):
        e("s_lshl_b32 s%d, s%d, 5" % (S_QOFF, ph))
        e("s_add_u32 s%d, s%d, s%d" % (S_QOFF, S_QOFF, S_G))
        e("s_mul_i32 s%d, s%d, 171" % (S_QOFF, S_QOFF))
        e("s_lshr_b32 s%d, s%d, 9" % (S_QOFF, S_QOFF))
        e("s_mul_i32 s%d, s%d, %d" % (S_QOFF, S_QOFF, DH * 2))
        for c in range(3):
            r = V_RAW + 2 * c
            s = "buffer_load_dwordx2 v[%d:%d], v%d, s[%d:%d], s%d offen offset:%d" % (r, r + 1, V_J8, S_Q, S_Q + 3, S_QOFF, c * 128)
            if track:
                e.vmem(s, "p")
            else:
                e(s)

    def tile_addr(kind):
        ch, a, b = S_T, S_T + 1, S_T + 2
        e("s_lshr_b32 s%d, s%d, 6" % (a, S_CI))
        e("s_lshl_b32 s%d, s%d, 11" % (a, a))
        e("s_and_b32 s%d, s%d, 63" % (ch, S_CI))
        e("s_add_u32 s%d, s%d, s%d" % (ch, ch, a))
        e("s_add_u32 s%d, s%d, s%d" % (ch, ch, S_HB))
        e("s_bfe_u32 s%d, s%d, 0x20003" % (a, ch))
        e("s_and_b32 s%d, s%d, 4" % (b, ch))
        e("s_or_b32 s%d, s%d, s%d" % (a, a, b))
        e("s_xor_b32 s%d, s%d, s%d" % (a, a, S_N))
        e("s_lshl_b32 s%d, s%d, 5" % (S_XB, ch))
        e("s_or_b32 s%d, s%d, s%d" % (S_XB, S_XB, a))
        e("s_lshl_b32 s%d, s%d, 4" % (S_XB, S_XB))
        e("s_or_b32 s%d, s%d, 1" % (S_XB, S_XB))
        if kind == "V":
            e("s_lshl_b32 s%d, s%d, 7" % (S_LB, S_CI))
            if P["ut"]:
                e("s_cmp_ge_u32 s%d, %d" % (S_I, NT - P["ut"]))
                e("s_cselect_b64 vcc, -1, 0")
                e("v_cndmask_b32 v%d, v%d, v%d, vcc" % (V_TM, V_TM, V_TMX))
        e("v_xor_b32 v%d, s%d, v%d" % (V_T0, S_XB, V_TM))
        e("v_mul_hi_u32 v%d, v%d, s%d" % (V_T0, V_T0, S_MAGIC))
        e("v_lshrrev_b32 v%d, 1, v%d" % (V_T0, V_T0))
        e("v_and_b32 v%d, 15, v%d" % (V_T1, V_T0))
        e("v_cmp_eq_u32 vcc, 5, v%d" % V_T1)
        e("v_mad_u32_u24 v%d, v%d, s%d, v%d" % (V_OFF, V_T0, S_768, V_J16))
        e("v_add_u32 v%d, %d, v%d" % (V_T1, 5 * ROWB, V_OFF))
        e("v_cndmask_b32 v%d, v%d, v%d, vcc" % (V_OFF6, V_BIG, V_T1))
        if kind == "K":
            e("v_lshrrev_b32 v%d, 6, v%d" % (V_T0, V_T0))
            e("v_mad_u32_u24 v%d, v%d, s%d, v%d" % (V_PO, V_T0, S_384, V_J8))
        else:
            e("v_add_u32 v%d, s%d, v%d" % (V_T0, S_LB, V_PB0))

    def issue_params(kind):
        if kind == "K":
            if P["xkp"] & 2:
                return
            if P["xkp"] & 1024:
                e("s_cmp_lt_u32 s%d, 16" % S_I)
                e("s_cselect_b64 exec, -1, 0")
            for c in range(3):
                r = V_RAW + 6 + 2 * c
                e.vmem("buffer_load_dwordx2 v[%d:%d], v%d, s[%d:%d], 0 offen offset:%d%s" %
                       (r, r + 1, V_PO, S_KS, S_KS + 3, c * 128, " nt" if P["bnt"] & 4 else ""), "p")
            if P["xkp"] & 1024:
                e("s_mov_b64 exec, -1")
            if P["xb"] & 2:
                for c in range(3):
                    r = NVGPR + 2 + 2 * c
                    e.vmem("buffer_load_dwordx2 v[%d:%d], v%d, s[%d:%d], 0 offen offset:%d" % (r, r + 1, V_PO, 76, 79, c * 128), "p")
        else:
            e("ds_read_b32 v%d, v%d" % (V_PVN, V_T0))

    def issue_group(k, kind, pol=pol):
        srdb = S_K if kind == "K" else S_V
        for l in range(GOFF[k], GOFF[k] + GR[k]):
            r = V_RING + l * 4
            if l < 15:
                vo, off = V_OFF, l * 256
            else:
                vo, off = V_OFF6, (l - 15) * 256
            e.vmem("buffer_load_dwordx4 v[%d:%d], v%d, s[%d:%d], 0 offen offset:%d%s" %
                   (r, r + 3, vo, srdb, srdb + 3, off, pol), "g%d" % k)

    def compute_w():
        e.wait_tag("p")
        for p in range(6):
            rq = V_RAW + p; rs = V_RAW + 6 + p
            i0 = 2 * p
            e("v_lshlrev_b32 v%d, 16, v%d" % (V_T0, rq))
            e("v_lshlrev_b32 v%d, 16, v%d" % (V_W + i0, rs))
            e("v_and_b32 v%d, 0xffff0000, v%d" % (V_T1, rq))
            e("v_and_b32 v%d, 0xffff0000, v%d" % (V_W + i0 + 1, rs))
            e("v_mul_f32 v%d, v%d, v%d" % (V_W + i0, V_W + i0, V_T0))
            e("v_mul_f32 v%d, v%d, v%d" % (V_W + i0 + 1, V_W + i0 + 1, V_T1))

    def advance(kind, to_v, tag):
        nkind = "V" if to_v else kind
        if to_v:
            e("s_mov_b32 s%d, s%d" % (S_CI, S_WAVE))
            e("s_mov_b32 s%d, 0" % S_I)
            get_table("V", "tv")
            ev = (1 << 16) | (1 << 32)
            if P["at"] and not BC:
                ev |= (1 << P["tc"]) | (1 << (P["tc"] + P["tg"])) | (1 << P["te"])
            e("s_mov_b32 s%d, %d" % (S_TD, NT - P["td"] if P["td"] else 255))
            if P["tt"]:
                e("s_mov_b32 s%d, 255" % S_TT)
            set_masks(ev, CPV)
        else:
            e("s_add_u32 s%d, s%d, %d" % (S_CI, S_CI, NW))
            e("s_add_u32 s%d, s%d, 1" % (S_I, S_I))
            if tag:
                e("s_bitcmp1_b64 s[%d:%d], s%d" % (S_EV, S_EV + 1, S_I))
                sfx = tag if isinstance(tag, str) else ""
                e("s_cbranch_scc1 L_ev%s%s" % (kind, sfx))
                e.flush()
                e.label("L_evret%s%s" % (kind, sfx))
        if P["stamp"] == 4:
            e("s_memrealtime s[%d:%d]" % (S_DBG, S_DBG + 1))
            e("s_add_u32 s%d, s%d, 4" % (S_DBG + 2, S_DBG + 2))
            e("s_waitcnt lgkmcnt(0)")
            e("v_mov_b32 v%d, s%d" % (V_T2, S_DBG))
            e("s_mov_b64 exec, 1")
            e("buffer_store_dword v%d, off, s[%d:%d], s%d" % (V_T2, S_WS, S_WS + 3, S_DBG + 2))
            e("s_mov_b64 exec, -1")
        if P["stamp"] == 5:
            e("s_memrealtime s[%d:%d]" % (S_DBG, S_DBG + 1))
            e("s_add_u32 m0, m0, 1")
            e("s_waitcnt lgkmcnt(0)")
            e("v_writelane_b32 v%d, s%d, m0" % (NVGPR + (1 if kind == "V" else 0), S_DBG))
            if to_v:
                e("s_mov_b32 m0, -1")
        tile_addr(nkind)
        issue_params(nkind)

    def compute(k, kind):
        for l in range(GOFF[k], GOFF[k] + GR[k]):
            q, c = l // 3, l % 3
            base = V_RING + l * 4
            for r in range(4):
                e("v_cvt_f32_i32 v%d, v%d" % (base + r, base + r))
            if kind == "K":
                s = V_S + q
                for r in range(4):
                    if c == 0 and r == 0:
                        e("v_mul_f32 v%d, v%d, v%d" % (s, base, V_W))
                    else:
                        e("v_fmac_f32 v%d, v%d, v%d" % (s, base + r, V_W + 4 * c + r))
                if c == 2:
                    e.defer(["v_add_f32_dpp v%d, v%d, v%d row_ror:%d row_mask:0xf bank_mask:0xf" % (s, s, s, kk)
                             for kk in (8, 4, 2)] +
                            ["v_add_f32_dpp v%d, v%d, v%d row_ror:1 row_mask:0xf bank_mask:0x%x" %
                             (V_D + (q & 1), s, s, 1 << (q >> 1))])
            else:
                for r in range(4):
                    e("v_fmac_f32_dpp v%d, v%d, v%d row_newbcast:%d row_mask:0xf bank_mask:0xf" %
                      (V_ACC + 4 * c + r, V_PV, base + r, q))
        e.flush()

    EFS = []

    def finish(kind, to_v):
        if kind == "K":
            e("s_mov_b64 exec, s[%d:%d]" % (S_STM, S_STM + 1))
            e("ds_write_b64 v%d, v[%d:%d]" % (V_LB0, V_D, V_D + 1))
            e("s_mov_b64 exec, -1")
            if not to_v:
                if P["ef"]:
                    tag = "L_ef%d" % len(EFS)
                    EFS.append(tag)
                    e("s_and_b32 s%d, s%d, 15" % (S_T, S_I))
                    e("s_cbranch_scc0 %s" % tag)
                    e.lines.append(tag + "r:")
                e("v_add_u32 v%d, 48, v%d" % (V_LB0, V_LB0))
                compute_w()
        if kind == "V" or to_v:
            e("s_waitcnt lgkmcnt(0)")
            e("v_mov_b32 v%d, v%d" % (V_PV, V_PVN))

    ELS = []

    def elect(k, kind, lo=0):
        if P["fc"] == 4 and kind == "V" and k == max(P["elk"], lo):
            tag = "L_el%d" % len(ELS)
            ELS.append(tag)
            e("s_cmp_eq_u32 s%d, %d" % (S_I, NT))
            e("s_cbranch_scc1 %s" % tag)
            e.lines.append(tag + "r:")

    def body(kind, to_v=False, first=False):
        nkind = "V" if to_v else kind
        for k in range(NG):
            ov = OV[k] if not first else 0
            if ov:
                i = e.vm.index("g%d" % k) + GR[k] - ov
                e("s_waitcnt vmcnt(%d)" % (len(e.vm) - i))
                e.vm = e.vm[i:]
            else:
                e.wait_tag("g%d" % k)
            if k + 1 < NG:
                if not first:
                    issue_group(k + 1, kind)
            else:
                issue_group(0, nkind)
            if ov:
                e("s_waitcnt vmcnt(%d)" % (len(e.vm) - ov))
                e.vm = e.vm[ov:]
            if k == NG - 2:
                advance(kind, to_v, not first)
            elect(k, kind, NG - 2)
            compute(k, kind)
        finish(kind, to_v)

    DKV = {}

    def body_deep(mode):
        if mode == 3:
            advance("V", False, False)
        for k in range(NG):
            i = e.vm.index("g%d" % k) + GR[k]
            e("s_waitcnt vmcnt(%d)" % (len(e.vm) - i))
            e.vm = e.vm[i:]
            if P["tt"] and k < 2:
                e.lines.append("L_dk%d:" % k)
                DKV[k] = list(e.vm)
            if mode == 2:
                issue_group((k + 2) % NG, "V")
                if k == NG - 3:
                    advance("V", False, False)
            elect(k, "V")
            compute(k, "V")
            if mode == 3:
                issue_group(k, "V", "" if P["xkp"] & 256 else pol)
        finish("V", False)

    def body_boost(kind):
        for k in range(1, NG):
            issue_group(k, kind)
        e("s_sub_u32 s%d, s%d, 1" % (S_BO, S_BO))
        if P["stamp"] == 5:
            e("s_add_u32 s%d, s%d, 256" % (S_NBO, S_NBO))
        advance(kind, False, "B")
        for k in range(NG):
            e.wait_tag("g%d" % k)
            if k == NG - 1 and not P["be"]:
                issue_group(0, kind)
            elect(k, kind)
            compute(k, kind)
            if k == 0 and P["be"]:
                issue_group(0, kind)
        finish(kind, False)

    def lds_inc(off, vz, vt):
        e("v_mov_b32 v%d, 1" % vt)
        e("s_mov_b64 exec, 1")
        e("ds_add_u32 v%d, v%d offset:%d" % (vz, vt, off))
        e("s_mov_b64 exec, -1")

    if P["prio"]:
        e("s_setprio %d" % P["prio"])
    e("v_lshrrev_b32 v%d, 4, v%d" % (V_T, V_T1))
    e("v_and_b32 v%d, 15, v%d" % (V_T2, V_T1))
    e("v_lshlrev_b32 v%d, 4, v%d" % (V_J16, V_T2))
    e("v_lshlrev_b32 v%d, 3, v%d" % (V_J8, V_T2))
    e("v_lshlrev_b32 v%d, 7, v%d" % (V_T128, V_T))
    e("v_and_b32 v%d, 0x70, v0" % V_TMX)
    e("v_or_b32 v%d, v%d, v%d" % (V_TMX, V_TMX, V_T128))
    e("v_mov_b32 v%d, v%d" % (V_TM, V_TMX))
    if P["h4"]:
        e("v_and_b32 v%d, 0x%x, v%d" % (V_T128, 0xffffff8f | (P["h4"] << 4), V_TMX))
    e("s_mov_b32 s%d, %d" % (S_768, ROWB))
    e("s_mov_b32 s%d, %d" % (S_384, DH * 2))
    e("s_mov_b32 s%d, 0xaaaaaaab" % S_MAGIC)
    e("v_mov_b32 v%d, 0xc0000000" % V_BIG)
    e("s_lshl_b32 s%d, s%d, 6" % (S_HB, S_G))
    e("s_mov_b32 s%d, s%d" % (S_N, S_NB))
    if P["hg"]:
        e("v_mov_b32 v%d, v%d" % (V_TM, V_T128))
        e("s_lshl_b32 s%d, s%d, 1" % (S_T, S_G))
        e("s_and_b32 s%d, s%d, 2" % (S_T, S_T))
        e("s_xor_b32 s%d, s%d, s%d" % (S_N, S_N, S_T))
    e("s_mov_b32 s%d, s%d" % (S_CI, S_WAVE))
    tile_addr("K")
    SS = P["ss"]
    EB = P["eb"]
    if SS:
        e("s_memrealtime s[84:85]")
    if EB == 3:
        e("s_barrier")
    e("s_waitcnt lgkmcnt(0)")
    if SS:
        e("s_memrealtime s[86:87]")
    if EB == 2:
        e("s_barrier")
    if EB == 4:
        e("s_cmp_ge_u32 s%d, %d" % (S_WAVE, NW))
        e("s_barrier")
        e("s_cbranch_scc1 L_helper")
    e("s_mov_b32 s%d, 0" % S_I)
    if P["xb"] & 2:
        srd(76, 72, H * NGRP * DH * 2)
    if P["pfi"]:
        srd(S_Q, 64, H * DH * 2)
        load_q(S_I, True)
        srd(S_KS, 70, H * NGRP * DH * 2)
        issue_params("K")
    srd(S_K, 66, H * HEADB)
    issue_group(0, "K")
    if EB == 1:
        e("s_barrier")
    if not P["pfi"]:
        srd(S_Q, 64, H * DH * 2)
        load_q(S_I, True)
        srd(S_KS, 70, H * NGRP * DH * 2)
        issue_params("K")
    if P["ds"]:
        for k in range(1, NG):
            issue_group(k, "K")
    if SS:
        e("s_memrealtime s[88:89]")
    srd(S_V, 68, H * HEADB)
    if P["stamp"] == 6:
        srd(S_WS, 80, 256)
    elif P["stamp"]:
        srd(S_WS, 82, 0x8000000)
    if P["stamp"] == 5:
        e("s_mov_b32 m0, -1")
    if P["stamp"] in (4, 5):
        e("s_mul_i32 s%d, s2, %d" % (S_DBG + 2, NW))
        e("s_add_u32 s%d, s%d, s%d" % (S_DBG + 2, S_DBG + 2, S_WAVE))
        e("s_lshl_b32 s%d, s%d, 9" % (S_DBG + 2, S_DBG + 2))
        e("s_add_u32 s%d, s%d, 0x4010000" % (S_DBG + 2, S_DBG + 2))
    e("v_lshlrev_b32 v%d, 5, v%d" % (V_T1, V_T))
    e("v_bfe_u32 v%d, v0, 4, 3" % V_LB0)
    e("v_mul_u32_u24 v%d, s%d, v%d" % (V_LB0, S_768, V_LB0))
    e("v_lshl_add_u32 v%d, v%d, 1, v%d" % (V_LB0, V_T2, V_LB0))
    e("s_lshr_b32 s%d, s%d, 1" % (S_T, S_WAVE))
    e("s_mul_i32 s%d, s%d, 24" % (S_T, S_T))
    e("s_add_u32 s%d, s%d, %d" % (S_T, S_T, L_LG))
    e("v_add_u32 v%d, s%d, v%d" % (V_LB0, S_T, V_LB0))
    e("v_and_b32 v%d, 7, v%d" % (V_PB0, V_T2))
    e("v_lshl_add_u32 v%d, v%d, 2, v%d" % (V_PB0, V_PB0, V_T1))
    e("v_add_u32 v%d, %d, v%d" % (V_PB0, L_PV, V_PB0))
    e("v_lshlrev_b32 v%d, 2, v%d" % (V_DO, V_T))
    e("v_add_u32 v%d, v%d, v%d" % (V_DO, V_J16, V_DO))
    e("s_mul_i32 s%d, s%d, %d" % (S_T, S_WAVE, ROWB))
    e("s_add_u32 s%d, s%d, %d" % (S_T, S_T, L_ACC))
    e("v_add_u32 v%d, s%d, v%d" % (V_DO, S_T, V_DO))
    e("v_mov_b32 v%d, 0" % V_Z)
    e("v_mov_b32 v%d, 0" % V_D)
    e("v_mov_b32 v%d, 0" % (V_D + 1))
    e("s_mov_b32 s%d, 0x01110111" % S_STM)
    e("s_mov_b32 s%d, 0x01110111" % (S_STM + 1))
    ev = (1 << TRG1) | (1 << N0) | (3 << 16) | (3 << 32) | (((1 << TA) | (1 << TB)) * 0x100010001)
    set_masks(ev, CPK)
    if BC:
        e("s_mov_b32 s%d, %d" % (S_BO, P["ib"] & 15))
        e("s_mov_b32 s%d, 0" % S_NBO)
        e("s_mov_b32 s%d, 0" % S_LDC)
        e("s_mov_b32 s%d, %d" % (S_CPA, L_TM))
    for i in range(12):
        e("v_mov_b32 v%d, 0" % (V_ACC + i))
    if SS:
        e("s_memrealtime s[90:91]")
    if not EB:
        e("s_barrier")
    if SS:
        e("s_memrealtime s[92:93]")
        e("s_waitcnt vmcnt(23)")
        e("s_memrealtime s[94:95]")
        e("s_waitcnt vmcnt(18)")
        e("s_memrealtime s[96:97]")
    compute_w()
    if SS:
        e("s_memrealtime s[98:99]")
        e("s_waitcnt lgkmcnt(0)")
        for k in range(8):
            e("v_writelane_b32 v%d, s%d, %d" % (NVGPR + 1, 84 + 2 * k, 48 + k))
    steady = ["g0"] * GR[0]
    if P["fb"]:
        advance("K", False, False)
        for k in range(NG):
            if "g%d" % k in e.vm:
                i = e.vm.index("g%d" % k) + GR[k]
                e("s_waitcnt vmcnt(%d)" % (len(e.vm) - i))
                e.vm = e.vm[i:]
            compute(k, "K")
            if k == P["fb"] - 1:
                issue_group(0, "K")
        finish("K", False)
        assert e.vm == steady, (e.vm, steady)
    elif P["ds"]:
        body("K", first=True)
    if P["ib"] & 16:
        e("s_branch L_kchk")
    e.vm = list(steady)
    e.lines.append(".p2align 6")
    e.label("L_kloop")
    body("K")
    assert e.vm == steady, (e.vm, steady)
    if BC:
        e.label("L_kchk")
        e("s_cmp_lg_u32 s%d, 0" % S_BO)
        e("s_cbranch_scc1 L_kboost")
        e.label("L_kchk2")
    e("s_cmp_lg_u32 s%d, %d" % (S_I, NT - 1))
    e("s_cbranch_scc1 L_kloop")
    body("K", True)
    lds_inc(L_CF + 8, V_Z, V_T1)
    if P["stamp"] == 1:
        e("s_memrealtime s[%d:%d]" % (S_DBG, S_DBG + 1))
    e.lines.append(".p2align 6")
    e.label("L_vloop")
    body("V")
    assert e.vm == steady, (e.vm, steady)
    if BC:
        e.label("L_vchk")
    if P["td"] or P["at"]:
        e("s_cmp_eq_u32 s%d, s%d" % (S_I, S_TD))
        e("s_cbranch_scc1 %s" % ("L_tail0" if P["tt"] else "L_deep"))
    if BC:
        e("s_cmp_lg_u32 s%d, 0" % S_BO)
        e("s_cbranch_scc1 L_vboost")
    e("s_and_b32 s%d, s%d, 15" % (S_T, S_I))
    e("s_cbranch_scc1 L_vloop")
    e.label("L_vend")
    for c in range(3):
        a = V_ACC + 4 * c
        e("v_permlane32_swap_b32 v%d, v%d" % (a, a + 2))
        e("v_permlane32_swap_b32 v%d, v%d" % (a + 1, a + 3))
    for c in range(3):
        a = V_ACC + 4 * c
        e("v_add_f32 v%d, v%d, v%d" % (a, a, a + 2))
        e("v_add_f32 v%d, v%d, v%d" % (a + 1, a + 1, a + 3))
    for c in range(3):
        a = V_ACC + 4 * c
        e("v_permlane16_swap_b32 v%d, v%d" % (a, a + 1))
    e("s_lshr_b32 s%d, s%d, 2" % (S_T, S_I))
    e("v_mov_b32 v%d, s%d" % (V_T0, S_T))
    for c in range(3):
        a = V_ACC + 4 * c
        e("v_add_f32 v%d, v%d, v%d" % (a, a, a + 1))
        e("ds_write_b32 v%d, v%d offset:%d" % (V_DO, a, c * 256))
    lds_inc(L_CA - 4, V_T0, V_T1)
    e("v_add_u32 v%d, %d, v%d" % (V_DO, NW * ROWB, V_DO))
    for i in range(12):
        e("v_mov_b32 v%d, 0" % (V_ACC + i))
    if BC:
        e("s_cmp_lg_u32 s%d, 0" % S_BO)
        e("s_cbranch_scc1 L_vboost2")
        e.label("L_vend2")
    e("s_cmp_lg_u32 s%d, %d" % (S_I, NT))
    e("s_cbranch_scc1 L_vloop")
    if P["stamp"] == 5 and BC:
        e("s_or_b32 s%d, s%d, s%d" % (S_LDC, S_LDC, S_NBO))
    if P["stamp"] == 6:
        e("s_memrealtime s[%d:%d]" % (S_T + 2, S_T + 3))
        e("s_not_b32 s%d, s%d" % (S_T, S_ST))
        e("v_mov_b32 v%d, s%d" % (V_ACC, S_T))
        e("s_waitcnt lgkmcnt(0)")
        e("v_mov_b32 v%d, s%d" % (V_ACC + 1, S_T + 2))
        e("s_mov_b64 exec, 1")
        e("s_cmp_lg_u32 s%d, 0" % S_WAVE)
        e("s_cbranch_scc1 L_exit1")
        e("buffer_atomic_umax v%d, off, s[%d:%d], 0 offset:32" % (V_ACC, S_WS, S_WS + 3))
        e("buffer_atomic_umax v%d, off, s[%d:%d], 0 offset:36" % (V_ACC + 1, S_WS, S_WS + 3))
    elif P["stamp"]:
        e("s_memrealtime s[%d:%d]" % (S_T + 2, S_T + 3))
        e("s_getreg_b32 s%d, hwreg(HW_REG_XCC_ID)" % (S_T + 4))
        e("s_waitcnt lgkmcnt(0)")
        e("v_mov_b32 v%d, s%d" % (V_ACC + 0, S_ST))
        e("v_mov_b32 v%d, s%d" % (V_ACC + 1, S_T + 2))
        e("v_mov_b32 v%d, s%d" % (V_ACC + 2, S_T + 4))
        e("v_mov_b32 v%d, s%d" % (V_ACC + 3, S_LDC if P["stamp"] == 5 else S_DBG))
        e("s_mul_i32 s%d, s2, %d" % (S_T, NW))
        e("s_add_u32 s%d, s%d, s%d" % (S_T, S_T, S_WAVE))
        e("s_lshl_b32 s%d, s%d, 4" % (S_T, S_T))
        e("s_add_u32 s%d, s%d, 0x4000000" % (S_T, S_T))
        e("buffer_store_dwordx4 v[%d:%d], v%d, s[%d:%d], s%d offen" % (V_ACC, V_ACC + 3, V_Z, S_WS, S_WS + 3, S_T))
        if P["stamp"] == 5:
            e("v_and_b32 v%d, 63, v0" % V_T0)
            e("v_lshlrev_b32 v%d, 2, v%d" % (V_T0, V_T0))
            e("s_mov_b32 exec_hi, 0xffff")
            e("buffer_store_dword v%d, v%d, s[%d:%d], s%d offen offset:4" % (NVGPR, V_T0, S_WS, S_WS + 3, S_DBG + 2))
            e("s_mov_b32 exec_hi, -1")
            e("buffer_store_dword v%d, v%d, s[%d:%d], s%d offen offset:196" % (NVGPR + 1, V_T0, S_WS, S_WS + 3, S_DBG + 2))
    e.lines.append("L_exit1:")
    e("s_endpgm")

    if P["td"] or P["at"]:
        e.label("L_deep")
        e.vm = list(steady)
        for k in range(1, P["tdm"] if NG == 3 else NG):
            issue_group(k, "V")
        deep = list(e.vm)
        e.lines.append(".p2align 6")
        e.label("L_dloop")
        body_deep(P["tdm"])
        assert e.vm == deep, (e.vm, deep)
        e("s_cmp_lg_u32 s%d, %d" % (S_I, NT))
        e("s_cbranch_scc1 L_dloop")
        e("s_branch L_vend")
        if P["tt"]:
            assert P["tdm"] == 3 and NG == 3 and BC

            def tcheck(k, dst):
                e("s_waitcnt lgkmcnt(0)")
                e("s_sub_u32 s%d, s%d, s%d" % (S_TW, S_TW, S_TH))
                e("s_add_u32 s%d, s%d, %d" % (S_TH, S_TH, P["d3"]))
                if P["stamp"] == 5:
                    e("s_add_u32 s%d, s%d, 1" % (S_LDC, S_LDC))
                e("s_cmp_ge_i32 s%d, 0" % S_TW)
                e("s_cbranch_scc1 %s" % dst)
            e.label("L_tail0")
            e("s_cmp_lg_u32 s%d, 0" % S_TT)
            e("s_cbranch_scc1 L_deep")
            e.lines.append(".p2align 6")
            e.label("L_tail")
            e.vm = list(steady)
            e("s_memrealtime s[%d:%d]" % (S_TW, S_TW + 1))
            tcheck(0, "L_deep")
            e.wait_tag("g0")
            e("s_memrealtime s[%d:%d]" % (S_TW, S_TW + 1))
            issue_group(1, "V")
            tcheck(1, "L_dB")
            vb = list(e.vm)
            compute(0, "V")
            e.wait_tag("g1")
            e("s_memrealtime s[%d:%d]" % (S_TW, S_TW + 1))
            issue_group(2, "V")
            advance("V", False, False)
            tcheck(2, "L_dC")
            vc = list(e.vm)
            elect(1, "V", 1)
            compute(1, "V")
            e.wait_tag("g2")
            issue_group(0, "V")
            elect(2, "V", 1)
            compute(2, "V")
            finish("V", False)
            assert e.vm == steady
            e("s_cmp_lg_u32 s%d, %d" % (S_I, NT))
            e("s_cbranch_scc1 L_tail")
            e("s_branch L_vend")
            e.label("L_dB")
            e.vm = vb
            issue_group(2, "V")
            advance("V", False, False)
            assert e.vm == DKV[0]
            e("s_branch L_dk0")
            e.label("L_dC")
            e.vm = vc
            issue_group(0, "V")
            assert e.vm == DKV[1]
            e("s_branch L_dk1")

    if BC:
        e.label("L_kboost")
        e("s_cmp_eq_u32 s%d, %d" % (S_I, NT - 1))
        e("s_cbranch_scc1 L_kchk2")
        e.vm = list(steady)
        body_boost("K")
        assert e.vm == steady, (e.vm, steady)
        e("s_branch L_kchk")
        e.label("L_vboost")
        e("s_and_b32 s%d, s%d, 15" % (S_T, S_I))
        e("s_cbranch_scc0 L_vend")
        e.label("L_vboost2")
        e("s_cmp_eq_u32 s%d, %d" % (S_I, NT))
        e("s_cbranch_scc1 L_vend2")
        body_boost("V")
        assert e.vm == steady, (e.vm, steady)
        e("s_branch L_vchk")

    for tag in EFS:
        e.label(tag)
        e("s_lshr_b32 s%d, s%d, 2" % (S_T, S_I))
        e("v_mov_b32 v%d, s%d" % (V_T0, S_T))
        lds_inc(L_CF - 4, V_T0, V_T1)
        e("s_branch %sr" % tag)
    for tag in ELS:
        e.label(tag)
        lds_inc(L_EL, V_Z, V_T1)
        e("s_branch %sr" % tag)

    def pace_events(kind, x):
        e("s_bitcmp1_b64 s[%d:%d], s%d" % (S_MP, S_MP + 1, S_I))
        e("s_cbranch_scc0 L_pa%s%s" % (kind, x))
        e("s_memrealtime s[%d:%d]" % (S_TW, S_TW + 1))
        e("s_mov_b32 s%d, s%d" % (S_BP, S_BO))
        lds_inc(L_TC, V_Z, V_T1)
        e.label("L_pa%s%s" % (kind, x))
        e("s_bitcmp1_b64 s[%d:%d], s%d" % (S_MG, S_MG + 1, S_I))
        e("s_cbranch_scc0 L_pb%s%s" % (kind, x))
        lds_inc(L_TC, V_Z, V_T1)
        e.label("L_pb%s%s" % (kind, x))
        e("s_bitcmp1_b64 s[%d:%d], s%d" % (S_MR, S_MR + 1, S_I))
        e("s_cbranch_scc0 L_pc%s%s" % (kind, x))
        e("v_mov_b32 v%d, s%d" % (V_T1, S_CPA))
        e("ds_read_b32 v%d, v%d" % (V_T0, V_T1))
        lds_inc(L_TC, V_Z, V_T1)
        e("s_add_u32 s%d, s%d, 4" % (S_CPA, S_CPA))
        e("s_waitcnt lgkmcnt(0)")
        e("v_readfirstlane_b32 s%d, v%d" % (S_T, V_T0))
        e("s_cmp_eq_u32 s%d, 0" % S_T)
        e("s_cbranch_scc1 L_pc%s%s" % (kind, x))
        if kind == "V" and P["tt"]:
            e("s_cmp_eq_u32 s%d, %d" % (S_I, P["te"]))
            e("s_cbranch_scc0 L_pe%s" % x)
            e("s_add_u32 s%d, s%d, %d" % (S_TH, S_T, P["tx"] - 3 * (NT - P["te"]) * P["d3"]))
            e("s_mov_b32 s%d, %d" % (S_TD, P["te"]))
            e("s_mov_b32 s%d, 0" % S_TT)
            e("s_mov_b32 s%d, 0" % S_BO)
            e("s_branch L_pc%s%s" % (kind, x))
            e.label("L_pe%s" % x)
        e("s_sub_u32 s%d, s%d, s%d" % (S_T, S_TW, S_T))
        e("s_max_i32 s%d, s%d, -4096" % (S_T, S_T))
        e("s_min_i32 s%d, s%d, 4096" % (S_T, S_T))
        if kind == "V" and not P["tt"]:
            e("s_cmp_eq_u32 s%d, %d" % (S_I, P["te"]))
            e("s_cbranch_scc0 L_pd%s" % x)
            e("s_mul_i32 s%d, s%d, %d" % (S_T, S_T, P["ka"]))
            e("s_add_u32 s%d, s%d, %d" % (S_T, S_T, P["kb"]))
            e("s_ashr_i32 s%d, s%d, 10" % (S_T, S_T))
            e("s_max_i32 s%d, s%d, %d" % (S_T, S_T, P["dmin"]))
            e("s_min_i32 s%d, s%d, %d" % (S_T, S_T, min(P["dmax"], NT - P["te"])))
            e("s_sub_u32 s%d, %d, s%d" % (S_TD, NT, S_T))
            e("s_cmp_eq_u32 s%d, %d" % (S_TD, NT))
            e("s_cselect_b32 s%d, 255, s%d" % (S_TD, S_TD))
            e("s_mov_b32 s%d, 0" % S_BO)
            if P["stamp"] == 5:
                e("s_mov_b32 s%d, s%d" % (S_LDC, S_TD))
            e("s_branch L_pc%s%s" % (kind, x))
            e.label("L_pd%s" % x)
        e("s_mul_i32 s%d, s%d, %d" % (S_T, S_T, P["ka2"]))
        e("s_add_u32 s%d, s%d, %d" % (S_T, S_T, P["kb2"]))
        e("s_ashr_i32 s%d, s%d, 10" % (S_T, S_T))
        e("s_sub_u32 s%d, s%d, s%d" % (S_T, S_T, S_BP))
        e("s_add_u32 s%d, s%d, s%d" % (S_T, S_T, S_BO))
        e("s_max_i32 s%d, s%d, 0" % (S_T, S_T))
        e("s_min_i32 s%d, s%d, %d" % (S_BO, S_T, P["bmax"]))
        e.label("L_pc%s%s" % (kind, x))
        e("s_bitcmp1_b64 s[%d:%d], s%d" % (S_MO, S_MO + 1, S_I))
        e("s_cbranch_scc0 L_evret%s%s" % (kind, x))

    for x in (("", "B") if BC else ("",)):
        e.label("L_evK" + x)
        if BC:
            pace_events("K", x)
        e("s_and_b32 s%d, s%d, 15" % (S_T, S_I))
        e("s_cbranch_scc0 L_evK2" + x)
        e("s_cmp_eq_u32 s%d, %d" % (S_I, N0))
        e("s_cbranch_scc1 L_evK2" + x)
        e("s_lshr_b32 s%d, s%d, 2" % (S_T + 1, S_I))
        e("s_andn2_b32 s%d, s%d, 3" % (S_T + 1, S_T + 1))
        e("s_add_u32 s%d, s%d, %d" % (S_T + 1, S_T + 1, 236 if P["ef"] else L_CF - 4))
        e("s_cmp_eq_u32 s%d, 1" % S_T)
        e("s_cselect_b32 s%d, s%d, %d" % (S_T, S_T + 1, L_EV + 4))
        e("s_cselect_b32 s%d, %d, 0" % (S_T + 1, PHI - 768))
        e("v_add_u32 v%d, s%d, v%d" % (V_LB0, S_T + 1, V_LB0))
        e("s_cmp_eq_u32 s%d, %d" % (S_I, TRG1))
        e("s_cselect_b32 s%d, %d, s%d" % (S_T, L_EV, S_T))
        e("v_mov_b32 v%d, s%d" % (V_T0, S_T))
        lds_inc(0, V_T0, V_T1)
        e("s_branch L_evretK" + x)
        e.label("L_evK2" + x)
        if P["stamp"] == 2:
            e("s_cmp_eq_u32 s%d, %d" % (S_I, N0))
            e("s_cbranch_scc0 L_ns2" + x)
            e("s_memrealtime s[%d:%d]" % (S_DBG, S_DBG + 1))
            e.label("L_ns2" + x)
        if P["sg"]:
            assert P["stamp"]
            e("s_cmp_eq_u32 s%d, %d" % (S_I, N0))
            e("s_cbranch_scc0 L_sgx" + x)
            e.label("L_sgl" + x)
            e("s_memrealtime s[%d:%d]" % (S_T + 4, S_T + 5))
            e("s_waitcnt lgkmcnt(0)")
            e("s_sub_u32 s%d, s%d, s%d" % (S_T + 4, S_T + 4, S_ST))
            e("s_cmp_lt_i32 s%d, %d" % (S_T + 4, P["sg"]))
            e("s_cbranch_scc1 L_sgl" + x)
            e.label("L_sgx" + x)
        get_table("K", "tk" + x)
        if P["stamp"] == 3:
            e("s_cmp_eq_u32 s%d, %d" % (S_I, N0))
            e("s_cbranch_scc0 L_evretK")
            e("s_memrealtime s[%d:%d]" % (S_DBG, S_DBG + 1))
        e("s_branch L_evretK" + x)
        e.label("L_evV" + x)
        if BC:
            pace_events("V", x)
        elif P["at"]:
            e("s_and_b32 s%d, s%d, 15" % (S_T, S_I))
            e("s_cbranch_scc0 L_evV2")
            e("s_cmp_eq_u32 s%d, %d" % (S_I, P["te"]))
            e("s_cbranch_scc1 L_evV3")
            lds_inc(L_TC, V_Z, V_T1)
            e("s_branch L_evretV")
            e.label("L_evV3")
            e("ds_read_b32 v%d, v%d offset:%d" % (V_T0, V_Z, L_TD))
            e("s_waitcnt lgkmcnt(0)")
            e("v_readfirstlane_b32 s%d, v%d" % (S_T, V_T0))
            e("s_cmp_eq_u32 s%d, 0" % S_T)
            e("s_cselect_b32 s%d, s%d, s%d" % (S_TD, S_TD, S_T))
            if P["stamp"] == 5:
                e("s_mov_b32 s%d, s%d" % (S_LDC, S_T))
            e("s_branch L_evretV")
            e.label("L_evV2")
        get_table("V", "tv2" + x)
        e("s_branch L_evretV" + x)

    PG = S_G; PM = S_M
    PNB = 5; PP = 6; PBK = 7
    PB = 8; PWS = 12; PDB = 16
    PO = 20; PFL = 21; PBASE = 22; PPR = 90
    PD = 24
    POF = 32
    PT = 40
    PMN = 44; PJ = 45; PRN = 46; PNR = 47
    PE = 48
    PRB = 56; PACC = 58; PGL = 59; PSP = 60; PPH = 61; PSG = 62; PG0 = 63
    PDC = 84
    PS2 = 92; PS3 = 96
    HL = 1; HZ = 2; HW = 3; HA = 4; HB_ = 5; HC = 6; HD = 7; HK = 8; HV = 9; HE = 10; HF = 11; HR = 12; HG = 13
    HN = 14; HT2 = 15
    HX = 16
    BIAS = 65536
    e.wr = {}; e.tr = {}
    e.label("L_helper")
    PST = 100
    if P["pt"] or P["pd"]:
        e("s_memrealtime s[%d:%d]" % (PST, PST + 1))
    e("s_sub_u32 s%d, s%d, %d" % (PP, S_WAVE, NW))
    e("s_mov_b32 s%d, s%d" % (PNB, S_NB))
    e("v_and_b32 v%d, 63, v0" % HL)
    e("v_mov_b32 v%d, 0" % HZ)
    e("s_mul_i32 s%d, s%d, %d" % (PGL, PG, 8 * FSTR))
    e("s_add_u32 s%d, s%d, %d" % (PGL, PGL, WS_G))
    if EB and EB != 4:
        e("s_cmp_lg_u32 s%d, 0" % PP)
        e("s_cbranch_scc1 L_hbar")
        e("v_lshlrev_b32 v%d, 2, v%d" % (HB_, HL))
        e("ds_write_b32 v%d, v%d" % (HB_, HZ))
        e("s_waitcnt lgkmcnt(0)")
        e.label("L_hbar")
        e("s_barrier")
    if BC:
        e("s_cmp_eq_u32 s%d, 3" % PP)
        e("s_cbranch_scc1 L_h3")
    LB = P["lb"]
    PA = PPH
    PKB = 91
    VLN = 20 if LB else 10
    ELN = 256 + VLN - 21
    if LB:
        assert P["sw"] and P["dc"] and P["vw"]
        e("s_mul_i32 s%d, s%d, 25" % (PE, PP))
        e("s_sub_u32 s%d, s%d, 22" % (PE, PE))
        e("s_cmp_lt_i32 s%d, s%d" % (PG, PE))
        e("s_cselect_b32 s%d, 1, 0" % PPR)
        e("s_cbranch_scc0 L_noprobe1")
        e("s_add_u32 s%d, s%d, 2" % (PE + 1, PG))
        e("s_mul_i32 s%d, s%d, 205" % (PE, PE + 1))
        e("s_lshr_b32 s%d, s%d, 10" % (PE, PE))
        e("s_mul_i32 s%d, s%d, 5" % (PBK, PE))
        e("s_sub_u32 s%d, s%d, s%d" % (PBK, PE + 1, PBK))
        e("s_add_u32 s%d, s%d, 1" % (PBK, PBK))
        e("s_lshl_b32 s%d, s%d, 1" % (PE + 1, PG))
        e("s_add_u32 s%d, s%d, s%d" % (PE + 1, PE + 1, PP))
        e("s_sub_u32 s%d, s%d, 1" % (PE + 1, PE + 1))
        e("s_cmp_lt_u32 s%d, 3" % PG)
        e("s_cselect_b32 s%d, 0, s%d" % (PBK, PBK))
        e("s_cselect_b32 s%d, s%d, s%d" % (PE + 1, PE + 1, PE))
    else:
        e("s_mul_i32 s%d, s%d, 10" % (PE, PP))
        e("s_sub_u32 s%d, s%d, 7" % (PE, PE))
        e("s_cmp_lt_i32 s%d, s%d" % (PG, PE))
        e("s_cselect_b32 s%d, 1, 0" % PPR)
        e("s_cbranch_scc0 L_noprobe1")
        e("s_max_u32 s%d, s%d, 1" % (PBK, PG))
        e("s_sub_u32 s%d, s%d, 1" % (PBK, PBK))
        e("s_lshr_b32 s%d, s%d, 1" % (PBK, PBK))
        e("s_lshl_b32 s%d, s%d, 1" % (PE + 1, PG))
        e("s_add_u32 s%d, s%d, s%d" % (PE + 1, PE + 1, PP))
        e("s_sub_u32 s%d, s%d, 1" % (PE + 1, PE + 1))
        e("s_bitcmp1_b32 s%d, 0" % PG)
        e("s_cselect_b32 s%d, 1, 4" % PE)
        e("s_cmp_eq_u32 s%d, 0" % PBK)
        e("s_cselect_b32 s%d, s%d, s%d" % (PE + 1, PE + 1, PE))
    e("s_and_b32 s%d, s%d, 1" % (PE, PE + 1))
    e("s_mul_i32 s%d, s%d, 20" % (PO, PE + 1))
    e("s_add_u32 s%d, s%d, s%d" % (PO, PO, PE))
    e("s_add_u32 s%d, s%d, 2" % (PO, PO))
    if LB:
        e("s_lshr_b32 s%d, s%d, 5" % (PKB, PO))
        e("s_xor_b32 s%d, s%d, s%d" % (PKB, PKB, PM))
    e("s_lshl_b32 s%d, s%d, 21" % (PO, PO))
    e("s_xor_b32 s%d, s%d, s%d" % (PFL, PM, PP))
    e("s_and_b32 s%d, s%d, 1" % (PFL, PFL))
    e("s_lshr_b32 s%d, s%d, 2" % (PE + 1, PM))
    e("s_xor_b32 s%d, s%d, s%d" % (PE, PE, PE + 1))
    e("s_xor_b32 s%d, s%d, s%d" % (PE, PE, PFL))
    e("s_lshl_b32 s%d, s%d, 13" % (PE, PE))
    e("s_lshl_b32 s%d, s%d, 14" % (PE + 1, PP))
    e("s_and_b32 s%d, s%d, 0x4000" % (PE + 1, PE + 1))
    e("s_or_b32 s%d, s%d, s%d" % (PE, PE, PE + 1))
    for u in range(8):
        e("s_xor_b32 s%d, s%d, 0x%x" % (POF + u, PE, ((u & 1) << 13) | (((u >> 1) & 1) << 12) | ((u >> 2) << 14)))
    e("v_and_b32 v%d, 7, v%d" % (HW, HL))
    e("v_lshlrev_b32 v%d, 12, v%d" % (HW, HW))
    e("s_lshl_b32 s%d, s%d, 8" % (PE, PM))
    e("v_add_u32 v%d, s%d, v%d" % (HW, PE, HW))
    e("s_mov_b32 s%d, %d" % (PB + 2, H * HEADB))
    e("s_mov_b32 s%d, 0x00020000" % (PB + 3))
    e("s_cmp_ge_u32 s%d, 3" % PBK)
    e("s_cselect_b32 s%d, 3, 0" % PE)
    e("s_sub_u32 s%d, s%d, s%d" % (PE, PBK, PE))
    e("s_lshl_b32 s%d, s%d, 28" % (PE, PE))
    e("s_add_u32 s%d, s%d, s%d" % (PO, PO, PE))
    e("s_cmp_ge_u32 s%d, 3" % PBK)
    e("s_waitcnt lgkmcnt(0)")
    e("s_cselect_b32 s%d, s68, s66" % PB)
    e("s_cselect_b32 s%d, s69, s67" % (PBASE + 1))
    e("s_and_b32 s%d, s%d, 0xffff" % (PB + 1, PBASE + 1))
    if not P["sw"]:
        e("s_mov_b64 exec, 0xff")
        e("buffer_load_dword v%d, v%d, s[%d:%d], s%d offen" % (HA, HW, PB, PB + 3, PO))
        e("s_mov_b64 exec, -1")
    e("s_add_u32 s%d, s%d, s%d" % (PBASE, PB, PO))
    e("s_addc_u32 s%d, s%d, 0" % (PBASE + 1, PBASE + 1))
    e("s_lshl_b32 s%d, s%d, 8" % (PE, PM))
    if P["sw"]:
        e("s_add_u32 s%d, s%d, s%d" % (PRB, PBASE, PE))
        e("s_addc_u32 s%d, s%d, 0" % (PRB + 1, PBASE + 1))
        for u in range(8):
            e("s_load_dword s%d, s[%d:%d], 0x%x" % (PD + u, PRB, PRB + 1, u * 4096))
        if P["dc"]:
            srd_ws(PWS)
            e("s_lshl_b32 s%d, s2, 1" % PE)
            e("s_add_u32 s%d, s%d, s%d" % (PE, PE, PP))
            e("s_mul_i32 s%d, s%d, %d" % (PE, PE, 6 * FSTR))
            e("s_add_u32 s%d, s%d, %d" % (PE, PE, WS_G - 6 * FSTR))
            e("v_mul_u32_u24 v%d, %d, v%d" % (HB_, FSTR, HL))
            e("v_mov_b32 v%d, 0" % (HZ + 1))
            if LB:
                e("v_mov_b32 v%d, 0" % (HZ + 2))
            e("s_cmp_eq_u32 s%d, 0" % PBK)
            e("s_cselect_b64 exec, 0x3f, 0")
            e("buffer_store_dwordx%d v[%d:%d], v%d, s[%d:%d], s%d offen sc1" % (3 if LB else 2, HZ, HZ + (2 if LB else 1), HB_, PWS, PWS + 3, PE))
            e("s_mov_b64 exec, -1")
        for k in range(1, P["sw"]):
            e("s_waitcnt lgkmcnt(0)")
            e("s_load_dword s%d, s[%d:%d], 0x%x" % (PD, PRB, PRB + 1, k * 4096 + 128))
    else:
        e("s_add_u32 s%d, s%d, 128" % (PE, PE))
        e("s_load_dword s%d, s[%d:%d], s%d" % (PJ, PBASE, PBASE + 1, PE))
    if P["pb"]:
        if P["pb"] == 1:
            e("s_cmp_lg_u32 s%d, 0" % PBK)
            e("s_cbranch_scc1 L_noprobe2")
        else:
            e("s_branch L_noprobe2")
    e.label("L_noprobe1")
    e("s_waitcnt lgkmcnt(0)")
    if P["pb"]:
        e.label("L_noprobe2")
    srd_ws(PWS)
    srd(PDB, 80, 256)
    if not EB:
        e("s_cmp_lg_u32 s%d, 0" % PP)
        e("s_cbranch_scc1 L_hbar")
        e("v_lshlrev_b32 v%d, 2, v%d" % (HB_, HL))
        e("ds_write_b32 v%d, v%d" % (HB_, HZ))
        e("s_waitcnt lgkmcnt(0)")
        e.label("L_hbar")
        e("s_barrier")
    if P["hs"]:
        e("s_mov_b32 s%d, 0" % (PD + 4))
    e("s_cmp_eq_u32 s%d, 0" % PPR)
    e("s_cbranch_scc1 L_role")
    e("s_mov_b32 s%d, 1" % PRN)
    e("s_mov_b32 s%d, 0" % PACC)
    if LB:
        for k in range(3):
            e("s_mov_b32 s%d, 0" % (PA + k))
        if LB & 2:
            e("s_mov_b32 m0, 0")
    e("s_cmp_eq_u32 s%d, 0" % PBK)
    e("s_cselect_b32 s%d, %d, %d" % (PNR, P["nr0"], NR))
    if not P["sw"]:
        e("s_waitcnt vmcnt(0)")
    if P["pb"]:
        e("s_waitcnt lgkmcnt(0)")
    e.label("L_round")
    e("s_add_u32 s%d, s%d, s%d" % (PE, PM, PRN))
    e("s_and_b32 s%d, s%d, 7" % (PE, PE))
    e("s_lshl_b32 s%d, s%d, 8" % (PE, PE))
    e("s_add_u32 s%d, s%d, s%d" % (PRB, PBASE, PE))
    e("s_addc_u32 s%d, s%d, 0" % (PRB + 1, PBASE + 1))
    e("s_mov_b32 s%d, -1" % PMN)
    e("s_memtime s[%d:%d]" % (PT, PT + 1))
    e("s_waitcnt lgkmcnt(0)")
    for u in range(8):
        a = PT + 2 * (u & 1); b = PT + 2 * ((u + 1) & 1)
        e("s_load_dword s%d, s[%d:%d], s%d" % (PJ, PRB, PRB + 1, POF + u))
        e("s_waitcnt lgkmcnt(0)")
        e("s_memtime s[%d:%d]" % (b, b + 1))
        e("s_waitcnt lgkmcnt(0)")
        e("s_sub_u32 s%d, s%d, s%d" % (PD + u, b, a))
        if u + 1 == P["ns0"] and u < 7:
            for k in range(u + 1, 8):
                e("s_mov_b32 s%d, -1" % (PD + k))
            e("s_cmp_eq_u32 s%d, 0" % PBK)
            e("s_cbranch_scc1 L_few")
    if LB & 2:
        for u in range(8):
            e("v_writelane_b32 v%d, s%d, m0" % (HX, PD + u))
            e("s_add_u32 m0, m0, 1")
    e.label("L_few")
    for u in range(8):
        e("s_min_u32 s%d, s%d, %d" % (PD + u, PD + u, P["clip"]))
        e("s_min_u32 s%d, s%d, s%d" % (PMN, PMN, PD + u))
    e("s_cmp_lt_u32 s%d, %d" % (PMN, P["l2t"]))
    e("s_cbranch_scc1 L_skip")
    for u in range(8):
        e("s_%s_u32 s%d, s%d, s%d" % ("add" if u & 1 else "sub", PACC, PACC, PD + u))
    if LB:
        e("s_cmp_eq_u32 s%d, 0" % PBK)
        e("s_cbranch_scc1 L_skip")
        if P["cl2"]:
            for h in range(2):
                e("s_min_u32 s%d, s%d, s%d" % (PE + h, PD + h, PD + 2 + h))
                e("s_min_u32 s%d, s%d, s%d" % (PE + 2, PD + 4 + h, PD + 6 + h))
                e("s_min_u32 s%d, s%d, s%d" % (PE + h, PE + h, PE + 2))
                e("s_add_u32 s%d, s%d, %d" % (PE + h, PE + h, P["cl2"]))
            for u in range(8):
                e("s_min_u32 s%d, s%d, s%d" % (PD + u, PD + u, PE + (u & 1)))
        for u in range(8):
            for k, bit in enumerate(((u ^ (u >> 1)) & 1, (u >> 2) & 1, (u ^ (u >> 2)) & 1)):
                e("s_%s_u32 s%d, s%d, s%d" % ("add" if bit else "sub", PA + k, PA + k, PD + u))
    e.label("L_skip")
    e("s_add_u32 s%d, s%d, 1" % (PRN, PRN))
    e("s_cmp_le_u32 s%d, s%d" % (PRN, PNR))
    e("s_cbranch_scc1 L_round")
    e("s_sub_u32 s%d, 0, s%d" % (PE, PACC))
    e("s_cmp_eq_u32 s%d, 0" % PFL)
    e("s_cselect_b32 s%d, s%d, s%d" % (PACC, PACC, PE))
    e("s_add_u32 s%d, s%d, 0x%x" % (PACC, PACC, BIAS + (1 << 24)))
    e("v_mov_b32 v%d, s%d" % (HA, PACC))
    e("s_mov_b64 exec, 1")
    e("s_lshl_b32 s%d, s%d, 2" % (PE, PBK))
    e("s_add_u32 s%d, s%d, 124" % (PE, PE))
    e("s_cmp_eq_u32 s%d, 0" % PBK)
    e("s_cbranch_scc0 L_post")
    if P["hs"] == 3:
        e("s_memrealtime s[%d:%d]" % (PD + 4, PD + 5))
    if P["dc"]:
        e("s_waitcnt vmcnt(0)")
    e("ds_add_rtn_u32 v%d, v%d, v%d offset:%d" % (HB_, HZ, HA, L_PC))
    e("s_mov_b32 s%d, 0" % PE)
    e("s_waitcnt lgkmcnt(0)")
    e("v_add_u32 v%d, v%d, v%d" % (HA, HA, HB_))
    e("v_cmp_ne_u32 vcc, 0, v%d" % HB_)
    e("s_and_b64 exec, exec, vcc")
    if P["vw"]:
        e("buffer_atomic_add v%d, off, s[%d:%d], s%d" % (HA, PDB, PDB + 3, PE))
        e("s_branch L_posted")
        e.label("L_post")
        lds_wait("vw", HZ, HE, PE, L_DEC, "nz", PSP)
        if LB:
            e("s_lshr_b32 s%d, s%d, 1" % (PE, PKB))
            e("s_xor_b32 s%d, s%d, s%d" % (PE, PE, PFL))
            e("s_sub_u32 s%d, 0, s%d" % (PE + 1, PA))
            e("s_bitcmp1_b32 s%d, 0" % PE)
            e("s_cselect_b32 s%d, s%d, s%d" % (PA, PE + 1, PA))
            e("s_xor_b32 s%d, s%d, s%d" % (PE, PKB, PFL))
            e("s_bitcmp1_b32 s%d, 0" % PM)
            e("s_cselect_b32 s%d, s%d, s%d" % (PE, PKB, PE))
            e("s_cselect_b32 s%d, s%d, s%d" % (PA + 1, PA + 1, PA + 2))
            e("s_sub_u32 s%d, 0, s%d" % (PE + 1, PA + 1))
            e("s_bitcmp1_b32 s%d, 0" % PE)
            e("s_cselect_b32 s%d, s%d, s%d" % (PA + 1, PE + 1, PA + 1))
            for k in range(2):
                e("s_add_u32 s%d, s%d, 0x%x" % (PA + k, PA + k, BIAS + (1 << 24)))
                e("v_writelane_b32 v%d, s%d, %d" % (HA, PA + k, k + 1))
            e("s_lshl_b32 s%d, s%d, 2" % (PE, PBK))
            e("s_and_b32 s%d, s%d, 1" % (PE + 1, PM))
            e("s_or_b32 s%d, s%d, s%d" % (PE, PE, PE + 1))
            e("s_lshr_b32 s%d, s%d, 1" % (PE + 1, PM))
            e("s_and_b32 s%d, s%d, 2" % (PE + 1, PE + 1))
            e("s_or_b32 s%d, s%d, s%d" % (PE, PE, PE + 1))
            e("s_mul_i32 s%d, s%d, %d" % (PE, PE, FSTR))
            e("s_add_u32 s%d, s%d, %d" % (PE, PE, WS_G + 252 * FSTR))
            e("s_mov_b64 exec, 7")
            e("v_lshlrev_b32 v%d, 2, v%d" % (HB_, HL))
            e("buffer_atomic_add v%d, v%d, s[%d:%d], s%d offen" % (HA, HB_, PWS, PWS + 3, PE))
            if LB & 2:
                e("s_mov_b64 exec, -1")
                e("s_memrealtime s[%d:%d]" % (PT, PT + 1))
                e("v_mov_b32 v%d, s%d" % (HX + 1, POF))
                e("v_mov_b32 v%d, s%d" % (HX + 2, PO))
                e("s_waitcnt lgkmcnt(0)")
                e("v_mov_b32 v%d, s%d" % (HX + 3, PT))
                srd(PB, 82, 0x8000000)
                e("s_lshl_b32 s%d, s2, 10" % PE)
                e("s_add_u32 s%d, s%d, 0x4090000" % (PE, PE))
                e("v_lshlrev_b32 v%d, 4, v%d" % (HW, HL))
                e("buffer_store_dwordx4 v[%d:%d], v%d, s[%d:%d], s%d offen" % (HX, HX + 3, HW, PB, PB + 3, PE))
        else:
            e("s_mul_i32 s%d, s%d, %d" % (PE, PG, FSTR))
            e("s_add_u32 s%d, s%d, %d" % (PE, PE, WS_G + 253 * FSTR))
            e("buffer_atomic_add v%d, off, s[%d:%d], s%d" % (HA, PWS, PWS + 3, PE))
        e.label("L_posted")
    else:
        e.label("L_post")
        e("buffer_atomic_add v%d, off, s[%d:%d], s%d" % (HA, PDB, PDB + 3, PE))
    e("s_mov_b64 exec, -1")
    if P["hs"] and P["hs"] != 3:
        if P["hs"] == 2:
            e("s_waitcnt vmcnt(0)")
        e("s_memrealtime s[%d:%d]" % (PD + 4, PD + 5))
    e.label("L_role")
    e("s_cmp_eq_u32 s%d, 0" % PP)
    e("s_cbranch_scc1 L_h0")
    e("s_cmp_eq_u32 s%d, 2" % PP)
    e("s_cbranch_scc1 L_h2")

    def wave_reduce(regs, op, tmp):
        for kk in (8, 4, 2, 1):
            for r in regs:
                e("%s_dpp v%d, v%d, v%d row_ror:%d row_mask:0xf bank_mask:0xf" % (op, r, r, r, kk))
        for sw in ("v_permlane32_swap_b32", "v_permlane16_swap_b32"):
            for r, t in zip(regs, tmp):
                e("v_mov_b32 v%d, v%d" % (t, r))
            for r, t in zip(regs, tmp):
                e("%s v%d, v%d" % (sw, r, t))
            for r, t in zip(regs, tmp):
                e("%s v%d, v%d, v%d" % (op, r, r, t))

    def decode(tag, nl, off, cnt, rounds, dst, b0):
        vw = b0 and P["vw"]
        if P["pt"] and not b0:
            e("s_add_u32 s%d, s%d, %d" % (PST, PST, P["pt"]))
        else:
            lds_wait("e" + tag, HZ, HE, PE, L_EV + (4 if b0 else 0), "nz" if b0 else str(P["tw"]), PSP)
        if vw:
            e("v_mul_u32_u24 v%d, %d, v%d" % (HD, FSTR, HL))
            e("s_mov_b32 s%d, %d" % (PE, WS_G + 256 * FSTR))
            e("v_lshrrev_b32 v%d, 1, v%d" % (HB_, HB_))
        e("s_mov_b64 exec, 0x%x" % ((1 << (2 * nl if vw else nl)) - 1))
        e("s_mov_b32 s%d, 0x40000" % PSP)
        if P["hs"] and not b0:
            e("s_memrealtime s[%d:%d]" % (PD, PD + 1))
        if P["l2p"] and not b0:
            e("buffer_load_dword v%d, v%d, s[%d:%d], 0 offen offset:%d" % (HA, HB_, PDB, PDB + 3, off))
            e("s_branch L_pollw" + tag)
        if not P["xkp"] & 4:
            e.label("L_poll" + tag)
            if P["pt"] and not b0:
                twait(PST, PT, P["pk"])
            if vw:
                e("buffer_load_dword v%d, v%d, s[%d:%d], s%d offen sc1" % (HA, HD, PWS, PWS + 3, PE))
            else:
                e("buffer_load_dword v%d, v%d, s[%d:%d], 0 offen offset:%d sc1" % (HA, HB_, PDB, PDB + 3, off))
            e("s_sub_u32 s%d, s%d, 1" % (PSP, PSP))
            e("s_cbranch_scc1 L_exit1")
            e.lines.append("L_pollw%s:" % tag)
            e("s_waitcnt vmcnt(0)")
            e("v_lshrrev_b32 v%d, 24, v%d" % (HC, HA))
            e("v_cmp_ne_u32 vcc, %d, v%d" % (cnt // 2 if vw else cnt, HC))
            e("s_cbranch_vccnz L_poll" + tag)
        if vw:
            e("v_add_u32_dpp v%d, v%d, v%d quad_perm:[1,0,3,2] row_mask:0xf bank_mask:0xf" % (HA, HA, HA))
            e("s_mov_b64 exec, 0x%x" % (0x5555 & ((1 << (2 * nl)) - 1)))
        th = P["th"] * cnt * rounds * (8 if b0 else P["ns0"]) // 8
        e("v_and_b32 v%d, 0xffffff, v%d" % (HA, HA))
        e("v_subrev_u32 v%d, %d, v%d" % (HA, cnt * BIAS, HA))
        if P["stamp"] == 6 and b0:
            e("s_cmp_lg_u32 s2, 100")
            e("s_cbranch_scc1 L_nodbg")
            e("buffer_store_dword v%d, v%d, s[%d:%d], 0 offen offset:4" % (HA, HB_, PDB, PDB + 3))
            e.label("L_nodbg")
        e("v_lshrrev_b32 v%d, 30, v%d" % (HC, HA))
        e("v_and_b32 v%d, 2, v%d" % (HC, HC))
        e("v_add_u32 v%d, %d, v%d" % (HA, th, HA))
        e("v_cmp_gt_u32 vcc, %d, v%d" % (2 * th, HA))
        e("v_cndmask_b32 v%d, v%d, 8, vcc" % (HC, HC))
        if P["force"] == 1:
            e("v_mov_b32 v%d, 8" % HC)
        if P["force"] >= 2:
            e("s_mov_b32 s%d, 0x%x" % (PE, 0x7000000 + 128 * (P["force"] - 2)))
            e("s_load_dwordx4 s[%d:%d], s[82:83], s%d" % (PS2, PS2 + 3, PE))
            e("s_waitcnt lgkmcnt(0)")
            for l in range(nl):
                b = b0 + l
                e("s_lshr_b64 s[%d:%d], s[%d:%d], %d" % (PE, PE + 1, PS2 + 2 * (b // 3), PS2 + 2 * (b // 3) + 1, 16 * (b % 3)))
                e("s_and_b32 s%d, s%d, %d" % (PE, PE, P["ob"]))
                e("s_xor_b32 s%d, s%d, %d" % (PE, PE, P["ox"]))
                e("v_writelane_b32 v%d, s%d, %d" % (HC, PE, 2 * l if vw else l))
        e("v_or_b32 v%d, 16, v%d" % (HC, HC))
        if P["xv"] and vw:
            e("v_lshlrev_b32 v%d, 1, v%d" % (HA, HL))
            e("v_lshrrev_b32 v%d, v%d, %d" % (HA, HA, 0) if False else "v_mov_b32 v%d, 0x%x" % (HD, int(str(P["xv"])[::-1], 16)))
            e("v_lshrrev_b32 v%d, v%d, v%d" % (HA, HA, HD))
            e("v_and_b32 v%d, 7, v%d" % (HA, HA))
            e("v_xor_b32 v%d, v%d, v%d" % (HC, HC, HA))
        e("ds_write_b32 v%d, v%d offset:%d" % (HB_, HC, dst))
        if P["hs"] and not b0:
            e("s_memrealtime s[%d:%d]" % (PD + 2, PD + 3))
            srd(PS2, 82, 0x8000000)
            e("s_waitcnt lgkmcnt(0)")
            e("v_mov_b32 v%d, s%d" % (HX, PD))
            e("v_mov_b32 v%d, s%d" % (HX + 1, PD + 2))
            e("v_mov_b32 v%d, s%d" % (HX + 2, PSP))
            e("v_mov_b32 v%d, s%d" % (HX + 3, PD + 4))
            e("s_lshl_b32 s%d, s2, 4" % PE)
            e("s_add_u32 s%d, s%d, 0x4008000" % (PE, PE))
            e("buffer_store_dwordx4 v[%d:%d], off, s[%d:%d], s%d" % (HX, HX + 3, PS2, PS2 + 3, PE))
        e("s_mov_b64 exec, -1")

    if not P["dc"]:
        e("s_cmp_lg_u32 s2, %d" % (NWG - 1))
        e("s_cbranch_scc1 L_nolead")
        e("v_mul_u32_u24 v%d, %d, v%d" % (HB_, FSTR, HL))
        e("v_mov_b32 v%d, 0" % (HZ + 1))
        for k in range(5 if P["vw"] else 4):
            e("s_mov_b32 s%d, %d" % (PE + k, WS_G + k * 64 * FSTR))
            if k == 4:
                e("s_mov_b64 exec, 0x%x" % (0x1fffff if P["fc"] else 0x3ff))
            e("buffer_store_dwordx2 v[%d:%d], v%d, s[%d:%d], s%d offen sc1" % (HZ, HZ + 1, HB_, PWS, PWS + 3, PE + k))
        e("v_mov_b32 v%d, 0x%x" % (HA, BIAS + (1 << 24)))
        e("s_mov_b64 exec, 1")
        e("s_waitcnt vmcnt(0)")
        e("buffer_atomic_add v%d, off, s[%d:%d], 0" % (HA, PDB, PDB + 3))
        e("s_mov_b64 exec, -1")
        if P["hs"]:
            if P["hs"] == 2:
                e("s_waitcnt vmcnt(0)")
            e("s_memrealtime s[%d:%d]" % (PD + 4, PD + 5))
        e.label("L_nolead")
    e("v_lshlrev_b32 v%d, 2, v%d" % (HB_, HL))
    decode("a", 1, 0, 48 if P["dc"] else 49, P["nr0"], L_DEC, 0)
    if LB:
        if P["ro"]:
            e("v_readfirstlane_b32 s%d, v%d" % (PMN, HC))
        if P["rx"]:
            MB = 1 << 20
            TG = [(66, 254 * MB), (66, 258 * MB), (66, 514 * MB), (68, 2 * MB), (68, 258 * MB), (68, 514 * MB),
                  (70, 4 * MB), (72, 4 * MB), (74, MB // 2), (76, MB // 2), (82, 32 * MB), (82, 2336 * MB)]
            e("s_mul_i32 s%d, s2, 4352" % PJ)
            for j in range(-1, P["rx"]):
                for t, (ptr, off) in enumerate(TG):
                    e("s_add_u32 s%d, s%d, 0x%x" % (PRB, ptr, off))
                    e("s_addc_u32 s%d, s%d, 0" % (PRB + 1, ptr + 1))
                    e("s_add_u32 s%d, s%d, %d" % (PE, PJ, 512 if j < 0 else 1024 * j))
                    if j < 0:
                        e("s_load_dword s%d, s[%d:%d], s%d" % (PD, PRB, PRB + 1, PE))
                        continue
                    e("s_waitcnt lgkmcnt(0)")
                    e("s_memtime s[%d:%d]" % (PT, PT + 1))
                    e("s_waitcnt lgkmcnt(0)")
                    e("s_load_dword s%d, s[%d:%d], s%d" % (PD, PRB, PRB + 1, PE))
                    e("s_waitcnt lgkmcnt(0)")
                    e("s_memtime s[%d:%d]" % (PT + 2, PT + 3))
                    e("s_waitcnt lgkmcnt(0)")
                    e("s_sub_u32 s%d, s%d, s%d" % (PT, PT + 2, PT))
                    e("v_writelane_b32 v%d, s%d, %d" % (HX, PT, 12 * j + t))
            e("s_memrealtime s[%d:%d]" % (PT, PT + 1))
            e("s_waitcnt lgkmcnt(0)")
            e("v_mov_b32 v%d, s%d" % (HX + 3, PT))
            srd(PB, 82, 0x8000000)
            e("s_lshl_b32 s%d, s2, 10" % PE)
            e("s_add_u32 s%d, s%d, 0x4090000" % (PE, PE))
            e("v_lshlrev_b32 v%d, 4, v%d" % (HW, HL))
            e("buffer_store_dwordx4 v[%d:%d], v%d, s[%d:%d], s%d offen" % (HX, HX + 3, HW, PB, PB + 3, PE))
            e("s_waitcnt vmcnt(0)")
        DA = HX; DB = HX + 1; DC = HX + 2; DW = HX + 4
        lds_wait("eb", HZ, HE, PE, L_EV + 4, "nz", PSP)
        e("v_mul_u32_u24 v%d, %d, v%d" % (HD, FSTR, HL))
        e("s_mov_b32 s%d, %d" % (PE, WS_G + 256 * FSTR))
        e("s_mov_b64 exec, 0xfffff")
        e("s_mov_b32 s%d, 0x40000" % PSP)
        e.label("L_pollb")
        e("buffer_load_dwordx3 v[%d:%d], v%d, s[%d:%d], s%d offen sc1" % (DA, DC, HD, PWS, PWS + 3, PE))
        e("s_sub_u32 s%d, s%d, 1" % (PSP, PSP))
        e("s_cbranch_scc1 L_exit1")
        e("s_waitcnt vmcnt(0)")
        e("v_min3_u32 v%d, v%d, v%d, v%d" % (HC, DA, DB, DC))
        e("v_lshrrev_b32 v%d, 24, v%d" % (HC, HC))
        e("v_cmp_ne_u32 vcc, 10, v%d" % HC)
        e("s_cbranch_vccnz L_pollb")
        for r in (DA, DB, DC):
            e("v_subrev_u32 v%d, 0x%x, v%d" % (r, 10 * (BIAS + (1 << 24)), r))
        for qp in ("[1,0,3,2]", "[2,3,0,1]"):
            for r in (DA, DB):
                e("v_add_u32_dpp v%d, v%d, v%d quad_perm:%s row_mask:0xf bank_mask:0xf" % (r, r, r, qp))
        e("v_ashrrev_i32 v%d, 31, v%d" % (HC, DA))
        e("v_xor_b32 v%d, v%d, v%d" % (DB, DB, HC))
        e("v_xor_b32 v%d, v%d, v%d" % (HA, DC, HC))
        e("s_mov_b64 vcc, 0x55555")
        e("v_cndmask_b32 v%d, v%d, v%d, vcc" % (DC, DC, HA))
        for qp in ("[1,0,3,2]", "[2,3,0,1]"):
            e("v_add_u32_dpp v%d, v%d, v%d quad_perm:%s row_mask:0xf bank_mask:0xf" % (DC, DC, DC, qp))
        e("v_and_b32 v%d, 2, v%d" % (DW, HC))
        for r, bit, th in ((DB, 1, P["th1"]), (DC, 4, P["th0"])):
            e("v_or_b32 v%d, %d, v%d" % (HA, bit, DW))
            e("v_cmp_gt_i32 vcc, %d, v%d" % (-th * 40 * NR, r))
            e("v_cndmask_b32 v%d, v%d, v%d, vcc" % (DW, DW, HA))
        th = P["th"] * 40 * NR
        e("v_add_u32 v%d, %d, v%d" % (HA, th, DA))
        e("v_cmp_gt_u32 vcc, %d, v%d" % (2 * th, HA))
        e("v_cndmask_b32 v%d, v%d, 8, vcc" % (DW, DW))
        e("v_and_b32 v%d, %d, v%d" % (DW, P["lm"] | 8, DW))
        for b in range(5):
            e("v_readlane_b32 s%d, v%d, %d" % (PD + b, DW, 4 * b))
        if P["ro"]:
            e("s_xor_b32 s%d, s%d, s%d" % (PE, PMN, PD + 2))
            e("s_and_b32 s%d, s%d, 15" % (PE, PE))
            e("s_and_b32 s%d, s%d, %d" % (PE + 1, PE, 10 if P["ro"] & 1 else 14))
            e("s_cselect_b32 s%d, 0, s%d" % (PE, PE))
            if P["ro"] & 4:
                e("s_cselect_b32 s%d, s%d, 4" % (PE + 1, PD))
                e("s_bitcmp0_b32 s%d, 2" % (PE + 1))
                e("s_cselect_b32 s%d, s%d, 0" % (PE + 1, PE + 1))
                e("s_and_b32 s%d, s%d, 1" % (PE + 1, PE + 1))
                e("s_or_b32 s%d, s%d, s%d" % (PE, PE, PE + 1))
            for b in range(5):
                e("s_xor_b32 s%d, s%d, s%d" % (PE + 1, PD + b, PE))
                e("s_bitcmp1_b32 s%d, 3" % (PD + b))
                e("s_cselect_b32 s%d, s%d, s%d" % (PD + b, PD + b, PE + 1))
        if P["pol"] == 4:
            e("s_xor_b32 s%d, s%d, s%d" % (PE, PD, PD + 3))
            e("s_xor_b32 s%d, s%d, s%d" % (PE + 1, PD + 1, PD + 4))
            e("s_xor_b32 s%d, s%d, s%d" % (PE + 1, PE + 1, PE))
            e("s_and_b32 s%d, s%d, 10" % (PE, PE))
            e("s_or_b32 s%d, s%d, s%d" % (PE, PE, PE + 1))
            for b in range(2):
                e("s_cselect_b32 s%d, s%d, s%d" % (PD + b, PD + b, PD + 3 + b))
        if P["pol"] == 7:
            e("s_xor_b32 s%d, s%d, s%d" % (PE, PD, PD + 3))
            e("s_and_b32 s%d, s%d, 10" % (PE + 1, PE))
            e("s_cselect_b32 s%d, 0, s%d" % (PE, PE))
            e("s_xor_b32 s%d, s%d, s%d" % (PD, PD, PE))
            e("s_xor_b32 s%d, s%d, s%d" % (PE, PE, PD + 1))
            e("s_cmp_eq_u32 s%d, s%d" % (PE, PD + 4))
            e("s_cselect_b32 s%d, s%d, s%d" % (PD + 1, PE, PD + 1))
        if P["pol"] >= 8:
            e("s_xor_b32 s%d, s%d, s%d" % (PE, PD, PD + 3))
            e("s_xor_b32 s%d, s%d, s%d" % (PE + 1, PD + 1, PD + 4))
            if P["pol"] == 8:
                e("s_and_b32 s%d, s%d, 5" % (PE + 2, PD + 3))
                e("s_cselect_b32 s%d, 14, 10" % (PE + 2))
                e("s_cmp_eq_u32 s%d, s%d" % (PE, PE + 1))
                e("s_cselect_b32 s%d, 10, s%d" % (PE + 2, PE + 2))
                e("s_and_b32 s%d, s%d, s%d" % (PE + 2, PE + 2, PE))
            else:
                e("s_and_b32 s%d, s%d, 10" % (PE + 2, PE))
            e("s_cselect_b32 s%d, 0, s%d" % (PE, PE))
            e("s_xor_b32 s%d, s%d, s%d" % (PD, PD, PE))
            e("s_cmp_eq_u32 s%d, s%d" % (PE, PE + 1))
            e("s_cselect_b32 s%d, 1, s%d" % (PE + 1, PE + 1))
            e("s_cmp_eq_u32 s%d, 1" % (PE + 1))
            e("s_cselect_b32 s%d, s%d, s%d" % (PD + 1, PD + 4, PD + 1))
        for b in range(2):
            if not (0, 0, 1, 2, 0, 3, 3, 0, 0, 0)[P["pol"] or 5] >> b & 1:
                continue
            e("s_xor_b32 s%d, s%d, s%d" % (PE, PD + b, PD + 3 + b))
            e("s_and_b32 s%d, s%d, %d" % (PE, PE, 14 if P["pol"] == 6 else 10))
            e("s_cselect_b32 s%d, s%d, s%d" % (PD + b, PD + b, PD + 3 + b))
        for b in range(5):
            e("s_or_b32 s%d, s%d, 16" % (PD + b, PD + b))
            e("v_writelane_b32 v%d, s%d, %d" % (HC, PD + b, b))
        e("s_mov_b64 exec, 0x1f")
        e("ds_write_b32 v%d, v%d offset:%d" % (HB_, HC, L_DEC + 4))
        e("s_mov_b64 exec, -1")
    else:
        decode("b", 5, 128, 16, NR, L_DEC + 4, 1)
    if P["xkp"] & 2048:
        srd(PB, 70, H * NGRP * DH * 2)
        e("s_memrealtime s[%d:%d]" % (PT, PT + 1))
        e("v_lshlrev_b32 v%d, 4, v%d" % (HW, HL))
        e("s_add_u32 s%d, s%d, 32" % (PE, PG))
        e("s_lshl_b32 s%d, s%d, 16" % (PE, PE))
        e("s_mov_b32 s%d, 0" % PRN)
        e("s_waitcnt lgkmcnt(0)")
        e("s_add_u32 s%d, s%d, %d" % (PT, PT, P["xa"]))
        e.label("L_xk")
        e("s_memrealtime s[%d:%d]" % (PT + 2, PT + 3))
        e("s_waitcnt lgkmcnt(0)")
        e("s_sub_u32 s%d, s%d, s%d" % (PT + 2, PT + 2, PT))
        e("s_cmp_lt_i32 s%d, 0" % (PT + 2))
        e("s_cbranch_scc1 L_xk")
        for k in range(P["xn"]):
            e("buffer_load_dwordx4 v[%d:%d], v%d, s[%d:%d], s%d offen offset:%d" % (HX + 4 * k, HX + 4 * k + 3, HW, PB, PB + 3, PE, (k % 4) * 1024))
            if k % 4 == 3 or k == P["xn"] - 1:
                e("s_add_u32 s%d, s%d, %d" % (PE, PE, 1024 * (k % 4 + 1)))
        e("s_add_u32 s%d, s%d, %d" % (PT, PT, 222 * P["xn"] // 4))
        e("s_add_u32 s%d, s%d, %d" % (PRN, PRN, P["xn"]))
        e("s_cmp_eq_u32 s%d, 64" % PRN)
        e("s_cselect_b32 s%d, %d, 0" % (PE + 1, 31 << 16))
        e("s_add_u32 s%d, s%d, s%d" % (PE, PE, PE + 1))
        e("s_waitcnt vmcnt(0)")
        e("s_cmp_lt_u32 s%d, 128" % PRN)
        e("s_cbranch_scc1 L_xk")
    if P["xkp"] & 4096:
        srd(PB, 74, H * SKV * 2)
        srd(PS2, 76, H * SKV * 2)
        e("s_memrealtime s[%d:%d]" % (PT, PT + 1))
        e("v_lshlrev_b32 v%d, 4, v%d" % (HW, HL))
        e("s_mul_i32 s%d, s%d, 21845" % (PE, PG))
        e("s_andn2_b32 s%d, s%d, 127" % (PE, PE))
        e("s_mov_b32 s%d, 0" % PRN)
        e("s_mov_b32 s%d, 0" % PMN)
        e("s_waitcnt lgkmcnt(0)")
        e("s_add_u32 s%d, s%d, %d" % (PT, PT, P["xa"]))
        e.label("L_xv")
        for sr in (PB, PS2):
            twait(PT, PT + 2, P["xn"])
            e("buffer_load_dwordx4 v[%d:%d], v%d, s[%d:%d], s%d offen" % (HX, HX + 3, HW, sr, sr + 3, PE))
        e("s_add_u32 s%d, s%d, 1024" % (PE, PE))
        e("s_add_u32 s%d, s%d, 1" % (PRN, PRN))
        e("s_cmp_lt_u32 s%d, 22" % PRN)
        e("s_cbranch_scc1 L_xv")
        e("s_mov_b32 s%d, 0" % PRN)
        e("s_add_u32 s%d, s%d, %d" % (PE, PE, 32 * 21845 // 128 * 128 - 22 * 1024))
        e("s_add_u32 s%d, s%d, %d" % (PT, PT, 3520 - 44 * P["xn"]))
        e("s_add_u32 s%d, s%d, 1" % (PMN, PMN))
        e("s_cmp_lt_u32 s%d, 3" % PMN)
        e("s_cbranch_scc1 L_xv")
        e("s_waitcnt vmcnt(0)")
    if P["lx"]:
        e("s_mul_i32 s%d, s%d, 43" % (PE, PG))
        e("s_lshr_b32 s%d, s%d, 8" % (PE, PE))
        e("s_mul_i32 s%d, s%d, 6" % (PE + 1, PE))
        e("s_sub_u32 s%d, s%d, s%d" % (PBK, PG, PE + 1))
        e("s_cmp_ge_u32 s%d, 3" % PBK)
        e("s_cselect_b32 s%d, s68, s66" % PB)
        e("s_cselect_b32 s%d, s69, s67" % (PBASE + 1))
        e("s_cselect_b32 s%d, 3, 0" % (PE + 1))
        e("s_sub_u32 s%d, s%d, s%d" % (PE + 1, PBK, PE + 1))
        e("s_lshl_b32 s%d, s%d, 28" % (PO, PE + 1))
        e("s_mul_i32 s%d, s%d, %d" % (PE, PE, 21 << 21))
        e("s_add_u32 s%d, s%d, s%d" % (PO, PO, PE))
        e("s_add_u32 s%d, s%d, %d" % (PO, PO, (7 << 21) + (1 << 20)))
        e("s_and_b32 s%d, s%d, 0xffff" % (PB + 1, PBASE + 1))
        e("s_mov_b32 s%d, %d" % (PB + 2, H * HEADB))
        e("s_mov_b32 s%d, 0x00020000" % (PB + 3))
        e("s_add_u32 s%d, s%d, %d" % (PE, PM, P["lx"]))
        e("s_and_b32 s%d, s%d, 7" % (PE, PE))
        e("s_lshl_b32 s%d, s%d, 9" % (PE, PE))
        e("v_lshlrev_b32 v%d, 12, v%d" % (HW, HL))
        e("v_add_u32 v%d, s%d, v%d" % (HW, PE, HW))
        for j in range(3):
            e("buffer_load_dword v%d, v%d, s[%d:%d], s%d offen offset:%d" % (HX + j, HW, PB, PB + 3, PO, j * 128))
        e("s_add_u32 s%d, s%d, s%d" % (PBASE, PB, PO))
        e("s_addc_u32 s%d, s%d, 0" % (PBASE + 1, PBASE + 1))
        e("s_lshl_b32 s%d, s%d, 9" % (PE, PM))
        e("s_add_u32 s%d, s%d, s%d" % (PBASE, PBASE, PE))
        e("s_addc_u32 s%d, s%d, 0" % (PBASE + 1, PBASE + 1))
        e("s_load_dword s%d, s[%d:%d], 384" % (PJ, PBASE, PBASE + 1))
        e("s_load_dword s%d, s[%d:%d], 0x20180" % (PJ, PBASE, PBASE + 1))
        e("s_waitcnt vmcnt(0) lgkmcnt(0)")
        lds_wait("lx", HZ, HE, PE, L_EV + 4, "8", PSP)
        for j in range(3):
            e("s_mov_b32 m0, 0")
            e("s_mov_b32 s%d, %d" % (PE, j * 128))
            e.label("L_lx%d" % j)
            e("s_memtime s[%d:%d]" % (PT, PT + 1))
            e("s_waitcnt lgkmcnt(0)")
            e("s_load_dword s%d, s[%d:%d], s%d" % (PJ, PBASE, PBASE + 1, PE))
            e("s_waitcnt lgkmcnt(0)")
            e("s_memtime s[%d:%d]" % (PT + 2, PT + 3))
            e("s_waitcnt lgkmcnt(0)")
            e("s_sub_u32 s%d, s%d, s%d" % (PT, PT + 2, PT))
            e("v_writelane_b32 v%d, s%d, m0" % (HX + j, PT))
            e("s_add_u32 s%d, s%d, 4096" % (PE, PE))
            e("s_add_u32 m0, m0, 1")
            e("s_cmp_lt_u32 m0, 64")
            e("s_cbranch_scc1 L_lx%d" % j)
        e("s_memrealtime s[%d:%d]" % (PT, PT + 1))
        e("s_waitcnt lgkmcnt(0)")
        e("v_mov_b32 v%d, s%d" % (HX + 3, PT))
        srd(PB, 82, 0x8000000)
        e("s_lshl_b32 s%d, s2, 10" % PE)
        e("s_add_u32 s%d, s%d, 0x4090000" % (PE, PE))
        e("v_lshlrev_b32 v%d, 4, v%d" % (HW, HL))
        e("buffer_store_dwordx4 v[%d:%d], v%d, s[%d:%d], s%d offen" % (HX, HX + 3, HW, PB, PB + 3, PE))
    if FU:
        CSC = 24; CMK = 56; CRB = 57; CO = 92
        e("s_and_b32 s%d, s%d, 7" % (PE, PG))
        e("s_cmp_lg_u32 s%d, s%d" % (PE, PM))
        e("s_cbranch_scc1 L_exit1")
        e("s_mul_i32 s%d, s%d, 3" % (PE, PG))
        e("s_add_u32 s%d, s%d, 2" % (PE, PE))
        e("s_lshr_b32 s%d, s%d, 5" % (PE, PE))
        e("s_lshl_b32 s%d, s%d, 2" % (PE, PE))
        e("v_mov_b32 v%d, s%d" % (HW, PE))
        e("s_mul_i32 s%d, s%d, 24" % (CRB, PG))
        e("v_add_u32 v%d, s%d, v%d" % (HG, CRB, HL))
        e("v_and_b32 v%d, 255, v%d" % (HR, HG))
        e("v_mul_u32_u24 v%d, %d, v%d" % (HR, FSTR, HR))
        e("v_lshlrev_b32 v%d, 6, v%d" % (HG, HG))
        e("s_mov_b32 s%d, %d" % (PE + 1, WS_G))
        e("s_mov_b32 s%d, %d" % (PE + 2, WS_ML))
        e("v_mov_b32 v%d, 0x%08x" % (HA, BIGNEG))
        e("v_mov_b32 v%d, 0" % HB_)
        if P["cd"]:
            th = [12 * (len(CPK) + min(j for j, c in enumerate(CPV) if c > b)) + P["cd"] for b in (16, 32, 4)]
            e("s_mov_b32 s%d, %d" % (PE + 3, th[0]))
            e("s_cmp_eq_u32 s%d, 4" % PE)
            e("s_cselect_b32 s%d, %d, s%d" % (PE + 3, th[1], PE + 3))
            e("s_cmp_eq_u32 s%d, 8" % PE)
            e("s_cselect_b32 s%d, %d, s%d" % (PE + 3, th[2], PE + 3))
            lds_wait("cg", HZ, HE, PE, L_TC, "s%d" % (PE + 3), PSP)
        else:
            lds_wait("cg", HZ, HE, PE, L_GO, "nz", PSP, HW)
        for tag, ld, chk in (("f", "buffer_load_dword v%d, v%d, s[%d:%d], s%d offen sc1" % (HD, HR, PWS, PWS + 3, PE + 1), HD),
                             ("m", "buffer_load_dwordx4 v[%d:%d], v%d, s[%d:%d], s%d offen sc1" % (HA, HD, HG, PWS, PWS + 3, PE + 2), HD)):
            e("s_mov_b64 exec, 0xffffff")
            e("s_mov_b32 s%d, 0x40000" % PSP)
            e.label("L_cp" + tag)
            e(ld)
            e("s_sub_u32 s%d, s%d, 1" % (PSP, PSP))
            e("s_cbranch_scc1 L_exit1")
            e("s_waitcnt vmcnt(0)")
            e("v_cmpx_eq_u32 vcc, 0, v%d" % chk)
            e("s_cbranch_execnz L_cp" + tag)
        e("s_mov_b64 exec, -1")
        e("v_mov_b32 v%d, v%d" % (HC, HA))
        wave_reduce([HC], "v_max_f32", [HD])
        e("v_sub_f32 v%d, v%d, v%d" % (HA, HA, HC))
        e("v_exp_f32 v%d, v%d" % (HA, HA))
        e("v_mul_f32 v%d, v%d, v%d" % (HB_, HB_, HA))
        wave_reduce([HB_], "v_add_f32", [HD])
        e("v_rcp_f32 v%d, v%d" % (HB_, HB_))
        e("v_mul_f32 v%d, v%d, v%d" % (HA, HA, HB_))
        if P["fc"]:
            e("s_cmp_lt_u32 s%d, 21" % PG)
            e("s_cbranch_scc1 L_cown")
            e("s_mul_i32 s%d, s%d, %d" % (PE, PG, FSTR))
            e("s_add_u32 s%d, s%d, %d" % (PE, PE, WS_G + ELN * FSTR))
            e("v_lshlrev_b32 v%d, 2, v%d" % (HR, HL))
            e("v_mov_b32 v%d, 1" % HB_)
            e("s_mov_b64 exec, 0xffffff")
            e("buffer_store_dword v%d, v%d, s[%d:%d], s%d offen offset:128 sc1" % (HA, HR, PWS, PWS + 3, PE))
            e("s_mov_b64 exec, 1")
            e("s_waitcnt vmcnt(0)")
            e("buffer_store_dword v%d, off, s[%d:%d], s%d offset:4 sc1" % (HB_, PWS, PWS + 3, PE))
            e("s_endpgm")
            e.label("L_cown")
        for r in range(24):
            e("v_readlane_b32 s%d, v%d, %d" % (CSC + r, HA, r))
        srd(CO, 78, H * DH * 2)
        e("s_lshl_b32 s%d, s%d, 10" % (CRB, CRB))
        e("v_lshlrev_b32 v%d, 4, v%d" % (HG, HL))
        e("v_add_u32 v%d, s%d, v%d" % (HG, CRB, HG))
        for k in range(1, 6):
            e("s_mov_b32 s%d, %d" % (PE + k, 4096 * k))
        for r in (HA, HB_, HC):
            e("v_mov_b32 v%d, 0" % r)
        e("s_mov_b32 s%d, 0xffffff" % CMK)
        e("v_lshlrev_b32 v%d, 1, v%d" % (HR, HL))
        e("s_mul_i32 s%d, s%d, %d" % (CRB, PG, DH * 2))
        lds_wait("cc", HZ, HE, PE, L_CA, "%d" % P["cw"], PSP, HW)
        e("s_mov_b32 s%d, 0x40000" % PSP)
        e.label("L_cr")
        for r in range(24):
            e("s_bitcmp0_b32 s%d, %d" % (CMK, r))
            e("s_cbranch_scc1 L_cl%d" % r)
            e("buffer_load_dwordx4 v[%d:%d], v%d, s[%d:%d], %s offen offset:%d sc1" %
              (HX + 4 * r, HX + 4 * r + 3, HG, PWS, PWS + 3, "s%d" % (PE + r // 4) if r >= 4 else "0", (r % 4) * 1024))
            e.lines.append("L_cl%d:" % r)
        e("s_sub_u32 s%d, s%d, 1" % (PSP, PSP))
        e("s_cbranch_scc1 L_exit1")
        e("s_waitcnt vmcnt(0)")
        for r in range(24):
            e("s_bitcmp0_b32 s%d, %d" % (CMK, r))
            e("s_cbranch_scc1 L_cv%d" % r)
            e("v_cmp_eq_u32 vcc, 0, v%d" % (HX + 4 * r + 3))
            e("s_cbranch_vccnz L_cv%d" % r)
            for k, a_ in enumerate((HA, HB_, HC)):
                e("v_fmac_f32 v%d, s%d, v%d" % (a_, CSC + r, HX + 4 * r + k))
            e("s_bitset0_b32 s%d, %d" % (CMK, r))
            e.lines.append("L_cv%d:" % r)
        e("s_cmp_lg_u32 s%d, 0" % CMK)
        e("s_cbranch_scc1 L_cr")
        for k, a_ in enumerate((HA, HB_, HC)):
            e("v_cvt_pk_bf16_f32 v%d, v%d, v%d" % (a_, a_, a_))
            e("buffer_store_short v%d, v%d, s[%d:%d], s%d offen offset:%d %s" % (a_, HR, CO, CO + 3, CRB, k * 128, P["os"]))
        if P["stamp"] == 5:
            e("s_memrealtime s[%d:%d]" % (PT, PT + 1))
            e("s_waitcnt vmcnt(0)")
            e("s_memrealtime s[%d:%d]" % (PT + 2, PT + 3))
            srd(PS2, 82, 0x8000000)
            e("s_waitcnt lgkmcnt(0)")
            e("v_mov_b32 v%d, s%d" % (HX, PT))
            e("v_mov_b32 v%d, s%d" % (HX + 1, PT + 2))
            e("v_mov_b32 v%d, s%d" % (HX + 2, PSP))
            e("s_lshl_b32 s%d, s%d, 4" % (PE, PG))
            e("s_add_u32 s%d, s%d, 0x4009000" % (PE, PE))
            e("s_mov_b64 exec, 1")
            e("buffer_store_dwordx4 v[%d:%d], off, s[%d:%d], s%d" % (HX, HX + 3, PS2, PS2 + 3, PE))
    e("s_endpgm")

    def seg_scalars():
        e("s_lshl_b32 s%d, s%d, 5" % (PSG, PPH))
        e("s_add_u32 s%d, s%d, s%d" % (PSG, PSG, PG))
        e("s_lshl_b32 s%d, s%d, 15" % (PG0, PSG))
        e("s_add_u32 s%d, s%d, 1" % (PG0, PG0))
        e("s_mul_hi_u32 s%d, s%d, 0xaaaaaaab" % (PG0, PG0))
        e("s_lshr_b32 s%d, s%d, 7" % (PG0, PG0))

    def get_dec(tag):
        lds_wait(tag, HZ, HE, PE, L_DEC + 20, "nz", PSP)
        e("ds_read_b128 v[%d:%d], v%d offset:%d" % (HX, HX + 3, HZ, L_DEC))
        e("ds_read_b64 v[%d:%d], v%d offset:%d" % (HX + 4, HX + 5, HZ, L_DEC + 16))
        e("s_waitcnt lgkmcnt(0)")
        for i in range(6):
            e("v_readfirstlane_b32 s%d, v%d" % (PDC + i, HX + i))

    e.label("L_h0")
    srd(PB, 64, H * DH * 2)
    srd(PS2, 70, H * NGRP * DH * 2)
    srd(PS3, 72, H * NGRP * DH * 2)
    e("v_lshrrev_b32 v%d, 4, v%d" % (HA, HL))
    e("v_and_b32 v%d, 15, v%d" % (HB_, HL))
    e("v_lshlrev_b32 v%d, 3, v%d" % (HC, HB_))
    e("v_mul_u32_u24 v%d, %d, v%d" % (HD, DH * 2, HA))
    e("v_add_u32 v%d, v%d, v%d" % (HD, HD, HC))
    e("v_lshl_add_u32 v%d, v%d, 2, v%d" % (HG, HB_, HA))
    e("v_lshlrev_b32 v%d, 2, v%d" % (HG, HG))
    BQ = HX; BS = HX + 12; BZ = BS + 36; BR = BZ + 36
    PFA = 32; PIA = 33
    e("v_lshlrev_b32 v%d, 4, v%d" % (HA, HL))
    e("s_mul_i32 s%d, s%d, %d" % (PFA, PNB, FSTR))
    e("s_add_u32 s%d, s%d, s%d" % (PFA, PFA, PGL))
    e("s_lshl_b32 s%d, s%d, 3" % (PIA, PG))
    e("s_add_u32 s%d, s%d, s%d" % (PIA, PIA, PNB))
    IMS = PHI if P["il"] else IMG
    PHS = NWG * PHI if P["il"] else PHI
    CX = P["cx"]
    if CX:
        assert N0 <= 4 and not P["xp"]
        IMS = 3072 if P["x12"] else 4096; PHS = NWG * IMS
        e("v_and_b32 v%d, 7, v%d" % (HN, HL))
        e("v_lshrrev_b32 v%d, 3, v%d" % (HE, HL))
        e("v_mul_u32_u24 v%d, 24, v%d" % (HK, HE))
        e("v_mov_b32 v%d, 768" % HF)
        e("v_mad_u32_u24 v%d, v%d, v%d, v%d" % (HK, HN, HF, HK))
        e("v_lshlrev_b32 v%d, 7, v%d" % (HN, HN))
        e("v_lshl_add_u32 v%d, v%d, 4, v%d" % (HN, HE, HN))
        if P["cl"]:
            e("v_lshlrev_b32 v%d, 4, v%d" % (HN, HL))
        if P["x12"]:
            e("v_mul_u32_u24 v%d, 12, v%d" % (HN, HL))
    XZ = P["xz"]; XS = 1 << P["xr"]

    def img_lane(dst, tmp):
        if XZ >= 1024:
            e("v_lshlrev_b32 v%d, 4, v%d" % (dst, HL))
            return
        lz = (XZ // 16).bit_length() - 1
        e("v_lshrrev_b32 v%d, %d, v%d" % (dst, lz, HL))
        e("v_lshlrev_b32 v%d, %d, v%d" % (dst, P["xr"], dst))
        e("v_and_b32 v%d, %d, v%d" % (tmp, XZ // 16 - 1, HL))
        e("v_lshl_add_u32 v%d, v%d, 4, v%d" % (dst, tmp, dst))

    def img_base(dst, slot, tmp):
        spr = XS // XZ
        assert 8 <= spr <= 256 and PHI % XZ == 0
        e("s_lshr_b32 s%d, s%d, %d" % (tmp, slot, spr.bit_length() - 1))
        e("s_mul_i32 s%d, s%d, %d" % (tmp, tmp, XS * (PHI // XZ)))
        e("s_and_b32 s%d, s%d, %d" % (dst, slot, spr - 1))
        e("s_mul_i32 s%d, s%d, %d" % (dst, dst, XZ))
        e("s_add_u32 s%d, s%d, s%d" % (dst, dst, tmp))

    def img_k(k):
        return (k * 1024 // XZ) * XS + k * 1024 % XZ

    if XZ:
        assert P["il"] and not CX and not P["xp"]
        img_base(PIA, PIA, PE)
        img_lane(HN, HE)
    else:
        e("s_mul_i32 s%d, s%d, %d" % (PIA, PIA, IMS))
    e("s_add_u32 s%d, s%d, %d" % (PIA, PIA, WS_L))

    def bias(ph):
        e("s_mov_b32 s%d, %d" % (PPH, ph))
        seg_scalars()
        e("s_mul_i32 s%d, s%d, 171" % (PE, PSG))
        e("s_lshr_b32 s%d, s%d, 9" % (PE, PE))
        e("s_mul_i32 s%d, s%d, %d" % (PE, PE, DH * 2))
        e("s_mul_i32 s%d, s%d, 24" % (PE + 1, PM))
        e("s_add_u32 s%d, s%d, s%d" % (PE + 2, PE + 1, PG0))
        e("s_mul_i32 s%d, s%d, %d" % (PE + 2, PE + 2, DH * 2))
        e("v_add_u32 v%d, s%d, v%d" % (HE, PE + 2, HD))
        e("v_add_u32 v%d, %d, v%d" % (HF, 8 * DH * 2, HE))
        e("v_add_u32 v%d, %d, v%d" % (HR, 16 * DH * 2, HE))
        for c in range(3):
            e("buffer_load_dwordx2 v[%d:%d], v%d, s[%d:%d], s%d offen offset:%d" % (BR + 2 * c, BR + 2 * c + 1, HC, PB, PB + 3, PE, c * 128))
        split = P["bs"] & (1 if ph else 2)
        order = [(st, a) for st in range(6) for a in range(2)]
        if split:
            order.sort(key=lambda x: x[1])
        for st, a in order:
            va = (HE, HF, HR)[st // 2]
            sr, bb = ((PS2, BS), (PS3, BZ))[a]
            if split and (st, a) == (0, 1):
                if ph:
                    lds_wait("z%d" % ph, HZ, HV, PE + 3, L_EV + 4, str(8 * ph - 8 + P["bz"]), PSP)
                else:
                    lds_wait("z0", HZ, HV, PE + 3, L_TC, str(P["bz0"]), PSP)
            bt = P["bt"] if ph else P["bt0"]
            if bt:
                if st == 0 and bb == BS:
                    e("s_memrealtime s[%d:%d]" % (PT, PT + 1))
                    e("s_waitcnt lgkmcnt(0)")
                twait(PT, PT + 2, bt)
            for c in range(3):
                r = bb + st * 6 + 2 * c
                if P["xb"] & 1:
                    continue
                e("buffer_load_dwordx2 v[%d:%d], v%d, s[%d:%d], 0 offen offset:%d%s" %
                  (r, r + 1, va, sr, sr + 3, (st & 1) * 4 * DH * 2 + c * 128,
                   " nt" if P["bnt"] & (1 if bb == BZ else 2) else ""))
            if (P["bp"] == 2 or P["bp"] == 1 and a) and (ph or P["bp0"]):
                e("s_waitcnt vmcnt(%d)" % P["bq"])
        e("s_waitcnt vmcnt(0)")
        for p in range(6):
            e("v_lshlrev_b32 v%d, 16, v%d" % (BQ + 2 * p, BR + p))
            e("v_and_b32 v%d, 0xffff0000, v%d" % (BQ + 2 * p + 1, BR + p))
        for st in range(6):
            acc = BR + st
            for p in range(6):
                rs = BS + st * 6 + p; rz = BZ + st * 6 + p
                e("v_lshlrev_b32 v%d, 16, v%d" % (HE, rs))
                e("v_lshlrev_b32 v%d, 16, v%d" % (HF, rz))
                e("v_and_b32 v%d, 0xffff0000, v%d" % (rs, rs))
                e("v_and_b32 v%d, 0xffff0000, v%d" % (rz, rz))
                e("v_mul_f32 v%d, v%d, v%d" % (HE, HE, BQ + 2 * p))
                e("v_mul_f32 v%d, v%d, v%d" % (rs, rs, BQ + 2 * p + 1))
                if p == 0:
                    e("v_mul_f32 v%d, v%d, v%d" % (acc, HE, HF))
                else:
                    e("v_fmac_f32 v%d, v%d, v%d" % (acc, HE, HF))
                e("v_fmac_f32 v%d, v%d, v%d" % (acc, rs, rz))
        for kk in (8, 4, 2, 1):
            for st in range(6):
                e("v_add_f32_dpp v%d, v%d, v%d row_ror:%d row_mask:0xf bank_mask:0xf" % (BR + st, BR + st, BR + st, kk))
        for st in range(1, 6):
            e("v_cmp_eq_u32 vcc, %d, v%d" % (st, HB_))
            e("v_cndmask_b32 v%d, v%d, v%d, vcc" % (BR, BR, BR + st))
        e("s_mul_i32 s%d, s%d, 768" % (PE, PSG))
        e("s_lshl_b32 s%d, s%d, 2" % (PE + 1, PE + 1))
        e("s_add_u32 s%d, s%d, s%d" % (PE, PE, PE + 1))
        e("s_add_u32 s%d, s%d, %d" % (PE, PE, WS_B))
        e("s_mov_b32 exec_lo, 0x003f003f")
        e("s_mov_b32 exec_hi, 0x003f003f")
        e("buffer_store_dword v%d, v%d, s[%d:%d], s%d offen sc1" % (BR, HG, PWS, PWS + 3, PE))
        e("s_mov_b64 exec, -1")

    def vpf(late, half=False):
        if half:
            e("s_cmp_ge_u32 s%d, 4" % PM)
            e("s_cbranch_scc1 L_novpf")
        srd(PS2, 74, H * SKV * 2)
        srd(PS3, 76, H * SKV * 2)
        if late:
            lds_wait("pf", HZ, HE, PE, L_EV, "1", PSP)
        e("v_lshlrev_b32 v%d, 4, v%d" % (HE, HL))
        for rep in range(2 if half else 1):
            e("s_lshl_b32 s%d, s2, 13" % PE)
            if rep:
                e("s_add_u32 s%d, s%d, 0x8000" % (PE, PE))
            e("s_add_u32 s%d, s%d, 4096" % (PE + 1, PE))
            for a, sr in enumerate((PS2, PS3)):
                for k in range(8):
                    r = HX + 4 * (a * 8 + k)
                    e("buffer_load_dwordx4 v[%d:%d], v%d, s[%d:%d], s%d offen offset:%d" % (r, r + 3, HE, sr, sr + 3, PE + k // 4, (k % 4) * 1024))
            e("s_waitcnt vmcnt(0)")
        if half:
            e.label("L_novpf")

    def flush(p):
        if P["xp"]:
            e("s_cmp_eq_u32 s%d, s%d" % (PDC + p, PDC + 3 + p))
            if p:
                e("s_cbranch_scc1 L_fp%d" % p)
            e("s_add_u32 s%d, s%d, %d" % (PE + 6, PIA, p * PHS))
            e("s_add_u32 s%d, s%d, %d" % (PE + 7, PIA, p * PHS + 4096))
            e("s_cmp_eq_u32 s%d, s%d" % (PDC + p, PDC + 3 + p))
            for k in range(6):
                if p == 0:
                    mk = sum(1 << l for l in range(64) if (64 * k + l) % 48 < (3 * N0 + 7) // 8 * 8)
                    e("s_cselect_b32 exec_lo, 0x%x, -1" % (mk & 0xffffffff))
                    e("s_cselect_b32 exec_hi, 0x%x, -1" % (mk >> 32))
                e("buffer_load_dwordx4 v[%d:%d], v%d, s[%d:%d], s%d offen offset:%d %s" %
                  (HX + 4 * k, HX + 4 * k + 3, HA, PWS, PWS + 3, PE + 6 + k // 4, (k % 4) * 1024, ("", "sc1", "", "nt")[P["xp"]]))
            e("s_mov_b64 exec, -1")
            e("s_waitcnt vmcnt(0)")
            e.label("L_fp%d" % p)
        lds_wait("f%d" % p, HZ, HE, PE, L_CF + 4 * p, "4", PSP)
        e("s_cmp_eq_u32 s%d, s%d" % (PDC + p, PDC + 3 + p))
        if p:
            e("s_cbranch_scc1 L_fl%d" % p)
        if CX:
            if P["cl"] and p == 0:
                e("v_and_b32 v%d, 7, v%d" % (HF, HL))
                e("v_lshrrev_b32 v%d, 3, v%d" % (HE, HL))
                e("v_mul_u32_u24 v%d, 24, v%d" % (HF, HF))
                e("v_mov_b32 v%d, 768" % HR)
                e("v_mad_u32_u24 v%d, v%d, v%d, v%d" % (HF, HE, HR, HF))
            for st in range(4):
                for c in range(3):
                    r = HX + 12 * st + 2 * c
                    e("ds_read_b64 v[%d:%d], v%d offset:%d" % (r, r + 1, HF if P["cl"] and p == 0 and st == 0 else HK, L_LG + p * PHI + st * 192 + 8 * c))
            e("s_add_u32 s%d, s%d, %d" % (PE + 6, PIA, p * PHS))
            e("s_cmp_eq_u32 s%d, s%d" % (PDC + p, PDC + 3 + p))
            e("s_waitcnt lgkmcnt(0)")
            for st in range(4):
                B = HX + 12 * st
                e("v_cmp_eq_f32 vcc, 0, v%d" % (B + 5))
                e("v_max3_f32 v%d, v%d, v%d, v%d" % (B + 9, B, B + 1, B + 2))
                e("v_cndmask_b32 v%d, v%d, v%d, vcc" % (B + 8, B + 5, B + 4))
                e("v_max3_f32 v%d, v%d, v%d, v%d" % (B + 9, B + 9, B + 3, B + 4))
                e("v_max_f32 v%d, v%d, v%d" % (B + 8, B + 8, B + 9))
                for k in range(6):
                    e("v_sub_f32 v%d, v%d, v%d" % (B + k, B + k, B + 8))
                for k in range(3):
                    e("v_cvt_pk_f16_f32 v%d, v%d, v%d" % (B + 9 + k, B + 2 * k, B + 2 * k + 1))
                if P["fq"]:
                    continue
                if P["x12"]:
                    e("buffer_store_dwordx3 v[%d:%d], v%d, s[%d:%d], s%d offen offset:%d %s" %
                      (B + 8, B + 10, HN, PWS, PWS + 3, PE + 6, st * 768, P["st"]))
                elif P["xt"]:
                    for h in range(2):
                        e("buffer_atomic_swap_x2 v[%d:%d], v%d, s[%d:%d], s%d offen offset:%d%s" %
                          (B + 8 + 2 * h, B + 9 + 2 * h, HN, PWS, PWS + 3, PE + 6, st * 1024 + 8 * h, " sc1" if P["xt"] & 2 else ""))
                elif not P["xkp"] & 16:
                    e("buffer_store_dwordx4 v[%d:%d], v%d, s[%d:%d], s%d offen offset:%d %s" %
                      (B + 8, B + 11, HN, PWS, PWS + 3, PE + 6, st * 1024, P["st"]))
                if p == 0 and st == 0:
                    e("s_cbranch_scc1 L_fl0")
            if P["fq"]:
                e("s_memrealtime s[%d:%d]" % (PT, PT + 1))
                e("s_waitcnt lgkmcnt(0)")
                e("s_or_b32 s%d, s%d, %d" % (PT, PT, (1 << P["fq"]) - 1))
                twait(PT, PT + 2, 0)
                e("s_cmp_eq_u32 s%d, s%d" % (PDC + p, PDC + 3 + p))
                for st in range(4):
                    B = HX + 12 * st
                    e("buffer_store_dwordx4 v[%d:%d], v%d, s[%d:%d], s%d offen offset:%d %s" %
                      (B + 8, B + 11, HN, PWS, PWS + 3, PE + 6, st * 1024, P["st"]))
                    if p == 0 and st == 0:
                        e("s_cbranch_scc1 L_fl0")
        else:
            for k in range(6):
                e("ds_read_b128 v[%d:%d], v%d offset:%d" % (HX + 4 * k, HX + 4 * k + 3, HA, L_LG + p * PHI + k * 1024))
            if XZ:
                for k in range(6):
                    e("s_add_u32 s%d, s%d, %d" % (PE + k, PIA, p * PHS + img_k(k)))
            else:
                e("s_add_u32 s%d, s%d, %d" % (PE + 6, PIA, p * PHS))
                e("s_add_u32 s%d, s%d, %d" % (PE + 7, PIA, p * PHS + 4096))
            e("s_cmp_eq_u32 s%d, s%d" % (PDC + p, PDC + 3 + p))
            e("s_waitcnt lgkmcnt(0)")
            for k in range(6):
                if P["fw"]:
                    if k == 0:
                        e("s_memrealtime s[%d:%d]" % (PT, PT + 1))
                        e("s_waitcnt lgkmcnt(0)")
                    twait(PT, PT + 2, P["fw"])
                    e("s_cmp_eq_u32 s%d, s%d" % (PDC + p, PDC + 3 + p))
                if p == 0:
                    mk = sum(1 << l for l in range(64) if (64 * k + l) % 48 < (3 * N0 + 7) // 8 * 8)
                    e("s_cselect_b32 exec_lo, 0x%x, -1" % (mk & 0xffffffff))
                    e("s_cselect_b32 exec_hi, 0x%x, -1" % (mk >> 32))
                if XZ:
                    e("buffer_store_dwordx4 v[%d:%d], v%d, s[%d:%d], s%d offen %s" %
                      (HX + 4 * k, HX + 4 * k + 3, HN, PWS, PWS + 3, PE + k, P["st"]))
                elif not P["xkp"] & 16:
                    e("buffer_store_dwordx4 v[%d:%d], v%d, s[%d:%d], s%d offen offset:%d %s" %
                      (HX + 4 * k, HX + 4 * k + 3, HA, PWS, PWS + 3, PE + 6 + k // 4, (k % 4) * 1024, P["st"]))
            if p == 0:
                e("s_mov_b64 exec, -1")
            if P["wb"]:
                e("s_waitcnt vmcnt(0)")
                e("buffer_wbl2 sc1")
        e.label("L_fl%d" % p)
        e("v_mov_b32 v%d, %d" % (HE, p + 1))
        e("s_waitcnt vmcnt(0)")
        e("s_mov_b64 exec, 1")
        opt = p == 2 or (p == 1 and not P["jit"])
        if opt:
            e("s_cbranch_scc1 L_fn%d" % p)
        e("buffer_store_dword v%d, off, s[%d:%d], s%d sc1" % (HE, PWS, PWS + 3, PFA))
        if opt:
            e.label("L_fn%d" % p)
        e("ds_write_b32 v%d, v%d offset:%d" % (HZ, HE, L_FD))
        e("s_mov_b64 exec, -1")

    if FU:
        for i in range(4):
            e("v_mov_b32 v%d, 0" % (HX + i))
        for p in range(3):
            e("s_add_u32 s%d, s2, %d" % (PE, 256 * p))
            e("s_lshl_b32 s%d, s%d, 10" % (PE + 1, PE))
            e("s_lshl_b32 s%d, s%d, 6" % (PE, PE))
            e("s_add_u32 s%d, s%d, %d" % (PE, PE, WS_ML))
            if not (P["xkp"] & 512 and p < 2):
                e("buffer_store_dwordx4 v[%d:%d], v%d, s[%d:%d], s%d offen sc1" % (HX, HX + 3, HA, PWS, PWS + 3, PE + 1))
            e("s_mov_b64 exec, 15")
            e("buffer_store_dwordx4 v[%d:%d], v%d, s[%d:%d], s%d offen sc1" % (HX, HX + 3, HA, PWS, PWS + 3, PE))
            e("s_mov_b64 exec, -1")
    bias(0)
    if P["pf"] == 8:
        lds_wait("b0", HZ, HE, PE, L_PF, "nz", PSP)
    if P["jit"] and not P["be1"] & 1:
        lds_wait("b1", HZ, HE, PE, L_EV + 4, "1", PSP)
    if P["bw"] & 2:
        lds_wait("bw1", HZ, HE, PE, L_EV, "1", PSP)
    if P["bw"] & 8:
        lds_wait("bw3", HZ, HE, PE, L_DEC, "nz", PSP)
    bias(1)
    if not P["jit"]:
        if P["bw"] & 1:
            lds_wait("bw0", HZ, HE, PE, L_DEC, "nz", PSP)
        if P["bw"] & 4:
            lds_wait("bw2", HZ, HE, PE, L_EV, "4", PSP)
        bias(2)
    if P["pf"] in (7, 10):
        vpf(False, P["pf"] == 10)
    if P["xq"]:
        for p in range(3):
            if not P["xq"] >> p & 1:
                continue
            e("s_add_u32 s%d, s%d, %d" % (PE + p, PIA, p * PHS))
            for k in range(4):
                e("buffer_load_dwordx4 v[%d:%d], v%d, s[%d:%d], s%d offen offset:%d%s" % (HX, HX + 3, HA, PWS, PWS + 3, PE + p, k * 1024, " sc1" if P["xq"] & 8 else ""))
        e("s_waitcnt vmcnt(0)")
    get_dec("d0")
    flush(0)
    if P["jit"]:
        if not P["be1"] & 2:
            lds_wait("b2", HZ, HE, PE, L_EV + 4, "9", PSP)
        bias(2)
    flush(1)
    flush(2)
    if P["at"] and not BC:
        e("v_lshrrev_b32 v%d, 3, v%d" % (HC, HL))
        e("v_xor_b32 v%d, s%d, v%d" % (HC, PM, HC))
        e("v_lshrrev_b32 v%d, 1, v%d" % (HD, HC))
        e("v_and_b32 v%d, 1, v%d" % (HC, HC))
        e("v_lshl_or_b32 v%d, v%d, 2, v%d" % (HD, HC, HD))
        e("v_lshl_or_b32 v%d, v%d, 3, v%d" % (HD, HL, HD))
        e("v_mul_u32_u24 v%d, %d, v%d" % (HD, FSTR, HD))
        lds_wait("t1", HZ, HE, PE, L_TC, "4", PSP)
        e("s_memrealtime s[%d:%d]" % (PT, PT + 1))
        e("s_mov_b64 exec, 1")
        e("s_waitcnt lgkmcnt(0)")
        e("s_or_b32 s%d, s%d, 1" % (PT, PT))
        e("v_mov_b32 v%d, s%d" % (HB_, PT))
        e("buffer_store_dword v%d, off, s[%d:%d], s%d offset:4 sc1" % (HB_, PWS, PWS + 3, PFA))
        e("s_mov_b32 exec_lo, -1")
        e("s_mov_b32 s%d, %d" % (PE + 1, WS_G))
        lds_wait("t2", HZ, HE, PE, L_TC, "5", PSP)
        e("buffer_load_dword v%d, v%d, s[%d:%d], s%d offen offset:4 sc1" % (HB_, HD, PWS, PWS + 3, PE + 1))
        e("v_bfrev_b32 v%d, -2" % HC)
        e("s_mov_b32 s%d, -2048" % PE)
        e("s_waitcnt vmcnt(0)")
        e("v_cmp_eq_u32 vcc, 0, v%d" % HB_)
        e("v_subrev_u32 v%d, s%d, v%d" % (HB_, PT, HB_))
        e("v_cndmask_b32 v%d, v%d, v%d, vcc" % (HB_, HB_, HC))
        for st in (2048, 1024, 512, 256, 128, 64, 32, 16):
            e("s_add_u32 s%d, s%d, %d" % (PE + 1, PE, st))
            e("v_cmp_gt_i32 vcc, s%d, v%d" % (PE + 1, HB_))
            e("s_bcnt1_i32_b64 s%d, vcc" % (PE + 2))
            e("s_cmp_lt_u32 s%d, %d" % (PE + 2, P["aq"]))
            e("s_cselect_b32 s%d, s%d, s%d" % (PE, PE + 1, PE))
        e("s_mul_i32 s%d, s%d, %d" % (PE, PE, -P["ka"]))
        e("s_add_u32 s%d, s%d, %d" % (PE, PE, P["kb"]))
        e("s_ashr_i32 s%d, s%d, 10" % (PE, PE))
        e("s_max_i32 s%d, s%d, %d" % (PE, PE, P["dmin"]))
        e("s_min_i32 s%d, s%d, %d" % (PE, PE, min(P["dmax"], NT - P["te"])))
        e("s_sub_u32 s%d, %d, s%d" % (PE, NT, PE))
        e("s_cmp_eq_u32 s%d, %d" % (PE, NT))
        e("s_cselect_b32 s%d, 255, s%d" % (PE, PE))
        e("v_mov_b32 v%d, s%d" % (HB_, PE))
        e("ds_write_b32 v%d, v%d offset:%d" % (HZ, HB_, L_TD))
    e("s_endpgm")

    def last_gather():
        EL = P["fc"] == 4
        CSC = 24; CO = 96; CR0 = 56; CSO = 57; CHL = 58; CRB = 59; CN = 20
        COF = list(range(64, 76)) + list(range(84, 96))
        RB = HX + 16
        if EL:
            e("s_mov_b64 exec, -1")
            e("v_lshlrev_b32 v%d, 2, v%d" % (HR, HL))
            e("v_add_u32 v%d, %d, v%d" % (HG, L_ACC + 2 * NW * ROWB, HR))
            e("v_lshlrev_b32 v%d, 4, v%d" % (HK, HL))
        e("s_add_u32 s%d, s%d, 64" % (PE, PG))
        e("s_mul_i32 s%d, s%d, 171" % (PE, PE))
        e("s_lshr_b32 s%d, s%d, 9" % (PE, PE))
        e("s_mul_i32 s%d, s%d, %d" % (CHL, PE, FSTR))
        e("s_add_u32 s%d, s%d, %d" % (CHL, CHL, WS_G + ELN * FSTR))
        e("s_mul_i32 s%d, s%d, %d" % (CRB, PE, DH * 2))
        e("s_cmp_eq_u32 s%d, 21" % PE)
        e("s_cselect_b32 s%d, 15, 23" % CN)
        e("s_mul_i32 s%d, s%d, 24" % (PE, PE))
        e("s_add_u32 s%d, s2, 512" % PSG)
        e("s_sub_u32 s%d, s%d, s%d" % (CR0, PSG, PE))
        e("s_lshl_b32 s%d, s%d, 10" % (PSG, PSG))
        e("s_mov_b32 s%d, 0x40000" % PSP)
        e.label("L_fs")
        e("buffer_load_dword v%d, off, s[%d:%d], s%d offset:4 sc1" % (HA, PWS, PWS + 3, CHL))
        e("s_sub_u32 s%d, s%d, 1" % (PSP, PSP))
        e("s_cbranch_scc1 L_exit1")
        e("s_waitcnt vmcnt(0)")
        e("v_cmp_eq_u32 vcc, 0, v%d" % HA)
        e("s_cbranch_vccnz L_fs")
        e("buffer_load_dword v%d, v%d, s[%d:%d], s%d offen offset:128 sc1" % (HE, HR, PWS, PWS + 3, CHL))
        e("ds_read_b128 v[%d:%d], v%d offset:%d" % (HA, HD, HZ, L_ML + 32))
        e("v_xor_b32 v%d, 1, v%d" % (HF, HL))
        e("v_cmp_eq_u32 vcc, s%d, v%d" % (CR0, HL))
        e("v_cndmask_b32 v%d, v%d, v%d, vcc" % (HF, HL, HF))
        e("v_add_u32 v%d, s%d, v%d" % (HF, PE, HF))
        e("v_lshlrev_b32 v%d, 10, v%d" % (HF, HF))
        for r in range(24):
            e("v_readlane_b32 s%d, v%d, %d" % (COF[r], HF, r))
        srd(CO, 78, H * DH * 2)
        e("v_lshlrev_b32 v%d, 1, v%d" % (HR, HL))
        e("s_waitcnt vmcnt(0)")
        e("v_readlane_b32 s%d, v%d, s%d" % (CSO, HE, CR0))
        e("v_cndmask_b32 v%d, v%d, v%d, vcc" % (HE, HE, HZ))
        for r in range(24):
            e("v_readlane_b32 s%d, v%d, %d" % (CSC + r, HE, r))
        e("v_mov_b32 v%d, 1" % HV)
        if EL:
            e("s_mov_b64 exec, 1")
            lds_wait("el", HZ, HE, PE, L_EL, "4", PSP)
            e("buffer_atomic_add v%d, off, s[%d:%d], s%d sc0" % (HV, PWS, PWS + 3, CHL))
            e("s_mov_b64 exec, -1")
            e("s_waitcnt vmcnt(0)")
            e("v_readfirstlane_b32 s%d, v%d" % (PE, HV))
            e("s_cmp_lg_u32 s%d, s%d" % (PE, CN))
            e("s_cbranch_scc1 L_exit1")
            for r in range(24):
                e("buffer_load_dwordx4 v[%d:%d], v%d, s[%d:%d], s%d offen sc1" % (RB + 4 * r, RB + 4 * r + 3, HK, PWS, PWS + 3, COF[r]))
        lds_wait("n", HZ, HE, PE, L_CA + 8, "4", PSP)
        for kk in range(3):
            for w in range(NW):
                e("ds_read_b32 v%d, v%d offset:%d" % (HX + kk * NW + w, HG, w * ROWB + kk * 256))
        if not EL:
            e("s_mov_b64 exec, 1")
            e("buffer_atomic_add v%d, off, s[%d:%d], s%d sc0" % (HV, PWS, PWS + 3, CHL))
            e("s_mov_b64 exec, -1")
        e("s_mov_b32 s%d, 0x40000" % PSP)
        for kk in range(3):
            b = HX + kk * NW
            e("s_waitcnt lgkmcnt(%d)" % (8 - 4 * kk))
            e("v_add_f32 v%d, v%d, v%d" % (b, b, b + 1))
            e("v_add_f32 v%d, v%d, v%d" % (b + 2, b + 2, b + 3))
            e("v_sub_f32 v%d, v%d, v%d" % (b, b, HC))
            e("v_add_f32 v%d, v%d, v%d" % (HX + 12 + kk, b, b + 2))
        if EL:
            e("s_branch L_fr2")
        else:
            e("buffer_store_dwordx4 v[%d:%d], v%d, s[%d:%d], s%d offen sc1" % (HX + 12, HX + 15, HK, PWS, PWS + 3, PSG))
        if P["stamp"] == 5 and not EL:
            e("s_memrealtime s[%d:%d]" % (PE + 4, PE + 5))
        if 2 <= P["fc"] < 4:
            e("s_waitcnt vmcnt(%d)" % (P["fc"] - 2))
            e("v_readfirstlane_b32 s%d, v%d" % (PE, HV))
            e("s_cmp_lg_u32 s%d, s%d" % (PE, CN))
            e("s_cbranch_scc1 L_fx")
        e.label("L_fr")
        for r in range(24):
            e("buffer_load_dwordx4 v[%d:%d], v%d, s[%d:%d], s%d offen sc1" % (RB + 4 * r, RB + 4 * r + 3, HK, PWS, PWS + 3, COF[r]))
        e.lines.append("L_fr2:")
        for k, a_ in enumerate((HA, HB_, HC)):
            e("v_mul_f32 v%d, s%d, v%d" % (a_, CSO, HX + 12 + k))
        e("v_mov_b32 v%d, 1" % HD)
        e("s_sub_u32 s%d, s%d, 1" % (PSP, PSP))
        e("s_cbranch_scc1 L_exit1")
        for r in range(24):
            if r % 2 == 0:
                e("s_waitcnt vmcnt(%d)" % (22 - r))
            for k, a_ in enumerate((HA, HB_, HC)):
                e("v_fmac_f32 v%d, s%d, v%d" % (a_, CSC + r, RB + 4 * r + k))
            if r % 2:
                e("v_min3_u32 v%d, v%d, v%d, v%d" % (HD, HD, RB + 4 * r - 1, RB + 4 * r + 3))
        if P["fc"] == 1:
            e("v_readfirstlane_b32 s%d, v%d" % (PE, HV))
        e("v_cmp_eq_u32 vcc, 0, v%d" % HD)
        for a_ in (HA, HB_, HC):
            e("v_cvt_pk_bf16_f32 v%d, v%d, v%d" % (a_, a_, a_))
        if P["fc"] == 1:
            e("s_cmp_lg_u32 s%d, s%d" % (PE, CN))
            e("s_cbranch_scc1 L_fx")
        e("s_cbranch_vccnz L_fr")
        for k, a_ in enumerate((HA, HB_, HC)):
            e("buffer_store_short v%d, v%d, s[%d:%d], s%d offen offset:%d %s" % (a_, HR, CO, CO + 3, CRB, k * 128, P["os"]))
        if P["stamp"] == 5:
            e("s_memrealtime s[%d:%d]" % (PT, PT + 1))
            e("s_waitcnt vmcnt(0)")
            e("s_memrealtime s[%d:%d]" % (PT + 2, PT + 3))
            srd(PS2, 82, 0x8000000)
            e("s_waitcnt lgkmcnt(0)")
            e("v_mov_b32 v%d, s%d" % (HX, PT))
            e("v_mov_b32 v%d, s%d" % (HX + 1, PT + 2))
            e("v_mov_b32 v%d, s%d" % (HX + 2, PSP))
            e("s_mul_i32 s%d, s%d, 171" % (PE, CRB))
            e("s_lshr_b32 s%d, s%d, 16" % (PE, PE))
            e("s_lshl_b32 s%d, s%d, 4" % (PE, PE))
            e("s_add_u32 s%d, s%d, 0x4009000" % (PE, PE))
            e("s_mov_b64 exec, 1")
            e("buffer_store_dwordx4 v[%d:%d], off, s[%d:%d], s%d" % (HX, HX + 3, PS2, PS2 + 3, PE))
        e.lines.append("L_fx:")
        if P["stamp"] == 5 and not EL:
            srd(PS2, 82, 0x8000000)
            e("s_memrealtime s[%d:%d]" % (PT + 2, PT + 3))
            e("s_waitcnt lgkmcnt(0)")
            e("v_mov_b32 v%d, s%d" % (HX, PE + 4))
            e("v_mov_b32 v%d, s%d" % (HX + 1, PT + 2))
            e("s_lshl_b32 s%d, s2, 3" % PE)
            e("s_add_u32 s%d, s%d, 0x400a000" % (PE, PE))
            e("s_mov_b64 exec, 1")
            e("buffer_store_dwordx2 v[%d:%d], off, s[%d:%d], s%d" % (HX, HX + 1, PS2, PS2 + 3, PE))
        e("s_endpgm")

    if BC:
        e.label("L_h3")
        e("s_waitcnt lgkmcnt(0)")
        srd_ws(PWS)
        if not EB:
            e("s_barrier")
        if P["pf"] in (5, 6):
            vpf(P["pf"] == 6)
        if P["pf"] == 9:
            vpf(False, True)
        if P["pf"] == 8:
            srd(PS2, 70, H * NGRP * DH * 2)
            srd(PS3, 72, H * NGRP * DH * 2)
            e("v_lshlrev_b32 v%d, 4, v%d" % (HE, HL))
            if P["pd"]:
                e("s_add_u32 s%d, s%d, %d" % (PST, PST, P["pd"]))
                twait(PST, PT, P["pe"])
            for ph in (1, 2):
                e("s_mov_b32 s%d, %d" % (PPH, ph))
                seg_scalars()
                e("s_mul_i32 s%d, s%d, 24" % (PE + 1, PM))
                e("s_add_u32 s%d, s%d, s%d" % (PE + 2, PE + 1, PG0))
                e("s_mul_i32 s%d, s%d, %d" % (PE, PE + 2, DH * 2))
                e("v_add_u32 v%d, s%d, v%d" % (HA, PE, HE))
                e("v_add_u32 v%d, 0x1000, v%d" % (HB_, HA))
                e("v_add_u32 v%d, 0x2000, v%d" % (HC, HA))
                for sr in (PS2, PS3):
                    for k in range(9):
                        e("buffer_load_dwordx4 v[%d:%d], v%d, s[%d:%d], 0 offen offset:%d" % (HX + 64, HX + 67, (HA, HB_, HC)[k // 4], sr, sr + 3, (k % 4) * 1024))
                if P["pe"]:
                    twait(PST, PT, P["pe"])
            vpf(False)
            e("v_mov_b32 v%d, 1" % HE)
            e("ds_write_b32 v%d, v%d offset:%d" % (HZ, HE, L_PF))
        e("v_lshlrev_b32 v%d, 2, v%d" % (HD, HL))
        e("s_mul_i32 s%d, s%d, %d" % (PO, PM, FSTR))
        e("s_add_u32 s%d, s%d, %d" % (PO, PO, WS_T))
        e("s_lshl_b32 s%d, s%d, 2" % (PFL, PG))
        e("s_add_u32 s%d, s%d, s%d" % (PFL, PFL, PO))
        if GTS:
            cps = CPK + [48 + c for c in CPV]
            sel = [max(j for j, c in enumerate(cps) if c + P["tg"] + P["rd"] < b) for b in GTS]
            e("s_mov_b32 s%d, 0x%x" % (PRN, sum(1 << j for j in sel)))
            e("v_lshrrev_b32 v%d, 2, v%d" % (HG, HL))
            e("v_mul_u32_u24 v%d, %d, v%d" % (HG, FSTR, HG))
            e("v_and_or_b32 v%d, v%d, 12, v%d" % (HG, HD, HG))
            e("s_and_b32 s%d, s%d, 3" % (PBK, PM))
            e("s_mul_i32 s%d, s%d, %d" % (PNR, PBK, FSTR))
            e("s_lshl_b32 s%d, s%d, 2" % (PBK, PBK))
            e("v_mov_b32 v%d, %d" % (HK, L_GT))
        e("s_mov_b32 s%d, %d" % (PJ, P["pw"]))
        e("v_mov_b32 v%d, %d" % (HW, L_TM))
        e("v_bfrev_b32 v%d, -2" % HC)
        e("s_mov_b32 exec_hi, 0")
        e.label("L_h3loop")
        lds_wait("p1", HZ, HE, PE, L_TC, "s%d" % PJ, PSP)
        e("s_memrealtime s[%d:%d]" % (PT, PT + 1))
        e("s_add_u32 s%d, s%d, %d" % (PJ, PJ, 5 - P["pw"]))
        e("s_mov_b32 exec_lo, 1")
        e("s_waitcnt lgkmcnt(0)")
        e("v_mov_b32 v%d, s%d" % (HB_, PT))
        e("buffer_store_dword v%d, off, s[%d:%d], s%d" % (HB_, PWS, PWS + 3, PFL))
        e("s_mov_b32 exec_lo, -1")
        if P["xs"]:
            XS = P["xs"]
            e("s_lshl_b32 s%d, s2, %d" % (PE, 10 if XS & 8 else 12))
            e("s_add_u32 s%d, s%d, 0x700000" % (PE, PE))
            e("v_lshlrev_b32 v%d, 4, v%d" % (HX, HL))
            e("s_mov_b64 exec, %s" % ("-1" if XS & 2 else "1"))
            e("v_lshlrev_b32 v%d, 4, v%d" % (HX, HL))
            for k in range(4 if XS & 16 else 1):
                e("buffer_%s_dwordx4 v[%d:%d], v%d, s[%d:%d], s%d offen offset:%d %s" %
                  ("load" if XS & 4 else "store", HX + 4, HX + 7, HX, PWS, PWS + 3, PE, 1024 * k, "sc1" if XS & 1 else "" if not XS & 32 else "sc0 sc1"))
            e("s_mov_b64 exec, 0xffffffff")
        lds_wait("p2", HZ, HE, PE, L_TC, "s%d" % PJ, PSP)
        e("buffer_load_dword v%d, v%d, s[%d:%d], s%d offen sc0" % (HB_, HD, PWS, PWS + 3, PO))
        e("s_add_u32 s%d, s%d, 4" % (PJ, PJ))
        e("s_sub_u32 s%d, s%d, 4096" % (PT, PT))
        e("s_waitcnt vmcnt(0)")
        e("v_subrev_u32 v%d, s%d, v%d" % (HB_, PT, HB_))
        e("v_cmp_gt_u32 vcc, 8192, v%d" % HB_)
        e("v_cndmask_b32 v%d, v%d, v%d, vcc" % (HB_, HC, HB_))
        e("s_mov_b32 s%d, 2048" % PE)
        for st in (2048, 1024, 512, 256, 128, 64, 32, 16, 8):
            e("s_add_u32 s%d, s%d, %d" % (PE + 1, PE, st))
            e("v_cmp_gt_u32 vcc, s%d, v%d" % (PE + 1, HB_))
            e("s_bcnt1_i32_b64 s%d, vcc" % (PE + 2))
            e("s_cmp_lt_u32 s%d, %d" % (PE + 2, P["aq"]))
            e("s_cselect_b32 s%d, s%d, s%d" % (PE, PE + 1, PE))
        e("s_add_u32 s%d, s%d, s%d" % (PE + 1, PE, PT))
        e("s_or_b32 s%d, s%d, 1" % (PE + 1, PE + 1))
        e("v_mov_b32 v%d, s%d" % (HB_, PE + 1))
        e("ds_write_b32 v%d, v%d" % (HW, HB_))
        e("v_add_u32 v%d, 4, v%d" % (HW, HW))
        if GTS:
            e("s_bitcmp1_b32 s%d, 0" % PRN)
            e("s_cbranch_scc0 L_h3ng")
            e("s_cmp_lt_u32 s%d, 6136" % PE)
            e("s_cselect_b32 exec_lo, 1, 0")
            e("s_cmp_lt_u32 s%d, 4" % PG)
            e("s_cselect_b32 exec_lo, exec_lo, 0")
            e("buffer_store_dword v%d, off, s[%d:%d], s%d offset:2048 sc1" % (HB_, PWS, PWS + 3, PFL))
            e("s_mov_b32 exec_lo, 0xffff")
            e("s_add_u32 s%d, s%d, %d" % (PE + 3, PJ, P["gq"]))
            lds_wait("p3", HZ, HE, PE, L_TC, "s%d" % (PE + 3), PSP)
            e("s_sub_u32 s%d, s%d, s%d" % (PE + 3, PO, PNR))
            e("s_mov_b32 s%d, %d" % (PSP, P["gn"]))
            e("s_mov_b32 s%d, 0" % PE)
            if P["gl2"]:
                e("buffer_load_dword v%d, v%d, s[%d:%d], s%d offen offset:2048" % (HA, HG, PWS, PWS + 3, PE + 3))
                e("s_branch L_h3gq")
            e.label("L_h3gp")
            e("buffer_load_dword v%d, v%d, s[%d:%d], s%d offen offset:2048 sc1" % (HA, HG, PWS, PWS + 3, PE + 3))
            e("s_sub_u32 s%d, s%d, 1" % (PSP, PSP))
            e("s_cbranch_scc1 L_h3gw")
            e.lines.append("L_h3gq:")
            e("s_waitcnt vmcnt(0)")
            e("v_subrev_u32 v%d, s%d, v%d" % (HA, PT, HA))
            e("v_cmp_gt_u32 vcc, 8192, v%d" % HA)
            e("v_cndmask_b32 v%d, v%d, v%d, vcc" % (HA, HC, HA))
            e("v_min_u32_dpp v%d, v%d, v%d quad_perm:[1,0,3,2] row_mask:0xf bank_mask:0xf" % (HA, HA, HA))
            e("v_min_u32_dpp v%d, v%d, v%d quad_perm:[2,3,0,1] row_mask:0xf bank_mask:0xf" % (HA, HA, HA))
            e("v_cmp_eq_u32 vcc, v%d, v%d" % (HC, HA))
            e("s_cbranch_vccnz L_h3gp")
            for k in range(4):
                e("v_readlane_b32 s%d, v%d, %d" % (PE + 4 + k, HA, 4 * k))
            e("v_readlane_b32 s%d, v%d, s%d" % (PE + 1, HA, PBK))
            e("s_max_u32 s%d, s%d, s%d" % (PE + 4, PE + 4, PE + 5))
            e("s_max_u32 s%d, s%d, s%d" % (PE + 6, PE + 6, PE + 7))
            e("s_max_u32 s%d, s%d, s%d" % (PE, PE + 4, PE + 6))
            e("s_sub_u32 s%d, s%d, s%d" % (PE, PE, PE + 1))
            e("s_sub_u32 s%d, s%d, %d" % (PE, PE, P["gtol"]))
            e("s_max_i32 s%d, s%d, 0" % (PE, PE))
            e("s_min_i32 s%d, s%d, %d" % (PE, PE, P["gcap"]))
            e.label("L_h3gw")
            e("s_or_b32 s%d, s%d, 0x10000" % (PE, PE))
            e("v_mov_b32 v%d, s%d" % (HB_, PE))
            e("ds_write_b32 v%d, v%d" % (HK, HB_))
            e("s_mov_b32 exec_lo, -1")
            e("v_add_u32 v%d, 4, v%d" % (HK, HK))
            e("s_waitcnt vmcnt(0)")
            e.label("L_h3ng")
            e("s_lshr_b32 s%d, s%d, 1" % (PRN, PRN))
        e("s_add_u32 s%d, s%d, %d" % (PJ, PJ, 3 + P["pw"]))
        e("s_add_u32 s%d, s%d, 128" % (PO, PO))
        e("s_add_u32 s%d, s%d, 128" % (PFL, PFL))
        e("s_cmp_lt_u32 s%d, %d" % (PJ, 12 * (len(CPK) + len(CPV))))
        e("s_cbranch_scc1 L_h3loop")
        if P["fc"] == 4:
            last_gather()
        else:
            e("s_endpgm")

    e.label("L_h2")
    srd(PS2, 74, H * SKV * 2)
    srd(PS3, 76, H * SKV * 2)
    if 2 <= P["pf"] <= 4:
        if P["pf"] == 2:
            lds_wait("pf", HZ, HE, PE, L_EV + 4, "1", PSP)
        if P["pf"] == 4:
            lds_wait("pf", HZ, HE, PE, L_EV, "1", PSP)
        e("v_lshlrev_b32 v%d, 4, v%d" % (HA, HL))
        e("s_lshl_b32 s%d, s2, 13" % PE)
        e("s_add_u32 s%d, s%d, 4096" % (PE + 1, PE))
        for a, sr in enumerate((PS2, PS3)):
            for k in range(8):
                r = HX + 4 * (a * 8 + k)
                e("buffer_load_dwordx4 v[%d:%d], v%d, s[%d:%d], s%d offen offset:%d" % (r, r + 3, HA, sr, sr + 3, PE + k // 4, (k % 4) * 1024))
        e("s_waitcnt vmcnt(0)")
    get_dec("d2")
    PSIX = 24
    PKW = 32; PNEED = 33; PN0 = 34; PIM = 35; PCH = 36; PCC = 37; PMG = 38; PWD = 39; PIS = 40
    PGT = 42
    HT = HW
    HP = HX + 88; PXM = 64
    e("v_and_b32 v%d, 3, v%d" % (HT, HL))
    e("v_and_b32 v%d, 7, v%d" % (HT2, HL))
    e("v_lshrrev_b32 v%d, 2, v%d" % (HR, HL))
    e("s_mov_b32 s%d, %s" % (PCC, f32hex(C)))
    e("s_mov_b32 s%d, 0xaaaaaaab" % PMG)
    e("s_mov_b32 s%d, 0" % PPH)
    HPG = HP + 1 if XZ else HP
    if XZ:
        e("s_lshl_b32 s%d, s%d, 3" % (PIM, PG))
        img_base(PIM, PIM, PE)
        img_lane(HPG, HA)
    else:
        e("s_mul_i32 s%d, s%d, %d" % (PIM, PG, 8 * IMS))
    e("s_add_u32 s%d, s%d, %d" % (PIM, PIM, WS_L))
    e("s_mov_b32 s%d, %d" % (PIS, XZ or IMS))
    e("v_lshlrev_b32 v%d, 5, v%d" % (HN, HL))
    e("v_lshrrev_b32 v%d, 3, v%d" % (HK, HL))
    e("v_mul_u32_u24 v%d, 24, v%d" % (HK, HK))
    e("v_mov_b32 v%d, 768" % HA)
    e("v_mad_u32_u24 v%d, v%d, v%d, v%d" % (HK, HT2, HA, HK))
    if CX:
        e("v_lshrrev_b32 v%d, 3, v%d" % (HA, HL))
        e("v_lshlrev_b32 v%d, 7, v%d" % (HP, HT2))
        e("v_lshl_add_u32 v%d, v%d, 4, v%d" % (HP, HA, HP))
        if P["cl"]:
            e("v_lshlrev_b32 v%d, 4, v%d" % (HP + 1, HL))
        if P["x12"]:
            for r in (HP, HP + 1):
                e("v_lshrrev_b32 v%d, 4, v%d" % (r, r))
                e("v_mul_u32_u24 v%d, 12, v%d" % (r, r))
    else:
        e("v_lshlrev_b32 v%d, 4, v%d" % (HP, HL))
    e("s_mov_b32 s%d, %d" % (PN0, (2 if CX else 3) * N0))
    RS = 16
    e.label("L_prep")
    seg_scalars()
    e("s_mov_b32 s%d, s%d" % (PKW, PDC))
    e("s_mov_b32 s%d, s%d" % (PWD, PDC + 3))
    for i in (0, 1, 3, 4):
        e("s_mov_b32 s%d, s%d" % (PDC + i, PDC + i + 1))
    e("s_lshl_b32 s%d, s%d, 3" % (PNEED, PPH))
    e("s_add_u32 s%d, s%d, 1" % (PNEED, PNEED))
    if P["pf"] == 1:
        lds_wait("pf", HZ, HE, PE, L_EV + 4, "s%d" % PNEED, PSP)
        e("v_lshlrev_b32 v%d, 4, v%d" % (HA, HL))
        e("s_mul_i32 s%d, s%d, 2736" % (PE + 1, PM))
        e("s_lshl_b32 s%d, s%d, 16" % (PE, PSG))
        e("s_mul_hi_u32 s%d, s%d, 0xaaaaaaab" % (PE, PE))
        e("s_lshr_b32 s%d, s%d, 5" % (PE, PE))
        e("s_lshl_b32 s%d, s%d, 4" % (PE, PE))
        e("s_add_u32 s%d, s%d, s%d" % (PE, PE, PE + 1))
        if P["pp"]:
            e("s_memrealtime s[%d:%d]" % (PGT, PGT + 1))
            e("s_waitcnt lgkmcnt(0)")
        for a, sr in enumerate((PS2, PS3)):
            if a and P["bs"] & 4:
                e("s_add_u32 s%d, s%d, %d" % (PE + 1, PNEED, P["bz"] - 1))
                lds_wait("pz", HZ, HE, PE + 2, L_EV + 4, "s%d" % (PE + 1), PSP)
            for k in range(3):
                r = HX + 4 * RS + 4 * (a * 3 + k)
                if P["pp"]:
                    twait(PGT, PGT + 2, P["pp"])
                e("buffer_load_dwordx4 v[%d:%d], v%d, s[%d:%d], s%d offen offset:%d%s" % (r, r + 3, HA, sr, sr + 3, PE, k * 1024, " nt" if P["bnt"] & 8 else ""))
    for w, hv in ((PWD, HV),):
        e("s_and_b32 s%d, s%d, 7" % (PE, w))
        e("v_mov_b32 v%d, s%d" % (hv, PE))
        e("s_bitcmp1_b32 s%d, 3" % w)
        e("s_cselect_b64 vcc, -1, 0")
        e("v_cndmask_b32 v%d, v%d, v%d, vcc" % (hv, hv, HT2))
    e("v_xor_b32 v%d, s%d, v%d" % (HG, PNB, HV))
    e("v_lshl_or_b32 v%d, v%d, 3, v%d" % (HG, HT, HG))
    e("s_lshl_b32 s%d, s%d, 6" % (PCH, PSG))
    e("s_mul_i32 s%d, s%d, 768" % (PE + 1, PSG))
    e("s_lshl_b32 s%d, s%d, 2" % (PE + 2, PG0))
    e("s_sub_u32 s%d, s%d, s%d" % (PE + 1, PE + 1, PE + 2))
    e("s_add_u32 s%d, s%d, %d" % (PE + 1, PE + 1, WS_B))
    if P["pace"]:
        e("s_add_u32 s%d, s%d, 4" % (PNEED, PNEED))
        lds_wait("ga", HZ, HE, PE, L_EV + 4, "s%d" % PNEED, PSP)
    else:
        e("s_add_u32 s%d, s%d, 1" % (PNEED, PPH))
        lds_wait("ga", HZ, HE, PE, L_FD, "s%d" % PNEED, PSP)
    def first_token(st):
        e("v_add_u32 v%d, %d, v%d" % (HA, 16 * st, HR))
        e("v_bfe_u32 v%d, v%d, 3, 2" % (HB_, HA))
        e("v_and_or_b32 v%d, v%d, 4, v%d" % (HB_, HA, HB_))
        e("v_xor_b32 v%d, v%d, v%d" % (HB_, HG, HB_))
        e("v_add_u32 v%d, s%d, v%d" % (HA, PCH, HA))
        e("v_lshl_add_u32 v%d, v%d, 5, v%d" % (HC, HA, HB_))
        e("v_lshl_add_u32 v%d, v%d, 4, 1" % (HC, HC))
        e("v_mul_hi_u32 v%d, v%d, s%d" % (HC, HC, PMG))
        e("v_lshrrev_b32 v%d, 1, v%d" % (HC, HC))

    def gathers(st):
        R = HX + RS * st
        e("v_lshrrev_b32 v%d, 1, v%d" % (HF, HC))
        e("v_lshlrev_b32 v%d, 2, v%d" % (HF, HF))
        for b, sr in ((R + 8, PS2), (R + 12, PS3)):
            if P["xkp"] & 8:
                continue
            gnt = " nt" if P["bnt"] & 16 else ""
            if P["gp"]:
                if st == 0 and sr == PS2:
                    e("s_memrealtime s[%d:%d]" % (PGT, PGT + 1))
                    e("s_waitcnt lgkmcnt(0)")
                n = P["gs"]
                for q in range(n):
                    twait(PGT, PGT + 2, P["gp"])
                    if n > 1:
                        mk = ((1 << (64 // n)) - 1) << (64 // n * q)
                        e("s_mov_b32 exec_lo, 0x%x" % (mk & 0xffffffff))
                        e("s_mov_b32 exec_hi, 0x%x" % (mk >> 32))
                    if P["gf"]:
                        e("buffer_load_dwordx4 v[%d:%d], v%d, s[%d:%d], 0 offen %s" % (b, b + 3, HF, sr, sr + 3, P["gf"].replace("x", "")))
                        continue
                    e("buffer_load_dwordx3 v[%d:%d], v%d, s[%d:%d], 0 offen%s" % (b, b + 2, HF, sr, sr + 3, gnt))
                    e("buffer_load_dword v%d, v%d, s[%d:%d], 0 offen offset:12%s" % (b + 3, HF, sr, sr + 3, gnt))
                e("s_mov_b64 exec, -1")
                continue
            e("buffer_load_dwordx3 v[%d:%d], v%d, s[%d:%d], 0 offen%s" % (b, b + 2, HF, sr, sr + 3, gnt))
            if P["pace"] == 2:
                e("s_waitcnt vmcnt(0)")
            e("buffer_load_dword v%d, v%d, s[%d:%d], 0 offen offset:12%s" % (b + 3, HF, sr, sr + 3, gnt))

    for st in range(4):
        R = HX + RS * st
        first_token(st)
        if not P["go"]:
            gathers(st)
        e("v_lshrrev_b32 v%d, 6, v%d" % (R + 6, HC))
        e("v_lshl_add_u32 v%d, v%d, 2, s%d" % (R + 6, R + 6, PE + 1))
        e("v_and_b32 v%d, 15, v%d" % (HD, HC))
        e("v_cmp_eq_u32 s[%d:%d], 5, v%d" % (PSIX + 2 * st, PSIX + 2 * st + 1, HD))
        e("v_and_b32 v%d, 1, v%d" % (R + 7, HC))
        e("v_lshlrev_b32 v%d, 4, v%d" % (R + 7, R + 7))
        if P["pace"] == 1:
            e("s_waitcnt vmcnt(0)")
    e("s_add_u32 s%d, s%d, 1" % (PNEED, PPH))
    if P["fd"]:
        cps = CPK + [48 + c for c in CPV]
        th = [12 * min(j for j, c in enumerate(cps) if c > b) + P["fd"] for b in (16, 32, 48)]
        assert th[2] - th[1] == th[1] - th[0]
        e("s_mul_i32 s%d, s%d, %d" % (PE + 6, PPH, th[1] - th[0]))
        e("s_add_u32 s%d, s%d, %d" % (PE + 6, PE + 6, th[0]))
        lds_wait("fe", HZ, HE, PE, L_TC, "s%d" % (PE + 6), PSP)
    lds_wait("fd", HZ, HE, PE, L_FD, "s%d" % PNEED, PSP)
    e("v_mul_u32_u24 v%d, %d, v%d" % (HA, FSTR, HL))
    e("s_xor_b32 s%d, s%d, s%d" % (PE, PKW, PWD))
    e("s_xor_b32 s%d, s%d, s%d" % (PE, PE, PNB))
    e("s_and_b32 s%d, s%d, 7" % (PE, PE))
    e("v_mov_b32 v%d, s%d" % (HC, PNEED))
    e("s_lshl_b64 vcc, 1, s%d" % PE)
    e("s_or_b32 s%d, s%d, s%d" % (PE, PKW, PWD))
    e("s_bitcmp1_b32 s%d, 3" % PE)
    e("s_cselect_b64 vcc, 0xff, vcc")
    e("s_cmp_eq_u32 s%d, s%d" % (PKW, PWD))
    e("s_cselect_b64 vcc, 0, vcc")
    e("s_max_u32 s%d, s%d, 1" % (PE, PPH))
    e("v_mov_b32 v%d, s%d" % (HD, PE))
    e("v_cndmask_b32 v%d, v%d, v%d, vcc" % (HC, HD, HC))
    e("s_cmp_%s_u32 s%d, 1" % ("eq" if P["jit"] else "ge", PPH))
    e("s_cselect_b64 exec, vcc, 0xff")
    e("s_mov_b32 s%d, 0x40000" % PSP)
    if not P["xkp"] & 64:
        e("s_cbranch_execz L_noflags")
        e.label("L_flags")
        e("buffer_load_dword v%d, v%d, s[%d:%d], s%d offen sc1" % (HB_, HA, PWS, PWS + 3, PGL))
        e("s_sub_u32 s%d, s%d, 1" % (PSP, PSP))
        e("s_cbranch_scc1 L_exit1")
        e("s_waitcnt vmcnt(0)")
        e("v_cmpx_gt_u32 vcc, v%d, v%d" % (HC, HB_))
        e("s_cbranch_execnz L_flags")
        e.label("L_noflags")
    e("s_mov_b64 exec, -1")
    for st in range(4):
        R = HX + RS * st
        if not P["xkp"] & 32:
            e("buffer_load_dword v%d, v%d, s[%d:%d], 0 offen sc1" % (R + 6, R + 6, PWS, PWS + 3))
    e("s_bitcmp1_b32 s%d, 3" % PWD)
    e("s_cselect_b32 s%d, 0, 7" % (PE + 1))
    e("s_xor_b32 s%d, s%d, s%d" % (PE + 2, PKW, PWD))
    e("s_bitcmp1_b32 s%d, 3" % (PE + 2))
    e("s_cselect_b32 s%d, 7, 0" % (PE + 3))
    e("s_and_b32 s%d, s%d, 7" % (PE + 2, PE + 2))
    e("s_and_b32 s%d, s%d, 7" % (PE + 4, PWD))
    if CX:
        e("v_lshrrev_b32 v%d, 3, v%d" % (HA, HL))
        e("v_cmp_gt_u32 vcc, s%d, v%d" % (PN0, HA))
        e("v_and_b32 v%d, s%d, v%d" % (HC, PE + 3, HT2))
        e("v_xor_b32 v%d, s%d, v%d" % (HC, PE + 2, HC))
        e("v_and_b32 v%d, s%d, v%d" % (HB_, PE + 1, HT2))
        e("v_xor_b32 v%d, s%d, v%d" % (HB_, PE + 4, HB_))
        e("v_cndmask_b32 v%d, v%d, v%d, vcc" % (HB_, HC, HB_))
        for k, hv in enumerate((HB_, HC)):
            e("v_cmp_ne_u32 s[%d:%d], 0, v%d" % (PXM + 2 * k, PXM + 2 * k + 1, hv))
            e("v_xor_b32 v%d, s%d, v%d" % (hv, PNB, hv))
            e("v_mad_u32_u24 v%d, v%d, s%d, v%d" % (hv, hv, PIS, HP + 1 if P["cl"] and k else HP))
        if P["cl"]:
            e("v_mov_b32 v%d, v%d" % (HP, HP + 1))
        for st in range(4):
            R = HX + 4 * RS + 4 * st
            if st < 2:
                e("s_mov_b64 exec, s[%d:%d]" % (PXM + 2 * st, PXM + 2 * st + 1))
            if P["x12"]:
                e("buffer_load_dwordx3 v[%d:%d], v%d, s[%d:%d], s%d offen offset:%d sc1" %
                  (R, R + 2, HC if st else HB_, PWS, PWS + 3, PIM, st * 768))
            elif not P["xkp"] & 128:
                e("buffer_load_dwordx4 v[%d:%d], v%d, s[%d:%d], s%d offen offset:%d sc1" %
                  (R, R + 3, HC if st else HB_, PWS, PWS + 3, PIM, st * 1024))
        e("s_mov_b64 exec, -1")
    else:
        e("s_add_u32 s%d, s%d, 4096" % (PE + 5, PIM))
        for k in range(6):
            R = HX + 4 * RS + 4 * k
            e("v_add_u32 v%d, %d, v%d" % (HA, 64 * k, HL))
            e("v_mul_u32_u24 v%d, 1366, v%d" % (HB_, HA))
            e("v_lshrrev_b32 v%d, 16, v%d" % (HB_, HB_))
            e("v_mul_u32_u24 v%d, 48, v%d" % (HC, HB_))
            e("v_sub_u32 v%d, v%d, v%d" % (HA, HA, HC))
            e("v_cmp_gt_u32 vcc, s%d, v%d" % (PN0, HA))
            e("v_and_b32 v%d, s%d, v%d" % (HC, PE + 3, HB_))
            e("v_xor_b32 v%d, s%d, v%d" % (HC, PE + 2, HC))
            e("v_and_b32 v%d, s%d, v%d" % (HB_, PE + 1, HB_))
            e("v_xor_b32 v%d, s%d, v%d" % (HB_, PE + 4, HB_))
            e("v_cndmask_b32 v%d, v%d, v%d, vcc" % (HC, HC, HB_))
            e("v_cmp_ne_u32 s[%d:%d], 0, v%d" % (PXM + 2 * k, PXM + 2 * k + 1, HC))
            e("v_xor_b32 v%d, s%d, v%d" % (HC, PNB, HC))
            e("v_mad_u32_u24 v%d, v%d, s%d, v%d" % (HC, HC, PIS, HPG))
            if XZ:
                e("s_add_u32 s%d, s%d, %d" % (PE + 5, PIM, img_k(k)))
            if P["fr"]:
                if k == 0:
                    e("s_memrealtime s[%d:%d]" % (PGT, PGT + 1))
                    e("s_waitcnt lgkmcnt(0)")
                twait(PGT, PGT + 2, P["fr"])
            e("s_mov_b64 exec, s[%d:%d]" % (PXM + 2 * k, PXM + 2 * k + 1))
            if XZ:
                e("buffer_load_dwordx4 v[%d:%d], v%d, s[%d:%d], s%d offen sc1" % (R, R + 3, HC, PWS, PWS + 3, PE + 5))
            elif not P["xkp"] & 128:
                e("buffer_load_dwordx4 v[%d:%d], v%d, s[%d:%d], s%d offen offset:%d sc1" %
                  (R, R + 3, HC, PWS, PWS + 3, PE + 5 if k >= 4 else PIM, (k % 4) * 1024))
            e("s_mov_b64 exec, -1")
        e("s_waitcnt vmcnt(0)")
        for k in range(6):
            R = HX + 4 * RS + 4 * k
            e("s_mov_b64 exec, s[%d:%d]" % (PXM + 2 * k, PXM + 2 * k + 1))
            e("ds_write_b128 v%d, v[%d:%d] offset:%d" % (HP, R, R + 3, L_LG + k * 1024))
        e("s_mov_b64 exec, -1")
    if P["go"]:
        for st in range(4):
            first_token(st)
            gathers(st)
    for st in range(4):
        R = HX + RS * st
        for c in range(3):
            e("ds_read_b64 v[%d:%d], v%d offset:%d" % (R + 2 * c, R + 2 * c + 1, HK, L_LG + st * 192 + 8 * c))
    e("s_mov_b32 s%d, 0" % PN0)
    e("v_mov_b32 v%d, 0x%08x" % (HB_, BIGNEG))
    e("v_mov_b32 v%d, 0x%08x" % (HA, BIGNEG))
    e("s_waitcnt vmcnt(0) lgkmcnt(0)")
    if CX:
        for st in range(4):
            R = HX + RS * st
            Q = HX + 4 * RS + 4 * st
            if st < 2:
                e("s_mov_b64 exec, s[%d:%d]" % (PXM + 2 * st, PXM + 2 * st + 1))
            for k in range(6):
                e("v_fma_mix_f32 v%d, v%d, 1.0, v%d op_sel:[%d,0,0] op_sel_hi:[1,0,0]" % (R + k, Q + 1 + k // 2, Q, k & 1))
            e("v_cmp_lt_f32 vcc, v%d, v%d" % (Q, R + 5))
            e("v_cndmask_b32 v%d, v%d, v%d, vcc" % (R + 5, R + 5, HZ))
        e("s_mov_b64 exec, -1")
    for st in range(4):
        R = HX + RS * st
        for k in range(6):
            e("v_sub_f32 v%d, v%d, v%d" % (R + k, R + k, R + 6))
        for k in range(6):
            e("v_mul_f32 v%d, s%d, v%d" % (R + k, PCC, R + k))
        e("v_cndmask_b32 v%d, v%d, v%d, s[%d:%d]" % (R + 5, HB_, R + 5, PSIX + 2 * st, PSIX + 2 * st + 1))
        for k in range(0, 6, 2):
            e("v_max3_f32 v%d, v%d, v%d, v%d" % (HA, HA, R + k, R + k + 1))
        for b in (R + 8, R + 12):
            for k in range(3):
                e("v_alignbit_b32 v%d, v%d, v%d, v%d" % (b + k, b + k + 1, b + k, R + 7))

    wave_reduce([HA], "v_max_f32", [HB_])
    e("v_mov_b32 v%d, 0" % HB_)
    e("v_mov_b32 v%d, 0" % HC)
    for st in range(4):
        R = HX + RS * st
        for k in range(6):
            e("v_sub_f32 v%d, v%d, v%d" % (R + k, R + k, HA))
        for k in range(6):
            e("v_exp_f32 v%d, v%d" % (R + k, R + k))
        for k in range(6):
            e("v_add_f32 v%d, v%d, v%d" % (HB_, HB_, R + k))
            if k & 1:
                e("v_and_b32 v%d, 0xffff0000, v%d" % (HE, R + 8 + k // 2))
                e("v_and_b32 v%d, 0xffff0000, v%d" % (HF, R + 12 + k // 2))
            else:
                e("v_lshlrev_b32 v%d, 16, v%d" % (HE, R + 8 + k // 2))
                e("v_lshlrev_b32 v%d, 16, v%d" % (HF, R + 12 + k // 2))
            e("v_mul_f32 v%d, v%d, v%d" % (R + k, R + k, HE))
            e("v_fmac_f32 v%d, v%d, v%d" % (HC, R + k, HF))
        e("ds_write_b128 v%d, v[%d:%d] offset:%d" % (HN, R, R + 3, L_PV + st * 2048))
        e("ds_write_b64 v%d, v[%d:%d] offset:%d" % (HN, R + 4, R + 5, L_PV + st * 2048 + 16))
    wave_reduce([HB_, HC], "v_add_f32", [HE, HF])
    e("s_lshl_b32 s%d, s%d, 2" % (PE, PPH))
    e("v_mov_b32 v%d, s%d" % (HE, PE))
    e("v_lshlrev_b32 v%d, 2, v%d" % (HF, HE))
    e("v_mov_b32 v%d, s%d" % (HD, PWD))
    e("s_mov_b64 exec, 1")
    e("ds_write_b128 v%d, v[%d:%d] offset:%d" % (HF, HA, HD, L_ML))
    e("ds_write_b32 v%d, v%d offset:%d" % (HE, HD, L_GO))
    if FU:
        e("s_lshl_b32 s%d, s%d, 8" % (PE, PPH))
        e("s_add_u32 s%d, s%d, s2" % (PE, PE))
        e("s_lshl_b32 s%d, s%d, 6" % (PE, PE))
        e("s_add_u32 s%d, s%d, %d" % (PE, PE, WS_ML))
        e("buffer_store_dwordx4 v[%d:%d], off, s[%d:%d], s%d sc1" % (HA, HD, PWS, PWS + 3, PE))
    e("s_mov_b64 exec, -1")
    e("v_add_u32 v%d, 8192, v%d" % (HN, HN))
    e("v_add_u32 v%d, %d, v%d" % (HK, PHI, HK))
    if CX:
        e("s_add_u32 s%d, s%d, %d" % (PIM, PIM, PHS))
    else:
        e("v_add_u32 v%d, %d, v%d" % (HP, PHI, HP))
        if PHS != PHI:
            e("s_add_u32 s%d, s%d, %d" % (PIM, PIM, PHS if XZ else PHS - PHI))
    e("s_add_u32 s%d, s%d, 1" % (PPH, PPH))
    e("s_cmp_lt_u32 s%d, 3" % PPH)
    e("s_cbranch_scc1 L_prep")
    e("s_mov_b32 s%d, 0" % PPH)
    e("v_lshlrev_b32 v%d, 2, v%d" % (HR, HL))
    e("v_add_u32 v%d, %d, v%d" % (HG, L_ACC, HR))
    e("v_lshlrev_b32 v%d, 4, v%d" % (HK, HL))
    e("v_mov_b32 v%d, 1" % (HX + 15))
    e.label("L_merge")
    e("s_lshl_b32 s%d, s%d, 2" % (PE, PPH))
    e("v_mov_b32 v%d, s%d" % (HW, PE))
    e("v_lshlrev_b32 v%d, 2, v%d" % (HF, HW))
    e("ds_read_b128 v[%d:%d], v%d offset:%d" % (HA, HD, HF, L_ML))
    e("s_lshl_b32 s%d, s%d, 8" % (PSG, PPH))
    e("s_add_u32 s%d, s%d, s2" % (PSG, PSG))
    e("s_lshl_b32 s%d, s%d, 10" % (PSG, PSG))
    lds_wait("m", HZ, HE, PE, L_CA, "4", PSP, HW)
    for kk in range(3):
        for w in range(NW):
            e("ds_read_b32 v%d, v%d offset:%d" % (HX + kk * NW + w, HG, w * ROWB + kk * 256))
    for kk in range(3):
        b = HX + kk * NW
        e("s_waitcnt lgkmcnt(%d)" % (8 - 4 * kk))
        e("v_add_f32 v%d, v%d, v%d" % (b, b, b + 1))
        e("v_add_f32 v%d, v%d, v%d" % (b + 2, b + 2, b + 3))
        e("v_sub_f32 v%d, v%d, v%d" % (b, b, HC))
        if FU:
            e("v_add_f32 v%d, v%d, v%d" % (HX + 12 + kk, b, b + 2))
            continue
        e("v_add_f32 v%d, v%d, v%d" % (b, b, b + 2))
        e("buffer_store_dword v%d, v%d, s[%d:%d], s%d offen offset:%d" % (b, HR, PWS, PWS + 3, PSG, kk * 256))
    if FU:
        e("buffer_store_dwordx4 v[%d:%d], v%d, s[%d:%d], s%d offen sc1" % (HX + 12, HX + 15, HK, PWS, PWS + 3, PSG))
    else:
        e("s_mov_b64 exec, 1")
        e("buffer_store_dwordx2 v[%d:%d], off, s[%d:%d], s%d offset:%d" % (HA, HB_, PWS, PWS + 3, PSG, DH * 4))
        e("s_mov_b64 exec, -1")
    e("v_add_u32 v%d, %d, v%d" % (HG, NW * ROWB, HG))
    e("s_add_u32 s%d, s%d, 1" % (PPH, PPH))
    e("s_cmp_lt_u32 s%d, %d" % (PPH, 2 if 0 < P["fc"] < 4 else 3))
    e("s_cbranch_scc1 L_merge")
    if 0 < P["fc"] < 4:
        last_gather()
    if P["stamp"] == 5:
        e("s_memrealtime s[%d:%d]" % (PT, PT + 1))
        e("s_waitcnt vmcnt(0)")
        e("s_memrealtime s[%d:%d]" % (PT + 2, PT + 3))
        srd(PS2, 82, 0x8000000)
        e("s_waitcnt lgkmcnt(0)")
        e("v_mov_b32 v%d, s%d" % (HX, PT))
        e("v_mov_b32 v%d, s%d" % (HX + 1, PT + 2))
        e("s_lshl_b32 s%d, s2, 3" % PE)
        e("s_add_u32 s%d, s%d, 0x400a000" % (PE, PE))
        e("s_mov_b64 exec, 1")
        e("buffer_store_dwordx2 v[%d:%d], off, s[%d:%d], s%d" % (HX, HX + 1, PS2, PS2 + 3, PE))
    e("s_endpgm")

    main_text = e.text()
    if P["nts"]:
        ls = []
        for l in main_text.split("\n"):
            w = l.split()
            if w and w[-1] == "sc1":
                big = w[0].endswith("x4")
                bit = (1 if big else 2) if w[0].startswith("buffer_store") else (4 if big else 8)
                if P["nts"] & bit:
                    l += " nt"
            ls.append(l)
        main_text = "\n".join(ls)
    RPW = 24
    k2 = NAME + "_kernel"
    e.lines.append(".globl %s" % k2)
    e.lines.append(".p2align 8")
    e.lines.append(".type %s,@function" % k2)
    e.lines.append(k2 + ":")
    e.wr = {}; e.tr = {}; e.sw = {}
    e("s_cmp_ge_u32 s2, %d" % H)
    e("s_cbranch_scc1 L_exit2")
    e("s_load_dwordx2 s[4:5], s[0:1], 56")
    e("s_load_dwordx2 s[6:7], s[0:1], 72")
    e("v_lshlrev_b32 v1, 2, v0")
    e("v_mov_b32 v2, 0")
    e("s_mul_i32 s16, s2, %d" % (RPW * PART_STRIDE))
    e("s_mov_b32 s10, %d" % (3 * NWG * PART_STRIDE))
    e("s_mov_b32 s11, 0x00020000")
    e("s_mov_b32 s14, %d" % (H * DH * 2))
    e("s_mov_b32 s15, 0x00020000")
    for k in range(1, RPW // 4):
        e("s_add_u32 s%d, s16, %d" % (16 + k, 4 * k * PART_STRIDE))
    e("s_waitcnt lgkmcnt(0)")
    e("s_mov_b32 s8, s6")
    e("s_and_b32 s9, s7, 0xffff")
    e("s_mov_b32 s12, s4")
    e("s_and_b32 s13, s5, 0xffff")
    MLB = 8
    OB = MLB + 2 * RPW
    for s in range(RPW):
        so = 16 + s // 4
        e("buffer_load_dwordx2 v[%d:%d], v2, s[8:11], s%d offen offset:%d" %
          (MLB + 2 * s, MLB + 2 * s + 1, so, (s % 4) * PART_STRIDE + DH * 4))
        e("buffer_load_dword v%d, v1, s[8:11], s%d offen offset:%d" % (OB + s, so, (s % 4) * PART_STRIDE))
    e("s_waitcnt vmcnt(0)")
    e("v_mov_b32 v4, v%d" % MLB)
    for s in range(1, RPW):
        e("v_max_f32 v4, v4, v%d" % (MLB + 2 * s))
    for s in range(RPW):
        e("v_sub_f32 v%d, v%d, v4" % (MLB + 2 * s, MLB + 2 * s))
    for s in range(RPW):
        e("v_exp_f32 v%d, v%d" % (MLB + 2 * s, MLB + 2 * s))
    e("v_mul_f32 v5, v%d, v%d" % (MLB, MLB + 1))
    e("v_mul_f32 v6, v%d, v%d" % (MLB, OB))
    for s in range(1, RPW):
        e("v_fmac_f32 v5, v%d, v%d" % (MLB + 2 * s, MLB + 2 * s + 1))
        e("v_fmac_f32 v6, v%d, v%d" % (MLB + 2 * s, OB + s))
    e("v_rcp_f32 v5, v5")
    e("v_mul_f32 v6, v6, v5")
    e("v_cvt_pk_bf16_f32 v6, v6, v6")
    e("s_mul_i32 s16, s2, %d" % (DH * 2))
    e("v_lshrrev_b32 v1, 1, v1")
    e("buffer_store_short v6, v1, s[12:15], s16 offen")
    e.lines.append("L_exit2:")
    e("s_endpgm")
    NV2 = OB + RPW

    def kd(name, nv, ns):
        acc = (nv + 3) // 4 * 4
        return """.amdhsa_kernel %s
  .amdhsa_next_free_vgpr %d
  .amdhsa_next_free_sgpr %d
  .amdhsa_accum_offset %d
  .amdhsa_group_segment_fixed_size 0
  .amdhsa_kernarg_size 80
  .amdhsa_user_sgpr_count 2
  .amdhsa_user_sgpr_kernarg_segment_ptr 1
  .amdhsa_system_sgpr_workgroup_id_x 1
.end_amdhsa_kernel
""" % (name, nv, ns, acc)

    diag = ""
    if P["diag"]:
        d = Emit4()
        d.lines += [".globl diag_kernel", ".p2align 8", ".type diag_kernel,@function", "diag_kernel:"]
        d("s_cmp_ge_u32 s2, 1")
        d("s_cbranch_scc1 L_dx")
        d("s_load_dwordx2 s[6:7], s[0:1], 72")
        d("s_memrealtime s[16:17]")
        d("v_lshlrev_b32 v1, 4, v0")
        d("s_mov_b32 s10, 0x8000000")
        d("s_mov_b32 s11, 0x00020000")
        d("s_waitcnt lgkmcnt(0)")
        d("s_mov_b32 s8, s6")
        d("s_and_b32 s9, s7, 0xffff")
        for k in range(16):
            d("s_mov_b32 s12, 0x%x" % (0x4000000 + k * 1024))
            d("buffer_load_dwordx4 v[%d:%d], v1, s[8:11], s12 offen" % (4 + 4 * k, 7 + 4 * k))
        d("s_waitcnt vmcnt(0)")
        d("v_readfirstlane_b32 s13, v4")
        d("v_mov_b32 v2, 0")
        d("v_mov_b32 v3, 0")
        for k in range(16):
            d("v_subrev_u32 v%d, s13, v%d" % (4 + 4 * k, 4 + 4 * k))
            d("v_subrev_u32 v%d, s13, v%d" % (5 + 4 * k, 4 + 4 * k + (P["diag"] & 3)))
            d("v_min_i32 v2, v2, v%d" % (4 + 4 * k))
            d("v_%s v3, v3, v%d" % ("add_u32" if P["diag"] & 128 else "max_i32", 5 + 4 * k))
        d("s_mov_b32 s14, 0")
        d("s_mov_b32 s15, 0")
        for l in range(64):
            d("v_readlane_b32 s18, v2, %d" % l)
            d("v_readlane_b32 s19, v3, %d" % l)
            d("s_nop 3")
            d("s_min_i32 s14, s14, s18")
            d("s_%s s15, s15, s19" % ("add_u32" if P["diag"] & 128 else "max_i32"))
        if P["diag"] & 128:
            d("s_ashr_i32 s15, s15, 10")
        if P["diag"] & 96:
            d("s_mov_b32 s12, 0x4100000")
            d("buffer_load_dwordx4 v[8:11], off, s[8:11], s12")
            d("v_readfirstlane_b32 s18, v6")
            d("s_waitcnt vmcnt(0)")
            d("v_readfirstlane_b32 s19, v8")
            d("v_readfirstlane_b32 s20, v9")
            d("v_readfirstlane_b32 s21, v10")
            d("s_and_b32 s18, s18, %d" % P["dth"])
            d("s_min_u32 s18, s18, 1")
            d("s_cmp_eq_u32 s19, 0x13572468")
            d("s_cselect_b32 s20, s20, 0")
            d("s_cselect_b32 s21, s21, 0")
            d("s_add_u32 s20, s20, s18")
            d("s_add_u32 s21, s21, 1")
            d("v_mov_b32 v8, 0x13572468")
            d("v_mov_b32 v9, s20")
            d("v_mov_b32 v10, s21")
            d("s_mov_b64 exec, 1")
            d("buffer_store_dwordx4 v[8:11], off, s[8:11], s12")
            d("s_mov_b32 s15, s%d" % (20 if P["diag"] & 32 else 21))
        elif P["diag"] & 8:
            d("s_load_dwordx2 s[20:21], s[0:1], 64")
            d("s_waitcnt lgkmcnt(0)")
            d("s_sub_u32 s20, s20, 512")
            d("s_subb_u32 s21, s21, 0")
            d("s_load_dword s15, s[20:21], 0")
            d("s_waitcnt lgkmcnt(0)")
            d("s_and_b32 s15, s15, 0xffffff")
            d("s_sub_u32 s15, s15, %d" % (48 * 65536))
            d("s_abs_i32 s15, s15")
            d("s_lshr_b32 s15, s15, 2")
            if P["diag"] & 16:
                d("s_cmp_lt_u32 s15, %d" % (P["dth"] // 4))
                d("s_cselect_b32 s15, 3000, 0")
                d("s_and_b32 s14, s16, 0xf0")
                d("s_cmp_lt_u32 s14, %d" % (16 * P["drn"]))
                d("s_cselect_b32 s15, 3000, s15")
        elif P["diag"] & 4:
            d("s_sub_u32 s14, s16, s13")
            d("s_sub_u32 s15, s14, s15")
        else:
            d("s_sub_u32 s15, s15, s14")
        d("s_sub_u32 s15, s15, %d" % P["doff"])
        d("s_max_i32 s15, s15, 0")
        d("s_min_i32 s15, s15, 10000")
        d("s_mul_i32 s15, s15, %d" % P["dmul"])
        d("s_add_u32 s15, s15, s16")
        d.label("L_dl")
        d("s_memrealtime s[18:19]")
        d("s_waitcnt lgkmcnt(0)")
        d("s_sub_u32 s18, s18, s15")
        d("s_cmp_lt_i32 s18, 0")
        d("s_cbranch_scc1 L_dl")
        d.lines.append("L_dx:")
        d("s_endpgm")
        diag = d.text()
    out = HEADER.replace("gen.py", "gen6.py").format(params=" ".join("%s=%s" % kv for kv in sorted(P.items())))
    if FU:
        out += "; @launch kernel=%s grid=(%d,1,1) block=(%d,1,1) lds=%d\n" % (k1, NWG, (NW + NHX) * 64, LDS1)
    else:
        out += "; @launch kernel=%s grid=(%d,1,1) block=(%d,1,1) lds=%d\n" % (k1, NWG, (NW + NHX) * 64, LDS1)
        out += "; @launch kernel=%s grid=(%d,1,1) block=(%d,1,1) lds=%d\n" % (k2, H, DH, 0)
    if diag:
        out += "; @launch kernel=diag_kernel grid=(1,1,1) block=(64,1,1) lds=0\n"
    out += '.amdgcn_target "amdgcn-amd-amdhsa--gfx950"\n.text\n'
    out += main_text if FU else e.text()
    out += diag
    out += '.section .rodata,"a"\n.p2align 6\n'
    out += kd(k1, NVGPR + (8 if P["xb"] else 2 if P["stamp"] == 5 else 0), 102)
    if not FU:
        out += ".p2align 6\n"
        out += kd(k2, NV2, 24)
    if diag:
        out += ".p2align 6\n"
        out += kd("diag_kernel", 72, 24)
    return out


DEFAULTS = dict(grp="6-6-6", n0=3, trg=1, ta=14, tb=15, jit=0, pace=1, nr0=1, nr=7, nt="nt", ldspad=0, stamp=0, xkp=0, force=0, clip=1400,
                l2t=290, th=200, pf=7, ob=2, ox=0, ds=1, td=3, tdm=3, fuse=1, cw=1,
                lx=0, wo=0, ns0=4, tw=4, ov="0000", st="sc1", xv="", h4=0, bnt=0, vw=1, at=1, tc=40, tg=2, te=44, aq=16, ka=9, kb=2048, dmin=0, dmax=11,
                bc=1, cpk="9-17-25-33-41", cpv="1-9-17-25-33", rd=2, ka2=8, kb2=512, bmax=6, be=1, pw=2, il=1, xp=0, ss=0, eb=0, pfi=0, hs=0, l2p=0, gts="16-32-48-64-80", gn=8, gtol=10, gcap=1000, gq=0, gl2=0, xb=0, diag=0, doff=20000, dmul=8, fc=4, elk=1, cd=9, fd=0, prio=0, bp=0, bp0=0, bq=0, wl=2048, wt=9984, sw=1, dc=1, xs=0, cx=1, fb=0, ib=0, dth=4800, drn=6, ut=0, wb=0, nts=0, wg=8192, wm=896, wbi=1152, lb=1, pb=1, cl2=100, th1=10, th0=10, lm=7, tt=0, tx=1584, d3=33, xa=200, xn=4, bt=0, bt0=0, be1=0, gp=140, gs=2, pp=0, go=1, fw=0, fr=0, xz=0, xr=15, ef=0, gf="", pol=0, ro=2, bs=0, bz=5, bz0=1, rx=0, pt=0, pk=30, pd=0, pe=0, hg=0, fq=0, cl=0, xq=0, xt=0, os="", x12=0, sg=0, bw=0)


def main():
    P = dict(DEFAULTS)
    outp = None
    args = sys.argv[1:]
    i = 0
    while i < len(args):
        a = args[i]
        if a == "-o":
            outp = args[i + 1]; i += 2; continue
        k, v = a.split("=", 1)
        assert k in P, k
        P[k] = type(P[k])(v.replace("+", " ")) if isinstance(P[k], str) else int(v)
        i += 1
    s = gen(P)
    if outp:
        open(outp, "w").write(s)
    else:
        sys.stdout.write(s)


if __name__ == "__main__":
    main()
```

```python
import re
import sys
import math
from gen import f32hex, HEADER, NAME, H, SKV, DH, G, NGRP, ROWB, HEADB
from gen4 import Emit4

PART_STRIDE = 1024
NW = 4
NH = 3
NWG = 256
NT = 48
WS_G = 8 << 20
FSTR = 4096 + 256
WS_ML = 0xe0000
WS_B = 0x120000
WS_L = 2 << 20
WS_T = 0x9c0000
WS_SIZE = 10 << 20
BIGNEG = 0xf149f2ca


def gen(P):
    global WS_L, WS_T, WS_G, WS_ML, WS_B
    WS_L = P["wl"] << 10
    WS_T = P["wt"] << 10
    WS_G = P["wg"] << 10
    WS_ML = P["wm"] << 10
    WS_B = P["wbi"] << 10
    assert P["sw"] or not P["dc"]
    GR = [int(x) for x in P["grp"].split("-")]
    assert sum(GR) == 18 and len(GR) >= 2
    NG = len(GR)
    GOFF = [sum(GR[:k]) for k in range(NG)]
    OV = [int(x) for x in P["ov"]]
    N0 = P["n0"]
    NR = P["nr"]
    TRG1 = N0 - P["trg"]
    TA = P["ta"]
    TB = P["tb"]
    assert (2 <= TRG1 < N0 or P["force"] >= 2 or P["pt"] and TRG1 == N0) and N0 < TA < TB < 16 and 1 <= NR <= 7 and N0 <= 8
    pol = (" " + P["nt"]) if P["nt"] else ""
    C = (DH ** -0.5) * math.log2(math.e)
    L_DEC = 0
    L_GO = 24
    L_PC = 36
    L_CF = 40
    L_FD = 52
    L_EV = 56
    L_CA = 64
    L_ML = 80
    L_TC = 128
    L_TD = 132
    L_EL = 136
    L_PF = 140
    L_TM = 144
    L_GT = 208
    L_LG = 256
    PHI = 6144
    IMG = 3 * PHI
    L_PV = L_LG + IMG
    L_ACC = L_PV + 192 * 128
    LDS1 = max(L_ACC + 3 * NW * ROWB, P["ldspad"])

    e = Emit4()
    V_T = 1; V_J16 = 2; V_J8 = 3; V_LB0 = 4; V_PB0 = 5; V_PV = 6; V_PVN = 7; V_DO = 8; V_PO = 9; V_T0 = 10; V_T1 = 11
    V_ACC = 12; V_W = 24; V_RAW = 36
    V_OFF = 48; V_OFF6 = 49; V_TM = 50; V_BIG = 51; V_T2 = 52; V_Z = 53
    V_S = 54
    V_D = 60
    V_T128 = 62; V_TMX = 63
    V_RING = 64
    NVGPR = V_RING + 72
    AB = P["ab"]
    V_W2 = NVGPR; V_RAW2 = NVGPR + 12; V_OFFB = NVGPR + 18; V_OFF6B = NVGPR + 19; V_PO2 = NVGPR + 20
    S_INC = 51
    SK = [int(x) for x in P["sk"].split("-")] if P["sk"] else []
    PS = P["ps"]; L_PS = 240
    V_PSW = NVGPR; V_PSR = NVGPR + 1; V_PSD = NVGPR + 2
    if PS:
        assert not P["ef"]
        NVGPR += 6
    PSN = [0]

    def publish(add, const=None):
        if const is None:
            e("s_lshl2_add_u32 s%d, s%d, %d" % (S_T, S_I, add))
            e("v_mov_b32 v%d, s%d" % (V_T0, S_T))
        else:
            e("v_mov_b32 v%d, 0x%x" % (V_T0, const))
        e("s_mov_b64 exec, 1")
        e("ds_write_b32 v%d, v%d offset:%d" % (V_PSW, V_T0, L_PS))
        e("s_mov_b64 exec, -1")

    def pair_sync(add):
        publish(add)
        PSN[0] += 1
        tag = "L_ps%d" % PSN[0]
        e("s_mov_b32 s%d, %d" % (S_T + 1, P["pl"]))
        e.lines.append(tag + ":")
        if PS == 3:
            e("ds_read_b128 v[%d:%d], v%d offset:%d" % (V_PSD, V_PSD + 3, V_Z, L_PS))
            e("s_waitcnt lgkmcnt(0)")
            e("v_min3_u32 v%d, v%d, v%d, v%d" % (V_PSD, V_PSD, V_PSD + 1, V_PSD + 2))
            e("v_min_u32 v%d, v%d, v%d" % (V_PSD, V_PSD, V_PSD + 3))
        else:
            e("ds_read_b32 v%d, v%d offset:%d" % (V_PSD, V_PSR, L_PS))
            e("s_waitcnt lgkmcnt(0)")
        e("v_readfirstlane_b32 s%d, v%d" % (S_T + 2, V_PSD))
        e("s_sub_u32 s%d, s%d, 1" % (S_T + 1, S_T + 1))
        e("s_cselect_b32 s%d, -1, s%d" % (S_T + 2, S_T + 2))
        e("s_cmp_lt_u32 s%d, s%d" % (S_T + 2, S_T))
        e("s_cbranch_scc1 %s" % tag)
    S_MN = 88; S_MP_ = 90
    if SK:
        assert len(SK) == 2 and NG == 3 and not AB and not P["tt"] and P["tdm"] == 3 and P["be"] and not P["fb"] and not P["ss"]
        assert not any(OV[:3]) and 2 <= SK[0] and SK[0] + 2 <= SK[1] <= 14

        def wait_tag(tag):
            idx = [i for i, t in enumerate(e.vm) if t in (tag, tag + "m")]
            if idx:
                e.vm = e.vm[idx[-1] + 1:]
                e("s_waitcnt vmcnt(%d)" % len([t for t in e.vm if t[-1] != "m"]))
        e.wait_tag = wait_tag

    def slots(k, form):
        if not SK:
            return [(l, None) for l in range(GOFF[k], GOFF[k] + GR[k])]
        lo = SK[k - 1] if k else -1
        hi = SK[k] if k < 2 else 19
        if form == "c":
            return [(l, None) for l in range(max(lo - 1, 0), hi - 1)]
        if form == "d":
            return [(l, None) for l in range(lo + 1, min(hi + 1, 18))]
        late = [(lo - 1, S_MP_), (lo, S_MN + 4)] if k else []
        if form == "late":
            return late
        return late + [(l, None) for l in range(lo + 1, hi - 1)] + ([(hi - 1, S_MP_ + 4), (hi, S_MN)] if k < 2 else [])
    if AB:
        NVGPR += 22
    S_G = 3; S_M = 4; S_N = 5; S_SPIN = 6; S_LDC = 7
    S_K = 8; S_V = 12; S_KS = 16; S_Q = 20; S_WS = 24
    S_WAVE = 28; S_CI = 29; S_I = 30; S_QOFF = 31
    S_T = 32
    S_EV = 40; S_STM = 42; S_HB = 44; S_768 = 45; S_384 = 46; S_MAGIC = 47
    S_NB = 48; S_TD = 49; S_XB = 50; S_LB = 53
    S_ST = 54; S_DBG = 56
    S_BO = 59; S_TW = 60; S_CPA = 62; S_NBO = 63; S_BP = 72; S_TH = 73; S_TT = 74
    S_MP = 64; S_MG = 66; S_MR = 68; S_MO = 70
    BC = P["bc"]
    NHX = NH + (1 if BC else 0)
    CPK = [int(x) for x in P["cpk"].split("-")] if BC and P["cpk"] else []
    CPV = [int(x) for x in P["cpv"].split("-")] if BC and P["cpv"] else []
    if BC:
        CPV.append(P["tc"])
        assert P["te"] == P["tc"] + P["tg"] + P["rd"] and len(CPK) + len(CPV) <= 16

    GTS = [int(x) for x in P["gts"].split("-")] if BC and P["gts"] else []

    def set_masks(ev, cps):
        mp = sum(1 << c for c in cps)
        allm = [(S_EV, ev | mp | (mp << P["tg"]) | (mp << (P["tg"] + P["rd"])))]
        if BC:
            allm += [(S_MP, mp), (S_MG, mp << P["tg"]), (S_MR, mp << (P["tg"] + P["rd"])), (S_MO, ev)]
        for r, v in allm:
            assert v < (1 << 48)
            e("s_mov_b32 s%d, 0x%x" % (r, v & 0xffffffff))
            e("s_mov_b32 s%d, 0x%x" % (r + 1, v >> 32))

    FU = P["fuse"]
    k1 = NAME + "_kernel" if FU else "part_kernel"
    e.lines.append(".globl %s" % k1)
    e.lines.append(".p2align 8")
    e.lines.append(".type %s,@function" % k1)
    e.lines.append(k1 + ":")
    e("s_cmp_ge_u32 s2, %d" % NWG)
    e("s_cbranch_scc1 L_exit1")
    e("s_load_dwordx16 s[64:79], s[0:1], 0")
    e("s_load_dwordx4 s[80:83], s[0:1], 64")
    if P["stamp"]:
        e("s_memrealtime s[%d:%d]" % (S_ST, S_ST + 1))
    e("v_lshrrev_b32 v%d, 6, v0" % V_T0)
    e("v_and_b32 v%d, 63, v0" % V_T1)
    e("v_readfirstlane_b32 s%d, v%d" % (S_WAVE, V_T0))
    if P["eb"] == 4:
        e("v_lshlrev_b32 v%d, 2, v%d" % (V_T0, V_T1))
        e("v_mov_b32 v%d, 0" % V_Z)
        e("ds_write_b32 v%d, v%d" % (V_T0, V_Z))
    e("s_lshr_b32 s%d, s2, 3" % S_G)
    e("s_and_b32 s%d, s2, 7" % S_M)
    e("s_lshr_b32 s%d, s2, 6" % S_T)
    e("s_xor_b32 s%d, s%d, s%d" % (S_T, S_T, S_M))
    e("s_lshr_b32 s%d, s%d, 1" % (S_NB, S_T))
    e("s_and_b32 s%d, s%d, 1" % (S_T, S_T))
    e("s_lshl_b32 s%d, s%d, 2" % (S_T, S_T))
    e("s_or_b32 s%d, s%d, s%d" % (S_NB, S_NB, S_T))
    if P["eb"] != 4:
        e("s_cmp_ge_u32 s%d, %d" % (S_WAVE, NW))
        e("s_cbranch_scc1 L_helper")

    def srd(dst, ptr, nbytes):
        e("s_mov_b32 s%d, s%d" % (dst, ptr))
        e("s_and_b32 s%d, s%d, 0xffff" % (dst + 1, ptr + 1))
        e("s_mov_b32 s%d, %d" % (dst + 2, nbytes))
        e("s_mov_b32 s%d, 0x00020000" % (dst + 3))

    def srd_ws(dst):
        srd(dst, 82, WS_SIZE)
        if P["wo"]:
            e("s_add_u32 s%d, s%d, %d" % (dst, dst, P["wo"] << 10))
            e("s_addc_u32 s%d, s%d, 0" % (dst + 1, dst + 1))

    def lds_wait(tag, vz, vt, st, off, cond, spin, vaddr=None):
        e("s_mov_b32 s%d, 0x100000" % spin)
        e.label("L_w" + tag)
        e("ds_read_b32 v%d, v%d offset:%d" % (vt, vz if vaddr is None else vaddr, off))
        e("s_sub_u32 s%d, s%d, 1" % (spin, spin))
        e("s_cbranch_scc1 L_exit1")
        e("s_waitcnt lgkmcnt(0)")
        e("v_readfirstlane_b32 s%d, v%d" % (st, vt))
        if cond == "nz":
            e("s_cmp_eq_u32 s%d, 0" % st)
        else:
            e("s_cmp_lt_u32 s%d, %s" % (st, cond))
        e("s_cbranch_scc1 L_w" + tag)

    TWN = [0]

    def twait(dl, tmp, step):
        TWN[0] += 1
        e.label("L_tw%d" % TWN[0])
        e("s_memrealtime s[%d:%d]" % (tmp, tmp + 1))
        e("s_waitcnt lgkmcnt(0)")
        e("s_sub_u32 s%d, s%d, s%d" % (tmp + 1, tmp, dl))
        e("s_cmp_lt_i32 s%d, 0" % (tmp + 1))
        e("s_cbranch_scc1 L_tw%d" % TWN[0])
        e("s_add_u32 s%d, s%d, %d" % (dl, tmp, step))

    def gate(b, tag, check):
        if b not in GTS:
            return
        if check:
            e("s_cmp_eq_u32 s%d, %d" % (S_I, b % 48))
            e("s_cbranch_scc0 L_gx" + tag)
        e("s_memrealtime s[%d:%d]" % (S_T + 4, S_T + 5))
        lds_wait("g" + tag, V_Z, V_T0, S_T, L_GT + 4 * GTS.index(b), "nz", S_SPIN)
        e("s_and_b32 s%d, s%d, 0xffff" % (S_T, S_T))
        e("s_cbranch_scc0 L_gx" + tag)
        if P["stamp"] == 5:
            e("s_lshl_b32 s%d, s%d, 16" % (S_T + 1, S_T))
            e("s_add_u32 s%d, s%d, s%d" % (S_NBO, S_NBO, S_T + 1))
        e("s_add_u32 s%d, s%d, s%d" % (S_T, S_T, S_T + 4))
        e.label("L_gl" + tag)
        e("s_memrealtime s[%d:%d]" % (S_T + 4, S_T + 5))
        e("s_waitcnt lgkmcnt(0)")
        e("s_sub_u32 s%d, s%d, s%d" % (S_T + 4, S_T + 4, S_T))
        e("s_cmp_lt_i32 s%d, 0" % (S_T + 4))
        e("s_cbranch_scc1 L_gl" + tag)
        e.label("L_gx" + tag)

    def get_table(kind, tag):
        if tag == "tv":
            gate(48, tag, False)
        else:
            for b in ((16, 32) if kind == "K" else (64, 80)):
                gate(b, "%s%d" % (tag, b), True)
        e("s_lshr_b32 s%d, s%d, 4" % (S_T + 1, S_I))
        e("s_lshl_b32 s%d, s%d, 2" % (S_T + 2, S_T + 1))
        if P["stamp"] == 6:
            e("s_memrealtime s[%d:%d]" % (S_T + 4, S_T + 5))
            e("s_lshl_b32 s%d, s2, 2" % S_T)
            e("s_add_u32 s%d, s%d, s%d" % (S_T, S_T, S_WAVE))
            e("s_cmp_eq_u32 s%d, 400" % S_T)
            e("s_cselect_b64 exec, 1, 0")
            e("s_waitcnt lgkmcnt(0)")
            e("s_sub_u32 s%d, s%d, s%d" % (S_T + 4, S_T + 4, S_ST))
            e("v_mov_b32 v%d, s%d" % (V_T1, S_T + 4))
            e("buffer_store_dword v%d, off, s[%d:%d], s%d offset:%d" % (V_T1, S_WS, S_WS + 3, S_T + 2, 40 if kind == "K" else 52))
            e("s_mov_b64 exec, -1")
        e("v_mov_b32 v%d, s%d" % (V_T1, S_T + 2))
        if kind == "K":
            load_q(S_T + 1, False)
        lds_wait(tag, V_Z, V_T0, S_T, L_DEC if kind == "K" else L_GO, "nz", S_SPIN, V_T1)
        e("s_and_b32 s%d, s%d, 7" % (S_N, S_T))
        e("s_xor_b32 s%d, s%d, s%d" % (S_N, S_N, S_NB))
        e("s_bitcmp1_b32 s%d, 3" % S_T)
        e("s_cselect_b64 vcc, -1, 0")
        e("v_cndmask_b32 v%d, v%d, v%d, vcc" % (V_TM, V_T128, V_TMX))

    def load_q(ph, track):
        e("s_lshl_b32 s%d, s%d, 5" % (S_QOFF, ph))
        e("s_add_u32 s%d, s%d, s%d" % (S_QOFF, S_QOFF, S_G))
        e("s_mul_i32 s%d, s%d, 171" % (S_QOFF, S_QOFF))
        e("s_lshr_b32 s%d, s%d, 9" % (S_QOFF, S_QOFF))
        e("s_mul_i32 s%d, s%d, %d" % (S_QOFF, S_QOFF, DH * 2))
        for c in range(3):
            r = V_RAW + 2 * c
            s = "buffer_load_dwordx2 v[%d:%d], v%d, s[%d:%d], s%d offen offset:%d" % (r, r + 1, V_J8, S_Q, S_Q + 3, S_QOFF, c * 128)
            if track:
                e.vmem(s, "p")
            else:
                e(s)

    CM = [int(c) for c in P["cm"].split("-")] if P["cm"] else []
    if CM:
        span = {0}
        for c in CM:
            span |= {x ^ c for x in span}
        assert len(CM) == 6 and span == set(range(64)) and P["am"] == 3
    P8 = [int(c, 16) for c in P["p8"]]
    assert not P8 or sorted(P8) == list(range(3, 11))

    def tile_addr(kind):
        ch, a, b = S_T, S_T + 1, S_T + 2
        if P8:
            e("s_lshr_b32 s%d, s%d, 6" % (a, S_CI))
            e("s_lshl_b32 s%d, s%d, 11" % (a, a))
            e("s_xor_b32 s%d, s%d, s%d" % (a, a, S_HB))
            e("s_lshl_b32 s%d, s%d, 5" % (ch, a))
            for sh in sorted(set(P8[2 + i] - i for i in range(6))):
                e("s_and_b32 s%d, s%d, %d" % (b, S_CI, sum(1 << i for i in range(6) if P8[2 + i] - i == sh)))
                if sh:
                    e("s_%s_b32 s%d, s%d, %d" % ("lshl" if sh > 0 else "lshr", b, b, abs(sh)))
                e("s_xor_b32 s%d, s%d, s%d" % (ch, ch, b))
            e("s_bfe_u32 s%d, s%d, 0x20008" % (a, ch))
            e("s_lshr_b32 s%d, s%d, 5" % (b, ch))
            e("s_and_b32 s%d, s%d, 4" % (b, b))
            e("s_or_b32 s%d, s%d, s%d" % (a, a, b))
            e("s_xor_b32 s%d, s%d, s%d" % (a, a, S_N))
            e("s_or_b32 s%d, s%d, s%d" % (S_XB, ch, a))
            tile_addr2(kind)
            return
        e("s_lshr_b32 s%d, s%d, 6" % (a, S_CI))
        e("s_lshl_b32 s%d, s%d, 11" % (a, a))
        if P["am"] == 1:
            e("s_mul_i32 s%d, s%d, %d" % (ch, S_G, P["ak"]))
            e("s_add_u32 s%d, s%d, s%d" % (ch, ch, S_CI))
            e("s_and_b32 s%d, s%d, 63" % (ch, ch))
        elif CM:
            e("s_mov_b32 s%d, 0" % ch)
            for i in range(2, 6):
                e("s_bitcmp1_b32 s%d, %d" % (S_CI, i))
                e("s_cselect_b32 s%d, %d, 0" % (b, CM[i]))
                e("s_xor_b32 s%d, s%d, s%d" % (ch, ch, b))
        elif P["pm"] != "012345":
            pm = [int(c) for c in P["pm"]]
            assert sorted(pm) == list(range(6))
            keep = sum(1 << i for i in range(6) if pm[i] == i)
            e("s_and_b32 s%d, s%d, %d" % (ch, S_CI, keep))
            for sh in sorted(set(pm[i] - i for i in range(6)) - {0}):
                e("s_and_b32 s%d, s%d, %d" % (b, S_CI, sum(1 << i for i in range(6) if pm[i] - i == sh)))
                e("s_%s_b32 s%d, s%d, %d" % ("lshl" if sh > 0 else "lshr", b, b, abs(sh)))
                e("s_or_b32 s%d, s%d, s%d" % (ch, ch, b))
        else:
            e("s_and_b32 s%d, s%d, 63" % (ch, S_CI))
        if P["am"] == 2:
            k = P["ak"]
            e("s_lshr_b32 s%d, s%d, 2" % (b, ch))
            e("s_lshl_b32 s%d, s%d, %d" % (b, b, 2 + k))
            e("s_and_b32 s%d, s%d, 3" % (ch, ch))
            e("s_or_b32 s%d, s%d, s%d" % (ch, ch, b))
            e("s_add_u32 s%d, s%d, s%d" % (ch, ch, a))
            e("s_and_b32 s%d, s%d, %d" % (b, S_G, (1 << k) - 1))
            e("s_lshl_b32 s%d, s%d, 2" % (b, b))
            e("s_or_b32 s%d, s%d, s%d" % (ch, ch, b))
            e("s_lshr_b32 s%d, s%d, %d" % (b, S_G, k))
            e("s_lshl_b32 s%d, s%d, %d" % (b, b, 6 + k))
            e("s_or_b32 s%d, s%d, s%d" % (ch, ch, b))
        else:
            e("s_add_u32 s%d, s%d, s%d" % (ch, ch, a))
            e("s_%s s%d, s%d, s%d" % ("xor_b32" if P["am"] == 3 else "add_u32", ch, ch, S_HB))
        e("s_bfe_u32 s%d, s%d, 0x20003" % (a, ch))
        e("s_and_b32 s%d, s%d, 4" % (b, ch))
        e("s_or_b32 s%d, s%d, s%d" % (a, a, b))
        e("s_xor_b32 s%d, s%d, s%d" % (a, a, S_N))
        if P["am"] == 2:
            e("s_xor_b32 s%d, s%d, s%d" % (b, ch, S_HB))
            e("s_bfe_u32 s%d, s%d, 0x1000a" % (S_XB, b))
            e("s_xor_b32 s%d, s%d, s%d" % (a, a, S_XB))
            e("s_bfe_u32 s%d, s%d, 0x10009" % (S_XB, b))
            e("s_lshl_b32 s%d, s%d, 2" % (S_XB, S_XB))
            e("s_xor_b32 s%d, s%d, s%d" % (a, a, S_XB))
        e("s_lshl_b32 s%d, s%d, 5" % (S_XB, ch))
        e("s_or_b32 s%d, s%d, s%d" % (S_XB, S_XB, a))
        tile_addr2(kind)

    def tile_addr2(kind):
        e("s_lshl_b32 s%d, s%d, 4" % (S_XB, S_XB))
        e("s_or_b32 s%d, s%d, 1" % (S_XB, S_XB))
        if AB:
            assert not P["ut"] and not P8
            c1 = CM[1] if CM else 1 << int(P["pm"][1])
            flip = ((c1 << 5) | ((c1 >> 3) & 3) | (c1 & 4)) << 4
            h, ho, hm = S_T, S_T + 1, S_T + 2
            e("s_bitcmp1_b32 s%d, 1" % S_CI)
            e("s_cselect_b32 s%d, 0x%x, 0" % (h, flip))
            e("s_xor_b32 s%d, s%d, s%d" % (S_XB, S_XB, h))
            e("s_lshr_b32 s%d, s%d, 1" % (h, S_CI))
            e("s_xor_b32 s%d, s%d, s%d" % (h, h, S_CI))
            e("s_bitcmp1_b32 s%d, 1" % h)
            e("s_cselect_b32 s%d, %d, 0" % (ho, 3 * ROWB))
            e("s_cselect_b64 s[%d:%d], 0, -1" % (hm, hm + 1))
            if kind == "V":
                e("s_cselect_b32 s%d, 12, 0" % h)
                e("s_andn2_b32 s%d, s%d, 2" % (S_LB, S_CI))
                e("s_lshl_b32 s%d, s%d, 7" % (S_LB, S_LB))
                e("s_add_u32 s%d, s%d, s%d" % (S_LB, S_LB, h))
            for x, (vo, v6, po) in enumerate(((V_OFF, V_OFF6, V_PO), (V_OFFB, V_OFF6B, V_PO2))):
                if x:
                    e("s_xor_b32 s%d, s%d, 0x%x" % (S_XB, S_XB, flip))
                e("v_xor_b32 v%d, s%d, v%d" % (V_T0, S_XB, V_TM))
                e("v_mul_hi_u32 v%d, v%d, s%d" % (V_T0, V_T0, S_MAGIC))
                e("v_lshrrev_b32 v%d, 1, v%d" % (V_T0, V_T0))
                e("v_and_b32 v%d, 15, v%d" % (V_T1, V_T0))
                e("v_cmp_eq_u32 vcc, 5, v%d" % V_T1)
                e("v_mad_u32_u24 v%d, v%d, s%d, v%d" % (vo, V_T0, S_768, V_J16))
                e("s_or_b64 vcc, vcc, s[%d:%d]" % (hm, hm + 1))
                e("v_add_u32 v%d, s%d, v%d" % (vo, ho, vo))
                e("v_add_u32 v%d, %d, v%d" % (V_T1, 2 * ROWB, vo))
                e("v_cndmask_b32 v%d, v%d, v%d, vcc" % (v6, V_BIG, V_T1))
                if kind == "K":
                    e("v_lshrrev_b32 v%d, 6, v%d" % (V_T0, V_T0))
                    e("v_mad_u32_u24 v%d, v%d, s%d, v%d" % (po, V_T0, S_384, V_J8))
            if kind == "V":
                e("v_add_u32 v%d, s%d, v%d" % (V_T0, S_LB, V_PB0))
            return
        if kind == "V":
            e("s_lshl_b32 s%d, s%d, 7" % (S_LB, S_CI))
            if P["ut"]:
                e("s_cmp_ge_u32 s%d, %d" % (S_I, NT - P["ut"]))
                e("s_cselect_b64 vcc, -1, 0")
                e("v_cndmask_b32 v%d, v%d, v%d, vcc" % (V_TM, V_TM, V_TMX))
        e("v_xor_b32 v%d, s%d, v%d" % (V_T0, S_XB, V_TM))
        e("v_mul_hi_u32 v%d, v%d, s%d" % (V_T0, V_T0, S_MAGIC))
        e("v_lshrrev_b32 v%d, 1, v%d" % (V_T0, V_T0))
        e("v_and_b32 v%d, 15, v%d" % (V_T1, V_T0))
        e("v_cmp_eq_u32 vcc, 5, v%d" % V_T1)
        e("v_mad_u32_u24 v%d, v%d, s%d, v%d" % (V_OFF, V_T0, S_768, V_J16))
        if SK:
            e("v_cmp_eq_u32 s[%d:%d], 11, v%d" % (S_MP_, S_MP_ + 1, V_T1))
            e("v_cmp_ne_u32 s[%d:%d], 11, v%d" % (S_MP_ + 4, S_MP_ + 5, V_T1))
            e("v_cmp_eq_u32 s[%d:%d], 5, v%d" % (S_MN, S_MN + 1, V_T1))
            e("v_cmp_ne_u32 s[%d:%d], 5, v%d" % (S_MN + 4, S_MN + 5, V_T1))
        e("v_add_u32 v%d, %d, v%d" % (V_T1, 5 * ROWB, V_OFF))
        e("v_cndmask_b32 v%d, v%d, v%d, vcc" % (V_OFF6, V_BIG, V_T1))
        if kind == "K":
            e("v_lshrrev_b32 v%d, 6, v%d" % (V_T0, V_T0))
            e("v_mad_u32_u24 v%d, v%d, s%d, v%d" % (V_PO, V_T0, S_384, V_J8))
        else:
            e("v_add_u32 v%d, s%d, v%d" % (V_T0, S_LB, V_PB0))

    def issue_params(kind):
        if kind == "K":
            if P["xkp"] & 2:
                return
            if P["xkp"] & 1024:
                e("s_cmp_lt_u32 s%d, 16" % S_I)
                e("s_cselect_b64 exec, -1, 0")
            for c in range(3):
                r = V_RAW + 6 + 2 * c
                e.vmem("buffer_load_dwordx2 v[%d:%d], v%d, s[%d:%d], 0 offen offset:%d%s" %
                       (r, r + 1, V_PO, S_KS, S_KS + 3, c * 128, " nt" if P["bnt"] & 4 else ""), "p")
            for c in range(3 if AB else 0):
                r = V_RAW2 + 2 * c
                e.vmem("buffer_load_dwordx2 v[%d:%d], v%d, s[%d:%d], 0 offen offset:%d" %
                       (r, r + 1, V_PO2, S_KS, S_KS + 3, c * 128), "p")
            if P["xkp"] & 1024:
                e("s_mov_b64 exec, -1")
            if P["xb"] & 2:
                for c in range(3):
                    r = NVGPR + 2 + 2 * c
                    e.vmem("buffer_load_dwordx2 v[%d:%d], v%d, s[%d:%d], 0 offen offset:%d" % (r, r + 1, V_PO, 76, 79, c * 128), "p")
        else:
            e("ds_read_b32 v%d, v%d" % (V_PVN, V_T0))

    def issue_group(k, kind, pol=pol, form="s"):
        srdb = S_K if kind == "K" else S_V
        masked = False
        for l, mk in slots(k, form) + [(None, None)]:
            if mk is not None:
                e("s_mov_b64 exec, s[%d:%d]" % (mk, mk + 1))
            elif masked:
                e("s_mov_b64 exec, -1")
            masked = mk is not None
            if l is None:
                break
            r = V_RING + l * 4
            if AB:
                q, c = l // 3, l % 3
                if q < 4:
                    vo, off = (V_OFF, V_OFFB)[q & 1], (q >> 1) * ROWB + c * 256
                else:
                    vo, off = (V_OFF6, V_OFF6B)[q & 1], c * 256
            elif l < 15:
                vo, off = V_OFF, l * 256
            else:
                vo, off = V_OFF6, (l - 15) * 256
            e.vmem("buffer_load_dwordx4 v[%d:%d], v%d, s[%d:%d], 0 offen offset:%d%s" %
                   (r, r + 3, vo, srdb, srdb + 3, off, pol), "g%d%s" % (k - (form == "late"), "m" if masked else ""))

    def compute_w():
        e.wait_tag("p")
        for p in range(6):
            rq = V_RAW + p; rs = V_RAW + 6 + p
            i0 = 2 * p
            e("v_lshlrev_b32 v%d, 16, v%d" % (V_T0, rq))
            e("v_lshlrev_b32 v%d, 16, v%d" % (V_W + i0, rs))
            e("v_and_b32 v%d, 0xffff0000, v%d" % (V_T1, rq))
            e("v_and_b32 v%d, 0xffff0000, v%d" % (V_W + i0 + 1, rs))
            e("v_mul_f32 v%d, v%d, v%d" % (V_W + i0, V_W + i0, V_T0))
            e("v_mul_f32 v%d, v%d, v%d" % (V_W + i0 + 1, V_W + i0 + 1, V_T1))
            if AB:
                rs = V_RAW2 + p
                e("v_lshlrev_b32 v%d, 16, v%d" % (V_W2 + i0, rs))
                e("v_and_b32 v%d, 0xffff0000, v%d" % (V_W2 + i0 + 1, rs))
                e("v_mul_f32 v%d, v%d, v%d" % (V_W2 + i0, V_W2 + i0, V_T0))
                e("v_mul_f32 v%d, v%d, v%d" % (V_W2 + i0 + 1, V_W2 + i0 + 1, V_T1))

    def advance(kind, to_v, tag):
        nkind = "V" if to_v else kind
        if to_v:
            e("s_mov_b32 s%d, s%d" % (S_CI, S_WAVE))
            e("s_mov_b32 s%d, 0" % S_I)
            get_table("V", "tv")
            ev = (1 << 16) | (1 << 32)
            if P["at"] and not BC:
                ev |= (1 << P["tc"]) | (1 << (P["tc"] + P["tg"])) | (1 << P["te"])
            e("s_mov_b32 s%d, %d" % (S_TD, NT - P["td"] if P["td"] else 255))
            if P["tt"]:
                e("s_mov_b32 s%d, 255" % S_TT)
            set_masks(ev, CPV)
        else:
            e("s_add_u32 s%d, s%d, %d" % (S_CI, S_CI, NW))
            e("s_add_u32 s%d, s%d, 1" % (S_I, S_I))
            if tag:
                e("s_bitcmp1_b64 s[%d:%d], s%d" % (S_EV, S_EV + 1, S_I))
                sfx = tag if isinstance(tag, str) else ""
                e("s_cbranch_scc1 L_ev%s%s" % (kind, sfx))
                e.flush()
                e.label("L_evret%s%s" % (kind, sfx))
        if P["stamp"] == 4:
            e("s_memrealtime s[%d:%d]" % (S_DBG, S_DBG + 1))
            e("s_add_u32 s%d, s%d, 4" % (S_DBG + 2, S_DBG + 2))
            e("s_waitcnt lgkmcnt(0)")
            e("v_mov_b32 v%d, s%d" % (V_T2, S_DBG))
            e("s_mov_b64 exec, 1")
            e("buffer_store_dword v%d, off, s[%d:%d], s%d" % (V_T2, S_WS, S_WS + 3, S_DBG + 2))
            e("s_mov_b64 exec, -1")
        if P["stamp"] == 5:
            e("s_memrealtime s[%d:%d]" % (S_DBG, S_DBG + 1))
            e("s_add_u32 m0, m0, 1")
            e("s_waitcnt lgkmcnt(0)")
            e("v_writelane_b32 v%d, s%d, m0" % (NVGPR + (1 if kind == "V" else 0), S_DBG))
            if to_v:
                e("s_mov_b32 m0, -1")
        tile_addr(nkind)
        issue_params(nkind)

    def compute(k, kind, form="c"):
        for l, _ in slots(k, form):
            q, c = l // 3, l % 3
            base = V_RING + l * 4
            for r in range(4):
                e("v_cvt_f32_i32 v%d, v%d" % (base + r, base + r))
            if kind == "K":
                s = V_S + q
                w = V_W2 if AB and q & 1 else V_W
                for r in range(4):
                    if c == 0 and r == 0:
                        e("v_mul_f32 v%d, v%d, v%d" % (s, base, w))
                    else:
                        e("v_fmac_f32 v%d, v%d, v%d" % (s, base + r, w + 4 * c + r))
                if c == 2:
                    e.defer(["v_add_f32_dpp v%d, v%d, v%d row_ror:%d row_mask:0xf bank_mask:0xf" % (s, s, s, kk)
                             for kk in (8, 4, 2)] +
                            ["v_add_f32_dpp v%d, v%d, v%d row_ror:1 row_mask:0xf bank_mask:0x%x" %
                             (V_D + (q & 1), s, s, 1 << (q >> 1))])
            else:
                for r in range(4):
                    e("v_fmac_f32_dpp v%d, v%d, v%d row_newbcast:%d row_mask:0xf bank_mask:0xf" %
                      (V_ACC + 4 * c + r, V_PV, base + r, q))
        e.flush()

    EFS = []

    def finish(kind, to_v):
        if kind == "K":
            e("s_mov_b64 exec, s[%d:%d]" % (S_STM, S_STM + 1))
            if AB:
                e("ds_write2_b32 v%d, v%d, v%d offset1:6" % (V_LB0, V_D, V_D + 1))
            else:
                e("ds_write_b64 v%d, v[%d:%d]" % (V_LB0, V_D, V_D + 1))
            e("s_mov_b64 exec, -1")
            if not to_v:
                if P["ef"]:
                    tag = "L_ef%d" % len(EFS)
                    EFS.append(tag)
                    e("s_and_b32 s%d, s%d, 15" % (S_T, S_I))
                    e("s_cbranch_scc0 %s" % tag)
                    e.lines.append(tag + "r:")
                if AB:
                    e("v_add_u32 v%d, s%d, v%d" % (V_LB0, S_INC, V_LB0))
                    e("s_sub_u32 s%d, 96, s%d" % (S_INC, S_INC))
                else:
                    e("v_add_u32 v%d, 48, v%d" % (V_LB0, V_LB0))
                compute_w()
        if kind == "V" or to_v:
            e("s_waitcnt lgkmcnt(0)")
            e("v_mov_b32 v%d, v%d" % (V_PV, V_PVN))

    ELS = []

    def elect(k, kind, lo=0):
        if P["fc"] == 4 and kind == "V" and k == max(P["elk"], lo):
            tag = "L_el%d" % len(ELS)
            ELS.append(tag)
            e("s_cmp_eq_u32 s%d, %d" % (S_I, NT))
            e("s_cbranch_scc1 %s" % tag)
            e.lines.append(tag + "r:")

    def body(kind, to_v=False, first=False):
        nkind = "V" if to_v else kind
        for k in range(NG):
            ov = OV[k] if not first else 0
            if ov:
                i = e.vm.index("g%d" % k) + GR[k] - ov
                e("s_waitcnt vmcnt(%d)" % (len(e.vm) - i))
                e.vm = e.vm[i:]
            else:
                e.wait_tag("g%d" % k)
            if PS and not first and (P["pn"] >> k) & 1:
                pair_sync((k + 1) % NG + (256 if (kind, nkind)[k == NG - 1] == "V" else 0))
            if k + 1 < NG:
                if not first:
                    issue_group(k + 1, kind)
            else:
                issue_group(0, nkind)
            if ov:
                e("s_waitcnt vmcnt(%d)" % (len(e.vm) - ov))
                e.vm = e.vm[ov:]
            if k == NG - 2:
                advance(kind, to_v, not first)
            elect(k, kind, NG - 2)
            compute(k, kind)
        finish(kind, to_v)

    DKV = {}

    def body_deep(mode):
        if mode == 3:
            advance("V", False, False)
        for k in range(NG):
            i = e.vm.index("g%d" % k) + len(slots(k, "d"))
            e("s_waitcnt vmcnt(%d)" % (len(e.vm) - i))
            e.vm = e.vm[i:]
            if P["tt"] and k < 2:
                e.lines.append("L_dk%d:" % k)
                DKV[k] = list(e.vm)
            if mode == 2:
                issue_group((k + 2) % NG, "V")
                if k == NG - 3:
                    advance("V", False, False)
            elect(k, "V")
            compute(k, "V", "d")
            if mode == 3:
                issue_group(k, "V", "" if P["xkp"] & 256 else pol, "d")
        finish("V", False)

    def body_boost(kind):
        if PS:
            publish(4 + (256 if kind == "V" else 0))
        if SK:
            issue_group(1, kind, form="late")
        for k in range(1, NG):
            issue_group(k, kind, form="d")
        e("s_sub_u32 s%d, s%d, 1" % (S_BO, S_BO))
        if P["stamp"] == 5:
            e("s_add_u32 s%d, s%d, 256" % (S_NBO, S_NBO))
        advance(kind, False, "B")
        for k in range(NG):
            e.wait_tag("g%d" % k)
            if k == NG - 1 and not P["be"]:
                issue_group(0, kind)
            elect(k, kind)
            compute(k, kind, "d")
            if k == 0 and P["be"]:
                issue_group(0, kind)
        finish(kind, False)

    def lds_inc(off, vz, vt):
        e("v_mov_b32 v%d, 1" % vt)
        e("s_mov_b64 exec, 1")
        e("ds_add_u32 v%d, v%d offset:%d" % (vz, vt, off))
        e("s_mov_b64 exec, -1")

    if P["prio"]:
        e("s_setprio %d" % P["prio"])
    e("v_lshrrev_b32 v%d, 4, v%d" % (V_T, V_T1))
    e("v_and_b32 v%d, 15, v%d" % (V_T2, V_T1))
    e("v_lshlrev_b32 v%d, 4, v%d" % (V_J16, V_T2))
    e("v_lshlrev_b32 v%d, 3, v%d" % (V_J8, V_T2))
    e("v_lshlrev_b32 v%d, 7, v%d" % (V_T128, V_T))
    if P8 and P8[:2] != [3, 4]:
        dr = [((1 << p) ^ {7: 4, 8: 1, 9: 2}.get(p, 0)) << 4 for p in P8[:2]]
        e("v_and_b32 v%d, 1, v%d" % (V_T0, V_T))
        e("v_mul_u32_u24 v%d, 0x%x, v%d" % (V_T128, dr[0], V_T0))
        e("v_lshrrev_b32 v%d, 1, v%d" % (V_T0, V_T))
        e("v_mul_u32_u24 v%d, 0x%x, v%d" % (V_T0, dr[1], V_T0))
        e("v_xor_b32 v%d, v%d, v%d" % (V_T128, V_T128, V_T0))
    e("v_and_b32 v%d, 0x70, v0" % V_TMX)
    e("v_xor_b32 v%d, v%d, v%d" % (V_TMX, V_TMX, V_T128))
    e("v_mov_b32 v%d, v%d" % (V_TM, V_TMX))
    if P["h4"]:
        e("v_and_b32 v%d, 0x%x, v%d" % (V_T128, 0xffffff8f | (P["h4"] << 4), V_TMX))
    e("s_mov_b32 s%d, %d" % (S_768, ROWB))
    e("s_mov_b32 s%d, %d" % (S_384, DH * 2))
    e("s_mov_b32 s%d, 0xaaaaaaab" % S_MAGIC)
    e("v_mov_b32 v%d, 0xc0000000" % V_BIG)
    e("s_lshl_b32 s%d, s%d, 6" % (S_HB, S_G))
    if P["am"] == 3:
        for i, c in enumerate(P["xm"].split("-")):
            if int(c):
                e("s_bitcmp1_b32 s%d, %d" % (S_G, i))
                e("s_cselect_b32 s%d, %d, 0" % (S_T, int(c)))
                e("s_xor_b32 s%d, s%d, s%d" % (S_HB, S_HB, S_T))
    for i in range(2 if CM else 0):
        e("s_bitcmp1_b32 s%d, %d" % (S_WAVE, i))
        e("s_cselect_b32 s%d, %d, 0" % (S_T, CM[i]))
        e("s_xor_b32 s%d, s%d, s%d" % (S_HB, S_HB, S_T))
    e("s_mov_b32 s%d, s%d" % (S_N, S_NB))
    if P["hg"]:
        e("v_mov_b32 v%d, v%d" % (V_TM, V_T128))
        e("s_lshl_b32 s%d, s%d, 1" % (S_T, S_G))
        e("s_and_b32 s%d, s%d, 2" % (S_T, S_T))
        e("s_xor_b32 s%d, s%d, s%d" % (S_N, S_N, S_T))
    e("s_mov_b32 s%d, s%d" % (S_CI, S_WAVE))
    tile_addr("K")
    SS = P["ss"]
    EB = P["eb"]
    if SS:
        e("s_memrealtime s[84:85]")
    if EB == 3:
        e("s_barrier")
    e("s_waitcnt lgkmcnt(0)")
    if SS:
        e("s_memrealtime s[86:87]")
    if EB == 2:
        e("s_barrier")
    if EB == 4:
        e("s_cmp_ge_u32 s%d, %d" % (S_WAVE, NW))
        e("s_barrier")
        e("s_cbranch_scc1 L_helper")
    e("s_mov_b32 s%d, 0" % S_I)
    if P["xb"] & 2:
        srd(76, 72, H * NGRP * DH * 2)
    if P["pfi"]:
        srd(S_Q, 64, H * DH * 2)
        load_q(S_I, True)
        srd(S_KS, 70, H * NGRP * DH * 2)
        issue_params("K")
    srd(S_K, 66, H * HEADB)
    issue_group(0, "K")
    if EB == 1:
        e("s_barrier")
    if not P["pfi"]:
        srd(S_Q, 64, H * DH * 2)
        load_q(S_I, True)
        srd(S_KS, 70, H * NGRP * DH * 2)
        issue_params("K")
    if P["ds"]:
        for k in range(1, NG):
            issue_group(k, "K")
    if SS:
        e("s_memrealtime s[88:89]")
    srd(S_V, 68, H * HEADB)
    if P["stamp"] == 6:
        srd(S_WS, 80, 256)
    elif P["stamp"]:
        srd(S_WS, 82, 0x8000000)
    if P["stamp"] == 5:
        e("s_mov_b32 m0, -1")
    if P["stamp"] in (4, 5):
        e("s_mul_i32 s%d, s2, %d" % (S_DBG + 2, NW))
        e("s_add_u32 s%d, s%d, s%d" % (S_DBG + 2, S_DBG + 2, S_WAVE))
        e("s_lshl_b32 s%d, s%d, 9" % (S_DBG + 2, S_DBG + 2))
        e("s_add_u32 s%d, s%d, 0x4010000" % (S_DBG + 2, S_DBG + 2))
    if PS:
        e("v_lshrrev_b32 v%d, 6, v0" % V_PSW)
        e("v_lshlrev_b32 v%d, 2, v%d" % (V_PSW, V_PSW))
        e("v_xor_b32 v%d, %d, v%d" % (V_PSR, 8 if PS == 1 else 4, V_PSW))
    e("v_lshlrev_b32 v%d, 5, v%d" % (V_T1, V_T))
    e("v_bfe_u32 v%d, v0, 4, 3" % V_LB0)
    e("v_mul_u32_u24 v%d, s%d, v%d" % (V_LB0, S_768, V_LB0))
    e("v_lshl_add_u32 v%d, v%d, %d, v%d" % (V_LB0, V_T2, 0 if AB else 1, V_LB0))
    e("s_lshr_b32 s%d, s%d, 1" % (S_T, S_WAVE))
    e("s_mul_i32 s%d, s%d, 24" % (S_T, S_T))
    if AB:
        e("s_sub_u32 s%d, 60, s%d" % (S_INC, S_T))
        e("s_lshr_b32 s%d, s%d, 1" % (S_T, S_T))
    e("s_add_u32 s%d, s%d, %d" % (S_T, S_T, L_LG))
    e("v_add_u32 v%d, s%d, v%d" % (V_LB0, S_T, V_LB0))
    if AB:
        e("v_and_b32 v%d, 1, v%d" % (V_PB0, V_T2))
        e("v_lshl_add_u32 v%d, v%d, 8, v%d" % (V_T1, V_PB0, V_T1))
        e("v_bfe_u32 v%d, v%d, 1, 2" % (V_PB0, V_T2))
    else:
        e("v_and_b32 v%d, 7, v%d" % (V_PB0, V_T2))
    e("v_lshl_add_u32 v%d, v%d, 2, v%d" % (V_PB0, V_PB0, V_T1))
    e("v_add_u32 v%d, %d, v%d" % (V_PB0, L_PV, V_PB0))
    e("v_lshlrev_b32 v%d, 2, v%d" % (V_DO, V_T))
    e("v_add_u32 v%d, v%d, v%d" % (V_DO, V_J16, V_DO))
    e("s_mul_i32 s%d, s%d, %d" % (S_T, S_WAVE, ROWB))
    e("s_add_u32 s%d, s%d, %d" % (S_T, S_T, L_ACC))
    e("v_add_u32 v%d, s%d, v%d" % (V_DO, S_T, V_DO))
    e("v_mov_b32 v%d, 0" % V_Z)
    e("v_mov_b32 v%d, 0" % V_D)
    e("v_mov_b32 v%d, 0" % (V_D + 1))
    e("s_mov_b32 s%d, 0x01110111" % S_STM)
    e("s_mov_b32 s%d, 0x01110111" % (S_STM + 1))
    ev = (1 << TRG1) | (1 << N0) | (3 << 16) | (3 << 32) | (((1 << TA) | (1 << TB)) * 0x100010001)
    set_masks(ev, CPK)
    if BC:
        e("s_mov_b32 s%d, %d" % (S_BO, P["ib"] & 15))
        e("s_mov_b32 s%d, 0" % S_NBO)
        e("s_mov_b32 s%d, 0" % S_LDC)
        e("s_mov_b32 s%d, %d" % (S_CPA, L_TM))
    for i in range(12):
        e("v_mov_b32 v%d, 0" % (V_ACC + i))
    if SS:
        e("s_memrealtime s[90:91]")
    if not EB:
        e("s_barrier")
    if SS:
        e("s_memrealtime s[92:93]")
        e("s_waitcnt vmcnt(23)")
        e("s_memrealtime s[94:95]")
        e("s_waitcnt vmcnt(18)")
        e("s_memrealtime s[96:97]")
    compute_w()
    if SS:
        e("s_memrealtime s[98:99]")
        e("s_waitcnt lgkmcnt(0)")
        for k in range(8):
            e("v_writelane_b32 v%d, s%d, %d" % (NVGPR + 1, 84 + 2 * k, 48 + k))
    steady = ["g0" if mk is None else "g0m" for l, mk in slots(0, "s")]
    if P["fb"]:
        advance("K", False, False)
        for k in range(NG):
            if "g%d" % k in e.vm:
                i = e.vm.index("g%d" % k) + GR[k]
                e("s_waitcnt vmcnt(%d)" % (len(e.vm) - i))
                e.vm = e.vm[i:]
            compute(k, "K")
            if k == P["fb"] - 1:
                issue_group(0, "K")
        finish("K", False)
        assert e.vm == steady, (e.vm, steady)
    elif P["ds"]:
        body("K", first=True)
    if P["ib"] & 16:
        e("s_branch L_kchk")
    e.vm = list(steady)
    e.lines.append(".p2align 6")
    e.label("L_kloop")
    body("K")
    assert e.vm == steady, (e.vm, steady)
    if BC:
        e.label("L_kchk")
        e("s_cmp_lg_u32 s%d, 0" % S_BO)
        e("s_cbranch_scc1 L_kboost")
        e.label("L_kchk2")
    e("s_cmp_lg_u32 s%d, %d" % (S_I, NT - 1))
    e("s_cbranch_scc1 L_kloop")
    body("K", True)
    lds_inc(L_CF + 8, V_Z, V_T1)
    if P["stamp"] == 1:
        e("s_memrealtime s[%d:%d]" % (S_DBG, S_DBG + 1))
    e.lines.append(".p2align 6")
    e.label("L_vloop")
    body("V")
    assert e.vm == steady, (e.vm, steady)
    if BC:
        e.label("L_vchk")
    if P["td"] or P["at"]:
        e("s_cmp_eq_u32 s%d, s%d" % (S_I, S_TD))
        e("s_cbranch_scc1 %s" % ("L_tail0" if P["tt"] else "L_deep"))
    if BC:
        e("s_cmp_lg_u32 s%d, 0" % S_BO)
        e("s_cbranch_scc1 L_vboost")
    e("s_and_b32 s%d, s%d, 15" % (S_T, S_I))
    e("s_cbranch_scc1 L_vloop")
    e.label("L_vend")
    for c in range(3):
        a = V_ACC + 4 * c
        e("v_permlane32_swap_b32 v%d, v%d" % (a, a + 2))
        e("v_permlane32_swap_b32 v%d, v%d" % (a + 1, a + 3))
    for c in range(3):
        a = V_ACC + 4 * c
        e("v_add_f32 v%d, v%d, v%d" % (a, a, a + 2))
        e("v_add_f32 v%d, v%d, v%d" % (a + 1, a + 1, a + 3))
    for c in range(3):
        a = V_ACC + 4 * c
        e("v_permlane16_swap_b32 v%d, v%d" % (a, a + 1))
    e("s_lshr_b32 s%d, s%d, 2" % (S_T, S_I))
    e("v_mov_b32 v%d, s%d" % (V_T0, S_T))
    for c in range(3):
        a = V_ACC + 4 * c
        e("v_add_f32 v%d, v%d, v%d" % (a, a, a + 1))
        e("ds_write_b32 v%d, v%d offset:%d" % (V_DO, a, c * 256))
    lds_inc(L_CA - 4, V_T0, V_T1)
    e("v_add_u32 v%d, %d, v%d" % (V_DO, NW * ROWB, V_DO))
    for i in range(12):
        e("v_mov_b32 v%d, 0" % (V_ACC + i))
    if BC:
        e("s_cmp_lg_u32 s%d, 0" % S_BO)
        e("s_cbranch_scc1 L_vboost2")
        e.label("L_vend2")
    e("s_cmp_lg_u32 s%d, %d" % (S_I, NT))
    e("s_cbranch_scc1 L_vloop")
    if P["stamp"] == 5 and BC:
        e("s_or_b32 s%d, s%d, s%d" % (S_LDC, S_LDC, S_NBO))
    if P["stamp"] == 6:
        e("s_memrealtime s[%d:%d]" % (S_T + 2, S_T + 3))
        e("s_not_b32 s%d, s%d" % (S_T, S_ST))
        e("v_mov_b32 v%d, s%d" % (V_ACC, S_T))
        e("s_waitcnt lgkmcnt(0)")
        e("v_mov_b32 v%d, s%d" % (V_ACC + 1, S_T + 2))
        e("s_mov_b64 exec, 1")
        e("s_cmp_lg_u32 s%d, 0" % S_WAVE)
        e("s_cbranch_scc1 L_exit1")
        e("buffer_atomic_umax v%d, off, s[%d:%d], 0 offset:32" % (V_ACC, S_WS, S_WS + 3))
        e("buffer_atomic_umax v%d, off, s[%d:%d], 0 offset:36" % (V_ACC + 1, S_WS, S_WS + 3))
    elif P["stamp"]:
        e("s_memrealtime s[%d:%d]" % (S_T + 2, S_T + 3))
        e("s_getreg_b32 s%d, hwreg(HW_REG_XCC_ID)" % (S_T + 4))
        e("s_waitcnt lgkmcnt(0)")
        e("v_mov_b32 v%d, s%d" % (V_ACC + 0, S_ST))
        e("v_mov_b32 v%d, s%d" % (V_ACC + 1, S_T + 2))
        e("v_mov_b32 v%d, s%d" % (V_ACC + 2, S_T + 4))
        e("v_mov_b32 v%d, s%d" % (V_ACC + 3, S_LDC if P["stamp"] == 5 else S_DBG))
        e("s_mul_i32 s%d, s2, %d" % (S_T, NW))
        e("s_add_u32 s%d, s%d, s%d" % (S_T, S_T, S_WAVE))
        e("s_lshl_b32 s%d, s%d, 4" % (S_T, S_T))
        e("s_add_u32 s%d, s%d, 0x4000000" % (S_T, S_T))
        e("buffer_store_dwordx4 v[%d:%d], v%d, s[%d:%d], s%d offen" % (V_ACC, V_ACC + 3, V_Z, S_WS, S_WS + 3, S_T))
        if P["stamp"] == 5:
            e("v_and_b32 v%d, 63, v0" % V_T0)
            e("v_lshlrev_b32 v%d, 2, v%d" % (V_T0, V_T0))
            e("s_mov_b32 exec_hi, 0xffff")
            e("buffer_store_dword v%d, v%d, s[%d:%d], s%d offen offset:4" % (NVGPR, V_T0, S_WS, S_WS + 3, S_DBG + 2))
            e("s_mov_b32 exec_hi, -1")
            e("buffer_store_dword v%d, v%d, s[%d:%d], s%d offen offset:196" % (NVGPR + 1, V_T0, S_WS, S_WS + 3, S_DBG + 2))
    e.lines.append("L_exit1:")
    e("s_endpgm")

    if P["td"] or P["at"]:
        e.label("L_deep")
        e.vm = list(steady)
        if PS:
            publish(0, 0x7fffffff)
        if SK:
            issue_group(1, "V", form="late")
            e.vm = ["g0"] * len(slots(0, "d"))
        for k in range(1, P["tdm"] if NG == 3 else NG):
            issue_group(k, "V", form="d")
        deep = list(e.vm)
        e.lines.append(".p2align 6")
        e.label("L_dloop")
        body_deep(P["tdm"])
        assert e.vm == deep, (e.vm, deep)
        e("s_cmp_lg_u32 s%d, %d" % (S_I, NT))
        e("s_cbranch_scc1 L_dloop")
        e("s_branch L_vend")
        if P["tt"]:
            assert P["tdm"] == 3 and NG == 3 and BC

            def tcheck(k, dst):
                e("s_waitcnt lgkmcnt(0)")
                e("s_sub_u32 s%d, s%d, s%d" % (S_TW, S_TW, S_TH))
                e("s_add_u32 s%d, s%d, %d" % (S_TH, S_TH, P["d3"]))
                if P["stamp"] == 5:
                    e("s_add_u32 s%d, s%d, 1" % (S_LDC, S_LDC))
                e("s_cmp_ge_i32 s%d, 0" % S_TW)
                e("s_cbranch_scc1 %s" % dst)
            e.label("L_tail0")
            e("s_cmp_lg_u32 s%d, 0" % S_TT)
            e("s_cbranch_scc1 L_deep")
            e.lines.append(".p2align 6")
            e.label("L_tail")
            e.vm = list(steady)
            e("s_memrealtime s[%d:%d]" % (S_TW, S_TW + 1))
            tcheck(0, "L_deep")
            e.wait_tag("g0")
            e("s_memrealtime s[%d:%d]" % (S_TW, S_TW + 1))
            issue_group(1, "V")
            tcheck(1, "L_dB")
            vb = list(e.vm)
            compute(0, "V")
            e.wait_tag("g1")
            e("s_memrealtime s[%d:%d]" % (S_TW, S_TW + 1))
            issue_group(2, "V")
            advance("V", False, False)
            tcheck(2, "L_dC")
            vc = list(e.vm)
            elect(1, "V", 1)
            compute(1, "V")
            e.wait_tag("g2")
            issue_group(0, "V")
            elect(2, "V", 1)
            compute(2, "V")
            finish("V", False)
            assert e.vm == steady
            e("s_cmp_lg_u32 s%d, %d" % (S_I, NT))
            e("s_cbranch_scc1 L_tail")
            e("s_branch L_vend")
            e.label("L_dB")
            e.vm = vb
            issue_group(2, "V")
            advance("V", False, False)
            assert e.vm == DKV[0]
            e("s_branch L_dk0")
            e.label("L_dC")
            e.vm = vc
            issue_group(0, "V")
            assert e.vm == DKV[1]
            e("s_branch L_dk1")

    if BC:
        e.label("L_kboost")
        e("s_cmp_eq_u32 s%d, %d" % (S_I, NT - 1))
        e("s_cbranch_scc1 L_kchk2")
        e.vm = list(steady)
        body_boost("K")
        assert e.vm == steady, (e.vm, steady)
        e("s_branch L_kchk")
        e.label("L_vboost")
        e("s_and_b32 s%d, s%d, 15" % (S_T, S_I))
        e("s_cbranch_scc0 L_vend")
        e.label("L_vboost2")
        e("s_cmp_eq_u32 s%d, %d" % (S_I, NT))
        e("s_cbranch_scc1 L_vend2")
        body_boost("V")
        assert e.vm == steady, (e.vm, steady)
        e("s_branch L_vchk")

    for tag in EFS:
        e.label(tag)
        e("s_lshr_b32 s%d, s%d, 2" % (S_T, S_I))
        e("v_mov_b32 v%d, s%d" % (V_T0, S_T))
        lds_inc(L_CF - 4, V_T0, V_T1)
        e("s_branch %sr" % tag)
    for tag in ELS:
        e.label(tag)
        lds_inc(L_EL, V_Z, V_T1)
        e("s_branch %sr" % tag)

    def pace_events(kind, x):
        e("s_bitcmp1_b64 s[%d:%d], s%d" % (S_MP, S_MP + 1, S_I))
        e("s_cbranch_scc0 L_pa%s%s" % (kind, x))
        e("s_memrealtime s[%d:%d]" % (S_TW, S_TW + 1))
        e("s_mov_b32 s%d, s%d" % (S_BP, S_BO))
        lds_inc(L_TC, V_Z, V_T1)
        e.label("L_pa%s%s" % (kind, x))
        e("s_bitcmp1_b64 s[%d:%d], s%d" % (S_MG, S_MG + 1, S_I))
        e("s_cbranch_scc0 L_pb%s%s" % (kind, x))
        lds_inc(L_TC, V_Z, V_T1)
        e.label("L_pb%s%s" % (kind, x))
        e("s_bitcmp1_b64 s[%d:%d], s%d" % (S_MR, S_MR + 1, S_I))
        e("s_cbranch_scc0 L_pc%s%s" % (kind, x))
        e("v_mov_b32 v%d, s%d" % (V_T1, S_CPA))
        e("ds_read_b32 v%d, v%d" % (V_T0, V_T1))
        lds_inc(L_TC, V_Z, V_T1)
        e("s_add_u32 s%d, s%d, 4" % (S_CPA, S_CPA))
        e("s_waitcnt lgkmcnt(0)")
        e("v_readfirstlane_b32 s%d, v%d" % (S_T, V_T0))
        e("s_cmp_eq_u32 s%d, 0" % S_T)
        e("s_cbranch_scc1 L_pc%s%s" % (kind, x))
        if kind == "V" and P["tt"]:
            e("s_cmp_eq_u32 s%d, %d" % (S_I, P["te"]))
            e("s_cbranch_scc0 L_pe%s" % x)
            e("s_add_u32 s%d, s%d, %d" % (S_TH, S_T, P["tx"] - 3 * (NT - P["te"]) * P["d3"]))
            e("s_mov_b32 s%d, %d" % (S_TD, P["te"]))
            e("s_mov_b32 s%d, 0" % S_TT)
            e("s_mov_b32 s%d, 0" % S_BO)
            e("s_branch L_pc%s%s" % (kind, x))
            e.label("L_pe%s" % x)
        e("s_sub_u32 s%d, s%d, s%d" % (S_T, S_TW, S_T))
        e("s_max_i32 s%d, s%d, -4096" % (S_T, S_T))
        e("s_min_i32 s%d, s%d, 4096" % (S_T, S_T))
        if kind == "V" and not P["tt"]:
            e("s_cmp_eq_u32 s%d, %d" % (S_I, P["te"]))
            e("s_cbranch_scc0 L_pd%s" % x)
            e("s_mul_i32 s%d, s%d, %d" % (S_T, S_T, P["ka"]))
            e("s_add_u32 s%d, s%d, %d" % (S_T, S_T, P["kb"]))
            e("s_ashr_i32 s%d, s%d, 10" % (S_T, S_T))
            e("s_max_i32 s%d, s%d, %d" % (S_T, S_T, P["dmin"]))
            e("s_min_i32 s%d, s%d, %d" % (S_T, S_T, min(P["dmax"], NT - P["te"])))
            e("s_sub_u32 s%d, %d, s%d" % (S_TD, NT, S_T))
            e("s_cmp_eq_u32 s%d, %d" % (S_TD, NT))
            e("s_cselect_b32 s%d, 255, s%d" % (S_TD, S_TD))
            e("s_mov_b32 s%d, 0" % S_BO)
            if P["stamp"] == 5:
                e("s_mov_b32 s%d, s%d" % (S_LDC, S_TD))
            e("s_branch L_pc%s%s" % (kind, x))
            e.label("L_pd%s" % x)
        e("s_mul_i32 s%d, s%d, %d" % (S_T, S_T, P["ka2"]))
        e("s_add_u32 s%d, s%d, %d" % (S_T, S_T, P["kb2"]))
        e("s_ashr_i32 s%d, s%d, 10" % (S_T, S_T))
        e("s_sub_u32 s%d, s%d, s%d" % (S_T, S_T, S_BP))
        e("s_add_u32 s%d, s%d, s%d" % (S_T, S_T, S_BO))
        e("s_max_i32 s%d, s%d, 0" % (S_T, S_T))
        e("s_min_i32 s%d, s%d, %d" % (S_BO, S_T, P["bmax"]))
        e.label("L_pc%s%s" % (kind, x))
        e("s_bitcmp1_b64 s[%d:%d], s%d" % (S_MO, S_MO + 1, S_I))
        e("s_cbranch_scc0 L_evret%s%s" % (kind, x))

    for x in (("", "B") if BC else ("",)):
        e.label("L_evK" + x)
        if BC:
            pace_events("K", x)
        e("s_and_b32 s%d, s%d, 15" % (S_T, S_I))
        e("s_cbranch_scc0 L_evK2" + x)
        e("s_cmp_eq_u32 s%d, %d" % (S_I, N0))
        e("s_cbranch_scc1 L_evK2" + x)
        e("s_lshr_b32 s%d, s%d, 2" % (S_T + 1, S_I))
        e("s_andn2_b32 s%d, s%d, 3" % (S_T + 1, S_T + 1))
        e("s_add_u32 s%d, s%d, %d" % (S_T + 1, S_T + 1, 236 if P["ef"] else L_CF - 4))
        e("s_cmp_eq_u32 s%d, 1" % S_T)
        e("s_cselect_b32 s%d, s%d, %d" % (S_T, S_T + 1, L_EV + 4))
        e("s_cselect_b32 s%d, %d, 0" % (S_T + 1, PHI - 768))
        e("v_add_u32 v%d, s%d, v%d" % (V_LB0, S_T + 1, V_LB0))
        e("s_cmp_eq_u32 s%d, %d" % (S_I, TRG1))
        e("s_cselect_b32 s%d, %d, s%d" % (S_T, L_EV, S_T))
        e("v_mov_b32 v%d, s%d" % (V_T0, S_T))
        lds_inc(0, V_T0, V_T1)
        e("s_branch L_evretK" + x)
        e.label("L_evK2" + x)
        if P["stamp"] == 2:
            e("s_cmp_eq_u32 s%d, %d" % (S_I, N0))
            e("s_cbranch_scc0 L_ns2" + x)
            e("s_memrealtime s[%d:%d]" % (S_DBG, S_DBG + 1))
            e.label("L_ns2" + x)
        if P["sg"]:
            assert P["stamp"]
            e("s_cmp_eq_u32 s%d, %d" % (S_I, N0))
            e("s_cbranch_scc0 L_sgx" + x)
            e.label("L_sgl" + x)
            e("s_memrealtime s[%d:%d]" % (S_T + 4, S_T + 5))
            e("s_waitcnt lgkmcnt(0)")
            e("s_sub_u32 s%d, s%d, s%d" % (S_T + 4, S_T + 4, S_ST))
            e("s_cmp_lt_i32 s%d, %d" % (S_T + 4, P["sg"]))
            e("s_cbranch_scc1 L_sgl" + x)
            e.label("L_sgx" + x)
        get_table("K", "tk" + x)
        if P["stamp"] == 3:
            e("s_cmp_eq_u32 s%d, %d" % (S_I, N0))
            e("s_cbranch_scc0 L_evretK")
            e("s_memrealtime s[%d:%d]" % (S_DBG, S_DBG + 1))
        e("s_branch L_evretK" + x)
        e.label("L_evV" + x)
        if BC:
            pace_events("V", x)
        elif P["at"]:
            e("s_and_b32 s%d, s%d, 15" % (S_T, S_I))
            e("s_cbranch_scc0 L_evV2")
            e("s_cmp_eq_u32 s%d, %d" % (S_I, P["te"]))
            e("s_cbranch_scc1 L_evV3")
            lds_inc(L_TC, V_Z, V_T1)
            e("s_branch L_evretV")
            e.label("L_evV3")
            e("ds_read_b32 v%d, v%d offset:%d" % (V_T0, V_Z, L_TD))
            e("s_waitcnt lgkmcnt(0)")
            e("v_readfirstlane_b32 s%d, v%d" % (S_T, V_T0))
            e("s_cmp_eq_u32 s%d, 0" % S_T)
            e("s_cselect_b32 s%d, s%d, s%d" % (S_TD, S_TD, S_T))
            if P["stamp"] == 5:
                e("s_mov_b32 s%d, s%d" % (S_LDC, S_T))
            e("s_branch L_evretV")
            e.label("L_evV2")
        get_table("V", "tv2" + x)
        e("s_branch L_evretV" + x)

    PG = S_G; PM = S_M
    PNB = 5; PP = 6; PBK = 7
    PB = 8; PWS = 12; PDB = 16
    PO = 20; PFL = 21; PBASE = 22; PPR = 90
    PD = 24
    POF = 32
    PT = 40
    PMN = 44; PJ = 45; PRN = 46; PNR = 47
    PE = 48
    PRB = 56; PACC = 58; PGL = 59; PSP = 60; PPH = 61; PSG = 62; PG0 = 63
    PDC = 84
    PS2 = 92; PS3 = 96
    HL = 1; HZ = 2; HW = 3; HA = 4; HB_ = 5; HC = 6; HD = 7; HK = 8; HV = 9; HE = 10; HF = 11; HR = 12; HG = 13
    HN = 14; HT2 = 15
    HX = 16
    BIAS = 65536
    e.wr = {}; e.tr = {}
    e.label("L_helper")
    PST = 100
    if P["pt"] or P["pd"]:
        e("s_memrealtime s[%d:%d]" % (PST, PST + 1))
    e("s_sub_u32 s%d, s%d, %d" % (PP, S_WAVE, NW))
    e("s_mov_b32 s%d, s%d" % (PNB, S_NB))
    e("v_and_b32 v%d, 63, v0" % HL)
    e("v_mov_b32 v%d, 0" % HZ)
    e("s_mul_i32 s%d, s%d, %d" % (PGL, PG, 8 * FSTR))
    e("s_add_u32 s%d, s%d, %d" % (PGL, PGL, WS_G))
    if EB and EB != 4:
        e("s_cmp_lg_u32 s%d, 0" % PP)
        e("s_cbranch_scc1 L_hbar")
        e("v_lshlrev_b32 v%d, 2, v%d" % (HB_, HL))
        e("ds_write_b32 v%d, v%d" % (HB_, HZ))
        e("s_waitcnt lgkmcnt(0)")
        e.label("L_hbar")
        e("s_barrier")
    if BC:
        e("s_cmp_eq_u32 s%d, 3" % PP)
        e("s_cbranch_scc1 L_h3")
    LB = P["lb"]
    PA = PPH
    PKB = 91
    VLN = 20 if LB else 10
    ELN = 256 + VLN - 21
    if LB:
        assert P["sw"] and P["dc"] and P["vw"]
        e("s_mul_i32 s%d, s%d, 25" % (PE, PP))
        e("s_sub_u32 s%d, s%d, 22" % (PE, PE))
        e("s_cmp_lt_i32 s%d, s%d" % (PG, PE))
        e("s_cselect_b32 s%d, 1, 0" % PPR)
        e("s_cbranch_scc0 L_noprobe1")
        e("s_add_u32 s%d, s%d, 2" % (PE + 1, PG))
        e("s_mul_i32 s%d, s%d, 205" % (PE, PE + 1))
        e("s_lshr_b32 s%d, s%d, 10" % (PE, PE))
        e("s_mul_i32 s%d, s%d, 5" % (PBK, PE))
        e("s_sub_u32 s%d, s%d, s%d" % (PBK, PE + 1, PBK))
        e("s_add_u32 s%d, s%d, 1" % (PBK, PBK))
        e("s_lshl_b32 s%d, s%d, 1" % (PE + 1, PG))
        e("s_add_u32 s%d, s%d, s%d" % (PE + 1, PE + 1, PP))
        e("s_sub_u32 s%d, s%d, 1" % (PE + 1, PE + 1))
        e("s_cmp_lt_u32 s%d, 3" % PG)
        e("s_cselect_b32 s%d, 0, s%d" % (PBK, PBK))
        e("s_cselect_b32 s%d, s%d, s%d" % (PE + 1, PE + 1, PE))
    else:
        e("s_mul_i32 s%d, s%d, 10" % (PE, PP))
        e("s_sub_u32 s%d, s%d, 7" % (PE, PE))
        e("s_cmp_lt_i32 s%d, s%d" % (PG, PE))
        e("s_cselect_b32 s%d, 1, 0" % PPR)
        e("s_cbranch_scc0 L_noprobe1")
        e("s_max_u32 s%d, s%d, 1" % (PBK, PG))
        e("s_sub_u32 s%d, s%d, 1" % (PBK, PBK))
        e("s_lshr_b32 s%d, s%d, 1" % (PBK, PBK))
        e("s_lshl_b32 s%d, s%d, 1" % (PE + 1, PG))
        e("s_add_u32 s%d, s%d, s%d" % (PE + 1, PE + 1, PP))
        e("s_sub_u32 s%d, s%d, 1" % (PE + 1, PE + 1))
        e("s_bitcmp1_b32 s%d, 0" % PG)
        e("s_cselect_b32 s%d, 1, 4" % PE)
        e("s_cmp_eq_u32 s%d, 0" % PBK)
        e("s_cselect_b32 s%d, s%d, s%d" % (PE + 1, PE + 1, PE))
    e("s_and_b32 s%d, s%d, 1" % (PE, PE + 1))
    e("s_mul_i32 s%d, s%d, 20" % (PO, PE + 1))
    e("s_add_u32 s%d, s%d, s%d" % (PO, PO, PE))
    e("s_add_u32 s%d, s%d, 2" % (PO, PO))
    if LB:
        e("s_lshr_b32 s%d, s%d, 5" % (PKB, PO))
        e("s_xor_b32 s%d, s%d, s%d" % (PKB, PKB, PM))
    e("s_lshl_b32 s%d, s%d, 21" % (PO, PO))
    e("s_xor_b32 s%d, s%d, s%d" % (PFL, PM, PP))
    e("s_and_b32 s%d, s%d, 1" % (PFL, PFL))
    e("s_lshr_b32 s%d, s%d, 2" % (PE + 1, PM))
    e("s_xor_b32 s%d, s%d, s%d" % (PE, PE, PE + 1))
    e("s_xor_b32 s%d, s%d, s%d" % (PE, PE, PFL))
    e("s_lshl_b32 s%d, s%d, 13" % (PE, PE))
    e("s_lshl_b32 s%d, s%d, 14" % (PE + 1, PP))
    e("s_and_b32 s%d, s%d, 0x4000" % (PE + 1, PE + 1))
    e("s_or_b32 s%d, s%d, s%d" % (PE, PE, PE + 1))
    for u in range(8):
        e("s_xor_b32 s%d, s%d, 0x%x" % (POF + u, PE, ((u & 1) << 13) | (((u >> 1) & 1) << 12) | ((u >> 2) << 14)))
    e("v_and_b32 v%d, 7, v%d" % (HW, HL))
    e("v_lshlrev_b32 v%d, 12, v%d" % (HW, HW))
    e("s_lshl_b32 s%d, s%d, 8" % (PE, PM))
    e("v_add_u32 v%d, s%d, v%d" % (HW, PE, HW))
    e("s_mov_b32 s%d, %d" % (PB + 2, H * HEADB))
    e("s_mov_b32 s%d, 0x00020000" % (PB + 3))
    e("s_cmp_ge_u32 s%d, 3" % PBK)
    e("s_cselect_b32 s%d, 3, 0" % PE)
    e("s_sub_u32 s%d, s%d, s%d" % (PE, PBK, PE))
    e("s_lshl_b32 s%d, s%d, 28" % (PE, PE))
    e("s_add_u32 s%d, s%d, s%d" % (PO, PO, PE))
    e("s_cmp_ge_u32 s%d, 3" % PBK)
    e("s_waitcnt lgkmcnt(0)")
    e("s_cselect_b32 s%d, s68, s66" % PB)
    e("s_cselect_b32 s%d, s69, s67" % (PBASE + 1))
    e("s_and_b32 s%d, s%d, 0xffff" % (PB + 1, PBASE + 1))
    if not P["sw"]:
        e("s_mov_b64 exec, 0xff")
        e("buffer_load_dword v%d, v%d, s[%d:%d], s%d offen" % (HA, HW, PB, PB + 3, PO))
        e("s_mov_b64 exec, -1")
    e("s_add_u32 s%d, s%d, s%d" % (PBASE, PB, PO))
    e("s_addc_u32 s%d, s%d, 0" % (PBASE + 1, PBASE + 1))
    e("s_lshl_b32 s%d, s%d, 8" % (PE, PM))
    if P["sw"]:
        e("s_add_u32 s%d, s%d, s%d" % (PRB, PBASE, PE))
        e("s_addc_u32 s%d, s%d, 0" % (PRB + 1, PBASE + 1))
        for u in range(8):
            e("s_load_dword s%d, s[%d:%d], 0x%x" % (PD + u, PRB, PRB + 1, u * 4096))
        if P["dc"]:
            srd_ws(PWS)
            e("s_lshl_b32 s%d, s2, 1" % PE)
            e("s_add_u32 s%d, s%d, s%d" % (PE, PE, PP))
            e("s_mul_i32 s%d, s%d, %d" % (PE, PE, 6 * FSTR))
            e("s_add_u32 s%d, s%d, %d" % (PE, PE, WS_G - 6 * FSTR))
            e("v_mul_u32_u24 v%d, %d, v%d" % (HB_, FSTR, HL))
            e("v_mov_b32 v%d, 0" % (HZ + 1))
            if LB:
                e("v_mov_b32 v%d, 0" % (HZ + 2))
            e("s_cmp_eq_u32 s%d, 0" % PBK)
            e("s_cselect_b64 exec, 0x3f, 0")
            e("buffer_store_dwordx%d v[%d:%d], v%d, s[%d:%d], s%d offen sc1" % (3 if LB else 2, HZ, HZ + (2 if LB else 1), HB_, PWS, PWS + 3, PE))
            e("s_mov_b64 exec, -1")
        for k in range(1, P["sw"]):
            e("s_waitcnt lgkmcnt(0)")
            e("s_load_dword s%d, s[%d:%d], 0x%x" % (PD, PRB, PRB + 1, k * 4096 + 128))
    else:
        e("s_add_u32 s%d, s%d, 128" % (PE, PE))
        e("s_load_dword s%d, s[%d:%d], s%d" % (PJ, PBASE, PBASE + 1, PE))
    if P["pb"]:
        if P["pb"] == 1:
            e("s_cmp_lg_u32 s%d, 0" % PBK)
            e("s_cbranch_scc1 L_noprobe2")
        else:
            e("s_branch L_noprobe2")
    e.label("L_noprobe1")
    e("s_waitcnt lgkmcnt(0)")
    if P["pb"]:
        e.label("L_noprobe2")
    srd_ws(PWS)
    srd(PDB, 80, 256)
    if not EB:
        e("s_cmp_lg_u32 s%d, 0" % PP)
        e("s_cbranch_scc1 L_hbar")
        e("v_lshlrev_b32 v%d, 2, v%d" % (HB_, HL))
        e("ds_write_b32 v%d, v%d" % (HB_, HZ))
        e("s_waitcnt lgkmcnt(0)")
        e.label("L_hbar")
        e("s_barrier")
    if P["hs"]:
        e("s_mov_b32 s%d, 0" % (PD + 4))
    e("s_cmp_eq_u32 s%d, 0" % PPR)
    e("s_cbranch_scc1 L_role")
    e("s_mov_b32 s%d, 1" % PRN)
    e("s_mov_b32 s%d, 0" % PACC)
    if LB:
        for k in range(3):
            e("s_mov_b32 s%d, 0" % (PA + k))
        if LB & 2:
            e("s_mov_b32 m0, 0")
    e("s_cmp_eq_u32 s%d, 0" % PBK)
    e("s_cselect_b32 s%d, %d, %d" % (PNR, P["nr0"], NR))
    if not P["sw"]:
        e("s_waitcnt vmcnt(0)")
    if P["pb"]:
        e("s_waitcnt lgkmcnt(0)")
    e.label("L_round")
    e("s_add_u32 s%d, s%d, s%d" % (PE, PM, PRN))
    e("s_and_b32 s%d, s%d, 7" % (PE, PE))
    e("s_lshl_b32 s%d, s%d, 8" % (PE, PE))
    e("s_add_u32 s%d, s%d, s%d" % (PRB, PBASE, PE))
    e("s_addc_u32 s%d, s%d, 0" % (PRB + 1, PBASE + 1))
    e("s_mov_b32 s%d, -1" % PMN)
    e("s_memtime s[%d:%d]" % (PT, PT + 1))
    e("s_waitcnt lgkmcnt(0)")
    for u in range(8):
        a = PT + 2 * (u & 1); b = PT + 2 * ((u + 1) & 1)
        e("s_load_dword s%d, s[%d:%d], s%d" % (PJ, PRB, PRB + 1, POF + u))
        e("s_waitcnt lgkmcnt(0)")
        e("s_memtime s[%d:%d]" % (b, b + 1))
        e("s_waitcnt lgkmcnt(0)")
        e("s_sub_u32 s%d, s%d, s%d" % (PD + u, b, a))
        if u + 1 == P["ns0"] and u < 7:
            for k in range(u + 1, 8):
                e("s_mov_b32 s%d, -1" % (PD + k))
            e("s_cmp_eq_u32 s%d, 0" % PBK)
            e("s_cbranch_scc1 L_few")
    if LB & 2:
        for u in range(8):
            e("v_writelane_b32 v%d, s%d, m0" % (HX, PD + u))
            e("s_add_u32 m0, m0, 1")
    e.label("L_few")
    for u in range(8):
        e("s_min_u32 s%d, s%d, %d" % (PD + u, PD + u, P["clip"]))
        e("s_min_u32 s%d, s%d, s%d" % (PMN, PMN, PD + u))
    e("s_cmp_lt_u32 s%d, %d" % (PMN, P["l2t"]))
    e("s_cbranch_scc1 L_skip")
    for u in range(8):
        e("s_%s_u32 s%d, s%d, s%d" % ("add" if u & 1 else "sub", PACC, PACC, PD + u))
    if LB:
        e("s_cmp_eq_u32 s%d, 0" % PBK)
        e("s_cbranch_scc1 L_skip")
        if P["cl2"]:
            for h in range(2):
                e("s_min_u32 s%d, s%d, s%d" % (PE + h, PD + h, PD + 2 + h))
                e("s_min_u32 s%d, s%d, s%d" % (PE + 2, PD + 4 + h, PD + 6 + h))
                e("s_min_u32 s%d, s%d, s%d" % (PE + h, PE + h, PE + 2))
                e("s_add_u32 s%d, s%d, %d" % (PE + h, PE + h, P["cl2"]))
            for u in range(8):
                e("s_min_u32 s%d, s%d, s%d" % (PD + u, PD + u, PE + (u & 1)))
        for u in range(8):
            for k, bit in enumerate(((u ^ (u >> 1)) & 1, (u >> 2) & 1, (u ^ (u >> 2)) & 1)):
                e("s_%s_u32 s%d, s%d, s%d" % ("add" if bit else "sub", PA + k, PA + k, PD + u))
    e.label("L_skip")
    e("s_add_u32 s%d, s%d, 1" % (PRN, PRN))
    e("s_cmp_le_u32 s%d, s%d" % (PRN, PNR))
    e("s_cbranch_scc1 L_round")
    e("s_sub_u32 s%d, 0, s%d" % (PE, PACC))
    e("s_cmp_eq_u32 s%d, 0" % PFL)
    e("s_cselect_b32 s%d, s%d, s%d" % (PACC, PACC, PE))
    e("s_add_u32 s%d, s%d, 0x%x" % (PACC, PACC, BIAS + (1 << 24)))
    e("v_mov_b32 v%d, s%d" % (HA, PACC))
    e("s_mov_b64 exec, 1")
    e("s_lshl_b32 s%d, s%d, 2" % (PE, PBK))
    e("s_add_u32 s%d, s%d, 124" % (PE, PE))
    e("s_cmp_eq_u32 s%d, 0" % PBK)
    e("s_cbranch_scc0 L_post")
    if P["hs"] == 3:
        e("s_memrealtime s[%d:%d]" % (PD + 4, PD + 5))
    if P["dc"]:
        e("s_waitcnt vmcnt(0)")
    e("ds_add_rtn_u32 v%d, v%d, v%d offset:%d" % (HB_, HZ, HA, L_PC))
    e("s_mov_b32 s%d, 0" % PE)
    e("s_waitcnt lgkmcnt(0)")
    e("v_add_u32 v%d, v%d, v%d" % (HA, HA, HB_))
    e("v_cmp_ne_u32 vcc, 0, v%d" % HB_)
    e("s_and_b64 exec, exec, vcc")
    if P["vw"]:
        e("buffer_atomic_add v%d, off, s[%d:%d], s%d" % (HA, PDB, PDB + 3, PE))
        e("s_branch L_posted")
        e.label("L_post")
        lds_wait("vw", HZ, HE, PE, L_DEC, "nz", PSP)
        if LB:
            e("s_lshr_b32 s%d, s%d, 1" % (PE, PKB))
            e("s_xor_b32 s%d, s%d, s%d" % (PE, PE, PFL))
            e("s_sub_u32 s%d, 0, s%d" % (PE + 1, PA))
            e("s_bitcmp1_b32 s%d, 0" % PE)
            e("s_cselect_b32 s%d, s%d, s%d" % (PA, PE + 1, PA))
            e("s_xor_b32 s%d, s%d, s%d" % (PE, PKB, PFL))
            e("s_bitcmp1_b32 s%d, 0" % PM)
            e("s_cselect_b32 s%d, s%d, s%d" % (PE, PKB, PE))
            e("s_cselect_b32 s%d, s%d, s%d" % (PA + 1, PA + 1, PA + 2))
            e("s_sub_u32 s%d, 0, s%d" % (PE + 1, PA + 1))
            e("s_bitcmp1_b32 s%d, 0" % PE)
            e("s_cselect_b32 s%d, s%d, s%d" % (PA + 1, PE + 1, PA + 1))
            for k in range(2):
                e("s_add_u32 s%d, s%d, 0x%x" % (PA + k, PA + k, BIAS + (1 << 24)))
                e("v_writelane_b32 v%d, s%d, %d" % (HA, PA + k, k + 1))
            e("s_lshl_b32 s%d, s%d, 2" % (PE, PBK))
            e("s_and_b32 s%d, s%d, 1" % (PE + 1, PM))
            e("s_or_b32 s%d, s%d, s%d" % (PE, PE, PE + 1))
            e("s_lshr_b32 s%d, s%d, 1" % (PE + 1, PM))
            e("s_and_b32 s%d, s%d, 2" % (PE + 1, PE + 1))
            e("s_or_b32 s%d, s%d, s%d" % (PE, PE, PE + 1))
            e("s_mul_i32 s%d, s%d, %d" % (PE, PE, FSTR))
            e("s_add_u32 s%d, s%d, %d" % (PE, PE, WS_G + 252 * FSTR))
            e("s_mov_b64 exec, 7")
            e("v_lshlrev_b32 v%d, 2, v%d" % (HB_, HL))
            e("buffer_atomic_add v%d, v%d, s[%d:%d], s%d offen" % (HA, HB_, PWS, PWS + 3, PE))
            if LB & 2:
                e("s_mov_b64 exec, -1")
                e("s_memrealtime s[%d:%d]" % (PT, PT + 1))
                e("v_mov_b32 v%d, s%d" % (HX + 1, POF))
                e("v_mov_b32 v%d, s%d" % (HX + 2, PO))
                e("s_waitcnt lgkmcnt(0)")
                e("v_mov_b32 v%d, s%d" % (HX + 3, PT))
                srd(PB, 82, 0x8000000)
                e("s_lshl_b32 s%d, s2, 10" % PE)
                e("s_add_u32 s%d, s%d, 0x4090000" % (PE, PE))
                e("v_lshlrev_b32 v%d, 4, v%d" % (HW, HL))
                e("buffer_store_dwordx4 v[%d:%d], v%d, s[%d:%d], s%d offen" % (HX, HX + 3, HW, PB, PB + 3, PE))
        else:
            e("s_mul_i32 s%d, s%d, %d" % (PE, PG, FSTR))
            e("s_add_u32 s%d, s%d, %d" % (PE, PE, WS_G + 253 * FSTR))
            e("buffer_atomic_add v%d, off, s[%d:%d], s%d" % (HA, PWS, PWS + 3, PE))
        e.label("L_posted")
    else:
        e.label("L_post")
        e("buffer_atomic_add v%d, off, s[%d:%d], s%d" % (HA, PDB, PDB + 3, PE))
    e("s_mov_b64 exec, -1")
    if P["hs"] and P["hs"] != 3:
        if P["hs"] == 2:
            e("s_waitcnt vmcnt(0)")
        e("s_memrealtime s[%d:%d]" % (PD + 4, PD + 5))
    e.label("L_role")
    e("s_cmp_eq_u32 s%d, 0" % PP)
    e("s_cbranch_scc1 L_h0")
    e("s_cmp_eq_u32 s%d, 2" % PP)
    e("s_cbranch_scc1 L_h2")

    def wave_reduce(regs, op, tmp):
        for kk in (8, 4, 2, 1):
            for r in regs:
                e("%s_dpp v%d, v%d, v%d row_ror:%d row_mask:0xf bank_mask:0xf" % (op, r, r, r, kk))
        for sw in ("v_permlane32_swap_b32", "v_permlane16_swap_b32"):
            for r, t in zip(regs, tmp):
                e("v_mov_b32 v%d, v%d" % (t, r))
            for r, t in zip(regs, tmp):
                e("%s v%d, v%d" % (sw, r, t))
            for r, t in zip(regs, tmp):
                e("%s v%d, v%d, v%d" % (op, r, r, t))

    def decode(tag, nl, off, cnt, rounds, dst, b0):
        vw = b0 and P["vw"]
        if P["pt"] and not b0:
            e("s_add_u32 s%d, s%d, %d" % (PST, PST, P["pt"]))
        else:
            lds_wait("e" + tag, HZ, HE, PE, L_EV + (4 if b0 else 0), "nz" if b0 else str(P["tw"]), PSP)
        if vw:
            e("v_mul_u32_u24 v%d, %d, v%d" % (HD, FSTR, HL))
            e("s_mov_b32 s%d, %d" % (PE, WS_G + 256 * FSTR))
            e("v_lshrrev_b32 v%d, 1, v%d" % (HB_, HB_))
        e("s_mov_b64 exec, 0x%x" % ((1 << (2 * nl if vw else nl)) - 1))
        e("s_mov_b32 s%d, 0x40000" % PSP)
        if P["hs"] and not b0:
            e("s_memrealtime s[%d:%d]" % (PD, PD + 1))
        if P["l2p"] and not b0:
            e("buffer_load_dword v%d, v%d, s[%d:%d], 0 offen offset:%d" % (HA, HB_, PDB, PDB + 3, off))
            e("s_branch L_pollw" + tag)
        if not P["xkp"] & 4:
            e.label("L_poll" + tag)
            if P["pt"] and not b0:
                twait(PST, PT, P["pk"])
            if vw:
                e("buffer_load_dword v%d, v%d, s[%d:%d], s%d offen sc1" % (HA, HD, PWS, PWS + 3, PE))
            else:
                e("buffer_load_dword v%d, v%d, s[%d:%d], 0 offen offset:%d sc1" % (HA, HB_, PDB, PDB + 3, off))
            e("s_sub_u32 s%d, s%d, 1" % (PSP, PSP))
            e("s_cbranch_scc1 L_exit1")
            e.lines.append("L_pollw%s:" % tag)
            e("s_waitcnt vmcnt(0)")
            e("v_lshrrev_b32 v%d, 24, v%d" % (HC, HA))
            e("v_cmp_ne_u32 vcc, %d, v%d" % (cnt // 2 if vw else cnt, HC))
            e("s_cbranch_vccnz L_poll" + tag)
        if vw:
            e("v_add_u32_dpp v%d, v%d, v%d quad_perm:[1,0,3,2] row_mask:0xf bank_mask:0xf" % (HA, HA, HA))
            e("s_mov_b64 exec, 0x%x" % (0x5555 & ((1 << (2 * nl)) - 1)))
        th = P["th"] * cnt * rounds * (8 if b0 else P["ns0"]) // 8
        e("v_and_b32 v%d, 0xffffff, v%d" % (HA, HA))
        e("v_subrev_u32 v%d, %d, v%d" % (HA, cnt * BIAS, HA))
        if P["stamp"] == 6 and b0:
            e("s_cmp_lg_u32 s2, 100")
            e("s_cbranch_scc1 L_nodbg")
            e("buffer_store_dword v%d, v%d, s[%d:%d], 0 offen offset:4" % (HA, HB_, PDB, PDB + 3))
            e.label("L_nodbg")
        e("v_lshrrev_b32 v%d, 30, v%d" % (HC, HA))
        e("v_and_b32 v%d, 2, v%d" % (HC, HC))
        e("v_add_u32 v%d, %d, v%d" % (HA, th, HA))
        e("v_cmp_gt_u32 vcc, %d, v%d" % (2 * th, HA))
        e("v_cndmask_b32 v%d, v%d, 8, vcc" % (HC, HC))
        if P["force"] == 1:
            e("v_mov_b32 v%d, 8" % HC)
        if P["force"] >= 2:
            e("s_mov_b32 s%d, 0x%x" % (PE, 0x7000000 + 128 * (P["force"] - 2)))
            e("s_load_dwordx4 s[%d:%d], s[82:83], s%d" % (PS2, PS2 + 3, PE))
            e("s_waitcnt lgkmcnt(0)")
            for l in range(nl):
                b = b0 + l
                e("s_lshr_b64 s[%d:%d], s[%d:%d], %d" % (PE, PE + 1, PS2 + 2 * (b // 3), PS2 + 2 * (b // 3) + 1, 16 * (b % 3)))
                e("s_and_b32 s%d, s%d, %d" % (PE, PE, P["ob"]))
                e("s_xor_b32 s%d, s%d, %d" % (PE, PE, P["ox"]))
                e("v_writelane_b32 v%d, s%d, %d" % (HC, PE, 2 * l if vw else l))
        e("v_or_b32 v%d, 16, v%d" % (HC, HC))
        if P["xv"] and vw:
            e("v_lshlrev_b32 v%d, 1, v%d" % (HA, HL))
            e("v_lshrrev_b32 v%d, v%d, %d" % (HA, HA, 0) if False else "v_mov_b32 v%d, 0x%x" % (HD, int(str(P["xv"])[::-1], 16)))
            e("v_lshrrev_b32 v%d, v%d, v%d" % (HA, HA, HD))
            e("v_and_b32 v%d, 7, v%d" % (HA, HA))
            e("v_xor_b32 v%d, v%d, v%d" % (HC, HC, HA))
        e("ds_write_b32 v%d, v%d offset:%d" % (HB_, HC, dst))
        if P["hs"] and not b0:
            e("s_memrealtime s[%d:%d]" % (PD + 2, PD + 3))
            srd(PS2, 82, 0x8000000)
            e("s_waitcnt lgkmcnt(0)")
            e("v_mov_b32 v%d, s%d" % (HX, PD))
            e("v_mov_b32 v%d, s%d" % (HX + 1, PD + 2))
            e("v_mov_b32 v%d, s%d" % (HX + 2, PSP))
            e("v_mov_b32 v%d, s%d" % (HX + 3, PD + 4))
            e("s_lshl_b32 s%d, s2, 4" % PE)
            e("s_add_u32 s%d, s%d, 0x4008000" % (PE, PE))
            e("buffer_store_dwordx4 v[%d:%d], off, s[%d:%d], s%d" % (HX, HX + 3, PS2, PS2 + 3, PE))
        e("s_mov_b64 exec, -1")

    if not P["dc"]:
        e("s_cmp_lg_u32 s2, %d" % (NWG - 1))
        e("s_cbranch_scc1 L_nolead")
        e("v_mul_u32_u24 v%d, %d, v%d" % (HB_, FSTR, HL))
        e("v_mov_b32 v%d, 0" % (HZ + 1))
        for k in range(5 if P["vw"] else 4):
            e("s_mov_b32 s%d, %d" % (PE + k, WS_G + k * 64 * FSTR))
            if k == 4:
                e("s_mov_b64 exec, 0x%x" % (0x1fffff if P["fc"] else 0x3ff))
            e("buffer_store_dwordx2 v[%d:%d], v%d, s[%d:%d], s%d offen sc1" % (HZ, HZ + 1, HB_, PWS, PWS + 3, PE + k))
        e("v_mov_b32 v%d, 0x%x" % (HA, BIAS + (1 << 24)))
        e("s_mov_b64 exec, 1")
        e("s_waitcnt vmcnt(0)")
        e("buffer_atomic_add v%d, off, s[%d:%d], 0" % (HA, PDB, PDB + 3))
        e("s_mov_b64 exec, -1")
        if P["hs"]:
            if P["hs"] == 2:
                e("s_waitcnt vmcnt(0)")
            e("s_memrealtime s[%d:%d]" % (PD + 4, PD + 5))
        e.label("L_nolead")
    e("v_lshlrev_b32 v%d, 2, v%d" % (HB_, HL))
    decode("a", 1, 0, 48 if P["dc"] else 49, P["nr0"], L_DEC, 0)
    if LB:
        if P["ro"]:
            e("v_readfirstlane_b32 s%d, v%d" % (PMN, HC))
        if P["rx"]:
            MB = 1 << 20
            TG = [(66, 254 * MB), (66, 258 * MB), (66, 514 * MB), (68, 2 * MB), (68, 258 * MB), (68, 514 * MB),
                  (70, 4 * MB), (72, 4 * MB), (74, MB // 2), (76, MB // 2), (82, 32 * MB), (82, 2336 * MB)]
            e("s_mul_i32 s%d, s2, 4352" % PJ)
            for j in range(-1, P["rx"]):
                for t, (ptr, off) in enumerate(TG):
                    e("s_add_u32 s%d, s%d, 0x%x" % (PRB, ptr, off))
                    e("s_addc_u32 s%d, s%d, 0" % (PRB + 1, ptr + 1))
                    e("s_add_u32 s%d, s%d, %d" % (PE, PJ, 512 if j < 0 else 1024 * j))
                    if j < 0:
                        e("s_load_dword s%d, s[%d:%d], s%d" % (PD, PRB, PRB + 1, PE))
                        continue
                    e("s_waitcnt lgkmcnt(0)")
                    e("s_memtime s[%d:%d]" % (PT, PT + 1))
                    e("s_waitcnt lgkmcnt(0)")
                    e("s_load_dword s%d, s[%d:%d], s%d" % (PD, PRB, PRB + 1, PE))
                    e("s_waitcnt lgkmcnt(0)")
                    e("s_memtime s[%d:%d]" % (PT + 2, PT + 3))
                    e("s_waitcnt lgkmcnt(0)")
                    e("s_sub_u32 s%d, s%d, s%d" % (PT, PT + 2, PT))
                    e("v_writelane_b32 v%d, s%d, %d" % (HX, PT, 12 * j + t))
            e("s_memrealtime s[%d:%d]" % (PT, PT + 1))
            e("s_waitcnt lgkmcnt(0)")
            e("v_mov_b32 v%d, s%d" % (HX + 3, PT))
            srd(PB, 82, 0x8000000)
            e("s_lshl_b32 s%d, s2, 10" % PE)
            e("s_add_u32 s%d, s%d, 0x4090000" % (PE, PE))
            e("v_lshlrev_b32 v%d, 4, v%d" % (HW, HL))
            e("buffer_store_dwordx4 v[%d:%d], v%d, s[%d:%d], s%d offen" % (HX, HX + 3, HW, PB, PB + 3, PE))
            e("s_waitcnt vmcnt(0)")
        DA = HX; DB = HX + 1; DC = HX + 2; DW = HX + 4
        lds_wait("eb", HZ, HE, PE, L_EV + 4, "nz", PSP)
        e("v_mul_u32_u24 v%d, %d, v%d" % (HD, FSTR, HL))
        e("s_mov_b32 s%d, %d" % (PE, WS_G + 256 * FSTR))
        e("s_mov_b64 exec, 0xfffff")
        e("s_mov_b32 s%d, 0x40000" % PSP)
        e.label("L_pollb")
        e("buffer_load_dwordx3 v[%d:%d], v%d, s[%d:%d], s%d offen sc1" % (DA, DC, HD, PWS, PWS + 3, PE))
        e("s_sub_u32 s%d, s%d, 1" % (PSP, PSP))
        e("s_cbranch_scc1 L_exit1")
        e("s_waitcnt vmcnt(0)")
        e("v_min3_u32 v%d, v%d, v%d, v%d" % (HC, DA, DB, DC))
        e("v_lshrrev_b32 v%d, 24, v%d" % (HC, HC))
        e("v_cmp_ne_u32 vcc, 10, v%d" % HC)
        e("s_cbranch_vccnz L_pollb")
        for r in (DA, DB, DC):
            e("v_subrev_u32 v%d, 0x%x, v%d" % (r, 10 * (BIAS + (1 << 24)), r))
        for qp in ("[1,0,3,2]", "[2,3,0,1]"):
            for r in (DA, DB):
                e("v_add_u32_dpp v%d, v%d, v%d quad_perm:%s row_mask:0xf bank_mask:0xf" % (r, r, r, qp))
        e("v_ashrrev_i32 v%d, 31, v%d" % (HC, DA))
        e("v_xor_b32 v%d, v%d, v%d" % (DB, DB, HC))
        e("v_xor_b32 v%d, v%d, v%d" % (HA, DC, HC))
        e("s_mov_b64 vcc, 0x55555")
        e("v_cndmask_b32 v%d, v%d, v%d, vcc" % (DC, DC, HA))
        for qp in ("[1,0,3,2]", "[2,3,0,1]"):
            e("v_add_u32_dpp v%d, v%d, v%d quad_perm:%s row_mask:0xf bank_mask:0xf" % (DC, DC, DC, qp))
        e("v_and_b32 v%d, 2, v%d" % (DW, HC))
        for r, bit, th in ((DB, 1, P["th1"]), (DC, 4, P["th0"])):
            e("v_or_b32 v%d, %d, v%d" % (HA, bit, DW))
            e("v_cmp_gt_i32 vcc, %d, v%d" % (-th * 40 * NR, r))
            e("v_cndmask_b32 v%d, v%d, v%d, vcc" % (DW, DW, HA))
        th = P["th"] * 40 * NR
        e("v_add_u32 v%d, %d, v%d" % (HA, th, DA))
        e("v_cmp_gt_u32 vcc, %d, v%d" % (2 * th, HA))
        e("v_cndmask_b32 v%d, v%d, 8, vcc" % (DW, DW))
        e("v_and_b32 v%d, %d, v%d" % (DW, P["lm"] | 8, DW))
        for b in range(5):
            e("v_readlane_b32 s%d, v%d, %d" % (PD + b, DW, 4 * b))
        if P["ro"]:
            e("s_xor_b32 s%d, s%d, s%d" % (PE, PMN, PD + 2))
            e("s_and_b32 s%d, s%d, 15" % (PE, PE))
            e("s_and_b32 s%d, s%d, %d" % (PE + 1, PE, 10 if P["ro"] & 1 else 14))
            e("s_cselect_b32 s%d, 0, s%d" % (PE, PE))
            if P["ro"] & 4:
                e("s_cselect_b32 s%d, s%d, 4" % (PE + 1, PD))
                e("s_bitcmp0_b32 s%d, 2" % (PE + 1))
                e("s_cselect_b32 s%d, s%d, 0" % (PE + 1, PE + 1))
                e("s_and_b32 s%d, s%d, 1" % (PE + 1, PE + 1))
                e("s_or_b32 s%d, s%d, s%d" % (PE, PE, PE + 1))
            for b in range(5):
                e("s_xor_b32 s%d, s%d, s%d" % (PE + 1, PD + b, PE))
                e("s_bitcmp1_b32 s%d, 3" % (PD + b))
                e("s_cselect_b32 s%d, s%d, s%d" % (PD + b, PD + b, PE + 1))
        if P["pol"] == 4:
            e("s_xor_b32 s%d, s%d, s%d" % (PE, PD, PD + 3))
            e("s_xor_b32 s%d, s%d, s%d" % (PE + 1, PD + 1, PD + 4))
            e("s_xor_b32 s%d, s%d, s%d" % (PE + 1, PE + 1, PE))
            e("s_and_b32 s%d, s%d, 10" % (PE, PE))
            e("s_or_b32 s%d, s%d, s%d" % (PE, PE, PE + 1))
            for b in range(2):
                e("s_cselect_b32 s%d, s%d, s%d" % (PD + b, PD + b, PD + 3 + b))
        if P["pol"] == 7:
            e("s_xor_b32 s%d, s%d, s%d" % (PE, PD, PD + 3))
            e("s_and_b32 s%d, s%d, 10" % (PE + 1, PE))
            e("s_cselect_b32 s%d, 0, s%d" % (PE, PE))
            e("s_xor_b32 s%d, s%d, s%d" % (PD, PD, PE))
            e("s_xor_b32 s%d, s%d, s%d" % (PE, PE, PD + 1))
            e("s_cmp_eq_u32 s%d, s%d" % (PE, PD + 4))
            e("s_cselect_b32 s%d, s%d, s%d" % (PD + 1, PE, PD + 1))
        if P["pol"] >= 8:
            e("s_xor_b32 s%d, s%d, s%d" % (PE, PD, PD + 3))
            e("s_xor_b32 s%d, s%d, s%d" % (PE + 1, PD + 1, PD + 4))
            if P["pol"] == 8:
                e("s_and_b32 s%d, s%d, 5" % (PE + 2, PD + 3))
                e("s_cselect_b32 s%d, 14, 10" % (PE + 2))
                e("s_cmp_eq_u32 s%d, s%d" % (PE, PE + 1))
                e("s_cselect_b32 s%d, 10, s%d" % (PE + 2, PE + 2))
                e("s_and_b32 s%d, s%d, s%d" % (PE + 2, PE + 2, PE))
            else:
                e("s_and_b32 s%d, s%d, 10" % (PE + 2, PE))
            e("s_cselect_b32 s%d, 0, s%d" % (PE, PE))
            e("s_xor_b32 s%d, s%d, s%d" % (PD, PD, PE))
            e("s_cmp_eq_u32 s%d, s%d" % (PE, PE + 1))
            e("s_cselect_b32 s%d, 1, s%d" % (PE + 1, PE + 1))
            e("s_cmp_eq_u32 s%d, 1" % (PE + 1))
            e("s_cselect_b32 s%d, s%d, s%d" % (PD + 1, PD + 4, PD + 1))
        for b in range(2):
            if not (0, 0, 1, 2, 0, 3, 3, 0, 0, 0)[P["pol"] or 5] >> b & 1:
                continue
            e("s_xor_b32 s%d, s%d, s%d" % (PE, PD + b, PD + 3 + b))
            e("s_and_b32 s%d, s%d, %d" % (PE, PE, 14 if P["pol"] == 6 else 10))
            e("s_cselect_b32 s%d, s%d, s%d" % (PD + b, PD + b, PD + 3 + b))
        for b in range(5):
            e("s_or_b32 s%d, s%d, 16" % (PD + b, PD + b))
            e("v_writelane_b32 v%d, s%d, %d" % (HC, PD + b, b))
        e("s_mov_b64 exec, 0x1f")
        e("ds_write_b32 v%d, v%d offset:%d" % (HB_, HC, L_DEC + 4))
        e("s_mov_b64 exec, -1")
    else:
        decode("b", 5, 128, 16, NR, L_DEC + 4, 1)
    if P["xkp"] & 2048:
        srd(PB, 70, H * NGRP * DH * 2)
        e("s_memrealtime s[%d:%d]" % (PT, PT + 1))
        e("v_lshlrev_b32 v%d, 4, v%d" % (HW, HL))
        e("s_add_u32 s%d, s%d, 32" % (PE, PG))
        e("s_lshl_b32 s%d, s%d, 16" % (PE, PE))
        e("s_mov_b32 s%d, 0" % PRN)
        e("s_waitcnt lgkmcnt(0)")
        e("s_add_u32 s%d, s%d, %d" % (PT, PT, P["xa"]))
        e.label("L_xk")
        e("s_memrealtime s[%d:%d]" % (PT + 2, PT + 3))
        e("s_waitcnt lgkmcnt(0)")
        e("s_sub_u32 s%d, s%d, s%d" % (PT + 2, PT + 2, PT))
        e("s_cmp_lt_i32 s%d, 0" % (PT + 2))
        e("s_cbranch_scc1 L_xk")
        for k in range(P["xn"]):
            e("buffer_load_dwordx4 v[%d:%d], v%d, s[%d:%d], s%d offen offset:%d" % (HX + 4 * k, HX + 4 * k + 3, HW, PB, PB + 3, PE, (k % 4) * 1024))
            if k % 4 == 3 or k == P["xn"] - 1:
                e("s_add_u32 s%d, s%d, %d" % (PE, PE, 1024 * (k % 4 + 1)))
        e("s_add_u32 s%d, s%d, %d" % (PT, PT, 222 * P["xn"] // 4))
        e("s_add_u32 s%d, s%d, %d" % (PRN, PRN, P["xn"]))
        e("s_cmp_eq_u32 s%d, 64" % PRN)
        e("s_cselect_b32 s%d, %d, 0" % (PE + 1, 31 << 16))
        e("s_add_u32 s%d, s%d, s%d" % (PE, PE, PE + 1))
        e("s_waitcnt vmcnt(0)")
        e("s_cmp_lt_u32 s%d, 128" % PRN)
        e("s_cbranch_scc1 L_xk")
    if P["xkp"] & 4096:
        srd(PB, 74, H * SKV * 2)
        srd(PS2, 76, H * SKV * 2)
        e("s_memrealtime s[%d:%d]" % (PT, PT + 1))
        e("v_lshlrev_b32 v%d, 4, v%d" % (HW, HL))
        e("s_mul_i32 s%d, s%d, 21845" % (PE, PG))
        e("s_andn2_b32 s%d, s%d, 127" % (PE, PE))
        e("s_mov_b32 s%d, 0" % PRN)
        e("s_mov_b32 s%d, 0" % PMN)
        e("s_waitcnt lgkmcnt(0)")
        e("s_add_u32 s%d, s%d, %d" % (PT, PT, P["xa"]))
        e.label("L_xv")
        for sr in (PB, PS2):
            twait(PT, PT + 2, P["xn"])
            e("buffer_load_dwordx4 v[%d:%d], v%d, s[%d:%d], s%d offen" % (HX, HX + 3, HW, sr, sr + 3, PE))
        e("s_add_u32 s%d, s%d, 1024" % (PE, PE))
        e("s_add_u32 s%d, s%d, 1" % (PRN, PRN))
        e("s_cmp_lt_u32 s%d, 22" % PRN)
        e("s_cbranch_scc1 L_xv")
        e("s_mov_b32 s%d, 0" % PRN)
        e("s_add_u32 s%d, s%d, %d" % (PE, PE, 32 * 21845 // 128 * 128 - 22 * 1024))
        e("s_add_u32 s%d, s%d, %d" % (PT, PT, 3520 - 44 * P["xn"]))
        e("s_add_u32 s%d, s%d, 1" % (PMN, PMN))
        e("s_cmp_lt_u32 s%d, 3" % PMN)
        e("s_cbranch_scc1 L_xv")
        e("s_waitcnt vmcnt(0)")
    if P["lx"]:
        e("s_mul_i32 s%d, s%d, 43" % (PE, PG))
        e("s_lshr_b32 s%d, s%d, 8" % (PE, PE))
        e("s_mul_i32 s%d, s%d, 6" % (PE + 1, PE))
        e("s_sub_u32 s%d, s%d, s%d" % (PBK, PG, PE + 1))
        e("s_cmp_ge_u32 s%d, 3" % PBK)
        e("s_cselect_b32 s%d, s68, s66" % PB)
        e("s_cselect_b32 s%d, s69, s67" % (PBASE + 1))
        e("s_cselect_b32 s%d, 3, 0" % (PE + 1))
        e("s_sub_u32 s%d, s%d, s%d" % (PE + 1, PBK, PE + 1))
        e("s_lshl_b32 s%d, s%d, 28" % (PO, PE + 1))
        e("s_mul_i32 s%d, s%d, %d" % (PE, PE, 21 << 21))
        e("s_add_u32 s%d, s%d, s%d" % (PO, PO, PE))
        e("s_add_u32 s%d, s%d, %d" % (PO, PO, (7 << 21) + (1 << 20)))
        e("s_and_b32 s%d, s%d, 0xffff" % (PB + 1, PBASE + 1))
        e("s_mov_b32 s%d, %d" % (PB + 2, H * HEADB))
        e("s_mov_b32 s%d, 0x00020000" % (PB + 3))
        e("s_add_u32 s%d, s%d, %d" % (PE, PM, P["lx"]))
        e("s_and_b32 s%d, s%d, 7" % (PE, PE))
        e("s_lshl_b32 s%d, s%d, 9" % (PE, PE))
        e("v_lshlrev_b32 v%d, 12, v%d" % (HW, HL))
        e("v_add_u32 v%d, s%d, v%d" % (HW, PE, HW))
        for j in range(3):
            e("buffer_load_dword v%d, v%d, s[%d:%d], s%d offen offset:%d" % (HX + j, HW, PB, PB + 3, PO, j * 128))
        e("s_add_u32 s%d, s%d, s%d" % (PBASE, PB, PO))
        e("s_addc_u32 s%d, s%d, 0" % (PBASE + 1, PBASE + 1))
        e("s_lshl_b32 s%d, s%d, 9" % (PE, PM))
        e("s_add_u32 s%d, s%d, s%d" % (PBASE, PBASE, PE))
        e("s_addc_u32 s%d, s%d, 0" % (PBASE + 1, PBASE + 1))
        e("s_load_dword s%d, s[%d:%d], 384" % (PJ, PBASE, PBASE + 1))
        e("s_load_dword s%d, s[%d:%d], 0x20180" % (PJ, PBASE, PBASE + 1))
        e("s_waitcnt vmcnt(0) lgkmcnt(0)")
        lds_wait("lx", HZ, HE, PE, L_EV + 4, "8", PSP)
        for j in range(3):
            e("s_mov_b32 m0, 0")
            e("s_mov_b32 s%d, %d" % (PE, j * 128))
            e.label("L_lx%d" % j)
            e("s_memtime s[%d:%d]" % (PT, PT + 1))
            e("s_waitcnt lgkmcnt(0)")
            e("s_load_dword s%d, s[%d:%d], s%d" % (PJ, PBASE, PBASE + 1, PE))
            e("s_waitcnt lgkmcnt(0)")
            e("s_memtime s[%d:%d]" % (PT + 2, PT + 3))
            e("s_waitcnt lgkmcnt(0)")
            e("s_sub_u32 s%d, s%d, s%d" % (PT, PT + 2, PT))
            e("v_writelane_b32 v%d, s%d, m0" % (HX + j, PT))
            e("s_add_u32 s%d, s%d, 4096" % (PE, PE))
            e("s_add_u32 m0, m0, 1")
            e("s_cmp_lt_u32 m0, 64")
            e("s_cbranch_scc1 L_lx%d" % j)
        e("s_memrealtime s[%d:%d]" % (PT, PT + 1))
        e("s_waitcnt lgkmcnt(0)")
        e("v_mov_b32 v%d, s%d" % (HX + 3, PT))
        srd(PB, 82, 0x8000000)
        e("s_lshl_b32 s%d, s2, 10" % PE)
        e("s_add_u32 s%d, s%d, 0x4090000" % (PE, PE))
        e("v_lshlrev_b32 v%d, 4, v%d" % (HW, HL))
        e("buffer_store_dwordx4 v[%d:%d], v%d, s[%d:%d], s%d offen" % (HX, HX + 3, HW, PB, PB + 3, PE))
    if FU:
        CSC = 24; CMK = 56; CRB = 57; CO = 92
        e("s_and_b32 s%d, s%d, 7" % (PE, PG))
        e("s_cmp_lg_u32 s%d, s%d" % (PE, PM))
        e("s_cbranch_scc1 L_exit1")
        e("s_mul_i32 s%d, s%d, 3" % (PE, PG))
        e("s_add_u32 s%d, s%d, 2" % (PE, PE))
        e("s_lshr_b32 s%d, s%d, 5" % (PE, PE))
        e("s_lshl_b32 s%d, s%d, 2" % (PE, PE))
        e("v_mov_b32 v%d, s%d" % (HW, PE))
        e("s_mul_i32 s%d, s%d, 24" % (CRB, PG))
        e("v_add_u32 v%d, s%d, v%d" % (HG, CRB, HL))
        e("v_and_b32 v%d, 255, v%d" % (HR, HG))
        e("v_mul_u32_u24 v%d, %d, v%d" % (HR, FSTR, HR))
        e("v_lshlrev_b32 v%d, 6, v%d" % (HG, HG))
        e("s_mov_b32 s%d, %d" % (PE + 1, WS_G))
        e("s_mov_b32 s%d, %d" % (PE + 2, WS_ML))
        e("v_mov_b32 v%d, 0x%08x" % (HA, BIGNEG))
        e("v_mov_b32 v%d, 0" % HB_)
        if P["cd"]:
            th = [12 * (len(CPK) + min(j for j, c in enumerate(CPV) if c > b)) + P["cd"] for b in (16, 32, 4)]
            e("s_mov_b32 s%d, %d" % (PE + 3, th[0]))
            e("s_cmp_eq_u32 s%d, 4" % PE)
            e("s_cselect_b32 s%d, %d, s%d" % (PE + 3, th[1], PE + 3))
            e("s_cmp_eq_u32 s%d, 8" % PE)
            e("s_cselect_b32 s%d, %d, s%d" % (PE + 3, th[2], PE + 3))
            lds_wait("cg", HZ, HE, PE, L_TC, "s%d" % (PE + 3), PSP)
        else:
            lds_wait("cg", HZ, HE, PE, L_GO, "nz", PSP, HW)
        for tag, ld, chk in (("f", "buffer_load_dword v%d, v%d, s[%d:%d], s%d offen sc1" % (HD, HR, PWS, PWS + 3, PE + 1), HD),
                             ("m", "buffer_load_dwordx4 v[%d:%d], v%d, s[%d:%d], s%d offen sc1" % (HA, HD, HG, PWS, PWS + 3, PE + 2), HD)):
            e("s_mov_b64 exec, 0xffffff")
            e("s_mov_b32 s%d, 0x40000" % PSP)
            e.label("L_cp" + tag)
            e(ld)
            e("s_sub_u32 s%d, s%d, 1" % (PSP, PSP))
            e("s_cbranch_scc1 L_exit1")
            e("s_waitcnt vmcnt(0)")
            e("v_cmpx_eq_u32 vcc, 0, v%d" % chk)
            e("s_cbranch_execnz L_cp" + tag)
        e("s_mov_b64 exec, -1")
        e("v_mov_b32 v%d, v%d" % (HC, HA))
        wave_reduce([HC], "v_max_f32", [HD])
        e("v_sub_f32 v%d, v%d, v%d" % (HA, HA, HC))
        e("v_exp_f32 v%d, v%d" % (HA, HA))
        e("v_mul_f32 v%d, v%d, v%d" % (HB_, HB_, HA))
        wave_reduce([HB_], "v_add_f32", [HD])
        e("v_rcp_f32 v%d, v%d" % (HB_, HB_))
        e("v_mul_f32 v%d, v%d, v%d" % (HA, HA, HB_))
        if P["fc"]:
            e("s_cmp_lt_u32 s%d, 21" % PG)
            e("s_cbranch_scc1 L_cown")
            e("s_mul_i32 s%d, s%d, %d" % (PE, PG, FSTR))
            e("s_add_u32 s%d, s%d, %d" % (PE, PE, WS_G + ELN * FSTR))
            e("v_lshlrev_b32 v%d, 2, v%d" % (HR, HL))
            e("v_mov_b32 v%d, 1" % HB_)
            e("s_mov_b64 exec, 0xffffff")
            e("buffer_store_dword v%d, v%d, s[%d:%d], s%d offen offset:128 sc1" % (HA, HR, PWS, PWS + 3, PE))
            e("s_mov_b64 exec, 1")
            e("s_waitcnt vmcnt(0)")
            e("buffer_store_dword v%d, off, s[%d:%d], s%d offset:4 sc1" % (HB_, PWS, PWS + 3, PE))
            e("s_endpgm")
            e.label("L_cown")
        for r in range(24):
            e("v_readlane_b32 s%d, v%d, %d" % (CSC + r, HA, r))
        srd(CO, 78, H * DH * 2)
        e("s_lshl_b32 s%d, s%d, 10" % (CRB, CRB))
        e("v_lshlrev_b32 v%d, 4, v%d" % (HG, HL))
        e("v_add_u32 v%d, s%d, v%d" % (HG, CRB, HG))
        for k in range(1, 6):
            e("s_mov_b32 s%d, %d" % (PE + k, 4096 * k))
        for r in (HA, HB_, HC):
            e("v_mov_b32 v%d, 0" % r)
        e("s_mov_b32 s%d, 0xffffff" % CMK)
        e("v_lshlrev_b32 v%d, 1, v%d" % (HR, HL))
        e("s_mul_i32 s%d, s%d, %d" % (CRB, PG, DH * 2))
        lds_wait("cc", HZ, HE, PE, L_CA, "%d" % P["cw"], PSP, HW)
        e("s_mov_b32 s%d, 0x40000" % PSP)
        e.label("L_cr")
        for r in range(24):
            e("s_bitcmp0_b32 s%d, %d" % (CMK, r))
            e("s_cbranch_scc1 L_cl%d" % r)
            e("buffer_load_dwordx4 v[%d:%d], v%d, s[%d:%d], %s offen offset:%d sc1" %
              (HX + 4 * r, HX + 4 * r + 3, HG, PWS, PWS + 3, "s%d" % (PE + r // 4) if r >= 4 else "0", (r % 4) * 1024))
            e.lines.append("L_cl%d:" % r)
        e("s_sub_u32 s%d, s%d, 1" % (PSP, PSP))
        e("s_cbranch_scc1 L_exit1")
        e("s_waitcnt vmcnt(0)")
        for r in range(24):
            e("s_bitcmp0_b32 s%d, %d" % (CMK, r))
            e("s_cbranch_scc1 L_cv%d" % r)
            e("v_cmp_eq_u32 vcc, 0, v%d" % (HX + 4 * r + 3))
            e("s_cbranch_vccnz L_cv%d" % r)
            for k, a_ in enumerate((HA, HB_, HC)):
                e("v_fmac_f32 v%d, s%d, v%d" % (a_, CSC + r, HX + 4 * r + k))
            e("s_bitset0_b32 s%d, %d" % (CMK, r))
            e.lines.append("L_cv%d:" % r)
        e("s_cmp_lg_u32 s%d, 0" % CMK)
        e("s_cbranch_scc1 L_cr")
        for k, a_ in enumerate((HA, HB_, HC)):
            e("v_cvt_pk_bf16_f32 v%d, v%d, v%d" % (a_, a_, a_))
            e("buffer_store_short v%d, v%d, s[%d:%d], s%d offen offset:%d %s" % (a_, HR, CO, CO + 3, CRB, k * 128, P["os"]))
        if P["stamp"] == 5:
            e("s_memrealtime s[%d:%d]" % (PT, PT + 1))
            e("s_waitcnt vmcnt(0)")
            e("s_memrealtime s[%d:%d]" % (PT + 2, PT + 3))
            srd(PS2, 82, 0x8000000)
            e("s_waitcnt lgkmcnt(0)")
            e("v_mov_b32 v%d, s%d" % (HX, PT))
            e("v_mov_b32 v%d, s%d" % (HX + 1, PT + 2))
            e("v_mov_b32 v%d, s%d" % (HX + 2, PSP))
            e("s_lshl_b32 s%d, s%d, 4" % (PE, PG))
            e("s_add_u32 s%d, s%d, 0x4009000" % (PE, PE))
            e("s_mov_b64 exec, 1")
            e("buffer_store_dwordx4 v[%d:%d], off, s[%d:%d], s%d" % (HX, HX + 3, PS2, PS2 + 3, PE))
    e("s_endpgm")

    def seg_scalars():
        e("s_lshl_b32 s%d, s%d, 5" % (PSG, PPH))
        e("s_add_u32 s%d, s%d, s%d" % (PSG, PSG, PG))
        e("s_lshl_b32 s%d, s%d, 15" % (PG0, PSG))
        e("s_add_u32 s%d, s%d, 1" % (PG0, PG0))
        e("s_mul_hi_u32 s%d, s%d, 0xaaaaaaab" % (PG0, PG0))
        e("s_lshr_b32 s%d, s%d, 7" % (PG0, PG0))

    def get_dec(tag):
        lds_wait(tag, HZ, HE, PE, L_DEC + 20, "nz", PSP)
        e("ds_read_b128 v[%d:%d], v%d offset:%d" % (HX, HX + 3, HZ, L_DEC))
        e("ds_read_b64 v[%d:%d], v%d offset:%d" % (HX + 4, HX + 5, HZ, L_DEC + 16))
        e("s_waitcnt lgkmcnt(0)")
        for i in range(6):
            e("v_readfirstlane_b32 s%d, v%d" % (PDC + i, HX + i))

    e.label("L_h0")
    srd(PB, 64, H * DH * 2)
    srd(PS2, 70, H * NGRP * DH * 2)
    srd(PS3, 72, H * NGRP * DH * 2)
    e("v_lshrrev_b32 v%d, 4, v%d" % (HA, HL))
    e("v_and_b32 v%d, 15, v%d" % (HB_, HL))
    e("v_lshlrev_b32 v%d, 3, v%d" % (HC, HB_))
    e("v_mul_u32_u24 v%d, %d, v%d" % (HD, DH * 2, HA))
    e("v_add_u32 v%d, v%d, v%d" % (HD, HD, HC))
    e("v_lshl_add_u32 v%d, v%d, 2, v%d" % (HG, HB_, HA))
    e("v_lshlrev_b32 v%d, 2, v%d" % (HG, HG))
    BQ = HX; BS = HX + 12; BZ = BS + 36; BR = BZ + 36
    PFA = 32; PIA = 33
    e("v_lshlrev_b32 v%d, 4, v%d" % (HA, HL))
    e("s_mul_i32 s%d, s%d, %d" % (PFA, PNB, FSTR))
    e("s_add_u32 s%d, s%d, s%d" % (PFA, PFA, PGL))
    e("s_lshl_b32 s%d, s%d, 3" % (PIA, PG))
    e("s_add_u32 s%d, s%d, s%d" % (PIA, PIA, PNB))
    IMS = PHI if P["il"] else IMG
    PHS = NWG * PHI if P["il"] else PHI
    CX = P["cx"]
    if CX:
        assert N0 <= 4 and not P["xp"]
        IMS = 3072 if P["x12"] else 4096; PHS = NWG * IMS
        e("v_and_b32 v%d, 7, v%d" % (HN, HL))
        e("v_lshrrev_b32 v%d, 3, v%d" % (HE, HL))
        e("v_mul_u32_u24 v%d, 24, v%d" % (HK, HE))
        e("v_mov_b32 v%d, 768" % HF)
        e("v_mad_u32_u24 v%d, v%d, v%d, v%d" % (HK, HN, HF, HK))
        e("v_lshlrev_b32 v%d, 7, v%d" % (HN, HN))
        e("v_lshl_add_u32 v%d, v%d, 4, v%d" % (HN, HE, HN))
        if P["cl"]:
            e("v_lshlrev_b32 v%d, 4, v%d" % (HN, HL))
        if P["x12"]:
            e("v_mul_u32_u24 v%d, 12, v%d" % (HN, HL))
    XZ = P["xz"]; XS = 1 << P["xr"]

    def img_lane(dst, tmp):
        if XZ >= 1024:
            e("v_lshlrev_b32 v%d, 4, v%d" % (dst, HL))
            return
        lz = (XZ // 16).bit_length() - 1
        e("v_lshrrev_b32 v%d, %d, v%d" % (dst, lz, HL))
        e("v_lshlrev_b32 v%d, %d, v%d" % (dst, P["xr"], dst))
        e("v_and_b32 v%d, %d, v%d" % (tmp, XZ // 16 - 1, HL))
        e("v_lshl_add_u32 v%d, v%d, 4, v%d" % (dst, tmp, dst))

    def img_base(dst, slot, tmp):
        spr = XS // XZ
        assert 8 <= spr <= 256 and PHI % XZ == 0
        e("s_lshr_b32 s%d, s%d, %d" % (tmp, slot, spr.bit_length() - 1))
        e("s_mul_i32 s%d, s%d, %d" % (tmp, tmp, XS * (PHI // XZ)))
        e("s_and_b32 s%d, s%d, %d" % (dst, slot, spr - 1))
        e("s_mul_i32 s%d, s%d, %d" % (dst, dst, XZ))
        e("s_add_u32 s%d, s%d, s%d" % (dst, dst, tmp))

    def img_k(k):
        return (k * 1024 // XZ) * XS + k * 1024 % XZ

    if XZ:
        assert P["il"] and not CX and not P["xp"]
        img_base(PIA, PIA, PE)
        img_lane(HN, HE)
    else:
        e("s_mul_i32 s%d, s%d, %d" % (PIA, PIA, IMS))
    e("s_add_u32 s%d, s%d, %d" % (PIA, PIA, WS_L))

    def bias(ph):
        e("s_mov_b32 s%d, %d" % (PPH, ph))
        seg_scalars()
        e("s_mul_i32 s%d, s%d, 171" % (PE, PSG))
        e("s_lshr_b32 s%d, s%d, 9" % (PE, PE))
        e("s_mul_i32 s%d, s%d, %d" % (PE, PE, DH * 2))
        e("s_mul_i32 s%d, s%d, 24" % (PE + 1, PM))
        e("s_add_u32 s%d, s%d, s%d" % (PE + 2, PE + 1, PG0))
        e("s_mul_i32 s%d, s%d, %d" % (PE + 2, PE + 2, DH * 2))
        e("v_add_u32 v%d, s%d, v%d" % (HE, PE + 2, HD))
        e("v_add_u32 v%d, %d, v%d" % (HF, 8 * DH * 2, HE))
        e("v_add_u32 v%d, %d, v%d" % (HR, 16 * DH * 2, HE))
        for c in range(3):
            e("buffer_load_dwordx2 v[%d:%d], v%d, s[%d:%d], s%d offen offset:%d" % (BR + 2 * c, BR + 2 * c + 1, HC, PB, PB + 3, PE, c * 128))
        split = P["bs"] & (1 if ph else 2)
        order = [(st, a) for st in range(6) for a in range(2)]
        if split:
            order.sort(key=lambda x: x[1])
        for st, a in order:
            va = (HE, HF, HR)[st // 2]
            sr, bb = ((PS2, BS), (PS3, BZ))[a]
            if split and (st, a) == (0, 1):
                if ph:
                    lds_wait("z%d" % ph, HZ, HV, PE + 3, L_EV + 4, str(8 * ph - 8 + P["bz"]), PSP)
                else:
                    lds_wait("z0", HZ, HV, PE + 3, L_TC, str(P["bz0"]), PSP)
            bt = P["bt"] if ph else P["bt0"]
            if bt:
                if st == 0 and bb == BS:
                    e("s_memrealtime s[%d:%d]" % (PT, PT + 1))
                    e("s_waitcnt lgkmcnt(0)")
                twait(PT, PT + 2, bt)
            for c in range(3):
                r = bb + st * 6 + 2 * c
                if P["xb"] & 1:
                    continue
                e("buffer_load_dwordx2 v[%d:%d], v%d, s[%d:%d], 0 offen offset:%d%s" %
                  (r, r + 1, va, sr, sr + 3, (st & 1) * 4 * DH * 2 + c * 128,
                   " nt" if P["bnt"] & (1 if bb == BZ else 2) else ""))
            if (P["bp"] == 2 or P["bp"] == 1 and a) and (ph or P["bp0"]):
                e("s_waitcnt vmcnt(%d)" % P["bq"])
        e("s_waitcnt vmcnt(0)")
        for p in range(6):
            e("v_lshlrev_b32 v%d, 16, v%d" % (BQ + 2 * p, BR + p))
            e("v_and_b32 v%d, 0xffff0000, v%d" % (BQ + 2 * p + 1, BR + p))
        for st in range(6):
            acc = BR + st
            for p in range(6):
                rs = BS + st * 6 + p; rz = BZ + st * 6 + p
                e("v_lshlrev_b32 v%d, 16, v%d" % (HE, rs))
                e("v_lshlrev_b32 v%d, 16, v%d" % (HF, rz))
                e("v_and_b32 v%d, 0xffff0000, v%d" % (rs, rs))
                e("v_and_b32 v%d, 0xffff0000, v%d" % (rz, rz))
                e("v_mul_f32 v%d, v%d, v%d" % (HE, HE, BQ + 2 * p))
                e("v_mul_f32 v%d, v%d, v%d" % (rs, rs, BQ + 2 * p + 1))
                if p == 0:
                    e("v_mul_f32 v%d, v%d, v%d" % (acc, HE, HF))
                else:
                    e("v_fmac_f32 v%d, v%d, v%d" % (acc, HE, HF))
                e("v_fmac_f32 v%d, v%d, v%d" % (acc, rs, rz))
        for kk in (8, 4, 2, 1):
            for st in range(6):
                e("v_add_f32_dpp v%d, v%d, v%d row_ror:%d row_mask:0xf bank_mask:0xf" % (BR + st, BR + st, BR + st, kk))
        for st in range(1, 6):
            e("v_cmp_eq_u32 vcc, %d, v%d" % (st, HB_))
            e("v_cndmask_b32 v%d, v%d, v%d, vcc" % (BR, BR, BR + st))
        e("s_mul_i32 s%d, s%d, 768" % (PE, PSG))
        e("s_lshl_b32 s%d, s%d, 2" % (PE + 1, PE + 1))
        e("s_add_u32 s%d, s%d, s%d" % (PE, PE, PE + 1))
        e("s_add_u32 s%d, s%d, %d" % (PE, PE, WS_B))
        e("s_mov_b32 exec_lo, 0x003f003f")
        e("s_mov_b32 exec_hi, 0x003f003f")
        e("buffer_store_dword v%d, v%d, s[%d:%d], s%d offen sc1" % (BR, HG, PWS, PWS + 3, PE))
        e("s_mov_b64 exec, -1")

    def vpf(late, half=False):
        if half:
            e("s_cmp_ge_u32 s%d, 4" % PM)
            e("s_cbranch_scc1 L_novpf")
        srd(PS2, 74, H * SKV * 2)
        srd(PS3, 76, H * SKV * 2)
        if late:
            lds_wait("pf", HZ, HE, PE, L_EV, "1", PSP)
        e("v_lshlrev_b32 v%d, 4, v%d" % (HE, HL))
        for rep in range(2 if half else 1):
            e("s_lshl_b32 s%d, s2, 13" % PE)
            if rep:
                e("s_add_u32 s%d, s%d, 0x8000" % (PE, PE))
            e("s_add_u32 s%d, s%d, 4096" % (PE + 1, PE))
            for a, sr in enumerate((PS2, PS3)):
                for k in range(8):
                    r = HX + 4 * (a * 8 + k)
                    e("buffer_load_dwordx4 v[%d:%d], v%d, s[%d:%d], s%d offen offset:%d" % (r, r + 3, HE, sr, sr + 3, PE + k // 4, (k % 4) * 1024))
            e("s_waitcnt vmcnt(0)")
        if half:
            e.label("L_novpf")

    def flush(p):
        if P["xp"]:
            e("s_cmp_eq_u32 s%d, s%d" % (PDC + p, PDC + 3 + p))
            if p:
                e("s_cbranch_scc1 L_fp%d" % p)
            e("s_add_u32 s%d, s%d, %d" % (PE + 6, PIA, p * PHS))
            e("s_add_u32 s%d, s%d, %d" % (PE + 7, PIA, p * PHS + 4096))
            e("s_cmp_eq_u32 s%d, s%d" % (PDC + p, PDC + 3 + p))
            for k in range(6):
                if p == 0:
                    mk = sum(1 << l for l in range(64) if (64 * k + l) % 48 < (3 * N0 + 7) // 8 * 8)
                    e("s_cselect_b32 exec_lo, 0x%x, -1" % (mk & 0xffffffff))
                    e("s_cselect_b32 exec_hi, 0x%x, -1" % (mk >> 32))
                e("buffer_load_dwordx4 v[%d:%d], v%d, s[%d:%d], s%d offen offset:%d %s" %
                  (HX + 4 * k, HX + 4 * k + 3, HA, PWS, PWS + 3, PE + 6 + k // 4, (k % 4) * 1024, ("", "sc1", "", "nt")[P["xp"]]))
            e("s_mov_b64 exec, -1")
            e("s_waitcnt vmcnt(0)")
            e.label("L_fp%d" % p)
        lds_wait("f%d" % p, HZ, HE, PE, L_CF + 4 * p, "4", PSP)
        e("s_cmp_eq_u32 s%d, s%d" % (PDC + p, PDC + 3 + p))
        if p:
            e("s_cbranch_scc1 L_fl%d" % p)
        if CX:
            if P["cl"] and p == 0:
                e("v_and_b32 v%d, 7, v%d" % (HF, HL))
                e("v_lshrrev_b32 v%d, 3, v%d" % (HE, HL))
                e("v_mul_u32_u24 v%d, 24, v%d" % (HF, HF))
                e("v_mov_b32 v%d, 768" % HR)
                e("v_mad_u32_u24 v%d, v%d, v%d, v%d" % (HF, HE, HR, HF))
            for st in range(4):
                for c in range(3):
                    r = HX + 12 * st + 2 * c
                    e("ds_read_b64 v[%d:%d], v%d offset:%d" % (r, r + 1, HF if P["cl"] and p == 0 and st == 0 else HK, L_LG + p * PHI + st * 192 + 8 * c))
            e("s_add_u32 s%d, s%d, %d" % (PE + 6, PIA, p * PHS))
            e("s_cmp_eq_u32 s%d, s%d" % (PDC + p, PDC + 3 + p))
            e("s_waitcnt lgkmcnt(0)")
            for st in range(4):
                B = HX + 12 * st
                e("v_cmp_eq_f32 vcc, 0, v%d" % (B + 5))
                e("v_max3_f32 v%d, v%d, v%d, v%d" % (B + 9, B, B + 1, B + 2))
                e("v_cndmask_b32 v%d, v%d, v%d, vcc" % (B + 8, B + 5, B + 4))
                e("v_max3_f32 v%d, v%d, v%d, v%d" % (B + 9, B + 9, B + 3, B + 4))
                e("v_max_f32 v%d, v%d, v%d" % (B + 8, B + 8, B + 9))
                for k in range(6):
                    e("v_sub_f32 v%d, v%d, v%d" % (B + k, B + k, B + 8))
                for k in range(3):
                    e("v_cvt_pk_f16_f32 v%d, v%d, v%d" % (B + 9 + k, B + 2 * k, B + 2 * k + 1))
                if P["fq"]:
                    continue
                if P["x12"]:
                    e("buffer_store_dwordx3 v[%d:%d], v%d, s[%d:%d], s%d offen offset:%d %s" %
                      (B + 8, B + 10, HN, PWS, PWS + 3, PE + 6, st * 768, P["st"]))
                elif P["xt"]:
                    for h in range(2):
                        e("buffer_atomic_swap_x2 v[%d:%d], v%d, s[%d:%d], s%d offen offset:%d%s" %
                          (B + 8 + 2 * h, B + 9 + 2 * h, HN, PWS, PWS + 3, PE + 6, st * 1024 + 8 * h, " sc1" if P["xt"] & 2 else ""))
                elif not P["xkp"] & 16:
                    e("buffer_store_dwordx4 v[%d:%d], v%d, s[%d:%d], s%d offen offset:%d %s" %
                      (B + 8, B + 11, HN, PWS, PWS + 3, PE + 6, st * 1024, P["st"]))
                if p == 0 and st == 0:
                    e("s_cbranch_scc1 L_fl0")
            if P["fq"]:
                e("s_memrealtime s[%d:%d]" % (PT, PT + 1))
                e("s_waitcnt lgkmcnt(0)")
                e("s_or_b32 s%d, s%d, %d" % (PT, PT, (1 << P["fq"]) - 1))
                twait(PT, PT + 2, 0)
                e("s_cmp_eq_u32 s%d, s%d" % (PDC + p, PDC + 3 + p))
                for st in range(4):
                    B = HX + 12 * st
                    e("buffer_store_dwordx4 v[%d:%d], v%d, s[%d:%d], s%d offen offset:%d %s" %
                      (B + 8, B + 11, HN, PWS, PWS + 3, PE + 6, st * 1024, P["st"]))
                    if p == 0 and st == 0:
                        e("s_cbranch_scc1 L_fl0")
        else:
            for k in range(6):
                e("ds_read_b128 v[%d:%d], v%d offset:%d" % (HX + 4 * k, HX + 4 * k + 3, HA, L_LG + p * PHI + k * 1024))
            if XZ:
                for k in range(6):
                    e("s_add_u32 s%d, s%d, %d" % (PE + k, PIA, p * PHS + img_k(k)))
            else:
                e("s_add_u32 s%d, s%d, %d" % (PE + 6, PIA, p * PHS))
                e("s_add_u32 s%d, s%d, %d" % (PE + 7, PIA, p * PHS + 4096))
            e("s_cmp_eq_u32 s%d, s%d" % (PDC + p, PDC + 3 + p))
            e("s_waitcnt lgkmcnt(0)")
            for k in range(6):
                if P["fw"]:
                    if k == 0:
                        e("s_memrealtime s[%d:%d]" % (PT, PT + 1))
                        e("s_waitcnt lgkmcnt(0)")
                    twait(PT, PT + 2, P["fw"])
                    e("s_cmp_eq_u32 s%d, s%d" % (PDC + p, PDC + 3 + p))
                if p == 0:
                    mk = sum(1 << l for l in range(64) if (64 * k + l) % 48 < (3 * N0 + 7) // 8 * 8)
                    e("s_cselect_b32 exec_lo, 0x%x, -1" % (mk & 0xffffffff))
                    e("s_cselect_b32 exec_hi, 0x%x, -1" % (mk >> 32))
                if XZ:
                    e("buffer_store_dwordx4 v[%d:%d], v%d, s[%d:%d], s%d offen %s" %
                      (HX + 4 * k, HX + 4 * k + 3, HN, PWS, PWS + 3, PE + k, P["st"]))
                elif not P["xkp"] & 16:
                    e("buffer_store_dwordx4 v[%d:%d], v%d, s[%d:%d], s%d offen offset:%d %s" %
                      (HX + 4 * k, HX + 4 * k + 3, HA, PWS, PWS + 3, PE + 6 + k // 4, (k % 4) * 1024, P["st"]))
            if p == 0:
                e("s_mov_b64 exec, -1")
            if P["wb"]:
                e("s_waitcnt vmcnt(0)")
                e("buffer_wbl2 sc1")
        e.label("L_fl%d" % p)
        e("v_mov_b32 v%d, %d" % (HE, p + 1))
        e("s_waitcnt vmcnt(0)")
        e("s_mov_b64 exec, 1")
        opt = p == 2 or (p == 1 and not P["jit"])
        if opt:
            e("s_cbranch_scc1 L_fn%d" % p)
        e("buffer_store_dword v%d, off, s[%d:%d], s%d sc1" % (HE, PWS, PWS + 3, PFA))
        if opt:
            e.label("L_fn%d" % p)
        e("ds_write_b32 v%d, v%d offset:%d" % (HZ, HE, L_FD))
        e("s_mov_b64 exec, -1")

    if FU:
        for i in range(4):
            e("v_mov_b32 v%d, 0" % (HX + i))
        for p in range(3):
            e("s_add_u32 s%d, s2, %d" % (PE, 256 * p))
            e("s_lshl_b32 s%d, s%d, 10" % (PE + 1, PE))
            e("s_lshl_b32 s%d, s%d, 6" % (PE, PE))
            e("s_add_u32 s%d, s%d, %d" % (PE, PE, WS_ML))
            if not (P["xkp"] & 512 and p < 2):
                e("buffer_store_dwordx4 v[%d:%d], v%d, s[%d:%d], s%d offen sc1" % (HX, HX + 3, HA, PWS, PWS + 3, PE + 1))
            e("s_mov_b64 exec, 15")
            e("buffer_store_dwordx4 v[%d:%d], v%d, s[%d:%d], s%d offen sc1" % (HX, HX + 3, HA, PWS, PWS + 3, PE))
            e("s_mov_b64 exec, -1")
    bias(0)
    if P["pf"] == 8:
        lds_wait("b0", HZ, HE, PE, L_PF, "nz", PSP)
    if P["jit"] and not P["be1"] & 1:
        lds_wait("b1", HZ, HE, PE, L_EV + 4, "1", PSP)
    if P["bw"] & 2:
        lds_wait("bw1", HZ, HE, PE, L_EV, "1", PSP)
    if P["bw"] & 8:
        lds_wait("bw3", HZ, HE, PE, L_DEC, "nz", PSP)
    bias(1)
    if not P["jit"]:
        if P["bw"] & 1:
            lds_wait("bw0", HZ, HE, PE, L_DEC, "nz", PSP)
        if P["bw"] & 4:
            lds_wait("bw2", HZ, HE, PE, L_EV, "4", PSP)
        bias(2)
    if P["pf"] in (7, 10):
        vpf(False, P["pf"] == 10)
    if P["xq"]:
        for p in range(3):
            if not P["xq"] >> p & 1:
                continue
            e("s_add_u32 s%d, s%d, %d" % (PE + p, PIA, p * PHS))
            for k in range(4):
                e("buffer_load_dwordx4 v[%d:%d], v%d, s[%d:%d], s%d offen offset:%d%s" % (HX, HX + 3, HA, PWS, PWS + 3, PE + p, k * 1024, " sc1" if P["xq"] & 8 else ""))
        e("s_waitcnt vmcnt(0)")
    get_dec("d0")
    flush(0)
    if P["jit"]:
        if not P["be1"] & 2:
            lds_wait("b2", HZ, HE, PE, L_EV + 4, "9", PSP)
        bias(2)
    flush(1)
    flush(2)
    if P["at"] and not BC:
        e("v_lshrrev_b32 v%d, 3, v%d" % (HC, HL))
        e("v_xor_b32 v%d, s%d, v%d" % (HC, PM, HC))
        e("v_lshrrev_b32 v%d, 1, v%d" % (HD, HC))
        e("v_and_b32 v%d, 1, v%d" % (HC, HC))
        e("v_lshl_or_b32 v%d, v%d, 2, v%d" % (HD, HC, HD))
        e("v_lshl_or_b32 v%d, v%d, 3, v%d" % (HD, HL, HD))
        e("v_mul_u32_u24 v%d, %d, v%d" % (HD, FSTR, HD))
        lds_wait("t1", HZ, HE, PE, L_TC, "4", PSP)
        e("s_memrealtime s[%d:%d]" % (PT, PT + 1))
        e("s_mov_b64 exec, 1")
        e("s_waitcnt lgkmcnt(0)")
        e("s_or_b32 s%d, s%d, 1" % (PT, PT))
        e("v_mov_b32 v%d, s%d" % (HB_, PT))
        e("buffer_store_dword v%d, off, s[%d:%d], s%d offset:4 sc1" % (HB_, PWS, PWS + 3, PFA))
        e("s_mov_b32 exec_lo, -1")
        e("s_mov_b32 s%d, %d" % (PE + 1, WS_G))
        lds_wait("t2", HZ, HE, PE, L_TC, "5", PSP)
        e("buffer_load_dword v%d, v%d, s[%d:%d], s%d offen offset:4 sc1" % (HB_, HD, PWS, PWS + 3, PE + 1))
        e("v_bfrev_b32 v%d, -2" % HC)
        e("s_mov_b32 s%d, -2048" % PE)
        e("s_waitcnt vmcnt(0)")
        e("v_cmp_eq_u32 vcc, 0, v%d" % HB_)
        e("v_subrev_u32 v%d, s%d, v%d" % (HB_, PT, HB_))
        e("v_cndmask_b32 v%d, v%d, v%d, vcc" % (HB_, HB_, HC))
        for st in (2048, 1024, 512, 256, 128, 64, 32, 16):
            e("s_add_u32 s%d, s%d, %d" % (PE + 1, PE, st))
            e("v_cmp_gt_i32 vcc, s%d, v%d" % (PE + 1, HB_))
            e("s_bcnt1_i32_b64 s%d, vcc" % (PE + 2))
            e("s_cmp_lt_u32 s%d, %d" % (PE + 2, P["aq"]))
            e("s_cselect_b32 s%d, s%d, s%d" % (PE, PE + 1, PE))
        e("s_mul_i32 s%d, s%d, %d" % (PE, PE, -P["ka"]))
        e("s_add_u32 s%d, s%d, %d" % (PE, PE, P["kb"]))
        e("s_ashr_i32 s%d, s%d, 10" % (PE, PE))
        e("s_max_i32 s%d, s%d, %d" % (PE, PE, P["dmin"]))
        e("s_min_i32 s%d, s%d, %d" % (PE, PE, min(P["dmax"], NT - P["te"])))
        e("s_sub_u32 s%d, %d, s%d" % (PE, NT, PE))
        e("s_cmp_eq_u32 s%d, %d" % (PE, NT))
        e("s_cselect_b32 s%d, 255, s%d" % (PE, PE))
        e("v_mov_b32 v%d, s%d" % (HB_, PE))
        e("ds_write_b32 v%d, v%d offset:%d" % (HZ, HB_, L_TD))
    e("s_endpgm")

    def last_gather():
        EL = P["fc"] == 4
        CSC = 24; CO = 96; CR0 = 56; CSO = 57; CHL = 58; CRB = 59; CN = 20
        COF = list(range(64, 76)) + list(range(84, 96))
        RB = HX + 16
        if EL:
            e("s_mov_b64 exec, -1")
            e("v_lshlrev_b32 v%d, 2, v%d" % (HR, HL))
            e("v_add_u32 v%d, %d, v%d" % (HG, L_ACC + 2 * NW * ROWB, HR))
            e("v_lshlrev_b32 v%d, 4, v%d" % (HK, HL))
        e("s_add_u32 s%d, s%d, 64" % (PE, PG))
        e("s_mul_i32 s%d, s%d, 171" % (PE, PE))
        e("s_lshr_b32 s%d, s%d, 9" % (PE, PE))
        e("s_mul_i32 s%d, s%d, %d" % (CHL, PE, FSTR))
        e("s_add_u32 s%d, s%d, %d" % (CHL, CHL, WS_G + ELN * FSTR))
        e("s_mul_i32 s%d, s%d, %d" % (CRB, PE, DH * 2))
        e("s_cmp_eq_u32 s%d, 21" % PE)
        e("s_cselect_b32 s%d, 15, 23" % CN)
        e("s_mul_i32 s%d, s%d, 24" % (PE, PE))
        e("s_add_u32 s%d, s2, 512" % PSG)
        e("s_sub_u32 s%d, s%d, s%d" % (CR0, PSG, PE))
        e("s_lshl_b32 s%d, s%d, 10" % (PSG, PSG))
        e("s_mov_b32 s%d, 0x40000" % PSP)
        e.label("L_fs")
        e("buffer_load_dword v%d, off, s[%d:%d], s%d offset:4 sc1" % (HA, PWS, PWS + 3, CHL))
        e("s_sub_u32 s%d, s%d, 1" % (PSP, PSP))
        e("s_cbranch_scc1 L_exit1")
        e("s_waitcnt vmcnt(0)")
        e("v_cmp_eq_u32 vcc, 0, v%d" % HA)
        e("s_cbranch_vccnz L_fs")
        e("buffer_load_dword v%d, v%d, s[%d:%d], s%d offen offset:128 sc1" % (HE, HR, PWS, PWS + 3, CHL))
        e("ds_read_b128 v[%d:%d], v%d offset:%d" % (HA, HD, HZ, L_ML + 32))
        e("v_xor_b32 v%d, 1, v%d" % (HF, HL))
        e("v_cmp_eq_u32 vcc, s%d, v%d" % (CR0, HL))
        e("v_cndmask_b32 v%d, v%d, v%d, vcc" % (HF, HL, HF))
        e("v_add_u32 v%d, s%d, v%d" % (HF, PE, HF))
        e("v_lshlrev_b32 v%d, 10, v%d" % (HF, HF))
        for r in range(24):
            e("v_readlane_b32 s%d, v%d, %d" % (COF[r], HF, r))
        srd(CO, 78, H * DH * 2)
        e("v_lshlrev_b32 v%d, 1, v%d" % (HR, HL))
        e("s_waitcnt vmcnt(0)")
        e("v_readlane_b32 s%d, v%d, s%d" % (CSO, HE, CR0))
        e("v_cndmask_b32 v%d, v%d, v%d, vcc" % (HE, HE, HZ))
        for r in range(24):
            e("v_readlane_b32 s%d, v%d, %d" % (CSC + r, HE, r))
        e("v_mov_b32 v%d, 1" % HV)
        if EL:
            if P["dry"] & 1:
                e("v_mov_b32 v%d, 4" % HE)
                e("s_mov_b64 vcc, 0")
                e("s_mov_b64 exec, 0")
                e("s_branch L_dry_in")
                e.lines.append("L_dry_ret:")
            e("s_mov_b64 exec, 1")
            lds_wait("el", HZ, HE, PE, L_EL, "4", PSP)
            e("buffer_atomic_add v%d, off, s[%d:%d], s%d sc0" % (HV, PWS, PWS + 3, CHL))
            e("s_mov_b64 exec, -1")
            e("s_waitcnt vmcnt(0)")
            e("v_readfirstlane_b32 s%d, v%d" % (PE, HV))
            e("s_cmp_lg_u32 s%d, s%d" % (PE, CN))
            e("s_cbranch_scc1 L_exit1")
            e.lines.append("L_dry_in:")
            for r in range(24):
                e("buffer_load_dwordx4 v[%d:%d], v%d, s[%d:%d], s%d offen sc1" % (RB + 4 * r, RB + 4 * r + 3, HK, PWS, PWS + 3, COF[r]))
        lds_wait("n", HZ, HE, PE, L_CA + 8, "4", PSP)
        for kk in range(3):
            for w in range(NW):
                e("ds_read_b32 v%d, v%d offset:%d" % (HX + kk * NW + w, HG, w * ROWB + kk * 256))
        if not EL:
            e("s_mov_b64 exec, 1")
            e("buffer_atomic_add v%d, off, s[%d:%d], s%d sc0" % (HV, PWS, PWS + 3, CHL))
            e("s_mov_b64 exec, -1")
        e("s_mov_b32 s%d, 0x40000" % PSP)
        for kk in range(3):
            b = HX + kk * NW
            e("s_waitcnt lgkmcnt(%d)" % (8 - 4 * kk))
            e("v_add_f32 v%d, v%d, v%d" % (b, b, b + 1))
            e("v_add_f32 v%d, v%d, v%d" % (b + 2, b + 2, b + 3))
            e("v_sub_f32 v%d, v%d, v%d" % (b, b, HC))
            e("v_add_f32 v%d, v%d, v%d" % (HX + 12 + kk, b, b + 2))
        if EL:
            e("s_cbranch_execnz L_fr2" if P["dry"] & 1 else "s_branch L_fr2")
        else:
            e("buffer_store_dwordx4 v[%d:%d], v%d, s[%d:%d], s%d offen sc1" % (HX + 12, HX + 15, HK, PWS, PWS + 3, PSG))
        if P["stamp"] == 5 and not EL:
            e("s_memrealtime s[%d:%d]" % (PE + 4, PE + 5))
        if 2 <= P["fc"] < 4:
            e("s_waitcnt vmcnt(%d)" % (P["fc"] - 2))
            e("v_readfirstlane_b32 s%d, v%d" % (PE, HV))
            e("s_cmp_lg_u32 s%d, s%d" % (PE, CN))
            e("s_cbranch_scc1 L_fx")
        e.label("L_fr")
        for r in range(24):
            e("buffer_load_dwordx4 v[%d:%d], v%d, s[%d:%d], s%d offen sc1" % (RB + 4 * r, RB + 4 * r + 3, HK, PWS, PWS + 3, COF[r]))
        e.lines.append("L_fr2:")
        for k, a_ in enumerate((HA, HB_, HC)):
            e("v_mul_f32 v%d, s%d, v%d" % (a_, CSO, HX + 12 + k))
        e("v_mov_b32 v%d, 1" % HD)
        e("s_sub_u32 s%d, s%d, 1" % (PSP, PSP))
        e("s_cbranch_scc1 L_exit1")
        for r in range(24):
            if r % 2 == 0:
                e("s_waitcnt vmcnt(%d)" % (22 - r))
            for k, a_ in enumerate((HA, HB_, HC)):
                e("v_fmac_f32 v%d, s%d, v%d" % (a_, CSC + r, RB + 4 * r + k))
            if r % 2:
                e("v_min3_u32 v%d, v%d, v%d, v%d" % (HD, HD, RB + 4 * r - 1, RB + 4 * r + 3))
        if P["fc"] == 1:
            e("v_readfirstlane_b32 s%d, v%d" % (PE, HV))
        e("v_cmp_eq_u32 vcc, 0, v%d" % HD)
        for a_ in (HA, HB_, HC):
            e("v_cvt_pk_bf16_f32 v%d, v%d, v%d" % (a_, a_, a_))
        if P["fc"] == 1:
            e("s_cmp_lg_u32 s%d, s%d" % (PE, CN))
            e("s_cbranch_scc1 L_fx")
        e("s_cbranch_vccnz L_fr")
        for k, a_ in enumerate((HA, HB_, HC)):
            e("buffer_store_short v%d, v%d, s[%d:%d], s%d offen offset:%d %s" % (a_, HR, CO, CO + 3, CRB, k * 128, P["os"]))
        if EL and P["dry"] & 1:
            e("s_cbranch_execz L_dry_ret")
        if P["stamp"] == 5:
            e("s_memrealtime s[%d:%d]" % (PT, PT + 1))
            e("s_waitcnt vmcnt(0)")
            e("s_memrealtime s[%d:%d]" % (PT + 2, PT + 3))
            srd(PS2, 82, 0x8000000)
            e("s_waitcnt lgkmcnt(0)")
            e("v_mov_b32 v%d, s%d" % (HX, PT))
            e("v_mov_b32 v%d, s%d" % (HX + 1, PT + 2))
            e("v_mov_b32 v%d, s%d" % (HX + 2, PSP))
            e("s_mul_i32 s%d, s%d, 171" % (PE, CRB))
            e("s_lshr_b32 s%d, s%d, 16" % (PE, PE))
            e("s_lshl_b32 s%d, s%d, 4" % (PE, PE))
            e("s_add_u32 s%d, s%d, 0x4009000" % (PE, PE))
            e("s_mov_b64 exec, 1")
            e("buffer_store_dwordx4 v[%d:%d], off, s[%d:%d], s%d" % (HX, HX + 3, PS2, PS2 + 3, PE))
        e.lines.append("L_fx:")
        if P["stamp"] == 5 and not EL:
            srd(PS2, 82, 0x8000000)
            e("s_memrealtime s[%d:%d]" % (PT + 2, PT + 3))
            e("s_waitcnt lgkmcnt(0)")
            e("v_mov_b32 v%d, s%d" % (HX, PE + 4))
            e("v_mov_b32 v%d, s%d" % (HX + 1, PT + 2))
            e("s_lshl_b32 s%d, s2, 3" % PE)
            e("s_add_u32 s%d, s%d, 0x400a000" % (PE, PE))
            e("s_mov_b64 exec, 1")
            e("buffer_store_dwordx2 v[%d:%d], off, s[%d:%d], s%d" % (HX, HX + 1, PS2, PS2 + 3, PE))
        e("s_endpgm")

    if BC:
        e.label("L_h3")
        e("s_waitcnt lgkmcnt(0)")
        srd_ws(PWS)
        if not EB:
            e("s_barrier")
        if P["pf"] in (5, 6):
            vpf(P["pf"] == 6)
        if P["pf"] == 9:
            vpf(False, True)
        if P["pf"] == 8:
            srd(PS2, 70, H * NGRP * DH * 2)
            srd(PS3, 72, H * NGRP * DH * 2)
            e("v_lshlrev_b32 v%d, 4, v%d" % (HE, HL))
            if P["pd"]:
                e("s_add_u32 s%d, s%d, %d" % (PST, PST, P["pd"]))
                twait(PST, PT, P["pe"])
            for ph in (1, 2):
                e("s_mov_b32 s%d, %d" % (PPH, ph))
                seg_scalars()
                e("s_mul_i32 s%d, s%d, 24" % (PE + 1, PM))
                e("s_add_u32 s%d, s%d, s%d" % (PE + 2, PE + 1, PG0))
                e("s_mul_i32 s%d, s%d, %d" % (PE, PE + 2, DH * 2))
                e("v_add_u32 v%d, s%d, v%d" % (HA, PE, HE))
                e("v_add_u32 v%d, 0x1000, v%d" % (HB_, HA))
                e("v_add_u32 v%d, 0x2000, v%d" % (HC, HA))
                for sr in (PS2, PS3):
                    for k in range(9):
                        e("buffer_load_dwordx4 v[%d:%d], v%d, s[%d:%d], 0 offen offset:%d" % (HX + 64, HX + 67, (HA, HB_, HC)[k // 4], sr, sr + 3, (k % 4) * 1024))
                if P["pe"]:
                    twait(PST, PT, P["pe"])
            vpf(False)
            e("v_mov_b32 v%d, 1" % HE)
            e("ds_write_b32 v%d, v%d offset:%d" % (HZ, HE, L_PF))
        e("v_lshlrev_b32 v%d, 2, v%d" % (HD, HL))
        e("s_mul_i32 s%d, s%d, %d" % (PO, PM, FSTR))
        e("s_add_u32 s%d, s%d, %d" % (PO, PO, WS_T))
        e("s_lshl_b32 s%d, s%d, 2" % (PFL, PG))
        e("s_add_u32 s%d, s%d, s%d" % (PFL, PFL, PO))
        if GTS:
            cps = CPK + [48 + c for c in CPV]
            sel = [max(j for j, c in enumerate(cps) if c + P["tg"] + P["rd"] < b) for b in GTS]
            e("s_mov_b32 s%d, 0x%x" % (PRN, sum(1 << j for j in sel)))
            e("v_lshrrev_b32 v%d, 2, v%d" % (HG, HL))
            e("v_mul_u32_u24 v%d, %d, v%d" % (HG, FSTR, HG))
            e("v_and_or_b32 v%d, v%d, 12, v%d" % (HG, HD, HG))
            e("s_and_b32 s%d, s%d, 3" % (PBK, PM))
            e("s_mul_i32 s%d, s%d, %d" % (PNR, PBK, FSTR))
            e("s_lshl_b32 s%d, s%d, 2" % (PBK, PBK))
            e("v_mov_b32 v%d, %d" % (HK, L_GT))
        e("s_mov_b32 s%d, %d" % (PJ, P["pw"]))
        e("v_mov_b32 v%d, %d" % (HW, L_TM))
        e("v_bfrev_b32 v%d, -2" % HC)
        e("s_mov_b32 exec_hi, 0")
        e.label("L_h3loop")
        lds_wait("p1", HZ, HE, PE, L_TC, "s%d" % PJ, PSP)
        e("s_memrealtime s[%d:%d]" % (PT, PT + 1))
        e("s_add_u32 s%d, s%d, %d" % (PJ, PJ, 5 - P["pw"]))
        e("s_mov_b32 exec_lo, 1")
        e("s_waitcnt lgkmcnt(0)")
        e("v_mov_b32 v%d, s%d" % (HB_, PT))
        e("buffer_store_dword v%d, off, s[%d:%d], s%d" % (HB_, PWS, PWS + 3, PFL))
        e("s_mov_b32 exec_lo, -1")
        if P["xs"]:
            XS = P["xs"]
            e("s_lshl_b32 s%d, s2, %d" % (PE, 10 if XS & 8 else 12))
            e("s_add_u32 s%d, s%d, 0x700000" % (PE, PE))
            e("v_lshlrev_b32 v%d, 4, v%d" % (HX, HL))
            e("s_mov_b64 exec, %s" % ("-1" if XS & 2 else "1"))
            e("v_lshlrev_b32 v%d, 4, v%d" % (HX, HL))
            for k in range(4 if XS & 16 else 1):
                e("buffer_%s_dwordx4 v[%d:%d], v%d, s[%d:%d], s%d offen offset:%d %s" %
                  ("load" if XS & 4 else "store", HX + 4, HX + 7, HX, PWS, PWS + 3, PE, 1024 * k, "sc1" if XS & 1 else "" if not XS & 32 else "sc0 sc1"))
            e("s_mov_b64 exec, 0xffffffff")
        lds_wait("p2", HZ, HE, PE, L_TC, "s%d" % PJ, PSP)
        e("buffer_load_dword v%d, v%d, s[%d:%d], s%d offen sc0" % (HB_, HD, PWS, PWS + 3, PO))
        e("s_add_u32 s%d, s%d, 4" % (PJ, PJ))
        e("s_sub_u32 s%d, s%d, 4096" % (PT, PT))
        e("s_waitcnt vmcnt(0)")
        e("v_subrev_u32 v%d, s%d, v%d" % (HB_, PT, HB_))
        e("v_cmp_gt_u32 vcc, 8192, v%d" % HB_)
        e("v_cndmask_b32 v%d, v%d, v%d, vcc" % (HB_, HC, HB_))
        e("s_mov_b32 s%d, 2048" % PE)
        for st in (2048, 1024, 512, 256, 128, 64, 32, 16, 8):
            e("s_add_u32 s%d, s%d, %d" % (PE + 1, PE, st))
            e("v_cmp_gt_u32 vcc, s%d, v%d" % (PE + 1, HB_))
            e("s_bcnt1_i32_b64 s%d, vcc" % (PE + 2))
            e("s_cmp_lt_u32 s%d, %d" % (PE + 2, P["aq"]))
            e("s_cselect_b32 s%d, s%d, s%d" % (PE, PE + 1, PE))
        e("s_add_u32 s%d, s%d, s%d" % (PE + 1, PE, PT))
        e("s_or_b32 s%d, s%d, 1" % (PE + 1, PE + 1))
        e("v_mov_b32 v%d, s%d" % (HB_, PE + 1))
        e("ds_write_b32 v%d, v%d" % (HW, HB_))
        e("v_add_u32 v%d, 4, v%d" % (HW, HW))
        if GTS:
            e("s_bitcmp1_b32 s%d, 0" % PRN)
            e("s_cbranch_scc0 L_h3ng")
            e("s_cmp_lt_u32 s%d, 6136" % PE)
            e("s_cselect_b32 exec_lo, 1, 0")
            e("s_cmp_lt_u32 s%d, 4" % PG)
            e("s_cselect_b32 exec_lo, exec_lo, 0")
            e("buffer_store_dword v%d, off, s[%d:%d], s%d offset:2048 sc1" % (HB_, PWS, PWS + 3, PFL))
            e("s_mov_b32 exec_lo, 0xffff")
            e("s_add_u32 s%d, s%d, %d" % (PE + 3, PJ, P["gq"]))
            lds_wait("p3", HZ, HE, PE, L_TC, "s%d" % (PE + 3), PSP)
            e("s_sub_u32 s%d, s%d, s%d" % (PE + 3, PO, PNR))
            e("s_mov_b32 s%d, %d" % (PSP, P["gn"]))
            e("s_mov_b32 s%d, 0" % PE)
            if P["gl2"]:
                e("buffer_load_dword v%d, v%d, s[%d:%d], s%d offen offset:2048" % (HA, HG, PWS, PWS + 3, PE + 3))
                e("s_branch L_h3gq")
            e.label("L_h3gp")
            e("buffer_load_dword v%d, v%d, s[%d:%d], s%d offen offset:2048 sc1" % (HA, HG, PWS, PWS + 3, PE + 3))
            e("s_sub_u32 s%d, s%d, 1" % (PSP, PSP))
            e("s_cbranch_scc1 L_h3gw")
            e.lines.append("L_h3gq:")
            e("s_waitcnt vmcnt(0)")
            e("v_subrev_u32 v%d, s%d, v%d" % (HA, PT, HA))
            e("v_cmp_gt_u32 vcc, 8192, v%d" % HA)
            e("v_cndmask_b32 v%d, v%d, v%d, vcc" % (HA, HC, HA))
            e("v_min_u32_dpp v%d, v%d, v%d quad_perm:[1,0,3,2] row_mask:0xf bank_mask:0xf" % (HA, HA, HA))
            e("v_min_u32_dpp v%d, v%d, v%d quad_perm:[2,3,0,1] row_mask:0xf bank_mask:0xf" % (HA, HA, HA))
            e("v_cmp_eq_u32 vcc, v%d, v%d" % (HC, HA))
            e("s_cbranch_vccnz L_h3gp")
            for k in range(4):
                e("v_readlane_b32 s%d, v%d, %d" % (PE + 4 + k, HA, 4 * k))
            e("v_readlane_b32 s%d, v%d, s%d" % (PE + 1, HA, PBK))
            e("s_max_u32 s%d, s%d, s%d" % (PE + 4, PE + 4, PE + 5))
            e("s_max_u32 s%d, s%d, s%d" % (PE + 6, PE + 6, PE + 7))
            e("s_max_u32 s%d, s%d, s%d" % (PE, PE + 4, PE + 6))
            e("s_sub_u32 s%d, s%d, s%d" % (PE, PE, PE + 1))
            e("s_sub_u32 s%d, s%d, %d" % (PE, PE, P["gtol"]))
            e("s_max_i32 s%d, s%d, 0" % (PE, PE))
            e("s_min_i32 s%d, s%d, %d" % (PE, PE, P["gcap"]))
            e.label("L_h3gw")
            e("s_or_b32 s%d, s%d, 0x10000" % (PE, PE))
            e("v_mov_b32 v%d, s%d" % (HB_, PE))
            e("ds_write_b32 v%d, v%d" % (HK, HB_))
            e("s_mov_b32 exec_lo, -1")
            e("v_add_u32 v%d, 4, v%d" % (HK, HK))
            e("s_waitcnt vmcnt(0)")
            e.label("L_h3ng")
            e("s_lshr_b32 s%d, s%d, 1" % (PRN, PRN))
        e("s_add_u32 s%d, s%d, %d" % (PJ, PJ, 3 + P["pw"]))
        e("s_add_u32 s%d, s%d, 128" % (PO, PO))
        e("s_add_u32 s%d, s%d, 128" % (PFL, PFL))
        e("s_cmp_lt_u32 s%d, %d" % (PJ, 12 * (len(CPK) + len(CPV))))
        e("s_cbranch_scc1 L_h3loop")
        if P["fc"] == 4:
            last_gather()
        else:
            e("s_endpgm")

    e.label("L_h2")
    srd(PS2, 74, H * SKV * 2)
    srd(PS3, 76, H * SKV * 2)
    if 2 <= P["pf"] <= 4:
        if P["pf"] == 2:
            lds_wait("pf", HZ, HE, PE, L_EV + 4, "1", PSP)
        if P["pf"] == 4:
            lds_wait("pf", HZ, HE, PE, L_EV, "1", PSP)
        e("v_lshlrev_b32 v%d, 4, v%d" % (HA, HL))
        e("s_lshl_b32 s%d, s2, 13" % PE)
        e("s_add_u32 s%d, s%d, 4096" % (PE + 1, PE))
        for a, sr in enumerate((PS2, PS3)):
            for k in range(8):
                r = HX + 4 * (a * 8 + k)
                e("buffer_load_dwordx4 v[%d:%d], v%d, s[%d:%d], s%d offen offset:%d" % (r, r + 3, HA, sr, sr + 3, PE + k // 4, (k % 4) * 1024))
        e("s_waitcnt vmcnt(0)")
    get_dec("d2")
    PSIX = 24
    PKW = 32; PNEED = 33; PN0 = 34; PIM = 35; PCH = 36; PCC = 37; PMG = 38; PWD = 39; PIS = 40
    PGT = 42
    HT = HW
    HP = HX + 88; PXM = 64
    e("v_and_b32 v%d, 3, v%d" % (HT, HL))
    e("v_and_b32 v%d, 7, v%d" % (HT2, HL))
    e("v_lshrrev_b32 v%d, 2, v%d" % (HR, HL))
    PMB = [int(c) for c in P["pm"]]
    if CM:
        e("v_mov_b32 v%d, v%d" % (HB_, HR))
        e("v_mov_b32 v%d, 0" % HR)
        for i in range(4):
            e("v_bfe_i32 v%d, v%d, %d, 1" % (HA, HB_, i))
            e("v_and_b32 v%d, %d, v%d" % (HA, CM[i], HA))
            e("v_xor_b32 v%d, v%d, v%d" % (HR, HR, HA))
    elif P["pm"] != "012345":
        e("v_mov_b32 v%d, v%d" % (HB_, HR))
        e("v_and_b32 v%d, %d, v%d" % (HR, sum(1 << i for i in range(4) if PMB[i] == i), HB_))
        for sh in sorted(set(PMB[i] - i for i in range(4)) - {0}):
            e("v_and_b32 v%d, %d, v%d" % (HA, sum(1 << i for i in range(4) if PMB[i] - i == sh), HB_))
            e("v_%s_b32 v%d, %d, v%d" % ("lshlrev" if sh > 0 else "lshrrev", HA, abs(sh), HA))
            e("v_or_b32 v%d, v%d, v%d" % (HR, HR, HA))
    if P["am"] == 3:
        for i, c in enumerate(P["xm"].split("-")):
            assert 0 <= int(c) < 64
            if int(c):
                e("s_bitcmp1_b32 s%d, %d" % (PG, i))
                e("s_cselect_b32 s%d, %d, 0" % (PE, int(c)))
                e("v_xor_b32 v%d, s%d, v%d" % (HR, PE, HR))
    e("s_mov_b32 s%d, %s" % (PCC, f32hex(C)))
    e("s_mov_b32 s%d, 0xaaaaaaab" % PMG)
    e("s_mov_b32 s%d, 0" % PPH)
    HPG = HP + 1 if XZ else HP
    if XZ:
        e("s_lshl_b32 s%d, s%d, 3" % (PIM, PG))
        img_base(PIM, PIM, PE)
        img_lane(HPG, HA)
    else:
        e("s_mul_i32 s%d, s%d, %d" % (PIM, PG, 8 * IMS))
    e("s_add_u32 s%d, s%d, %d" % (PIM, PIM, WS_L))
    e("s_mov_b32 s%d, %d" % (PIS, XZ or IMS))
    e("v_lshlrev_b32 v%d, 5, v%d" % (HN, HL))
    e("v_lshrrev_b32 v%d, 3, v%d" % (HK, HL))
    e("v_mul_u32_u24 v%d, 24, v%d" % (HK, HK))
    e("v_mov_b32 v%d, 768" % HA)
    e("v_mad_u32_u24 v%d, v%d, v%d, v%d" % (HK, HT2, HA, HK))
    if CX:
        e("v_lshrrev_b32 v%d, 3, v%d" % (HA, HL))
        e("v_lshlrev_b32 v%d, 7, v%d" % (HP, HT2))
        e("v_lshl_add_u32 v%d, v%d, 4, v%d" % (HP, HA, HP))
        if P["cl"]:
            e("v_lshlrev_b32 v%d, 4, v%d" % (HP + 1, HL))
        if P["x12"]:
            for r in (HP, HP + 1):
                e("v_lshrrev_b32 v%d, 4, v%d" % (r, r))
                e("v_mul_u32_u24 v%d, 12, v%d" % (r, r))
    else:
        e("v_lshlrev_b32 v%d, 4, v%d" % (HP, HL))
    e("s_mov_b32 s%d, %d" % (PN0, (2 if CX else 3) * N0))
    RS = 16
    e.label("L_prep")
    seg_scalars()
    e("s_mov_b32 s%d, s%d" % (PKW, PDC))
    e("s_mov_b32 s%d, s%d" % (PWD, PDC + 3))
    for i in (0, 1, 3, 4):
        e("s_mov_b32 s%d, s%d" % (PDC + i, PDC + i + 1))
    e("s_lshl_b32 s%d, s%d, 3" % (PNEED, PPH))
    e("s_add_u32 s%d, s%d, 1" % (PNEED, PNEED))
    if P["pf"] == 1:
        lds_wait("pf", HZ, HE, PE, L_EV + 4, "s%d" % PNEED, PSP)
        e("v_lshlrev_b32 v%d, 4, v%d" % (HA, HL))
        e("s_mul_i32 s%d, s%d, 2736" % (PE + 1, PM))
        e("s_lshl_b32 s%d, s%d, 16" % (PE, PSG))
        e("s_mul_hi_u32 s%d, s%d, 0xaaaaaaab" % (PE, PE))
        e("s_lshr_b32 s%d, s%d, 5" % (PE, PE))
        e("s_lshl_b32 s%d, s%d, 4" % (PE, PE))
        e("s_add_u32 s%d, s%d, s%d" % (PE, PE, PE + 1))
        if P["pp"]:
            e("s_memrealtime s[%d:%d]" % (PGT, PGT + 1))
            e("s_waitcnt lgkmcnt(0)")
        for a, sr in enumerate((PS2, PS3)):
            if a and P["bs"] & 4:
                e("s_add_u32 s%d, s%d, %d" % (PE + 1, PNEED, P["bz"] - 1))
                lds_wait("pz", HZ, HE, PE + 2, L_EV + 4, "s%d" % (PE + 1), PSP)
            for k in range(3):
                r = HX + 4 * RS + 4 * (a * 3 + k)
                if P["pp"]:
                    twait(PGT, PGT + 2, P["pp"])
                e("buffer_load_dwordx4 v[%d:%d], v%d, s[%d:%d], s%d offen offset:%d%s" % (r, r + 3, HA, sr, sr + 3, PE, k * 1024, " nt" if P["bnt"] & 8 else ""))
    for w, hv in ((PWD, HV),):
        e("s_and_b32 s%d, s%d, 7" % (PE, w))
        e("v_mov_b32 v%d, s%d" % (hv, PE))
        e("s_bitcmp1_b32 s%d, 3" % w)
        e("s_cselect_b64 vcc, -1, 0")
        e("v_cndmask_b32 v%d, v%d, v%d, vcc" % (hv, hv, HT2))
    e("v_xor_b32 v%d, s%d, v%d" % (HG, PNB, HV))
    e("v_lshl_or_b32 v%d, v%d, 3, v%d" % (HG, HT, HG))
    e("s_lshl_b32 s%d, s%d, 6" % (PCH, PSG))
    e("s_mul_i32 s%d, s%d, 768" % (PE + 1, PSG))
    e("s_lshl_b32 s%d, s%d, 2" % (PE + 2, PG0))
    e("s_sub_u32 s%d, s%d, s%d" % (PE + 1, PE + 1, PE + 2))
    e("s_add_u32 s%d, s%d, %d" % (PE + 1, PE + 1, WS_B))
    if P["pace"]:
        e("s_add_u32 s%d, s%d, 4" % (PNEED, PNEED))
        lds_wait("ga", HZ, HE, PE, L_EV + 4, "s%d" % PNEED, PSP)
    else:
        e("s_add_u32 s%d, s%d, 1" % (PNEED, PPH))
        lds_wait("ga", HZ, HE, PE, L_FD, "s%d" % PNEED, PSP)
    def first_token(st):
        e("v_xor_b32 v%d, %d, v%d" % (HA, ((st & 1) * CM[4]) ^ ((st >> 1) * CM[5]) if CM else ((st & 1) << PMB[4]) | ((st >> 1) << PMB[5]), HR))
        e("v_bfe_u32 v%d, v%d, 3, 2" % (HB_, HA))
        e("v_and_or_b32 v%d, v%d, 4, v%d" % (HB_, HA, HB_))
        e("v_xor_b32 v%d, v%d, v%d" % (HB_, HG, HB_))
        e("v_add_u32 v%d, s%d, v%d" % (HA, PCH, HA))
        e("v_lshl_add_u32 v%d, v%d, 5, v%d" % (HC, HA, HB_))
        e("v_lshl_add_u32 v%d, v%d, 4, 1" % (HC, HC))
        e("v_mul_hi_u32 v%d, v%d, s%d" % (HC, HC, PMG))
        e("v_lshrrev_b32 v%d, 1, v%d" % (HC, HC))

    def gathers(st):
        R = HX + RS * st
        e("v_lshrrev_b32 v%d, 1, v%d" % (HF, HC))
        e("v_lshlrev_b32 v%d, 2, v%d" % (HF, HF))
        for b, sr in ((R + 8, PS2), (R + 12, PS3)):
            if P["xkp"] & 8:
                continue
            gnt = " nt" if P["bnt"] & 16 else ""
            if P["gp"]:
                if st == 0 and sr == PS2:
                    e("s_memrealtime s[%d:%d]" % (PGT, PGT + 1))
                    e("s_waitcnt lgkmcnt(0)")
                n = P["gs"]
                for q in range(n):
                    twait(PGT, PGT + 2, P["gp"])
                    if n > 1:
                        mk = ((1 << (64 // n)) - 1) << (64 // n * q)
                        e("s_mov_b32 exec_lo, 0x%x" % (mk & 0xffffffff))
                        e("s_mov_b32 exec_hi, 0x%x" % (mk >> 32))
                    if P["gf"]:
                        e("buffer_load_dwordx4 v[%d:%d], v%d, s[%d:%d], 0 offen %s" % (b, b + 3, HF, sr, sr + 3, P["gf"].replace("x", "")))
                        continue
                    e("buffer_load_dwordx3 v[%d:%d], v%d, s[%d:%d], 0 offen%s" % (b, b + 2, HF, sr, sr + 3, gnt))
                    e("buffer_load_dword v%d, v%d, s[%d:%d], 0 offen offset:12%s" % (b + 3, HF, sr, sr + 3, gnt))
                e("s_mov_b64 exec, -1")
                continue
            e("buffer_load_dwordx3 v[%d:%d], v%d, s[%d:%d], 0 offen%s" % (b, b + 2, HF, sr, sr + 3, gnt))
            if P["pace"] == 2:
                e("s_waitcnt vmcnt(0)")
            e("buffer_load_dword v%d, v%d, s[%d:%d], 0 offen offset:12%s" % (b + 3, HF, sr, sr + 3, gnt))

    for st in range(4):
        R = HX + RS * st
        first_token(st)
        if not P["go"]:
            gathers(st)
        e("v_lshrrev_b32 v%d, 6, v%d" % (R + 6, HC))
        e("v_lshl_add_u32 v%d, v%d, 2, s%d" % (R + 6, R + 6, PE + 1))
        e("v_and_b32 v%d, 15, v%d" % (HD, HC))
        e("v_cmp_eq_u32 s[%d:%d], 5, v%d" % (PSIX + 2 * st, PSIX + 2 * st + 1, HD))
        e("v_and_b32 v%d, 1, v%d" % (R + 7, HC))
        e("v_lshlrev_b32 v%d, 4, v%d" % (R + 7, R + 7))
        if P["pace"] == 1:
            e("s_waitcnt vmcnt(0)")
    e("s_add_u32 s%d, s%d, 1" % (PNEED, PPH))
    if P["fd"]:
        cps = CPK + [48 + c for c in CPV]
        th = [12 * min(j for j, c in enumerate(cps) if c > b) + P["fd"] for b in (16, 32, 48)]
        assert th[2] - th[1] == th[1] - th[0]
        e("s_mul_i32 s%d, s%d, %d" % (PE + 6, PPH, th[1] - th[0]))
        e("s_add_u32 s%d, s%d, %d" % (PE + 6, PE + 6, th[0]))
        lds_wait("fe", HZ, HE, PE, L_TC, "s%d" % (PE + 6), PSP)
    lds_wait("fd", HZ, HE, PE, L_FD, "s%d" % PNEED, PSP)
    e("v_mul_u32_u24 v%d, %d, v%d" % (HA, FSTR, HL))
    e("s_xor_b32 s%d, s%d, s%d" % (PE, PKW, PWD))
    e("s_xor_b32 s%d, s%d, s%d" % (PE, PE, PNB))
    e("s_and_b32 s%d, s%d, 7" % (PE, PE))
    e("v_mov_b32 v%d, s%d" % (HC, PNEED))
    e("s_lshl_b64 vcc, 1, s%d" % PE)
    e("s_or_b32 s%d, s%d, s%d" % (PE, PKW, PWD))
    e("s_bitcmp1_b32 s%d, 3" % PE)
    e("s_cselect_b64 vcc, 0xff, vcc")
    e("s_cmp_eq_u32 s%d, s%d" % (PKW, PWD))
    e("s_cselect_b64 vcc, 0, vcc")
    e("s_max_u32 s%d, s%d, 1" % (PE, PPH))
    e("v_mov_b32 v%d, s%d" % (HD, PE))
    e("v_cndmask_b32 v%d, v%d, v%d, vcc" % (HC, HD, HC))
    e("s_cmp_%s_u32 s%d, 1" % ("eq" if P["jit"] else "ge", PPH))
    e("s_cselect_b64 exec, vcc, 0xff")
    e("s_mov_b32 s%d, 0x40000" % PSP)
    if not P["xkp"] & 64:
        e("s_cbranch_execz L_noflags")
        e.label("L_flags")
        e("buffer_load_dword v%d, v%d, s[%d:%d], s%d offen sc1" % (HB_, HA, PWS, PWS + 3, PGL))
        e("s_sub_u32 s%d, s%d, 1" % (PSP, PSP))
        e("s_cbranch_scc1 L_exit1")
        e("s_waitcnt vmcnt(0)")
        e("v_cmpx_gt_u32 vcc, v%d, v%d" % (HC, HB_))
        e("s_cbranch_execnz L_flags")
        e.label("L_noflags")
    e("s_mov_b64 exec, -1")
    for st in range(4):
        R = HX + RS * st
        if not P["xkp"] & 32:
            e("buffer_load_dword v%d, v%d, s[%d:%d], 0 offen sc1" % (R + 6, R + 6, PWS, PWS + 3))
    e("s_bitcmp1_b32 s%d, 3" % PWD)
    e("s_cselect_b32 s%d, 0, 7" % (PE + 1))
    e("s_xor_b32 s%d, s%d, s%d" % (PE + 2, PKW, PWD))
    e("s_bitcmp1_b32 s%d, 3" % (PE + 2))
    e("s_cselect_b32 s%d, 7, 0" % (PE + 3))
    e("s_and_b32 s%d, s%d, 7" % (PE + 2, PE + 2))
    e("s_and_b32 s%d, s%d, 7" % (PE + 4, PWD))
    if CX:
        e("v_lshrrev_b32 v%d, 3, v%d" % (HA, HL))
        e("v_cmp_gt_u32 vcc, s%d, v%d" % (PN0, HA))
        e("v_and_b32 v%d, s%d, v%d" % (HC, PE + 3, HT2))
        e("v_xor_b32 v%d, s%d, v%d" % (HC, PE + 2, HC))
        e("v_and_b32 v%d, s%d, v%d" % (HB_, PE + 1, HT2))
        e("v_xor_b32 v%d, s%d, v%d" % (HB_, PE + 4, HB_))
        e("v_cndmask_b32 v%d, v%d, v%d, vcc" % (HB_, HC, HB_))
        for k, hv in enumerate((HB_, HC)):
            e("v_cmp_ne_u32 s[%d:%d], 0, v%d" % (PXM + 2 * k, PXM + 2 * k + 1, hv))
            e("v_xor_b32 v%d, s%d, v%d" % (hv, PNB, hv))
            e("v_mad_u32_u24 v%d, v%d, s%d, v%d" % (hv, hv, PIS, HP + 1 if P["cl"] and k else HP))
        if P["cl"]:
            e("v_mov_b32 v%d, v%d" % (HP, HP + 1))
        for st in range(4):
            R = HX + 4 * RS + 4 * st
            if st < 2:
                e("s_mov_b64 exec, s[%d:%d]" % (PXM + 2 * st, PXM + 2 * st + 1))
            if P["x12"]:
                e("buffer_load_dwordx3 v[%d:%d], v%d, s[%d:%d], s%d offen offset:%d sc1" %
                  (R, R + 2, HC if st else HB_, PWS, PWS + 3, PIM, st * 768))
            elif not P["xkp"] & 128:
                e("buffer_load_dwordx4 v[%d:%d], v%d, s[%d:%d], s%d offen offset:%d sc1" %
                  (R, R + 3, HC if st else HB_, PWS, PWS + 3, PIM, st * 1024))
        e("s_mov_b64 exec, -1")
    else:
        e("s_add_u32 s%d, s%d, 4096" % (PE + 5, PIM))
        for k in range(6):
            R = HX + 4 * RS + 4 * k
            e("v_add_u32 v%d, %d, v%d" % (HA, 64 * k, HL))
            e("v_mul_u32_u24 v%d, 1366, v%d" % (HB_, HA))
            e("v_lshrrev_b32 v%d, 16, v%d" % (HB_, HB_))
            e("v_mul_u32_u24 v%d, 48, v%d" % (HC, HB_))
            e("v_sub_u32 v%d, v%d, v%d" % (HA, HA, HC))
            e("v_cmp_gt_u32 vcc, s%d, v%d" % (PN0, HA))
            e("v_and_b32 v%d, s%d, v%d" % (HC, PE + 3, HB_))
            e("v_xor_b32 v%d, s%d, v%d" % (HC, PE + 2, HC))
            e("v_and_b32 v%d, s%d, v%d" % (HB_, PE + 1, HB_))
            e("v_xor_b32 v%d, s%d, v%d" % (HB_, PE + 4, HB_))
            e("v_cndmask_b32 v%d, v%d, v%d, vcc" % (HC, HC, HB_))
            e("v_cmp_ne_u32 s[%d:%d], 0, v%d" % (PXM + 2 * k, PXM + 2 * k + 1, HC))
            e("v_xor_b32 v%d, s%d, v%d" % (HC, PNB, HC))
            e("v_mad_u32_u24 v%d, v%d, s%d, v%d" % (HC, HC, PIS, HPG))
            if XZ:
                e("s_add_u32 s%d, s%d, %d" % (PE + 5, PIM, img_k(k)))
            if P["fr"]:
                if k == 0:
                    e("s_memrealtime s[%d:%d]" % (PGT, PGT + 1))
                    e("s_waitcnt lgkmcnt(0)")
                twait(PGT, PGT + 2, P["fr"])
            e("s_mov_b64 exec, s[%d:%d]" % (PXM + 2 * k, PXM + 2 * k + 1))
            if XZ:
                e("buffer_load_dwordx4 v[%d:%d], v%d, s[%d:%d], s%d offen sc1" % (R, R + 3, HC, PWS, PWS + 3, PE + 5))
            elif not P["xkp"] & 128:
                e("buffer_load_dwordx4 v[%d:%d], v%d, s[%d:%d], s%d offen offset:%d sc1" %
                  (R, R + 3, HC, PWS, PWS + 3, PE + 5 if k >= 4 else PIM, (k % 4) * 1024))
            e("s_mov_b64 exec, -1")
        e("s_waitcnt vmcnt(0)")
        for k in range(6):
            R = HX + 4 * RS + 4 * k
            e("s_mov_b64 exec, s[%d:%d]" % (PXM + 2 * k, PXM + 2 * k + 1))
            e("ds_write_b128 v%d, v[%d:%d] offset:%d" % (HP, R, R + 3, L_LG + k * 1024))
        e("s_mov_b64 exec, -1")
    if P["go"]:
        for st in range(4):
            first_token(st)
            gathers(st)
    for st in range(4):
        R = HX + RS * st
        for c in range(3):
            e("ds_read_b64 v[%d:%d], v%d offset:%d" % (R + 2 * c, R + 2 * c + 1, HK, L_LG + st * 192 + 8 * c))
    e("s_mov_b32 s%d, 0" % PN0)
    e("v_mov_b32 v%d, 0x%08x" % (HB_, BIGNEG))
    e("v_mov_b32 v%d, 0x%08x" % (HA, BIGNEG))
    e("s_waitcnt vmcnt(0) lgkmcnt(0)")
    if CX:
        for st in range(4):
            R = HX + RS * st
            Q = HX + 4 * RS + 4 * st
            if st < 2:
                e("s_mov_b64 exec, s[%d:%d]" % (PXM + 2 * st, PXM + 2 * st + 1))
            for k in range(6):
                e("v_fma_mix_f32 v%d, v%d, 1.0, v%d op_sel:[%d,0,0] op_sel_hi:[1,0,0]" % (R + k, Q + 1 + k // 2, Q, k & 1))
            e("v_cmp_lt_f32 vcc, v%d, v%d" % (Q, R + 5))
            e("v_cndmask_b32 v%d, v%d, v%d, vcc" % (R + 5, R + 5, HZ))
        e("s_mov_b64 exec, -1")
    for st in range(4):
        R = HX + RS * st
        for k in range(6):
            e("v_sub_f32 v%d, v%d, v%d" % (R + k, R + k, R + 6))
        for k in range(6):
            e("v_mul_f32 v%d, s%d, v%d" % (R + k, PCC, R + k))
        e("v_cndmask_b32 v%d, v%d, v%d, s[%d:%d]" % (R + 5, HB_, R + 5, PSIX + 2 * st, PSIX + 2 * st + 1))
        for k in range(0, 6, 2):
            e("v_max3_f32 v%d, v%d, v%d, v%d" % (HA, HA, R + k, R + k + 1))
        for b in (R + 8, R + 12):
            for k in range(3):
                e("v_alignbit_b32 v%d, v%d, v%d, v%d" % (b + k, b + k + 1, b + k, R + 7))

    wave_reduce([HA], "v_max_f32", [HB_])
    e("v_mov_b32 v%d, 0" % HB_)
    e("v_mov_b32 v%d, 0" % HC)
    for st in range(4):
        R = HX + RS * st
        for k in range(6):
            e("v_sub_f32 v%d, v%d, v%d" % (R + k, R + k, HA))
        for k in range(6):
            e("v_exp_f32 v%d, v%d" % (R + k, R + k))
        for k in range(6):
            e("v_add_f32 v%d, v%d, v%d" % (HB_, HB_, R + k))
            if k & 1:
                e("v_and_b32 v%d, 0xffff0000, v%d" % (HE, R + 8 + k // 2))
                e("v_and_b32 v%d, 0xffff0000, v%d" % (HF, R + 12 + k // 2))
            else:
                e("v_lshlrev_b32 v%d, 16, v%d" % (HE, R + 8 + k // 2))
                e("v_lshlrev_b32 v%d, 16, v%d" % (HF, R + 12 + k // 2))
            e("v_mul_f32 v%d, v%d, v%d" % (R + k, R + k, HE))
            e("v_fmac_f32 v%d, v%d, v%d" % (HC, R + k, HF))
        e("ds_write_b128 v%d, v[%d:%d] offset:%d" % (HN, R, R + 3, L_PV + st * 2048))
        e("ds_write_b64 v%d, v[%d:%d] offset:%d" % (HN, R + 4, R + 5, L_PV + st * 2048 + 16))
    wave_reduce([HB_, HC], "v_add_f32", [HE, HF])
    e("s_lshl_b32 s%d, s%d, 2" % (PE, PPH))
    e("v_mov_b32 v%d, s%d" % (HE, PE))
    e("v_lshlrev_b32 v%d, 2, v%d" % (HF, HE))
    e("v_mov_b32 v%d, s%d" % (HD, PWD))
    e("s_mov_b64 exec, 1")
    e("ds_write_b128 v%d, v[%d:%d] offset:%d" % (HF, HA, HD, L_ML))
    e("ds_write_b32 v%d, v%d offset:%d" % (HE, HD, L_GO))
    if FU:
        e("s_lshl_b32 s%d, s%d, 8" % (PE, PPH))
        e("s_add_u32 s%d, s%d, s2" % (PE, PE))
        e("s_lshl_b32 s%d, s%d, 6" % (PE, PE))
        e("s_add_u32 s%d, s%d, %d" % (PE, PE, WS_ML))
        e("buffer_store_dwordx4 v[%d:%d], off, s[%d:%d], s%d sc1" % (HA, HD, PWS, PWS + 3, PE))
    e("s_mov_b64 exec, -1")
    e("v_add_u32 v%d, 8192, v%d" % (HN, HN))
    e("v_add_u32 v%d, %d, v%d" % (HK, PHI, HK))
    if CX:
        e("s_add_u32 s%d, s%d, %d" % (PIM, PIM, PHS))
    else:
        e("v_add_u32 v%d, %d, v%d" % (HP, PHI, HP))
        if PHS != PHI:
            e("s_add_u32 s%d, s%d, %d" % (PIM, PIM, PHS if XZ else PHS - PHI))
    e("s_add_u32 s%d, s%d, 1" % (PPH, PPH))
    e("s_cmp_lt_u32 s%d, 3" % PPH)
    e("s_cbranch_scc1 L_prep")
    e("s_mov_b32 s%d, 0" % PPH)
    e("v_lshlrev_b32 v%d, 2, v%d" % (HR, HL))
    e("v_add_u32 v%d, %d, v%d" % (HG, L_ACC, HR))
    e("v_lshlrev_b32 v%d, 4, v%d" % (HK, HL))
    e("v_mov_b32 v%d, 1" % (HX + 15))
    e.label("L_merge")
    e("s_lshl_b32 s%d, s%d, 2" % (PE, PPH))
    e("v_mov_b32 v%d, s%d" % (HW, PE))
    e("v_lshlrev_b32 v%d, 2, v%d" % (HF, HW))
    e("ds_read_b128 v[%d:%d], v%d offset:%d" % (HA, HD, HF, L_ML))
    e("s_lshl_b32 s%d, s%d, 8" % (PSG, PPH))
    e("s_add_u32 s%d, s%d, s2" % (PSG, PSG))
    e("s_lshl_b32 s%d, s%d, 10" % (PSG, PSG))
    lds_wait("m", HZ, HE, PE, L_CA, "4", PSP, HW)
    for kk in range(3):
        for w in range(NW):
            e("ds_read_b32 v%d, v%d offset:%d" % (HX + kk * NW + w, HG, w * ROWB + kk * 256))
    for kk in range(3):
        b = HX + kk * NW
        e("s_waitcnt lgkmcnt(%d)" % (8 - 4 * kk))
        e("v_add_f32 v%d, v%d, v%d" % (b, b, b + 1))
        e("v_add_f32 v%d, v%d, v%d" % (b + 2, b + 2, b + 3))
        e("v_sub_f32 v%d, v%d, v%d" % (b, b, HC))
        if FU:
            e("v_add_f32 v%d, v%d, v%d" % (HX + 12 + kk, b, b + 2))
            continue
        e("v_add_f32 v%d, v%d, v%d" % (b, b, b + 2))
        e("buffer_store_dword v%d, v%d, s[%d:%d], s%d offen offset:%d" % (b, HR, PWS, PWS + 3, PSG, kk * 256))
    if FU:
        e("buffer_store_dwordx4 v[%d:%d], v%d, s[%d:%d], s%d offen sc1" % (HX + 12, HX + 15, HK, PWS, PWS + 3, PSG))
    else:
        e("s_mov_b64 exec, 1")
        e("buffer_store_dwordx2 v[%d:%d], off, s[%d:%d], s%d offset:%d" % (HA, HB_, PWS, PWS + 3, PSG, DH * 4))
        e("s_mov_b64 exec, -1")
    e("v_add_u32 v%d, %d, v%d" % (HG, NW * ROWB, HG))
    e("s_add_u32 s%d, s%d, 1" % (PPH, PPH))
    e("s_cmp_lt_u32 s%d, %d" % (PPH, 2 if 0 < P["fc"] < 4 else 3))
    e("s_cbranch_scc1 L_merge")
    if 0 < P["fc"] < 4:
        last_gather()
    if P["stamp"] == 5:
        e("s_memrealtime s[%d:%d]" % (PT, PT + 1))
        e("s_waitcnt vmcnt(0)")
        e("s_memrealtime s[%d:%d]" % (PT + 2, PT + 3))
        srd(PS2, 82, 0x8000000)
        e("s_waitcnt lgkmcnt(0)")
        e("v_mov_b32 v%d, s%d" % (HX, PT))
        e("v_mov_b32 v%d, s%d" % (HX + 1, PT + 2))
        e("s_lshl_b32 s%d, s2, 3" % PE)
        e("s_add_u32 s%d, s%d, 0x400a000" % (PE, PE))
        e("s_mov_b64 exec, 1")
        e("buffer_store_dwordx2 v[%d:%d], off, s[%d:%d], s%d" % (HX, HX + 1, PS2, PS2 + 3, PE))
    e("s_endpgm")

    main_text = e.text()
    if P["nts"]:
        ls = []
        for l in main_text.split("\n"):
            w = l.split()
            if w and w[-1] == "sc1":
                big = w[0].endswith("x4")
                bit = (1 if big else 2) if w[0].startswith("buffer_store") else (4 if big else 8)
                if P["nts"] & bit:
                    l += " nt"
            ls.append(l)
        main_text = "\n".join(ls)
    RPW = 24
    k2 = NAME + "_kernel"
    e.lines.append(".globl %s" % k2)
    e.lines.append(".p2align 8")
    e.lines.append(".type %s,@function" % k2)
    e.lines.append(k2 + ":")
    e.wr = {}; e.tr = {}; e.sw = {}
    e("s_cmp_ge_u32 s2, %d" % H)
    e("s_cbranch_scc1 L_exit2")
    e("s_load_dwordx2 s[4:5], s[0:1], 56")
    e("s_load_dwordx2 s[6:7], s[0:1], 72")
    e("v_lshlrev_b32 v1, 2, v0")
    e("v_mov_b32 v2, 0")
    e("s_mul_i32 s16, s2, %d" % (RPW * PART_STRIDE))
    e("s_mov_b32 s10, %d" % (3 * NWG * PART_STRIDE))
    e("s_mov_b32 s11, 0x00020000")
    e("s_mov_b32 s14, %d" % (H * DH * 2))
    e("s_mov_b32 s15, 0x00020000")
    for k in range(1, RPW // 4):
        e("s_add_u32 s%d, s16, %d" % (16 + k, 4 * k * PART_STRIDE))
    e("s_waitcnt lgkmcnt(0)")
    e("s_mov_b32 s8, s6")
    e("s_and_b32 s9, s7, 0xffff")
    e("s_mov_b32 s12, s4")
    e("s_and_b32 s13, s5, 0xffff")
    MLB = 8
    OB = MLB + 2 * RPW
    for s in range(RPW):
        so = 16 + s // 4
        e("buffer_load_dwordx2 v[%d:%d], v2, s[8:11], s%d offen offset:%d" %
          (MLB + 2 * s, MLB + 2 * s + 1, so, (s % 4) * PART_STRIDE + DH * 4))
        e("buffer_load_dword v%d, v1, s[8:11], s%d offen offset:%d" % (OB + s, so, (s % 4) * PART_STRIDE))
    e("s_waitcnt vmcnt(0)")
    e("v_mov_b32 v4, v%d" % MLB)
    for s in range(1, RPW):
        e("v_max_f32 v4, v4, v%d" % (MLB + 2 * s))
    for s in range(RPW):
        e("v_sub_f32 v%d, v%d, v4" % (MLB + 2 * s, MLB + 2 * s))
    for s in range(RPW):
        e("v_exp_f32 v%d, v%d" % (MLB + 2 * s, MLB + 2 * s))
    e("v_mul_f32 v5, v%d, v%d" % (MLB, MLB + 1))
    e("v_mul_f32 v6, v%d, v%d" % (MLB, OB))
    for s in range(1, RPW):
        e("v_fmac_f32 v5, v%d, v%d" % (MLB + 2 * s, MLB + 2 * s + 1))
        e("v_fmac_f32 v6, v%d, v%d" % (MLB + 2 * s, OB + s))
    e("v_rcp_f32 v5, v5")
    e("v_mul_f32 v6, v6, v5")
    e("v_cvt_pk_bf16_f32 v6, v6, v6")
    e("s_mul_i32 s16, s2, %d" % (DH * 2))
    e("v_lshrrev_b32 v1, 1, v1")
    e("buffer_store_short v6, v1, s[12:15], s16 offen")
    e.lines.append("L_exit2:")
    e("s_endpgm")
    NV2 = OB + RPW

    def kd(name, nv, ns):
        acc = (nv + 3) // 4 * 4
        return """.amdhsa_kernel %s
  .amdhsa_next_free_vgpr %d
  .amdhsa_next_free_sgpr %d
  .amdhsa_accum_offset %d
  .amdhsa_group_segment_fixed_size 0
  .amdhsa_kernarg_size 80
  .amdhsa_user_sgpr_count 2
  .amdhsa_user_sgpr_kernarg_segment_ptr 1
  .amdhsa_system_sgpr_workgroup_id_x 1
.end_amdhsa_kernel
""" % (name, nv, ns, acc)

    diag = ""
    if P["diag"]:
        d = Emit4()
        d.lines += [".globl diag_kernel", ".p2align 8", ".type diag_kernel,@function", "diag_kernel:"]
        d("s_cmp_ge_u32 s2, 1")
        d("s_cbranch_scc1 L_dx")
        d("s_load_dwordx2 s[6:7], s[0:1], 72")
        d("s_memrealtime s[16:17]")
        d("v_lshlrev_b32 v1, 4, v0")
        d("s_mov_b32 s10, 0x8000000")
        d("s_mov_b32 s11, 0x00020000")
        d("s_waitcnt lgkmcnt(0)")
        d("s_mov_b32 s8, s6")
        d("s_and_b32 s9, s7, 0xffff")
        for k in range(16):
            d("s_mov_b32 s12, 0x%x" % (0x4000000 + k * 1024))
            d("buffer_load_dwordx4 v[%d:%d], v1, s[8:11], s12 offen" % (4 + 4 * k, 7 + 4 * k))
        d("s_waitcnt vmcnt(0)")
        d("v_readfirstlane_b32 s13, v4")
        d("v_mov_b32 v2, 0")
        d("v_mov_b32 v3, 0")
        for k in range(16):
            d("v_subrev_u32 v%d, s13, v%d" % (4 + 4 * k, 4 + 4 * k))
            d("v_subrev_u32 v%d, s13, v%d" % (5 + 4 * k, 4 + 4 * k + (P["diag"] & 3)))
            d("v_min_i32 v2, v2, v%d" % (4 + 4 * k))
            d("v_%s v3, v3, v%d" % ("add_u32" if P["diag"] & 128 else "max_i32", 5 + 4 * k))
        d("s_mov_b32 s14, 0")
        d("s_mov_b32 s15, 0")
        for l in range(64):
            d("v_readlane_b32 s18, v2, %d" % l)
            d("v_readlane_b32 s19, v3, %d" % l)
            d("s_nop 3")
            d("s_min_i32 s14, s14, s18")
            d("s_%s s15, s15, s19" % ("add_u32" if P["diag"] & 128 else "max_i32"))
        if P["diag"] & 128:
            d("s_ashr_i32 s15, s15, 10")
        if P["diag"] & 96:
            d("s_mov_b32 s12, 0x4100000")
            d("buffer_load_dwordx4 v[8:11], off, s[8:11], s12")
            d("v_readfirstlane_b32 s18, v6")
            d("s_waitcnt vmcnt(0)")
            d("v_readfirstlane_b32 s19, v8")
            d("v_readfirstlane_b32 s20, v9")
            d("v_readfirstlane_b32 s21, v10")
            d("s_and_b32 s18, s18, %d" % P["dth"])
            d("s_min_u32 s18, s18, 1")
            d("s_cmp_eq_u32 s19, 0x13572468")
            d("s_cselect_b32 s20, s20, 0")
            d("s_cselect_b32 s21, s21, 0")
            d("s_add_u32 s20, s20, s18")
            d("s_add_u32 s21, s21, 1")
            d("v_mov_b32 v8, 0x13572468")
            d("v_mov_b32 v9, s20")
            d("v_mov_b32 v10, s21")
            d("s_mov_b64 exec, 1")
            d("buffer_store_dwordx4 v[8:11], off, s[8:11], s12")
            d("s_mov_b32 s15, s%d" % (20 if P["diag"] & 32 else 21))
        elif P["diag"] & 8:
            d("s_load_dwordx2 s[20:21], s[0:1], 64")
            d("s_waitcnt lgkmcnt(0)")
            d("s_sub_u32 s20, s20, 512")
            d("s_subb_u32 s21, s21, 0")
            d("s_load_dword s15, s[20:21], 0")
            d("s_waitcnt lgkmcnt(0)")
            d("s_and_b32 s15, s15, 0xffffff")
            d("s_sub_u32 s15, s15, %d" % (48 * 65536))
            d("s_abs_i32 s15, s15")
            d("s_lshr_b32 s15, s15, 2")
            if P["diag"] & 16:
                d("s_cmp_lt_u32 s15, %d" % (P["dth"] // 4))
                d("s_cselect_b32 s15, 3000, 0")
                d("s_and_b32 s14, s16, 0xf0")
                d("s_cmp_lt_u32 s14, %d" % (16 * P["drn"]))
                d("s_cselect_b32 s15, 3000, s15")
        elif P["diag"] & 4:
            d("s_sub_u32 s14, s16, s13")
            d("s_sub_u32 s15, s14, s15")
        else:
            d("s_sub_u32 s15, s15, s14")
        d("s_sub_u32 s15, s15, %d" % P["doff"])
        d("s_max_i32 s15, s15, 0")
        d("s_min_i32 s15, s15, 10000")
        d("s_mul_i32 s15, s15, %d" % P["dmul"])
        d("s_add_u32 s15, s15, s16")
        d.label("L_dl")
        d("s_memrealtime s[18:19]")
        d("s_waitcnt lgkmcnt(0)")
        d("s_sub_u32 s18, s18, s15")
        d("s_cmp_lt_i32 s18, 0")
        d("s_cbranch_scc1 L_dl")
        d.lines.append("L_dx:")
        d("s_endpgm")
        diag = d.text()
    out = HEADER.replace("gen.py", "gen6.py").format(params=" ".join("%s=%s" % kv for kv in sorted(P.items())))
    if FU:
        out += "; @launch kernel=%s grid=(%d,1,1) block=(%d,1,1) lds=%d\n" % (k1, NWG, (NW + NHX) * 64, LDS1)
    else:
        out += "; @launch kernel=%s grid=(%d,1,1) block=(%d,1,1) lds=%d\n" % (k1, NWG, (NW + NHX) * 64, LDS1)
        out += "; @launch kernel=%s grid=(%d,1,1) block=(%d,1,1) lds=%d\n" % (k2, H, DH, 0)
    if diag:
        out += "; @launch kernel=diag_kernel grid=(1,1,1) block=(64,1,1) lds=0\n"
    out += '.amdgcn_target "amdgcn-amd-amdhsa--gfx950"\n.text\n'
    out += main_text if FU else e.text()
    out += diag
    out += '.section .rodata,"a"\n.p2align 6\n'
    out += kd(k1, NVGPR + (8 if P["xb"] else 2 if P["stamp"] == 5 else 0), 102)
    if not FU:
        out += ".p2align 6\n"
        out += kd(k2, NV2, 24)
    if diag:
        out += ".p2align 6\n"
        out += kd("diag_kernel", 72, 24)
    return out


DEFAULTS = dict(grp="6-6-6", n0=3, trg=1, ta=14, tb=15, jit=0, pace=1, nr0=1, nr=7, nt="nt", ldspad=0, stamp=0, xkp=0, force=0, clip=1400,
                l2t=290, th=200, pf=7, ob=2, ox=0, ds=1, td=3, tdm=3, fuse=1, cw=1,
                lx=0, wo=0, ns0=4, tw=4, ov="0000", st="sc1", xv="", h4=0, bnt=0, vw=1, at=1, tc=40, tg=2, te=44, aq=16, ka=9, kb=2048, dmin=0, dmax=11,
                bc=1, cpk="9-17-25-33-41", cpv="1-9-17-25-33", rd=2, ka2=8, kb2=512, bmax=6, be=1, pw=2, il=1, xp=0, ss=0, eb=0, pfi=0, hs=0, l2p=0, gts="16-32-48-64-80", gn=8, gtol=10, gcap=1000, gq=0, gl2=0, xb=0, diag=0, doff=20000, dmul=8, fc=4, elk=1, cd=9, fd=0, prio=0, bp=0, bp0=0, bq=0, wl=2048, wt=9984, sw=1, dc=1, xs=0, cx=1, fb=0, ib=0, dth=4800, drn=6, ut=0, wb=0, nts=0, wg=8192, wm=896, wbi=1152, lb=1, pb=1, cl2=100, th1=10, th0=10, lm=7, tt=0, tx=1584, d3=33, xa=200, xn=4, bt=0, bt0=0, be1=0, gp=140, gs=2, pp=0, go=1, fw=0, fr=0, xz=0, xr=15, ef=0, gf="", pol=0, ro=2, bs=0, bz=5, bz0=1, rx=0, pt=0, pk=30, pd=0, pe=0, hg=0, fq=0, cl=0, xq=0, xt=0, os="", x12=0, sg=0, bw=0, am=3, ak=4, xm="4-8-0-32-0", pm="041235", p8="", cm="", ab=0, sk="", ps=0, pl=8, pn=7, dry=0)


def main():
    P = dict(DEFAULTS)
    outp = None
    args = sys.argv[1:]
    i = 0
    while i < len(args):
        a = args[i]
        if a == "-o":
            outp = args[i + 1]; i += 2; continue
        k, v = a.split("=", 1)
        assert k in P, k
        P[k] = type(P[k])(v.replace("+", " ")) if isinstance(P[k], str) else int(v)
        i += 1
    s = gen(P)
    if outp:
        open(outp, "w").write(s)
    else:
        sys.stdout.write(s)


if __name__ == "__main__":
    main()
```

```python
import re
import sys
import math
from gen import f32hex, HEADER, NAME, H, SKV, DH, G, NGRP, ROWB, HEADB
from gen4 import Emit4

PART_STRIDE = 1024
NW = 4
NH = 3
NWG = 256
NT = 48
WS_G = 8 << 20
FSTR = 4096 + 256
WS_ML = 0xe0000
WS_B = 0x120000
WS_L = 2 << 20
WS_T = 0x9c0000
WS_SIZE = 10 << 20
BIGNEG = 0xf149f2ca


def gen(P):
    global WS_L, WS_T, WS_G, WS_ML, WS_B
    WS_L = P["wl"] << 10
    WS_T = P["wt"] << 10
    WS_G = P["wg"] << 10
    WS_ML = P["wm"] << 10
    WS_B = P["wbi"] << 10
    assert P["sw"] or not P["dc"]
    GR = [int(x) for x in P["grp"].split("-")]
    assert sum(GR) == 18 and len(GR) >= 2
    NG = len(GR)
    GOFF = [sum(GR[:k]) for k in range(NG)]
    OV = [int(x) for x in P["ov"]]
    N0 = P["n0"]
    NR = P["nr"]
    TRG1 = N0 - P["trg"]
    TA = P["ta"]
    TB = P["tb"]
    assert (2 <= TRG1 < N0 or P["force"] >= 2 or P["pt"] and TRG1 == N0) and N0 < TA < TB < 16 and 1 <= NR <= 7 and N0 <= 8
    pol = (" " + P["nt"]) if P["nt"] else ""
    C = (DH ** -0.5) * math.log2(math.e)
    L_DEC = 0
    L_GO = 24
    L_PC = 36
    L_CF = 40
    L_FD = 52
    L_EV = 56
    L_CA = 64
    L_ML = 80
    L_TC = 128
    L_TD = 132
    L_EL = 136
    L_PF = 140
    L_TM = 144
    L_GT = 208
    L_LG = 256
    PHI = 6144
    IMG = 3 * PHI
    L_PV = L_LG + IMG
    L_ACC = L_PV + 192 * 128
    LDS1 = max(L_ACC + 3 * NW * ROWB, P["ldspad"])

    e = Emit4()
    V_T = 1; V_J16 = 2; V_J8 = 3; V_LB0 = 4; V_PB0 = 5; V_PV = 6; V_PVN = 7; V_DO = 8; V_PO = 9; V_T0 = 10; V_T1 = 11
    V_ACC = 12; V_W = 24; V_RAW = 36
    V_OFF = 48; V_OFF6 = 49; V_TM = 50; V_BIG = 51; V_T2 = 52; V_Z = 53
    V_S = 54
    V_D = 60
    V_T128 = 62; V_TMX = 63
    V_RING = 64
    NVGPR = V_RING + 72
    S_G = 3; S_M = 4; S_N = 5; S_SPIN = 6; S_LDC = 7
    S_K = 8; S_V = 12; S_KS = 16; S_Q = 20; S_WS = 24
    S_WAVE = 28; S_CI = 29; S_I = 30; S_QOFF = 31
    S_T = 32
    S_EV = 40; S_STM = 42; S_HB = 44; S_768 = 45; S_384 = 46; S_MAGIC = 47
    S_NB = 48; S_TD = 49; S_XB = 50; S_LB = 53
    S_ST = 54; S_DBG = 56
    S_BO = 59; S_TW = 60; S_CPA = 62; S_NBO = 63; S_BP = 72; S_TH = 73; S_TT = 74
    S_MP = 64; S_MG = 66; S_MR = 68; S_MO = 70
    BC = P["bc"]
    NHX = NH + (1 if BC else 0)
    CPK = [int(x) for x in P["cpk"].split("-")] if BC and P["cpk"] else []
    CPV = [int(x) for x in P["cpv"].split("-")] if BC and P["cpv"] else []
    if BC:
        CPV.append(P["tc"])
        assert P["te"] == P["tc"] + P["tg"] + P["rd"] and len(CPK) + len(CPV) <= 16

    GTS = [int(x) for x in P["gts"].split("-")] if BC and P["gts"] else []

    def set_masks(ev, cps):
        mp = sum(1 << c for c in cps)
        allm = [(S_EV, ev | mp | (mp << P["tg"]) | (mp << (P["tg"] + P["rd"])))]
        if BC:
            allm += [(S_MP, mp), (S_MG, mp << P["tg"]), (S_MR, mp << (P["tg"] + P["rd"])), (S_MO, ev)]
        for r, v in allm:
            assert v < (1 << 48)
            e("s_mov_b32 s%d, 0x%x" % (r, v & 0xffffffff))
            e("s_mov_b32 s%d, 0x%x" % (r + 1, v >> 32))

    FU = P["fuse"]
    k1 = NAME + "_kernel" if FU else "part_kernel"
    e.lines.append(".globl %s" % k1)
    e.lines.append(".p2align 8")
    e.lines.append(".type %s,@function" % k1)
    e.lines.append(k1 + ":")
    e("s_cmp_ge_u32 s2, %d" % NWG)
    e("s_cbranch_scc1 L_exit1")
    e("s_load_dwordx16 s[64:79], s[0:1], 0")
    e("s_load_dwordx4 s[80:83], s[0:1], 64")
    if P["stamp"]:
        e("s_memrealtime s[%d:%d]" % (S_ST, S_ST + 1))
    e("v_lshrrev_b32 v%d, 6, v0" % V_T0)
    e("v_and_b32 v%d, 63, v0" % V_T1)
    e("v_readfirstlane_b32 s%d, v%d" % (S_WAVE, V_T0))
    if P["eb"] == 4:
        e("v_lshlrev_b32 v%d, 2, v%d" % (V_T0, V_T1))
        e("v_mov_b32 v%d, 0" % V_Z)
        e("ds_write_b32 v%d, v%d" % (V_T0, V_Z))
    e("s_lshr_b32 s%d, s2, 3" % S_G)
    e("s_and_b32 s%d, s2, 7" % S_M)
    e("s_lshr_b32 s%d, s2, 6" % S_T)
    e("s_xor_b32 s%d, s%d, s%d" % (S_T, S_T, S_M))
    e("s_lshr_b32 s%d, s%d, 1" % (S_NB, S_T))
    e("s_and_b32 s%d, s%d, 1" % (S_T, S_T))
    e("s_lshl_b32 s%d, s%d, 2" % (S_T, S_T))
    e("s_or_b32 s%d, s%d, s%d" % (S_NB, S_NB, S_T))
    if P["eb"] != 4:
        e("s_cmp_ge_u32 s%d, %d" % (S_WAVE, NW))
        e("s_cbranch_scc1 L_helper")

    def srd(dst, ptr, nbytes):
        e("s_mov_b32 s%d, s%d" % (dst, ptr))
        e("s_and_b32 s%d, s%d, 0xffff" % (dst + 1, ptr + 1))
        e("s_mov_b32 s%d, %d" % (dst + 2, nbytes))
        e("s_mov_b32 s%d, 0x00020000" % (dst + 3))

    def srd_ws(dst):
        srd(dst, 82, WS_SIZE)
        if P["wo"]:
            e("s_add_u32 s%d, s%d, %d" % (dst, dst, P["wo"] << 10))
            e("s_addc_u32 s%d, s%d, 0" % (dst + 1, dst + 1))

    def lds_wait(tag, vz, vt, st, off, cond, spin, vaddr=None):
        e("s_mov_b32 s%d, 0x100000" % spin)
        e.label("L_w" + tag)
        e("ds_read_b32 v%d, v%d offset:%d" % (vt, vz if vaddr is None else vaddr, off))
        e("s_sub_u32 s%d, s%d, 1" % (spin, spin))
        e("s_cbranch_scc1 L_exit1")
        e("s_waitcnt lgkmcnt(0)")
        e("v_readfirstlane_b32 s%d, v%d" % (st, vt))
        if cond == "nz":
            e("s_cmp_eq_u32 s%d, 0" % st)
        else:
            e("s_cmp_lt_u32 s%d, %s" % (st, cond))
        e("s_cbranch_scc1 L_w" + tag)

    TWN = [0]

    def twait(dl, tmp, step):
        TWN[0] += 1
        e.label("L_tw%d" % TWN[0])
        e("s_memrealtime s[%d:%d]" % (tmp, tmp + 1))
        e("s_waitcnt lgkmcnt(0)")
        e("s_sub_u32 s%d, s%d, s%d" % (tmp + 1, tmp, dl))
        e("s_cmp_lt_i32 s%d, 0" % (tmp + 1))
        e("s_cbranch_scc1 L_tw%d" % TWN[0])
        e("s_add_u32 s%d, s%d, %d" % (dl, tmp, step))

    def gate(b, tag, check):
        if b not in GTS:
            return
        if check:
            e("s_cmp_eq_u32 s%d, %d" % (S_I, b % 48))
            e("s_cbranch_scc0 L_gx" + tag)
        e("s_memrealtime s[%d:%d]" % (S_T + 4, S_T + 5))
        lds_wait("g" + tag, V_Z, V_T0, S_T, L_GT + 4 * GTS.index(b), "nz", S_SPIN)
        e("s_and_b32 s%d, s%d, 0xffff" % (S_T, S_T))
        e("s_cbranch_scc0 L_gx" + tag)
        if P["stamp"] == 5:
            e("s_lshl_b32 s%d, s%d, 16" % (S_T + 1, S_T))
            e("s_add_u32 s%d, s%d, s%d" % (S_NBO, S_NBO, S_T + 1))
        e("s_add_u32 s%d, s%d, s%d" % (S_T, S_T, S_T + 4))
        e.label("L_gl" + tag)
        e("s_memrealtime s[%d:%d]" % (S_T + 4, S_T + 5))
        e("s_waitcnt lgkmcnt(0)")
        e("s_sub_u32 s%d, s%d, s%d" % (S_T + 4, S_T + 4, S_T))
        e("s_cmp_lt_i32 s%d, 0" % (S_T + 4))
        e("s_cbranch_scc1 L_gl" + tag)
        e.label("L_gx" + tag)

    def get_table(kind, tag):
        if tag == "tv":
            gate(48, tag, False)
        else:
            for b in ((16, 32) if kind == "K" else (64, 80)):
                gate(b, "%s%d" % (tag, b), True)
        e("s_lshr_b32 s%d, s%d, 4" % (S_T + 1, S_I))
        e("s_lshl_b32 s%d, s%d, 2" % (S_T + 2, S_T + 1))
        if P["stamp"] == 6:
            e("s_memrealtime s[%d:%d]" % (S_T + 4, S_T + 5))
            e("s_lshl_b32 s%d, s2, 2" % S_T)
            e("s_add_u32 s%d, s%d, s%d" % (S_T, S_T, S_WAVE))
            e("s_cmp_eq_u32 s%d, 400" % S_T)
            e("s_cselect_b64 exec, 1, 0")
            e("s_waitcnt lgkmcnt(0)")
            e("s_sub_u32 s%d, s%d, s%d" % (S_T + 4, S_T + 4, S_ST))
            e("v_mov_b32 v%d, s%d" % (V_T1, S_T + 4))
            e("buffer_store_dword v%d, off, s[%d:%d], s%d offset:%d" % (V_T1, S_WS, S_WS + 3, S_T + 2, 40 if kind == "K" else 52))
            e("s_mov_b64 exec, -1")
        e("v_mov_b32 v%d, s%d" % (V_T1, S_T + 2))
        if kind == "K":
            load_q(S_T + 1, False)
        lds_wait(tag, V_Z, V_T0, S_T, L_DEC if kind == "K" else L_GO, "nz", S_SPIN, V_T1)
        e("s_and_b32 s%d, s%d, 7" % (S_N, S_T))
        e("s_xor_b32 s%d, s%d, s%d" % (S_N, S_N, S_NB))
        e("s_bitcmp1_b32 s%d, 3" % S_T)
        e("s_cselect_b64 vcc, -1, 0")
        e("v_cndmask_b32 v%d, v%d, v%d, vcc" % (V_TM, V_T128, V_TMX))

    def load_q(ph, track):
        e("s_lshl_b32 s%d, s%d, 5" % (S_QOFF, ph))
        e("s_add_u32 s%d, s%d, s%d" % (S_QOFF, S_QOFF, S_G))
        e("s_mul_i32 s%d, s%d, 171" % (S_QOFF, S_QOFF))
        e("s_lshr_b32 s%d, s%d, 9" % (S_QOFF, S_QOFF))
        e("s_mul_i32 s%d, s%d, %d" % (S_QOFF, S_QOFF, DH * 2))
        for c in range(3):
            r = V_RAW + 2 * c
            s = "buffer_load_dwordx2 v[%d:%d], v%d, s[%d:%d], s%d offen offset:%d" % (r, r + 1, V_J8, S_Q, S_Q + 3, S_QOFF, c * 128)
            if track:
                e.vmem(s, "p")
            else:
                e(s)

    P8 = [int(c, 16) for c in P["p8"]]
    assert not P8 or sorted(P8) == list(range(3, 11))

    def tile_addr(kind):
        ch, a, b = S_T, S_T + 1, S_T + 2
        if P8:
            e("s_lshr_b32 s%d, s%d, 6" % (a, S_CI))
            e("s_lshl_b32 s%d, s%d, 11" % (a, a))
            e("s_xor_b32 s%d, s%d, s%d" % (a, a, S_HB))
            e("s_lshl_b32 s%d, s%d, 5" % (ch, a))
            for sh in sorted(set(P8[2 + i] - i for i in range(6))):
                e("s_and_b32 s%d, s%d, %d" % (b, S_CI, sum(1 << i for i in range(6) if P8[2 + i] - i == sh)))
                if sh:
                    e("s_%s_b32 s%d, s%d, %d" % ("lshl" if sh > 0 else "lshr", b, b, abs(sh)))
                e("s_xor_b32 s%d, s%d, s%d" % (ch, ch, b))
            e("s_bfe_u32 s%d, s%d, 0x20008" % (a, ch))
            e("s_lshr_b32 s%d, s%d, 5" % (b, ch))
            e("s_and_b32 s%d, s%d, 4" % (b, b))
            e("s_or_b32 s%d, s%d, s%d" % (a, a, b))
            e("s_xor_b32 s%d, s%d, s%d" % (a, a, S_N))
            e("s_or_b32 s%d, s%d, s%d" % (S_XB, ch, a))
            tile_addr2(kind)
            return
        e("s_lshr_b32 s%d, s%d, 6" % (a, S_CI))
        e("s_lshl_b32 s%d, s%d, 11" % (a, a))
        if P["am"] == 1:
            e("s_mul_i32 s%d, s%d, %d" % (ch, S_G, P["ak"]))
            e("s_add_u32 s%d, s%d, s%d" % (ch, ch, S_CI))
            e("s_and_b32 s%d, s%d, 63" % (ch, ch))
        elif P["pm"] != "012345":
            pm = [int(c) for c in P["pm"]]
            assert sorted(pm) == list(range(6))
            keep = sum(1 << i for i in range(6) if pm[i] == i)
            e("s_and_b32 s%d, s%d, %d" % (ch, S_CI, keep))
            for sh in sorted(set(pm[i] - i for i in range(6)) - {0}):
                e("s_and_b32 s%d, s%d, %d" % (b, S_CI, sum(1 << i for i in range(6) if pm[i] - i == sh)))
                e("s_%s_b32 s%d, s%d, %d" % ("lshl" if sh > 0 else "lshr", b, b, abs(sh)))
                e("s_or_b32 s%d, s%d, s%d" % (ch, ch, b))
        else:
            e("s_and_b32 s%d, s%d, 63" % (ch, S_CI))
        if P["am"] == 2:
            k = P["ak"]
            e("s_lshr_b32 s%d, s%d, 2" % (b, ch))
            e("s_lshl_b32 s%d, s%d, %d" % (b, b, 2 + k))
            e("s_and_b32 s%d, s%d, 3" % (ch, ch))
            e("s_or_b32 s%d, s%d, s%d" % (ch, ch, b))
            e("s_add_u32 s%d, s%d, s%d" % (ch, ch, a))
            e("s_and_b32 s%d, s%d, %d" % (b, S_G, (1 << k) - 1))
            e("s_lshl_b32 s%d, s%d, 2" % (b, b))
            e("s_or_b32 s%d, s%d, s%d" % (ch, ch, b))
            e("s_lshr_b32 s%d, s%d, %d" % (b, S_G, k))
            e("s_lshl_b32 s%d, s%d, %d" % (b, b, 6 + k))
            e("s_or_b32 s%d, s%d, s%d" % (ch, ch, b))
        else:
            e("s_add_u32 s%d, s%d, s%d" % (ch, ch, a))
            e("s_%s s%d, s%d, s%d" % ("xor_b32" if P["am"] == 3 else "add_u32", ch, ch, S_HB))
        e("s_bfe_u32 s%d, s%d, 0x20003" % (a, ch))
        e("s_and_b32 s%d, s%d, 4" % (b, ch))
        e("s_or_b32 s%d, s%d, s%d" % (a, a, b))
        e("s_xor_b32 s%d, s%d, s%d" % (a, a, S_N))
        if P["am"] == 2:
            e("s_xor_b32 s%d, s%d, s%d" % (b, ch, S_HB))
            e("s_bfe_u32 s%d, s%d, 0x1000a" % (S_XB, b))
            e("s_xor_b32 s%d, s%d, s%d" % (a, a, S_XB))
            e("s_bfe_u32 s%d, s%d, 0x10009" % (S_XB, b))
            e("s_lshl_b32 s%d, s%d, 2" % (S_XB, S_XB))
            e("s_xor_b32 s%d, s%d, s%d" % (a, a, S_XB))
        e("s_lshl_b32 s%d, s%d, 5" % (S_XB, ch))
        e("s_or_b32 s%d, s%d, s%d" % (S_XB, S_XB, a))
        tile_addr2(kind)

    def tile_addr2(kind):
        e("s_lshl_b32 s%d, s%d, 4" % (S_XB, S_XB))
        e("s_or_b32 s%d, s%d, 1" % (S_XB, S_XB))
        if kind == "V":
            e("s_lshl_b32 s%d, s%d, 7" % (S_LB, S_CI))
            if P["ut"]:
                e("s_cmp_ge_u32 s%d, %d" % (S_I, NT - P["ut"]))
                e("s_cselect_b64 vcc, -1, 0")
                e("v_cndmask_b32 v%d, v%d, v%d, vcc" % (V_TM, V_TM, V_TMX))
        e("v_xor_b32 v%d, s%d, v%d" % (V_T0, S_XB, V_TM))
        e("v_mul_hi_u32 v%d, v%d, s%d" % (V_T0, V_T0, S_MAGIC))
        e("v_lshrrev_b32 v%d, 1, v%d" % (V_T0, V_T0))
        e("v_and_b32 v%d, 15, v%d" % (V_T1, V_T0))
        e("v_cmp_eq_u32 vcc, 5, v%d" % V_T1)
        e("v_mad_u32_u24 v%d, v%d, s%d, v%d" % (V_OFF, V_T0, S_768, V_J16))
        e("v_add_u32 v%d, %d, v%d" % (V_T1, 5 * ROWB, V_OFF))
        e("v_cndmask_b32 v%d, v%d, v%d, vcc" % (V_OFF6, V_BIG, V_T1))
        if kind == "K":
            e("v_lshrrev_b32 v%d, 6, v%d" % (V_T0, V_T0))
            e("v_mad_u32_u24 v%d, v%d, s%d, v%d" % (V_PO, V_T0, S_384, V_J8))
        else:
            e("v_add_u32 v%d, s%d, v%d" % (V_T0, S_LB, V_PB0))

    def issue_params(kind):
        if kind == "K":
            if P["xkp"] & 2:
                return
            if P["xkp"] & 1024:
                e("s_cmp_lt_u32 s%d, 16" % S_I)
                e("s_cselect_b64 exec, -1, 0")
            for c in range(3):
                r = V_RAW + 6 + 2 * c
                e.vmem("buffer_load_dwordx2 v[%d:%d], v%d, s[%d:%d], 0 offen offset:%d%s" %
                       (r, r + 1, V_PO, S_KS, S_KS + 3, c * 128, " nt" if P["bnt"] & 4 else ""), "p")
            if P["xkp"] & 1024:
                e("s_mov_b64 exec, -1")
            if P["xb"] & 2:
                for c in range(3):
                    r = NVGPR + 2 + 2 * c
                    e.vmem("buffer_load_dwordx2 v[%d:%d], v%d, s[%d:%d], 0 offen offset:%d" % (r, r + 1, V_PO, 76, 79, c * 128), "p")
        else:
            e("ds_read_b32 v%d, v%d" % (V_PVN, V_T0))

    def issue_group(k, kind, pol=pol):
        srdb = S_K if kind == "K" else S_V
        for l in range(GOFF[k], GOFF[k] + GR[k]):
            r = V_RING + l * 4
            if l < 15:
                vo, off = V_OFF, l * 256
            else:
                vo, off = V_OFF6, (l - 15) * 256
            e.vmem("buffer_load_dwordx4 v[%d:%d], v%d, s[%d:%d], 0 offen offset:%d%s" %
                   (r, r + 3, vo, srdb, srdb + 3, off, pol), "g%d" % k)

    def compute_w():
        e.wait_tag("p")
        for p in range(6):
            rq = V_RAW + p; rs = V_RAW + 6 + p
            i0 = 2 * p
            e("v_lshlrev_b32 v%d, 16, v%d" % (V_T0, rq))
            e("v_lshlrev_b32 v%d, 16, v%d" % (V_W + i0, rs))
            e("v_and_b32 v%d, 0xffff0000, v%d" % (V_T1, rq))
            e("v_and_b32 v%d, 0xffff0000, v%d" % (V_W + i0 + 1, rs))
            e("v_mul_f32 v%d, v%d, v%d" % (V_W + i0, V_W + i0, V_T0))
            e("v_mul_f32 v%d, v%d, v%d" % (V_W + i0 + 1, V_W + i0 + 1, V_T1))

    def advance(kind, to_v, tag):
        nkind = "V" if to_v else kind
        if to_v:
            e("s_mov_b32 s%d, s%d" % (S_CI, S_WAVE))
            e("s_mov_b32 s%d, 0" % S_I)
            get_table("V", "tv")
            ev = (1 << 16) | (1 << 32)
            if P["at"] and not BC:
                ev |= (1 << P["tc"]) | (1 << (P["tc"] + P["tg"])) | (1 << P["te"])
            e("s_mov_b32 s%d, %d" % (S_TD, NT - P["td"] if P["td"] else 255))
            if P["tt"]:
                e("s_mov_b32 s%d, 255" % S_TT)
            set_masks(ev, CPV)
        else:
            e("s_add_u32 s%d, s%d, %d" % (S_CI, S_CI, NW))
            e("s_add_u32 s%d, s%d, 1" % (S_I, S_I))
            if tag:
                e("s_bitcmp1_b64 s[%d:%d], s%d" % (S_EV, S_EV + 1, S_I))
                sfx = tag if isinstance(tag, str) else ""
                e("s_cbranch_scc1 L_ev%s%s" % (kind, sfx))
                e.flush()
                e.label("L_evret%s%s" % (kind, sfx))
        if P["stamp"] == 4:
            e("s_memrealtime s[%d:%d]" % (S_DBG, S_DBG + 1))
            e("s_add_u32 s%d, s%d, 4" % (S_DBG + 2, S_DBG + 2))
            e("s_waitcnt lgkmcnt(0)")
            e("v_mov_b32 v%d, s%d" % (V_T2, S_DBG))
            e("s_mov_b64 exec, 1")
            e("buffer_store_dword v%d, off, s[%d:%d], s%d" % (V_T2, S_WS, S_WS + 3, S_DBG + 2))
            e("s_mov_b64 exec, -1")
        if P["stamp"] == 5:
            e("s_memrealtime s[%d:%d]" % (S_DBG, S_DBG + 1))
            e("s_add_u32 m0, m0, 1")
            e("s_waitcnt lgkmcnt(0)")
            e("v_writelane_b32 v%d, s%d, m0" % (NVGPR + (1 if kind == "V" else 0), S_DBG))
            if to_v:
                e("s_mov_b32 m0, -1")
        tile_addr(nkind)
        issue_params(nkind)

    def compute(k, kind):
        for l in range(GOFF[k], GOFF[k] + GR[k]):
            q, c = l // 3, l % 3
            base = V_RING + l * 4
            for r in range(4):
                e("v_cvt_f32_i32 v%d, v%d" % (base + r, base + r))
            if kind == "K":
                s = V_S + q
                for r in range(4):
                    if c == 0 and r == 0:
                        e("v_mul_f32 v%d, v%d, v%d" % (s, base, V_W))
                    else:
                        e("v_fmac_f32 v%d, v%d, v%d" % (s, base + r, V_W + 4 * c + r))
                if c == 2:
                    e.defer(["v_add_f32_dpp v%d, v%d, v%d row_ror:%d row_mask:0xf bank_mask:0xf" % (s, s, s, kk)
                             for kk in (8, 4, 2)] +
                            ["v_add_f32_dpp v%d, v%d, v%d row_ror:1 row_mask:0xf bank_mask:0x%x" %
                             (V_D + (q & 1), s, s, 1 << (q >> 1))])
            else:
                for r in range(4):
                    e("v_fmac_f32_dpp v%d, v%d, v%d row_newbcast:%d row_mask:0xf bank_mask:0xf" %
                      (V_ACC + 4 * c + r, V_PV, base + r, q))
        e.flush()

    EFS = []

    def finish(kind, to_v):
        if kind == "K":
            e("s_mov_b64 exec, s[%d:%d]" % (S_STM, S_STM + 1))
            e("ds_write_b64 v%d, v[%d:%d]" % (V_LB0, V_D, V_D + 1))
            e("s_mov_b64 exec, -1")
            if not to_v:
                if P["ef"]:
                    tag = "L_ef%d" % len(EFS)
                    EFS.append(tag)
                    e("s_and_b32 s%d, s%d, 15" % (S_T, S_I))
                    e("s_cbranch_scc0 %s" % tag)
                    e.lines.append(tag + "r:")
                e("v_add_u32 v%d, 48, v%d" % (V_LB0, V_LB0))
                compute_w()
        if kind == "V" or to_v:
            e("s_waitcnt lgkmcnt(0)")
            e("v_mov_b32 v%d, v%d" % (V_PV, V_PVN))

    ELS = []

    def elect(k, kind, lo=0):
        if P["fc"] == 4 and kind == "V" and k == max(P["elk"], lo):
            tag = "L_el%d" % len(ELS)
            ELS.append(tag)
            e("s_cmp_eq_u32 s%d, %d" % (S_I, NT))
            e("s_cbranch_scc1 %s" % tag)
            e.lines.append(tag + "r:")

    def body(kind, to_v=False, first=False):
        nkind = "V" if to_v else kind
        for k in range(NG):
            ov = OV[k] if not first else 0
            if ov:
                i = e.vm.index("g%d" % k) + GR[k] - ov
                e("s_waitcnt vmcnt(%d)" % (len(e.vm) - i))
                e.vm = e.vm[i:]
            else:
                e.wait_tag("g%d" % k)
            if k + 1 < NG:
                if not first:
                    issue_group(k + 1, kind)
            else:
                issue_group(0, nkind)
            if ov:
                e("s_waitcnt vmcnt(%d)" % (len(e.vm) - ov))
                e.vm = e.vm[ov:]
            if k == NG - 2:
                advance(kind, to_v, not first)
            elect(k, kind, NG - 2)
            compute(k, kind)
        finish(kind, to_v)

    DKV = {}

    def body_deep(mode):
        if mode == 3:
            advance("V", False, False)
        for k in range(NG):
            i = e.vm.index("g%d" % k) + GR[k]
            e("s_waitcnt vmcnt(%d)" % (len(e.vm) - i))
            e.vm = e.vm[i:]
            if P["tt"] and k < 2:
                e.lines.append("L_dk%d:" % k)
                DKV[k] = list(e.vm)
            if mode == 2:
                issue_group((k + 2) % NG, "V")
                if k == NG - 3:
                    advance("V", False, False)
            elect(k, "V")
            compute(k, "V")
            if mode == 3:
                issue_group(k, "V", "" if P["xkp"] & 256 else pol)
        finish("V", False)

    def body_boost(kind):
        for k in range(1, NG):
            issue_group(k, kind)
        e("s_sub_u32 s%d, s%d, 1" % (S_BO, S_BO))
        if P["stamp"] == 5:
            e("s_add_u32 s%d, s%d, 256" % (S_NBO, S_NBO))
        advance(kind, False, "B")
        for k in range(NG):
            e.wait_tag("g%d" % k)
            if k == NG - 1 and not P["be"]:
                issue_group(0, kind)
            elect(k, kind)
            compute(k, kind)
            if k == 0 and P["be"]:
                issue_group(0, kind)
        finish(kind, False)

    def lds_inc(off, vz, vt):
        e("v_mov_b32 v%d, 1" % vt)
        e("s_mov_b64 exec, 1")
        e("ds_add_u32 v%d, v%d offset:%d" % (vz, vt, off))
        e("s_mov_b64 exec, -1")

    if P["prio"]:
        e("s_setprio %d" % P["prio"])
    e("v_lshrrev_b32 v%d, 4, v%d" % (V_T, V_T1))
    e("v_and_b32 v%d, 15, v%d" % (V_T2, V_T1))
    e("v_lshlrev_b32 v%d, 4, v%d" % (V_J16, V_T2))
    e("v_lshlrev_b32 v%d, 3, v%d" % (V_J8, V_T2))
    e("v_lshlrev_b32 v%d, 7, v%d" % (V_T128, V_T))
    if P8 and P8[:2] != [3, 4]:
        dr = [((1 << p) ^ {7: 4, 8: 1, 9: 2}.get(p, 0)) << 4 for p in P8[:2]]
        e("v_and_b32 v%d, 1, v%d" % (V_T0, V_T))
        e("v_mul_u32_u24 v%d, 0x%x, v%d" % (V_T128, dr[0], V_T0))
        e("v_lshrrev_b32 v%d, 1, v%d" % (V_T0, V_T))
        e("v_mul_u32_u24 v%d, 0x%x, v%d" % (V_T0, dr[1], V_T0))
        e("v_xor_b32 v%d, v%d, v%d" % (V_T128, V_T128, V_T0))
    e("v_and_b32 v%d, 0x70, v0" % V_TMX)
    e("v_xor_b32 v%d, v%d, v%d" % (V_TMX, V_TMX, V_T128))
    e("v_mov_b32 v%d, v%d" % (V_TM, V_TMX))
    if P["h4"]:
        e("v_and_b32 v%d, 0x%x, v%d" % (V_T128, 0xffffff8f | (P["h4"] << 4), V_TMX))
    e("s_mov_b32 s%d, %d" % (S_768, ROWB))
    e("s_mov_b32 s%d, %d" % (S_384, DH * 2))
    e("s_mov_b32 s%d, 0xaaaaaaab" % S_MAGIC)
    e("v_mov_b32 v%d, 0xc0000000" % V_BIG)
    e("s_lshl_b32 s%d, s%d, 6" % (S_HB, S_G))
    if P["am"] == 3:
        for i, c in enumerate(P["xm"].split("-")):
            if int(c):
                e("s_bitcmp1_b32 s%d, %d" % (S_G, i))
                e("s_cselect_b32 s%d, %d, 0" % (S_T, int(c)))
                e("s_xor_b32 s%d, s%d, s%d" % (S_HB, S_HB, S_T))
    e("s_mov_b32 s%d, s%d" % (S_N, S_NB))
    if P["hg"]:
        e("v_mov_b32 v%d, v%d" % (V_TM, V_T128))
        e("s_lshl_b32 s%d, s%d, 1" % (S_T, S_G))
        e("s_and_b32 s%d, s%d, 2" % (S_T, S_T))
        e("s_xor_b32 s%d, s%d, s%d" % (S_N, S_N, S_T))
    e("s_mov_b32 s%d, s%d" % (S_CI, S_WAVE))
    tile_addr("K")
    SS = P["ss"]
    EB = P["eb"]
    if SS:
        e("s_memrealtime s[84:85]")
    if EB == 3:
        e("s_barrier")
    e("s_waitcnt lgkmcnt(0)")
    if SS:
        e("s_memrealtime s[86:87]")
    if EB == 2:
        e("s_barrier")
    if EB == 4:
        e("s_cmp_ge_u32 s%d, %d" % (S_WAVE, NW))
        e("s_barrier")
        e("s_cbranch_scc1 L_helper")
    e("s_mov_b32 s%d, 0" % S_I)
    if P["xb"] & 2:
        srd(76, 72, H * NGRP * DH * 2)
    if P["pfi"]:
        srd(S_Q, 64, H * DH * 2)
        load_q(S_I, True)
        srd(S_KS, 70, H * NGRP * DH * 2)
        issue_params("K")
    srd(S_K, 66, H * HEADB)
    issue_group(0, "K")
    if EB == 1:
        e("s_barrier")
    if not P["pfi"]:
        srd(S_Q, 64, H * DH * 2)
        load_q(S_I, True)
        srd(S_KS, 70, H * NGRP * DH * 2)
        issue_params("K")
    if P["ds"]:
        for k in range(1, NG):
            issue_group(k, "K")
    if SS:
        e("s_memrealtime s[88:89]")
    srd(S_V, 68, H * HEADB)
    if P["stamp"] == 6:
        srd(S_WS, 80, 256)
    elif P["stamp"]:
        srd(S_WS, 82, 0x8000000)
    if P["stamp"] == 5:
        e("s_mov_b32 m0, -1")
    if P["stamp"] in (4, 5):
        e("s_mul_i32 s%d, s2, %d" % (S_DBG + 2, NW))
        e("s_add_u32 s%d, s%d, s%d" % (S_DBG + 2, S_DBG + 2, S_WAVE))
        e("s_lshl_b32 s%d, s%d, 9" % (S_DBG + 2, S_DBG + 2))
        e("s_add_u32 s%d, s%d, 0x4010000" % (S_DBG + 2, S_DBG + 2))
    e("v_lshlrev_b32 v%d, 5, v%d" % (V_T1, V_T))
    e("v_bfe_u32 v%d, v0, 4, 3" % V_LB0)
    e("v_mul_u32_u24 v%d, s%d, v%d" % (V_LB0, S_768, V_LB0))
    e("v_lshl_add_u32 v%d, v%d, 1, v%d" % (V_LB0, V_T2, V_LB0))
    e("s_lshr_b32 s%d, s%d, 1" % (S_T, S_WAVE))
    e("s_mul_i32 s%d, s%d, 24" % (S_T, S_T))
    e("s_add_u32 s%d, s%d, %d" % (S_T, S_T, L_LG))
    e("v_add_u32 v%d, s%d, v%d" % (V_LB0, S_T, V_LB0))
    e("v_and_b32 v%d, 7, v%d" % (V_PB0, V_T2))
    e("v_lshl_add_u32 v%d, v%d, 2, v%d" % (V_PB0, V_PB0, V_T1))
    e("v_add_u32 v%d, %d, v%d" % (V_PB0, L_PV, V_PB0))
    e("v_lshlrev_b32 v%d, 2, v%d" % (V_DO, V_T))
    e("v_add_u32 v%d, v%d, v%d" % (V_DO, V_J16, V_DO))
    e("s_mul_i32 s%d, s%d, %d" % (S_T, S_WAVE, ROWB))
    e("s_add_u32 s%d, s%d, %d" % (S_T, S_T, L_ACC))
    e("v_add_u32 v%d, s%d, v%d" % (V_DO, S_T, V_DO))
    e("v_mov_b32 v%d, 0" % V_Z)
    e("v_mov_b32 v%d, 0" % V_D)
    e("v_mov_b32 v%d, 0" % (V_D + 1))
    e("s_mov_b32 s%d, 0x01110111" % S_STM)
    e("s_mov_b32 s%d, 0x01110111" % (S_STM + 1))
    ev = (1 << TRG1) | (1 << N0) | (3 << 16) | (3 << 32) | (((1 << TA) | (1 << TB)) * 0x100010001)
    set_masks(ev, CPK)
    if BC:
        e("s_mov_b32 s%d, %d" % (S_BO, P["ib"] & 15))
        e("s_mov_b32 s%d, 0" % S_NBO)
        e("s_mov_b32 s%d, 0" % S_LDC)
        e("s_mov_b32 s%d, %d" % (S_CPA, L_TM))
    for i in range(12):
        e("v_mov_b32 v%d, 0" % (V_ACC + i))
    if SS:
        e("s_memrealtime s[90:91]")
    if not EB:
        e("s_barrier")
    if SS:
        e("s_memrealtime s[92:93]")
        e("s_waitcnt vmcnt(23)")
        e("s_memrealtime s[94:95]")
        e("s_waitcnt vmcnt(18)")
        e("s_memrealtime s[96:97]")
    compute_w()
    if SS:
        e("s_memrealtime s[98:99]")
        e("s_waitcnt lgkmcnt(0)")
        for k in range(8):
            e("v_writelane_b32 v%d, s%d, %d" % (NVGPR + 1, 84 + 2 * k, 48 + k))
    steady = ["g0"] * GR[0]
    if P["fb"]:
        advance("K", False, False)
        for k in range(NG):
            if "g%d" % k in e.vm:
                i = e.vm.index("g%d" % k) + GR[k]
                e("s_waitcnt vmcnt(%d)" % (len(e.vm) - i))
                e.vm = e.vm[i:]
            compute(k, "K")
            if k == P["fb"] - 1:
                issue_group(0, "K")
        finish("K", False)
        assert e.vm == steady, (e.vm, steady)
    elif P["ds"]:
        body("K", first=True)
    if P["ib"] & 16:
        e("s_branch L_kchk")
    e.vm = list(steady)
    e.lines.append(".p2align 6")
    e.label("L_kloop")
    body("K")
    assert e.vm == steady, (e.vm, steady)
    if BC:
        e.label("L_kchk")
        e("s_cmp_lg_u32 s%d, 0" % S_BO)
        e("s_cbranch_scc1 L_kboost")
        e.label("L_kchk2")
    e("s_cmp_lg_u32 s%d, %d" % (S_I, NT - 1))
    e("s_cbranch_scc1 L_kloop")
    body("K", True)
    lds_inc(L_CF + 8, V_Z, V_T1)
    if P["stamp"] == 1:
        e("s_memrealtime s[%d:%d]" % (S_DBG, S_DBG + 1))
    e.lines.append(".p2align 6")
    e.label("L_vloop")
    body("V")
    assert e.vm == steady, (e.vm, steady)
    if BC:
        e.label("L_vchk")
    if P["td"] or P["at"]:
        e("s_cmp_eq_u32 s%d, s%d" % (S_I, S_TD))
        e("s_cbranch_scc1 %s" % ("L_tail0" if P["tt"] else "L_deep"))
    if BC:
        e("s_cmp_lg_u32 s%d, 0" % S_BO)
        e("s_cbranch_scc1 L_vboost")
    e("s_and_b32 s%d, s%d, 15" % (S_T, S_I))
    e("s_cbranch_scc1 L_vloop")
    e.label("L_vend")
    for c in range(3):
        a = V_ACC + 4 * c
        e("v_permlane32_swap_b32 v%d, v%d" % (a, a + 2))
        e("v_permlane32_swap_b32 v%d, v%d" % (a + 1, a + 3))
    for c in range(3):
        a = V_ACC + 4 * c
        e("v_add_f32 v%d, v%d, v%d" % (a, a, a + 2))
        e("v_add_f32 v%d, v%d, v%d" % (a + 1, a + 1, a + 3))
    for c in range(3):
        a = V_ACC + 4 * c
        e("v_permlane16_swap_b32 v%d, v%d" % (a, a + 1))
    e("s_lshr_b32 s%d, s%d, 2" % (S_T, S_I))
    e("v_mov_b32 v%d, s%d" % (V_T0, S_T))
    for c in range(3):
        a = V_ACC + 4 * c
        e("v_add_f32 v%d, v%d, v%d" % (a, a, a + 1))
        e("ds_write_b32 v%d, v%d offset:%d" % (V_DO, a, c * 256))
    lds_inc(L_CA - 4, V_T0, V_T1)
    e("v_add_u32 v%d, %d, v%d" % (V_DO, NW * ROWB, V_DO))
    for i in range(12):
        e("v_mov_b32 v%d, 0" % (V_ACC + i))
    if BC:
        e("s_cmp_lg_u32 s%d, 0" % S_BO)
        e("s_cbranch_scc1 L_vboost2")
        e.label("L_vend2")
    e("s_cmp_lg_u32 s%d, %d" % (S_I, NT))
    e("s_cbranch_scc1 L_vloop")
    if P["stamp"] == 5 and BC:
        e("s_or_b32 s%d, s%d, s%d" % (S_LDC, S_LDC, S_NBO))
    if P["stamp"] == 6:
        e("s_memrealtime s[%d:%d]" % (S_T + 2, S_T + 3))
        e("s_not_b32 s%d, s%d" % (S_T, S_ST))
        e("v_mov_b32 v%d, s%d" % (V_ACC, S_T))
        e("s_waitcnt lgkmcnt(0)")
        e("v_mov_b32 v%d, s%d" % (V_ACC + 1, S_T + 2))
        e("s_mov_b64 exec, 1")
        e("s_cmp_lg_u32 s%d, 0" % S_WAVE)
        e("s_cbranch_scc1 L_exit1")
        e("buffer_atomic_umax v%d, off, s[%d:%d], 0 offset:32" % (V_ACC, S_WS, S_WS + 3))
        e("buffer_atomic_umax v%d, off, s[%d:%d], 0 offset:36" % (V_ACC + 1, S_WS, S_WS + 3))
    elif P["stamp"]:
        e("s_memrealtime s[%d:%d]" % (S_T + 2, S_T + 3))
        e("s_getreg_b32 s%d, hwreg(HW_REG_XCC_ID)" % (S_T + 4))
        e("s_waitcnt lgkmcnt(0)")
        e("v_mov_b32 v%d, s%d" % (V_ACC + 0, S_ST))
        e("v_mov_b32 v%d, s%d" % (V_ACC + 1, S_T + 2))
        e("v_mov_b32 v%d, s%d" % (V_ACC + 2, S_T + 4))
        e("v_mov_b32 v%d, s%d" % (V_ACC + 3, S_LDC if P["stamp"] == 5 else S_DBG))
        e("s_mul_i32 s%d, s2, %d" % (S_T, NW))
        e("s_add_u32 s%d, s%d, s%d" % (S_T, S_T, S_WAVE))
        e("s_lshl_b32 s%d, s%d, 4" % (S_T, S_T))
        e("s_add_u32 s%d, s%d, 0x4000000" % (S_T, S_T))
        e("buffer_store_dwordx4 v[%d:%d], v%d, s[%d:%d], s%d offen" % (V_ACC, V_ACC + 3, V_Z, S_WS, S_WS + 3, S_T))
        if P["stamp"] == 5:
            e("v_and_b32 v%d, 63, v0" % V_T0)
            e("v_lshlrev_b32 v%d, 2, v%d" % (V_T0, V_T0))
            e("s_mov_b32 exec_hi, 0xffff")
            e("buffer_store_dword v%d, v%d, s[%d:%d], s%d offen offset:4" % (NVGPR, V_T0, S_WS, S_WS + 3, S_DBG + 2))
            e("s_mov_b32 exec_hi, -1")
            e("buffer_store_dword v%d, v%d, s[%d:%d], s%d offen offset:196" % (NVGPR + 1, V_T0, S_WS, S_WS + 3, S_DBG + 2))
    e.lines.append("L_exit1:")
    e("s_endpgm")

    if P["td"] or P["at"]:
        e.label("L_deep")
        e.vm = list(steady)
        for k in range(1, P["tdm"] if NG == 3 else NG):
            issue_group(k, "V")
        deep = list(e.vm)
        e.lines.append(".p2align 6")
        e.label("L_dloop")
        body_deep(P["tdm"])
        assert e.vm == deep, (e.vm, deep)
        e("s_cmp_lg_u32 s%d, %d" % (S_I, NT))
        e("s_cbranch_scc1 L_dloop")
        e("s_branch L_vend")
        if P["tt"]:
            assert P["tdm"] == 3 and NG == 3 and BC

            def tcheck(k, dst):
                e("s_waitcnt lgkmcnt(0)")
                e("s_sub_u32 s%d, s%d, s%d" % (S_TW, S_TW, S_TH))
                e("s_add_u32 s%d, s%d, %d" % (S_TH, S_TH, P["d3"]))
                if P["stamp"] == 5:
                    e("s_add_u32 s%d, s%d, 1" % (S_LDC, S_LDC))
                e("s_cmp_ge_i32 s%d, 0" % S_TW)
                e("s_cbranch_scc1 %s" % dst)
            e.label("L_tail0")
            e("s_cmp_lg_u32 s%d, 0" % S_TT)
            e("s_cbranch_scc1 L_deep")
            e.lines.append(".p2align 6")
            e.label("L_tail")
            e.vm = list(steady)
            e("s_memrealtime s[%d:%d]" % (S_TW, S_TW + 1))
            tcheck(0, "L_deep")
            e.wait_tag("g0")
            e("s_memrealtime s[%d:%d]" % (S_TW, S_TW + 1))
            issue_group(1, "V")
            tcheck(1, "L_dB")
            vb = list(e.vm)
            compute(0, "V")
            e.wait_tag("g1")
            e("s_memrealtime s[%d:%d]" % (S_TW, S_TW + 1))
            issue_group(2, "V")
            advance("V", False, False)
            tcheck(2, "L_dC")
            vc = list(e.vm)
            elect(1, "V", 1)
            compute(1, "V")
            e.wait_tag("g2")
            issue_group(0, "V")
            elect(2, "V", 1)
            compute(2, "V")
            finish("V", False)
            assert e.vm == steady
            e("s_cmp_lg_u32 s%d, %d" % (S_I, NT))
            e("s_cbranch_scc1 L_tail")
            e("s_branch L_vend")
            e.label("L_dB")
            e.vm = vb
            issue_group(2, "V")
            advance("V", False, False)
            assert e.vm == DKV[0]
            e("s_branch L_dk0")
            e.label("L_dC")
            e.vm = vc
            issue_group(0, "V")
            assert e.vm == DKV[1]
            e("s_branch L_dk1")

    if BC:
        e.label("L_kboost")
        e("s_cmp_eq_u32 s%d, %d" % (S_I, NT - 1))
        e("s_cbranch_scc1 L_kchk2")
        e.vm = list(steady)
        body_boost("K")
        assert e.vm == steady, (e.vm, steady)
        e("s_branch L_kchk")
        e.label("L_vboost")
        e("s_and_b32 s%d, s%d, 15" % (S_T, S_I))
        e("s_cbranch_scc0 L_vend")
        e.label("L_vboost2")
        e("s_cmp_eq_u32 s%d, %d" % (S_I, NT))
        e("s_cbranch_scc1 L_vend2")
        body_boost("V")
        assert e.vm == steady, (e.vm, steady)
        e("s_branch L_vchk")

    for tag in EFS:
        e.label(tag)
        e("s_lshr_b32 s%d, s%d, 2" % (S_T, S_I))
        e("v_mov_b32 v%d, s%d" % (V_T0, S_T))
        lds_inc(L_CF - 4, V_T0, V_T1)
        e("s_branch %sr" % tag)
    for tag in ELS:
        e.label(tag)
        lds_inc(L_EL, V_Z, V_T1)
        e("s_branch %sr" % tag)

    def pace_events(kind, x):
        e("s_bitcmp1_b64 s[%d:%d], s%d" % (S_MP, S_MP + 1, S_I))
        e("s_cbranch_scc0 L_pa%s%s" % (kind, x))
        e("s_memrealtime s[%d:%d]" % (S_TW, S_TW + 1))
        e("s_mov_b32 s%d, s%d" % (S_BP, S_BO))
        lds_inc(L_TC, V_Z, V_T1)
        e.label("L_pa%s%s" % (kind, x))
        e("s_bitcmp1_b64 s[%d:%d], s%d" % (S_MG, S_MG + 1, S_I))
        e("s_cbranch_scc0 L_pb%s%s" % (kind, x))
        lds_inc(L_TC, V_Z, V_T1)
        e.label("L_pb%s%s" % (kind, x))
        e("s_bitcmp1_b64 s[%d:%d], s%d" % (S_MR, S_MR + 1, S_I))
        e("s_cbranch_scc0 L_pc%s%s" % (kind, x))
        e("v_mov_b32 v%d, s%d" % (V_T1, S_CPA))
        e("ds_read_b32 v%d, v%d" % (V_T0, V_T1))
        lds_inc(L_TC, V_Z, V_T1)
        e("s_add_u32 s%d, s%d, 4" % (S_CPA, S_CPA))
        e("s_waitcnt lgkmcnt(0)")
        e("v_readfirstlane_b32 s%d, v%d" % (S_T, V_T0))
        e("s_cmp_eq_u32 s%d, 0" % S_T)
        e("s_cbranch_scc1 L_pc%s%s" % (kind, x))
        if kind == "V" and P["tt"]:
            e("s_cmp_eq_u32 s%d, %d" % (S_I, P["te"]))
            e("s_cbranch_scc0 L_pe%s" % x)
            e("s_add_u32 s%d, s%d, %d" % (S_TH, S_T, P["tx"] - 3 * (NT - P["te"]) * P["d3"]))
            e("s_mov_b32 s%d, %d" % (S_TD, P["te"]))
            e("s_mov_b32 s%d, 0" % S_TT)
            e("s_mov_b32 s%d, 0" % S_BO)
            e("s_branch L_pc%s%s" % (kind, x))
            e.label("L_pe%s" % x)
        e("s_sub_u32 s%d, s%d, s%d" % (S_T, S_TW, S_T))
        e("s_max_i32 s%d, s%d, -4096" % (S_T, S_T))
        e("s_min_i32 s%d, s%d, 4096" % (S_T, S_T))
        if kind == "V" and not P["tt"]:
            e("s_cmp_eq_u32 s%d, %d" % (S_I, P["te"]))
            e("s_cbranch_scc0 L_pd%s" % x)
            e("s_mul_i32 s%d, s%d, %d" % (S_T, S_T, P["ka"]))
            e("s_add_u32 s%d, s%d, %d" % (S_T, S_T, P["kb"]))
            e("s_ashr_i32 s%d, s%d, 10" % (S_T, S_T))
            e("s_max_i32 s%d, s%d, %d" % (S_T, S_T, P["dmin"]))
            e("s_min_i32 s%d, s%d, %d" % (S_T, S_T, min(P["dmax"], NT - P["te"])))
            e("s_sub_u32 s%d, %d, s%d" % (S_TD, NT, S_T))
            e("s_cmp_eq_u32 s%d, %d" % (S_TD, NT))
            e("s_cselect_b32 s%d, 255, s%d" % (S_TD, S_TD))
            e("s_mov_b32 s%d, 0" % S_BO)
            if P["stamp"] == 5:
                e("s_mov_b32 s%d, s%d" % (S_LDC, S_TD))
            e("s_branch L_pc%s%s" % (kind, x))
            e.label("L_pd%s" % x)
        e("s_mul_i32 s%d, s%d, %d" % (S_T, S_T, P["ka2"]))
        e("s_add_u32 s%d, s%d, %d" % (S_T, S_T, P["kb2"]))
        e("s_ashr_i32 s%d, s%d, 10" % (S_T, S_T))
        e("s_sub_u32 s%d, s%d, s%d" % (S_T, S_T, S_BP))
        e("s_add_u32 s%d, s%d, s%d" % (S_T, S_T, S_BO))
        e("s_max_i32 s%d, s%d, 0" % (S_T, S_T))
        e("s_min_i32 s%d, s%d, %d" % (S_BO, S_T, P["bmax"]))
        e.label("L_pc%s%s" % (kind, x))
        e("s_bitcmp1_b64 s[%d:%d], s%d" % (S_MO, S_MO + 1, S_I))
        e("s_cbranch_scc0 L_evret%s%s" % (kind, x))

    for x in (("", "B") if BC else ("",)):
        e.label("L_evK" + x)
        if BC:
            pace_events("K", x)
        e("s_and_b32 s%d, s%d, 15" % (S_T, S_I))
        e("s_cbranch_scc0 L_evK2" + x)
        e("s_cmp_eq_u32 s%d, %d" % (S_I, N0))
        e("s_cbranch_scc1 L_evK2" + x)
        e("s_lshr_b32 s%d, s%d, 2" % (S_T + 1, S_I))
        e("s_andn2_b32 s%d, s%d, 3" % (S_T + 1, S_T + 1))
        e("s_add_u32 s%d, s%d, %d" % (S_T + 1, S_T + 1, 236 if P["ef"] else L_CF - 4))
        e("s_cmp_eq_u32 s%d, 1" % S_T)
        e("s_cselect_b32 s%d, s%d, %d" % (S_T, S_T + 1, L_EV + 4))
        e("s_cselect_b32 s%d, %d, 0" % (S_T + 1, PHI - 768))
        e("v_add_u32 v%d, s%d, v%d" % (V_LB0, S_T + 1, V_LB0))
        e("s_cmp_eq_u32 s%d, %d" % (S_I, TRG1))
        e("s_cselect_b32 s%d, %d, s%d" % (S_T, L_EV, S_T))
        e("v_mov_b32 v%d, s%d" % (V_T0, S_T))
        lds_inc(0, V_T0, V_T1)
        e("s_branch L_evretK" + x)
        e.label("L_evK2" + x)
        if P["stamp"] == 2:
            e("s_cmp_eq_u32 s%d, %d" % (S_I, N0))
            e("s_cbranch_scc0 L_ns2" + x)
            e("s_memrealtime s[%d:%d]" % (S_DBG, S_DBG + 1))
            e.label("L_ns2" + x)
        if P["sg"]:
            assert P["stamp"]
            e("s_cmp_eq_u32 s%d, %d" % (S_I, N0))
            e("s_cbranch_scc0 L_sgx" + x)
            e.label("L_sgl" + x)
            e("s_memrealtime s[%d:%d]" % (S_T + 4, S_T + 5))
            e("s_waitcnt lgkmcnt(0)")
            e("s_sub_u32 s%d, s%d, s%d" % (S_T + 4, S_T + 4, S_ST))
            e("s_cmp_lt_i32 s%d, %d" % (S_T + 4, P["sg"]))
            e("s_cbranch_scc1 L_sgl" + x)
            e.label("L_sgx" + x)
        get_table("K", "tk" + x)
        if P["stamp"] == 3:
            e("s_cmp_eq_u32 s%d, %d" % (S_I, N0))
            e("s_cbranch_scc0 L_evretK")
            e("s_memrealtime s[%d:%d]" % (S_DBG, S_DBG + 1))
        e("s_branch L_evretK" + x)
        e.label("L_evV" + x)
        if BC:
            pace_events("V", x)
        elif P["at"]:
            e("s_and_b32 s%d, s%d, 15" % (S_T, S_I))
            e("s_cbranch_scc0 L_evV2")
            e("s_cmp_eq_u32 s%d, %d" % (S_I, P["te"]))
            e("s_cbranch_scc1 L_evV3")
            lds_inc(L_TC, V_Z, V_T1)
            e("s_branch L_evretV")
            e.label("L_evV3")
            e("ds_read_b32 v%d, v%d offset:%d" % (V_T0, V_Z, L_TD))
            e("s_waitcnt lgkmcnt(0)")
            e("v_readfirstlane_b32 s%d, v%d" % (S_T, V_T0))
            e("s_cmp_eq_u32 s%d, 0" % S_T)
            e("s_cselect_b32 s%d, s%d, s%d" % (S_TD, S_TD, S_T))
            if P["stamp"] == 5:
                e("s_mov_b32 s%d, s%d" % (S_LDC, S_T))
            e("s_branch L_evretV")
            e.label("L_evV2")
        get_table("V", "tv2" + x)
        e("s_branch L_evretV" + x)

    PG = S_G; PM = S_M
    PNB = 5; PP = 6; PBK = 7
    PB = 8; PWS = 12; PDB = 16
    PO = 20; PFL = 21; PBASE = 22; PPR = 90
    PD = 24
    POF = 32
    PT = 40
    PMN = 44; PJ = 45; PRN = 46; PNR = 47
    PE = 48
    PRB = 56; PACC = 58; PGL = 59; PSP = 60; PPH = 61; PSG = 62; PG0 = 63
    PDC = 84
    PS2 = 92; PS3 = 96
    HL = 1; HZ = 2; HW = 3; HA = 4; HB_ = 5; HC = 6; HD = 7; HK = 8; HV = 9; HE = 10; HF = 11; HR = 12; HG = 13
    HN = 14; HT2 = 15
    HX = 16
    BIAS = 65536
    e.wr = {}; e.tr = {}
    e.label("L_helper")
    PST = 100
    if P["pt"] or P["pd"]:
        e("s_memrealtime s[%d:%d]" % (PST, PST + 1))
    e("s_sub_u32 s%d, s%d, %d" % (PP, S_WAVE, NW))
    e("s_mov_b32 s%d, s%d" % (PNB, S_NB))
    e("v_and_b32 v%d, 63, v0" % HL)
    e("v_mov_b32 v%d, 0" % HZ)
    e("s_mul_i32 s%d, s%d, %d" % (PGL, PG, 8 * FSTR))
    e("s_add_u32 s%d, s%d, %d" % (PGL, PGL, WS_G))
    if EB and EB != 4:
        e("s_cmp_lg_u32 s%d, 0" % PP)
        e("s_cbranch_scc1 L_hbar")
        e("v_lshlrev_b32 v%d, 2, v%d" % (HB_, HL))
        e("ds_write_b32 v%d, v%d" % (HB_, HZ))
        e("s_waitcnt lgkmcnt(0)")
        e.label("L_hbar")
        e("s_barrier")
    if BC:
        e("s_cmp_eq_u32 s%d, 3" % PP)
        e("s_cbranch_scc1 L_h3")
    LB = P["lb"]
    PA = PPH
    PKB = 91
    VLN = 20 if LB else 10
    ELN = 256 + VLN - 21
    if LB:
        assert P["sw"] and P["dc"] and P["vw"]
        e("s_mul_i32 s%d, s%d, 25" % (PE, PP))
        e("s_sub_u32 s%d, s%d, 22" % (PE, PE))
        e("s_cmp_lt_i32 s%d, s%d" % (PG, PE))
        e("s_cselect_b32 s%d, 1, 0" % PPR)
        e("s_cbranch_scc0 L_noprobe1")
        e("s_add_u32 s%d, s%d, 2" % (PE + 1, PG))
        e("s_mul_i32 s%d, s%d, 205" % (PE, PE + 1))
        e("s_lshr_b32 s%d, s%d, 10" % (PE, PE))
        e("s_mul_i32 s%d, s%d, 5" % (PBK, PE))
        e("s_sub_u32 s%d, s%d, s%d" % (PBK, PE + 1, PBK))
        e("s_add_u32 s%d, s%d, 1" % (PBK, PBK))
        e("s_lshl_b32 s%d, s%d, 1" % (PE + 1, PG))
        e("s_add_u32 s%d, s%d, s%d" % (PE + 1, PE + 1, PP))
        e("s_sub_u32 s%d, s%d, 1" % (PE + 1, PE + 1))
        e("s_cmp_lt_u32 s%d, 3" % PG)
        e("s_cselect_b32 s%d, 0, s%d" % (PBK, PBK))
        e("s_cselect_b32 s%d, s%d, s%d" % (PE + 1, PE + 1, PE))
    else:
        e("s_mul_i32 s%d, s%d, 10" % (PE, PP))
        e("s_sub_u32 s%d, s%d, 7" % (PE, PE))
        e("s_cmp_lt_i32 s%d, s%d" % (PG, PE))
        e("s_cselect_b32 s%d, 1, 0" % PPR)
        e("s_cbranch_scc0 L_noprobe1")
        e("s_max_u32 s%d, s%d, 1" % (PBK, PG))
        e("s_sub_u32 s%d, s%d, 1" % (PBK, PBK))
        e("s_lshr_b32 s%d, s%d, 1" % (PBK, PBK))
        e("s_lshl_b32 s%d, s%d, 1" % (PE + 1, PG))
        e("s_add_u32 s%d, s%d, s%d" % (PE + 1, PE + 1, PP))
        e("s_sub_u32 s%d, s%d, 1" % (PE + 1, PE + 1))
        e("s_bitcmp1_b32 s%d, 0" % PG)
        e("s_cselect_b32 s%d, 1, 4" % PE)
        e("s_cmp_eq_u32 s%d, 0" % PBK)
        e("s_cselect_b32 s%d, s%d, s%d" % (PE + 1, PE + 1, PE))
    e("s_and_b32 s%d, s%d, 1" % (PE, PE + 1))
    e("s_mul_i32 s%d, s%d, 20" % (PO, PE + 1))
    e("s_add_u32 s%d, s%d, s%d" % (PO, PO, PE))
    e("s_add_u32 s%d, s%d, 2" % (PO, PO))
    if LB:
        e("s_lshr_b32 s%d, s%d, 5" % (PKB, PO))
        e("s_xor_b32 s%d, s%d, s%d" % (PKB, PKB, PM))
    e("s_lshl_b32 s%d, s%d, 21" % (PO, PO))
    e("s_xor_b32 s%d, s%d, s%d" % (PFL, PM, PP))
    e("s_and_b32 s%d, s%d, 1" % (PFL, PFL))
    e("s_lshr_b32 s%d, s%d, 2" % (PE + 1, PM))
    e("s_xor_b32 s%d, s%d, s%d" % (PE, PE, PE + 1))
    e("s_xor_b32 s%d, s%d, s%d" % (PE, PE, PFL))
    e("s_lshl_b32 s%d, s%d, 13" % (PE, PE))
    e("s_lshl_b32 s%d, s%d, 14" % (PE + 1, PP))
    e("s_and_b32 s%d, s%d, 0x4000" % (PE + 1, PE + 1))
    e("s_or_b32 s%d, s%d, s%d" % (PE, PE, PE + 1))
    for u in range(8):
        e("s_xor_b32 s%d, s%d, 0x%x" % (POF + u, PE, ((u & 1) << 13) | (((u >> 1) & 1) << 12) | ((u >> 2) << 14)))
    e("v_and_b32 v%d, 7, v%d" % (HW, HL))
    e("v_lshlrev_b32 v%d, 12, v%d" % (HW, HW))
    e("s_lshl_b32 s%d, s%d, 8" % (PE, PM))
    e("v_add_u32 v%d, s%d, v%d" % (HW, PE, HW))
    e("s_mov_b32 s%d, %d" % (PB + 2, H * HEADB))
    e("s_mov_b32 s%d, 0x00020000" % (PB + 3))
    e("s_cmp_ge_u32 s%d, 3" % PBK)
    e("s_cselect_b32 s%d, 3, 0" % PE)
    e("s_sub_u32 s%d, s%d, s%d" % (PE, PBK, PE))
    e("s_lshl_b32 s%d, s%d, 28" % (PE, PE))
    e("s_add_u32 s%d, s%d, s%d" % (PO, PO, PE))
    e("s_cmp_ge_u32 s%d, 3" % PBK)
    e("s_waitcnt lgkmcnt(0)")
    e("s_cselect_b32 s%d, s68, s66" % PB)
    e("s_cselect_b32 s%d, s69, s67" % (PBASE + 1))
    e("s_and_b32 s%d, s%d, 0xffff" % (PB + 1, PBASE + 1))
    if not P["sw"]:
        e("s_mov_b64 exec, 0xff")
        e("buffer_load_dword v%d, v%d, s[%d:%d], s%d offen" % (HA, HW, PB, PB + 3, PO))
        e("s_mov_b64 exec, -1")
    e("s_add_u32 s%d, s%d, s%d" % (PBASE, PB, PO))
    e("s_addc_u32 s%d, s%d, 0" % (PBASE + 1, PBASE + 1))
    e("s_lshl_b32 s%d, s%d, 8" % (PE, PM))
    if P["sw"]:
        e("s_add_u32 s%d, s%d, s%d" % (PRB, PBASE, PE))
        e("s_addc_u32 s%d, s%d, 0" % (PRB + 1, PBASE + 1))
        for u in range(8):
            e("s_load_dword s%d, s[%d:%d], 0x%x" % (PD + u, PRB, PRB + 1, u * 4096))
        if P["dc"]:
            srd_ws(PWS)
            e("s_lshl_b32 s%d, s2, 1" % PE)
            e("s_add_u32 s%d, s%d, s%d" % (PE, PE, PP))
            e("s_mul_i32 s%d, s%d, %d" % (PE, PE, 6 * FSTR))
            e("s_add_u32 s%d, s%d, %d" % (PE, PE, WS_G - 6 * FSTR))
            e("v_mul_u32_u24 v%d, %d, v%d" % (HB_, FSTR, HL))
            e("v_mov_b32 v%d, 0" % (HZ + 1))
            if LB:
                e("v_mov_b32 v%d, 0" % (HZ + 2))
            e("s_cmp_eq_u32 s%d, 0" % PBK)
            e("s_cselect_b64 exec, 0x3f, 0")
            e("buffer_store_dwordx%d v[%d:%d], v%d, s[%d:%d], s%d offen sc1" % (3 if LB else 2, HZ, HZ + (2 if LB else 1), HB_, PWS, PWS + 3, PE))
            e("s_mov_b64 exec, -1")
        for k in range(1, P["sw"]):
            e("s_waitcnt lgkmcnt(0)")
            e("s_load_dword s%d, s[%d:%d], 0x%x" % (PD, PRB, PRB + 1, k * 4096 + 128))
    else:
        e("s_add_u32 s%d, s%d, 128" % (PE, PE))
        e("s_load_dword s%d, s[%d:%d], s%d" % (PJ, PBASE, PBASE + 1, PE))
    if P["pb"]:
        if P["pb"] == 1:
            e("s_cmp_lg_u32 s%d, 0" % PBK)
            e("s_cbranch_scc1 L_noprobe2")
        else:
            e("s_branch L_noprobe2")
    e.label("L_noprobe1")
    e("s_waitcnt lgkmcnt(0)")
    if P["pb"]:
        e.label("L_noprobe2")
    srd_ws(PWS)
    srd(PDB, 80, 256)
    if not EB:
        e("s_cmp_lg_u32 s%d, 0" % PP)
        e("s_cbranch_scc1 L_hbar")
        e("v_lshlrev_b32 v%d, 2, v%d" % (HB_, HL))
        e("ds_write_b32 v%d, v%d" % (HB_, HZ))
        e("s_waitcnt lgkmcnt(0)")
        e.label("L_hbar")
        e("s_barrier")
    if P["hs"]:
        e("s_mov_b32 s%d, 0" % (PD + 4))
    e("s_cmp_eq_u32 s%d, 0" % PPR)
    e("s_cbranch_scc1 L_role")
    e("s_mov_b32 s%d, 1" % PRN)
    e("s_mov_b32 s%d, 0" % PACC)
    if LB:
        for k in range(3):
            e("s_mov_b32 s%d, 0" % (PA + k))
        if LB & 2:
            e("s_mov_b32 m0, 0")
    e("s_cmp_eq_u32 s%d, 0" % PBK)
    e("s_cselect_b32 s%d, %d, %d" % (PNR, P["nr0"], NR))
    if not P["sw"]:
        e("s_waitcnt vmcnt(0)")
    if P["pb"]:
        e("s_waitcnt lgkmcnt(0)")
    e.label("L_round")
    e("s_add_u32 s%d, s%d, s%d" % (PE, PM, PRN))
    e("s_and_b32 s%d, s%d, 7" % (PE, PE))
    e("s_lshl_b32 s%d, s%d, 8" % (PE, PE))
    e("s_add_u32 s%d, s%d, s%d" % (PRB, PBASE, PE))
    e("s_addc_u32 s%d, s%d, 0" % (PRB + 1, PBASE + 1))
    e("s_mov_b32 s%d, -1" % PMN)
    e("s_memtime s[%d:%d]" % (PT, PT + 1))
    e("s_waitcnt lgkmcnt(0)")
    for u in range(8):
        a = PT + 2 * (u & 1); b = PT + 2 * ((u + 1) & 1)
        e("s_load_dword s%d, s[%d:%d], s%d" % (PJ, PRB, PRB + 1, POF + u))
        e("s_waitcnt lgkmcnt(0)")
        e("s_memtime s[%d:%d]" % (b, b + 1))
        e("s_waitcnt lgkmcnt(0)")
        e("s_sub_u32 s%d, s%d, s%d" % (PD + u, b, a))
        if u + 1 == P["ns0"] and u < 7:
            for k in range(u + 1, 8):
                e("s_mov_b32 s%d, -1" % (PD + k))
            e("s_cmp_eq_u32 s%d, 0" % PBK)
            e("s_cbranch_scc1 L_few")
    if LB & 2:
        for u in range(8):
            e("v_writelane_b32 v%d, s%d, m0" % (HX, PD + u))
            e("s_add_u32 m0, m0, 1")
    e.label("L_few")
    for u in range(8):
        e("s_min_u32 s%d, s%d, %d" % (PD + u, PD + u, P["clip"]))
        e("s_min_u32 s%d, s%d, s%d" % (PMN, PMN, PD + u))
    e("s_cmp_lt_u32 s%d, %d" % (PMN, P["l2t"]))
    e("s_cbranch_scc1 L_skip")
    for u in range(8):
        e("s_%s_u32 s%d, s%d, s%d" % ("add" if u & 1 else "sub", PACC, PACC, PD + u))
    if LB:
        e("s_cmp_eq_u32 s%d, 0" % PBK)
        e("s_cbranch_scc1 L_skip")
        if P["cl2"]:
            for h in range(2):
                e("s_min_u32 s%d, s%d, s%d" % (PE + h, PD + h, PD + 2 + h))
                e("s_min_u32 s%d, s%d, s%d" % (PE + 2, PD + 4 + h, PD + 6 + h))
                e("s_min_u32 s%d, s%d, s%d" % (PE + h, PE + h, PE + 2))
                e("s_add_u32 s%d, s%d, %d" % (PE + h, PE + h, P["cl2"]))
            for u in range(8):
                e("s_min_u32 s%d, s%d, s%d" % (PD + u, PD + u, PE + (u & 1)))
        for u in range(8):
            for k, bit in enumerate(((u ^ (u >> 1)) & 1, (u >> 2) & 1, (u ^ (u >> 2)) & 1)):
                e("s_%s_u32 s%d, s%d, s%d" % ("add" if bit else "sub", PA + k, PA + k, PD + u))
    e.label("L_skip")
    e("s_add_u32 s%d, s%d, 1" % (PRN, PRN))
    e("s_cmp_le_u32 s%d, s%d" % (PRN, PNR))
    e("s_cbranch_scc1 L_round")
    e("s_sub_u32 s%d, 0, s%d" % (PE, PACC))
    e("s_cmp_eq_u32 s%d, 0" % PFL)
    e("s_cselect_b32 s%d, s%d, s%d" % (PACC, PACC, PE))
    e("s_add_u32 s%d, s%d, 0x%x" % (PACC, PACC, BIAS + (1 << 24)))
    e("v_mov_b32 v%d, s%d" % (HA, PACC))
    e("s_mov_b64 exec, 1")
    e("s_lshl_b32 s%d, s%d, 2" % (PE, PBK))
    e("s_add_u32 s%d, s%d, 124" % (PE, PE))
    e("s_cmp_eq_u32 s%d, 0" % PBK)
    e("s_cbranch_scc0 L_post")
    if P["hs"] == 3:
        e("s_memrealtime s[%d:%d]" % (PD + 4, PD + 5))
    if P["dc"]:
        e("s_waitcnt vmcnt(0)")
    e("ds_add_rtn_u32 v%d, v%d, v%d offset:%d" % (HB_, HZ, HA, L_PC))
    e("s_mov_b32 s%d, 0" % PE)
    e("s_waitcnt lgkmcnt(0)")
    e("v_add_u32 v%d, v%d, v%d" % (HA, HA, HB_))
    e("v_cmp_ne_u32 vcc, 0, v%d" % HB_)
    e("s_and_b64 exec, exec, vcc")
    if P["vw"]:
        e("buffer_atomic_add v%d, off, s[%d:%d], s%d" % (HA, PDB, PDB + 3, PE))
        e("s_branch L_posted")
        e.label("L_post")
        lds_wait("vw", HZ, HE, PE, L_DEC, "nz", PSP)
        if LB:
            e("s_lshr_b32 s%d, s%d, 1" % (PE, PKB))
            e("s_xor_b32 s%d, s%d, s%d" % (PE, PE, PFL))
            e("s_sub_u32 s%d, 0, s%d" % (PE + 1, PA))
            e("s_bitcmp1_b32 s%d, 0" % PE)
            e("s_cselect_b32 s%d, s%d, s%d" % (PA, PE + 1, PA))
            e("s_xor_b32 s%d, s%d, s%d" % (PE, PKB, PFL))
            e("s_bitcmp1_b32 s%d, 0" % PM)
            e("s_cselect_b32 s%d, s%d, s%d" % (PE, PKB, PE))
            e("s_cselect_b32 s%d, s%d, s%d" % (PA + 1, PA + 1, PA + 2))
            e("s_sub_u32 s%d, 0, s%d" % (PE + 1, PA + 1))
            e("s_bitcmp1_b32 s%d, 0" % PE)
            e("s_cselect_b32 s%d, s%d, s%d" % (PA + 1, PE + 1, PA + 1))
            for k in range(2):
                e("s_add_u32 s%d, s%d, 0x%x" % (PA + k, PA + k, BIAS + (1 << 24)))
                e("v_writelane_b32 v%d, s%d, %d" % (HA, PA + k, k + 1))
            e("s_lshl_b32 s%d, s%d, 2" % (PE, PBK))
            e("s_and_b32 s%d, s%d, 1" % (PE + 1, PM))
            e("s_or_b32 s%d, s%d, s%d" % (PE, PE, PE + 1))
            e("s_lshr_b32 s%d, s%d, 1" % (PE + 1, PM))
            e("s_and_b32 s%d, s%d, 2" % (PE + 1, PE + 1))
            e("s_or_b32 s%d, s%d, s%d" % (PE, PE, PE + 1))
            e("s_mul_i32 s%d, s%d, %d" % (PE, PE, FSTR))
            e("s_add_u32 s%d, s%d, %d" % (PE, PE, WS_G + 252 * FSTR))
            e("s_mov_b64 exec, 7")
            e("v_lshlrev_b32 v%d, 2, v%d" % (HB_, HL))
            e("buffer_atomic_add v%d, v%d, s[%d:%d], s%d offen" % (HA, HB_, PWS, PWS + 3, PE))
            if LB & 2:
                e("s_mov_b64 exec, -1")
                e("s_memrealtime s[%d:%d]" % (PT, PT + 1))
                e("v_mov_b32 v%d, s%d" % (HX + 1, POF))
                e("v_mov_b32 v%d, s%d" % (HX + 2, PO))
                e("s_waitcnt lgkmcnt(0)")
                e("v_mov_b32 v%d, s%d" % (HX + 3, PT))
                srd(PB, 82, 0x8000000)
                e("s_lshl_b32 s%d, s2, 10" % PE)
                e("s_add_u32 s%d, s%d, 0x4090000" % (PE, PE))
                e("v_lshlrev_b32 v%d, 4, v%d" % (HW, HL))
                e("buffer_store_dwordx4 v[%d:%d], v%d, s[%d:%d], s%d offen" % (HX, HX + 3, HW, PB, PB + 3, PE))
        else:
            e("s_mul_i32 s%d, s%d, %d" % (PE, PG, FSTR))
            e("s_add_u32 s%d, s%d, %d" % (PE, PE, WS_G + 253 * FSTR))
            e("buffer_atomic_add v%d, off, s[%d:%d], s%d" % (HA, PWS, PWS + 3, PE))
        e.label("L_posted")
    else:
        e.label("L_post")
        e("buffer_atomic_add v%d, off, s[%d:%d], s%d" % (HA, PDB, PDB + 3, PE))
    e("s_mov_b64 exec, -1")
    if P["hs"] and P["hs"] != 3:
        if P["hs"] == 2:
            e("s_waitcnt vmcnt(0)")
        e("s_memrealtime s[%d:%d]" % (PD + 4, PD + 5))
    e.label("L_role")
    e("s_cmp_eq_u32 s%d, 0" % PP)
    e("s_cbranch_scc1 L_h0")
    e("s_cmp_eq_u32 s%d, 2" % PP)
    e("s_cbranch_scc1 L_h2")

    def wave_reduce(regs, op, tmp):
        for kk in (8, 4, 2, 1):
            for r in regs:
                e("%s_dpp v%d, v%d, v%d row_ror:%d row_mask:0xf bank_mask:0xf" % (op, r, r, r, kk))
        for sw in ("v_permlane32_swap_b32", "v_permlane16_swap_b32"):
            for r, t in zip(regs, tmp):
                e("v_mov_b32 v%d, v%d" % (t, r))
            for r, t in zip(regs, tmp):
                e("%s v%d, v%d" % (sw, r, t))
            for r, t in zip(regs, tmp):
                e("%s v%d, v%d, v%d" % (op, r, r, t))

    def decode(tag, nl, off, cnt, rounds, dst, b0):
        vw = b0 and P["vw"]
        if P["pt"] and not b0:
            e("s_add_u32 s%d, s%d, %d" % (PST, PST, P["pt"]))
        else:
            lds_wait("e" + tag, HZ, HE, PE, L_EV + (4 if b0 else 0), "nz" if b0 else str(P["tw"]), PSP)
        if vw:
            e("v_mul_u32_u24 v%d, %d, v%d" % (HD, FSTR, HL))
            e("s_mov_b32 s%d, %d" % (PE, WS_G + 256 * FSTR))
            e("v_lshrrev_b32 v%d, 1, v%d" % (HB_, HB_))
        e("s_mov_b64 exec, 0x%x" % ((1 << (2 * nl if vw else nl)) - 1))
        e("s_mov_b32 s%d, 0x40000" % PSP)
        if P["hs"] and not b0:
            e("s_memrealtime s[%d:%d]" % (PD, PD + 1))
        if P["l2p"] and not b0:
            e("buffer_load_dword v%d, v%d, s[%d:%d], 0 offen offset:%d" % (HA, HB_, PDB, PDB + 3, off))
            e("s_branch L_pollw" + tag)
        if not P["xkp"] & 4:
            e.label("L_poll" + tag)
            if P["pt"] and not b0:
                twait(PST, PT, P["pk"])
            if vw:
                e("buffer_load_dword v%d, v%d, s[%d:%d], s%d offen sc1" % (HA, HD, PWS, PWS + 3, PE))
            else:
                e("buffer_load_dword v%d, v%d, s[%d:%d], 0 offen offset:%d sc1" % (HA, HB_, PDB, PDB + 3, off))
            e("s_sub_u32 s%d, s%d, 1" % (PSP, PSP))
            e("s_cbranch_scc1 L_exit1")
            e.lines.append("L_pollw%s:" % tag)
            e("s_waitcnt vmcnt(0)")
            e("v_lshrrev_b32 v%d, 24, v%d" % (HC, HA))
            e("v_cmp_ne_u32 vcc, %d, v%d" % (cnt // 2 if vw else cnt, HC))
            e("s_cbranch_vccnz L_poll" + tag)
        if vw:
            e("v_add_u32_dpp v%d, v%d, v%d quad_perm:[1,0,3,2] row_mask:0xf bank_mask:0xf" % (HA, HA, HA))
            e("s_mov_b64 exec, 0x%x" % (0x5555 & ((1 << (2 * nl)) - 1)))
        th = P["th"] * cnt * rounds * (8 if b0 else P["ns0"]) // 8
        e("v_and_b32 v%d, 0xffffff, v%d" % (HA, HA))
        e("v_subrev_u32 v%d, %d, v%d" % (HA, cnt * BIAS, HA))
        if P["stamp"] == 6 and b0:
            e("s_cmp_lg_u32 s2, 100")
            e("s_cbranch_scc1 L_nodbg")
            e("buffer_store_dword v%d, v%d, s[%d:%d], 0 offen offset:4" % (HA, HB_, PDB, PDB + 3))
            e.label("L_nodbg")
        e("v_lshrrev_b32 v%d, 30, v%d" % (HC, HA))
        e("v_and_b32 v%d, 2, v%d" % (HC, HC))
        e("v_add_u32 v%d, %d, v%d" % (HA, th, HA))
        e("v_cmp_gt_u32 vcc, %d, v%d" % (2 * th, HA))
        e("v_cndmask_b32 v%d, v%d, 8, vcc" % (HC, HC))
        if P["force"] == 1:
            e("v_mov_b32 v%d, 8" % HC)
        if P["force"] >= 2:
            e("s_mov_b32 s%d, 0x%x" % (PE, 0x7000000 + 128 * (P["force"] - 2)))
            e("s_load_dwordx4 s[%d:%d], s[82:83], s%d" % (PS2, PS2 + 3, PE))
            e("s_waitcnt lgkmcnt(0)")
            for l in range(nl):
                b = b0 + l
                e("s_lshr_b64 s[%d:%d], s[%d:%d], %d" % (PE, PE + 1, PS2 + 2 * (b // 3), PS2 + 2 * (b // 3) + 1, 16 * (b % 3)))
                e("s_and_b32 s%d, s%d, %d" % (PE, PE, P["ob"]))
                e("s_xor_b32 s%d, s%d, %d" % (PE, PE, P["ox"]))
                e("v_writelane_b32 v%d, s%d, %d" % (HC, PE, 2 * l if vw else l))
        e("v_or_b32 v%d, 16, v%d" % (HC, HC))
        if P["xv"] and vw:
            e("v_lshlrev_b32 v%d, 1, v%d" % (HA, HL))
            e("v_lshrrev_b32 v%d, v%d, %d" % (HA, HA, 0) if False else "v_mov_b32 v%d, 0x%x" % (HD, int(str(P["xv"])[::-1], 16)))
            e("v_lshrrev_b32 v%d, v%d, v%d" % (HA, HA, HD))
            e("v_and_b32 v%d, 7, v%d" % (HA, HA))
            e("v_xor_b32 v%d, v%d, v%d" % (HC, HC, HA))
        e("ds_write_b32 v%d, v%d offset:%d" % (HB_, HC, dst))
        if P["hs"] and not b0:
            e("s_memrealtime s[%d:%d]" % (PD + 2, PD + 3))
            srd(PS2, 82, 0x8000000)
            e("s_waitcnt lgkmcnt(0)")
            e("v_mov_b32 v%d, s%d" % (HX, PD))
            e("v_mov_b32 v%d, s%d" % (HX + 1, PD + 2))
            e("v_mov_b32 v%d, s%d" % (HX + 2, PSP))
            e("v_mov_b32 v%d, s%d" % (HX + 3, PD + 4))
            e("s_lshl_b32 s%d, s2, 4" % PE)
            e("s_add_u32 s%d, s%d, 0x4008000" % (PE, PE))
            e("buffer_store_dwordx4 v[%d:%d], off, s[%d:%d], s%d" % (HX, HX + 3, PS2, PS2 + 3, PE))
        e("s_mov_b64 exec, -1")

    if not P["dc"]:
        e("s_cmp_lg_u32 s2, %d" % (NWG - 1))
        e("s_cbranch_scc1 L_nolead")
        e("v_mul_u32_u24 v%d, %d, v%d" % (HB_, FSTR, HL))
        e("v_mov_b32 v%d, 0" % (HZ + 1))
        for k in range(5 if P["vw"] else 4):
            e("s_mov_b32 s%d, %d" % (PE + k, WS_G + k * 64 * FSTR))
            if k == 4:
                e("s_mov_b64 exec, 0x%x" % (0x1fffff if P["fc"] else 0x3ff))
            e("buffer_store_dwordx2 v[%d:%d], v%d, s[%d:%d], s%d offen sc1" % (HZ, HZ + 1, HB_, PWS, PWS + 3, PE + k))
        e("v_mov_b32 v%d, 0x%x" % (HA, BIAS + (1 << 24)))
        e("s_mov_b64 exec, 1")
        e("s_waitcnt vmcnt(0)")
        e("buffer_atomic_add v%d, off, s[%d:%d], 0" % (HA, PDB, PDB + 3))
        e("s_mov_b64 exec, -1")
        if P["hs"]:
            if P["hs"] == 2:
                e("s_waitcnt vmcnt(0)")
            e("s_memrealtime s[%d:%d]" % (PD + 4, PD + 5))
        e.label("L_nolead")
    e("v_lshlrev_b32 v%d, 2, v%d" % (HB_, HL))
    decode("a", 1, 0, 48 if P["dc"] else 49, P["nr0"], L_DEC, 0)
    if LB:
        if P["ro"]:
            e("v_readfirstlane_b32 s%d, v%d" % (PMN, HC))
        if P["rx"]:
            MB = 1 << 20
            TG = [(66, 254 * MB), (66, 258 * MB), (66, 514 * MB), (68, 2 * MB), (68, 258 * MB), (68, 514 * MB),
                  (70, 4 * MB), (72, 4 * MB), (74, MB // 2), (76, MB // 2), (82, 32 * MB), (82, 2336 * MB)]
            e("s_mul_i32 s%d, s2, 4352" % PJ)
            for j in range(-1, P["rx"]):
                for t, (ptr, off) in enumerate(TG):
                    e("s_add_u32 s%d, s%d, 0x%x" % (PRB, ptr, off))
                    e("s_addc_u32 s%d, s%d, 0" % (PRB + 1, ptr + 1))
                    e("s_add_u32 s%d, s%d, %d" % (PE, PJ, 512 if j < 0 else 1024 * j))
                    if j < 0:
                        e("s_load_dword s%d, s[%d:%d], s%d" % (PD, PRB, PRB + 1, PE))
                        continue
                    e("s_waitcnt lgkmcnt(0)")
                    e("s_memtime s[%d:%d]" % (PT, PT + 1))
                    e("s_waitcnt lgkmcnt(0)")
                    e("s_load_dword s%d, s[%d:%d], s%d" % (PD, PRB, PRB + 1, PE))
                    e("s_waitcnt lgkmcnt(0)")
                    e("s_memtime s[%d:%d]" % (PT + 2, PT + 3))
                    e("s_waitcnt lgkmcnt(0)")
                    e("s_sub_u32 s%d, s%d, s%d" % (PT, PT + 2, PT))
                    e("v_writelane_b32 v%d, s%d, %d" % (HX, PT, 12 * j + t))
            e("s_memrealtime s[%d:%d]" % (PT, PT + 1))
            e("s_waitcnt lgkmcnt(0)")
            e("v_mov_b32 v%d, s%d" % (HX + 3, PT))
            srd(PB, 82, 0x8000000)
            e("s_lshl_b32 s%d, s2, 10" % PE)
            e("s_add_u32 s%d, s%d, 0x4090000" % (PE, PE))
            e("v_lshlrev_b32 v%d, 4, v%d" % (HW, HL))
            e("buffer_store_dwordx4 v[%d:%d], v%d, s[%d:%d], s%d offen" % (HX, HX + 3, HW, PB, PB + 3, PE))
            e("s_waitcnt vmcnt(0)")
        DA = HX; DB = HX + 1; DC = HX + 2; DW = HX + 4
        lds_wait("eb", HZ, HE, PE, L_EV + 4, "nz", PSP)
        e("v_mul_u32_u24 v%d, %d, v%d" % (HD, FSTR, HL))
        e("s_mov_b32 s%d, %d" % (PE, WS_G + 256 * FSTR))
        e("s_mov_b64 exec, 0xfffff")
        e("s_mov_b32 s%d, 0x40000" % PSP)
        e.label("L_pollb")
        e("buffer_load_dwordx3 v[%d:%d], v%d, s[%d:%d], s%d offen sc1" % (DA, DC, HD, PWS, PWS + 3, PE))
        e("s_sub_u32 s%d, s%d, 1" % (PSP, PSP))
        e("s_cbranch_scc1 L_exit1")
        e("s_waitcnt vmcnt(0)")
        e("v_min3_u32 v%d, v%d, v%d, v%d" % (HC, DA, DB, DC))
        e("v_lshrrev_b32 v%d, 24, v%d" % (HC, HC))
        e("v_cmp_ne_u32 vcc, 10, v%d" % HC)
        e("s_cbranch_vccnz L_pollb")
        for r in (DA, DB, DC):
            e("v_subrev_u32 v%d, 0x%x, v%d" % (r, 10 * (BIAS + (1 << 24)), r))
        for qp in ("[1,0,3,2]", "[2,3,0,1]"):
            for r in (DA, DB):
                e("v_add_u32_dpp v%d, v%d, v%d quad_perm:%s row_mask:0xf bank_mask:0xf" % (r, r, r, qp))
        e("v_ashrrev_i32 v%d, 31, v%d" % (HC, DA))
        e("v_xor_b32 v%d, v%d, v%d" % (DB, DB, HC))
        e("v_xor_b32 v%d, v%d, v%d" % (HA, DC, HC))
        e("s_mov_b64 vcc, 0x55555")
        e("v_cndmask_b32 v%d, v%d, v%d, vcc" % (DC, DC, HA))
        for qp in ("[1,0,3,2]", "[2,3,0,1]"):
            e("v_add_u32_dpp v%d, v%d, v%d quad_perm:%s row_mask:0xf bank_mask:0xf" % (DC, DC, DC, qp))
        e("v_and_b32 v%d, 2, v%d" % (DW, HC))
        for r, bit, th in ((DB, 1, P["th1"]), (DC, 4, P["th0"])):
            e("v_or_b32 v%d, %d, v%d" % (HA, bit, DW))
            e("v_cmp_gt_i32 vcc, %d, v%d" % (-th * 40 * NR, r))
            e("v_cndmask_b32 v%d, v%d, v%d, vcc" % (DW, DW, HA))
        th = P["th"] * 40 * NR
        e("v_add_u32 v%d, %d, v%d" % (HA, th, DA))
        e("v_cmp_gt_u32 vcc, %d, v%d" % (2 * th, HA))
        e("v_cndmask_b32 v%d, v%d, 8, vcc" % (DW, DW))
        e("v_and_b32 v%d, %d, v%d" % (DW, P["lm"] | 8, DW))
        for b in range(5):
            e("v_readlane_b32 s%d, v%d, %d" % (PD + b, DW, 4 * b))
        if P["ro"]:
            e("s_xor_b32 s%d, s%d, s%d" % (PE, PMN, PD + 2))
            e("s_and_b32 s%d, s%d, 15" % (PE, PE))
            e("s_and_b32 s%d, s%d, %d" % (PE + 1, PE, 10 if P["ro"] & 1 else 14))
            e("s_cselect_b32 s%d, 0, s%d" % (PE, PE))
            if P["ro"] & 4:
                e("s_cselect_b32 s%d, s%d, 4" % (PE + 1, PD))
                e("s_bitcmp0_b32 s%d, 2" % (PE + 1))
                e("s_cselect_b32 s%d, s%d, 0" % (PE + 1, PE + 1))
                e("s_and_b32 s%d, s%d, 1" % (PE + 1, PE + 1))
                e("s_or_b32 s%d, s%d, s%d" % (PE, PE, PE + 1))
            for b in range(5):
                e("s_xor_b32 s%d, s%d, s%d" % (PE + 1, PD + b, PE))
                e("s_bitcmp1_b32 s%d, 3" % (PD + b))
                e("s_cselect_b32 s%d, s%d, s%d" % (PD + b, PD + b, PE + 1))
        if P["pol"] == 4:
            e("s_xor_b32 s%d, s%d, s%d" % (PE, PD, PD + 3))
            e("s_xor_b32 s%d, s%d, s%d" % (PE + 1, PD + 1, PD + 4))
            e("s_xor_b32 s%d, s%d, s%d" % (PE + 1, PE + 1, PE))
            e("s_and_b32 s%d, s%d, 10" % (PE, PE))
            e("s_or_b32 s%d, s%d, s%d" % (PE, PE, PE + 1))
            for b in range(2):
                e("s_cselect_b32 s%d, s%d, s%d" % (PD + b, PD + b, PD + 3 + b))
        if P["pol"] == 7:
            e("s_xor_b32 s%d, s%d, s%d" % (PE, PD, PD + 3))
            e("s_and_b32 s%d, s%d, 10" % (PE + 1, PE))
            e("s_cselect_b32 s%d, 0, s%d" % (PE, PE))
            e("s_xor_b32 s%d, s%d, s%d" % (PD, PD, PE))
            e("s_xor_b32 s%d, s%d, s%d" % (PE, PE, PD + 1))
            e("s_cmp_eq_u32 s%d, s%d" % (PE, PD + 4))
            e("s_cselect_b32 s%d, s%d, s%d" % (PD + 1, PE, PD + 1))
        if P["pol"] >= 8:
            e("s_xor_b32 s%d, s%d, s%d" % (PE, PD, PD + 3))
            e("s_xor_b32 s%d, s%d, s%d" % (PE + 1, PD + 1, PD + 4))
            if P["pol"] == 8:
                e("s_and_b32 s%d, s%d, 5" % (PE + 2, PD + 3))
                e("s_cselect_b32 s%d, 14, 10" % (PE + 2))
                e("s_cmp_eq_u32 s%d, s%d" % (PE, PE + 1))
                e("s_cselect_b32 s%d, 10, s%d" % (PE + 2, PE + 2))
                e("s_and_b32 s%d, s%d, s%d" % (PE + 2, PE + 2, PE))
            else:
                e("s_and_b32 s%d, s%d, 10" % (PE + 2, PE))
            e("s_cselect_b32 s%d, 0, s%d" % (PE, PE))
            e("s_xor_b32 s%d, s%d, s%d" % (PD, PD, PE))
            e("s_cmp_eq_u32 s%d, s%d" % (PE, PE + 1))
            e("s_cselect_b32 s%d, 1, s%d" % (PE + 1, PE + 1))
            e("s_cmp_eq_u32 s%d, 1" % (PE + 1))
            e("s_cselect_b32 s%d, s%d, s%d" % (PD + 1, PD + 4, PD + 1))
        for b in range(2):
            if not (0, 0, 1, 2, 0, 3, 3, 0, 0, 0)[P["pol"] or 5] >> b & 1:
                continue
            e("s_xor_b32 s%d, s%d, s%d" % (PE, PD + b, PD + 3 + b))
            e("s_and_b32 s%d, s%d, %d" % (PE, PE, 14 if P["pol"] == 6 else 10))
            e("s_cselect_b32 s%d, s%d, s%d" % (PD + b, PD + b, PD + 3 + b))
        for b in range(5):
            e("s_or_b32 s%d, s%d, 16" % (PD + b, PD + b))
            e("v_writelane_b32 v%d, s%d, %d" % (HC, PD + b, b))
        e("s_mov_b64 exec, 0x1f")
        e("ds_write_b32 v%d, v%d offset:%d" % (HB_, HC, L_DEC + 4))
        e("s_mov_b64 exec, -1")
    else:
        decode("b", 5, 128, 16, NR, L_DEC + 4, 1)
    if P["xkp"] & 2048:
        srd(PB, 70, H * NGRP * DH * 2)
        e("s_memrealtime s[%d:%d]" % (PT, PT + 1))
        e("v_lshlrev_b32 v%d, 4, v%d" % (HW, HL))
        e("s_add_u32 s%d, s%d, 32" % (PE, PG))
        e("s_lshl_b32 s%d, s%d, 16" % (PE, PE))
        e("s_mov_b32 s%d, 0" % PRN)
        e("s_waitcnt lgkmcnt(0)")
        e("s_add_u32 s%d, s%d, %d" % (PT, PT, P["xa"]))
        e.label("L_xk")
        e("s_memrealtime s[%d:%d]" % (PT + 2, PT + 3))
        e("s_waitcnt lgkmcnt(0)")
        e("s_sub_u32 s%d, s%d, s%d" % (PT + 2, PT + 2, PT))
        e("s_cmp_lt_i32 s%d, 0" % (PT + 2))
        e("s_cbranch_scc1 L_xk")
        for k in range(P["xn"]):
            e("buffer_load_dwordx4 v[%d:%d], v%d, s[%d:%d], s%d offen offset:%d" % (HX + 4 * k, HX + 4 * k + 3, HW, PB, PB + 3, PE, (k % 4) * 1024))
            if k % 4 == 3 or k == P["xn"] - 1:
                e("s_add_u32 s%d, s%d, %d" % (PE, PE, 1024 * (k % 4 + 1)))
        e("s_add_u32 s%d, s%d, %d" % (PT, PT, 222 * P["xn"] // 4))
        e("s_add_u32 s%d, s%d, %d" % (PRN, PRN, P["xn"]))
        e("s_cmp_eq_u32 s%d, 64" % PRN)
        e("s_cselect_b32 s%d, %d, 0" % (PE + 1, 31 << 16))
        e("s_add_u32 s%d, s%d, s%d" % (PE, PE, PE + 1))
        e("s_waitcnt vmcnt(0)")
        e("s_cmp_lt_u32 s%d, 128" % PRN)
        e("s_cbranch_scc1 L_xk")
    if P["xkp"] & 4096:
        srd(PB, 74, H * SKV * 2)
        srd(PS2, 76, H * SKV * 2)
        e("s_memrealtime s[%d:%d]" % (PT, PT + 1))
        e("v_lshlrev_b32 v%d, 4, v%d" % (HW, HL))
        e("s_mul_i32 s%d, s%d, 21845" % (PE, PG))
        e("s_andn2_b32 s%d, s%d, 127" % (PE, PE))
        e("s_mov_b32 s%d, 0" % PRN)
        e("s_mov_b32 s%d, 0" % PMN)
        e("s_waitcnt lgkmcnt(0)")
        e("s_add_u32 s%d, s%d, %d" % (PT, PT, P["xa"]))
        e.label("L_xv")
        for sr in (PB, PS2):
            twait(PT, PT + 2, P["xn"])
            e("buffer_load_dwordx4 v[%d:%d], v%d, s[%d:%d], s%d offen" % (HX, HX + 3, HW, sr, sr + 3, PE))
        e("s_add_u32 s%d, s%d, 1024" % (PE, PE))
        e("s_add_u32 s%d, s%d, 1" % (PRN, PRN))
        e("s_cmp_lt_u32 s%d, 22" % PRN)
        e("s_cbranch_scc1 L_xv")
        e("s_mov_b32 s%d, 0" % PRN)
        e("s_add_u32 s%d, s%d, %d" % (PE, PE, 32 * 21845 // 128 * 128 - 22 * 1024))
        e("s_add_u32 s%d, s%d, %d" % (PT, PT, 3520 - 44 * P["xn"]))
        e("s_add_u32 s%d, s%d, 1" % (PMN, PMN))
        e("s_cmp_lt_u32 s%d, 3" % PMN)
        e("s_cbranch_scc1 L_xv")
        e("s_waitcnt vmcnt(0)")
    if P["lx"]:
        e("s_mul_i32 s%d, s%d, 43" % (PE, PG))
        e("s_lshr_b32 s%d, s%d, 8" % (PE, PE))
        e("s_mul_i32 s%d, s%d, 6" % (PE + 1, PE))
        e("s_sub_u32 s%d, s%d, s%d" % (PBK, PG, PE + 1))
        e("s_cmp_ge_u32 s%d, 3" % PBK)
        e("s_cselect_b32 s%d, s68, s66" % PB)
        e("s_cselect_b32 s%d, s69, s67" % (PBASE + 1))
        e("s_cselect_b32 s%d, 3, 0" % (PE + 1))
        e("s_sub_u32 s%d, s%d, s%d" % (PE + 1, PBK, PE + 1))
        e("s_lshl_b32 s%d, s%d, 28" % (PO, PE + 1))
        e("s_mul_i32 s%d, s%d, %d" % (PE, PE, 21 << 21))
        e("s_add_u32 s%d, s%d, s%d" % (PO, PO, PE))
        e("s_add_u32 s%d, s%d, %d" % (PO, PO, (7 << 21) + (1 << 20)))
        e("s_and_b32 s%d, s%d, 0xffff" % (PB + 1, PBASE + 1))
        e("s_mov_b32 s%d, %d" % (PB + 2, H * HEADB))
        e("s_mov_b32 s%d, 0x00020000" % (PB + 3))
        e("s_add_u32 s%d, s%d, %d" % (PE, PM, P["lx"]))
        e("s_and_b32 s%d, s%d, 7" % (PE, PE))
        e("s_lshl_b32 s%d, s%d, 9" % (PE, PE))
        e("v_lshlrev_b32 v%d, 12, v%d" % (HW, HL))
        e("v_add_u32 v%d, s%d, v%d" % (HW, PE, HW))
        for j in range(3):
            e("buffer_load_dword v%d, v%d, s[%d:%d], s%d offen offset:%d" % (HX + j, HW, PB, PB + 3, PO, j * 128))
        e("s_add_u32 s%d, s%d, s%d" % (PBASE, PB, PO))
        e("s_addc_u32 s%d, s%d, 0" % (PBASE + 1, PBASE + 1))
        e("s_lshl_b32 s%d, s%d, 9" % (PE, PM))
        e("s_add_u32 s%d, s%d, s%d" % (PBASE, PBASE, PE))
        e("s_addc_u32 s%d, s%d, 0" % (PBASE + 1, PBASE + 1))
        e("s_load_dword s%d, s[%d:%d], 384" % (PJ, PBASE, PBASE + 1))
        e("s_load_dword s%d, s[%d:%d], 0x20180" % (PJ, PBASE, PBASE + 1))
        e("s_waitcnt vmcnt(0) lgkmcnt(0)")
        lds_wait("lx", HZ, HE, PE, L_EV + 4, "8", PSP)
        for j in range(3):
            e("s_mov_b32 m0, 0")
            e("s_mov_b32 s%d, %d" % (PE, j * 128))
            e.label("L_lx%d" % j)
            e("s_memtime s[%d:%d]" % (PT, PT + 1))
            e("s_waitcnt lgkmcnt(0)")
            e("s_load_dword s%d, s[%d:%d], s%d" % (PJ, PBASE, PBASE + 1, PE))
            e("s_waitcnt lgkmcnt(0)")
            e("s_memtime s[%d:%d]" % (PT + 2, PT + 3))
            e("s_waitcnt lgkmcnt(0)")
            e("s_sub_u32 s%d, s%d, s%d" % (PT, PT + 2, PT))
            e("v_writelane_b32 v%d, s%d, m0" % (HX + j, PT))
            e("s_add_u32 s%d, s%d, 4096" % (PE, PE))
            e("s_add_u32 m0, m0, 1")
            e("s_cmp_lt_u32 m0, 64")
            e("s_cbranch_scc1 L_lx%d" % j)
        e("s_memrealtime s[%d:%d]" % (PT, PT + 1))
        e("s_waitcnt lgkmcnt(0)")
        e("v_mov_b32 v%d, s%d" % (HX + 3, PT))
        srd(PB, 82, 0x8000000)
        e("s_lshl_b32 s%d, s2, 10" % PE)
        e("s_add_u32 s%d, s%d, 0x4090000" % (PE, PE))
        e("v_lshlrev_b32 v%d, 4, v%d" % (HW, HL))
        e("buffer_store_dwordx4 v[%d:%d], v%d, s[%d:%d], s%d offen" % (HX, HX + 3, HW, PB, PB + 3, PE))
    if FU:
        CSC = 24; CMK = 56; CRB = 57; CO = 92
        e("s_and_b32 s%d, s%d, 7" % (PE, PG))
        e("s_cmp_lg_u32 s%d, s%d" % (PE, PM))
        e("s_cbranch_scc1 L_exit1")
        e("s_mul_i32 s%d, s%d, 3" % (PE, PG))
        e("s_add_u32 s%d, s%d, 2" % (PE, PE))
        e("s_lshr_b32 s%d, s%d, 5" % (PE, PE))
        e("s_lshl_b32 s%d, s%d, 2" % (PE, PE))
        e("v_mov_b32 v%d, s%d" % (HW, PE))
        e("s_mul_i32 s%d, s%d, 24" % (CRB, PG))
        e("v_add_u32 v%d, s%d, v%d" % (HG, CRB, HL))
        e("v_and_b32 v%d, 255, v%d" % (HR, HG))
        e("v_mul_u32_u24 v%d, %d, v%d" % (HR, FSTR, HR))
        e("v_lshlrev_b32 v%d, 6, v%d" % (HG, HG))
        e("s_mov_b32 s%d, %d" % (PE + 1, WS_G))
        e("s_mov_b32 s%d, %d" % (PE + 2, WS_ML))
        e("v_mov_b32 v%d, 0x%08x" % (HA, BIGNEG))
        e("v_mov_b32 v%d, 0" % HB_)
        if P["cd"]:
            th = [12 * (len(CPK) + min(j for j, c in enumerate(CPV) if c > b)) + P["cd"] for b in (16, 32, 4)]
            e("s_mov_b32 s%d, %d" % (PE + 3, th[0]))
            e("s_cmp_eq_u32 s%d, 4" % PE)
            e("s_cselect_b32 s%d, %d, s%d" % (PE + 3, th[1], PE + 3))
            e("s_cmp_eq_u32 s%d, 8" % PE)
            e("s_cselect_b32 s%d, %d, s%d" % (PE + 3, th[2], PE + 3))
            lds_wait("cg", HZ, HE, PE, L_TC, "s%d" % (PE + 3), PSP)
        else:
            lds_wait("cg", HZ, HE, PE, L_GO, "nz", PSP, HW)
        for tag, ld, chk in (("f", "buffer_load_dword v%d, v%d, s[%d:%d], s%d offen sc1" % (HD, HR, PWS, PWS + 3, PE + 1), HD),
                             ("m", "buffer_load_dwordx4 v[%d:%d], v%d, s[%d:%d], s%d offen sc1" % (HA, HD, HG, PWS, PWS + 3, PE + 2), HD)):
            e("s_mov_b64 exec, 0xffffff")
            e("s_mov_b32 s%d, 0x40000" % PSP)
            e.label("L_cp" + tag)
            e(ld)
            e("s_sub_u32 s%d, s%d, 1" % (PSP, PSP))
            e("s_cbranch_scc1 L_exit1")
            e("s_waitcnt vmcnt(0)")
            e("v_cmpx_eq_u32 vcc, 0, v%d" % chk)
            e("s_cbranch_execnz L_cp" + tag)
        e("s_mov_b64 exec, -1")
        e("v_mov_b32 v%d, v%d" % (HC, HA))
        wave_reduce([HC], "v_max_f32", [HD])
        e("v_sub_f32 v%d, v%d, v%d" % (HA, HA, HC))
        e("v_exp_f32 v%d, v%d" % (HA, HA))
        e("v_mul_f32 v%d, v%d, v%d" % (HB_, HB_, HA))
        wave_reduce([HB_], "v_add_f32", [HD])
        e("v_rcp_f32 v%d, v%d" % (HB_, HB_))
        e("v_mul_f32 v%d, v%d, v%d" % (HA, HA, HB_))
        if P["fc"]:
            e("s_cmp_lt_u32 s%d, 21" % PG)
            e("s_cbranch_scc1 L_cown")
            e("s_mul_i32 s%d, s%d, %d" % (PE, PG, FSTR))
            e("s_add_u32 s%d, s%d, %d" % (PE, PE, WS_G + ELN * FSTR))
            e("v_lshlrev_b32 v%d, 2, v%d" % (HR, HL))
            e("v_mov_b32 v%d, 1" % HB_)
            e("s_mov_b64 exec, 0xffffff")
            e("buffer_store_dword v%d, v%d, s[%d:%d], s%d offen offset:128 sc1" % (HA, HR, PWS, PWS + 3, PE))
            e("s_mov_b64 exec, 1")
            e("s_waitcnt vmcnt(0)")
            e("buffer_store_dword v%d, off, s[%d:%d], s%d offset:4 sc1" % (HB_, PWS, PWS + 3, PE))
            e("s_endpgm")
            e.label("L_cown")
        for r in range(24):
            e("v_readlane_b32 s%d, v%d, %d" % (CSC + r, HA, r))
        srd(CO, 78, H * DH * 2)
        e("s_lshl_b32 s%d, s%d, 10" % (CRB, CRB))
        e("v_lshlrev_b32 v%d, 4, v%d" % (HG, HL))
        e("v_add_u32 v%d, s%d, v%d" % (HG, CRB, HG))
        for k in range(1, 6):
            e("s_mov_b32 s%d, %d" % (PE + k, 4096 * k))
        for r in (HA, HB_, HC):
            e("v_mov_b32 v%d, 0" % r)
        e("s_mov_b32 s%d, 0xffffff" % CMK)
        e("v_lshlrev_b32 v%d, 1, v%d" % (HR, HL))
        e("s_mul_i32 s%d, s%d, %d" % (CRB, PG, DH * 2))
        lds_wait("cc", HZ, HE, PE, L_CA, "%d" % P["cw"], PSP, HW)
        e("s_mov_b32 s%d, 0x40000" % PSP)
        e.label("L_cr")
        for r in range(24):
            e("s_bitcmp0_b32 s%d, %d" % (CMK, r))
            e("s_cbranch_scc1 L_cl%d" % r)
            e("buffer_load_dwordx4 v[%d:%d], v%d, s[%d:%d], %s offen offset:%d sc1" %
              (HX + 4 * r, HX + 4 * r + 3, HG, PWS, PWS + 3, "s%d" % (PE + r // 4) if r >= 4 else "0", (r % 4) * 1024))
            e.lines.append("L_cl%d:" % r)
        e("s_sub_u32 s%d, s%d, 1" % (PSP, PSP))
        e("s_cbranch_scc1 L_exit1")
        e("s_waitcnt vmcnt(0)")
        for r in range(24):
            e("s_bitcmp0_b32 s%d, %d" % (CMK, r))
            e("s_cbranch_scc1 L_cv%d" % r)
            e("v_cmp_eq_u32 vcc, 0, v%d" % (HX + 4 * r + 3))
            e("s_cbranch_vccnz L_cv%d" % r)
            for k, a_ in enumerate((HA, HB_, HC)):
                e("v_fmac_f32 v%d, s%d, v%d" % (a_, CSC + r, HX + 4 * r + k))
            e("s_bitset0_b32 s%d, %d" % (CMK, r))
            e.lines.append("L_cv%d:" % r)
        e("s_cmp_lg_u32 s%d, 0" % CMK)
        e("s_cbranch_scc1 L_cr")
        for k, a_ in enumerate((HA, HB_, HC)):
            e("v_cvt_pk_bf16_f32 v%d, v%d, v%d" % (a_, a_, a_))
            e("buffer_store_short v%d, v%d, s[%d:%d], s%d offen offset:%d %s" % (a_, HR, CO, CO + 3, CRB, k * 128, P["os"]))
        if P["stamp"] == 5:
            e("s_memrealtime s[%d:%d]" % (PT, PT + 1))
            e("s_waitcnt vmcnt(0)")
            e("s_memrealtime s[%d:%d]" % (PT + 2, PT + 3))
            srd(PS2, 82, 0x8000000)
            e("s_waitcnt lgkmcnt(0)")
            e("v_mov_b32 v%d, s%d" % (HX, PT))
            e("v_mov_b32 v%d, s%d" % (HX + 1, PT + 2))
            e("v_mov_b32 v%d, s%d" % (HX + 2, PSP))
            e("s_lshl_b32 s%d, s%d, 4" % (PE, PG))
            e("s_add_u32 s%d, s%d, 0x4009000" % (PE, PE))
            e("s_mov_b64 exec, 1")
            e("buffer_store_dwordx4 v[%d:%d], off, s[%d:%d], s%d" % (HX, HX + 3, PS2, PS2 + 3, PE))
    e("s_endpgm")

    def seg_scalars():
        e("s_lshl_b32 s%d, s%d, 5" % (PSG, PPH))
        e("s_add_u32 s%d, s%d, s%d" % (PSG, PSG, PG))
        e("s_lshl_b32 s%d, s%d, 15" % (PG0, PSG))
        e("s_add_u32 s%d, s%d, 1" % (PG0, PG0))
        e("s_mul_hi_u32 s%d, s%d, 0xaaaaaaab" % (PG0, PG0))
        e("s_lshr_b32 s%d, s%d, 7" % (PG0, PG0))

    def get_dec(tag):
        lds_wait(tag, HZ, HE, PE, L_DEC + 20, "nz", PSP)
        e("ds_read_b128 v[%d:%d], v%d offset:%d" % (HX, HX + 3, HZ, L_DEC))
        e("ds_read_b64 v[%d:%d], v%d offset:%d" % (HX + 4, HX + 5, HZ, L_DEC + 16))
        e("s_waitcnt lgkmcnt(0)")
        for i in range(6):
            e("v_readfirstlane_b32 s%d, v%d" % (PDC + i, HX + i))

    e.label("L_h0")
    srd(PB, 64, H * DH * 2)
    srd(PS2, 70, H * NGRP * DH * 2)
    srd(PS3, 72, H * NGRP * DH * 2)
    e("v_lshrrev_b32 v%d, 4, v%d" % (HA, HL))
    e("v_and_b32 v%d, 15, v%d" % (HB_, HL))
    e("v_lshlrev_b32 v%d, 3, v%d" % (HC, HB_))
    e("v_mul_u32_u24 v%d, %d, v%d" % (HD, DH * 2, HA))
    e("v_add_u32 v%d, v%d, v%d" % (HD, HD, HC))
    e("v_lshl_add_u32 v%d, v%d, 2, v%d" % (HG, HB_, HA))
    e("v_lshlrev_b32 v%d, 2, v%d" % (HG, HG))
    BQ = HX; BS = HX + 12; BZ = BS + 36; BR = BZ + 36
    PFA = 32; PIA = 33
    e("v_lshlrev_b32 v%d, 4, v%d" % (HA, HL))
    e("s_mul_i32 s%d, s%d, %d" % (PFA, PNB, FSTR))
    e("s_add_u32 s%d, s%d, s%d" % (PFA, PFA, PGL))
    e("s_lshl_b32 s%d, s%d, 3" % (PIA, PG))
    e("s_add_u32 s%d, s%d, s%d" % (PIA, PIA, PNB))
    IMS = PHI if P["il"] else IMG
    PHS = NWG * PHI if P["il"] else PHI
    CX = P["cx"]
    if CX:
        assert N0 <= 4 and not P["xp"]
        IMS = 3072 if P["x12"] else 4096; PHS = NWG * IMS
        e("v_and_b32 v%d, 7, v%d" % (HN, HL))
        e("v_lshrrev_b32 v%d, 3, v%d" % (HE, HL))
        e("v_mul_u32_u24 v%d, 24, v%d" % (HK, HE))
        e("v_mov_b32 v%d, 768" % HF)
        e("v_mad_u32_u24 v%d, v%d, v%d, v%d" % (HK, HN, HF, HK))
        e("v_lshlrev_b32 v%d, 7, v%d" % (HN, HN))
        e("v_lshl_add_u32 v%d, v%d, 4, v%d" % (HN, HE, HN))
        if P["cl"]:
            e("v_lshlrev_b32 v%d, 4, v%d" % (HN, HL))
        if P["x12"]:
            e("v_mul_u32_u24 v%d, 12, v%d" % (HN, HL))
    XZ = P["xz"]; XS = 1 << P["xr"]

    def img_lane(dst, tmp):
        if XZ >= 1024:
            e("v_lshlrev_b32 v%d, 4, v%d" % (dst, HL))
            return
        lz = (XZ // 16).bit_length() - 1
        e("v_lshrrev_b32 v%d, %d, v%d" % (dst, lz, HL))
        e("v_lshlrev_b32 v%d, %d, v%d" % (dst, P["xr"], dst))
        e("v_and_b32 v%d, %d, v%d" % (tmp, XZ // 16 - 1, HL))
        e("v_lshl_add_u32 v%d, v%d, 4, v%d" % (dst, tmp, dst))

    def img_base(dst, slot, tmp):
        spr = XS // XZ
        assert 8 <= spr <= 256 and PHI % XZ == 0
        e("s_lshr_b32 s%d, s%d, %d" % (tmp, slot, spr.bit_length() - 1))
        e("s_mul_i32 s%d, s%d, %d" % (tmp, tmp, XS * (PHI // XZ)))
        e("s_and_b32 s%d, s%d, %d" % (dst, slot, spr - 1))
        e("s_mul_i32 s%d, s%d, %d" % (dst, dst, XZ))
        e("s_add_u32 s%d, s%d, s%d" % (dst, dst, tmp))

    def img_k(k):
        return (k * 1024 // XZ) * XS + k * 1024 % XZ

    if XZ:
        assert P["il"] and not CX and not P["xp"]
        img_base(PIA, PIA, PE)
        img_lane(HN, HE)
    else:
        e("s_mul_i32 s%d, s%d, %d" % (PIA, PIA, IMS))
    e("s_add_u32 s%d, s%d, %d" % (PIA, PIA, WS_L))

    def bias(ph):
        e("s_mov_b32 s%d, %d" % (PPH, ph))
        seg_scalars()
        e("s_mul_i32 s%d, s%d, 171" % (PE, PSG))
        e("s_lshr_b32 s%d, s%d, 9" % (PE, PE))
        e("s_mul_i32 s%d, s%d, %d" % (PE, PE, DH * 2))
        e("s_mul_i32 s%d, s%d, 24" % (PE + 1, PM))
        e("s_add_u32 s%d, s%d, s%d" % (PE + 2, PE + 1, PG0))
        e("s_mul_i32 s%d, s%d, %d" % (PE + 2, PE + 2, DH * 2))
        e("v_add_u32 v%d, s%d, v%d" % (HE, PE + 2, HD))
        e("v_add_u32 v%d, %d, v%d" % (HF, 8 * DH * 2, HE))
        e("v_add_u32 v%d, %d, v%d" % (HR, 16 * DH * 2, HE))
        for c in range(3):
            e("buffer_load_dwordx2 v[%d:%d], v%d, s[%d:%d], s%d offen offset:%d" % (BR + 2 * c, BR + 2 * c + 1, HC, PB, PB + 3, PE, c * 128))
        split = P["bs"] & (1 if ph else 2)
        order = [(st, a) for st in range(6) for a in range(2)]
        if split:
            order.sort(key=lambda x: x[1])
        for st, a in order:
            va = (HE, HF, HR)[st // 2]
            sr, bb = ((PS2, BS), (PS3, BZ))[a]
            if split and (st, a) == (0, 1):
                if ph:
                    lds_wait("z%d" % ph, HZ, HV, PE + 3, L_EV + 4, str(8 * ph - 8 + P["bz"]), PSP)
                else:
                    lds_wait("z0", HZ, HV, PE + 3, L_TC, str(P["bz0"]), PSP)
            bt = P["bt"] if ph else P["bt0"]
            if bt:
                if st == 0 and bb == BS:
                    e("s_memrealtime s[%d:%d]" % (PT, PT + 1))
                    e("s_waitcnt lgkmcnt(0)")
                twait(PT, PT + 2, bt)
            for c in range(3):
                r = bb + st * 6 + 2 * c
                if P["xb"] & 1:
                    continue
                e("buffer_load_dwordx2 v[%d:%d], v%d, s[%d:%d], 0 offen offset:%d%s" %
                  (r, r + 1, va, sr, sr + 3, (st & 1) * 4 * DH * 2 + c * 128,
                   " nt" if P["bnt"] & (1 if bb == BZ else 2) else ""))
            if (P["bp"] == 2 or P["bp"] == 1 and a) and (ph or P["bp0"]):
                e("s_waitcnt vmcnt(%d)" % P["bq"])
        e("s_waitcnt vmcnt(0)")
        for p in range(6):
            e("v_lshlrev_b32 v%d, 16, v%d" % (BQ + 2 * p, BR + p))
            e("v_and_b32 v%d, 0xffff0000, v%d" % (BQ + 2 * p + 1, BR + p))
        for st in range(6):
            acc = BR + st
            for p in range(6):
                rs = BS + st * 6 + p; rz = BZ + st * 6 + p
                e("v_lshlrev_b32 v%d, 16, v%d" % (HE, rs))
                e("v_lshlrev_b32 v%d, 16, v%d" % (HF, rz))
                e("v_and_b32 v%d, 0xffff0000, v%d" % (rs, rs))
                e("v_and_b32 v%d, 0xffff0000, v%d" % (rz, rz))
                e("v_mul_f32 v%d, v%d, v%d" % (HE, HE, BQ + 2 * p))
                e("v_mul_f32 v%d, v%d, v%d" % (rs, rs, BQ + 2 * p + 1))
                if p == 0:
                    e("v_mul_f32 v%d, v%d, v%d" % (acc, HE, HF))
                else:
                    e("v_fmac_f32 v%d, v%d, v%d" % (acc, HE, HF))
                e("v_fmac_f32 v%d, v%d, v%d" % (acc, rs, rz))
        for kk in (8, 4, 2, 1):
            for st in range(6):
                e("v_add_f32_dpp v%d, v%d, v%d row_ror:%d row_mask:0xf bank_mask:0xf" % (BR + st, BR + st, BR + st, kk))
        for st in range(1, 6):
            e("v_cmp_eq_u32 vcc, %d, v%d" % (st, HB_))
            e("v_cndmask_b32 v%d, v%d, v%d, vcc" % (BR, BR, BR + st))
        e("s_mul_i32 s%d, s%d, 768" % (PE, PSG))
        e("s_lshl_b32 s%d, s%d, 2" % (PE + 1, PE + 1))
        e("s_add_u32 s%d, s%d, s%d" % (PE, PE, PE + 1))
        e("s_add_u32 s%d, s%d, %d" % (PE, PE, WS_B))
        e("s_mov_b32 exec_lo, 0x003f003f")
        e("s_mov_b32 exec_hi, 0x003f003f")
        e("buffer_store_dword v%d, v%d, s[%d:%d], s%d offen sc1" % (BR, HG, PWS, PWS + 3, PE))
        e("s_mov_b64 exec, -1")

    def vpf(late, half=False):
        if half:
            e("s_cmp_ge_u32 s%d, 4" % PM)
            e("s_cbranch_scc1 L_novpf")
        srd(PS2, 74, H * SKV * 2)
        srd(PS3, 76, H * SKV * 2)
        if late:
            lds_wait("pf", HZ, HE, PE, L_EV, "1", PSP)
        e("v_lshlrev_b32 v%d, 4, v%d" % (HE, HL))
        for rep in range(2 if half else 1):
            e("s_lshl_b32 s%d, s2, 13" % PE)
            if rep:
                e("s_add_u32 s%d, s%d, 0x8000" % (PE, PE))
            e("s_add_u32 s%d, s%d, 4096" % (PE + 1, PE))
            for a, sr in enumerate((PS2, PS3)):
                for k in range(8):
                    r = HX + 4 * (a * 8 + k)
                    e("buffer_load_dwordx4 v[%d:%d], v%d, s[%d:%d], s%d offen offset:%d" % (r, r + 3, HE, sr, sr + 3, PE + k // 4, (k % 4) * 1024))
            e("s_waitcnt vmcnt(0)")
        if half:
            e.label("L_novpf")

    def flush(p):
        if P["xp"]:
            e("s_cmp_eq_u32 s%d, s%d" % (PDC + p, PDC + 3 + p))
            if p:
                e("s_cbranch_scc1 L_fp%d" % p)
            e("s_add_u32 s%d, s%d, %d" % (PE + 6, PIA, p * PHS))
            e("s_add_u32 s%d, s%d, %d" % (PE + 7, PIA, p * PHS + 4096))
            e("s_cmp_eq_u32 s%d, s%d" % (PDC + p, PDC + 3 + p))
            for k in range(6):
                if p == 0:
                    mk = sum(1 << l for l in range(64) if (64 * k + l) % 48 < (3 * N0 + 7) // 8 * 8)
                    e("s_cselect_b32 exec_lo, 0x%x, -1" % (mk & 0xffffffff))
                    e("s_cselect_b32 exec_hi, 0x%x, -1" % (mk >> 32))
                e("buffer_load_dwordx4 v[%d:%d], v%d, s[%d:%d], s%d offen offset:%d %s" %
                  (HX + 4 * k, HX + 4 * k + 3, HA, PWS, PWS + 3, PE + 6 + k // 4, (k % 4) * 1024, ("", "sc1", "", "nt")[P["xp"]]))
            e("s_mov_b64 exec, -1")
            e("s_waitcnt vmcnt(0)")
            e.label("L_fp%d" % p)
        lds_wait("f%d" % p, HZ, HE, PE, L_CF + 4 * p, "4", PSP)
        e("s_cmp_eq_u32 s%d, s%d" % (PDC + p, PDC + 3 + p))
        if p:
            e("s_cbranch_scc1 L_fl%d" % p)
        if CX:
            if P["cl"] and p == 0:
                e("v_and_b32 v%d, 7, v%d" % (HF, HL))
                e("v_lshrrev_b32 v%d, 3, v%d" % (HE, HL))
                e("v_mul_u32_u24 v%d, 24, v%d" % (HF, HF))
                e("v_mov_b32 v%d, 768" % HR)
                e("v_mad_u32_u24 v%d, v%d, v%d, v%d" % (HF, HE, HR, HF))
            for st in range(4):
                for c in range(3):
                    r = HX + 12 * st + 2 * c
                    e("ds_read_b64 v[%d:%d], v%d offset:%d" % (r, r + 1, HF if P["cl"] and p == 0 and st == 0 else HK, L_LG + p * PHI + st * 192 + 8 * c))
            e("s_add_u32 s%d, s%d, %d" % (PE + 6, PIA, p * PHS))
            e("s_cmp_eq_u32 s%d, s%d" % (PDC + p, PDC + 3 + p))
            e("s_waitcnt lgkmcnt(0)")
            for st in range(4):
                B = HX + 12 * st
                e("v_cmp_eq_f32 vcc, 0, v%d" % (B + 5))
                e("v_max3_f32 v%d, v%d, v%d, v%d" % (B + 9, B, B + 1, B + 2))
                e("v_cndmask_b32 v%d, v%d, v%d, vcc" % (B + 8, B + 5, B + 4))
                e("v_max3_f32 v%d, v%d, v%d, v%d" % (B + 9, B + 9, B + 3, B + 4))
                e("v_max_f32 v%d, v%d, v%d" % (B + 8, B + 8, B + 9))
                for k in range(6):
                    e("v_sub_f32 v%d, v%d, v%d" % (B + k, B + k, B + 8))
                for k in range(3):
                    e("v_cvt_pk_f16_f32 v%d, v%d, v%d" % (B + 9 + k, B + 2 * k, B + 2 * k + 1))
                if P["fq"]:
                    continue
                if P["x12"]:
                    e("buffer_store_dwordx3 v[%d:%d], v%d, s[%d:%d], s%d offen offset:%d %s" %
                      (B + 8, B + 10, HN, PWS, PWS + 3, PE + 6, st * 768, P["st"]))
                elif P["xt"]:
                    for h in range(2):
                        e("buffer_atomic_swap_x2 v[%d:%d], v%d, s[%d:%d], s%d offen offset:%d%s" %
                          (B + 8 + 2 * h, B + 9 + 2 * h, HN, PWS, PWS + 3, PE + 6, st * 1024 + 8 * h, " sc1" if P["xt"] & 2 else ""))
                elif not P["xkp"] & 16:
                    e("buffer_store_dwordx4 v[%d:%d], v%d, s[%d:%d], s%d offen offset:%d %s" %
                      (B + 8, B + 11, HN, PWS, PWS + 3, PE + 6, st * 1024, P["st"]))
                if p == 0 and st == 0:
                    e("s_cbranch_scc1 L_fl0")
            if P["fq"]:
                e("s_memrealtime s[%d:%d]" % (PT, PT + 1))
                e("s_waitcnt lgkmcnt(0)")
                e("s_or_b32 s%d, s%d, %d" % (PT, PT, (1 << P["fq"]) - 1))
                twait(PT, PT + 2, 0)
                e("s_cmp_eq_u32 s%d, s%d" % (PDC + p, PDC + 3 + p))
                for st in range(4):
                    B = HX + 12 * st
                    e("buffer_store_dwordx4 v[%d:%d], v%d, s[%d:%d], s%d offen offset:%d %s" %
                      (B + 8, B + 11, HN, PWS, PWS + 3, PE + 6, st * 1024, P["st"]))
                    if p == 0 and st == 0:
                        e("s_cbranch_scc1 L_fl0")
        else:
            for k in range(6):
                e("ds_read_b128 v[%d:%d], v%d offset:%d" % (HX + 4 * k, HX + 4 * k + 3, HA, L_LG + p * PHI + k * 1024))
            if XZ:
                for k in range(6):
                    e("s_add_u32 s%d, s%d, %d" % (PE + k, PIA, p * PHS + img_k(k)))
            else:
                e("s_add_u32 s%d, s%d, %d" % (PE + 6, PIA, p * PHS))
                e("s_add_u32 s%d, s%d, %d" % (PE + 7, PIA, p * PHS + 4096))
            e("s_cmp_eq_u32 s%d, s%d" % (PDC + p, PDC + 3 + p))
            e("s_waitcnt lgkmcnt(0)")
            for k in range(6):
                if P["fw"]:
                    if k == 0:
                        e("s_memrealtime s[%d:%d]" % (PT, PT + 1))
                        e("s_waitcnt lgkmcnt(0)")
                    twait(PT, PT + 2, P["fw"])
                    e("s_cmp_eq_u32 s%d, s%d" % (PDC + p, PDC + 3 + p))
                if p == 0:
                    mk = sum(1 << l for l in range(64) if (64 * k + l) % 48 < (3 * N0 + 7) // 8 * 8)
                    e("s_cselect_b32 exec_lo, 0x%x, -1" % (mk & 0xffffffff))
                    e("s_cselect_b32 exec_hi, 0x%x, -1" % (mk >> 32))
                if XZ:
                    e("buffer_store_dwordx4 v[%d:%d], v%d, s[%d:%d], s%d offen %s" %
                      (HX + 4 * k, HX + 4 * k + 3, HN, PWS, PWS + 3, PE + k, P["st"]))
                elif not P["xkp"] & 16:
                    e("buffer_store_dwordx4 v[%d:%d], v%d, s[%d:%d], s%d offen offset:%d %s" %
                      (HX + 4 * k, HX + 4 * k + 3, HA, PWS, PWS + 3, PE + 6 + k // 4, (k % 4) * 1024, P["st"]))
            if p == 0:
                e("s_mov_b64 exec, -1")
            if P["wb"]:
                e("s_waitcnt vmcnt(0)")
                e("buffer_wbl2 sc1")
        e.label("L_fl%d" % p)
        e("v_mov_b32 v%d, %d" % (HE, p + 1))
        e("s_waitcnt vmcnt(0)")
        e("s_mov_b64 exec, 1")
        opt = p == 2 or (p == 1 and not P["jit"])
        if opt:
            e("s_cbranch_scc1 L_fn%d" % p)
        e("buffer_store_dword v%d, off, s[%d:%d], s%d sc1" % (HE, PWS, PWS + 3, PFA))
        if opt:
            e.label("L_fn%d" % p)
        e("ds_write_b32 v%d, v%d offset:%d" % (HZ, HE, L_FD))
        e("s_mov_b64 exec, -1")

    if FU:
        for i in range(4):
            e("v_mov_b32 v%d, 0" % (HX + i))
        for p in range(3):
            e("s_add_u32 s%d, s2, %d" % (PE, 256 * p))
            e("s_lshl_b32 s%d, s%d, 10" % (PE + 1, PE))
            e("s_lshl_b32 s%d, s%d, 6" % (PE, PE))
            e("s_add_u32 s%d, s%d, %d" % (PE, PE, WS_ML))
            if not (P["xkp"] & 512 and p < 2):
                e("buffer_store_dwordx4 v[%d:%d], v%d, s[%d:%d], s%d offen sc1" % (HX, HX + 3, HA, PWS, PWS + 3, PE + 1))
            e("s_mov_b64 exec, 15")
            e("buffer_store_dwordx4 v[%d:%d], v%d, s[%d:%d], s%d offen sc1" % (HX, HX + 3, HA, PWS, PWS + 3, PE))
            e("s_mov_b64 exec, -1")
    bias(0)
    if P["pf"] == 8:
        lds_wait("b0", HZ, HE, PE, L_PF, "nz", PSP)
    if P["jit"] and not P["be1"] & 1:
        lds_wait("b1", HZ, HE, PE, L_EV + 4, "1", PSP)
    if P["bw"] & 2:
        lds_wait("bw1", HZ, HE, PE, L_EV, "1", PSP)
    if P["bw"] & 8:
        lds_wait("bw3", HZ, HE, PE, L_DEC, "nz", PSP)
    bias(1)
    if not P["jit"]:
        if P["bw"] & 1:
            lds_wait("bw0", HZ, HE, PE, L_DEC, "nz", PSP)
        if P["bw"] & 4:
            lds_wait("bw2", HZ, HE, PE, L_EV, "4", PSP)
        bias(2)
    if P["pf"] in (7, 10):
        vpf(False, P["pf"] == 10)
    if P["xq"]:
        for p in range(3):
            if not P["xq"] >> p & 1:
                continue
            e("s_add_u32 s%d, s%d, %d" % (PE + p, PIA, p * PHS))
            for k in range(4):
                e("buffer_load_dwordx4 v[%d:%d], v%d, s[%d:%d], s%d offen offset:%d%s" % (HX, HX + 3, HA, PWS, PWS + 3, PE + p, k * 1024, " sc1" if P["xq"] & 8 else ""))
        e("s_waitcnt vmcnt(0)")
    get_dec("d0")
    flush(0)
    if P["jit"]:
        if not P["be1"] & 2:
            lds_wait("b2", HZ, HE, PE, L_EV + 4, "9", PSP)
        bias(2)
    flush(1)
    flush(2)
    if P["at"] and not BC:
        e("v_lshrrev_b32 v%d, 3, v%d" % (HC, HL))
        e("v_xor_b32 v%d, s%d, v%d" % (HC, PM, HC))
        e("v_lshrrev_b32 v%d, 1, v%d" % (HD, HC))
        e("v_and_b32 v%d, 1, v%d" % (HC, HC))
        e("v_lshl_or_b32 v%d, v%d, 2, v%d" % (HD, HC, HD))
        e("v_lshl_or_b32 v%d, v%d, 3, v%d" % (HD, HL, HD))
        e("v_mul_u32_u24 v%d, %d, v%d" % (HD, FSTR, HD))
        lds_wait("t1", HZ, HE, PE, L_TC, "4", PSP)
        e("s_memrealtime s[%d:%d]" % (PT, PT + 1))
        e("s_mov_b64 exec, 1")
        e("s_waitcnt lgkmcnt(0)")
        e("s_or_b32 s%d, s%d, 1" % (PT, PT))
        e("v_mov_b32 v%d, s%d" % (HB_, PT))
        e("buffer_store_dword v%d, off, s[%d:%d], s%d offset:4 sc1" % (HB_, PWS, PWS + 3, PFA))
        e("s_mov_b32 exec_lo, -1")
        e("s_mov_b32 s%d, %d" % (PE + 1, WS_G))
        lds_wait("t2", HZ, HE, PE, L_TC, "5", PSP)
        e("buffer_load_dword v%d, v%d, s[%d:%d], s%d offen offset:4 sc1" % (HB_, HD, PWS, PWS + 3, PE + 1))
        e("v_bfrev_b32 v%d, -2" % HC)
        e("s_mov_b32 s%d, -2048" % PE)
        e("s_waitcnt vmcnt(0)")
        e("v_cmp_eq_u32 vcc, 0, v%d" % HB_)
        e("v_subrev_u32 v%d, s%d, v%d" % (HB_, PT, HB_))
        e("v_cndmask_b32 v%d, v%d, v%d, vcc" % (HB_, HB_, HC))
        for st in (2048, 1024, 512, 256, 128, 64, 32, 16):
            e("s_add_u32 s%d, s%d, %d" % (PE + 1, PE, st))
            e("v_cmp_gt_i32 vcc, s%d, v%d" % (PE + 1, HB_))
            e("s_bcnt1_i32_b64 s%d, vcc" % (PE + 2))
            e("s_cmp_lt_u32 s%d, %d" % (PE + 2, P["aq"]))
            e("s_cselect_b32 s%d, s%d, s%d" % (PE, PE + 1, PE))
        e("s_mul_i32 s%d, s%d, %d" % (PE, PE, -P["ka"]))
        e("s_add_u32 s%d, s%d, %d" % (PE, PE, P["kb"]))
        e("s_ashr_i32 s%d, s%d, 10" % (PE, PE))
        e("s_max_i32 s%d, s%d, %d" % (PE, PE, P["dmin"]))
        e("s_min_i32 s%d, s%d, %d" % (PE, PE, min(P["dmax"], NT - P["te"])))
        e("s_sub_u32 s%d, %d, s%d" % (PE, NT, PE))
        e("s_cmp_eq_u32 s%d, %d" % (PE, NT))
        e("s_cselect_b32 s%d, 255, s%d" % (PE, PE))
        e("v_mov_b32 v%d, s%d" % (HB_, PE))
        e("ds_write_b32 v%d, v%d offset:%d" % (HZ, HB_, L_TD))
    e("s_endpgm")

    def last_gather():
        EL = P["fc"] == 4
        CSC = 24; CO = 96; CR0 = 56; CSO = 57; CHL = 58; CRB = 59; CN = 20
        COF = list(range(64, 76)) + list(range(84, 96))
        RB = HX + 16
        if EL:
            e("s_mov_b64 exec, -1")
            e("v_lshlrev_b32 v%d, 2, v%d" % (HR, HL))
            e("v_add_u32 v%d, %d, v%d" % (HG, L_ACC + 2 * NW * ROWB, HR))
            e("v_lshlrev_b32 v%d, 4, v%d" % (HK, HL))
        e("s_add_u32 s%d, s%d, 64" % (PE, PG))
        e("s_mul_i32 s%d, s%d, 171" % (PE, PE))
        e("s_lshr_b32 s%d, s%d, 9" % (PE, PE))
        e("s_mul_i32 s%d, s%d, %d" % (CHL, PE, FSTR))
        e("s_add_u32 s%d, s%d, %d" % (CHL, CHL, WS_G + ELN * FSTR))
        e("s_mul_i32 s%d, s%d, %d" % (CRB, PE, DH * 2))
        e("s_cmp_eq_u32 s%d, 21" % PE)
        e("s_cselect_b32 s%d, 15, 23" % CN)
        e("s_mul_i32 s%d, s%d, 24" % (PE, PE))
        e("s_add_u32 s%d, s2, 512" % PSG)
        e("s_sub_u32 s%d, s%d, s%d" % (CR0, PSG, PE))
        e("s_lshl_b32 s%d, s%d, 10" % (PSG, PSG))
        e("s_mov_b32 s%d, 0x40000" % PSP)
        e.label("L_fs")
        e("buffer_load_dword v%d, off, s[%d:%d], s%d offset:4 sc1" % (HA, PWS, PWS + 3, CHL))
        e("s_sub_u32 s%d, s%d, 1" % (PSP, PSP))
        e("s_cbranch_scc1 L_exit1")
        e("s_waitcnt vmcnt(0)")
        e("v_cmp_eq_u32 vcc, 0, v%d" % HA)
        e("s_cbranch_vccnz L_fs")
        e("buffer_load_dword v%d, v%d, s[%d:%d], s%d offen offset:128 sc1" % (HE, HR, PWS, PWS + 3, CHL))
        e("ds_read_b128 v[%d:%d], v%d offset:%d" % (HA, HD, HZ, L_ML + 32))
        e("v_xor_b32 v%d, 1, v%d" % (HF, HL))
        e("v_cmp_eq_u32 vcc, s%d, v%d" % (CR0, HL))
        e("v_cndmask_b32 v%d, v%d, v%d, vcc" % (HF, HL, HF))
        e("v_add_u32 v%d, s%d, v%d" % (HF, PE, HF))
        e("v_lshlrev_b32 v%d, 10, v%d" % (HF, HF))
        for r in range(24):
            e("v_readlane_b32 s%d, v%d, %d" % (COF[r], HF, r))
        srd(CO, 78, H * DH * 2)
        e("v_lshlrev_b32 v%d, 1, v%d" % (HR, HL))
        e("s_waitcnt vmcnt(0)")
        e("v_readlane_b32 s%d, v%d, s%d" % (CSO, HE, CR0))
        e("v_cndmask_b32 v%d, v%d, v%d, vcc" % (HE, HE, HZ))
        for r in range(24):
            e("v_readlane_b32 s%d, v%d, %d" % (CSC + r, HE, r))
        e("v_mov_b32 v%d, 1" % HV)
        if EL:
            e("s_mov_b64 exec, 1")
            lds_wait("el", HZ, HE, PE, L_EL, "4", PSP)
            e("buffer_atomic_add v%d, off, s[%d:%d], s%d sc0" % (HV, PWS, PWS + 3, CHL))
            e("s_mov_b64 exec, -1")
            e("s_waitcnt vmcnt(0)")
            e("v_readfirstlane_b32 s%d, v%d" % (PE, HV))
            e("s_cmp_lg_u32 s%d, s%d" % (PE, CN))
            e("s_cbranch_scc1 L_exit1")
            for r in range(24):
                e("buffer_load_dwordx4 v[%d:%d], v%d, s[%d:%d], s%d offen sc1" % (RB + 4 * r, RB + 4 * r + 3, HK, PWS, PWS + 3, COF[r]))
        lds_wait("n", HZ, HE, PE, L_CA + 8, "4", PSP)
        for kk in range(3):
            for w in range(NW):
                e("ds_read_b32 v%d, v%d offset:%d" % (HX + kk * NW + w, HG, w * ROWB + kk * 256))
        if not EL:
            e("s_mov_b64 exec, 1")
            e("buffer_atomic_add v%d, off, s[%d:%d], s%d sc0" % (HV, PWS, PWS + 3, CHL))
            e("s_mov_b64 exec, -1")
        e("s_mov_b32 s%d, 0x40000" % PSP)
        for kk in range(3):
            b = HX + kk * NW
            e("s_waitcnt lgkmcnt(%d)" % (8 - 4 * kk))
            e("v_add_f32 v%d, v%d, v%d" % (b, b, b + 1))
            e("v_add_f32 v%d, v%d, v%d" % (b + 2, b + 2, b + 3))
            e("v_sub_f32 v%d, v%d, v%d" % (b, b, HC))
            e("v_add_f32 v%d, v%d, v%d" % (HX + 12 + kk, b, b + 2))
        if EL:
            e("s_branch L_fr2")
        else:
            e("buffer_store_dwordx4 v[%d:%d], v%d, s[%d:%d], s%d offen sc1" % (HX + 12, HX + 15, HK, PWS, PWS + 3, PSG))
        if P["stamp"] == 5 and not EL:
            e("s_memrealtime s[%d:%d]" % (PE + 4, PE + 5))
        if 2 <= P["fc"] < 4:
            e("s_waitcnt vmcnt(%d)" % (P["fc"] - 2))
            e("v_readfirstlane_b32 s%d, v%d" % (PE, HV))
            e("s_cmp_lg_u32 s%d, s%d" % (PE, CN))
            e("s_cbranch_scc1 L_fx")
        e.label("L_fr")
        for r in range(24):
            e("buffer_load_dwordx4 v[%d:%d], v%d, s[%d:%d], s%d offen sc1" % (RB + 4 * r, RB + 4 * r + 3, HK, PWS, PWS + 3, COF[r]))
        e.lines.append("L_fr2:")
        for k, a_ in enumerate((HA, HB_, HC)):
            e("v_mul_f32 v%d, s%d, v%d" % (a_, CSO, HX + 12 + k))
        e("v_mov_b32 v%d, 1" % HD)
        e("s_sub_u32 s%d, s%d, 1" % (PSP, PSP))
        e("s_cbranch_scc1 L_exit1")
        for r in range(24):
            if r % 2 == 0:
                e("s_waitcnt vmcnt(%d)" % (22 - r))
            for k, a_ in enumerate((HA, HB_, HC)):
                e("v_fmac_f32 v%d, s%d, v%d" % (a_, CSC + r, RB + 4 * r + k))
            if r % 2:
                e("v_min3_u32 v%d, v%d, v%d, v%d" % (HD, HD, RB + 4 * r - 1, RB + 4 * r + 3))
        if P["fc"] == 1:
            e("v_readfirstlane_b32 s%d, v%d" % (PE, HV))
        e("v_cmp_eq_u32 vcc, 0, v%d" % HD)
        for a_ in (HA, HB_, HC):
            e("v_cvt_pk_bf16_f32 v%d, v%d, v%d" % (a_, a_, a_))
        if P["fc"] == 1:
            e("s_cmp_lg_u32 s%d, s%d" % (PE, CN))
            e("s_cbranch_scc1 L_fx")
        e("s_cbranch_vccnz L_fr")
        for k, a_ in enumerate((HA, HB_, HC)):
            e("buffer_store_short v%d, v%d, s[%d:%d], s%d offen offset:%d %s" % (a_, HR, CO, CO + 3, CRB, k * 128, P["os"]))
        if P["stamp"] == 5:
            e("s_memrealtime s[%d:%d]" % (PT, PT + 1))
            e("s_waitcnt vmcnt(0)")
            e("s_memrealtime s[%d:%d]" % (PT + 2, PT + 3))
            srd(PS2, 82, 0x8000000)
            e("s_waitcnt lgkmcnt(0)")
            e("v_mov_b32 v%d, s%d" % (HX, PT))
            e("v_mov_b32 v%d, s%d" % (HX + 1, PT + 2))
            e("v_mov_b32 v%d, s%d" % (HX + 2, PSP))
            e("s_mul_i32 s%d, s%d, 171" % (PE, CRB))
            e("s_lshr_b32 s%d, s%d, 16" % (PE, PE))
            e("s_lshl_b32 s%d, s%d, 4" % (PE, PE))
            e("s_add_u32 s%d, s%d, 0x4009000" % (PE, PE))
            e("s_mov_b64 exec, 1")
            e("buffer_store_dwordx4 v[%d:%d], off, s[%d:%d], s%d" % (HX, HX + 3, PS2, PS2 + 3, PE))
        e.lines.append("L_fx:")
        if P["stamp"] == 5 and not EL:
            srd(PS2, 82, 0x8000000)
            e("s_memrealtime s[%d:%d]" % (PT + 2, PT + 3))
            e("s_waitcnt lgkmcnt(0)")
            e("v_mov_b32 v%d, s%d" % (HX, PE + 4))
            e("v_mov_b32 v%d, s%d" % (HX + 1, PT + 2))
            e("s_lshl_b32 s%d, s2, 3" % PE)
            e("s_add_u32 s%d, s%d, 0x400a000" % (PE, PE))
            e("s_mov_b64 exec, 1")
            e("buffer_store_dwordx2 v[%d:%d], off, s[%d:%d], s%d" % (HX, HX + 1, PS2, PS2 + 3, PE))
        e("s_endpgm")

    if BC:
        e.label("L_h3")
        e("s_waitcnt lgkmcnt(0)")
        srd_ws(PWS)
        if not EB:
            e("s_barrier")
        if P["pf"] in (5, 6):
            vpf(P["pf"] == 6)
        if P["pf"] == 9:
            vpf(False, True)
        if P["pf"] == 8:
            srd(PS2, 70, H * NGRP * DH * 2)
            srd(PS3, 72, H * NGRP * DH * 2)
            e("v_lshlrev_b32 v%d, 4, v%d" % (HE, HL))
            if P["pd"]:
                e("s_add_u32 s%d, s%d, %d" % (PST, PST, P["pd"]))
                twait(PST, PT, P["pe"])
            for ph in (1, 2):
                e("s_mov_b32 s%d, %d" % (PPH, ph))
                seg_scalars()
                e("s_mul_i32 s%d, s%d, 24" % (PE + 1, PM))
                e("s_add_u32 s%d, s%d, s%d" % (PE + 2, PE + 1, PG0))
                e("s_mul_i32 s%d, s%d, %d" % (PE, PE + 2, DH * 2))
                e("v_add_u32 v%d, s%d, v%d" % (HA, PE, HE))
                e("v_add_u32 v%d, 0x1000, v%d" % (HB_, HA))
                e("v_add_u32 v%d, 0x2000, v%d" % (HC, HA))
                for sr in (PS2, PS3):
                    for k in range(9):
                        e("buffer_load_dwordx4 v[%d:%d], v%d, s[%d:%d], 0 offen offset:%d" % (HX + 64, HX + 67, (HA, HB_, HC)[k // 4], sr, sr + 3, (k % 4) * 1024))
                if P["pe"]:
                    twait(PST, PT, P["pe"])
            vpf(False)
            e("v_mov_b32 v%d, 1" % HE)
            e("ds_write_b32 v%d, v%d offset:%d" % (HZ, HE, L_PF))
        e("v_lshlrev_b32 v%d, 2, v%d" % (HD, HL))
        e("s_mul_i32 s%d, s%d, %d" % (PO, PM, FSTR))
        e("s_add_u32 s%d, s%d, %d" % (PO, PO, WS_T))
        e("s_lshl_b32 s%d, s%d, 2" % (PFL, PG))
        e("s_add_u32 s%d, s%d, s%d" % (PFL, PFL, PO))
        if GTS:
            cps = CPK + [48 + c for c in CPV]
            sel = [max(j for j, c in enumerate(cps) if c + P["tg"] + P["rd"] < b) for b in GTS]
            e("s_mov_b32 s%d, 0x%x" % (PRN, sum(1 << j for j in sel)))
            e("v_lshrrev_b32 v%d, 2, v%d" % (HG, HL))
            e("v_mul_u32_u24 v%d, %d, v%d" % (HG, FSTR, HG))
            e("v_and_or_b32 v%d, v%d, 12, v%d" % (HG, HD, HG))
            e("s_and_b32 s%d, s%d, 3" % (PBK, PM))
            e("s_mul_i32 s%d, s%d, %d" % (PNR, PBK, FSTR))
            e("s_lshl_b32 s%d, s%d, 2" % (PBK, PBK))
            e("v_mov_b32 v%d, %d" % (HK, L_GT))
        e("s_mov_b32 s%d, %d" % (PJ, P["pw"]))
        e("v_mov_b32 v%d, %d" % (HW, L_TM))
        e("v_bfrev_b32 v%d, -2" % HC)
        e("s_mov_b32 exec_hi, 0")
        e.label("L_h3loop")
        lds_wait("p1", HZ, HE, PE, L_TC, "s%d" % PJ, PSP)
        e("s_memrealtime s[%d:%d]" % (PT, PT + 1))
        e("s_add_u32 s%d, s%d, %d" % (PJ, PJ, 5 - P["pw"]))
        e("s_mov_b32 exec_lo, 1")
        e("s_waitcnt lgkmcnt(0)")
        e("v_mov_b32 v%d, s%d" % (HB_, PT))
        e("buffer_store_dword v%d, off, s[%d:%d], s%d" % (HB_, PWS, PWS + 3, PFL))
        e("s_mov_b32 exec_lo, -1")
        if P["xs"]:
            XS = P["xs"]
            e("s_lshl_b32 s%d, s2, %d" % (PE, 10 if XS & 8 else 12))
            e("s_add_u32 s%d, s%d, 0x700000" % (PE, PE))
            e("v_lshlrev_b32 v%d, 4, v%d" % (HX, HL))
            e("s_mov_b64 exec, %s" % ("-1" if XS & 2 else "1"))
            e("v_lshlrev_b32 v%d, 4, v%d" % (HX, HL))
            for k in range(4 if XS & 16 else 1):
                e("buffer_%s_dwordx4 v[%d:%d], v%d, s[%d:%d], s%d offen offset:%d %s" %
                  ("load" if XS & 4 else "store", HX + 4, HX + 7, HX, PWS, PWS + 3, PE, 1024 * k, "sc1" if XS & 1 else "" if not XS & 32 else "sc0 sc1"))
            e("s_mov_b64 exec, 0xffffffff")
        lds_wait("p2", HZ, HE, PE, L_TC, "s%d" % PJ, PSP)
        e("buffer_load_dword v%d, v%d, s[%d:%d], s%d offen sc0" % (HB_, HD, PWS, PWS + 3, PO))
        e("s_add_u32 s%d, s%d, 4" % (PJ, PJ))
        e("s_sub_u32 s%d, s%d, 4096" % (PT, PT))
        e("s_waitcnt vmcnt(0)")
        e("v_subrev_u32 v%d, s%d, v%d" % (HB_, PT, HB_))
        e("v_cmp_gt_u32 vcc, 8192, v%d" % HB_)
        e("v_cndmask_b32 v%d, v%d, v%d, vcc" % (HB_, HC, HB_))
        e("s_mov_b32 s%d, 2048" % PE)
        for st in (2048, 1024, 512, 256, 128, 64, 32, 16, 8):
            e("s_add_u32 s%d, s%d, %d" % (PE + 1, PE, st))
            e("v_cmp_gt_u32 vcc, s%d, v%d" % (PE + 1, HB_))
            e("s_bcnt1_i32_b64 s%d, vcc" % (PE + 2))
            e("s_cmp_lt_u32 s%d, %d" % (PE + 2, P["aq"]))
            e("s_cselect_b32 s%d, s%d, s%d" % (PE, PE + 1, PE))
        e("s_add_u32 s%d, s%d, s%d" % (PE + 1, PE, PT))
        e("s_or_b32 s%d, s%d, 1" % (PE + 1, PE + 1))
        e("v_mov_b32 v%d, s%d" % (HB_, PE + 1))
        e("ds_write_b32 v%d, v%d" % (HW, HB_))
        e("v_add_u32 v%d, 4, v%d" % (HW, HW))
        if GTS:
            e("s_bitcmp1_b32 s%d, 0" % PRN)
            e("s_cbranch_scc0 L_h3ng")
            e("s_cmp_lt_u32 s%d, 6136" % PE)
            e("s_cselect_b32 exec_lo, 1, 0")
            e("s_cmp_lt_u32 s%d, 4" % PG)
            e("s_cselect_b32 exec_lo, exec_lo, 0")
            e("buffer_store_dword v%d, off, s[%d:%d], s%d offset:2048 sc1" % (HB_, PWS, PWS + 3, PFL))
            e("s_mov_b32 exec_lo, 0xffff")
            e("s_add_u32 s%d, s%d, %d" % (PE + 3, PJ, P["gq"]))
            lds_wait("p3", HZ, HE, PE, L_TC, "s%d" % (PE + 3), PSP)
            e("s_sub_u32 s%d, s%d, s%d" % (PE + 3, PO, PNR))
            e("s_mov_b32 s%d, %d" % (PSP, P["gn"]))
            e("s_mov_b32 s%d, 0" % PE)
            if P["gl2"]:
                e("buffer_load_dword v%d, v%d, s[%d:%d], s%d offen offset:2048" % (HA, HG, PWS, PWS + 3, PE + 3))
                e("s_branch L_h3gq")
            e.label("L_h3gp")
            e("buffer_load_dword v%d, v%d, s[%d:%d], s%d offen offset:2048 sc1" % (HA, HG, PWS, PWS + 3, PE + 3))
            e("s_sub_u32 s%d, s%d, 1" % (PSP, PSP))
            e("s_cbranch_scc1 L_h3gw")
            e.lines.append("L_h3gq:")
            e("s_waitcnt vmcnt(0)")
            e("v_subrev_u32 v%d, s%d, v%d" % (HA, PT, HA))
            e("v_cmp_gt_u32 vcc, 8192, v%d" % HA)
            e("v_cndmask_b32 v%d, v%d, v%d, vcc" % (HA, HC, HA))
            e("v_min_u32_dpp v%d, v%d, v%d quad_perm:[1,0,3,2] row_mask:0xf bank_mask:0xf" % (HA, HA, HA))
            e("v_min_u32_dpp v%d, v%d, v%d quad_perm:[2,3,0,1] row_mask:0xf bank_mask:0xf" % (HA, HA, HA))
            e("v_cmp_eq_u32 vcc, v%d, v%d" % (HC, HA))
            e("s_cbranch_vccnz L_h3gp")
            for k in range(4):
                e("v_readlane_b32 s%d, v%d, %d" % (PE + 4 + k, HA, 4 * k))
            e("v_readlane_b32 s%d, v%d, s%d" % (PE + 1, HA, PBK))
            e("s_max_u32 s%d, s%d, s%d" % (PE + 4, PE + 4, PE + 5))
            e("s_max_u32 s%d, s%d, s%d" % (PE + 6, PE + 6, PE + 7))
            e("s_max_u32 s%d, s%d, s%d" % (PE, PE + 4, PE + 6))
            e("s_sub_u32 s%d, s%d, s%d" % (PE, PE, PE + 1))
            e("s_sub_u32 s%d, s%d, %d" % (PE, PE, P["gtol"]))
            e("s_max_i32 s%d, s%d, 0" % (PE, PE))
            e("s_min_i32 s%d, s%d, %d" % (PE, PE, P["gcap"]))
            e.label("L_h3gw")
            e("s_or_b32 s%d, s%d, 0x10000" % (PE, PE))
            e("v_mov_b32 v%d, s%d" % (HB_, PE))
            e("ds_write_b32 v%d, v%d" % (HK, HB_))
            e("s_mov_b32 exec_lo, -1")
            e("v_add_u32 v%d, 4, v%d" % (HK, HK))
            e("s_waitcnt vmcnt(0)")
            e.label("L_h3ng")
            e("s_lshr_b32 s%d, s%d, 1" % (PRN, PRN))
        e("s_add_u32 s%d, s%d, %d" % (PJ, PJ, 3 + P["pw"]))
        e("s_add_u32 s%d, s%d, 128" % (PO, PO))
        e("s_add_u32 s%d, s%d, 128" % (PFL, PFL))
        e("s_cmp_lt_u32 s%d, %d" % (PJ, 12 * (len(CPK) + len(CPV))))
        e("s_cbranch_scc1 L_h3loop")
        if P["fc"] == 4:
            last_gather()
        else:
            e("s_endpgm")

    e.label("L_h2")
    srd(PS2, 74, H * SKV * 2)
    srd(PS3, 76, H * SKV * 2)
    if 2 <= P["pf"] <= 4:
        if P["pf"] == 2:
            lds_wait("pf", HZ, HE, PE, L_EV + 4, "1", PSP)
        if P["pf"] == 4:
            lds_wait("pf", HZ, HE, PE, L_EV, "1", PSP)
        e("v_lshlrev_b32 v%d, 4, v%d" % (HA, HL))
        e("s_lshl_b32 s%d, s2, 13" % PE)
        e("s_add_u32 s%d, s%d, 4096" % (PE + 1, PE))
        for a, sr in enumerate((PS2, PS3)):
            for k in range(8):
                r = HX + 4 * (a * 8 + k)
                e("buffer_load_dwordx4 v[%d:%d], v%d, s[%d:%d], s%d offen offset:%d" % (r, r + 3, HA, sr, sr + 3, PE + k // 4, (k % 4) * 1024))
        e("s_waitcnt vmcnt(0)")
    get_dec("d2")
    PSIX = 24
    PKW = 32; PNEED = 33; PN0 = 34; PIM = 35; PCH = 36; PCC = 37; PMG = 38; PWD = 39; PIS = 40
    PGT = 42
    HT = HW
    HP = HX + 88; PXM = 64
    e("v_and_b32 v%d, 3, v%d" % (HT, HL))
    e("v_and_b32 v%d, 7, v%d" % (HT2, HL))
    e("v_lshrrev_b32 v%d, 2, v%d" % (HR, HL))
    PMB = [int(c) for c in P["pm"]]
    if P["pm"] != "012345":
        e("v_mov_b32 v%d, v%d" % (HB_, HR))
        e("v_and_b32 v%d, %d, v%d" % (HR, sum(1 << i for i in range(4) if PMB[i] == i), HB_))
        for sh in sorted(set(PMB[i] - i for i in range(4)) - {0}):
            e("v_and_b32 v%d, %d, v%d" % (HA, sum(1 << i for i in range(4) if PMB[i] - i == sh), HB_))
            e("v_%s_b32 v%d, %d, v%d" % ("lshlrev" if sh > 0 else "lshrrev", HA, abs(sh), HA))
            e("v_or_b32 v%d, v%d, v%d" % (HR, HR, HA))
    if P["am"] == 3:
        for i, c in enumerate(P["xm"].split("-")):
            assert 0 <= int(c) < 64
            if int(c):
                e("s_bitcmp1_b32 s%d, %d" % (PG, i))
                e("s_cselect_b32 s%d, %d, 0" % (PE, int(c)))
                e("v_xor_b32 v%d, s%d, v%d" % (HR, PE, HR))
    e("s_mov_b32 s%d, %s" % (PCC, f32hex(C)))
    e("s_mov_b32 s%d, 0xaaaaaaab" % PMG)
    e("s_mov_b32 s%d, 0" % PPH)
    HPG = HP + 1 if XZ else HP
    if XZ:
        e("s_lshl_b32 s%d, s%d, 3" % (PIM, PG))
        img_base(PIM, PIM, PE)
        img_lane(HPG, HA)
    else:
        e("s_mul_i32 s%d, s%d, %d" % (PIM, PG, 8 * IMS))
    e("s_add_u32 s%d, s%d, %d" % (PIM, PIM, WS_L))
    e("s_mov_b32 s%d, %d" % (PIS, XZ or IMS))
    e("v_lshlrev_b32 v%d, 5, v%d" % (HN, HL))
    e("v_lshrrev_b32 v%d, 3, v%d" % (HK, HL))
    e("v_mul_u32_u24 v%d, 24, v%d" % (HK, HK))
    e("v_mov_b32 v%d, 768" % HA)
    e("v_mad_u32_u24 v%d, v%d, v%d, v%d" % (HK, HT2, HA, HK))
    if CX:
        e("v_lshrrev_b32 v%d, 3, v%d" % (HA, HL))
        e("v_lshlrev_b32 v%d, 7, v%d" % (HP, HT2))
        e("v_lshl_add_u32 v%d, v%d, 4, v%d" % (HP, HA, HP))
        if P["cl"]:
            e("v_lshlrev_b32 v%d, 4, v%d" % (HP + 1, HL))
        if P["x12"]:
            for r in (HP, HP + 1):
                e("v_lshrrev_b32 v%d, 4, v%d" % (r, r))
                e("v_mul_u32_u24 v%d, 12, v%d" % (r, r))
    else:
        e("v_lshlrev_b32 v%d, 4, v%d" % (HP, HL))
    e("s_mov_b32 s%d, %d" % (PN0, (2 if CX else 3) * N0))
    RS = 16
    e.label("L_prep")
    seg_scalars()
    e("s_mov_b32 s%d, s%d" % (PKW, PDC))
    e("s_mov_b32 s%d, s%d" % (PWD, PDC + 3))
    for i in (0, 1, 3, 4):
        e("s_mov_b32 s%d, s%d" % (PDC + i, PDC + i + 1))
    e("s_lshl_b32 s%d, s%d, 3" % (PNEED, PPH))
    e("s_add_u32 s%d, s%d, 1" % (PNEED, PNEED))
    if P["pf"] == 1:
        lds_wait("pf", HZ, HE, PE, L_EV + 4, "s%d" % PNEED, PSP)
        e("v_lshlrev_b32 v%d, 4, v%d" % (HA, HL))
        e("s_mul_i32 s%d, s%d, 2736" % (PE + 1, PM))
        e("s_lshl_b32 s%d, s%d, 16" % (PE, PSG))
        e("s_mul_hi_u32 s%d, s%d, 0xaaaaaaab" % (PE, PE))
        e("s_lshr_b32 s%d, s%d, 5" % (PE, PE))
        e("s_lshl_b32 s%d, s%d, 4" % (PE, PE))
        e("s_add_u32 s%d, s%d, s%d" % (PE, PE, PE + 1))
        if P["pp"]:
            e("s_memrealtime s[%d:%d]" % (PGT, PGT + 1))
            e("s_waitcnt lgkmcnt(0)")
        for a, sr in enumerate((PS2, PS3)):
            if a and P["bs"] & 4:
                e("s_add_u32 s%d, s%d, %d" % (PE + 1, PNEED, P["bz"] - 1))
                lds_wait("pz", HZ, HE, PE + 2, L_EV + 4, "s%d" % (PE + 1), PSP)
            for k in range(3):
                r = HX + 4 * RS + 4 * (a * 3 + k)
                if P["pp"]:
                    twait(PGT, PGT + 2, P["pp"])
                e("buffer_load_dwordx4 v[%d:%d], v%d, s[%d:%d], s%d offen offset:%d%s" % (r, r + 3, HA, sr, sr + 3, PE, k * 1024, " nt" if P["bnt"] & 8 else ""))
    for w, hv in ((PWD, HV),):
        e("s_and_b32 s%d, s%d, 7" % (PE, w))
        e("v_mov_b32 v%d, s%d" % (hv, PE))
        e("s_bitcmp1_b32 s%d, 3" % w)
        e("s_cselect_b64 vcc, -1, 0")
        e("v_cndmask_b32 v%d, v%d, v%d, vcc" % (hv, hv, HT2))
    e("v_xor_b32 v%d, s%d, v%d" % (HG, PNB, HV))
    e("v_lshl_or_b32 v%d, v%d, 3, v%d" % (HG, HT, HG))
    e("s_lshl_b32 s%d, s%d, 6" % (PCH, PSG))
    e("s_mul_i32 s%d, s%d, 768" % (PE + 1, PSG))
    e("s_lshl_b32 s%d, s%d, 2" % (PE + 2, PG0))
    e("s_sub_u32 s%d, s%d, s%d" % (PE + 1, PE + 1, PE + 2))
    e("s_add_u32 s%d, s%d, %d" % (PE + 1, PE + 1, WS_B))
    if P["pace"]:
        e("s_add_u32 s%d, s%d, 4" % (PNEED, PNEED))
        lds_wait("ga", HZ, HE, PE, L_EV + 4, "s%d" % PNEED, PSP)
    else:
        e("s_add_u32 s%d, s%d, 1" % (PNEED, PPH))
        lds_wait("ga", HZ, HE, PE, L_FD, "s%d" % PNEED, PSP)
    def first_token(st):
        e("v_xor_b32 v%d, %d, v%d" % (HA, ((st & 1) << PMB[4]) | ((st >> 1) << PMB[5]), HR))
        e("v_bfe_u32 v%d, v%d, 3, 2" % (HB_, HA))
        e("v_and_or_b32 v%d, v%d, 4, v%d" % (HB_, HA, HB_))
        e("v_xor_b32 v%d, v%d, v%d" % (HB_, HG, HB_))
        e("v_add_u32 v%d, s%d, v%d" % (HA, PCH, HA))
        e("v_lshl_add_u32 v%d, v%d, 5, v%d" % (HC, HA, HB_))
        e("v_lshl_add_u32 v%d, v%d, 4, 1" % (HC, HC))
        e("v_mul_hi_u32 v%d, v%d, s%d" % (HC, HC, PMG))
        e("v_lshrrev_b32 v%d, 1, v%d" % (HC, HC))

    def gathers(st):
        R = HX + RS * st
        e("v_lshrrev_b32 v%d, 1, v%d" % (HF, HC))
        e("v_lshlrev_b32 v%d, 2, v%d" % (HF, HF))
        for b, sr in ((R + 8, PS2), (R + 12, PS3)):
            if P["xkp"] & 8:
                continue
            gnt = " nt" if P["bnt"] & 16 else ""
            if P["gp"]:
                if st == 0 and sr == PS2:
                    e("s_memrealtime s[%d:%d]" % (PGT, PGT + 1))
                    e("s_waitcnt lgkmcnt(0)")
                n = P["gs"]
                for q in range(n):
                    twait(PGT, PGT + 2, P["gp"])
                    if n > 1:
                        mk = ((1 << (64 // n)) - 1) << (64 // n * q)
                        e("s_mov_b32 exec_lo, 0x%x" % (mk & 0xffffffff))
                        e("s_mov_b32 exec_hi, 0x%x" % (mk >> 32))
                    if P["gf"]:
                        e("buffer_load_dwordx4 v[%d:%d], v%d, s[%d:%d], 0 offen %s" % (b, b + 3, HF, sr, sr + 3, P["gf"].replace("x", "")))
                        continue
                    e("buffer_load_dwordx3 v[%d:%d], v%d, s[%d:%d], 0 offen%s" % (b, b + 2, HF, sr, sr + 3, gnt))
                    e("buffer_load_dword v%d, v%d, s[%d:%d], 0 offen offset:12%s" % (b + 3, HF, sr, sr + 3, gnt))
                e("s_mov_b64 exec, -1")
                continue
            e("buffer_load_dwordx3 v[%d:%d], v%d, s[%d:%d], 0 offen%s" % (b, b + 2, HF, sr, sr + 3, gnt))
            if P["pace"] == 2:
                e("s_waitcnt vmcnt(0)")
            e("buffer_load_dword v%d, v%d, s[%d:%d], 0 offen offset:12%s" % (b + 3, HF, sr, sr + 3, gnt))

    for st in range(4):
        R = HX + RS * st
        first_token(st)
        if not P["go"]:
            gathers(st)
        e("v_lshrrev_b32 v%d, 6, v%d" % (R + 6, HC))
        e("v_lshl_add_u32 v%d, v%d, 2, s%d" % (R + 6, R + 6, PE + 1))
        e("v_and_b32 v%d, 15, v%d" % (HD, HC))
        e("v_cmp_eq_u32 s[%d:%d], 5, v%d" % (PSIX + 2 * st, PSIX + 2 * st + 1, HD))
        e("v_and_b32 v%d, 1, v%d" % (R + 7, HC))
        e("v_lshlrev_b32 v%d, 4, v%d" % (R + 7, R + 7))
        if P["pace"] == 1:
            e("s_waitcnt vmcnt(0)")
    e("s_add_u32 s%d, s%d, 1" % (PNEED, PPH))
    if P["fd"]:
        cps = CPK + [48 + c for c in CPV]
        th = [12 * min(j for j, c in enumerate(cps) if c > b) + P["fd"] for b in (16, 32, 48)]
        assert th[2] - th[1] == th[1] - th[0]
        e("s_mul_i32 s%d, s%d, %d" % (PE + 6, PPH, th[1] - th[0]))
        e("s_add_u32 s%d, s%d, %d" % (PE + 6, PE + 6, th[0]))
        lds_wait("fe", HZ, HE, PE, L_TC, "s%d" % (PE + 6), PSP)
    lds_wait("fd", HZ, HE, PE, L_FD, "s%d" % PNEED, PSP)
    e("v_mul_u32_u24 v%d, %d, v%d" % (HA, FSTR, HL))
    e("s_xor_b32 s%d, s%d, s%d" % (PE, PKW, PWD))
    e("s_xor_b32 s%d, s%d, s%d" % (PE, PE, PNB))
    e("s_and_b32 s%d, s%d, 7" % (PE, PE))
    e("v_mov_b32 v%d, s%d" % (HC, PNEED))
    e("s_lshl_b64 vcc, 1, s%d" % PE)
    e("s_or_b32 s%d, s%d, s%d" % (PE, PKW, PWD))
    e("s_bitcmp1_b32 s%d, 3" % PE)
    e("s_cselect_b64 vcc, 0xff, vcc")
    e("s_cmp_eq_u32 s%d, s%d" % (PKW, PWD))
    e("s_cselect_b64 vcc, 0, vcc")
    e("s_max_u32 s%d, s%d, 1" % (PE, PPH))
    e("v_mov_b32 v%d, s%d" % (HD, PE))
    e("v_cndmask_b32 v%d, v%d, v%d, vcc" % (HC, HD, HC))
    e("s_cmp_%s_u32 s%d, 1" % ("eq" if P["jit"] else "ge", PPH))
    e("s_cselect_b64 exec, vcc, 0xff")
    e("s_mov_b32 s%d, 0x40000" % PSP)
    if not P["xkp"] & 64:
        e("s_cbranch_execz L_noflags")
        e.label("L_flags")
        e("buffer_load_dword v%d, v%d, s[%d:%d], s%d offen sc1" % (HB_, HA, PWS, PWS + 3, PGL))
        e("s_sub_u32 s%d, s%d, 1" % (PSP, PSP))
        e("s_cbranch_scc1 L_exit1")
        e("s_waitcnt vmcnt(0)")
        e("v_cmpx_gt_u32 vcc, v%d, v%d" % (HC, HB_))
        e("s_cbranch_execnz L_flags")
        e.label("L_noflags")
    e("s_mov_b64 exec, -1")
    for st in range(4):
        R = HX + RS * st
        if not P["xkp"] & 32:
            e("buffer_load_dword v%d, v%d, s[%d:%d], 0 offen sc1" % (R + 6, R + 6, PWS, PWS + 3))
    e("s_bitcmp1_b32 s%d, 3" % PWD)
    e("s_cselect_b32 s%d, 0, 7" % (PE + 1))
    e("s_xor_b32 s%d, s%d, s%d" % (PE + 2, PKW, PWD))
    e("s_bitcmp1_b32 s%d, 3" % (PE + 2))
    e("s_cselect_b32 s%d, 7, 0" % (PE + 3))
    e("s_and_b32 s%d, s%d, 7" % (PE + 2, PE + 2))
    e("s_and_b32 s%d, s%d, 7" % (PE + 4, PWD))
    if CX:
        e("v_lshrrev_b32 v%d, 3, v%d" % (HA, HL))
        e("v_cmp_gt_u32 vcc, s%d, v%d" % (PN0, HA))
        e("v_and_b32 v%d, s%d, v%d" % (HC, PE + 3, HT2))
        e("v_xor_b32 v%d, s%d, v%d" % (HC, PE + 2, HC))
        e("v_and_b32 v%d, s%d, v%d" % (HB_, PE + 1, HT2))
        e("v_xor_b32 v%d, s%d, v%d" % (HB_, PE + 4, HB_))
        e("v_cndmask_b32 v%d, v%d, v%d, vcc" % (HB_, HC, HB_))
        for k, hv in enumerate((HB_, HC)):
            e("v_cmp_ne_u32 s[%d:%d], 0, v%d" % (PXM + 2 * k, PXM + 2 * k + 1, hv))
            e("v_xor_b32 v%d, s%d, v%d" % (hv, PNB, hv))
            e("v_mad_u32_u24 v%d, v%d, s%d, v%d" % (hv, hv, PIS, HP + 1 if P["cl"] and k else HP))
        if P["cl"]:
            e("v_mov_b32 v%d, v%d" % (HP, HP + 1))
        for st in range(4):
            R = HX + 4 * RS + 4 * st
            if st < 2:
                e("s_mov_b64 exec, s[%d:%d]" % (PXM + 2 * st, PXM + 2 * st + 1))
            if P["x12"]:
                e("buffer_load_dwordx3 v[%d:%d], v%d, s[%d:%d], s%d offen offset:%d sc1" %
                  (R, R + 2, HC if st else HB_, PWS, PWS + 3, PIM, st * 768))
            elif not P["xkp"] & 128:
                e("buffer_load_dwordx4 v[%d:%d], v%d, s[%d:%d], s%d offen offset:%d sc1" %
                  (R, R + 3, HC if st else HB_, PWS, PWS + 3, PIM, st * 1024))
        e("s_mov_b64 exec, -1")
    else:
        e("s_add_u32 s%d, s%d, 4096" % (PE + 5, PIM))
        for k in range(6):
            R = HX + 4 * RS + 4 * k
            e("v_add_u32 v%d, %d, v%d" % (HA, 64 * k, HL))
            e("v_mul_u32_u24 v%d, 1366, v%d" % (HB_, HA))
            e("v_lshrrev_b32 v%d, 16, v%d" % (HB_, HB_))
            e("v_mul_u32_u24 v%d, 48, v%d" % (HC, HB_))
            e("v_sub_u32 v%d, v%d, v%d" % (HA, HA, HC))
            e("v_cmp_gt_u32 vcc, s%d, v%d" % (PN0, HA))
            e("v_and_b32 v%d, s%d, v%d" % (HC, PE + 3, HB_))
            e("v_xor_b32 v%d, s%d, v%d" % (HC, PE + 2, HC))
            e("v_and_b32 v%d, s%d, v%d" % (HB_, PE + 1, HB_))
            e("v_xor_b32 v%d, s%d, v%d" % (HB_, PE + 4, HB_))
            e("v_cndmask_b32 v%d, v%d, v%d, vcc" % (HC, HC, HB_))
            e("v_cmp_ne_u32 s[%d:%d], 0, v%d" % (PXM + 2 * k, PXM + 2 * k + 1, HC))
            e("v_xor_b32 v%d, s%d, v%d" % (HC, PNB, HC))
            e("v_mad_u32_u24 v%d, v%d, s%d, v%d" % (HC, HC, PIS, HPG))
            if XZ:
                e("s_add_u32 s%d, s%d, %d" % (PE + 5, PIM, img_k(k)))
            if P["fr"]:
                if k == 0:
                    e("s_memrealtime s[%d:%d]" % (PGT, PGT + 1))
                    e("s_waitcnt lgkmcnt(0)")
                twait(PGT, PGT + 2, P["fr"])
            e("s_mov_b64 exec, s[%d:%d]" % (PXM + 2 * k, PXM + 2 * k + 1))
            if XZ:
                e("buffer_load_dwordx4 v[%d:%d], v%d, s[%d:%d], s%d offen sc1" % (R, R + 3, HC, PWS, PWS + 3, PE + 5))
            elif not P["xkp"] & 128:
                e("buffer_load_dwordx4 v[%d:%d], v%d, s[%d:%d], s%d offen offset:%d sc1" %
                  (R, R + 3, HC, PWS, PWS + 3, PE + 5 if k >= 4 else PIM, (k % 4) * 1024))
            e("s_mov_b64 exec, -1")
        e("s_waitcnt vmcnt(0)")
        for k in range(6):
            R = HX + 4 * RS + 4 * k
            e("s_mov_b64 exec, s[%d:%d]" % (PXM + 2 * k, PXM + 2 * k + 1))
            e("ds_write_b128 v%d, v[%d:%d] offset:%d" % (HP, R, R + 3, L_LG + k * 1024))
        e("s_mov_b64 exec, -1")
    if P["go"]:
        for st in range(4):
            first_token(st)
            gathers(st)
    for st in range(4):
        R = HX + RS * st
        for c in range(3):
            e("ds_read_b64 v[%d:%d], v%d offset:%d" % (R + 2 * c, R + 2 * c + 1, HK, L_LG + st * 192 + 8 * c))
    e("s_mov_b32 s%d, 0" % PN0)
    e("v_mov_b32 v%d, 0x%08x" % (HB_, BIGNEG))
    e("v_mov_b32 v%d, 0x%08x" % (HA, BIGNEG))
    e("s_waitcnt vmcnt(0) lgkmcnt(0)")
    if CX:
        for st in range(4):
            R = HX + RS * st
            Q = HX + 4 * RS + 4 * st
            if st < 2:
                e("s_mov_b64 exec, s[%d:%d]" % (PXM + 2 * st, PXM + 2 * st + 1))
            for k in range(6):
                e("v_fma_mix_f32 v%d, v%d, 1.0, v%d op_sel:[%d,0,0] op_sel_hi:[1,0,0]" % (R + k, Q + 1 + k // 2, Q, k & 1))
            e("v_cmp_lt_f32 vcc, v%d, v%d" % (Q, R + 5))
            e("v_cndmask_b32 v%d, v%d, v%d, vcc" % (R + 5, R + 5, HZ))
        e("s_mov_b64 exec, -1")
    for st in range(4):
        R = HX + RS * st
        for k in range(6):
            e("v_sub_f32 v%d, v%d, v%d" % (R + k, R + k, R + 6))
        for k in range(6):
            e("v_mul_f32 v%d, s%d, v%d" % (R + k, PCC, R + k))
        e("v_cndmask_b32 v%d, v%d, v%d, s[%d:%d]" % (R + 5, HB_, R + 5, PSIX + 2 * st, PSIX + 2 * st + 1))
        for k in range(0, 6, 2):
            e("v_max3_f32 v%d, v%d, v%d, v%d" % (HA, HA, R + k, R + k + 1))
        for b in (R + 8, R + 12):
            for k in range(3):
                e("v_alignbit_b32 v%d, v%d, v%d, v%d" % (b + k, b + k + 1, b + k, R + 7))

    wave_reduce([HA], "v_max_f32", [HB_])
    e("v_mov_b32 v%d, 0" % HB_)
    e("v_mov_b32 v%d, 0" % HC)
    for st in range(4):
        R = HX + RS * st
        for k in range(6):
            e("v_sub_f32 v%d, v%d, v%d" % (R + k, R + k, HA))
        for k in range(6):
            e("v_exp_f32 v%d, v%d" % (R + k, R + k))
        for k in range(6):
            e("v_add_f32 v%d, v%d, v%d" % (HB_, HB_, R + k))
            if k & 1:
                e("v_and_b32 v%d, 0xffff0000, v%d" % (HE, R + 8 + k // 2))
                e("v_and_b32 v%d, 0xffff0000, v%d" % (HF, R + 12 + k // 2))
            else:
                e("v_lshlrev_b32 v%d, 16, v%d" % (HE, R + 8 + k // 2))
                e("v_lshlrev_b32 v%d, 16, v%d" % (HF, R + 12 + k // 2))
            e("v_mul_f32 v%d, v%d, v%d" % (R + k, R + k, HE))
            e("v_fmac_f32 v%d, v%d, v%d" % (HC, R + k, HF))
        e("ds_write_b128 v%d, v[%d:%d] offset:%d" % (HN, R, R + 3, L_PV + st * 2048))
        e("ds_write_b64 v%d, v[%d:%d] offset:%d" % (HN, R + 4, R + 5, L_PV + st * 2048 + 16))
    wave_reduce([HB_, HC], "v_add_f32", [HE, HF])
    e("s_lshl_b32 s%d, s%d, 2" % (PE, PPH))
    e("v_mov_b32 v%d, s%d" % (HE, PE))
    e("v_lshlrev_b32 v%d, 2, v%d" % (HF, HE))
    e("v_mov_b32 v%d, s%d" % (HD, PWD))
    e("s_mov_b64 exec, 1")
    e("ds_write_b128 v%d, v[%d:%d] offset:%d" % (HF, HA, HD, L_ML))
    e("ds_write_b32 v%d, v%d offset:%d" % (HE, HD, L_GO))
    if FU:
        e("s_lshl_b32 s%d, s%d, 8" % (PE, PPH))
        e("s_add_u32 s%d, s%d, s2" % (PE, PE))
        e("s_lshl_b32 s%d, s%d, 6" % (PE, PE))
        e("s_add_u32 s%d, s%d, %d" % (PE, PE, WS_ML))
        e("buffer_store_dwordx4 v[%d:%d], off, s[%d:%d], s%d sc1" % (HA, HD, PWS, PWS + 3, PE))
    e("s_mov_b64 exec, -1")
    e("v_add_u32 v%d, 8192, v%d" % (HN, HN))
    e("v_add_u32 v%d, %d, v%d" % (HK, PHI, HK))
    if CX:
        e("s_add_u32 s%d, s%d, %d" % (PIM, PIM, PHS))
    else:
        e("v_add_u32 v%d, %d, v%d" % (HP, PHI, HP))
        if PHS != PHI:
            e("s_add_u32 s%d, s%d, %d" % (PIM, PIM, PHS if XZ else PHS - PHI))
    e("s_add_u32 s%d, s%d, 1" % (PPH, PPH))
    e("s_cmp_lt_u32 s%d, 3" % PPH)
    e("s_cbranch_scc1 L_prep")
    e("s_mov_b32 s%d, 0" % PPH)
    e("v_lshlrev_b32 v%d, 2, v%d" % (HR, HL))
    e("v_add_u32 v%d, %d, v%d" % (HG, L_ACC, HR))
    e("v_lshlrev_b32 v%d, 4, v%d" % (HK, HL))
    e("v_mov_b32 v%d, 1" % (HX + 15))
    e.label("L_merge")
    e("s_lshl_b32 s%d, s%d, 2" % (PE, PPH))
    e("v_mov_b32 v%d, s%d" % (HW, PE))
    e("v_lshlrev_b32 v%d, 2, v%d" % (HF, HW))
    e("ds_read_b128 v[%d:%d], v%d offset:%d" % (HA, HD, HF, L_ML))
    e("s_lshl_b32 s%d, s%d, 8" % (PSG, PPH))
    e("s_add_u32 s%d, s%d, s2" % (PSG, PSG))
    e("s_lshl_b32 s%d, s%d, 10" % (PSG, PSG))
    lds_wait("m", HZ, HE, PE, L_CA, "4", PSP, HW)
    for kk in range(3):
        for w in range(NW):
            e("ds_read_b32 v%d, v%d offset:%d" % (HX + kk * NW + w, HG, w * ROWB + kk * 256))
    for kk in range(3):
        b = HX + kk * NW
        e("s_waitcnt lgkmcnt(%d)" % (8 - 4 * kk))
        e("v_add_f32 v%d, v%d, v%d" % (b, b, b + 1))
        e("v_add_f32 v%d, v%d, v%d" % (b + 2, b + 2, b + 3))
        e("v_sub_f32 v%d, v%d, v%d" % (b, b, HC))
        if FU:
            e("v_add_f32 v%d, v%d, v%d" % (HX + 12 + kk, b, b + 2))
            continue
        e("v_add_f32 v%d, v%d, v%d" % (b, b, b + 2))
        e("buffer_store_dword v%d, v%d, s[%d:%d], s%d offen offset:%d" % (b, HR, PWS, PWS + 3, PSG, kk * 256))
    if FU:
        e("buffer_store_dwordx4 v[%d:%d], v%d, s[%d:%d], s%d offen sc1" % (HX + 12, HX + 15, HK, PWS, PWS + 3, PSG))
    else:
        e("s_mov_b64 exec, 1")
        e("buffer_store_dwordx2 v[%d:%d], off, s[%d:%d], s%d offset:%d" % (HA, HB_, PWS, PWS + 3, PSG, DH * 4))
        e("s_mov_b64 exec, -1")
    e("v_add_u32 v%d, %d, v%d" % (HG, NW * ROWB, HG))
    e("s_add_u32 s%d, s%d, 1" % (PPH, PPH))
    e("s_cmp_lt_u32 s%d, %d" % (PPH, 2 if 0 < P["fc"] < 4 else 3))
    e("s_cbranch_scc1 L_merge")
    if 0 < P["fc"] < 4:
        last_gather()
    if P["stamp"] == 5:
        e("s_memrealtime s[%d:%d]" % (PT, PT + 1))
        e("s_waitcnt vmcnt(0)")
        e("s_memrealtime s[%d:%d]" % (PT + 2, PT + 3))
        srd(PS2, 82, 0x8000000)
        e("s_waitcnt lgkmcnt(0)")
        e("v_mov_b32 v%d, s%d" % (HX, PT))
        e("v_mov_b32 v%d, s%d" % (HX + 1, PT + 2))
        e("s_lshl_b32 s%d, s2, 3" % PE)
        e("s_add_u32 s%d, s%d, 0x400a000" % (PE, PE))
        e("s_mov_b64 exec, 1")
        e("buffer_store_dwordx2 v[%d:%d], off, s[%d:%d], s%d" % (HX, HX + 1, PS2, PS2 + 3, PE))
    e("s_endpgm")

    main_text = e.text()
    if P["nts"]:
        ls = []
        for l in main_text.split("\n"):
            w = l.split()
            if w and w[-1] == "sc1":
                big = w[0].endswith("x4")
                bit = (1 if big else 2) if w[0].startswith("buffer_store") else (4 if big else 8)
                if P["nts"] & bit:
                    l += " nt"
            ls.append(l)
        main_text = "\n".join(ls)
    RPW = 24
    k2 = NAME + "_kernel"
    e.lines.append(".globl %s" % k2)
    e.lines.append(".p2align 8")
    e.lines.append(".type %s,@function" % k2)
    e.lines.append(k2 + ":")
    e.wr = {}; e.tr = {}; e.sw = {}
    e("s_cmp_ge_u32 s2, %d" % H)
    e("s_cbranch_scc1 L_exit2")
    e("s_load_dwordx2 s[4:5], s[0:1], 56")
    e("s_load_dwordx2 s[6:7], s[0:1], 72")
    e("v_lshlrev_b32 v1, 2, v0")
    e("v_mov_b32 v2, 0")
    e("s_mul_i32 s16, s2, %d" % (RPW * PART_STRIDE))
    e("s_mov_b32 s10, %d" % (3 * NWG * PART_STRIDE))
    e("s_mov_b32 s11, 0x00020000")
    e("s_mov_b32 s14, %d" % (H * DH * 2))
    e("s_mov_b32 s15, 0x00020000")
    for k in range(1, RPW // 4):
        e("s_add_u32 s%d, s16, %d" % (16 + k, 4 * k * PART_STRIDE))
    e("s_waitcnt lgkmcnt(0)")
    e("s_mov_b32 s8, s6")
    e("s_and_b32 s9, s7, 0xffff")
    e("s_mov_b32 s12, s4")
    e("s_and_b32 s13, s5, 0xffff")
    MLB = 8
    OB = MLB + 2 * RPW
    for s in range(RPW):
        so = 16 + s // 4
        e("buffer_load_dwordx2 v[%d:%d], v2, s[8:11], s%d offen offset:%d" %
          (MLB + 2 * s, MLB + 2 * s + 1, so, (s % 4) * PART_STRIDE + DH * 4))
        e("buffer_load_dword v%d, v1, s[8:11], s%d offen offset:%d" % (OB + s, so, (s % 4) * PART_STRIDE))
    e("s_waitcnt vmcnt(0)")
    e("v_mov_b32 v4, v%d" % MLB)
    for s in range(1, RPW):
        e("v_max_f32 v4, v4, v%d" % (MLB + 2 * s))
    for s in range(RPW):
        e("v_sub_f32 v%d, v%d, v4" % (MLB + 2 * s, MLB + 2 * s))
    for s in range(RPW):
        e("v_exp_f32 v%d, v%d" % (MLB + 2 * s, MLB + 2 * s))
    e("v_mul_f32 v5, v%d, v%d" % (MLB, MLB + 1))
    e("v_mul_f32 v6, v%d, v%d" % (MLB, OB))
    for s in range(1, RPW):
        e("v_fmac_f32 v5, v%d, v%d" % (MLB + 2 * s, MLB + 2 * s + 1))
        e("v_fmac_f32 v6, v%d, v%d" % (MLB + 2 * s, OB + s))
    e("v_rcp_f32 v5, v5")
    e("v_mul_f32 v6, v6, v5")
    e("v_cvt_pk_bf16_f32 v6, v6, v6")
    e("s_mul_i32 s16, s2, %d" % (DH * 2))
    e("v_lshrrev_b32 v1, 1, v1")
    e("buffer_store_short v6, v1, s[12:15], s16 offen")
    e.lines.append("L_exit2:")
    e("s_endpgm")
    NV2 = OB + RPW

    def kd(name, nv, ns):
        acc = (nv + 3) // 4 * 4
        return """.amdhsa_kernel %s
  .amdhsa_next_free_vgpr %d
  .amdhsa_next_free_sgpr %d
  .amdhsa_accum_offset %d
  .amdhsa_group_segment_fixed_size 0
  .amdhsa_kernarg_size 80
  .amdhsa_user_sgpr_count 2
  .amdhsa_user_sgpr_kernarg_segment_ptr 1
  .amdhsa_system_sgpr_workgroup_id_x 1
.end_amdhsa_kernel
""" % (name, nv, ns, acc)

    diag = ""
    if P["diag"]:
        d = Emit4()
        d.lines += [".globl diag_kernel", ".p2align 8", ".type diag_kernel,@function", "diag_kernel:"]
        d("s_cmp_ge_u32 s2, 1")
        d("s_cbranch_scc1 L_dx")
        d("s_load_dwordx2 s[6:7], s[0:1], 72")
        d("s_memrealtime s[16:17]")
        d("v_lshlrev_b32 v1, 4, v0")
        d("s_mov_b32 s10, 0x8000000")
        d("s_mov_b32 s11, 0x00020000")
        d("s_waitcnt lgkmcnt(0)")
        d("s_mov_b32 s8, s6")
        d("s_and_b32 s9, s7, 0xffff")
        for k in range(16):
            d("s_mov_b32 s12, 0x%x" % (0x4000000 + k * 1024))
            d("buffer_load_dwordx4 v[%d:%d], v1, s[8:11], s12 offen" % (4 + 4 * k, 7 + 4 * k))
        d("s_waitcnt vmcnt(0)")
        d("v_readfirstlane_b32 s13, v4")
        d("v_mov_b32 v2, 0")
        d("v_mov_b32 v3, 0")
        for k in range(16):
            d("v_subrev_u32 v%d, s13, v%d" % (4 + 4 * k, 4 + 4 * k))
            d("v_subrev_u32 v%d, s13, v%d" % (5 + 4 * k, 4 + 4 * k + (P["diag"] & 3)))
            d("v_min_i32 v2, v2, v%d" % (4 + 4 * k))
            d("v_%s v3, v3, v%d" % ("add_u32" if P["diag"] & 128 else "max_i32", 5 + 4 * k))
        d("s_mov_b32 s14, 0")
        d("s_mov_b32 s15, 0")
        for l in range(64):
            d("v_readlane_b32 s18, v2, %d" % l)
            d("v_readlane_b32 s19, v3, %d" % l)
            d("s_nop 3")
            d("s_min_i32 s14, s14, s18")
            d("s_%s s15, s15, s19" % ("add_u32" if P["diag"] & 128 else "max_i32"))
        if P["diag"] & 128:
            d("s_ashr_i32 s15, s15, 10")
        if P["diag"] & 96:
            d("s_mov_b32 s12, 0x4100000")
            d("buffer_load_dwordx4 v[8:11], off, s[8:11], s12")
            d("v_readfirstlane_b32 s18, v6")
            d("s_waitcnt vmcnt(0)")
            d("v_readfirstlane_b32 s19, v8")
            d("v_readfirstlane_b32 s20, v9")
            d("v_readfirstlane_b32 s21, v10")
            d("s_and_b32 s18, s18, %d" % P["dth"])
            d("s_min_u32 s18, s18, 1")
            d("s_cmp_eq_u32 s19, 0x13572468")
            d("s_cselect_b32 s20, s20, 0")
            d("s_cselect_b32 s21, s21, 0")
            d("s_add_u32 s20, s20, s18")
            d("s_add_u32 s21, s21, 1")
            d("v_mov_b32 v8, 0x13572468")
            d("v_mov_b32 v9, s20")
            d("v_mov_b32 v10, s21")
            d("s_mov_b64 exec, 1")
            d("buffer_store_dwordx4 v[8:11], off, s[8:11], s12")
            d("s_mov_b32 s15, s%d" % (20 if P["diag"] & 32 else 21))
        elif P["diag"] & 8:
            d("s_load_dwordx2 s[20:21], s[0:1], 64")
            d("s_waitcnt lgkmcnt(0)")
            d("s_sub_u32 s20, s20, 512")
            d("s_subb_u32 s21, s21, 0")
            d("s_load_dword s15, s[20:21], 0")
            d("s_waitcnt lgkmcnt(0)")
            d("s_and_b32 s15, s15, 0xffffff")
            d("s_sub_u32 s15, s15, %d" % (48 * 65536))
            d("s_abs_i32 s15, s15")
            d("s_lshr_b32 s15, s15, 2")
            if P["diag"] & 16:
                d("s_cmp_lt_u32 s15, %d" % (P["dth"] // 4))
                d("s_cselect_b32 s15, 3000, 0")
                d("s_and_b32 s14, s16, 0xf0")
                d("s_cmp_lt_u32 s14, %d" % (16 * P["drn"]))
                d("s_cselect_b32 s15, 3000, s15")
        elif P["diag"] & 4:
            d("s_sub_u32 s14, s16, s13")
            d("s_sub_u32 s15, s14, s15")
        else:
            d("s_sub_u32 s15, s15, s14")
        d("s_sub_u32 s15, s15, %d" % P["doff"])
        d("s_max_i32 s15, s15, 0")
        d("s_min_i32 s15, s15, 10000")
        d("s_mul_i32 s15, s15, %d" % P["dmul"])
        d("s_add_u32 s15, s15, s16")
        d.label("L_dl")
        d("s_memrealtime s[18:19]")
        d("s_waitcnt lgkmcnt(0)")
        d("s_sub_u32 s18, s18, s15")
        d("s_cmp_lt_i32 s18, 0")
        d("s_cbranch_scc1 L_dl")
        d.lines.append("L_dx:")
        d("s_endpgm")
        diag = d.text()
    out = HEADER.replace("gen.py", "gen6.py").format(params=" ".join("%s=%s" % kv for kv in sorted(P.items())))
    if FU:
        out += "; @launch kernel=%s grid=(%d,1,1) block=(%d,1,1) lds=%d\n" % (k1, NWG, (NW + NHX) * 64, LDS1)
    else:
        out += "; @launch kernel=%s grid=(%d,1,1) block=(%d,1,1) lds=%d\n" % (k1, NWG, (NW + NHX) * 64, LDS1)
        out += "; @launch kernel=%s grid=(%d,1,1) block=(%d,1,1) lds=%d\n" % (k2, H, DH, 0)
    if diag:
        out += "; @launch kernel=diag_kernel grid=(1,1,1) block=(64,1,1) lds=0\n"
    out += '.amdgcn_target "amdgcn-amd-amdhsa--gfx950"\n.text\n'
    out += main_text if FU else e.text()
    out += diag
    out += '.section .rodata,"a"\n.p2align 6\n'
    out += kd(k1, NVGPR + (8 if P["xb"] else 2 if P["stamp"] == 5 else 0), 102)
    if not FU:
        out += ".p2align 6\n"
        out += kd(k2, NV2, 24)
    if diag:
        out += ".p2align 6\n"
        out += kd("diag_kernel", 72, 24)
    return out


DEFAULTS = dict(grp="6-6-6", n0=3, trg=1, ta=14, tb=15, jit=0, pace=1, nr0=1, nr=7, nt="nt", ldspad=0, stamp=0, xkp=0, force=0, clip=1400,
                l2t=290, th=200, pf=7, ob=2, ox=0, ds=1, td=3, tdm=3, fuse=1, cw=1,
                lx=0, wo=0, ns0=4, tw=4, ov="0000", st="sc1", xv="", h4=0, bnt=0, vw=1, at=1, tc=40, tg=2, te=44, aq=16, ka=9, kb=2048, dmin=0, dmax=11,
                bc=1, cpk="9-17-25-33-41", cpv="1-9-17-25-33", rd=2, ka2=8, kb2=512, bmax=6, be=1, pw=2, il=1, xp=0, ss=0, eb=0, pfi=0, hs=0, l2p=0, gts="16-32-48-64-80", gn=8, gtol=10, gcap=1000, gq=0, gl2=0, xb=0, diag=0, doff=20000, dmul=8, fc=4, elk=1, cd=9, fd=0, prio=0, bp=0, bp0=0, bq=0, wl=2048, wt=9984, sw=1, dc=1, xs=0, cx=1, fb=0, ib=0, dth=4800, drn=6, ut=0, wb=0, nts=0, wg=8192, wm=896, wbi=1152, lb=1, pb=1, cl2=100, th1=10, th0=10, lm=7, tt=0, tx=1584, d3=33, xa=200, xn=4, bt=0, bt0=0, be1=0, gp=140, gs=2, pp=0, go=1, fw=0, fr=0, xz=0, xr=15, ef=0, gf="", pol=0, ro=2, bs=0, bz=5, bz0=1, rx=0, pt=0, pk=30, pd=0, pe=0, hg=0, fq=0, cl=0, xq=0, xt=0, os="", x12=0, sg=0, bw=0, am=3, ak=4, xm="4-8-0-32-0", pm="041235", p8="")


def main():
    P = dict(DEFAULTS)
    outp = None
    args = sys.argv[1:]
    i = 0
    while i < len(args):
        a = args[i]
        if a == "-o":
            outp = args[i + 1]; i += 2; continue
        k, v = a.split("=", 1)
        assert k in P, k
        P[k] = type(P[k])(v.replace("+", " ")) if isinstance(P[k], str) else int(v)
        i += 1
    s = gen(P)
    if outp:
        open(outp, "w").write(s)
    else:
        sys.stdout.write(s)


if __name__ == "__main__":
    main()
```

```python
import re
import sys
import math
from gen import f32hex, HEADER, NAME, H, SKV, DH, G, NGRP, ROWB, HEADB
from gen4 import Emit4

PART_STRIDE = 1024
NW = 4
NH = 3
NWG = 256
NT = 48
WS_G = 8 << 20
FSTR = 4096 + 256
WS_ML = 0xe0000
WS_B = 0x120000
WS_L = 2 << 20
WS_T = 0x9c0000
WS_SIZE = 10 << 20
BIGNEG = 0xf149f2ca


def gen(P):
    global WS_L, WS_T, WS_G, WS_ML, WS_B
    WS_L = P["wl"] << 10
    WS_T = P["wt"] << 10
    WS_G = P["wg"] << 10
    WS_ML = P["wm"] << 10
    WS_B = P["wbi"] << 10
    assert P["sw"] or not P["dc"]
    GR = [int(x) for x in P["grp"].split("-")]
    assert sum(GR) == 18 and len(GR) >= 2
    NG = len(GR)
    GOFF = [sum(GR[:k]) for k in range(NG)]
    OV = [int(x) for x in P["ov"]]
    N0 = P["n0"]
    NR = P["nr"]
    TRG1 = N0 - P["trg"]
    TA = P["ta"]
    TB = P["tb"]
    assert (2 <= TRG1 < N0 or P["force"] >= 2 or P["pt"] and TRG1 == N0) and N0 < TA < TB < 16 and 1 <= NR <= 7 and N0 <= 8
    pol = (" " + P["nt"]) if P["nt"] else ""
    C = (DH ** -0.5) * math.log2(math.e)
    L_DEC = 0
    L_GO = 24
    L_PC = 36
    L_CF = 40
    L_FD = 52
    L_EV = 56
    L_CA = 64
    L_ML = 80
    L_TC = 128
    L_TD = 132
    L_EL = 136
    L_PF = 140
    L_TM = 144
    L_GT = 208
    L_LG = 256
    PHI = 6144
    IMG = 3 * PHI
    L_PV = L_LG + IMG
    L_ACC = L_PV + 192 * 128
    LDS1 = max(L_ACC + 3 * NW * ROWB, P["ldspad"])

    e = Emit4()
    V_T = 1; V_J16 = 2; V_J8 = 3; V_LB0 = 4; V_PB0 = 5; V_PV = 6; V_PVN = 7; V_DO = 8; V_PO = 9; V_T0 = 10; V_T1 = 11
    V_ACC = 12; V_W = 24; V_RAW = 36
    V_OFF = 48; V_OFF6 = 49; V_TM = 50; V_BIG = 51; V_T2 = 52; V_Z = 53
    V_S = 54
    V_D = 60
    V_T128 = 62; V_TMX = 63
    V_RING = 64
    NVGPR = V_RING + 72
    AB = P["ab"]
    V_W2 = NVGPR; V_RAW2 = NVGPR + 12; V_OFFB = NVGPR + 18; V_OFF6B = NVGPR + 19; V_PO2 = NVGPR + 20
    S_INC = 51
    SK = [int(x) for x in P["sk"].split("-")] if P["sk"] else []
    PS = P["ps"]; L_PS = 240
    V_PSW = NVGPR; V_PSR = NVGPR + 1; V_PSD = NVGPR + 2
    if PS:
        assert not P["ef"]
        NVGPR += 6
    PSN = [0]
    RT = P["rt"]; S_RO = 88; S_RM = 92; S_RR = 91
    V_RE = NVGPR; V_RD = NVGPR + 3
    if RT:
        assert not (AB or SK or P["ss"])
        NVGPR += 6

    def publish(add, const=None):
        if const is None:
            e("s_lshl2_add_u32 s%d, s%d, %d" % (S_T, S_I, add))
            e("v_mov_b32 v%d, s%d" % (V_T0, S_T))
        else:
            e("v_mov_b32 v%d, 0x%x" % (V_T0, const))
        e("s_mov_b64 exec, 1")
        e("ds_write_b32 v%d, v%d offset:%d" % (V_PSW, V_T0, L_PS))
        e("s_mov_b64 exec, -1")

    def pair_sync(add):
        publish(add)
        PSN[0] += 1
        tag = "L_ps%d" % PSN[0]
        e("s_mov_b32 s%d, %d" % (S_T + 1, P["pl"]))
        e.lines.append(tag + ":")
        if PS == 3:
            e("ds_read_b128 v[%d:%d], v%d offset:%d" % (V_PSD, V_PSD + 3, V_Z, L_PS))
            e("s_waitcnt lgkmcnt(0)")
            e("v_min3_u32 v%d, v%d, v%d, v%d" % (V_PSD, V_PSD, V_PSD + 1, V_PSD + 2))
            e("v_min_u32 v%d, v%d, v%d" % (V_PSD, V_PSD, V_PSD + 3))
        else:
            e("ds_read_b32 v%d, v%d offset:%d" % (V_PSD, V_PSR, L_PS))
            e("s_waitcnt lgkmcnt(0)")
        e("v_readfirstlane_b32 s%d, v%d" % (S_T + 2, V_PSD))
        e("s_sub_u32 s%d, s%d, 1" % (S_T + 1, S_T + 1))
        e("s_cselect_b32 s%d, -1, s%d" % (S_T + 2, S_T + 2))
        e("s_cmp_lt_u32 s%d, s%d" % (S_T + 2, S_T))
        e("s_cbranch_scc1 %s" % tag)
    S_MN = 88; S_MP_ = 90
    if SK:
        assert len(SK) == 2 and NG == 3 and not AB and not P["tt"] and P["tdm"] == 3 and P["be"] and not P["fb"] and not P["ss"]
        assert not any(OV[:3]) and 2 <= SK[0] and SK[0] + 2 <= SK[1] <= 14

        def wait_tag(tag):
            idx = [i for i, t in enumerate(e.vm) if t in (tag, tag + "m")]
            if idx:
                e.vm = e.vm[idx[-1] + 1:]
                e("s_waitcnt vmcnt(%d)" % len([t for t in e.vm if t[-1] != "m"]))
        e.wait_tag = wait_tag

    def slots(k, form):
        if not SK:
            return [(l, None) for l in range(GOFF[k], GOFF[k] + GR[k])]
        lo = SK[k - 1] if k else -1
        hi = SK[k] if k < 2 else 19
        if form == "c":
            return [(l, None) for l in range(max(lo - 1, 0), hi - 1)]
        if form == "d":
            return [(l, None) for l in range(lo + 1, min(hi + 1, 18))]
        late = [(lo - 1, S_MP_), (lo, S_MN + 4)] if k else []
        if form == "late":
            return late
        return late + [(l, None) for l in range(lo + 1, hi - 1)] + ([(hi - 1, S_MP_ + 4), (hi, S_MN)] if k < 2 else [])
    if AB:
        NVGPR += 22
    S_G = 3; S_M = 4; S_N = 5; S_SPIN = 6; S_LDC = 7
    S_K = 8; S_V = 12; S_KS = 16; S_Q = 20; S_WS = 24
    S_WAVE = 28; S_CI = 29; S_I = 30; S_QOFF = 31
    S_T = 32
    S_EV = 40; S_STM = 42; S_HB = 44; S_768 = 45; S_384 = 46; S_MAGIC = 47
    S_NB = 48; S_TD = 49; S_XB = 50; S_LB = 53
    S_ST = 54; S_DBG = 56
    S_BO = 59; S_TW = 60; S_CPA = 62; S_NBO = 63; S_BP = 72; S_TH = 73; S_TT = 74
    S_MP = 64; S_MG = 66; S_MR = 68; S_MO = 70
    BC = P["bc"]
    NHX = NH + (1 if BC else 0)
    CPK = [int(x) for x in P["cpk"].split("-")] if BC and P["cpk"] else []
    CPV = [int(x) for x in P["cpv"].split("-")] if BC and P["cpv"] else []
    if BC:
        CPV.append(P["tc"])
        assert P["te"] == P["tc"] + P["tg"] + P["rd"] and len(CPK) + len(CPV) <= 16

    GTS = [int(x) for x in P["gts"].split("-")] if BC and P["gts"] else []

    def set_masks(ev, cps):
        mp = sum(1 << c for c in cps)
        allm = [(S_EV, ev | mp | (mp << P["tg"]) | (mp << (P["tg"] + P["rd"])))]
        if BC:
            allm += [(S_MP, mp), (S_MG, mp << P["tg"]), (S_MR, mp << (P["tg"] + P["rd"])), (S_MO, ev)]
        for r, v in allm:
            assert v < (1 << 48)
            e("s_mov_b32 s%d, 0x%x" % (r, v & 0xffffffff))
            e("s_mov_b32 s%d, 0x%x" % (r + 1, v >> 32))

    FU = P["fuse"]
    k1 = NAME + "_kernel" if FU else "part_kernel"
    e.lines.append(".globl %s" % k1)
    e.lines.append(".p2align 8")
    e.lines.append(".type %s,@function" % k1)
    e.lines.append(k1 + ":")
    e("s_cmp_ge_u32 s2, %d" % NWG)
    e("s_cbranch_scc1 L_exit1")
    e("s_load_dwordx16 s[64:79], s[0:1], 0")
    e("s_load_dwordx4 s[80:83], s[0:1], 64")
    if P["stamp"]:
        e("s_memrealtime s[%d:%d]" % (S_ST, S_ST + 1))
    e("v_lshrrev_b32 v%d, 6, v0" % V_T0)
    e("v_and_b32 v%d, 63, v0" % V_T1)
    e("v_readfirstlane_b32 s%d, v%d" % (S_WAVE, V_T0))
    if P["eb"] == 4:
        e("v_lshlrev_b32 v%d, 2, v%d" % (V_T0, V_T1))
        e("v_mov_b32 v%d, 0" % V_Z)
        e("ds_write_b32 v%d, v%d" % (V_T0, V_Z))
    e("s_lshr_b32 s%d, s2, 3" % S_G)
    e("s_and_b32 s%d, s2, 7" % S_M)
    e("s_lshr_b32 s%d, s2, 6" % S_T)
    e("s_xor_b32 s%d, s%d, s%d" % (S_T, S_T, S_M))
    e("s_lshr_b32 s%d, s%d, 1" % (S_NB, S_T))
    e("s_and_b32 s%d, s%d, 1" % (S_T, S_T))
    e("s_lshl_b32 s%d, s%d, 2" % (S_T, S_T))
    e("s_or_b32 s%d, s%d, s%d" % (S_NB, S_NB, S_T))
    if P["eb"] != 4:
        e("s_cmp_ge_u32 s%d, %d" % (S_WAVE, NW))
        e("s_cbranch_scc1 L_helper")

    def srd(dst, ptr, nbytes):
        e("s_mov_b32 s%d, s%d" % (dst, ptr))
        e("s_and_b32 s%d, s%d, 0xffff" % (dst + 1, ptr + 1))
        e("s_mov_b32 s%d, %d" % (dst + 2, nbytes))
        e("s_mov_b32 s%d, 0x00020000" % (dst + 3))

    def srd_ws(dst):
        srd(dst, 82, WS_SIZE)
        if P["wo"]:
            e("s_add_u32 s%d, s%d, %d" % (dst, dst, P["wo"] << 10))
            e("s_addc_u32 s%d, s%d, 0" % (dst + 1, dst + 1))

    def lds_wait(tag, vz, vt, st, off, cond, spin, vaddr=None):
        e("s_mov_b32 s%d, 0x100000" % spin)
        e.label("L_w" + tag)
        e("ds_read_b32 v%d, v%d offset:%d" % (vt, vz if vaddr is None else vaddr, off))
        e("s_sub_u32 s%d, s%d, 1" % (spin, spin))
        e("s_cbranch_scc1 L_exit1")
        e("s_waitcnt lgkmcnt(0)")
        e("v_readfirstlane_b32 s%d, v%d" % (st, vt))
        if cond == "nz":
            e("s_cmp_eq_u32 s%d, 0" % st)
        else:
            e("s_cmp_lt_u32 s%d, %s" % (st, cond))
        e("s_cbranch_scc1 L_w" + tag)

    TWN = [0]

    def twait(dl, tmp, step):
        TWN[0] += 1
        e.label("L_tw%d" % TWN[0])
        e("s_memrealtime s[%d:%d]" % (tmp, tmp + 1))
        e("s_waitcnt lgkmcnt(0)")
        e("s_sub_u32 s%d, s%d, s%d" % (tmp + 1, tmp, dl))
        e("s_cmp_lt_i32 s%d, 0" % (tmp + 1))
        e("s_cbranch_scc1 L_tw%d" % TWN[0])
        e("s_add_u32 s%d, s%d, %d" % (dl, tmp, step))

    def gate(b, tag, check):
        if b not in GTS:
            return
        if check:
            e("s_cmp_eq_u32 s%d, %d" % (S_I, b % 48))
            e("s_cbranch_scc0 L_gx" + tag)
        e("s_memrealtime s[%d:%d]" % (S_T + 4, S_T + 5))
        lds_wait("g" + tag, V_Z, V_T0, S_T, L_GT + 4 * GTS.index(b), "nz", S_SPIN)
        e("s_and_b32 s%d, s%d, 0xffff" % (S_T, S_T))
        e("s_cbranch_scc0 L_gx" + tag)
        if P["stamp"] == 5:
            e("s_lshl_b32 s%d, s%d, 16" % (S_T + 1, S_T))
            e("s_add_u32 s%d, s%d, s%d" % (S_NBO, S_NBO, S_T + 1))
        e("s_add_u32 s%d, s%d, s%d" % (S_T, S_T, S_T + 4))
        e.label("L_gl" + tag)
        e("s_memrealtime s[%d:%d]" % (S_T + 4, S_T + 5))
        e("s_waitcnt lgkmcnt(0)")
        e("s_sub_u32 s%d, s%d, s%d" % (S_T + 4, S_T + 4, S_T))
        e("s_cmp_lt_i32 s%d, 0" % (S_T + 4))
        e("s_cbranch_scc1 L_gl" + tag)
        e.label("L_gx" + tag)

    def get_table(kind, tag):
        if tag == "tv":
            gate(48, tag, False)
        else:
            for b in ((16, 32) if kind == "K" else (64, 80)):
                gate(b, "%s%d" % (tag, b), True)
        e("s_lshr_b32 s%d, s%d, 4" % (S_T + 1, S_I))
        e("s_lshl_b32 s%d, s%d, 2" % (S_T + 2, S_T + 1))
        if P["stamp"] == 6:
            e("s_memrealtime s[%d:%d]" % (S_T + 4, S_T + 5))
            e("s_lshl_b32 s%d, s2, 2" % S_T)
            e("s_add_u32 s%d, s%d, s%d" % (S_T, S_T, S_WAVE))
            e("s_cmp_eq_u32 s%d, 400" % S_T)
            e("s_cselect_b64 exec, 1, 0")
            e("s_waitcnt lgkmcnt(0)")
            e("s_sub_u32 s%d, s%d, s%d" % (S_T + 4, S_T + 4, S_ST))
            e("v_mov_b32 v%d, s%d" % (V_T1, S_T + 4))
            e("buffer_store_dword v%d, off, s[%d:%d], s%d offset:%d" % (V_T1, S_WS, S_WS + 3, S_T + 2, 40 if kind == "K" else 52))
            e("s_mov_b64 exec, -1")
        e("v_mov_b32 v%d, s%d" % (V_T1, S_T + 2))
        if kind == "K":
            load_q(S_T + 1, False)
        lds_wait(tag, V_Z, V_T0, S_T, L_DEC if kind == "K" else L_GO, "nz", S_SPIN, V_T1)
        e("s_and_b32 s%d, s%d, 7" % (S_N, S_T))
        e("s_xor_b32 s%d, s%d, s%d" % (S_N, S_N, S_NB))
        e("s_bitcmp1_b32 s%d, 3" % S_T)
        e("s_cselect_b64 vcc, -1, 0")
        e("v_cndmask_b32 v%d, v%d, v%d, vcc" % (V_TM, V_T128, V_TMX))

    def load_q(ph, track):
        e("s_lshl_b32 s%d, s%d, 5" % (S_QOFF, ph))
        e("s_add_u32 s%d, s%d, s%d" % (S_QOFF, S_QOFF, S_G))
        e("s_mul_i32 s%d, s%d, 171" % (S_QOFF, S_QOFF))
        e("s_lshr_b32 s%d, s%d, 9" % (S_QOFF, S_QOFF))
        e("s_mul_i32 s%d, s%d, %d" % (S_QOFF, S_QOFF, DH * 2))
        for c in range(3):
            r = V_RAW + 2 * c
            s = "buffer_load_dwordx2 v[%d:%d], v%d, s[%d:%d], s%d offen offset:%d" % (r, r + 1, V_J8, S_Q, S_Q + 3, S_QOFF, c * 128)
            if track:
                e.vmem(s, "p")
            else:
                e(s)

    CM = [int(c) for c in P["cm"].split("-")] if P["cm"] else []
    if CM:
        span = {0}
        for c in CM:
            span |= {x ^ c for x in span}
        assert len(CM) == 6 and span == set(range(64)) and P["am"] == 3
    P8 = [int(c, 16) for c in P["p8"]]
    assert not P8 or sorted(P8) == list(range(3, 11))

    def tile_addr(kind):
        ch, a, b = S_T, S_T + 1, S_T + 2
        if P8:
            e("s_lshr_b32 s%d, s%d, 6" % (a, S_CI))
            e("s_lshl_b32 s%d, s%d, 11" % (a, a))
            e("s_xor_b32 s%d, s%d, s%d" % (a, a, S_HB))
            e("s_lshl_b32 s%d, s%d, 5" % (ch, a))
            for sh in sorted(set(P8[2 + i] - i for i in range(6))):
                e("s_and_b32 s%d, s%d, %d" % (b, S_CI, sum(1 << i for i in range(6) if P8[2 + i] - i == sh)))
                if sh:
                    e("s_%s_b32 s%d, s%d, %d" % ("lshl" if sh > 0 else "lshr", b, b, abs(sh)))
                e("s_xor_b32 s%d, s%d, s%d" % (ch, ch, b))
            e("s_bfe_u32 s%d, s%d, 0x20008" % (a, ch))
            e("s_lshr_b32 s%d, s%d, 5" % (b, ch))
            e("s_and_b32 s%d, s%d, 4" % (b, b))
            e("s_or_b32 s%d, s%d, s%d" % (a, a, b))
            e("s_xor_b32 s%d, s%d, s%d" % (a, a, S_N))
            e("s_or_b32 s%d, s%d, s%d" % (S_XB, ch, a))
            tile_addr2(kind)
            return
        e("s_lshr_b32 s%d, s%d, 6" % (a, S_CI))
        e("s_lshl_b32 s%d, s%d, 11" % (a, a))
        if P["am"] == 1:
            e("s_mul_i32 s%d, s%d, %d" % (ch, S_G, P["ak"]))
            e("s_add_u32 s%d, s%d, s%d" % (ch, ch, S_CI))
            e("s_and_b32 s%d, s%d, 63" % (ch, ch))
        elif CM:
            e("s_mov_b32 s%d, 0" % ch)
            for i in range(2, 6):
                e("s_bitcmp1_b32 s%d, %d" % (S_CI, i))
                e("s_cselect_b32 s%d, %d, 0" % (b, CM[i]))
                e("s_xor_b32 s%d, s%d, s%d" % (ch, ch, b))
        elif P["pm"] != "012345":
            pm = [int(c) for c in P["pm"]]
            assert sorted(pm) == list(range(6))
            keep = sum(1 << i for i in range(6) if pm[i] == i)
            e("s_and_b32 s%d, s%d, %d" % (ch, S_CI, keep))
            for sh in sorted(set(pm[i] - i for i in range(6)) - {0}):
                e("s_and_b32 s%d, s%d, %d" % (b, S_CI, sum(1 << i for i in range(6) if pm[i] - i == sh)))
                e("s_%s_b32 s%d, s%d, %d" % ("lshl" if sh > 0 else "lshr", b, b, abs(sh)))
                e("s_or_b32 s%d, s%d, s%d" % (ch, ch, b))
        else:
            e("s_and_b32 s%d, s%d, 63" % (ch, S_CI))
        if P["am"] == 2:
            k = P["ak"]
            e("s_lshr_b32 s%d, s%d, 2" % (b, ch))
            e("s_lshl_b32 s%d, s%d, %d" % (b, b, 2 + k))
            e("s_and_b32 s%d, s%d, 3" % (ch, ch))
            e("s_or_b32 s%d, s%d, s%d" % (ch, ch, b))
            e("s_add_u32 s%d, s%d, s%d" % (ch, ch, a))
            e("s_and_b32 s%d, s%d, %d" % (b, S_G, (1 << k) - 1))
            e("s_lshl_b32 s%d, s%d, 2" % (b, b))
            e("s_or_b32 s%d, s%d, s%d" % (ch, ch, b))
            e("s_lshr_b32 s%d, s%d, %d" % (b, S_G, k))
            e("s_lshl_b32 s%d, s%d, %d" % (b, b, 6 + k))
            e("s_or_b32 s%d, s%d, s%d" % (ch, ch, b))
        else:
            e("s_add_u32 s%d, s%d, s%d" % (ch, ch, a))
            e("s_%s s%d, s%d, s%d" % ("xor_b32" if P["am"] == 3 else "add_u32", ch, ch, S_HB))
        e("s_bfe_u32 s%d, s%d, 0x20003" % (a, ch))
        e("s_and_b32 s%d, s%d, 4" % (b, ch))
        e("s_or_b32 s%d, s%d, s%d" % (a, a, b))
        e("s_xor_b32 s%d, s%d, s%d" % (a, a, S_N))
        if P["am"] == 2:
            e("s_xor_b32 s%d, s%d, s%d" % (b, ch, S_HB))
            e("s_bfe_u32 s%d, s%d, 0x1000a" % (S_XB, b))
            e("s_xor_b32 s%d, s%d, s%d" % (a, a, S_XB))
            e("s_bfe_u32 s%d, s%d, 0x10009" % (S_XB, b))
            e("s_lshl_b32 s%d, s%d, 2" % (S_XB, S_XB))
            e("s_xor_b32 s%d, s%d, s%d" % (a, a, S_XB))
        e("s_lshl_b32 s%d, s%d, 5" % (S_XB, ch))
        e("s_or_b32 s%d, s%d, s%d" % (S_XB, S_XB, a))
        tile_addr2(kind)

    def tile_addr2(kind):
        e("s_lshl_b32 s%d, s%d, 4" % (S_XB, S_XB))
        e("s_or_b32 s%d, s%d, 1" % (S_XB, S_XB))
        if AB:
            assert not P["ut"] and not P8
            c1 = CM[1] if CM else 1 << int(P["pm"][1])
            flip = ((c1 << 5) | ((c1 >> 3) & 3) | (c1 & 4)) << 4
            h, ho, hm = S_T, S_T + 1, S_T + 2
            e("s_bitcmp1_b32 s%d, 1" % S_CI)
            e("s_cselect_b32 s%d, 0x%x, 0" % (h, flip))
            e("s_xor_b32 s%d, s%d, s%d" % (S_XB, S_XB, h))
            e("s_lshr_b32 s%d, s%d, 1" % (h, S_CI))
            e("s_xor_b32 s%d, s%d, s%d" % (h, h, S_CI))
            e("s_bitcmp1_b32 s%d, 1" % h)
            e("s_cselect_b32 s%d, %d, 0" % (ho, 3 * ROWB))
            e("s_cselect_b64 s[%d:%d], 0, -1" % (hm, hm + 1))
            if kind == "V":
                e("s_cselect_b32 s%d, 12, 0" % h)
                e("s_andn2_b32 s%d, s%d, 2" % (S_LB, S_CI))
                e("s_lshl_b32 s%d, s%d, 7" % (S_LB, S_LB))
                e("s_add_u32 s%d, s%d, s%d" % (S_LB, S_LB, h))
            for x, (vo, v6, po) in enumerate(((V_OFF, V_OFF6, V_PO), (V_OFFB, V_OFF6B, V_PO2))):
                if x:
                    e("s_xor_b32 s%d, s%d, 0x%x" % (S_XB, S_XB, flip))
                e("v_xor_b32 v%d, s%d, v%d" % (V_T0, S_XB, V_TM))
                e("v_mul_hi_u32 v%d, v%d, s%d" % (V_T0, V_T0, S_MAGIC))
                e("v_lshrrev_b32 v%d, 1, v%d" % (V_T0, V_T0))
                e("v_and_b32 v%d, 15, v%d" % (V_T1, V_T0))
                e("v_cmp_eq_u32 vcc, 5, v%d" % V_T1)
                e("v_mad_u32_u24 v%d, v%d, s%d, v%d" % (vo, V_T0, S_768, V_J16))
                e("s_or_b64 vcc, vcc, s[%d:%d]" % (hm, hm + 1))
                e("v_add_u32 v%d, s%d, v%d" % (vo, ho, vo))
                e("v_add_u32 v%d, %d, v%d" % (V_T1, 2 * ROWB, vo))
                e("v_cndmask_b32 v%d, v%d, v%d, vcc" % (v6, V_BIG, V_T1))
                if kind == "K":
                    e("v_lshrrev_b32 v%d, 6, v%d" % (V_T0, V_T0))
                    e("v_mad_u32_u24 v%d, v%d, s%d, v%d" % (po, V_T0, S_384, V_J8))
            if kind == "V":
                e("v_add_u32 v%d, s%d, v%d" % (V_T0, S_LB, V_PB0))
            return
        if kind == "V":
            e("s_lshl_b32 s%d, s%d, 7" % (S_LB, S_CI))
            if P["ut"]:
                e("s_cmp_ge_u32 s%d, %d" % (S_I, NT - P["ut"]))
                e("s_cselect_b64 vcc, -1, 0")
                e("v_cndmask_b32 v%d, v%d, v%d, vcc" % (V_TM, V_TM, V_TMX))
        e("v_xor_b32 v%d, s%d, v%d" % (V_T0, S_XB, V_TM))
        e("v_mul_hi_u32 v%d, v%d, s%d" % (V_T0, V_T0, S_MAGIC))
        e("v_lshrrev_b32 v%d, 1, v%d" % (V_T0, V_T0))
        e("v_and_b32 v%d, 15, v%d" % (V_T1, V_T0))
        e("v_cmp_eq_u32 vcc, 5, v%d" % V_T1)
        e("v_mad_u32_u24 v%d, v%d, s%d, v%d" % (V_OFF, V_T0, S_768, V_J16))
        if SK:
            e("v_cmp_eq_u32 s[%d:%d], 11, v%d" % (S_MP_, S_MP_ + 1, V_T1))
            e("v_cmp_ne_u32 s[%d:%d], 11, v%d" % (S_MP_ + 4, S_MP_ + 5, V_T1))
            e("v_cmp_eq_u32 s[%d:%d], 5, v%d" % (S_MN, S_MN + 1, V_T1))
            e("v_cmp_ne_u32 s[%d:%d], 5, v%d" % (S_MN + 4, S_MN + 5, V_T1))
        if RT:
            for k in range(3):
                e("s_or_b64 s[%d:%d], vcc, s[%d:%d]" % (S_T + 2 * k, S_T + 2 * k + 1, S_RM + 2 * k, S_RM + 2 * k + 1))
                e("v_add_u32 v%d, s%d, v%d" % (V_RE + k, S_RO + k, V_OFF))
            for k in range(3):
                e("v_cndmask_b32 v%d, v%d, v%d, s[%d:%d]" % (V_RD + k, V_BIG, V_RE + k, S_T + 2 * k, S_T + 2 * k + 1))
        else:
            e("v_add_u32 v%d, %d, v%d" % (V_T1, 5 * ROWB, V_OFF))
            e("v_cndmask_b32 v%d, v%d, v%d, vcc" % (V_OFF6, V_BIG, V_T1))
        if kind == "K":
            e("v_lshrrev_b32 v%d, 6, v%d" % (V_T0, V_T0))
            e("v_mad_u32_u24 v%d, v%d, s%d, v%d" % (V_PO, V_T0, S_384, V_J8))
        else:
            e("v_add_u32 v%d, s%d, v%d" % (V_T0, S_LB, V_PB0))

    def issue_params(kind):
        if kind == "K":
            if P["xkp"] & 2:
                return
            if P["xkp"] & 1024:
                e("s_cmp_lt_u32 s%d, 16" % S_I)
                e("s_cselect_b64 exec, -1, 0")
            for c in range(3):
                r = V_RAW + 6 + 2 * c
                e.vmem("buffer_load_dwordx2 v[%d:%d], v%d, s[%d:%d], 0 offen offset:%d%s" %
                       (r, r + 1, V_PO, S_KS, S_KS + 3, c * 128, " nt" if P["bnt"] & 4 else ""), "p")
            for c in range(3 if AB else 0):
                r = V_RAW2 + 2 * c
                e.vmem("buffer_load_dwordx2 v[%d:%d], v%d, s[%d:%d], 0 offen offset:%d" %
                       (r, r + 1, V_PO2, S_KS, S_KS + 3, c * 128), "p")
            if P["xkp"] & 1024:
                e("s_mov_b64 exec, -1")
            if P["xb"] & 2:
                for c in range(3):
                    r = NVGPR + 2 + 2 * c
                    e.vmem("buffer_load_dwordx2 v[%d:%d], v%d, s[%d:%d], 0 offen offset:%d" % (r, r + 1, V_PO, 76, 79, c * 128), "p")
        else:
            e("ds_read_b32 v%d, v%d" % (V_PVN, V_T0))

    def issue_group(k, kind, pol=pol, form="s"):
        srdb = S_K if kind == "K" else S_V
        masked = False
        for l, mk in slots(k, form) + [(None, None)]:
            if mk is not None:
                e("s_mov_b64 exec, s[%d:%d]" % (mk, mk + 1))
            elif masked:
                e("s_mov_b64 exec, -1")
            masked = mk is not None
            if l is None:
                break
            r = V_RING + l * 4
            if AB:
                q, c = l // 3, l % 3
                if q < 4:
                    vo, off = (V_OFF, V_OFFB)[q & 1], (q >> 1) * ROWB + c * 256
                else:
                    vo, off = (V_OFF6, V_OFF6B)[q & 1], c * 256
            elif RT:
                vo, off = (V_RD if l % 6 >= 3 else V_RE) + l // 6, l % 6 * 256
            elif l < 15:
                vo, off = V_OFF, l * 256
            else:
                vo, off = V_OFF6, (l - 15) * 256
            e.vmem("buffer_load_dwordx4 v[%d:%d], v%d, s[%d:%d], 0 offen offset:%d%s" %
                   (r, r + 3, vo, srdb, srdb + 3, off, pol), "g%d%s" % (k - (form == "late"), "m" if masked else ""))

    def compute_w():
        e.wait_tag("p")
        for p in range(6):
            rq = V_RAW + p; rs = V_RAW + 6 + p
            i0 = 2 * p
            e("v_lshlrev_b32 v%d, 16, v%d" % (V_T0, rq))
            e("v_lshlrev_b32 v%d, 16, v%d" % (V_W + i0, rs))
            e("v_and_b32 v%d, 0xffff0000, v%d" % (V_T1, rq))
            e("v_and_b32 v%d, 0xffff0000, v%d" % (V_W + i0 + 1, rs))
            e("v_mul_f32 v%d, v%d, v%d" % (V_W + i0, V_W + i0, V_T0))
            e("v_mul_f32 v%d, v%d, v%d" % (V_W + i0 + 1, V_W + i0 + 1, V_T1))
            if AB:
                rs = V_RAW2 + p
                e("v_lshlrev_b32 v%d, 16, v%d" % (V_W2 + i0, rs))
                e("v_and_b32 v%d, 0xffff0000, v%d" % (V_W2 + i0 + 1, rs))
                e("v_mul_f32 v%d, v%d, v%d" % (V_W2 + i0, V_W2 + i0, V_T0))
                e("v_mul_f32 v%d, v%d, v%d" % (V_W2 + i0 + 1, V_W2 + i0 + 1, V_T1))

    def advance(kind, to_v, tag):
        nkind = "V" if to_v else kind
        if to_v:
            e("s_mov_b32 s%d, s%d" % (S_CI, S_WAVE))
            e("s_mov_b32 s%d, 0" % S_I)
            get_table("V", "tv")
            ev = (1 << 16) | (1 << 32)
            if P["at"] and not BC:
                ev |= (1 << P["tc"]) | (1 << (P["tc"] + P["tg"])) | (1 << P["te"])
            e("s_mov_b32 s%d, %d" % (S_TD, NT - P["td"] if P["td"] else 255))
            if P["tt"]:
                e("s_mov_b32 s%d, 255" % S_TT)
            set_masks(ev, CPV)
        else:
            e("s_add_u32 s%d, s%d, %d" % (S_CI, S_CI, NW))
            e("s_add_u32 s%d, s%d, 1" % (S_I, S_I))
            if tag:
                e("s_bitcmp1_b64 s[%d:%d], s%d" % (S_EV, S_EV + 1, S_I))
                sfx = tag if isinstance(tag, str) else ""
                e("s_cbranch_scc1 L_ev%s%s" % (kind, sfx))
                e.flush()
                e.label("L_evret%s%s" % (kind, sfx))
        if P["stamp"] == 4:
            e("s_memrealtime s[%d:%d]" % (S_DBG, S_DBG + 1))
            e("s_add_u32 s%d, s%d, 4" % (S_DBG + 2, S_DBG + 2))
            e("s_waitcnt lgkmcnt(0)")
            e("v_mov_b32 v%d, s%d" % (V_T2, S_DBG))
            e("s_mov_b64 exec, 1")
            e("buffer_store_dword v%d, off, s[%d:%d], s%d" % (V_T2, S_WS, S_WS + 3, S_DBG + 2))
            e("s_mov_b64 exec, -1")
        if P["stamp"] == 5:
            e("s_memrealtime s[%d:%d]" % (S_DBG, S_DBG + 1))
            e("s_add_u32 m0, m0, 1")
            e("s_waitcnt lgkmcnt(0)")
            e("v_writelane_b32 v%d, s%d, m0" % (NVGPR + (1 if kind == "V" else 0), S_DBG))
            if to_v:
                e("s_mov_b32 m0, -1")
        tile_addr(nkind)
        issue_params(nkind)

    def compute(k, kind, form="c"):
        for l, _ in slots(k, form):
            q, c = l // 3, l % 3
            base = V_RING + l * 4
            for r in range(4):
                e("v_cvt_f32_i32 v%d, v%d" % (base + r, base + r))
            if kind == "K":
                s = V_S + q
                w = V_W2 if AB and q & 1 else V_W
                for r in range(4):
                    if c == 0 and r == 0:
                        e("v_mul_f32 v%d, v%d, v%d" % (s, base, w))
                    else:
                        e("v_fmac_f32 v%d, v%d, v%d" % (s, base + r, w + 4 * c + r))
                if c == 2:
                    e.defer(["v_add_f32_dpp v%d, v%d, v%d row_ror:%d row_mask:0xf bank_mask:0xf" % (s, s, s, kk)
                             for kk in (8, 4, 2)] +
                            ["v_add_f32_dpp v%d, v%d, v%d row_ror:1 row_mask:0xf bank_mask:0x%x" %
                             (V_D + (q & 1), s, s, 1 << (q >> 1))])
            else:
                for r in range(4):
                    e("v_fmac_f32_dpp v%d, v%d, v%d row_newbcast:%d row_mask:0xf bank_mask:0xf" %
                      (V_ACC + 4 * c + r, V_PV, base + r, q))
        e.flush()

    EFS = []

    def finish(kind, to_v):
        if kind == "K":
            e("s_mov_b64 exec, s[%d:%d]" % (S_STM, S_STM + 1))
            if AB:
                e("ds_write2_b32 v%d, v%d, v%d offset1:6" % (V_LB0, V_D, V_D + 1))
            else:
                e("ds_write_b64 v%d, v[%d:%d]" % (V_LB0, V_D, V_D + 1))
            e("s_mov_b64 exec, -1")
            if not to_v:
                if P["ef"]:
                    tag = "L_ef%d" % len(EFS)
                    EFS.append(tag)
                    e("s_and_b32 s%d, s%d, 15" % (S_T, S_I))
                    e("s_cbranch_scc0 %s" % tag)
                    e.lines.append(tag + "r:")
                if AB:
                    e("v_add_u32 v%d, s%d, v%d" % (V_LB0, S_INC, V_LB0))
                    e("s_sub_u32 s%d, 96, s%d" % (S_INC, S_INC))
                else:
                    e("v_add_u32 v%d, 48, v%d" % (V_LB0, V_LB0))
                compute_w()
        if kind == "V" or to_v:
            e("s_waitcnt lgkmcnt(0)")
            e("v_mov_b32 v%d, v%d" % (V_PV, V_PVN))

    ELS = []

    def elect(k, kind, lo=0):
        if P["fc"] == 4 and kind == "V" and k == max(P["elk"], lo):
            tag = "L_el%d" % len(ELS)
            ELS.append(tag)
            e("s_cmp_eq_u32 s%d, %d" % (S_I, NT))
            e("s_cbranch_scc1 %s" % tag)
            e.lines.append(tag + "r:")

    def body(kind, to_v=False, first=False):
        nkind = "V" if to_v else kind
        for k in range(NG):
            ov = OV[k] if not first else 0
            if ov:
                i = e.vm.index("g%d" % k) + GR[k] - ov
                e("s_waitcnt vmcnt(%d)" % (len(e.vm) - i))
                e.vm = e.vm[i:]
            else:
                e.wait_tag("g%d" % k)
            if PS and not first and (P["pn"] >> k) & 1:
                pair_sync((k + 1) % NG + (256 if (kind, nkind)[k == NG - 1] == "V" else 0))
            if k + 1 < NG:
                if not first:
                    issue_group(k + 1, kind)
            else:
                issue_group(0, nkind)
            if ov:
                e("s_waitcnt vmcnt(%d)" % (len(e.vm) - ov))
                e.vm = e.vm[ov:]
            if k == NG - 2:
                advance(kind, to_v, not first)
            elect(k, kind, NG - 2)
            compute(k, kind)
        finish(kind, to_v)

    DKV = {}

    def body_deep(mode):
        if mode == 3:
            advance("V", False, False)
        for k in range(NG):
            i = e.vm.index("g%d" % k) + len(slots(k, "d"))
            e("s_waitcnt vmcnt(%d)" % (len(e.vm) - i))
            e.vm = e.vm[i:]
            if P["tt"] and k < 2:
                e.lines.append("L_dk%d:" % k)
                DKV[k] = list(e.vm)
            if mode == 2:
                issue_group((k + 2) % NG, "V")
                if k == NG - 3:
                    advance("V", False, False)
            elect(k, "V")
            compute(k, "V", "d")
            if mode == 3:
                issue_group(k, "V", "" if P["xkp"] & 256 else pol, "d")
        finish("V", False)

    def body_boost(kind):
        if PS:
            publish(4 + (256 if kind == "V" else 0))
        if SK:
            issue_group(1, kind, form="late")
        for k in range(1, NG):
            issue_group(k, kind, form="d")
        e("s_sub_u32 s%d, s%d, 1" % (S_BO, S_BO))
        if P["stamp"] == 5:
            e("s_add_u32 s%d, s%d, 256" % (S_NBO, S_NBO))
        advance(kind, False, "B")
        for k in range(NG):
            e.wait_tag("g%d" % k)
            if k == NG - 1 and not P["be"]:
                issue_group(0, kind)
            elect(k, kind)
            compute(k, kind, "d")
            if k == 0 and P["be"]:
                issue_group(0, kind)
        finish(kind, False)

    def lds_inc(off, vz, vt):
        e("v_mov_b32 v%d, 1" % vt)
        e("s_mov_b64 exec, 1")
        e("ds_add_u32 v%d, v%d offset:%d" % (vz, vt, off))
        e("s_mov_b64 exec, -1")

    if P["prio"]:
        e("s_setprio %d" % P["prio"])
    e("v_lshrrev_b32 v%d, 4, v%d" % (V_T, V_T1))
    e("v_and_b32 v%d, 15, v%d" % (V_T2, V_T1))
    e("v_lshlrev_b32 v%d, 4, v%d" % (V_J16, V_T2))
    e("v_lshlrev_b32 v%d, 3, v%d" % (V_J8, V_T2))
    e("v_lshlrev_b32 v%d, 7, v%d" % (V_T128, V_T))
    if P8 and P8[:2] != [3, 4]:
        dr = [((1 << p) ^ {7: 4, 8: 1, 9: 2}.get(p, 0)) << 4 for p in P8[:2]]
        e("v_and_b32 v%d, 1, v%d" % (V_T0, V_T))
        e("v_mul_u32_u24 v%d, 0x%x, v%d" % (V_T128, dr[0], V_T0))
        e("v_lshrrev_b32 v%d, 1, v%d" % (V_T0, V_T))
        e("v_mul_u32_u24 v%d, 0x%x, v%d" % (V_T0, dr[1], V_T0))
        e("v_xor_b32 v%d, v%d, v%d" % (V_T128, V_T128, V_T0))
    e("v_and_b32 v%d, 0x70, v0" % V_TMX)
    e("v_xor_b32 v%d, v%d, v%d" % (V_TMX, V_TMX, V_T128))
    e("v_mov_b32 v%d, v%d" % (V_TM, V_TMX))
    if P["h4"]:
        e("v_and_b32 v%d, 0x%x, v%d" % (V_T128, 0xffffff8f | (P["h4"] << 4), V_TMX))
    e("s_mov_b32 s%d, %d" % (S_768, ROWB))
    e("s_mov_b32 s%d, %d" % (S_384, DH * 2))
    e("s_mov_b32 s%d, 0xaaaaaaab" % S_MAGIC)
    e("v_mov_b32 v%d, 0xc0000000" % V_BIG)
    e("s_lshl_b32 s%d, s%d, 6" % (S_HB, S_G))
    if P["am"] == 3:
        for i, c in enumerate(P["xm"].split("-")):
            if int(c):
                e("s_bitcmp1_b32 s%d, %d" % (S_G, i))
                e("s_cselect_b32 s%d, %d, 0" % (S_T, int(c)))
                e("s_xor_b32 s%d, s%d, s%d" % (S_HB, S_HB, S_T))
    for i in range(2 if CM else 0):
        e("s_bitcmp1_b32 s%d, %d" % (S_WAVE, i))
        e("s_cselect_b32 s%d, %d, 0" % (S_T, CM[i]))
        e("s_xor_b32 s%d, s%d, s%d" % (S_HB, S_HB, S_T))
    e("s_mov_b32 s%d, s%d" % (S_N, S_NB))
    if P["hg"]:
        e("v_mov_b32 v%d, v%d" % (V_TM, V_T128))
        e("s_lshl_b32 s%d, s%d, 1" % (S_T, S_G))
        e("s_and_b32 s%d, s%d, 2" % (S_T, S_T))
        e("s_xor_b32 s%d, s%d, s%d" % (S_N, S_N, S_T))
    if RT:
        e("s_mov_b32 s%d, s%d" % (S_RR, S_WAVE if RT & 1 else S_G))
        if RT == 3:
            e("s_add_u32 s%d, s%d, s%d" % (S_RR, S_RR, S_G))
        e("s_mul_i32 s%d, s%d, 171" % (S_T, S_RR))
        e("s_lshr_b32 s%d, s%d, 9" % (S_T, S_T))
        e("s_mul_i32 s%d, s%d, 3" % (S_T, S_T))
        e("s_sub_u32 s%d, s%d, s%d" % (S_RR, S_RR, S_T))
        for k in range(3):
            e("s_add_u32 s%d, s%d, %d" % (S_T, S_RR, k))
            e("s_sub_u32 s%d, s%d, 3" % (S_T + 1, S_T))
            e("s_cselect_b32 s%d, s%d, s%d" % (S_T, S_T, S_T + 1))
            e("s_mul_i32 s%d, s%d, %d" % (S_RO + k, S_T, 2 * ROWB))
            e("s_cmp_eq_u32 s%d, 2" % S_T)
            e("s_cselect_b64 s[%d:%d], 0, -1" % (S_RM + 2 * k, S_RM + 2 * k + 1))
    e("s_mov_b32 s%d, s%d" % (S_CI, S_WAVE))
    tile_addr("K")
    SS = P["ss"]
    EB = P["eb"]
    if SS:
        e("s_memrealtime s[84:85]")
    if EB == 3:
        e("s_barrier")
    e("s_waitcnt lgkmcnt(0)")
    if SS:
        e("s_memrealtime s[86:87]")
    if EB == 2:
        e("s_barrier")
    if EB == 4:
        e("s_cmp_ge_u32 s%d, %d" % (S_WAVE, NW))
        e("s_barrier")
        e("s_cbranch_scc1 L_helper")
    e("s_mov_b32 s%d, 0" % S_I)
    if P["xb"] & 2:
        srd(76, 72, H * NGRP * DH * 2)
    if P["pfi"]:
        srd(S_Q, 64, H * DH * 2)
        load_q(S_I, True)
        srd(S_KS, 70, H * NGRP * DH * 2)
        issue_params("K")
    srd(S_K, 66, H * HEADB)
    issue_group(0, "K")
    if EB == 1:
        e("s_barrier")
    if not P["pfi"]:
        srd(S_Q, 64, H * DH * 2)
        load_q(S_I, True)
        srd(S_KS, 70, H * NGRP * DH * 2)
        issue_params("K")
    if P["ds"]:
        for k in range(1, NG):
            issue_group(k, "K")
    if SS:
        e("s_memrealtime s[88:89]")
    srd(S_V, 68, H * HEADB)
    if P["stamp"] == 6:
        srd(S_WS, 80, 256)
    elif P["stamp"]:
        srd(S_WS, 82, 0x8000000)
    if P["stamp"] == 5:
        e("s_mov_b32 m0, -1")
    if P["stamp"] in (4, 5):
        e("s_mul_i32 s%d, s2, %d" % (S_DBG + 2, NW))
        e("s_add_u32 s%d, s%d, s%d" % (S_DBG + 2, S_DBG + 2, S_WAVE))
        e("s_lshl_b32 s%d, s%d, 9" % (S_DBG + 2, S_DBG + 2))
        e("s_add_u32 s%d, s%d, 0x4010000" % (S_DBG + 2, S_DBG + 2))
    if PS:
        e("v_lshrrev_b32 v%d, 6, v0" % V_PSW)
        e("v_lshlrev_b32 v%d, 2, v%d" % (V_PSW, V_PSW))
        e("v_xor_b32 v%d, %d, v%d" % (V_PSR, 8 if PS == 1 else 4, V_PSW))
    e("v_lshlrev_b32 v%d, 5, v%d" % (V_T1, V_T))
    e("v_bfe_u32 v%d, v0, 4, 3" % V_LB0)
    e("v_mul_u32_u24 v%d, s%d, v%d" % (V_LB0, S_768, V_LB0))
    if RT:
        e("s_lshl_b32 s%d, s%d, 2" % (S_T, S_RR))
        e("v_add_u32 v%d, s%d, v%d" % (V_PB0, S_T, V_T2))
        e("v_subrev_u32 v%d, 12, v%d" % (V_DO, V_PB0))
        e("v_min_u32 v%d, v%d, v%d" % (V_PB0, V_PB0, V_DO))
        e("v_lshl_add_u32 v%d, v%d, 1, v%d" % (V_LB0, V_PB0, V_LB0))
    else:
        e("v_lshl_add_u32 v%d, v%d, %d, v%d" % (V_LB0, V_T2, 0 if AB else 1, V_LB0))
    e("s_lshr_b32 s%d, s%d, 1" % (S_T, S_WAVE))
    e("s_mul_i32 s%d, s%d, 24" % (S_T, S_T))
    if AB:
        e("s_sub_u32 s%d, 60, s%d" % (S_INC, S_T))
        e("s_lshr_b32 s%d, s%d, 1" % (S_T, S_T))
    e("s_add_u32 s%d, s%d, %d" % (S_T, S_T, L_LG))
    e("v_add_u32 v%d, s%d, v%d" % (V_LB0, S_T, V_LB0))
    if AB:
        e("v_and_b32 v%d, 1, v%d" % (V_PB0, V_T2))
        e("v_lshl_add_u32 v%d, v%d, 8, v%d" % (V_T1, V_PB0, V_T1))
        e("v_bfe_u32 v%d, v%d, 1, 2" % (V_PB0, V_T2))
    else:
        e("v_and_b32 v%d, 7, v%d" % (V_PB0, V_T2))
    if RT:
        e("s_lshl_b32 s%d, s%d, 1" % (S_T, S_RR))
        e("v_add_u32 v%d, s%d, v%d" % (V_PB0, S_T, V_PB0))
        e("v_subrev_u32 v%d, 6, v%d" % (V_DO, V_PB0))
        e("v_min_u32 v%d, v%d, v%d" % (V_PB0, V_PB0, V_DO))
    e("v_lshl_add_u32 v%d, v%d, 2, v%d" % (V_PB0, V_PB0, V_T1))
    e("v_add_u32 v%d, %d, v%d" % (V_PB0, L_PV, V_PB0))
    e("v_lshlrev_b32 v%d, 2, v%d" % (V_DO, V_T))
    e("v_add_u32 v%d, v%d, v%d" % (V_DO, V_J16, V_DO))
    e("s_mul_i32 s%d, s%d, %d" % (S_T, S_WAVE, ROWB))
    e("s_add_u32 s%d, s%d, %d" % (S_T, S_T, L_ACC))
    e("v_add_u32 v%d, s%d, v%d" % (V_DO, S_T, V_DO))
    e("v_mov_b32 v%d, 0" % V_Z)
    e("v_mov_b32 v%d, 0" % V_D)
    e("v_mov_b32 v%d, 0" % (V_D + 1))
    e("s_mov_b32 s%d, 0x01110111" % S_STM)
    e("s_mov_b32 s%d, 0x01110111" % (S_STM + 1))
    ev = (1 << TRG1) | (1 << N0) | (3 << 16) | (3 << 32) | (((1 << TA) | (1 << TB)) * 0x100010001)
    set_masks(ev, CPK)
    if BC:
        e("s_mov_b32 s%d, %d" % (S_BO, P["ib"] & 15))
        e("s_mov_b32 s%d, 0" % S_NBO)
        e("s_mov_b32 s%d, 0" % S_LDC)
        e("s_mov_b32 s%d, %d" % (S_CPA, L_TM))
    for i in range(12):
        e("v_mov_b32 v%d, 0" % (V_ACC + i))
    if SS:
        e("s_memrealtime s[90:91]")
    if not EB:
        e("s_barrier")
    if SS:
        e("s_memrealtime s[92:93]")
        e("s_waitcnt vmcnt(23)")
        e("s_memrealtime s[94:95]")
        e("s_waitcnt vmcnt(18)")
        e("s_memrealtime s[96:97]")
    compute_w()
    if SS:
        e("s_memrealtime s[98:99]")
        e("s_waitcnt lgkmcnt(0)")
        for k in range(8):
            e("v_writelane_b32 v%d, s%d, %d" % (NVGPR + 1, 84 + 2 * k, 48 + k))
    steady = ["g0" if mk is None else "g0m" for l, mk in slots(0, "s")]
    if P["fb"]:
        advance("K", False, False)
        for k in range(NG):
            if "g%d" % k in e.vm:
                i = e.vm.index("g%d" % k) + GR[k]
                e("s_waitcnt vmcnt(%d)" % (len(e.vm) - i))
                e.vm = e.vm[i:]
            compute(k, "K")
            if k == P["fb"] - 1:
                issue_group(0, "K")
        finish("K", False)
        assert e.vm == steady, (e.vm, steady)
    elif P["ds"]:
        body("K", first=True)
    if P["ib"] & 16:
        e("s_branch L_kchk")
    e.vm = list(steady)
    e.lines.append(".p2align 6")
    e.label("L_kloop")
    body("K")
    assert e.vm == steady, (e.vm, steady)
    if BC:
        e.label("L_kchk")
        e("s_cmp_lg_u32 s%d, 0" % S_BO)
        e("s_cbranch_scc1 L_kboost")
        e.label("L_kchk2")
    e("s_cmp_lg_u32 s%d, %d" % (S_I, NT - 1))
    e("s_cbranch_scc1 L_kloop")
    body("K", True)
    lds_inc(L_CF + 8, V_Z, V_T1)
    if P["stamp"] == 1:
        e("s_memrealtime s[%d:%d]" % (S_DBG, S_DBG + 1))
    e.lines.append(".p2align 6")
    e.label("L_vloop")
    body("V")
    assert e.vm == steady, (e.vm, steady)
    if BC:
        e.label("L_vchk")
    if P["td"] or P["at"]:
        e("s_cmp_eq_u32 s%d, s%d" % (S_I, S_TD))
        e("s_cbranch_scc1 %s" % ("L_tail0" if P["tt"] else "L_deep"))
    if BC:
        e("s_cmp_lg_u32 s%d, 0" % S_BO)
        e("s_cbranch_scc1 L_vboost")
    e("s_and_b32 s%d, s%d, 15" % (S_T, S_I))
    e("s_cbranch_scc1 L_vloop")
    e.label("L_vend")
    for c in range(3):
        a = V_ACC + 4 * c
        e("v_permlane32_swap_b32 v%d, v%d" % (a, a + 2))
        e("v_permlane32_swap_b32 v%d, v%d" % (a + 1, a + 3))
    for c in range(3):
        a = V_ACC + 4 * c
        e("v_add_f32 v%d, v%d, v%d" % (a, a, a + 2))
        e("v_add_f32 v%d, v%d, v%d" % (a + 1, a + 1, a + 3))
    for c in range(3):
        a = V_ACC + 4 * c
        e("v_permlane16_swap_b32 v%d, v%d" % (a, a + 1))
    e("s_lshr_b32 s%d, s%d, 2" % (S_T, S_I))
    e("v_mov_b32 v%d, s%d" % (V_T0, S_T))
    for c in range(3):
        a = V_ACC + 4 * c
        e("v_add_f32 v%d, v%d, v%d" % (a, a, a + 1))
        e("ds_write_b32 v%d, v%d offset:%d" % (V_DO, a, c * 256))
    lds_inc(L_CA - 4, V_T0, V_T1)
    e("v_add_u32 v%d, %d, v%d" % (V_DO, NW * ROWB, V_DO))
    for i in range(12):
        e("v_mov_b32 v%d, 0" % (V_ACC + i))
    if BC:
        e("s_cmp_lg_u32 s%d, 0" % S_BO)
        e("s_cbranch_scc1 L_vboost2")
        e.label("L_vend2")
    e("s_cmp_lg_u32 s%d, %d" % (S_I, NT))
    e("s_cbranch_scc1 L_vloop")
    if P["stamp"] == 5 and BC:
        e("s_or_b32 s%d, s%d, s%d" % (S_LDC, S_LDC, S_NBO))
    if P["stamp"] == 6:
        e("s_memrealtime s[%d:%d]" % (S_T + 2, S_T + 3))
        e("s_not_b32 s%d, s%d" % (S_T, S_ST))
        e("v_mov_b32 v%d, s%d" % (V_ACC, S_T))
        e("s_waitcnt lgkmcnt(0)")
        e("v_mov_b32 v%d, s%d" % (V_ACC + 1, S_T + 2))
        e("s_mov_b64 exec, 1")
        e("s_cmp_lg_u32 s%d, 0" % S_WAVE)
        e("s_cbranch_scc1 L_exit1")
        e("buffer_atomic_umax v%d, off, s[%d:%d], 0 offset:32" % (V_ACC, S_WS, S_WS + 3))
        e("buffer_atomic_umax v%d, off, s[%d:%d], 0 offset:36" % (V_ACC + 1, S_WS, S_WS + 3))
    elif P["stamp"]:
        e("s_memrealtime s[%d:%d]" % (S_T + 2, S_T + 3))
        e("s_getreg_b32 s%d, hwreg(HW_REG_XCC_ID)" % (S_T + 4))
        e("s_waitcnt lgkmcnt(0)")
        e("v_mov_b32 v%d, s%d" % (V_ACC + 0, S_ST))
        e("v_mov_b32 v%d, s%d" % (V_ACC + 1, S_T + 2))
        e("v_mov_b32 v%d, s%d" % (V_ACC + 2, S_T + 4))
        e("v_mov_b32 v%d, s%d" % (V_ACC + 3, S_LDC if P["stamp"] == 5 else S_DBG))
        e("s_mul_i32 s%d, s2, %d" % (S_T, NW))
        e("s_add_u32 s%d, s%d, s%d" % (S_T, S_T, S_WAVE))
        e("s_lshl_b32 s%d, s%d, 4" % (S_T, S_T))
        e("s_add_u32 s%d, s%d, 0x4000000" % (S_T, S_T))
        e("buffer_store_dwordx4 v[%d:%d], v%d, s[%d:%d], s%d offen" % (V_ACC, V_ACC + 3, V_Z, S_WS, S_WS + 3, S_T))
        if P["stamp"] == 5:
            e("v_and_b32 v%d, 63, v0" % V_T0)
            e("v_lshlrev_b32 v%d, 2, v%d" % (V_T0, V_T0))
            e("s_mov_b32 exec_hi, 0xffff")
            e("buffer_store_dword v%d, v%d, s[%d:%d], s%d offen offset:4" % (NVGPR, V_T0, S_WS, S_WS + 3, S_DBG + 2))
            e("s_mov_b32 exec_hi, -1")
            e("buffer_store_dword v%d, v%d, s[%d:%d], s%d offen offset:196" % (NVGPR + 1, V_T0, S_WS, S_WS + 3, S_DBG + 2))
    e.lines.append("L_exit1:")
    e("s_endpgm")

    if P["td"] or P["at"]:
        e.label("L_deep")
        e.vm = list(steady)
        if PS:
            publish(0, 0x7fffffff)
        if SK:
            issue_group(1, "V", form="late")
            e.vm = ["g0"] * len(slots(0, "d"))
        for k in range(1, P["tdm"] if NG == 3 else NG):
            issue_group(k, "V", form="d")
        deep = list(e.vm)
        e.lines.append(".p2align 6")
        e.label("L_dloop")
        body_deep(P["tdm"])
        assert e.vm == deep, (e.vm, deep)
        e("s_cmp_lg_u32 s%d, %d" % (S_I, NT))
        e("s_cbranch_scc1 L_dloop")
        e("s_branch L_vend")
        if P["tt"]:
            assert P["tdm"] == 3 and NG == 3 and BC

            def tcheck(k, dst):
                e("s_waitcnt lgkmcnt(0)")
                e("s_sub_u32 s%d, s%d, s%d" % (S_TW, S_TW, S_TH))
                e("s_add_u32 s%d, s%d, %d" % (S_TH, S_TH, P["d3"]))
                if P["stamp"] == 5:
                    e("s_add_u32 s%d, s%d, 1" % (S_LDC, S_LDC))
                e("s_cmp_ge_i32 s%d, 0" % S_TW)
                e("s_cbranch_scc1 %s" % dst)
            e.label("L_tail0")
            e("s_cmp_lg_u32 s%d, 0" % S_TT)
            e("s_cbranch_scc1 L_deep")
            e.lines.append(".p2align 6")
            e.label("L_tail")
            e.vm = list(steady)
            e("s_memrealtime s[%d:%d]" % (S_TW, S_TW + 1))
            tcheck(0, "L_deep")
            e.wait_tag("g0")
            e("s_memrealtime s[%d:%d]" % (S_TW, S_TW + 1))
            issue_group(1, "V")
            tcheck(1, "L_dB")
            vb = list(e.vm)
            compute(0, "V")
            e.wait_tag("g1")
            e("s_memrealtime s[%d:%d]" % (S_TW, S_TW + 1))
            issue_group(2, "V")
            advance("V", False, False)
            tcheck(2, "L_dC")
            vc = list(e.vm)
            elect(1, "V", 1)
            compute(1, "V")
            e.wait_tag("g2")
            issue_group(0, "V")
            elect(2, "V", 1)
            compute(2, "V")
            finish("V", False)
            assert e.vm == steady
            e("s_cmp_lg_u32 s%d, %d" % (S_I, NT))
            e("s_cbranch_scc1 L_tail")
            e("s_branch L_vend")
            e.label("L_dB")
            e.vm = vb
            issue_group(2, "V")
            advance("V", False, False)
            assert e.vm == DKV[0]
            e("s_branch L_dk0")
            e.label("L_dC")
            e.vm = vc
            issue_group(0, "V")
            assert e.vm == DKV[1]
            e("s_branch L_dk1")

    if BC:
        e.label("L_kboost")
        e("s_cmp_eq_u32 s%d, %d" % (S_I, NT - 1))
        e("s_cbranch_scc1 L_kchk2")
        e.vm = list(steady)
        body_boost("K")
        assert e.vm == steady, (e.vm, steady)
        e("s_branch L_kchk")
        e.label("L_vboost")
        e("s_and_b32 s%d, s%d, 15" % (S_T, S_I))
        e("s_cbranch_scc0 L_vend")
        e.label("L_vboost2")
        e("s_cmp_eq_u32 s%d, %d" % (S_I, NT))
        e("s_cbranch_scc1 L_vend2")
        body_boost("V")
        assert e.vm == steady, (e.vm, steady)
        e("s_branch L_vchk")

    for tag in EFS:
        e.label(tag)
        e("s_lshr_b32 s%d, s%d, 2" % (S_T, S_I))
        e("v_mov_b32 v%d, s%d" % (V_T0, S_T))
        lds_inc(L_CF - 4, V_T0, V_T1)
        e("s_branch %sr" % tag)
    for tag in ELS:
        e.label(tag)
        lds_inc(L_EL, V_Z, V_T1)
        e("s_branch %sr" % tag)

    def pace_events(kind, x):
        e("s_bitcmp1_b64 s[%d:%d], s%d" % (S_MP, S_MP + 1, S_I))
        e("s_cbranch_scc0 L_pa%s%s" % (kind, x))
        e("s_memrealtime s[%d:%d]" % (S_TW, S_TW + 1))
        e("s_mov_b32 s%d, s%d" % (S_BP, S_BO))
        lds_inc(L_TC, V_Z, V_T1)
        e.label("L_pa%s%s" % (kind, x))
        e("s_bitcmp1_b64 s[%d:%d], s%d" % (S_MG, S_MG + 1, S_I))
        e("s_cbranch_scc0 L_pb%s%s" % (kind, x))
        lds_inc(L_TC, V_Z, V_T1)
        e.label("L_pb%s%s" % (kind, x))
        e("s_bitcmp1_b64 s[%d:%d], s%d" % (S_MR, S_MR + 1, S_I))
        e("s_cbranch_scc0 L_pc%s%s" % (kind, x))
        e("v_mov_b32 v%d, s%d" % (V_T1, S_CPA))
        e("ds_read_b32 v%d, v%d" % (V_T0, V_T1))
        lds_inc(L_TC, V_Z, V_T1)
        e("s_add_u32 s%d, s%d, 4" % (S_CPA, S_CPA))
        e("s_waitcnt lgkmcnt(0)")
        e("v_readfirstlane_b32 s%d, v%d" % (S_T, V_T0))
        e("s_cmp_eq_u32 s%d, 0" % S_T)
        e("s_cbranch_scc1 L_pc%s%s" % (kind, x))
        if kind == "V" and P["tt"]:
            e("s_cmp_eq_u32 s%d, %d" % (S_I, P["te"]))
            e("s_cbranch_scc0 L_pe%s" % x)
            e("s_add_u32 s%d, s%d, %d" % (S_TH, S_T, P["tx"] - 3 * (NT - P["te"]) * P["d3"]))
            e("s_mov_b32 s%d, %d" % (S_TD, P["te"]))
            e("s_mov_b32 s%d, 0" % S_TT)
            e("s_mov_b32 s%d, 0" % S_BO)
            e("s_branch L_pc%s%s" % (kind, x))
            e.label("L_pe%s" % x)
        e("s_sub_u32 s%d, s%d, s%d" % (S_T, S_TW, S_T))
        e("s_max_i32 s%d, s%d, -4096" % (S_T, S_T))
        e("s_min_i32 s%d, s%d, 4096" % (S_T, S_T))
        if kind == "V" and not P["tt"]:
            e("s_cmp_eq_u32 s%d, %d" % (S_I, P["te"]))
            e("s_cbranch_scc0 L_pd%s" % x)
            e("s_mul_i32 s%d, s%d, %d" % (S_T, S_T, P["ka"]))
            e("s_add_u32 s%d, s%d, %d" % (S_T, S_T, P["kb"]))
            e("s_ashr_i32 s%d, s%d, 10" % (S_T, S_T))
            e("s_max_i32 s%d, s%d, %d" % (S_T, S_T, P["dmin"]))
            e("s_min_i32 s%d, s%d, %d" % (S_T, S_T, min(P["dmax"], NT - P["te"])))
            e("s_sub_u32 s%d, %d, s%d" % (S_TD, NT, S_T))
            e("s_cmp_eq_u32 s%d, %d" % (S_TD, NT))
            e("s_cselect_b32 s%d, 255, s%d" % (S_TD, S_TD))
            e("s_mov_b32 s%d, 0" % S_BO)
            if P["stamp"] == 5:
                e("s_mov_b32 s%d, s%d" % (S_LDC, S_TD))
            e("s_branch L_pc%s%s" % (kind, x))
            e.label("L_pd%s" % x)
        e("s_mul_i32 s%d, s%d, %d" % (S_T, S_T, P["ka2"]))
        e("s_add_u32 s%d, s%d, %d" % (S_T, S_T, P["kb2"]))
        e("s_ashr_i32 s%d, s%d, 10" % (S_T, S_T))
        e("s_sub_u32 s%d, s%d, s%d" % (S_T, S_T, S_BP))
        e("s_add_u32 s%d, s%d, s%d" % (S_T, S_T, S_BO))
        e("s_max_i32 s%d, s%d, 0" % (S_T, S_T))
        e("s_min_i32 s%d, s%d, %d" % (S_BO, S_T, P["bmax"]))
        e.label("L_pc%s%s" % (kind, x))
        e("s_bitcmp1_b64 s[%d:%d], s%d" % (S_MO, S_MO + 1, S_I))
        e("s_cbranch_scc0 L_evret%s%s" % (kind, x))

    for x in (("", "B") if BC else ("",)):
        e.label("L_evK" + x)
        if BC:
            pace_events("K", x)
        e("s_and_b32 s%d, s%d, 15" % (S_T, S_I))
        e("s_cbranch_scc0 L_evK2" + x)
        e("s_cmp_eq_u32 s%d, %d" % (S_I, N0))
        e("s_cbranch_scc1 L_evK2" + x)
        e("s_lshr_b32 s%d, s%d, 2" % (S_T + 1, S_I))
        e("s_andn2_b32 s%d, s%d, 3" % (S_T + 1, S_T + 1))
        e("s_add_u32 s%d, s%d, %d" % (S_T + 1, S_T + 1, 236 if P["ef"] else L_CF - 4))
        e("s_cmp_eq_u32 s%d, 1" % S_T)
        e("s_cselect_b32 s%d, s%d, %d" % (S_T, S_T + 1, L_EV + 4))
        e("s_cselect_b32 s%d, %d, 0" % (S_T + 1, PHI - 768))
        e("v_add_u32 v%d, s%d, v%d" % (V_LB0, S_T + 1, V_LB0))
        e("s_cmp_eq_u32 s%d, %d" % (S_I, TRG1))
        e("s_cselect_b32 s%d, %d, s%d" % (S_T, L_EV, S_T))
        e("v_mov_b32 v%d, s%d" % (V_T0, S_T))
        lds_inc(0, V_T0, V_T1)
        e("s_branch L_evretK" + x)
        e.label("L_evK2" + x)
        if P["stamp"] == 2:
            e("s_cmp_eq_u32 s%d, %d" % (S_I, N0))
            e("s_cbranch_scc0 L_ns2" + x)
            e("s_memrealtime s[%d:%d]" % (S_DBG, S_DBG + 1))
            e.label("L_ns2" + x)
        if P["sg"]:
            assert P["stamp"]
            e("s_cmp_eq_u32 s%d, %d" % (S_I, N0))
            e("s_cbranch_scc0 L_sgx" + x)
            e.label("L_sgl" + x)
            e("s_memrealtime s[%d:%d]" % (S_T + 4, S_T + 5))
            e("s_waitcnt lgkmcnt(0)")
            e("s_sub_u32 s%d, s%d, s%d" % (S_T + 4, S_T + 4, S_ST))
            e("s_cmp_lt_i32 s%d, %d" % (S_T + 4, P["sg"]))
            e("s_cbranch_scc1 L_sgl" + x)
            e.label("L_sgx" + x)
        get_table("K", "tk" + x)
        if P["stamp"] == 3:
            e("s_cmp_eq_u32 s%d, %d" % (S_I, N0))
            e("s_cbranch_scc0 L_evretK")
            e("s_memrealtime s[%d:%d]" % (S_DBG, S_DBG + 1))
        e("s_branch L_evretK" + x)
        e.label("L_evV" + x)
        if BC:
            pace_events("V", x)
        elif P["at"]:
            e("s_and_b32 s%d, s%d, 15" % (S_T, S_I))
            e("s_cbranch_scc0 L_evV2")
            e("s_cmp_eq_u32 s%d, %d" % (S_I, P["te"]))
            e("s_cbranch_scc1 L_evV3")
            lds_inc(L_TC, V_Z, V_T1)
            e("s_branch L_evretV")
            e.label("L_evV3")
            e("ds_read_b32 v%d, v%d offset:%d" % (V_T0, V_Z, L_TD))
            e("s_waitcnt lgkmcnt(0)")
            e("v_readfirstlane_b32 s%d, v%d" % (S_T, V_T0))
            e("s_cmp_eq_u32 s%d, 0" % S_T)
            e("s_cselect_b32 s%d, s%d, s%d" % (S_TD, S_TD, S_T))
            if P["stamp"] == 5:
                e("s_mov_b32 s%d, s%d" % (S_LDC, S_T))
            e("s_branch L_evretV")
            e.label("L_evV2")
        get_table("V", "tv2" + x)
        e("s_branch L_evretV" + x)

    PG = S_G; PM = S_M
    PNB = 5; PP = 6; PBK = 7
    PB = 8; PWS = 12; PDB = 16
    PO = 20; PFL = 21; PBASE = 22; PPR = 90
    PD = 24
    POF = 32
    PT = 40
    PMN = 44; PJ = 45; PRN = 46; PNR = 47
    PE = 48
    PRB = 56; PACC = 58; PGL = 59; PSP = 60; PPH = 61; PSG = 62; PG0 = 63
    PDC = 84
    PS2 = 92; PS3 = 96
    HL = 1; HZ = 2; HW = 3; HA = 4; HB_ = 5; HC = 6; HD = 7; HK = 8; HV = 9; HE = 10; HF = 11; HR = 12; HG = 13
    HN = 14; HT2 = 15
    HX = 16
    BIAS = 65536
    e.wr = {}; e.tr = {}
    e.label("L_helper")
    PST = 100
    if P["pt"] or P["pd"]:
        e("s_memrealtime s[%d:%d]" % (PST, PST + 1))
    e("s_sub_u32 s%d, s%d, %d" % (PP, S_WAVE, NW))
    e("s_mov_b32 s%d, s%d" % (PNB, S_NB))
    e("v_and_b32 v%d, 63, v0" % HL)
    e("v_mov_b32 v%d, 0" % HZ)
    e("s_mul_i32 s%d, s%d, %d" % (PGL, PG, 8 * FSTR))
    e("s_add_u32 s%d, s%d, %d" % (PGL, PGL, WS_G))
    if EB and EB != 4:
        e("s_cmp_lg_u32 s%d, 0" % PP)
        e("s_cbranch_scc1 L_hbar")
        e("v_lshlrev_b32 v%d, 2, v%d" % (HB_, HL))
        e("ds_write_b32 v%d, v%d" % (HB_, HZ))
        e("s_waitcnt lgkmcnt(0)")
        e.label("L_hbar")
        e("s_barrier")
    if BC:
        e("s_cmp_eq_u32 s%d, 3" % PP)
        e("s_cbranch_scc1 L_h3")
    LB = P["lb"]
    PA = PPH
    PKB = 91
    VLN = 20 if LB else 10
    ELN = 256 + VLN - 21
    if LB:
        assert P["sw"] and P["dc"] and P["vw"]
        e("s_mul_i32 s%d, s%d, 25" % (PE, PP))
        e("s_sub_u32 s%d, s%d, 22" % (PE, PE))
        e("s_cmp_lt_i32 s%d, s%d" % (PG, PE))
        e("s_cselect_b32 s%d, 1, 0" % PPR)
        e("s_cbranch_scc0 L_noprobe1")
        e("s_add_u32 s%d, s%d, 2" % (PE + 1, PG))
        e("s_mul_i32 s%d, s%d, 205" % (PE, PE + 1))
        e("s_lshr_b32 s%d, s%d, 10" % (PE, PE))
        e("s_mul_i32 s%d, s%d, 5" % (PBK, PE))
        e("s_sub_u32 s%d, s%d, s%d" % (PBK, PE + 1, PBK))
        e("s_add_u32 s%d, s%d, 1" % (PBK, PBK))
        e("s_lshl_b32 s%d, s%d, 1" % (PE + 1, PG))
        e("s_add_u32 s%d, s%d, s%d" % (PE + 1, PE + 1, PP))
        e("s_sub_u32 s%d, s%d, 1" % (PE + 1, PE + 1))
        e("s_cmp_lt_u32 s%d, 3" % PG)
        e("s_cselect_b32 s%d, 0, s%d" % (PBK, PBK))
        e("s_cselect_b32 s%d, s%d, s%d" % (PE + 1, PE + 1, PE))
    else:
        e("s_mul_i32 s%d, s%d, 10" % (PE, PP))
        e("s_sub_u32 s%d, s%d, 7" % (PE, PE))
        e("s_cmp_lt_i32 s%d, s%d" % (PG, PE))
        e("s_cselect_b32 s%d, 1, 0" % PPR)
        e("s_cbranch_scc0 L_noprobe1")
        e("s_max_u32 s%d, s%d, 1" % (PBK, PG))
        e("s_sub_u32 s%d, s%d, 1" % (PBK, PBK))
        e("s_lshr_b32 s%d, s%d, 1" % (PBK, PBK))
        e("s_lshl_b32 s%d, s%d, 1" % (PE + 1, PG))
        e("s_add_u32 s%d, s%d, s%d" % (PE + 1, PE + 1, PP))
        e("s_sub_u32 s%d, s%d, 1" % (PE + 1, PE + 1))
        e("s_bitcmp1_b32 s%d, 0" % PG)
        e("s_cselect_b32 s%d, 1, 4" % PE)
        e("s_cmp_eq_u32 s%d, 0" % PBK)
        e("s_cselect_b32 s%d, s%d, s%d" % (PE + 1, PE + 1, PE))
    e("s_and_b32 s%d, s%d, 1" % (PE, PE + 1))
    e("s_mul_i32 s%d, s%d, 20" % (PO, PE + 1))
    e("s_add_u32 s%d, s%d, s%d" % (PO, PO, PE))
    e("s_add_u32 s%d, s%d, 2" % (PO, PO))
    if LB:
        e("s_lshr_b32 s%d, s%d, 5" % (PKB, PO))
        e("s_xor_b32 s%d, s%d, s%d" % (PKB, PKB, PM))
    e("s_lshl_b32 s%d, s%d, 21" % (PO, PO))
    e("s_xor_b32 s%d, s%d, s%d" % (PFL, PM, PP))
    e("s_and_b32 s%d, s%d, 1" % (PFL, PFL))
    e("s_lshr_b32 s%d, s%d, 2" % (PE + 1, PM))
    e("s_xor_b32 s%d, s%d, s%d" % (PE, PE, PE + 1))
    e("s_xor_b32 s%d, s%d, s%d" % (PE, PE, PFL))
    e("s_lshl_b32 s%d, s%d, 13" % (PE, PE))
    e("s_lshl_b32 s%d, s%d, 14" % (PE + 1, PP))
    e("s_and_b32 s%d, s%d, 0x4000" % (PE + 1, PE + 1))
    e("s_or_b32 s%d, s%d, s%d" % (PE, PE, PE + 1))
    for u in range(8):
        e("s_xor_b32 s%d, s%d, 0x%x" % (POF + u, PE, ((u & 1) << 13) | (((u >> 1) & 1) << 12) | ((u >> 2) << 14)))
    e("v_and_b32 v%d, 7, v%d" % (HW, HL))
    e("v_lshlrev_b32 v%d, 12, v%d" % (HW, HW))
    e("s_lshl_b32 s%d, s%d, 8" % (PE, PM))
    e("v_add_u32 v%d, s%d, v%d" % (HW, PE, HW))
    e("s_mov_b32 s%d, %d" % (PB + 2, H * HEADB))
    e("s_mov_b32 s%d, 0x00020000" % (PB + 3))
    e("s_cmp_ge_u32 s%d, 3" % PBK)
    e("s_cselect_b32 s%d, 3, 0" % PE)
    e("s_sub_u32 s%d, s%d, s%d" % (PE, PBK, PE))
    e("s_lshl_b32 s%d, s%d, 28" % (PE, PE))
    e("s_add_u32 s%d, s%d, s%d" % (PO, PO, PE))
    e("s_cmp_ge_u32 s%d, 3" % PBK)
    e("s_waitcnt lgkmcnt(0)")
    e("s_cselect_b32 s%d, s68, s66" % PB)
    e("s_cselect_b32 s%d, s69, s67" % (PBASE + 1))
    e("s_and_b32 s%d, s%d, 0xffff" % (PB + 1, PBASE + 1))
    if not P["sw"]:
        e("s_mov_b64 exec, 0xff")
        e("buffer_load_dword v%d, v%d, s[%d:%d], s%d offen" % (HA, HW, PB, PB + 3, PO))
        e("s_mov_b64 exec, -1")
    e("s_add_u32 s%d, s%d, s%d" % (PBASE, PB, PO))
    e("s_addc_u32 s%d, s%d, 0" % (PBASE + 1, PBASE + 1))
    e("s_lshl_b32 s%d, s%d, 8" % (PE, PM))
    if P["sw"]:
        e("s_add_u32 s%d, s%d, s%d" % (PRB, PBASE, PE))
        e("s_addc_u32 s%d, s%d, 0" % (PRB + 1, PBASE + 1))
        for u in range(8):
            e("s_load_dword s%d, s[%d:%d], 0x%x" % (PD + u, PRB, PRB + 1, u * 4096))
        if P["dc"]:
            srd_ws(PWS)
            e("s_lshl_b32 s%d, s2, 1" % PE)
            e("s_add_u32 s%d, s%d, s%d" % (PE, PE, PP))
            e("s_mul_i32 s%d, s%d, %d" % (PE, PE, 6 * FSTR))
            e("s_add_u32 s%d, s%d, %d" % (PE, PE, WS_G - 6 * FSTR))
            e("v_mul_u32_u24 v%d, %d, v%d" % (HB_, FSTR, HL))
            e("v_mov_b32 v%d, 0" % (HZ + 1))
            if LB:
                e("v_mov_b32 v%d, 0" % (HZ + 2))
            e("s_cmp_eq_u32 s%d, 0" % PBK)
            e("s_cselect_b64 exec, 0x3f, 0")
            e("buffer_store_dwordx%d v[%d:%d], v%d, s[%d:%d], s%d offen sc1" % (3 if LB else 2, HZ, HZ + (2 if LB else 1), HB_, PWS, PWS + 3, PE))
            e("s_mov_b64 exec, -1")
        for k in range(1, P["sw"]):
            e("s_waitcnt lgkmcnt(0)")
            e("s_load_dword s%d, s[%d:%d], 0x%x" % (PD, PRB, PRB + 1, k * 4096 + 128))
    else:
        e("s_add_u32 s%d, s%d, 128" % (PE, PE))
        e("s_load_dword s%d, s[%d:%d], s%d" % (PJ, PBASE, PBASE + 1, PE))
    if P["pb"]:
        if P["pb"] == 1:
            e("s_cmp_lg_u32 s%d, 0" % PBK)
            e("s_cbranch_scc1 L_noprobe2")
        else:
            e("s_branch L_noprobe2")
    e.label("L_noprobe1")
    e("s_waitcnt lgkmcnt(0)")
    if P["pb"]:
        e.label("L_noprobe2")
    srd_ws(PWS)
    srd(PDB, 80, 256)
    if not EB:
        e("s_cmp_lg_u32 s%d, 0" % PP)
        e("s_cbranch_scc1 L_hbar")
        e("v_lshlrev_b32 v%d, 2, v%d" % (HB_, HL))
        e("ds_write_b32 v%d, v%d" % (HB_, HZ))
        e("s_waitcnt lgkmcnt(0)")
        e.label("L_hbar")
        e("s_barrier")
    if P["hs"]:
        e("s_mov_b32 s%d, 0" % (PD + 4))
    e("s_cmp_eq_u32 s%d, 0" % PPR)
    e("s_cbranch_scc1 L_role")
    e("s_mov_b32 s%d, 1" % PRN)
    e("s_mov_b32 s%d, 0" % PACC)
    if LB:
        for k in range(3):
            e("s_mov_b32 s%d, 0" % (PA + k))
        if LB & 2:
            e("s_mov_b32 m0, 0")
    e("s_cmp_eq_u32 s%d, 0" % PBK)
    e("s_cselect_b32 s%d, %d, %d" % (PNR, P["nr0"], NR))
    if not P["sw"]:
        e("s_waitcnt vmcnt(0)")
    if P["pb"]:
        e("s_waitcnt lgkmcnt(0)")
    e.label("L_round")
    e("s_add_u32 s%d, s%d, s%d" % (PE, PM, PRN))
    e("s_and_b32 s%d, s%d, 7" % (PE, PE))
    e("s_lshl_b32 s%d, s%d, 8" % (PE, PE))
    e("s_add_u32 s%d, s%d, s%d" % (PRB, PBASE, PE))
    e("s_addc_u32 s%d, s%d, 0" % (PRB + 1, PBASE + 1))
    e("s_mov_b32 s%d, -1" % PMN)
    e("s_memtime s[%d:%d]" % (PT, PT + 1))
    e("s_waitcnt lgkmcnt(0)")
    for u in range(8):
        a = PT + 2 * (u & 1); b = PT + 2 * ((u + 1) & 1)
        e("s_load_dword s%d, s[%d:%d], s%d" % (PJ, PRB, PRB + 1, POF + u))
        e("s_waitcnt lgkmcnt(0)")
        e("s_memtime s[%d:%d]" % (b, b + 1))
        e("s_waitcnt lgkmcnt(0)")
        e("s_sub_u32 s%d, s%d, s%d" % (PD + u, b, a))
        if u + 1 == P["ns0"] and u < 7:
            for k in range(u + 1, 8):
                e("s_mov_b32 s%d, -1" % (PD + k))
            e("s_cmp_eq_u32 s%d, 0" % PBK)
            e("s_cbranch_scc1 L_few")
    if LB & 2:
        for u in range(8):
            e("v_writelane_b32 v%d, s%d, m0" % (HX, PD + u))
            e("s_add_u32 m0, m0, 1")
    e.label("L_few")
    for u in range(8):
        e("s_min_u32 s%d, s%d, %d" % (PD + u, PD + u, P["clip"]))
        e("s_min_u32 s%d, s%d, s%d" % (PMN, PMN, PD + u))
    e("s_cmp_lt_u32 s%d, %d" % (PMN, P["l2t"]))
    e("s_cbranch_scc1 L_skip")
    for u in range(8):
        e("s_%s_u32 s%d, s%d, s%d" % ("add" if u & 1 else "sub", PACC, PACC, PD + u))
    if LB:
        e("s_cmp_eq_u32 s%d, 0" % PBK)
        e("s_cbranch_scc1 L_skip")
        if P["cl2"]:
            for h in range(2):
                e("s_min_u32 s%d, s%d, s%d" % (PE + h, PD + h, PD + 2 + h))
                e("s_min_u32 s%d, s%d, s%d" % (PE + 2, PD + 4 + h, PD + 6 + h))
                e("s_min_u32 s%d, s%d, s%d" % (PE + h, PE + h, PE + 2))
                e("s_add_u32 s%d, s%d, %d" % (PE + h, PE + h, P["cl2"]))
            for u in range(8):
                e("s_min_u32 s%d, s%d, s%d" % (PD + u, PD + u, PE + (u & 1)))
        for u in range(8):
            for k, bit in enumerate(((u ^ (u >> 1)) & 1, (u >> 2) & 1, (u ^ (u >> 2)) & 1)):
                e("s_%s_u32 s%d, s%d, s%d" % ("add" if bit else "sub", PA + k, PA + k, PD + u))
    e.label("L_skip")
    e("s_add_u32 s%d, s%d, 1" % (PRN, PRN))
    e("s_cmp_le_u32 s%d, s%d" % (PRN, PNR))
    e("s_cbranch_scc1 L_round")
    e("s_sub_u32 s%d, 0, s%d" % (PE, PACC))
    e("s_cmp_eq_u32 s%d, 0" % PFL)
    e("s_cselect_b32 s%d, s%d, s%d" % (PACC, PACC, PE))
    e("s_add_u32 s%d, s%d, 0x%x" % (PACC, PACC, BIAS + (1 << 24)))
    e("v_mov_b32 v%d, s%d" % (HA, PACC))
    e("s_mov_b64 exec, 1")
    e("s_lshl_b32 s%d, s%d, 2" % (PE, PBK))
    e("s_add_u32 s%d, s%d, 124" % (PE, PE))
    e("s_cmp_eq_u32 s%d, 0" % PBK)
    e("s_cbranch_scc0 L_post")
    if P["hs"] == 3:
        e("s_memrealtime s[%d:%d]" % (PD + 4, PD + 5))
    if P["dc"]:
        e("s_waitcnt vmcnt(0)")
    e("ds_add_rtn_u32 v%d, v%d, v%d offset:%d" % (HB_, HZ, HA, L_PC))
    e("s_mov_b32 s%d, 0" % PE)
    e("s_waitcnt lgkmcnt(0)")
    e("v_add_u32 v%d, v%d, v%d" % (HA, HA, HB_))
    e("v_cmp_ne_u32 vcc, 0, v%d" % HB_)
    e("s_and_b64 exec, exec, vcc")
    if P["vw"]:
        e("buffer_atomic_add v%d, off, s[%d:%d], s%d" % (HA, PDB, PDB + 3, PE))
        e("s_branch L_posted")
        e.label("L_post")
        lds_wait("vw", HZ, HE, PE, L_DEC, "nz", PSP)
        if LB:
            e("s_lshr_b32 s%d, s%d, 1" % (PE, PKB))
            e("s_xor_b32 s%d, s%d, s%d" % (PE, PE, PFL))
            e("s_sub_u32 s%d, 0, s%d" % (PE + 1, PA))
            e("s_bitcmp1_b32 s%d, 0" % PE)
            e("s_cselect_b32 s%d, s%d, s%d" % (PA, PE + 1, PA))
            e("s_xor_b32 s%d, s%d, s%d" % (PE, PKB, PFL))
            e("s_bitcmp1_b32 s%d, 0" % PM)
            e("s_cselect_b32 s%d, s%d, s%d" % (PE, PKB, PE))
            e("s_cselect_b32 s%d, s%d, s%d" % (PA + 1, PA + 1, PA + 2))
            e("s_sub_u32 s%d, 0, s%d" % (PE + 1, PA + 1))
            e("s_bitcmp1_b32 s%d, 0" % PE)
            e("s_cselect_b32 s%d, s%d, s%d" % (PA + 1, PE + 1, PA + 1))
            for k in range(2):
                e("s_add_u32 s%d, s%d, 0x%x" % (PA + k, PA + k, BIAS + (1 << 24)))
                e("v_writelane_b32 v%d, s%d, %d" % (HA, PA + k, k + 1))
            e("s_lshl_b32 s%d, s%d, 2" % (PE, PBK))
            e("s_and_b32 s%d, s%d, 1" % (PE + 1, PM))
            e("s_or_b32 s%d, s%d, s%d" % (PE, PE, PE + 1))
            e("s_lshr_b32 s%d, s%d, 1" % (PE + 1, PM))
            e("s_and_b32 s%d, s%d, 2" % (PE + 1, PE + 1))
            e("s_or_b32 s%d, s%d, s%d" % (PE, PE, PE + 1))
            e("s_mul_i32 s%d, s%d, %d" % (PE, PE, FSTR))
            e("s_add_u32 s%d, s%d, %d" % (PE, PE, WS_G + 252 * FSTR))
            e("s_mov_b64 exec, 7")
            e("v_lshlrev_b32 v%d, 2, v%d" % (HB_, HL))
            e("buffer_atomic_add v%d, v%d, s[%d:%d], s%d offen" % (HA, HB_, PWS, PWS + 3, PE))
            if LB & 2:
                e("s_mov_b64 exec, -1")
                e("s_memrealtime s[%d:%d]" % (PT, PT + 1))
                e("v_mov_b32 v%d, s%d" % (HX + 1, POF))
                e("v_mov_b32 v%d, s%d" % (HX + 2, PO))
                e("s_waitcnt lgkmcnt(0)")
                e("v_mov_b32 v%d, s%d" % (HX + 3, PT))
                srd(PB, 82, 0x8000000)
                e("s_lshl_b32 s%d, s2, 10" % PE)
                e("s_add_u32 s%d, s%d, 0x4090000" % (PE, PE))
                e("v_lshlrev_b32 v%d, 4, v%d" % (HW, HL))
                e("buffer_store_dwordx4 v[%d:%d], v%d, s[%d:%d], s%d offen" % (HX, HX + 3, HW, PB, PB + 3, PE))
        else:
            e("s_mul_i32 s%d, s%d, %d" % (PE, PG, FSTR))
            e("s_add_u32 s%d, s%d, %d" % (PE, PE, WS_G + 253 * FSTR))
            e("buffer_atomic_add v%d, off, s[%d:%d], s%d" % (HA, PWS, PWS + 3, PE))
        e.label("L_posted")
    else:
        e.label("L_post")
        e("buffer_atomic_add v%d, off, s[%d:%d], s%d" % (HA, PDB, PDB + 3, PE))
    e("s_mov_b64 exec, -1")
    if P["hs"] and P["hs"] != 3:
        if P["hs"] == 2:
            e("s_waitcnt vmcnt(0)")
        e("s_memrealtime s[%d:%d]" % (PD + 4, PD + 5))
    e.label("L_role")
    e("s_cmp_eq_u32 s%d, 0" % PP)
    e("s_cbranch_scc1 L_h0")
    e("s_cmp_eq_u32 s%d, 2" % PP)
    e("s_cbranch_scc1 L_h2")

    def wave_reduce(regs, op, tmp):
        for kk in (8, 4, 2, 1):
            for r in regs:
                e("%s_dpp v%d, v%d, v%d row_ror:%d row_mask:0xf bank_mask:0xf" % (op, r, r, r, kk))
        for sw in ("v_permlane32_swap_b32", "v_permlane16_swap_b32"):
            for r, t in zip(regs, tmp):
                e("v_mov_b32 v%d, v%d" % (t, r))
            for r, t in zip(regs, tmp):
                e("%s v%d, v%d" % (sw, r, t))
            for r, t in zip(regs, tmp):
                e("%s v%d, v%d, v%d" % (op, r, r, t))

    def decode(tag, nl, off, cnt, rounds, dst, b0):
        vw = b0 and P["vw"]
        if P["pt"] and not b0:
            e("s_add_u32 s%d, s%d, %d" % (PST, PST, P["pt"]))
        else:
            lds_wait("e" + tag, HZ, HE, PE, L_EV + (4 if b0 else 0), "nz" if b0 else str(P["tw"]), PSP)
        if vw:
            e("v_mul_u32_u24 v%d, %d, v%d" % (HD, FSTR, HL))
            e("s_mov_b32 s%d, %d" % (PE, WS_G + 256 * FSTR))
            e("v_lshrrev_b32 v%d, 1, v%d" % (HB_, HB_))
        e("s_mov_b64 exec, 0x%x" % ((1 << (2 * nl if vw else nl)) - 1))
        e("s_mov_b32 s%d, 0x40000" % PSP)
        if P["hs"] and not b0:
            e("s_memrealtime s[%d:%d]" % (PD, PD + 1))
        if P["l2p"] and not b0:
            e("buffer_load_dword v%d, v%d, s[%d:%d], 0 offen offset:%d" % (HA, HB_, PDB, PDB + 3, off))
            e("s_branch L_pollw" + tag)
        if not P["xkp"] & 4:
            e.label("L_poll" + tag)
            if P["pt"] and not b0:
                twait(PST, PT, P["pk"])
            if vw:
                e("buffer_load_dword v%d, v%d, s[%d:%d], s%d offen sc1" % (HA, HD, PWS, PWS + 3, PE))
            else:
                e("buffer_load_dword v%d, v%d, s[%d:%d], 0 offen offset:%d sc1" % (HA, HB_, PDB, PDB + 3, off))
            e("s_sub_u32 s%d, s%d, 1" % (PSP, PSP))
            e("s_cbranch_scc1 L_exit1")
            e.lines.append("L_pollw%s:" % tag)
            e("s_waitcnt vmcnt(0)")
            e("v_lshrrev_b32 v%d, 24, v%d" % (HC, HA))
            e("v_cmp_ne_u32 vcc, %d, v%d" % (cnt // 2 if vw else cnt, HC))
            e("s_cbranch_vccnz L_poll" + tag)
        if vw:
            e("v_add_u32_dpp v%d, v%d, v%d quad_perm:[1,0,3,2] row_mask:0xf bank_mask:0xf" % (HA, HA, HA))
            e("s_mov_b64 exec, 0x%x" % (0x5555 & ((1 << (2 * nl)) - 1)))
        th = P["th"] * cnt * rounds * (8 if b0 else P["ns0"]) // 8
        e("v_and_b32 v%d, 0xffffff, v%d" % (HA, HA))
        e("v_subrev_u32 v%d, %d, v%d" % (HA, cnt * BIAS, HA))
        if P["stamp"] == 6 and b0:
            e("s_cmp_lg_u32 s2, 100")
            e("s_cbranch_scc1 L_nodbg")
            e("buffer_store_dword v%d, v%d, s[%d:%d], 0 offen offset:4" % (HA, HB_, PDB, PDB + 3))
            e.label("L_nodbg")
        e("v_lshrrev_b32 v%d, 30, v%d" % (HC, HA))
        e("v_and_b32 v%d, 2, v%d" % (HC, HC))
        e("v_add_u32 v%d, %d, v%d" % (HA, th, HA))
        e("v_cmp_gt_u32 vcc, %d, v%d" % (2 * th, HA))
        e("v_cndmask_b32 v%d, v%d, 8, vcc" % (HC, HC))
        if P["force"] == 1:
            e("v_mov_b32 v%d, 8" % HC)
        if P["force"] >= 2:
            e("s_mov_b32 s%d, 0x%x" % (PE, 0x7000000 + 128 * (P["force"] - 2)))
            e("s_load_dwordx4 s[%d:%d], s[82:83], s%d" % (PS2, PS2 + 3, PE))
            e("s_waitcnt lgkmcnt(0)")
            for l in range(nl):
                b = b0 + l
                e("s_lshr_b64 s[%d:%d], s[%d:%d], %d" % (PE, PE + 1, PS2 + 2 * (b // 3), PS2 + 2 * (b // 3) + 1, 16 * (b % 3)))
                e("s_and_b32 s%d, s%d, %d" % (PE, PE, P["ob"]))
                e("s_xor_b32 s%d, s%d, %d" % (PE, PE, P["ox"]))
                e("v_writelane_b32 v%d, s%d, %d" % (HC, PE, 2 * l if vw else l))
        e("v_or_b32 v%d, 16, v%d" % (HC, HC))
        if P["xv"] and vw:
            e("v_lshlrev_b32 v%d, 1, v%d" % (HA, HL))
            e("v_lshrrev_b32 v%d, v%d, %d" % (HA, HA, 0) if False else "v_mov_b32 v%d, 0x%x" % (HD, int(str(P["xv"])[::-1], 16)))
            e("v_lshrrev_b32 v%d, v%d, v%d" % (HA, HA, HD))
            e("v_and_b32 v%d, 7, v%d" % (HA, HA))
            e("v_xor_b32 v%d, v%d, v%d" % (HC, HC, HA))
        e("ds_write_b32 v%d, v%d offset:%d" % (HB_, HC, dst))
        if P["hs"] and not b0:
            e("s_memrealtime s[%d:%d]" % (PD + 2, PD + 3))
            srd(PS2, 82, 0x8000000)
            e("s_waitcnt lgkmcnt(0)")
            e("v_mov_b32 v%d, s%d" % (HX, PD))
            e("v_mov_b32 v%d, s%d" % (HX + 1, PD + 2))
            e("v_mov_b32 v%d, s%d" % (HX + 2, PSP))
            e("v_mov_b32 v%d, s%d" % (HX + 3, PD + 4))
            e("s_lshl_b32 s%d, s2, 4" % PE)
            e("s_add_u32 s%d, s%d, 0x4008000" % (PE, PE))
            e("buffer_store_dwordx4 v[%d:%d], off, s[%d:%d], s%d" % (HX, HX + 3, PS2, PS2 + 3, PE))
        e("s_mov_b64 exec, -1")

    if not P["dc"]:
        e("s_cmp_lg_u32 s2, %d" % (NWG - 1))
        e("s_cbranch_scc1 L_nolead")
        e("v_mul_u32_u24 v%d, %d, v%d" % (HB_, FSTR, HL))
        e("v_mov_b32 v%d, 0" % (HZ + 1))
        for k in range(5 if P["vw"] else 4):
            e("s_mov_b32 s%d, %d" % (PE + k, WS_G + k * 64 * FSTR))
            if k == 4:
                e("s_mov_b64 exec, 0x%x" % (0x1fffff if P["fc"] else 0x3ff))
            e("buffer_store_dwordx2 v[%d:%d], v%d, s[%d:%d], s%d offen sc1" % (HZ, HZ + 1, HB_, PWS, PWS + 3, PE + k))
        e("v_mov_b32 v%d, 0x%x" % (HA, BIAS + (1 << 24)))
        e("s_mov_b64 exec, 1")
        e("s_waitcnt vmcnt(0)")
        e("buffer_atomic_add v%d, off, s[%d:%d], 0" % (HA, PDB, PDB + 3))
        e("s_mov_b64 exec, -1")
        if P["hs"]:
            if P["hs"] == 2:
                e("s_waitcnt vmcnt(0)")
            e("s_memrealtime s[%d:%d]" % (PD + 4, PD + 5))
        e.label("L_nolead")
    e("v_lshlrev_b32 v%d, 2, v%d" % (HB_, HL))
    decode("a", 1, 0, 48 if P["dc"] else 49, P["nr0"], L_DEC, 0)
    if LB:
        if P["ro"]:
            e("v_readfirstlane_b32 s%d, v%d" % (PMN, HC))
        if P["rx"]:
            MB = 1 << 20
            TG = [(66, 254 * MB), (66, 258 * MB), (66, 514 * MB), (68, 2 * MB), (68, 258 * MB), (68, 514 * MB),
                  (70, 4 * MB), (72, 4 * MB), (74, MB // 2), (76, MB // 2), (82, 32 * MB), (82, 2336 * MB)]
            e("s_mul_i32 s%d, s2, 4352" % PJ)
            for j in range(-1, P["rx"]):
                for t, (ptr, off) in enumerate(TG):
                    e("s_add_u32 s%d, s%d, 0x%x" % (PRB, ptr, off))
                    e("s_addc_u32 s%d, s%d, 0" % (PRB + 1, ptr + 1))
                    e("s_add_u32 s%d, s%d, %d" % (PE, PJ, 512 if j < 0 else 1024 * j))
                    if j < 0:
                        e("s_load_dword s%d, s[%d:%d], s%d" % (PD, PRB, PRB + 1, PE))
                        continue
                    e("s_waitcnt lgkmcnt(0)")
                    e("s_memtime s[%d:%d]" % (PT, PT + 1))
                    e("s_waitcnt lgkmcnt(0)")
                    e("s_load_dword s%d, s[%d:%d], s%d" % (PD, PRB, PRB + 1, PE))
                    e("s_waitcnt lgkmcnt(0)")
                    e("s_memtime s[%d:%d]" % (PT + 2, PT + 3))
                    e("s_waitcnt lgkmcnt(0)")
                    e("s_sub_u32 s%d, s%d, s%d" % (PT, PT + 2, PT))
                    e("v_writelane_b32 v%d, s%d, %d" % (HX, PT, 12 * j + t))
            e("s_memrealtime s[%d:%d]" % (PT, PT + 1))
            e("s_waitcnt lgkmcnt(0)")
            e("v_mov_b32 v%d, s%d" % (HX + 3, PT))
            srd(PB, 82, 0x8000000)
            e("s_lshl_b32 s%d, s2, 10" % PE)
            e("s_add_u32 s%d, s%d, 0x4090000" % (PE, PE))
            e("v_lshlrev_b32 v%d, 4, v%d" % (HW, HL))
            e("buffer_store_dwordx4 v[%d:%d], v%d, s[%d:%d], s%d offen" % (HX, HX + 3, HW, PB, PB + 3, PE))
            e("s_waitcnt vmcnt(0)")
        DA = HX; DB = HX + 1; DC = HX + 2; DW = HX + 4
        lds_wait("eb", HZ, HE, PE, L_EV + 4, "nz", PSP)
        e("v_mul_u32_u24 v%d, %d, v%d" % (HD, FSTR, HL))
        e("s_mov_b32 s%d, %d" % (PE, WS_G + 256 * FSTR))
        e("s_mov_b64 exec, 0xfffff")
        e("s_mov_b32 s%d, 0x40000" % PSP)
        e.label("L_pollb")
        e("buffer_load_dwordx3 v[%d:%d], v%d, s[%d:%d], s%d offen sc1" % (DA, DC, HD, PWS, PWS + 3, PE))
        e("s_sub_u32 s%d, s%d, 1" % (PSP, PSP))
        e("s_cbranch_scc1 L_exit1")
        e("s_waitcnt vmcnt(0)")
        e("v_min3_u32 v%d, v%d, v%d, v%d" % (HC, DA, DB, DC))
        e("v_lshrrev_b32 v%d, 24, v%d" % (HC, HC))
        e("v_cmp_ne_u32 vcc, 10, v%d" % HC)
        e("s_cbranch_vccnz L_pollb")
        for r in (DA, DB, DC):
            e("v_subrev_u32 v%d, 0x%x, v%d" % (r, 10 * (BIAS + (1 << 24)), r))
        for qp in ("[1,0,3,2]", "[2,3,0,1]"):
            for r in (DA, DB):
                e("v_add_u32_dpp v%d, v%d, v%d quad_perm:%s row_mask:0xf bank_mask:0xf" % (r, r, r, qp))
        e("v_ashrrev_i32 v%d, 31, v%d" % (HC, DA))
        e("v_xor_b32 v%d, v%d, v%d" % (DB, DB, HC))
        e("v_xor_b32 v%d, v%d, v%d" % (HA, DC, HC))
        e("s_mov_b64 vcc, 0x55555")
        e("v_cndmask_b32 v%d, v%d, v%d, vcc" % (DC, DC, HA))
        for qp in ("[1,0,3,2]", "[2,3,0,1]"):
            e("v_add_u32_dpp v%d, v%d, v%d quad_perm:%s row_mask:0xf bank_mask:0xf" % (DC, DC, DC, qp))
        e("v_and_b32 v%d, 2, v%d" % (DW, HC))
        for r, bit, th in ((DB, 1, P["th1"]), (DC, 4, P["th0"])):
            e("v_or_b32 v%d, %d, v%d" % (HA, bit, DW))
            e("v_cmp_gt_i32 vcc, %d, v%d" % (-th * 40 * NR, r))
            e("v_cndmask_b32 v%d, v%d, v%d, vcc" % (DW, DW, HA))
        th = P["th"] * 40 * NR
        e("v_add_u32 v%d, %d, v%d" % (HA, th, DA))
        e("v_cmp_gt_u32 vcc, %d, v%d" % (2 * th, HA))
        e("v_cndmask_b32 v%d, v%d, 8, vcc" % (DW, DW))
        e("v_and_b32 v%d, %d, v%d" % (DW, P["lm"] | 8, DW))
        for b in range(5):
            e("v_readlane_b32 s%d, v%d, %d" % (PD + b, DW, 4 * b))
        if P["ro"]:
            e("s_xor_b32 s%d, s%d, s%d" % (PE, PMN, PD + 2))
            e("s_and_b32 s%d, s%d, 15" % (PE, PE))
            e("s_and_b32 s%d, s%d, %d" % (PE + 1, PE, 10 if P["ro"] & 1 else 14))
            e("s_cselect_b32 s%d, 0, s%d" % (PE, PE))
            if P["ro"] & 4:
                e("s_cselect_b32 s%d, s%d, 4" % (PE + 1, PD))
                e("s_bitcmp0_b32 s%d, 2" % (PE + 1))
                e("s_cselect_b32 s%d, s%d, 0" % (PE + 1, PE + 1))
                e("s_and_b32 s%d, s%d, 1" % (PE + 1, PE + 1))
                e("s_or_b32 s%d, s%d, s%d" % (PE, PE, PE + 1))
            for b in range(5):
                e("s_xor_b32 s%d, s%d, s%d" % (PE + 1, PD + b, PE))
                e("s_bitcmp1_b32 s%d, 3" % (PD + b))
                e("s_cselect_b32 s%d, s%d, s%d" % (PD + b, PD + b, PE + 1))
        if P["pol"] == 4:
            e("s_xor_b32 s%d, s%d, s%d" % (PE, PD, PD + 3))
            e("s_xor_b32 s%d, s%d, s%d" % (PE + 1, PD + 1, PD + 4))
            e("s_xor_b32 s%d, s%d, s%d" % (PE + 1, PE + 1, PE))
            e("s_and_b32 s%d, s%d, 10" % (PE, PE))
            e("s_or_b32 s%d, s%d, s%d" % (PE, PE, PE + 1))
            for b in range(2):
                e("s_cselect_b32 s%d, s%d, s%d" % (PD + b, PD + b, PD + 3 + b))
        if P["pol"] == 7:
            e("s_xor_b32 s%d, s%d, s%d" % (PE, PD, PD + 3))
            e("s_and_b32 s%d, s%d, 10" % (PE + 1, PE))
            e("s_cselect_b32 s%d, 0, s%d" % (PE, PE))
            e("s_xor_b32 s%d, s%d, s%d" % (PD, PD, PE))
            e("s_xor_b32 s%d, s%d, s%d" % (PE, PE, PD + 1))
            e("s_cmp_eq_u32 s%d, s%d" % (PE, PD + 4))
            e("s_cselect_b32 s%d, s%d, s%d" % (PD + 1, PE, PD + 1))
        if P["pol"] >= 8:
            e("s_xor_b32 s%d, s%d, s%d" % (PE, PD, PD + 3))
            e("s_xor_b32 s%d, s%d, s%d" % (PE + 1, PD + 1, PD + 4))
            if P["pol"] == 8:
                e("s_and_b32 s%d, s%d, 5" % (PE + 2, PD + 3))
                e("s_cselect_b32 s%d, 14, 10" % (PE + 2))
                e("s_cmp_eq_u32 s%d, s%d" % (PE, PE + 1))
                e("s_cselect_b32 s%d, 10, s%d" % (PE + 2, PE + 2))
                e("s_and_b32 s%d, s%d, s%d" % (PE + 2, PE + 2, PE))
            else:
                e("s_and_b32 s%d, s%d, 10" % (PE + 2, PE))
            e("s_cselect_b32 s%d, 0, s%d" % (PE, PE))
            e("s_xor_b32 s%d, s%d, s%d" % (PD, PD, PE))
            e("s_cmp_eq_u32 s%d, s%d" % (PE, PE + 1))
            e("s_cselect_b32 s%d, 1, s%d" % (PE + 1, PE + 1))
            e("s_cmp_eq_u32 s%d, 1" % (PE + 1))
            e("s_cselect_b32 s%d, s%d, s%d" % (PD + 1, PD + 4, PD + 1))
        for b in range(2):
            if not (0, 0, 1, 2, 0, 3, 3, 0, 0, 0)[P["pol"] or 5] >> b & 1:
                continue
            e("s_xor_b32 s%d, s%d, s%d" % (PE, PD + b, PD + 3 + b))
            e("s_and_b32 s%d, s%d, %d" % (PE, PE, 14 if P["pol"] == 6 else 10))
            e("s_cselect_b32 s%d, s%d, s%d" % (PD + b, PD + b, PD + 3 + b))
        for b in range(5):
            e("s_or_b32 s%d, s%d, 16" % (PD + b, PD + b))
            e("v_writelane_b32 v%d, s%d, %d" % (HC, PD + b, b))
        e("s_mov_b64 exec, 0x1f")
        e("ds_write_b32 v%d, v%d offset:%d" % (HB_, HC, L_DEC + 4))
        e("s_mov_b64 exec, -1")
    else:
        decode("b", 5, 128, 16, NR, L_DEC + 4, 1)
    if P["xkp"] & 2048:
        srd(PB, 70, H * NGRP * DH * 2)
        e("s_memrealtime s[%d:%d]" % (PT, PT + 1))
        e("v_lshlrev_b32 v%d, 4, v%d" % (HW, HL))
        e("s_add_u32 s%d, s%d, 32" % (PE, PG))
        e("s_lshl_b32 s%d, s%d, 16" % (PE, PE))
        e("s_mov_b32 s%d, 0" % PRN)
        e("s_waitcnt lgkmcnt(0)")
        e("s_add_u32 s%d, s%d, %d" % (PT, PT, P["xa"]))
        e.label("L_xk")
        e("s_memrealtime s[%d:%d]" % (PT + 2, PT + 3))
        e("s_waitcnt lgkmcnt(0)")
        e("s_sub_u32 s%d, s%d, s%d" % (PT + 2, PT + 2, PT))
        e("s_cmp_lt_i32 s%d, 0" % (PT + 2))
        e("s_cbranch_scc1 L_xk")
        for k in range(P["xn"]):
            e("buffer_load_dwordx4 v[%d:%d], v%d, s[%d:%d], s%d offen offset:%d" % (HX + 4 * k, HX + 4 * k + 3, HW, PB, PB + 3, PE, (k % 4) * 1024))
            if k % 4 == 3 or k == P["xn"] - 1:
                e("s_add_u32 s%d, s%d, %d" % (PE, PE, 1024 * (k % 4 + 1)))
        e("s_add_u32 s%d, s%d, %d" % (PT, PT, 222 * P["xn"] // 4))
        e("s_add_u32 s%d, s%d, %d" % (PRN, PRN, P["xn"]))
        e("s_cmp_eq_u32 s%d, 64" % PRN)
        e("s_cselect_b32 s%d, %d, 0" % (PE + 1, 31 << 16))
        e("s_add_u32 s%d, s%d, s%d" % (PE, PE, PE + 1))
        e("s_waitcnt vmcnt(0)")
        e("s_cmp_lt_u32 s%d, 128" % PRN)
        e("s_cbranch_scc1 L_xk")
    if P["xkp"] & 4096:
        srd(PB, 74, H * SKV * 2)
        srd(PS2, 76, H * SKV * 2)
        e("s_memrealtime s[%d:%d]" % (PT, PT + 1))
        e("v_lshlrev_b32 v%d, 4, v%d" % (HW, HL))
        e("s_mul_i32 s%d, s%d, 21845" % (PE, PG))
        e("s_andn2_b32 s%d, s%d, 127" % (PE, PE))
        e("s_mov_b32 s%d, 0" % PRN)
        e("s_mov_b32 s%d, 0" % PMN)
        e("s_waitcnt lgkmcnt(0)")
        e("s_add_u32 s%d, s%d, %d" % (PT, PT, P["xa"]))
        e.label("L_xv")
        for sr in (PB, PS2):
            twait(PT, PT + 2, P["xn"])
            e("buffer_load_dwordx4 v[%d:%d], v%d, s[%d:%d], s%d offen" % (HX, HX + 3, HW, sr, sr + 3, PE))
        e("s_add_u32 s%d, s%d, 1024" % (PE, PE))
        e("s_add_u32 s%d, s%d, 1" % (PRN, PRN))
        e("s_cmp_lt_u32 s%d, 22" % PRN)
        e("s_cbranch_scc1 L_xv")
        e("s_mov_b32 s%d, 0" % PRN)
        e("s_add_u32 s%d, s%d, %d" % (PE, PE, 32 * 21845 // 128 * 128 - 22 * 1024))
        e("s_add_u32 s%d, s%d, %d" % (PT, PT, 3520 - 44 * P["xn"]))
        e("s_add_u32 s%d, s%d, 1" % (PMN, PMN))
        e("s_cmp_lt_u32 s%d, 3" % PMN)
        e("s_cbranch_scc1 L_xv")
        e("s_waitcnt vmcnt(0)")
    if P["lx"]:
        e("s_mul_i32 s%d, s%d, 43" % (PE, PG))
        e("s_lshr_b32 s%d, s%d, 8" % (PE, PE))
        e("s_mul_i32 s%d, s%d, 6" % (PE + 1, PE))
        e("s_sub_u32 s%d, s%d, s%d" % (PBK, PG, PE + 1))
        e("s_cmp_ge_u32 s%d, 3" % PBK)
        e("s_cselect_b32 s%d, s68, s66" % PB)
        e("s_cselect_b32 s%d, s69, s67" % (PBASE + 1))
        e("s_cselect_b32 s%d, 3, 0" % (PE + 1))
        e("s_sub_u32 s%d, s%d, s%d" % (PE + 1, PBK, PE + 1))
        e("s_lshl_b32 s%d, s%d, 28" % (PO, PE + 1))
        e("s_mul_i32 s%d, s%d, %d" % (PE, PE, 21 << 21))
        e("s_add_u32 s%d, s%d, s%d" % (PO, PO, PE))
        e("s_add_u32 s%d, s%d, %d" % (PO, PO, (7 << 21) + (1 << 20)))
        e("s_and_b32 s%d, s%d, 0xffff" % (PB + 1, PBASE + 1))
        e("s_mov_b32 s%d, %d" % (PB + 2, H * HEADB))
        e("s_mov_b32 s%d, 0x00020000" % (PB + 3))
        e("s_add_u32 s%d, s%d, %d" % (PE, PM, P["lx"]))
        e("s_and_b32 s%d, s%d, 7" % (PE, PE))
        e("s_lshl_b32 s%d, s%d, 9" % (PE, PE))
        e("v_lshlrev_b32 v%d, 12, v%d" % (HW, HL))
        e("v_add_u32 v%d, s%d, v%d" % (HW, PE, HW))
        for j in range(3):
            e("buffer_load_dword v%d, v%d, s[%d:%d], s%d offen offset:%d" % (HX + j, HW, PB, PB + 3, PO, j * 128))
        e("s_add_u32 s%d, s%d, s%d" % (PBASE, PB, PO))
        e("s_addc_u32 s%d, s%d, 0" % (PBASE + 1, PBASE + 1))
        e("s_lshl_b32 s%d, s%d, 9" % (PE, PM))
        e("s_add_u32 s%d, s%d, s%d" % (PBASE, PBASE, PE))
        e("s_addc_u32 s%d, s%d, 0" % (PBASE + 1, PBASE + 1))
        e("s_load_dword s%d, s[%d:%d], 384" % (PJ, PBASE, PBASE + 1))
        e("s_load_dword s%d, s[%d:%d], 0x20180" % (PJ, PBASE, PBASE + 1))
        e("s_waitcnt vmcnt(0) lgkmcnt(0)")
        lds_wait("lx", HZ, HE, PE, L_EV + 4, "8", PSP)
        for j in range(3):
            e("s_mov_b32 m0, 0")
            e("s_mov_b32 s%d, %d" % (PE, j * 128))
            e.label("L_lx%d" % j)
            e("s_memtime s[%d:%d]" % (PT, PT + 1))
            e("s_waitcnt lgkmcnt(0)")
            e("s_load_dword s%d, s[%d:%d], s%d" % (PJ, PBASE, PBASE + 1, PE))
            e("s_waitcnt lgkmcnt(0)")
            e("s_memtime s[%d:%d]" % (PT + 2, PT + 3))
            e("s_waitcnt lgkmcnt(0)")
            e("s_sub_u32 s%d, s%d, s%d" % (PT, PT + 2, PT))
            e("v_writelane_b32 v%d, s%d, m0" % (HX + j, PT))
            e("s_add_u32 s%d, s%d, 4096" % (PE, PE))
            e("s_add_u32 m0, m0, 1")
            e("s_cmp_lt_u32 m0, 64")
            e("s_cbranch_scc1 L_lx%d" % j)
        e("s_memrealtime s[%d:%d]" % (PT, PT + 1))
        e("s_waitcnt lgkmcnt(0)")
        e("v_mov_b32 v%d, s%d" % (HX + 3, PT))
        srd(PB, 82, 0x8000000)
        e("s_lshl_b32 s%d, s2, 10" % PE)
        e("s_add_u32 s%d, s%d, 0x4090000" % (PE, PE))
        e("v_lshlrev_b32 v%d, 4, v%d" % (HW, HL))
        e("buffer_store_dwordx4 v[%d:%d], v%d, s[%d:%d], s%d offen" % (HX, HX + 3, HW, PB, PB + 3, PE))
    if FU:
        CSC = 24; CMK = 56; CRB = 57; CO = 92
        e("s_and_b32 s%d, s%d, 7" % (PE, PG))
        e("s_cmp_lg_u32 s%d, s%d" % (PE, PM))
        e("s_cbranch_scc1 L_exit1")
        e("s_mul_i32 s%d, s%d, 3" % (PE, PG))
        e("s_add_u32 s%d, s%d, 2" % (PE, PE))
        e("s_lshr_b32 s%d, s%d, 5" % (PE, PE))
        e("s_lshl_b32 s%d, s%d, 2" % (PE, PE))
        e("v_mov_b32 v%d, s%d" % (HW, PE))
        e("s_mul_i32 s%d, s%d, 24" % (CRB, PG))
        e("v_add_u32 v%d, s%d, v%d" % (HG, CRB, HL))
        e("v_and_b32 v%d, 255, v%d" % (HR, HG))
        e("v_mul_u32_u24 v%d, %d, v%d" % (HR, FSTR, HR))
        e("v_lshlrev_b32 v%d, 6, v%d" % (HG, HG))
        e("s_mov_b32 s%d, %d" % (PE + 1, WS_G))
        e("s_mov_b32 s%d, %d" % (PE + 2, WS_ML))
        e("v_mov_b32 v%d, 0x%08x" % (HA, BIGNEG))
        e("v_mov_b32 v%d, 0" % HB_)
        if P["cd"]:
            th = [12 * (len(CPK) + min(j for j, c in enumerate(CPV) if c > b)) + P["cd"] for b in (16, 32, 4)]
            e("s_mov_b32 s%d, %d" % (PE + 3, th[0]))
            e("s_cmp_eq_u32 s%d, 4" % PE)
            e("s_cselect_b32 s%d, %d, s%d" % (PE + 3, th[1], PE + 3))
            e("s_cmp_eq_u32 s%d, 8" % PE)
            e("s_cselect_b32 s%d, %d, s%d" % (PE + 3, th[2], PE + 3))
            lds_wait("cg", HZ, HE, PE, L_TC, "s%d" % (PE + 3), PSP)
        else:
            lds_wait("cg", HZ, HE, PE, L_GO, "nz", PSP, HW)
        for tag, ld, chk in (("f", "buffer_load_dword v%d, v%d, s[%d:%d], s%d offen sc1" % (HD, HR, PWS, PWS + 3, PE + 1), HD),
                             ("m", "buffer_load_dwordx4 v[%d:%d], v%d, s[%d:%d], s%d offen sc1" % (HA, HD, HG, PWS, PWS + 3, PE + 2), HD)):
            e("s_mov_b64 exec, 0xffffff")
            e("s_mov_b32 s%d, 0x40000" % PSP)
            e.label("L_cp" + tag)
            e(ld)
            e("s_sub_u32 s%d, s%d, 1" % (PSP, PSP))
            e("s_cbranch_scc1 L_exit1")
            e("s_waitcnt vmcnt(0)")
            e("v_cmpx_eq_u32 vcc, 0, v%d" % chk)
            e("s_cbranch_execnz L_cp" + tag)
        e("s_mov_b64 exec, -1")
        e("v_mov_b32 v%d, v%d" % (HC, HA))
        wave_reduce([HC], "v_max_f32", [HD])
        e("v_sub_f32 v%d, v%d, v%d" % (HA, HA, HC))
        e("v_exp_f32 v%d, v%d" % (HA, HA))
        e("v_mul_f32 v%d, v%d, v%d" % (HB_, HB_, HA))
        wave_reduce([HB_], "v_add_f32", [HD])
        e("v_rcp_f32 v%d, v%d" % (HB_, HB_))
        e("v_mul_f32 v%d, v%d, v%d" % (HA, HA, HB_))
        if P["fc"]:
            e("s_cmp_lt_u32 s%d, 21" % PG)
            e("s_cbranch_scc1 L_cown")
            e("s_mul_i32 s%d, s%d, %d" % (PE, PG, FSTR))
            e("s_add_u32 s%d, s%d, %d" % (PE, PE, WS_G + ELN * FSTR))
            e("v_lshlrev_b32 v%d, 2, v%d" % (HR, HL))
            e("v_mov_b32 v%d, 1" % HB_)
            e("s_mov_b64 exec, 0xffffff")
            e("buffer_store_dword v%d, v%d, s[%d:%d], s%d offen offset:128 sc1" % (HA, HR, PWS, PWS + 3, PE))
            e("s_mov_b64 exec, 1")
            e("s_waitcnt vmcnt(0)")
            e("buffer_store_dword v%d, off, s[%d:%d], s%d offset:4 sc1" % (HB_, PWS, PWS + 3, PE))
            e("s_endpgm")
            e.label("L_cown")
        for r in range(24):
            e("v_readlane_b32 s%d, v%d, %d" % (CSC + r, HA, r))
        srd(CO, 78, H * DH * 2)
        e("s_lshl_b32 s%d, s%d, 10" % (CRB, CRB))
        e("v_lshlrev_b32 v%d, 4, v%d" % (HG, HL))
        e("v_add_u32 v%d, s%d, v%d" % (HG, CRB, HG))
        for k in range(1, 6):
            e("s_mov_b32 s%d, %d" % (PE + k, 4096 * k))
        for r in (HA, HB_, HC):
            e("v_mov_b32 v%d, 0" % r)
        e("s_mov_b32 s%d, 0xffffff" % CMK)
        e("v_lshlrev_b32 v%d, 1, v%d" % (HR, HL))
        e("s_mul_i32 s%d, s%d, %d" % (CRB, PG, DH * 2))
        lds_wait("cc", HZ, HE, PE, L_CA, "%d" % P["cw"], PSP, HW)
        e("s_mov_b32 s%d, 0x40000" % PSP)
        e.label("L_cr")
        for r in range(24):
            e("s_bitcmp0_b32 s%d, %d" % (CMK, r))
            e("s_cbranch_scc1 L_cl%d" % r)
            e("buffer_load_dwordx4 v[%d:%d], v%d, s[%d:%d], %s offen offset:%d sc1" %
              (HX + 4 * r, HX + 4 * r + 3, HG, PWS, PWS + 3, "s%d" % (PE + r // 4) if r >= 4 else "0", (r % 4) * 1024))
            e.lines.append("L_cl%d:" % r)
        e("s_sub_u32 s%d, s%d, 1" % (PSP, PSP))
        e("s_cbranch_scc1 L_exit1")
        e("s_waitcnt vmcnt(0)")
        for r in range(24):
            e("s_bitcmp0_b32 s%d, %d" % (CMK, r))
            e("s_cbranch_scc1 L_cv%d" % r)
            e("v_cmp_eq_u32 vcc, 0, v%d" % (HX + 4 * r + 3))
            e("s_cbranch_vccnz L_cv%d" % r)
            for k, a_ in enumerate((HA, HB_, HC)):
                e("v_fmac_f32 v%d, s%d, v%d" % (a_, CSC + r, HX + 4 * r + k))
            e("s_bitset0_b32 s%d, %d" % (CMK, r))
            e.lines.append("L_cv%d:" % r)
        e("s_cmp_lg_u32 s%d, 0" % CMK)
        e("s_cbranch_scc1 L_cr")
        for k, a_ in enumerate((HA, HB_, HC)):
            e("v_cvt_pk_bf16_f32 v%d, v%d, v%d" % (a_, a_, a_))
            e("buffer_store_short v%d, v%d, s[%d:%d], s%d offen offset:%d %s" % (a_, HR, CO, CO + 3, CRB, k * 128, P["os"]))
        if P["stamp"] == 5:
            e("s_memrealtime s[%d:%d]" % (PT, PT + 1))
            e("s_waitcnt vmcnt(0)")
            e("s_memrealtime s[%d:%d]" % (PT + 2, PT + 3))
            srd(PS2, 82, 0x8000000)
            e("s_waitcnt lgkmcnt(0)")
            e("v_mov_b32 v%d, s%d" % (HX, PT))
            e("v_mov_b32 v%d, s%d" % (HX + 1, PT + 2))
            e("v_mov_b32 v%d, s%d" % (HX + 2, PSP))
            e("s_lshl_b32 s%d, s%d, 4" % (PE, PG))
            e("s_add_u32 s%d, s%d, 0x4009000" % (PE, PE))
            e("s_mov_b64 exec, 1")
            e("buffer_store_dwordx4 v[%d:%d], off, s[%d:%d], s%d" % (HX, HX + 3, PS2, PS2 + 3, PE))
    e("s_endpgm")

    def seg_scalars():
        e("s_lshl_b32 s%d, s%d, 5" % (PSG, PPH))
        e("s_add_u32 s%d, s%d, s%d" % (PSG, PSG, PG))
        e("s_lshl_b32 s%d, s%d, 15" % (PG0, PSG))
        e("s_add_u32 s%d, s%d, 1" % (PG0, PG0))
        e("s_mul_hi_u32 s%d, s%d, 0xaaaaaaab" % (PG0, PG0))
        e("s_lshr_b32 s%d, s%d, 7" % (PG0, PG0))

    def get_dec(tag):
        lds_wait(tag, HZ, HE, PE, L_DEC + 20, "nz", PSP)
        e("ds_read_b128 v[%d:%d], v%d offset:%d" % (HX, HX + 3, HZ, L_DEC))
        e("ds_read_b64 v[%d:%d], v%d offset:%d" % (HX + 4, HX + 5, HZ, L_DEC + 16))
        e("s_waitcnt lgkmcnt(0)")
        for i in range(6):
            e("v_readfirstlane_b32 s%d, v%d" % (PDC + i, HX + i))

    e.label("L_h0")
    srd(PB, 64, H * DH * 2)
    srd(PS2, 70, H * NGRP * DH * 2)
    srd(PS3, 72, H * NGRP * DH * 2)
    e("v_lshrrev_b32 v%d, 4, v%d" % (HA, HL))
    e("v_and_b32 v%d, 15, v%d" % (HB_, HL))
    e("v_lshlrev_b32 v%d, 3, v%d" % (HC, HB_))
    e("v_mul_u32_u24 v%d, %d, v%d" % (HD, DH * 2, HA))
    e("v_add_u32 v%d, v%d, v%d" % (HD, HD, HC))
    e("v_lshl_add_u32 v%d, v%d, 2, v%d" % (HG, HB_, HA))
    e("v_lshlrev_b32 v%d, 2, v%d" % (HG, HG))
    BQ = HX; BS = HX + 12; BZ = BS + 36; BR = BZ + 36
    PFA = 32; PIA = 33
    e("v_lshlrev_b32 v%d, 4, v%d" % (HA, HL))
    e("s_mul_i32 s%d, s%d, %d" % (PFA, PNB, FSTR))
    e("s_add_u32 s%d, s%d, s%d" % (PFA, PFA, PGL))
    e("s_lshl_b32 s%d, s%d, 3" % (PIA, PG))
    e("s_add_u32 s%d, s%d, s%d" % (PIA, PIA, PNB))
    IMS = PHI if P["il"] else IMG
    PHS = NWG * PHI if P["il"] else PHI
    CX = P["cx"]
    if CX:
        assert N0 <= 4 and not P["xp"]
        IMS = 3072 if P["x12"] else 4096; PHS = NWG * IMS
        e("v_and_b32 v%d, 7, v%d" % (HN, HL))
        e("v_lshrrev_b32 v%d, 3, v%d" % (HE, HL))
        e("v_mul_u32_u24 v%d, 24, v%d" % (HK, HE))
        e("v_mov_b32 v%d, 768" % HF)
        e("v_mad_u32_u24 v%d, v%d, v%d, v%d" % (HK, HN, HF, HK))
        e("v_lshlrev_b32 v%d, 7, v%d" % (HN, HN))
        e("v_lshl_add_u32 v%d, v%d, 4, v%d" % (HN, HE, HN))
        if P["cl"]:
            e("v_lshlrev_b32 v%d, 4, v%d" % (HN, HL))
        if P["x12"]:
            e("v_mul_u32_u24 v%d, 12, v%d" % (HN, HL))
    XZ = P["xz"]; XS = 1 << P["xr"]

    def img_lane(dst, tmp):
        if XZ >= 1024:
            e("v_lshlrev_b32 v%d, 4, v%d" % (dst, HL))
            return
        lz = (XZ // 16).bit_length() - 1
        e("v_lshrrev_b32 v%d, %d, v%d" % (dst, lz, HL))
        e("v_lshlrev_b32 v%d, %d, v%d" % (dst, P["xr"], dst))
        e("v_and_b32 v%d, %d, v%d" % (tmp, XZ // 16 - 1, HL))
        e("v_lshl_add_u32 v%d, v%d, 4, v%d" % (dst, tmp, dst))

    def img_base(dst, slot, tmp):
        spr = XS // XZ
        assert 8 <= spr <= 256 and PHI % XZ == 0
        e("s_lshr_b32 s%d, s%d, %d" % (tmp, slot, spr.bit_length() - 1))
        e("s_mul_i32 s%d, s%d, %d" % (tmp, tmp, XS * (PHI // XZ)))
        e("s_and_b32 s%d, s%d, %d" % (dst, slot, spr - 1))
        e("s_mul_i32 s%d, s%d, %d" % (dst, dst, XZ))
        e("s_add_u32 s%d, s%d, s%d" % (dst, dst, tmp))

    def img_k(k):
        return (k * 1024 // XZ) * XS + k * 1024 % XZ

    if XZ:
        assert P["il"] and not CX and not P["xp"]
        img_base(PIA, PIA, PE)
        img_lane(HN, HE)
    else:
        e("s_mul_i32 s%d, s%d, %d" % (PIA, PIA, IMS))
    e("s_add_u32 s%d, s%d, %d" % (PIA, PIA, WS_L))

    def bias(ph):
        e("s_mov_b32 s%d, %d" % (PPH, ph))
        seg_scalars()
        e("s_mul_i32 s%d, s%d, 171" % (PE, PSG))
        e("s_lshr_b32 s%d, s%d, 9" % (PE, PE))
        e("s_mul_i32 s%d, s%d, %d" % (PE, PE, DH * 2))
        e("s_mul_i32 s%d, s%d, 24" % (PE + 1, PM))
        e("s_add_u32 s%d, s%d, s%d" % (PE + 2, PE + 1, PG0))
        e("s_mul_i32 s%d, s%d, %d" % (PE + 2, PE + 2, DH * 2))
        e("v_add_u32 v%d, s%d, v%d" % (HE, PE + 2, HD))
        e("v_add_u32 v%d, %d, v%d" % (HF, 8 * DH * 2, HE))
        e("v_add_u32 v%d, %d, v%d" % (HR, 16 * DH * 2, HE))
        for c in range(3):
            e("buffer_load_dwordx2 v[%d:%d], v%d, s[%d:%d], s%d offen offset:%d" % (BR + 2 * c, BR + 2 * c + 1, HC, PB, PB + 3, PE, c * 128))
        split = P["bs"] & (1 if ph else 2)
        order = [(st, a) for st in range(6) for a in range(2)]
        if split:
            order.sort(key=lambda x: x[1])
        for st, a in order:
            va = (HE, HF, HR)[st // 2]
            sr, bb = ((PS2, BS), (PS3, BZ))[a]
            if split and (st, a) == (0, 1):
                if ph:
                    lds_wait("z%d" % ph, HZ, HV, PE + 3, L_EV + 4, str(8 * ph - 8 + P["bz"]), PSP)
                else:
                    lds_wait("z0", HZ, HV, PE + 3, L_TC, str(P["bz0"]), PSP)
            bt = P["bt"] if ph else P["bt0"]
            if bt:
                if st == 0 and bb == BS:
                    e("s_memrealtime s[%d:%d]" % (PT, PT + 1))
                    e("s_waitcnt lgkmcnt(0)")
                twait(PT, PT + 2, bt)
            for c in range(3):
                r = bb + st * 6 + 2 * c
                if P["xb"] & 1:
                    continue
                e("buffer_load_dwordx2 v[%d:%d], v%d, s[%d:%d], 0 offen offset:%d%s" %
                  (r, r + 1, va, sr, sr + 3, (st & 1) * 4 * DH * 2 + c * 128,
                   " nt" if P["bnt"] & (1 if bb == BZ else 2) else ""))
            if (P["bp"] == 2 or P["bp"] == 1 and a) and (ph or P["bp0"]):
                e("s_waitcnt vmcnt(%d)" % P["bq"])
        e("s_waitcnt vmcnt(0)")
        for p in range(6):
            e("v_lshlrev_b32 v%d, 16, v%d" % (BQ + 2 * p, BR + p))
            e("v_and_b32 v%d, 0xffff0000, v%d" % (BQ + 2 * p + 1, BR + p))
        for st in range(6):
            acc = BR + st
            for p in range(6):
                rs = BS + st * 6 + p; rz = BZ + st * 6 + p
                e("v_lshlrev_b32 v%d, 16, v%d" % (HE, rs))
                e("v_lshlrev_b32 v%d, 16, v%d" % (HF, rz))
                e("v_and_b32 v%d, 0xffff0000, v%d" % (rs, rs))
                e("v_and_b32 v%d, 0xffff0000, v%d" % (rz, rz))
                e("v_mul_f32 v%d, v%d, v%d" % (HE, HE, BQ + 2 * p))
                e("v_mul_f32 v%d, v%d, v%d" % (rs, rs, BQ + 2 * p + 1))
                if p == 0:
                    e("v_mul_f32 v%d, v%d, v%d" % (acc, HE, HF))
                else:
                    e("v_fmac_f32 v%d, v%d, v%d" % (acc, HE, HF))
                e("v_fmac_f32 v%d, v%d, v%d" % (acc, rs, rz))
        for kk in (8, 4, 2, 1):
            for st in range(6):
                e("v_add_f32_dpp v%d, v%d, v%d row_ror:%d row_mask:0xf bank_mask:0xf" % (BR + st, BR + st, BR + st, kk))
        for st in range(1, 6):
            e("v_cmp_eq_u32 vcc, %d, v%d" % (st, HB_))
            e("v_cndmask_b32 v%d, v%d, v%d, vcc" % (BR, BR, BR + st))
        e("s_mul_i32 s%d, s%d, 768" % (PE, PSG))
        e("s_lshl_b32 s%d, s%d, 2" % (PE + 1, PE + 1))
        e("s_add_u32 s%d, s%d, s%d" % (PE, PE, PE + 1))
        e("s_add_u32 s%d, s%d, %d" % (PE, PE, WS_B))
        e("s_mov_b32 exec_lo, 0x003f003f")
        e("s_mov_b32 exec_hi, 0x003f003f")
        e("buffer_store_dword v%d, v%d, s[%d:%d], s%d offen sc1" % (BR, HG, PWS, PWS + 3, PE))
        e("s_mov_b64 exec, -1")

    def vpf(late, half=False):
        if half:
            e("s_cmp_ge_u32 s%d, 4" % PM)
            e("s_cbranch_scc1 L_novpf")
        srd(PS2, 74, H * SKV * 2)
        srd(PS3, 76, H * SKV * 2)
        if late:
            lds_wait("pf", HZ, HE, PE, L_EV, "1", PSP)
        e("v_lshlrev_b32 v%d, 4, v%d" % (HE, HL))
        for rep in range(2 if half else 1):
            e("s_lshl_b32 s%d, s2, 13" % PE)
            if rep:
                e("s_add_u32 s%d, s%d, 0x8000" % (PE, PE))
            e("s_add_u32 s%d, s%d, 4096" % (PE + 1, PE))
            for a, sr in enumerate((PS2, PS3)):
                for k in range(8):
                    r = HX + 4 * (a * 8 + k)
                    e("buffer_load_dwordx4 v[%d:%d], v%d, s[%d:%d], s%d offen offset:%d" % (r, r + 3, HE, sr, sr + 3, PE + k // 4, (k % 4) * 1024))
            e("s_waitcnt vmcnt(0)")
        if half:
            e.label("L_novpf")

    def flush(p):
        if P["xp"]:
            e("s_cmp_eq_u32 s%d, s%d" % (PDC + p, PDC + 3 + p))
            if p:
                e("s_cbranch_scc1 L_fp%d" % p)
            e("s_add_u32 s%d, s%d, %d" % (PE + 6, PIA, p * PHS))
            e("s_add_u32 s%d, s%d, %d" % (PE + 7, PIA, p * PHS + 4096))
            e("s_cmp_eq_u32 s%d, s%d" % (PDC + p, PDC + 3 + p))
            for k in range(6):
                if p == 0:
                    mk = sum(1 << l for l in range(64) if (64 * k + l) % 48 < (3 * N0 + 7) // 8 * 8)
                    e("s_cselect_b32 exec_lo, 0x%x, -1" % (mk & 0xffffffff))
                    e("s_cselect_b32 exec_hi, 0x%x, -1" % (mk >> 32))
                e("buffer_load_dwordx4 v[%d:%d], v%d, s[%d:%d], s%d offen offset:%d %s" %
                  (HX + 4 * k, HX + 4 * k + 3, HA, PWS, PWS + 3, PE + 6 + k // 4, (k % 4) * 1024, ("", "sc1", "", "nt")[P["xp"]]))
            e("s_mov_b64 exec, -1")
            e("s_waitcnt vmcnt(0)")
            e.label("L_fp%d" % p)
        lds_wait("f%d" % p, HZ, HE, PE, L_CF + 4 * p, "4", PSP)
        e("s_cmp_eq_u32 s%d, s%d" % (PDC + p, PDC + 3 + p))
        if p:
            e("s_cbranch_scc1 L_fl%d" % p)
        if CX:
            if P["cl"] and p == 0:
                e("v_and_b32 v%d, 7, v%d" % (HF, HL))
                e("v_lshrrev_b32 v%d, 3, v%d" % (HE, HL))
                e("v_mul_u32_u24 v%d, 24, v%d" % (HF, HF))
                e("v_mov_b32 v%d, 768" % HR)
                e("v_mad_u32_u24 v%d, v%d, v%d, v%d" % (HF, HE, HR, HF))
            for st in range(4):
                for c in range(3):
                    r = HX + 12 * st + 2 * c
                    e("ds_read_b64 v[%d:%d], v%d offset:%d" % (r, r + 1, HF if P["cl"] and p == 0 and st == 0 else HK, L_LG + p * PHI + st * 192 + 8 * c))
            e("s_add_u32 s%d, s%d, %d" % (PE + 6, PIA, p * PHS))
            e("s_cmp_eq_u32 s%d, s%d" % (PDC + p, PDC + 3 + p))
            e("s_waitcnt lgkmcnt(0)")
            for st in range(4):
                B = HX + 12 * st
                e("v_cmp_eq_f32 vcc, 0, v%d" % (B + 5))
                e("v_max3_f32 v%d, v%d, v%d, v%d" % (B + 9, B, B + 1, B + 2))
                e("v_cndmask_b32 v%d, v%d, v%d, vcc" % (B + 8, B + 5, B + 4))
                e("v_max3_f32 v%d, v%d, v%d, v%d" % (B + 9, B + 9, B + 3, B + 4))
                e("v_max_f32 v%d, v%d, v%d" % (B + 8, B + 8, B + 9))
                for k in range(6):
                    e("v_sub_f32 v%d, v%d, v%d" % (B + k, B + k, B + 8))
                for k in range(3):
                    e("v_cvt_pk_f16_f32 v%d, v%d, v%d" % (B + 9 + k, B + 2 * k, B + 2 * k + 1))
                if P["fq"]:
                    continue
                if P["x12"]:
                    e("buffer_store_dwordx3 v[%d:%d], v%d, s[%d:%d], s%d offen offset:%d %s" %
                      (B + 8, B + 10, HN, PWS, PWS + 3, PE + 6, st * 768, P["st"]))
                elif P["xt"]:
                    for h in range(2):
                        e("buffer_atomic_swap_x2 v[%d:%d], v%d, s[%d:%d], s%d offen offset:%d%s" %
                          (B + 8 + 2 * h, B + 9 + 2 * h, HN, PWS, PWS + 3, PE + 6, st * 1024 + 8 * h, " sc1" if P["xt"] & 2 else ""))
                elif not P["xkp"] & 16:
                    e("buffer_store_dwordx4 v[%d:%d], v%d, s[%d:%d], s%d offen offset:%d %s" %
                      (B + 8, B + 11, HN, PWS, PWS + 3, PE + 6, st * 1024, P["st"]))
                if p == 0 and st == 0:
                    e("s_cbranch_scc1 L_fl0")
            if P["fq"]:
                e("s_memrealtime s[%d:%d]" % (PT, PT + 1))
                e("s_waitcnt lgkmcnt(0)")
                e("s_or_b32 s%d, s%d, %d" % (PT, PT, (1 << P["fq"]) - 1))
                twait(PT, PT + 2, 0)
                e("s_cmp_eq_u32 s%d, s%d" % (PDC + p, PDC + 3 + p))
                for st in range(4):
                    B = HX + 12 * st
                    e("buffer_store_dwordx4 v[%d:%d], v%d, s[%d:%d], s%d offen offset:%d %s" %
                      (B + 8, B + 11, HN, PWS, PWS + 3, PE + 6, st * 1024, P["st"]))
                    if p == 0 and st == 0:
                        e("s_cbranch_scc1 L_fl0")
        else:
            for k in range(6):
                e("ds_read_b128 v[%d:%d], v%d offset:%d" % (HX + 4 * k, HX + 4 * k + 3, HA, L_LG + p * PHI + k * 1024))
            if XZ:
                for k in range(6):
                    e("s_add_u32 s%d, s%d, %d" % (PE + k, PIA, p * PHS + img_k(k)))
            else:
                e("s_add_u32 s%d, s%d, %d" % (PE + 6, PIA, p * PHS))
                e("s_add_u32 s%d, s%d, %d" % (PE + 7, PIA, p * PHS + 4096))
            e("s_cmp_eq_u32 s%d, s%d" % (PDC + p, PDC + 3 + p))
            e("s_waitcnt lgkmcnt(0)")
            for k in range(6):
                if P["fw"]:
                    if k == 0:
                        e("s_memrealtime s[%d:%d]" % (PT, PT + 1))
                        e("s_waitcnt lgkmcnt(0)")
                    twait(PT, PT + 2, P["fw"])
                    e("s_cmp_eq_u32 s%d, s%d" % (PDC + p, PDC + 3 + p))
                if p == 0:
                    mk = sum(1 << l for l in range(64) if (64 * k + l) % 48 < (3 * N0 + 7) // 8 * 8)
                    e("s_cselect_b32 exec_lo, 0x%x, -1" % (mk & 0xffffffff))
                    e("s_cselect_b32 exec_hi, 0x%x, -1" % (mk >> 32))
                if XZ:
                    e("buffer_store_dwordx4 v[%d:%d], v%d, s[%d:%d], s%d offen %s" %
                      (HX + 4 * k, HX + 4 * k + 3, HN, PWS, PWS + 3, PE + k, P["st"]))
                elif not P["xkp"] & 16:
                    e("buffer_store_dwordx4 v[%d:%d], v%d, s[%d:%d], s%d offen offset:%d %s" %
                      (HX + 4 * k, HX + 4 * k + 3, HA, PWS, PWS + 3, PE + 6 + k // 4, (k % 4) * 1024, P["st"]))
            if p == 0:
                e("s_mov_b64 exec, -1")
            if P["wb"]:
                e("s_waitcnt vmcnt(0)")
                e("buffer_wbl2 sc1")
        e.label("L_fl%d" % p)
        e("v_mov_b32 v%d, %d" % (HE, p + 1))
        e("s_waitcnt vmcnt(0)")
        e("s_mov_b64 exec, 1")
        opt = p == 2 or (p == 1 and not P["jit"])
        if opt:
            e("s_cbranch_scc1 L_fn%d" % p)
        e("buffer_store_dword v%d, off, s[%d:%d], s%d sc1" % (HE, PWS, PWS + 3, PFA))
        if opt:
            e.label("L_fn%d" % p)
        e("ds_write_b32 v%d, v%d offset:%d" % (HZ, HE, L_FD))
        e("s_mov_b64 exec, -1")

    if FU:
        for i in range(4):
            e("v_mov_b32 v%d, 0" % (HX + i))
        for p in range(3):
            e("s_add_u32 s%d, s2, %d" % (PE, 256 * p))
            e("s_lshl_b32 s%d, s%d, 10" % (PE + 1, PE))
            e("s_lshl_b32 s%d, s%d, 6" % (PE, PE))
            e("s_add_u32 s%d, s%d, %d" % (PE, PE, WS_ML))
            if not (P["xkp"] & 512 and p < 2):
                e("buffer_store_dwordx4 v[%d:%d], v%d, s[%d:%d], s%d offen sc1" % (HX, HX + 3, HA, PWS, PWS + 3, PE + 1))
            e("s_mov_b64 exec, 15")
            e("buffer_store_dwordx4 v[%d:%d], v%d, s[%d:%d], s%d offen sc1" % (HX, HX + 3, HA, PWS, PWS + 3, PE))
            e("s_mov_b64 exec, -1")
    bias(0)
    if P["pf"] == 8:
        lds_wait("b0", HZ, HE, PE, L_PF, "nz", PSP)
    if P["jit"] and not P["be1"] & 1:
        lds_wait("b1", HZ, HE, PE, L_EV + 4, "1", PSP)
    if P["bw"] & 2:
        lds_wait("bw1", HZ, HE, PE, L_EV, "1", PSP)
    if P["bw"] & 8:
        lds_wait("bw3", HZ, HE, PE, L_DEC, "nz", PSP)
    bias(1)
    if not P["jit"]:
        if P["bw"] & 1:
            lds_wait("bw0", HZ, HE, PE, L_DEC, "nz", PSP)
        if P["bw"] & 4:
            lds_wait("bw2", HZ, HE, PE, L_EV, "4", PSP)
        bias(2)
    if P["pf"] in (7, 10):
        vpf(False, P["pf"] == 10)
    if P["xq"]:
        for p in range(3):
            if not P["xq"] >> p & 1:
                continue
            e("s_add_u32 s%d, s%d, %d" % (PE + p, PIA, p * PHS))
            for k in range(4):
                e("buffer_load_dwordx4 v[%d:%d], v%d, s[%d:%d], s%d offen offset:%d%s" % (HX, HX + 3, HA, PWS, PWS + 3, PE + p, k * 1024, " sc1" if P["xq"] & 8 else ""))
        e("s_waitcnt vmcnt(0)")
    get_dec("d0")
    flush(0)
    if P["jit"]:
        if not P["be1"] & 2:
            lds_wait("b2", HZ, HE, PE, L_EV + 4, "9", PSP)
        bias(2)
    flush(1)
    flush(2)
    if P["at"] and not BC:
        e("v_lshrrev_b32 v%d, 3, v%d" % (HC, HL))
        e("v_xor_b32 v%d, s%d, v%d" % (HC, PM, HC))
        e("v_lshrrev_b32 v%d, 1, v%d" % (HD, HC))
        e("v_and_b32 v%d, 1, v%d" % (HC, HC))
        e("v_lshl_or_b32 v%d, v%d, 2, v%d" % (HD, HC, HD))
        e("v_lshl_or_b32 v%d, v%d, 3, v%d" % (HD, HL, HD))
        e("v_mul_u32_u24 v%d, %d, v%d" % (HD, FSTR, HD))
        lds_wait("t1", HZ, HE, PE, L_TC, "4", PSP)
        e("s_memrealtime s[%d:%d]" % (PT, PT + 1))
        e("s_mov_b64 exec, 1")
        e("s_waitcnt lgkmcnt(0)")
        e("s_or_b32 s%d, s%d, 1" % (PT, PT))
        e("v_mov_b32 v%d, s%d" % (HB_, PT))
        e("buffer_store_dword v%d, off, s[%d:%d], s%d offset:4 sc1" % (HB_, PWS, PWS + 3, PFA))
        e("s_mov_b32 exec_lo, -1")
        e("s_mov_b32 s%d, %d" % (PE + 1, WS_G))
        lds_wait("t2", HZ, HE, PE, L_TC, "5", PSP)
        e("buffer_load_dword v%d, v%d, s[%d:%d], s%d offen offset:4 sc1" % (HB_, HD, PWS, PWS + 3, PE + 1))
        e("v_bfrev_b32 v%d, -2" % HC)
        e("s_mov_b32 s%d, -2048" % PE)
        e("s_waitcnt vmcnt(0)")
        e("v_cmp_eq_u32 vcc, 0, v%d" % HB_)
        e("v_subrev_u32 v%d, s%d, v%d" % (HB_, PT, HB_))
        e("v_cndmask_b32 v%d, v%d, v%d, vcc" % (HB_, HB_, HC))
        for st in (2048, 1024, 512, 256, 128, 64, 32, 16):
            e("s_add_u32 s%d, s%d, %d" % (PE + 1, PE, st))
            e("v_cmp_gt_i32 vcc, s%d, v%d" % (PE + 1, HB_))
            e("s_bcnt1_i32_b64 s%d, vcc" % (PE + 2))
            e("s_cmp_lt_u32 s%d, %d" % (PE + 2, P["aq"]))
            e("s_cselect_b32 s%d, s%d, s%d" % (PE, PE + 1, PE))
        e("s_mul_i32 s%d, s%d, %d" % (PE, PE, -P["ka"]))
        e("s_add_u32 s%d, s%d, %d" % (PE, PE, P["kb"]))
        e("s_ashr_i32 s%d, s%d, 10" % (PE, PE))
        e("s_max_i32 s%d, s%d, %d" % (PE, PE, P["dmin"]))
        e("s_min_i32 s%d, s%d, %d" % (PE, PE, min(P["dmax"], NT - P["te"])))
        e("s_sub_u32 s%d, %d, s%d" % (PE, NT, PE))
        e("s_cmp_eq_u32 s%d, %d" % (PE, NT))
        e("s_cselect_b32 s%d, 255, s%d" % (PE, PE))
        e("v_mov_b32 v%d, s%d" % (HB_, PE))
        e("ds_write_b32 v%d, v%d offset:%d" % (HZ, HB_, L_TD))
    e("s_endpgm")

    def last_gather():
        EL = P["fc"] == 4
        CSC = 24; CO = 96; CR0 = 56; CSO = 57; CHL = 58; CRB = 59; CN = 20
        COF = list(range(64, 76)) + list(range(84, 96))
        RB = HX + 16
        if EL:
            e("s_mov_b64 exec, -1")
            e("v_lshlrev_b32 v%d, 2, v%d" % (HR, HL))
            e("v_add_u32 v%d, %d, v%d" % (HG, L_ACC + 2 * NW * ROWB, HR))
            e("v_lshlrev_b32 v%d, 4, v%d" % (HK, HL))
        e("s_add_u32 s%d, s%d, 64" % (PE, PG))
        e("s_mul_i32 s%d, s%d, 171" % (PE, PE))
        e("s_lshr_b32 s%d, s%d, 9" % (PE, PE))
        e("s_mul_i32 s%d, s%d, %d" % (CHL, PE, FSTR))
        e("s_add_u32 s%d, s%d, %d" % (CHL, CHL, WS_G + ELN * FSTR))
        e("s_mul_i32 s%d, s%d, %d" % (CRB, PE, DH * 2))
        e("s_cmp_eq_u32 s%d, 21" % PE)
        e("s_cselect_b32 s%d, 15, 23" % CN)
        e("s_mul_i32 s%d, s%d, 24" % (PE, PE))
        e("s_add_u32 s%d, s2, 512" % PSG)
        e("s_sub_u32 s%d, s%d, s%d" % (CR0, PSG, PE))
        e("s_lshl_b32 s%d, s%d, 10" % (PSG, PSG))
        e("s_mov_b32 s%d, 0x40000" % PSP)
        e.label("L_fs")
        e("buffer_load_dword v%d, off, s[%d:%d], s%d offset:4 sc1" % (HA, PWS, PWS + 3, CHL))
        e("s_sub_u32 s%d, s%d, 1" % (PSP, PSP))
        e("s_cbranch_scc1 L_exit1")
        e("s_waitcnt vmcnt(0)")
        e("v_cmp_eq_u32 vcc, 0, v%d" % HA)
        e("s_cbranch_vccnz L_fs")
        e("buffer_load_dword v%d, v%d, s[%d:%d], s%d offen offset:128 sc1" % (HE, HR, PWS, PWS + 3, CHL))
        e("ds_read_b128 v[%d:%d], v%d offset:%d" % (HA, HD, HZ, L_ML + 32))
        e("v_xor_b32 v%d, 1, v%d" % (HF, HL))
        e("v_cmp_eq_u32 vcc, s%d, v%d" % (CR0, HL))
        e("v_cndmask_b32 v%d, v%d, v%d, vcc" % (HF, HL, HF))
        e("v_add_u32 v%d, s%d, v%d" % (HF, PE, HF))
        e("v_lshlrev_b32 v%d, 10, v%d" % (HF, HF))
        for r in range(24):
            e("v_readlane_b32 s%d, v%d, %d" % (COF[r], HF, r))
        srd(CO, 78, H * DH * 2)
        e("v_lshlrev_b32 v%d, 1, v%d" % (HR, HL))
        e("s_waitcnt vmcnt(0)")
        e("v_readlane_b32 s%d, v%d, s%d" % (CSO, HE, CR0))
        e("v_cndmask_b32 v%d, v%d, v%d, vcc" % (HE, HE, HZ))
        for r in range(24):
            e("v_readlane_b32 s%d, v%d, %d" % (CSC + r, HE, r))
        e("v_mov_b32 v%d, 1" % HV)
        if EL:
            if P["dry"] & 1:
                e("v_mov_b32 v%d, 4" % HE)
                e("s_mov_b64 vcc, 0")
                e("s_mov_b64 exec, 0")
                e("s_branch L_dry_in")
                e.lines.append("L_dry_ret:")
            e("s_mov_b64 exec, 1")
            lds_wait("el", HZ, HE, PE, L_EL, "4", PSP)
            e("buffer_atomic_add v%d, off, s[%d:%d], s%d sc0" % (HV, PWS, PWS + 3, CHL))
            e("s_mov_b64 exec, -1")
            e("s_waitcnt vmcnt(0)")
            e("v_readfirstlane_b32 s%d, v%d" % (PE, HV))
            e("s_cmp_lg_u32 s%d, s%d" % (PE, CN))
            e("s_cbranch_scc1 L_exit1")
            e.lines.append("L_dry_in:")
            for r in range(24):
                e("buffer_load_dwordx4 v[%d:%d], v%d, s[%d:%d], s%d offen sc1" % (RB + 4 * r, RB + 4 * r + 3, HK, PWS, PWS + 3, COF[r]))
        lds_wait("n", HZ, HE, PE, L_CA + 8, "4", PSP)
        for kk in range(3):
            for w in range(NW):
                e("ds_read_b32 v%d, v%d offset:%d" % (HX + kk * NW + w, HG, w * ROWB + kk * 256))
        if not EL:
            e("s_mov_b64 exec, 1")
            e("buffer_atomic_add v%d, off, s[%d:%d], s%d sc0" % (HV, PWS, PWS + 3, CHL))
            e("s_mov_b64 exec, -1")
        e("s_mov_b32 s%d, 0x40000" % PSP)
        for kk in range(3):
            b = HX + kk * NW
            e("s_waitcnt lgkmcnt(%d)" % (8 - 4 * kk))
            e("v_add_f32 v%d, v%d, v%d" % (b, b, b + 1))
            e("v_add_f32 v%d, v%d, v%d" % (b + 2, b + 2, b + 3))
            e("v_sub_f32 v%d, v%d, v%d" % (b, b, HC))
            e("v_add_f32 v%d, v%d, v%d" % (HX + 12 + kk, b, b + 2))
        if EL:
            e("s_cbranch_execnz L_fr2" if P["dry"] & 1 else "s_branch L_fr2")
        else:
            e("buffer_store_dwordx4 v[%d:%d], v%d, s[%d:%d], s%d offen sc1" % (HX + 12, HX + 15, HK, PWS, PWS + 3, PSG))
        if P["stamp"] == 5 and not EL:
            e("s_memrealtime s[%d:%d]" % (PE + 4, PE + 5))
        if 2 <= P["fc"] < 4:
            e("s_waitcnt vmcnt(%d)" % (P["fc"] - 2))
            e("v_readfirstlane_b32 s%d, v%d" % (PE, HV))
            e("s_cmp_lg_u32 s%d, s%d" % (PE, CN))
            e("s_cbranch_scc1 L_fx")
        e.label("L_fr")
        for r in range(24):
            e("buffer_load_dwordx4 v[%d:%d], v%d, s[%d:%d], s%d offen sc1" % (RB + 4 * r, RB + 4 * r + 3, HK, PWS, PWS + 3, COF[r]))
        e.lines.append("L_fr2:")
        for k, a_ in enumerate((HA, HB_, HC)):
            e("v_mul_f32 v%d, s%d, v%d" % (a_, CSO, HX + 12 + k))
        e("v_mov_b32 v%d, 1" % HD)
        e("s_sub_u32 s%d, s%d, 1" % (PSP, PSP))
        e("s_cbranch_scc1 L_exit1")
        for r in range(24):
            if r % 2 == 0:
                e("s_waitcnt vmcnt(%d)" % (22 - r))
            for k, a_ in enumerate((HA, HB_, HC)):
                e("v_fmac_f32 v%d, s%d, v%d" % (a_, CSC + r, RB + 4 * r + k))
            if r % 2:
                e("v_min3_u32 v%d, v%d, v%d, v%d" % (HD, HD, RB + 4 * r - 1, RB + 4 * r + 3))
        if P["fc"] == 1:
            e("v_readfirstlane_b32 s%d, v%d" % (PE, HV))
        e("v_cmp_eq_u32 vcc, 0, v%d" % HD)
        for a_ in (HA, HB_, HC):
            e("v_cvt_pk_bf16_f32 v%d, v%d, v%d" % (a_, a_, a_))
        if P["fc"] == 1:
            e("s_cmp_lg_u32 s%d, s%d" % (PE, CN))
            e("s_cbranch_scc1 L_fx")
        e("s_cbranch_vccnz L_fr")
        for k, a_ in enumerate((HA, HB_, HC)):
            e("buffer_store_short v%d, v%d, s[%d:%d], s%d offen offset:%d %s" % (a_, HR, CO, CO + 3, CRB, k * 128, P["os"]))
        if EL and P["dry"] & 1:
            e("s_cbranch_execz L_dry_ret")
        if P["stamp"] == 5:
            e("s_memrealtime s[%d:%d]" % (PT, PT + 1))
            e("s_waitcnt vmcnt(0)")
            e("s_memrealtime s[%d:%d]" % (PT + 2, PT + 3))
            srd(PS2, 82, 0x8000000)
            e("s_waitcnt lgkmcnt(0)")
            e("v_mov_b32 v%d, s%d" % (HX, PT))
            e("v_mov_b32 v%d, s%d" % (HX + 1, PT + 2))
            e("v_mov_b32 v%d, s%d" % (HX + 2, PSP))
            e("s_mul_i32 s%d, s%d, 171" % (PE, CRB))
            e("s_lshr_b32 s%d, s%d, 16" % (PE, PE))
            e("s_lshl_b32 s%d, s%d, 4" % (PE, PE))
            e("s_add_u32 s%d, s%d, 0x4009000" % (PE, PE))
            e("s_mov_b64 exec, 1")
            e("buffer_store_dwordx4 v[%d:%d], off, s[%d:%d], s%d" % (HX, HX + 3, PS2, PS2 + 3, PE))
        e.lines.append("L_fx:")
        if P["stamp"] == 5 and not EL:
            srd(PS2, 82, 0x8000000)
            e("s_memrealtime s[%d:%d]" % (PT + 2, PT + 3))
            e("s_waitcnt lgkmcnt(0)")
            e("v_mov_b32 v%d, s%d" % (HX, PE + 4))
            e("v_mov_b32 v%d, s%d" % (HX + 1, PT + 2))
            e("s_lshl_b32 s%d, s2, 3" % PE)
            e("s_add_u32 s%d, s%d, 0x400a000" % (PE, PE))
            e("s_mov_b64 exec, 1")
            e("buffer_store_dwordx2 v[%d:%d], off, s[%d:%d], s%d" % (HX, HX + 1, PS2, PS2 + 3, PE))
        e("s_endpgm")

    if BC:
        e.label("L_h3")
        e("s_waitcnt lgkmcnt(0)")
        srd_ws(PWS)
        if not EB:
            e("s_barrier")
        if P["pf"] in (5, 6):
            vpf(P["pf"] == 6)
        if P["pf"] == 9:
            vpf(False, True)
        if P["pf"] == 8:
            srd(PS2, 70, H * NGRP * DH * 2)
            srd(PS3, 72, H * NGRP * DH * 2)
            e("v_lshlrev_b32 v%d, 4, v%d" % (HE, HL))
            if P["pd"]:
                e("s_add_u32 s%d, s%d, %d" % (PST, PST, P["pd"]))
                twait(PST, PT, P["pe"])
            for ph in (1, 2):
                e("s_mov_b32 s%d, %d" % (PPH, ph))
                seg_scalars()
                e("s_mul_i32 s%d, s%d, 24" % (PE + 1, PM))
                e("s_add_u32 s%d, s%d, s%d" % (PE + 2, PE + 1, PG0))
                e("s_mul_i32 s%d, s%d, %d" % (PE, PE + 2, DH * 2))
                e("v_add_u32 v%d, s%d, v%d" % (HA, PE, HE))
                e("v_add_u32 v%d, 0x1000, v%d" % (HB_, HA))
                e("v_add_u32 v%d, 0x2000, v%d" % (HC, HA))
                for sr in (PS2, PS3):
                    for k in range(9):
                        e("buffer_load_dwordx4 v[%d:%d], v%d, s[%d:%d], 0 offen offset:%d" % (HX + 64, HX + 67, (HA, HB_, HC)[k // 4], sr, sr + 3, (k % 4) * 1024))
                if P["pe"]:
                    twait(PST, PT, P["pe"])
            vpf(False)
            e("v_mov_b32 v%d, 1" % HE)
            e("ds_write_b32 v%d, v%d offset:%d" % (HZ, HE, L_PF))
        e("v_lshlrev_b32 v%d, 2, v%d" % (HD, HL))
        e("s_mul_i32 s%d, s%d, %d" % (PO, PM, FSTR))
        e("s_add_u32 s%d, s%d, %d" % (PO, PO, WS_T))
        e("s_lshl_b32 s%d, s%d, 2" % (PFL, PG))
        e("s_add_u32 s%d, s%d, s%d" % (PFL, PFL, PO))
        if GTS:
            cps = CPK + [48 + c for c in CPV]
            sel = [max(j for j, c in enumerate(cps) if c + P["tg"] + P["rd"] < b) for b in GTS]
            e("s_mov_b32 s%d, 0x%x" % (PRN, sum(1 << j for j in sel)))
            e("v_lshrrev_b32 v%d, 2, v%d" % (HG, HL))
            e("v_mul_u32_u24 v%d, %d, v%d" % (HG, FSTR, HG))
            e("v_and_or_b32 v%d, v%d, 12, v%d" % (HG, HD, HG))
            e("s_and_b32 s%d, s%d, 3" % (PBK, PM))
            e("s_mul_i32 s%d, s%d, %d" % (PNR, PBK, FSTR))
            e("s_lshl_b32 s%d, s%d, 2" % (PBK, PBK))
            e("v_mov_b32 v%d, %d" % (HK, L_GT))
        e("s_mov_b32 s%d, %d" % (PJ, P["pw"]))
        e("v_mov_b32 v%d, %d" % (HW, L_TM))
        e("v_bfrev_b32 v%d, -2" % HC)
        e("s_mov_b32 exec_hi, 0")
        e.label("L_h3loop")
        lds_wait("p1", HZ, HE, PE, L_TC, "s%d" % PJ, PSP)
        e("s_memrealtime s[%d:%d]" % (PT, PT + 1))
        e("s_add_u32 s%d, s%d, %d" % (PJ, PJ, 5 - P["pw"]))
        e("s_mov_b32 exec_lo, 1")
        e("s_waitcnt lgkmcnt(0)")
        e("v_mov_b32 v%d, s%d" % (HB_, PT))
        e("buffer_store_dword v%d, off, s[%d:%d], s%d" % (HB_, PWS, PWS + 3, PFL))
        e("s_mov_b32 exec_lo, -1")
        if P["xs"]:
            XS = P["xs"]
            e("s_lshl_b32 s%d, s2, %d" % (PE, 10 if XS & 8 else 12))
            e("s_add_u32 s%d, s%d, 0x700000" % (PE, PE))
            e("v_lshlrev_b32 v%d, 4, v%d" % (HX, HL))
            e("s_mov_b64 exec, %s" % ("-1" if XS & 2 else "1"))
            e("v_lshlrev_b32 v%d, 4, v%d" % (HX, HL))
            for k in range(4 if XS & 16 else 1):
                e("buffer_%s_dwordx4 v[%d:%d], v%d, s[%d:%d], s%d offen offset:%d %s" %
                  ("load" if XS & 4 else "store", HX + 4, HX + 7, HX, PWS, PWS + 3, PE, 1024 * k, "sc1" if XS & 1 else "" if not XS & 32 else "sc0 sc1"))
            e("s_mov_b64 exec, 0xffffffff")
        lds_wait("p2", HZ, HE, PE, L_TC, "s%d" % PJ, PSP)
        e("buffer_load_dword v%d, v%d, s[%d:%d], s%d offen sc0" % (HB_, HD, PWS, PWS + 3, PO))
        e("s_add_u32 s%d, s%d, 4" % (PJ, PJ))
        e("s_sub_u32 s%d, s%d, 4096" % (PT, PT))
        e("s_waitcnt vmcnt(0)")
        e("v_subrev_u32 v%d, s%d, v%d" % (HB_, PT, HB_))
        e("v_cmp_gt_u32 vcc, 8192, v%d" % HB_)
        e("v_cndmask_b32 v%d, v%d, v%d, vcc" % (HB_, HC, HB_))
        e("s_mov_b32 s%d, 2048" % PE)
        for st in (2048, 1024, 512, 256, 128, 64, 32, 16, 8):
            e("s_add_u32 s%d, s%d, %d" % (PE + 1, PE, st))
            e("v_cmp_gt_u32 vcc, s%d, v%d" % (PE + 1, HB_))
            e("s_bcnt1_i32_b64 s%d, vcc" % (PE + 2))
            e("s_cmp_lt_u32 s%d, %d" % (PE + 2, P["aq"]))
            e("s_cselect_b32 s%d, s%d, s%d" % (PE, PE + 1, PE))
        e("s_add_u32 s%d, s%d, s%d" % (PE + 1, PE, PT))
        e("s_or_b32 s%d, s%d, 1" % (PE + 1, PE + 1))
        e("v_mov_b32 v%d, s%d" % (HB_, PE + 1))
        e("ds_write_b32 v%d, v%d" % (HW, HB_))
        e("v_add_u32 v%d, 4, v%d" % (HW, HW))
        if GTS:
            e("s_bitcmp1_b32 s%d, 0" % PRN)
            e("s_cbranch_scc0 L_h3ng")
            e("s_cmp_lt_u32 s%d, 6136" % PE)
            e("s_cselect_b32 exec_lo, 1, 0")
            e("s_cmp_lt_u32 s%d, 4" % PG)
            e("s_cselect_b32 exec_lo, exec_lo, 0")
            e("buffer_store_dword v%d, off, s[%d:%d], s%d offset:2048 sc1" % (HB_, PWS, PWS + 3, PFL))
            e("s_mov_b32 exec_lo, 0xffff")
            e("s_add_u32 s%d, s%d, %d" % (PE + 3, PJ, P["gq"]))
            lds_wait("p3", HZ, HE, PE, L_TC, "s%d" % (PE + 3), PSP)
            e("s_sub_u32 s%d, s%d, s%d" % (PE + 3, PO, PNR))
            e("s_mov_b32 s%d, %d" % (PSP, P["gn"]))
            e("s_mov_b32 s%d, 0" % PE)
            if P["gl2"]:
                e("buffer_load_dword v%d, v%d, s[%d:%d], s%d offen offset:2048" % (HA, HG, PWS, PWS + 3, PE + 3))
                e("s_branch L_h3gq")
            e.label("L_h3gp")
            e("buffer_load_dword v%d, v%d, s[%d:%d], s%d offen offset:2048 sc1" % (HA, HG, PWS, PWS + 3, PE + 3))
            e("s_sub_u32 s%d, s%d, 1" % (PSP, PSP))
            e("s_cbranch_scc1 L_h3gw")
            e.lines.append("L_h3gq:")
            e("s_waitcnt vmcnt(0)")
            e("v_subrev_u32 v%d, s%d, v%d" % (HA, PT, HA))
            e("v_cmp_gt_u32 vcc, 8192, v%d" % HA)
            e("v_cndmask_b32 v%d, v%d, v%d, vcc" % (HA, HC, HA))
            e("v_min_u32_dpp v%d, v%d, v%d quad_perm:[1,0,3,2] row_mask:0xf bank_mask:0xf" % (HA, HA, HA))
            e("v_min_u32_dpp v%d, v%d, v%d quad_perm:[2,3,0,1] row_mask:0xf bank_mask:0xf" % (HA, HA, HA))
            e("v_cmp_eq_u32 vcc, v%d, v%d" % (HC, HA))
            e("s_cbranch_vccnz L_h3gp")
            for k in range(4):
                e("v_readlane_b32 s%d, v%d, %d" % (PE + 4 + k, HA, 4 * k))
            e("v_readlane_b32 s%d, v%d, s%d" % (PE + 1, HA, PBK))
            e("s_max_u32 s%d, s%d, s%d" % (PE + 4, PE + 4, PE + 5))
            e("s_max_u32 s%d, s%d, s%d" % (PE + 6, PE + 6, PE + 7))
            e("s_max_u32 s%d, s%d, s%d" % (PE, PE + 4, PE + 6))
            e("s_sub_u32 s%d, s%d, s%d" % (PE, PE, PE + 1))
            e("s_sub_u32 s%d, s%d, %d" % (PE, PE, P["gtol"]))
            e("s_max_i32 s%d, s%d, 0" % (PE, PE))
            e("s_min_i32 s%d, s%d, %d" % (PE, PE, P["gcap"]))
            e.label("L_h3gw")
            e("s_or_b32 s%d, s%d, 0x10000" % (PE, PE))
            e("v_mov_b32 v%d, s%d" % (HB_, PE))
            e("ds_write_b32 v%d, v%d" % (HK, HB_))
            e("s_mov_b32 exec_lo, -1")
            e("v_add_u32 v%d, 4, v%d" % (HK, HK))
            e("s_waitcnt vmcnt(0)")
            e.label("L_h3ng")
            e("s_lshr_b32 s%d, s%d, 1" % (PRN, PRN))
        e("s_add_u32 s%d, s%d, %d" % (PJ, PJ, 3 + P["pw"]))
        e("s_add_u32 s%d, s%d, 128" % (PO, PO))
        e("s_add_u32 s%d, s%d, 128" % (PFL, PFL))
        e("s_cmp_lt_u32 s%d, %d" % (PJ, 12 * (len(CPK) + len(CPV))))
        e("s_cbranch_scc1 L_h3loop")
        if P["fc"] == 4:
            last_gather()
        else:
            e("s_endpgm")

    e.label("L_h2")
    srd(PS2, 74, H * SKV * 2)
    srd(PS3, 76, H * SKV * 2)
    if 2 <= P["pf"] <= 4:
        if P["pf"] == 2:
            lds_wait("pf", HZ, HE, PE, L_EV + 4, "1", PSP)
        if P["pf"] == 4:
            lds_wait("pf", HZ, HE, PE, L_EV, "1", PSP)
        e("v_lshlrev_b32 v%d, 4, v%d" % (HA, HL))
        e("s_lshl_b32 s%d, s2, 13" % PE)
        e("s_add_u32 s%d, s%d, 4096" % (PE + 1, PE))
        for a, sr in enumerate((PS2, PS3)):
            for k in range(8):
                r = HX + 4 * (a * 8 + k)
                e("buffer_load_dwordx4 v[%d:%d], v%d, s[%d:%d], s%d offen offset:%d" % (r, r + 3, HA, sr, sr + 3, PE + k // 4, (k % 4) * 1024))
        e("s_waitcnt vmcnt(0)")
    get_dec("d2")
    PSIX = 24
    PKW = 32; PNEED = 33; PN0 = 34; PIM = 35; PCH = 36; PCC = 37; PMG = 38; PWD = 39; PIS = 40
    PGT = 42
    HT = HW
    HP = HX + 88; PXM = 64
    e("v_and_b32 v%d, 3, v%d" % (HT, HL))
    e("v_and_b32 v%d, 7, v%d" % (HT2, HL))
    e("v_lshrrev_b32 v%d, 2, v%d" % (HR, HL))
    PMB = [int(c) for c in P["pm"]]
    if CM:
        e("v_mov_b32 v%d, v%d" % (HB_, HR))
        e("v_mov_b32 v%d, 0" % HR)
        for i in range(4):
            e("v_bfe_i32 v%d, v%d, %d, 1" % (HA, HB_, i))
            e("v_and_b32 v%d, %d, v%d" % (HA, CM[i], HA))
            e("v_xor_b32 v%d, v%d, v%d" % (HR, HR, HA))
    elif P["pm"] != "012345":
        e("v_mov_b32 v%d, v%d" % (HB_, HR))
        e("v_and_b32 v%d, %d, v%d" % (HR, sum(1 << i for i in range(4) if PMB[i] == i), HB_))
        for sh in sorted(set(PMB[i] - i for i in range(4)) - {0}):
            e("v_and_b32 v%d, %d, v%d" % (HA, sum(1 << i for i in range(4) if PMB[i] - i == sh), HB_))
            e("v_%s_b32 v%d, %d, v%d" % ("lshlrev" if sh > 0 else "lshrrev", HA, abs(sh), HA))
            e("v_or_b32 v%d, v%d, v%d" % (HR, HR, HA))
    if P["am"] == 3:
        for i, c in enumerate(P["xm"].split("-")):
            assert 0 <= int(c) < 64
            if int(c):
                e("s_bitcmp1_b32 s%d, %d" % (PG, i))
                e("s_cselect_b32 s%d, %d, 0" % (PE, int(c)))
                e("v_xor_b32 v%d, s%d, v%d" % (HR, PE, HR))
    e("s_mov_b32 s%d, %s" % (PCC, f32hex(C)))
    e("s_mov_b32 s%d, 0xaaaaaaab" % PMG)
    e("s_mov_b32 s%d, 0" % PPH)
    HPG = HP + 1 if XZ else HP
    if XZ:
        e("s_lshl_b32 s%d, s%d, 3" % (PIM, PG))
        img_base(PIM, PIM, PE)
        img_lane(HPG, HA)
    else:
        e("s_mul_i32 s%d, s%d, %d" % (PIM, PG, 8 * IMS))
    e("s_add_u32 s%d, s%d, %d" % (PIM, PIM, WS_L))
    e("s_mov_b32 s%d, %d" % (PIS, XZ or IMS))
    e("v_lshlrev_b32 v%d, 5, v%d" % (HN, HL))
    e("v_lshrrev_b32 v%d, 3, v%d" % (HK, HL))
    e("v_mul_u32_u24 v%d, 24, v%d" % (HK, HK))
    e("v_mov_b32 v%d, 768" % HA)
    e("v_mad_u32_u24 v%d, v%d, v%d, v%d" % (HK, HT2, HA, HK))
    if CX:
        e("v_lshrrev_b32 v%d, 3, v%d" % (HA, HL))
        e("v_lshlrev_b32 v%d, 7, v%d" % (HP, HT2))
        e("v_lshl_add_u32 v%d, v%d, 4, v%d" % (HP, HA, HP))
        if P["cl"]:
            e("v_lshlrev_b32 v%d, 4, v%d" % (HP + 1, HL))
        if P["x12"]:
            for r in (HP, HP + 1):
                e("v_lshrrev_b32 v%d, 4, v%d" % (r, r))
                e("v_mul_u32_u24 v%d, 12, v%d" % (r, r))
    else:
        e("v_lshlrev_b32 v%d, 4, v%d" % (HP, HL))
    e("s_mov_b32 s%d, %d" % (PN0, (2 if CX else 3) * N0))
    RS = 16
    e.label("L_prep")
    seg_scalars()
    e("s_mov_b32 s%d, s%d" % (PKW, PDC))
    e("s_mov_b32 s%d, s%d" % (PWD, PDC + 3))
    for i in (0, 1, 3, 4):
        e("s_mov_b32 s%d, s%d" % (PDC + i, PDC + i + 1))
    e("s_lshl_b32 s%d, s%d, 3" % (PNEED, PPH))
    e("s_add_u32 s%d, s%d, 1" % (PNEED, PNEED))
    if P["pf"] == 1:
        lds_wait("pf", HZ, HE, PE, L_EV + 4, "s%d" % PNEED, PSP)
        e("v_lshlrev_b32 v%d, 4, v%d" % (HA, HL))
        e("s_mul_i32 s%d, s%d, 2736" % (PE + 1, PM))
        e("s_lshl_b32 s%d, s%d, 16" % (PE, PSG))
        e("s_mul_hi_u32 s%d, s%d, 0xaaaaaaab" % (PE, PE))
        e("s_lshr_b32 s%d, s%d, 5" % (PE, PE))
        e("s_lshl_b32 s%d, s%d, 4" % (PE, PE))
        e("s_add_u32 s%d, s%d, s%d" % (PE, PE, PE + 1))
        if P["pp"]:
            e("s_memrealtime s[%d:%d]" % (PGT, PGT + 1))
            e("s_waitcnt lgkmcnt(0)")
        for a, sr in enumerate((PS2, PS3)):
            if a and P["bs"] & 4:
                e("s_add_u32 s%d, s%d, %d" % (PE + 1, PNEED, P["bz"] - 1))
                lds_wait("pz", HZ, HE, PE + 2, L_EV + 4, "s%d" % (PE + 1), PSP)
            for k in range(3):
                r = HX + 4 * RS + 4 * (a * 3 + k)
                if P["pp"]:
                    twait(PGT, PGT + 2, P["pp"])
                e("buffer_load_dwordx4 v[%d:%d], v%d, s[%d:%d], s%d offen offset:%d%s" % (r, r + 3, HA, sr, sr + 3, PE, k * 1024, " nt" if P["bnt"] & 8 else ""))
    for w, hv in ((PWD, HV),):
        e("s_and_b32 s%d, s%d, 7" % (PE, w))
        e("v_mov_b32 v%d, s%d" % (hv, PE))
        e("s_bitcmp1_b32 s%d, 3" % w)
        e("s_cselect_b64 vcc, -1, 0")
        e("v_cndmask_b32 v%d, v%d, v%d, vcc" % (hv, hv, HT2))
    e("v_xor_b32 v%d, s%d, v%d" % (HG, PNB, HV))
    e("v_lshl_or_b32 v%d, v%d, 3, v%d" % (HG, HT, HG))
    e("s_lshl_b32 s%d, s%d, 6" % (PCH, PSG))
    e("s_mul_i32 s%d, s%d, 768" % (PE + 1, PSG))
    e("s_lshl_b32 s%d, s%d, 2" % (PE + 2, PG0))
    e("s_sub_u32 s%d, s%d, s%d" % (PE + 1, PE + 1, PE + 2))
    e("s_add_u32 s%d, s%d, %d" % (PE + 1, PE + 1, WS_B))
    if P["pace"]:
        e("s_add_u32 s%d, s%d, 4" % (PNEED, PNEED))
        lds_wait("ga", HZ, HE, PE, L_EV + 4, "s%d" % PNEED, PSP)
    else:
        e("s_add_u32 s%d, s%d, 1" % (PNEED, PPH))
        lds_wait("ga", HZ, HE, PE, L_FD, "s%d" % PNEED, PSP)
    def first_token(st):
        e("v_xor_b32 v%d, %d, v%d" % (HA, ((st & 1) * CM[4]) ^ ((st >> 1) * CM[5]) if CM else ((st & 1) << PMB[4]) | ((st >> 1) << PMB[5]), HR))
        e("v_bfe_u32 v%d, v%d, 3, 2" % (HB_, HA))
        e("v_and_or_b32 v%d, v%d, 4, v%d" % (HB_, HA, HB_))
        e("v_xor_b32 v%d, v%d, v%d" % (HB_, HG, HB_))
        e("v_add_u32 v%d, s%d, v%d" % (HA, PCH, HA))
        e("v_lshl_add_u32 v%d, v%d, 5, v%d" % (HC, HA, HB_))
        e("v_lshl_add_u32 v%d, v%d, 4, 1" % (HC, HC))
        e("v_mul_hi_u32 v%d, v%d, s%d" % (HC, HC, PMG))
        e("v_lshrrev_b32 v%d, 1, v%d" % (HC, HC))

    def gathers(st):
        R = HX + RS * st
        e("v_lshrrev_b32 v%d, 1, v%d" % (HF, HC))
        e("v_lshlrev_b32 v%d, 2, v%d" % (HF, HF))
        for b, sr in ((R + 8, PS2), (R + 12, PS3)):
            if P["xkp"] & 8:
                continue
            gnt = " nt" if P["bnt"] & 16 else ""
            if P["gp"]:
                if st == 0 and sr == PS2:
                    e("s_memrealtime s[%d:%d]" % (PGT, PGT + 1))
                    e("s_waitcnt lgkmcnt(0)")
                n = P["gs"]
                for q in range(n):
                    twait(PGT, PGT + 2, P["gp"])
                    if n > 1:
                        mk = ((1 << (64 // n)) - 1) << (64 // n * q)
                        e("s_mov_b32 exec_lo, 0x%x" % (mk & 0xffffffff))
                        e("s_mov_b32 exec_hi, 0x%x" % (mk >> 32))
                    if P["gf"]:
                        e("buffer_load_dwordx4 v[%d:%d], v%d, s[%d:%d], 0 offen %s" % (b, b + 3, HF, sr, sr + 3, P["gf"].replace("x", "")))
                        continue
                    e("buffer_load_dwordx3 v[%d:%d], v%d, s[%d:%d], 0 offen%s" % (b, b + 2, HF, sr, sr + 3, gnt))
                    e("buffer_load_dword v%d, v%d, s[%d:%d], 0 offen offset:12%s" % (b + 3, HF, sr, sr + 3, gnt))
                e("s_mov_b64 exec, -1")
                continue
            e("buffer_load_dwordx3 v[%d:%d], v%d, s[%d:%d], 0 offen%s" % (b, b + 2, HF, sr, sr + 3, gnt))
            if P["pace"] == 2:
                e("s_waitcnt vmcnt(0)")
            e("buffer_load_dword v%d, v%d, s[%d:%d], 0 offen offset:12%s" % (b + 3, HF, sr, sr + 3, gnt))

    for st in range(4):
        R = HX + RS * st
        first_token(st)
        if not P["go"]:
            gathers(st)
        e("v_lshrrev_b32 v%d, 6, v%d" % (R + 6, HC))
        e("v_lshl_add_u32 v%d, v%d, 2, s%d" % (R + 6, R + 6, PE + 1))
        e("v_and_b32 v%d, 15, v%d" % (HD, HC))
        e("v_cmp_eq_u32 s[%d:%d], 5, v%d" % (PSIX + 2 * st, PSIX + 2 * st + 1, HD))
        e("v_and_b32 v%d, 1, v%d" % (R + 7, HC))
        e("v_lshlrev_b32 v%d, 4, v%d" % (R + 7, R + 7))
        if P["pace"] == 1:
            e("s_waitcnt vmcnt(0)")
    e("s_add_u32 s%d, s%d, 1" % (PNEED, PPH))
    if P["fd"]:
        cps = CPK + [48 + c for c in CPV]
        th = [12 * min(j for j, c in enumerate(cps) if c > b) + P["fd"] for b in (16, 32, 48)]
        assert th[2] - th[1] == th[1] - th[0]
        e("s_mul_i32 s%d, s%d, %d" % (PE + 6, PPH, th[1] - th[0]))
        e("s_add_u32 s%d, s%d, %d" % (PE + 6, PE + 6, th[0]))
        lds_wait("fe", HZ, HE, PE, L_TC, "s%d" % (PE + 6), PSP)
    lds_wait("fd", HZ, HE, PE, L_FD, "s%d" % PNEED, PSP)
    e("v_mul_u32_u24 v%d, %d, v%d" % (HA, FSTR, HL))
    e("s_xor_b32 s%d, s%d, s%d" % (PE, PKW, PWD))
    e("s_xor_b32 s%d, s%d, s%d" % (PE, PE, PNB))
    e("s_and_b32 s%d, s%d, 7" % (PE, PE))
    e("v_mov_b32 v%d, s%d" % (HC, PNEED))
    e("s_lshl_b64 vcc, 1, s%d" % PE)
    e("s_or_b32 s%d, s%d, s%d" % (PE, PKW, PWD))
    e("s_bitcmp1_b32 s%d, 3" % PE)
    e("s_cselect_b64 vcc, 0xff, vcc")
    e("s_cmp_eq_u32 s%d, s%d" % (PKW, PWD))
    e("s_cselect_b64 vcc, 0, vcc")
    e("s_max_u32 s%d, s%d, 1" % (PE, PPH))
    e("v_mov_b32 v%d, s%d" % (HD, PE))
    e("v_cndmask_b32 v%d, v%d, v%d, vcc" % (HC, HD, HC))
    e("s_cmp_%s_u32 s%d, 1" % ("eq" if P["jit"] else "ge", PPH))
    e("s_cselect_b64 exec, vcc, 0xff")
    e("s_mov_b32 s%d, 0x40000" % PSP)
    if not P["xkp"] & 64:
        e("s_cbranch_execz L_noflags")
        e.label("L_flags")
        e("buffer_load_dword v%d, v%d, s[%d:%d], s%d offen sc1" % (HB_, HA, PWS, PWS + 3, PGL))
        e("s_sub_u32 s%d, s%d, 1" % (PSP, PSP))
        e("s_cbranch_scc1 L_exit1")
        e("s_waitcnt vmcnt(0)")
        e("v_cmpx_gt_u32 vcc, v%d, v%d" % (HC, HB_))
        e("s_cbranch_execnz L_flags")
        e.label("L_noflags")
    e("s_mov_b64 exec, -1")
    for st in range(4):
        R = HX + RS * st
        if not P["xkp"] & 32:
            e("buffer_load_dword v%d, v%d, s[%d:%d], 0 offen sc1" % (R + 6, R + 6, PWS, PWS + 3))
    e("s_bitcmp1_b32 s%d, 3" % PWD)
    e("s_cselect_b32 s%d, 0, 7" % (PE + 1))
    e("s_xor_b32 s%d, s%d, s%d" % (PE + 2, PKW, PWD))
    e("s_bitcmp1_b32 s%d, 3" % (PE + 2))
    e("s_cselect_b32 s%d, 7, 0" % (PE + 3))
    e("s_and_b32 s%d, s%d, 7" % (PE + 2, PE + 2))
    e("s_and_b32 s%d, s%d, 7" % (PE + 4, PWD))
    if CX:
        e("v_lshrrev_b32 v%d, 3, v%d" % (HA, HL))
        e("v_cmp_gt_u32 vcc, s%d, v%d" % (PN0, HA))
        e("v_and_b32 v%d, s%d, v%d" % (HC, PE + 3, HT2))
        e("v_xor_b32 v%d, s%d, v%d" % (HC, PE + 2, HC))
        e("v_and_b32 v%d, s%d, v%d" % (HB_, PE + 1, HT2))
        e("v_xor_b32 v%d, s%d, v%d" % (HB_, PE + 4, HB_))
        e("v_cndmask_b32 v%d, v%d, v%d, vcc" % (HB_, HC, HB_))
        for k, hv in enumerate((HB_, HC)):
            e("v_cmp_ne_u32 s[%d:%d], 0, v%d" % (PXM + 2 * k, PXM + 2 * k + 1, hv))
            e("v_xor_b32 v%d, s%d, v%d" % (hv, PNB, hv))
            e("v_mad_u32_u24 v%d, v%d, s%d, v%d" % (hv, hv, PIS, HP + 1 if P["cl"] and k else HP))
        if P["cl"]:
            e("v_mov_b32 v%d, v%d" % (HP, HP + 1))
        for st in range(4):
            R = HX + 4 * RS + 4 * st
            if st < 2:
                e("s_mov_b64 exec, s[%d:%d]" % (PXM + 2 * st, PXM + 2 * st + 1))
            if P["x12"]:
                e("buffer_load_dwordx3 v[%d:%d], v%d, s[%d:%d], s%d offen offset:%d sc1" %
                  (R, R + 2, HC if st else HB_, PWS, PWS + 3, PIM, st * 768))
            elif not P["xkp"] & 128:
                e("buffer_load_dwordx4 v[%d:%d], v%d, s[%d:%d], s%d offen offset:%d sc1" %
                  (R, R + 3, HC if st else HB_, PWS, PWS + 3, PIM, st * 1024))
        e("s_mov_b64 exec, -1")
    else:
        e("s_add_u32 s%d, s%d, 4096" % (PE + 5, PIM))
        for k in range(6):
            R = HX + 4 * RS + 4 * k
            e("v_add_u32 v%d, %d, v%d" % (HA, 64 * k, HL))
            e("v_mul_u32_u24 v%d, 1366, v%d" % (HB_, HA))
            e("v_lshrrev_b32 v%d, 16, v%d" % (HB_, HB_))
            e("v_mul_u32_u24 v%d, 48, v%d" % (HC, HB_))
            e("v_sub_u32 v%d, v%d, v%d" % (HA, HA, HC))
            e("v_cmp_gt_u32 vcc, s%d, v%d" % (PN0, HA))
            e("v_and_b32 v%d, s%d, v%d" % (HC, PE + 3, HB_))
            e("v_xor_b32 v%d, s%d, v%d" % (HC, PE + 2, HC))
            e("v_and_b32 v%d, s%d, v%d" % (HB_, PE + 1, HB_))
            e("v_xor_b32 v%d, s%d, v%d" % (HB_, PE + 4, HB_))
            e("v_cndmask_b32 v%d, v%d, v%d, vcc" % (HC, HC, HB_))
            e("v_cmp_ne_u32 s[%d:%d], 0, v%d" % (PXM + 2 * k, PXM + 2 * k + 1, HC))
            e("v_xor_b32 v%d, s%d, v%d" % (HC, PNB, HC))
            e("v_mad_u32_u24 v%d, v%d, s%d, v%d" % (HC, HC, PIS, HPG))
            if XZ:
                e("s_add_u32 s%d, s%d, %d" % (PE + 5, PIM, img_k(k)))
            if P["fr"]:
                if k == 0:
                    e("s_memrealtime s[%d:%d]" % (PGT, PGT + 1))
                    e("s_waitcnt lgkmcnt(0)")
                twait(PGT, PGT + 2, P["fr"])
            e("s_mov_b64 exec, s[%d:%d]" % (PXM + 2 * k, PXM + 2 * k + 1))
            if XZ:
                e("buffer_load_dwordx4 v[%d:%d], v%d, s[%d:%d], s%d offen sc1" % (R, R + 3, HC, PWS, PWS + 3, PE + 5))
            elif not P["xkp"] & 128:
                e("buffer_load_dwordx4 v[%d:%d], v%d, s[%d:%d], s%d offen offset:%d sc1" %
                  (R, R + 3, HC, PWS, PWS + 3, PE + 5 if k >= 4 else PIM, (k % 4) * 1024))
            e("s_mov_b64 exec, -1")
        e("s_waitcnt vmcnt(0)")
        for k in range(6):
            R = HX + 4 * RS + 4 * k
            e("s_mov_b64 exec, s[%d:%d]" % (PXM + 2 * k, PXM + 2 * k + 1))
            e("ds_write_b128 v%d, v[%d:%d] offset:%d" % (HP, R, R + 3, L_LG + k * 1024))
        e("s_mov_b64 exec, -1")
    if P["go"]:
        for st in range(4):
            first_token(st)
            gathers(st)
    for st in range(4):
        R = HX + RS * st
        for c in range(3):
            e("ds_read_b64 v[%d:%d], v%d offset:%d" % (R + 2 * c, R + 2 * c + 1, HK, L_LG + st * 192 + 8 * c))
    e("s_mov_b32 s%d, 0" % PN0)
    e("v_mov_b32 v%d, 0x%08x" % (HB_, BIGNEG))
    e("v_mov_b32 v%d, 0x%08x" % (HA, BIGNEG))
    e("s_waitcnt vmcnt(0) lgkmcnt(0)")
    if CX:
        for st in range(4):
            R = HX + RS * st
            Q = HX + 4 * RS + 4 * st
            if st < 2:
                e("s_mov_b64 exec, s[%d:%d]" % (PXM + 2 * st, PXM + 2 * st + 1))
            for k in range(6):
                e("v_fma_mix_f32 v%d, v%d, 1.0, v%d op_sel:[%d,0,0] op_sel_hi:[1,0,0]" % (R + k, Q + 1 + k // 2, Q, k & 1))
            e("v_cmp_lt_f32 vcc, v%d, v%d" % (Q, R + 5))
            e("v_cndmask_b32 v%d, v%d, v%d, vcc" % (R + 5, R + 5, HZ))
        e("s_mov_b64 exec, -1")
    for st in range(4):
        R = HX + RS * st
        for k in range(6):
            e("v_sub_f32 v%d, v%d, v%d" % (R + k, R + k, R + 6))
        for k in range(6):
            e("v_mul_f32 v%d, s%d, v%d" % (R + k, PCC, R + k))
        e("v_cndmask_b32 v%d, v%d, v%d, s[%d:%d]" % (R + 5, HB_, R + 5, PSIX + 2 * st, PSIX + 2 * st + 1))
        for k in range(0, 6, 2):
            e("v_max3_f32 v%d, v%d, v%d, v%d" % (HA, HA, R + k, R + k + 1))
        for b in (R + 8, R + 12):
            for k in range(3):
                e("v_alignbit_b32 v%d, v%d, v%d, v%d" % (b + k, b + k + 1, b + k, R + 7))

    wave_reduce([HA], "v_max_f32", [HB_])
    e("v_mov_b32 v%d, 0" % HB_)
    e("v_mov_b32 v%d, 0" % HC)
    for st in range(4):
        R = HX + RS * st
        for k in range(6):
            e("v_sub_f32 v%d, v%d, v%d" % (R + k, R + k, HA))
        for k in range(6):
            e("v_exp_f32 v%d, v%d" % (R + k, R + k))
        for k in range(6):
            e("v_add_f32 v%d, v%d, v%d" % (HB_, HB_, R + k))
            if k & 1:
                e("v_and_b32 v%d, 0xffff0000, v%d" % (HE, R + 8 + k // 2))
                e("v_and_b32 v%d, 0xffff0000, v%d" % (HF, R + 12 + k // 2))
            else:
                e("v_lshlrev_b32 v%d, 16, v%d" % (HE, R + 8 + k // 2))
                e("v_lshlrev_b32 v%d, 16, v%d" % (HF, R + 12 + k // 2))
            e("v_mul_f32 v%d, v%d, v%d" % (R + k, R + k, HE))
            e("v_fmac_f32 v%d, v%d, v%d" % (HC, R + k, HF))
        e("ds_write_b128 v%d, v[%d:%d] offset:%d" % (HN, R, R + 3, L_PV + st * 2048))
        e("ds_write_b64 v%d, v[%d:%d] offset:%d" % (HN, R + 4, R + 5, L_PV + st * 2048 + 16))
    wave_reduce([HB_, HC], "v_add_f32", [HE, HF])
    e("s_lshl_b32 s%d, s%d, 2" % (PE, PPH))
    e("v_mov_b32 v%d, s%d" % (HE, PE))
    e("v_lshlrev_b32 v%d, 2, v%d" % (HF, HE))
    e("v_mov_b32 v%d, s%d" % (HD, PWD))
    e("s_mov_b64 exec, 1")
    e("ds_write_b128 v%d, v[%d:%d] offset:%d" % (HF, HA, HD, L_ML))
    e("ds_write_b32 v%d, v%d offset:%d" % (HE, HD, L_GO))
    if FU:
        e("s_lshl_b32 s%d, s%d, 8" % (PE, PPH))
        e("s_add_u32 s%d, s%d, s2" % (PE, PE))
        e("s_lshl_b32 s%d, s%d, 6" % (PE, PE))
        e("s_add_u32 s%d, s%d, %d" % (PE, PE, WS_ML))
        e("buffer_store_dwordx4 v[%d:%d], off, s[%d:%d], s%d sc1" % (HA, HD, PWS, PWS + 3, PE))
    e("s_mov_b64 exec, -1")
    e("v_add_u32 v%d, 8192, v%d" % (HN, HN))
    e("v_add_u32 v%d, %d, v%d" % (HK, PHI, HK))
    if CX:
        e("s_add_u32 s%d, s%d, %d" % (PIM, PIM, PHS))
    else:
        e("v_add_u32 v%d, %d, v%d" % (HP, PHI, HP))
        if PHS != PHI:
            e("s_add_u32 s%d, s%d, %d" % (PIM, PIM, PHS if XZ else PHS - PHI))
    e("s_add_u32 s%d, s%d, 1" % (PPH, PPH))
    e("s_cmp_lt_u32 s%d, 3" % PPH)
    e("s_cbranch_scc1 L_prep")
    e("s_mov_b32 s%d, 0" % PPH)
    e("v_lshlrev_b32 v%d, 2, v%d" % (HR, HL))
    e("v_add_u32 v%d, %d, v%d" % (HG, L_ACC, HR))
    e("v_lshlrev_b32 v%d, 4, v%d" % (HK, HL))
    e("v_mov_b32 v%d, 1" % (HX + 15))
    e.label("L_merge")
    e("s_lshl_b32 s%d, s%d, 2" % (PE, PPH))
    e("v_mov_b32 v%d, s%d" % (HW, PE))
    e("v_lshlrev_b32 v%d, 2, v%d" % (HF, HW))
    e("ds_read_b128 v[%d:%d], v%d offset:%d" % (HA, HD, HF, L_ML))
    e("s_lshl_b32 s%d, s%d, 8" % (PSG, PPH))
    e("s_add_u32 s%d, s%d, s2" % (PSG, PSG))
    e("s_lshl_b32 s%d, s%d, 10" % (PSG, PSG))
    lds_wait("m", HZ, HE, PE, L_CA, "4", PSP, HW)
    for kk in range(3):
        for w in range(NW):
            e("ds_read_b32 v%d, v%d offset:%d" % (HX + kk * NW + w, HG, w * ROWB + kk * 256))
    for kk in range(3):
        b = HX + kk * NW
        e("s_waitcnt lgkmcnt(%d)" % (8 - 4 * kk))
        e("v_add_f32 v%d, v%d, v%d" % (b, b, b + 1))
        e("v_add_f32 v%d, v%d, v%d" % (b + 2, b + 2, b + 3))
        e("v_sub_f32 v%d, v%d, v%d" % (b, b, HC))
        if FU:
            e("v_add_f32 v%d, v%d, v%d" % (HX + 12 + kk, b, b + 2))
            continue
        e("v_add_f32 v%d, v%d, v%d" % (b, b, b + 2))
        e("buffer_store_dword v%d, v%d, s[%d:%d], s%d offen offset:%d" % (b, HR, PWS, PWS + 3, PSG, kk * 256))
    if FU:
        e("buffer_store_dwordx4 v[%d:%d], v%d, s[%d:%d], s%d offen sc1" % (HX + 12, HX + 15, HK, PWS, PWS + 3, PSG))
    else:
        e("s_mov_b64 exec, 1")
        e("buffer_store_dwordx2 v[%d:%d], off, s[%d:%d], s%d offset:%d" % (HA, HB_, PWS, PWS + 3, PSG, DH * 4))
        e("s_mov_b64 exec, -1")
    e("v_add_u32 v%d, %d, v%d" % (HG, NW * ROWB, HG))
    e("s_add_u32 s%d, s%d, 1" % (PPH, PPH))
    e("s_cmp_lt_u32 s%d, %d" % (PPH, 2 if 0 < P["fc"] < 4 else 3))
    e("s_cbranch_scc1 L_merge")
    if 0 < P["fc"] < 4:
        last_gather()
    if P["stamp"] == 5:
        e("s_memrealtime s[%d:%d]" % (PT, PT + 1))
        e("s_waitcnt vmcnt(0)")
        e("s_memrealtime s[%d:%d]" % (PT + 2, PT + 3))
        srd(PS2, 82, 0x8000000)
        e("s_waitcnt lgkmcnt(0)")
        e("v_mov_b32 v%d, s%d" % (HX, PT))
        e("v_mov_b32 v%d, s%d" % (HX + 1, PT + 2))
        e("s_lshl_b32 s%d, s2, 3" % PE)
        e("s_add_u32 s%d, s%d, 0x400a000" % (PE, PE))
        e("s_mov_b64 exec, 1")
        e("buffer_store_dwordx2 v[%d:%d], off, s[%d:%d], s%d" % (HX, HX + 1, PS2, PS2 + 3, PE))
    e("s_endpgm")

    main_text = e.text()
    if P["nts"]:
        ls = []
        for l in main_text.split("\n"):
            w = l.split()
            if w and w[-1] == "sc1":
                big = w[0].endswith("x4")
                bit = (1 if big else 2) if w[0].startswith("buffer_store") else (4 if big else 8)
                if P["nts"] & bit:
                    l += " nt"
            ls.append(l)
        main_text = "\n".join(ls)
    RPW = 24
    k2 = NAME + "_kernel"
    e.lines.append(".globl %s" % k2)
    e.lines.append(".p2align 8")
    e.lines.append(".type %s,@function" % k2)
    e.lines.append(k2 + ":")
    e.wr = {}; e.tr = {}; e.sw = {}
    e("s_cmp_ge_u32 s2, %d" % H)
    e("s_cbranch_scc1 L_exit2")
    e("s_load_dwordx2 s[4:5], s[0:1], 56")
    e("s_load_dwordx2 s[6:7], s[0:1], 72")
    e("v_lshlrev_b32 v1, 2, v0")
    e("v_mov_b32 v2, 0")
    e("s_mul_i32 s16, s2, %d" % (RPW * PART_STRIDE))
    e("s_mov_b32 s10, %d" % (3 * NWG * PART_STRIDE))
    e("s_mov_b32 s11, 0x00020000")
    e("s_mov_b32 s14, %d" % (H * DH * 2))
    e("s_mov_b32 s15, 0x00020000")
    for k in range(1, RPW // 4):
        e("s_add_u32 s%d, s16, %d" % (16 + k, 4 * k * PART_STRIDE))
    e("s_waitcnt lgkmcnt(0)")
    e("s_mov_b32 s8, s6")
    e("s_and_b32 s9, s7, 0xffff")
    e("s_mov_b32 s12, s4")
    e("s_and_b32 s13, s5, 0xffff")
    MLB = 8
    OB = MLB + 2 * RPW
    for s in range(RPW):
        so = 16 + s // 4
        e("buffer_load_dwordx2 v[%d:%d], v2, s[8:11], s%d offen offset:%d" %
          (MLB + 2 * s, MLB + 2 * s + 1, so, (s % 4) * PART_STRIDE + DH * 4))
        e("buffer_load_dword v%d, v1, s[8:11], s%d offen offset:%d" % (OB + s, so, (s % 4) * PART_STRIDE))
    e("s_waitcnt vmcnt(0)")
    e("v_mov_b32 v4, v%d" % MLB)
    for s in range(1, RPW):
        e("v_max_f32 v4, v4, v%d" % (MLB + 2 * s))
    for s in range(RPW):
        e("v_sub_f32 v%d, v%d, v4" % (MLB + 2 * s, MLB + 2 * s))
    for s in range(RPW):
        e("v_exp_f32 v%d, v%d" % (MLB + 2 * s, MLB + 2 * s))
    e("v_mul_f32 v5, v%d, v%d" % (MLB, MLB + 1))
    e("v_mul_f32 v6, v%d, v%d" % (MLB, OB))
    for s in range(1, RPW):
        e("v_fmac_f32 v5, v%d, v%d" % (MLB + 2 * s, MLB + 2 * s + 1))
        e("v_fmac_f32 v6, v%d, v%d" % (MLB + 2 * s, OB + s))
    e("v_rcp_f32 v5, v5")
    e("v_mul_f32 v6, v6, v5")
    e("v_cvt_pk_bf16_f32 v6, v6, v6")
    e("s_mul_i32 s16, s2, %d" % (DH * 2))
    e("v_lshrrev_b32 v1, 1, v1")
    e("buffer_store_short v6, v1, s[12:15], s16 offen")
    e.lines.append("L_exit2:")
    e("s_endpgm")
    NV2 = OB + RPW

    def kd(name, nv, ns):
        acc = (nv + 3) // 4 * 4
        return """.amdhsa_kernel %s
  .amdhsa_next_free_vgpr %d
  .amdhsa_next_free_sgpr %d
  .amdhsa_accum_offset %d
  .amdhsa_group_segment_fixed_size 0
  .amdhsa_kernarg_size 80
  .amdhsa_user_sgpr_count 2
  .amdhsa_user_sgpr_kernarg_segment_ptr 1
  .amdhsa_system_sgpr_workgroup_id_x 1
.end_amdhsa_kernel
""" % (name, nv, ns, acc)

    diag = ""
    if P["diag"]:
        d = Emit4()
        d.lines += [".globl diag_kernel", ".p2align 8", ".type diag_kernel,@function", "diag_kernel:"]
        d("s_cmp_ge_u32 s2, 1")
        d("s_cbranch_scc1 L_dx")
        d("s_load_dwordx2 s[6:7], s[0:1], 72")
        d("s_memrealtime s[16:17]")
        d("v_lshlrev_b32 v1, 4, v0")
        d("s_mov_b32 s10, 0x8000000")
        d("s_mov_b32 s11, 0x00020000")
        d("s_waitcnt lgkmcnt(0)")
        d("s_mov_b32 s8, s6")
        d("s_and_b32 s9, s7, 0xffff")
        for k in range(16):
            d("s_mov_b32 s12, 0x%x" % (0x4000000 + k * 1024))
            d("buffer_load_dwordx4 v[%d:%d], v1, s[8:11], s12 offen" % (4 + 4 * k, 7 + 4 * k))
        d("s_waitcnt vmcnt(0)")
        d("v_readfirstlane_b32 s13, v4")
        d("v_mov_b32 v2, 0")
        d("v_mov_b32 v3, 0")
        for k in range(16):
            d("v_subrev_u32 v%d, s13, v%d" % (4 + 4 * k, 4 + 4 * k))
            d("v_subrev_u32 v%d, s13, v%d" % (5 + 4 * k, 4 + 4 * k + (P["diag"] & 3)))
            d("v_min_i32 v2, v2, v%d" % (4 + 4 * k))
            d("v_%s v3, v3, v%d" % ("add_u32" if P["diag"] & 128 else "max_i32", 5 + 4 * k))
        d("s_mov_b32 s14, 0")
        d("s_mov_b32 s15, 0")
        for l in range(64):
            d("v_readlane_b32 s18, v2, %d" % l)
            d("v_readlane_b32 s19, v3, %d" % l)
            d("s_nop 3")
            d("s_min_i32 s14, s14, s18")
            d("s_%s s15, s15, s19" % ("add_u32" if P["diag"] & 128 else "max_i32"))
        if P["diag"] & 128:
            d("s_ashr_i32 s15, s15, 10")
        if P["diag"] & 96:
            d("s_mov_b32 s12, 0x4100000")
            d("buffer_load_dwordx4 v[8:11], off, s[8:11], s12")
            d("v_readfirstlane_b32 s18, v6")
            d("s_waitcnt vmcnt(0)")
            d("v_readfirstlane_b32 s19, v8")
            d("v_readfirstlane_b32 s20, v9")
            d("v_readfirstlane_b32 s21, v10")
            d("s_and_b32 s18, s18, %d" % P["dth"])
            d("s_min_u32 s18, s18, 1")
            d("s_cmp_eq_u32 s19, 0x13572468")
            d("s_cselect_b32 s20, s20, 0")
            d("s_cselect_b32 s21, s21, 0")
            d("s_add_u32 s20, s20, s18")
            d("s_add_u32 s21, s21, 1")
            d("v_mov_b32 v8, 0x13572468")
            d("v_mov_b32 v9, s20")
            d("v_mov_b32 v10, s21")
            d("s_mov_b64 exec, 1")
            d("buffer_store_dwordx4 v[8:11], off, s[8:11], s12")
            d("s_mov_b32 s15, s%d" % (20 if P["diag"] & 32 else 21))
        elif P["diag"] & 8:
            d("s_load_dwordx2 s[20:21], s[0:1], 64")
            d("s_waitcnt lgkmcnt(0)")
            d("s_sub_u32 s20, s20, 512")
            d("s_subb_u32 s21, s21, 0")
            d("s_load_dword s15, s[20:21], 0")
            d("s_waitcnt lgkmcnt(0)")
            d("s_and_b32 s15, s15, 0xffffff")
            d("s_sub_u32 s15, s15, %d" % (48 * 65536))
            d("s_abs_i32 s15, s15")
            d("s_lshr_b32 s15, s15, 2")
            if P["diag"] & 16:
                d("s_cmp_lt_u32 s15, %d" % (P["dth"] // 4))
                d("s_cselect_b32 s15, 3000, 0")
                d("s_and_b32 s14, s16, 0xf0")
                d("s_cmp_lt_u32 s14, %d" % (16 * P["drn"]))
                d("s_cselect_b32 s15, 3000, s15")
        elif P["diag"] & 4:
            d("s_sub_u32 s14, s16, s13")
            d("s_sub_u32 s15, s14, s15")
        else:
            d("s_sub_u32 s15, s15, s14")
        d("s_sub_u32 s15, s15, %d" % P["doff"])
        d("s_max_i32 s15, s15, 0")
        d("s_min_i32 s15, s15, 10000")
        d("s_mul_i32 s15, s15, %d" % P["dmul"])
        d("s_add_u32 s15, s15, s16")
        d.label("L_dl")
        d("s_memrealtime s[18:19]")
        d("s_waitcnt lgkmcnt(0)")
        d("s_sub_u32 s18, s18, s15")
        d("s_cmp_lt_i32 s18, 0")
        d("s_cbranch_scc1 L_dl")
        d.lines.append("L_dx:")
        d("s_endpgm")
        diag = d.text()
    out = HEADER.replace("gen.py", "gen6.py").format(params=" ".join("%s=%s" % kv for kv in sorted(P.items())))
    if FU:
        out += "; @launch kernel=%s grid=(%d,1,1) block=(%d,1,1) lds=%d\n" % (k1, NWG, (NW + NHX) * 64, LDS1)
    else:
        out += "; @launch kernel=%s grid=(%d,1,1) block=(%d,1,1) lds=%d\n" % (k1, NWG, (NW + NHX) * 64, LDS1)
        out += "; @launch kernel=%s grid=(%d,1,1) block=(%d,1,1) lds=%d\n" % (k2, H, DH, 0)
    if diag:
        out += "; @launch kernel=diag_kernel grid=(1,1,1) block=(64,1,1) lds=0\n"
    out += '.amdgcn_target "amdgcn-amd-amdhsa--gfx950"\n.text\n'
    out += main_text if FU else e.text()
    out += diag
    out += '.section .rodata,"a"\n.p2align 6\n'
    out += kd(k1, NVGPR + (8 if P["xb"] else 2 if P["stamp"] == 5 else 0), 102)
    if not FU:
        out += ".p2align 6\n"
        out += kd(k2, NV2, 24)
    if diag:
        out += ".p2align 6\n"
        out += kd("diag_kernel", 72, 24)
    return out


DEFAULTS = dict(grp="6-6-6", n0=3, trg=1, ta=14, tb=15, jit=0, pace=1, nr0=1, nr=7, nt="nt", ldspad=0, stamp=0, xkp=0, force=0, clip=1400,
                l2t=290, th=200, pf=7, ob=2, ox=0, ds=1, td=3, tdm=3, fuse=1, cw=1,
                lx=0, wo=0, ns0=4, tw=4, ov="0000", st="sc1", xv="", h4=0, bnt=0, vw=1, at=1, tc=40, tg=2, te=44, aq=16, ka=9, kb=2048, dmin=0, dmax=11,
                bc=1, cpk="9-17-25-33-41", cpv="1-9-17-25-33", rd=2, ka2=8, kb2=512, bmax=6, be=1, pw=2, il=1, xp=0, ss=0, eb=0, pfi=0, hs=0, l2p=0, gts="16-32-48-64-80", gn=8, gtol=10, gcap=1000, gq=0, gl2=0, xb=0, diag=0, doff=20000, dmul=8, fc=4, elk=1, cd=9, fd=0, prio=0, bp=0, bp0=0, bq=0, wl=2048, wt=9984, sw=1, dc=1, xs=0, cx=1, fb=0, ib=0, dth=4800, drn=6, ut=0, wb=0, nts=0, wg=8192, wm=896, wbi=1152, lb=1, pb=1, cl2=100, th1=10, th0=10, lm=7, tt=0, tx=1584, d3=33, xa=200, xn=4, bt=0, bt0=0, be1=0, gp=140, gs=2, pp=0, go=1, fw=0, fr=0, xz=0, xr=15, ef=0, gf="", pol=0, ro=2, bs=0, bz=5, bz0=1, rx=0, pt=0, pk=30, pd=0, pe=0, hg=0, fq=0, cl=0, xq=0, xt=0, os="", x12=0, sg=0, bw=0, am=3, ak=4, xm="4-8-0-32-0", pm="041235", p8="", cm="", ab=0, sk="", ps=0, pl=8, pn=7, dry=0, rt=0)


def main():
    P = dict(DEFAULTS)
    outp = None
    args = sys.argv[1:]
    i = 0
    while i < len(args):
        a = args[i]
        if a == "-o":
            outp = args[i + 1]; i += 2; continue
        k, v = a.split("=", 1)
        assert k in P, k
        P[k] = type(P[k])(v.replace("+", " ")) if isinstance(P[k], str) else int(v)
        i += 1
    s = gen(P)
    if outp:
        open(outp, "w").write(s)
    else:
        sys.stdout.write(s)


if __name__ == "__main__":
    main()
```
